```python
import torch

def _softmax(x, axis=-1):
    return torch.softmax(x, dim=axis)
def _gelu(x):
    return torch.nn.functional.gelu(x, approximate="tanh")
def _silu(x):
    return torch.nn.functional.silu(x)
def _sigmoid(x):
    return torch.sigmoid(x)
def _layernorm(x, axis=-1, eps=1e-5):
    m = x.mean(dim=axis, keepdim=True)
    v = x.var(dim=axis, keepdim=True, unbiased=False)
    return (x - m) / torch.sqrt(v + eps)
def _scatter_add(tgt, idx, src, axis=0):
    return tgt.clone().index_add_(axis, idx, src)
def _segment_sum(src, seg, n):
    out = torch.zeros((n,) + src.shape[1:], dtype=src.dtype)
    return out.index_add_(0, seg, src)
def _pad(x, pw):
    flat = tuple(v for pair in reversed(pw) for v in pair)
    return torch.nn.functional.pad(x, flat)

kernel_name = 'parallel_sum__linear_attn_block__dense_activation_gelu__prompt'

def setup_inputs():

    _w = (lambda a: (lambda t: t.to(torch.bfloat16) if t.is_floating_point() else t)(torch.as_tensor(a)))
    def _A_setup():
        B, S, D = 1, 2048, 448
        return {
            "x": _w((lambda *s: torch.randn(*s, dtype=torch.bfloat16) * 0.05)(B, S, D)),
            "wqkv": _w((lambda *s: torch.randn(*s, dtype=torch.bfloat16) * 0.1)(D, 3 * D)),
            "wo": _w((lambda *s: torch.randn(*s, dtype=torch.bfloat16) * 0.05)(D, D)),
        }
    _A_in = _A_setup()

    def _B_setup():
        B, S, D, F = 1, 2048, 448, 1792
        return {
            "x": _w((lambda *s: torch.randn(*s, dtype=torch.bfloat16) * 0.05)(B, S, D)),
            "w1": _w((lambda *s: torch.randn(*s, dtype=torch.bfloat16) * 0.8)(D, F) * (D ** -0.5)),
            "b1": _w((lambda *s: torch.randn(*s, dtype=torch.bfloat16) * 12.8)(F) * 0.01),
            "w2": _w((lambda *s: torch.randn(*s, dtype=torch.bfloat16) * 0.2)(F, D) * (F ** -0.5)),
            "b2": _w((lambda *s: torch.randn(*s, dtype=torch.bfloat16) * 3.2)(D) * 0.01),
        }
    _B_in = _B_setup()

    return {
        "A_x": _A_in["x"],
        "A_wqkv": _A_in["wqkv"],
        "A_wo": _A_in["wo"],
        "B_x": _B_in["x"],
        "B_w1": _B_in["w1"],
        "B_b1": _B_in["b1"],
        "B_w2": _B_in["w2"],
        "B_b2": _B_in["b2"],
    }

def reference(A_x, A_wqkv, A_wo, B_x, B_w1, B_b1, B_w2, B_b2):
    def _A_ref(x, wqkv, wo):
        B, S, D = x.shape
        H = 16; Dh = D // H
        qkv = (lambda x, *d: x.permute(*d))((x @ wqkv).reshape(B, S, 3, H, Dh), 2, 0, 3, 1, 4)
        q, k, v = qkv[0], qkv[1], qkv[2]
        phi = lambda t: torch.where(t > 0, t + 1, torch.exp(t)) + 1e-6
        pq, pk = phi(q), phi(k)
        kv = torch.einsum("bhsd,bhse->bhde", pk, v)
        z = torch.einsum("bhsd->bhd", pk)
        num = torch.einsum("bhqd,bhde->bhqe", pq, kv)
        den = torch.einsum("bhqd,bhd->bhq", pq, z)[..., None] + 1e-6
        o = num / den
        return (lambda x, *d: x.permute(*d))(o, 0, 2, 1, 3).reshape(B, S, D) @ wo

    def _B_ref(x, w1, b1, w2, b2):
        h = torch.einsum("bsd,df->bsf", x, w1) + b1
        h = _gelu(h)
        return torch.einsum("bsf,fd->bsd", h, w2) + b2

    x = A_x
    xn = _layernorm(x, axis=-1)
    return x + _A_ref(xn, A_wqkv, A_wo) + _B_ref(xn, B_w1, B_b1, B_w2, B_b2)
```

```python
import re

REG_RE = re.compile(r'^(-?)(?:abs\()?([vs])(?:(\d+)|\[(\d+):(\d+)\])\)?$')
TRANS = ('v_exp_f32', 'v_rcp_f32', 'v_rsq_f32', 'v_sqrt_f32', 'v_log_f32')
NO_DST_S = ('s_cmp', 's_waitcnt', 's_barrier', 's_nop', 's_branch', 's_cbranch', 's_setprio', 's_sleep', 's_endpgm',
            's_bitcmp')


def regs(tok):
    tok = tok.strip()
    if tok in ('vcc', 'exec', 'm0'):
        return {tok}
    if tok in ('vcc_lo', 'vcc_hi'):
        return {'vcc'}
    m = REG_RE.match(tok)
    if not m:
        return set()
    k = m.group(2)
    if m.group(3) is not None:
        return {(k, int(m.group(3)))}
    return {(k, i) for i in range(int(m.group(4)), int(m.group(5)) + 1)}


def vr(a, n=1):
    return 'v%d' % a if n == 1 else 'v[%d:%d]' % (a, a + n - 1)


def sr(a, n=1):
    return 's%d' % a if n == 1 else 's[%d:%d]' % (a, a + n - 1)


class Ins:
    __slots__ = ('text', 'op', 'rd', 'wr', 'kind', 'tag', 'srcc', 'srcab', 'passes', 'data', 'wait', 'nops', 'n_vm',
                 'n_lgkm', 'lds')

    def __init__(self, text, tag=None):
        self.text = text
        self.tag = tag
        self.rd, self.wr = set(), set()
        self.srcc, self.srcab, self.data = set(), set(), set()
        self.passes = 0
        self.wait = None
        self.nops = 0
        self.n_vm = self.n_lgkm = None
        self.lds = False
        if text.endswith(':') or text.startswith('.') or text.startswith(';'):
            self.op, self.kind = text, 'label'
            return
        parts = text.split(None, 1)
        op = self.op = parts[0]
        rest = parts[1] if len(parts) > 1 else ''
        ops = [o.strip() for o in rest.split(',')] if rest else []
        mods = []
        if ops:
            if 'op_sel' in rest:
                ops = [o.strip() for o in rest[:rest.index('op_sel')].split(',')]
            last = ops[-1].split()
            ops[-1] = last[0] if last else ''
            mods = last[1:]
        R = [regs(o) for o in ops]
        allr = set().union(*R) if R else set()
        if op.startswith('v_mfma'):
            self.kind = 'mfma'
            self.wr = R[0]
            self.srcab = R[1] | R[2]
            self.srcc = R[3]
            self.rd = self.srcab | self.srcc
            self.passes = 4 if '16x16' in op else 8
        elif op.startswith('v_'):
            base = op.replace('_e32', '').replace('_e64', '')
            self.kind = 'trans' if base in TRANS else ('dot' if base.startswith('v_dot') else 'valu')
            self.wr = set(R[0])
            self.rd = set().union(*R[1:]) if len(R) > 1 else set()
            if base.startswith(('v_fmac', 'v_dot2c')):
                self.rd |= R[0]
            if base.startswith('v_permlane'):
                self.wr |= R[1]
                self.rd |= R[0]
        elif op.startswith('ds_'):
            self.kind = 'ds'
            if op.startswith('ds_read'):
                self.wr = R[0]
                self.rd = set().union(*R[1:])
            else:
                self.rd = allr
        elif op.startswith(('buffer_', 'global_')):
            self.kind = 'vmem'
            if 'lds' in mods:
                self.lds = True
                self.rd = allr | {'m0'}
            elif '_load' in op:
                self.wr = R[0]
                self.rd = set().union(*R[1:])
            else:
                self.rd = allr
                if 'atomic' in op and 'sc0' in mods:
                    self.wr = R[0]
                if 'x4' in op or 'x3' in op:
                    self.data = R[0] if op.startswith('buffer_') else R[1]
        elif op.startswith(('s_load', 's_buffer_load', 's_memtime', 's_memrealtime')):
            self.kind = 'smem'
            self.wr = R[0]
            self.rd = set().union(*R[1:]) if len(R) > 1 else set()
        elif op.startswith('s_'):
            self.kind = 'salu'
            if op.startswith(NO_DST_S):
                self.rd = allr
            else:
                self.wr = R[0]
                self.rd = set().union(*R[1:]) if len(R) > 1 else set()
        else:
            raise ValueError(text)


def Wait(vm=None, lgkm=None):
    i = Ins('s_waitcnt 0')
    i.kind = 'wait'
    i.wait = (vm, lgkm)
    return i


class Seg(list):
    def __init__(self, name=''):
        super().__init__()
        self.name = name

    def __call__(self, text, tag=None):
        for line in text.split('\n'):
            line = line.strip()
            if line:
                self.append(Ins(line, tag))
        return self

    def wait(self, vm=None, lgkm=None):
        self.append(Wait(vm, lgkm))
        return self


GAP = 'GAP'


def interleave(slots, filler, start=0, end=None):
    end = len(slots) if end is None else end
    ngap = sum(1 for f in filler if f is GAP)
    real = len(filler) - ngap
    nslot = max(1, end - start - ngap)
    per = real / nslot
    out, fi, credit = [], 0, 0.0
    for k, s in enumerate(slots):
        out.extend(s)
        if start <= k < end:
            if fi < len(filler) and filler[fi] is GAP:
                fi += 1
                continue
            credit += per
            while fi < len(filler) and filler[fi] is not GAP and (credit >= 0.999 or k == end - 1):
                out.append(filler[fi])
                fi += 1
                credit -= 1
            if k == end - 1:
                out.extend(f for f in filler[fi:] if f is not GAP)
                fi = len(filler)
    assert fi == len(filler)
    return out


def _as_list(t):
    if t is None:
        return []
    assert not isinstance(t, tuple)
    return t if isinstance(t, list) else [t]


def resolve_waits(paths):
    known = set()
    for path in paths:
        for seg in path:
            for ins in seg:
                if ins.tag is not None:
                    known.add(ins.tag)
    for path in paths:
        vm, lg = [], []
        vm_done = lg_done = 0
        here = {ins.tag for seg in path for ins in seg}
        for seg in path:
            for ins in seg:
                if ins.kind == 'vmem':
                    vm.append(ins.tag)
                elif ins.kind == 'ds':
                    lg.append(ins.tag)
                elif ins.kind == 'wait':
                    for which, lst, cap in ((0, vm, 63), (1, lg, 15)):
                        need = -1
                        force = False
                        for t in _as_list(ins.wait[which]):
                            if t == 'all':
                                need, force = len(lst) - 1, True
                                continue
                            assert t in known, 'unknown tag %r' % (t,)
                            idx = [k for k, x in enumerate(lst) if x == t]
                            assert idx or t not in here, 'wait before issue: %r' % (t,)
                            if idx:
                                need = max(need, idx[-1])
                        done = vm_done if which == 0 else lg_done
                        if need >= done or force:
                            n = min(len(lst) - 1 - need, cap)
                            if which == 0:
                                ins.n_vm = n if ins.n_vm is None else min(ins.n_vm, n)
                                vm_done = max(vm_done, len(lst) - n)
                            else:
                                ins.n_lgkm = n if ins.n_lgkm is None else min(ins.n_lgkm, n)
                                lg_done = max(lg_done, len(lst) - n)
    seen = set()
    for path in paths:
        for seg in path:
            if id(seg) in seen:
                continue
            seen.add(id(seg))
            keep = []
            for ins in seg:
                if ins.kind == 'wait':
                    if ins.n_vm is None and ins.n_lgkm is None:
                        continue
                    if keep and keep[-1].kind == 'wait':
                        p = keep[-1]
                        for a in ('n_vm', 'n_lgkm'):
                            x, y = getattr(p, a), getattr(ins, a)
                            setattr(p, a, y if x is None else (x if y is None else min(x, y)))
                        continue
                keep.append(ins)
            for ins in keep:
                if ins.kind == 'wait':
                    f = []
                    if ins.n_vm is not None:
                        f.append('vmcnt(%d)' % ins.n_vm)
                    if ins.n_lgkm is not None:
                        f.append('lgkmcnt(%d)' % ins.n_lgkm)
                    ins.text = 's_waitcnt ' + ' '.join(f)
            seg[:] = keep


VALUISH = ('valu', 'trans', 'dot')


def _need(p, c):
    n = 0
    vw = {r for r in p.wr if isinstance(r, tuple) and r[0] == 'v'}
    sw = p.wr - vw
    if p.kind in VALUISH:
        if c.kind == 'mfma' and vw & c.rd:
            n = max(n, 3 if p.kind == 'dot' else 2)
        if c.op.startswith('v_permlane') and vw & c.rd:
            n = max(n, 2)
        if c.op.startswith(('v_readfirstlane', 'v_readlane')) and vw & c.rd:
            n = max(n, 1)
        if p.kind == 'trans' and c.kind in ('valu', 'dot', 'trans') and vw & c.rd:
            n = max(n, 1)
        if p.kind == 'dot' and (vw & (c.rd | c.wr)) and c.op != p.op:
            n = max(n, 3)
        if sw:
            if c.kind in VALUISH and sw & c.rd:
                n = max(n, 2)
            if c.kind == 'vmem' and sw & c.rd:
                n = max(n, 5)
            if c.kind == 'salu' and sw & c.rd:
                n = max(n, 1)
    if p.kind == 'mfma':
        big = 12 if p.passes == 8 else 8
        if c.kind == 'mfma':
            if vw & c.srcab:
                n = max(n, big)
            if vw & c.srcc and not (c.srcc == p.wr and c.op == p.op):
                n = max(n, big - 2)
            if vw & c.wr and not (vw & c.srcc):
                n = max(n, big)
        elif c.kind in VALUISH or c.kind in ('vmem', 'ds'):
            if vw & (c.rd | c.wr):
                n = max(n, big)
        if c.kind in VALUISH and p.srcc & c.wr:
            n = max(n, 7 if p.passes == 8 else 3)
    if p.kind == 'salu' and 'm0' in p.wr and c.kind == 'vmem' and c.lds:
        n = max(n, 1)
    if p.kind == 'vmem' and p.data and p.data & c.wr:
        n = max(n, 2)
    return n


def _states(i):
    if i.kind == 'label':
        return 0
    if i.op == 's_nop':
        return int(i.text.split()[1]) + 1
    return 1


def pad_hazards(paths):
    total = 0
    for path in paths:
        flat = [i for seg in path for i in seg]
        for k, c in enumerate(flat):
            if c.kind in ('label', 'wait'):
                continue
            dist, j = c.nops, k - 1
            while j >= 0 and dist < 12:
                p = flat[j]
                need = _need(p, c)
                if need > dist:
                    total += need - dist
                    c.nops += need - dist
                    dist = need
                dist += _states(p) + p.nops
                j -= 1
    return total


def render(segs):
    out = []
    for seg in segs:
        for i in seg:
            n = i.nops
            while n > 0:
                m = min(n, 16)
                out.append('    s_nop %d' % (m - 1))
                n -= m
            out.append(i.text if i.kind == 'label' else '    ' + i.text)
    return '\n'.join(out)
```

```python
import struct
import sys
from asmlib import Seg, Ins, Wait, GAP, interleave, resolve_waits, pad_hazards, render, vr, sr

NAME = 'parallel_sum__linear_attn_block__dense_activation_gelu__prompt'
OPT = dict(diag=0, p1only=0)
for a in sys.argv[2:]:
    k, v = a.split('=')
    OPT[k] = int(v)


def f32(x):
    return '0x%08x' % struct.unpack('<I', struct.pack('<f', x))[0]


XS, WQS, W1S = 896, 2688, 3584
ACT_G = 147456
KV_OFF = 0x900000
FL_OFF = 0x910000
FKV_OFF = FL_OFF + 16384
TS_OFF = 0xA00000
WS_BYTES = 0x10000000
OOB = 0x40000000
R0, R1, R2, MISC = 0, 57344, 114688, 155648
M_ST, M_CS, M_R = MISC, MISC + 4096, MISC + 7168
LDS_BYTES = 163840
LOG2E = 1.4426950408889634
GC1 = -2.0 * 0.7978845608028654 * LOG2E
GC3 = GC1 * 0.044715
SPIN_LIMIT = 1 << 16

S_WV, S_RW, S_G, S_RB, S_ROLE = 3, 4, 5, 6, 7
SX, SW, SWS, SW2, SWO, SOUT, SB1, SB2, SDBG = 8, 12, 16, 20, 24, 28, 32, 36, 40
S_KA = 44
S_KX, S_KW = 66, 73
S_I2, S_HALF, S_T0, S_T1, S_ONES, S_EPS = 80, 81, 82, 83, 84, 85
S_M0W, S_M0X, S_B2G, S_R2G, S_H, S_FL = 86, 87, 88, 89, 90, 91
S_HI = 92
S_SPIN, S_T2, S_P, S_LAST, S_PEND, S_L2E = 94, 95, 96, 97, 98, 99
S_PAD = 100
S_B2R, S_QR0, S_QR1, S_QR2, S_A, S_PQ, S_KVA, S_WOR, S_OUTO, S_POLL = 66, 67, 68, 69, 70, 71, 72, 73, 74, 75

V_L16, V_B2, V_X0, V_X1, V_W, V_CSW, V_CSR = 1, 2, 3, 4, 5, 6, 7
V_SEL, V_CS, V_WA, V_XA, V_EXW, V_EXR, V_ST, V_B1 = 8, 12, 20, 28, 32, 36, 38, 42
V_FLO, V_ONE = 46, 47
V_T = 48
V_ACC, V_X, V_WF = 64, 128, 240
V_WB = 42
V_RA = 43
V_POLL = 44
V_PA = 45
V_BA, V_BAS, V_B2B, V_L16B, V_EXP, V_PA2, V_EXP2 = 3, 9, 11, 12, 13, 14, 15
V_NUM, V_BF, V_AB, V_RES = 16, 48, 128, 192

slow = Seg('slow')
nspin = [0]


def stamp(s, k):
    if OPT['diag']:
        s('s_memrealtime %s' % sr(S_KA + 2 * k, 2))


class Rebase:
    def __init__(self, regs, base, span):
        self.regs, self.base, self.span = regs, base, span

    def off(self, s, addr):
        if not (self.base <= addr and addr - self.base + self.span <= 65535):
            for r in self.regs:
                s('v_add_u32 v%d, 0x%x, v%d' % (r, (addr - self.base) & 0xffffffff, r))
            self.base = addr
        return addr - self.base


def spin_check(s, vpoll, vexp, vaddr, srd, soff, mask):
    k = nspin[0]
    nspin[0] += 1
    s('v_cmp_ge_u32 vcc, v%d, v%d' % (vpoll, vexp))
    s('s_andn2_b32 s%d, 0x%x, vcc_lo' % (S_T2, mask))
    s('s_cbranch_scc1 L_slow%d' % k)
    s('L_ret%d:' % k)
    slow('L_slow%d:' % k)
    slow('s_add_u32 s%d, s%d, 1' % (S_SPIN, S_SPIN))
    slow('s_cmp_gt_u32 s%d, 0x%x' % (S_SPIN, SPIN_LIMIT))
    slow('s_cbranch_scc1 L_ret%d' % k)
    slow('buffer_load_dword v%d, v%d, %s, %s offen sc1' % (vpoll, vaddr, sr(srd, 4), soff))
    slow('s_waitcnt vmcnt(0)')
    slow('v_cmp_ge_u32 vcc, v%d, v%d' % (vpoll, vexp))
    slow('s_nop 1')
    slow('s_andn2_b32 s%d, 0x%x, vcc_lo' % (S_T2, mask))
    slow('s_cbranch_scc1 L_slow%d' % k)
    slow('s_branch L_ret%d' % k)


def srd(s, d, ka, nbytes):
    s('s_mov_b32 s%d, s%d' % (d, ka))
    s('s_and_b32 s%d, s%d, 0xffff' % (d + 1, ka + 1))
    s('s_mov_b32 s%d, 0x%x' % (d + 2, nbytes))
    s('s_mov_b32 s%d, 0x20000' % (d + 3))


def prologue():
    s = Seg('pro')
    s('s_cmp_ge_u32 s2, 256')
    s('s_cbranch_scc1 L_end')
    s('s_load_dwordx16 s[44:59], s[0:1], 0')
    s('s_load_dwordx4 s[60:63], s[0:1], 64')
    s('s_load_dwordx2 s[64:65], s[0:1], 80')
    s('v_readfirstlane_b32 s%d, v0' % S_WV)
    s('s_getpc_b64 s[82:83]')
    s('s_lshr_b32 s%d, s%d, 6' % (S_WV, S_WV))
    s('s_lshr_b32 s%d, s2, 3' % S_T2)
    s('s_lshl_b32 s%d, s%d, 11' % (S_P, S_T2))
    s('v_lshl_add_u32 v%d, v0, 2, s%d' % (V_T, S_P))
    s('v_min_u32 v%d, L_codeend-L_codebeg-64, v%d' % (V_T, V_T))
    s('global_load_dword v%d, v%d, s[82:83]' % (V_T + 15, V_T))
    s('s_and_b32 s%d, s%d, 3' % (S_RW, S_WV))
    s('s_lshr_b32 s%d, s%d, 2' % (S_G, S_WV))
    s('s_and_b32 s%d, s%d, 7' % (S_ROLE, S_T2))
    s('s_lshr_b32 s%d, s%d, 3' % (S_T2, S_T2))
    s('s_and_b32 s%d, s2, 1' % S_HALF)
    s('s_and_b32 s%d, s2, 7' % S_P)
    s('s_lshl2_add_u32 s%d, s%d, s%d' % (S_I2, S_P, S_T2))
    s('s_lshr_b32 s%d, s%d, 1' % (S_P, S_P))
    s('s_lshl2_add_u32 s%d, s%d, s%d' % (S_RB, S_P, S_T2))
    s('s_lshl1_add_u32 s%d, s%d, s%d' % (S_T2, S_T2, S_ROLE))
    s('s_add_u32 s%d, s%d, s%d' % (S_T2, S_T2, S_P))
    s('s_mul_i32 s%d, s%d, 3' % (S_P, S_HALF))
    s('s_add_u32 s%d, s%d, s%d' % (S_T2, S_T2, S_P))
    for _ in range(2):
        s('s_cmp_ge_u32 s%d, 7' % S_T2)
        s('s_cselect_b32 s%d, 7, 0' % S_P)
        s('s_sub_u32 s%d, s%d, s%d' % (S_T2, S_T2, S_P))
    s('s_cmp_lt_u32 s%d, 4' % S_ROLE)
    s('s_mov_b32 s%d, %d' % (S_LAST, WQS))
    s('s_cselect_b32 s%d, %d, s%d' % (S_LAST, W1S, S_LAST))
    s('s_lshl_b32 s%d, s%d, 6' % (S_PEND, S_LAST))
    s('s_mul_i32 s%d, s%d, %d' % (S_P, S_RB, 128 * XS))
    for c in range(7):
        s('s_lshl_b32 s%d, s%d, 7' % (S_KX + c, S_T2))
        s('s_add_u32 s%d, s%d, s%d' % (S_KX + c, S_KX + c, S_P))
        s('s_mul_i32 s%d, s%d, s%d' % (S_KW + c, S_T2, S_PEND))
        if c < 6:
            s('s_add_u32 s%d, s%d, 1' % (S_T2, S_T2))
            s('s_cmp_eq_u32 s%d, 7' % S_T2)
            s('s_cselect_b32 s%d, 0, s%d' % (S_T2, S_T2))
    s('s_lshl_b32 s%d, s%d, 10' % (S_M0W, S_WV))
    s('s_lshl_b32 s%d, s%d, 11' % (S_M0X, S_WV))
    T = V_T
    s('v_and_b32 v%d, 63, v0' % T)
    s('v_lshlrev_b32 v%d, 4, v%d' % (V_L16, T))
    s('v_lshrrev_b32 v%d, 3, v%d' % (T + 1, T))
    s('v_and_b32 v%d, 7, v%d' % (T + 2, T))
    s('v_lshrrev_b32 v%d, 4, v%d' % (T + 3, T))
    s('s_lshl_b32 s%d, s%d, 4' % (S_T2, S_WV))
    s('v_add_u32 v%d, s%d, v%d' % (T + 5, S_T2, T + 1))
    s('v_mul_u32_u24 v%d, %d, v%d' % (T + 5, XS, T + 5))
    s('v_xor_b32 v%d, v%d, v%d' % (T + 6, T + 2, T + 3))
    s('v_lshl_add_u32 v%d, v%d, 4, v%d' % (V_X0, T + 6, T + 5))
    s('v_xor_b32 v%d, 64, v%d' % (V_X1, V_X0))
    s('v_add_u32 v%d, %d, v%d' % (V_X1, 8 * XS - 1024, V_X1))
    s('v_and_b32 v%d, 1, v%d' % (T + 7, T + 3))
    s('v_lshlrev_b32 v%d, 2, v%d' % (T + 4, T + 7))
    s('v_xor_b32 v%d, v%d, v%d' % (T + 4, T + 2, T + 4))
    s('v_lshlrev_b32 v%d, 4, v%d' % (T + 4, T + 4))
    s('v_mul_u32_u24 v%d, %d, v%d' % (V_B2, XS, T + 1))
    s('v_add_u32 v%d, v%d, v%d' % (V_B2, V_B2, T + 4))
    s('s_waitcnt lgkmcnt(0)')
    srd(s, SX, 44, 2048 * XS)
    s('s_cmp_lt_u32 s%d, 4' % S_ROLE)
    s('s_cselect_b32 s%d, s52, s46' % SW)
    s('s_cselect_b32 s%d, s53, s47' % (SW + 1))
    s('s_mul_i32 s%d, s%d, 448' % (SW + 2, S_LAST))
    s('s_and_b32 s%d, s%d, 0xffff' % (SW + 1, SW + 1))
    s('s_mov_b32 s%d, 0x20000' % (SW + 3))
    srd(s, SWS, 64, WS_BYTES)
    srd(s, SB1, 54, 1792 * 2)
    s('s_cmp_ge_u32 s%d, 7' % S_ROLE)
    s('s_cbranch_scc1 L_q')
    s('s_cmp_ge_u32 s%d, 4' % S_ROLE)
    s('s_cbranch_scc1 L_kv')
    return s


def late_setup(s, kv):
    T = V_T
    srd(s, SW2, 56, 1792 * XS)
    srd(s, SWO, 48, 448 * XS)
    srd(s, SOUT, 60, 2048 * XS)
    srd(s, SB2, 58, 448 * 2)
    srd(s, SDBG, 62, 256)
    stamp(s, 0)
    s('s_mov_b32 s%d, 0x3f803f80' % S_ONES)
    s('s_mov_b32 s%d, %s' % (S_EPS, f32(1e-6)))
    s('s_mov_b32 s%d, %s' % (S_L2E, f32(LOG2E)))
    s('s_mov_b32 s%d, 0' % S_HI)
    s('s_mov_b32 s%d, -1' % (S_HI + 1))
    s('s_mov_b32 s%d, 0xf0000000' % S_PAD)
    s('s_mov_b32 s%d, 0xf0000000' % (S_PAD + 1))
    s('s_mov_b32 s%d, 0' % S_SPIN)
    s('v_and_b32 v%d, 31, v%d' % (T + 8, T))
    s('v_lshrrev_b32 v%d, 5, v%d' % (T + 9, T))
    s('v_bfe_u32 v%d, v%d, 2, 2' % (T + 10, T))
    s('v_and_b32 v%d, 3, v%d' % (T + 11, T))
    s('s_lshl_b32 s%d, s%d, 1' % (S_T0, S_G))
    s('s_xor_b32 s%d, s%d, s%d' % (S_T0, S_T0, S_RW))
    s('s_lshl_b32 s%d, s%d, 1' % (S_T1, S_T0))
    s('v_add_u32 v%d, s%d, v%d' % (T + 12, S_T1, T + 9))
    s('v_bfe_u32 v%d, v%d, 1, 3' % (T + 13, T))
    s('v_xor_b32 v%d, v%d, v%d' % (T + 12, T + 12, T + 13))
    s('s_lshl_b32 s%d, s%d, 5' % (S_T1, S_RW))
    s('v_add_u32 v%d, s%d, v%d' % (T + 13, S_T1, T + 8))
    s('v_lshlrev_b32 v%d, 7, v%d' % (V_XA, T + 13))
    s('v_lshl_add_u32 v%d, v%d, 4, v%d' % (V_XA, T + 12, V_XA))
    for j in range(1, 4):
        s('v_xor_b32 v%d, %d, v%d' % (V_XA + j, j << 5, V_XA))
    s('s_lshl_b32 s%d, s%d, 4' % (S_T1, S_T0))
    s('v_lshl_add_u32 v%d, v%d, 3, v%d' % (T + 12, T + 9, T + 10))
    s('v_add_u32 v%d, s%d, v%d' % (T + 12, S_T1, T + 12))
    s('v_lshl_add_u32 v%d, v%d, 2, v%d' % (T + 14, T + 7, T + 11))
    s('v_and_b32 v%d, 1, v%d' % (T + 5, T + 10))
    s('v_mov_b32 v%d, s%d' % (T + 6, S_ONES))
    s('v_cmp_eq_u32 vcc, v%d, v%d' % (T + 5, T + 7))
    s('v_cndmask_b32 v%d, 0, v%d, vcc' % (V_SEL, T + 6))
    for j in range(1, 4):
        s('v_mov_b32 v%d, v%d' % (V_SEL + j, V_SEL))
    s('s_lshl_b32 s%d, s%d, %d' % (S_T1, S_G, 10 if kv else 9))
    s('s_add_u32 s%d, s%d, %d' % (S_T1, S_T1, M_CS))
    s('v_lshl_add_u32 v%d, v%d, 4, s%d' % (V_CSR, T + 8, S_T1))
    s('s_lshl_b32 s%d, s%d, 2' % (S_T1, S_RW))
    s('v_add_u32 v%d, s%d, v%d' % (V_CSW, S_T1, V_CSR))
    for j in range(4):
        s('v_mov_b32 v%d, 0' % (V_ST + j))
    s('v_mov_b32 v%d, 0' % (V_EXW + 1))
    s('v_mov_b32 v%d, 0' % (V_EXW + 3))
    s('v_mov_b32 v%d, 1' % V_ONE)
    s('v_mov_b32 v%d, 0x%x' % (V_FLO, OOB))
    s('v_cmp_eq_u32 vcc, 0, v%d' % T)
    s('v_cndmask_b32 v%d, v%d, 0, vcc' % (V_FLO, V_FLO))
    s('v_lshlrev_b32 v%d, 5, v%d' % (V_EXR, T + 13))
    s('v_add_u32 v%d, %d, v%d' % (V_EXR, M_ST, V_EXR))
    s('s_lshl_b32 s%d, s%d, 4' % (S_T1, S_G))
    s('v_lshl_add_u32 v%d, v%d, 3, s%d' % (V_EXR + 1, T + 9, S_T1))
    s('v_add_u32 v%d, v%d, v%d' % (V_EXR + 1, V_EXR, V_EXR + 1))
    s('s_mul_i32 s%d, s%d, 448' % (S_B2G, S_RW))
    s('s_lshl3_add_u32 s%d, s%d, s%d' % (S_B2G, S_G, S_B2G))
    s('s_mul_i32 s%d, s%d, %d' % (S_B2G, S_B2G, XS))
    s('s_lshl_b32 s%d, s%d, 7' % (S_T1, S_ROLE))
    s('s_add_u32 s%d, s%d, s%d' % (S_B2G, S_B2G, S_T1))
    s('s_lshl_b32 s%d, s%d, 10' % (S_R2G, S_G))
    s('s_lshl2_add_u32 s%d, s%d, s%d' % (S_H, S_RB, S_RW))
    s('s_lshr_b32 s%d, s%d, 1' % (S_FL, S_H))
    s('s_mul_i32 s%d, s%d, %d' % (S_H, S_H, ACT_G))
    s('s_lshl_b32 s%d, s%d, 9' % (S_FL, S_FL))
    s('s_add_u32 s%d, s%d, 0x%x' % (S_FL, S_FL, FL_OFF))


def dma_x(s, c, addr, tag):
    s('s_add_u32 m0, s%d, %d' % (S_M0X, addr))
    s('buffer_load_dwordx4 v%d, %s, s%d offen lds' % (V_X0, sr(SX, 4), S_KX + c), tag)
    s('buffer_load_dwordx4 v%d, %s, s%d offen offset:1024 lds' % (V_X1, sr(SX, 4), S_KX + c), tag)


def dma_lc(s, c, region, tag):
    s('s_add_u32 m0, s%d, %d' % (S_M0W, region + c * 8192))
    s('buffer_load_dwordx4 v%d, %s, s%d offen lds' % (V_W, sr(SW, 4), S_KW + c), tag)


def dma_kv(s, c, addr, tag):
    s('s_add_u32 m0, s%d, %d' % (S_M0X, addr))
    s('buffer_load_dwordx4 v%d, %s, s%d offen lds' % (V_W, sr(SW, 4), S_KW + c), tag)
    s('buffer_load_dwordx4 v%d, %s, s%d offen offset:1024 lds' % (V_WB, sr(SW, 4), S_KW + c), tag)


BLK = [0, 4, 1, 5, 2, 6, 3]


def unit_ks(u):
    return 4 * BLK[u >> 2] + (u & 3)


def unit_loc(u):
    if u < 5:
        return 2, u * 2048
    if u < 12:
        return 0, (u - 5) * 2048
    if u < 19:
        return 1, (u - 12) * 2048
    if u < 24:
        return 2, (u - 19) * 2048
    return 0, (u - 24) * 2048


RBASE = (R0, R1, R2)
RQUART = (14336, 14336, 10240)


def dma_b2_half(s, units, tag):
    reg = unit_loc(units[0])[0]
    s('s_mul_i32 s%d, s%d, %d' % (S_T0, S_RW, RQUART[reg]))
    s('s_add_u32 s%d, s%d, s%d' % (S_T0, S_T0, S_R2G))
    for u in units:
        assert unit_loc(u)[0] == reg
        s('s_add_u32 m0, s%d, %d' % (S_T0, RBASE[reg] + unit_loc(u)[1]))
        s('s_add_u32 s%d, s%d, %d' % (S_T1, S_B2G, unit_ks(u) * 16 * XS))
        s('buffer_load_dwordx4 v%d, %s, s%d offen lds' % (V_B2, sr(SW2, 4), S_T1), tag)


def flag(s, dword, soff=None):
    s('buffer_atomic_add v%d, v%d, %s, s%d offen offset:%d sc1' % (V_ONE, V_FLO, sr(SWS, 4), S_FL if soff is None else soff,
                                                                 dword * 4))


def f0_load(s):
    s('v_mov_b32 v%d, 0' % V_PA)
    s('buffer_load_dword v%d, v%d, %s, 0 offen sc1' % (V_POLL, V_PA, sr(SDBG, 4)), 'f0')


def f0_check(s):
    s('v_mov_b32 v%d, 32' % (V_T + 15))
    s.wait(vm='f0')
    spin_check(s, V_POLL, V_T + 15, V_PA, SDBG, '0', 1)


def poll_early(s):
    s('s_lshl2_add_u32 s%d, s%d, s%d' % (S_T0, S_I2, S_RW))
    s('s_lshl_b32 s%d, s%d, 7' % (S_T0, S_T0))
    s('s_add_u32 s%d, s%d, 0x%x' % (S_T0, S_T0, FL_OFF))
    s('v_bfe_u32 v%d, v%d, 2, 5' % (V_PA, V_L16))
    s('v_add_u32 v%d, s%d, v%d' % (V_PA, S_T0, V_PA))
    s('buffer_load_dword v%d, v%d, %s, 0 offen sc1' % (V_POLL, V_PA, sr(SWS, 4)), 'poll0')


def xreg(c, j):
    return V_X + 16 * c + 4 * j


def dots(s, c):
    for j in range(2):
        for r in range(4):
            x = xreg(c, j) + r
            s('v_dot2c_f32_bf16 v%d, s%d, v%d' % (V_ST + (r & 1), S_ONES, x))
            s('v_dot2c_f32_bf16 v%d, v%d, v%d' % (V_ST + 2 + (r & 1), x, x))


def stats_write(s):
    s('v_add_f32 v%d, v%d, v%d' % (V_ST, V_ST, V_ST + 1))
    s('v_add_f32 v%d, v%d, v%d' % (V_ST + 1, V_ST + 2, V_ST + 3))
    s('ds_write_b64 v%d, %s' % (V_EXR + 1, vr(V_ST, 2)))


def stats_final(kind):
    s, T = Seg(), V_T
    s('ds_read_b128 %s, v%d' % (vr(T, 4), V_EXR), 'st')
    s('ds_read_b128 %s, v%d offset:16' % (vr(T + 4, 4), V_EXR), 'st')
    s.append(GAP)
    s.wait(lgkm='st')
    s('v_add_f32 v%d, v%d, v%d' % (T, T, T + 2))
    s('v_add_f32 v%d, v%d, v%d' % (T + 1, T + 1, T + 3))
    s('v_add_f32 v%d, v%d, v%d' % (T + 4, T + 4, T + 6))
    s('v_add_f32 v%d, v%d, v%d' % (T + 5, T + 5, T + 7))
    s('v_add_f32 v%d, v%d, v%d' % (T, T, T + 4))
    s('v_add_f32 v%d, v%d, v%d' % (T + 1, T + 1, T + 5))
    s('v_mul_f32 v%d, %s, v%d' % (T, f32(1.0 / 448), T))
    s('v_mul_f32 v%d, %s, v%d' % (T + 1, f32(1.0 / 448), T + 1))
    s('v_fma_f32 v%d, -v%d, v%d, v%d' % (T + 1, T, T, T + 1))
    s('v_max_f32 v%d, 0, v%d' % (T + 1, T + 1))
    s('v_cvt_pk_bf16_f32 v%d, v%d, v%d' % (T + 1, T + 1, T + 1))
    s('v_lshlrev_b32 v%d, 16, v%d' % (T + 1, T + 1))
    s('v_add_f32 v%d, %s, v%d' % (T + 1, f32(1e-5), T + 1))
    s('v_cvt_pk_bf16_f32 v%d, v%d, v%d' % (T + 1, T + 1, T + 1))
    s('v_lshlrev_b32 v%d, 16, v%d' % (T + 1, T + 1))
    s('v_sqrt_f32 v%d, v%d' % (T + 1, T + 1))
    s('v_cvt_pk_bf16_f32 v%d, -v%d, -v%d' % (T, T, T))
    s('v_cvt_pk_bf16_f32 v%d, v%d, 0' % (T + 1, T + 1))
    s('v_cndmask_b32 v%d, v%d, 0, %s' % (V_EXR, T, sr(S_HI, 2)))
    s('v_lshlrev_b32 v%d, 16, v%d' % (V_ST + 2, T + 1))
    s('v_rcp_f32 v%d, v%d' % (V_ST + 3, V_ST + 2))
    s('v_cndmask_b32 v%d, v%d, 0, %s' % (V_EXR + 1, T + 1, sr(S_HI, 2)))
    if kind == 'gelu':
        s('v_mul_f32 v%d, %s, v%d' % (V_ST, f32(GC1), V_ST + 3))
        s('v_mul_f32 v%d, v%d, v%d' % (T, V_ST + 3, V_ST + 3))
        s('v_mul_f32 v%d, %s, v%d' % (V_ST + 1, f32(GC3), V_ST + 3))
        s('v_mul_f32 v%d, v%d, v%d' % (V_ST + 1, T, V_ST + 1))
    elif kind == 'phi':
        s('v_mul_f32 v%d, s%d, v%d' % (V_ST, S_L2E, V_ST + 3))
    else:
        s('s_lshl_b32 s%d, s%d, 7' % (S_T0, S_WV))
        s('s_add_u32 s%d, s%d, %d' % (S_T0, S_T0, M_R))
        s('v_bfe_u32 v%d, v%d, 2, 7' % (T, V_L16))
        s('v_add_u32 v%d, s%d, v%d' % (T, S_T0, T))
        s('ds_write_b32 v%d, v%d' % (T, V_ST + 3))
        s('v_lshrrev_b32 v%d, 9, v%d' % (V_RA, V_L16))
        s('v_lshl_add_u32 v%d, v%d, 4, s%d' % (V_RA, V_RA, S_T0))
    return s


def ext_corr(acc, off, exw, swap, bias=None, local=None):
    s, T = Seg(), V_T + 8
    if local is None:
        tag = ('cs', acc, off, nspin[0], id(s))
        s('ds_read_b128 %s, v%d offset:%d' % (vr(T, 4), V_CSR, off), tag)
        s.append(GAP)
        s.wait(lgkm=[tag])
        s('v_add_f32 v%d, v%d, v%d' % (T, T, T + 1))
        s('v_add_f32 v%d, v%d, v%d' % (T + 2, T + 2, T + 3))
        s('v_add_f32 v%d, v%d, v%d' % (T, T, T + 2))
        src = T
    else:
        src = local
    s('v_cvt_pk_bf16_f32 v%d, v%d, v%d' % (T + 1, src, src))
    s('v_lshlrev_b32 v%d, 16, v%d' % (T + 1, T + 1))
    s('v_sub_f32 v%d, v%d, v%d' % (T + 1, src, T + 1))
    s('v_cvt_pk_bf16_f32 v%d, v%d, v%d' % (exw, src, T + 1))
    if bias is not None:
        s('v_mov_b32 v%d, v%d' % (exw + 1, bias))
    s.append(GAP)
    a, b = (V_EXR, exw) if swap else (exw, V_EXR)
    s('v_mfma_f32_32x32x8_bf16 %s, %s, %s, %s' % (vr(acc, 16), vr(a, 2), vr(b, 2), vr(acc, 16)))
    return s


def epi_rowlane(kind, acc, tag):
    s, T = Seg(), V_T
    for grp in range(4):
        a = [acc + 4 * grp + e for e in range(4)]
        t = [T + e for e in range(4)]
        if kind == 'gelu':
            for e in range(4):
                s('v_mul_f32 v%d, v%d, v%d' % (t[e], a[e], a[e]))
            for e in range(4):
                s('v_fma_f32 v%d, v%d, v%d, v%d' % (t[e], t[e], V_ST + 1, V_ST))
            for e in range(4):
                s('v_mul_f32 v%d, v%d, v%d' % (t[e], a[e], t[e]))
            for e in range(4):
                s('v_exp_f32 v%d, v%d' % (t[e], t[e]))
            for e in range(4):
                s('v_fma_f32 v%d, v%d, v%d, v%d' % (t[e], t[e], V_ST + 2, V_ST + 2))
            for e in range(4):
                s('v_rcp_f32 v%d, v%d' % (t[e], t[e]))
            for e in range(4):
                s('v_mul_f32 v%d, v%d, v%d' % (a[e], a[e], t[e]))
        else:
            for e in range(4):
                s('v_mul_f32 v%d, v%d, v%d' % (t[e], a[e], V_ST))
            for e in range(4):
                s('v_exp_f32_e64 v%d, v%d clamp' % (t[e], t[e]))
            for e in range(4):
                s('v_fma_f32 v%d, v%d, v%d, s%d' % (a[e], a[e], V_ST + 3, S_EPS))
            for e in range(4):
                s('v_max_f32 v%d, s%d, v%d' % (a[e], S_EPS, a[e]))
            for e in range(4):
                s('v_add_f32 v%d, v%d, v%d' % (a[e], a[e], t[e]))
        p = acc + 8 * (grp >> 1) + 2 * (grp & 1)
        s('v_cvt_pk_bf16_f32 v%d, v%d, v%d' % (p, a[0], a[1]))
        s('v_cvt_pk_bf16_f32 v%d, v%d, v%d' % (p + 1, a[2], a[3]))
        if kind == 'phi' and grp == 3:
            s('v_cndmask_b32 v%d, v%d, 0, %s' % (p, p, sr(S_HI, 2)))
            s('v_cndmask_b32 v%d, v%d, 0, %s' % (p + 1, p + 1, sr(S_HI, 2)))
        if grp & 1:
            f = grp >> 1
            s('buffer_store_dwordx4 %s, v%d, %s, s%d offen offset:%d sc1' % (vr(acc + 8 * f, 4), V_L16, sr(SWS, 4), S_H, f * 1024), tag)
    return s


XSLOT = [R2, R2 + 16384, R1 + 8192, R1 + 24576, R1 + 40960, R2, R2 + 16384]


def lc_role(ffn):
    kind = 'gelu' if ffn else 'phi'
    nm = 'f' if ffn else 'q'
    s, T = Seg(nm), V_T
    if not ffn:
        s('L_q:')
    if ffn:
        s('s_lshl2_add_u32 s%d, s%d, s%d' % (S_P, S_HALF, S_ROLE))
        s('s_and_b32 s%d, s%d, 1' % (S_T1, S_P))
        s('s_mul_i32 s%d, s%d, 448' % (S_T0, S_P))
        s('s_lshl_b32 s%d, s%d, 6' % (S_PEND, S_T1))
        s('s_add_u32 s%d, s%d, s%d' % (S_T0, S_T0, S_PEND))
    else:
        s('s_mul_i32 s%d, s%d, 448' % (S_T0, S_HALF))
    s('s_lshl_b32 s%d, s%d, 3' % (S_T2, S_WV))
    s('v_add_u32 v%d, s%d, v%d' % (T + 5, S_T2, T + 1))
    s('v_mul_u32_u24 v%d, s%d, v%d' % (T + 5, S_LAST, T + 5))
    s('v_add3_u32 v%d, v%d, v%d, s%d' % (V_W, T + 5, T + 4, S_T0))
    if not ffn:
        s('s_lshl1_add_u32 s%d, s%d, s%d' % (S_T1, S_RB, S_HALF))
        s('s_mul_i32 s%d, s%d, 3072' % (S_T1, S_T1))
        s('s_add_u32 s%d, s%d, s%d' % (S_T1, S_T1, S_M0W))
        s('s_add_u32 s%d, s%d, 0x%x' % (S_T1, S_T1, KV_OFF))
        s('s_cmp_lt_u32 s%d, 3' % S_WV)
        s('s_cselect_b32 s%d, s%d, 0x%x' % (S_T1, S_T1, OOB))
        for j in range(4):
            s('v_mov_b32 v%d, 0' % (V_ACC + j))
        s('buffer_store_dwordx4 %s, v%d, %s, s%d offen sc1' % (vr(V_ACC, 4), V_L16, sr(SWS, 4), S_T1))
    for c in range(4):
        dma_x(s, c, XSLOT[c], (nm, 't', c))
        dma_lc(s, c, R0, (nm, 't', c))
    if ffn:
        s('v_and_b32 v%d, 31, v%d' % (T + 8, T))
        s('v_lshlrev_b32 v%d, 1, v%d' % (T + 8, T + 8))
        s('s_lshl_b32 s%d, s%d, 6' % (S_T1, S_G))
        s('s_add_u32 s%d, s%d, s%d' % (S_T1, S_T1, S_T0))
        for q in range(3):
            s('buffer_load_ushort v%d, v%d, %s, s%d offen offset:%d' % (V_B1 + q if q < 2 else V_CS + 4, T + 8, sr(SB1, 4), S_T1, q * 128))
        s('s_cmp_eq_u32 s%d, 0' % S_PEND)
        s('s_movk_i32 s%d, -64' % S_T1)
        s('s_movk_i32 s%d, -384' % S_LAST)
        s('s_cselect_b32 s%d, 384, s%d' % (S_T1, S_T1))
        s('s_cselect_b32 s%d, 128, s%d' % (S_LAST, S_LAST))
        s('s_add_u32 s%d, s%d, s%d' % (S_T1, S_T1, S_T0))
        s('buffer_load_ushort v%d, v%d, %s, s%d offen' % (V_CS + 5, T + 8, sr(SB1, 4), S_T1))
        s('s_mov_b32 s%d, s%d' % (S_T2, S_T0))
    bias = [V_B1, V_B1 + 1, V_CS + 4, V_CS + 5] if ffn else [None] * 4
    late_setup(s, False)
    if ffn:
        s('s_lshl_b32 s%d, s%d, 5' % (S_T2, S_T2))
        s('s_add_u32 s%d, s%d, s%d' % (S_H, S_H, S_T2))
        s('s_lshr_b32 s%d, s%d, 1' % (S_T1, S_P))
    else:
        s('s_lshl_b32 s%d, s%d, 14' % (S_T2, S_HALF))
        s('s_add_u32 s%d, s%d, s%d' % (S_H, S_H, S_T2))
        s('s_add_u32 s%d, s%d, %d' % (S_H, S_H, 112 * 1024))
        s('s_lshl_b32 s%d, s%d, 1' % (S_T1, S_HALF))
    s('s_lshl_b32 s%d, s%d, 11' % (S_T2, S_G))
    s('s_add_u32 s%d, s%d, s%d' % (S_H, S_H, S_T2))
    s('s_lshl_b32 s%d, s%d, 7' % (S_T1, S_T1))
    s('s_add_u32 s%d, s%d, s%d' % (S_FL, S_FL, S_T1))
    s('s_mul_i32 s%d, s%d, %d' % (S_T1, S_G, 64 if ffn else 56))
    s('v_lshl_add_u32 v%d, v%d, 3, s%d' % (T + 5, T + 14, S_T1))
    s('v_lshrrev_b32 v%d, 1, v%d' % (T + 6, T + 10))
    s('v_lshlrev_b32 v%d, 6, v%d' % (T + 6, T + 6))
    s('v_xor_b32 v%d, v%d, v%d' % (T + 5, T + 5, T + 6))
    s('v_lshl_add_u32 v%d, v%d, 7, v%d' % (V_WA, T + 12, T + 5))
    for j in range(1, 4):
        s('v_xor_b32 v%d, %d, v%d' % (V_WA + j, j << 11, V_WA))
    xa = Rebase([V_XA + j for j in range(4)], 0, 0)
    wa = Rebase([V_WA + j for j in range(4)], 0, 512)
    step = 128 if ffn else 112
    region = [R0, R1, R0, R1]

    def wread(t, q, c, j):
        o = wa.off(t, region[q] + c * 8192)
        for u in range(2):
            t('ds_read_b64_tr_b16 %s, v%d offset:%d' % (vr(V_WF + 4 * j + 2 * u, 2), V_WA + j, o + u * 512), (nm, 'w', q, c, j))

    def xread(t, c, j):
        o = xa.off(t, XSLOT[c])
        t('ds_read_b128 %s, v%d offset:%d' % (vr(xreg(c, j), 4), V_XA + j, o), (nm, 'x', c, j))

    def kstep(q, c, j, nxt, fullcs=False):
        t = Seg()
        acc = V_ACC + 16 * (q & 1)
        t.wait(lgkm=[(nm, 'w', q, c, j)])
        first = c == 0 and j == 0
        t('v_mfma_f32_32x32x16_bf16 %s, %s, %s, %s' % (vr(acc, 16), vr(V_WF + 4 * j, 4), vr(xreg(c, j), 4), '0' if first else vr(acc, 16)))
        if j == 0 or fullcs:
            t('v_mfma_f32_16x16x32_bf16 %s, %s, %s, %s' % (vr(V_CS, 4), vr(V_SEL, 4), vr(V_WF + 4 * j, 4), '0' if first else vr(V_CS, 4)))
        if nxt is not None:
            wread(t, nxt[0], nxt[1], j)
            if nxt[0] == 0:
                xread(t, nxt[1], j)
        return t

    def barrier(t, vm):
        t.wait(vm=vm, lgkm='all')
        t('s_barrier')

    def cs_write(t, q):
        t('ds_write_b32 v%d, v%d offset:%d' % (V_CSW, V_CS, (q & 1) * 1536))

    def next_col(t, last=False):
        if last and ffn:
            t('v_add_u32 v%d, s%d, v%d' % (V_W, S_LAST, V_W))
        else:
            t('v_add_u32 v%d, %d, v%d' % (V_W, step, V_W))

    barrier(s, [(nm, 't', 0)])
    stamp(s, 1)
    if not ffn:
        s('s_cmp_eq_u32 s%d, 0' % S_WV)
        s('s_cselect_b32 s%d, 0, 0x%x' % (S_T1, OOB))
        s('buffer_atomic_add v%d, v%d, %s, s%d offen sc1' % (V_ONE, V_FLO, sr(SDBG, 4), S_T1))
    dma_x(s, 4, XSLOT[4], (nm, 't', 4))
    dma_lc(s, 4, R0, (nm, 't', 4))
    for j in range(4):
        wread(s, 0, 0, j)
        xread(s, 0, j)
    for c in range(7):
        barrier(s, [(nm, 't', c + 1)] if c < 6 else [(nm, 'l', 1, 0)])
        if c < 2:
            dma_x(s, 5 + c, XSLOT[5 + c], (nm, 't', 5 + c))
            dma_lc(s, 5 + c, R0, (nm, 't', 5 + c))
        if c == 1:
            next_col(s)
            dma_lc(s, 0, R1, (nm, 'l', 1, 0))
        if 2 <= c <= 4:
            for k in (2 * c - 3, 2 * c - 2):
                dma_lc(s, k, R1, (nm, 'l', 1, k))
        if c == 5:
            next_col(s)
            for k in range(3):
                dma_lc(s, k, R0, (nm, 'l', 2, k))
        if c == 6:
            for k in range(3, 7):
                dma_lc(s, k, R0, (nm, 'l', 2, k))
        for j in range(4):
            s.extend(kstep(0, c, j, (0, c + 1) if c < 6 else (1, 0)))
        dots(s, c)
    cs_write(s, 0)
    stats_write(s)
    barrier(s, [(nm, 'l', 1, 3)])
    stamp(s, 2)

    def epi(q):
        return list(ext_corr(V_ACC + 16 * (q & 1), (q & 1) * 1536, V_EXW, False, bias[q])) + [GAP, GAP, GAP] + \
            list(epi_rowlane(kind, V_ACC + 16 * (q & 1), (nm, 'h', q)))

    def bump_h(t):
        t('s_add_u32 s%d, s%d, 4096' % (S_H, S_H))

    f0_load(s)
    if ffn:
        dma_b2_half(s, range(5), 'b2a')
    slots = []
    for c in range(7):
        for j in range(4):
            t = Seg()
            if c == 3 and j == 0:
                barrier(t, [(nm, 'l', 1, 6), (nm, 'l', 2, 0)])
            t.extend(kstep(1, c, j, (1, c + 1) if c < 6 else (2, 0)))
            slots.append(t)
    s.extend(interleave(slots, list(stats_final(kind)) + epi(0)))
    bump_h(s)
    cs_write(s, 1)
    f0_check(s)
    barrier(s, [(nm, 'l', 2, 6), 'b2a'])
    stamp(s, 3)
    next_col(s, True)
    for k in range(7):
        dma_lc(s, k, R1, (nm, 'l', 3, k))
    slots = []
    for c in range(7):
        for j in range(4):
            t = Seg()
            if c == 3 and j == 0 and ffn:
                t.wait(vm=[(nm, 'h', 0)])
                flag(t, 0)
            if c == 6 and j == 0:
                barrier(t, [(nm, 'l', 3, 6)])
                if ffn:
                    for k in range(4):
                        t('v_xor_b32 v%d, s%d, v%d' % (V_WA + k, S_PEND, V_WA + k))
            t.extend(kstep(2, c, j, (2, c + 1) if c < 6 else (3, 0)))
            slots.append(t)
    s.extend(interleave(slots, epi(1)))
    bump_h(s)
    cs_write(s, 2)
    barrier(s, None)
    stamp(s, 4)
    if ffn:
        s('s_cmp_eq_u32 s%d, 1' % S_G)
        s('s_cbranch_scc1 L_fb')
    a = Seg(nm + 'a')
    slots = []
    for c in range(7):
        for j in range(4):
            t = Seg()
            if c == 3 and j == 0:
                t.wait(vm=[(nm, 'h', 1)])
                flag(t, 1 if ffn else 4)
            t.extend(kstep(3, c, j, (3, c + 1) if c < 6 else None, fullcs=ffn))
            slots.append(t)
    a.extend(interleave(slots, epi(2)))
    stamp(a, 5)
    if ffn:
        a('s_cmp_eq_u32 s%d, 0' % S_PEND)
        a('s_movk_i32 s%d, %d' % (S_T1, -(8192 + 2048)))
        a('s_cselect_b32 s%d, 4096, s%d' % (S_T1, S_T1))
        a('s_add_u32 s%d, s%d, s%d' % (S_H, S_H, S_T1))
        e = [i for i in ext_corr(V_ACC + 16, 0, V_EXW, False, bias[3], local=V_CS) if i is not GAP]
        a.extend(e)
        e = list(epi_rowlane(kind, V_ACC + 16, (nm, 'h', 3)))
        a.extend(e[:56])
        a.wait(vm=[(nm, 'h', 2)])
        flag(a, 2)
        a.extend(e[56:])
        stamp(a, 6)
        if not OPT['p1only']:
            a('s_barrier')
        a.wait(vm=[(nm, 'h', 3)])
        flag(a, 3)
        a('s_branch L_atail')
        b = Seg('fb')
        b('L_fb:')
        p2_setup(b)
        for u in range(5, 12):
            dma_b2(b, u)
        e = [i for i in epi(2) if i is not GAP]
        b.extend(e[:64])
        b.wait(vm=[(nm, 'h', 1)])
        flag(b, 1)
        poll_early(b)
        b.extend(e[64:])
        b('s_add_u32 s%d, s%d, 8' % (S_PEND, S_FL))
        b('s_branch L_p2')
        return s, a, b
    bump_h(a)
    cs_write(a, 3)
    barrier(a, None)
    a.extend(i for i in epi(3) if i is not GAP)
    a.wait(vm='all')
    flag(a, 4 + 32)
    stamp(a, 6)
    a('s_branch L_fin')
    return s, a


def kv_slot(n):
    return ((n + 4) % 9) * 16384


def kv_role():
    s, T = Seg('kv'), V_T
    s('L_kv:')
    s('s_mul_i32 s%d, s%d, 3' % (S_P, S_HALF))
    s('s_add_u32 s%d, s%d, s%d' % (S_P, S_P, S_ROLE))
    s('s_sub_u32 s%d, s%d, 4' % (S_P, S_P))
    s('s_lshl_b32 s%d, s%d, 7' % (S_T0, S_P))
    s('s_add_u32 s%d, s%d, %d' % (S_T1, S_T0, XS))
    s('s_lshl_b32 s%d, s%d, 3' % (S_T2, S_WV))
    s('v_add_u32 v%d, s%d, v%d' % (T + 5, S_T2, T + 3))
    s('v_mul_u32_u24 v%d, %d, v%d' % (T + 5, WQS, T + 5))
    s('v_and_b32 v%d, 15, v%d' % (T + 6, T))
    s('v_lshlrev_b32 v%d, 2, v%d' % (T + 8, T + 3))
    s('v_xor_b32 v%d, v%d, v%d' % (T + 6, T + 6, T + 8))
    s('v_lshlrev_b32 v%d, 4, v%d' % (T + 6, T + 6))
    s('v_add3_u32 v%d, v%d, v%d, s%d' % (V_W, T + 5, T + 6, S_T1))
    s('v_add_u32 v%d, %d, v%d' % (V_WB, 4 * WQS - 1024, V_W))

    def item(t, n):
        if n >= 14:
            if n == 14:
                t('v_add_u32 v%d, %d, v%d' % (V_W, XS, V_W))
                t('v_add_u32 v%d, %d, v%d' % (V_WB, XS, V_WB))
            dma_kv(t, n - 14, kv_slot(n), ('k', 'i', n))
        elif n & 1:
            dma_kv(t, n >> 1, kv_slot(n), ('k', 'i', n))
        else:
            dma_x(t, n >> 1, kv_slot(n), ('k', 'i', n))

    for n in range(6):
        item(s, n)
    late_setup(s, True)
    s('s_lshl_b32 s%d, s%d, 2' % (S_T1, S_P))
    s('s_lshr_b32 s%d, 0xdb9630, s%d' % (S_LAST, S_T1))
    s('s_and_b32 s%d, s%d, 15' % (S_LAST, S_LAST))
    s('s_lshr_b32 s%d, 0x322333, s%d' % (S_PEND, S_T1))
    s('s_and_b32 s%d, s%d, 15' % (S_PEND, S_PEND))
    s('s_mul_i32 s%d, s%d, 56' % (S_T1, S_LAST))
    s('s_lshl_b32 s%d, s%d, 7' % (S_T0, S_P))
    s('s_sub_u32 s%d, s%d, s%d' % (S_T1, S_T1, S_T0))
    s('s_cmp_eq_u32 s%d, 3' % S_PEND)
    s('s_cselect_b32 s%d, 112, 0' % S_T0)
    s('s_mul_i32 s%d, s%d, s%d' % (S_T0, S_T0, S_G))
    s('s_add_u32 s%d, s%d, s%d' % (S_T1, S_T1, S_T0))
    s('v_min_u32 v%d, 6, v%d' % (T + 14, T + 14))
    s('v_lshl_add_u32 v%d, v%d, 3, s%d' % (T + 5, T + 14, S_T1))
    s('v_lshlrev_b32 v%d, 6, v%d' % (T + 6, T + 10))
    for t in range(2):
        if t:
            s('v_add_u32 v%d, 56, v%d' % (T + 5, T + 5))
        s('v_xor_b32 v%d, v%d, v%d' % (T + 8, T + 5, T + 6))
        s('v_lshl_add_u32 v%d, v%d, 8, v%d' % (V_WA + 4 * t, T + 12, T + 8))
        for j in range(1, 4):
            s('v_xor_b32 v%d, %d, v%d' % (V_WA + 4 * t + j, j << 12, V_WA + 4 * t))
    s('s_cmp_eq_u32 s%d, 1' % S_G)
    s('s_cbranch_scc1 L_kb')

    def body(nt):
        nm = 'ka' if nt == 2 else 'kb'
        b = Seg(nm)
        if nt == 1:
            b('L_kb:')
        xa = Rebase([V_XA + j for j in range(4)], 0, 0)
        wa = Rebase([V_WA + j for j in range(4 * nt)], 0, 1024)

        def witem(q, c):
            return 2 * c + 1 if q == 0 else 14 + c

        def wf(t, j):
            return V_WF + 8 * t + 4 * (j & 1)

        def wread(z, q, c, j):
            o = wa.off(z, kv_slot(witem(q, c)))
            for t in range(nt):
                for u in range(2):
                    z('ds_read_b64_tr_b16 %s, v%d offset:%d' % (vr(wf(t, j) + 2 * u, 2), V_WA + 4 * t + j, o + u * 1024), (nm, 'w', q, c, j, t))

        def xread(z, c, j):
            o = xa.off(z, kv_slot(2 * c))
            z('ds_read_b128 %s, v%d offset:%d' % (vr(xreg(c, j), 4), V_XA + j, o), (nm, 'x', c, j))

        def acc(q, t):
            return V_ACC + 32 * q + 16 * t

        def kstep(q, c, j):
            out = []
            first = c == 0 and j == 0
            for t in range(nt):
                z = Seg()
                z.wait(lgkm=[(nm, 'w', q, c, j, t)])
                z('v_mfma_f32_32x32x16_bf16 %s, %s, %s, %s' % (vr(acc(q, t), 16), vr(xreg(c, j), 4), vr(wf(t, j), 4), '0' if first else vr(acc(q, t), 16)))
                if j == 0:
                    z('v_mfma_f32_16x16x32_bf16 %s, %s, %s, %s' % (vr(V_CS + 4 * t, 4), vr(V_SEL, 4), vr(wf(t, j), 4), '0' if first else vr(V_CS + 4 * t, 4)))
                if t == nt - 1:
                    if j < 2:
                        wread(z, q, c, j + 2)
                    elif c < 6:
                        wread(z, q, c + 1, j - 2)
                    elif q == 0:
                        wread(z, 1, 0, j - 2)
                    if q == 0 and c < 6:
                        xread(z, c + 1, j)
                out.append(z)
            return out

        def barrier(z, vm):
            z.wait(vm=vm, lgkm='all')
            z('s_barrier')

        def cs_write(z, q):
            for t in range(nt):
                z('ds_write_b32 v%d, v%d offset:%d' % (V_CSW, V_CS + 4 * t, q * 1536 + t * 512))

        def rload(z, i, dst, key):
            z('ds_read_b128 %s, v%d offset:%d' % (vr(dst, 4), V_RA, i * 32), key)

        barrier(b, [('k', 'i', 1)])
        stamp(b, 1)
        for n in (6, 7, 8):
            item(b, n)
        for j in range(4):
            if j < 2:
                wread(b, 0, 0, j)
            xread(b, 0, j)
        for c in range(7):
            barrier(b, [('k', 'i', 2 * c + 3 if c < 6 else 14)])
            for n in ([9] if c == 0 else [2 * c + 8, 2 * c + 9]):
                if n <= 20:
                    item(b, n)
            for j in range(4):
                for z in kstep(0, c, j):
                    b.extend(z)
            dots(b, c)
        cs_write(b, 0)
        stats_write(b)
        barrier(b, [('k', 'i', 15)])
        stamp(b, 2)
        f0_load(b)
        dma_b2_half(b, range(5), 'b2a')
        fill = list(stats_final('kv'))
        for t in range(nt):
            fill += list(ext_corr(acc(0, t), t * 512, V_EXW + 2 * t, True))
        fill += [GAP, GAP]
        e = Seg()
        RB = [V_XA, V_T + 12]
        rload(e, 0, RB[0], (nm, 'r', 0))
        e.append(GAP)
        for i in range(4):
            if i < 3:
                rload(e, i + 1, RB[(i + 1) & 1], (nm, 'r', i + 1))
            e.wait(lgkm=[(nm, 'r', i)])
            for t in range(nt):
                a = [acc(0, t) + 4 * i + k for k in range(4)]
                for k in range(4):
                    e('v_fma_f32 v%d, v%d, v%d, s%d' % (a[k], a[k], RB[i & 1] + k, S_EPS))
                for k in range(4):
                    e('v_mul_f32 v%d, s%d, v%d' % (T + k, S_L2E, a[k]))
                for k in range(4):
                    e('v_exp_f32_e64 v%d, v%d clamp' % (T + k, T + k))
                for k in range(4):
                    e('v_max_f32 v%d, s%d, v%d' % (a[k], S_EPS, a[k]))
                for k in range(4):
                    e('v_add_f32 v%d, v%d, v%d' % (a[k], a[k], T + k))
                e('v_cvt_pk_bf16_f32 v%d, v%d, v%d' % (acc(0, t) + 2 * i, a[0], a[1]))
                e('v_cvt_pk_bf16_f32 v%d, v%d, v%d' % (acc(0, t) + 2 * i + 1, a[2], a[3]))
        fill += list(e)
        slots = []
        for c in range(7):
            for j in range(4):
                z = kstep(1, c, j)
                if j == 0 and 1 <= c <= 5:
                    pre = Seg()
                    barrier(pre, [('k', 'i', 15 + c)])
                    if c == 4:
                        dma_b2_half(pre, range(5, 12), 'b2b')
                    z[0][:0] = pre
                slots += z
        b.extend(interleave(slots, fill))
        cs_write(b, 1)
        f0_check(b)
        barrier(b, None)
        stamp(b, 3)
        if nt == 1:
            poll_early(b)
        for i in range(4):
            rload(b, i, V_WF + 4 * i, (nm, 'r2'))
        for t in range(nt):
            b.extend(i for i in ext_corr(acc(1, t), 1536 + t * 512, V_EXW + 2 * t, True) if i is not GAP)
        b('v_mov_b32 v%d, s%d' % (T, S_ONES))
        b('s_lshl3_add_u32 s%d, s%d, s%d' % (S_T0, S_G, S_RW))
        b('s_lshl_b32 s%d, s%d, 12' % (S_T0, S_T0))
        b('s_add_u32 s%d, s%d, %d' % (S_T0, S_T0, R1))
        b('v_add_u32 v%d, s%d, v%d' % (T + 1, S_T0, V_L16))
        b.wait(lgkm=[(nm, 'r2')])
        for t in range(nt):
            v = acc(1, t)
            for k in range(16):
                b('v_mul_f32 v%d, v%d, v%d' % (v + k, v + k, V_WF + k))
            for k in range(8):
                b('v_cvt_pk_bf16_f32 v%d, v%d, v%d' % (v + k, v + 2 * k, v + 2 * k + 1))
            for k in range(8):
                b('v_cndmask_b32 v%d, v%d, v%d, %s' % (v + k, v + k, T, sr(S_PAD, 2)))
            d = V_X + 16 * t
            for f in range(2):
                b('v_mfma_f32_32x32x16_bf16 %s, %s, %s, %s' % (vr(d, 16), vr(acc(0, t) + 4 * f, 4), vr(v + 4 * f, 4), vr(d, 16) if f else '0'))
        if nt == 1:
            p2_setup(b)
        for t in range(nt):
            for i in range(4):
                b('ds_write_b128 v%d, %s offset:%d' % (T + 1, vr(V_X + 16 * t + 4 * i, 4), t * 16384 + i * 1024))
        barrier(b, ['b2a', 'b2b'])
        stamp(b, 4)
        if nt == 1:
            b('s_mov_b32 s%d, 0x%x' % (S_PEND, OOB))
            b('s_branch L_p2')
            return b
        b('s_cmp_lt_u32 s%d, s%d' % (S_RW, S_PEND))
        b('s_cselect_b32 s%d, s%d, 0' % (S_T0, S_RW))
        b('s_cselect_b32 s%d, 0, 0x%x' % (S_T2, OOB))
        b('s_add_u32 s%d, s%d, s%d' % (S_T1, S_LAST, S_RW))
        b('s_lshl_b32 s%d, s%d, 14' % (S_T0, S_T0))
        b('s_add_u32 s%d, s%d, %d' % (S_T0, S_T0, R1))
        b('v_lshrrev_b32 v%d, 2, v%d' % (T + 2, V_L16))
        b('v_add_u32 v%d, s%d, v%d' % (T + 1, S_T0, T + 2))
        b('s_lshl_b32 s%d, s%d, 12' % (S_T0, S_T1))
        b('s_add_u32 s%d, s%d, s%d' % (S_T0, S_T0, S_T2))
        b('s_add_u32 s%d, s%d, 0x%x' % (S_T0, S_T0, KV_OFF))
        b('s_lshl_b32 s%d, s%d, 7' % (S_T1, S_T1))
        b('s_add_u32 s%d, s%d, s%d' % (S_T1, S_T1, S_T2))
        b('s_add_u32 s%d, s%d, 0x%x' % (S_FL, S_T1, FKV_OFF))
        for n in range(16):
            r = V_X + 4 * n
            b('ds_read2st64_b32 %s, v%d offset0:%d offset1:%d' % (vr(r, 2), T + 1, n, n + 16), ('red', n))
            b('ds_read2st64_b32 %s, v%d offset0:%d offset1:%d' % (vr(r + 2, 2), T + 1, n + 32, n + 48), ('red', n))
        for n in range(16):
            r = V_X + 4 * n
            b.wait(lgkm=[('red', n)])
            b('v_add_f32 v%d, v%d, v%d' % (r, r, r + 1))
            b('v_add_f32 v%d, v%d, v%d' % (r + 2, r + 2, r + 3))
            b('v_add_f32 v%d, v%d, v%d' % (r, r, r + 2))
            b('buffer_atomic_add_f32 v%d, v%d, %s, s%d offen offset:%d sc1' % (r, T + 2, sr(SWS, 4), S_T0, n * 256))
        stamp(b, 5)
        if not OPT['p1only']:
            b('s_barrier')
        b.wait(vm='all')
        stamp(b, 6)
        flag(b, 0)
        b('s_branch L_atail')
        return b

    return s, body(2), body(1)


def p2_setup(s):
    s('s_sub_u32 s%d, s%d, %d' % (S_B2R, S_B2G, 8 * XS))
    s('s_mul_i32 s%d, s%d, 14336' % (S_QR0, S_RW))
    s('s_add_u32 s%d, s%d, %d' % (S_QR1, S_QR0, R1))
    s('s_mul_i32 s%d, s%d, 10240' % (S_QR2, S_RW))
    s('s_add_u32 s%d, s%d, %d' % (S_QR2, S_QR2, R2))
    s('s_mul_i32 s%d, s%d, %d' % (S_PQ, S_I2, 2 * ACT_G))
    s('s_mul_i32 s%d, s%d, %d' % (S_A, S_RW, 28 * 1024))
    s('s_add_u32 s%d, s%d, s%d' % (S_A, S_A, S_PQ))
    s('s_lshl_b32 s%d, s%d, 13' % (S_T0, S_RW))
    s('s_add_u32 s%d, s%d, s%d' % (S_PQ, S_PQ, S_T0))
    s('s_add_u32 s%d, s%d, %d' % (S_PQ, S_PQ, 112 * 1024))
    s('s_lshl_b32 s%d, s%d, 14' % (S_KVA, S_RW))
    s('s_add_u32 s%d, s%d, 0x%x' % (S_KVA, S_KVA, KV_OFF))
    s('s_mul_i32 s%d, s%d, %d' % (S_WOR, S_RW, 112 * XS))
    s('s_lshl_b32 s%d, s%d, 7' % (S_T0, S_ROLE))
    s('s_add_u32 s%d, s%d, s%d' % (S_WOR, S_WOR, S_T0))
    s('v_add_u32 v%d, %d, v%d' % (V_B2B, 8 * XS - 1024, V_B2))


def dma_b2(s, u):
    if u < 28:
        reg, off = unit_loc(u)
        base, delta, w = S_B2R, unit_ks(u) * 16 * XS, SW2
    else:
        reg, off = 1, (u - 28) * 2048
        base, delta, w = S_WOR, (u - 28) * 16 * XS, SWO
    s('s_add_u32 m0, s%d, %d' % (S_QR0 + reg, off))
    s('s_add_u32 s%d, s%d, %d' % (S_T1, base, delta))
    s('buffer_load_dwordx4 v%d, %s, s%d offen lds' % (V_B2, sr(w, 4), S_T1), ('b', u))
    s('buffer_load_dwordx4 v%d, %s, s%d offen offset:1024 lds' % (V_B2B, sr(w, 4), S_T1), ('b', u))


def res_load(s):
    T = V_RES + 8
    s('s_mul_i32 s%d, s%d, %d' % (S_OUTO, S_I2, 64 * XS))
    s('s_lshl_b32 s%d, s%d, 7' % (S_T0, S_ROLE))
    s('s_add_u32 s%d, s%d, s%d' % (S_OUTO, S_OUTO, S_T0))
    s('v_lshrrev_b32 v%d, 3, v0' % (T + 1))
    s('v_and_b32 v%d, 0x70, v%d' % (T + 2, V_L16))
    s('v_mul_u32_u24 v%d, %d, v%d' % (T, XS, T + 1))
    s('v_add_u32 v%d, v%d, v%d' % (T, T, T + 2))
    s('buffer_load_dwordx4 %s, v%d, %s, s%d offen' % (vr(V_RES, 4), T, sr(SX, 4), S_OUTO), 'res')
    s('buffer_load_dwordx4 %s, v%d, %s, s%d offen' % (vr(V_RES + 4, 4), T + 2, sr(SB2, 4), S_T0), 'res')
    s('v_and_b32 v%d, 31, v%d' % (T + 1, T + 1))
    s('v_and_b32 v%d, 7, v%d' % (T + 3, T + 1))
    s('v_bfe_u32 v%d, v%d, 1, 1' % (T + 4, T + 1))
    s('v_lshl_add_u32 v%d, v%d, 3, v%d' % (T + 3, T + 4, T + 3))
    s('v_lshlrev_b32 v%d, 4, v%d' % (T + 3, T + 3))
    s('v_xor_b32 v%d, v%d, v%d' % (T + 3, T + 3, T + 2))
    s('s_mul_i32 s%d, s%d, %d' % (S_T0, S_G, R1))
    s('v_lshl_add_u32 v%d, v%d, 8, v%d' % (T + 1, T + 1, T + 3))
    s('v_add_u32 v%d, s%d, v%d' % (T + 1, S_T0, T + 1))
    s('v_xor_b32 v%d, 128, v%d' % (T + 2, T + 1))


def phase2():
    s, T = Seg('p2'), V_NUM
    s('L_p2:')
    if OPT['p1only']:
        s.wait(vm='all')
        flag(s, 0, S_PEND)
        s('s_branch L_fin')
        return s
    stamp(s, 5)
    s('v_add_u32 v%d, %d, v%d' % (V_L16B, ACT_G, V_L16))
    s('v_mov_b32 v%d, 4' % V_EXP)
    s('v_cmp_gt_u32 vcc, 48, v%d' % V_L16)
    s('v_cndmask_b32 v%d, v%d, 8, vcc' % (V_EXP, V_EXP))

    def abuf(u, rg):
        return V_AB + 8 * (u & 7) + 4 * rg

    def aload(z, u):
        if (u & 3) == 0:
            z('s_add_u32 s%d, s%d, %d' % (S_T0, S_A, BLK[u >> 2] * 4096))
        for rg in range(2):
            z('buffer_load_dwordx4 %s, v%d, %s, s%d offen offset:%d sc1' % (vr(abuf(u, rg), 4), V_L16B if rg else V_L16, sr(SWS, 4), S_T0, (u & 3) * 1024), ('a', u))

    def poll(z, tag, addr=V_PA):
        z('buffer_load_dword v%d, v%d, %s, 0 offen sc1' % (V_POLL, addr, sr(SWS, 4)), tag)

    s.wait(vm='poll0')
    spin_check(s, V_POLL, V_EXP, V_PA, SWS, '0', 1)
    poll(s, 'poll1')
    for u in range(8):
        aload(s, u)
    s('v_lshrrev_b32 v%d, 4, v%d' % (T, V_L16))
    s('v_bfe_u32 v%d, v%d, 2, 2' % (T + 1, T))
    s('v_and_b32 v%d, 3, v%d' % (T + 2, T))
    s('v_bfe_u32 v%d, v%d, 4, 1' % (T + 3, T))
    s('v_lshl_add_u32 v%d, v%d, 2, v%d' % (T + 2, T + 3, T + 2))
    s('v_lshrrev_b32 v%d, 1, v%d' % (T + 3, T + 1))
    s('v_lshlrev_b32 v%d, 6, v%d' % (T + 3, T + 3))
    s('v_lshl_add_u32 v%d, v%d, 3, v%d' % (T + 2, T + 2, T + 3))
    s('v_lshl_add_u32 v%d, v%d, 7, v%d' % (T + 2, T + 1, T + 2))
    s('v_lshrrev_b32 v%d, 5, v%d' % (T + 3, T))
    s('v_lshl_add_u32 v%d, v%d, 9, v%d' % (T + 3, T + 3, T + 2))
    for reg in range(3):
        s('v_add_u32 v%d, s%d, v%d' % (V_BA + 2 * reg, S_QR0 + reg, T + 3))
        s('v_xor_b32 v%d, 64, v%d' % (V_BA + 2 * reg + 1, V_BA + 2 * reg))
    s('v_add_u32 v%d, s%d, v%d' % (V_BAS, S_QR1, T + 2))
    s('v_xor_b32 v%d, 64, v%d' % (V_BAS + 1, V_BAS))
    s('s_lshl_b32 s%d, s%d, 9' % (S_T1, S_RW))
    s('s_add_u32 s%d, s%d, 0x%x' % (S_T1, S_T1, FKV_OFF))
    s('v_lshl_add_u32 v%d, v%d, 7, s%d' % (T + 1, T, S_T1))
    s('v_and_b32 v%d, 0xffffff80, v%d' % (T + 2, V_PA))
    s('v_add_u32 v%d, 16, v%d' % (T + 2, T + 2))
    s('v_cmp_gt_u32 vcc, 4, v%d' % T)
    s('v_cndmask_b32 v%d, v%d, v%d, vcc' % (V_PA2, T + 2, T + 1))
    s('v_mov_b32 v%d, 4' % V_EXP2)
    s('v_cndmask_b32 v%d, v%d, 16, vcc' % (V_EXP2, V_EXP2))

    def bf(par, ct):
        return V_BF + 8 * par + 4 * ct

    def bread(z, u):
        reg, off = unit_loc(u)
        if u >= 5:
            z.wait(vm=[('b', u)])
        for ct in range(2):
            for h in range(2):
                z('ds_read_b64_tr_b16 %s, v%d offset:%d' % (vr(bf(u & 1, ct) + 2 * h, 2), V_BA + 2 * reg + ct, off + h * 1024), ('bf', u, ct))

    def woread(z, hd, f):
        z.wait(vm=[('b', 34)])
        for ct in range(2):
            for h in range(2):
                a = V_BAS + ct if (f == 1 and h == 1) else V_BA + 2 + ct
                z('ds_read_b64_tr_b16 %s, v%d offset:%d' % (vr(bf(f, ct) + 2 * h, 2), a, (28 * hd + 16 * f + 8 * h) * 128), ('wf', hd, f, ct))

    def acc(ct, rg):
        return V_ACC + 32 * ct + 16 * rg

    HB = [V_AB + 64, V_AB + 96, V_AB + 32, V_AB]

    def hload(z, hd):
        z('s_add_u32 s%d, s%d, %d' % (S_T0, S_KVA, hd * 4096))
        z('s_add_u32 s%d, s%d, %d' % (S_T1, S_PQ, hd * 2048))
        for i in range(4):
            z('buffer_load_dwordx4 %s, v%d, %s, s%d offen offset:%d sc1' % (vr(HB[hd] + 4 * i, 4), V_L16, sr(SWS, 4), S_T0, i * 1024), ('kv', hd))
        for rg in range(2):
            for f in range(2):
                z('buffer_load_dwordx4 %s, v%d, %s, s%d offen offset:%d sc1' % (vr(HB[hd] + 16 + 8 * rg + 4 * f, 4), V_L16B if rg else V_L16, sr(SWS, 4), S_T1, f * 1024), ('pq', hd))

    s.wait(vm='poll1')
    flag(s, 0, S_PEND)
    bread(s, 0)
    for u in range(28):
        if u in (0, 8, 16):
            st = (u >> 3) + 1
            s.wait(vm='poll%d' % st)
            spin_check(s, V_POLL, V_EXP, V_PA, SWS, '0', 1 << st)
        if u == 20:
            s.wait(vm='poll4')
            spin_check(s, V_POLL, V_EXP2, V_PA2, SWS, '0', 0x1f)
            stamp(s, 7)
            hload(s, 0)
            hload(s, 1)
        if u == 3:
            s('s_barrier')
            stamp(s, 6)
        if u < 27:
            bread(s, u + 1)
        s.wait(vm=[('a', u)])
        for ct in range(2):
            s.wait(lgkm=[('bf', u, ct)])
            for rg in range(2):
                s('v_mfma_f32_32x32x16_bf16 %s, %s, %s, %s' % (vr(acc(ct, rg), 16), vr(bf(u & 1, ct), 4), vr(abuf(u, rg), 4), vr(acc(ct, rg), 16) if u else '0'))
        if u in (4, 12):
            poll(s, 'poll%d' % ((u >> 3) + 2))
        if u == 16:
            poll(s, 'poll4', V_PA2)
        if u + 8 < 28:
            aload(s, u + 8)
        if 3 <= u <= 9:
            dma_b2(s, u + 9)
        if 7 <= u <= 15:
            dma_b2(s, u + 12)
        if 13 <= u <= 19:
            dma_b2(s, u + 15)
        if u == 23:
            hload(s, 2)
        if u == 27:
            hload(s, 3)
    stamp(s, 8)

    def wo_slots(hd):
        out = []
        for f in range(2):
            for ct in range(2):
                for rg in range(2):
                    z = Seg()
                    z.wait(lgkm=[('wf', hd, f, ct)])
                    z('v_mfma_f32_32x32x16_bf16 %s, %s, %s, %s' % (vr(acc(ct, rg), 16), vr(bf(f, ct), 4), vr(HB[hd] + 16 + 8 * rg + 4 * f, 4), vr(acc(ct, rg), 16)))
                    out.append(z)
        return out

    def scale(hd):
        z = Seg()
        t = HB[hd] + 8
        for rg in range(2):
            n = V_NUM + 16 * rg
            z('v_add_f32 v%d, s%d, v%d' % (t + 2 * rg, S_EPS, n + 12))
            z('v_add_f32 v%d, s%d, v%d' % (t + 2 * rg + 1, S_EPS, n + 12))
        for rg in range(2):
            z('v_permlane32_swap_b32 v%d, v%d' % (t + 2 * rg, t + 2 * rg + 1))
        for rg in range(2):
            z('v_rcp_f32 v%d, v%d' % (t + 2 * rg + 1, t + 2 * rg + 1))
        for rg in range(2):
            z('v_cndmask_b32 v%d, v%d, 0, %s' % (t + 2 * rg, t + 2 * rg + 1, sr(S_HI, 2)))
        for rg in range(2):
            n = V_NUM + 16 * rg
            for k in range(16):
                z('v_mul_f32 v%d, v%d, v%d' % (n + k, n + k, t + 2 * rg + (0 if k >= 12 else 1)))
            for k in range(8):
                z('v_cvt_pk_bf16_f32 v%d, v%d, v%d' % (HB[hd] + 16 + 8 * rg + k, n + 2 * k, n + 2 * k + 1))
        return z

    for hd in range(5):
        if hd < 4:
            s.wait(vm=[('kv', hd)])
            for k in range(8):
                s('v_cvt_pk_bf16_f32 v%d, v%d, v%d' % (HB[hd] + k, HB[hd] + 2 * k, HB[hd] + 2 * k + 1))
        if hd > 0:
            woread(s, hd - 1, 0)
            woread(s, hd - 1, 1)
        if hd < 4:
            s.wait(vm=[('pq', hd)])
            for f in range(2):
                for rg in range(2):
                    n = V_NUM + 16 * rg
                    s('v_mfma_f32_32x32x16_bf16 %s, %s, %s, %s' % (vr(n, 16), vr(HB[hd] + 4 * f, 4), vr(HB[hd] + 16 + 8 * rg + 4 * f, 4), vr(n, 16) if f else '0'))
        if hd == 0:
            s.extend(scale(0))
        elif hd < 4:
            if hd == 2:
                res_load(s)
            s.extend(interleave(wo_slots(hd - 1), list(scale(hd)), start=2))
        else:
            z = Seg()
            z('v_bfe_u32 v%d, v%d, 4, 5' % (T, V_L16))
            z('v_and_b32 v%d, 7, v%d' % (T + 1, T))
            z('v_bfe_u32 v%d, v%d, 1, 1' % (T + 2, T))
            z('v_lshrrev_b32 v%d, 9, v%d' % (T + 3, V_L16))
            z('v_xor_b32 v%d, v%d, v%d' % (T + 2, T + 2, T + 3))
            z('v_lshl_add_u32 v%d, v%d, 3, v%d' % (T + 1, T + 2, T + 1))
            z('v_lshlrev_b32 v%d, 4, v%d' % (T + 1, T + 1))
            z('v_lshl_add_u32 v%d, v%d, 8, v%d' % (T + 1, T, T + 1))
            z('v_add_u32 v%d, s%d, v%d' % (T + 8, S_QR0, T + 1))
            for k in range(1, 8):
                z('v_xor_b32 v%d, %d, v%d' % (T + 8 + k, k << 4, T + 8))
            s.extend(interleave(wo_slots(3), list(z)))
    stamp(s, 9)
    for ct in range(2):
        for rg in range(2):
            for i in range(4):
                s('ds_write_b128 v%d, %s offset:%d' % (T + 8 + 4 * ct + i, vr(acc(ct, rg) + 4 * i, 4), rg * R1))
    s('s_branch L_final')
    return s


def atail():
    s = Seg('atail')
    s('L_atail:')
    if OPT['p1only']:
        s('s_branch L_fin')
        return s
    res_load(s)
    return s


def final():
    s, T = Seg('final'), V_RES + 8
    s('L_final:')
    if not OPT['p1only']:
        s.wait(vm='res')
        D, U = V_ACC, V_NUM
        for k in range(4):
            s('v_lshlrev_b32 v%d, 16, v%d' % (U + 2 * k, V_RES + k))
            s('v_and_b32 v%d, 0xffff0000, v%d' % (U + 2 * k + 1, V_RES + k))
            s('v_lshlrev_b32 v%d, 16, v%d' % (V_RES + k, V_RES + 4 + k))
            s('v_and_b32 v%d, 0xffff0000, v%d' % (V_RES + 4 + k, V_RES + 4 + k))
            s('v_add_f32 v%d, v%d, v%d' % (U + 2 * k, U + 2 * k, V_RES + k))
            s('v_add_f32 v%d, v%d, v%d' % (U + 2 * k + 1, U + 2 * k + 1, V_RES + 4 + k))
        s.wait(lgkm='all')
        s('s_barrier')
        for w in range(4):
            for h in range(2):
                s('ds_read_b128 %s, v%d offset:%d' % (vr(D + 8 * w + 4 * h, 4), T + 1 + h, w * 14336), ('fin', w))
        for w in range(4):
            s.wait(lgkm=[('fin', w)])
            for k in range(4):
                s('v_pk_add_f32 %s, %s, %s' % (vr(U + 2 * k, 2), vr(U + 2 * k, 2), vr(D + 8 * w + 2 * k, 2)))
        for k in range(4):
            s('v_cvt_pk_bf16_f32 v%d, v%d, v%d' % (U + k, U + 2 * k, U + 2 * k + 1))
        s('buffer_store_dwordx4 %s, v%d, %s, s%d offen' % (vr(U, 4), T, sr(SOUT, 4), S_OUTO))
    return s


def fin():
    s = Seg('fin')
    s('L_fin:')
    if OPT['diag']:
        stamp(s, 10)
        s('s_waitcnt lgkmcnt(0)')
        s('v_mov_b32 v4, 0')
        for k in range(11):
            s('v_writelane_b32 v4, s%d, %d' % (S_KA + 2 * k, k))
        s('v_writelane_b32 v4, s%d, 11' % S_SPIN)
        s('s_lshl3_add_u32 s%d, s2, s%d' % (S_T0, S_WV))
        s('s_lshl_b32 s%d, s%d, 8' % (S_T0, S_T0))
        s('s_add_u32 s%d, s%d, 0x%x' % (S_T0, S_T0, TS_OFF))
        s('v_lshrrev_b32 v5, 2, v%d' % V_L16)
        s('buffer_store_dword v4, v5, %s, s%d offen' % (sr(SWS, 4), S_T0))
    s('L_end:')
    s('s_endpgm')
    return s


def main():
    pro = prologue()
    f, fa, fb = lc_role(True)
    q, qa = lc_role(False)
    k, ka, kb = kv_role()
    p2, at, fl, fi = phase2(), atail(), final(), fin()
    paths = [
        [pro, f, fa, at, fl, fi],
        [pro, f, fb, p2, fl, fi],
        [pro, q, qa, fi],
        [pro, k, ka, at, fl, fi],
        [pro, k, kb, p2, fl, fi],
    ]
    resolve_waits(paths)
    n = pad_hazards(paths)
    assert pad_hazards(paths) == 0
    body = render([pro, f, fa, fb, k, ka, kb, q, qa, p2, at, fl, fi, slow])
    head = open('cdna_kernels/%s.s.ref' % NAME).read().split('\n')
    head = [l for l in head if l.startswith(';') and '@launch' not in l]
    out = '\n'.join(head) + '''
; @launch grid=(256,1,1) block=(512,1,1) lds=%d
.amdgcn_target "amdgcn-amd-amdhsa--gfx950"
.text
.globl %s_kernel
.p2align 8
.type %s_kernel,@function
%s_kernel:
L_codebeg:
%s
L_codeend:
.section .rodata,"a"
.p2align 6
.amdhsa_kernel %s_kernel
  .amdhsa_next_free_vgpr 256
  .amdhsa_next_free_sgpr 102
  .amdhsa_accum_offset 256
  .amdhsa_group_segment_fixed_size 0
  .amdhsa_kernarg_size 88
  .amdhsa_user_sgpr_count 2
  .amdhsa_user_sgpr_kernarg_segment_ptr 1
  .amdhsa_system_sgpr_workgroup_id_x 1
.end_amdhsa_kernel
''' % (LDS_BYTES, NAME, NAME, NAME, body, NAME)
    open(sys.argv[1], 'w').write(out)
    print('wrote %s: %d lines, %d pad states' % (sys.argv[1], out.count('\n'), n))


main()
```

```python
import struct
import sys
from asmlib import Seg, Ins, Wait, GAP, interleave, resolve_waits, pad_hazards, render, vr, sr

NAME = 'parallel_sum__linear_attn_block__dense_activation_gelu__prompt'
OPT = dict(diag=0, p1only=0, sa=0, sb=10, clk=0, wg=0)
for a in sys.argv[2:]:
    k, v = a.split('=')
    OPT[k] = int(v)


def f32(x):
    return '0x%08x' % struct.unpack('<I', struct.pack('<f', x))[0]


XS, WQS, W1S = 896, 2688, 3584
ACT_G = 147456
KV_OFF = 0x900000
FL_OFF = 0x910000
FKV_OFF = FL_OFF + 16384
TS_OFF = 0xA00000
WS_BYTES = 0x10000000
OOB = 0x40000000
R0, R1, R2, MISC = 0, 57344, 114688, 155648
M_ST, M_CS, M_R = MISC, MISC + 4096, MISC + 7168
LDS_BYTES = 163840
LOG2E = 1.4426950408889634
GC1 = -2.0 * 0.7978845608028654 * LOG2E
GC3 = GC1 * 0.044715
SPIN_LIMIT = 1 << 16

S_WV, S_RW, S_G, S_RB, S_ROLE = 3, 4, 5, 6, 7
SX, SW, SWS, SW2, SWO, SOUT, SB1, SB2, SDBG = 8, 12, 16, 20, 24, 28, 32, 36, 40
S_KA = 44
S_KX, S_KW = 66, 73
S_I2, S_HALF, S_T0, S_T1, S_ONES, S_EPS = 80, 81, 82, 83, 84, 85
S_M0W, S_M0X, S_B2G, S_R2G, S_H, S_FL = 86, 87, 88, 89, 90, 91
S_HI = 92
S_SPIN, S_T2, S_P, S_LAST, S_PEND, S_L2E = 94, 95, 96, 97, 98, 99
S_PAD = 100
S_B2R, S_QR0, S_QR1, S_QR2, S_A, S_PQ, S_KVA, S_WOR, S_OUTO, S_POLL = 66, 67, 68, 69, 70, 71, 72, 73, 74, 75

V_L16, V_B2, V_X0, V_X1, V_W, V_CSW, V_CSR = 1, 2, 3, 4, 5, 6, 7
V_SEL, V_CS, V_WA, V_XA, V_EXW, V_EXR, V_ST, V_B1 = 8, 12, 20, 28, 32, 36, 38, 42
V_FLO, V_ONE = 46, 47
V_T = 48
V_ACC, V_X, V_WF = 64, 128, 240
V_WB = 42
V_RA = 43
V_POLL = 44
V_PA = 45
V_BA, V_BAS, V_B2B, V_L16B, V_EXP, V_PA2, V_EXP2 = 3, 9, 11, 12, 13, 14, 15
V_NUM, V_BF, V_AB, V_RES = 16, 48, 128, 192

slow = Seg('slow')
nspin = [0]


def stamp(s, k):
    if OPT['diag']:
        s('%s %s' % ('s_memtime' if OPT['diag'] == 2 or OPT['clk'] else 's_memrealtime', sr(S_KA + 2 * k, 2)))


class Rebase:
    def __init__(self, regs, base, span):
        self.regs, self.base, self.span = regs, base, span

    def off(self, s, addr):
        if not (self.base <= addr and addr - self.base + self.span <= 65535):
            for r in self.regs:
                s('v_add_u32 v%d, 0x%x, v%d' % (r, (addr - self.base) & 0xffffffff, r))
            self.base = addr
        return addr - self.base


def spin_check(s, vpoll, vexp, vaddr, srd, soff, mask):
    k = nspin[0]
    nspin[0] += 1
    s('v_cmp_ge_u32 vcc, v%d, v%d' % (vpoll, vexp))
    s('s_andn2_b32 s%d, 0x%x, vcc_lo' % (S_T2, mask))
    s('s_cbranch_scc1 L_slow%d' % k)
    s('L_ret%d:' % k)
    slow('L_slow%d:' % k)
    slow('s_add_u32 s%d, s%d, 1' % (S_SPIN, S_SPIN))
    slow('s_cmp_gt_u32 s%d, 0x%x' % (S_SPIN, SPIN_LIMIT))
    slow('s_cbranch_scc1 L_ret%d' % k)
    slow('buffer_load_dword v%d, v%d, %s, %s offen sc1' % (vpoll, vaddr, sr(srd, 4), soff))
    slow('s_waitcnt vmcnt(0)')
    slow('v_cmp_ge_u32 vcc, v%d, v%d' % (vpoll, vexp))
    slow('s_nop 1')
    slow('s_andn2_b32 s%d, 0x%x, vcc_lo' % (S_T2, mask))
    slow('s_cbranch_scc1 L_slow%d' % k)
    slow('s_branch L_ret%d' % k)


def srd(s, d, ka, nbytes):
    s('s_mov_b32 s%d, s%d' % (d, ka))
    s('s_and_b32 s%d, s%d, 0xffff' % (d + 1, ka + 1))
    s('s_mov_b32 s%d, 0x%x' % (d + 2, nbytes))
    s('s_mov_b32 s%d, 0x20000' % (d + 3))


def prologue():
    s = Seg('pro')
    s('s_cmp_ge_u32 s2, 256')
    s('s_cbranch_scc1 L_end')
    if OPT['diag'] >= 3:
        s('s_memtime s[100:101]' if OPT['clk'] else 's_memrealtime s[100:101]')
        s('s_waitcnt lgkmcnt(0)')
        s('v_mov_b32 v255, s100')
    s('s_load_dwordx16 s[44:59], s[0:1], 0')
    s('s_load_dwordx4 s[60:63], s[0:1], 64')
    s('s_load_dwordx2 s[64:65], s[0:1], 80')
    s('v_readfirstlane_b32 s%d, v0' % S_WV)
    s('s_getpc_b64 s[82:83]')
    s('s_lshr_b32 s%d, s%d, 6' % (S_WV, S_WV))
    s('s_lshr_b32 s%d, s2, 3' % S_T2)
    s('s_lshl_b32 s%d, s%d, 11' % (S_P, S_T2))
    s('v_lshl_add_u32 v%d, v0, 2, s%d' % (V_T, S_P))
    s('v_min_u32 v%d, L_codeend-L_codebeg-64, v%d' % (V_T, V_T))
    s('global_load_dword v%d, v%d, s[82:83]' % (V_T + 15, V_T))
    s('s_and_b32 s%d, s%d, 3' % (S_RW, S_WV))
    s('s_lshr_b32 s%d, s%d, 2' % (S_G, S_WV))
    s('s_and_b32 s%d, s%d, 7' % (S_ROLE, S_T2))
    s('s_lshr_b32 s%d, s%d, 3' % (S_T2, S_T2))
    s('s_and_b32 s%d, s2, 1' % S_HALF)
    s('s_and_b32 s%d, s2, 7' % S_P)
    s('s_lshl2_add_u32 s%d, s%d, s%d' % (S_I2, S_P, S_T2))
    s('s_lshr_b32 s%d, s%d, 1' % (S_P, S_P))
    s('s_lshl2_add_u32 s%d, s%d, s%d' % (S_RB, S_P, S_T2))
    s('s_lshl1_add_u32 s%d, s%d, s%d' % (S_T2, S_T2, S_ROLE))
    s('s_add_u32 s%d, s%d, s%d' % (S_T2, S_T2, S_P))
    s('s_mul_i32 s%d, s%d, 3' % (S_P, S_HALF))
    s('s_add_u32 s%d, s%d, s%d' % (S_T2, S_T2, S_P))
    for _ in range(2):
        s('s_cmp_ge_u32 s%d, 7' % S_T2)
        s('s_cselect_b32 s%d, 7, 0' % S_P)
        s('s_sub_u32 s%d, s%d, s%d' % (S_T2, S_T2, S_P))
    s('s_cmp_lt_u32 s%d, 4' % S_ROLE)
    s('s_mov_b32 s%d, %d' % (S_LAST, WQS))
    s('s_cselect_b32 s%d, %d, s%d' % (S_LAST, W1S, S_LAST))
    s('s_lshl_b32 s%d, s%d, 6' % (S_PEND, S_LAST))
    s('s_mul_i32 s%d, s%d, %d' % (S_P, S_RB, 128 * XS))
    for c in range(7):
        s('s_lshl_b32 s%d, s%d, 7' % (S_KX + c, S_T2))
        s('s_add_u32 s%d, s%d, s%d' % (S_KX + c, S_KX + c, S_P))
        s('s_mul_i32 s%d, s%d, s%d' % (S_KW + c, S_T2, S_PEND))
        if c < 6:
            s('s_add_u32 s%d, s%d, 1' % (S_T2, S_T2))
            s('s_cmp_eq_u32 s%d, 7' % S_T2)
            s('s_cselect_b32 s%d, 0, s%d' % (S_T2, S_T2))
    s('s_lshl_b32 s%d, s%d, 10' % (S_M0W, S_WV))
    s('s_lshl_b32 s%d, s%d, 11' % (S_M0X, S_WV))
    T = V_T
    s('v_and_b32 v%d, 63, v0' % T)
    s('v_lshlrev_b32 v%d, 4, v%d' % (V_L16, T))
    s('v_lshrrev_b32 v%d, 3, v%d' % (T + 1, T))
    s('v_and_b32 v%d, 7, v%d' % (T + 2, T))
    s('v_lshrrev_b32 v%d, 4, v%d' % (T + 3, T))
    s('s_lshl_b32 s%d, s%d, 4' % (S_T2, S_WV))
    s('v_add_u32 v%d, s%d, v%d' % (T + 5, S_T2, T + 1))
    s('v_mul_u32_u24 v%d, %d, v%d' % (T + 5, XS, T + 5))
    s('v_xor_b32 v%d, v%d, v%d' % (T + 6, T + 2, T + 3))
    s('v_lshl_add_u32 v%d, v%d, 4, v%d' % (V_X0, T + 6, T + 5))
    s('v_xor_b32 v%d, 64, v%d' % (V_X1, V_X0))
    s('v_add_u32 v%d, %d, v%d' % (V_X1, 8 * XS - 1024, V_X1))
    s('v_and_b32 v%d, 1, v%d' % (T + 7, T + 3))
    s('v_lshlrev_b32 v%d, 2, v%d' % (T + 4, T + 7))
    s('v_xor_b32 v%d, v%d, v%d' % (T + 4, T + 2, T + 4))
    s('v_lshlrev_b32 v%d, 4, v%d' % (T + 4, T + 4))
    s('v_mul_u32_u24 v%d, %d, v%d' % (V_B2, XS, T + 1))
    s('v_add_u32 v%d, v%d, v%d' % (V_B2, V_B2, T + 4))
    s('s_waitcnt lgkmcnt(0)')
    srd(s, SX, 44, 2048 * XS)
    s('s_cmp_lt_u32 s%d, 4' % S_ROLE)
    s('s_cselect_b32 s%d, s52, s46' % SW)
    s('s_cselect_b32 s%d, s53, s47' % (SW + 1))
    s('s_mul_i32 s%d, s%d, 448' % (SW + 2, S_LAST))
    s('s_and_b32 s%d, s%d, 0xffff' % (SW + 1, SW + 1))
    s('s_mov_b32 s%d, 0x20000' % (SW + 3))
    srd(s, SWS, 64, WS_BYTES)
    srd(s, SB1, 54, 1792 * 2)
    s('s_cmp_ge_u32 s%d, 7' % S_ROLE)
    s('s_cbranch_scc1 L_q')
    s('s_cmp_ge_u32 s%d, 4' % S_ROLE)
    s('s_cbranch_scc1 L_kv')
    return s


def late_setup(s, kv):
    T = V_T
    srd(s, SW2, 56, 1792 * XS)
    srd(s, SWO, 48, 448 * XS)
    srd(s, SOUT, 60, 2048 * XS)
    srd(s, SB2, 58, 448 * 2)
    srd(s, SDBG, 62, 256)
    stamp(s, 0)
    if OPT['diag'] >= 3:
        s('s_waitcnt lgkmcnt(0)')
        s('v_readfirstlane_b32 s%d, v255' % S_KA)
    s('s_mov_b32 s%d, 0x3f803f80' % S_ONES)
    s('s_mov_b32 s%d, %s' % (S_EPS, f32(1e-6)))
    s('s_mov_b32 s%d, %s' % (S_L2E, f32(LOG2E)))
    s('s_mov_b32 s%d, 0' % S_HI)
    s('s_mov_b32 s%d, -1' % (S_HI + 1))
    s('s_mov_b32 s%d, 0xf0000000' % S_PAD)
    s('s_mov_b32 s%d, 0xf0000000' % (S_PAD + 1))
    s('s_mov_b32 s%d, 0' % S_SPIN)
    s('v_and_b32 v%d, 31, v%d' % (T + 8, T))
    s('v_lshrrev_b32 v%d, 5, v%d' % (T + 9, T))
    s('v_bfe_u32 v%d, v%d, 2, 2' % (T + 10, T))
    s('v_and_b32 v%d, 3, v%d' % (T + 11, T))
    s('s_lshl_b32 s%d, s%d, 1' % (S_T0, S_G))
    s('s_xor_b32 s%d, s%d, s%d' % (S_T0, S_T0, S_RW))
    s('s_lshl_b32 s%d, s%d, 1' % (S_T1, S_T0))
    s('v_add_u32 v%d, s%d, v%d' % (T + 12, S_T1, T + 9))
    s('v_bfe_u32 v%d, v%d, 1, 3' % (T + 13, T))
    s('v_xor_b32 v%d, v%d, v%d' % (T + 12, T + 12, T + 13))
    s('s_lshl_b32 s%d, s%d, 5' % (S_T1, S_RW))
    s('v_add_u32 v%d, s%d, v%d' % (T + 13, S_T1, T + 8))
    s('v_lshlrev_b32 v%d, 7, v%d' % (V_XA, T + 13))
    s('v_lshl_add_u32 v%d, v%d, 4, v%d' % (V_XA, T + 12, V_XA))
    for j in range(1, 4):
        s('v_xor_b32 v%d, %d, v%d' % (V_XA + j, j << 5, V_XA))
    s('s_lshl_b32 s%d, s%d, 4' % (S_T1, S_T0))
    s('v_lshl_add_u32 v%d, v%d, 3, v%d' % (T + 12, T + 9, T + 10))
    s('v_add_u32 v%d, s%d, v%d' % (T + 12, S_T1, T + 12))
    s('v_lshl_add_u32 v%d, v%d, 2, v%d' % (T + 14, T + 7, T + 11))
    s('v_and_b32 v%d, 1, v%d' % (T + 5, T + 10))
    s('v_mov_b32 v%d, s%d' % (T + 6, S_ONES))
    s('v_cmp_eq_u32 vcc, v%d, v%d' % (T + 5, T + 7))
    s('v_cndmask_b32 v%d, 0, v%d, vcc' % (V_SEL, T + 6))
    for j in range(1, 4):
        s('v_mov_b32 v%d, v%d' % (V_SEL + j, V_SEL))
    s('s_lshl_b32 s%d, s%d, %d' % (S_T1, S_G, 10 if kv else 9))
    s('s_add_u32 s%d, s%d, %d' % (S_T1, S_T1, M_CS))
    s('v_lshl_add_u32 v%d, v%d, 4, s%d' % (V_CSR, T + 8, S_T1))
    s('s_lshl_b32 s%d, s%d, 2' % (S_T1, S_RW))
    s('v_add_u32 v%d, s%d, v%d' % (V_CSW, S_T1, V_CSR))
    for j in range(4):
        s('v_mov_b32 v%d, 0' % (V_ST + j))
    s('v_mov_b32 v%d, 0' % (V_EXW + 1))
    s('v_mov_b32 v%d, 0' % (V_EXW + 3))
    s('v_mov_b32 v%d, 1' % V_ONE)
    s('v_mov_b32 v%d, 0x%x' % (V_FLO, OOB))
    s('v_cmp_eq_u32 vcc, 0, v%d' % T)
    s('v_cndmask_b32 v%d, v%d, 0, vcc' % (V_FLO, V_FLO))
    s('v_lshlrev_b32 v%d, 5, v%d' % (V_EXR, T + 13))
    s('v_add_u32 v%d, %d, v%d' % (V_EXR, M_ST, V_EXR))
    s('s_lshl_b32 s%d, s%d, 4' % (S_T1, S_G))
    s('v_lshl_add_u32 v%d, v%d, 3, s%d' % (V_EXR + 1, T + 9, S_T1))
    s('v_add_u32 v%d, v%d, v%d' % (V_EXR + 1, V_EXR, V_EXR + 1))
    s('s_mul_i32 s%d, s%d, 448' % (S_B2G, S_RW))
    s('s_lshl3_add_u32 s%d, s%d, s%d' % (S_B2G, S_G, S_B2G))
    s('s_mul_i32 s%d, s%d, %d' % (S_B2G, S_B2G, XS))
    s('s_lshl_b32 s%d, s%d, 7' % (S_T1, S_ROLE))
    s('s_add_u32 s%d, s%d, s%d' % (S_B2G, S_B2G, S_T1))
    s('s_lshl_b32 s%d, s%d, 10' % (S_R2G, S_G))
    s('s_lshl2_add_u32 s%d, s%d, s%d' % (S_H, S_RB, S_RW))
    s('s_lshr_b32 s%d, s%d, 1' % (S_FL, S_H))
    s('s_mul_i32 s%d, s%d, %d' % (S_H, S_H, ACT_G))
    s('s_lshl_b32 s%d, s%d, 9' % (S_FL, S_FL))
    s('s_add_u32 s%d, s%d, 0x%x' % (S_FL, S_FL, FL_OFF))


def dma_x(s, c, addr, tag):
    s('s_add_u32 m0, s%d, %d' % (S_M0X, addr))
    s('buffer_load_dwordx4 v%d, %s, s%d offen lds' % (V_X0, sr(SX, 4), S_KX + c), tag)
    s('buffer_load_dwordx4 v%d, %s, s%d offen offset:1024 lds' % (V_X1, sr(SX, 4), S_KX + c), tag)


def dma_lc(s, c, region, tag):
    s('s_add_u32 m0, s%d, %d' % (S_M0W, region + c * 8192))
    s('buffer_load_dwordx4 v%d, %s, s%d offen lds' % (V_W, sr(SW, 4), S_KW + c), tag)


def dma_kv(s, c, addr, tag):
    s('s_add_u32 m0, s%d, %d' % (S_M0X, addr))
    s('buffer_load_dwordx4 v%d, %s, s%d offen lds' % (V_W, sr(SW, 4), S_KW + c), tag)
    s('buffer_load_dwordx4 v%d, %s, s%d offen offset:1024 lds' % (V_WB, sr(SW, 4), S_KW + c), tag)


BLK = [0, 4, 1, 5, 2, 6, 3]


def unit_ks(u):
    return 4 * BLK[u >> 2] + (u & 3)


def unit_loc(u):
    if u < 5:
        return 2, u * 2048
    if u < 12:
        return 0, (u - 5) * 2048
    if u < 19:
        return 1, (u - 12) * 2048
    if u < 24:
        return 2, (u - 19) * 2048
    return 0, (u - 24) * 2048


RBASE = (R0, R1, R2)
RQUART = (14336, 14336, 10240)


def dma_b2_half(s, units, tag):
    reg = unit_loc(units[0])[0]
    s('s_mul_i32 s%d, s%d, %d' % (S_T0, S_RW, RQUART[reg]))
    s('s_add_u32 s%d, s%d, s%d' % (S_T0, S_T0, S_R2G))
    for u in units:
        assert unit_loc(u)[0] == reg
        s('s_add_u32 m0, s%d, %d' % (S_T0, RBASE[reg] + unit_loc(u)[1]))
        s('s_add_u32 s%d, s%d, %d' % (S_T1, S_B2G, unit_ks(u) * 16 * XS))
        s('buffer_load_dwordx4 v%d, %s, s%d offen lds' % (V_B2, sr(SW2, 4), S_T1), tag)


def flag(s, dword, soff=None):
    s('buffer_atomic_add v%d, v%d, %s, s%d offen offset:%d sc1' % (V_ONE, V_FLO, sr(SWS, 4), S_FL if soff is None else soff,
                                                                 dword * 4))


def f0_load(s):
    s('v_mov_b32 v%d, 0' % V_PA)
    s('buffer_load_dword v%d, v%d, %s, 0 offen sc1' % (V_POLL, V_PA, sr(SDBG, 4)), 'f0')


def f0_check(s):
    s('v_mov_b32 v%d, 32' % (V_T + 15))
    s.wait(vm='f0')
    spin_check(s, V_POLL, V_T + 15, V_PA, SDBG, '0', 1)


def poll_early(s):
    s('s_lshl2_add_u32 s%d, s%d, s%d' % (S_T0, S_I2, S_RW))
    s('s_lshl_b32 s%d, s%d, 7' % (S_T0, S_T0))
    s('s_add_u32 s%d, s%d, 0x%x' % (S_T0, S_T0, FL_OFF))
    s('v_bfe_u32 v%d, v%d, 2, 5' % (V_PA, V_L16))
    s('v_add_u32 v%d, s%d, v%d' % (V_PA, S_T0, V_PA))
    s('buffer_load_dword v%d, v%d, %s, 0 offen sc1' % (V_POLL, V_PA, sr(SWS, 4)), 'poll0')


def xreg(c, j):
    return V_X + 16 * c + 4 * j


def dots(s, c):
    for j in range(2):
        for r in range(4):
            x = xreg(c, j) + r
            s('v_dot2c_f32_bf16 v%d, s%d, v%d' % (V_ST + (r & 1), S_ONES, x))
            s('v_dot2c_f32_bf16 v%d, v%d, v%d' % (V_ST + 2 + (r & 1), x, x))


def stats_write(s):
    s('v_add_f32 v%d, v%d, v%d' % (V_ST, V_ST, V_ST + 1))
    s('v_add_f32 v%d, v%d, v%d' % (V_ST + 1, V_ST + 2, V_ST + 3))
    s('ds_write_b64 v%d, %s' % (V_EXR + 1, vr(V_ST, 2)))


def stats_final(kind):
    s, T = Seg(), V_T
    s('ds_read_b128 %s, v%d' % (vr(T, 4), V_EXR), 'st')
    s('ds_read_b128 %s, v%d offset:16' % (vr(T + 4, 4), V_EXR), 'st')
    s.append(GAP)
    s.wait(lgkm='st')
    s('v_add_f32 v%d, v%d, v%d' % (T, T, T + 2))
    s('v_add_f32 v%d, v%d, v%d' % (T + 1, T + 1, T + 3))
    s('v_add_f32 v%d, v%d, v%d' % (T + 4, T + 4, T + 6))
    s('v_add_f32 v%d, v%d, v%d' % (T + 5, T + 5, T + 7))
    s('v_add_f32 v%d, v%d, v%d' % (T, T, T + 4))
    s('v_add_f32 v%d, v%d, v%d' % (T + 1, T + 1, T + 5))
    s('v_mul_f32 v%d, %s, v%d' % (T, f32(1.0 / 448), T))
    s('v_mul_f32 v%d, %s, v%d' % (T + 1, f32(1.0 / 448), T + 1))
    s('v_fma_f32 v%d, -v%d, v%d, v%d' % (T + 1, T, T, T + 1))
    s('v_max_f32 v%d, 0, v%d' % (T + 1, T + 1))
    s('v_cvt_pk_bf16_f32 v%d, v%d, v%d' % (T + 1, T + 1, T + 1))
    s('v_lshlrev_b32 v%d, 16, v%d' % (T + 1, T + 1))
    s('v_add_f32 v%d, %s, v%d' % (T + 1, f32(1e-5), T + 1))
    s('v_cvt_pk_bf16_f32 v%d, v%d, v%d' % (T + 1, T + 1, T + 1))
    s('v_lshlrev_b32 v%d, 16, v%d' % (T + 1, T + 1))
    s('v_sqrt_f32 v%d, v%d' % (T + 1, T + 1))
    s('v_cvt_pk_bf16_f32 v%d, -v%d, -v%d' % (T, T, T))
    s('v_cvt_pk_bf16_f32 v%d, v%d, 0' % (T + 1, T + 1))
    s('v_cndmask_b32 v%d, v%d, 0, %s' % (V_EXR, T, sr(S_HI, 2)))
    s('v_lshlrev_b32 v%d, 16, v%d' % (V_ST + 2, T + 1))
    s('v_rcp_f32 v%d, v%d' % (V_ST + 3, V_ST + 2))
    s('v_cndmask_b32 v%d, v%d, 0, %s' % (V_EXR + 1, T + 1, sr(S_HI, 2)))
    if kind == 'gelu':
        s('v_mul_f32 v%d, %s, v%d' % (V_ST, f32(GC1), V_ST + 3))
        s('v_mul_f32 v%d, v%d, v%d' % (T, V_ST + 3, V_ST + 3))
        s('v_mul_f32 v%d, %s, v%d' % (V_ST + 1, f32(GC3), V_ST + 3))
        s('v_mul_f32 v%d, v%d, v%d' % (V_ST + 1, T, V_ST + 1))
    elif kind == 'phi':
        s('v_mul_f32 v%d, s%d, v%d' % (V_ST, S_L2E, V_ST + 3))
    else:
        s('s_lshl_b32 s%d, s%d, 7' % (S_T0, S_WV))
        s('s_add_u32 s%d, s%d, %d' % (S_T0, S_T0, M_R))
        s('v_bfe_u32 v%d, v%d, 2, 7' % (T, V_L16))
        s('v_add_u32 v%d, s%d, v%d' % (T, S_T0, T))
        s('ds_write_b32 v%d, v%d' % (T, V_ST + 3))
        s('v_lshrrev_b32 v%d, 9, v%d' % (V_RA, V_L16))
        s('v_lshl_add_u32 v%d, v%d, 4, s%d' % (V_RA, V_RA, S_T0))
    return s


def ext_corr(acc, off, exw, swap, bias=None, local=None):
    s, T = Seg(), V_T + 8
    if local is None:
        tag = ('cs', acc, off, nspin[0], id(s))
        s('ds_read_b128 %s, v%d offset:%d' % (vr(T, 4), V_CSR, off), tag)
        s.append(GAP)
        s.wait(lgkm=[tag])
        s('v_add_f32 v%d, v%d, v%d' % (T, T, T + 1))
        s('v_add_f32 v%d, v%d, v%d' % (T + 2, T + 2, T + 3))
        s('v_add_f32 v%d, v%d, v%d' % (T, T, T + 2))
        src = T
    else:
        src = local
    s('v_cvt_pk_bf16_f32 v%d, v%d, v%d' % (T + 1, src, src))
    s('v_lshlrev_b32 v%d, 16, v%d' % (T + 1, T + 1))
    s('v_sub_f32 v%d, v%d, v%d' % (T + 1, src, T + 1))
    s('v_cvt_pk_bf16_f32 v%d, v%d, v%d' % (exw, src, T + 1))
    if bias is not None:
        s('v_mov_b32 v%d, v%d' % (exw + 1, bias))
    s.append(GAP)
    a, b = (V_EXR, exw) if swap else (exw, V_EXR)
    s('v_mfma_f32_32x32x8_bf16 %s, %s, %s, %s' % (vr(acc, 16), vr(a, 2), vr(b, 2), vr(acc, 16)))
    return s


def epi_rowlane(kind, acc, tag):
    s, T = Seg(), V_T
    for grp in range(4):
        a = [acc + 4 * grp + e for e in range(4)]
        t = [T + e for e in range(4)]
        if kind == 'gelu':
            for e in range(4):
                s('v_mul_f32 v%d, v%d, v%d' % (t[e], a[e], a[e]))
            for e in range(4):
                s('v_fma_f32 v%d, v%d, v%d, v%d' % (t[e], t[e], V_ST + 1, V_ST))
            for e in range(4):
                s('v_mul_f32 v%d, v%d, v%d' % (t[e], a[e], t[e]))
            for e in range(4):
                s('v_exp_f32 v%d, v%d' % (t[e], t[e]))
            for e in range(4):
                s('v_fma_f32 v%d, v%d, v%d, v%d' % (t[e], t[e], V_ST + 2, V_ST + 2))
            for e in range(4):
                s('v_rcp_f32 v%d, v%d' % (t[e], t[e]))
            for e in range(4):
                s('v_mul_f32 v%d, v%d, v%d' % (a[e], a[e], t[e]))
        else:
            for e in range(4):
                s('v_mul_f32 v%d, v%d, v%d' % (t[e], a[e], V_ST))
            for e in range(4):
                s('v_exp_f32_e64 v%d, v%d clamp' % (t[e], t[e]))
            for e in range(4):
                s('v_fma_f32 v%d, v%d, v%d, s%d' % (a[e], a[e], V_ST + 3, S_EPS))
            for e in range(4):
                s('v_max_f32 v%d, s%d, v%d' % (a[e], S_EPS, a[e]))
            for e in range(4):
                s('v_add_f32 v%d, v%d, v%d' % (a[e], a[e], t[e]))
        p = acc + 8 * (grp >> 1) + 2 * (grp & 1)
        s('v_cvt_pk_bf16_f32 v%d, v%d, v%d' % (p, a[0], a[1]))
        s('v_cvt_pk_bf16_f32 v%d, v%d, v%d' % (p + 1, a[2], a[3]))
        if kind == 'phi' and grp == 3:
            s('v_cndmask_b32 v%d, v%d, 0, %s' % (p, p, sr(S_HI, 2)))
            s('v_cndmask_b32 v%d, v%d, 0, %s' % (p + 1, p + 1, sr(S_HI, 2)))
        if grp & 1:
            f = grp >> 1
            s('buffer_store_dwordx4 %s, v%d, %s, s%d offen offset:%d sc1' % (vr(acc + 8 * f, 4), V_L16, sr(SWS, 4), S_H, f * 1024), tag)
    return s


XSLOT = [R2, R2 + 16384, R1 + 8192, R1 + 24576, R1 + 40960, R2, R2 + 16384]


def lc_role(ffn):
    kind = 'gelu' if ffn else 'phi'
    nm = 'f' if ffn else 'q'
    s, T = Seg(nm), V_T
    if not ffn:
        s('L_q:')
    if ffn:
        s('s_lshl2_add_u32 s%d, s%d, s%d' % (S_P, S_HALF, S_ROLE))
        s('s_and_b32 s%d, s%d, 1' % (S_T1, S_P))
        s('s_mul_i32 s%d, s%d, 448' % (S_T0, S_P))
        s('s_lshl_b32 s%d, s%d, 6' % (S_PEND, S_T1))
        s('s_add_u32 s%d, s%d, s%d' % (S_T0, S_T0, S_PEND))
    else:
        s('s_mul_i32 s%d, s%d, 448' % (S_T0, S_HALF))
    s('s_lshl_b32 s%d, s%d, 3' % (S_T2, S_WV))
    s('v_add_u32 v%d, s%d, v%d' % (T + 5, S_T2, T + 1))
    s('v_mul_u32_u24 v%d, s%d, v%d' % (T + 5, S_LAST, T + 5))
    s('v_add3_u32 v%d, v%d, v%d, s%d' % (V_W, T + 5, T + 4, S_T0))
    if not ffn:
        s('s_lshl1_add_u32 s%d, s%d, s%d' % (S_T1, S_RB, S_HALF))
        s('s_mul_i32 s%d, s%d, 3072' % (S_T1, S_T1))
        s('s_add_u32 s%d, s%d, s%d' % (S_T1, S_T1, S_M0W))
        s('s_add_u32 s%d, s%d, 0x%x' % (S_T1, S_T1, KV_OFF))
        s('s_cmp_lt_u32 s%d, 3' % S_WV)
        s('s_cselect_b32 s%d, s%d, 0x%x' % (S_T1, S_T1, OOB))
        for j in range(4):
            s('v_mov_b32 v%d, 0' % (V_ACC + j))
        s('buffer_store_dwordx4 %s, v%d, %s, s%d offen sc1' % (vr(V_ACC, 4), V_L16, sr(SWS, 4), S_T1))
    for c in range(4):
        dma_x(s, c, XSLOT[c], (nm, 't', c))
        dma_lc(s, c, R0, (nm, 't', c))
    if ffn:
        s('v_and_b32 v%d, 31, v%d' % (T + 8, T))
        s('v_lshlrev_b32 v%d, 1, v%d' % (T + 8, T + 8))
        s('s_lshl_b32 s%d, s%d, 6' % (S_T1, S_G))
        s('s_add_u32 s%d, s%d, s%d' % (S_T1, S_T1, S_T0))
        for q in range(3):
            s('buffer_load_ushort v%d, v%d, %s, s%d offen offset:%d' % (V_B1 + q if q < 2 else V_CS + 4, T + 8, sr(SB1, 4), S_T1, q * 128))
        s('s_cmp_eq_u32 s%d, 0' % S_PEND)
        s('s_movk_i32 s%d, -64' % S_T1)
        s('s_movk_i32 s%d, -384' % S_LAST)
        s('s_cselect_b32 s%d, 384, s%d' % (S_T1, S_T1))
        s('s_cselect_b32 s%d, 128, s%d' % (S_LAST, S_LAST))
        s('s_add_u32 s%d, s%d, s%d' % (S_T1, S_T1, S_T0))
        s('buffer_load_ushort v%d, v%d, %s, s%d offen' % (V_CS + 5, T + 8, sr(SB1, 4), S_T1))
        s('s_mov_b32 s%d, s%d' % (S_T2, S_T0))
    bias = [V_B1, V_B1 + 1, V_CS + 4, V_CS + 5] if ffn else [None] * 4
    late_setup(s, False)
    if ffn:
        s('s_lshl_b32 s%d, s%d, 5' % (S_T2, S_T2))
        s('s_add_u32 s%d, s%d, s%d' % (S_H, S_H, S_T2))
        s('s_lshr_b32 s%d, s%d, 1' % (S_T1, S_P))
    else:
        s('s_lshl_b32 s%d, s%d, 14' % (S_T2, S_HALF))
        s('s_add_u32 s%d, s%d, s%d' % (S_H, S_H, S_T2))
        s('s_add_u32 s%d, s%d, %d' % (S_H, S_H, 112 * 1024))
        s('s_lshl_b32 s%d, s%d, 1' % (S_T1, S_HALF))
    s('s_lshl_b32 s%d, s%d, 11' % (S_T2, S_G))
    s('s_add_u32 s%d, s%d, s%d' % (S_H, S_H, S_T2))
    s('s_lshl_b32 s%d, s%d, 7' % (S_T1, S_T1))
    s('s_add_u32 s%d, s%d, s%d' % (S_FL, S_FL, S_T1))
    s('s_mul_i32 s%d, s%d, %d' % (S_T1, S_G, 64 if ffn else 56))
    s('v_lshl_add_u32 v%d, v%d, 3, s%d' % (T + 5, T + 14, S_T1))
    s('v_lshrrev_b32 v%d, 1, v%d' % (T + 6, T + 10))
    s('v_lshlrev_b32 v%d, 6, v%d' % (T + 6, T + 6))
    s('v_xor_b32 v%d, v%d, v%d' % (T + 5, T + 5, T + 6))
    s('v_lshl_add_u32 v%d, v%d, 7, v%d' % (V_WA, T + 12, T + 5))
    for j in range(1, 4):
        s('v_xor_b32 v%d, %d, v%d' % (V_WA + j, j << 11, V_WA))
    xa = Rebase([V_XA + j for j in range(4)], 0, 0)
    wa = Rebase([V_WA + j for j in range(4)], 0, 512)
    step = 128 if ffn else 112
    region = [R0, R1, R0, R1]

    def wread(t, q, c, j):
        o = wa.off(t, region[q] + c * 8192)
        for u in range(2):
            t('ds_read_b64_tr_b16 %s, v%d offset:%d' % (vr(V_WF + 4 * j + 2 * u, 2), V_WA + j, o + u * 512), (nm, 'w', q, c, j))

    def xread(t, c, j):
        o = xa.off(t, XSLOT[c])
        t('ds_read_b128 %s, v%d offset:%d' % (vr(xreg(c, j), 4), V_XA + j, o), (nm, 'x', c, j))

    def kstep(q, c, j, nxt, fullcs=False):
        t = Seg()
        acc = V_ACC + 16 * (q & 1)
        t.wait(lgkm=[(nm, 'w', q, c, j)])
        first = c == 0 and j == 0
        t('v_mfma_f32_32x32x16_bf16 %s, %s, %s, %s' % (vr(acc, 16), vr(V_WF + 4 * j, 4), vr(xreg(c, j), 4), '0' if first else vr(acc, 16)))
        if j == 0 or fullcs:
            t('v_mfma_f32_16x16x32_bf16 %s, %s, %s, %s' % (vr(V_CS, 4), vr(V_SEL, 4), vr(V_WF + 4 * j, 4), '0' if first else vr(V_CS, 4)))
        if nxt is not None:
            wread(t, nxt[0], nxt[1], j)
            if nxt[0] == 0:
                xread(t, nxt[1], j)
        return t

    def barrier(t, vm):
        t.wait(vm=vm, lgkm='all')
        t('s_barrier')

    def cs_write(t, q):
        t('ds_write_b32 v%d, v%d offset:%d' % (V_CSW, V_CS, (q & 1) * 1536))

    def next_col(t, last=False):
        if last and ffn:
            t('v_add_u32 v%d, s%d, v%d' % (V_W, S_LAST, V_W))
        else:
            t('v_add_u32 v%d, %d, v%d' % (V_W, step, V_W))

    barrier(s, [(nm, 't', 0)])
    stamp(s, 1)
    if not ffn:
        s('s_cmp_eq_u32 s%d, 0' % S_WV)
        s('s_cselect_b32 s%d, 0, 0x%x' % (S_T1, OOB))
        s('buffer_atomic_add v%d, v%d, %s, s%d offen sc1' % (V_ONE, V_FLO, sr(SDBG, 4), S_T1))
    dma_x(s, 4, XSLOT[4], (nm, 't', 4))
    dma_lc(s, 4, R0, (nm, 't', 4))
    for j in range(4):
        wread(s, 0, 0, j)
        xread(s, 0, j)
    for c in range(7):
        barrier(s, [(nm, 't', c + 1)] if c < 6 else [(nm, 'l', 1, 0)])
        if c < 2:
            dma_x(s, 5 + c, XSLOT[5 + c], (nm, 't', 5 + c))
            dma_lc(s, 5 + c, R0, (nm, 't', 5 + c))
        if c == 1:
            next_col(s)
            dma_lc(s, 0, R1, (nm, 'l', 1, 0))
        if 2 <= c <= 4:
            for k in (2 * c - 3, 2 * c - 2):
                dma_lc(s, k, R1, (nm, 'l', 1, k))
        if c == 5:
            next_col(s)
            for k in range(3):
                dma_lc(s, k, R0, (nm, 'l', 2, k))
        if c == 6:
            for k in range(3, 7):
                dma_lc(s, k, R0, (nm, 'l', 2, k))
        for j in range(4):
            s.extend(kstep(0, c, j, (0, c + 1) if c < 6 else (1, 0)))
        dots(s, c)
    cs_write(s, 0)
    stats_write(s)
    barrier(s, [(nm, 'l', 1, 3)])
    stamp(s, 2)

    def epi(q):
        return list(ext_corr(V_ACC + 16 * (q & 1), (q & 1) * 1536, V_EXW, False, bias[q])) + [GAP, GAP, GAP] + \
            list(epi_rowlane(kind, V_ACC + 16 * (q & 1), (nm, 'h', q)))

    def bump_h(t):
        t('s_add_u32 s%d, s%d, 4096' % (S_H, S_H))

    f0_load(s)
    if ffn:
        dma_b2_half(s, range(5), 'b2a')
    slots = []
    for c in range(7):
        for j in range(4):
            t = Seg()
            if c == 3 and j == 0:
                barrier(t, [(nm, 'l', 1, 6), (nm, 'l', 2, 0)])
            t.extend(kstep(1, c, j, (1, c + 1) if c < 6 else (2, 0)))
            slots.append(t)
    s.extend(interleave(slots, list(stats_final(kind)) + epi(0)))
    bump_h(s)
    cs_write(s, 1)
    f0_check(s)
    barrier(s, [(nm, 'l', 2, 6), 'b2a'])
    stamp(s, 3)
    next_col(s, True)
    for k in range(7):
        dma_lc(s, k, R1, (nm, 'l', 3, k))
    slots = []
    for c in range(7):
        for j in range(4):
            t = Seg()
            if c == 3 and j == 0 and ffn:
                t.wait(vm=[(nm, 'h', 0)])
                flag(t, 0)
            if c == 6 and j == 0:
                barrier(t, [(nm, 'l', 3, 6)])
                if ffn:
                    for k in range(4):
                        t('v_xor_b32 v%d, s%d, v%d' % (V_WA + k, S_PEND, V_WA + k))
            t.extend(kstep(2, c, j, (2, c + 1) if c < 6 else (3, 0)))
            slots.append(t)
    s.extend(interleave(slots, epi(1)))
    bump_h(s)
    cs_write(s, 2)
    barrier(s, None)
    stamp(s, 4)
    if ffn:
        s('s_cmp_eq_u32 s%d, 1' % S_G)
        s('s_cbranch_scc1 L_fb')
    a = Seg(nm + 'a')
    slots = []
    for c in range(7):
        for j in range(4):
            t = Seg()
            if c == 3 and j == 0:
                t.wait(vm=[(nm, 'h', 1)])
                flag(t, 1 if ffn else 4)
            t.extend(kstep(3, c, j, (3, c + 1) if c < 6 else None, fullcs=ffn))
            slots.append(t)
    a.extend(interleave(slots, epi(2)))
    stamp(a, 5)
    if ffn:
        a('s_cmp_eq_u32 s%d, 0' % S_PEND)
        a('s_movk_i32 s%d, %d' % (S_T1, -(8192 + 2048)))
        a('s_cselect_b32 s%d, 4096, s%d' % (S_T1, S_T1))
        a('s_add_u32 s%d, s%d, s%d' % (S_H, S_H, S_T1))
        e = [i for i in ext_corr(V_ACC + 16, 0, V_EXW, False, bias[3], local=V_CS) if i is not GAP]
        a.extend(e)
        e = list(epi_rowlane(kind, V_ACC + 16, (nm, 'h', 3)))
        a.extend(e[:56])
        a.wait(vm=[(nm, 'h', 2)])
        flag(a, 2)
        a.extend(e[56:])
        stamp(a, 6)
        if not OPT['p1only']:
            a('s_barrier')
        a.wait(vm=[(nm, 'h', 3)])
        flag(a, 3)
        a('s_branch L_atail')
        b = Seg('fb')
        b('L_fb:')
        p2_setup(b)
        for u in range(5, 12):
            dma_b2(b, u)
        e = [i for i in epi(2) if i is not GAP]
        b.extend(e[:64])
        b.wait(vm=[(nm, 'h', 1)])
        flag(b, 1)
        poll_early(b)
        b.extend(e[64:])
        b('s_add_u32 s%d, s%d, 8' % (S_PEND, S_FL))
        b('s_branch L_p2')
        return s, a, b
    bump_h(a)
    cs_write(a, 3)
    barrier(a, None)
    a.extend(i for i in epi(3) if i is not GAP)
    a.wait(vm='all')
    flag(a, 4 + 32)
    stamp(a, 6)
    a('s_branch L_fin')
    return s, a


def kv_slot(n):
    return ((n + 4) % 9) * 16384


def kv_role():
    s, T = Seg('kv'), V_T
    s('L_kv:')
    s('s_mul_i32 s%d, s%d, 3' % (S_P, S_HALF))
    s('s_add_u32 s%d, s%d, s%d' % (S_P, S_P, S_ROLE))
    s('s_sub_u32 s%d, s%d, 4' % (S_P, S_P))
    s('s_lshl_b32 s%d, s%d, 7' % (S_T0, S_P))
    s('s_add_u32 s%d, s%d, %d' % (S_T1, S_T0, XS))
    s('s_lshl_b32 s%d, s%d, 3' % (S_T2, S_WV))
    s('v_add_u32 v%d, s%d, v%d' % (T + 5, S_T2, T + 3))
    s('v_mul_u32_u24 v%d, %d, v%d' % (T + 5, WQS, T + 5))
    s('v_and_b32 v%d, 15, v%d' % (T + 6, T))
    s('v_lshlrev_b32 v%d, 2, v%d' % (T + 8, T + 3))
    s('v_xor_b32 v%d, v%d, v%d' % (T + 6, T + 6, T + 8))
    s('v_lshlrev_b32 v%d, 4, v%d' % (T + 6, T + 6))
    s('v_add3_u32 v%d, v%d, v%d, s%d' % (V_W, T + 5, T + 6, S_T1))
    s('v_add_u32 v%d, %d, v%d' % (V_WB, 4 * WQS - 1024, V_W))

    def item(t, n):
        if n >= 14:
            if n == 14:
                t('v_add_u32 v%d, %d, v%d' % (V_W, XS, V_W))
                t('v_add_u32 v%d, %d, v%d' % (V_WB, XS, V_WB))
            dma_kv(t, n - 14, kv_slot(n), ('k', 'i', n))
        elif n & 1:
            dma_kv(t, n >> 1, kv_slot(n), ('k', 'i', n))
        else:
            dma_x(t, n >> 1, kv_slot(n), ('k', 'i', n))

    for n in range(6):
        item(s, n)
    late_setup(s, True)
    s('s_lshl_b32 s%d, s%d, 2' % (S_T1, S_P))
    s('s_lshr_b32 s%d, 0xdb9630, s%d' % (S_LAST, S_T1))
    s('s_and_b32 s%d, s%d, 15' % (S_LAST, S_LAST))
    s('s_lshr_b32 s%d, 0x322333, s%d' % (S_PEND, S_T1))
    s('s_and_b32 s%d, s%d, 15' % (S_PEND, S_PEND))
    s('s_mul_i32 s%d, s%d, 56' % (S_T1, S_LAST))
    s('s_lshl_b32 s%d, s%d, 7' % (S_T0, S_P))
    s('s_sub_u32 s%d, s%d, s%d' % (S_T1, S_T1, S_T0))
    s('s_cmp_eq_u32 s%d, 3' % S_PEND)
    s('s_cselect_b32 s%d, 112, 0' % S_T0)
    s('s_mul_i32 s%d, s%d, s%d' % (S_T0, S_T0, S_G))
    s('s_add_u32 s%d, s%d, s%d' % (S_T1, S_T1, S_T0))
    s('v_min_u32 v%d, 6, v%d' % (T + 14, T + 14))
    s('v_lshl_add_u32 v%d, v%d, 3, s%d' % (T + 5, T + 14, S_T1))
    s('v_lshlrev_b32 v%d, 6, v%d' % (T + 6, T + 10))
    for t in range(2):
        if t:
            s('v_add_u32 v%d, 56, v%d' % (T + 5, T + 5))
        s('v_xor_b32 v%d, v%d, v%d' % (T + 8, T + 5, T + 6))
        s('v_lshl_add_u32 v%d, v%d, 8, v%d' % (V_WA + 4 * t, T + 12, T + 8))
        for j in range(1, 4):
            s('v_xor_b32 v%d, %d, v%d' % (V_WA + 4 * t + j, j << 12, V_WA + 4 * t))
    s('s_cmp_eq_u32 s%d, 1' % S_G)
    s('s_cbranch_scc1 L_kb')

    def body(nt):
        nm = 'ka' if nt == 2 else 'kb'
        b = Seg(nm)
        if nt == 1:
            b('L_kb:')
        xa = Rebase([V_XA + j for j in range(4)], 0, 0)
        wa = Rebase([V_WA + j for j in range(4 * nt)], 0, 1024)

        def witem(q, c):
            return 2 * c + 1 if q == 0 else 14 + c

        def wf(t, j):
            return V_WF + 8 * t + 4 * (j & 1)

        def wread(z, q, c, j):
            o = wa.off(z, kv_slot(witem(q, c)))
            for t in range(nt):
                for u in range(2):
                    z('ds_read_b64_tr_b16 %s, v%d offset:%d' % (vr(wf(t, j) + 2 * u, 2), V_WA + 4 * t + j, o + u * 1024), (nm, 'w', q, c, j, t))

        def xread(z, c, j):
            o = xa.off(z, kv_slot(2 * c))
            z('ds_read_b128 %s, v%d offset:%d' % (vr(xreg(c, j), 4), V_XA + j, o), (nm, 'x', c, j))

        def acc(q, t):
            return V_ACC + 32 * q + 16 * t

        def kstep(q, c, j):
            out = []
            first = c == 0 and j == 0
            for t in range(nt):
                z = Seg()
                z.wait(lgkm=[(nm, 'w', q, c, j, t)])
                z('v_mfma_f32_32x32x16_bf16 %s, %s, %s, %s' % (vr(acc(q, t), 16), vr(xreg(c, j), 4), vr(wf(t, j), 4), '0' if first else vr(acc(q, t), 16)))
                if j == 0:
                    z('v_mfma_f32_16x16x32_bf16 %s, %s, %s, %s' % (vr(V_CS + 4 * t, 4), vr(V_SEL, 4), vr(wf(t, j), 4), '0' if first else vr(V_CS + 4 * t, 4)))
                if t == nt - 1:
                    if j < 2:
                        wread(z, q, c, j + 2)
                    elif c < 6:
                        wread(z, q, c + 1, j - 2)
                    elif q == 0:
                        wread(z, 1, 0, j - 2)
                    if q == 0 and c < 6:
                        xread(z, c + 1, j)
                out.append(z)
            return out

        def barrier(z, vm):
            z.wait(vm=vm, lgkm='all')
            z('s_barrier')

        def cs_write(z, q):
            for t in range(nt):
                z('ds_write_b32 v%d, v%d offset:%d' % (V_CSW, V_CS + 4 * t, q * 1536 + t * 512))

        def rload(z, i, dst, key):
            z('ds_read_b128 %s, v%d offset:%d' % (vr(dst, 4), V_RA, i * 32), key)

        barrier(b, [('k', 'i', 1)])
        stamp(b, 1)
        for n in (6, 7, 8):
            item(b, n)
        for j in range(4):
            if j < 2:
                wread(b, 0, 0, j)
            xread(b, 0, j)
        for c in range(7):
            barrier(b, [('k', 'i', 2 * c + 3 if c < 6 else 14)])
            for n in ([9] if c == 0 else [2 * c + 8, 2 * c + 9]):
                if n <= 20:
                    item(b, n)
            for j in range(4):
                for z in kstep(0, c, j):
                    b.extend(z)
            dots(b, c)
        cs_write(b, 0)
        stats_write(b)
        barrier(b, [('k', 'i', 15)])
        stamp(b, 2)
        f0_load(b)
        dma_b2_half(b, range(5), 'b2a')
        fill = list(stats_final('kv'))
        for t in range(nt):
            fill += list(ext_corr(acc(0, t), t * 512, V_EXW + 2 * t, True))
        fill += [GAP, GAP]
        e = Seg()
        RB = [V_XA, V_T + 12]
        rload(e, 0, RB[0], (nm, 'r', 0))
        e.append(GAP)
        for i in range(4):
            if i < 3:
                rload(e, i + 1, RB[(i + 1) & 1], (nm, 'r', i + 1))
            e.wait(lgkm=[(nm, 'r', i)])
            for t in range(nt):
                a = [acc(0, t) + 4 * i + k for k in range(4)]
                for k in range(4):
                    e('v_fma_f32 v%d, v%d, v%d, s%d' % (a[k], a[k], RB[i & 1] + k, S_EPS))
                for k in range(4):
                    e('v_mul_f32 v%d, s%d, v%d' % (T + k, S_L2E, a[k]))
                for k in range(4):
                    e('v_exp_f32_e64 v%d, v%d clamp' % (T + k, T + k))
                for k in range(4):
                    e('v_max_f32 v%d, s%d, v%d' % (a[k], S_EPS, a[k]))
                for k in range(4):
                    e('v_add_f32 v%d, v%d, v%d' % (a[k], a[k], T + k))
                e('v_cvt_pk_bf16_f32 v%d, v%d, v%d' % (acc(0, t) + 2 * i, a[0], a[1]))
                e('v_cvt_pk_bf16_f32 v%d, v%d, v%d' % (acc(0, t) + 2 * i + 1, a[2], a[3]))
        fill += list(e)
        slots = []
        for c in range(7):
            for j in range(4):
                z = kstep(1, c, j)
                if j == 0 and 1 <= c <= 5:
                    pre = Seg()
                    barrier(pre, [('k', 'i', 15 + c)])
                    if c == 4:
                        dma_b2_half(pre, range(5, 12), 'b2b')
                    z[0][:0] = pre
                slots += z
        b.extend(interleave(slots, fill))
        cs_write(b, 1)
        f0_check(b)
        barrier(b, None)
        stamp(b, 3)
        if nt == 1:
            poll_early(b)
        for i in range(4):
            rload(b, i, V_WF + 4 * i, (nm, 'r2'))
        for t in range(nt):
            b.extend(i for i in ext_corr(acc(1, t), 1536 + t * 512, V_EXW + 2 * t, True) if i is not GAP)
        b('v_mov_b32 v%d, s%d' % (T, S_ONES))
        b('s_lshl3_add_u32 s%d, s%d, s%d' % (S_T0, S_G, S_RW))
        b('s_lshl_b32 s%d, s%d, 12' % (S_T0, S_T0))
        b('s_add_u32 s%d, s%d, %d' % (S_T0, S_T0, R1))
        b('v_add_u32 v%d, s%d, v%d' % (T + 1, S_T0, V_L16))
        b.wait(lgkm=[(nm, 'r2')])
        for t in range(nt):
            v = acc(1, t)
            for k in range(16):
                b('v_mul_f32 v%d, v%d, v%d' % (v + k, v + k, V_WF + k))
            for k in range(8):
                b('v_cvt_pk_bf16_f32 v%d, v%d, v%d' % (v + k, v + 2 * k, v + 2 * k + 1))
            for k in range(8):
                b('v_cndmask_b32 v%d, v%d, v%d, %s' % (v + k, v + k, T, sr(S_PAD, 2)))
            d = V_X + 16 * t
            for f in range(2):
                b('v_mfma_f32_32x32x16_bf16 %s, %s, %s, %s' % (vr(d, 16), vr(acc(0, t) + 4 * f, 4), vr(v + 4 * f, 4), vr(d, 16) if f else '0'))
        if nt == 1:
            p2_setup(b)
        for t in range(nt):
            for i in range(4):
                b('ds_write_b128 v%d, %s offset:%d' % (T + 1, vr(V_X + 16 * t + 4 * i, 4), t * 16384 + i * 1024))
        barrier(b, ['b2a', 'b2b'])
        stamp(b, 4)
        if nt == 1:
            b('s_mov_b32 s%d, 0x%x' % (S_PEND, OOB))
            b('s_branch L_p2')
            return b
        b('s_cmp_lt_u32 s%d, s%d' % (S_RW, S_PEND))
        b('s_cselect_b32 s%d, s%d, 0' % (S_T0, S_RW))
        b('s_cselect_b32 s%d, 0, 0x%x' % (S_T2, OOB))
        b('s_add_u32 s%d, s%d, s%d' % (S_T1, S_LAST, S_RW))
        b('s_lshl_b32 s%d, s%d, 14' % (S_T0, S_T0))
        b('s_add_u32 s%d, s%d, %d' % (S_T0, S_T0, R1))
        b('v_lshrrev_b32 v%d, 2, v%d' % (T + 2, V_L16))
        b('v_add_u32 v%d, s%d, v%d' % (T + 1, S_T0, T + 2))
        b('s_lshl_b32 s%d, s%d, 12' % (S_T0, S_T1))
        b('s_add_u32 s%d, s%d, s%d' % (S_T0, S_T0, S_T2))
        b('s_add_u32 s%d, s%d, 0x%x' % (S_T0, S_T0, KV_OFF))
        b('s_lshl_b32 s%d, s%d, 7' % (S_T1, S_T1))
        b('s_add_u32 s%d, s%d, s%d' % (S_T1, S_T1, S_T2))
        b('s_add_u32 s%d, s%d, 0x%x' % (S_FL, S_T1, FKV_OFF))
        for n in range(16):
            r = V_X + 4 * n
            b('ds_read2st64_b32 %s, v%d offset0:%d offset1:%d' % (vr(r, 2), T + 1, n, n + 16), ('red', n))
            b('ds_read2st64_b32 %s, v%d offset0:%d offset1:%d' % (vr(r + 2, 2), T + 1, n + 32, n + 48), ('red', n))
        for n in range(16):
            r = V_X + 4 * n
            b.wait(lgkm=[('red', n)])
            b('v_add_f32 v%d, v%d, v%d' % (r, r, r + 1))
            b('v_add_f32 v%d, v%d, v%d' % (r + 2, r + 2, r + 3))
            b('v_add_f32 v%d, v%d, v%d' % (r, r, r + 2))
            b('buffer_atomic_add_f32 v%d, v%d, %s, s%d offen offset:%d sc1' % (r, T + 2, sr(SWS, 4), S_T0, n * 256))
        stamp(b, 5)
        if not OPT['p1only']:
            b('s_barrier')
        b.wait(vm='all')
        stamp(b, 6)
        flag(b, 0)
        b('s_branch L_atail')
        return b

    return s, body(2), body(1)


def p2_setup(s):
    s('s_sub_u32 s%d, s%d, %d' % (S_B2R, S_B2G, 8 * XS))
    s('s_mul_i32 s%d, s%d, 14336' % (S_QR0, S_RW))
    s('s_add_u32 s%d, s%d, %d' % (S_QR1, S_QR0, R1))
    s('s_mul_i32 s%d, s%d, 10240' % (S_QR2, S_RW))
    s('s_add_u32 s%d, s%d, %d' % (S_QR2, S_QR2, R2))
    s('s_mul_i32 s%d, s%d, %d' % (S_PQ, S_I2, 2 * ACT_G))
    s('s_mul_i32 s%d, s%d, %d' % (S_A, S_RW, 28 * 1024))
    s('s_add_u32 s%d, s%d, s%d' % (S_A, S_A, S_PQ))
    s('s_lshl_b32 s%d, s%d, 13' % (S_T0, S_RW))
    s('s_add_u32 s%d, s%d, s%d' % (S_PQ, S_PQ, S_T0))
    s('s_add_u32 s%d, s%d, %d' % (S_PQ, S_PQ, 112 * 1024))
    s('s_lshl_b32 s%d, s%d, 14' % (S_KVA, S_RW))
    s('s_add_u32 s%d, s%d, 0x%x' % (S_KVA, S_KVA, KV_OFF))
    s('s_mul_i32 s%d, s%d, %d' % (S_WOR, S_RW, 112 * XS))
    s('s_lshl_b32 s%d, s%d, 7' % (S_T0, S_ROLE))
    s('s_add_u32 s%d, s%d, s%d' % (S_WOR, S_WOR, S_T0))
    s('v_add_u32 v%d, %d, v%d' % (V_B2B, 8 * XS - 1024, V_B2))


def dma_b2(s, u):
    if u < 28:
        reg, off = unit_loc(u)
        base, delta, w = S_B2R, unit_ks(u) * 16 * XS, SW2
    else:
        reg, off = 1, (u - 28) * 2048
        base, delta, w = S_WOR, (u - 28) * 16 * XS, SWO
    s('s_add_u32 m0, s%d, %d' % (S_QR0 + reg, off))
    s('s_add_u32 s%d, s%d, %d' % (S_T1, base, delta))
    s('buffer_load_dwordx4 v%d, %s, s%d offen lds' % (V_B2, sr(w, 4), S_T1), ('b', u))
    s('buffer_load_dwordx4 v%d, %s, s%d offen offset:1024 lds' % (V_B2B, sr(w, 4), S_T1), ('b', u))


def res_load(s):
    T = V_RES + 8
    s('s_mul_i32 s%d, s%d, %d' % (S_OUTO, S_I2, 64 * XS))
    s('s_lshl_b32 s%d, s%d, 7' % (S_T0, S_ROLE))
    s('s_add_u32 s%d, s%d, s%d' % (S_OUTO, S_OUTO, S_T0))
    s('v_lshrrev_b32 v%d, 3, v0' % (T + 1))
    s('v_and_b32 v%d, 0x70, v%d' % (T + 2, V_L16))
    s('v_mul_u32_u24 v%d, %d, v%d' % (T, XS, T + 1))
    s('v_add_u32 v%d, v%d, v%d' % (T, T, T + 2))
    s('buffer_load_dwordx4 %s, v%d, %s, s%d offen' % (vr(V_RES, 4), T, sr(SX, 4), S_OUTO), 'res')
    s('buffer_load_dwordx4 %s, v%d, %s, s%d offen' % (vr(V_RES + 4, 4), T + 2, sr(SB2, 4), S_T0), 'res')
    s('v_and_b32 v%d, 31, v%d' % (T + 1, T + 1))
    s('v_and_b32 v%d, 7, v%d' % (T + 3, T + 1))
    s('v_bfe_u32 v%d, v%d, 1, 1' % (T + 4, T + 1))
    s('v_lshl_add_u32 v%d, v%d, 3, v%d' % (T + 3, T + 4, T + 3))
    s('v_lshlrev_b32 v%d, 4, v%d' % (T + 3, T + 3))
    s('v_xor_b32 v%d, v%d, v%d' % (T + 3, T + 3, T + 2))
    s('s_mul_i32 s%d, s%d, %d' % (S_T0, S_G, R1))
    s('v_lshl_add_u32 v%d, v%d, 8, v%d' % (T + 1, T + 1, T + 3))
    s('v_add_u32 v%d, s%d, v%d' % (T + 1, S_T0, T + 1))
    s('v_xor_b32 v%d, 128, v%d' % (T + 2, T + 1))


def phase2():
    s, T = Seg('p2'), V_NUM
    s('L_p2:')
    if OPT['p1only']:
        s.wait(vm='all')
        flag(s, 0, S_PEND)
        s('s_branch L_fin')
        return s
    stamp(s, 5)
    s('v_add_u32 v%d, %d, v%d' % (V_L16B, ACT_G, V_L16))
    s('v_mov_b32 v%d, 4' % V_EXP)
    s('v_cmp_gt_u32 vcc, 48, v%d' % V_L16)
    s('v_cndmask_b32 v%d, v%d, 8, vcc' % (V_EXP, V_EXP))

    def abuf(u, rg):
        return V_AB + 8 * (u & 7) + 4 * rg

    def aload(z, u):
        if (u & 3) == 0:
            z('s_add_u32 s%d, s%d, %d' % (S_T0, S_A, BLK[u >> 2] * 4096))
        for rg in range(2):
            z('buffer_load_dwordx4 %s, v%d, %s, s%d offen offset:%d sc1' % (vr(abuf(u, rg), 4), V_L16B if rg else V_L16, sr(SWS, 4), S_T0, (u & 3) * 1024), ('a', u))

    def poll(z, tag, addr=V_PA):
        z('buffer_load_dword v%d, v%d, %s, 0 offen sc1' % (V_POLL, addr, sr(SWS, 4)), tag)

    s.wait(vm='poll0')
    spin_check(s, V_POLL, V_EXP, V_PA, SWS, '0', 1)
    poll(s, 'poll1')
    for u in range(8):
        aload(s, u)
    s('v_lshrrev_b32 v%d, 4, v%d' % (T, V_L16))
    s('v_bfe_u32 v%d, v%d, 2, 2' % (T + 1, T))
    s('v_and_b32 v%d, 3, v%d' % (T + 2, T))
    s('v_bfe_u32 v%d, v%d, 4, 1' % (T + 3, T))
    s('v_lshl_add_u32 v%d, v%d, 2, v%d' % (T + 2, T + 3, T + 2))
    s('v_lshrrev_b32 v%d, 1, v%d' % (T + 3, T + 1))
    s('v_lshlrev_b32 v%d, 6, v%d' % (T + 3, T + 3))
    s('v_lshl_add_u32 v%d, v%d, 3, v%d' % (T + 2, T + 2, T + 3))
    s('v_lshl_add_u32 v%d, v%d, 7, v%d' % (T + 2, T + 1, T + 2))
    s('v_lshrrev_b32 v%d, 5, v%d' % (T + 3, T))
    s('v_lshl_add_u32 v%d, v%d, 9, v%d' % (T + 3, T + 3, T + 2))
    for reg in range(3):
        s('v_add_u32 v%d, s%d, v%d' % (V_BA + 2 * reg, S_QR0 + reg, T + 3))
        s('v_xor_b32 v%d, 64, v%d' % (V_BA + 2 * reg + 1, V_BA + 2 * reg))
    s('v_add_u32 v%d, s%d, v%d' % (V_BAS, S_QR1, T + 2))
    s('v_xor_b32 v%d, 64, v%d' % (V_BAS + 1, V_BAS))
    s('s_lshl_b32 s%d, s%d, 9' % (S_T1, S_RW))
    s('s_add_u32 s%d, s%d, 0x%x' % (S_T1, S_T1, FKV_OFF))
    s('v_lshl_add_u32 v%d, v%d, 7, s%d' % (T + 1, T, S_T1))
    s('v_and_b32 v%d, 0xffffff80, v%d' % (T + 2, V_PA))
    s('v_add_u32 v%d, 16, v%d' % (T + 2, T + 2))
    s('v_cmp_gt_u32 vcc, 4, v%d' % T)
    s('v_cndmask_b32 v%d, v%d, v%d, vcc' % (V_PA2, T + 2, T + 1))
    s('v_mov_b32 v%d, 4' % V_EXP2)
    s('v_cndmask_b32 v%d, v%d, 16, vcc' % (V_EXP2, V_EXP2))

    def bf(par, ct):
        return V_BF + 8 * par + 4 * ct

    def bread(z, u):
        reg, off = unit_loc(u)
        if u >= 5:
            z.wait(vm=[('b', u)])
        for ct in range(2):
            for h in range(2):
                z('ds_read_b64_tr_b16 %s, v%d offset:%d' % (vr(bf(u & 1, ct) + 2 * h, 2), V_BA + 2 * reg + ct, off + h * 1024), ('bf', u, ct))

    def woread(z, hd, f):
        z.wait(vm=[('b', 34)])
        for ct in range(2):
            for h in range(2):
                a = V_BAS + ct if (f == 1 and h == 1) else V_BA + 2 + ct
                z('ds_read_b64_tr_b16 %s, v%d offset:%d' % (vr(bf(f, ct) + 2 * h, 2), a, (28 * hd + 16 * f + 8 * h) * 128), ('wf', hd, f, ct))

    def acc(ct, rg):
        return V_ACC + 32 * ct + 16 * rg

    HB = [V_AB + 64, V_AB + 96, V_AB + 32, V_AB]

    def hload(z, hd):
        z('s_add_u32 s%d, s%d, %d' % (S_T0, S_KVA, hd * 4096))
        z('s_add_u32 s%d, s%d, %d' % (S_T1, S_PQ, hd * 2048))
        for i in range(4):
            z('buffer_load_dwordx4 %s, v%d, %s, s%d offen offset:%d sc1' % (vr(HB[hd] + 4 * i, 4), V_L16, sr(SWS, 4), S_T0, i * 1024), ('kv', hd))
        for rg in range(2):
            for f in range(2):
                z('buffer_load_dwordx4 %s, v%d, %s, s%d offen offset:%d sc1' % (vr(HB[hd] + 16 + 8 * rg + 4 * f, 4), V_L16B if rg else V_L16, sr(SWS, 4), S_T1, f * 1024), ('pq', hd))

    s.wait(vm='poll1')
    flag(s, 0, S_PEND)
    bread(s, 0)
    for u in range(28):
        if u in (0, 8, 16):
            st = (u >> 3) + 1
            s.wait(vm='poll%d' % st)
            spin_check(s, V_POLL, V_EXP, V_PA, SWS, '0', 1 << st)
        if u == 20:
            s.wait(vm='poll4')
            spin_check(s, V_POLL, V_EXP2, V_PA2, SWS, '0', 0x1f)
            stamp(s, 7)
            hload(s, 0)
            hload(s, 1)
        if u == 3:
            s('s_barrier')
            stamp(s, 6)
        if u < 27:
            bread(s, u + 1)
        s.wait(vm=[('a', u)])
        for ct in range(2):
            s.wait(lgkm=[('bf', u, ct)])
            for rg in range(2):
                s('v_mfma_f32_32x32x16_bf16 %s, %s, %s, %s' % (vr(acc(ct, rg), 16), vr(bf(u & 1, ct), 4), vr(abuf(u, rg), 4), vr(acc(ct, rg), 16) if u else '0'))
        if u in (4, 12):
            poll(s, 'poll%d' % ((u >> 3) + 2))
        if u == 16:
            poll(s, 'poll4', V_PA2)
        if u + 8 < 28:
            aload(s, u + 8)
        if 3 <= u <= 9:
            dma_b2(s, u + 9)
        if 7 <= u <= 15:
            dma_b2(s, u + 12)
        if 13 <= u <= 19:
            dma_b2(s, u + 15)
        if u == 23:
            hload(s, 2)
        if u == 27:
            hload(s, 3)
    stamp(s, 8)

    def wo_slots(hd):
        out = []
        for f in range(2):
            for ct in range(2):
                for rg in range(2):
                    z = Seg()
                    z.wait(lgkm=[('wf', hd, f, ct)])
                    z('v_mfma_f32_32x32x16_bf16 %s, %s, %s, %s' % (vr(acc(ct, rg), 16), vr(bf(f, ct), 4), vr(HB[hd] + 16 + 8 * rg + 4 * f, 4), vr(acc(ct, rg), 16)))
                    out.append(z)
        return out

    def scale(hd):
        z = Seg()
        t = HB[hd] + 8
        for rg in range(2):
            n = V_NUM + 16 * rg
            z('v_add_f32 v%d, s%d, v%d' % (t + 2 * rg, S_EPS, n + 12))
            z('v_add_f32 v%d, s%d, v%d' % (t + 2 * rg + 1, S_EPS, n + 12))
        for rg in range(2):
            z('v_permlane32_swap_b32 v%d, v%d' % (t + 2 * rg, t + 2 * rg + 1))
        for rg in range(2):
            z('v_rcp_f32 v%d, v%d' % (t + 2 * rg + 1, t + 2 * rg + 1))
        for rg in range(2):
            z('v_cndmask_b32 v%d, v%d, 0, %s' % (t + 2 * rg, t + 2 * rg + 1, sr(S_HI, 2)))
        for rg in range(2):
            n = V_NUM + 16 * rg
            for k in range(16):
                z('v_mul_f32 v%d, v%d, v%d' % (n + k, n + k, t + 2 * rg + (0 if k >= 12 else 1)))
            for k in range(8):
                z('v_cvt_pk_bf16_f32 v%d, v%d, v%d' % (HB[hd] + 16 + 8 * rg + k, n + 2 * k, n + 2 * k + 1))
        return z

    for hd in range(5):
        if hd < 4:
            s.wait(vm=[('kv', hd)])
            for k in range(8):
                s('v_cvt_pk_bf16_f32 v%d, v%d, v%d' % (HB[hd] + k, HB[hd] + 2 * k, HB[hd] + 2 * k + 1))
        if hd > 0:
            woread(s, hd - 1, 0)
            woread(s, hd - 1, 1)
        if hd < 4:
            s.wait(vm=[('pq', hd)])
            for f in range(2):
                for rg in range(2):
                    n = V_NUM + 16 * rg
                    s('v_mfma_f32_32x32x16_bf16 %s, %s, %s, %s' % (vr(n, 16), vr(HB[hd] + 4 * f, 4), vr(HB[hd] + 16 + 8 * rg + 4 * f, 4), vr(n, 16) if f else '0'))
        if hd == 0:
            s.extend(scale(0))
        elif hd < 4:
            if hd == 2:
                res_load(s)
            s.extend(interleave(wo_slots(hd - 1), list(scale(hd)), start=2))
        else:
            z = Seg()
            z('v_bfe_u32 v%d, v%d, 4, 5' % (T, V_L16))
            z('v_and_b32 v%d, 7, v%d' % (T + 1, T))
            z('v_bfe_u32 v%d, v%d, 1, 1' % (T + 2, T))
            z('v_lshrrev_b32 v%d, 9, v%d' % (T + 3, V_L16))
            z('v_xor_b32 v%d, v%d, v%d' % (T + 2, T + 2, T + 3))
            z('v_lshl_add_u32 v%d, v%d, 3, v%d' % (T + 1, T + 2, T + 1))
            z('v_lshlrev_b32 v%d, 4, v%d' % (T + 1, T + 1))
            z('v_lshl_add_u32 v%d, v%d, 8, v%d' % (T + 1, T, T + 1))
            z('v_add_u32 v%d, s%d, v%d' % (T + 8, S_QR0, T + 1))
            for k in range(1, 8):
                z('v_xor_b32 v%d, %d, v%d' % (T + 8 + k, k << 4, T + 8))
            s.extend(interleave(wo_slots(3), list(z)))
    stamp(s, 9)
    for ct in range(2):
        for rg in range(2):
            for i in range(4):
                s('ds_write_b128 v%d, %s offset:%d' % (T + 8 + 4 * ct + i, vr(acc(ct, rg) + 4 * i, 4), rg * R1))
    s('s_branch L_final')
    return s


def atail():
    s = Seg('atail')
    s('L_atail:')
    if OPT['p1only']:
        s('s_branch L_fin')
        return s
    res_load(s)
    return s


def final():
    s, T = Seg('final'), V_RES + 8
    s('L_final:')
    if not OPT['p1only']:
        s.wait(vm='res')
        D, U = V_ACC, V_NUM
        for k in range(4):
            s('v_lshlrev_b32 v%d, 16, v%d' % (U + 2 * k, V_RES + k))
            s('v_and_b32 v%d, 0xffff0000, v%d' % (U + 2 * k + 1, V_RES + k))
            s('v_lshlrev_b32 v%d, 16, v%d' % (V_RES + k, V_RES + 4 + k))
            s('v_and_b32 v%d, 0xffff0000, v%d' % (V_RES + 4 + k, V_RES + 4 + k))
            s('v_add_f32 v%d, v%d, v%d' % (U + 2 * k, U + 2 * k, V_RES + k))
            s('v_add_f32 v%d, v%d, v%d' % (U + 2 * k + 1, U + 2 * k + 1, V_RES + 4 + k))
        s.wait(lgkm='all')
        s('s_barrier')
        for w in range(4):
            for h in range(2):
                s('ds_read_b128 %s, v%d offset:%d' % (vr(D + 8 * w + 4 * h, 4), T + 1 + h, w * 14336), ('fin', w))
        for w in range(4):
            s.wait(lgkm=[('fin', w)])
            for k in range(4):
                s('v_pk_add_f32 %s, %s, %s' % (vr(U + 2 * k, 2), vr(U + 2 * k, 2), vr(D + 8 * w + 2 * k, 2)))
        for k in range(4):
            s('v_cvt_pk_bf16_f32 v%d, v%d, v%d' % (U + k, U + 2 * k, U + 2 * k + 1))
        s('buffer_store_dwordx4 %s, v%d, %s, s%d offen' % (vr(U, 4), T, sr(SOUT, 4), S_OUTO))
    return s


def fin():
    s = Seg('fin')
    s('L_fin:')
    if OPT['diag']:
        stamp(s, 10)
        s('s_waitcnt lgkmcnt(0)')
        s('v_mov_b32 v4, 0')
        for k in range(11):
            s('v_writelane_b32 v4, s%d, %d' % (S_KA + 2 * k, k))
        s('v_writelane_b32 v4, s%d, 11' % S_SPIN)
        s('s_lshl3_add_u32 s%d, s2, s%d' % (S_T0, S_WV))
        s('s_lshl_b32 s%d, s%d, 8' % (S_T0, S_T0))
        s('s_add_u32 s%d, s%d, 0x%x' % (S_T0, S_T0, TS_OFF))
        s('v_lshrrev_b32 v5, 2, v%d' % V_L16)
        s('buffer_store_dword v4, v5, %s, s%d offen' % (sr(SWS, 4), S_T0))
        if OPT['diag'] == 3:
            s('s_not_b32 s%d, s%d' % (S_T0, S_KA))
            s('v_writelane_b32 v4, s%d, 11' % S_T0)
            s('s_cmp_eq_u32 s%d, 4' % S_WV)
            s('s_cselect_b32 s%d, 16, 0x%x' % (S_T0, OOB))
            s('s_cmp_lt_u32 s%d, 4' % S_ROLE)
            s('s_cselect_b32 s%d, s%d, 0x%x' % (S_T0, S_T0, OOB))
            s('s_mov_b64 exec, 0xfff')
            s('buffer_atomic_umax v4, v5, %s, s%d offen sc1' % (sr(SDBG, 4), S_T0))
    if OPT['diag'] == 4:
        s('s_cmp_lg_u32 s2, %d' % OPT['wg'])
        s('s_cbranch_scc1 L_end')
        s('s_cmp_lg_u32 s%d, 4' % S_WV)
        s('s_cbranch_scc1 L_end')
        s('s_sub_u32 s%d, s%d, s%d' % (S_T0, S_KA + 2 * OPT['sb'], S_KA + 2 * OPT['sa']))
        if not OPT['clk']:
            s('s_mul_i32 s%d, s%d, 10' % (S_T0, S_T0))
        s('s_min_u32 s%d, s%d, 200000' % (S_T0, S_T0))
        s('s_memrealtime s[66:67]')
        s('s_waitcnt lgkmcnt(0)')
        s('L_dly:')
        s('s_memrealtime s[68:69]')
        s('s_waitcnt lgkmcnt(0)')
        s('s_sub_u32 s68, s68, s66')
        s('s_cmp_lt_u32 s68, s%d' % S_T0)
        s('s_cbranch_scc1 L_dly')
    s('L_end:')
    s('s_endpgm')
    return s


def main():
    pro = prologue()
    f, fa, fb = lc_role(True)
    q, qa = lc_role(False)
    k, ka, kb = kv_role()
    p2, at, fl, fi = phase2(), atail(), final(), fin()
    paths = [
        [pro, f, fa, at, fl, fi],
        [pro, f, fb, p2, fl, fi],
        [pro, q, qa, fi],
        [pro, k, ka, at, fl, fi],
        [pro, k, kb, p2, fl, fi],
    ]
    resolve_waits(paths)
    n = pad_hazards(paths)
    assert pad_hazards(paths) == 0
    body = render([pro, f, fa, fb, k, ka, kb, q, qa, p2, at, fl, fi, slow])
    head = open('cdna_kernels/%s.s.ref' % NAME).read().split('\n')
    head = [l for l in head if l.startswith(';') and '@launch' not in l]
    out = '\n'.join(head) + '''
; @launch grid=(256,1,1) block=(512,1,1) lds=%d
.amdgcn_target "amdgcn-amd-amdhsa--gfx950"
.text
.globl %s_kernel
.p2align 8
.type %s_kernel,@function
%s_kernel:
L_codebeg:
%s
L_codeend:
.section .rodata,"a"
.p2align 6
.amdhsa_kernel %s_kernel
  .amdhsa_next_free_vgpr 256
  .amdhsa_next_free_sgpr 102
  .amdhsa_accum_offset 256
  .amdhsa_group_segment_fixed_size 0
  .amdhsa_kernarg_size 88
  .amdhsa_user_sgpr_count 2
  .amdhsa_user_sgpr_kernarg_segment_ptr 1
  .amdhsa_system_sgpr_workgroup_id_x 1
.end_amdhsa_kernel
''' % (LDS_BYTES, NAME, NAME, NAME, body, NAME)
    open(sys.argv[1], 'w').write(out)
    print('wrote %s: %d lines, %d pad states' % (sys.argv[1], out.count('\n'), n))


main()
```

```python
import struct
import sys
from asmlib import Seg, Ins, Wait, GAP, interleave, resolve_waits, pad_hazards, render, vr, sr

NAME = 'parallel_sum__linear_attn_block__dense_activation_gelu__prompt'
OPT = dict(fatom=0, tlb=0, kbar=4, kphi=26, kcut=20, qatom=1, batom=1, pkind=1, x_hit=0, gsp=3, eprio=0, aprio=2, aprio2=2, aprio3=0, lb=6, touch=0, kprio=1, plead=4, x_noa=0, x_nopoll=0, x_noflag=0, x_nost=0, x_plain=0, rot2=1, dep=6, noatom=0, diag=0, p1only=0, sa=0, sb=10, clk=0, wg=0)
for a in sys.argv[2:]:
    k, v = a.split('=')
    OPT[k] = v if k == 'st' else int(v)
STAMPS = OPT.get('st', '0,1,2,3,4,5,6,7,8,9,10').split(',')


def f32(x):
    return '0x%08x' % struct.unpack('<I', struct.pack('<f', x))[0]


XS, WQS, W1S = 896, 2688, 3584
ACT_G = 147456
KV_OFF = 0x900000
FKV_OFF = 0x910000
FL_OFF = 0x911000
FL_G = 896
TS_OFF = 0xA00000
WS_BYTES = 0x10000000
OOB = 0x40000000
R0, R1, R2, MISC = 0, 57344, 114688, 155648
M_ST, M_SY, M_CS, M_R = MISC, MISC + 2048, MISC + 4096, MISC + 7168
LDS_BYTES = 163840
LOG2E = 1.4426950408889634
GC1 = -2.0 * 0.7978845608028654 * LOG2E
GC3 = GC1 * 0.044715
SPIN_LIMIT = 1 << 16

S_WV, S_RW, S_G, S_RB, S_ROLE = 3, 4, 5, 6, 7
SX, SW, SWS, SW2, SWO, SOUT, SB1, SB2, SDBG = 8, 12, 16, 20, 24, 28, 32, 36, 40
S_KA = 44
S_KX, S_KW = 66, 73
S_I2, S_HALF, S_T0, S_T1, S_ONES, S_EPS = 80, 81, 82, 83, 84, 85
S_M0W, S_M0X, S_T3, S_RO, S_H, S_FL = 86, 87, 88, 89, 90, 91
S_HI = 92
S_SPIN, S_T2, S_P, S_LAST, S_PEND, S_L2E = 94, 95, 96, 97, 98, 99
S_PAD = 100
S_B2R, S_QR0, S_RO3, S_QR2, S_A, S_WOR, S_OUTO, S_PL = 66, 67, 68, 69, 70, 71, 72, 73
S_AO = 74

V_L16, V_B2, V_X0, V_X1, V_W, V_CSW, V_CSR = 1, 2, 3, 4, 5, 6, 7
V_SEL, V_CS, V_WA, V_XA, V_EXW, V_EXR, V_ST = 8, 12, 20, 28, 32, 36, 38
V_B1 = 16
V_WB, V_RA = 42, 43
V_POLL, V_PA, V_FLO, V_ONE = 44, 45, 46, 47
V_T = 48
V_ACC, V_X, V_WF = 64, 128, 240
V_B2B, V_BA, V_L16B, V_PL = 3, 4, 12, 13
V_NUM, V_BF, V_AB, V_RES = 16, 48, 128, 192
V_PQ = 80
HND = 49152

slow = Seg('slow')
nspin = [0]


def stamp(s, k):
    if OPT['diag'] and str(k) in STAMPS:
        k = STAMPS.index(str(k))
        s('%s %s' % ('s_memtime' if OPT['diag'] == 2 or OPT['clk'] else 's_memrealtime', sr(S_KA + 2 * k, 2)))


class Rebase:
    def __init__(self, regs, base, span):
        self.regs, self.base, self.span = regs, base, span

    def off(self, s, addr):
        if not (self.base <= addr and addr - self.base + self.span <= 65535):
            for r in self.regs:
                s('v_add_u32 v%d, 0x%x, v%d' % (r, (addr - self.base) & 0xffffffff, r))
            self.base = addr
        return addr - self.base


def spin_check(s, vpoll, vexp, vaddr, srd, soff, mask):
    if OPT['x_nopoll'] and srd != SDBG:
        return
    k = nspin[0]
    nspin[0] += 1
    s('v_cmp_ge_u32 vcc, v%d, v%d' % (vpoll, vexp))
    s('s_andn2_b32 s%d, 0x%x, vcc_lo' % (S_T2, mask))
    s('s_cbranch_scc1 L_slow%d' % k)
    s('L_ret%d:' % k)
    slow('L_slow%d:' % k)
    slow('s_add_u32 s%d, s%d, 1' % (S_SPIN, S_SPIN))
    slow('s_cmp_gt_u32 s%d, 0x%x' % (S_SPIN, SPIN_LIMIT))
    slow('s_cbranch_scc1 L_ret%d' % k)
    slow('buffer_load_dword v%d, v%d, %s, %s offen sc1' % (vpoll, vaddr, sr(srd, 4), soff))
    slow('s_waitcnt vmcnt(0)')
    slow('v_cmp_ge_u32 vcc, v%d, v%d' % (vpoll, vexp))
    slow('s_nop 1')
    slow('s_andn2_b32 s%d, 0x%x, vcc_lo' % (S_T2, mask))
    slow('s_cbranch_scc1 L_slow%d' % k)
    slow('s_branch L_ret%d' % k)


def poll_base(s):
    s('s_lshr_b32 s%d, s%d, 1' % (S_PL, S_I2))
    s('s_lshl2_add_u32 s%d, s%d, s%d' % (S_PL, S_PL, S_RW))
    s('s_mul_i32 s%d, s%d, %d' % (S_PL, S_PL, FL_G))
    s('s_add_u32 s%d, s%d, 0x%x' % (S_PL, S_PL, FL_OFF))
    s('v_cmp_gt_u32 vcc, 32, v%d' % V_L16)
    s('v_lshlrev_b32 v%d, 3, v%d' % (V_PL, V_L16))
    s('v_cndmask_b32 v%d, v%d, v%d, vcc' % (V_PL, V_FLO, V_PL))


def poll_async(s, k):
    s('buffer_load_dword v%d, v%d, %s, s%d offen offset:%d sc1' % (V_POLL, V_PL, sr(SWS, 4), S_PL, k * 256), ('poll', k))


def stage_check(s, k, miss=None, sync=False):
    if OPT['x_nopoll']:
        return
    j = nspin[0]
    nspin[0] += 1
    mask = 3 if k < 3 else 1
    if sync:
        s('s_branch L_slow%d' % j)
    else:
        s.wait(vm=[('poll', k)])
        s('v_cmp_ne_u32 vcc, 0, v%d' % V_POLL)
        s('s_andn2_b32 s%d, %d, vcc_lo' % (S_T2, mask))
        if miss:
            s('s_cbranch_scc1 %s' % miss)
            return
        s('s_cbranch_scc1 L_slow%d' % j)
    s('L_ret%d:' % j)
    slow('L_slow%d:' % j)
    slow('s_add_u32 s%d, s%d, 1' % (S_SPIN, S_SPIN))
    slow('s_cmp_gt_u32 s%d, 0x%x' % (S_SPIN, SPIN_LIMIT))
    slow('s_cbranch_scc1 L_ret%d' % j)
    slow('buffer_load_dword v%d, v%d, %s, s%d offen offset:%d sc1' % (V_POLL, V_PL, sr(SWS, 4), S_PL, k * 256))
    slow('s_waitcnt vmcnt(0)')
    slow('v_cmp_ne_u32 vcc, 0, v%d' % V_POLL)
    slow('s_nop 1')
    slow('s_andn2_b32 s%d, %d, vcc_lo' % (S_T2, mask))
    slow('s_cbranch_scc1 L_slow%d' % j)
    slow('s_branch L_ret%d' % j)


def poll_check(s, k, n, sync=False, atomic=False):
    j = nspin[0]
    nspin[0] += 1
    if OPT['x_nopoll']:
        return
    if sync:
        s('s_branch L_slow%d' % j)
    else:
        s.wait(vm=[('poll', k)])
        s('v_readfirstlane_b32 s%d, v%d' % (S_T2, V_POLL))
        s('s_cmp_lt_u32 s%d, %d' % (S_T2, n))
        s('s_cbranch_scc1 L_slow%d' % j)
    s('L_ret%d:' % j)
    slow('L_slow%d:' % j)
    slow('s_add_u32 s%d, s%d, 1' % (S_SPIN, S_SPIN))
    slow('s_cmp_gt_u32 s%d, 0x%x' % (S_SPIN, SPIN_LIMIT))
    slow('s_cbranch_scc1 L_ret%d' % j)
    if atomic:
        slow('v_mov_b32 v%d, 0' % V_POLL)
        slow('buffer_atomic_add v%d, v%d, %s, s%d offen offset:%d sc0 sc1' % (V_POLL, V_FLO, sr(SWS, 4), S_PL, k * 128))
        slow('s_waitcnt vmcnt(0)')
        slow('v_readfirstlane_b32 s%d, v%d' % (S_T2, V_POLL))
        slow('s_nop 0')
    else:
        slow('s_add_u32 s%d, s%d, %d' % (S_T2, S_PL, k * 128))
        slow('s_buffer_load_dword s%d, %s, s%d glc' % (S_T2, sr(SWS, 4), S_T2))
        slow('s_waitcnt lgkmcnt(0)')
    slow('s_cmp_lt_u32 s%d, %d' % (S_T2, n))
    slow('s_cbranch_scc1 L_slow%d' % j)
    slow('s_branch L_ret%d' % j)


def srd(s, d, ka, nbytes):
    s('s_mov_b32 s%d, s%d' % (d, ka))
    s('s_and_b32 s%d, s%d, 0xffff' % (d + 1, ka + 1))
    s('s_mov_b32 s%d, 0x%x' % (d + 2, nbytes))
    s('s_mov_b32 s%d, 0x20000' % (d + 3))


def prologue():
    s = Seg('pro')
    s('s_cmp_ge_u32 s2, 256')
    s('s_cbranch_scc1 L_end')
    if OPT['diag'] >= 3:
        s('s_memtime s[100:101]' if OPT['clk'] else 's_memrealtime s[100:101]')
        s('s_waitcnt lgkmcnt(0)')
        s('v_mov_b32 v255, s100')
    s('s_load_dwordx16 s[44:59], s[0:1], 0')
    s('s_load_dwordx4 s[60:63], s[0:1], 64')
    s('s_load_dwordx2 s[64:65], s[0:1], 80')
    s('v_readfirstlane_b32 s%d, v0' % S_WV)
    s('s_getpc_b64 s[82:83]')
    s('s_lshr_b32 s%d, s%d, 6' % (S_WV, S_WV))
    s('s_lshr_b32 s%d, s2, 3' % S_T2)
    s('s_lshl_b32 s%d, s%d, 11' % (S_P, S_T2))
    s('v_lshl_add_u32 v%d, v0, 2, s%d' % (V_T, S_P))
    s('v_min_u32 v%d, L_codeend-L_codebeg-64, v%d' % (V_T, V_T))
    s('global_load_dword v%d, v%d, s[82:83]' % (V_T + 15, V_T))
    s('s_and_b32 s%d, s%d, 3' % (S_RW, S_WV))
    s('s_lshr_b32 s%d, s%d, 2' % (S_G, S_WV))
    s('s_and_b32 s%d, s%d, 7' % (S_ROLE, S_T2))
    s('s_lshr_b32 s%d, s%d, 3' % (S_T2, S_T2))
    s('s_and_b32 s%d, s2, 1' % S_HALF)
    s('s_and_b32 s%d, s2, 7' % S_P)
    s('s_lshl2_add_u32 s%d, s%d, s%d' % (S_I2, S_P, S_T2))
    s('s_lshr_b32 s%d, s%d, 1' % (S_P, S_P))
    s('s_lshl2_add_u32 s%d, s%d, s%d' % (S_RB, S_P, S_T2))
    s('s_lshl1_add_u32 s%d, s%d, s%d' % (S_T2, S_T2, S_ROLE))
    s('s_add_u32 s%d, s%d, s%d' % (S_T2, S_T2, S_P))
    s('s_mul_i32 s%d, s%d, 3' % (S_P, S_HALF))
    s('s_add_u32 s%d, s%d, s%d' % (S_T2, S_T2, S_P))
    for _ in range(2):
        s('s_cmp_ge_u32 s%d, 7' % S_T2)
        s('s_cselect_b32 s%d, 7, 0' % S_P)
        s('s_sub_u32 s%d, s%d, s%d' % (S_T2, S_T2, S_P))
    s('s_cmp_lt_u32 s%d, 4' % S_ROLE)
    s('s_mov_b32 s%d, %d' % (S_LAST, WQS))
    s('s_cselect_b32 s%d, %d, s%d' % (S_LAST, W1S, S_LAST))
    s('s_lshl_b32 s%d, s%d, 6' % (S_PEND, S_LAST))
    s('s_mul_i32 s%d, s%d, %d' % (S_P, S_RB, 128 * XS))
    for c in range(7):
        s('s_lshl_b32 s%d, s%d, 7' % (S_KX + c, S_T2))
        s('s_add_u32 s%d, s%d, s%d' % (S_KX + c, S_KX + c, S_P))
        s('s_mul_i32 s%d, s%d, s%d' % (S_KW + c, S_T2, S_PEND))
        if c < 6:
            s('s_add_u32 s%d, s%d, 1' % (S_T2, S_T2))
            s('s_cmp_eq_u32 s%d, 7' % S_T2)
            s('s_cselect_b32 s%d, 0, s%d' % (S_T2, S_T2))
    s('s_lshl_b32 s%d, s%d, 11' % (S_M0W, S_RW))
    s('s_lshl_b32 s%d, s%d, 11' % (S_M0X, S_WV))
    T = V_T
    s('v_and_b32 v%d, 63, v0' % T)
    s('v_lshlrev_b32 v%d, 4, v%d' % (V_L16, T))
    s('v_lshrrev_b32 v%d, 3, v%d' % (T + 1, T))
    s('v_and_b32 v%d, 7, v%d' % (T + 2, T))
    s('v_lshrrev_b32 v%d, 4, v%d' % (T + 3, T))
    s('s_lshl_b32 s%d, s%d, 4' % (S_T2, S_WV))
    s('v_add_u32 v%d, s%d, v%d' % (T + 5, S_T2, T + 1))
    s('v_mul_u32_u24 v%d, %d, v%d' % (T + 5, XS, T + 5))
    s('v_xor_b32 v%d, v%d, v%d' % (T + 6, T + 2, T + 3))
    s('v_lshl_add_u32 v%d, v%d, 4, v%d' % (V_X0, T + 6, T + 5))
    s('v_xor_b32 v%d, 64, v%d' % (V_X1, V_X0))
    s('v_add_u32 v%d, %d, v%d' % (V_X1, 8 * XS - 1024, V_X1))
    s('v_and_b32 v%d, 1, v%d' % (T + 7, T + 3))
    s('v_lshlrev_b32 v%d, 2, v%d' % (T + 4, T + 7))
    s('v_xor_b32 v%d, v%d, v%d' % (T + 4, T + 2, T + 4))
    s('v_lshlrev_b32 v%d, 4, v%d' % (T + 4, T + 4))
    s('v_mul_u32_u24 v%d, %d, v%d' % (V_B2, XS, T + 1))
    s('v_add_u32 v%d, v%d, v%d' % (V_B2, V_B2, T + 4))
    s('s_waitcnt lgkmcnt(0)')
    srd(s, SX, 44, 2048 * XS)
    s('s_cmp_lt_u32 s%d, 4' % S_ROLE)
    s('s_cselect_b32 s%d, s52, s46' % SW)
    s('s_cselect_b32 s%d, s53, s47' % (SW + 1))
    s('s_mul_i32 s%d, s%d, 448' % (SW + 2, S_LAST))
    s('s_and_b32 s%d, s%d, 0xffff' % (SW + 1, SW + 1))
    s('s_mov_b32 s%d, 0x20000' % (SW + 3))
    srd(s, SWS, 64, WS_BYTES)
    srd(s, SB1, 54, 1792 * 2)
    s('s_cmp_ge_u32 s%d, 7' % S_ROLE)
    s('s_cbranch_scc1 L_q')
    s('s_cmp_ge_u32 s%d, 4' % S_ROLE)
    s('s_cbranch_scc1 L_kv')
    return s


def late_setup(s, kv):
    T = V_T
    srd(s, SW2, 56, 1792 * XS)
    srd(s, SWO, 48, 448 * XS)
    srd(s, SOUT, 60, 2048 * XS)
    srd(s, SB2, 58, 448 * 2)
    srd(s, SDBG, 62, 256)
    stamp(s, 0)
    if OPT['diag'] >= 3:
        s('s_waitcnt lgkmcnt(0)')
        s('v_readfirstlane_b32 s%d, v255' % S_KA)
    s('s_mov_b32 s%d, 0x3f803f80' % S_ONES)
    s('s_mov_b32 s%d, %s' % (S_EPS, f32(1e-6)))
    s('s_mov_b32 s%d, %s' % (S_L2E, f32(LOG2E)))
    s('s_mov_b32 s%d, 0' % S_HI)
    s('s_mov_b32 s%d, -1' % (S_HI + 1))
    s('s_mov_b32 s%d, 0xf0000000' % S_PAD)
    s('s_mov_b32 s%d, 0xf0000000' % (S_PAD + 1))
    s('s_mov_b32 s%d, 0' % S_SPIN)
    s('v_and_b32 v%d, 31, v%d' % (T + 8, T))
    s('v_lshrrev_b32 v%d, 5, v%d' % (T + 9, T))
    s('v_bfe_u32 v%d, v%d, 2, 2' % (T + 10, T))
    s('v_and_b32 v%d, 3, v%d' % (T + 11, T))
    s('s_mov_b32 s%d, s%d' % (S_T0, S_RW))
    s('s_lshl_b32 s%d, s%d, 1' % (S_T1, S_T0))
    s('v_add_u32 v%d, s%d, v%d' % (T + 12, S_T1, T + 9))
    s('v_bfe_u32 v%d, v%d, 1, 3' % (T + 13, T))
    s('v_xor_b32 v%d, v%d, v%d' % (T + 12, T + 12, T + 13))
    s('s_lshl_b32 s%d, s%d, 5' % (S_T1, S_RW))
    s('v_add_u32 v%d, s%d, v%d' % (T + 13, S_T1, T + 8))
    s('v_lshlrev_b32 v%d, 7, v%d' % (V_XA, T + 13))
    s('v_lshl_add_u32 v%d, v%d, 4, v%d' % (V_XA, T + 12, V_XA))
    for j in range(1, 4):
        s('v_xor_b32 v%d, %d, v%d' % (V_XA + j, j << 5, V_XA))
    s('s_lshl_b32 s%d, s%d, 4' % (S_T1, S_T0))
    s('v_lshl_add_u32 v%d, v%d, 3, v%d' % (T + 12, T + 9, T + 10))
    s('v_add_u32 v%d, s%d, v%d' % (T + 12, S_T1, T + 12))
    s('v_lshl_add_u32 v%d, v%d, 2, v%d' % (T + 14, T + 7, T + 11))
    s('v_and_b32 v%d, 1, v%d' % (T + 5, T + 10))
    s('v_mov_b32 v%d, s%d' % (T + 6, S_ONES))
    s('v_cmp_eq_u32 vcc, v%d, v%d' % (T + 5, T + 7))
    s('v_cndmask_b32 v%d, 0, v%d, vcc' % (V_SEL, T + 6))
    for j in range(1, 4):
        s('v_mov_b32 v%d, v%d' % (V_SEL + j, V_SEL))
    s('s_lshl_b32 s%d, s%d, %d' % (S_T1, S_G, 10 if kv else 9))
    s('s_add_u32 s%d, s%d, %d' % (S_T1, S_T1, M_CS))
    s('v_lshl_add_u32 v%d, v%d, 4, s%d' % (V_CSR, T + 8, S_T1))
    s('s_lshl_b32 s%d, s%d, 2' % (S_T1, S_RW))
    s('v_add_u32 v%d, s%d, v%d' % (V_CSW, S_T1, V_CSR))
    for j in range(4):
        s('v_mov_b32 v%d, 0' % (V_ST + j))
    s('v_mov_b32 v%d, 0' % (V_EXW + 1))
    s('v_mov_b32 v%d, 0' % (V_EXW + 3))
    s('v_mov_b32 v%d, 1' % V_ONE)
    s('v_mov_b32 v%d, 0x%x' % (V_FLO, OOB))
    s('v_cmp_eq_u32 vcc, 0, v%d' % T)
    s('v_cndmask_b32 v%d, v%d, 0, vcc' % (V_FLO, V_FLO))
    s('s_lshl2_add_u32 s%d, s%d, %d' % (S_T1, S_WV, M_SY))
    s('v_mov_b32 v%d, s%d' % (V_PA, S_T1))
    s('ds_write_b32 v%d, v%d' % (V_PA, V_ST))
    if kv:
        for k in (32, 128, 160, 192, 224):
            s('ds_write_b32 v%d, v%d offset:%d' % (V_PA, V_ST, k))
    s('v_lshlrev_b32 v%d, 4, v%d' % (V_EXR, T + 13))
    s('v_add_u32 v%d, %d, v%d' % (V_EXR, M_ST, V_EXR))
    s('v_lshl_add_u32 v%d, v%d, 3, v%d' % (V_EXR + 1, T + 9, V_EXR))
    s('s_lshl1_add_u32 s%d, s%d, s%d' % (S_T1, S_I2, S_ROLE))
    s('s_and_b32 s%d, s%d, 3' % (S_RO, S_T1))
    s('s_and_b32 s%d, s%d, 4' % (S_T1, S_T1))
    s('s_lshl2_add_u32 s%d, s%d, s%d' % (S_RO, S_T1, S_RO))
    if not OPT['rot2']:
        s('s_mov_b32 s%d, 0' % S_RO)
    s('s_lshl2_add_u32 s%d, s%d, s%d' % (S_H, S_RB, S_RW))
    s('s_mul_i32 s%d, s%d, %d' % (S_H, S_H, ACT_G))
    s('s_mul_i32 s%d, s%d, %d' % (S_FL, S_RB, 4 * FL_G))
    s('s_add_u32 s%d, s%d, 0x%x' % (S_FL, S_FL, FL_OFF))


def tlb_warm(s):
    if not OPT['tlb']:
        return
    T = V_T
    s('s_cmp_eq_u32 s%d, 0' % S_WV)
    s('s_cselect_b32 s%d, 128, 0x%x' % (S_T1, OOB))
    for r in (SDBG, SW2, SWO, SB2, SOUT):
        s('buffer_load_dword v%d, v%d, %s, s%d offen' % (T + 15, V_FLO, sr(r, 4), S_T1))
    s('v_lshlrev_b32 v%d, 17, v%d' % (T + 5, V_L16))
    s('v_min_u32 v%d, 0x%x, v%d' % (T + 5, 0x9f0000, T + 5))
    s('buffer_load_dword v%d, v%d, %s, s%d offen' % (T + 15, T + 5, sr(SWS, 4), S_T1))


def dma_x(s, c, addr, tag):
    s('s_add_u32 m0, s%d, %d' % (S_M0X, addr))
    s('buffer_load_dwordx4 v%d, %s, s%d offen lds' % (V_X0, sr(SX, 4), S_KX + c), tag)
    s('buffer_load_dwordx4 v%d, %s, s%d offen offset:1024 lds' % (V_X1, sr(SX, 4), S_KX + c), tag)


def dma_w(s, m0base, c, addr, tag):
    s('s_add_u32 m0, s%d, %d' % (m0base, addr))
    s('buffer_load_dwordx4 v%d, %s, s%d offen lds' % (V_W, sr(SW, 4), S_KW + c), tag)
    s('buffer_load_dwordx4 v%d, %s, s%d offen offset:1024 lds' % (V_WB, sr(SW, 4), S_KW + c), tag)


def groups(z):
    out, cur = [], []
    for i in z:
        cur.append(i)
        if i.kind == 'vmem':
            out.append(cur)
            cur = []
    if cur:
        out.append(cur)
    return out


def mix(main, grp, lo=0.0, hi=1.0):
    main = [i for i in main if i is not GAP]
    out, k, n = [], 0, len(main)
    for idx, i in enumerate(main):
        while k < len(grp) and idx >= n * (lo + (hi - lo) * k / len(grp)):
            out.extend(grp[k])
            k += 1
        out.append(i)
    for g in grp[k:]:
        out.extend(g)
    return out


def barrier(z, vm=None, name=None):
    if name:
        stamp(z, name + 'a')
    z.wait(vm=vm, lgkm='all')
    if name:
        stamp(z, name + 'b')
    z('s_barrier')


BLK = [0, 4, 1, 5, 2, 6, 3]


def unit_ks(u):
    return 4 * BLK[u >> 2] + (u & 3)


def unit_loc(u):
    u %= 11
    return (S_QR2, 1, u * 2048) if u < 5 else (S_QR0, 0, (u - 5) * 2048)


def p2_setup(s):
    s('s_lshl_b32 s%d, s%d, 7' % (S_T0, S_ROLE))
    s('s_mul_i32 s%d, s%d, %d' % (S_B2R, S_RW, 448 * XS))
    s('s_add_u32 s%d, s%d, s%d' % (S_B2R, S_B2R, S_T0))
    s('s_mul_i32 s%d, s%d, %d' % (S_WOR, S_RW, 112 * XS))
    s('s_add_u32 s%d, s%d, s%d' % (S_WOR, S_WOR, S_T0))
    s('s_mul_i32 s%d, s%d, %d' % (S_OUTO, S_I2, 64 * XS))
    s('s_add_u32 s%d, s%d, s%d' % (S_OUTO, S_OUTO, S_T0))
    s('s_mul_i32 s%d, s%d, 12288' % (S_QR0, S_RW))
    s('s_lshr_b32 s%d, s%d, 2' % (S_RO3, S_RO))
    s('s_or_b32 s%d, s%d, s%d' % (S_RO3, S_RO3, S_RO))
    s('s_and_b32 s%d, s%d, 7' % (S_RO3, S_RO3))
    s('s_mul_i32 s%d, s%d, 10240' % (S_QR2, S_RW))
    s('s_add_u32 s%d, s%d, %d' % (S_QR2, S_QR2, R2))
    s('s_mul_i32 s%d, s%d, %d' % (S_A, S_I2, 2 * ACT_G))
    s('v_add_u32 v%d, %d, v%d' % (V_B2B, 8 * XS - 1024, V_B2))


def touch(s, t):
    if not OPT['touch']:
        return
    s('s_and_b32 s%d, s2, 0xf8' % S_T2)
    s('s_add_u32 s%d, s%d, s%d' % (S_T2, S_T2, S_WV))
    s('v_min_u32 v%d, %d, v%d' % (t, 48 * 16, V_L16))
    s('s_mul_i32 s%d, s%d, %d' % (S_T3, S_T2, 49 * 128))
    s('v_lshlrev_b32 v%d, 3, v%d' % (t, t))
    s('buffer_load_dword v%d, v%d, %s, s%d offen' % (t + 1, t, sr(SW2, 4), S_T3))
    s('v_min_u32 v%d, %d, v%d' % (t, 12 * 128, t))
    s('s_mul_i32 s%d, s%d, %d' % (S_T3, S_T2, 13 * 128))
    s('buffer_load_dword v%d, v%d, %s, s%d offen' % (t + 1, t, sr(SWO, 4), S_T3))


def ks_dyn(s, dst, u):
    if u < 24:
        s('s_xor_b32 s%d, s%d, %d' % (dst, S_RO, unit_ks(u)))
    else:
        s('s_and_b32 s%d, s%d, 3' % (dst, S_RO))
        s('s_xor_b32 s%d, s%d, %d' % (dst, dst, unit_ks(u)))


def dma_b2(s, u):
    base, _, off = unit_loc(u)
    if u < 28:
        ks_dyn(s, S_T3, u)
        if OPT['x_hit'] & 2:
            s('s_and_b32 s%d, s%d, 7' % (S_T3, S_T3))
        s('s_add_u32 m0, s%d, %d' % (base, off))
        s('s_mul_i32 s%d, s%d, %d' % (S_T3, S_T3, 16 * XS))
        s('s_add_u32 s%d, s%d, s%d' % (S_T3, S_T3, S_B2R))
    else:
        s('s_xor_b32 s%d, s%d, %d' % (S_T3, S_RO3, u - 28))
        s('s_and_b32 s%d, s%d, 1' % (S_T1, S_T3))
        s('s_mul_i32 s%d, s%d, 7' % (S_T3, S_T3))
        s('s_add_u32 s%d, s%d, s%d' % (S_T3, S_T3, S_T1))
        s('s_add_u32 m0, s%d, %d' % (base, off))
        s('s_mul_i32 s%d, s%d, %d' % (S_T3, S_T3, 2 * XS))
        s('s_add_u32 s%d, s%d, s%d' % (S_T3, S_T3, S_WOR))
    w = SW2 if u < 28 else SWO
    s('buffer_load_dwordx4 v%d, %s, s%d offen lds' % (V_B2, sr(w, 4), S_T3), ('b', u))
    s('buffer_load_dwordx4 v%d, %s, s%d offen offset:1024 lds' % (V_B2B, sr(w, 4), S_T3), ('b', u))


def sync_arrive(s, k):
    s('ds_write_b32 v%d, v%d offset:%d' % (V_PA, V_ONE, k * 32))


def sync_wait(s, k, nw, T):
    j = nspin[0]
    nspin[0] += 1
    s('v_mov_b32 v%d, %d' % (T + 8, M_SY))
    s('L_sy%d:' % j)
    for h in range(nw // 4):
        s('ds_read_b128 %s, v%d offset:%d' % (vr(T + 4 * h, 4), T + 8, k * 32 + h * 16))
    s('s_add_u32 s%d, s%d, 1' % (S_SPIN, S_SPIN))
    s('s_cmp_gt_u32 s%d, 0x%x' % (S_SPIN, SPIN_LIMIT))
    s('s_cbranch_scc1 L_sz%d' % j)
    s.wait(lgkm='all')
    for h in range(1, nw - 1, 2):
        s('v_and_b32 v%d, v%d, v%d' % (T + h, T + h, T + h + 1))
    for h in range(1, nw, 2):
        s('v_and_b32 v%d, v%d, v%d' % (T, T, T + h))
    s('v_readfirstlane_b32 s%d, v%d' % (S_T2, T))
    s('s_cmp_lg_u32 s%d, 1' % S_T2)
    s('s_cbranch_scc1 L_sy%d' % j)
    s('L_sz%d:' % j)
    s.wait(lgkm='all')


def flag(s, off):
    if OPT['fatom']:
        s('buffer_atomic_add v%d, v%d, %s, s%d offen offset:%d sc1' % (V_ONE, V_FLO, sr(SWS, 4), S_FL, off))
    else:
        s('buffer_store_dword v%d, v%d, %s, s%d offen offset:%d sc1' % (V_ONE, V_FLO, sr(SWS, 4), S_FL, off))


def f0_load(s):
    s('buffer_load_dword v%d, v%d, %s, 0 offen sc1' % (V_POLL, V_FLO, sr(SDBG, 4)), 'f0')


def f0_check(s):
    s('v_mov_b32 v%d, 32' % (V_T + 15))
    stamp(s, 'f0a')
    s.wait(vm='f0')
    stamp(s, 'f0b')
    spin_check(s, V_POLL, V_T + 15, V_FLO, SDBG, '0', 1)


def poll_early(s):
    poll_base(s)
    poll_async(s, 0)


def xreg(c, j):
    return V_X + 16 * c + 4 * j


def dots(s, c):
    for j in range(4):
        for r in range(4):
            x = xreg(c, j) + r
            s('v_dot2c_f32_bf16 v%d, s%d, v%d' % (V_ST + (r & 1), S_ONES, x))
            s('v_dot2c_f32_bf16 v%d, v%d, v%d' % (V_ST + 2 + (r & 1), x, x))


def stats_write(s):
    s('v_add_f32 v%d, v%d, v%d' % (V_ST, V_ST, V_ST + 1))
    s('v_add_f32 v%d, v%d, v%d' % (V_ST + 1, V_ST + 2, V_ST + 3))
    s('ds_write_b64 v%d, %s' % (V_EXR + 1, vr(V_ST, 2)))


def stats_final(kind):
    s, T = Seg(), V_T
    s('ds_read_b128 %s, v%d' % (vr(T, 4), V_EXR), 'st')
    s.append(GAP)
    s.wait(lgkm='st')
    s('v_add_f32 v%d, v%d, v%d' % (T, T, T + 2))
    s('v_add_f32 v%d, v%d, v%d' % (T + 1, T + 1, T + 3))
    s('v_mul_f32 v%d, %s, v%d' % (T, f32(1.0 / 448), T))
    s('v_mul_f32 v%d, %s, v%d' % (T + 1, f32(1.0 / 448), T + 1))
    s('v_fma_f32 v%d, -v%d, v%d, v%d' % (T + 1, T, T, T + 1))
    s('v_max_f32 v%d, 0, v%d' % (T + 1, T + 1))
    s('v_cvt_pk_bf16_f32 v%d, v%d, v%d' % (T + 1, T + 1, T + 1))
    s('v_lshlrev_b32 v%d, 16, v%d' % (T + 1, T + 1))
    s('v_add_f32 v%d, %s, v%d' % (T + 1, f32(1e-5), T + 1))
    s('v_cvt_pk_bf16_f32 v%d, v%d, v%d' % (T + 1, T + 1, T + 1))
    s('v_lshlrev_b32 v%d, 16, v%d' % (T + 1, T + 1))
    s('v_sqrt_f32 v%d, v%d' % (T + 1, T + 1))
    s('v_cvt_pk_bf16_f32 v%d, -v%d, -v%d' % (T, T, T))
    s('v_cvt_pk_bf16_f32 v%d, v%d, 0' % (T + 1, T + 1))
    s('v_cndmask_b32 v%d, v%d, 0, %s' % (V_EXR, T, sr(S_HI, 2)))
    s('v_lshlrev_b32 v%d, 16, v%d' % (V_ST + 2, T + 1))
    s('v_rcp_f32 v%d, v%d' % (V_ST + 3, V_ST + 2))
    s('v_cndmask_b32 v%d, v%d, 0, %s' % (V_EXR + 1, T + 1, sr(S_HI, 2)))
    if kind == 'gelu':
        s('v_mul_f32 v%d, %s, v%d' % (V_ST, f32(GC1), V_ST + 3))
        s('v_mul_f32 v%d, v%d, v%d' % (T, V_ST + 3, V_ST + 3))
        s('v_mul_f32 v%d, %s, v%d' % (V_ST + 1, f32(GC3), V_ST + 3))
        s('v_mul_f32 v%d, v%d, v%d' % (V_ST + 1, T, V_ST + 1))
    elif kind == 'phi':
        s('v_mul_f32 v%d, s%d, v%d' % (V_ST, S_L2E, V_ST + 3))
    else:
        s('s_lshl_b32 s%d, s%d, 7' % (S_T0, S_WV))
        s('s_add_u32 s%d, s%d, %d' % (S_T0, S_T0, M_R))
        s('v_bfe_u32 v%d, v%d, 2, 7' % (T, V_L16))
        s('v_add_u32 v%d, s%d, v%d' % (T, S_T0, T))
        s('ds_write_b32 v%d, v%d' % (T, V_ST + 3))
        s('v_lshrrev_b32 v%d, 9, v%d' % (V_RA, V_L16))
        s('v_lshl_add_u32 v%d, v%d, 4, s%d' % (V_RA, V_RA, S_T0))
        s('v_mov_b32 v%d, %d' % (T, M_SY + 128))
        s('v_cndmask_b32 v%d, v%d, v%d, %s' % (V_X1, V_RA, T, sr(S_PAD, 2)))
    return s


def ext_parts(acc, off, exw, swap, bias=None, T=V_T + 8):
    r, b, m = Seg(), Seg(), Seg()
    tag = ('cs', id(r))
    r('ds_read_b128 %s, v%d offset:%d' % (vr(T, 4), V_CSR, off), tag)
    b.wait(lgkm=[tag])
    b('v_add_f32 v%d, v%d, v%d' % (T, T, T + 1))
    b('v_add_f32 v%d, v%d, v%d' % (T + 2, T + 2, T + 3))
    b('v_add_f32 v%d, v%d, v%d' % (T, T, T + 2))
    b('v_cvt_pk_bf16_f32 v%d, v%d, v%d' % (T + 1, T, T))
    b('v_lshlrev_b32 v%d, 16, v%d' % (T + 1, T + 1))
    b('v_sub_f32 v%d, v%d, v%d' % (T + 1, T, T + 1))
    b('v_cvt_pk_bf16_f32 v%d, v%d, v%d' % (exw, T, T + 1))
    if bias is not None:
        r('v_mov_b32 v%d, v%d' % (exw + 1, bias))
    x, y = (V_EXR, exw) if swap else (exw, V_EXR)
    m('v_mfma_f32_32x32x8_bf16 %s, %s, %s, %s' % (vr(acc, 16), vr(x, 2), vr(y, 2), vr(acc, 16)))
    KEEP.append(r)
    return r, b, m


KEEP = []


def head(parts, stats=None):
    st = [i for i in stats if i is not GAP] if stats is not None else []
    out = st[:1]
    for p in parts:
        out += p[0]
    out += st[1:]
    for p in parts:
        out += p[1]
    for p in parts:
        out += p[2]
    return out


def epi_rowlane(kind, acc, tag, handoff=False, keep=None):
    s, T = Seg(), V_T
    for grp in range(4):
        a = [acc + 4 * grp + e for e in range(4)]
        t = [T + e for e in range(4)]
        if kind == 'gelu':
            for e in range(4):
                s('v_mul_f32 v%d, v%d, v%d' % (t[e], a[e], a[e]))
            for e in range(4):
                s('v_fma_f32 v%d, v%d, v%d, v%d' % (t[e], t[e], V_ST + 1, V_ST))
            for e in range(4):
                s('v_mul_f32 v%d, v%d, v%d' % (t[e], a[e], t[e]))
            for e in range(4):
                s('v_exp_f32 v%d, v%d' % (t[e], t[e]))
            for e in range(4):
                s('v_fma_f32 v%d, v%d, v%d, v%d' % (t[e], t[e], V_ST + 2, V_ST + 2))
            for e in range(4):
                s('v_rcp_f32 v%d, v%d' % (t[e], t[e]))
            for e in range(4):
                s('v_mul_f32 v%d, v%d, v%d' % (a[e], a[e], t[e]))
        else:
            for e in range(4):
                s('v_mul_f32 v%d, v%d, v%d' % (t[e], a[e], V_ST))
            for e in range(4):
                s('v_exp_f32_e64 v%d, v%d clamp' % (t[e], t[e]))
            for e in range(4):
                s('v_fma_f32 v%d, v%d, v%d, s%d' % (a[e], a[e], V_ST + 3, S_EPS))
            for e in range(4):
                s('v_max_f32 v%d, s%d, v%d' % (a[e], S_EPS, a[e]))
            for e in range(4):
                s('v_add_f32 v%d, v%d, v%d' % (a[e], a[e], t[e]))
        p = acc + 8 * (grp >> 1) + 2 * (grp & 1) if keep is None else keep + 2 * grp
        s('v_cvt_pk_bf16_f32 v%d, v%d, v%d' % (p, a[0], a[1]))
        s('v_cvt_pk_bf16_f32 v%d, v%d, v%d' % (p + 1, a[2], a[3]))
        if kind == 'phi' and grp == 3:
            s('v_cndmask_b32 v%d, v%d, 0, %s' % (p, p, sr(S_HI, 2)))
            s('v_cndmask_b32 v%d, v%d, 0, %s' % (p + 1, p + 1, sr(S_HI, 2)))
        if grp & 1 and keep is None:
            f = grp >> 1
            if handoff:
                s('ds_write_b128 v%d, %s offset:%d' % (V_RA, vr(acc + 8 * f, 4), f * 1024))
                continue
            s('buffer_store_dwordx4 %s, v%d, %s, s%d offen offset:%d sc1' % (vr(acc + 8 * f, 4), V_L16, sr(SWS, 4), S_H, f * 1024), tag)
    return s


XSLOT = [R2, R2 + 16384, R1 + 8192, R1 + 24576, R1 + 40960, R2, R2 + 16384]


def lc_role(ffn):
    kind = 'gelu' if ffn else 'phi'
    nm = 'f' if ffn else 'q'
    s, T = Seg(nm), V_T
    if not ffn:
        s('L_q:')
    if ffn:
        s('s_lshl2_add_u32 s%d, s%d, s%d' % (S_P, S_HALF, S_ROLE))
        s('s_and_b32 s%d, s%d, 1' % (S_T1, S_P))
        s('s_mul_i32 s%d, s%d, 448' % (S_T0, S_P))
        s('s_lshl_b32 s%d, s%d, 6' % (S_PEND, S_T1))
        s('s_add_u32 s%d, s%d, s%d' % (S_T0, S_T0, S_PEND))
    else:
        s('s_mul_i32 s%d, s%d, 448' % (S_T0, S_HALF))
    s('s_lshl_b32 s%d, s%d, 4' % (S_T2, S_RW))
    s('v_add_u32 v%d, s%d, v%d' % (T + 5, S_T2, T + 1))
    s('v_mul_u32_u24 v%d, s%d, v%d' % (T + 5, S_LAST, T + 5))
    s('v_add3_u32 v%d, v%d, v%d, s%d' % (V_W, T + 5, T + 4, S_T0))
    s('v_add_u32 v%d, %d, v%d' % (V_WB, 8 * (W1S if ffn else WQS) - 1024, V_W))
    if not ffn:
        s('s_lshl1_add_u32 s%d, s%d, s%d' % (S_T1, S_RB, S_HALF))
        s('s_mul_i32 s%d, s%d, 5' % (S_T1, S_T1))
        s('s_add_u32 s%d, s%d, s%d' % (S_T1, S_T1, S_WV))
        s('s_lshl_b32 s%d, s%d, 10' % (S_T1, S_T1))
        s('s_add_u32 s%d, s%d, 0x%x' % (S_T1, S_T1, KV_OFF))
        s('s_cmp_lt_u32 s%d, 5' % S_WV)
        s('s_cselect_b32 s%d, s%d, 0x%x' % (S_T1, S_T1, OOB))
        for j in range(4):
            s('v_mov_b32 v%d, 0' % (V_ACC + j))
        s('buffer_store_dwordx4 %s, v%d, %s, s%d offen sc1' % (vr(V_ACC, 4), V_L16, sr(SWS, 4), S_T1))
    s('s_cmp_eq_u32 s%d, 1' % S_G)
    s('s_cbranch_scc1 L_%sb' % nm)
    step = 128 if ffn else 112
    region = [R0, R1, R0, R1]
    acc = V_ACC

    def stream(g):
        z = Seg(nm + 'ab'[g])
        if g:
            z('L_%sb:' % nm)
        xa = Rebase([V_XA + j for j in range(4)], 0, 0)
        wa = Rebase([V_WA + j for j in range(4)], 0, 512)

        def triple(t, c):
            dma_x(t, c, XSLOT[c], ('t', c))
            if g:
                dma_w(t, S_M0W, c, R0 + c * 8192, ('t', c))

        def lc(t, q, c):
            dma_w(t, S_M0W, c, region[q] + c * 8192, ('l', q, c))

        def wread(t, q, c, j):
            o = wa.off(t, region[q] + c * 8192)
            for u in range(2):
                t('ds_read_b64_tr_b16 %s, v%d offset:%d' % (vr(V_WF + 4 * j + 2 * u, 2), V_WA + j, o + u * 512), ('w', q, c, j))

        def xread(t, c, j):
            o = xa.off(t, XSLOT[c])
            t('ds_read_b128 %s, v%d offset:%d' % (vr(xreg(c, j), 4), V_XA + j, o))

        def kstep(q, c, j):
            t = Seg()
            t.wait(lgkm=[('w', q, c, j)])
            first = c == 0 and j == 0
            t('v_mfma_f32_32x32x16_bf16 %s, %s, %s, %s' % (vr(acc, 16), vr(V_WF + 4 * j, 4), vr(xreg(c, j), 4), '0' if first else vr(acc, 16)))
            if j == 0:
                t('v_mfma_f32_16x16x32_bf16 %s, %s, %s, %s' % (vr(V_CS, 4), vr(V_SEL, 4), vr(V_WF + 4 * j, 4), '0' if first else vr(V_CS, 4)))
            if c < 6:
                wread(t, q, c + 1, j)
            return t

        def preread(t, q):
            for j in range(4):
                wread(t, q, 0, j)

        def gemm(t, q, fill=(), extra=None):
            t('s_setprio 1')
            slots = [kstep(q, c, j) for c in range(7) for j in range(4)]
            for k, gi in enumerate(groups(extra) if extra is not None else []):
                slots[1 + OPT['gsp'] * k].extend(gi)
            t.extend(interleave(slots, list(fill), 0, 20))
            t('ds_write_b32 v%d, v%d' % (V_CSW, V_CS))

        def next_col(t, last=False):
            for r in (V_W, V_WB):
                if last and ffn:
                    t('v_add_u32 v%d, s%d, v%d' % (r, S_LAST, r))
                else:
                    t('v_add_u32 v%d, %d, v%d' % (r, step, r))

        def epi(t, q, extra=None, pre=None, handoff=False, hi=0.85, keep=False):
            grp = groups(extra) if extra is not None else []
            t('s_setprio 2')
            t.extend(head([ext_parts(acc, 0, V_EXW, False, V_B1 + q if ffn else None)], pre))
            if not keep:
                t('s_setprio %d' % OPT['eprio'])
            stamp(t, 'x%d' % (2 * q + g + 1))
            for gi in grp[:2]:
                t.extend(gi)
            t.extend(mix(epi_rowlane(kind, acc, ('h', q), handoff, None if ffn else V_PQ + 8 * q), grp[2:], 0.03, hi))
            if ffn:
                t('s_add_u32 s%d, s%d, 4096' % (S_H, S_H))

        def duty(q, chunks, units=(), step_col=True):
            d = Seg()
            if step_col:
                next_col(d, q == 3)
            for k in chunks:
                lc(d, q, k)
            if ffn:
                for u in units:
                    dma_b2(d, u)
            return d

        triple(z, 0)
        z('s_barrier')
        triple(z, 1)
        if ffn:
            z('v_and_b32 v%d, 31, v%d' % (T + 8, T))
            z('v_lshlrev_b32 v%d, 1, v%d' % (T + 8, T + 8))
            for q in range(3):
                z('buffer_load_ushort v%d, v%d, %s, s%d offen offset:%d' % (V_B1 + q, T + 8, sr(SB1, 4), S_T0, q * 128 + g * 64))
            z('s_cmp_eq_u32 s%d, 0' % S_PEND)
            z('s_movk_i32 s%d, -64' % S_T1)
            z('s_movk_i32 s%d, -384' % S_LAST)
            z('s_cselect_b32 s%d, 384, s%d' % (S_T1, S_T1))
            z('s_cselect_b32 s%d, 128, s%d' % (S_LAST, S_LAST))
            if not g:
                z('s_add_u32 s%d, s%d, s%d' % (S_T1, S_T1, S_T0))
                z('buffer_load_ushort v%d, v%d, %s, s%d offen' % (V_B1 + 3, T + 8, sr(SB1, 4), S_T1))
            z('s_mov_b32 s%d, s%d' % (S_T2, S_T0))
        late_setup(z, False)
        tlb_warm(z)
        if ffn:
            z('s_lshl_b32 s%d, s%d, 5' % (S_T2, S_T2))
            z('s_lshr_b32 s%d, s%d, 1' % (S_T1, S_P))
            z('s_add_u32 s%d, s%d, %d' % (S_T0, S_M0W, HND))
            z('v_add_u32 v%d, s%d, v%d' % (V_RA, S_T0, V_L16))
        else:
            z('s_lshl_b32 s%d, s%d, 14' % (S_T2, S_HALF))
            z('s_lshl_b32 s%d, s%d, 1' % (S_T1, S_HALF))
        z('s_add_u32 s%d, s%d, s%d' % (S_H, S_H, S_T2))
        z('s_add_u32 s%d, s%d, %d' % (S_H, S_H, g * 2048 + (0 if ffn else 112 * 1024)))
        z('s_mul_i32 s%d, s%d, %d' % (S_T1, S_T1, FL_G))
        z('s_add_u32 s%d, s%d, s%d' % (S_FL, S_FL, S_T1))
        if ffn:
            z('s_lshl1_add_u32 s%d, s%d, s%d' % (S_FL, S_PEND, S_FL))
        z('s_cmp_eq_u32 s%d, 0' % S_WV)
        z('s_cselect_b32 s%d, s%d, 0x%x' % (S_FL, S_FL, OOB))
        z('v_lshl_add_u32 v%d, v%d, 3, %d' % (T + 5, T + 14, g * (64 if ffn else 56)))
        z('v_lshrrev_b32 v%d, 1, v%d' % (T + 6, T + 10))
        z('v_lshlrev_b32 v%d, 6, v%d' % (T + 6, T + 6))
        z('v_xor_b32 v%d, v%d, v%d' % (T + 5, T + 5, T + 6))
        z('v_lshl_add_u32 v%d, v%d, 7, v%d' % (V_WA, T + 12, T + 5))
        for j in range(1, 4):
            z('v_xor_b32 v%d, %d, v%d' % (V_WA + j, j << 11, V_WA))
        z('s_barrier')
        triple(z, 2)
        if g:
            z('s_setprio 1')
        barrier(z, [('t', 0)])
        stamp(z, 1)
        if not ffn and not g:
            z('s_cmp_eq_u32 s%d, 0' % S_WV)
            z('s_cselect_b32 s%d, 0, 0x%x' % (S_T1, OOB))
            z('buffer_atomic_add v%d, v%d, %s, s%d offen sc1' % (V_ONE, V_FLO, sr(SDBG, 4), S_T1))
        for j in range(4):
            if not g:
                wread(z, 0, 0, j)
            xread(z, 0, j)
        triple(z, 3)
        for c in range(7):
            if c < 6:
                barrier(z, [('t', c + 1)], 's%d' % c)
            else:
                z.wait(lgkm='all')
            d = Seg()
            if c < 3:
                triple(d, c + 4)
            if c == 3:
                next_col(d)
            for k in {4: ([], [0]), 5: ([], [1]), 6: ([3], [2])}.get(c, ([], []))[g]:
                lc(d, 1, k)
            if g:
                if c < 6:
                    for j in range(4):
                        xread(z, c + 1, j)
                z.extend(d)
                if c == 6:
                    preread(z, 0)
                dots(z, c)
            else:
                for j in range(4):
                    z.extend(kstep(0, c, j))
                    if c < 6:
                        xread(z, c + 1, j)
                z.extend(d)
        if g:
            stats_write(z)
            barrier(z, [('l', 1, 0)])
        else:
            z('ds_write_b32 v%d, v%d' % (V_CSW, V_CS))
            barrier(z)
        stamp(z, 2)
        if not g:
            d = Seg()
            f0_load(d)
            if ffn:
                p2_setup(d)
            touch(d, V_XA)
            epi(z, 0, d, pre=stats_final(kind))
            preread(z, 1)
            barrier(z, [('l', 1, 3)], 'e1')
            stamp(z, 'h1')
            gemm(z, 1, extra=duty(2, (1, 2, 3, 4)))
            f0_check(z)
            barrier(z, [('h', 0)], 'e2')
            stamp(z, 'h2')
            epi(z, 1)
            preread(z, 2)
            barrier(z, [('l', 2, 4)], 'e3')
            stamp(z, 3)
            if ffn:
                flag(z, 0)
            gemm(z, 2, extra=duty(3, (1, 2, 3, 4)))
            barrier(z, [('h', 1)], 'e4')
            stamp(z, 'h4')
            epi(z, 2)
            if ffn:
                for k in range(4):
                    z('v_xor_b32 v%d, s%d, v%d' % (V_WA + k, S_PEND, V_WA + k))
            preread(z, 3)
            barrier(z, [('l', 3, 4)], 'e5')
            stamp(z, 4)
            d = duty(0, (), (5, 6, 7), False)
            if ffn:
                flag(d, 256)
            gemm(z, 3, extra=d)
            barrier(z, [('h', 2), ('b', 7)], 'e6')
            stamp(z, 5)
            if ffn:
                z('ds_read_b128 %s, v%d' % (vr(V_WF, 4), V_RA), 'hnd')
                z('ds_read_b128 %s, v%d offset:1024' % (vr(V_WF + 4, 4), V_RA), 'hnd')
                z('s_sub_u32 s%d, s%d, 2048' % (S_T0, S_H))
                z('s_cmp_eq_u32 s%d, 0' % S_PEND)
                z('s_cselect_b32 s%d, 0, %d' % (S_T1, 3 * 4096 + 2048))
                z('s_sub_u32 s%d, s%d, s%d' % (S_H, S_H, S_T1))
                d = Seg()
                d.wait(lgkm='hnd')
                for f in range(2):
                    d('buffer_store_dwordx4 %s, v%d, %s, s%d offen offset:%d sc1' % (vr(V_WF + 4 * f, 4), V_L16, sr(SWS, 4), S_T0, f * 1024), 'h5')
                epi(z, 3, d, keep=True)
                z.wait(vm=[('h', 3)])
                sync_arrive(z, 0)
                sync_wait(z, 0, 4, T)
                flag(z, 512)
                stamp(z, 6)
                z('s_branch L_p2a')
            else:
                epi(z, 3)
                z('s_barrier')
                z('s_branch L_qo')
            return z
        d = duty(1, (4, 5, 6), (), False)
        if ffn:
            p2_setup(d)
            dma_b2(d, 0)
        gemm(z, 0, stats_final(kind), d)
        barrier(z, [('l', 1, 6)], 'e1')
        stamp(z, 'h1')
        for q in (1, 2):
            d = duty(q + 1, (0,))
            if q == 1:
                touch(d, V_XA)
            epi(z, q - 1, d)
            preread(z, q)
            barrier(z, [('l', q + 1, 0)], 'e%d' % (2 * q))
            stamp(z, 'h%d' % (2 * q))
            gemm(z, q, extra=duty(q + 1, (5, 6), (2 * q - 1, 2 * q), False))
            barrier(z, [('l', q + 1, 6)], 'e%d' % (2 * q + 1))
            stamp(z, q + 2)
        if ffn:
            d = Seg()
            poll_early(d)
            for u in range(8, 11):
                dma_b2(d, u)
            epi(z, 2, d, handoff=True, hi=1.0)
            barrier(z, None, 'e6')
            z('s_branch L_p2b')
        else:
            epi(z, 2)
            preread(z, 3)
            barrier(z)
            stamp(z, 5)
            gemm(z, 3)
            barrier(z)
            epi(z, 3)
        return z

    return s, stream(0), stream(1)


def q_out():
    s, T = Seg('qo'), V_T
    NUM, KF, RAW = V_X, V_X + 64, V_X + 96
    s('L_qo:')
    stamp(s, 6)
    s('s_lshl3_add_u32 s%d, s%d, s%d' % (S_T0, S_HALF, S_WV))
    s('s_lshl_b32 s%d, s%d, 7' % (S_PL, S_T0))
    s('s_add_u32 s%d, s%d, 0x%x' % (S_PL, S_PL, FKV_OFF))
    s('s_lshl_b32 s%d, s%d, 12' % (S_T0, S_T0))
    s('s_add_u32 s%d, s%d, 0x%x' % (S_T0, S_T0, KV_OFF))
    s('v_lshrrev_b32 v%d, 2, v%d' % (T, V_L16))
    s('s_add_u32 s%d, s%d, %d' % (S_T1, S_M0X, R2))
    s('v_add_u32 v%d, s%d, v%d' % (T + 1, S_T1, V_L16))
    s('s_lshl_b32 s%d, s%d, 11' % (S_T1, S_G))
    s('s_add_u32 s%d, s%d, %d' % (S_T1, S_T1, R2))
    s('v_add_u32 v%d, s%d, v%d' % (T + 2, S_T1, V_L16))
    poll_check(s, 0, 16, sync=True, atomic=OPT['qatom'])
    stamp(s, 7)
    for r in range(16):
        s('buffer_load_dword v%d, v%d, %s, s%d offen offset:%d sc1' % (RAW + r, T, sr(SWS, 4), S_T0, r * 256), ('kv', r >> 3))
    for f in range(2):
        s.wait(vm=[('kv', f)])
        for k in range(4):
            s('v_cvt_pk_bf16_f32 v%d, v%d, v%d' % (RAW + 8 * f + k, RAW + 8 * f + 2 * k, RAW + 8 * f + 2 * k + 1))
        s('ds_write_b128 v%d, %s offset:%d' % (T + 1, vr(RAW + 8 * f, 4), f * 1024))
    barrier(s)
    stamp(s, 8)
    for q in range(4):
        for f in range(2):
            s('ds_read_b128 %s, v%d offset:%d' % (vr(KF + 8 * q + 4 * f, 4), T + 2, q * 4096 + f * 1024), ('kf', q, f))
    for q in range(4):
        for f in range(2):
            s.wait(lgkm=[('kf', q, f)])
            s('v_mfma_f32_32x32x16_bf16 %s, %s, %s, %s' % (vr(NUM + 16 * q, 16), vr(KF + 8 * q + 4 * f, 4), vr(V_PQ + 8 * q + 4 * f, 4), vr(NUM + 16 * q, 16) if f else '0'))
    for p in range(2):
        for q in (2 * p, 2 * p + 1):
            s('v_add_f32 v%d, s%d, v%d' % (T + 4 + 2 * q, S_EPS, NUM + 16 * q + 12))
            s('v_add_f32 v%d, s%d, v%d' % (T + 5 + 2 * q, S_EPS, NUM + 16 * q + 12))
        for q in (2 * p, 2 * p + 1):
            s('v_permlane32_swap_b32 v%d, v%d' % (T + 4 + 2 * q, T + 5 + 2 * q))
        for q in (2 * p, 2 * p + 1):
            s('v_rcp_f32 v%d, v%d' % (T + 5 + 2 * q, T + 5 + 2 * q))
        for q in (2 * p, 2 * p + 1):
            s('v_cndmask_b32 v%d, v%d, 0, %s' % (T + 4 + 2 * q, T + 5 + 2 * q, sr(S_HI, 2)))
        for q in (2 * p, 2 * p + 1):
            n = NUM + 16 * q
            for f in range(2):
                for k in range(8 * f, 8 * f + 8, 2):
                    sel = 0 if k >= 12 else 1
                    s('v_pk_mul_f32 %s, %s, %s op_sel:[0,%d] op_sel_hi:[1,%d]' % (vr(n + k, 2), vr(n + k, 2), vr(T + 4 + 2 * q, 2), sel, sel))
                for k in range(4):
                    s('v_cvt_pk_bf16_f32 v%d, v%d, v%d' % (n + 8 * f + k, n + 8 * f + 2 * k, n + 8 * f + 2 * k + 1))
                s('buffer_store_dwordx4 %s, v%d, %s, s%d offen offset:%d sc1' % (vr(n + 8 * f, 4), V_L16, sr(SWS, 4), S_H, f * 1024), ('o', p))
            s('s_add_u32 s%d, s%d, 4096' % (S_H, S_H))
    stamp(s, 9)
    barrier(s, 'all')
    flag(s, 768)
    flag(s, 768 + FL_G)
    s('s_branch L_fin')
    return s


def kv_slot(n):
    return ((n + 4) % 9) * 16384


def kv_role():
    s, T = Seg('kv'), V_T
    s('L_kv:')
    s('s_mul_i32 s%d, s%d, 3' % (S_P, S_HALF))
    s('s_add_u32 s%d, s%d, s%d' % (S_P, S_P, S_ROLE))
    s('s_sub_u32 s%d, s%d, 4' % (S_P, S_P))
    s('s_lshl_b32 s%d, s%d, 7' % (S_T0, S_P))
    s('s_add_u32 s%d, s%d, %d' % (S_T1, S_T0, XS))
    s('s_lshl_b32 s%d, s%d, 3' % (S_T2, S_WV))
    s('v_add_u32 v%d, s%d, v%d' % (T + 5, S_T2, T + 3))
    s('v_mul_u32_u24 v%d, %d, v%d' % (T + 5, WQS, T + 5))
    s('v_and_b32 v%d, 15, v%d' % (T + 6, T))
    s('v_lshlrev_b32 v%d, 2, v%d' % (T + 8, T + 3))
    s('v_xor_b32 v%d, v%d, v%d' % (T + 6, T + 6, T + 8))
    s('v_lshlrev_b32 v%d, 4, v%d' % (T + 6, T + 6))
    s('v_add3_u32 v%d, v%d, v%d, s%d' % (V_W, T + 5, T + 6, S_T1))
    s('v_add_u32 v%d, %d, v%d' % (V_WB, 4 * WQS - 1024, V_W))

    def item(t, n):
        if n >= 14:
            if n == 14:
                t('v_add_u32 v%d, %d, v%d' % (V_W, XS, V_W))
                t('v_add_u32 v%d, %d, v%d' % (V_WB, XS, V_WB))
            dma_w(t, S_M0X, n - 14, kv_slot(n), ('i', n))
        elif n & 1:
            dma_w(t, S_M0X, n >> 1, kv_slot(n), ('i', n))
        else:
            dma_x(t, n >> 1, kv_slot(n), ('i', n))

    item(s, 0)
    item(s, 1)
    s('s_barrier')
    item(s, 2)
    late_setup(s, True)
    tlb_warm(s)
    s('s_lshl_b32 s%d, s%d, 2' % (S_T1, S_P))
    s('s_lshr_b32 s%d, 0xdb9630, s%d' % (S_LAST, S_T1))
    s('s_and_b32 s%d, s%d, 15' % (S_LAST, S_LAST))
    s('s_lshr_b32 s%d, 0x322333, s%d' % (S_PEND, S_T1))
    s('s_and_b32 s%d, s%d, 15' % (S_PEND, S_PEND))
    s('s_mul_i32 s%d, s%d, 56' % (S_T1, S_LAST))
    s('s_lshl_b32 s%d, s%d, 7' % (S_T0, S_P))
    s('s_sub_u32 s%d, s%d, s%d' % (S_T1, S_T1, S_T0))
    s('s_cmp_eq_u32 s%d, 3' % S_PEND)
    s('s_cselect_b32 s%d, 112, 0' % S_T0)
    s('s_mul_i32 s%d, s%d, s%d' % (S_T0, S_T0, S_G))
    s('s_add_u32 s%d, s%d, s%d' % (S_T1, S_T1, S_T0))
    s('v_min_u32 v%d, 6, v%d' % (T + 14, T + 14))
    s('v_lshl_add_u32 v%d, v%d, 3, s%d' % (T + 5, T + 14, S_T1))
    s('v_lshlrev_b32 v%d, 6, v%d' % (T + 6, T + 10))
    for t in range(2):
        if t:
            s('v_add_u32 v%d, 56, v%d' % (T + 5, T + 5))
        s('v_xor_b32 v%d, v%d, v%d' % (T + 8, T + 5, T + 6))
        s('v_lshl_add_u32 v%d, v%d, 8, v%d' % (V_WA + 4 * t, T + 12, T + 8))
        for j in range(1, 4):
            s('v_xor_b32 v%d, %d, v%d' % (V_WA + 4 * t + j, j << 12, V_WA + 4 * t))
    item(s, 3)
    s('s_cmp_eq_u32 s%d, 1' % S_G)
    s('s_cbranch_scc1 L_kb')

    def body(nt):
        nm = 'ka' if nt == 2 else 'kb'
        b = Seg(nm)
        if nt == 1:
            b('L_kb:')
        xa = Rebase([V_XA + j for j in range(4)], 0, 0)
        wa = Rebase([V_WA + j for j in range(4 * nt)], 0, 1024)

        def witem(q, c):
            return 2 * c + 1 if q == 0 else 14 + c

        DIST = [4 // nt, 4]
        W1 = [V_ACC + 8, V_ACC + 12, V_XA, V_T + 12]

        def wf(q, t, j):
            if q == 1 and t == 1:
                return W1[j]
            return V_WF + 8 * t + 4 * (j % DIST[q])

        def wread(z, q, c, j, ts=None):
            o = wa.off(z, kv_slot(witem(q, c)))
            for t in (range(nt) if ts is None else ts):
                for u in range(2):
                    z('ds_read_b64_tr_b16 %s, v%d offset:%d' % (vr(wf(q, t, j) + 2 * u, 2), V_WA + 4 * t + j, o + u * 1024), ('w', q, c, j, t))

        def xread(z, c, j):
            o = xa.off(z, kv_slot(2 * c))
            z('ds_read_b128 %s, v%d offset:%d' % (vr(xreg(c, j), 4), V_XA + j, o))

        def acc(q, t):
            return V_ACC + 32 * q + 16 * t

        def kstep(q, c, j):
            out = []
            first = c == 0 and j == 0
            dist = DIST[q]
            for t in range(nt):
                z = Seg()
                z.wait(lgkm=[('w', q, c, j, t)])
                z('v_mfma_f32_32x32x16_bf16 %s, %s, %s, %s' % (vr(acc(q, t), 16), vr(xreg(c, j), 4), vr(wf(q, t, j), 4), '0' if first else vr(acc(q, t), 16)))
                if j == 0:
                    z('v_mfma_f32_16x16x32_bf16 %s, %s, %s, %s' % (vr(V_CS + 4 * t, 4), vr(V_SEL, 4), vr(wf(q, t, j), 4), '0' if first else vr(V_CS + 4 * t, 4)))
                if j + dist < 4:
                    wread(z, q, c, j + dist, [t])
                elif c < 6:
                    wread(z, q, c + 1, j + dist - 4, [t])
                elif q == 0 and nt == 1:
                    wread(z, 1, 0, j + dist - 4, [t])
                if t == nt - 1 and q == 0 and c < 6:
                    xread(z, c + 1, j)
                out.append(z)
            return out

        def cs_write(z, q):
            for t in range(nt):
                z('ds_write_b32 v%d, v%d offset:%d' % (V_CSW, V_CS + 4 * t, q * 1536 + t * 512))

        def rload(z, i, dst, key, addr=V_RA):
            z('ds_read_b128 %s, v%d offset:%d' % (vr(dst, 4), addr, i * 32), key)

        if nt == 1:
            b('s_setprio 1')
        barrier(b, [('i', 1)])
        stamp(b, 1)
        for j in range(4):
            if j < DIST[0]:
                wread(b, 0, 0, j)
            xread(b, 0, j)
        item(b, 4)
        item(b, 5)
        for c in range(7):
            barrier(b, [('i', 2 * c + 3 if c < 6 else 14)], 's%d' % c)
            d = Seg()
            item(d, 2 * c + 6)
            item(d, 2 * c + 7)
            if nt == 1:
                b.extend(d)
            for j in range(4):
                for z in kstep(0, c, j):
                    b.extend(z)
            if nt == 1:
                dots(b, c)
            else:
                b.extend(d)
        cs_write(b, 0)
        if nt == 1:
            stats_write(b)
        barrier(b, [('i', 17)], 's7')
        stamp(b, 2)
        item(b, 20)

        def phi_k(t, rb):
            e = Seg()
            n = len(rb)
            for i in range(n):
                rload(e, i, rb[i], ('r', t, i))
            e.append(GAP)
            for i in range(4):
                e.wait(lgkm=[('r', t, i)])
                a = [acc(0, t) + 4 * i + k for k in range(4)]
                for k in range(4):
                    e('v_fma_f32 v%d, v%d, v%d, s%d' % (a[k], a[k], rb[i % n] + k, S_EPS))
                if i + n < 4:
                    rload(e, i + n, rb[i % n], ('r', t, i + n))
                for k in range(4):
                    e('v_mul_f32 v%d, s%d, v%d' % (T + k, S_L2E, a[k]))
                for k in range(4):
                    e('v_exp_f32_e64 v%d, v%d clamp' % (T + k, T + k))
                for k in range(4):
                    e('v_max_f32 v%d, s%d, v%d' % (a[k], S_EPS, a[k]))
                for k in range(4):
                    e('v_add_f32 v%d, v%d, v%d' % (a[k], a[k], T + k))
                e('v_cvt_pk_bf16_f32 v%d, v%d, v%d' % (acc(0, t) + 2 * i, a[0], a[1]))
                e('v_cvt_pk_bf16_f32 v%d, v%d, v%d' % (acc(0, t) + 2 * i + 1, a[2], a[3]))
            return e

        def prod_setup(z):
            for i in range(4):
                rload(z, i, V_WF + 4 * i, 'r2', V_X1)
            z('v_cndmask_b32 v%d, 0, 1.0, %s' % (V_SEL, sr(S_PAD, 2)))
            z('s_lshl_b32 s%d, s%d, 12' % (S_T0, S_RW))
            z('s_add_u32 s%d, s%d, %d' % (S_T0, S_T0, HND + (16384 if nt == 2 else 0)))
            z('v_add_u32 v%d, s%d, v%d' % (V_SEL + 1, S_T0, V_L16))

        def kv_prod(z):
            z.wait(lgkm='r2')
            for t in range(nt):
                v = acc(1, t)
                d = V_X + 16 * t
                for f in range(2):
                    for k in range(8 * f, 8 * f + 8):
                        z('v_fma_f32 v%d, v%d, v%d, v%d' % (v + k, v + k, V_WF + k, V_SEL))
                    for k in range(4):
                        z('v_cvt_pk_bf16_f32 v%d, v%d, v%d' % (v + 8 * f + k, v + 8 * f + 2 * k, v + 8 * f + 2 * k + 1))
                if nt == 1:
                    z('s_setprio 2')
                for f in range(2):
                    z('v_mfma_f32_32x32x16_bf16 %s, %s, %s, %s' % (vr(d, 16), vr(acc(0, t) + 4 * f, 4), vr(v + 8 * f, 4), vr(d, 16) if f else '0'))

        def part_write(z):
            for t in range(nt):
                for i in range(4):
                    z('ds_write_b128 v%d, %s offset:%d' % (V_SEL + 1, vr(V_X + 16 * t + 4 * i, 4), t * 16384 + i * 1024))
            sync_arrive(z, 1)

        if nt == 1:
            slots = []
            for c in range(7):
                for j in range(4):
                    z = kstep(1, c, j)[0]
                    if c == 3 and j == 0:
                        pre = Seg()
                        barrier(pre, [('i', 20)], 'v1')
                        z[:0] = pre
                    slots.append(z)
            for z in slots:
                b.extend(z)
            cs_write(b, 1)
            barrier(b, None, 'v2')
            stamp(b, 3)
            b('s_setprio 2')
            b.extend(head([ext_parts(acc(0, 0), 0, V_EXW, True), ext_parts(acc(1, 0), 1536, V_EXW + 2, True, T=V_T + 4)], stats_final('kv')))
            b('s_setprio 0')
            prod_setup(b)
            b.extend(i for i in phi_k(0, [V_ACC + 16 + 4 * i for i in range(4)]) if i is not GAP)
            kv_prod(b)
            p2_setup(b)
            barrier(b, None, 'v3')
            stamp(b, 4)
            part_write(b)
            b('s_setprio 1')
            for u in range(11):
                dma_b2(b, u)
                if u == 6:
                    poll_early(b)
            b('s_branch L_p2b')
            return b
        f0_load(b)
        b('s_setprio 2')
        b.extend(head([ext_parts(acc(0, t), t * 512, V_EXW + 2 * t, True, T=V_T + 8 - 4 * t) for t in range(2)], stats_final('kv')))
        b('s_setprio 0')
        e = [i for i in phi_k(0, [V_WF + 4 * i for i in range(4)]) if i is not GAP]
        k = len(e) * OPT['kcut'] // 100
        b.extend(e[:k])
        barrier(b, [('i', 20)], 'v1')
        b.extend(e[k:])
        f0_check(b)
        for j in range(4):
            wread(b, 1, 0, j)
        barrier(b, None, 'v2')
        stamp(b, 3)
        b('s_setprio %d' % OPT['kprio'])
        slots = []
        for c in range(7):
            for j in range(4):
                z = kstep(1, c, j)
                if c == OPT['kbar'] and j == 0:
                    pre = Seg()
                    barrier(pre, None, 'v3')
                    pre('s_setprio 2')
                    z[0][:0] = pre
                slots += z
        b.extend(interleave(slots, list(phi_k(1, [V_T + 4, V_T + 8])), OPT['kphi'], 54))
        cs_write(b, 1)
        sync_arrive(b, 0)
        prod_setup(b)
        stamp(b, 'k0')
        sync_wait(b, 0, 4, T)
        b.extend(head([ext_parts(acc(1, t), 1536 + t * 512, V_EXW + 2 * t, True, T=V_T + 8 - 4 * t) for t in range(2)]))
        b('s_cmp_lt_u32 s%d, s%d' % (S_RW, S_PEND))
        b('s_cselect_b32 s%d, 0, 0x%x' % (S_T3, OOB))
        b('s_add_u32 s%d, s%d, s%d' % (S_T1, S_LAST, S_RW))
        b('s_lshl_b32 s%d, s%d, 12' % (S_T0, S_T1))
        b('s_add_u32 s%d, s%d, s%d' % (S_T0, S_T0, S_T3))
        b('s_add_u32 s%d, s%d, 0x%x' % (S_T0, S_T0, KV_OFF))
        b('s_lshl_b32 s%d, s%d, 7' % (S_T1, S_T1))
        b('s_add_u32 s%d, s%d, s%d' % (S_T1, S_T1, S_T3))
        b('s_add_u32 s%d, s%d, 0x%x' % (S_FL, S_T1, FKV_OFF))
        b('s_add_u32 s%d, s%d, 1' % (S_T1, S_RW))
        b('s_cmp_lt_u32 s%d, 2' % S_RW)
        b('s_cselect_b32 s%d, s%d, 0' % (S_T1, S_T1))
        b('s_lshl_b32 s%d, s%d, 14' % (S_T1, S_T1))
        b('s_add_u32 s%d, s%d, %d' % (S_T1, S_T1, HND))
        kv_prod(b)
        part_write(b)
        b('v_lshrrev_b32 v%d, 2, v%d' % (T + 10, V_L16))
        b('v_add_u32 v%d, s%d, v%d' % (T + 11, S_T1, V_L16))
        sync_wait(b, 1, 8, T)
        stamp(b, 4)
        for i in range(4):
            for p in range(4):
                b('ds_read_b128 %s, v%d offset:%d' % (vr(V_X + 16 * i + 4 * p, 4), T + 11, p * 4096 + i * 1024), ('red', i))
        for i in range(4):
            r = V_X + 16 * i
            b.wait(lgkm=[('red', i)])
            for k in range(4):
                b('v_add_f32 v%d, v%d, v%d' % (r + k, r + k, r + 4 + k))
                b('v_add_f32 v%d, v%d, v%d' % (r + 8 + k, r + 8 + k, r + 12 + k))
                b('v_add_f32 v%d, v%d, v%d' % (r + k, r + k, r + 8 + k))
                b('buffer_atomic_add_f32 v%d, v%d, %s, s%d offen offset:%d sc1' % (r + k, T + 10, sr(SWS, 4), S_T0, (4 * i + k) * 256), 'atom')
        stamp(b, 5)
        p2_setup(b)
        b.wait(vm='atom')
        stamp(b, 6)
        b('buffer_atomic_add v%d, v%d, %s, s%d offen sc1' % (V_ONE, V_FLO, sr(SWS, 4), S_FL))
        b('s_branch L_p2a')
        return b

    return s, body(2), body(1)


def res_load():
    s, T = Seg(), V_RES + 8
    s('s_lshl_b32 s%d, s%d, 7' % (S_T0, S_ROLE))
    s('v_lshrrev_b32 v%d, 3, v0' % (T + 1))
    s('v_and_b32 v%d, 0x70, v%d' % (T + 2, V_L16))
    s('v_mul_u32_u24 v%d, %d, v%d' % (T, XS, T + 1))
    s('v_add_u32 v%d, v%d, v%d' % (T, T, T + 2))
    s('buffer_load_dwordx4 %s, v%d, %s, s%d offen' % (vr(V_RES, 4), T, sr(SX, 4), S_OUTO), 'res')
    s('buffer_load_dwordx4 %s, v%d, %s, s%d offen' % (vr(V_RES + 4, 4), T + 2, sr(SB2, 4), S_T0), 'res')
    s('v_and_b32 v%d, 31, v%d' % (T + 1, T + 1))
    s('v_and_b32 v%d, 7, v%d' % (T + 3, T + 1))
    s('v_bfe_u32 v%d, v%d, 1, 1' % (T + 4, T + 1))
    s('v_lshl_add_u32 v%d, v%d, 3, v%d' % (T + 3, T + 4, T + 3))
    s('v_lshlrev_b32 v%d, 4, v%d' % (T + 3, T + 3))
    s('v_xor_b32 v%d, v%d, v%d' % (T + 3, T + 3, T + 2))
    s('v_lshl_add_u32 v%d, v%d, 8, v%d' % (T + 1, T + 1, T + 3))
    return s


def frag_addr(s, T):
    s('v_lshrrev_b32 v%d, 4, v%d' % (T, V_L16))
    s('v_bfe_u32 v%d, v%d, 2, 2' % (T + 1, T))
    s('v_and_b32 v%d, 3, v%d' % (T + 2, T))
    s('v_bfe_u32 v%d, v%d, 4, 1' % (T + 3, T))
    s('v_lshl_add_u32 v%d, v%d, 2, v%d' % (T + 2, T + 3, T + 2))
    s('v_lshrrev_b32 v%d, 1, v%d' % (T + 3, T + 1))
    s('v_lshlrev_b32 v%d, 6, v%d' % (T + 3, T + 3))
    s('v_lshl_add_u32 v%d, v%d, 3, v%d' % (T + 2, T + 2, T + 3))
    s('v_lshl_add_u32 v%d, v%d, 7, v%d' % (T + 2, T + 1, T + 2))
    s('v_lshrrev_b32 v%d, 5, v%d' % (T + 3, T))
    s('v_lshl_add_u32 v%d, v%d, 9, v%d' % (T + 3, T + 3, T + 2))


def bf(par, ct):
    return V_BF + 8 * par + 4 * ct


def acc2(ct, rg):
    return V_ACC + 32 * ct + 16 * rg


def part_addr(g):
    z, T = Seg(), V_NUM
    z('v_bfe_u32 v%d, v%d, 4, 5' % (T, V_L16))
    z('v_and_b32 v%d, 7, v%d' % (T + 1, T))
    z('v_bfe_u32 v%d, v%d, 1, 1' % (T + 2, T))
    z('v_lshrrev_b32 v%d, 9, v%d' % (T + 3, V_L16))
    z('v_xor_b32 v%d, v%d, v%d' % (T + 2, T + 2, T + 3))
    z('v_lshl_add_u32 v%d, v%d, 3, v%d' % (T + 1, T + 2, T + 1))
    z('v_lshlrev_b32 v%d, 4, v%d' % (T + 1, T + 1))
    z('v_lshl_add_u32 v%d, v%d, 8, v%d' % (T + 1, T, T + 1))
    z('v_add_u32 v%d, s%d, v%d' % (T + 8, S_QR0, T + 1))
    z('v_add_u32 v%d, s%d, v%d' % (T + 16, S_QR2, T + 1))
    for rg in range(2):
        for k in range(1, 8):
            z('v_xor_b32 v%d, %d, v%d' % (T + 8 + 8 * rg + k, k << 4, T + 8 + 8 * rg))
    return z


def read_addr(g):
    z, T, A = Seg(), V_RES + 8, V_RES + 16
    for w in range(4):
        z('v_add_u32 v%d, %d, v%d' % (A + 2 * w, (R2 + w * 10240) if g else w * 12288, T + 1))
        z('v_xor_b32 v%d, 128, v%d' % (A + 2 * w + 1, A + 2 * w))
    return z


def res_unpack():
    z, U = Seg(), V_RES + 24
    z.wait(vm='res')
    for k in range(4):
        z('v_lshlrev_b32 v%d, 16, v%d' % (U + 2 * k, V_RES + k))
        z('v_and_b32 v%d, 0xffff0000, v%d' % (U + 2 * k + 1, V_RES + k))
        z('v_lshlrev_b32 v%d, 16, v%d' % (V_RES + k, V_RES + 4 + k))
        z('v_and_b32 v%d, 0xffff0000, v%d' % (V_RES + 4 + k, V_RES + 4 + k))
        z('v_add_f32 v%d, v%d, v%d' % (U + 2 * k, U + 2 * k, V_RES + k))
        z('v_add_f32 v%d, v%d, v%d' % (U + 2 * k + 1, U + 2 * k + 1, V_RES + 4 + k))
    return z


def phase2b():
    s, T = Seg('p2b'), V_NUM
    s('L_p2b:')
    if OPT['p1only']:
        s('s_branch L_fin')
        return s
    stamp(s, 5)
    s('s_setprio 1')
    s('v_add_u32 v%d, %d, v%d' % (V_L16B, ACT_G, V_L16))
    s('s_lshl_b32 s%d, s%d, 13' % (S_T0, S_RW))
    s('s_add_u32 s%d, s%d, s%d' % (S_AO, S_A, S_T0))
    s('s_add_u32 s%d, s%d, %d' % (S_AO, S_AO, 112 * 1024))
    s('s_mul_i32 s%d, s%d, %d' % (S_T0, S_RW, 28 * 1024))
    s('s_add_u32 s%d, s%d, s%d' % (S_A, S_A, S_T0))
    DEP = OPT['dep']

    def abuf(u, rg):
        return V_AB + 8 * (u % DEP) + 4 * rg

    def aload(z, u):
        if u < 28:
            ks_dyn(z, S_T0, u)
        else:
            z('s_xor_b32 s%d, s%d, %d' % (S_T0, S_RO3, u - 28))
        if OPT['x_hit'] & 1:
            z('s_and_b32 s%d, s%d, 3' % (S_T0, S_T0))
        z('s_lshl_b32 s%d, s%d, 10' % (S_T0, S_T0))
        z('s_add_u32 s%d, s%d, s%d' % (S_T0, S_T0, S_A if u < 28 else S_AO))
        for rg in range(2):
            z('buffer_load_dwordx4 %s, v%d, %s, s%d offen sc1' % (vr(abuf(u, rg), 4), V_L16B if rg else V_L16, sr(SWS, 4), S_T0), ('a', u))

    stage_check(s, 0)
    stamp(s, 'c0')
    z = Seg()
    for u in range(DEP - 1):
        aload(z, u)
        if u == min(DEP - 2, max(0, 8 - OPT['plead'])):
            poll_async(z, 1)
    y = Seg()
    frag_addr(y, T)
    for reg, base in enumerate((S_QR0, S_QR2)):
        y('v_add_u32 v%d, s%d, v%d' % (V_BA + 2 * reg, base, T + 3))
        y('v_xor_b32 v%d, 64, v%d' % (V_BA + 2 * reg + 1, V_BA + 2 * reg))
    s.extend(mix(y, groups(z)))

    def bread(z, u):
        _, reg, off = unit_loc(u)
        z.wait(vm=[('b', u)])
        for ct in range(2):
            for h in range(2):
                z('ds_read_b64_tr_b16 %s, v%d offset:%d' % (vr(bf(u & 1, ct) + 2 * h, 2), V_BA + 2 * reg + ct, off + h * 1024), ('bf', u, ct))

    bread(s, 0)
    NU = 36
    STG = {8: 1, 16: 2}
    late = list(read_addr(1)) + list(part_addr(1)) + list(res_unpack())

    def unit(s, u, loads):
        nxt = u + DEP - 1
        if nxt in STG:
            stage_check(s, STG[nxt])
            stamp(s, 'c%d' % STG[nxt])
        z = Seg()
        if nxt + OPT['plead'] in (16, 28):
            poll_async(z, 2 if nxt < 16 else 3)
        if nxt < NU and loads:
            aload(z, nxt)
        if 11 <= u + OPT['lb'] < NU:
            dma_b2(z, u + OPT['lb'])
        if u == 6:
            z.extend(res_load())
        now = groups(z)
        if 12 <= u < 20:
            k0, k1 = len(late) * (u - 12) // 8, len(late) * (u - 11) // 8
            now += [[i] for i in late[k0:k1]]
        rd = Seg()
        if u < NU - 1:
            bread(rd, u + 1)
        stamp(s, 'w%d' % u)
        s.wait(vm=[('a', u)])
        stamp(s, 'u%d' % u)
        k = 0
        for ct in range(2):
            s.wait(lgkm=[('bf', u, ct)])
            for rg in range(2):
                s('v_mfma_f32_32x32x16_bf16 %s, %s, %s, %s' % (vr(acc2(ct, rg), 16), vr(bf(u & 1, ct), 4), vr(abuf(u, rg), 4), vr(acc2(ct, rg), 16) if u else '0'))
                if k < 2:
                    s.extend(rd[:-2] if k == 0 else rd[-2:])
                for gi in range(len(now) * k // 4, len(now) * (k + 1) // 4):
                    s.extend(now[gi])
                k += 1

    U0 = 29 - DEP
    for u in range(U0):
        unit(s, u, True)
    stage_check(s, 3, miss='L_p2late')
    fast, lateseg, tail = Seg('p2f'), Seg('p2l'), Seg('p2t')
    for u in range(U0, 28):
        unit(fast, u, True)
    lateseg('L_p2late:')
    for u in range(U0, 28):
        unit(lateseg, u, False)
    stage_check(lateseg, 3, sync=True)
    stamp(lateseg, 'c3')
    for u in range(28, 28 + DEP - 1):
        aload(lateseg, u)
    lateseg('s_branch L_p2tail')
    head_, s = s, tail
    s('L_p2tail:')
    for u in range(28, NU):
        unit(s, u, True)
    stamp(s, 8)
    for ct in range(2):
        for rg in range(2):
            for i in range(4):
                s('ds_write_b128 v%d, %s' % (V_NUM + 8 + 8 * rg + 4 * ct + i, vr(acc2(ct, rg) + 4 * i, 4)))
    s('s_branch L_final')
    return head_, fast, lateseg, tail


def phase2a():
    s = Seg('p2a')
    s('L_p2a:')
    if OPT['p1only']:
        s('s_branch L_fin')
        return s
    s.extend(res_load())
    s.extend(read_addr(0))
    s.extend(res_unpack())
    return s


def final():
    s, T = Seg('final'), V_RES + 8
    s('L_final:')
    if not OPT['p1only']:
        D, U = V_ACC, V_RES + 24
        barrier(s)
        stamp(s, 9)
        for w in range(4):
            for h in range(2):
                s('ds_read_b128 %s, v%d' % (vr(D + 8 * w + 4 * h, 4), V_RES + 16 + 2 * w + h), ('fin', w))
        for w in range(4):
            s.wait(lgkm=[('fin', w)])
            for k in range(4):
                s('v_pk_add_f32 %s, %s, %s' % (vr(U + 2 * k, 2), vr(U + 2 * k, 2), vr(D + 8 * w + 2 * k, 2)))
        for k in range(4):
            s('v_cvt_pk_bf16_f32 v%d, v%d, v%d' % (U + k, U + 2 * k, U + 2 * k + 1))
        s('buffer_store_dwordx4 %s, v%d, %s, s%d offen' % (vr(U, 4), T, sr(SOUT, 4), S_OUTO))
    return s


def fin():
    s = Seg('fin')
    s('L_fin:')
    if OPT['diag']:
        stamp(s, 10)
        s('s_waitcnt lgkmcnt(0)')
        s('v_mov_b32 v4, 0')
        for k in range(11):
            s('v_writelane_b32 v4, s%d, %d' % (S_KA + 2 * k, k))
        s('v_writelane_b32 v4, s%d, 11' % S_SPIN)
        s('s_lshl3_add_u32 s%d, s2, s%d' % (S_T0, S_WV))
        s('s_lshl_b32 s%d, s%d, 8' % (S_T0, S_T0))
        s('s_add_u32 s%d, s%d, 0x%x' % (S_T0, S_T0, TS_OFF))
        s('v_lshrrev_b32 v5, 2, v%d' % V_L16)
        s('buffer_store_dword v4, v5, %s, s%d offen' % (sr(SWS, 4), S_T0))
        if OPT['diag'] == 3:
            s('s_not_b32 s%d, s%d' % (S_T0, S_KA))
            s('v_writelane_b32 v4, s%d, 11' % S_T0)
            s('s_cmp_eq_u32 s%d, 4' % S_WV)
            s('s_cselect_b32 s%d, 16, 0x%x' % (S_T0, OOB))
            s('s_cmp_lt_u32 s%d, 4' % S_ROLE)
            s('s_cselect_b32 s%d, s%d, 0x%x' % (S_T0, S_T0, OOB))
            s('s_mov_b64 exec, 0xfff')
            s('buffer_atomic_umax v4, v5, %s, s%d offen sc1' % (sr(SDBG, 4), S_T0))
    if OPT['diag'] == 4:
        s('s_cmp_lg_u32 s2, %d' % OPT['wg'])
        s('s_cbranch_scc1 L_end')
        s('s_cmp_lg_u32 s%d, 4' % S_WV)
        s('s_cbranch_scc1 L_end')
        s('s_sub_u32 s%d, s%d, s%d' % (S_T0, S_KA + 2 * OPT['sb'], S_KA + 2 * OPT['sa']))
        if not OPT['clk']:
            s('s_mul_i32 s%d, s%d, 10' % (S_T0, S_T0))
        s('s_min_u32 s%d, s%d, 200000' % (S_T0, S_T0))
        s('s_memrealtime s[66:67]')
        s('s_waitcnt lgkmcnt(0)')
        s('L_dly:')
        s('s_memrealtime s[68:69]')
        s('s_waitcnt lgkmcnt(0)')
        s('s_sub_u32 s68, s68, s66')
        s('s_cmp_lt_u32 s68, s%d' % S_T0)
        s('s_cbranch_scc1 L_dly')
    s('L_end:')
    s('s_endpgm')
    return s


def main():
    pro = prologue()
    f, fa, fb = lc_role(True)
    q, qa, qb = lc_role(False)
    qo = q_out()
    k, ka, kb = kv_role()
    (p2b, p2f, p2l, p2t), p2a, fl, fi = phase2b(), phase2a(), final(), fin()
    paths = [
        [pro, f, fa, p2a, fl, fi],
        [pro, f, fb, p2b, p2f, p2t, fl, fi],
        [pro, f, fb, p2b, p2l, p2t, fl, fi],
        [pro, q, qa, qo, fi],
        [pro, q, qb, qo, fi],
        [pro, k, ka, p2a, fl, fi],
        [pro, k, kb, p2b, p2f, p2t, fl, fi],
        [pro, k, kb, p2b, p2l, p2t, fl, fi],
    ]
    resolve_waits(paths)
    n = pad_hazards(paths)
    assert pad_hazards(paths) == 0
    body = render([pro, f, fa, fb, k, ka, kb, q, qa, qb, qo, p2l, p2b, p2f, p2t, p2a, fl, fi, slow])
    head = open('cdna_kernels/%s.s.ref' % NAME).read().split('\n')
    head = [l for l in head if l.startswith(';') and '@launch' not in l]
    out = '\n'.join(head) + '''
; @launch grid=(256,1,1) block=(512,1,1) lds=%d
.amdgcn_target "amdgcn-amd-amdhsa--gfx950"
.text
.globl %s_kernel
.p2align 8
.type %s_kernel,@function
%s_kernel:
L_codebeg:
%s
L_codeend:
.section .rodata,"a"
.p2align 6
.amdhsa_kernel %s_kernel
  .amdhsa_next_free_vgpr 256
  .amdhsa_next_free_sgpr 102
  .amdhsa_accum_offset 256
  .amdhsa_group_segment_fixed_size 0
  .amdhsa_kernarg_size 88
  .amdhsa_user_sgpr_count 2
  .amdhsa_user_sgpr_kernarg_segment_ptr 1
  .amdhsa_system_sgpr_workgroup_id_x 1
.end_amdhsa_kernel
''' % (LDS_BYTES, NAME, NAME, NAME, body, NAME)
    if OPT['x_plain'] & 1:
        out = '\n'.join(l.replace(' sc1', '') if 'buffer_store_dwordx4' in l else l for l in out.split('\n'))
    if OPT['x_plain'] & 2:
        out = '\n'.join(l.replace(' sc1', '') if 'buffer_load_dwordx4' in l else l for l in out.split('\n'))
    open(sys.argv[1], 'w').write(out)
    print('wrote %s: %d lines, %d pad states' % (sys.argv[1], out.count('\n'), n))


main()
```

```python
import struct
import sys
from asmlib import Seg, Ins, Wait, GAP, interleave, resolve_waits, pad_hazards, render, vr, sr

NAME = 'parallel_sum__linear_attn_block__dense_activation_gelu__prompt'
OPT = dict(mul=10, fatom=0, tlb=0, kbar=4, kphi=26, kcut=20, qatom=1, batom=1, pkind=1, x_hit=0, gsp=3, eprio=0, aprio=2, aprio2=2, aprio3=0, lb=6, touch=0, kprio=1, plead=4, x_noa=0, x_nopoll=0, x_noflag=0, x_nost=0, x_plain=0, rot2=1, dep=6, noatom=0, diag=0, p1only=0, sa=0, sb=10, clk=0, wg=0)
for a in sys.argv[2:]:
    k, v = a.split('=')
    OPT[k] = v if k == 'st' else int(v)
STAMPS = OPT.get('st', '0,1,2,3,4,5,6,7,8,9,10').split(',')


def f32(x):
    return '0x%08x' % struct.unpack('<I', struct.pack('<f', x))[0]


XS, WQS, W1S = 896, 2688, 3584
ACT_G = 147456
KV_OFF = 0x900000
FKV_OFF = 0x910000
FL_OFF = 0x911000
FL_G = 896
TS_OFF = 0xA00000
WS_BYTES = 0x10000000
OOB = 0x40000000
R0, R1, R2, MISC = 0, 57344, 114688, 155648
M_ST, M_SY, M_CS, M_R = MISC, MISC + 2048, MISC + 4096, MISC + 7168
LDS_BYTES = 163840
LOG2E = 1.4426950408889634
GC1 = -2.0 * 0.7978845608028654 * LOG2E
GC3 = GC1 * 0.044715
SPIN_LIMIT = 1 << 16

S_WV, S_RW, S_G, S_RB, S_ROLE = 3, 4, 5, 6, 7
SX, SW, SWS, SW2, SWO, SOUT, SB1, SB2, SDBG = 8, 12, 16, 20, 24, 28, 32, 36, 40
S_KA = 44
S_KX, S_KW = 66, 73
S_I2, S_HALF, S_T0, S_T1, S_ONES, S_EPS = 80, 81, 82, 83, 84, 85
S_M0W, S_M0X, S_T3, S_RO, S_H, S_FL = 86, 87, 88, 89, 90, 91
S_HI = 92
S_SPIN, S_T2, S_P, S_LAST, S_PEND, S_L2E = 94, 95, 96, 97, 98, 99
S_PAD = 100
S_B2R, S_QR0, S_RO3, S_QR2, S_A, S_WOR, S_OUTO, S_PL = 66, 67, 68, 69, 70, 71, 72, 73
S_AO = 74

V_L16, V_B2, V_X0, V_X1, V_W, V_CSW, V_CSR = 1, 2, 3, 4, 5, 6, 7
V_SEL, V_CS, V_WA, V_XA, V_EXW, V_EXR, V_ST = 8, 12, 20, 28, 32, 36, 38
V_B1 = 16
V_WB, V_RA = 42, 43
V_POLL, V_PA, V_FLO, V_ONE = 44, 45, 46, 47
V_T = 48
V_ACC, V_X, V_WF = 64, 128, 240
V_B2B, V_BA, V_L16B, V_PL = 3, 4, 12, 13
V_NUM, V_BF, V_AB, V_RES = 16, 48, 128, 192
V_PQ = 80
HND = 49152

slow = Seg('slow')
nspin = [0]


def stamp(s, k):
    if OPT['diag'] and str(k) in STAMPS:
        k = STAMPS.index(str(k))
        s('%s %s' % ('s_memtime' if OPT['diag'] == 2 or OPT['clk'] else 's_memrealtime', sr(S_KA + 2 * k, 2)))


class Rebase:
    def __init__(self, regs, base, span):
        self.regs, self.base, self.span = regs, base, span

    def off(self, s, addr):
        if not (self.base <= addr and addr - self.base + self.span <= 65535):
            for r in self.regs:
                s('v_add_u32 v%d, 0x%x, v%d' % (r, (addr - self.base) & 0xffffffff, r))
            self.base = addr
        return addr - self.base


def spin_check(s, vpoll, vexp, vaddr, srd, soff, mask):
    if OPT['x_nopoll'] and srd != SDBG:
        return
    k = nspin[0]
    nspin[0] += 1
    s('v_cmp_ge_u32 vcc, v%d, v%d' % (vpoll, vexp))
    s('s_andn2_b32 s%d, 0x%x, vcc_lo' % (S_T2, mask))
    s('s_cbranch_scc1 L_slow%d' % k)
    s('L_ret%d:' % k)
    slow('L_slow%d:' % k)
    slow('s_add_u32 s%d, s%d, 1' % (S_SPIN, S_SPIN))
    slow('s_cmp_gt_u32 s%d, 0x%x' % (S_SPIN, SPIN_LIMIT))
    slow('s_cbranch_scc1 L_ret%d' % k)
    slow('buffer_load_dword v%d, v%d, %s, %s offen sc1' % (vpoll, vaddr, sr(srd, 4), soff))
    slow('s_waitcnt vmcnt(0)')
    slow('v_cmp_ge_u32 vcc, v%d, v%d' % (vpoll, vexp))
    slow('s_nop 1')
    slow('s_andn2_b32 s%d, 0x%x, vcc_lo' % (S_T2, mask))
    slow('s_cbranch_scc1 L_slow%d' % k)
    slow('s_branch L_ret%d' % k)


def poll_base(s):
    s('s_lshr_b32 s%d, s%d, 1' % (S_PL, S_I2))
    s('s_lshl2_add_u32 s%d, s%d, s%d' % (S_PL, S_PL, S_RW))
    s('s_mul_i32 s%d, s%d, %d' % (S_PL, S_PL, FL_G))
    s('s_add_u32 s%d, s%d, 0x%x' % (S_PL, S_PL, FL_OFF))
    s('v_cmp_gt_u32 vcc, 32, v%d' % V_L16)
    s('v_lshlrev_b32 v%d, 3, v%d' % (V_PL, V_L16))
    s('v_cndmask_b32 v%d, v%d, v%d, vcc' % (V_PL, V_FLO, V_PL))


def poll_async(s, k):
    s('buffer_load_dword v%d, v%d, %s, s%d offen offset:%d sc1' % (V_POLL, V_PL, sr(SWS, 4), S_PL, k * 256), ('poll', k))


def stage_check(s, k, miss=None, sync=False):
    if OPT['x_nopoll']:
        return
    j = nspin[0]
    nspin[0] += 1
    mask = 3 if k < 3 else 1
    if sync:
        s('s_branch L_slow%d' % j)
    else:
        s.wait(vm=[('poll', k)])
        s('v_cmp_ne_u32 vcc, 0, v%d' % V_POLL)
        s('s_andn2_b32 s%d, %d, vcc_lo' % (S_T2, mask))
        if miss:
            s('s_cbranch_scc1 %s' % miss)
            return
        s('s_cbranch_scc1 L_slow%d' % j)
    s('L_ret%d:' % j)
    slow('L_slow%d:' % j)
    slow('s_add_u32 s%d, s%d, 1' % (S_SPIN, S_SPIN))
    slow('s_cmp_gt_u32 s%d, 0x%x' % (S_SPIN, SPIN_LIMIT))
    slow('s_cbranch_scc1 L_ret%d' % j)
    slow('buffer_load_dword v%d, v%d, %s, s%d offen offset:%d sc1' % (V_POLL, V_PL, sr(SWS, 4), S_PL, k * 256))
    slow('s_waitcnt vmcnt(0)')
    slow('v_cmp_ne_u32 vcc, 0, v%d' % V_POLL)
    slow('s_nop 1')
    slow('s_andn2_b32 s%d, %d, vcc_lo' % (S_T2, mask))
    slow('s_cbranch_scc1 L_slow%d' % j)
    slow('s_branch L_ret%d' % j)


def poll_check(s, k, n, sync=False, atomic=False):
    j = nspin[0]
    nspin[0] += 1
    if OPT['x_nopoll']:
        return
    if sync:
        s('s_branch L_slow%d' % j)
    else:
        s.wait(vm=[('poll', k)])
        s('v_readfirstlane_b32 s%d, v%d' % (S_T2, V_POLL))
        s('s_cmp_lt_u32 s%d, %d' % (S_T2, n))
        s('s_cbranch_scc1 L_slow%d' % j)
    s('L_ret%d:' % j)
    slow('L_slow%d:' % j)
    slow('s_add_u32 s%d, s%d, 1' % (S_SPIN, S_SPIN))
    slow('s_cmp_gt_u32 s%d, 0x%x' % (S_SPIN, SPIN_LIMIT))
    slow('s_cbranch_scc1 L_ret%d' % j)
    if atomic:
        slow('v_mov_b32 v%d, 0' % V_POLL)
        slow('buffer_atomic_add v%d, v%d, %s, s%d offen offset:%d sc0 sc1' % (V_POLL, V_FLO, sr(SWS, 4), S_PL, k * 128))
        slow('s_waitcnt vmcnt(0)')
        slow('v_readfirstlane_b32 s%d, v%d' % (S_T2, V_POLL))
        slow('s_nop 0')
    else:
        slow('s_add_u32 s%d, s%d, %d' % (S_T2, S_PL, k * 128))
        slow('s_buffer_load_dword s%d, %s, s%d glc' % (S_T2, sr(SWS, 4), S_T2))
        slow('s_waitcnt lgkmcnt(0)')
    slow('s_cmp_lt_u32 s%d, %d' % (S_T2, n))
    slow('s_cbranch_scc1 L_slow%d' % j)
    slow('s_branch L_ret%d' % j)


def srd(s, d, ka, nbytes):
    s('s_mov_b32 s%d, s%d' % (d, ka))
    s('s_and_b32 s%d, s%d, 0xffff' % (d + 1, ka + 1))
    s('s_mov_b32 s%d, 0x%x' % (d + 2, nbytes))
    s('s_mov_b32 s%d, 0x20000' % (d + 3))


def prologue():
    s = Seg('pro')
    s('s_cmp_ge_u32 s2, 256')
    s('s_cbranch_scc1 L_end')
    if OPT['diag'] >= 3:
        s('s_memtime s[100:101]' if OPT['clk'] else 's_memrealtime s[100:101]')
        s('s_waitcnt lgkmcnt(0)')
        s('v_mov_b32 v255, s100')
    s('s_load_dwordx16 s[44:59], s[0:1], 0')
    s('s_load_dwordx4 s[60:63], s[0:1], 64')
    s('s_load_dwordx2 s[64:65], s[0:1], 80')
    s('v_readfirstlane_b32 s%d, v0' % S_WV)
    s('s_getpc_b64 s[82:83]')
    s('s_lshr_b32 s%d, s%d, 6' % (S_WV, S_WV))
    s('s_lshr_b32 s%d, s2, 3' % S_T2)
    s('s_lshl_b32 s%d, s%d, 11' % (S_P, S_T2))
    s('v_lshl_add_u32 v%d, v0, 2, s%d' % (V_T, S_P))
    s('v_min_u32 v%d, L_codeend-L_codebeg-64, v%d' % (V_T, V_T))
    s('global_load_dword v%d, v%d, s[82:83]' % (V_T + 15, V_T))
    s('s_and_b32 s%d, s%d, 3' % (S_RW, S_WV))
    s('s_lshr_b32 s%d, s%d, 2' % (S_G, S_WV))
    s('s_and_b32 s%d, s%d, 7' % (S_ROLE, S_T2))
    s('s_lshr_b32 s%d, s%d, 3' % (S_T2, S_T2))
    s('s_and_b32 s%d, s2, 1' % S_HALF)
    s('s_and_b32 s%d, s2, 7' % S_P)
    s('s_lshl2_add_u32 s%d, s%d, s%d' % (S_I2, S_P, S_T2))
    s('s_lshr_b32 s%d, s%d, 1' % (S_P, S_P))
    s('s_lshl2_add_u32 s%d, s%d, s%d' % (S_RB, S_P, S_T2))
    s('s_lshl1_add_u32 s%d, s%d, s%d' % (S_T2, S_T2, S_ROLE))
    s('s_add_u32 s%d, s%d, s%d' % (S_T2, S_T2, S_P))
    s('s_mul_i32 s%d, s%d, 3' % (S_P, S_HALF))
    s('s_add_u32 s%d, s%d, s%d' % (S_T2, S_T2, S_P))
    for _ in range(2):
        s('s_cmp_ge_u32 s%d, 7' % S_T2)
        s('s_cselect_b32 s%d, 7, 0' % S_P)
        s('s_sub_u32 s%d, s%d, s%d' % (S_T2, S_T2, S_P))
    s('s_cmp_lt_u32 s%d, 4' % S_ROLE)
    s('s_mov_b32 s%d, %d' % (S_LAST, WQS))
    s('s_cselect_b32 s%d, %d, s%d' % (S_LAST, W1S, S_LAST))
    s('s_lshl_b32 s%d, s%d, 6' % (S_PEND, S_LAST))
    s('s_mul_i32 s%d, s%d, %d' % (S_P, S_RB, 128 * XS))
    for c in range(7):
        s('s_lshl_b32 s%d, s%d, 7' % (S_KX + c, S_T2))
        s('s_add_u32 s%d, s%d, s%d' % (S_KX + c, S_KX + c, S_P))
        s('s_mul_i32 s%d, s%d, s%d' % (S_KW + c, S_T2, S_PEND))
        if c < 6:
            s('s_add_u32 s%d, s%d, 1' % (S_T2, S_T2))
            s('s_cmp_eq_u32 s%d, 7' % S_T2)
            s('s_cselect_b32 s%d, 0, s%d' % (S_T2, S_T2))
    s('s_lshl_b32 s%d, s%d, 11' % (S_M0W, S_RW))
    s('s_lshl_b32 s%d, s%d, 11' % (S_M0X, S_WV))
    T = V_T
    s('v_and_b32 v%d, 63, v0' % T)
    s('v_lshlrev_b32 v%d, 4, v%d' % (V_L16, T))
    s('v_lshrrev_b32 v%d, 3, v%d' % (T + 1, T))
    s('v_and_b32 v%d, 7, v%d' % (T + 2, T))
    s('v_lshrrev_b32 v%d, 4, v%d' % (T + 3, T))
    s('s_lshl_b32 s%d, s%d, 4' % (S_T2, S_WV))
    s('v_add_u32 v%d, s%d, v%d' % (T + 5, S_T2, T + 1))
    s('v_mul_u32_u24 v%d, %d, v%d' % (T + 5, XS, T + 5))
    s('v_xor_b32 v%d, v%d, v%d' % (T + 6, T + 2, T + 3))
    s('v_lshl_add_u32 v%d, v%d, 4, v%d' % (V_X0, T + 6, T + 5))
    s('v_xor_b32 v%d, 64, v%d' % (V_X1, V_X0))
    s('v_add_u32 v%d, %d, v%d' % (V_X1, 8 * XS - 1024, V_X1))
    s('v_and_b32 v%d, 1, v%d' % (T + 7, T + 3))
    s('v_lshlrev_b32 v%d, 2, v%d' % (T + 4, T + 7))
    s('v_xor_b32 v%d, v%d, v%d' % (T + 4, T + 2, T + 4))
    s('v_lshlrev_b32 v%d, 4, v%d' % (T + 4, T + 4))
    s('v_mul_u32_u24 v%d, %d, v%d' % (V_B2, XS, T + 1))
    s('v_add_u32 v%d, v%d, v%d' % (V_B2, V_B2, T + 4))
    s('s_waitcnt lgkmcnt(0)')
    srd(s, SX, 44, 2048 * XS)
    s('s_cmp_lt_u32 s%d, 4' % S_ROLE)
    s('s_cselect_b32 s%d, s52, s46' % SW)
    s('s_cselect_b32 s%d, s53, s47' % (SW + 1))
    s('s_mul_i32 s%d, s%d, 448' % (SW + 2, S_LAST))
    s('s_and_b32 s%d, s%d, 0xffff' % (SW + 1, SW + 1))
    s('s_mov_b32 s%d, 0x20000' % (SW + 3))
    srd(s, SWS, 64, WS_BYTES)
    srd(s, SB1, 54, 1792 * 2)
    s('s_cmp_ge_u32 s%d, 7' % S_ROLE)
    s('s_cbranch_scc1 L_q')
    s('s_cmp_ge_u32 s%d, 4' % S_ROLE)
    s('s_cbranch_scc1 L_kv')
    return s


def late_setup(s, kv):
    T = V_T
    srd(s, SW2, 56, 1792 * XS)
    srd(s, SWO, 48, 448 * XS)
    srd(s, SOUT, 60, 2048 * XS)
    srd(s, SB2, 58, 448 * 2)
    srd(s, SDBG, 62, 256)
    stamp(s, 0)
    if OPT['diag'] >= 3:
        s('s_waitcnt lgkmcnt(0)')
        s('v_readfirstlane_b32 s%d, v255' % S_KA)
    s('s_mov_b32 s%d, 0x3f803f80' % S_ONES)
    s('s_mov_b32 s%d, %s' % (S_EPS, f32(1e-6)))
    s('s_mov_b32 s%d, %s' % (S_L2E, f32(LOG2E)))
    s('s_mov_b32 s%d, 0' % S_HI)
    s('s_mov_b32 s%d, -1' % (S_HI + 1))
    s('s_mov_b32 s%d, 0xf0000000' % S_PAD)
    s('s_mov_b32 s%d, 0xf0000000' % (S_PAD + 1))
    s('s_mov_b32 s%d, 0' % S_SPIN)
    s('v_and_b32 v%d, 31, v%d' % (T + 8, T))
    s('v_lshrrev_b32 v%d, 5, v%d' % (T + 9, T))
    s('v_bfe_u32 v%d, v%d, 2, 2' % (T + 10, T))
    s('v_and_b32 v%d, 3, v%d' % (T + 11, T))
    s('s_mov_b32 s%d, s%d' % (S_T0, S_RW))
    s('s_lshl_b32 s%d, s%d, 1' % (S_T1, S_T0))
    s('v_add_u32 v%d, s%d, v%d' % (T + 12, S_T1, T + 9))
    s('v_bfe_u32 v%d, v%d, 1, 3' % (T + 13, T))
    s('v_xor_b32 v%d, v%d, v%d' % (T + 12, T + 12, T + 13))
    s('s_lshl_b32 s%d, s%d, 5' % (S_T1, S_RW))
    s('v_add_u32 v%d, s%d, v%d' % (T + 13, S_T1, T + 8))
    s('v_lshlrev_b32 v%d, 7, v%d' % (V_XA, T + 13))
    s('v_lshl_add_u32 v%d, v%d, 4, v%d' % (V_XA, T + 12, V_XA))
    for j in range(1, 4):
        s('v_xor_b32 v%d, %d, v%d' % (V_XA + j, j << 5, V_XA))
    s('s_lshl_b32 s%d, s%d, 4' % (S_T1, S_T0))
    s('v_lshl_add_u32 v%d, v%d, 3, v%d' % (T + 12, T + 9, T + 10))
    s('v_add_u32 v%d, s%d, v%d' % (T + 12, S_T1, T + 12))
    s('v_lshl_add_u32 v%d, v%d, 2, v%d' % (T + 14, T + 7, T + 11))
    s('v_and_b32 v%d, 1, v%d' % (T + 5, T + 10))
    s('v_mov_b32 v%d, s%d' % (T + 6, S_ONES))
    s('v_cmp_eq_u32 vcc, v%d, v%d' % (T + 5, T + 7))
    s('v_cndmask_b32 v%d, 0, v%d, vcc' % (V_SEL, T + 6))
    for j in range(1, 4):
        s('v_mov_b32 v%d, v%d' % (V_SEL + j, V_SEL))
    s('s_lshl_b32 s%d, s%d, %d' % (S_T1, S_G, 10 if kv else 9))
    s('s_add_u32 s%d, s%d, %d' % (S_T1, S_T1, M_CS))
    s('v_lshl_add_u32 v%d, v%d, 4, s%d' % (V_CSR, T + 8, S_T1))
    s('s_lshl_b32 s%d, s%d, 2' % (S_T1, S_RW))
    s('v_add_u32 v%d, s%d, v%d' % (V_CSW, S_T1, V_CSR))
    for j in range(4):
        s('v_mov_b32 v%d, 0' % (V_ST + j))
    s('v_mov_b32 v%d, 0' % (V_EXW + 1))
    s('v_mov_b32 v%d, 0' % (V_EXW + 3))
    s('v_mov_b32 v%d, 1' % V_ONE)
    s('v_mov_b32 v%d, 0x%x' % (V_FLO, OOB))
    s('v_cmp_eq_u32 vcc, 0, v%d' % T)
    s('v_cndmask_b32 v%d, v%d, 0, vcc' % (V_FLO, V_FLO))
    s('s_lshl2_add_u32 s%d, s%d, %d' % (S_T1, S_WV, M_SY))
    s('v_mov_b32 v%d, s%d' % (V_PA, S_T1))
    s('ds_write_b32 v%d, v%d' % (V_PA, V_ST))
    if kv:
        for k in (32, 128, 160, 192, 224):
            s('ds_write_b32 v%d, v%d offset:%d' % (V_PA, V_ST, k))
    s('v_lshlrev_b32 v%d, 4, v%d' % (V_EXR, T + 13))
    s('v_add_u32 v%d, %d, v%d' % (V_EXR, M_ST, V_EXR))
    s('v_lshl_add_u32 v%d, v%d, 3, v%d' % (V_EXR + 1, T + 9, V_EXR))
    s('s_lshl1_add_u32 s%d, s%d, s%d' % (S_T1, S_I2, S_ROLE))
    s('s_and_b32 s%d, s%d, 3' % (S_RO, S_T1))
    s('s_and_b32 s%d, s%d, 4' % (S_T1, S_T1))
    s('s_lshl2_add_u32 s%d, s%d, s%d' % (S_RO, S_T1, S_RO))
    if not OPT['rot2']:
        s('s_mov_b32 s%d, 0' % S_RO)
    s('s_lshl2_add_u32 s%d, s%d, s%d' % (S_H, S_RB, S_RW))
    s('s_mul_i32 s%d, s%d, %d' % (S_H, S_H, ACT_G))
    s('s_mul_i32 s%d, s%d, %d' % (S_FL, S_RB, 4 * FL_G))
    s('s_add_u32 s%d, s%d, 0x%x' % (S_FL, S_FL, FL_OFF))


def tlb_warm(s):
    if not OPT['tlb']:
        return
    T = V_T
    s('s_cmp_eq_u32 s%d, 0' % S_WV)
    s('s_cselect_b32 s%d, 128, 0x%x' % (S_T1, OOB))
    for r in (SDBG, SW2, SWO, SB2, SOUT):
        s('buffer_load_dword v%d, v%d, %s, s%d offen' % (T + 15, V_FLO, sr(r, 4), S_T1))
    s('v_lshlrev_b32 v%d, 17, v%d' % (T + 5, V_L16))
    s('v_min_u32 v%d, 0x%x, v%d' % (T + 5, 0x9f0000, T + 5))
    s('buffer_load_dword v%d, v%d, %s, s%d offen' % (T + 15, T + 5, sr(SWS, 4), S_T1))


def dma_x(s, c, addr, tag):
    s('s_add_u32 m0, s%d, %d' % (S_M0X, addr))
    s('buffer_load_dwordx4 v%d, %s, s%d offen lds' % (V_X0, sr(SX, 4), S_KX + c), tag)
    s('buffer_load_dwordx4 v%d, %s, s%d offen offset:1024 lds' % (V_X1, sr(SX, 4), S_KX + c), tag)


def dma_w(s, m0base, c, addr, tag):
    s('s_add_u32 m0, s%d, %d' % (m0base, addr))
    s('buffer_load_dwordx4 v%d, %s, s%d offen lds' % (V_W, sr(SW, 4), S_KW + c), tag)
    s('buffer_load_dwordx4 v%d, %s, s%d offen offset:1024 lds' % (V_WB, sr(SW, 4), S_KW + c), tag)


def groups(z):
    out, cur = [], []
    for i in z:
        cur.append(i)
        if i.kind == 'vmem':
            out.append(cur)
            cur = []
    if cur:
        out.append(cur)
    return out


def mix(main, grp, lo=0.0, hi=1.0):
    main = [i for i in main if i is not GAP]
    out, k, n = [], 0, len(main)
    for idx, i in enumerate(main):
        while k < len(grp) and idx >= n * (lo + (hi - lo) * k / len(grp)):
            out.extend(grp[k])
            k += 1
        out.append(i)
    for g in grp[k:]:
        out.extend(g)
    return out


def barrier(z, vm=None, name=None):
    if name:
        stamp(z, name + 'a')
    z.wait(vm=vm, lgkm='all')
    if name:
        stamp(z, name + 'b')
    z('s_barrier')


BLK = [0, 4, 1, 5, 2, 6, 3]


def unit_ks(u):
    return 4 * BLK[u >> 2] + (u & 3)


def unit_loc(u):
    u %= 11
    return (S_QR2, 1, u * 2048) if u < 5 else (S_QR0, 0, (u - 5) * 2048)


def p2_setup(s):
    s('s_lshl_b32 s%d, s%d, 7' % (S_T0, S_ROLE))
    s('s_mul_i32 s%d, s%d, %d' % (S_B2R, S_RW, 448 * XS))
    s('s_add_u32 s%d, s%d, s%d' % (S_B2R, S_B2R, S_T0))
    s('s_mul_i32 s%d, s%d, %d' % (S_WOR, S_RW, 112 * XS))
    s('s_add_u32 s%d, s%d, s%d' % (S_WOR, S_WOR, S_T0))
    s('s_mul_i32 s%d, s%d, %d' % (S_OUTO, S_I2, 64 * XS))
    s('s_add_u32 s%d, s%d, s%d' % (S_OUTO, S_OUTO, S_T0))
    s('s_mul_i32 s%d, s%d, 12288' % (S_QR0, S_RW))
    s('s_lshr_b32 s%d, s%d, 2' % (S_RO3, S_RO))
    s('s_or_b32 s%d, s%d, s%d' % (S_RO3, S_RO3, S_RO))
    s('s_and_b32 s%d, s%d, 7' % (S_RO3, S_RO3))
    s('s_mul_i32 s%d, s%d, 10240' % (S_QR2, S_RW))
    s('s_add_u32 s%d, s%d, %d' % (S_QR2, S_QR2, R2))
    s('s_mul_i32 s%d, s%d, %d' % (S_A, S_I2, 2 * ACT_G))
    s('v_add_u32 v%d, %d, v%d' % (V_B2B, 8 * XS - 1024, V_B2))


def touch(s, t):
    if not OPT['touch']:
        return
    s('s_and_b32 s%d, s2, 0xf8' % S_T2)
    s('s_add_u32 s%d, s%d, s%d' % (S_T2, S_T2, S_WV))
    s('v_min_u32 v%d, %d, v%d' % (t, 48 * 16, V_L16))
    s('s_mul_i32 s%d, s%d, %d' % (S_T3, S_T2, 49 * 128))
    s('v_lshlrev_b32 v%d, 3, v%d' % (t, t))
    s('buffer_load_dword v%d, v%d, %s, s%d offen' % (t + 1, t, sr(SW2, 4), S_T3))
    s('v_min_u32 v%d, %d, v%d' % (t, 12 * 128, t))
    s('s_mul_i32 s%d, s%d, %d' % (S_T3, S_T2, 13 * 128))
    s('buffer_load_dword v%d, v%d, %s, s%d offen' % (t + 1, t, sr(SWO, 4), S_T3))


def ks_dyn(s, dst, u):
    if u < 24:
        s('s_xor_b32 s%d, s%d, %d' % (dst, S_RO, unit_ks(u)))
    else:
        s('s_and_b32 s%d, s%d, 3' % (dst, S_RO))
        s('s_xor_b32 s%d, s%d, %d' % (dst, dst, unit_ks(u)))


def dma_b2(s, u):
    base, _, off = unit_loc(u)
    if u < 28:
        ks_dyn(s, S_T3, u)
        if OPT['x_hit'] & 2:
            s('s_and_b32 s%d, s%d, 7' % (S_T3, S_T3))
        s('s_add_u32 m0, s%d, %d' % (base, off))
        s('s_mul_i32 s%d, s%d, %d' % (S_T3, S_T3, 16 * XS))
        s('s_add_u32 s%d, s%d, s%d' % (S_T3, S_T3, S_B2R))
    else:
        s('s_xor_b32 s%d, s%d, %d' % (S_T3, S_RO3, u - 28))
        s('s_and_b32 s%d, s%d, 1' % (S_T1, S_T3))
        s('s_mul_i32 s%d, s%d, 7' % (S_T3, S_T3))
        s('s_add_u32 s%d, s%d, s%d' % (S_T3, S_T3, S_T1))
        s('s_add_u32 m0, s%d, %d' % (base, off))
        s('s_mul_i32 s%d, s%d, %d' % (S_T3, S_T3, 2 * XS))
        s('s_add_u32 s%d, s%d, s%d' % (S_T3, S_T3, S_WOR))
    w = SW2 if u < 28 else SWO
    s('buffer_load_dwordx4 v%d, %s, s%d offen lds' % (V_B2, sr(w, 4), S_T3), ('b', u))
    s('buffer_load_dwordx4 v%d, %s, s%d offen offset:1024 lds' % (V_B2B, sr(w, 4), S_T3), ('b', u))


def sync_arrive(s, k):
    s('ds_write_b32 v%d, v%d offset:%d' % (V_PA, V_ONE, k * 32))


def sync_wait(s, k, nw, T):
    j = nspin[0]
    nspin[0] += 1
    s('v_mov_b32 v%d, %d' % (T + 8, M_SY))
    s('L_sy%d:' % j)
    for h in range(nw // 4):
        s('ds_read_b128 %s, v%d offset:%d' % (vr(T + 4 * h, 4), T + 8, k * 32 + h * 16))
    s('s_add_u32 s%d, s%d, 1' % (S_SPIN, S_SPIN))
    s('s_cmp_gt_u32 s%d, 0x%x' % (S_SPIN, SPIN_LIMIT))
    s('s_cbranch_scc1 L_sz%d' % j)
    s.wait(lgkm='all')
    for h in range(1, nw - 1, 2):
        s('v_and_b32 v%d, v%d, v%d' % (T + h, T + h, T + h + 1))
    for h in range(1, nw, 2):
        s('v_and_b32 v%d, v%d, v%d' % (T, T, T + h))
    s('v_readfirstlane_b32 s%d, v%d' % (S_T2, T))
    s('s_cmp_lg_u32 s%d, 1' % S_T2)
    s('s_cbranch_scc1 L_sy%d' % j)
    s('L_sz%d:' % j)
    s.wait(lgkm='all')


def flag(s, off):
    if OPT['fatom']:
        s('buffer_atomic_add v%d, v%d, %s, s%d offen offset:%d sc1' % (V_ONE, V_FLO, sr(SWS, 4), S_FL, off))
    else:
        s('buffer_store_dword v%d, v%d, %s, s%d offen offset:%d sc1' % (V_ONE, V_FLO, sr(SWS, 4), S_FL, off))


def f0_load(s):
    s('buffer_load_dword v%d, v%d, %s, 0 offen sc1' % (V_POLL, V_FLO, sr(SDBG, 4)), 'f0')


def f0_check(s):
    s('v_mov_b32 v%d, 32' % (V_T + 15))
    stamp(s, 'f0a')
    s.wait(vm='f0')
    stamp(s, 'f0b')
    spin_check(s, V_POLL, V_T + 15, V_FLO, SDBG, '0', 1)


def poll_early(s):
    poll_base(s)
    poll_async(s, 0)


def xreg(c, j):
    return V_X + 16 * c + 4 * j


def dots(s, c):
    for j in range(4):
        for r in range(4):
            x = xreg(c, j) + r
            s('v_dot2c_f32_bf16 v%d, s%d, v%d' % (V_ST + (r & 1), S_ONES, x))
            s('v_dot2c_f32_bf16 v%d, v%d, v%d' % (V_ST + 2 + (r & 1), x, x))


def stats_write(s):
    s('v_add_f32 v%d, v%d, v%d' % (V_ST, V_ST, V_ST + 1))
    s('v_add_f32 v%d, v%d, v%d' % (V_ST + 1, V_ST + 2, V_ST + 3))
    s('ds_write_b64 v%d, %s' % (V_EXR + 1, vr(V_ST, 2)))


def stats_final(kind):
    s, T = Seg(), V_T
    s('ds_read_b128 %s, v%d' % (vr(T, 4), V_EXR), 'st')
    s.append(GAP)
    s.wait(lgkm='st')
    s('v_add_f32 v%d, v%d, v%d' % (T, T, T + 2))
    s('v_add_f32 v%d, v%d, v%d' % (T + 1, T + 1, T + 3))
    s('v_mul_f32 v%d, %s, v%d' % (T, f32(1.0 / 448), T))
    s('v_mul_f32 v%d, %s, v%d' % (T + 1, f32(1.0 / 448), T + 1))
    s('v_fma_f32 v%d, -v%d, v%d, v%d' % (T + 1, T, T, T + 1))
    s('v_max_f32 v%d, 0, v%d' % (T + 1, T + 1))
    s('v_cvt_pk_bf16_f32 v%d, v%d, v%d' % (T + 1, T + 1, T + 1))
    s('v_lshlrev_b32 v%d, 16, v%d' % (T + 1, T + 1))
    s('v_add_f32 v%d, %s, v%d' % (T + 1, f32(1e-5), T + 1))
    s('v_cvt_pk_bf16_f32 v%d, v%d, v%d' % (T + 1, T + 1, T + 1))
    s('v_lshlrev_b32 v%d, 16, v%d' % (T + 1, T + 1))
    s('v_sqrt_f32 v%d, v%d' % (T + 1, T + 1))
    s('v_cvt_pk_bf16_f32 v%d, -v%d, -v%d' % (T, T, T))
    s('v_cvt_pk_bf16_f32 v%d, v%d, 0' % (T + 1, T + 1))
    s('v_cndmask_b32 v%d, v%d, 0, %s' % (V_EXR, T, sr(S_HI, 2)))
    s('v_lshlrev_b32 v%d, 16, v%d' % (V_ST + 2, T + 1))
    s('v_rcp_f32 v%d, v%d' % (V_ST + 3, V_ST + 2))
    s('v_cndmask_b32 v%d, v%d, 0, %s' % (V_EXR + 1, T + 1, sr(S_HI, 2)))
    if kind == 'gelu':
        s('v_mul_f32 v%d, %s, v%d' % (V_ST, f32(GC1), V_ST + 3))
        s('v_mul_f32 v%d, v%d, v%d' % (T, V_ST + 3, V_ST + 3))
        s('v_mul_f32 v%d, %s, v%d' % (V_ST + 1, f32(GC3), V_ST + 3))
        s('v_mul_f32 v%d, v%d, v%d' % (V_ST + 1, T, V_ST + 1))
    elif kind == 'phi':
        s('v_mul_f32 v%d, s%d, v%d' % (V_ST, S_L2E, V_ST + 3))
    else:
        s('s_lshl_b32 s%d, s%d, 7' % (S_T0, S_WV))
        s('s_add_u32 s%d, s%d, %d' % (S_T0, S_T0, M_R))
        s('v_bfe_u32 v%d, v%d, 2, 7' % (T, V_L16))
        s('v_add_u32 v%d, s%d, v%d' % (T, S_T0, T))
        s('ds_write_b32 v%d, v%d' % (T, V_ST + 3))
        s('v_lshrrev_b32 v%d, 9, v%d' % (V_RA, V_L16))
        s('v_lshl_add_u32 v%d, v%d, 4, s%d' % (V_RA, V_RA, S_T0))
        s('v_mov_b32 v%d, %d' % (T, M_SY + 128))
        s('v_cndmask_b32 v%d, v%d, v%d, %s' % (V_X1, V_RA, T, sr(S_PAD, 2)))
    return s


def ext_parts(acc, off, exw, swap, bias=None, T=V_T + 8):
    r, b, m = Seg(), Seg(), Seg()
    tag = ('cs', id(r))
    r('ds_read_b128 %s, v%d offset:%d' % (vr(T, 4), V_CSR, off), tag)
    b.wait(lgkm=[tag])
    b('v_add_f32 v%d, v%d, v%d' % (T, T, T + 1))
    b('v_add_f32 v%d, v%d, v%d' % (T + 2, T + 2, T + 3))
    b('v_add_f32 v%d, v%d, v%d' % (T, T, T + 2))
    b('v_cvt_pk_bf16_f32 v%d, v%d, v%d' % (T + 1, T, T))
    b('v_lshlrev_b32 v%d, 16, v%d' % (T + 1, T + 1))
    b('v_sub_f32 v%d, v%d, v%d' % (T + 1, T, T + 1))
    b('v_cvt_pk_bf16_f32 v%d, v%d, v%d' % (exw, T, T + 1))
    if bias is not None:
        r('v_mov_b32 v%d, v%d' % (exw + 1, bias))
    x, y = (V_EXR, exw) if swap else (exw, V_EXR)
    m('v_mfma_f32_32x32x8_bf16 %s, %s, %s, %s' % (vr(acc, 16), vr(x, 2), vr(y, 2), vr(acc, 16)))
    KEEP.append(r)
    return r, b, m


KEEP = []


def head(parts, stats=None):
    st = [i for i in stats if i is not GAP] if stats is not None else []
    out = st[:1]
    for p in parts:
        out += p[0]
    out += st[1:]
    for p in parts:
        out += p[1]
    for p in parts:
        out += p[2]
    return out


def epi_rowlane(kind, acc, tag, handoff=False, keep=None):
    s, T = Seg(), V_T
    for grp in range(4):
        a = [acc + 4 * grp + e for e in range(4)]
        t = [T + e for e in range(4)]
        if kind == 'gelu':
            for e in range(4):
                s('v_mul_f32 v%d, v%d, v%d' % (t[e], a[e], a[e]))
            for e in range(4):
                s('v_fma_f32 v%d, v%d, v%d, v%d' % (t[e], t[e], V_ST + 1, V_ST))
            for e in range(4):
                s('v_mul_f32 v%d, v%d, v%d' % (t[e], a[e], t[e]))
            for e in range(4):
                s('v_exp_f32 v%d, v%d' % (t[e], t[e]))
            for e in range(4):
                s('v_fma_f32 v%d, v%d, v%d, v%d' % (t[e], t[e], V_ST + 2, V_ST + 2))
            for e in range(4):
                s('v_rcp_f32 v%d, v%d' % (t[e], t[e]))
            for e in range(4):
                s('v_mul_f32 v%d, v%d, v%d' % (a[e], a[e], t[e]))
        else:
            for e in range(4):
                s('v_mul_f32 v%d, v%d, v%d' % (t[e], a[e], V_ST))
            for e in range(4):
                s('v_exp_f32_e64 v%d, v%d clamp' % (t[e], t[e]))
            for e in range(4):
                s('v_fma_f32 v%d, v%d, v%d, s%d' % (a[e], a[e], V_ST + 3, S_EPS))
            for e in range(4):
                s('v_max_f32 v%d, s%d, v%d' % (a[e], S_EPS, a[e]))
            for e in range(4):
                s('v_add_f32 v%d, v%d, v%d' % (a[e], a[e], t[e]))
        p = acc + 8 * (grp >> 1) + 2 * (grp & 1) if keep is None else keep + 2 * grp
        s('v_cvt_pk_bf16_f32 v%d, v%d, v%d' % (p, a[0], a[1]))
        s('v_cvt_pk_bf16_f32 v%d, v%d, v%d' % (p + 1, a[2], a[3]))
        if kind == 'phi' and grp == 3:
            s('v_cndmask_b32 v%d, v%d, 0, %s' % (p, p, sr(S_HI, 2)))
            s('v_cndmask_b32 v%d, v%d, 0, %s' % (p + 1, p + 1, sr(S_HI, 2)))
        if grp & 1 and keep is None:
            f = grp >> 1
            if handoff:
                s('ds_write_b128 v%d, %s offset:%d' % (V_RA, vr(acc + 8 * f, 4), f * 1024))
                continue
            s('buffer_store_dwordx4 %s, v%d, %s, s%d offen offset:%d sc1' % (vr(acc + 8 * f, 4), V_L16, sr(SWS, 4), S_H, f * 1024), tag)
    return s


XSLOT = [R2, R2 + 16384, R1 + 8192, R1 + 24576, R1 + 40960, R2, R2 + 16384]


def lc_role(ffn):
    kind = 'gelu' if ffn else 'phi'
    nm = 'f' if ffn else 'q'
    s, T = Seg(nm), V_T
    if not ffn:
        s('L_q:')
    if ffn:
        s('s_lshl2_add_u32 s%d, s%d, s%d' % (S_P, S_HALF, S_ROLE))
        s('s_and_b32 s%d, s%d, 1' % (S_T1, S_P))
        s('s_mul_i32 s%d, s%d, 448' % (S_T0, S_P))
        s('s_lshl_b32 s%d, s%d, 6' % (S_PEND, S_T1))
        s('s_add_u32 s%d, s%d, s%d' % (S_T0, S_T0, S_PEND))
    else:
        s('s_mul_i32 s%d, s%d, 448' % (S_T0, S_HALF))
    s('s_lshl_b32 s%d, s%d, 4' % (S_T2, S_RW))
    s('v_add_u32 v%d, s%d, v%d' % (T + 5, S_T2, T + 1))
    s('v_mul_u32_u24 v%d, s%d, v%d' % (T + 5, S_LAST, T + 5))
    s('v_add3_u32 v%d, v%d, v%d, s%d' % (V_W, T + 5, T + 4, S_T0))
    s('v_add_u32 v%d, %d, v%d' % (V_WB, 8 * (W1S if ffn else WQS) - 1024, V_W))
    if not ffn:
        s('s_lshl1_add_u32 s%d, s%d, s%d' % (S_T1, S_RB, S_HALF))
        s('s_mul_i32 s%d, s%d, 5' % (S_T1, S_T1))
        s('s_add_u32 s%d, s%d, s%d' % (S_T1, S_T1, S_WV))
        s('s_lshl_b32 s%d, s%d, 10' % (S_T1, S_T1))
        s('s_add_u32 s%d, s%d, 0x%x' % (S_T1, S_T1, KV_OFF))
        s('s_cmp_lt_u32 s%d, 5' % S_WV)
        s('s_cselect_b32 s%d, s%d, 0x%x' % (S_T1, S_T1, OOB))
        for j in range(4):
            s('v_mov_b32 v%d, 0' % (V_ACC + j))
        s('buffer_store_dwordx4 %s, v%d, %s, s%d offen sc1' % (vr(V_ACC, 4), V_L16, sr(SWS, 4), S_T1))
    s('s_cmp_eq_u32 s%d, 1' % S_G)
    s('s_cbranch_scc1 L_%sb' % nm)
    step = 128 if ffn else 112
    region = [R0, R1, R0, R1]
    acc = V_ACC

    def stream(g):
        z = Seg(nm + 'ab'[g])
        if g:
            z('L_%sb:' % nm)
        xa = Rebase([V_XA + j for j in range(4)], 0, 0)
        wa = Rebase([V_WA + j for j in range(4)], 0, 512)

        def triple(t, c):
            dma_x(t, c, XSLOT[c], ('t', c))
            if g:
                dma_w(t, S_M0W, c, R0 + c * 8192, ('t', c))

        def lc(t, q, c):
            dma_w(t, S_M0W, c, region[q] + c * 8192, ('l', q, c))

        def wread(t, q, c, j):
            o = wa.off(t, region[q] + c * 8192)
            for u in range(2):
                t('ds_read_b64_tr_b16 %s, v%d offset:%d' % (vr(V_WF + 4 * j + 2 * u, 2), V_WA + j, o + u * 512), ('w', q, c, j))

        def xread(t, c, j):
            o = xa.off(t, XSLOT[c])
            t('ds_read_b128 %s, v%d offset:%d' % (vr(xreg(c, j), 4), V_XA + j, o))

        def kstep(q, c, j):
            t = Seg()
            t.wait(lgkm=[('w', q, c, j)])
            first = c == 0 and j == 0
            t('v_mfma_f32_32x32x16_bf16 %s, %s, %s, %s' % (vr(acc, 16), vr(V_WF + 4 * j, 4), vr(xreg(c, j), 4), '0' if first else vr(acc, 16)))
            if j == 0:
                t('v_mfma_f32_16x16x32_bf16 %s, %s, %s, %s' % (vr(V_CS, 4), vr(V_SEL, 4), vr(V_WF + 4 * j, 4), '0' if first else vr(V_CS, 4)))
            if c < 6:
                wread(t, q, c + 1, j)
            return t

        def preread(t, q):
            for j in range(4):
                wread(t, q, 0, j)

        def gemm(t, q, fill=(), extra=None):
            t('s_setprio 1')
            slots = [kstep(q, c, j) for c in range(7) for j in range(4)]
            for k, gi in enumerate(groups(extra) if extra is not None else []):
                slots[1 + OPT['gsp'] * k].extend(gi)
            t.extend(interleave(slots, list(fill), 0, 20))
            t('ds_write_b32 v%d, v%d' % (V_CSW, V_CS))

        def next_col(t, last=False):
            for r in (V_W, V_WB):
                if last and ffn:
                    t('v_add_u32 v%d, s%d, v%d' % (r, S_LAST, r))
                else:
                    t('v_add_u32 v%d, %d, v%d' % (r, step, r))

        def epi(t, q, extra=None, pre=None, handoff=False, hi=0.85, keep=False):
            grp = groups(extra) if extra is not None else []
            t('s_setprio 2')
            t.extend(head([ext_parts(acc, 0, V_EXW, False, V_B1 + q if ffn else None)], pre))
            if not keep:
                t('s_setprio %d' % OPT['eprio'])
            stamp(t, 'x%d' % (2 * q + g + 1))
            for gi in grp[:2]:
                t.extend(gi)
            t.extend(mix(epi_rowlane(kind, acc, ('h', q), handoff, None if ffn else V_PQ + 8 * q), grp[2:], 0.03, hi))
            if ffn:
                t('s_add_u32 s%d, s%d, 4096' % (S_H, S_H))

        def duty(q, chunks, units=(), step_col=True):
            d = Seg()
            if step_col:
                next_col(d, q == 3)
            for k in chunks:
                lc(d, q, k)
            if ffn:
                for u in units:
                    dma_b2(d, u)
            return d

        triple(z, 0)
        z('s_barrier')
        triple(z, 1)
        if ffn:
            z('v_and_b32 v%d, 31, v%d' % (T + 8, T))
            z('v_lshlrev_b32 v%d, 1, v%d' % (T + 8, T + 8))
            for q in range(3):
                z('buffer_load_ushort v%d, v%d, %s, s%d offen offset:%d' % (V_B1 + q, T + 8, sr(SB1, 4), S_T0, q * 128 + g * 64))
            z('s_cmp_eq_u32 s%d, 0' % S_PEND)
            z('s_movk_i32 s%d, -64' % S_T1)
            z('s_movk_i32 s%d, -384' % S_LAST)
            z('s_cselect_b32 s%d, 384, s%d' % (S_T1, S_T1))
            z('s_cselect_b32 s%d, 128, s%d' % (S_LAST, S_LAST))
            if not g:
                z('s_add_u32 s%d, s%d, s%d' % (S_T1, S_T1, S_T0))
                z('buffer_load_ushort v%d, v%d, %s, s%d offen' % (V_B1 + 3, T + 8, sr(SB1, 4), S_T1))
            z('s_mov_b32 s%d, s%d' % (S_T2, S_T0))
        late_setup(z, False)
        tlb_warm(z)
        if ffn:
            z('s_lshl_b32 s%d, s%d, 5' % (S_T2, S_T2))
            z('s_lshr_b32 s%d, s%d, 1' % (S_T1, S_P))
            z('s_add_u32 s%d, s%d, %d' % (S_T0, S_M0W, HND))
            z('v_add_u32 v%d, s%d, v%d' % (V_RA, S_T0, V_L16))
        else:
            z('s_lshl_b32 s%d, s%d, 14' % (S_T2, S_HALF))
            z('s_lshl_b32 s%d, s%d, 1' % (S_T1, S_HALF))
        z('s_add_u32 s%d, s%d, s%d' % (S_H, S_H, S_T2))
        z('s_add_u32 s%d, s%d, %d' % (S_H, S_H, g * 2048 + (0 if ffn else 112 * 1024)))
        z('s_mul_i32 s%d, s%d, %d' % (S_T1, S_T1, FL_G))
        z('s_add_u32 s%d, s%d, s%d' % (S_FL, S_FL, S_T1))
        if ffn:
            z('s_lshl1_add_u32 s%d, s%d, s%d' % (S_FL, S_PEND, S_FL))
        z('s_cmp_eq_u32 s%d, 0' % S_WV)
        z('s_cselect_b32 s%d, s%d, 0x%x' % (S_FL, S_FL, OOB))
        z('v_lshl_add_u32 v%d, v%d, 3, %d' % (T + 5, T + 14, g * (64 if ffn else 56)))
        z('v_lshrrev_b32 v%d, 1, v%d' % (T + 6, T + 10))
        z('v_lshlrev_b32 v%d, 6, v%d' % (T + 6, T + 6))
        z('v_xor_b32 v%d, v%d, v%d' % (T + 5, T + 5, T + 6))
        z('v_lshl_add_u32 v%d, v%d, 7, v%d' % (V_WA, T + 12, T + 5))
        for j in range(1, 4):
            z('v_xor_b32 v%d, %d, v%d' % (V_WA + j, j << 11, V_WA))
        z('s_barrier')
        triple(z, 2)
        if g:
            z('s_setprio 1')
        barrier(z, [('t', 0)])
        stamp(z, 1)
        if not ffn and not g:
            z('s_cmp_eq_u32 s%d, 0' % S_WV)
            z('s_cselect_b32 s%d, 0, 0x%x' % (S_T1, OOB))
            z('buffer_atomic_add v%d, v%d, %s, s%d offen sc1' % (V_ONE, V_FLO, sr(SDBG, 4), S_T1))
        for j in range(4):
            if not g:
                wread(z, 0, 0, j)
            xread(z, 0, j)
        triple(z, 3)
        for c in range(7):
            if c < 6:
                barrier(z, [('t', c + 1)], 's%d' % c)
            else:
                z.wait(lgkm='all')
            d = Seg()
            if c < 3:
                triple(d, c + 4)
            if c == 3:
                next_col(d)
            for k in {4: ([], [0]), 5: ([], [1]), 6: ([3], [2])}.get(c, ([], []))[g]:
                lc(d, 1, k)
            if g:
                if c < 6:
                    for j in range(4):
                        xread(z, c + 1, j)
                z.extend(d)
                if c == 6:
                    preread(z, 0)
                dots(z, c)
            else:
                for j in range(4):
                    z.extend(kstep(0, c, j))
                    if c < 6:
                        xread(z, c + 1, j)
                z.extend(d)
        if g:
            stats_write(z)
            barrier(z, [('l', 1, 0)])
        else:
            z('ds_write_b32 v%d, v%d' % (V_CSW, V_CS))
            barrier(z)
        stamp(z, 2)
        if not g:
            d = Seg()
            f0_load(d)
            if ffn:
                p2_setup(d)
            touch(d, V_XA)
            epi(z, 0, d, pre=stats_final(kind))
            preread(z, 1)
            barrier(z, [('l', 1, 3)], 'e1')
            stamp(z, 'h1')
            gemm(z, 1, extra=duty(2, (1, 2, 3, 4)))
            f0_check(z)
            barrier(z, [('h', 0)], 'e2')
            stamp(z, 'h2')
            epi(z, 1)
            preread(z, 2)
            barrier(z, [('l', 2, 4)], 'e3')
            stamp(z, 3)
            if ffn:
                flag(z, 0)
            gemm(z, 2, extra=duty(3, (1, 2, 3, 4)))
            barrier(z, [('h', 1)], 'e4')
            stamp(z, 'h4')
            epi(z, 2)
            if ffn:
                for k in range(4):
                    z('v_xor_b32 v%d, s%d, v%d' % (V_WA + k, S_PEND, V_WA + k))
            preread(z, 3)
            barrier(z, [('l', 3, 4)], 'e5')
            stamp(z, 4)
            d = duty(0, (), (5, 6, 7), False)
            if ffn:
                flag(d, 256)
            gemm(z, 3, extra=d)
            barrier(z, [('h', 2), ('b', 7)], 'e6')
            stamp(z, 5)
            if ffn:
                z('ds_read_b128 %s, v%d' % (vr(V_WF, 4), V_RA), 'hnd')
                z('ds_read_b128 %s, v%d offset:1024' % (vr(V_WF + 4, 4), V_RA), 'hnd')
                z('s_sub_u32 s%d, s%d, 2048' % (S_T0, S_H))
                z('s_cmp_eq_u32 s%d, 0' % S_PEND)
                z('s_cselect_b32 s%d, 0, %d' % (S_T1, 3 * 4096 + 2048))
                z('s_sub_u32 s%d, s%d, s%d' % (S_H, S_H, S_T1))
                d = Seg()
                d.wait(lgkm='hnd')
                for f in range(2):
                    d('buffer_store_dwordx4 %s, v%d, %s, s%d offen offset:%d sc1' % (vr(V_WF + 4 * f, 4), V_L16, sr(SWS, 4), S_T0, f * 1024), 'h5')
                epi(z, 3, d, keep=True)
                z.wait(vm=[('h', 3)])
                sync_arrive(z, 0)
                sync_wait(z, 0, 4, T)
                flag(z, 512)
                stamp(z, 6)
                z('s_branch L_p2a')
            else:
                epi(z, 3)
                z('s_barrier')
                z('s_branch L_qo')
            return z
        d = duty(1, (4, 5, 6), (), False)
        if ffn:
            p2_setup(d)
            dma_b2(d, 0)
        gemm(z, 0, stats_final(kind), d)
        barrier(z, [('l', 1, 6)], 'e1')
        stamp(z, 'h1')
        for q in (1, 2):
            d = duty(q + 1, (0,))
            if q == 1:
                touch(d, V_XA)
            epi(z, q - 1, d)
            preread(z, q)
            barrier(z, [('l', q + 1, 0)], 'e%d' % (2 * q))
            stamp(z, 'h%d' % (2 * q))
            gemm(z, q, extra=duty(q + 1, (5, 6), (2 * q - 1, 2 * q), False))
            barrier(z, [('l', q + 1, 6)], 'e%d' % (2 * q + 1))
            stamp(z, q + 2)
        if ffn:
            d = Seg()
            poll_early(d)
            for u in range(8, 11):
                dma_b2(d, u)
            epi(z, 2, d, handoff=True, hi=1.0)
            barrier(z, None, 'e6')
            z('s_branch L_p2b')
        else:
            epi(z, 2)
            preread(z, 3)
            barrier(z)
            stamp(z, 5)
            gemm(z, 3)
            barrier(z)
            epi(z, 3)
        return z

    return s, stream(0), stream(1)


def q_out():
    s, T = Seg('qo'), V_T
    NUM, KF, RAW = V_X, V_X + 64, V_X + 96
    s('L_qo:')
    stamp(s, 6)
    s('s_lshl3_add_u32 s%d, s%d, s%d' % (S_T0, S_HALF, S_WV))
    s('s_lshl_b32 s%d, s%d, 7' % (S_PL, S_T0))
    s('s_add_u32 s%d, s%d, 0x%x' % (S_PL, S_PL, FKV_OFF))
    s('s_lshl_b32 s%d, s%d, 12' % (S_T0, S_T0))
    s('s_add_u32 s%d, s%d, 0x%x' % (S_T0, S_T0, KV_OFF))
    s('v_lshrrev_b32 v%d, 2, v%d' % (T, V_L16))
    s('s_add_u32 s%d, s%d, %d' % (S_T1, S_M0X, R2))
    s('v_add_u32 v%d, s%d, v%d' % (T + 1, S_T1, V_L16))
    s('s_lshl_b32 s%d, s%d, 11' % (S_T1, S_G))
    s('s_add_u32 s%d, s%d, %d' % (S_T1, S_T1, R2))
    s('v_add_u32 v%d, s%d, v%d' % (T + 2, S_T1, V_L16))
    poll_check(s, 0, 16, sync=True, atomic=OPT['qatom'])
    stamp(s, 7)
    for r in range(16):
        s('buffer_load_dword v%d, v%d, %s, s%d offen offset:%d sc1' % (RAW + r, T, sr(SWS, 4), S_T0, r * 256), ('kv', r >> 3))
    for f in range(2):
        s.wait(vm=[('kv', f)])
        for k in range(4):
            s('v_cvt_pk_bf16_f32 v%d, v%d, v%d' % (RAW + 8 * f + k, RAW + 8 * f + 2 * k, RAW + 8 * f + 2 * k + 1))
        s('ds_write_b128 v%d, %s offset:%d' % (T + 1, vr(RAW + 8 * f, 4), f * 1024))
    barrier(s)
    stamp(s, 8)
    for q in range(4):
        for f in range(2):
            s('ds_read_b128 %s, v%d offset:%d' % (vr(KF + 8 * q + 4 * f, 4), T + 2, q * 4096 + f * 1024), ('kf', q, f))
    for q in range(4):
        for f in range(2):
            s.wait(lgkm=[('kf', q, f)])
            s('v_mfma_f32_32x32x16_bf16 %s, %s, %s, %s' % (vr(NUM + 16 * q, 16), vr(KF + 8 * q + 4 * f, 4), vr(V_PQ + 8 * q + 4 * f, 4), vr(NUM + 16 * q, 16) if f else '0'))
    for p in range(2):
        for q in (2 * p, 2 * p + 1):
            s('v_add_f32 v%d, s%d, v%d' % (T + 4 + 2 * q, S_EPS, NUM + 16 * q + 12))
            s('v_add_f32 v%d, s%d, v%d' % (T + 5 + 2 * q, S_EPS, NUM + 16 * q + 12))
        for q in (2 * p, 2 * p + 1):
            s('v_permlane32_swap_b32 v%d, v%d' % (T + 4 + 2 * q, T + 5 + 2 * q))
        for q in (2 * p, 2 * p + 1):
            s('v_rcp_f32 v%d, v%d' % (T + 5 + 2 * q, T + 5 + 2 * q))
        for q in (2 * p, 2 * p + 1):
            s('v_cndmask_b32 v%d, v%d, 0, %s' % (T + 4 + 2 * q, T + 5 + 2 * q, sr(S_HI, 2)))
        for q in (2 * p, 2 * p + 1):
            n = NUM + 16 * q
            for f in range(2):
                for k in range(8 * f, 8 * f + 8, 2):
                    sel = 0 if k >= 12 else 1
                    s('v_pk_mul_f32 %s, %s, %s op_sel:[0,%d] op_sel_hi:[1,%d]' % (vr(n + k, 2), vr(n + k, 2), vr(T + 4 + 2 * q, 2), sel, sel))
                for k in range(4):
                    s('v_cvt_pk_bf16_f32 v%d, v%d, v%d' % (n + 8 * f + k, n + 8 * f + 2 * k, n + 8 * f + 2 * k + 1))
                s('buffer_store_dwordx4 %s, v%d, %s, s%d offen offset:%d sc1' % (vr(n + 8 * f, 4), V_L16, sr(SWS, 4), S_H, f * 1024), ('o', p))
            s('s_add_u32 s%d, s%d, 4096' % (S_H, S_H))
    stamp(s, 9)
    barrier(s, 'all')
    flag(s, 768)
    flag(s, 768 + FL_G)
    s('s_branch L_fin')
    return s


def kv_slot(n):
    return ((n + 4) % 9) * 16384


def kv_role():
    s, T = Seg('kv'), V_T
    s('L_kv:')
    s('s_mul_i32 s%d, s%d, 3' % (S_P, S_HALF))
    s('s_add_u32 s%d, s%d, s%d' % (S_P, S_P, S_ROLE))
    s('s_sub_u32 s%d, s%d, 4' % (S_P, S_P))
    s('s_lshl_b32 s%d, s%d, 7' % (S_T0, S_P))
    s('s_add_u32 s%d, s%d, %d' % (S_T1, S_T0, XS))
    s('s_lshl_b32 s%d, s%d, 3' % (S_T2, S_WV))
    s('v_add_u32 v%d, s%d, v%d' % (T + 5, S_T2, T + 3))
    s('v_mul_u32_u24 v%d, %d, v%d' % (T + 5, WQS, T + 5))
    s('v_and_b32 v%d, 15, v%d' % (T + 6, T))
    s('v_lshlrev_b32 v%d, 2, v%d' % (T + 8, T + 3))
    s('v_xor_b32 v%d, v%d, v%d' % (T + 6, T + 6, T + 8))
    s('v_lshlrev_b32 v%d, 4, v%d' % (T + 6, T + 6))
    s('v_add3_u32 v%d, v%d, v%d, s%d' % (V_W, T + 5, T + 6, S_T1))
    s('v_add_u32 v%d, %d, v%d' % (V_WB, 4 * WQS - 1024, V_W))

    def item(t, n):
        if n >= 14:
            if n == 14:
                t('v_add_u32 v%d, %d, v%d' % (V_W, XS, V_W))
                t('v_add_u32 v%d, %d, v%d' % (V_WB, XS, V_WB))
            dma_w(t, S_M0X, n - 14, kv_slot(n), ('i', n))
        elif n & 1:
            dma_w(t, S_M0X, n >> 1, kv_slot(n), ('i', n))
        else:
            dma_x(t, n >> 1, kv_slot(n), ('i', n))

    item(s, 0)
    item(s, 1)
    s('s_barrier')
    item(s, 2)
    late_setup(s, True)
    tlb_warm(s)
    s('s_lshl_b32 s%d, s%d, 2' % (S_T1, S_P))
    s('s_lshr_b32 s%d, 0xdb9630, s%d' % (S_LAST, S_T1))
    s('s_and_b32 s%d, s%d, 15' % (S_LAST, S_LAST))
    s('s_lshr_b32 s%d, 0x322333, s%d' % (S_PEND, S_T1))
    s('s_and_b32 s%d, s%d, 15' % (S_PEND, S_PEND))
    s('s_mul_i32 s%d, s%d, 56' % (S_T1, S_LAST))
    s('s_lshl_b32 s%d, s%d, 7' % (S_T0, S_P))
    s('s_sub_u32 s%d, s%d, s%d' % (S_T1, S_T1, S_T0))
    s('s_cmp_eq_u32 s%d, 3' % S_PEND)
    s('s_cselect_b32 s%d, 112, 0' % S_T0)
    s('s_mul_i32 s%d, s%d, s%d' % (S_T0, S_T0, S_G))
    s('s_add_u32 s%d, s%d, s%d' % (S_T1, S_T1, S_T0))
    s('v_min_u32 v%d, 6, v%d' % (T + 14, T + 14))
    s('v_lshl_add_u32 v%d, v%d, 3, s%d' % (T + 5, T + 14, S_T1))
    s('v_lshlrev_b32 v%d, 6, v%d' % (T + 6, T + 10))
    for t in range(2):
        if t:
            s('v_add_u32 v%d, 56, v%d' % (T + 5, T + 5))
        s('v_xor_b32 v%d, v%d, v%d' % (T + 8, T + 5, T + 6))
        s('v_lshl_add_u32 v%d, v%d, 8, v%d' % (V_WA + 4 * t, T + 12, T + 8))
        for j in range(1, 4):
            s('v_xor_b32 v%d, %d, v%d' % (V_WA + 4 * t + j, j << 12, V_WA + 4 * t))
    item(s, 3)
    s('s_cmp_eq_u32 s%d, 1' % S_G)
    s('s_cbranch_scc1 L_kb')

    def body(nt):
        nm = 'ka' if nt == 2 else 'kb'
        b = Seg(nm)
        if nt == 1:
            b('L_kb:')
        xa = Rebase([V_XA + j for j in range(4)], 0, 0)
        wa = Rebase([V_WA + j for j in range(4 * nt)], 0, 1024)

        def witem(q, c):
            return 2 * c + 1 if q == 0 else 14 + c

        DIST = [4 // nt, 4]
        W1 = [V_ACC + 8, V_ACC + 12, V_XA, V_T + 12]

        def wf(q, t, j):
            if q == 1 and t == 1:
                return W1[j]
            return V_WF + 8 * t + 4 * (j % DIST[q])

        def wread(z, q, c, j, ts=None):
            o = wa.off(z, kv_slot(witem(q, c)))
            for t in (range(nt) if ts is None else ts):
                for u in range(2):
                    z('ds_read_b64_tr_b16 %s, v%d offset:%d' % (vr(wf(q, t, j) + 2 * u, 2), V_WA + 4 * t + j, o + u * 1024), ('w', q, c, j, t))

        def xread(z, c, j):
            o = xa.off(z, kv_slot(2 * c))
            z('ds_read_b128 %s, v%d offset:%d' % (vr(xreg(c, j), 4), V_XA + j, o))

        def acc(q, t):
            return V_ACC + 32 * q + 16 * t

        def kstep(q, c, j):
            out = []
            first = c == 0 and j == 0
            dist = DIST[q]
            for t in range(nt):
                z = Seg()
                z.wait(lgkm=[('w', q, c, j, t)])
                z('v_mfma_f32_32x32x16_bf16 %s, %s, %s, %s' % (vr(acc(q, t), 16), vr(xreg(c, j), 4), vr(wf(q, t, j), 4), '0' if first else vr(acc(q, t), 16)))
                if j == 0:
                    z('v_mfma_f32_16x16x32_bf16 %s, %s, %s, %s' % (vr(V_CS + 4 * t, 4), vr(V_SEL, 4), vr(wf(q, t, j), 4), '0' if first else vr(V_CS + 4 * t, 4)))
                if j + dist < 4:
                    wread(z, q, c, j + dist, [t])
                elif c < 6:
                    wread(z, q, c + 1, j + dist - 4, [t])
                elif q == 0 and nt == 1:
                    wread(z, 1, 0, j + dist - 4, [t])
                if t == nt - 1 and q == 0 and c < 6:
                    xread(z, c + 1, j)
                out.append(z)
            return out

        def cs_write(z, q):
            for t in range(nt):
                z('ds_write_b32 v%d, v%d offset:%d' % (V_CSW, V_CS + 4 * t, q * 1536 + t * 512))

        def rload(z, i, dst, key, addr=V_RA):
            z('ds_read_b128 %s, v%d offset:%d' % (vr(dst, 4), addr, i * 32), key)

        if nt == 1:
            b('s_setprio 1')
        barrier(b, [('i', 1)])
        stamp(b, 1)
        for j in range(4):
            if j < DIST[0]:
                wread(b, 0, 0, j)
            xread(b, 0, j)
        item(b, 4)
        item(b, 5)
        for c in range(7):
            barrier(b, [('i', 2 * c + 3 if c < 6 else 14)], 's%d' % c)
            d = Seg()
            item(d, 2 * c + 6)
            item(d, 2 * c + 7)
            if nt == 1:
                b.extend(d)
            for j in range(4):
                for z in kstep(0, c, j):
                    b.extend(z)
            if nt == 1:
                dots(b, c)
            else:
                b.extend(d)
        cs_write(b, 0)
        if nt == 1:
            stats_write(b)
        barrier(b, [('i', 17)], 's7')
        stamp(b, 2)
        item(b, 20)

        def phi_k(t, rb):
            e = Seg()
            n = len(rb)
            for i in range(n):
                rload(e, i, rb[i], ('r', t, i))
            e.append(GAP)
            for i in range(4):
                e.wait(lgkm=[('r', t, i)])
                a = [acc(0, t) + 4 * i + k for k in range(4)]
                for k in range(4):
                    e('v_fma_f32 v%d, v%d, v%d, s%d' % (a[k], a[k], rb[i % n] + k, S_EPS))
                if i + n < 4:
                    rload(e, i + n, rb[i % n], ('r', t, i + n))
                for k in range(4):
                    e('v_mul_f32 v%d, s%d, v%d' % (T + k, S_L2E, a[k]))
                for k in range(4):
                    e('v_exp_f32_e64 v%d, v%d clamp' % (T + k, T + k))
                for k in range(4):
                    e('v_max_f32 v%d, s%d, v%d' % (a[k], S_EPS, a[k]))
                for k in range(4):
                    e('v_add_f32 v%d, v%d, v%d' % (a[k], a[k], T + k))
                e('v_cvt_pk_bf16_f32 v%d, v%d, v%d' % (acc(0, t) + 2 * i, a[0], a[1]))
                e('v_cvt_pk_bf16_f32 v%d, v%d, v%d' % (acc(0, t) + 2 * i + 1, a[2], a[3]))
            return e

        def prod_setup(z):
            for i in range(4):
                rload(z, i, V_WF + 4 * i, 'r2', V_X1)
            z('v_cndmask_b32 v%d, 0, 1.0, %s' % (V_SEL, sr(S_PAD, 2)))
            z('s_lshl_b32 s%d, s%d, 12' % (S_T0, S_RW))
            z('s_add_u32 s%d, s%d, %d' % (S_T0, S_T0, HND + (16384 if nt == 2 else 0)))
            z('v_add_u32 v%d, s%d, v%d' % (V_SEL + 1, S_T0, V_L16))

        def kv_prod(z):
            z.wait(lgkm='r2')
            for t in range(nt):
                v = acc(1, t)
                d = V_X + 16 * t
                for f in range(2):
                    for k in range(8 * f, 8 * f + 8):
                        z('v_fma_f32 v%d, v%d, v%d, v%d' % (v + k, v + k, V_WF + k, V_SEL))
                    for k in range(4):
                        z('v_cvt_pk_bf16_f32 v%d, v%d, v%d' % (v + 8 * f + k, v + 8 * f + 2 * k, v + 8 * f + 2 * k + 1))
                if nt == 1:
                    z('s_setprio 2')
                for f in range(2):
                    z('v_mfma_f32_32x32x16_bf16 %s, %s, %s, %s' % (vr(d, 16), vr(acc(0, t) + 4 * f, 4), vr(v + 8 * f, 4), vr(d, 16) if f else '0'))

        def part_write(z):
            for t in range(nt):
                for i in range(4):
                    z('ds_write_b128 v%d, %s offset:%d' % (V_SEL + 1, vr(V_X + 16 * t + 4 * i, 4), t * 16384 + i * 1024))
            sync_arrive(z, 1)

        if nt == 1:
            slots = []
            for c in range(7):
                for j in range(4):
                    z = kstep(1, c, j)[0]
                    if c == 3 and j == 0:
                        pre = Seg()
                        barrier(pre, [('i', 20)], 'v1')
                        z[:0] = pre
                    slots.append(z)
            for z in slots:
                b.extend(z)
            cs_write(b, 1)
            barrier(b, None, 'v2')
            stamp(b, 3)
            b('s_setprio 2')
            b.extend(head([ext_parts(acc(0, 0), 0, V_EXW, True), ext_parts(acc(1, 0), 1536, V_EXW + 2, True, T=V_T + 4)], stats_final('kv')))
            b('s_setprio 0')
            prod_setup(b)
            b.extend(i for i in phi_k(0, [V_ACC + 16 + 4 * i for i in range(4)]) if i is not GAP)
            kv_prod(b)
            p2_setup(b)
            barrier(b, None, 'v3')
            stamp(b, 4)
            part_write(b)
            b('s_setprio 1')
            for u in range(11):
                dma_b2(b, u)
                if u == 6:
                    poll_early(b)
            b('s_branch L_p2b')
            return b
        f0_load(b)
        b('s_setprio 2')
        b.extend(head([ext_parts(acc(0, t), t * 512, V_EXW + 2 * t, True, T=V_T + 8 - 4 * t) for t in range(2)], stats_final('kv')))
        b('s_setprio 0')
        e = [i for i in phi_k(0, [V_WF + 4 * i for i in range(4)]) if i is not GAP]
        k = len(e) * OPT['kcut'] // 100
        b.extend(e[:k])
        barrier(b, [('i', 20)], 'v1')
        b.extend(e[k:])
        f0_check(b)
        for j in range(4):
            wread(b, 1, 0, j)
        barrier(b, None, 'v2')
        stamp(b, 3)
        b('s_setprio %d' % OPT['kprio'])
        slots = []
        for c in range(7):
            for j in range(4):
                z = kstep(1, c, j)
                if c == OPT['kbar'] and j == 0:
                    pre = Seg()
                    barrier(pre, None, 'v3')
                    pre('s_setprio 2')
                    z[0][:0] = pre
                slots += z
        b.extend(interleave(slots, list(phi_k(1, [V_T + 4, V_T + 8])), OPT['kphi'], 54))
        cs_write(b, 1)
        sync_arrive(b, 0)
        prod_setup(b)
        stamp(b, 'k0')
        sync_wait(b, 0, 4, T)
        b.extend(head([ext_parts(acc(1, t), 1536 + t * 512, V_EXW + 2 * t, True, T=V_T + 8 - 4 * t) for t in range(2)]))
        b('s_cmp_lt_u32 s%d, s%d' % (S_RW, S_PEND))
        b('s_cselect_b32 s%d, 0, 0x%x' % (S_T3, OOB))
        b('s_add_u32 s%d, s%d, s%d' % (S_T1, S_LAST, S_RW))
        b('s_lshl_b32 s%d, s%d, 12' % (S_T0, S_T1))
        b('s_add_u32 s%d, s%d, s%d' % (S_T0, S_T0, S_T3))
        b('s_add_u32 s%d, s%d, 0x%x' % (S_T0, S_T0, KV_OFF))
        b('s_lshl_b32 s%d, s%d, 7' % (S_T1, S_T1))
        b('s_add_u32 s%d, s%d, s%d' % (S_T1, S_T1, S_T3))
        b('s_add_u32 s%d, s%d, 0x%x' % (S_FL, S_T1, FKV_OFF))
        b('s_add_u32 s%d, s%d, 1' % (S_T1, S_RW))
        b('s_cmp_lt_u32 s%d, 2' % S_RW)
        b('s_cselect_b32 s%d, s%d, 0' % (S_T1, S_T1))
        b('s_lshl_b32 s%d, s%d, 14' % (S_T1, S_T1))
        b('s_add_u32 s%d, s%d, %d' % (S_T1, S_T1, HND))
        kv_prod(b)
        part_write(b)
        b('v_lshrrev_b32 v%d, 2, v%d' % (T + 10, V_L16))
        b('v_add_u32 v%d, s%d, v%d' % (T + 11, S_T1, V_L16))
        sync_wait(b, 1, 8, T)
        stamp(b, 4)
        for i in range(4):
            for p in range(4):
                b('ds_read_b128 %s, v%d offset:%d' % (vr(V_X + 16 * i + 4 * p, 4), T + 11, p * 4096 + i * 1024), ('red', i))
        for i in range(4):
            r = V_X + 16 * i
            b.wait(lgkm=[('red', i)])
            for k in range(4):
                b('v_add_f32 v%d, v%d, v%d' % (r + k, r + k, r + 4 + k))
                b('v_add_f32 v%d, v%d, v%d' % (r + 8 + k, r + 8 + k, r + 12 + k))
                b('v_add_f32 v%d, v%d, v%d' % (r + k, r + k, r + 8 + k))
                b('buffer_atomic_add_f32 v%d, v%d, %s, s%d offen offset:%d sc1' % (r + k, T + 10, sr(SWS, 4), S_T0, (4 * i + k) * 256), 'atom')
        stamp(b, 5)
        p2_setup(b)
        b.wait(vm='atom')
        stamp(b, 6)
        b('buffer_atomic_add v%d, v%d, %s, s%d offen sc1' % (V_ONE, V_FLO, sr(SWS, 4), S_FL))
        b('s_branch L_p2a')
        return b

    return s, body(2), body(1)


def res_load():
    s, T = Seg(), V_RES + 8
    s('s_lshl_b32 s%d, s%d, 7' % (S_T0, S_ROLE))
    s('v_lshrrev_b32 v%d, 3, v0' % (T + 1))
    s('v_and_b32 v%d, 0x70, v%d' % (T + 2, V_L16))
    s('v_mul_u32_u24 v%d, %d, v%d' % (T, XS, T + 1))
    s('v_add_u32 v%d, v%d, v%d' % (T, T, T + 2))
    s('buffer_load_dwordx4 %s, v%d, %s, s%d offen' % (vr(V_RES, 4), T, sr(SX, 4), S_OUTO), 'res')
    s('buffer_load_dwordx4 %s, v%d, %s, s%d offen' % (vr(V_RES + 4, 4), T + 2, sr(SB2, 4), S_T0), 'res')
    s('v_and_b32 v%d, 31, v%d' % (T + 1, T + 1))
    s('v_and_b32 v%d, 7, v%d' % (T + 3, T + 1))
    s('v_bfe_u32 v%d, v%d, 1, 1' % (T + 4, T + 1))
    s('v_lshl_add_u32 v%d, v%d, 3, v%d' % (T + 3, T + 4, T + 3))
    s('v_lshlrev_b32 v%d, 4, v%d' % (T + 3, T + 3))
    s('v_xor_b32 v%d, v%d, v%d' % (T + 3, T + 3, T + 2))
    s('v_lshl_add_u32 v%d, v%d, 8, v%d' % (T + 1, T + 1, T + 3))
    return s


def frag_addr(s, T):
    s('v_lshrrev_b32 v%d, 4, v%d' % (T, V_L16))
    s('v_bfe_u32 v%d, v%d, 2, 2' % (T + 1, T))
    s('v_and_b32 v%d, 3, v%d' % (T + 2, T))
    s('v_bfe_u32 v%d, v%d, 4, 1' % (T + 3, T))
    s('v_lshl_add_u32 v%d, v%d, 2, v%d' % (T + 2, T + 3, T + 2))
    s('v_lshrrev_b32 v%d, 1, v%d' % (T + 3, T + 1))
    s('v_lshlrev_b32 v%d, 6, v%d' % (T + 3, T + 3))
    s('v_lshl_add_u32 v%d, v%d, 3, v%d' % (T + 2, T + 2, T + 3))
    s('v_lshl_add_u32 v%d, v%d, 7, v%d' % (T + 2, T + 1, T + 2))
    s('v_lshrrev_b32 v%d, 5, v%d' % (T + 3, T))
    s('v_lshl_add_u32 v%d, v%d, 9, v%d' % (T + 3, T + 3, T + 2))


def bf(par, ct):
    return V_BF + 8 * par + 4 * ct


def acc2(ct, rg):
    return V_ACC + 32 * ct + 16 * rg


def part_addr(g):
    z, T = Seg(), V_NUM
    z('v_bfe_u32 v%d, v%d, 4, 5' % (T, V_L16))
    z('v_and_b32 v%d, 7, v%d' % (T + 1, T))
    z('v_bfe_u32 v%d, v%d, 1, 1' % (T + 2, T))
    z('v_lshrrev_b32 v%d, 9, v%d' % (T + 3, V_L16))
    z('v_xor_b32 v%d, v%d, v%d' % (T + 2, T + 2, T + 3))
    z('v_lshl_add_u32 v%d, v%d, 3, v%d' % (T + 1, T + 2, T + 1))
    z('v_lshlrev_b32 v%d, 4, v%d' % (T + 1, T + 1))
    z('v_lshl_add_u32 v%d, v%d, 8, v%d' % (T + 1, T, T + 1))
    z('v_add_u32 v%d, s%d, v%d' % (T + 8, S_QR0, T + 1))
    z('v_add_u32 v%d, s%d, v%d' % (T + 16, S_QR2, T + 1))
    for rg in range(2):
        for k in range(1, 8):
            z('v_xor_b32 v%d, %d, v%d' % (T + 8 + 8 * rg + k, k << 4, T + 8 + 8 * rg))
    return z


def read_addr(g):
    z, T, A = Seg(), V_RES + 8, V_RES + 16
    for w in range(4):
        z('v_add_u32 v%d, %d, v%d' % (A + 2 * w, (R2 + w * 10240) if g else w * 12288, T + 1))
        z('v_xor_b32 v%d, 128, v%d' % (A + 2 * w + 1, A + 2 * w))
    return z


def res_unpack():
    z, U = Seg(), V_RES + 24
    z.wait(vm='res')
    for k in range(4):
        z('v_lshlrev_b32 v%d, 16, v%d' % (U + 2 * k, V_RES + k))
        z('v_and_b32 v%d, 0xffff0000, v%d' % (U + 2 * k + 1, V_RES + k))
        z('v_lshlrev_b32 v%d, 16, v%d' % (V_RES + k, V_RES + 4 + k))
        z('v_and_b32 v%d, 0xffff0000, v%d' % (V_RES + 4 + k, V_RES + 4 + k))
        z('v_add_f32 v%d, v%d, v%d' % (U + 2 * k, U + 2 * k, V_RES + k))
        z('v_add_f32 v%d, v%d, v%d' % (U + 2 * k + 1, U + 2 * k + 1, V_RES + 4 + k))
    return z


def phase2b():
    s, T = Seg('p2b'), V_NUM
    s('L_p2b:')
    if OPT['p1only']:
        s('s_branch L_fin')
        return s
    stamp(s, 5)
    s('s_setprio 1')
    s('v_add_u32 v%d, %d, v%d' % (V_L16B, ACT_G, V_L16))
    s('s_lshl_b32 s%d, s%d, 13' % (S_T0, S_RW))
    s('s_add_u32 s%d, s%d, s%d' % (S_AO, S_A, S_T0))
    s('s_add_u32 s%d, s%d, %d' % (S_AO, S_AO, 112 * 1024))
    s('s_mul_i32 s%d, s%d, %d' % (S_T0, S_RW, 28 * 1024))
    s('s_add_u32 s%d, s%d, s%d' % (S_A, S_A, S_T0))
    DEP = OPT['dep']

    def abuf(u, rg):
        return V_AB + 8 * (u % DEP) + 4 * rg

    def aload(z, u):
        if u < 28:
            ks_dyn(z, S_T0, u)
        else:
            z('s_xor_b32 s%d, s%d, %d' % (S_T0, S_RO3, u - 28))
        if OPT['x_hit'] & 1:
            z('s_and_b32 s%d, s%d, 3' % (S_T0, S_T0))
        z('s_lshl_b32 s%d, s%d, 10' % (S_T0, S_T0))
        z('s_add_u32 s%d, s%d, s%d' % (S_T0, S_T0, S_A if u < 28 else S_AO))
        for rg in range(2):
            z('buffer_load_dwordx4 %s, v%d, %s, s%d offen sc1' % (vr(abuf(u, rg), 4), V_L16B if rg else V_L16, sr(SWS, 4), S_T0), ('a', u))

    stage_check(s, 0)
    stamp(s, 'c0')
    z = Seg()
    for u in range(DEP - 1):
        aload(z, u)
        if u == min(DEP - 2, max(0, 8 - OPT['plead'])):
            poll_async(z, 1)
    y = Seg()
    frag_addr(y, T)
    for reg, base in enumerate((S_QR0, S_QR2)):
        y('v_add_u32 v%d, s%d, v%d' % (V_BA + 2 * reg, base, T + 3))
        y('v_xor_b32 v%d, 64, v%d' % (V_BA + 2 * reg + 1, V_BA + 2 * reg))
    s.extend(mix(y, groups(z)))

    def bread(z, u):
        _, reg, off = unit_loc(u)
        z.wait(vm=[('b', u)])
        for ct in range(2):
            for h in range(2):
                z('ds_read_b64_tr_b16 %s, v%d offset:%d' % (vr(bf(u & 1, ct) + 2 * h, 2), V_BA + 2 * reg + ct, off + h * 1024), ('bf', u, ct))

    bread(s, 0)
    NU = 36
    STG = {8: 1, 16: 2}
    late = list(read_addr(1)) + list(part_addr(1)) + list(res_unpack())

    def unit(s, u, loads):
        nxt = u + DEP - 1
        if nxt in STG:
            stage_check(s, STG[nxt])
            stamp(s, 'c%d' % STG[nxt])
        z = Seg()
        if nxt + OPT['plead'] in (16, 28):
            poll_async(z, 2 if nxt < 16 else 3)
        if nxt < NU and loads:
            aload(z, nxt)
        if 11 <= u + OPT['lb'] < NU:
            dma_b2(z, u + OPT['lb'])
        if u == 6:
            z.extend(res_load())
        now = groups(z)
        if 12 <= u < 20:
            k0, k1 = len(late) * (u - 12) // 8, len(late) * (u - 11) // 8
            now += [[i] for i in late[k0:k1]]
        rd = Seg()
        if u < NU - 1:
            bread(rd, u + 1)
        stamp(s, 'w%d' % u)
        s.wait(vm=[('a', u)])
        stamp(s, 'u%d' % u)
        k = 0
        for ct in range(2):
            s.wait(lgkm=[('bf', u, ct)])
            for rg in range(2):
                s('v_mfma_f32_32x32x16_bf16 %s, %s, %s, %s' % (vr(acc2(ct, rg), 16), vr(bf(u & 1, ct), 4), vr(abuf(u, rg), 4), vr(acc2(ct, rg), 16) if u else '0'))
                if k < 2:
                    s.extend(rd[:-2] if k == 0 else rd[-2:])
                for gi in range(len(now) * k // 4, len(now) * (k + 1) // 4):
                    s.extend(now[gi])
                k += 1

    U0 = 29 - DEP
    for u in range(U0):
        unit(s, u, True)
    stage_check(s, 3, miss='L_p2late')
    fast, lateseg, tail = Seg('p2f'), Seg('p2l'), Seg('p2t')
    for u in range(U0, 28):
        unit(fast, u, True)
    lateseg('L_p2late:')
    for u in range(U0, 28):
        unit(lateseg, u, False)
    stage_check(lateseg, 3, sync=True)
    stamp(lateseg, 'c3')
    for u in range(28, 28 + DEP - 1):
        aload(lateseg, u)
    lateseg('s_branch L_p2tail')
    head_, s = s, tail
    s('L_p2tail:')
    for u in range(28, NU):
        unit(s, u, True)
    stamp(s, 8)
    for ct in range(2):
        for rg in range(2):
            for i in range(4):
                s('ds_write_b128 v%d, %s' % (V_NUM + 8 + 8 * rg + 4 * ct + i, vr(acc2(ct, rg) + 4 * i, 4)))
    s('s_branch L_final')
    return head_, fast, lateseg, tail


def phase2a():
    s = Seg('p2a')
    s('L_p2a:')
    if OPT['p1only']:
        s('s_branch L_fin')
        return s
    s.extend(res_load())
    s.extend(read_addr(0))
    s.extend(res_unpack())
    return s


def final():
    s, T = Seg('final'), V_RES + 8
    s('L_final:')
    if not OPT['p1only']:
        D, U = V_ACC, V_RES + 24
        barrier(s)
        stamp(s, 9)
        for w in range(4):
            for h in range(2):
                s('ds_read_b128 %s, v%d' % (vr(D + 8 * w + 4 * h, 4), V_RES + 16 + 2 * w + h), ('fin', w))
        for w in range(4):
            s.wait(lgkm=[('fin', w)])
            for k in range(4):
                s('v_pk_add_f32 %s, %s, %s' % (vr(U + 2 * k, 2), vr(U + 2 * k, 2), vr(D + 8 * w + 2 * k, 2)))
        for k in range(4):
            s('v_cvt_pk_bf16_f32 v%d, v%d, v%d' % (U + k, U + 2 * k, U + 2 * k + 1))
        s('buffer_store_dwordx4 %s, v%d, %s, s%d offen' % (vr(U, 4), T, sr(SOUT, 4), S_OUTO))
    return s


def fin():
    s = Seg('fin')
    s('L_fin:')
    if OPT['diag']:
        stamp(s, 10)
        s('s_waitcnt lgkmcnt(0)')
        s('v_mov_b32 v4, 0')
        for k in range(11):
            s('v_writelane_b32 v4, s%d, %d' % (S_KA + 2 * k, k))
        s('v_writelane_b32 v4, s%d, 11' % S_SPIN)
        s('s_lshl3_add_u32 s%d, s2, s%d' % (S_T0, S_WV))
        s('s_lshl_b32 s%d, s%d, 8' % (S_T0, S_T0))
        s('s_add_u32 s%d, s%d, 0x%x' % (S_T0, S_T0, TS_OFF))
        s('v_lshrrev_b32 v5, 2, v%d' % V_L16)
        s('buffer_store_dword v4, v5, %s, s%d offen' % (sr(SWS, 4), S_T0))
        if OPT['diag'] == 3:
            s('s_not_b32 s%d, s%d' % (S_T0, S_KA))
            s('v_writelane_b32 v4, s%d, 11' % S_T0)
            s('s_cmp_eq_u32 s%d, 4' % S_WV)
            s('s_cselect_b32 s%d, 16, 0x%x' % (S_T0, OOB))
            s('s_cmp_lt_u32 s%d, 4' % S_ROLE)
            s('s_cselect_b32 s%d, s%d, 0x%x' % (S_T0, S_T0, OOB))
            s('s_mov_b64 exec, 0xfff')
            s('buffer_atomic_umax v4, v5, %s, s%d offen sc1' % (sr(SDBG, 4), S_T0))
    if OPT['diag'] == 5:
        s('s_cmp_lg_u32 s%d, 4' % S_WV)
        s('s_cbranch_scc1 L_end')
        s('s_mov_b64 exec, 1')
        s('s_not_b32 s%d, s%d' % (S_T0, S_KA + 2 * OPT['sa']))
        s('v_mov_b32 v4, s%d' % S_T0)
        s('v_mov_b32 v5, s%d' % (S_KA + 2 * OPT['sb']))
        s('v_mov_b32 v6, 1')
        s('v_mov_b32 v7, 0')
        s('buffer_atomic_umax v4, v7, %s, 0 offen offset:128 sc1' % sr(SDBG, 4))
        s('buffer_atomic_umax v5, v7, %s, 0 offen offset:132 sc1' % sr(SDBG, 4))
        s('s_waitcnt vmcnt(0)')
        s('buffer_atomic_add v6, v7, %s, 0 offen offset:136 sc0 sc1' % sr(SDBG, 4))
        s('s_waitcnt vmcnt(0)')
        s('v_readfirstlane_b32 s%d, v6' % S_T0)
        s('s_cmp_lg_u32 s%d, 255' % S_T0)
        s('s_cbranch_scc1 L_end')
        s('buffer_load_dwordx2 v[4:5], v7, %s, 0 offen offset:128 sc1' % sr(SDBG, 4))
        s('s_waitcnt vmcnt(0)')
        s('v_add_u32 v4, v4, v5')
        s('s_nop 1')
        s('v_readfirstlane_b32 s%d, v4' % S_T0)
        s('s_add_u32 s%d, s%d, 1' % (S_T0, S_T0))
        s('s_mul_i32 s%d, s%d, %d' % (S_T0, S_T0, OPT['mul']))
        s('s_min_u32 s%d, s%d, 200000' % (S_T0, S_T0))
        s('s_memrealtime s[66:67]')
        s('s_waitcnt lgkmcnt(0)')
        s('L_dly:')
        s('s_memrealtime s[68:69]')
        s('s_waitcnt lgkmcnt(0)')
        s('s_sub_u32 s68, s68, s66')
        s('s_cmp_lt_u32 s68, s%d' % S_T0)
        s('s_cbranch_scc1 L_dly')
    if OPT['diag'] == 4:
        s('s_cmp_lg_u32 s2, %d' % OPT['wg'])
        s('s_cbranch_scc1 L_end')
        s('s_cmp_lg_u32 s%d, 4' % S_WV)
        s('s_cbranch_scc1 L_end')
        s('s_sub_u32 s%d, s%d, s%d' % (S_T0, S_KA + 2 * OPT['sb'], S_KA + 2 * OPT['sa']))
        if not OPT['clk']:
            s('s_mul_i32 s%d, s%d, 10' % (S_T0, S_T0))
        s('s_min_u32 s%d, s%d, 200000' % (S_T0, S_T0))
        s('s_memrealtime s[66:67]')
        s('s_waitcnt lgkmcnt(0)')
        s('L_dly:')
        s('s_memrealtime s[68:69]')
        s('s_waitcnt lgkmcnt(0)')
        s('s_sub_u32 s68, s68, s66')
        s('s_cmp_lt_u32 s68, s%d' % S_T0)
        s('s_cbranch_scc1 L_dly')
    s('L_end:')
    s('s_endpgm')
    return s


def main():
    pro = prologue()
    f, fa, fb = lc_role(True)
    q, qa, qb = lc_role(False)
    qo = q_out()
    k, ka, kb = kv_role()
    (p2b, p2f, p2l, p2t), p2a, fl, fi = phase2b(), phase2a(), final(), fin()
    paths = [
        [pro, f, fa, p2a, fl, fi],
        [pro, f, fb, p2b, p2f, p2t, fl, fi],
        [pro, f, fb, p2b, p2l, p2t, fl, fi],
        [pro, q, qa, qo, fi],
        [pro, q, qb, qo, fi],
        [pro, k, ka, p2a, fl, fi],
        [pro, k, kb, p2b, p2f, p2t, fl, fi],
        [pro, k, kb, p2b, p2l, p2t, fl, fi],
    ]
    resolve_waits(paths)
    n = pad_hazards(paths)
    assert pad_hazards(paths) == 0
    body = render([pro, f, fa, fb, k, ka, kb, q, qa, qb, qo, p2l, p2b, p2f, p2t, p2a, fl, fi, slow])
    head = open('cdna_kernels/%s.s.ref' % NAME).read().split('\n')
    head = [l for l in head if l.startswith(';') and '@launch' not in l]
    out = '\n'.join(head) + '''
; @launch grid=(256,1,1) block=(512,1,1) lds=%d
.amdgcn_target "amdgcn-amd-amdhsa--gfx950"
.text
.globl %s_kernel
.p2align 8
.type %s_kernel,@function
%s_kernel:
L_codebeg:
%s
L_codeend:
.section .rodata,"a"
.p2align 6
.amdhsa_kernel %s_kernel
  .amdhsa_next_free_vgpr 256
  .amdhsa_next_free_sgpr 102
  .amdhsa_accum_offset 256
  .amdhsa_group_segment_fixed_size 0
  .amdhsa_kernarg_size 88
  .amdhsa_user_sgpr_count 2
  .amdhsa_user_sgpr_kernarg_segment_ptr 1
  .amdhsa_system_sgpr_workgroup_id_x 1
.end_amdhsa_kernel
''' % (LDS_BYTES, NAME, NAME, NAME, body, NAME)
    if OPT['x_plain'] & 1:
        out = '\n'.join(l.replace(' sc1', '') if 'buffer_store_dwordx4' in l else l for l in out.split('\n'))
    if OPT['x_plain'] & 2:
        out = '\n'.join(l.replace(' sc1', '') if 'buffer_load_dwordx4' in l else l for l in out.split('\n'))
    open(sys.argv[1], 'w').write(out)
    print('wrote %s: %d lines, %d pad states' % (sys.argv[1], out.count('\n'), n))


main()
```

```python
import struct
import sys
from asmlib import Seg, Ins, Wait, GAP, interleave, resolve_waits, pad_hazards, render, vr, sr

NAME = 'parallel_sum__linear_attn_block__dense_activation_gelu__prompt'
OPT = dict(mul=10, fatom=0, tlb=0, kbar=4, kphi=26, kcut=20, qatom=1, batom=1, pkind=1, x_hit=0, gsp=3, eprio=0, aprio=2, aprio2=2, aprio3=0, lb=6, touch=0, kprio=1, plead=4, x_noa=0, x_nopoll=0, x_noflag=0, x_nost=0, x_plain=0, rot2=1, dep=6, noatom=0, diag=0, p1only=0, sa=0, sb=10, clk=0, wg=0)
for a in sys.argv[2:]:
    k, v = a.split('=')
    OPT[k] = v if k == 'st' else int(v)
STAMPS = OPT.get('st', 'en,1,2,3,4,5,6,7,8,9,10').split(',')


def f32(x):
    return '0x%08x' % struct.unpack('<I', struct.pack('<f', x))[0]


XS, WQS, W1S = 896, 2688, 3584
ACT_G = 147456
KV_OFF = 0x900000
FKV_OFF = 0x910000
FL_OFF = 0x911000
FL_G = 896
TS_OFF = 0xA00000
WS_BYTES = 0x10000000
OOB = 0x40000000
R0, R1, R2, MISC = 0, 57344, 114688, 155648
M_ST, M_SY, M_CS, M_R = MISC, MISC + 2048, MISC + 4096, MISC + 7168
LDS_BYTES = 163840
LOG2E = 1.4426950408889634
GC1 = -2.0 * 0.7978845608028654 * LOG2E
GC3 = GC1 * 0.044715
SPIN_LIMIT = 1 << 16

S_WV, S_RW, S_G, S_RB, S_ROLE = 3, 4, 5, 6, 7
SX, SW, SWS, SW2, SWO, SOUT, SB1, SB2, SDBG = 8, 12, 16, 20, 24, 28, 32, 36, 40
S_KA = 44
S_KX, S_KW = 66, 73
S_I2, S_HALF, S_T0, S_T1, S_ONES, S_EPS = 80, 81, 82, 83, 84, 85
S_M0W, S_M0X, S_T3, S_RO, S_H, S_FL = 86, 87, 88, 89, 90, 91
S_HI = 92
S_SPIN, S_T2, S_P, S_LAST, S_PEND, S_L2E = 94, 95, 96, 97, 98, 99
S_PAD = 100
S_B2R, S_QR0, S_RO3, S_QR2, S_A, S_WOR, S_OUTO, S_PL = 66, 67, 68, 69, 70, 71, 72, 73
S_AO = 74

V_L16, V_B2, V_X0, V_X1, V_W, V_CSW, V_CSR = 1, 2, 3, 4, 5, 6, 7
V_SEL, V_CS, V_WA, V_XA, V_EXW, V_EXR, V_ST = 8, 12, 20, 28, 32, 36, 38
V_B1 = 16
V_WB, V_RA = 42, 43
V_POLL, V_PA, V_FLO, V_ONE = 44, 45, 46, 47
V_T = 48
V_ACC, V_X, V_WF = 64, 128, 240
V_B2B, V_BA, V_L16B, V_PL = 3, 4, 12, 13
V_NUM, V_BF, V_AB, V_RES = 16, 48, 128, 192
V_PQ = 80
HND = 49152

slow = Seg('slow')
nspin = [0]


def stamp(s, k):
    if OPT['diag'] and str(k) in STAMPS:
        k = STAMPS.index(str(k))
        s('%s %s' % ('s_memtime' if OPT['diag'] == 2 or OPT['clk'] else 's_memrealtime', sr(S_KA + 2 * k, 2)))


EARLY = ['en', 'ka', 't0', 't1']


def estamp(s, k):
    if OPT['diag'] and k in STAMPS:
        s('%s s[100:101]' % ('s_memtime' if OPT['diag'] == 2 or OPT['clk'] else 's_memrealtime'))
        s('s_waitcnt lgkmcnt(0)')
        s('v_mov_b32 v%d, s100' % (250 + EARLY.index(k)))


class Rebase:
    def __init__(self, regs, base, span):
        self.regs, self.base, self.span = regs, base, span

    def off(self, s, addr):
        if not (self.base <= addr and addr - self.base + self.span <= 65535):
            for r in self.regs:
                s('v_add_u32 v%d, 0x%x, v%d' % (r, (addr - self.base) & 0xffffffff, r))
            self.base = addr
        return addr - self.base


def spin_check(s, vpoll, vexp, vaddr, srd, soff, mask):
    if OPT['x_nopoll'] and srd != SDBG:
        return
    k = nspin[0]
    nspin[0] += 1
    s('v_cmp_ge_u32 vcc, v%d, v%d' % (vpoll, vexp))
    s('s_andn2_b32 s%d, 0x%x, vcc_lo' % (S_T2, mask))
    s('s_cbranch_scc1 L_slow%d' % k)
    s('L_ret%d:' % k)
    slow('L_slow%d:' % k)
    slow('s_add_u32 s%d, s%d, 1' % (S_SPIN, S_SPIN))
    slow('s_cmp_gt_u32 s%d, 0x%x' % (S_SPIN, SPIN_LIMIT))
    slow('s_cbranch_scc1 L_ret%d' % k)
    slow('buffer_load_dword v%d, v%d, %s, %s offen sc1' % (vpoll, vaddr, sr(srd, 4), soff))
    slow('s_waitcnt vmcnt(0)')
    slow('v_cmp_ge_u32 vcc, v%d, v%d' % (vpoll, vexp))
    slow('s_nop 1')
    slow('s_andn2_b32 s%d, 0x%x, vcc_lo' % (S_T2, mask))
    slow('s_cbranch_scc1 L_slow%d' % k)
    slow('s_branch L_ret%d' % k)


def poll_base(s):
    s('s_lshr_b32 s%d, s%d, 1' % (S_PL, S_I2))
    s('s_lshl2_add_u32 s%d, s%d, s%d' % (S_PL, S_PL, S_RW))
    s('s_mul_i32 s%d, s%d, %d' % (S_PL, S_PL, FL_G))
    s('s_add_u32 s%d, s%d, 0x%x' % (S_PL, S_PL, FL_OFF))
    s('v_cmp_gt_u32 vcc, 32, v%d' % V_L16)
    s('v_lshlrev_b32 v%d, 3, v%d' % (V_PL, V_L16))
    s('v_cndmask_b32 v%d, v%d, v%d, vcc' % (V_PL, V_FLO, V_PL))


def poll_async(s, k):
    s('buffer_load_dword v%d, v%d, %s, s%d offen offset:%d sc1' % (V_POLL, V_PL, sr(SWS, 4), S_PL, k * 256), ('poll', k))


def stage_check(s, k, miss=None, sync=False):
    if OPT['x_nopoll']:
        return
    j = nspin[0]
    nspin[0] += 1
    mask = 3 if k < 3 else 1
    if sync:
        s('s_branch L_slow%d' % j)
    else:
        s.wait(vm=[('poll', k)])
        s('v_cmp_ne_u32 vcc, 0, v%d' % V_POLL)
        s('s_andn2_b32 s%d, %d, vcc_lo' % (S_T2, mask))
        if miss:
            s('s_cbranch_scc1 %s' % miss)
            return
        s('s_cbranch_scc1 L_slow%d' % j)
    s('L_ret%d:' % j)
    slow('L_slow%d:' % j)
    slow('s_add_u32 s%d, s%d, 1' % (S_SPIN, S_SPIN))
    slow('s_cmp_gt_u32 s%d, 0x%x' % (S_SPIN, SPIN_LIMIT))
    slow('s_cbranch_scc1 L_ret%d' % j)
    slow('buffer_load_dword v%d, v%d, %s, s%d offen offset:%d sc1' % (V_POLL, V_PL, sr(SWS, 4), S_PL, k * 256))
    slow('s_waitcnt vmcnt(0)')
    slow('v_cmp_ne_u32 vcc, 0, v%d' % V_POLL)
    slow('s_nop 1')
    slow('s_andn2_b32 s%d, %d, vcc_lo' % (S_T2, mask))
    slow('s_cbranch_scc1 L_slow%d' % j)
    slow('s_branch L_ret%d' % j)


def poll_check(s, k, n, sync=False, atomic=False):
    j = nspin[0]
    nspin[0] += 1
    if OPT['x_nopoll']:
        return
    if sync:
        s('s_branch L_slow%d' % j)
    else:
        s.wait(vm=[('poll', k)])
        s('v_readfirstlane_b32 s%d, v%d' % (S_T2, V_POLL))
        s('s_cmp_lt_u32 s%d, %d' % (S_T2, n))
        s('s_cbranch_scc1 L_slow%d' % j)
    s('L_ret%d:' % j)
    slow('L_slow%d:' % j)
    slow('s_add_u32 s%d, s%d, 1' % (S_SPIN, S_SPIN))
    slow('s_cmp_gt_u32 s%d, 0x%x' % (S_SPIN, SPIN_LIMIT))
    slow('s_cbranch_scc1 L_ret%d' % j)
    if atomic:
        slow('v_mov_b32 v%d, 0' % V_POLL)
        slow('buffer_atomic_add v%d, v%d, %s, s%d offen offset:%d sc0 sc1' % (V_POLL, V_FLO, sr(SWS, 4), S_PL, k * 128))
        slow('s_waitcnt vmcnt(0)')
        slow('v_readfirstlane_b32 s%d, v%d' % (S_T2, V_POLL))
        slow('s_nop 0')
    else:
        slow('s_add_u32 s%d, s%d, %d' % (S_T2, S_PL, k * 128))
        slow('s_buffer_load_dword s%d, %s, s%d glc' % (S_T2, sr(SWS, 4), S_T2))
        slow('s_waitcnt lgkmcnt(0)')
    slow('s_cmp_lt_u32 s%d, %d' % (S_T2, n))
    slow('s_cbranch_scc1 L_slow%d' % j)
    slow('s_branch L_ret%d' % j)


def srd(s, d, ka, nbytes):
    s('s_mov_b32 s%d, s%d' % (d, ka))
    s('s_and_b32 s%d, s%d, 0xffff' % (d + 1, ka + 1))
    s('s_mov_b32 s%d, 0x%x' % (d + 2, nbytes))
    s('s_mov_b32 s%d, 0x20000' % (d + 3))


def prologue():
    s = Seg('pro')
    s('s_cmp_ge_u32 s2, 256')
    s('s_cbranch_scc1 L_end')
    estamp(s, 'en')
    s('s_load_dwordx16 s[44:59], s[0:1], 0')
    s('s_load_dwordx4 s[60:63], s[0:1], 64')
    s('s_load_dwordx2 s[64:65], s[0:1], 80')
    s('v_readfirstlane_b32 s%d, v0' % S_WV)
    s('s_getpc_b64 s[82:83]')
    s('s_lshr_b32 s%d, s%d, 6' % (S_WV, S_WV))
    s('s_lshr_b32 s%d, s2, 3' % S_T2)
    s('s_lshl_b32 s%d, s%d, 11' % (S_P, S_T2))
    s('v_lshl_add_u32 v%d, v0, 2, s%d' % (V_T, S_P))
    s('v_min_u32 v%d, L_codeend-L_codebeg-64, v%d' % (V_T, V_T))
    s('global_load_dword v%d, v%d, s[82:83]' % (V_T + 15, V_T))
    s('s_and_b32 s%d, s%d, 3' % (S_RW, S_WV))
    s('s_lshr_b32 s%d, s%d, 2' % (S_G, S_WV))
    s('s_and_b32 s%d, s%d, 7' % (S_ROLE, S_T2))
    s('s_lshr_b32 s%d, s%d, 3' % (S_T2, S_T2))
    s('s_and_b32 s%d, s2, 1' % S_HALF)
    s('s_and_b32 s%d, s2, 7' % S_P)
    s('s_lshl2_add_u32 s%d, s%d, s%d' % (S_I2, S_P, S_T2))
    s('s_lshr_b32 s%d, s%d, 1' % (S_P, S_P))
    s('s_lshl2_add_u32 s%d, s%d, s%d' % (S_RB, S_P, S_T2))
    s('s_lshl1_add_u32 s%d, s%d, s%d' % (S_T2, S_T2, S_ROLE))
    s('s_add_u32 s%d, s%d, s%d' % (S_T2, S_T2, S_P))
    s('s_mul_i32 s%d, s%d, 3' % (S_P, S_HALF))
    s('s_add_u32 s%d, s%d, s%d' % (S_T2, S_T2, S_P))
    for _ in range(2):
        s('s_cmp_ge_u32 s%d, 7' % S_T2)
        s('s_cselect_b32 s%d, 7, 0' % S_P)
        s('s_sub_u32 s%d, s%d, s%d' % (S_T2, S_T2, S_P))
    s('s_cmp_lt_u32 s%d, 4' % S_ROLE)
    s('s_mov_b32 s%d, %d' % (S_LAST, WQS))
    s('s_cselect_b32 s%d, %d, s%d' % (S_LAST, W1S, S_LAST))
    s('s_lshl_b32 s%d, s%d, 6' % (S_PEND, S_LAST))
    s('s_mul_i32 s%d, s%d, %d' % (S_P, S_RB, 128 * XS))
    for c in range(7):
        s('s_lshl_b32 s%d, s%d, 7' % (S_KX + c, S_T2))
        s('s_add_u32 s%d, s%d, s%d' % (S_KX + c, S_KX + c, S_P))
        s('s_mul_i32 s%d, s%d, s%d' % (S_KW + c, S_T2, S_PEND))
        if c < 6:
            s('s_add_u32 s%d, s%d, 1' % (S_T2, S_T2))
            s('s_cmp_eq_u32 s%d, 7' % S_T2)
            s('s_cselect_b32 s%d, 0, s%d' % (S_T2, S_T2))
    s('s_lshl_b32 s%d, s%d, 11' % (S_M0W, S_RW))
    s('s_lshl_b32 s%d, s%d, 11' % (S_M0X, S_WV))
    T = V_T
    s('v_and_b32 v%d, 63, v0' % T)
    s('v_lshlrev_b32 v%d, 4, v%d' % (V_L16, T))
    s('v_lshrrev_b32 v%d, 3, v%d' % (T + 1, T))
    s('v_and_b32 v%d, 7, v%d' % (T + 2, T))
    s('v_lshrrev_b32 v%d, 4, v%d' % (T + 3, T))
    s('s_lshl_b32 s%d, s%d, 4' % (S_T2, S_WV))
    s('v_add_u32 v%d, s%d, v%d' % (T + 5, S_T2, T + 1))
    s('v_mul_u32_u24 v%d, %d, v%d' % (T + 5, XS, T + 5))
    s('v_xor_b32 v%d, v%d, v%d' % (T + 6, T + 2, T + 3))
    s('v_lshl_add_u32 v%d, v%d, 4, v%d' % (V_X0, T + 6, T + 5))
    s('v_xor_b32 v%d, 64, v%d' % (V_X1, V_X0))
    s('v_add_u32 v%d, %d, v%d' % (V_X1, 8 * XS - 1024, V_X1))
    s('v_and_b32 v%d, 1, v%d' % (T + 7, T + 3))
    s('v_lshlrev_b32 v%d, 2, v%d' % (T + 4, T + 7))
    s('v_xor_b32 v%d, v%d, v%d' % (T + 4, T + 2, T + 4))
    s('v_lshlrev_b32 v%d, 4, v%d' % (T + 4, T + 4))
    s('v_mul_u32_u24 v%d, %d, v%d' % (V_B2, XS, T + 1))
    s('v_add_u32 v%d, v%d, v%d' % (V_B2, V_B2, T + 4))
    s('s_waitcnt lgkmcnt(0)')
    estamp(s, 'ka')
    srd(s, SX, 44, 2048 * XS)
    s('s_cmp_lt_u32 s%d, 4' % S_ROLE)
    s('s_cselect_b32 s%d, s52, s46' % SW)
    s('s_cselect_b32 s%d, s53, s47' % (SW + 1))
    s('s_mul_i32 s%d, s%d, 448' % (SW + 2, S_LAST))
    s('s_and_b32 s%d, s%d, 0xffff' % (SW + 1, SW + 1))
    s('s_mov_b32 s%d, 0x20000' % (SW + 3))
    srd(s, SWS, 64, WS_BYTES)
    srd(s, SB1, 54, 1792 * 2)
    s('s_cmp_ge_u32 s%d, 7' % S_ROLE)
    s('s_cbranch_scc1 L_q')
    s('s_cmp_ge_u32 s%d, 4' % S_ROLE)
    s('s_cbranch_scc1 L_kv')
    return s


def late_setup(s, kv):
    T = V_T
    srd(s, SW2, 56, 1792 * XS)
    srd(s, SWO, 48, 448 * XS)
    srd(s, SOUT, 60, 2048 * XS)
    srd(s, SB2, 58, 448 * 2)
    srd(s, SDBG, 62, 256)
    stamp(s, 0)
    for k in EARLY:
        if OPT['diag'] and k in STAMPS:
            s('v_readfirstlane_b32 s%d, v%d' % (S_KA + 2 * STAMPS.index(k), 250 + EARLY.index(k)))
    s('s_mov_b32 s%d, 0x3f803f80' % S_ONES)
    s('s_mov_b32 s%d, %s' % (S_EPS, f32(1e-6)))
    s('s_mov_b32 s%d, %s' % (S_L2E, f32(LOG2E)))
    s('s_mov_b32 s%d, 0' % S_HI)
    s('s_mov_b32 s%d, -1' % (S_HI + 1))
    s('s_mov_b32 s%d, 0xf0000000' % S_PAD)
    s('s_mov_b32 s%d, 0xf0000000' % (S_PAD + 1))
    s('s_mov_b32 s%d, 0' % S_SPIN)
    s('v_and_b32 v%d, 31, v%d' % (T + 8, T))
    s('v_lshrrev_b32 v%d, 5, v%d' % (T + 9, T))
    s('v_bfe_u32 v%d, v%d, 2, 2' % (T + 10, T))
    s('v_and_b32 v%d, 3, v%d' % (T + 11, T))
    s('s_mov_b32 s%d, s%d' % (S_T0, S_RW))
    s('s_lshl_b32 s%d, s%d, 1' % (S_T1, S_T0))
    s('v_add_u32 v%d, s%d, v%d' % (T + 12, S_T1, T + 9))
    s('v_bfe_u32 v%d, v%d, 1, 3' % (T + 13, T))
    s('v_xor_b32 v%d, v%d, v%d' % (T + 12, T + 12, T + 13))
    s('s_lshl_b32 s%d, s%d, 5' % (S_T1, S_RW))
    s('v_add_u32 v%d, s%d, v%d' % (T + 13, S_T1, T + 8))
    s('v_lshlrev_b32 v%d, 7, v%d' % (V_XA, T + 13))
    s('v_lshl_add_u32 v%d, v%d, 4, v%d' % (V_XA, T + 12, V_XA))
    for j in range(1, 4):
        s('v_xor_b32 v%d, %d, v%d' % (V_XA + j, j << 5, V_XA))
    s('s_lshl_b32 s%d, s%d, 4' % (S_T1, S_T0))
    s('v_lshl_add_u32 v%d, v%d, 3, v%d' % (T + 12, T + 9, T + 10))
    s('v_add_u32 v%d, s%d, v%d' % (T + 12, S_T1, T + 12))
    s('v_lshl_add_u32 v%d, v%d, 2, v%d' % (T + 14, T + 7, T + 11))
    s('v_and_b32 v%d, 1, v%d' % (T + 5, T + 10))
    s('v_mov_b32 v%d, s%d' % (T + 6, S_ONES))
    s('v_cmp_eq_u32 vcc, v%d, v%d' % (T + 5, T + 7))
    s('v_cndmask_b32 v%d, 0, v%d, vcc' % (V_SEL, T + 6))
    for j in range(1, 4):
        s('v_mov_b32 v%d, v%d' % (V_SEL + j, V_SEL))
    s('s_lshl_b32 s%d, s%d, %d' % (S_T1, S_G, 10 if kv else 9))
    s('s_add_u32 s%d, s%d, %d' % (S_T1, S_T1, M_CS))
    s('v_lshl_add_u32 v%d, v%d, 4, s%d' % (V_CSR, T + 8, S_T1))
    s('s_lshl_b32 s%d, s%d, 2' % (S_T1, S_RW))
    s('v_add_u32 v%d, s%d, v%d' % (V_CSW, S_T1, V_CSR))
    for j in range(4):
        s('v_mov_b32 v%d, 0' % (V_ST + j))
    s('v_mov_b32 v%d, 0' % (V_EXW + 1))
    s('v_mov_b32 v%d, 0' % (V_EXW + 3))
    s('v_mov_b32 v%d, 1' % V_ONE)
    s('v_mov_b32 v%d, 0x%x' % (V_FLO, OOB))
    s('v_cmp_eq_u32 vcc, 0, v%d' % T)
    s('v_cndmask_b32 v%d, v%d, 0, vcc' % (V_FLO, V_FLO))
    s('s_lshl2_add_u32 s%d, s%d, %d' % (S_T1, S_WV, M_SY))
    s('v_mov_b32 v%d, s%d' % (V_PA, S_T1))
    s('ds_write_b32 v%d, v%d' % (V_PA, V_ST))
    if kv:
        for k in (32, 128, 160, 192, 224):
            s('ds_write_b32 v%d, v%d offset:%d' % (V_PA, V_ST, k))
    s('v_lshlrev_b32 v%d, 4, v%d' % (V_EXR, T + 13))
    s('v_add_u32 v%d, %d, v%d' % (V_EXR, M_ST, V_EXR))
    s('v_lshl_add_u32 v%d, v%d, 3, v%d' % (V_EXR + 1, T + 9, V_EXR))
    s('s_lshl1_add_u32 s%d, s%d, s%d' % (S_T1, S_I2, S_ROLE))
    s('s_and_b32 s%d, s%d, 3' % (S_RO, S_T1))
    s('s_and_b32 s%d, s%d, 4' % (S_T1, S_T1))
    s('s_lshl2_add_u32 s%d, s%d, s%d' % (S_RO, S_T1, S_RO))
    if not OPT['rot2']:
        s('s_mov_b32 s%d, 0' % S_RO)
    s('s_lshl2_add_u32 s%d, s%d, s%d' % (S_H, S_RB, S_RW))
    s('s_mul_i32 s%d, s%d, %d' % (S_H, S_H, ACT_G))
    s('s_mul_i32 s%d, s%d, %d' % (S_FL, S_RB, 4 * FL_G))
    s('s_add_u32 s%d, s%d, 0x%x' % (S_FL, S_FL, FL_OFF))


def tlb_warm(s):
    if not OPT['tlb']:
        return
    T = V_T
    s('s_cmp_eq_u32 s%d, 0' % S_WV)
    s('s_cselect_b32 s%d, 128, 0x%x' % (S_T1, OOB))
    for r in (SDBG, SW2, SWO, SB2, SOUT):
        s('buffer_load_dword v%d, v%d, %s, s%d offen' % (T + 15, V_FLO, sr(r, 4), S_T1))
    s('v_lshlrev_b32 v%d, 17, v%d' % (T + 5, V_L16))
    s('v_min_u32 v%d, 0x%x, v%d' % (T + 5, 0x9f0000, T + 5))
    s('buffer_load_dword v%d, v%d, %s, s%d offen' % (T + 15, T + 5, sr(SWS, 4), S_T1))


def dma_x(s, c, addr, tag):
    s('s_add_u32 m0, s%d, %d' % (S_M0X, addr))
    s('buffer_load_dwordx4 v%d, %s, s%d offen lds' % (V_X0, sr(SX, 4), S_KX + c), tag)
    s('buffer_load_dwordx4 v%d, %s, s%d offen offset:1024 lds' % (V_X1, sr(SX, 4), S_KX + c), tag)


def dma_w(s, m0base, c, addr, tag):
    s('s_add_u32 m0, s%d, %d' % (m0base, addr))
    s('buffer_load_dwordx4 v%d, %s, s%d offen lds' % (V_W, sr(SW, 4), S_KW + c), tag)
    s('buffer_load_dwordx4 v%d, %s, s%d offen offset:1024 lds' % (V_WB, sr(SW, 4), S_KW + c), tag)


def groups(z):
    out, cur = [], []
    for i in z:
        cur.append(i)
        if i.kind == 'vmem':
            out.append(cur)
            cur = []
    if cur:
        out.append(cur)
    return out


def mix(main, grp, lo=0.0, hi=1.0):
    main = [i for i in main if i is not GAP]
    out, k, n = [], 0, len(main)
    for idx, i in enumerate(main):
        while k < len(grp) and idx >= n * (lo + (hi - lo) * k / len(grp)):
            out.extend(grp[k])
            k += 1
        out.append(i)
    for g in grp[k:]:
        out.extend(g)
    return out


def barrier(z, vm=None, name=None):
    if name:
        stamp(z, name + 'a')
    z.wait(vm=vm, lgkm='all')
    if name:
        stamp(z, name + 'b')
    z('s_barrier')


BLK = [0, 4, 1, 5, 2, 6, 3]


def unit_ks(u):
    return 4 * BLK[u >> 2] + (u & 3)


def unit_loc(u):
    u %= 11
    return (S_QR2, 1, u * 2048) if u < 5 else (S_QR0, 0, (u - 5) * 2048)


def p2_setup(s):
    s('s_lshl_b32 s%d, s%d, 7' % (S_T0, S_ROLE))
    s('s_mul_i32 s%d, s%d, %d' % (S_B2R, S_RW, 448 * XS))
    s('s_add_u32 s%d, s%d, s%d' % (S_B2R, S_B2R, S_T0))
    s('s_mul_i32 s%d, s%d, %d' % (S_WOR, S_RW, 112 * XS))
    s('s_add_u32 s%d, s%d, s%d' % (S_WOR, S_WOR, S_T0))
    s('s_mul_i32 s%d, s%d, %d' % (S_OUTO, S_I2, 64 * XS))
    s('s_add_u32 s%d, s%d, s%d' % (S_OUTO, S_OUTO, S_T0))
    s('s_mul_i32 s%d, s%d, 12288' % (S_QR0, S_RW))
    s('s_lshr_b32 s%d, s%d, 2' % (S_RO3, S_RO))
    s('s_or_b32 s%d, s%d, s%d' % (S_RO3, S_RO3, S_RO))
    s('s_and_b32 s%d, s%d, 7' % (S_RO3, S_RO3))
    s('s_mul_i32 s%d, s%d, 10240' % (S_QR2, S_RW))
    s('s_add_u32 s%d, s%d, %d' % (S_QR2, S_QR2, R2))
    s('s_mul_i32 s%d, s%d, %d' % (S_A, S_I2, 2 * ACT_G))
    s('v_add_u32 v%d, %d, v%d' % (V_B2B, 8 * XS - 1024, V_B2))


def touch(s, t):
    if not OPT['touch']:
        return
    s('s_and_b32 s%d, s2, 0xf8' % S_T2)
    s('s_add_u32 s%d, s%d, s%d' % (S_T2, S_T2, S_WV))
    s('v_min_u32 v%d, %d, v%d' % (t, 48 * 16, V_L16))
    s('s_mul_i32 s%d, s%d, %d' % (S_T3, S_T2, 49 * 128))
    s('v_lshlrev_b32 v%d, 3, v%d' % (t, t))
    s('buffer_load_dword v%d, v%d, %s, s%d offen' % (t + 1, t, sr(SW2, 4), S_T3))
    s('v_min_u32 v%d, %d, v%d' % (t, 12 * 128, t))
    s('s_mul_i32 s%d, s%d, %d' % (S_T3, S_T2, 13 * 128))
    s('buffer_load_dword v%d, v%d, %s, s%d offen' % (t + 1, t, sr(SWO, 4), S_T3))


def ks_dyn(s, dst, u):
    if u < 24:
        s('s_xor_b32 s%d, s%d, %d' % (dst, S_RO, unit_ks(u)))
    else:
        s('s_and_b32 s%d, s%d, 3' % (dst, S_RO))
        s('s_xor_b32 s%d, s%d, %d' % (dst, dst, unit_ks(u)))


def dma_b2(s, u):
    base, _, off = unit_loc(u)
    if u < 28:
        ks_dyn(s, S_T3, u)
        if OPT['x_hit'] & 2:
            s('s_and_b32 s%d, s%d, 7' % (S_T3, S_T3))
        s('s_add_u32 m0, s%d, %d' % (base, off))
        s('s_mul_i32 s%d, s%d, %d' % (S_T3, S_T3, 16 * XS))
        s('s_add_u32 s%d, s%d, s%d' % (S_T3, S_T3, S_B2R))
    else:
        s('s_xor_b32 s%d, s%d, %d' % (S_T3, S_RO3, u - 28))
        s('s_and_b32 s%d, s%d, 1' % (S_T1, S_T3))
        s('s_mul_i32 s%d, s%d, 7' % (S_T3, S_T3))
        s('s_add_u32 s%d, s%d, s%d' % (S_T3, S_T3, S_T1))
        s('s_add_u32 m0, s%d, %d' % (base, off))
        s('s_mul_i32 s%d, s%d, %d' % (S_T3, S_T3, 2 * XS))
        s('s_add_u32 s%d, s%d, s%d' % (S_T3, S_T3, S_WOR))
    w = SW2 if u < 28 else SWO
    s('buffer_load_dwordx4 v%d, %s, s%d offen lds' % (V_B2, sr(w, 4), S_T3), ('b', u))
    s('buffer_load_dwordx4 v%d, %s, s%d offen offset:1024 lds' % (V_B2B, sr(w, 4), S_T3), ('b', u))


def sync_arrive(s, k):
    s('ds_write_b32 v%d, v%d offset:%d' % (V_PA, V_ONE, k * 32))


def sync_wait(s, k, nw, T):
    j = nspin[0]
    nspin[0] += 1
    s('v_mov_b32 v%d, %d' % (T + 8, M_SY))
    s('L_sy%d:' % j)
    for h in range(nw // 4):
        s('ds_read_b128 %s, v%d offset:%d' % (vr(T + 4 * h, 4), T + 8, k * 32 + h * 16))
    s('s_add_u32 s%d, s%d, 1' % (S_SPIN, S_SPIN))
    s('s_cmp_gt_u32 s%d, 0x%x' % (S_SPIN, SPIN_LIMIT))
    s('s_cbranch_scc1 L_sz%d' % j)
    s.wait(lgkm='all')
    for h in range(1, nw - 1, 2):
        s('v_and_b32 v%d, v%d, v%d' % (T + h, T + h, T + h + 1))
    for h in range(1, nw, 2):
        s('v_and_b32 v%d, v%d, v%d' % (T, T, T + h))
    s('v_readfirstlane_b32 s%d, v%d' % (S_T2, T))
    s('s_cmp_lg_u32 s%d, 1' % S_T2)
    s('s_cbranch_scc1 L_sy%d' % j)
    s('L_sz%d:' % j)
    s.wait(lgkm='all')


def flag(s, off):
    if OPT['fatom']:
        s('buffer_atomic_add v%d, v%d, %s, s%d offen offset:%d sc1' % (V_ONE, V_FLO, sr(SWS, 4), S_FL, off))
    else:
        s('buffer_store_dword v%d, v%d, %s, s%d offen offset:%d sc1' % (V_ONE, V_FLO, sr(SWS, 4), S_FL, off))


def f0_load(s):
    s('buffer_load_dword v%d, v%d, %s, 0 offen sc1' % (V_POLL, V_FLO, sr(SDBG, 4)), 'f0')


def f0_check(s):
    s('v_mov_b32 v%d, 32' % (V_T + 15))
    stamp(s, 'f0a')
    s.wait(vm='f0')
    stamp(s, 'f0b')
    spin_check(s, V_POLL, V_T + 15, V_FLO, SDBG, '0', 1)


def poll_early(s):
    poll_base(s)
    poll_async(s, 0)


def xreg(c, j):
    return V_X + 16 * c + 4 * j


def dots(s, c):
    for j in range(4):
        for r in range(4):
            x = xreg(c, j) + r
            s('v_dot2c_f32_bf16 v%d, s%d, v%d' % (V_ST + (r & 1), S_ONES, x))
            s('v_dot2c_f32_bf16 v%d, v%d, v%d' % (V_ST + 2 + (r & 1), x, x))


def stats_write(s):
    s('v_add_f32 v%d, v%d, v%d' % (V_ST, V_ST, V_ST + 1))
    s('v_add_f32 v%d, v%d, v%d' % (V_ST + 1, V_ST + 2, V_ST + 3))
    s('ds_write_b64 v%d, %s' % (V_EXR + 1, vr(V_ST, 2)))


def stats_final(kind):
    s, T = Seg(), V_T
    s('ds_read_b128 %s, v%d' % (vr(T, 4), V_EXR), 'st')
    s.append(GAP)
    s.wait(lgkm='st')
    s('v_add_f32 v%d, v%d, v%d' % (T, T, T + 2))
    s('v_add_f32 v%d, v%d, v%d' % (T + 1, T + 1, T + 3))
    s('v_mul_f32 v%d, %s, v%d' % (T, f32(1.0 / 448), T))
    s('v_mul_f32 v%d, %s, v%d' % (T + 1, f32(1.0 / 448), T + 1))
    s('v_fma_f32 v%d, -v%d, v%d, v%d' % (T + 1, T, T, T + 1))
    s('v_max_f32 v%d, 0, v%d' % (T + 1, T + 1))
    s('v_cvt_pk_bf16_f32 v%d, v%d, v%d' % (T + 1, T + 1, T + 1))
    s('v_lshlrev_b32 v%d, 16, v%d' % (T + 1, T + 1))
    s('v_add_f32 v%d, %s, v%d' % (T + 1, f32(1e-5), T + 1))
    s('v_cvt_pk_bf16_f32 v%d, v%d, v%d' % (T + 1, T + 1, T + 1))
    s('v_lshlrev_b32 v%d, 16, v%d' % (T + 1, T + 1))
    s('v_sqrt_f32 v%d, v%d' % (T + 1, T + 1))
    s('v_cvt_pk_bf16_f32 v%d, -v%d, -v%d' % (T, T, T))
    s('v_cvt_pk_bf16_f32 v%d, v%d, 0' % (T + 1, T + 1))
    s('v_cndmask_b32 v%d, v%d, 0, %s' % (V_EXR, T, sr(S_HI, 2)))
    s('v_lshlrev_b32 v%d, 16, v%d' % (V_ST + 2, T + 1))
    s('v_rcp_f32 v%d, v%d' % (V_ST + 3, V_ST + 2))
    s('v_cndmask_b32 v%d, v%d, 0, %s' % (V_EXR + 1, T + 1, sr(S_HI, 2)))
    if kind == 'gelu':
        s('v_mul_f32 v%d, %s, v%d' % (V_ST, f32(GC1), V_ST + 3))
        s('v_mul_f32 v%d, v%d, v%d' % (T, V_ST + 3, V_ST + 3))
        s('v_mul_f32 v%d, %s, v%d' % (V_ST + 1, f32(GC3), V_ST + 3))
        s('v_mul_f32 v%d, v%d, v%d' % (V_ST + 1, T, V_ST + 1))
    elif kind == 'phi':
        s('v_mul_f32 v%d, s%d, v%d' % (V_ST, S_L2E, V_ST + 3))
    else:
        s('s_lshl_b32 s%d, s%d, 7' % (S_T0, S_WV))
        s('s_add_u32 s%d, s%d, %d' % (S_T0, S_T0, M_R))
        s('v_bfe_u32 v%d, v%d, 2, 7' % (T, V_L16))
        s('v_add_u32 v%d, s%d, v%d' % (T, S_T0, T))
        s('ds_write_b32 v%d, v%d' % (T, V_ST + 3))
        s('v_lshrrev_b32 v%d, 9, v%d' % (V_RA, V_L16))
        s('v_lshl_add_u32 v%d, v%d, 4, s%d' % (V_RA, V_RA, S_T0))
        s('v_mov_b32 v%d, %d' % (T, M_SY + 128))
        s('v_cndmask_b32 v%d, v%d, v%d, %s' % (V_X1, V_RA, T, sr(S_PAD, 2)))
    return s


def ext_parts(acc, off, exw, swap, bias=None, T=V_T + 8):
    r, b, m = Seg(), Seg(), Seg()
    tag = ('cs', id(r))
    r('ds_read_b128 %s, v%d offset:%d' % (vr(T, 4), V_CSR, off), tag)
    b.wait(lgkm=[tag])
    b('v_add_f32 v%d, v%d, v%d' % (T, T, T + 1))
    b('v_add_f32 v%d, v%d, v%d' % (T + 2, T + 2, T + 3))
    b('v_add_f32 v%d, v%d, v%d' % (T, T, T + 2))
    b('v_cvt_pk_bf16_f32 v%d, v%d, v%d' % (T + 1, T, T))
    b('v_lshlrev_b32 v%d, 16, v%d' % (T + 1, T + 1))
    b('v_sub_f32 v%d, v%d, v%d' % (T + 1, T, T + 1))
    b('v_cvt_pk_bf16_f32 v%d, v%d, v%d' % (exw, T, T + 1))
    if bias is not None:
        r('v_mov_b32 v%d, v%d' % (exw + 1, bias))
    x, y = (V_EXR, exw) if swap else (exw, V_EXR)
    m('v_mfma_f32_32x32x8_bf16 %s, %s, %s, %s' % (vr(acc, 16), vr(x, 2), vr(y, 2), vr(acc, 16)))
    KEEP.append(r)
    return r, b, m


KEEP = []


def head(parts, stats=None):
    st = [i for i in stats if i is not GAP] if stats is not None else []
    out = st[:1]
    for p in parts:
        out += p[0]
    out += st[1:]
    for p in parts:
        out += p[1]
    for p in parts:
        out += p[2]
    return out


def epi_rowlane(kind, acc, tag, handoff=False, keep=None):
    s, T = Seg(), V_T
    for grp in range(4):
        a = [acc + 4 * grp + e for e in range(4)]
        t = [T + e for e in range(4)]
        if kind == 'gelu':
            for e in range(4):
                s('v_mul_f32 v%d, v%d, v%d' % (t[e], a[e], a[e]))
            for e in range(4):
                s('v_fma_f32 v%d, v%d, v%d, v%d' % (t[e], t[e], V_ST + 1, V_ST))
            for e in range(4):
                s('v_mul_f32 v%d, v%d, v%d' % (t[e], a[e], t[e]))
            for e in range(4):
                s('v_exp_f32 v%d, v%d' % (t[e], t[e]))
            for e in range(4):
                s('v_fma_f32 v%d, v%d, v%d, v%d' % (t[e], t[e], V_ST + 2, V_ST + 2))
            for e in range(4):
                s('v_rcp_f32 v%d, v%d' % (t[e], t[e]))
            for e in range(4):
                s('v_mul_f32 v%d, v%d, v%d' % (a[e], a[e], t[e]))
        else:
            for e in range(4):
                s('v_mul_f32 v%d, v%d, v%d' % (t[e], a[e], V_ST))
            for e in range(4):
                s('v_exp_f32_e64 v%d, v%d clamp' % (t[e], t[e]))
            for e in range(4):
                s('v_fma_f32 v%d, v%d, v%d, s%d' % (a[e], a[e], V_ST + 3, S_EPS))
            for e in range(4):
                s('v_max_f32 v%d, s%d, v%d' % (a[e], S_EPS, a[e]))
            for e in range(4):
                s('v_add_f32 v%d, v%d, v%d' % (a[e], a[e], t[e]))
        p = acc + 8 * (grp >> 1) + 2 * (grp & 1) if keep is None else keep + 2 * grp
        s('v_cvt_pk_bf16_f32 v%d, v%d, v%d' % (p, a[0], a[1]))
        s('v_cvt_pk_bf16_f32 v%d, v%d, v%d' % (p + 1, a[2], a[3]))
        if kind == 'phi' and grp == 3:
            s('v_cndmask_b32 v%d, v%d, 0, %s' % (p, p, sr(S_HI, 2)))
            s('v_cndmask_b32 v%d, v%d, 0, %s' % (p + 1, p + 1, sr(S_HI, 2)))
        if grp & 1 and keep is None:
            f = grp >> 1
            if handoff:
                s('ds_write_b128 v%d, %s offset:%d' % (V_RA, vr(acc + 8 * f, 4), f * 1024))
                continue
            s('buffer_store_dwordx4 %s, v%d, %s, s%d offen offset:%d sc1' % (vr(acc + 8 * f, 4), V_L16, sr(SWS, 4), S_H, f * 1024), tag)
    return s


XSLOT = [R2, R2 + 16384, R1 + 8192, R1 + 24576, R1 + 40960, R2, R2 + 16384]


def lc_role(ffn):
    kind = 'gelu' if ffn else 'phi'
    nm = 'f' if ffn else 'q'
    s, T = Seg(nm), V_T
    if not ffn:
        s('L_q:')
    if ffn:
        s('s_lshl2_add_u32 s%d, s%d, s%d' % (S_P, S_HALF, S_ROLE))
        s('s_and_b32 s%d, s%d, 1' % (S_T1, S_P))
        s('s_mul_i32 s%d, s%d, 448' % (S_T0, S_P))
        s('s_lshl_b32 s%d, s%d, 6' % (S_PEND, S_T1))
        s('s_add_u32 s%d, s%d, s%d' % (S_T0, S_T0, S_PEND))
    else:
        s('s_mul_i32 s%d, s%d, 448' % (S_T0, S_HALF))
    s('s_lshl_b32 s%d, s%d, 4' % (S_T2, S_RW))
    s('v_add_u32 v%d, s%d, v%d' % (T + 5, S_T2, T + 1))
    s('v_mul_u32_u24 v%d, s%d, v%d' % (T + 5, S_LAST, T + 5))
    s('v_add3_u32 v%d, v%d, v%d, s%d' % (V_W, T + 5, T + 4, S_T0))
    s('v_add_u32 v%d, %d, v%d' % (V_WB, 8 * (W1S if ffn else WQS) - 1024, V_W))
    if not ffn:
        s('s_lshl1_add_u32 s%d, s%d, s%d' % (S_T1, S_RB, S_HALF))
        s('s_mul_i32 s%d, s%d, 5' % (S_T1, S_T1))
        s('s_add_u32 s%d, s%d, s%d' % (S_T1, S_T1, S_WV))
        s('s_lshl_b32 s%d, s%d, 10' % (S_T1, S_T1))
        s('s_add_u32 s%d, s%d, 0x%x' % (S_T1, S_T1, KV_OFF))
        s('s_cmp_lt_u32 s%d, 5' % S_WV)
        s('s_cselect_b32 s%d, s%d, 0x%x' % (S_T1, S_T1, OOB))
        for j in range(4):
            s('v_mov_b32 v%d, 0' % (V_ACC + j))
        s('buffer_store_dwordx4 %s, v%d, %s, s%d offen sc1' % (vr(V_ACC, 4), V_L16, sr(SWS, 4), S_T1))
    s('s_cmp_eq_u32 s%d, 1' % S_G)
    s('s_cbranch_scc1 L_%sb' % nm)
    step = 128 if ffn else 112
    region = [R0, R1, R0, R1]
    acc = V_ACC

    def stream(g):
        z = Seg(nm + 'ab'[g])
        if g:
            z('L_%sb:' % nm)
        xa = Rebase([V_XA + j for j in range(4)], 0, 0)
        wa = Rebase([V_WA + j for j in range(4)], 0, 512)

        def triple(t, c):
            dma_x(t, c, XSLOT[c], ('t', c))
            if g:
                dma_w(t, S_M0W, c, R0 + c * 8192, ('t', c))

        def lc(t, q, c):
            dma_w(t, S_M0W, c, region[q] + c * 8192, ('l', q, c))

        def wread(t, q, c, j):
            o = wa.off(t, region[q] + c * 8192)
            for u in range(2):
                t('ds_read_b64_tr_b16 %s, v%d offset:%d' % (vr(V_WF + 4 * j + 2 * u, 2), V_WA + j, o + u * 512), ('w', q, c, j))

        def xread(t, c, j):
            o = xa.off(t, XSLOT[c])
            t('ds_read_b128 %s, v%d offset:%d' % (vr(xreg(c, j), 4), V_XA + j, o))

        def kstep(q, c, j):
            t = Seg()
            t.wait(lgkm=[('w', q, c, j)])
            first = c == 0 and j == 0
            t('v_mfma_f32_32x32x16_bf16 %s, %s, %s, %s' % (vr(acc, 16), vr(V_WF + 4 * j, 4), vr(xreg(c, j), 4), '0' if first else vr(acc, 16)))
            if j == 0:
                t('v_mfma_f32_16x16x32_bf16 %s, %s, %s, %s' % (vr(V_CS, 4), vr(V_SEL, 4), vr(V_WF + 4 * j, 4), '0' if first else vr(V_CS, 4)))
            if c < 6:
                wread(t, q, c + 1, j)
            return t

        def preread(t, q):
            for j in range(4):
                wread(t, q, 0, j)

        def gemm(t, q, fill=(), extra=None):
            t('s_setprio 1')
            slots = [kstep(q, c, j) for c in range(7) for j in range(4)]
            for k, gi in enumerate(groups(extra) if extra is not None else []):
                slots[1 + OPT['gsp'] * k].extend(gi)
            t.extend(interleave(slots, list(fill), 0, 20))
            t('ds_write_b32 v%d, v%d' % (V_CSW, V_CS))

        def next_col(t, last=False):
            for r in (V_W, V_WB):
                if last and ffn:
                    t('v_add_u32 v%d, s%d, v%d' % (r, S_LAST, r))
                else:
                    t('v_add_u32 v%d, %d, v%d' % (r, step, r))

        def epi(t, q, extra=None, pre=None, handoff=False, hi=0.85, keep=False):
            grp = groups(extra) if extra is not None else []
            t('s_setprio 2')
            t.extend(head([ext_parts(acc, 0, V_EXW, False, V_B1 + q if ffn else None)], pre))
            if not keep:
                t('s_setprio %d' % OPT['eprio'])
            stamp(t, 'x%d' % (2 * q + g + 1))
            for gi in grp[:2]:
                t.extend(gi)
            t.extend(mix(epi_rowlane(kind, acc, ('h', q), handoff, None if ffn else V_PQ + 8 * q), grp[2:], 0.03, hi))
            if ffn:
                t('s_add_u32 s%d, s%d, 4096' % (S_H, S_H))

        def duty(q, chunks, units=(), step_col=True):
            d = Seg()
            if step_col:
                next_col(d, q == 3)
            for k in chunks:
                lc(d, q, k)
            if ffn:
                for u in units:
                    dma_b2(d, u)
            return d

        triple(z, 0)
        estamp(z, 't0')
        z('s_barrier')
        triple(z, 1)
        estamp(z, 't1')
        if ffn:
            z('v_and_b32 v%d, 31, v%d' % (T + 8, T))
            z('v_lshlrev_b32 v%d, 1, v%d' % (T + 8, T + 8))
            for q in range(3):
                z('buffer_load_ushort v%d, v%d, %s, s%d offen offset:%d' % (V_B1 + q, T + 8, sr(SB1, 4), S_T0, q * 128 + g * 64))
            z('s_cmp_eq_u32 s%d, 0' % S_PEND)
            z('s_movk_i32 s%d, -64' % S_T1)
            z('s_movk_i32 s%d, -384' % S_LAST)
            z('s_cselect_b32 s%d, 384, s%d' % (S_T1, S_T1))
            z('s_cselect_b32 s%d, 128, s%d' % (S_LAST, S_LAST))
            if not g:
                z('s_add_u32 s%d, s%d, s%d' % (S_T1, S_T1, S_T0))
                z('buffer_load_ushort v%d, v%d, %s, s%d offen' % (V_B1 + 3, T + 8, sr(SB1, 4), S_T1))
            z('s_mov_b32 s%d, s%d' % (S_T2, S_T0))
        late_setup(z, False)
        tlb_warm(z)
        if ffn:
            z('s_lshl_b32 s%d, s%d, 5' % (S_T2, S_T2))
            z('s_lshr_b32 s%d, s%d, 1' % (S_T1, S_P))
            z('s_add_u32 s%d, s%d, %d' % (S_T0, S_M0W, HND))
            z('v_add_u32 v%d, s%d, v%d' % (V_RA, S_T0, V_L16))
        else:
            z('s_lshl_b32 s%d, s%d, 14' % (S_T2, S_HALF))
            z('s_lshl_b32 s%d, s%d, 1' % (S_T1, S_HALF))
        z('s_add_u32 s%d, s%d, s%d' % (S_H, S_H, S_T2))
        z('s_add_u32 s%d, s%d, %d' % (S_H, S_H, g * 2048 + (0 if ffn else 112 * 1024)))
        z('s_mul_i32 s%d, s%d, %d' % (S_T1, S_T1, FL_G))
        z('s_add_u32 s%d, s%d, s%d' % (S_FL, S_FL, S_T1))
        if ffn:
            z('s_lshl1_add_u32 s%d, s%d, s%d' % (S_FL, S_PEND, S_FL))
        z('s_cmp_eq_u32 s%d, 0' % S_WV)
        z('s_cselect_b32 s%d, s%d, 0x%x' % (S_FL, S_FL, OOB))
        z('v_lshl_add_u32 v%d, v%d, 3, %d' % (T + 5, T + 14, g * (64 if ffn else 56)))
        z('v_lshrrev_b32 v%d, 1, v%d' % (T + 6, T + 10))
        z('v_lshlrev_b32 v%d, 6, v%d' % (T + 6, T + 6))
        z('v_xor_b32 v%d, v%d, v%d' % (T + 5, T + 5, T + 6))
        z('v_lshl_add_u32 v%d, v%d, 7, v%d' % (V_WA, T + 12, T + 5))
        for j in range(1, 4):
            z('v_xor_b32 v%d, %d, v%d' % (V_WA + j, j << 11, V_WA))
        z('s_barrier')
        triple(z, 2)
        if g:
            z('s_setprio 1')
        barrier(z, [('t', 0)], 'pre')
        stamp(z, 1)
        if not ffn and not g:
            z('s_cmp_eq_u32 s%d, 0' % S_WV)
            z('s_cselect_b32 s%d, 0, 0x%x' % (S_T1, OOB))
            z('buffer_atomic_add v%d, v%d, %s, s%d offen sc1' % (V_ONE, V_FLO, sr(SDBG, 4), S_T1))
        for j in range(4):
            if not g:
                wread(z, 0, 0, j)
            xread(z, 0, j)
        triple(z, 3)
        for c in range(7):
            if c < 6:
                barrier(z, [('t', c + 1)], 's%d' % c)
            else:
                z.wait(lgkm='all')
            d = Seg()
            if c < 3:
                triple(d, c + 4)
            if c == 3:
                next_col(d)
            for k in {4: ([], [0]), 5: ([], [1]), 6: ([3], [2])}.get(c, ([], []))[g]:
                lc(d, 1, k)
            if g:
                if c < 6:
                    for j in range(4):
                        xread(z, c + 1, j)
                z.extend(d)
                if c == 6:
                    preread(z, 0)
                dots(z, c)
            else:
                for j in range(4):
                    z.extend(kstep(0, c, j))
                    if c < 6:
                        xread(z, c + 1, j)
                z.extend(d)
        if g:
            stats_write(z)
            barrier(z, [('l', 1, 0)])
        else:
            z('ds_write_b32 v%d, v%d' % (V_CSW, V_CS))
            barrier(z)
        stamp(z, 2)
        if not g:
            d = Seg()
            f0_load(d)
            if ffn:
                p2_setup(d)
            touch(d, V_XA)
            epi(z, 0, d, pre=stats_final(kind))
            preread(z, 1)
            barrier(z, [('l', 1, 3)], 'e1')
            stamp(z, 'h1')
            gemm(z, 1, extra=duty(2, (1, 2, 3, 4)))
            f0_check(z)
            barrier(z, [('h', 0)], 'e2')
            stamp(z, 'h2')
            epi(z, 1)
            preread(z, 2)
            barrier(z, [('l', 2, 4)], 'e3')
            stamp(z, 3)
            if ffn:
                flag(z, 0)
            gemm(z, 2, extra=duty(3, (1, 2, 3, 4)))
            barrier(z, [('h', 1)], 'e4')
            stamp(z, 'h4')
            epi(z, 2)
            if ffn:
                for k in range(4):
                    z('v_xor_b32 v%d, s%d, v%d' % (V_WA + k, S_PEND, V_WA + k))
            preread(z, 3)
            barrier(z, [('l', 3, 4)], 'e5')
            stamp(z, 4)
            d = duty(0, (), (5, 6, 7), False)
            if ffn:
                flag(d, 256)
            gemm(z, 3, extra=d)
            barrier(z, [('h', 2), ('b', 7)], 'e6')
            stamp(z, 5)
            if ffn:
                z('ds_read_b128 %s, v%d' % (vr(V_WF, 4), V_RA), 'hnd')
                z('ds_read_b128 %s, v%d offset:1024' % (vr(V_WF + 4, 4), V_RA), 'hnd')
                z('s_sub_u32 s%d, s%d, 2048' % (S_T0, S_H))
                z('s_cmp_eq_u32 s%d, 0' % S_PEND)
                z('s_cselect_b32 s%d, 0, %d' % (S_T1, 3 * 4096 + 2048))
                z('s_sub_u32 s%d, s%d, s%d' % (S_H, S_H, S_T1))
                d = Seg()
                d.wait(lgkm='hnd')
                for f in range(2):
                    d('buffer_store_dwordx4 %s, v%d, %s, s%d offen offset:%d sc1' % (vr(V_WF + 4 * f, 4), V_L16, sr(SWS, 4), S_T0, f * 1024), 'h5')
                epi(z, 3, d, keep=True)
                z.wait(vm=[('h', 3)])
                sync_arrive(z, 0)
                sync_wait(z, 0, 4, T)
                flag(z, 512)
                stamp(z, 6)
                z('s_branch L_p2a')
            else:
                epi(z, 3)
                z('s_barrier')
                z('s_branch L_qo')
            return z
        d = duty(1, (4, 5, 6), (), False)
        if ffn:
            p2_setup(d)
            dma_b2(d, 0)
        gemm(z, 0, stats_final(kind), d)
        barrier(z, [('l', 1, 6)], 'e1')
        stamp(z, 'h1')
        for q in (1, 2):
            d = duty(q + 1, (0,))
            if q == 1:
                touch(d, V_XA)
            epi(z, q - 1, d)
            preread(z, q)
            barrier(z, [('l', q + 1, 0)], 'e%d' % (2 * q))
            stamp(z, 'h%d' % (2 * q))
            gemm(z, q, extra=duty(q + 1, (5, 6), (2 * q - 1, 2 * q), False))
            barrier(z, [('l', q + 1, 6)], 'e%d' % (2 * q + 1))
            stamp(z, q + 2)
        if ffn:
            d = Seg()
            poll_early(d)
            for u in range(8, 11):
                dma_b2(d, u)
            epi(z, 2, d, handoff=True, hi=1.0)
            barrier(z, None, 'e6')
            z('s_branch L_p2b')
        else:
            epi(z, 2)
            preread(z, 3)
            barrier(z)
            stamp(z, 5)
            gemm(z, 3)
            barrier(z)
            epi(z, 3)
        return z

    return s, stream(0), stream(1)


def q_out():
    s, T = Seg('qo'), V_T
    NUM, KF, RAW = V_X, V_X + 64, V_X + 96
    s('L_qo:')
    stamp(s, 6)
    s('s_lshl3_add_u32 s%d, s%d, s%d' % (S_T0, S_HALF, S_WV))
    s('s_lshl_b32 s%d, s%d, 7' % (S_PL, S_T0))
    s('s_add_u32 s%d, s%d, 0x%x' % (S_PL, S_PL, FKV_OFF))
    s('s_lshl_b32 s%d, s%d, 12' % (S_T0, S_T0))
    s('s_add_u32 s%d, s%d, 0x%x' % (S_T0, S_T0, KV_OFF))
    s('v_lshrrev_b32 v%d, 2, v%d' % (T, V_L16))
    s('s_add_u32 s%d, s%d, %d' % (S_T1, S_M0X, R2))
    s('v_add_u32 v%d, s%d, v%d' % (T + 1, S_T1, V_L16))
    s('s_lshl_b32 s%d, s%d, 11' % (S_T1, S_G))
    s('s_add_u32 s%d, s%d, %d' % (S_T1, S_T1, R2))
    s('v_add_u32 v%d, s%d, v%d' % (T + 2, S_T1, V_L16))
    poll_check(s, 0, 16, sync=True, atomic=OPT['qatom'])
    stamp(s, 7)
    for r in range(16):
        s('buffer_load_dword v%d, v%d, %s, s%d offen offset:%d sc1' % (RAW + r, T, sr(SWS, 4), S_T0, r * 256), ('kv', r >> 3))
    for f in range(2):
        s.wait(vm=[('kv', f)])
        for k in range(4):
            s('v_cvt_pk_bf16_f32 v%d, v%d, v%d' % (RAW + 8 * f + k, RAW + 8 * f + 2 * k, RAW + 8 * f + 2 * k + 1))
        s('ds_write_b128 v%d, %s offset:%d' % (T + 1, vr(RAW + 8 * f, 4), f * 1024))
    barrier(s)
    stamp(s, 8)
    for q in range(4):
        for f in range(2):
            s('ds_read_b128 %s, v%d offset:%d' % (vr(KF + 8 * q + 4 * f, 4), T + 2, q * 4096 + f * 1024), ('kf', q, f))
    for q in range(4):
        for f in range(2):
            s.wait(lgkm=[('kf', q, f)])
            s('v_mfma_f32_32x32x16_bf16 %s, %s, %s, %s' % (vr(NUM + 16 * q, 16), vr(KF + 8 * q + 4 * f, 4), vr(V_PQ + 8 * q + 4 * f, 4), vr(NUM + 16 * q, 16) if f else '0'))
    for p in range(2):
        for q in (2 * p, 2 * p + 1):
            s('v_add_f32 v%d, s%d, v%d' % (T + 4 + 2 * q, S_EPS, NUM + 16 * q + 12))
            s('v_add_f32 v%d, s%d, v%d' % (T + 5 + 2 * q, S_EPS, NUM + 16 * q + 12))
        for q in (2 * p, 2 * p + 1):
            s('v_permlane32_swap_b32 v%d, v%d' % (T + 4 + 2 * q, T + 5 + 2 * q))
        for q in (2 * p, 2 * p + 1):
            s('v_rcp_f32 v%d, v%d' % (T + 5 + 2 * q, T + 5 + 2 * q))
        for q in (2 * p, 2 * p + 1):
            s('v_cndmask_b32 v%d, v%d, 0, %s' % (T + 4 + 2 * q, T + 5 + 2 * q, sr(S_HI, 2)))
        for q in (2 * p, 2 * p + 1):
            n = NUM + 16 * q
            for f in range(2):
                for k in range(8 * f, 8 * f + 8, 2):
                    sel = 0 if k >= 12 else 1
                    s('v_pk_mul_f32 %s, %s, %s op_sel:[0,%d] op_sel_hi:[1,%d]' % (vr(n + k, 2), vr(n + k, 2), vr(T + 4 + 2 * q, 2), sel, sel))
                for k in range(4):
                    s('v_cvt_pk_bf16_f32 v%d, v%d, v%d' % (n + 8 * f + k, n + 8 * f + 2 * k, n + 8 * f + 2 * k + 1))
                s('buffer_store_dwordx4 %s, v%d, %s, s%d offen offset:%d sc1' % (vr(n + 8 * f, 4), V_L16, sr(SWS, 4), S_H, f * 1024), ('o', p))
            s('s_add_u32 s%d, s%d, 4096' % (S_H, S_H))
    stamp(s, 9)
    barrier(s, 'all')
    flag(s, 768)
    flag(s, 768 + FL_G)
    s('s_branch L_fin')
    return s


def kv_slot(n):
    return ((n + 4) % 9) * 16384


def kv_role():
    s, T = Seg('kv'), V_T
    s('L_kv:')
    s('s_mul_i32 s%d, s%d, 3' % (S_P, S_HALF))
    s('s_add_u32 s%d, s%d, s%d' % (S_P, S_P, S_ROLE))
    s('s_sub_u32 s%d, s%d, 4' % (S_P, S_P))
    s('s_lshl_b32 s%d, s%d, 7' % (S_T0, S_P))
    s('s_add_u32 s%d, s%d, %d' % (S_T1, S_T0, XS))
    s('s_lshl_b32 s%d, s%d, 3' % (S_T2, S_WV))
    s('v_add_u32 v%d, s%d, v%d' % (T + 5, S_T2, T + 3))
    s('v_mul_u32_u24 v%d, %d, v%d' % (T + 5, WQS, T + 5))
    s('v_and_b32 v%d, 15, v%d' % (T + 6, T))
    s('v_lshlrev_b32 v%d, 2, v%d' % (T + 8, T + 3))
    s('v_xor_b32 v%d, v%d, v%d' % (T + 6, T + 6, T + 8))
    s('v_lshlrev_b32 v%d, 4, v%d' % (T + 6, T + 6))
    s('v_add3_u32 v%d, v%d, v%d, s%d' % (V_W, T + 5, T + 6, S_T1))
    s('v_add_u32 v%d, %d, v%d' % (V_WB, 4 * WQS - 1024, V_W))

    def item(t, n):
        if n >= 14:
            if n == 14:
                t('v_add_u32 v%d, %d, v%d' % (V_W, XS, V_W))
                t('v_add_u32 v%d, %d, v%d' % (V_WB, XS, V_WB))
            dma_w(t, S_M0X, n - 14, kv_slot(n), ('i', n))
        elif n & 1:
            dma_w(t, S_M0X, n >> 1, kv_slot(n), ('i', n))
        else:
            dma_x(t, n >> 1, kv_slot(n), ('i', n))

    item(s, 0)
    item(s, 1)
    estamp(s, 't0')
    s('s_barrier')
    item(s, 2)
    estamp(s, 't1')
    late_setup(s, True)
    tlb_warm(s)
    s('s_lshl_b32 s%d, s%d, 2' % (S_T1, S_P))
    s('s_lshr_b32 s%d, 0xdb9630, s%d' % (S_LAST, S_T1))
    s('s_and_b32 s%d, s%d, 15' % (S_LAST, S_LAST))
    s('s_lshr_b32 s%d, 0x322333, s%d' % (S_PEND, S_T1))
    s('s_and_b32 s%d, s%d, 15' % (S_PEND, S_PEND))
    s('s_mul_i32 s%d, s%d, 56' % (S_T1, S_LAST))
    s('s_lshl_b32 s%d, s%d, 7' % (S_T0, S_P))
    s('s_sub_u32 s%d, s%d, s%d' % (S_T1, S_T1, S_T0))
    s('s_cmp_eq_u32 s%d, 3' % S_PEND)
    s('s_cselect_b32 s%d, 112, 0' % S_T0)
    s('s_mul_i32 s%d, s%d, s%d' % (S_T0, S_T0, S_G))
    s('s_add_u32 s%d, s%d, s%d' % (S_T1, S_T1, S_T0))
    s('v_min_u32 v%d, 6, v%d' % (T + 14, T + 14))
    s('v_lshl_add_u32 v%d, v%d, 3, s%d' % (T + 5, T + 14, S_T1))
    s('v_lshlrev_b32 v%d, 6, v%d' % (T + 6, T + 10))
    for t in range(2):
        if t:
            s('v_add_u32 v%d, 56, v%d' % (T + 5, T + 5))
        s('v_xor_b32 v%d, v%d, v%d' % (T + 8, T + 5, T + 6))
        s('v_lshl_add_u32 v%d, v%d, 8, v%d' % (V_WA + 4 * t, T + 12, T + 8))
        for j in range(1, 4):
            s('v_xor_b32 v%d, %d, v%d' % (V_WA + 4 * t + j, j << 12, V_WA + 4 * t))
    item(s, 3)
    s('s_cmp_eq_u32 s%d, 1' % S_G)
    s('s_cbranch_scc1 L_kb')

    def body(nt):
        nm = 'ka' if nt == 2 else 'kb'
        b = Seg(nm)
        if nt == 1:
            b('L_kb:')
        xa = Rebase([V_XA + j for j in range(4)], 0, 0)
        wa = Rebase([V_WA + j for j in range(4 * nt)], 0, 1024)

        def witem(q, c):
            return 2 * c + 1 if q == 0 else 14 + c

        DIST = [4 // nt, 4]
        W1 = [V_ACC + 8, V_ACC + 12, V_XA, V_T + 12]

        def wf(q, t, j):
            if q == 1 and t == 1:
                return W1[j]
            return V_WF + 8 * t + 4 * (j % DIST[q])

        def wread(z, q, c, j, ts=None):
            o = wa.off(z, kv_slot(witem(q, c)))
            for t in (range(nt) if ts is None else ts):
                for u in range(2):
                    z('ds_read_b64_tr_b16 %s, v%d offset:%d' % (vr(wf(q, t, j) + 2 * u, 2), V_WA + 4 * t + j, o + u * 1024), ('w', q, c, j, t))

        def xread(z, c, j):
            o = xa.off(z, kv_slot(2 * c))
            z('ds_read_b128 %s, v%d offset:%d' % (vr(xreg(c, j), 4), V_XA + j, o))

        def acc(q, t):
            return V_ACC + 32 * q + 16 * t

        def kstep(q, c, j):
            out = []
            first = c == 0 and j == 0
            dist = DIST[q]
            for t in range(nt):
                z = Seg()
                z.wait(lgkm=[('w', q, c, j, t)])
                z('v_mfma_f32_32x32x16_bf16 %s, %s, %s, %s' % (vr(acc(q, t), 16), vr(xreg(c, j), 4), vr(wf(q, t, j), 4), '0' if first else vr(acc(q, t), 16)))
                if j == 0:
                    z('v_mfma_f32_16x16x32_bf16 %s, %s, %s, %s' % (vr(V_CS + 4 * t, 4), vr(V_SEL, 4), vr(wf(q, t, j), 4), '0' if first else vr(V_CS + 4 * t, 4)))
                if j + dist < 4:
                    wread(z, q, c, j + dist, [t])
                elif c < 6:
                    wread(z, q, c + 1, j + dist - 4, [t])
                elif q == 0 and nt == 1:
                    wread(z, 1, 0, j + dist - 4, [t])
                if t == nt - 1 and q == 0 and c < 6:
                    xread(z, c + 1, j)
                out.append(z)
            return out

        def cs_write(z, q):
            for t in range(nt):
                z('ds_write_b32 v%d, v%d offset:%d' % (V_CSW, V_CS + 4 * t, q * 1536 + t * 512))

        def rload(z, i, dst, key, addr=V_RA):
            z('ds_read_b128 %s, v%d offset:%d' % (vr(dst, 4), addr, i * 32), key)

        if nt == 1:
            b('s_setprio 1')
        barrier(b, [('i', 1)], 'pre')
        stamp(b, 1)
        for j in range(4):
            if j < DIST[0]:
                wread(b, 0, 0, j)
            xread(b, 0, j)
        item(b, 4)
        item(b, 5)
        for c in range(7):
            barrier(b, [('i', 2 * c + 3 if c < 6 else 14)], 's%d' % c)
            d = Seg()
            item(d, 2 * c + 6)
            item(d, 2 * c + 7)
            if nt == 1:
                b.extend(d)
            for j in range(4):
                for z in kstep(0, c, j):
                    b.extend(z)
            if nt == 1:
                dots(b, c)
            else:
                b.extend(d)
        cs_write(b, 0)
        if nt == 1:
            stats_write(b)
        barrier(b, [('i', 17)], 's7')
        stamp(b, 2)
        item(b, 20)

        def phi_k(t, rb):
            e = Seg()
            n = len(rb)
            for i in range(n):
                rload(e, i, rb[i], ('r', t, i))
            e.append(GAP)
            for i in range(4):
                e.wait(lgkm=[('r', t, i)])
                a = [acc(0, t) + 4 * i + k for k in range(4)]
                for k in range(4):
                    e('v_fma_f32 v%d, v%d, v%d, s%d' % (a[k], a[k], rb[i % n] + k, S_EPS))
                if i + n < 4:
                    rload(e, i + n, rb[i % n], ('r', t, i + n))
                for k in range(4):
                    e('v_mul_f32 v%d, s%d, v%d' % (T + k, S_L2E, a[k]))
                for k in range(4):
                    e('v_exp_f32_e64 v%d, v%d clamp' % (T + k, T + k))
                for k in range(4):
                    e('v_max_f32 v%d, s%d, v%d' % (a[k], S_EPS, a[k]))
                for k in range(4):
                    e('v_add_f32 v%d, v%d, v%d' % (a[k], a[k], T + k))
                e('v_cvt_pk_bf16_f32 v%d, v%d, v%d' % (acc(0, t) + 2 * i, a[0], a[1]))
                e('v_cvt_pk_bf16_f32 v%d, v%d, v%d' % (acc(0, t) + 2 * i + 1, a[2], a[3]))
            return e

        def prod_setup(z):
            for i in range(4):
                rload(z, i, V_WF + 4 * i, 'r2', V_X1)
            z('v_cndmask_b32 v%d, 0, 1.0, %s' % (V_SEL, sr(S_PAD, 2)))
            z('s_lshl_b32 s%d, s%d, 12' % (S_T0, S_RW))
            z('s_add_u32 s%d, s%d, %d' % (S_T0, S_T0, HND + (16384 if nt == 2 else 0)))
            z('v_add_u32 v%d, s%d, v%d' % (V_SEL + 1, S_T0, V_L16))

        def kv_prod(z):
            z.wait(lgkm='r2')
            for t in range(nt):
                v = acc(1, t)
                d = V_X + 16 * t
                for f in range(2):
                    for k in range(8 * f, 8 * f + 8):
                        z('v_fma_f32 v%d, v%d, v%d, v%d' % (v + k, v + k, V_WF + k, V_SEL))
                    for k in range(4):
                        z('v_cvt_pk_bf16_f32 v%d, v%d, v%d' % (v + 8 * f + k, v + 8 * f + 2 * k, v + 8 * f + 2 * k + 1))
                if nt == 1:
                    z('s_setprio 2')
                for f in range(2):
                    z('v_mfma_f32_32x32x16_bf16 %s, %s, %s, %s' % (vr(d, 16), vr(acc(0, t) + 4 * f, 4), vr(v + 8 * f, 4), vr(d, 16) if f else '0'))

        def part_write(z):
            for t in range(nt):
                for i in range(4):
                    z('ds_write_b128 v%d, %s offset:%d' % (V_SEL + 1, vr(V_X + 16 * t + 4 * i, 4), t * 16384 + i * 1024))
            sync_arrive(z, 1)

        if nt == 1:
            slots = []
            for c in range(7):
                for j in range(4):
                    z = kstep(1, c, j)[0]
                    if c == 3 and j == 0:
                        pre = Seg()
                        barrier(pre, [('i', 20)], 'v1')
                        z[:0] = pre
                    slots.append(z)
            for z in slots:
                b.extend(z)
            cs_write(b, 1)
            barrier(b, None, 'v2')
            stamp(b, 3)
            b('s_setprio 2')
            b.extend(head([ext_parts(acc(0, 0), 0, V_EXW, True), ext_parts(acc(1, 0), 1536, V_EXW + 2, True, T=V_T + 4)], stats_final('kv')))
            b('s_setprio 0')
            prod_setup(b)
            b.extend(i for i in phi_k(0, [V_ACC + 16 + 4 * i for i in range(4)]) if i is not GAP)
            kv_prod(b)
            p2_setup(b)
            barrier(b, None, 'v3')
            stamp(b, 4)
            part_write(b)
            b('s_setprio 1')
            for u in range(11):
                dma_b2(b, u)
                if u == 6:
                    poll_early(b)
            b('s_branch L_p2b')
            return b
        f0_load(b)
        b('s_setprio 2')
        b.extend(head([ext_parts(acc(0, t), t * 512, V_EXW + 2 * t, True, T=V_T + 8 - 4 * t) for t in range(2)], stats_final('kv')))
        b('s_setprio 0')
        e = [i for i in phi_k(0, [V_WF + 4 * i for i in range(4)]) if i is not GAP]
        k = len(e) * OPT['kcut'] // 100
        b.extend(e[:k])
        barrier(b, [('i', 20)], 'v1')
        b.extend(e[k:])
        f0_check(b)
        for j in range(4):
            wread(b, 1, 0, j)
        barrier(b, None, 'v2')
        stamp(b, 3)
        b('s_setprio %d' % OPT['kprio'])
        slots = []
        for c in range(7):
            for j in range(4):
                z = kstep(1, c, j)
                if c == OPT['kbar'] and j == 0:
                    pre = Seg()
                    barrier(pre, None, 'v3')
                    pre('s_setprio 2')
                    z[0][:0] = pre
                slots += z
        b.extend(interleave(slots, list(phi_k(1, [V_T + 4, V_T + 8])), OPT['kphi'], 54))
        cs_write(b, 1)
        sync_arrive(b, 0)
        prod_setup(b)
        stamp(b, 'k0')
        sync_wait(b, 0, 4, T)
        b.extend(head([ext_parts(acc(1, t), 1536 + t * 512, V_EXW + 2 * t, True, T=V_T + 8 - 4 * t) for t in range(2)]))
        b('s_cmp_lt_u32 s%d, s%d' % (S_RW, S_PEND))
        b('s_cselect_b32 s%d, 0, 0x%x' % (S_T3, OOB))
        b('s_add_u32 s%d, s%d, s%d' % (S_T1, S_LAST, S_RW))
        b('s_lshl_b32 s%d, s%d, 12' % (S_T0, S_T1))
        b('s_add_u32 s%d, s%d, s%d' % (S_T0, S_T0, S_T3))
        b('s_add_u32 s%d, s%d, 0x%x' % (S_T0, S_T0, KV_OFF))
        b('s_lshl_b32 s%d, s%d, 7' % (S_T1, S_T1))
        b('s_add_u32 s%d, s%d, s%d' % (S_T1, S_T1, S_T3))
        b('s_add_u32 s%d, s%d, 0x%x' % (S_FL, S_T1, FKV_OFF))
        b('s_add_u32 s%d, s%d, 1' % (S_T1, S_RW))
        b('s_cmp_lt_u32 s%d, 2' % S_RW)
        b('s_cselect_b32 s%d, s%d, 0' % (S_T1, S_T1))
        b('s_lshl_b32 s%d, s%d, 14' % (S_T1, S_T1))
        b('s_add_u32 s%d, s%d, %d' % (S_T1, S_T1, HND))
        kv_prod(b)
        part_write(b)
        b('v_lshrrev_b32 v%d, 2, v%d' % (T + 10, V_L16))
        b('v_add_u32 v%d, s%d, v%d' % (T + 11, S_T1, V_L16))
        sync_wait(b, 1, 8, T)
        stamp(b, 4)
        for i in range(4):
            for p in range(4):
                b('ds_read_b128 %s, v%d offset:%d' % (vr(V_X + 16 * i + 4 * p, 4), T + 11, p * 4096 + i * 1024), ('red', i))
        for i in range(4):
            r = V_X + 16 * i
            b.wait(lgkm=[('red', i)])
            for k in range(4):
                b('v_add_f32 v%d, v%d, v%d' % (r + k, r + k, r + 4 + k))
                b('v_add_f32 v%d, v%d, v%d' % (r + 8 + k, r + 8 + k, r + 12 + k))
                b('v_add_f32 v%d, v%d, v%d' % (r + k, r + k, r + 8 + k))
                b('buffer_atomic_add_f32 v%d, v%d, %s, s%d offen offset:%d sc1' % (r + k, T + 10, sr(SWS, 4), S_T0, (4 * i + k) * 256), 'atom')
        stamp(b, 5)
        p2_setup(b)
        b.wait(vm='atom')
        stamp(b, 6)
        b('buffer_atomic_add v%d, v%d, %s, s%d offen sc1' % (V_ONE, V_FLO, sr(SWS, 4), S_FL))
        b('s_branch L_p2a')
        return b

    return s, body(2), body(1)


def res_load():
    s, T = Seg(), V_RES + 8
    s('s_lshl_b32 s%d, s%d, 7' % (S_T0, S_ROLE))
    s('v_lshrrev_b32 v%d, 3, v0' % (T + 1))
    s('v_and_b32 v%d, 0x70, v%d' % (T + 2, V_L16))
    s('v_mul_u32_u24 v%d, %d, v%d' % (T, XS, T + 1))
    s('v_add_u32 v%d, v%d, v%d' % (T, T, T + 2))
    s('buffer_load_dwordx4 %s, v%d, %s, s%d offen' % (vr(V_RES, 4), T, sr(SX, 4), S_OUTO), 'res')
    s('buffer_load_dwordx4 %s, v%d, %s, s%d offen' % (vr(V_RES + 4, 4), T + 2, sr(SB2, 4), S_T0), 'res')
    s('v_and_b32 v%d, 31, v%d' % (T + 1, T + 1))
    s('v_and_b32 v%d, 7, v%d' % (T + 3, T + 1))
    s('v_bfe_u32 v%d, v%d, 1, 1' % (T + 4, T + 1))
    s('v_lshl_add_u32 v%d, v%d, 3, v%d' % (T + 3, T + 4, T + 3))
    s('v_lshlrev_b32 v%d, 4, v%d' % (T + 3, T + 3))
    s('v_xor_b32 v%d, v%d, v%d' % (T + 3, T + 3, T + 2))
    s('v_lshl_add_u32 v%d, v%d, 8, v%d' % (T + 1, T + 1, T + 3))
    return s


def frag_addr(s, T):
    s('v_lshrrev_b32 v%d, 4, v%d' % (T, V_L16))
    s('v_bfe_u32 v%d, v%d, 2, 2' % (T + 1, T))
    s('v_and_b32 v%d, 3, v%d' % (T + 2, T))
    s('v_bfe_u32 v%d, v%d, 4, 1' % (T + 3, T))
    s('v_lshl_add_u32 v%d, v%d, 2, v%d' % (T + 2, T + 3, T + 2))
    s('v_lshrrev_b32 v%d, 1, v%d' % (T + 3, T + 1))
    s('v_lshlrev_b32 v%d, 6, v%d' % (T + 3, T + 3))
    s('v_lshl_add_u32 v%d, v%d, 3, v%d' % (T + 2, T + 2, T + 3))
    s('v_lshl_add_u32 v%d, v%d, 7, v%d' % (T + 2, T + 1, T + 2))
    s('v_lshrrev_b32 v%d, 5, v%d' % (T + 3, T))
    s('v_lshl_add_u32 v%d, v%d, 9, v%d' % (T + 3, T + 3, T + 2))


def bf(par, ct):
    return V_BF + 8 * par + 4 * ct


def acc2(ct, rg):
    return V_ACC + 32 * ct + 16 * rg


def part_addr(g):
    z, T = Seg(), V_NUM
    z('v_bfe_u32 v%d, v%d, 4, 5' % (T, V_L16))
    z('v_and_b32 v%d, 7, v%d' % (T + 1, T))
    z('v_bfe_u32 v%d, v%d, 1, 1' % (T + 2, T))
    z('v_lshrrev_b32 v%d, 9, v%d' % (T + 3, V_L16))
    z('v_xor_b32 v%d, v%d, v%d' % (T + 2, T + 2, T + 3))
    z('v_lshl_add_u32 v%d, v%d, 3, v%d' % (T + 1, T + 2, T + 1))
    z('v_lshlrev_b32 v%d, 4, v%d' % (T + 1, T + 1))
    z('v_lshl_add_u32 v%d, v%d, 8, v%d' % (T + 1, T, T + 1))
    z('v_add_u32 v%d, s%d, v%d' % (T + 8, S_QR0, T + 1))
    z('v_add_u32 v%d, s%d, v%d' % (T + 16, S_QR2, T + 1))
    for rg in range(2):
        for k in range(1, 8):
            z('v_xor_b32 v%d, %d, v%d' % (T + 8 + 8 * rg + k, k << 4, T + 8 + 8 * rg))
    return z


def read_addr(g):
    z, T, A = Seg(), V_RES + 8, V_RES + 16
    for w in range(4):
        z('v_add_u32 v%d, %d, v%d' % (A + 2 * w, (R2 + w * 10240) if g else w * 12288, T + 1))
        z('v_xor_b32 v%d, 128, v%d' % (A + 2 * w + 1, A + 2 * w))
    return z


def res_unpack():
    z, U = Seg(), V_RES + 24
    z.wait(vm='res')
    for k in range(4):
        z('v_lshlrev_b32 v%d, 16, v%d' % (U + 2 * k, V_RES + k))
        z('v_and_b32 v%d, 0xffff0000, v%d' % (U + 2 * k + 1, V_RES + k))
        z('v_lshlrev_b32 v%d, 16, v%d' % (V_RES + k, V_RES + 4 + k))
        z('v_and_b32 v%d, 0xffff0000, v%d' % (V_RES + 4 + k, V_RES + 4 + k))
        z('v_add_f32 v%d, v%d, v%d' % (U + 2 * k, U + 2 * k, V_RES + k))
        z('v_add_f32 v%d, v%d, v%d' % (U + 2 * k + 1, U + 2 * k + 1, V_RES + 4 + k))
    return z


def phase2b():
    s, T = Seg('p2b'), V_NUM
    s('L_p2b:')
    if OPT['p1only']:
        s('s_branch L_fin')
        return s
    stamp(s, 5)
    s('s_setprio 1')
    s('v_add_u32 v%d, %d, v%d' % (V_L16B, ACT_G, V_L16))
    s('s_lshl_b32 s%d, s%d, 13' % (S_T0, S_RW))
    s('s_add_u32 s%d, s%d, s%d' % (S_AO, S_A, S_T0))
    s('s_add_u32 s%d, s%d, %d' % (S_AO, S_AO, 112 * 1024))
    s('s_mul_i32 s%d, s%d, %d' % (S_T0, S_RW, 28 * 1024))
    s('s_add_u32 s%d, s%d, s%d' % (S_A, S_A, S_T0))
    DEP = OPT['dep']

    def abuf(u, rg):
        return V_AB + 8 * (u % DEP) + 4 * rg

    def aload(z, u):
        if u < 28:
            ks_dyn(z, S_T0, u)
        else:
            z('s_xor_b32 s%d, s%d, %d' % (S_T0, S_RO3, u - 28))
        if OPT['x_hit'] & 1:
            z('s_and_b32 s%d, s%d, 3' % (S_T0, S_T0))
        z('s_lshl_b32 s%d, s%d, 10' % (S_T0, S_T0))
        z('s_add_u32 s%d, s%d, s%d' % (S_T0, S_T0, S_A if u < 28 else S_AO))
        for rg in range(2):
            z('buffer_load_dwordx4 %s, v%d, %s, s%d offen sc1' % (vr(abuf(u, rg), 4), V_L16B if rg else V_L16, sr(SWS, 4), S_T0), ('a', u))

    stage_check(s, 0)
    stamp(s, 'c0')
    z = Seg()
    for u in range(DEP - 1):
        aload(z, u)
        if u == min(DEP - 2, max(0, 8 - OPT['plead'])):
            poll_async(z, 1)
    y = Seg()
    frag_addr(y, T)
    for reg, base in enumerate((S_QR0, S_QR2)):
        y('v_add_u32 v%d, s%d, v%d' % (V_BA + 2 * reg, base, T + 3))
        y('v_xor_b32 v%d, 64, v%d' % (V_BA + 2 * reg + 1, V_BA + 2 * reg))
    s.extend(mix(y, groups(z)))

    def bread(z, u):
        _, reg, off = unit_loc(u)
        z.wait(vm=[('b', u)])
        for ct in range(2):
            for h in range(2):
                z('ds_read_b64_tr_b16 %s, v%d offset:%d' % (vr(bf(u & 1, ct) + 2 * h, 2), V_BA + 2 * reg + ct, off + h * 1024), ('bf', u, ct))

    bread(s, 0)
    NU = 36
    STG = {8: 1, 16: 2}
    late = list(read_addr(1)) + list(part_addr(1)) + list(res_unpack())

    def unit(s, u, loads):
        nxt = u + DEP - 1
        if nxt in STG:
            stage_check(s, STG[nxt])
            stamp(s, 'c%d' % STG[nxt])
        z = Seg()
        if nxt + OPT['plead'] in (16, 28):
            poll_async(z, 2 if nxt < 16 else 3)
        if nxt < NU and loads:
            aload(z, nxt)
        if 11 <= u + OPT['lb'] < NU:
            dma_b2(z, u + OPT['lb'])
        if u == 6:
            z.extend(res_load())
        now = groups(z)
        if 12 <= u < 20:
            k0, k1 = len(late) * (u - 12) // 8, len(late) * (u - 11) // 8
            now += [[i] for i in late[k0:k1]]
        rd = Seg()
        if u < NU - 1:
            bread(rd, u + 1)
        stamp(s, 'w%d' % u)
        s.wait(vm=[('a', u)])
        stamp(s, 'u%d' % u)
        k = 0
        for ct in range(2):
            s.wait(lgkm=[('bf', u, ct)])
            for rg in range(2):
                s('v_mfma_f32_32x32x16_bf16 %s, %s, %s, %s' % (vr(acc2(ct, rg), 16), vr(bf(u & 1, ct), 4), vr(abuf(u, rg), 4), vr(acc2(ct, rg), 16) if u else '0'))
                if k < 2:
                    s.extend(rd[:-2] if k == 0 else rd[-2:])
                for gi in range(len(now) * k // 4, len(now) * (k + 1) // 4):
                    s.extend(now[gi])
                k += 1

    U0 = 29 - DEP
    for u in range(U0):
        unit(s, u, True)
    stage_check(s, 3, miss='L_p2late')
    fast, lateseg, tail = Seg('p2f'), Seg('p2l'), Seg('p2t')
    for u in range(U0, 28):
        unit(fast, u, True)
    lateseg('L_p2late:')
    for u in range(U0, 28):
        unit(lateseg, u, False)
    stage_check(lateseg, 3, sync=True)
    stamp(lateseg, 'c3')
    for u in range(28, 28 + DEP - 1):
        aload(lateseg, u)
    lateseg('s_branch L_p2tail')
    head_, s = s, tail
    s('L_p2tail:')
    for u in range(28, NU):
        unit(s, u, True)
    stamp(s, 8)
    for ct in range(2):
        for rg in range(2):
            for i in range(4):
                s('ds_write_b128 v%d, %s' % (V_NUM + 8 + 8 * rg + 4 * ct + i, vr(acc2(ct, rg) + 4 * i, 4)))
    s('s_branch L_final')
    return head_, fast, lateseg, tail


def phase2a():
    s = Seg('p2a')
    s('L_p2a:')
    if OPT['p1only']:
        s('s_branch L_fin')
        return s
    s.extend(res_load())
    s.extend(read_addr(0))
    s.extend(res_unpack())
    return s


def final():
    s, T = Seg('final'), V_RES + 8
    s('L_final:')
    if not OPT['p1only']:
        D, U = V_ACC, V_RES + 24
        barrier(s)
        stamp(s, 9)
        for w in range(4):
            for h in range(2):
                s('ds_read_b128 %s, v%d' % (vr(D + 8 * w + 4 * h, 4), V_RES + 16 + 2 * w + h), ('fin', w))
        for w in range(4):
            s.wait(lgkm=[('fin', w)])
            for k in range(4):
                s('v_pk_add_f32 %s, %s, %s' % (vr(U + 2 * k, 2), vr(U + 2 * k, 2), vr(D + 8 * w + 2 * k, 2)))
        for k in range(4):
            s('v_cvt_pk_bf16_f32 v%d, v%d, v%d' % (U + k, U + 2 * k, U + 2 * k + 1))
        s('buffer_store_dwordx4 %s, v%d, %s, s%d offen' % (vr(U, 4), T, sr(SOUT, 4), S_OUTO))
    return s


def fin():
    s = Seg('fin')
    s('L_fin:')
    if OPT['diag']:
        stamp(s, 10)
        s('s_waitcnt lgkmcnt(0)')
        s('v_mov_b32 v4, 0')
        for k in range(11):
            s('v_writelane_b32 v4, s%d, %d' % (S_KA + 2 * k, k))
        s('v_writelane_b32 v4, s%d, 11' % S_SPIN)
        s('s_lshl3_add_u32 s%d, s2, s%d' % (S_T0, S_WV))
        s('s_lshl_b32 s%d, s%d, 8' % (S_T0, S_T0))
        s('s_add_u32 s%d, s%d, 0x%x' % (S_T0, S_T0, TS_OFF))
        s('v_lshrrev_b32 v5, 2, v%d' % V_L16)
        s('buffer_store_dword v4, v5, %s, s%d offen' % (sr(SWS, 4), S_T0))
        if OPT['diag'] == 3:
            s('s_not_b32 s%d, s%d' % (S_T0, S_KA))
            s('v_writelane_b32 v4, s%d, 11' % S_T0)
            s('s_cmp_eq_u32 s%d, 4' % S_WV)
            s('s_cselect_b32 s%d, 16, 0x%x' % (S_T0, OOB))
            s('s_cmp_lt_u32 s%d, 4' % S_ROLE)
            s('s_cselect_b32 s%d, s%d, 0x%x' % (S_T0, S_T0, OOB))
            s('s_mov_b64 exec, 0xfff')
            s('buffer_atomic_umax v4, v5, %s, s%d offen sc1' % (sr(SDBG, 4), S_T0))
    if OPT['diag'] == 5:
        s('s_cmp_lg_u32 s%d, 4' % S_WV)
        s('s_cbranch_scc1 L_end')
        s('s_mov_b64 exec, 1')
        s('s_not_b32 s%d, s%d' % (S_T0, S_KA + 2 * OPT['sa']))
        s('v_mov_b32 v4, s%d' % S_T0)
        s('v_mov_b32 v5, s%d' % (S_KA + 2 * OPT['sb']))
        s('v_mov_b32 v6, 1')
        s('v_mov_b32 v7, 0')
        s('buffer_atomic_umax v4, v7, %s, 0 offen offset:128 sc1' % sr(SDBG, 4))
        s('buffer_atomic_umax v5, v7, %s, 0 offen offset:132 sc1' % sr(SDBG, 4))
        s('s_waitcnt vmcnt(0)')
        s('buffer_atomic_add v6, v7, %s, 0 offen offset:136 sc0 sc1' % sr(SDBG, 4))
        s('s_waitcnt vmcnt(0)')
        s('v_readfirstlane_b32 s%d, v6' % S_T0)
        s('s_cmp_lg_u32 s%d, 255' % S_T0)
        s('s_cbranch_scc1 L_end')
        s('buffer_load_dwordx2 v[4:5], v7, %s, 0 offen offset:128 sc1' % sr(SDBG, 4))
        s('s_waitcnt vmcnt(0)')
        s('v_add_u32 v4, v4, v5')
        s('s_nop 1')
        s('v_readfirstlane_b32 s%d, v4' % S_T0)
        s('s_add_u32 s%d, s%d, 1' % (S_T0, S_T0))
        s('s_mul_i32 s%d, s%d, %d' % (S_T0, S_T0, OPT['mul']))
        s('s_min_u32 s%d, s%d, 200000' % (S_T0, S_T0))
        s('s_memrealtime s[66:67]')
        s('s_waitcnt lgkmcnt(0)')
        s('L_dly:')
        s('s_memrealtime s[68:69]')
        s('s_waitcnt lgkmcnt(0)')
        s('s_sub_u32 s68, s68, s66')
        s('s_cmp_lt_u32 s68, s%d' % S_T0)
        s('s_cbranch_scc1 L_dly')
    if OPT['diag'] == 4:
        s('s_cmp_lg_u32 s2, %d' % OPT['wg'])
        s('s_cbranch_scc1 L_end')
        s('s_cmp_lg_u32 s%d, 4' % S_WV)
        s('s_cbranch_scc1 L_end')
        s('s_sub_u32 s%d, s%d, s%d' % (S_T0, S_KA + 2 * OPT['sb'], S_KA + 2 * OPT['sa']))
        if not OPT['clk']:
            s('s_mul_i32 s%d, s%d, 10' % (S_T0, S_T0))
        s('s_min_u32 s%d, s%d, 200000' % (S_T0, S_T0))
        s('s_memrealtime s[66:67]')
        s('s_waitcnt lgkmcnt(0)')
        s('L_dly:')
        s('s_memrealtime s[68:69]')
        s('s_waitcnt lgkmcnt(0)')
        s('s_sub_u32 s68, s68, s66')
        s('s_cmp_lt_u32 s68, s%d' % S_T0)
        s('s_cbranch_scc1 L_dly')
    s('L_end:')
    s('s_endpgm')
    return s


def main():
    pro = prologue()
    f, fa, fb = lc_role(True)
    q, qa, qb = lc_role(False)
    qo = q_out()
    k, ka, kb = kv_role()
    (p2b, p2f, p2l, p2t), p2a, fl, fi = phase2b(), phase2a(), final(), fin()
    paths = [
        [pro, f, fa, p2a, fl, fi],
        [pro, f, fb, p2b, p2f, p2t, fl, fi],
        [pro, f, fb, p2b, p2l, p2t, fl, fi],
        [pro, q, qa, qo, fi],
        [pro, q, qb, qo, fi],
        [pro, k, ka, p2a, fl, fi],
        [pro, k, kb, p2b, p2f, p2t, fl, fi],
        [pro, k, kb, p2b, p2l, p2t, fl, fi],
    ]
    resolve_waits(paths)
    n = pad_hazards(paths)
    assert pad_hazards(paths) == 0
    body = render([pro, f, fa, fb, k, ka, kb, q, qa, qb, qo, p2l, p2b, p2f, p2t, p2a, fl, fi, slow])
    head = open('cdna_kernels/%s.s.ref' % NAME).read().split('\n')
    head = [l for l in head if l.startswith(';') and '@launch' not in l]
    out = '\n'.join(head) + '''
; @launch grid=(256,1,1) block=(512,1,1) lds=%d
.amdgcn_target "amdgcn-amd-amdhsa--gfx950"
.text
.globl %s_kernel
.p2align 8
.type %s_kernel,@function
%s_kernel:
L_codebeg:
%s
L_codeend:
.section .rodata,"a"
.p2align 6
.amdhsa_kernel %s_kernel
  .amdhsa_next_free_vgpr 256
  .amdhsa_next_free_sgpr 102
  .amdhsa_accum_offset 256
  .amdhsa_group_segment_fixed_size 0
  .amdhsa_kernarg_size 88
  .amdhsa_user_sgpr_count 2
  .amdhsa_user_sgpr_kernarg_segment_ptr 1
  .amdhsa_system_sgpr_workgroup_id_x 1
.end_amdhsa_kernel
''' % (LDS_BYTES, NAME, NAME, NAME, body, NAME)
    if OPT['x_plain'] & 1:
        out = '\n'.join(l.replace(' sc1', '') if 'buffer_store_dwordx4' in l else l for l in out.split('\n'))
    if OPT['x_plain'] & 2:
        out = '\n'.join(l.replace(' sc1', '') if 'buffer_load_dwordx4' in l else l for l in out.split('\n'))
    open(sys.argv[1], 'w').write(out)
    print('wrote %s: %d lines, %d pad states' % (sys.argv[1], out.count('\n'), n))


main()
```

```python
import struct
import sys
from asmlib import Seg, Ins, Wait, GAP, interleave, resolve_waits, pad_hazards, render, vr, sr

NAME = 'parallel_sum__linear_attn_block__dense_activation_gelu__prompt'
OPT = dict(rot1=2, nlate=1, mul=10, fatom=0, tlb=0, kbar=4, kphi=26, kpf=4, llead=3, kcut=80, qatom=1, batom=1, pkind=1, x_hit=0, gsp=3, eprio=0, aprio=2, aprio2=2, aprio3=0, lb=6, touch=0, kprio=1, plead=3, x_noa=0, x_nopoll=0, x_noflag=0, x_nost=0, x_plain=0, rot2=1, dep=6, noatom=0, diag=0, p1only=0, sa=0, sb=10, clk=0, wg=0)
for a in sys.argv[2:]:
    k, v = a.split('=')
    OPT[k] = v if k == 'st' else int(v)
STAMPS = OPT.get('st', 'en,1,2,3,4,5,6,7,8,9,10').split(',')


def f32(x):
    return '0x%08x' % struct.unpack('<I', struct.pack('<f', x))[0]


XS, WQS, W1S = 896, 2688, 3584
ACT_G = 147456
KV_OFF = 0x900000
FKV_OFF = 0x910000
FL_OFF = 0x911000
FL_G = 896
ST_OFF = 0x930000
TS_OFF = 0xA00000
WS_BYTES = 0x10000000
OOB = 0x40000000
R0, R1, R2, MISC = 0, 57344, 114688, 155648
M_ST, M_SY, M_CS, M_R = MISC, MISC + 2048, MISC + 4096, MISC + 7168
LDS_BYTES = 163840
LOG2E = 1.4426950408889634
GC1 = -2.0 * 0.7978845608028654 * LOG2E
GC3 = GC1 * 0.044715
SPIN_LIMIT = 1 << 16

S_WV, S_RW, S_G, S_RB, S_ROLE = 3, 4, 5, 6, 7
SX, SW, SWS, SW2, SWO, SOUT, SB1, SB2, SDBG = 8, 12, 16, 20, 24, 28, 32, 36, 40
S_KA = 44
S_KX, S_KW = 66, 73
S_I2, S_HALF, S_T0, S_T1, S_ONES, S_EPS = 80, 81, 82, 83, 84, 85
S_M0W, S_M0X, S_T3, S_RO, S_H, S_FL = 86, 87, 88, 89, 90, 91
S_HI = 92
S_SPIN, S_T2, S_P, S_LAST, S_PEND, S_L2E = 94, 95, 96, 97, 98, 99
S_PAD = 100
S_B2R, S_QR0, S_RO3, S_QR2, S_A, S_WOR, S_OUTO, S_PL = 66, 67, 68, 69, 70, 71, 72, 73
S_AO = 74

V_L16, V_B2, V_X0, V_X1, V_W, V_CSW, V_CSR = 1, 2, 3, 4, 5, 6, 7
V_SEL, V_CS, V_WA, V_XA, V_EXW, V_EXR, V_ST = 8, 12, 20, 28, 32, 36, 38
V_B1 = 16
V_WB, V_RA = 42, 43
V_POLL, V_PA, V_FLO, V_ONE = 44, 45, 46, 47
V_T = 48
V_ACC, V_X, V_WF = 64, 128, 240
V_B2B, V_BA, V_L16B, V_PL = 3, 4, 12, 13
V_NUM, V_BF, V_AB, V_RES = 16, 48, 128, 192
V_PQ = 80
HND = 49152

slow = Seg('slow')
nspin = [0]


def stamp(s, k):
    if OPT['diag'] and str(k) in STAMPS:
        k = STAMPS.index(str(k))
        s('%s %s' % ('s_memtime' if OPT['diag'] == 2 or OPT['clk'] else 's_memrealtime', sr(S_KA + 2 * k, 2)))


EARLY = ['en', 'ka', 't0', 't1']


def estamp(s, k):
    if OPT['diag'] and k in STAMPS:
        s('%s s[100:101]' % ('s_memtime' if OPT['diag'] == 2 or OPT['clk'] else 's_memrealtime'))
        s('s_waitcnt lgkmcnt(0)')
        s('v_mov_b32 v%d, s100' % (120 + EARLY.index(k)))


class Rebase:
    def __init__(self, regs, base, span):
        self.regs, self.base, self.span = regs, base, span

    def off(self, s, addr):
        if not (self.base <= addr and addr - self.base + self.span <= 65535):
            for r in self.regs:
                s('v_add_u32 v%d, 0x%x, v%d' % (r, (addr - self.base) & 0xffffffff, r))
            self.base = addr
        return addr - self.base


def spin_check(s, vpoll, vexp, vaddr, srd, soff, mask):
    k = nspin[0]
    nspin[0] += 1
    s('v_cmp_ge_u32 vcc, v%d, v%d' % (vpoll, vexp))
    s('s_andn2_b32 s%d, 0x%x, vcc_lo' % (S_T2, mask))
    s('s_cbranch_scc1 L_slow%d' % k)
    s('L_ret%d:' % k)
    slow('L_slow%d:' % k)
    slow('s_add_u32 s%d, s%d, 1' % (S_SPIN, S_SPIN))
    slow('s_cmp_gt_u32 s%d, 0x%x' % (S_SPIN, SPIN_LIMIT))
    slow('s_cbranch_scc1 L_ret%d' % k)
    slow('buffer_load_dword v%d, v%d, %s, %s offen sc1' % (vpoll, vaddr, sr(srd, 4), soff))
    slow('s_waitcnt vmcnt(0)')
    slow('v_cmp_ge_u32 vcc, v%d, v%d' % (vpoll, vexp))
    slow('s_nop 1')
    slow('s_andn2_b32 s%d, 0x%x, vcc_lo' % (S_T2, mask))
    slow('s_cbranch_scc1 L_slow%d' % k)
    slow('s_branch L_ret%d' % k)


def poll_base(s):
    s('s_lshr_b32 s%d, s%d, 1' % (S_PL, S_I2))
    s('s_lshl2_add_u32 s%d, s%d, s%d' % (S_PL, S_PL, S_RW))
    s('s_mul_i32 s%d, s%d, %d' % (S_PL, S_PL, FL_G))
    s('s_add_u32 s%d, s%d, 0x%x' % (S_PL, S_PL, FL_OFF))
    s('v_cmp_gt_u32 vcc, 32, v%d' % V_L16)
    s('v_lshlrev_b32 v%d, 3, v%d' % (V_PL, V_L16))
    s('v_cndmask_b32 v%d, v%d, v%d, vcc' % (V_PL, V_FLO, V_PL))


def poll_async(s, k):
    s('buffer_load_dword v%d, v%d, %s, s%d offen offset:%d sc1' % (V_POLL, V_PL, sr(SWS, 4), S_PL, k * 256), ('poll', k))


def stage_check(s, k, miss=None, sync=False):
    if OPT['x_nopoll']:
        return
    j = nspin[0]
    nspin[0] += 1
    mask = 3 if k < 3 else 1
    if sync:
        s('s_branch L_slow%d' % j)
    else:
        s.wait(vm=[('poll', k)])
        s('v_cmp_ne_u32 vcc, 0, v%d' % V_POLL)
        s('s_andn2_b32 s%d, %d, vcc_lo' % (S_T2, mask))
        if miss:
            s('s_cbranch_scc1 %s' % miss)
            return
        s('s_cbranch_scc1 L_slow%d' % j)
    s('L_ret%d:' % j)
    slow('L_slow%d:' % j)
    slow('s_add_u32 s%d, s%d, 1' % (S_SPIN, S_SPIN))
    slow('s_cmp_gt_u32 s%d, 0x%x' % (S_SPIN, SPIN_LIMIT))
    slow('s_cbranch_scc1 L_ret%d' % j)
    slow('buffer_load_dword v%d, v%d, %s, s%d offen offset:%d sc1' % (V_POLL, V_PL, sr(SWS, 4), S_PL, k * 256))
    slow('s_waitcnt vmcnt(0)')
    slow('v_cmp_ne_u32 vcc, 0, v%d' % V_POLL)
    slow('s_nop 1')
    slow('s_andn2_b32 s%d, %d, vcc_lo' % (S_T2, mask))
    slow('s_cbranch_scc1 L_slow%d' % j)
    slow('s_branch L_ret%d' % j)


def poll_check(s, k, n, sync=False, atomic=False):
    j = nspin[0]
    nspin[0] += 1
    if OPT['x_nopoll']:
        return
    if sync:
        s('s_branch L_slow%d' % j)
    else:
        s.wait(vm=[('poll', k)])
        s('v_readfirstlane_b32 s%d, v%d' % (S_T2, V_POLL))
        s('s_cmp_lt_u32 s%d, %d' % (S_T2, n))
        s('s_cbranch_scc1 L_slow%d' % j)
    s('L_ret%d:' % j)
    slow('L_slow%d:' % j)
    slow('s_add_u32 s%d, s%d, 1' % (S_SPIN, S_SPIN))
    slow('s_cmp_gt_u32 s%d, 0x%x' % (S_SPIN, SPIN_LIMIT))
    slow('s_cbranch_scc1 L_ret%d' % j)
    if atomic:
        slow('v_mov_b32 v%d, 0' % V_POLL)
        slow('buffer_atomic_add v%d, v%d, %s, s%d offen offset:%d sc0 sc1' % (V_POLL, V_FLO, sr(SWS, 4), S_PL, k * 128))
        slow('s_waitcnt vmcnt(0)')
        slow('v_readfirstlane_b32 s%d, v%d' % (S_T2, V_POLL))
        slow('s_nop 0')
    else:
        slow('s_add_u32 s%d, s%d, %d' % (S_T2, S_PL, k * 128))
        slow('s_buffer_load_dword s%d, %s, s%d glc' % (S_T2, sr(SWS, 4), S_T2))
        slow('s_waitcnt lgkmcnt(0)')
    slow('s_cmp_lt_u32 s%d, %d' % (S_T2, n))
    slow('s_cbranch_scc1 L_slow%d' % j)
    slow('s_branch L_ret%d' % j)


def srd(s, d, nbytes):
    s('s_mov_b32 s%d, 0x%x' % (d + 2, nbytes))
    s('s_mov_b32 s%d, 0x20000' % (d + 3))


XSLOT = [R2, R2 + 16384, R1 + 8192, R1 + 24576, R1 + 40960, R2, R2 + 16384]


def kv_slot(n):
    return ((n + 4) % 9) * 16384


def prologue():
    s, T = Seg('pro'), V_T
    s('s_cmp_ge_u32 s2, 256')
    s('s_cbranch_scc1 L_end')
    estamp(s, 'en')
    s('s_load_dwordx2 %s, s[0:1], 0' % sr(SX, 2))
    s('s_load_dwordx2 %s, s[0:1], 8' % sr(SW, 2))
    s('s_load_dwordx2 %s, s[0:1], 32' % sr(S_HI, 2))
    s('v_readfirstlane_b32 s%d, v0' % S_WV)
    s('s_getpc_b64 s[82:83]')
    s('s_lshr_b32 s%d, s2, 3' % S_T2)
    s('s_lshl_b32 s%d, s%d, 11' % (S_P, S_T2))
    s('v_lshl_add_u32 v%d, v0, 2, s%d' % (T, S_P))
    s('v_min_u32 v%d, L_codeend-L_codebeg-64, v%d' % (T, T))
    s('global_load_dword v%d, v%d, s[82:83]' % (T + 15, T))
    s('s_lshr_b32 s%d, s%d, 6' % (S_WV, S_WV))
    s('v_and_b32 v%d, 63, v0' % T)
    s('s_and_b32 s%d, s%d, 7' % (S_ROLE, S_T2))
    s('v_lshrrev_b32 v%d, 3, v%d' % (T + 1, T))
    s('s_lshr_b32 s%d, s%d, 3' % (S_I2, S_T2))
    s('v_lshrrev_b32 v%d, 4, v%d' % (T + 3, T))
    s('s_and_b32 s%d, s2, 1' % S_HALF)
    s('v_lshl_add_u32 v%d, s%d, 4, v%d' % (T + 5, S_WV, T + 1))
    s('s_bfe_u32 s%d, s2, 0x20001' % S_P)
    s('v_mul_u32_u24 v%d, %d, v%d' % (T + 5, XS, T + 5))
    s('s_lshl2_add_u32 s%d, s%d, s%d' % (S_RB, S_P, S_I2))
    s('v_xor_b32 v%d, v%d, v%d' % (T + 6, T, T + 3))
    s('s_lshl1_add_u32 s%d, s%d, s%d' % (S_T2, S_I2, S_ROLE))
    s('v_and_b32 v%d, 7, v%d' % (T + 6, T + 6))
    s('s_add_u32 s%d, s%d, s%d' % (S_T2, S_T2, S_P))
    s('v_lshl_add_u32 v%d, v%d, 4, v%d' % (V_X0, T + 6, T + 5))
    s('s_mul_i32 s%d, s%d, 3' % (S_T0, S_HALF))
    s('v_xor_b32 v%d, 64, v%d' % (V_X1, V_X0))
    s('s_add_u32 s%d, s%d, s%d' % (S_T2, S_T2, S_T0))
    s('v_add_u32 v%d, %d, v%d' % (V_X1, 8 * XS - 1024, V_X1))
    s('s_mul_i32 s%d, s%d, 37' % (S_T1, S_T2))
    s('v_lshlrev_b32 v%d, 2, v%d' % (T + 4, T + 3))
    s('s_lshr_b32 s%d, s%d, 8' % (S_T1, S_T1))
    s('v_xor_b32 v%d, v%d, v%d' % (T + 4, T, T + 4))
    s('s_mul_i32 s%d, s%d, 7' % (S_T1, S_T1))
    s('s_sub_u32 s%d, s%d, s%d' % (S_T2, S_T2, S_T1))
    if OPT['rot1'] == 0:
        s('s_mov_b32 s%d, 0' % S_T2)
    elif OPT['rot1'] == 2:
        s('s_lshr_b32 s%d, s%d, 1' % (S_T2, S_T2))
    elif OPT['rot1'] == 3:
        s('s_and_b32 s%d, s%d, 4' % (S_T2, S_T2))
    elif OPT['rot1'] == 4:
        s('s_and_b32 s%d, s%d, 6' % (S_T2, S_T2))
    s('s_mul_i32 s%d, s%d, %d' % (S_H, S_RB, 128 * XS))
    s('s_lshl_b32 s%d, s%d, 7' % (S_KX, S_T2))
    s('s_add_u32 s%d, s%d, s%d' % (S_KX, S_KX, S_H))
    s('s_and_b32 s%d, s%d, 3' % (S_RW, S_WV))
    s('s_lshr_b32 s%d, s%d, 2' % (S_G, S_WV))
    s('s_lshl_b32 s%d, s%d, 11' % (S_M0X, S_WV))
    s('s_lshl_b32 s%d, s%d, 11' % (S_M0W, S_RW))
    srd(s, SX, 2048 * XS)
    s('s_add_u32 s%d, s%d, s%d' % (S_T0, S_T0, S_ROLE))
    s('s_lshl_b32 s%d, s%d, 7' % (S_T0, S_T0))
    s('s_add_u32 s%d, s%d, %d' % (S_T0, S_T0, XS - 512))
    s('s_lshl2_add_u32 s%d, s%d, s%d' % (S_P, S_HALF, S_ROLE))
    s('s_and_b32 s%d, s%d, 1' % (S_PEND, S_ROLE))
    s('s_lshl_b32 s%d, s%d, 6' % (S_PEND, S_PEND))
    s('s_movk_i32 s%d, %d' % (S_LAST, WQS))
    s('s_cmp_lt_u32 s%d, 4' % S_ROLE)
    s('s_cselect_b32 s%d, %d, s%d' % (S_LAST, W1S, S_LAST))
    s('s_cselect_b32 s%d, s%d, s%d' % (S_P, S_P, S_HALF))
    s('s_cselect_b32 s%d, s%d, 0' % (S_PEND, S_PEND))
    s('s_mul_i32 s%d, s%d, 448' % (S_T1, S_P))
    s('s_add_u32 s%d, s%d, s%d' % (S_T1, S_T1, S_PEND))
    s('s_lshl_b32 s%d, s%d, 6' % (S_RO, S_LAST))
    s('s_mul_i32 s%d, s%d, s%d' % (S_KW, S_T2, S_RO))
    s('s_mul_i32 s%d, s%d, 448' % (SW + 2, S_LAST))
    s('s_mov_b32 s%d, 0x20000' % (SW + 3))
    s('s_lshl_b32 s%d, s%d, 1' % (S_T2, S_RW))
    s('s_add_u32 s%d, s%d, %d' % (S_FL, S_M0X, kv_slot(1)))
    s('s_bitcmp1_b32 0x70, s%d' % S_ROLE)
    s('s_cselect_b32 s%d, s%d, s%d' % (S_T0, S_T0, S_T1))
    s('s_cselect_b32 s%d, s%d, s%d' % (S_T2, S_WV, S_T2))
    s('s_cselect_b32 s%d, s%d, s%d' % (S_FL, S_FL, S_M0W))
    s('s_cselect_b32 s%d, 4, 3' % S_T1)
    s('s_cselect_b32 s%d, 4, 7' % S_T3)
    s('s_cselect_b32 s%d, 1, s%d' % (S_SPIN, S_G))
    s('v_lshrrev_b32 v%d, s%d, v%d' % (T + 5, S_T1, T))
    s('s_lshl_b32 s%d, s%d, 14' % (S_T3, S_T3))
    s('v_lshl_add_u32 v%d, s%d, 3, v%d' % (T + 5, S_T2, T + 5))
    s('s_add_u32 m0, s%d, s%d' % (S_T3, S_M0X))
    s('v_bfe_u32 v%d, v%d, 0, s%d' % (T + 6, T + 4, S_T1))
    s('s_lshr_b32 s%d, s%d, s%d' % (S_T1, S_RO, S_T1))
    s('v_mul_u32_u24 v%d, s%d, v%d' % (T + 5, S_LAST, T + 5))
    s('s_sub_u32 s%d, s%d, 1024' % (S_T1, S_T1))
    s('v_lshl_add_u32 v%d, v%d, 4, s%d' % (T + 6, T + 6, S_T0))
    s('v_add_u32 v%d, v%d, v%d' % (V_W, T + 5, T + 6))
    s('s_cmp_lt_u32 s%d, 4' % S_ROLE)
    s('v_add_u32 v%d, s%d, v%d' % (V_WB, S_T1, V_W))
    s('s_waitcnt lgkmcnt(0)')
    estamp(s, 'ka')
    assert XSLOT[0] == 7 << 14 and kv_slot(0) == 4 << 14
    s('buffer_load_dwordx4 v%d, %s, s%d offen lds' % (V_X0, sr(SX, 4), S_KX), 't0')
    s('s_cselect_b64 %s, %s, %s' % (sr(SW, 2), sr(S_HI, 2), sr(SW, 2)))
    s('buffer_load_dwordx4 v%d, %s, s%d offen offset:1024 lds' % (V_X1, sr(SX, 4), S_KX), 't0')
    s('s_mov_b32 m0, s%d' % S_FL)
    s('s_cmp_eq_u32 s%d, 0' % S_SPIN)
    s('s_cbranch_scc1 L_now')
    w = Seg('prow')
    w('buffer_load_dwordx4 v%d, %s, s%d offen lds' % (V_W, sr(SW, 4), S_KW), 't0')
    w('buffer_load_dwordx4 v%d, %s, s%d offen offset:1024 lds' % (V_WB, sr(SW, 4), S_KW), 't0')
    e = Seg('proe')
    e('L_now:')
    estamp(e, 't0')
    for d, off in ((SWS, 80), (SB1, 40), (SDBG, 72), (SW2, 48), (SWO, 16), (SB2, 56), (SOUT, 64)):
        e('s_load_dwordx2 %s, s[0:1], %d' % (sr(d, 2), off))
    essential(e)
    e('s_cmp_ge_u32 s%d, 7' % S_ROLE)
    e('s_cbranch_scc1 L_q')
    e('s_cmp_ge_u32 s%d, 4' % S_ROLE)
    e('s_cbranch_scc1 L_kv')
    return s, w, e


def zipper(a, b):
    out = []
    for k in range(max(len(a), len(b))):
        out += a[k:k + 1] + b[k:k + 1]
    return out


def essential(z):
    T = V_T
    k, s = Seg(), Seg()
    k('s_add_u32 s%d, s%d, %d' % (S_T2, S_H, XS))
    for c in range(1, 7):
        k('s_add_u32 s%d, s%d, 128' % (S_KX + c, S_KX + c - 1))
        k('s_add_u32 s%d, s%d, s%d' % (S_KW + c, S_KW + c - 1, S_RO))
        k('s_cmp_eq_u32 s%d, s%d' % (S_KX + c, S_T2))
        k('s_cselect_b32 s%d, s%d, s%d' % (S_KX + c, S_H, S_KX + c))
        k('s_cselect_b32 s%d, 0, s%d' % (S_KW + c, S_KW + c))
    k('s_mov_b32 s%d, 0x3f803f80' % S_ONES)
    s('v_lshlrev_b32 v%d, 4, v%d' % (V_L16, T))
    s('v_and_b32 v%d, 1, v%d' % (T + 7, T + 3))
    s('v_and_b32 v%d, 31, v%d' % (T + 8, T))
    s('v_lshrrev_b32 v%d, 5, v%d' % (T + 9, T))
    s('v_bfe_u32 v%d, v%d, 2, 2' % (T + 10, T))
    s('v_and_b32 v%d, 3, v%d' % (T + 11, T))
    s('v_lshl_add_u32 v%d, s%d, 1, v%d' % (T + 12, S_RW, T + 9))
    s('v_bfe_u32 v%d, v%d, 1, 3' % (T + 5, T))
    s('v_xor_b32 v%d, v%d, v%d' % (T + 5, T + 12, T + 5))
    s('v_lshl_add_u32 v%d, s%d, 5, v%d' % (T + 13, S_RW, T + 8))
    s('v_lshlrev_b32 v%d, 7, v%d' % (V_XA, T + 13))
    s('v_lshl_add_u32 v%d, v%d, 4, v%d' % (V_XA, T + 5, V_XA))
    for j in range(1, 4):
        s('v_xor_b32 v%d, %d, v%d' % (V_XA + j, j << 5, V_XA))
    s('v_lshl_add_u32 v%d, v%d, 3, v%d' % (T + 12, T + 12, T + 10))
    s('v_lshl_add_u32 v%d, v%d, 2, v%d' % (T + 14, T + 7, T + 11))
    s('v_and_b32 v%d, 1, v%d' % (T + 5, T + 10))
    s('v_mov_b32 v%d, 0x3f803f80' % (T + 6))
    s('v_cmp_eq_u32 vcc, v%d, v%d' % (T + 5, T + 7))
    for j in range(4):
        s('v_mov_b32 v%d, 0' % (V_ST + j))
    for j in range(4):
        s('v_cndmask_b32 v%d, 0, v%d, vcc' % (V_SEL + j, T + 6))
    s('v_mov_b32 v%d, 0x%x' % (V_FLO, OOB))
    s('v_cmp_eq_u32 vcc, 0, v%d' % T)
    s('v_mov_b32 v%d, 1' % V_ONE)
    s('v_mov_b32 v%d, 0' % (V_EXW + 1))
    s('v_cndmask_b32 v%d, v%d, 0, vcc' % (V_FLO, V_FLO))
    z.extend(zipper(list(k), list(s)))


def deferred(kv):
    s, T = Seg(), V_T
    for k in EARLY:
        if OPT['diag'] and k in STAMPS:
            s('v_readfirstlane_b32 s%d, v%d' % (S_KA + 2 * STAMPS.index(k), 120 + EARLY.index(k)))
    srd(s, SW2, 1792 * XS)
    srd(s, SWO, 448 * XS)
    srd(s, SOUT, 2048 * XS)
    srd(s, SB2, 448 * 2)
    s('s_mov_b32 s%d, %s' % (S_EPS, f32(1e-6)))
    s('s_mov_b32 s%d, %s' % (S_L2E, f32(LOG2E)))
    s('s_mov_b32 s%d, 0' % S_HI)
    s('s_mov_b32 s%d, -1' % (S_HI + 1))
    if kv:
        s('s_mov_b32 s%d, 0xf0000000' % S_PAD)
        s('s_mov_b32 s%d, 0xf0000000' % (S_PAD + 1))
        s('v_mov_b32 v%d, 0' % (V_EXW + 3))
    s('s_mov_b32 s%d, 0' % S_SPIN)
    s('v_and_b32 v%d, 7, v%d' % (T + 4, T + 4))
    s('v_mul_u32_u24 v%d, %d, v%d' % (V_B2, XS, T + 1))
    s('v_lshl_add_u32 v%d, v%d, 4, v%d' % (V_B2, T + 4, V_B2))
    if kv:
        s('s_mov_b32 s%d, %d' % (S_T1, M_CS))
    else:
        s('s_lshl_b32 s%d, s%d, 9' % (S_T1, S_G))
        s('s_add_u32 s%d, s%d, %d' % (S_T1, S_T1, M_CS))
    s('v_lshl_add_u32 v%d, v%d, 4, s%d' % (V_CSR, T + 8, S_T1))
    s('v_lshl_add_u32 v%d, s%d, 2, v%d' % (V_CSW, S_RW, V_CSR))
    s('s_lshl2_add_u32 s%d, s%d, %d' % (S_T1, S_WV, M_SY))
    s('v_mov_b32 v%d, s%d' % (V_PA, S_T1))
    for k in ((0, 128, 160, 192, 224) if kv else (0,)):
        s('ds_write_b32 v%d, v%d offset:%d' % (V_PA, V_EXW + 1, k))
    if not kv:
        s('v_lshlrev_b32 v%d, 4, v%d' % (V_EXR, T + 13))
        s('v_add_u32 v%d, %d, v%d' % (V_EXR, M_ST, V_EXR))
        s('v_lshl_add_u32 v%d, v%d, 3, v%d' % (V_EXR + 1, T + 9, V_EXR))
    s('s_and_b32 s%d, s2, 7' % S_T1)
    s('s_lshl2_add_u32 s%d, s%d, s%d' % (S_I2, S_T1, S_I2))
    s('s_lshl1_add_u32 s%d, s%d, s%d' % (S_T1, S_I2, S_ROLE))
    s('s_and_b32 s%d, s%d, 3' % (S_RO, S_T1))
    s('s_and_b32 s%d, s%d, 4' % (S_T1, S_T1))
    s('s_lshl2_add_u32 s%d, s%d, s%d' % (S_RO, S_T1, S_RO))
    if not OPT['rot2']:
        s('s_mov_b32 s%d, 0' % S_RO)
    return s


def tlb_warm(s):
    if not OPT['tlb']:
        return
    T = V_T
    s('s_cmp_eq_u32 s%d, 0' % S_WV)
    s('s_cselect_b32 s%d, 128, 0x%x' % (S_T1, OOB))
    for r in (SDBG, SW2, SWO, SB2, SOUT):
        s('buffer_load_dword v%d, v%d, %s, s%d offen' % (T + 15, V_FLO, sr(r, 4), S_T1))
    s('v_lshlrev_b32 v%d, 17, v%d' % (T + 5, V_L16))
    s('v_min_u32 v%d, 0x%x, v%d' % (T + 5, 0x9f0000, T + 5))
    s('buffer_load_dword v%d, v%d, %s, s%d offen' % (T + 15, T + 5, sr(SWS, 4), S_T1))


def dma_x(s, c, addr, tag):
    s('s_add_u32 m0, s%d, %d' % (S_M0X, addr))
    s('buffer_load_dwordx4 v%d, %s, s%d offen lds' % (V_X0, sr(SX, 4), S_KX + c), tag)
    s('buffer_load_dwordx4 v%d, %s, s%d offen offset:1024 lds' % (V_X1, sr(SX, 4), S_KX + c), tag)


def dma_w(s, m0base, c, addr, tag):
    s('s_add_u32 m0, s%d, %d' % (m0base, addr))
    s('buffer_load_dwordx4 v%d, %s, s%d offen lds' % (V_W, sr(SW, 4), S_KW + c), tag)
    s('buffer_load_dwordx4 v%d, %s, s%d offen offset:1024 lds' % (V_WB, sr(SW, 4), S_KW + c), tag)


def groups(z):
    out, cur = [], []
    for i in z:
        cur.append(i)
        if i.kind == 'vmem':
            out.append(cur)
            cur = []
    if cur:
        out.append(cur)
    return out


def mix(main, grp, lo=0.0, hi=1.0):
    main = [i for i in main if i is not GAP]
    out, k, n = [], 0, len(main)
    for idx, i in enumerate(main):
        while k < len(grp) and idx >= n * (lo + (hi - lo) * k / len(grp)):
            out.extend(grp[k])
            k += 1
        out.append(i)
    for g in grp[k:]:
        out.extend(g)
    return out


def barrier(z, vm=None, name=None):
    if name:
        stamp(z, name + 'a')
    z.wait(vm=vm, lgkm='all')
    if name:
        stamp(z, name + 'b')
    z('s_barrier')


BLK = [0, 4, 1, 5, 2, 6, 3]


def unit_ks(u):
    return 4 * BLK[u >> 2] + (u & 3)


def unit_loc(u):
    u %= 11
    return (S_QR2, 1, u * 2048) if u < 5 else (S_QR0, 0, (u - 5) * 2048)


def p2_setup(s):
    s('s_lshl_b32 s%d, s%d, 7' % (S_T0, S_ROLE))
    s('s_mul_i32 s%d, s%d, %d' % (S_B2R, S_RW, 448 * XS))
    s('s_add_u32 s%d, s%d, s%d' % (S_B2R, S_B2R, S_T0))
    s('s_mul_i32 s%d, s%d, %d' % (S_WOR, S_RW, 112 * XS))
    s('s_add_u32 s%d, s%d, s%d' % (S_WOR, S_WOR, S_T0))
    s('s_mul_i32 s%d, s%d, %d' % (S_OUTO, S_I2, 64 * XS))
    s('s_add_u32 s%d, s%d, s%d' % (S_OUTO, S_OUTO, S_T0))
    s('s_mul_i32 s%d, s%d, 12288' % (S_QR0, S_RW))
    s('s_lshr_b32 s%d, s%d, 2' % (S_RO3, S_RO))
    s('s_or_b32 s%d, s%d, s%d' % (S_RO3, S_RO3, S_RO))
    s('s_and_b32 s%d, s%d, 7' % (S_RO3, S_RO3))
    s('s_mul_i32 s%d, s%d, 10240' % (S_QR2, S_RW))
    s('s_add_u32 s%d, s%d, %d' % (S_QR2, S_QR2, R2))
    s('s_mul_i32 s%d, s%d, %d' % (S_A, S_I2, 2 * ACT_G))
    s('v_add_u32 v%d, %d, v%d' % (V_B2B, 8 * XS - 1024, V_B2))


def touch(s, t):
    if not OPT['touch']:
        return
    s('s_and_b32 s%d, s2, 0xf8' % S_T2)
    s('s_add_u32 s%d, s%d, s%d' % (S_T2, S_T2, S_WV))
    s('v_min_u32 v%d, %d, v%d' % (t, 48 * 16, V_L16))
    s('s_mul_i32 s%d, s%d, %d' % (S_T3, S_T2, 49 * 128))
    s('v_lshlrev_b32 v%d, 3, v%d' % (t, t))
    s('buffer_load_dword v%d, v%d, %s, s%d offen' % (t + 1, t, sr(SW2, 4), S_T3))
    s('v_min_u32 v%d, %d, v%d' % (t, 12 * 128, t))
    s('s_mul_i32 s%d, s%d, %d' % (S_T3, S_T2, 13 * 128))
    s('buffer_load_dword v%d, v%d, %s, s%d offen' % (t + 1, t, sr(SWO, 4), S_T3))


def ks_dyn(s, dst, u):
    if u < 24:
        s('s_xor_b32 s%d, s%d, %d' % (dst, S_RO, unit_ks(u)))
    else:
        s('s_and_b32 s%d, s%d, 3' % (dst, S_RO))
        s('s_xor_b32 s%d, s%d, %d' % (dst, dst, unit_ks(u)))


def dma_b2(s, u):
    base, _, off = unit_loc(u)
    if u < 28:
        ks_dyn(s, S_T3, u)
        if OPT['x_hit'] & 2:
            s('s_and_b32 s%d, s%d, 7' % (S_T3, S_T3))
        s('s_add_u32 m0, s%d, %d' % (base, off))
        s('s_mul_i32 s%d, s%d, %d' % (S_T3, S_T3, 16 * XS))
        s('s_add_u32 s%d, s%d, s%d' % (S_T3, S_T3, S_B2R))
    else:
        s('s_xor_b32 s%d, s%d, %d' % (S_T3, S_RO3, u - 28))
        s('s_and_b32 s%d, s%d, 1' % (S_T1, S_T3))
        s('s_mul_i32 s%d, s%d, 7' % (S_T3, S_T3))
        s('s_add_u32 s%d, s%d, s%d' % (S_T3, S_T3, S_T1))
        s('s_add_u32 m0, s%d, %d' % (base, off))
        s('s_mul_i32 s%d, s%d, %d' % (S_T3, S_T3, 2 * XS))
        s('s_add_u32 s%d, s%d, s%d' % (S_T3, S_T3, S_WOR))
    w = SW2 if u < 28 else SWO
    s('buffer_load_dwordx4 v%d, %s, s%d offen lds' % (V_B2, sr(w, 4), S_T3), ('b', u))
    s('buffer_load_dwordx4 v%d, %s, s%d offen offset:1024 lds' % (V_B2B, sr(w, 4), S_T3), ('b', u))


def sync_arrive(s, k):
    s('ds_write_b32 v%d, v%d offset:%d' % (V_PA, V_ONE, k * 32))


def sync_wait(s, k, nw, T):
    j = nspin[0]
    nspin[0] += 1
    s('v_mov_b32 v%d, %d' % (T + 8, M_SY))
    s('L_sy%d:' % j)
    for h in range(nw // 4):
        s('ds_read_b128 %s, v%d offset:%d' % (vr(T + 4 * h, 4), T + 8, k * 32 + h * 16))
    s('s_add_u32 s%d, s%d, 1' % (S_SPIN, S_SPIN))
    s('s_cmp_gt_u32 s%d, 0x%x' % (S_SPIN, SPIN_LIMIT))
    s('s_cbranch_scc1 L_sz%d' % j)
    s.wait(lgkm='all')
    for h in range(1, nw - 1, 2):
        s('v_and_b32 v%d, v%d, v%d' % (T + h, T + h, T + h + 1))
    for h in range(1, nw, 2):
        s('v_and_b32 v%d, v%d, v%d' % (T, T, T + h))
    s('v_readfirstlane_b32 s%d, v%d' % (S_T2, T))
    s('s_cmp_lg_u32 s%d, 1' % S_T2)
    s('s_cbranch_scc1 L_sy%d' % j)
    s('L_sz%d:' % j)
    s.wait(lgkm='all')


def flag(s, off):
    if OPT['fatom']:
        s('buffer_atomic_add v%d, v%d, %s, s%d offen offset:%d sc1' % (V_ONE, V_FLO, sr(SWS, 4), S_FL, off))
    else:
        s('buffer_store_dword v%d, v%d, %s, s%d offen offset:%d sc1' % (V_ONE, V_FLO, sr(SWS, 4), S_FL, off))


def f0_load(s):
    s('buffer_load_dword v%d, v%d, %s, 0 offen sc1' % (V_POLL, V_FLO, sr(SDBG, 4)), 'f0')


def f0_check(s):
    s('v_mov_b32 v%d, 32' % (V_T + 15))
    stamp(s, 'f0a')
    s.wait(vm='f0')
    stamp(s, 'f0b')
    spin_check(s, V_POLL, V_T + 15, V_FLO, SDBG, '0', 1)


def poll_early(s):
    poll_base(s)
    poll_async(s, 0)


def xreg(c, j):
    return V_X + 16 * c + 4 * j


def dots(s, c):
    for j in range(4):
        s.wait(lgkm=[('x', c, j)])
        for r in range(4):
            x = xreg(c, j) + r
            s('v_dot2c_f32_bf16 v%d, s%d, v%d' % (V_ST + (r & 1), S_ONES, x))
            s('v_dot2c_f32_bf16 v%d, v%d, v%d' % (V_ST + 2 + (r & 1), x, x))


def stats_write(s):
    s('v_add_f32 v%d, v%d, v%d' % (V_ST, V_ST, V_ST + 1))
    s('v_add_f32 v%d, v%d, v%d' % (V_ST + 1, V_ST + 2, V_ST + 3))
    s('ds_write_b64 v%d, %s' % (V_EXR + 1, vr(V_ST, 2)))


def stats_final(kind):
    s, T = Seg(), V_T
    s('ds_read_b128 %s, v%d' % (vr(T, 4), V_EXR), 'st')
    s.append(GAP)
    s.wait(lgkm='st')
    s('v_add_f32 v%d, v%d, v%d' % (T, T, T + 2))
    s('v_add_f32 v%d, v%d, v%d' % (T + 1, T + 1, T + 3))
    s('v_mul_f32 v%d, %s, v%d' % (T, f32(1.0 / 448), T))
    s('v_mul_f32 v%d, %s, v%d' % (T + 1, f32(1.0 / 448), T + 1))
    s('v_fma_f32 v%d, -v%d, v%d, v%d' % (T + 1, T, T, T + 1))
    s('v_max_f32 v%d, 0, v%d' % (T + 1, T + 1))
    s('v_cvt_pk_bf16_f32 v%d, v%d, v%d' % (T + 1, T + 1, T + 1))
    s('v_lshlrev_b32 v%d, 16, v%d' % (T + 1, T + 1))
    s('v_add_f32 v%d, %s, v%d' % (T + 1, f32(1e-5), T + 1))
    s('v_cvt_pk_bf16_f32 v%d, v%d, v%d' % (T + 1, T + 1, T + 1))
    s('v_lshlrev_b32 v%d, 16, v%d' % (T + 1, T + 1))
    s('v_sqrt_f32 v%d, v%d' % (T + 1, T + 1))
    s('v_cvt_pk_bf16_f32 v%d, -v%d, -v%d' % (T, T, T))
    s('v_cvt_pk_bf16_f32 v%d, v%d, 0' % (T + 1, T + 1))
    s('v_cndmask_b32 v%d, v%d, 0, %s' % (V_EXR, T, sr(S_HI, 2)))
    s('v_lshlrev_b32 v%d, 16, v%d' % (V_ST + 2, T + 1))
    s('v_rcp_f32 v%d, v%d' % (V_ST + 3, V_ST + 2))
    s('v_cndmask_b32 v%d, v%d, 0, %s' % (V_EXR + 1, T + 1, sr(S_HI, 2)))
    if kind == 'gelu':
        s('v_mul_f32 v%d, %s, v%d' % (V_ST, f32(GC1), V_ST + 3))
        s('v_mul_f32 v%d, v%d, v%d' % (T, V_ST + 3, V_ST + 3))
        s('v_mul_f32 v%d, %s, v%d' % (V_ST + 1, f32(GC3), V_ST + 3))
        s('v_mul_f32 v%d, v%d, v%d' % (V_ST + 1, T, V_ST + 1))
    elif kind == 'phi':
        s('v_mul_f32 v%d, s%d, v%d' % (V_ST, S_L2E, V_ST + 3))
    return s


def ext_parts(acc, off, exw, swap, bias=None, T=V_T + 8):
    r, b, m = Seg(), Seg(), Seg()
    tag = ('cs', id(r))
    r('ds_read_b128 %s, v%d offset:%d' % (vr(T, 4), V_CSR, off), tag)
    b.wait(lgkm=[tag])
    b('v_add_f32 v%d, v%d, v%d' % (T, T, T + 1))
    b('v_add_f32 v%d, v%d, v%d' % (T + 2, T + 2, T + 3))
    b('v_add_f32 v%d, v%d, v%d' % (T, T, T + 2))
    b('v_cvt_pk_bf16_f32 v%d, v%d, v%d' % (T + 1, T, T))
    b('v_lshlrev_b32 v%d, 16, v%d' % (T + 1, T + 1))
    b('v_sub_f32 v%d, v%d, v%d' % (T + 1, T, T + 1))
    b('v_cvt_pk_bf16_f32 v%d, v%d, v%d' % (exw, T, T + 1))
    if bias is not None:
        r('v_mov_b32 v%d, v%d' % (exw + 1, bias))
    x, y = (V_EXR, exw) if swap else (exw, V_EXR)
    m('v_mfma_f32_32x32x8_bf16 %s, %s, %s, %s' % (vr(acc, 16), vr(x, 2), vr(y, 2), vr(acc, 16)))
    KEEP.append(r)
    return r, b, m


KEEP = []


def head(parts, stats=None):
    st = [i for i in stats if i is not GAP] if stats is not None else []
    out = st[:1]
    for p in parts:
        out += p[0]
    out += st[1:]
    for p in parts:
        out += p[1]
    for p in parts:
        out += p[2]
    return out


def epi_rowlane(kind, acc, tag, handoff=False, keep=None):
    s, T = Seg(), V_T
    for grp in range(4):
        a = [acc + 4 * grp + e for e in range(4)]
        t = [T + e for e in range(4)]
        if kind == 'gelu':
            for e in range(4):
                s('v_mul_f32 v%d, v%d, v%d' % (t[e], a[e], a[e]))
            for e in range(4):
                s('v_fma_f32 v%d, v%d, v%d, v%d' % (t[e], t[e], V_ST + 1, V_ST))
            for e in range(4):
                s('v_mul_f32 v%d, v%d, v%d' % (t[e], a[e], t[e]))
            for e in range(4):
                s('v_exp_f32 v%d, v%d' % (t[e], t[e]))
            for e in range(4):
                s('v_fma_f32 v%d, v%d, v%d, v%d' % (t[e], t[e], V_ST + 2, V_ST + 2))
            for e in range(4):
                s('v_rcp_f32 v%d, v%d' % (t[e], t[e]))
            for e in range(4):
                s('v_mul_f32 v%d, v%d, v%d' % (a[e], a[e], t[e]))
        else:
            for e in range(4):
                s('v_mul_f32 v%d, v%d, v%d' % (t[e], a[e], V_ST))
            for e in range(4):
                s('v_exp_f32_e64 v%d, v%d clamp' % (t[e], t[e]))
            for e in range(4):
                s('v_fma_f32 v%d, v%d, v%d, s%d' % (a[e], a[e], V_ST + 3, S_EPS))
            for e in range(4):
                s('v_max_f32 v%d, s%d, v%d' % (a[e], S_EPS, a[e]))
            for e in range(4):
                s('v_add_f32 v%d, v%d, v%d' % (a[e], a[e], t[e]))
        p = acc + 8 * (grp >> 1) + 2 * (grp & 1) if keep is None else keep + 2 * grp
        s('v_cvt_pk_bf16_f32 v%d, v%d, v%d' % (p, a[0], a[1]))
        s('v_cvt_pk_bf16_f32 v%d, v%d, v%d' % (p + 1, a[2], a[3]))
        if kind == 'phi' and grp == 3:
            s('v_cndmask_b32 v%d, v%d, 0, %s' % (p, p, sr(S_HI, 2)))
            s('v_cndmask_b32 v%d, v%d, 0, %s' % (p + 1, p + 1, sr(S_HI, 2)))
        if grp & 1 and keep is None:
            f = grp >> 1
            if handoff:
                s('ds_write_b128 v%d, %s offset:%d' % (V_RA, vr(acc + 8 * f, 4), f * 1024))
                continue
            s('buffer_store_dwordx4 %s, v%d, %s, s%d offen offset:%d sc1' % (vr(acc + 8 * f, 4), V_L16, sr(SWS, 4), S_H, f * 1024), tag)
    return s


def lc_role(ffn):
    kind = 'gelu' if ffn else 'phi'
    nm = 'f' if ffn else 'q'
    s, T = Seg(nm), V_T
    if not ffn:
        s('L_q:')
    s('s_mul_i32 s%d, s%d, %d' % (S_T1, S_G, 64 if ffn else 56))
    s('v_lshrrev_b32 v%d, 1, v%d' % (T + 6, T + 10))
    s('v_lshl_add_u32 v%d, v%d, 3, s%d' % (T + 5, T + 14, S_T1))
    s('v_lshlrev_b32 v%d, 6, v%d' % (T + 6, T + 6))
    s('v_xor_b32 v%d, v%d, v%d' % (T + 5, T + 5, T + 6))
    s('v_lshl_add_u32 v%d, v%d, 7, v%d' % (V_WA, T + 12, T + 5))
    for j in range(1, 4):
        s('v_xor_b32 v%d, %d, v%d' % (V_WA + j, j << 11, V_WA))
    srd(s, SWS, WS_BYTES)
    srd(s, SDBG, 256)
    s('s_waitcnt lgkmcnt(0)')
    if not ffn:
        s('s_lshl1_add_u32 s%d, s%d, s%d' % (S_T2, S_RB, S_HALF))
        s('s_mul_i32 s%d, s%d, 5' % (S_T1, S_T2))
        s('s_add_u32 s%d, s%d, s%d' % (S_T1, S_T1, S_WV))
        s('s_lshl_b32 s%d, s%d, 10' % (S_T1, S_T1))
        s('s_add_u32 s%d, s%d, 0x%x' % (S_T1, S_T1, KV_OFF))
        s('s_lshl_b32 s%d, s%d, 10' % (S_LAST, S_T2))
        s('s_add_u32 s%d, s%d, 0x%x' % (S_LAST, S_LAST, ST_OFF))
        s('s_cmp_lt_u32 s%d, 5' % S_WV)
        s('s_cselect_b32 s%d, s%d, 0x%x' % (S_T1, S_T1, OOB))
        s('s_cmp_eq_u32 s%d, 5' % S_WV)
        s('s_cselect_b32 s%d, s%d, s%d' % (S_T1, S_LAST, S_T1))
        s('buffer_store_dwordx4 %s, v%d, %s, s%d offen sc1' % (vr(V_ST, 4), V_L16, sr(SWS, 4), S_T1), 'zero')
    s('s_cmp_eq_u32 s%d, 1' % S_G)
    s('s_cbranch_scc1 L_%sb' % nm)
    step = 128 if ffn else 112
    region = [R0, R1, R0, R1]
    acc = V_ACC

    def stream(g):
        z = Seg(nm + 'ab'[g])
        if g:
            z('L_%sb:' % nm)
        xa = Rebase([V_XA + j for j in range(4)], 0, 0)
        wa = Rebase([V_WA + j for j in range(4)], 0, 512)

        def triple(t, c):
            dma_x(t, c, XSLOT[c], ('t', c))
            if g:
                dma_w(t, S_M0W, c, R0 + c * 8192, ('t', c))

        def lc(t, q, c):
            dma_w(t, S_M0W, c, region[q] + c * 8192, ('l', q, c))

        def wread(t, q, c, j):
            o = wa.off(t, region[q] + c * 8192)
            for u in range(2):
                t('ds_read_b64_tr_b16 %s, v%d offset:%d' % (vr(V_WF + 4 * j + 2 * u, 2), V_WA + j, o + u * 512), ('w', q, c, j))

        def xread(t, c, j):
            o = xa.off(t, XSLOT[c])
            t('ds_read_b128 %s, v%d offset:%d' % (vr(xreg(c, j), 4), V_XA + j, o), ('x', c, j))

        def kstep(q, c, j):
            t = Seg()
            t.wait(lgkm=[('w', q, c, j)])
            first = c == 0 and j == 0
            t('v_mfma_f32_32x32x16_bf16 %s, %s, %s, %s' % (vr(acc, 16), vr(V_WF + 4 * j, 4), vr(xreg(c, j), 4), '0' if first else vr(acc, 16)))
            if j == 0:
                t('v_mfma_f32_16x16x32_bf16 %s, %s, %s, %s' % (vr(V_CS, 4), vr(V_SEL, 4), vr(V_WF + 4 * j, 4), '0' if first else vr(V_CS, 4)))
            if c < 6:
                wread(t, q, c + 1, j)
            return t

        def preread(t, q):
            for j in range(4):
                wread(t, q, 0, j)

        def gemm(t, q, fill=(), extra=None):
            t('s_setprio 1')
            slots = [kstep(q, c, j) for c in range(7) for j in range(4)]
            for k, gi in enumerate(groups(extra) if extra is not None else []):
                slots[1 + OPT['gsp'] * k].extend(gi)
            t.extend(interleave(slots, list(fill), 0, 20))
            t('ds_write_b32 v%d, v%d' % (V_CSW, V_CS))

        def next_col(t, last=False):
            for r in (V_W, V_WB):
                if last and ffn:
                    t('v_add_u32 v%d, s%d, v%d' % (r, S_LAST, r))
                else:
                    t('v_add_u32 v%d, %d, v%d' % (r, step, r))

        def epi(t, q, extra=None, pre=None, handoff=False, hi=0.85, keep=False):
            grp = groups(extra) if extra is not None else []
            t('s_setprio 2')
            t.extend(head([ext_parts(acc, 0, V_EXW, False, V_B1 + q if ffn else None)], pre))
            if not keep:
                t('s_setprio %d' % OPT['eprio'])
            stamp(t, 'x%d' % (2 * q + g + 1))
            for gi in grp[:2]:
                t.extend(gi)
            t.extend(mix(epi_rowlane(kind, acc, ('h', q), handoff, None if ffn else V_PQ + 8 * q), grp[2:], 0.03, hi))
            if ffn:
                t('s_add_u32 s%d, s%d, 4096' % (S_H, S_H))

        def duty(q, chunks, units=(), step_col=True):
            d = Seg()
            if step_col:
                next_col(d, q == 3)
            for k in chunks:
                lc(d, q, k)
            if ffn:
                for u in units:
                    dma_b2(d, u)
            return d

        late = deferred(False)
        late('s_lshl2_add_u32 s%d, s%d, s%d' % (S_H, S_RB, S_RW))
        late('s_mul_i32 s%d, s%d, %d' % (S_H, S_H, ACT_G))
        late('s_add_u32 s%d, s%d, %d' % (S_H, S_H, g * 2048 + (0 if ffn else 112 * 1024)))
        late('s_lshl_b32 s%d, s%d, %d' % (S_T1, S_T0 if ffn else S_HALF, 5 if ffn else 14))
        late('s_add_u32 s%d, s%d, s%d' % (S_H, S_H, S_T1))
        if ffn:
            late('s_add_u32 s%d, s%d, %d' % (S_T1, S_M0W, HND))
            late('v_add_u32 v%d, s%d, v%d' % (V_RA, S_T1, V_L16))
            late('s_mul_i32 s%d, s%d, -8' % (S_LAST, S_PEND))
            late('s_add_u32 s%d, s%d, 128' % (S_LAST, S_LAST))
            srd(late, SB1, 1792 * 2)
            late('v_lshlrev_b32 v%d, 1, v%d' % (T + 5, T + 8))
            for q in range(3):
                late('buffer_load_ushort v%d, v%d, %s, s%d offen offset:%d' % (V_B1 + q, T + 5, sr(SB1, 4), S_T0, q * 128 + g * 64), 'b1')
            if not g:
                late('s_mul_i32 s%d, s%d, -7' % (S_T1, S_PEND))
                late('s_add_u32 s%d, s%d, s%d' % (S_T1, S_T1, S_T0))
                late('s_add_u32 s%d, s%d, 384' % (S_T1, S_T1))
                late('buffer_load_ushort v%d, v%d, %s, s%d offen' % (V_B1 + 3, T + 5, sr(SB1, 4), S_T1), 'b1')
        if g:
            late('s_mov_b32 s%d, 0x%x' % (S_FL, OOB))
        else:
            late('s_lshr_b32 s%d, s%d, 1' % (S_T1, S_P) if ffn else 's_lshl_b32 s%d, s%d, 1' % (S_T1, S_HALF))
            late('s_lshl2_add_u32 s%d, s%d, s%d' % (S_T1, S_RB, S_T1))
            late('s_mul_i32 s%d, s%d, %d' % (S_FL, S_T1, FL_G))
            late('s_lshl1_add_u32 s%d, s%d, s%d' % (S_FL, S_PEND, S_FL))
            late('s_lshl_b32 s%d, s%d, 28' % (S_T1, S_RW))
            late('s_add_u32 s%d, s%d, s%d' % (S_FL, S_FL, S_T1))
            late('s_add_u32 s%d, s%d, 0x%x' % (S_FL, S_FL, FL_OFF))
        NL = OPT['nlate']

        def some(k):
            return late[len(late) * k // NL:len(late) * (k + 1) // NL] if k < NL else []

        triple(z, 1)
        estamp(z, 't1')
        z.extend(some(0))
        z('s_barrier')
        if g:
            z('s_setprio 1')
        triple(z, 2)
        for c in range(-1, 7):
            if c < 6:
                barrier(z, ['t0', 'zero'] if c < 0 else [('t', c + 1)], 's%d' % c if c >= 0 else 'pre')
            if c < 0:
                stamp(z, 1)
                if not ffn and not g:
                    z('s_lshl_b32 s%d, s%d, 28' % (S_T2, S_WV))
                    z('buffer_atomic_add v%d, v%d, %s, s%d offen sc1' % (V_ONE, V_FLO, sr(SDBG, 4), S_T2))
            d = Seg()
            if c < 3:
                triple(d, c + 4)
            if c == 3:
                next_col(d)
            for k in {3: ([], [0]), 4: ([], [1]), 5: ([3], [2])}.get(c, ([], []))[g]:
                lc(d, 1, k)
            if g:
                if c == 6:
                    break
                for j in range(4):
                    xread(z, c + 1, j)
                z.extend(mix(some(c + 2), groups(d)))
                if c == 5:
                    preread(z, 0)
                dots(z, c + 1)
            else:
                for j in range(4):
                    if c == 6:
                        z.wait(lgkm=[('x', c, j)])
                    if c >= 0:
                        z.extend(kstep(0, c, j))
                    else:
                        wread(z, 0, 0, j)
                    if c < 6:
                        xread(z, c + 1, j)
                z.extend(mix(some(c + 2), groups(d)))
        if g:
            stats_write(z)
            barrier(z, [('l', 1, 0), 'b1'])
        else:
            z('ds_write_b32 v%d, v%d' % (V_CSW, V_CS))
            barrier(z, 'b1')
        stamp(z, 2)
        if not g:
            d = Seg()
            if not ffn:
                d('v_and_b32 v%d, 0xffff, v%d' % (V_XA, V_EXR))
                d('v_lshl_or_b32 v%d, v%d, 16, v%d' % (V_XA, V_EXR + 1, V_XA))
                d('v_lshrrev_b32 v%d, 2, v%d' % (V_XA + 1, V_L16))
                d('v_lshl_add_u32 v%d, s%d, 7, v%d' % (V_XA + 1, S_RW, V_XA + 1))
                d('v_cndmask_b32 v%d, v%d, v%d, %s' % (V_XA + 1, V_XA + 1, V_FLO, sr(S_HI, 2)))
                d('buffer_store_dword v%d, v%d, %s, s%d offen sc1' % (V_XA, V_XA + 1, sr(SWS, 4), S_LAST))
            f0_load(d)
            if ffn:
                p2_setup(d)
            epi(z, 0, d, pre=stats_final(kind))
            preread(z, 1)
            barrier(z, [('l', 1, 3)], 'e1')
            stamp(z, 'h1')
            gemm(z, 1, extra=duty(2, (1, 2, 3, 4)))
            f0_check(z)
            barrier(z, [('h', 0)], 'e2')
            stamp(z, 'h2')
            epi(z, 1)
            preread(z, 2)
            barrier(z, [('l', 2, 4)], 'e3')
            stamp(z, 3)
            if ffn:
                flag(z, 0)
            gemm(z, 2, extra=duty(3, (1, 2, 3, 4)))
            barrier(z, [('h', 1)], 'e4')
            stamp(z, 'h4')
            epi(z, 2)
            if ffn:
                for k in range(4):
                    z('v_xor_b32 v%d, s%d, v%d' % (V_WA + k, S_PEND, V_WA + k))
            preread(z, 3)
            barrier(z, [('l', 3, 4)], 'e5')
            stamp(z, 4)
            d = duty(0, (), (5, 6, 7), False)
            if ffn:
                flag(d, 256)
            gemm(z, 3, extra=d)
            barrier(z, [('h', 2), ('b', 7)], 'e6')
            stamp(z, 5)
            if ffn:
                z('ds_read_b128 %s, v%d' % (vr(V_WF, 4), V_RA), 'hnd')
                z('ds_read_b128 %s, v%d offset:1024' % (vr(V_WF + 4, 4), V_RA), 'hnd')
                z('s_sub_u32 s%d, s%d, 2048' % (S_T0, S_H))
                z('s_cmp_eq_u32 s%d, 0' % S_PEND)
                z('s_cselect_b32 s%d, 0, %d' % (S_T1, 3 * 4096 + 2048))
                z('s_sub_u32 s%d, s%d, s%d' % (S_H, S_H, S_T1))
                d = Seg()
                d.wait(lgkm='hnd')
                for f in range(2):
                    d('buffer_store_dwordx4 %s, v%d, %s, s%d offen offset:%d sc1' % (vr(V_WF + 4 * f, 4), V_L16, sr(SWS, 4), S_T0, f * 1024), 'h5')
                epi(z, 3, d, keep=True)
                z.wait(vm=[('h', 3)])
                sync_arrive(z, 0)
                sync_wait(z, 0, 4, T)
                flag(z, 512)
                stamp(z, 6)
                z('s_branch L_p2a')
            else:
                epi(z, 3)
                z('s_barrier')
                z('s_branch L_qo')
            return z
        d = duty(1, (4, 5, 6), (), False)
        if ffn:
            p2_setup(d)
            dma_b2(d, 0)
        gemm(z, 0, stats_final(kind), d)
        barrier(z, [('l', 1, 6)], 'e1')
        stamp(z, 'h1')
        for q in (1, 2):
            d = duty(q + 1, (0,))
            epi(z, q - 1, d)
            preread(z, q)
            barrier(z, [('l', q + 1, 0)], 'e%d' % (2 * q))
            stamp(z, 'h%d' % (2 * q))
            gemm(z, q, extra=duty(q + 1, (5, 6), (2 * q - 1, 2 * q), False))
            barrier(z, [('l', q + 1, 6)], 'e%d' % (2 * q + 1))
            stamp(z, q + 2)
        if ffn:
            d = Seg()
            poll_early(d)
            for u in range(8, 11):
                dma_b2(d, u)
            epi(z, 2, d, handoff=True, hi=1.0)
            barrier(z, None, 'e6')
            z('s_branch L_p2b')
        else:
            epi(z, 2)
            preread(z, 3)
            barrier(z)
            stamp(z, 5)
            gemm(z, 3)
            barrier(z)
            epi(z, 3)
        return z

    return s, stream(0), stream(1)


def q_out():
    s, T = Seg('qo'), V_T
    NUM, KF, RAW = V_X, V_X + 64, V_X + 96
    s('L_qo:')
    stamp(s, 6)
    s('s_lshl3_add_u32 s%d, s%d, s%d' % (S_T0, S_HALF, S_WV))
    s('s_lshl_b32 s%d, s%d, 7' % (S_PL, S_T0))
    s('s_add_u32 s%d, s%d, 0x%x' % (S_PL, S_PL, FKV_OFF))
    s('s_lshl_b32 s%d, s%d, 12' % (S_T0, S_T0))
    s('s_add_u32 s%d, s%d, 0x%x' % (S_T0, S_T0, KV_OFF))
    s('v_lshrrev_b32 v%d, 2, v%d' % (T, V_L16))
    s('s_add_u32 s%d, s%d, %d' % (S_T1, S_M0X, R2))
    s('v_add_u32 v%d, s%d, v%d' % (T + 1, S_T1, V_L16))
    s('s_lshl_b32 s%d, s%d, 11' % (S_T1, S_G))
    s('s_add_u32 s%d, s%d, %d' % (S_T1, S_T1, R2))
    s('v_add_u32 v%d, s%d, v%d' % (T + 2, S_T1, V_L16))
    poll_check(s, 0, 16, sync=True, atomic=OPT['qatom'])
    stamp(s, 7)
    for r in range(16):
        s('buffer_load_dword v%d, v%d, %s, s%d offen offset:%d sc1' % (RAW + r, T, sr(SWS, 4), S_T0, r * 256), ('kv', r >> 3))
    for f in range(2):
        s.wait(vm=[('kv', f)])
        for k in range(4):
            s('v_cvt_pk_bf16_f32 v%d, v%d, v%d' % (RAW + 8 * f + k, RAW + 8 * f + 2 * k, RAW + 8 * f + 2 * k + 1))
        s('ds_write_b128 v%d, %s offset:%d' % (T + 1, vr(RAW + 8 * f, 4), f * 1024))
    barrier(s)
    stamp(s, 8)
    for q in range(4):
        for f in range(2):
            s('ds_read_b128 %s, v%d offset:%d' % (vr(KF + 8 * q + 4 * f, 4), T + 2, q * 4096 + f * 1024), ('kf', q, f))
    for q in range(4):
        for f in range(2):
            s.wait(lgkm=[('kf', q, f)])
            s('v_mfma_f32_32x32x16_bf16 %s, %s, %s, %s' % (vr(NUM + 16 * q, 16), vr(KF + 8 * q + 4 * f, 4), vr(V_PQ + 8 * q + 4 * f, 4), vr(NUM + 16 * q, 16) if f else '0'))
    for p in range(2):
        for q in (2 * p, 2 * p + 1):
            s('v_add_f32 v%d, s%d, v%d' % (T + 4 + 2 * q, S_EPS, NUM + 16 * q + 12))
            s('v_add_f32 v%d, s%d, v%d' % (T + 5 + 2 * q, S_EPS, NUM + 16 * q + 12))
        for q in (2 * p, 2 * p + 1):
            s('v_permlane32_swap_b32 v%d, v%d' % (T + 4 + 2 * q, T + 5 + 2 * q))
        for q in (2 * p, 2 * p + 1):
            s('v_rcp_f32 v%d, v%d' % (T + 5 + 2 * q, T + 5 + 2 * q))
        for q in (2 * p, 2 * p + 1):
            s('v_cndmask_b32 v%d, v%d, 0, %s' % (T + 4 + 2 * q, T + 5 + 2 * q, sr(S_HI, 2)))
        for q in (2 * p, 2 * p + 1):
            n = NUM + 16 * q
            for f in range(2):
                for k in range(8 * f, 8 * f + 8, 2):
                    sel = 0 if k >= 12 else 1
                    s('v_pk_mul_f32 %s, %s, %s op_sel:[0,%d] op_sel_hi:[1,%d]' % (vr(n + k, 2), vr(n + k, 2), vr(T + 4 + 2 * q, 2), sel, sel))
                for k in range(4):
                    s('v_cvt_pk_bf16_f32 v%d, v%d, v%d' % (n + 8 * f + k, n + 8 * f + 2 * k, n + 8 * f + 2 * k + 1))
                s('buffer_store_dwordx4 %s, v%d, %s, s%d offen offset:%d sc1' % (vr(n + 8 * f, 4), V_L16, sr(SWS, 4), S_H, f * 1024), ('o', p))
            s('s_add_u32 s%d, s%d, 4096' % (S_H, S_H))
    stamp(s, 9)
    barrier(s, 'all')
    flag(s, 768)
    flag(s, 768 + FL_G)
    s('s_branch L_fin')
    return s


def kv_role():
    s, T = Seg('kv'), V_T
    s('L_kv:')
    s('s_mul_i32 s%d, s%d, 3' % (S_P, S_HALF))
    s('s_add_u32 s%d, s%d, s%d' % (S_P, S_P, S_ROLE))
    s('s_sub_u32 s%d, s%d, 4' % (S_P, S_P))

    def item(t, n):
        if n >= 14:
            if n == 14:
                t('v_add_u32 v%d, %d, v%d' % (V_W, XS, V_W))
                t('v_add_u32 v%d, %d, v%d' % (V_WB, XS, V_WB))
            dma_w(t, S_M0X, n - 14, kv_slot(n), ('i', n))
        elif n & 1:
            dma_w(t, S_M0X, n >> 1, kv_slot(n), ('i', n))
        else:
            dma_x(t, n >> 1, kv_slot(n), ('i', n))

    s('s_lshl_b32 s%d, s%d, 2' % (S_T1, S_P))
    s('s_lshr_b32 s%d, 0xdb9630, s%d' % (S_LAST, S_T1))
    s('s_and_b32 s%d, s%d, 15' % (S_LAST, S_LAST))
    s('s_lshr_b32 s%d, 0x322333, s%d' % (S_PEND, S_T1))
    s('s_and_b32 s%d, s%d, 15' % (S_PEND, S_PEND))
    s('s_add_u32 s%d, s%d, s%d' % (S_T1, S_LAST, S_G))
    s('s_mul_i32 s%d, s%d, 56' % (S_T1, S_T1))
    s('s_lshl_b32 s%d, s%d, 7' % (S_T0, S_P))
    s('s_sub_u32 s%d, s%d, s%d' % (S_T1, S_T1, S_T0))
    s('s_add_u32 s%d, s%d, 1' % (S_T0, S_G))
    s('s_cmp_lt_u32 s%d, s%d' % (S_T0, S_PEND))
    s('s_cselect_b32 s%d, 56, 0' % S_T0)
    s('v_min_u32 v%d, 6, v%d' % (T + 14, T + 14))
    s('v_lshl_add_u32 v%d, v%d, 3, s%d' % (T + 5, T + 14, S_T1))
    s('v_lshlrev_b32 v%d, 6, v%d' % (T + 6, T + 10))
    for t in range(2):
        if t:
            s('v_add_u32 v%d, s%d, v%d' % (T + 5, S_T0, T + 5))
        s('v_xor_b32 v%d, v%d, v%d' % (T + 11, T + 5, T + 6))
        s('v_lshl_add_u32 v%d, v%d, 8, v%d' % (V_WA + 4 * t, T + 12, T + 11))
        for j in range(1, 4):
            s('v_xor_b32 v%d, %d, v%d' % (V_WA + 4 * t + j, j << 12, V_WA + 4 * t))
    srd(s, SWS, WS_BYTES)
    srd(s, SDBG, 256)
    item(s, 2)
    item(s, 3)
    estamp(s, 't1')
    s.extend(deferred(True))
    s('s_lshl1_add_u32 s%d, s%d, s%d' % (S_H, S_RB, S_HALF))
    s('s_lshl3_add_u32 s%d, s%d, s%d' % (S_H, S_H, S_RW))
    s('s_lshl_b32 s%d, s%d, 7' % (S_H, S_H))
    s('s_add_u32 s%d, s%d, 0x%x' % (S_H, S_H, ST_OFF))
    s('v_lshlrev_b32 v%d, 2, v%d' % (V_ST + 1, T + 8))
    s('s_lshl_b32 s%d, s%d, 7' % (S_T0, S_RW))
    s('s_add_u32 s%d, s%d, %d' % (S_T0, S_T0, M_R))
    s('v_lshl_add_u32 v%d, v%d, 4, s%d' % (V_RA, T + 9, S_T0))
    s('v_add_u32 v%d, s%d, v%d' % (V_ST + 2, S_T0, V_ST + 1))
    s('v_mov_b32 v%d, %d' % (T + 5, M_SY + 128))
    s('v_cndmask_b32 v%d, v%d, v%d, %s' % (V_ST + 3, V_RA, T + 5, sr(S_PAD, 2)))
    s('v_mov_b32 v%d, 0' % (V_EXR + 1))
    s('s_waitcnt lgkmcnt(0)')
    s('s_cmp_eq_u32 s%d, 1' % S_G)
    s('s_cbranch_scc1 L_kb')

    def body(g):
        b = Seg('kb' if g else 'ka')
        if g:
            b('L_kb:')
        xa = Rebase([V_XA + j for j in range(4)], 0, 0)
        wa = [Rebase([V_WA + 4 * t + j for j in range(4)], 0, 1024) for t in range(2)]
        TS = [[0, 1], [1]] if g else [[0], [0, 1]]
        PK1 = V_X + 48

        def witem(q, c):
            return 2 * c + 1 if q == 0 else 14 + c

        def wf(t, j):
            return (V_ACC + 48 if t != g else V_WF) + 4 * j

        def acc(q, t):
            return V_ACC + 16 * (q + t)

        def wread(z, q, c, j, t):
            o = wa[t].off(z, kv_slot(witem(q, c)))
            for u in range(2):
                z('ds_read_b64_tr_b16 %s, v%d offset:%d' % (vr(wf(t, j) + 2 * u, 2), V_WA + 4 * t + j, o + u * 1024), ('w', q, c, j, t))

        def xread(z, c, j):
            o = xa.off(z, kv_slot(2 * c))
            z('ds_read_b128 %s, v%d offset:%d' % (vr(xreg(c, j), 4), V_XA + j, o))

        def kstep(q, c, j):
            out = []
            first = c == 0 and j == 0
            for t in TS[q]:
                z = Seg()
                z.wait(lgkm=[('w', q, c, j, t)])
                z('v_mfma_f32_32x32x16_bf16 %s, %s, %s, %s' % (vr(acc(q, t), 16), vr(xreg(c, j), 4), vr(wf(t, j), 4), '0' if first else vr(acc(q, t), 16)))
                if j == 0:
                    z('v_mfma_f32_16x16x32_bf16 %s, %s, %s, %s' % (vr(V_CS + 4 * t, 4), vr(V_SEL, 4), vr(wf(t, j), 4), '0' if first else vr(V_CS + 4 * t, 4)))
                if c < 6:
                    wread(z, q, c + 1, j, t)
                    if q == 0 and t == TS[q][-1]:
                        xread(z, c + 1, j)
                elif q == 0 and not g:
                    wread(z, 1, 0, j, 0)
                    wread(z, 1, 0, j, 1)
                if c == 6 and j == 2 and t == TS[q][-1]:
                    for tt in TS[q]:
                        z('ds_write_b32 v%d, v%d offset:%d' % (V_CSW, V_CS + 4 * tt, q * 1536 + (g + tt) * 512))
                out.append(z)
            return out

        def ext(q, t, k):
            return ext_parts(acc(q, t), q * 1536 + (g + t) * 512, (V_EXW, V_EXW + 2, V_CS)[k], True, T=V_T + 4 + 4 * k)

        def rload(z, dst, key, addr=V_RA):
            for i in range(4):
                z('ds_read_b128 %s, v%d offset:%d' % (vr(dst + 4 * i, 4), addr, i * 32), key)

        def stat_load(z):
            z('buffer_load_dword v%d, v%d, %s, s%d offen sc1' % (V_ST, V_ST + 1, sr(SWS, 4), S_H), 'stat')

        def stat_use(z):
            z('v_and_b32 v%d, 0xffff, v%d' % (T, V_ST))
            z('v_lshl_or_b32 v%d, v%d, 16, v%d' % (T, V_ST, T))
            z('v_cndmask_b32 v%d, v%d, 0, %s' % (V_EXR, T, sr(S_HI, 2)))

        def phi_k(t, rb):
            e = Seg()
            for i in range(4):
                a = [acc(0, t) + 4 * i + k for k in range(4)]
                for k in range(4):
                    e('v_fma_f32 v%d, v%d, v%d, s%d' % (a[k], a[k], rb + 4 * i + k, S_EPS))
                for k in range(4):
                    e('v_mul_f32 v%d, s%d, v%d' % (T + k, S_L2E, a[k]))
                for k in range(4):
                    e('v_exp_f32_e64 v%d, v%d clamp' % (T + k, T + k))
                for k in range(4):
                    e('v_max_f32 v%d, s%d, v%d' % (a[k], S_EPS, a[k]))
                for k in range(4):
                    e('v_add_f32 v%d, v%d, v%d' % (a[k], a[k], T + k))
                e('v_cvt_pk_bf16_f32 v%d, v%d, v%d' % (acc(0, t) + 2 * i, a[0], a[1]))
                e('v_cvt_pk_bf16_f32 v%d, v%d, v%d' % (acc(0, t) + 2 * i + 1, a[2], a[3]))
            return e

        def hand_addr(z):
            z('s_mul_i32 s%d, s%d, 10240' % (S_T0, S_RW))
            z('s_add_u32 s%d, s%d, %d' % (S_T0, S_T0, R2 + 8192))
            z('v_add_u32 v%d, s%d, v%d' % (V_XA, S_T0, V_L16))

        def prod_setup(z, rb):
            rload(z, rb, 'r2', V_ST + 3)
            z('v_cndmask_b32 v%d, 0, 1.0, %s' % (V_XA + 1, sr(S_PAD, 2)))
            z('s_lshl_b32 s%d, s%d, 12' % (S_T0, S_RW))
            z('s_add_u32 s%d, s%d, %d' % (S_T0, S_T0, HND + g * 16384))
            z('v_add_u32 v%d, s%d, v%d' % (V_XA + 2, S_T0, V_L16))

        def kv_prod(z, t, pk, rb):
            z.wait(lgkm='r2')
            v, d = acc(1, t), V_X + 16 * t
            for f in range(2):
                for k in range(8 * f, 8 * f + 8):
                    z('v_fma_f32 v%d, v%d, v%d, v%d' % (v + k, v + k, rb + k, V_XA + 1))
                for k in range(4):
                    z('v_cvt_pk_bf16_f32 v%d, v%d, v%d' % (v + 8 * f + k, v + 8 * f + 2 * k, v + 8 * f + 2 * k + 1))
            z('s_setprio 2')
            for f in range(2):
                z('v_mfma_f32_32x32x16_bf16 %s, %s, %s, %s' % (vr(d, 16), vr(pk + 4 * f, 4), vr(v + 8 * f, 4), vr(d, 16) if f else '0'))

        def part_write(z, t):
            for i in range(4):
                z('ds_write_b128 v%d, %s offset:%d' % (V_XA + 2, vr(V_X + 16 * t + 4 * i, 4), t * 16384 + i * 1024))

        if not g:
            b('s_setprio 1')
        for c in range(-1, 7):
            barrier(b, 't0' if c < 0 else [('i', 2 * c + 3 if c < 6 else 14)], 's%d' % c if c >= 0 else 'pre')
            if c < 0:
                stamp(b, 1)
            d = Seg()
            if g and c == 3:
                f0_load(d)
            if g and c == 5:
                f0_check(d)
            if c < 6 or not g:
                item(d, 2 * c + 6)
                item(d, 2 * c + 7)
            if c == 6:
                if g:
                    stat_load(d)
                else:
                    item(d, 20)
            if not g and c >= 0:
                b.extend(d)
            for j in range(4):
                if c >= 0:
                    for z in kstep(0, c, j):
                        b.extend(z)
                else:
                    for t in TS[0]:
                        wread(b, 0, 0, j, t)
                    xread(b, 0, j)
            if g or c < 0:
                b.extend(d)
        barrier(b, [('i', 16)], 's7')
        stamp(b, 2)

        if g:
            RB = V_ACC + 48
            parts = [ext(0, t, t) for t in range(2)]
            for p in parts:
                b.extend(p[0])
            item(b, 18)
            for p in parts:
                b.extend(p[1])
            item(b, 19)
            hand_addr(b)
            b.wait(vm='stat')
            spin_check(b, V_ST, V_ONE, V_ST + 1, SWS, 's%d' % S_H, 0xffffffff)
            b('s_setprio 2')
            stat_use(b)
            b('v_and_b32 v%d, 0xffff0000, v%d' % (T + 1, V_ST))
            b('v_rcp_f32 v%d, v%d' % (T + 1, T + 1))
            for p in parts:
                b.extend(p[2])
            b('ds_write_b32 v%d, v%d' % (V_ST + 2, T + 1))
            rload(b, RB, 'r')
            b('s_setprio 0')
            item(b, 20)
            barrier(b, [('i', 18)], 'v0')
            b.extend(phi_k(0, RB))
            for f in range(2):
                b('ds_write_b128 v%d, %s offset:%d' % (V_XA, vr(acc(0, 0) + 4 * f, 4), f * 1024))
            barrier(b, [('i', 20)], 'v1')
            d = Seg()
            p2_setup(d)
            for u in range(OPT['kpf']):
                dma_b2(d, u)
            r = Seg()
            for j in range(4):
                wread(r, 1, 0, j, 1)
            b.extend(mix(mix(phi_k(1, RB), [[i] for i in r]), groups(d)))
            prod_setup(b, RB)
            barrier(b, None, 'v2')
            stamp(b, 3)
            b('s_setprio 1')
            for c in range(7):
                for j in range(4):
                    b.extend(kstep(1, c, j)[0])
            barrier(b, None, 'v3')
            b('s_setprio 2')
            b.extend(head([ext(1, 1, 0)]))
            poll_base(b)
            kv_prod(b, 1, acc(0, 1), RB)
            part_write(b, 1)
            poll_async(b, 0)
            barrier(b, None, 'kk')
            stamp(b, 4)
            b('s_setprio 1')
            for u in range(OPT['kpf'], 11):
                dma_b2(b, u)
            b('s_branch L_p2b')
            return b
        for c in range(7):
            if c in (2, 4):
                barrier(b, [('i', 16 + c)], 'v%d' % (c // 2 - 1))
            for j in range(4):
                for z in kstep(1, c, j):
                    b.extend(z)
                if c == 2 and j == 1:
                    stat_load(b)
                if c == 5 and j == 1:
                    hand_addr(b)
                if c == 5 and j == 3:
                    b.wait(vm='stat')
                    stat_use(b)
        barrier(b, None, 'v2')
        stamp(b, 3)
        b('s_setprio 2')
        b('v_mov_b32 v%d, 0' % (V_CS + 1))
        RB, RP = V_X + 64, V_WF
        e = head([ext(1, 1, 0), ext(0, 0, 1), ext(1, 0, 2)])
        z = Seg()
        prod_setup(z, RP)
        for f in range(2):
            z('ds_read_b128 %s, v%d offset:%d' % (vr(PK1 + 4 * f, 4), V_XA, f * 1024), 'r2')
        rload(z, RB, 'r')
        b.extend(e[:3] + list(z) + e[3:])
        b('s_setprio 0')
        z = Seg()
        z('s_lshl_b32 s%d, s%d, 10' % (S_T1, S_RW))
        z('s_add_u32 s%d, s%d, %d' % (S_T1, S_T1, HND))
        z('v_add_u32 v%d, s%d, v%d' % (V_SEL + 2, S_T1, V_L16))
        z('s_cmp_eq_u32 s%d, 3' % S_RW)
        z('s_cselect_b64 vcc, %s, 0' % sr(S_HI, 2))
        z('v_lshrrev_b32 v%d, 2, v%d' % (V_SEL + 3, V_L16))
        z('v_cndmask_b32 v%d, v%d, v%d, vcc' % (V_SEL + 3, V_SEL + 3, V_FLO))
        z('s_lshl2_add_u32 s%d, s%d, s%d' % (S_H, S_LAST, S_RW))
        z('s_lshl_b32 s%d, s%d, 10' % (S_H, S_H))
        z('s_add_u32 s%d, s%d, 0x%x' % (S_H, S_H, KV_OFF))
        kv_prod(z, 1, PK1, RP)
        z('s_setprio 0')
        z.wait(lgkm='r')
        z.extend(phi_k(0, RB))
        kv_prod(z, 0, acc(0, 0), RP)
        k = len(z) * OPT['kcut'] // 100
        b.extend(z[:k])
        barrier(b, None, 'v3')
        b.extend(z[k:])
        part_write(b, 1)
        b('s_add_u32 s%d, s%d, 4096' % (S_P, S_H))
        b('s_add_u32 s%d, s%d, 8192' % (S_HALF, S_H))
        b('s_cmp_eq_u32 s%d, 3' % S_PEND)
        b('s_cselect_b32 s%d, s%d, 0x%x' % (S_HALF, S_HALF, OOB))
        part_write(b, 0)
        barrier(b, None, 'kk')
        stamp(b, 4)
        R = V_X + 32
        for h in range(3):
            for p in range(4):
                b('ds_read_b128 %s, v%d offset:%d' % (vr(R + 16 * h + 4 * p, 4), V_SEL + 2, h * 16384 + p * 4096), ('red', h))
        for h in range(3):
            r = R + 16 * h
            b.wait(lgkm=[('red', h)])
            for k in (0, 2):
                b('v_pk_add_f32 %s, %s, %s' % (vr(r + k, 2), vr(r + k, 2), vr(r + 4 + k, 2)))
                b('v_pk_add_f32 %s, %s, %s' % (vr(r + 8 + k, 2), vr(r + 8 + k, 2), vr(r + 12 + k, 2)))
                b('v_pk_add_f32 %s, %s, %s' % (vr(r + k, 2), vr(r + k, 2), vr(r + 8 + k, 2)))
            for k in range(4):
                b('buffer_atomic_add_f32 v%d, v%d, %s, s%d offen offset:%d sc1' % (r + k, V_SEL + 3, sr(SWS, 4), (S_H, S_P, S_HALF)[h], k * 256), 'atom')
        stamp(b, 5)
        b('s_lshl_b32 s%d, s%d, 7' % (S_FL, S_LAST))
        b('s_lshl_b32 s%d, s%d, 28' % (S_T1, S_RW))
        b('s_add_u32 s%d, s%d, s%d' % (S_FL, S_FL, S_T1))
        b('s_add_u32 s%d, s%d, 0x%x' % (S_FL, S_FL, FKV_OFF))
        b('s_lshl_b32 s%d, s%d, 4' % (S_T1, S_PEND))
        b('v_cmp_gt_u32 vcc, s%d, v%d' % (S_T1, V_L16))
        b('v_lshlrev_b32 v%d, 3, v%d' % (V_PL, V_L16))
        b('v_cndmask_b32 v%d, v%d, v%d, vcc' % (V_PL, V_FLO, V_PL))
        p2_setup(b)
        b.wait(vm='atom')
        sync_arrive(b, 0)
        sync_wait(b, 0, 4, T)
        stamp(b, 6)
        b('buffer_atomic_add v%d, v%d, %s, s%d offen sc1' % (V_ONE, V_PL, sr(SWS, 4), S_FL))
        b('s_branch L_p2a')
        return b

    return s, body(0), body(1)


def res_load():
    s, T = Seg(), V_RES + 8
    s('s_lshl_b32 s%d, s%d, 7' % (S_T0, S_ROLE))
    s('v_lshrrev_b32 v%d, 3, v0' % (T + 1))
    s('v_and_b32 v%d, 0x70, v%d' % (T + 2, V_L16))
    s('v_mul_u32_u24 v%d, %d, v%d' % (T, XS, T + 1))
    s('v_add_u32 v%d, v%d, v%d' % (T, T, T + 2))
    s('buffer_load_dwordx4 %s, v%d, %s, s%d offen' % (vr(V_RES, 4), T, sr(SX, 4), S_OUTO), 'res')
    s('buffer_load_dwordx4 %s, v%d, %s, s%d offen' % (vr(V_RES + 4, 4), T + 2, sr(SB2, 4), S_T0), 'res')
    s('v_and_b32 v%d, 31, v%d' % (T + 1, T + 1))
    s('v_and_b32 v%d, 7, v%d' % (T + 3, T + 1))
    s('v_bfe_u32 v%d, v%d, 1, 1' % (T + 4, T + 1))
    s('v_lshl_add_u32 v%d, v%d, 3, v%d' % (T + 3, T + 4, T + 3))
    s('v_lshlrev_b32 v%d, 4, v%d' % (T + 3, T + 3))
    s('v_xor_b32 v%d, v%d, v%d' % (T + 3, T + 3, T + 2))
    s('v_lshl_add_u32 v%d, v%d, 8, v%d' % (T + 1, T + 1, T + 3))
    return s


def frag_addr(s, T):
    s('v_lshrrev_b32 v%d, 4, v%d' % (T, V_L16))
    s('v_bfe_u32 v%d, v%d, 2, 2' % (T + 1, T))
    s('v_and_b32 v%d, 3, v%d' % (T + 2, T))
    s('v_bfe_u32 v%d, v%d, 4, 1' % (T + 3, T))
    s('v_lshl_add_u32 v%d, v%d, 2, v%d' % (T + 2, T + 3, T + 2))
    s('v_lshrrev_b32 v%d, 1, v%d' % (T + 3, T + 1))
    s('v_lshlrev_b32 v%d, 6, v%d' % (T + 3, T + 3))
    s('v_lshl_add_u32 v%d, v%d, 3, v%d' % (T + 2, T + 2, T + 3))
    s('v_lshl_add_u32 v%d, v%d, 7, v%d' % (T + 2, T + 1, T + 2))
    s('v_lshrrev_b32 v%d, 5, v%d' % (T + 3, T))
    s('v_lshl_add_u32 v%d, v%d, 9, v%d' % (T + 3, T + 3, T + 2))


def bf(par, ct):
    return V_BF + 8 * par + 4 * ct


def acc2(ct, rg):
    return V_ACC + 32 * ct + 16 * rg


def part_addr(g):
    z, T = Seg(), V_NUM
    z('v_bfe_u32 v%d, v%d, 4, 5' % (T, V_L16))
    z('v_and_b32 v%d, 7, v%d' % (T + 1, T))
    z('v_bfe_u32 v%d, v%d, 1, 1' % (T + 2, T))
    z('v_lshrrev_b32 v%d, 9, v%d' % (T + 3, V_L16))
    z('v_xor_b32 v%d, v%d, v%d' % (T + 2, T + 2, T + 3))
    z('v_lshl_add_u32 v%d, v%d, 3, v%d' % (T + 1, T + 2, T + 1))
    z('v_lshlrev_b32 v%d, 4, v%d' % (T + 1, T + 1))
    z('v_lshl_add_u32 v%d, v%d, 8, v%d' % (T + 1, T, T + 1))
    z('v_add_u32 v%d, s%d, v%d' % (T + 8, S_QR0, T + 1))
    z('v_add_u32 v%d, s%d, v%d' % (T + 16, S_QR2, T + 1))
    for rg in range(2):
        for k in range(1, 8):
            z('v_xor_b32 v%d, %d, v%d' % (T + 8 + 8 * rg + k, k << 4, T + 8 + 8 * rg))
    return z


def read_addr(g):
    z, T, A = Seg(), V_RES + 8, V_RES + 16
    for w in range(4):
        z('v_add_u32 v%d, %d, v%d' % (A + 2 * w, (R2 + w * 10240) if g else w * 12288, T + 1))
        z('v_xor_b32 v%d, 128, v%d' % (A + 2 * w + 1, A + 2 * w))
    return z


def res_unpack():
    z, U = Seg(), V_RES + 24
    z.wait(vm='res')
    for k in range(4):
        z('v_lshlrev_b32 v%d, 16, v%d' % (U + 2 * k, V_RES + k))
        z('v_and_b32 v%d, 0xffff0000, v%d' % (U + 2 * k + 1, V_RES + k))
        z('v_lshlrev_b32 v%d, 16, v%d' % (V_RES + k, V_RES + 4 + k))
        z('v_and_b32 v%d, 0xffff0000, v%d' % (V_RES + 4 + k, V_RES + 4 + k))
        z('v_add_f32 v%d, v%d, v%d' % (U + 2 * k, U + 2 * k, V_RES + k))
        z('v_add_f32 v%d, v%d, v%d' % (U + 2 * k + 1, U + 2 * k + 1, V_RES + 4 + k))
    return z


def phase2b():
    s, T = Seg('p2b'), V_NUM
    s('L_p2b:')
    if OPT['p1only']:
        s('s_branch L_fin')
        return s
    stamp(s, 5)
    s('s_setprio 1')
    s('v_add_u32 v%d, %d, v%d' % (V_L16B, ACT_G, V_L16))
    s('s_lshl_b32 s%d, s%d, 13' % (S_T0, S_RW))
    s('s_add_u32 s%d, s%d, s%d' % (S_AO, S_A, S_T0))
    s('s_add_u32 s%d, s%d, %d' % (S_AO, S_AO, 112 * 1024))
    s('s_mul_i32 s%d, s%d, %d' % (S_T0, S_RW, 28 * 1024))
    s('s_add_u32 s%d, s%d, s%d' % (S_A, S_A, S_T0))
    DEP = OPT['dep']

    def abuf(u, rg):
        return V_AB + 8 * (u % DEP) + 4 * rg

    def aload(z, u):
        if u < 28:
            ks_dyn(z, S_T0, u)
        else:
            z('s_xor_b32 s%d, s%d, %d' % (S_T0, S_RO3, u - 28))
        if OPT['x_hit'] & 1:
            z('s_and_b32 s%d, s%d, 3' % (S_T0, S_T0))
        z('s_lshl_b32 s%d, s%d, 10' % (S_T0, S_T0))
        z('s_add_u32 s%d, s%d, s%d' % (S_T0, S_T0, S_A if u < 28 else S_AO))
        for rg in range(2):
            z('buffer_load_dwordx4 %s, v%d, %s, s%d offen sc1' % (vr(abuf(u, rg), 4), V_L16B if rg else V_L16, sr(SWS, 4), S_T0), ('a', u))

    stage_check(s, 0)
    stamp(s, 'c0')
    z = Seg()
    for u in range(DEP - 1):
        aload(z, u)
        if u == min(DEP - 2, max(0, 8 - OPT['plead'])):
            poll_async(z, 1)
    y = Seg()
    frag_addr(y, T)
    for reg, base in enumerate((S_QR0, S_QR2)):
        y('v_add_u32 v%d, s%d, v%d' % (V_BA + 2 * reg, base, T + 3))
        y('v_xor_b32 v%d, 64, v%d' % (V_BA + 2 * reg + 1, V_BA + 2 * reg))
    s.extend(mix(y, groups(z)))

    def bread(z, u):
        _, reg, off = unit_loc(u)
        z.wait(vm=[('b', u)])
        for ct in range(2):
            for h in range(2):
                z('ds_read_b64_tr_b16 %s, v%d offset:%d' % (vr(bf(u & 1, ct) + 2 * h, 2), V_BA + 2 * reg + ct, off + h * 1024), ('bf', u, ct))

    bread(s, 0)
    NU = 36
    STG = {8: 1, 16: 2}
    late = list(read_addr(1)) + list(part_addr(1)) + list(res_unpack())

    def unit(s, u, loads):
        nxt = u + DEP - 1
        if nxt in STG:
            stage_check(s, STG[nxt])
            stamp(s, 'c%d' % STG[nxt])
        z = Seg()
        if nxt + OPT['plead'] in (16, 28):
            poll_async(z, 2 if nxt < 16 else 3)
        if not loads and u == 28 - OPT['llead']:
            poll_async(z, 3)
        if nxt < NU and loads:
            aload(z, nxt)
        if 11 <= u + OPT['lb'] < NU:
            dma_b2(z, u + OPT['lb'])
        if u == 6:
            z.extend(res_load())
        now = groups(z)
        if 12 <= u < 20:
            k0, k1 = len(late) * (u - 12) // 8, len(late) * (u - 11) // 8
            now += [[i] for i in late[k0:k1]]
        rd = Seg()
        if u < NU - 1:
            bread(rd, u + 1)
        stamp(s, 'w%d' % u)
        s.wait(vm=[('a', u)])
        stamp(s, 'u%d' % u)
        k = 0
        for ct in range(2):
            s.wait(lgkm=[('bf', u, ct)])
            for rg in range(2):
                s('v_mfma_f32_32x32x16_bf16 %s, %s, %s, %s' % (vr(acc2(ct, rg), 16), vr(bf(u & 1, ct), 4), vr(abuf(u, rg), 4), vr(acc2(ct, rg), 16) if u else '0'))
                if k < 2:
                    s.extend(rd[:-2] if k == 0 else rd[-2:])
                for gi in range(len(now) * k // 4, len(now) * (k + 1) // 4):
                    s.extend(now[gi])
                k += 1

    U0 = 29 - DEP
    for u in range(U0):
        unit(s, u, True)
    stage_check(s, 3, miss='L_p2late')
    fast, lateseg, tail = Seg('p2f'), Seg('p2l'), Seg('p2t')
    for u in range(U0, 28):
        unit(fast, u, True)
    lateseg('L_p2late:')
    for u in range(U0, 28):
        unit(lateseg, u, False)
    stage_check(lateseg, 3)
    stamp(lateseg, 'c3')
    for u in range(28, 28 + DEP - 1):
        aload(lateseg, u)
    lateseg('s_branch L_p2tail')
    head_, s = s, tail
    s('L_p2tail:')
    for u in range(28, NU):
        unit(s, u, True)
    stamp(s, 8)
    for ct in range(2):
        for rg in range(2):
            for i in range(4):
                s('ds_write_b128 v%d, %s' % (V_NUM + 8 + 8 * rg + 4 * ct + i, vr(acc2(ct, rg) + 4 * i, 4)))
    s('s_branch L_final')
    return head_, fast, lateseg, tail


def phase2a():
    s = Seg('p2a')
    s('L_p2a:')
    if OPT['p1only']:
        s('s_branch L_fin')
        return s
    s.extend(res_load())
    s.extend(read_addr(0))
    s.extend(res_unpack())
    return s


def final():
    s, T = Seg('final'), V_RES + 8
    s('L_final:')
    if not OPT['p1only']:
        D, U = V_ACC, V_RES + 24
        barrier(s)
        stamp(s, 9)
        for w in range(4):
            for h in range(2):
                s('ds_read_b128 %s, v%d' % (vr(D + 8 * w + 4 * h, 4), V_RES + 16 + 2 * w + h), ('fin', w))
        for w in range(4):
            s.wait(lgkm=[('fin', w)])
            for k in range(4):
                s('v_pk_add_f32 %s, %s, %s' % (vr(U + 2 * k, 2), vr(U + 2 * k, 2), vr(D + 8 * w + 2 * k, 2)))
        for k in range(4):
            s('v_cvt_pk_bf16_f32 v%d, v%d, v%d' % (U + k, U + 2 * k, U + 2 * k + 1))
        s('buffer_store_dwordx4 %s, v%d, %s, s%d offen' % (vr(U, 4), T, sr(SOUT, 4), S_OUTO))
    return s


def fin():
    s = Seg('fin')
    s('L_fin:')
    if OPT['diag']:
        stamp(s, 10)
        s('s_waitcnt lgkmcnt(0)')
        s('v_mov_b32 v4, 0')
        for k in range(11):
            s('v_writelane_b32 v4, s%d, %d' % (S_KA + 2 * k, k))
        s('v_writelane_b32 v4, s%d, 11' % S_SPIN)
        s('s_lshl3_add_u32 s%d, s2, s%d' % (S_T0, S_WV))
        s('s_lshl_b32 s%d, s%d, 8' % (S_T0, S_T0))
        s('s_add_u32 s%d, s%d, 0x%x' % (S_T0, S_T0, TS_OFF))
        s('v_lshrrev_b32 v5, 2, v%d' % V_L16)
        s('buffer_store_dword v4, v5, %s, s%d offen' % (sr(SWS, 4), S_T0))
        if OPT['diag'] == 3:
            s('s_not_b32 s%d, s%d' % (S_T0, S_KA))
            s('v_writelane_b32 v4, s%d, 11' % S_T0)
            s('s_cmp_eq_u32 s%d, 4' % S_WV)
            s('s_cselect_b32 s%d, 16, 0x%x' % (S_T0, OOB))
            s('s_cmp_lt_u32 s%d, 4' % S_ROLE)
            s('s_cselect_b32 s%d, s%d, 0x%x' % (S_T0, S_T0, OOB))
            s('s_mov_b64 exec, 0xfff')
            s('buffer_atomic_umax v4, v5, %s, s%d offen sc1' % (sr(SDBG, 4), S_T0))
    if OPT['diag'] == 5:
        s('s_cmp_lg_u32 s%d, 4' % S_WV)
        s('s_cbranch_scc1 L_end')
        s('s_mov_b64 exec, 1')
        s('s_not_b32 s%d, s%d' % (S_T0, S_KA + 2 * OPT['sa']))
        s('v_mov_b32 v4, s%d' % S_T0)
        s('v_mov_b32 v5, s%d' % (S_KA + 2 * OPT['sb']))
        s('v_mov_b32 v6, 1')
        s('v_mov_b32 v7, 0')
        s('buffer_atomic_umax v4, v7, %s, 0 offen offset:128 sc1' % sr(SDBG, 4))
        s('buffer_atomic_umax v5, v7, %s, 0 offen offset:132 sc1' % sr(SDBG, 4))
        s('s_waitcnt vmcnt(0)')
        s('buffer_atomic_add v6, v7, %s, 0 offen offset:136 sc0 sc1' % sr(SDBG, 4))
        s('s_waitcnt vmcnt(0)')
        s('v_readfirstlane_b32 s%d, v6' % S_T0)
        s('s_cmp_lg_u32 s%d, 255' % S_T0)
        s('s_cbranch_scc1 L_end')
        s('buffer_load_dwordx2 v[4:5], v7, %s, 0 offen offset:128 sc1' % sr(SDBG, 4))
        s('s_waitcnt vmcnt(0)')
        s('v_add_u32 v4, v4, v5')
        s('s_nop 1')
        s('v_readfirstlane_b32 s%d, v4' % S_T0)
        s('s_add_u32 s%d, s%d, 1' % (S_T0, S_T0))
        s('s_mul_i32 s%d, s%d, %d' % (S_T0, S_T0, OPT['mul']))
        s('s_min_u32 s%d, s%d, 200000' % (S_T0, S_T0))
        s('s_memrealtime s[66:67]')
        s('s_waitcnt lgkmcnt(0)')
        s('L_dly:')
        s('s_memrealtime s[68:69]')
        s('s_waitcnt lgkmcnt(0)')
        s('s_sub_u32 s68, s68, s66')
        s('s_cmp_lt_u32 s68, s%d' % S_T0)
        s('s_cbranch_scc1 L_dly')
    if OPT['diag'] == 4:
        s('s_cmp_lg_u32 s2, %d' % OPT['wg'])
        s('s_cbranch_scc1 L_end')
        s('s_cmp_lg_u32 s%d, 4' % S_WV)
        s('s_cbranch_scc1 L_end')
        s('s_sub_u32 s%d, s%d, s%d' % (S_T0, S_KA + 2 * OPT['sb'], S_KA + 2 * OPT['sa']))
        if not OPT['clk']:
            s('s_mul_i32 s%d, s%d, 10' % (S_T0, S_T0))
        s('s_min_u32 s%d, s%d, 200000' % (S_T0, S_T0))
        s('s_memrealtime s[66:67]')
        s('s_waitcnt lgkmcnt(0)')
        s('L_dly:')
        s('s_memrealtime s[68:69]')
        s('s_waitcnt lgkmcnt(0)')
        s('s_sub_u32 s68, s68, s66')
        s('s_cmp_lt_u32 s68, s%d' % S_T0)
        s('s_cbranch_scc1 L_dly')
    s('L_end:')
    s('s_endpgm')
    return s


def main():
    pro, prw, pre = prologue()
    f, fa, fb = lc_role(True)
    q, qa, qb = lc_role(False)
    qo = q_out()
    k, ka, kb = kv_role()
    (p2b, p2f, p2l, p2t), p2a, fl, fi = phase2b(), phase2a(), final(), fin()
    paths = [
        [pro, pre, f, fa, p2a, fl, fi],
        [pro, prw, pre, f, fb, p2b, p2f, p2t, fl, fi],
        [pro, prw, pre, f, fb, p2b, p2l, p2t, fl, fi],
        [pro, pre, q, qa, qo, fi],
        [pro, prw, pre, q, qb, qo, fi],
        [pro, prw, pre, k, ka, p2a, fl, fi],
        [pro, prw, pre, k, kb, p2b, p2f, p2t, fl, fi],
        [pro, prw, pre, k, kb, p2b, p2l, p2t, fl, fi],
    ]
    resolve_waits(paths)
    n = pad_hazards(paths)
    assert pad_hazards(paths) == 0
    body = render([pro, prw, pre, f, fa, fb, k, ka, kb, q, qa, qb, qo, p2l, p2b, p2f, p2t, p2a, fl, fi, slow])
    head = open('cdna_kernels/%s.s.ref' % NAME).read().split('\n')
    head = [l for l in head if l.startswith(';') and '@launch' not in l]
    out = '\n'.join(head) + '''
; @launch grid=(256,1,1) block=(512,1,1) lds=%d
.amdgcn_target "amdgcn-amd-amdhsa--gfx950"
.text
.globl %s_kernel
.p2align 8
.type %s_kernel,@function
%s_kernel:
L_codebeg:
%s
L_codeend:
.section .rodata,"a"
.p2align 6
.amdhsa_kernel %s_kernel
  .amdhsa_next_free_vgpr 256
  .amdhsa_next_free_sgpr 102
  .amdhsa_accum_offset 256
  .amdhsa_group_segment_fixed_size 0
  .amdhsa_kernarg_size 88
  .amdhsa_user_sgpr_count 2
  .amdhsa_user_sgpr_kernarg_segment_ptr 1
  .amdhsa_system_sgpr_workgroup_id_x 1
.end_amdhsa_kernel
''' % (LDS_BYTES, NAME, NAME, NAME, body, NAME)
    if OPT['x_plain'] & 1:
        out = '\n'.join(l.replace(' sc1', '') if 'buffer_store_dwordx4' in l else l for l in out.split('\n'))
    if OPT['x_plain'] & 2:
        out = '\n'.join(l.replace(' sc1', '') if 'buffer_load_dwordx4' in l else l for l in out.split('\n'))
    open(sys.argv[1], 'w').write(out)
    print('wrote %s: %d lines, %d pad states' % (sys.argv[1], out.count('\n'), n))


main()
```

```python
import struct
import sys
from asmlib import Seg, Ins, Wait, GAP, interleave, resolve_waits, pad_hazards, render, vr, sr

NAME = 'parallel_sum__linear_attn_block__dense_activation_gelu__prompt'
OPT = dict(back=0, x_wait=0, rot1=2, nlate=1, mul=10, fatom=0, tlb=0, kbar=4, kphi=26, ntail=4, p1at=2, ascal=1, kpf=2, kcut=100, qatom=1, batom=1, pkind=1, x_hit=0, gsp=3, eprio=0, aprio=2, aprio2=2, aprio3=2, lb=10, touch=0, kprio=1, plead=3, x_noa=0, x_nopoll=0, x_noflag=0, x_nost=0, x_plain=0, rot2=1, dep=6, noatom=0, diag=0, p1only=0, sa=0, sb=10, clk=0, wg=0)
for a in sys.argv[2:]:
    k, v = a.split('=')
    OPT[k] = v if k == 'st' else int(v)
STAMPS = OPT.get('st', 'en,1,2,3,4,5,6,7,8,9,10').split(',')


def f32(x):
    return '0x%08x' % struct.unpack('<I', struct.pack('<f', x))[0]


XS, WQS, W1S = 896, 2688, 3584
ACT_G = 147456
KV_OFF = 0x900000
FKV_OFF = 0x910000
FL_OFF = 0x911000
FL_G = 896
ST_OFF = 0x930000
TS_OFF = 0xA00000
WS_BYTES = 0x10000000
OOB = 0x40000000
R0, R1, R2, MISC = 0, 57344, 114688, 155648
M_ST, M_SY, M_CS, M_R = MISC, MISC + 2048, MISC + 4096, MISC + 7168
LDS_BYTES = 163840
LOG2E = 1.4426950408889634
GC1 = -2.0 * 0.7978845608028654 * LOG2E
GC3 = GC1 * 0.044715
SPIN_LIMIT = 1 << 16

S_WV, S_RW, S_G, S_RB, S_ROLE = 3, 4, 5, 6, 7
SX, SW, SWS, SW2, SWO, SOUT, SB1, SB2, SDBG = 8, 12, 16, 20, 24, 28, 32, 36, 40
S_KA = 44
S_KX, S_KW = 66, 73
S_I2, S_HALF, S_T0, S_T1, S_ONES, S_EPS = 80, 81, 82, 83, 84, 85
S_M0W, S_M0X, S_T3, S_RO, S_H, S_FL = 86, 87, 88, 89, 90, 91
S_HI = 92
S_SPIN, S_T2, S_P, S_LAST, S_PEND, S_L2E = 94, 95, 96, 97, 98, 99
S_PAD = 100
S_B2R, S_QR0, S_RO3, S_QR2, S_A, S_WOR, S_OUTO, S_PL = 66, 67, 68, 69, 70, 71, 72, 73
S_AO = 74

V_L16, V_B2, V_X0, V_X1, V_W, V_CSW, V_CSR = 1, 2, 3, 4, 5, 6, 7
V_SEL, V_CS, V_WA, V_XA, V_EXW, V_EXR, V_ST = 8, 12, 20, 28, 32, 36, 38
V_B1 = 16
V_WB, V_RA = 42, 43
V_POLL, V_PA, V_FLO, V_ONE = 44, 45, 46, 47
V_T = 48
V_ACC, V_X, V_WF = 64, 128, 240
V_B2B, V_BA, V_L16B, V_PL = 3, 4, 12, 13
V_NUM, V_BF, V_AB, V_RES = 16, 48, 128, 192
V_PQ = 80
HND = 49152

slow = Seg('slow')
nspin = [0]


def stamp(s, k):
    if OPT['diag'] and str(k) in STAMPS:
        k = STAMPS.index(str(k))
        s('%s %s' % ('s_memtime' if OPT['diag'] == 2 or OPT['clk'] else 's_memrealtime', sr(S_KA + 2 * k, 2)))


EARLY = ['en', 'ka', 't0', 't1']


def estamp(s, k):
    if OPT['diag'] and k in STAMPS:
        s('%s s[100:101]' % ('s_memtime' if OPT['diag'] == 2 or OPT['clk'] else 's_memrealtime'))
        s('s_waitcnt lgkmcnt(0)')
        s('v_mov_b32 v%d, s100' % (120 + EARLY.index(k)))


class Rebase:
    def __init__(self, regs, base, span):
        self.regs, self.base, self.span = regs, base, span

    def off(self, s, addr):
        if not (self.base <= addr and addr - self.base + self.span <= 65535):
            for r in self.regs:
                s('v_add_u32 v%d, 0x%x, v%d' % (r, (addr - self.base) & 0xffffffff, r))
            self.base = addr
        return addr - self.base


def spin_check(s, vpoll, vexp, vaddr, srd, soff, mask):
    k = nspin[0]
    nspin[0] += 1
    s('v_cmp_ge_u32 vcc, v%d, v%d' % (vpoll, vexp))
    s('s_andn2_b32 s%d, 0x%x, vcc_lo' % (S_T2, mask))
    s('s_cbranch_scc1 L_slow%d' % k)
    s('L_ret%d:' % k)
    slow('L_slow%d:' % k)
    slow('s_add_u32 s%d, s%d, 1' % (S_SPIN, S_SPIN))
    slow('s_cmp_gt_u32 s%d, 0x%x' % (S_SPIN, SPIN_LIMIT))
    slow('s_cbranch_scc1 L_ret%d' % k)
    slow('buffer_load_dword v%d, v%d, %s, %s offen sc1' % (vpoll, vaddr, sr(srd, 4), soff))
    slow('s_waitcnt vmcnt(0)')
    slow('v_cmp_ge_u32 vcc, v%d, v%d' % (vpoll, vexp))
    slow('s_nop 1')
    slow('s_andn2_b32 s%d, 0x%x, vcc_lo' % (S_T2, mask))
    slow('s_cbranch_scc1 L_slow%d' % k)
    slow('s_branch L_ret%d' % k)


def poll_base(s):
    s('s_lshr_b32 s%d, s%d, 1' % (S_PL, S_I2))
    s('s_lshl2_add_u32 s%d, s%d, s%d' % (S_PL, S_PL, S_RW))
    s('s_mul_i32 s%d, s%d, %d' % (S_PL, S_PL, FL_G))
    s('s_add_u32 s%d, s%d, 0x%x' % (S_PL, S_PL, FL_OFF))
    s('v_cmp_gt_u32 vcc, 32, v%d' % V_L16)
    s('v_lshlrev_b32 v%d, 3, v%d' % (V_PL, V_L16))
    s('v_cndmask_b32 v%d, v%d, v%d, vcc' % (V_PL, V_FLO, V_PL))


def poll_async(s, k):
    s('buffer_load_dword v%d, v%d, %s, s%d offen offset:%d sc1' % (V_POLL, V_PL, sr(SWS, 4), S_PL, k * 256), ('poll', k))


def stage_check(s, k, miss=None, sync=False, scalar=False):
    if OPT['x_nopoll']:
        return
    j = nspin[0]
    nspin[0] += 1
    mask = 3 if k < 3 else 1
    if sync:
        s('s_branch L_slow%d' % j)
    else:
        s.wait(vm=[('poll', k)])
        s('v_cmp_ne_u32 vcc, 0, v%d' % V_POLL)
        s('s_andn2_b32 s%d, %d, vcc_lo' % (S_T2, mask))
        if miss:
            s('s_cbranch_scc1 %s' % miss)
            return
        s('s_cbranch_scc1 L_slow%d' % j)
    s('L_ret%d:' % j)
    slow('L_slow%d:' % j)
    slow('s_add_u32 s%d, s%d, 1' % (S_SPIN, S_SPIN))
    slow('s_cmp_gt_u32 s%d, 0x%x' % (S_SPIN, SPIN_LIMIT))
    slow('s_cbranch_scc1 L_ret%d' % j)
    if sync and k == 3 and OPT['back']:
        slow('s_sleep %d' % OPT['back'])
    if scalar:
        slow('s_add_u32 s%d, s%d, %d' % (S_T2, S_PL, k * 256))
        slow('s_add_u32 s%d, s%d, %d' % (S_T1, S_PL, k * 256 + (128 if k < 3 else 0)))
        slow('s_buffer_load_dword s%d, %s, s%d glc' % (S_T2, sr(SWS, 4), S_T2))
        if k < 3:
            slow('s_buffer_load_dword s%d, %s, s%d glc' % (S_T1, sr(SWS, 4), S_T1))
        slow('s_waitcnt lgkmcnt(0)')
        if k < 3:
            slow('s_and_b32 s%d, s%d, s%d' % (S_T2, S_T2, S_T1))
        slow('s_cmp_eq_u32 s%d, 0' % S_T2)
    else:
        slow('buffer_load_dword v%d, v%d, %s, s%d offen offset:%d sc1' % (V_POLL, V_PL, sr(SWS, 4), S_PL, k * 256))
        slow('s_waitcnt vmcnt(0)')
        slow('v_cmp_ne_u32 vcc, 0, v%d' % V_POLL)
        slow('s_nop 1')
        slow('s_andn2_b32 s%d, %d, vcc_lo' % (S_T2, mask))
    slow('s_cbranch_scc1 L_slow%d' % j)
    slow('s_branch L_ret%d' % j)


def poll_check(s, k, n, sync=False, atomic=False):
    j = nspin[0]
    nspin[0] += 1
    if OPT['x_nopoll']:
        return
    if sync:
        s('s_branch L_slow%d' % j)
    else:
        s.wait(vm=[('poll', k)])
        s('v_readfirstlane_b32 s%d, v%d' % (S_T2, V_POLL))
        s('s_cmp_lt_u32 s%d, %d' % (S_T2, n))
        s('s_cbranch_scc1 L_slow%d' % j)
    s('L_ret%d:' % j)
    slow('L_slow%d:' % j)
    slow('s_add_u32 s%d, s%d, 1' % (S_SPIN, S_SPIN))
    slow('s_cmp_gt_u32 s%d, 0x%x' % (S_SPIN, SPIN_LIMIT))
    slow('s_cbranch_scc1 L_ret%d' % j)
    if atomic:
        slow('v_mov_b32 v%d, 0' % V_POLL)
        slow('buffer_atomic_add v%d, v%d, %s, s%d offen offset:%d sc0 sc1' % (V_POLL, V_FLO, sr(SWS, 4), S_PL, k * 128))
        slow('s_waitcnt vmcnt(0)')
        slow('v_readfirstlane_b32 s%d, v%d' % (S_T2, V_POLL))
        slow('s_nop 0')
    else:
        slow('s_add_u32 s%d, s%d, %d' % (S_T2, S_PL, k * 128))
        slow('s_buffer_load_dword s%d, %s, s%d glc' % (S_T2, sr(SWS, 4), S_T2))
        slow('s_waitcnt lgkmcnt(0)')
    slow('s_cmp_lt_u32 s%d, %d' % (S_T2, n))
    slow('s_cbranch_scc1 L_slow%d' % j)
    slow('s_branch L_ret%d' % j)


def srd(s, d, nbytes):
    s('s_mov_b32 s%d, 0x%x' % (d + 2, nbytes))
    s('s_mov_b32 s%d, 0x20000' % (d + 3))


XSLOT = [R2, R2 + 16384, R1 + 8192, R1 + 24576, R1 + 40960, R2, R2 + 16384]


def kv_slot(n):
    return ((n + 4) % 9) * 16384


def prologue():
    s, T = Seg('pro'), V_T
    s('s_cmp_ge_u32 s2, 256')
    s('s_cbranch_scc1 L_end')
    estamp(s, 'en')
    s('s_load_dwordx2 %s, s[0:1], 0' % sr(SX, 2))
    s('s_load_dwordx2 %s, s[0:1], 8' % sr(SW, 2))
    s('s_load_dwordx2 %s, s[0:1], 32' % sr(S_HI, 2))
    s('v_readfirstlane_b32 s%d, v0' % S_WV)
    s('s_getpc_b64 s[82:83]')
    s('s_lshr_b32 s%d, s2, 3' % S_T2)
    s('s_lshl_b32 s%d, s%d, 11' % (S_P, S_T2))
    s('v_lshl_add_u32 v%d, v0, 2, s%d' % (T, S_P))
    s('v_min_u32 v%d, L_codeend-L_codebeg-64, v%d' % (T, T))
    s('global_load_dword v%d, v%d, s[82:83]' % (T + 15, T))
    s('s_lshr_b32 s%d, s%d, 6' % (S_WV, S_WV))
    s('v_and_b32 v%d, 63, v0' % T)
    s('s_and_b32 s%d, s%d, 7' % (S_ROLE, S_T2))
    s('v_lshrrev_b32 v%d, 3, v%d' % (T + 1, T))
    s('s_lshr_b32 s%d, s%d, 3' % (S_I2, S_T2))
    s('v_lshrrev_b32 v%d, 4, v%d' % (T + 3, T))
    s('s_and_b32 s%d, s2, 1' % S_HALF)
    s('v_lshl_add_u32 v%d, s%d, 4, v%d' % (T + 5, S_WV, T + 1))
    s('s_bfe_u32 s%d, s2, 0x20001' % S_P)
    s('v_mul_u32_u24 v%d, %d, v%d' % (T + 5, XS, T + 5))
    s('s_lshl2_add_u32 s%d, s%d, s%d' % (S_RB, S_P, S_I2))
    s('v_xor_b32 v%d, v%d, v%d' % (T + 6, T, T + 3))
    s('s_lshl1_add_u32 s%d, s%d, s%d' % (S_T2, S_I2, S_ROLE))
    s('v_and_b32 v%d, 7, v%d' % (T + 6, T + 6))
    s('s_add_u32 s%d, s%d, s%d' % (S_T2, S_T2, S_P))
    s('v_lshl_add_u32 v%d, v%d, 4, v%d' % (V_X0, T + 6, T + 5))
    s('s_mul_i32 s%d, s%d, 3' % (S_T0, S_HALF))
    s('v_xor_b32 v%d, 64, v%d' % (V_X1, V_X0))
    s('s_add_u32 s%d, s%d, s%d' % (S_T2, S_T2, S_T0))
    s('v_add_u32 v%d, %d, v%d' % (V_X1, 8 * XS - 1024, V_X1))
    s('s_mul_i32 s%d, s%d, 37' % (S_T1, S_T2))
    s('v_lshlrev_b32 v%d, 2, v%d' % (T + 4, T + 3))
    s('s_lshr_b32 s%d, s%d, 8' % (S_T1, S_T1))
    s('v_xor_b32 v%d, v%d, v%d' % (T + 4, T, T + 4))
    s('s_mul_i32 s%d, s%d, 7' % (S_T1, S_T1))
    s('s_sub_u32 s%d, s%d, s%d' % (S_T2, S_T2, S_T1))
    if OPT['rot1'] == 0:
        s('s_mov_b32 s%d, 0' % S_T2)
    elif OPT['rot1'] == 2:
        s('s_lshr_b32 s%d, s%d, 1' % (S_T2, S_T2))
    elif OPT['rot1'] == 3:
        s('s_and_b32 s%d, s%d, 4' % (S_T2, S_T2))
    elif OPT['rot1'] == 4:
        s('s_and_b32 s%d, s%d, 6' % (S_T2, S_T2))
    s('s_mul_i32 s%d, s%d, %d' % (S_H, S_RB, 128 * XS))
    s('s_lshl_b32 s%d, s%d, 7' % (S_KX, S_T2))
    s('s_add_u32 s%d, s%d, s%d' % (S_KX, S_KX, S_H))
    s('s_and_b32 s%d, s%d, 3' % (S_RW, S_WV))
    s('s_lshr_b32 s%d, s%d, 2' % (S_G, S_WV))
    s('s_lshl_b32 s%d, s%d, 11' % (S_M0X, S_WV))
    s('s_lshl_b32 s%d, s%d, 11' % (S_M0W, S_RW))
    srd(s, SX, 2048 * XS)
    s('s_add_u32 s%d, s%d, s%d' % (S_T0, S_T0, S_ROLE))
    s('s_lshl_b32 s%d, s%d, 7' % (S_T0, S_T0))
    s('s_add_u32 s%d, s%d, %d' % (S_T0, S_T0, XS - 512))
    s('s_lshl2_add_u32 s%d, s%d, s%d' % (S_P, S_HALF, S_ROLE))
    s('s_and_b32 s%d, s%d, 1' % (S_PEND, S_ROLE))
    s('s_lshl_b32 s%d, s%d, 6' % (S_PEND, S_PEND))
    s('s_movk_i32 s%d, %d' % (S_LAST, WQS))
    s('s_cmp_lt_u32 s%d, 4' % S_ROLE)
    s('s_cselect_b32 s%d, %d, s%d' % (S_LAST, W1S, S_LAST))
    s('s_cselect_b32 s%d, s%d, s%d' % (S_P, S_P, S_HALF))
    s('s_cselect_b32 s%d, s%d, 0' % (S_PEND, S_PEND))
    s('s_mul_i32 s%d, s%d, 448' % (S_T1, S_P))
    s('s_add_u32 s%d, s%d, s%d' % (S_T1, S_T1, S_PEND))
    s('s_lshl_b32 s%d, s%d, 6' % (S_RO, S_LAST))
    s('s_mul_i32 s%d, s%d, s%d' % (S_KW, S_T2, S_RO))
    s('s_mul_i32 s%d, s%d, 448' % (SW + 2, S_LAST))
    s('s_mov_b32 s%d, 0x20000' % (SW + 3))
    s('s_lshl_b32 s%d, s%d, 1' % (S_T2, S_RW))
    s('s_add_u32 s%d, s%d, %d' % (S_FL, S_M0X, kv_slot(1)))
    s('s_bitcmp1_b32 0x70, s%d' % S_ROLE)
    s('s_cselect_b32 s%d, s%d, s%d' % (S_T0, S_T0, S_T1))
    s('s_cselect_b32 s%d, s%d, s%d' % (S_T2, S_WV, S_T2))
    s('s_cselect_b32 s%d, s%d, s%d' % (S_FL, S_FL, S_M0W))
    s('s_cselect_b32 s%d, 4, 3' % S_T1)
    s('s_cselect_b32 s%d, 4, 7' % S_T3)
    s('s_cselect_b32 s%d, 1, s%d' % (S_SPIN, S_G))
    s('v_lshrrev_b32 v%d, s%d, v%d' % (T + 5, S_T1, T))
    s('s_lshl_b32 s%d, s%d, 14' % (S_T3, S_T3))
    s('v_lshl_add_u32 v%d, s%d, 3, v%d' % (T + 5, S_T2, T + 5))
    s('s_add_u32 m0, s%d, s%d' % (S_T3, S_M0X))
    s('v_bfe_u32 v%d, v%d, 0, s%d' % (T + 6, T + 4, S_T1))
    s('s_lshr_b32 s%d, s%d, s%d' % (S_T1, S_RO, S_T1))
    s('v_mul_u32_u24 v%d, s%d, v%d' % (T + 5, S_LAST, T + 5))
    s('s_sub_u32 s%d, s%d, 1024' % (S_T1, S_T1))
    s('v_lshl_add_u32 v%d, v%d, 4, s%d' % (T + 6, T + 6, S_T0))
    s('v_add_u32 v%d, v%d, v%d' % (V_W, T + 5, T + 6))
    s('s_cmp_lt_u32 s%d, 4' % S_ROLE)
    s('v_add_u32 v%d, s%d, v%d' % (V_WB, S_T1, V_W))
    s('s_waitcnt lgkmcnt(0)')
    estamp(s, 'ka')
    assert XSLOT[0] == 7 << 14 and kv_slot(0) == 4 << 14
    s('buffer_load_dwordx4 v%d, %s, s%d offen lds' % (V_X0, sr(SX, 4), S_KX), 't0')
    s('s_cselect_b64 %s, %s, %s' % (sr(SW, 2), sr(S_HI, 2), sr(SW, 2)))
    s('buffer_load_dwordx4 v%d, %s, s%d offen offset:1024 lds' % (V_X1, sr(SX, 4), S_KX), 't0')
    s('s_mov_b32 m0, s%d' % S_FL)
    s('s_cmp_eq_u32 s%d, 0' % S_SPIN)
    s('s_cbranch_scc1 L_now')
    w = Seg('prow')
    w('buffer_load_dwordx4 v%d, %s, s%d offen lds' % (V_W, sr(SW, 4), S_KW), 't0')
    w('buffer_load_dwordx4 v%d, %s, s%d offen offset:1024 lds' % (V_WB, sr(SW, 4), S_KW), 't0')
    e = Seg('proe')
    e('L_now:')
    estamp(e, 't0')
    for d, off in ((SWS, 80), (SB1, 40), (SDBG, 72), (SW2, 48), (SWO, 16), (SB2, 56), (SOUT, 64)):
        e('s_load_dwordx2 %s, s[0:1], %d' % (sr(d, 2), off))
    essential(e)
    e('s_cmp_ge_u32 s%d, 7' % S_ROLE)
    e('s_cbranch_scc1 L_q')
    e('s_cmp_ge_u32 s%d, 4' % S_ROLE)
    e('s_cbranch_scc1 L_kv')
    return s, w, e


def zipper(a, b):
    out = []
    for k in range(max(len(a), len(b))):
        out += a[k:k + 1] + b[k:k + 1]
    return out


def essential(z):
    T = V_T
    k, s = Seg(), Seg()
    k('s_add_u32 s%d, s%d, %d' % (S_T2, S_H, XS))
    for c in range(1, 7):
        k('s_add_u32 s%d, s%d, 128' % (S_KX + c, S_KX + c - 1))
        k('s_add_u32 s%d, s%d, s%d' % (S_KW + c, S_KW + c - 1, S_RO))
        k('s_cmp_eq_u32 s%d, s%d' % (S_KX + c, S_T2))
        k('s_cselect_b32 s%d, s%d, s%d' % (S_KX + c, S_H, S_KX + c))
        k('s_cselect_b32 s%d, 0, s%d' % (S_KW + c, S_KW + c))
    k('s_mov_b32 s%d, 0x3f803f80' % S_ONES)
    s('v_lshlrev_b32 v%d, 4, v%d' % (V_L16, T))
    s('v_and_b32 v%d, 1, v%d' % (T + 7, T + 3))
    s('v_and_b32 v%d, 31, v%d' % (T + 8, T))
    s('v_lshrrev_b32 v%d, 5, v%d' % (T + 9, T))
    s('v_bfe_u32 v%d, v%d, 2, 2' % (T + 10, T))
    s('v_and_b32 v%d, 3, v%d' % (T + 11, T))
    s('v_lshl_add_u32 v%d, s%d, 1, v%d' % (T + 12, S_RW, T + 9))
    s('v_bfe_u32 v%d, v%d, 1, 3' % (T + 5, T))
    s('v_xor_b32 v%d, v%d, v%d' % (T + 5, T + 12, T + 5))
    s('v_lshl_add_u32 v%d, s%d, 5, v%d' % (T + 13, S_RW, T + 8))
    s('v_lshlrev_b32 v%d, 7, v%d' % (V_XA, T + 13))
    s('v_lshl_add_u32 v%d, v%d, 4, v%d' % (V_XA, T + 5, V_XA))
    for j in range(1, 4):
        s('v_xor_b32 v%d, %d, v%d' % (V_XA + j, j << 5, V_XA))
    s('v_lshl_add_u32 v%d, v%d, 3, v%d' % (T + 12, T + 12, T + 10))
    s('v_lshl_add_u32 v%d, v%d, 2, v%d' % (T + 14, T + 7, T + 11))
    s('v_and_b32 v%d, 1, v%d' % (T + 5, T + 10))
    s('v_mov_b32 v%d, 0x3f803f80' % (T + 6))
    s('v_cmp_eq_u32 vcc, v%d, v%d' % (T + 5, T + 7))
    for j in range(4):
        s('v_mov_b32 v%d, 0' % (V_ST + j))
    for j in range(4):
        s('v_cndmask_b32 v%d, 0, v%d, vcc' % (V_SEL + j, T + 6))
    s('v_mov_b32 v%d, 0x%x' % (V_FLO, OOB))
    s('v_cmp_eq_u32 vcc, 0, v%d' % T)
    s('v_mov_b32 v%d, 1' % V_ONE)
    s('v_mov_b32 v%d, 0' % (V_EXW + 1))
    s('v_cndmask_b32 v%d, v%d, 0, vcc' % (V_FLO, V_FLO))
    z.extend(zipper(list(k), list(s)))


def deferred(kv):
    s, T = Seg(), V_T
    for k in EARLY:
        if OPT['diag'] and k in STAMPS:
            s('v_readfirstlane_b32 s%d, v%d' % (S_KA + 2 * STAMPS.index(k), 120 + EARLY.index(k)))
    srd(s, SW2, 1792 * XS)
    srd(s, SWO, 448 * XS)
    srd(s, SOUT, 2048 * XS)
    srd(s, SB2, 448 * 2)
    s('s_mov_b32 s%d, %s' % (S_EPS, f32(1e-6)))
    s('s_mov_b32 s%d, %s' % (S_L2E, f32(LOG2E)))
    s('s_mov_b32 s%d, 0' % S_HI)
    s('s_mov_b32 s%d, -1' % (S_HI + 1))
    if kv:
        s('s_mov_b32 s%d, 0xf0000000' % S_PAD)
        s('s_mov_b32 s%d, 0xf0000000' % (S_PAD + 1))
        s('v_mov_b32 v%d, 0' % (V_EXW + 3))
    s('s_mov_b32 s%d, 0' % S_SPIN)
    s('v_and_b32 v%d, 7, v%d' % (T + 4, T + 4))
    s('v_mul_u32_u24 v%d, %d, v%d' % (V_B2, XS, T + 1))
    s('v_lshl_add_u32 v%d, v%d, 4, v%d' % (V_B2, T + 4, V_B2))
    if kv:
        s('s_mov_b32 s%d, %d' % (S_T1, M_CS))
    else:
        s('s_lshl_b32 s%d, s%d, 9' % (S_T1, S_G))
        s('s_add_u32 s%d, s%d, %d' % (S_T1, S_T1, M_CS))
    s('v_lshl_add_u32 v%d, v%d, 4, s%d' % (V_CSR, T + 8, S_T1))
    s('v_lshl_add_u32 v%d, s%d, 2, v%d' % (V_CSW, S_RW, V_CSR))
    s('s_lshl2_add_u32 s%d, s%d, %d' % (S_T1, S_WV, M_SY))
    s('v_mov_b32 v%d, s%d' % (V_PA, S_T1))
    for k in ((0, 128, 160, 192, 224) if kv else (0,)):
        s('ds_write_b32 v%d, v%d offset:%d' % (V_PA, V_EXW + 1, k))
    if not kv:
        s('v_lshlrev_b32 v%d, 4, v%d' % (V_EXR, T + 13))
        s('v_add_u32 v%d, %d, v%d' % (V_EXR, M_ST, V_EXR))
        s('v_lshl_add_u32 v%d, v%d, 3, v%d' % (V_EXR + 1, T + 9, V_EXR))
    s('s_and_b32 s%d, s2, 7' % S_T1)
    s('s_lshl2_add_u32 s%d, s%d, s%d' % (S_I2, S_T1, S_I2))
    s('s_lshl1_add_u32 s%d, s%d, s%d' % (S_T1, S_I2, S_ROLE))
    s('s_and_b32 s%d, s%d, 3' % (S_RO, S_T1))
    s('s_and_b32 s%d, s%d, 4' % (S_T1, S_T1))
    s('s_lshl2_add_u32 s%d, s%d, s%d' % (S_RO, S_T1, S_RO))
    if not OPT['rot2']:
        s('s_mov_b32 s%d, 0' % S_RO)
    return s


def tlb_warm(s):
    if not OPT['tlb']:
        return
    T = V_T
    s('s_cmp_eq_u32 s%d, 0' % S_WV)
    s('s_cselect_b32 s%d, 128, 0x%x' % (S_T1, OOB))
    for r in (SDBG, SW2, SWO, SB2, SOUT):
        s('buffer_load_dword v%d, v%d, %s, s%d offen' % (T + 15, V_FLO, sr(r, 4), S_T1))
    s('v_lshlrev_b32 v%d, 17, v%d' % (T + 5, V_L16))
    s('v_min_u32 v%d, 0x%x, v%d' % (T + 5, 0x9f0000, T + 5))
    s('buffer_load_dword v%d, v%d, %s, s%d offen' % (T + 15, T + 5, sr(SWS, 4), S_T1))


def dma_x(s, c, addr, tag):
    s('s_add_u32 m0, s%d, %d' % (S_M0X, addr))
    s('buffer_load_dwordx4 v%d, %s, s%d offen lds' % (V_X0, sr(SX, 4), S_KX + c), tag)
    s('buffer_load_dwordx4 v%d, %s, s%d offen offset:1024 lds' % (V_X1, sr(SX, 4), S_KX + c), tag)


def dma_w(s, m0base, c, addr, tag):
    s('s_add_u32 m0, s%d, %d' % (m0base, addr))
    s('buffer_load_dwordx4 v%d, %s, s%d offen lds' % (V_W, sr(SW, 4), S_KW + c), tag)
    s('buffer_load_dwordx4 v%d, %s, s%d offen offset:1024 lds' % (V_WB, sr(SW, 4), S_KW + c), tag)


def groups(z):
    out, cur = [], []
    for i in z:
        cur.append(i)
        if i.kind == 'vmem':
            out.append(cur)
            cur = []
    if cur:
        out.append(cur)
    return out


def mix(main, grp, lo=0.0, hi=1.0):
    main = [i for i in main if i is not GAP]
    out, k, n = [], 0, len(main)
    for idx, i in enumerate(main):
        while k < len(grp) and idx >= n * (lo + (hi - lo) * k / len(grp)):
            out.extend(grp[k])
            k += 1
        out.append(i)
    for g in grp[k:]:
        out.extend(g)
    return out


def barrier(z, vm=None, name=None):
    if name:
        stamp(z, name + 'a')
    z.wait(vm=vm, lgkm='all')
    if name:
        stamp(z, name + 'b')
    z('s_barrier')


BLK = [0, 4, 1, 5, 2, 6, 3]


def unit_ks(u):
    return 4 * BLK[u >> 2] + (u & 3)


def unit_loc(u):
    u %= 11
    return (S_QR2, 1, u * 2048) if u < 5 else (S_QR0, 0, (u - 5) * 2048)


def p2_setup(s):
    s('s_lshl_b32 s%d, s%d, 7' % (S_T0, S_ROLE))
    s('s_mul_i32 s%d, s%d, %d' % (S_B2R, S_RW, 448 * XS))
    s('s_add_u32 s%d, s%d, s%d' % (S_B2R, S_B2R, S_T0))
    s('s_mul_i32 s%d, s%d, %d' % (S_WOR, S_RW, 112 * XS))
    s('s_add_u32 s%d, s%d, s%d' % (S_WOR, S_WOR, S_T0))
    s('s_mul_i32 s%d, s%d, %d' % (S_OUTO, S_I2, 64 * XS))
    s('s_add_u32 s%d, s%d, s%d' % (S_OUTO, S_OUTO, S_T0))
    s('s_mul_i32 s%d, s%d, 12288' % (S_QR0, S_RW))
    s('s_lshr_b32 s%d, s%d, 2' % (S_RO3, S_RO))
    s('s_or_b32 s%d, s%d, s%d' % (S_RO3, S_RO3, S_RO))
    s('s_and_b32 s%d, s%d, 7' % (S_RO3, S_RO3))
    s('s_mul_i32 s%d, s%d, 10240' % (S_QR2, S_RW))
    s('s_add_u32 s%d, s%d, %d' % (S_QR2, S_QR2, R2))
    s('s_mul_i32 s%d, s%d, %d' % (S_A, S_I2, 2 * ACT_G))
    s('v_add_u32 v%d, %d, v%d' % (V_B2B, 8 * XS - 1024, V_B2))


def touch(s, t):
    if not OPT['touch']:
        return
    s('s_and_b32 s%d, s2, 0xf8' % S_T2)
    s('s_add_u32 s%d, s%d, s%d' % (S_T2, S_T2, S_WV))
    s('v_min_u32 v%d, %d, v%d' % (t, 48 * 16, V_L16))
    s('s_mul_i32 s%d, s%d, %d' % (S_T3, S_T2, 49 * 128))
    s('v_lshlrev_b32 v%d, 3, v%d' % (t, t))
    s('buffer_load_dword v%d, v%d, %s, s%d offen' % (t + 1, t, sr(SW2, 4), S_T3))
    s('v_min_u32 v%d, %d, v%d' % (t, 12 * 128, t))
    s('s_mul_i32 s%d, s%d, %d' % (S_T3, S_T2, 13 * 128))
    s('buffer_load_dword v%d, v%d, %s, s%d offen' % (t + 1, t, sr(SWO, 4), S_T3))


def ks_dyn(s, dst, u):
    if u < 24:
        s('s_xor_b32 s%d, s%d, %d' % (dst, S_RO, unit_ks(u)))
    else:
        s('s_and_b32 s%d, s%d, 3' % (dst, S_RO))
        s('s_xor_b32 s%d, s%d, %d' % (dst, dst, unit_ks(u)))


def dma_b2(s, u):
    base, _, off = unit_loc(u)
    if u < 28:
        ks_dyn(s, S_T3, u)
        if OPT['x_hit'] & 2:
            s('s_and_b32 s%d, s%d, 7' % (S_T3, S_T3))
        s('s_add_u32 m0, s%d, %d' % (base, off))
        s('s_mul_i32 s%d, s%d, %d' % (S_T3, S_T3, 16 * XS))
        s('s_add_u32 s%d, s%d, s%d' % (S_T3, S_T3, S_B2R))
    else:
        s('s_xor_b32 s%d, s%d, %d' % (S_T3, S_RO3, u - 28))
        s('s_and_b32 s%d, s%d, 1' % (S_T1, S_T3))
        s('s_mul_i32 s%d, s%d, 7' % (S_T3, S_T3))
        s('s_add_u32 s%d, s%d, s%d' % (S_T3, S_T3, S_T1))
        s('s_add_u32 m0, s%d, %d' % (base, off))
        s('s_mul_i32 s%d, s%d, %d' % (S_T3, S_T3, 2 * XS))
        s('s_add_u32 s%d, s%d, s%d' % (S_T3, S_T3, S_WOR))
    w = SW2 if u < 28 else SWO
    s('buffer_load_dwordx4 v%d, %s, s%d offen lds' % (V_B2, sr(w, 4), S_T3), ('b', u))
    s('buffer_load_dwordx4 v%d, %s, s%d offen offset:1024 lds' % (V_B2B, sr(w, 4), S_T3), ('b', u))


def sync_arrive(s, k):
    s('ds_write_b32 v%d, v%d offset:%d' % (V_PA, V_ONE, k * 32))


def sync_wait(s, k, nw, T):
    j = nspin[0]
    nspin[0] += 1
    s('v_mov_b32 v%d, %d' % (T + 8, M_SY))
    s('L_sy%d:' % j)
    for h in range(nw // 4):
        s('ds_read_b128 %s, v%d offset:%d' % (vr(T + 4 * h, 4), T + 8, k * 32 + h * 16))
    s('s_add_u32 s%d, s%d, 1' % (S_SPIN, S_SPIN))
    s('s_cmp_gt_u32 s%d, 0x%x' % (S_SPIN, SPIN_LIMIT))
    s('s_cbranch_scc1 L_sz%d' % j)
    s.wait(lgkm='all')
    for h in range(1, nw - 1, 2):
        s('v_and_b32 v%d, v%d, v%d' % (T + h, T + h, T + h + 1))
    for h in range(1, nw, 2):
        s('v_and_b32 v%d, v%d, v%d' % (T, T, T + h))
    s('v_readfirstlane_b32 s%d, v%d' % (S_T2, T))
    s('s_cmp_eq_u32 s%d, 0' % S_T2)
    s('s_cbranch_scc1 L_sy%d' % j)
    s('L_sz%d:' % j)
    s.wait(lgkm='all')


def flag(s, off):
    if OPT['fatom']:
        s('buffer_atomic_add v%d, v%d, %s, s%d offen offset:%d sc1' % (V_ONE, V_FLO, sr(SWS, 4), S_FL, off))
    else:
        s('buffer_store_dword v%d, v%d, %s, s%d offen offset:%d sc1' % (V_ONE, V_FLO, sr(SWS, 4), S_FL, off))


def f0_load(s):
    s('buffer_load_dword v%d, v%d, %s, 0 offen sc1' % (V_POLL, V_FLO, sr(SDBG, 4)), 'f0')


def f0_check(s):
    s('v_mov_b32 v%d, 32' % (V_T + 15))
    stamp(s, 'f0a')
    s.wait(vm='f0')
    stamp(s, 'f0b')
    spin_check(s, V_POLL, V_T + 15, V_FLO, SDBG, '0', 1)


def poll_early(s):
    poll_base(s)
    poll_async(s, 0)


def xreg(c, j):
    return V_X + 16 * c + 4 * j


def dots(s, c):
    for j in range(4):
        s.wait(lgkm=[('x', c, j)])
        for r in range(4):
            x = xreg(c, j) + r
            s('v_dot2c_f32_bf16 v%d, s%d, v%d' % (V_ST + (r & 1), S_ONES, x))
            s('v_dot2c_f32_bf16 v%d, v%d, v%d' % (V_ST + 2 + (r & 1), x, x))


def stats_write(s):
    s('v_add_f32 v%d, v%d, v%d' % (V_ST, V_ST, V_ST + 1))
    s('v_add_f32 v%d, v%d, v%d' % (V_ST + 1, V_ST + 2, V_ST + 3))
    s('ds_write_b64 v%d, %s' % (V_EXR + 1, vr(V_ST, 2)))


def stats_final(kind):
    s, T = Seg(), V_T
    s('ds_read_b128 %s, v%d' % (vr(T, 4), V_EXR), 'st')
    s.append(GAP)
    s.wait(lgkm='st')
    s('v_add_f32 v%d, v%d, v%d' % (T, T, T + 2))
    s('v_add_f32 v%d, v%d, v%d' % (T + 1, T + 1, T + 3))
    s('v_mul_f32 v%d, %s, v%d' % (T, f32(1.0 / 448), T))
    s('v_mul_f32 v%d, %s, v%d' % (T + 1, f32(1.0 / 448), T + 1))
    s('v_fma_f32 v%d, -v%d, v%d, v%d' % (T + 1, T, T, T + 1))
    s('v_max_f32 v%d, 0, v%d' % (T + 1, T + 1))
    s('v_cvt_pk_bf16_f32 v%d, v%d, v%d' % (T + 1, T + 1, T + 1))
    s('v_lshlrev_b32 v%d, 16, v%d' % (T + 1, T + 1))
    s('v_add_f32 v%d, %s, v%d' % (T + 1, f32(1e-5), T + 1))
    s('v_cvt_pk_bf16_f32 v%d, v%d, v%d' % (T + 1, T + 1, T + 1))
    s('v_lshlrev_b32 v%d, 16, v%d' % (T + 1, T + 1))
    s('v_sqrt_f32 v%d, v%d' % (T + 1, T + 1))
    s('v_cvt_pk_bf16_f32 v%d, -v%d, -v%d' % (T, T, T))
    s('v_cvt_pk_bf16_f32 v%d, v%d, 0' % (T + 1, T + 1))
    s('v_cndmask_b32 v%d, v%d, 0, %s' % (V_EXR, T, sr(S_HI, 2)))
    s('v_lshlrev_b32 v%d, 16, v%d' % (V_ST + 2, T + 1))
    s('v_rcp_f32 v%d, v%d' % (V_ST + 3, V_ST + 2))
    s('v_cndmask_b32 v%d, v%d, 0, %s' % (V_EXR + 1, T + 1, sr(S_HI, 2)))
    if kind == 'gelu':
        s('v_mul_f32 v%d, %s, v%d' % (V_ST, f32(GC1), V_ST + 3))
        s('v_mul_f32 v%d, v%d, v%d' % (T, V_ST + 3, V_ST + 3))
        s('v_mul_f32 v%d, %s, v%d' % (V_ST + 1, f32(GC3), V_ST + 3))
        s('v_mul_f32 v%d, v%d, v%d' % (V_ST + 1, T, V_ST + 1))
    elif kind == 'phi':
        s('v_mul_f32 v%d, s%d, v%d' % (V_ST, S_L2E, V_ST + 3))
    return s


def ext_parts(acc, off, exw, swap, bias=None, T=V_T + 8):
    r, b, m = Seg(), Seg(), Seg()
    tag = ('cs', id(r))
    r('ds_read_b128 %s, v%d offset:%d' % (vr(T, 4), V_CSR, off), tag)
    b.wait(lgkm=[tag])
    b('v_add_f32 v%d, v%d, v%d' % (T, T, T + 1))
    b('v_add_f32 v%d, v%d, v%d' % (T + 2, T + 2, T + 3))
    b('v_add_f32 v%d, v%d, v%d' % (T, T, T + 2))
    b('v_cvt_pk_bf16_f32 v%d, v%d, v%d' % (T + 1, T, T))
    b('v_lshlrev_b32 v%d, 16, v%d' % (T + 1, T + 1))
    b('v_sub_f32 v%d, v%d, v%d' % (T + 1, T, T + 1))
    b('v_cvt_pk_bf16_f32 v%d, v%d, v%d' % (exw, T, T + 1))
    if bias is not None:
        r('v_mov_b32 v%d, v%d' % (exw + 1, bias))
    x, y = (V_EXR, exw) if swap else (exw, V_EXR)
    m('v_mfma_f32_32x32x8_bf16 %s, %s, %s, %s' % (vr(acc, 16), vr(x, 2), vr(y, 2), vr(acc, 16)))
    KEEP.append(r)
    return r, b, m


KEEP = []


def head(parts, stats=None):
    st = [i for i in stats if i is not GAP] if stats is not None else []
    out = st[:1]
    for p in parts:
        out += p[0]
    out += st[1:]
    for p in parts:
        out += p[1]
    for p in parts:
        out += p[2]
    return out


def epi_rowlane(kind, acc, tag, handoff=False, keep=None):
    s, T = Seg(), V_T
    for grp in range(4):
        a = [acc + 4 * grp + e for e in range(4)]
        t = [T + e for e in range(4)]
        if kind == 'gelu':
            for e in range(4):
                s('v_mul_f32 v%d, v%d, v%d' % (t[e], a[e], a[e]))
            for e in range(4):
                s('v_fma_f32 v%d, v%d, v%d, v%d' % (t[e], t[e], V_ST + 1, V_ST))
            for e in range(4):
                s('v_mul_f32 v%d, v%d, v%d' % (t[e], a[e], t[e]))
            for e in range(4):
                s('v_exp_f32 v%d, v%d' % (t[e], t[e]))
            for e in range(4):
                s('v_fma_f32 v%d, v%d, v%d, v%d' % (t[e], t[e], V_ST + 2, V_ST + 2))
            for e in range(4):
                s('v_rcp_f32 v%d, v%d' % (t[e], t[e]))
            for e in range(4):
                s('v_mul_f32 v%d, v%d, v%d' % (a[e], a[e], t[e]))
        else:
            for e in range(4):
                s('v_mul_f32 v%d, v%d, v%d' % (t[e], a[e], V_ST))
            for e in range(4):
                s('v_exp_f32_e64 v%d, v%d clamp' % (t[e], t[e]))
            for e in range(4):
                s('v_fma_f32 v%d, v%d, v%d, s%d' % (a[e], a[e], V_ST + 3, S_EPS))
            for e in range(4):
                s('v_max_f32 v%d, s%d, v%d' % (a[e], S_EPS, a[e]))
            for e in range(4):
                s('v_add_f32 v%d, v%d, v%d' % (a[e], a[e], t[e]))
        p = acc + 8 * (grp >> 1) + 2 * (grp & 1) if keep is None else keep + 2 * grp
        s('v_cvt_pk_bf16_f32 v%d, v%d, v%d' % (p, a[0], a[1]))
        s('v_cvt_pk_bf16_f32 v%d, v%d, v%d' % (p + 1, a[2], a[3]))
        if kind == 'phi' and grp == 3:
            s('v_cndmask_b32 v%d, v%d, 0, %s' % (p, p, sr(S_HI, 2)))
            s('v_cndmask_b32 v%d, v%d, 0, %s' % (p + 1, p + 1, sr(S_HI, 2)))
        if grp & 1 and keep is None:
            f = grp >> 1
            if handoff:
                s('ds_write_b128 v%d, %s offset:%d' % (V_RA, vr(acc + 8 * f, 4), f * 1024))
                continue
            s('buffer_store_dwordx4 %s, v%d, %s, s%d offen offset:%d sc1' % (vr(acc + 8 * f, 4), V_L16, sr(SWS, 4), S_H, f * 1024), tag)
    return s


def lc_role(ffn):
    kind = 'gelu' if ffn else 'phi'
    nm = 'f' if ffn else 'q'
    s, T = Seg(nm), V_T
    if not ffn:
        s('L_q:')
    s('s_mul_i32 s%d, s%d, %d' % (S_T1, S_G, 64 if ffn else 56))
    s('v_lshrrev_b32 v%d, 1, v%d' % (T + 6, T + 10))
    s('v_lshl_add_u32 v%d, v%d, 3, s%d' % (T + 5, T + 14, S_T1))
    s('v_lshlrev_b32 v%d, 6, v%d' % (T + 6, T + 6))
    s('v_xor_b32 v%d, v%d, v%d' % (T + 5, T + 5, T + 6))
    s('v_lshl_add_u32 v%d, v%d, 7, v%d' % (V_WA, T + 12, T + 5))
    for j in range(1, 4):
        s('v_xor_b32 v%d, %d, v%d' % (V_WA + j, j << 11, V_WA))
    srd(s, SWS, WS_BYTES)
    srd(s, SDBG, 256)
    s('s_waitcnt lgkmcnt(0)')
    if not ffn:
        s('s_lshl1_add_u32 s%d, s%d, s%d' % (S_T2, S_RB, S_HALF))
        s('s_mul_i32 s%d, s%d, 5' % (S_T1, S_T2))
        s('s_add_u32 s%d, s%d, s%d' % (S_T1, S_T1, S_WV))
        s('s_lshl_b32 s%d, s%d, 10' % (S_T1, S_T1))
        s('s_add_u32 s%d, s%d, 0x%x' % (S_T1, S_T1, KV_OFF))
        s('s_lshl_b32 s%d, s%d, 10' % (S_LAST, S_T2))
        s('s_add_u32 s%d, s%d, 0x%x' % (S_LAST, S_LAST, ST_OFF))
        s('s_cmp_lt_u32 s%d, 5' % S_WV)
        s('s_cselect_b32 s%d, s%d, 0x%x' % (S_T1, S_T1, OOB))
        s('s_cmp_eq_u32 s%d, 5' % S_WV)
        s('s_cselect_b32 s%d, s%d, s%d' % (S_T1, S_LAST, S_T1))
        s('buffer_store_dwordx4 %s, v%d, %s, s%d offen sc1' % (vr(V_ST, 4), V_L16, sr(SWS, 4), S_T1), 'zero')
    s('s_cmp_eq_u32 s%d, 1' % S_G)
    s('s_cbranch_scc1 L_%sb' % nm)
    step = 128 if ffn else 112
    region = [R0, R1, R0, R1]
    acc = V_ACC

    def stream(g):
        z = Seg(nm + 'ab'[g])
        if g:
            z('L_%sb:' % nm)
        xa = Rebase([V_XA + j for j in range(4)], 0, 0)
        wa = Rebase([V_WA + j for j in range(4)], 0, 512)

        def triple(t, c):
            dma_x(t, c, XSLOT[c], ('t', c))
            if g:
                dma_w(t, S_M0W, c, R0 + c * 8192, ('t', c))

        def lc(t, q, c):
            dma_w(t, S_M0W, c, region[q] + c * 8192, ('l', q, c))

        def wread(t, q, c, j):
            o = wa.off(t, region[q] + c * 8192)
            for u in range(2):
                t('ds_read_b64_tr_b16 %s, v%d offset:%d' % (vr(V_WF + 4 * j + 2 * u, 2), V_WA + j, o + u * 512), ('w', q, c, j))

        def xread(t, c, j):
            o = xa.off(t, XSLOT[c])
            t('ds_read_b128 %s, v%d offset:%d' % (vr(xreg(c, j), 4), V_XA + j, o), ('x', c, j))

        def kstep(q, c, j):
            t = Seg()
            t.wait(lgkm=[('w', q, c, j)])
            first = c == 0 and j == 0
            t('v_mfma_f32_32x32x16_bf16 %s, %s, %s, %s' % (vr(acc, 16), vr(V_WF + 4 * j, 4), vr(xreg(c, j), 4), '0' if first else vr(acc, 16)))
            if j == 0:
                t('v_mfma_f32_16x16x32_bf16 %s, %s, %s, %s' % (vr(V_CS, 4), vr(V_SEL, 4), vr(V_WF + 4 * j, 4), '0' if first else vr(V_CS, 4)))
            if c < 6:
                wread(t, q, c + 1, j)
            return t

        def preread(t, q):
            for j in range(4):
                wread(t, q, 0, j)

        def gemm(t, q, fill=(), extra=None):
            t('s_setprio 1')
            slots = [kstep(q, c, j) for c in range(7) for j in range(4)]
            for k, gi in enumerate(groups(extra) if extra is not None else []):
                slots[1 + OPT['gsp'] * k].extend(gi)
            slots[26]('ds_write_b32 v%d, v%d' % (V_CSW, V_CS))
            t.extend(interleave(slots, list(fill), 0, 20))

        def next_col(t, last=False):
            for r in (V_W, V_WB):
                if last and ffn:
                    t('v_add_u32 v%d, s%d, v%d' % (r, S_LAST, r))
                else:
                    t('v_add_u32 v%d, %d, v%d' % (r, step, r))

        def epi(t, q, extra=None, pre=None, handoff=False, hi=0.85, keep=False):
            grp = groups(extra) if extra is not None else []
            t('s_setprio 2')
            t.extend(head([ext_parts(acc, 0, V_EXW, False, V_B1 + q if ffn else None)], pre))
            if not keep:
                t('s_setprio %d' % OPT['eprio'])
            stamp(t, 'x%d' % (2 * q + g + 1))
            for gi in grp[:2]:
                t.extend(gi)
            t.extend(mix(epi_rowlane(kind, acc, ('h', q), handoff, None if ffn else V_PQ + 8 * q), grp[2:], 0.03, hi))
            if ffn:
                t('s_add_u32 s%d, s%d, 4096' % (S_H, S_H))

        def duty(q, chunks, units=(), step_col=True):
            d = Seg()
            if step_col:
                next_col(d, q == 3)
            for k in chunks:
                lc(d, q, k)
            if ffn:
                for u in units:
                    dma_b2(d, u)
            return d

        late = deferred(False)
        late('s_lshl2_add_u32 s%d, s%d, s%d' % (S_H, S_RB, S_RW))
        late('s_mul_i32 s%d, s%d, %d' % (S_H, S_H, ACT_G))
        late('s_add_u32 s%d, s%d, %d' % (S_H, S_H, g * 2048 + (0 if ffn else 112 * 1024)))
        late('s_lshl_b32 s%d, s%d, %d' % (S_T1, S_T0 if ffn else S_HALF, 5 if ffn else 14))
        late('s_add_u32 s%d, s%d, s%d' % (S_H, S_H, S_T1))
        if ffn:
            late('s_add_u32 s%d, s%d, %d' % (S_T1, S_M0W, HND))
            late('v_add_u32 v%d, s%d, v%d' % (V_RA, S_T1, V_L16))
            late('s_mul_i32 s%d, s%d, -8' % (S_LAST, S_PEND))
            late('s_add_u32 s%d, s%d, 128' % (S_LAST, S_LAST))
            srd(late, SB1, 1792 * 2)
            late('v_lshlrev_b32 v%d, 1, v%d' % (T + 5, T + 8))
            for q in range(3):
                late('buffer_load_ushort v%d, v%d, %s, s%d offen offset:%d' % (V_B1 + q, T + 5, sr(SB1, 4), S_T0, q * 128 + g * 64), 'b1')
            if not g:
                late('s_mul_i32 s%d, s%d, -7' % (S_T1, S_PEND))
                late('s_add_u32 s%d, s%d, s%d' % (S_T1, S_T1, S_T0))
                late('s_add_u32 s%d, s%d, 384' % (S_T1, S_T1))
                late('buffer_load_ushort v%d, v%d, %s, s%d offen' % (V_B1 + 3, T + 5, sr(SB1, 4), S_T1), 'b1')
        if g:
            late('s_mov_b32 s%d, 0x%x' % (S_FL, OOB))
        else:
            late('s_lshr_b32 s%d, s%d, 1' % (S_T1, S_P) if ffn else 's_lshl_b32 s%d, s%d, 1' % (S_T1, S_HALF))
            late('s_lshl2_add_u32 s%d, s%d, s%d' % (S_T1, S_RB, S_T1))
            late('s_mul_i32 s%d, s%d, %d' % (S_FL, S_T1, FL_G))
            late('s_lshl1_add_u32 s%d, s%d, s%d' % (S_FL, S_PEND, S_FL))
            late('s_lshl_b32 s%d, s%d, 28' % (S_T1, S_RW))
            late('s_add_u32 s%d, s%d, s%d' % (S_FL, S_FL, S_T1))
            late('s_add_u32 s%d, s%d, 0x%x' % (S_FL, S_FL, FL_OFF))
        NL = OPT['nlate']

        def some(k):
            return late[len(late) * k // NL:len(late) * (k + 1) // NL] if k < NL else []

        triple(z, 1)
        estamp(z, 't1')
        z.extend(some(0))
        z('s_barrier')
        if g:
            z('s_setprio 1')
        triple(z, 2)
        for c in range(-1, 7):
            if c < 6:
                barrier(z, ['t0', 'zero'] if c < 0 else [('t', c + 1)], 's%d' % c if c >= 0 else 'pre')
            if c < 0:
                stamp(z, 1)
                if not ffn and not g:
                    z('s_lshl_b32 s%d, s%d, 28' % (S_T2, S_WV))
                    z('buffer_atomic_add v%d, v%d, %s, s%d offen sc1' % (V_ONE, V_FLO, sr(SDBG, 4), S_T2))
            d = Seg()
            if c < 3:
                triple(d, c + 4)
            if c == 3:
                next_col(d)
            for k in {3: ([], [0]), 4: ([], [1]), 5: ([3], [2])}.get(c, ([], []))[g]:
                lc(d, 1, k)
            if g:
                if c == 6:
                    break
                for j in range(4):
                    xread(z, c + 1, j)
                z.extend(mix(some(c + 2), groups(d)))
                if c == 5:
                    preread(z, 0)
                dots(z, c + 1)
            else:
                for j in range(4):
                    if c == 6:
                        z.wait(lgkm=[('x', c, j)])
                    if c >= 0:
                        z.extend(kstep(0, c, j))
                    else:
                        wread(z, 0, 0, j)
                    if c < 6:
                        xread(z, c + 1, j)
                z.extend(mix(some(c + 2), groups(d)))
        if g:
            stats_write(z)
            barrier(z, [('l', 1, 0), 'b1'])
        else:
            z('ds_write_b32 v%d, v%d' % (V_CSW, V_CS))
            barrier(z, 'b1')
        stamp(z, 2)
        if not g:
            d = Seg()
            if not ffn:
                d('v_and_b32 v%d, 0xffff, v%d' % (V_XA, V_EXR))
                d('v_lshl_or_b32 v%d, v%d, 16, v%d' % (V_XA, V_EXR + 1, V_XA))
                d('v_lshrrev_b32 v%d, 2, v%d' % (V_XA + 1, V_L16))
                d('v_lshl_add_u32 v%d, s%d, 7, v%d' % (V_XA + 1, S_RW, V_XA + 1))
                d('v_cndmask_b32 v%d, v%d, v%d, %s' % (V_XA + 1, V_XA + 1, V_FLO, sr(S_HI, 2)))
                d('buffer_store_dword v%d, v%d, %s, s%d offen sc1' % (V_XA, V_XA + 1, sr(SWS, 4), S_LAST))
            f0_load(d)
            if ffn:
                p2_setup(d)
            epi(z, 0, d, pre=stats_final(kind))
            preread(z, 1)
            barrier(z, [('l', 1, 3)], 'e1')
            stamp(z, 'h1')
            gemm(z, 1, extra=duty(2, (1, 2, 3, 4)))
            f0_check(z)
            barrier(z, [('h', 0)], 'e2')
            stamp(z, 'h2')
            epi(z, 1)
            preread(z, 2)
            barrier(z, [('l', 2, 4)], 'e3')
            stamp(z, 3)
            if ffn:
                flag(z, 0)
            gemm(z, 2, extra=duty(3, (1, 2, 3, 4)))
            barrier(z, [('h', 1)], 'e4')
            stamp(z, 'h4')
            epi(z, 2)
            if ffn:
                for k in range(4):
                    z('v_xor_b32 v%d, s%d, v%d' % (V_WA + k, S_PEND, V_WA + k))
            preread(z, 3)
            barrier(z, [('l', 3, 4)], 'e5')
            stamp(z, 4)
            if ffn:
                flag(z, 256)
            gemm(z, 3, extra=duty(0, (), (8, 9, 10), False))
            barrier(z, None, 'e6')
            stamp(z, 5)
            if ffn:
                z('ds_read_b128 %s, v%d' % (vr(V_WF, 4), V_RA), 'hnd')
                z('ds_read_b128 %s, v%d offset:1024' % (vr(V_WF + 4, 4), V_RA), 'hnd')
                z('s_sub_u32 s%d, s%d, 2048' % (S_T0, S_H))
                z('s_cmp_eq_u32 s%d, 0' % S_PEND)
                z('s_cselect_b32 s%d, 0, %d' % (S_T1, 3 * 4096 + 2048))
                z('s_sub_u32 s%d, s%d, s%d' % (S_H, S_H, S_T1))
                d = Seg()
                d.wait(lgkm='hnd')
                for f in range(2):
                    d('buffer_store_dwordx4 %s, v%d, %s, s%d offen offset:%d sc1' % (vr(V_WF + 4 * f, 4), V_L16, sr(SWS, 4), S_T0, f * 1024), 'h5')
                epi(z, 3, d, keep=True)
                z.wait(vm=[('h', 3)])
                sync_arrive(z, 0)
                sync_wait(z, 0, 4, T)
                flag(z, 512)
                stamp(z, 6)
                z('s_branch L_p2a')
            else:
                epi(z, 3)
                z('s_barrier')
                z('s_branch L_qo')
            return z
        d = duty(1, (4, 5, 6), (), False)
        if ffn:
            p2_setup(d)
            dma_b2(d, 0)
        gemm(z, 0, stats_final(kind), d)
        barrier(z, [('l', 1, 6)], 'e1')
        stamp(z, 'h1')
        for q in (1, 2):
            d = duty(q + 1, (0,))
            epi(z, q - 1, d)
            preread(z, q)
            barrier(z, [('l', q + 1, 0)], 'e%d' % (2 * q))
            stamp(z, 'h%d' % (2 * q))
            gemm(z, q, extra=duty(q + 1, (5, 6), (2 * q - 1, 2 * q), False))
            barrier(z, [('l', q + 1, 6)], 'e%d' % (2 * q + 1))
            stamp(z, q + 2)
        if ffn:
            d = Seg()
            poll_early(d)
            for u in range(5, 8):
                dma_b2(d, u)
            epi(z, 2, d, handoff=True, hi=1.0)
            barrier(z, None, 'e6')
            z('s_branch L_p2b')
        else:
            epi(z, 2)
            preread(z, 3)
            barrier(z)
            stamp(z, 5)
            gemm(z, 3)
            barrier(z)
            epi(z, 3)
        return z

    return s, stream(0), stream(1)


def q_out():
    s, T = Seg('qo'), V_T
    NUM, KF, RAW = V_X, V_X + 64, V_X + 96
    s('L_qo:')
    stamp(s, 6)
    s('s_lshl3_add_u32 s%d, s%d, s%d' % (S_T0, S_HALF, S_WV))
    s('s_lshl_b32 s%d, s%d, 7' % (S_PL, S_T0))
    s('s_add_u32 s%d, s%d, 0x%x' % (S_PL, S_PL, FKV_OFF))
    s('s_lshl_b32 s%d, s%d, 12' % (S_T0, S_T0))
    s('s_add_u32 s%d, s%d, 0x%x' % (S_T0, S_T0, KV_OFF))
    s('v_lshrrev_b32 v%d, 2, v%d' % (T, V_L16))
    s('s_add_u32 s%d, s%d, %d' % (S_T1, S_M0X, R2))
    s('v_add_u32 v%d, s%d, v%d' % (T + 1, S_T1, V_L16))
    s('s_lshl_b32 s%d, s%d, 11' % (S_T1, S_G))
    s('s_add_u32 s%d, s%d, %d' % (S_T1, S_T1, R2))
    s('v_add_u32 v%d, s%d, v%d' % (T + 2, S_T1, V_L16))
    poll_check(s, 0, 16, sync=True, atomic=OPT['qatom'])
    stamp(s, 7)
    for r in range(16):
        s('buffer_load_dword v%d, v%d, %s, s%d offen offset:%d sc1' % (RAW + r, T, sr(SWS, 4), S_T0, r * 256), ('kv', r >> 3))
    for f in range(2):
        s.wait(vm=[('kv', f)])
        for k in range(4):
            s('v_cvt_pk_bf16_f32 v%d, v%d, v%d' % (RAW + 8 * f + k, RAW + 8 * f + 2 * k, RAW + 8 * f + 2 * k + 1))
        s('ds_write_b128 v%d, %s offset:%d' % (T + 1, vr(RAW + 8 * f, 4), f * 1024))
    barrier(s)
    stamp(s, 8)
    for q in range(4):
        for f in range(2):
            s('ds_read_b128 %s, v%d offset:%d' % (vr(KF + 8 * q + 4 * f, 4), T + 2, q * 4096 + f * 1024), ('kf', q, f))
    for q in range(4):
        for f in range(2):
            s.wait(lgkm=[('kf', q, f)])
            s('v_mfma_f32_32x32x16_bf16 %s, %s, %s, %s' % (vr(NUM + 16 * q, 16), vr(KF + 8 * q + 4 * f, 4), vr(V_PQ + 8 * q + 4 * f, 4), vr(NUM + 16 * q, 16) if f else '0'))
    for p in range(2):
        for q in (2 * p, 2 * p + 1):
            s('v_add_f32 v%d, s%d, v%d' % (T + 4 + 2 * q, S_EPS, NUM + 16 * q + 12))
            s('v_add_f32 v%d, s%d, v%d' % (T + 5 + 2 * q, S_EPS, NUM + 16 * q + 12))
        for q in (2 * p, 2 * p + 1):
            s('v_permlane32_swap_b32 v%d, v%d' % (T + 4 + 2 * q, T + 5 + 2 * q))
        for q in (2 * p, 2 * p + 1):
            s('v_rcp_f32 v%d, v%d' % (T + 5 + 2 * q, T + 5 + 2 * q))
        for q in (2 * p, 2 * p + 1):
            s('v_cndmask_b32 v%d, v%d, 0, %s' % (T + 4 + 2 * q, T + 5 + 2 * q, sr(S_HI, 2)))
        for q in (2 * p, 2 * p + 1):
            n = NUM + 16 * q
            for f in range(2):
                for k in range(8 * f, 8 * f + 8, 2):
                    sel = 0 if k >= 12 else 1
                    s('v_pk_mul_f32 %s, %s, %s op_sel:[0,%d] op_sel_hi:[1,%d]' % (vr(n + k, 2), vr(n + k, 2), vr(T + 4 + 2 * q, 2), sel, sel))
                for k in range(4):
                    s('v_cvt_pk_bf16_f32 v%d, v%d, v%d' % (n + 8 * f + k, n + 8 * f + 2 * k, n + 8 * f + 2 * k + 1))
                s('buffer_store_dwordx4 %s, v%d, %s, s%d offen offset:%d sc1' % (vr(n + 8 * f, 4), V_L16, sr(SWS, 4), S_H, f * 1024), ('o', p))
            s('s_add_u32 s%d, s%d, 4096' % (S_H, S_H))
    stamp(s, 9)
    barrier(s, 'all')
    flag(s, 768)
    flag(s, 768 + FL_G)
    s('s_branch L_fin')
    return s


def kv_role():
    s, T = Seg('kv'), V_T
    s('L_kv:')
    s('s_mul_i32 s%d, s%d, 3' % (S_P, S_HALF))
    s('s_add_u32 s%d, s%d, s%d' % (S_P, S_P, S_ROLE))
    s('s_sub_u32 s%d, s%d, 4' % (S_P, S_P))

    def item(t, n):
        if n >= 14:
            if n == 14:
                t('v_add_u32 v%d, %d, v%d' % (V_W, XS, V_W))
                t('v_add_u32 v%d, %d, v%d' % (V_WB, XS, V_WB))
            dma_w(t, S_M0X, n - 14, kv_slot(n), ('i', n))
        elif n & 1:
            dma_w(t, S_M0X, n >> 1, kv_slot(n), ('i', n))
        else:
            dma_x(t, n >> 1, kv_slot(n), ('i', n))

    s('s_lshl_b32 s%d, s%d, 2' % (S_T1, S_P))
    s('s_lshr_b32 s%d, 0xdb9630, s%d' % (S_LAST, S_T1))
    s('s_and_b32 s%d, s%d, 15' % (S_LAST, S_LAST))
    s('s_lshr_b32 s%d, 0x322333, s%d' % (S_PEND, S_T1))
    s('s_and_b32 s%d, s%d, 15' % (S_PEND, S_PEND))
    s('s_add_u32 s%d, s%d, s%d' % (S_T1, S_LAST, S_G))
    s('s_mul_i32 s%d, s%d, 56' % (S_T1, S_T1))
    s('s_lshl_b32 s%d, s%d, 7' % (S_T0, S_P))
    s('s_sub_u32 s%d, s%d, s%d' % (S_T1, S_T1, S_T0))
    s('s_add_u32 s%d, s%d, 1' % (S_T0, S_G))
    s('s_cmp_lt_u32 s%d, s%d' % (S_T0, S_PEND))
    s('s_cselect_b32 s%d, 56, 0' % S_T0)
    s('v_min_u32 v%d, 6, v%d' % (T + 14, T + 14))
    s('v_lshl_add_u32 v%d, v%d, 3, s%d' % (T + 5, T + 14, S_T1))
    s('v_lshlrev_b32 v%d, 6, v%d' % (T + 6, T + 10))
    for t in range(2):
        if t:
            s('v_add_u32 v%d, s%d, v%d' % (T + 5, S_T0, T + 5))
        s('v_xor_b32 v%d, v%d, v%d' % (T + 11, T + 5, T + 6))
        s('v_lshl_add_u32 v%d, v%d, 8, v%d' % (V_WA + 4 * t, T + 12, T + 11))
        for j in range(1, 4):
            s('v_xor_b32 v%d, %d, v%d' % (V_WA + 4 * t + j, j << 12, V_WA + 4 * t))
    srd(s, SWS, WS_BYTES)
    srd(s, SDBG, 256)
    item(s, 2)
    item(s, 3)
    estamp(s, 't1')
    s.extend(deferred(True))
    s('s_lshl1_add_u32 s%d, s%d, s%d' % (S_H, S_RB, S_HALF))
    s('s_lshl3_add_u32 s%d, s%d, s%d' % (S_H, S_H, S_RW))
    s('s_lshl_b32 s%d, s%d, 7' % (S_H, S_H))
    s('s_add_u32 s%d, s%d, 0x%x' % (S_H, S_H, ST_OFF))
    s('v_lshlrev_b32 v%d, 2, v%d' % (V_ST + 1, T + 8))
    s('s_lshl_b32 s%d, s%d, 7' % (S_T0, S_RW))
    s('s_add_u32 s%d, s%d, %d' % (S_T0, S_T0, M_R))
    s('v_lshl_add_u32 v%d, v%d, 4, s%d' % (V_RA, T + 9, S_T0))
    s('v_add_u32 v%d, s%d, v%d' % (V_ST + 2, S_T0, V_ST + 1))
    s('v_mov_b32 v%d, %d' % (T + 5, M_SY + 128))
    s('v_cndmask_b32 v%d, v%d, v%d, %s' % (V_ST + 3, V_RA, T + 5, sr(S_PAD, 2)))
    s('v_mov_b32 v%d, 0' % (V_EXR + 1))
    s('s_waitcnt lgkmcnt(0)')
    s('s_cmp_eq_u32 s%d, 1' % S_G)
    s('s_cbranch_scc1 L_kb')

    def body(g):
        b = Seg('kb' if g else 'ka')
        if g:
            b('L_kb:')
        xa = Rebase([V_XA + j for j in range(4)], 0, 0)
        wa = [Rebase([V_WA + 4 * t + j for j in range(4)], 0, 1024) for t in range(2)]
        TS = [[0, 1], [1]] if g else [[0], [0, 1]]
        PK1 = V_X + 48

        def witem(q, c):
            return 2 * c + 1 if q == 0 else 14 + c

        def wf(t, j):
            return (V_ACC + 48 if t != g else V_WF) + 4 * j

        def acc(q, t):
            return V_ACC + 16 * (q + t)

        def wread(z, q, c, j, t):
            o = wa[t].off(z, kv_slot(witem(q, c)))
            for u in range(2):
                z('ds_read_b64_tr_b16 %s, v%d offset:%d' % (vr(wf(t, j) + 2 * u, 2), V_WA + 4 * t + j, o + u * 1024), ('w', q, c, j, t))

        def xread(z, c, j):
            o = xa.off(z, kv_slot(2 * c))
            z('ds_read_b128 %s, v%d offset:%d' % (vr(xreg(c, j), 4), V_XA + j, o))

        def kstep(q, c, j):
            out = []
            first = c == 0 and j == 0
            for t in TS[q]:
                z = Seg()
                z.wait(lgkm=[('w', q, c, j, t)])
                z('v_mfma_f32_32x32x16_bf16 %s, %s, %s, %s' % (vr(acc(q, t), 16), vr(xreg(c, j), 4), vr(wf(t, j), 4), '0' if first else vr(acc(q, t), 16)))
                if j == 0:
                    z('v_mfma_f32_16x16x32_bf16 %s, %s, %s, %s' % (vr(V_CS + 4 * t, 4), vr(V_SEL, 4), vr(wf(t, j), 4), '0' if first else vr(V_CS + 4 * t, 4)))
                if c < 6:
                    wread(z, q, c + 1, j, t)
                    if q == 0 and t == TS[q][-1]:
                        xread(z, c + 1, j)
                elif q == 0 and not g:
                    wread(z, 1, 0, j, 0)
                    wread(z, 1, 0, j, 1)
                if c == 6 and j == 2 and t == TS[q][-1]:
                    for tt in TS[q]:
                        z('ds_write_b32 v%d, v%d offset:%d' % (V_CSW, V_CS + 4 * tt, q * 1536 + (g + tt) * 512))
                out.append(z)
            return out

        def ext(q, t, k):
            return ext_parts(acc(q, t), q * 1536 + (g + t) * 512, (V_EXW, V_EXW + 2, V_CS)[k], True, T=V_T + 4 + 4 * k)

        def rload(z, dst, key, addr=V_RA):
            for i in range(4):
                z('ds_read_b128 %s, v%d offset:%d' % (vr(dst + 4 * i, 4), addr, i * 32), key)

        def stat_load(z):
            z('buffer_load_dword v%d, v%d, %s, s%d offen sc1' % (V_ST, V_ST + 1, sr(SWS, 4), S_H), 'stat')

        def stat_use(z):
            z('v_and_b32 v%d, 0xffff, v%d' % (T, V_ST))
            z('v_lshl_or_b32 v%d, v%d, 16, v%d' % (T, V_ST, T))
            z('v_cndmask_b32 v%d, v%d, 0, %s' % (V_EXR, T, sr(S_HI, 2)))

        def phi_k(t, rb):
            e = Seg()
            for i in range(4):
                a = [acc(0, t) + 4 * i + k for k in range(4)]
                for k in range(4):
                    e('v_fma_f32 v%d, v%d, v%d, s%d' % (a[k], a[k], rb + 4 * i + k, S_EPS))
                for k in range(4):
                    e('v_mul_f32 v%d, s%d, v%d' % (T + k, S_L2E, a[k]))
                for k in range(4):
                    e('v_exp_f32_e64 v%d, v%d clamp' % (T + k, T + k))
                for k in range(4):
                    e('v_max_f32 v%d, s%d, v%d' % (a[k], S_EPS, a[k]))
                for k in range(4):
                    e('v_add_f32 v%d, v%d, v%d' % (a[k], a[k], T + k))
                e('v_cvt_pk_bf16_f32 v%d, v%d, v%d' % (acc(0, t) + 2 * i, a[0], a[1]))
                e('v_cvt_pk_bf16_f32 v%d, v%d, v%d' % (acc(0, t) + 2 * i + 1, a[2], a[3]))
            return e

        def hand_addr(z):
            z('s_mul_i32 s%d, s%d, 10240' % (S_T0, S_RW))
            z('s_add_u32 s%d, s%d, %d' % (S_T0, S_T0, R2 + 8192))
            z('v_add_u32 v%d, s%d, v%d' % (V_XA, S_T0, V_L16))

        def prod_setup(z, rb):
            rload(z, rb, 'r2', V_ST + 3)
            z('v_cndmask_b32 v%d, 0, 1.0, %s' % (V_XA + 1, sr(S_PAD, 2)))
            z('s_lshl_b32 s%d, s%d, 12' % (S_T0, S_RW))
            z('s_add_u32 s%d, s%d, %d' % (S_T0, S_T0, HND + g * 16384))
            z('v_add_u32 v%d, s%d, v%d' % (V_XA + 2, S_T0, V_L16))

        def kv_prod(z, t, pk, rb):
            z.wait(lgkm='r2')
            v, d = acc(1, t), V_X + 16 * t
            for f in range(2):
                for k in range(8 * f, 8 * f + 8):
                    z('v_fma_f32 v%d, v%d, v%d, v%d' % (v + k, v + k, rb + k, V_XA + 1))
                for k in range(4):
                    z('v_cvt_pk_bf16_f32 v%d, v%d, v%d' % (v + 8 * f + k, v + 8 * f + 2 * k, v + 8 * f + 2 * k + 1))
            z('s_setprio 2')
            for f in range(2):
                z('v_mfma_f32_32x32x16_bf16 %s, %s, %s, %s' % (vr(d, 16), vr(pk + 4 * f, 4), vr(v + 8 * f, 4), vr(d, 16) if f else '0'))

        def part_write(z, t):
            for i in range(4):
                z('ds_write_b128 v%d, %s offset:%d' % (V_XA + 2, vr(V_X + 16 * t + 4 * i, 4), t * 16384 + i * 1024))

        if not g:
            b('s_setprio 1')
        for c in range(-1, 7):
            barrier(b, 't0' if c < 0 else [('i', 2 * c + 3 if c < 6 else 14)], 's%d' % c if c >= 0 else 'pre')
            if c < 0:
                stamp(b, 1)
            d = Seg()
            if g and c == 3:
                f0_load(d)
            if g and c == 5:
                f0_check(d)
            if c < 6 or not g:
                item(d, 2 * c + 6)
                item(d, 2 * c + 7)
            if c == 6:
                if g:
                    stat_load(d)
                else:
                    item(d, 20)
            if not g and c >= 0:
                b.extend(d)
            for j in range(4):
                if c >= 0:
                    for z in kstep(0, c, j):
                        b.extend(z)
                else:
                    for t in TS[0]:
                        wread(b, 0, 0, j, t)
                    xread(b, 0, j)
            if g or c < 0:
                b.extend(d)
        barrier(b, [('i', 16)], 's7')
        stamp(b, 2)

        if g:
            RB = V_ACC + 48
            parts = [ext(0, t, t) for t in range(2)]
            for p in parts:
                b.extend(p[0])
            item(b, 18)
            for p in parts:
                b.extend(p[1])
            item(b, 19)
            hand_addr(b)
            b.wait(vm='stat')
            spin_check(b, V_ST, V_ONE, V_ST + 1, SWS, 's%d' % S_H, 0xffffffff)
            b('s_setprio 2')
            stat_use(b)
            b('v_and_b32 v%d, 0xffff0000, v%d' % (T + 1, V_ST))
            b('v_rcp_f32 v%d, v%d' % (T + 1, T + 1))
            for p in parts:
                b.extend(p[2])
            b('ds_write_b32 v%d, v%d' % (V_ST + 2, T + 1))
            rload(b, RB, 'r')
            b('s_setprio 0')
            item(b, 20)
            barrier(b, [('i', 18)], 'v0')
            b.extend(phi_k(0, RB))
            for f in range(2):
                b('ds_write_b128 v%d, %s offset:%d' % (V_XA, vr(acc(0, 0) + 4 * f, 4), f * 1024))
            barrier(b, [('i', 20)], 'v1')
            d = Seg()
            p2_setup(d)
            for u in range(OPT['kpf']):
                dma_b2(d, u)
            r = Seg()
            for j in range(4):
                wread(r, 1, 0, j, 1)
            b.extend(mix(mix(phi_k(1, RB), [[i] for i in r]), groups(d)))
            prod_setup(b, RB)
            barrier(b, None, 'v2')
            stamp(b, 3)
            b('s_setprio 1')
            for c in range(7):
                for j in range(4):
                    b.extend(kstep(1, c, j)[0])
            barrier(b, None, 'v3')
            b('s_setprio 2')
            b.extend(head([ext(1, 1, 0)]))
            poll_base(b)
            kv_prod(b, 1, acc(0, 1), RB)
            part_write(b, 1)
            poll_async(b, 0)
            barrier(b, None, 'kk')
            stamp(b, 4)
            b('s_setprio 1')
            for u in range(OPT['kpf'], 11):
                dma_b2(b, u)
            b('s_branch L_p2b')
            return b
        for c in range(7):
            if c in (2, 4):
                barrier(b, [('i', 16 + c)], 'v%d' % (c // 2 - 1))
            for j in range(4):
                for z in kstep(1, c, j):
                    b.extend(z)
                if c == 2 and j == 1:
                    stat_load(b)
                if c == 5 and j == 1:
                    hand_addr(b)
                if c == 5 and j == 3:
                    b.wait(vm='stat')
                    stat_use(b)
        barrier(b, None, 'v2')
        stamp(b, 3)
        b('s_setprio 2')
        b('v_mov_b32 v%d, 0' % (V_CS + 1))
        RB, RP = V_X + 64, V_WF
        e = head([ext(1, 1, 0), ext(0, 0, 1), ext(1, 0, 2)])
        z = Seg()
        prod_setup(z, RP)
        for f in range(2):
            z('ds_read_b128 %s, v%d offset:%d' % (vr(PK1 + 4 * f, 4), V_XA, f * 1024), 'r2')
        rload(z, RB, 'r')
        b.extend(e[:3] + list(z) + e[3:])
        b('s_setprio 0')
        z = Seg()
        z('s_lshl_b32 s%d, s%d, 10' % (S_T1, S_RW))
        z('s_add_u32 s%d, s%d, %d' % (S_T1, S_T1, HND))
        z('v_add_u32 v%d, s%d, v%d' % (V_SEL + 2, S_T1, V_L16))
        z('s_cmp_eq_u32 s%d, 3' % S_RW)
        z('s_cselect_b64 vcc, %s, 0' % sr(S_HI, 2))
        z('v_lshrrev_b32 v%d, 2, v%d' % (V_SEL + 3, V_L16))
        z('v_cndmask_b32 v%d, v%d, v%d, vcc' % (V_SEL + 3, V_SEL + 3, V_FLO))
        z('s_lshl2_add_u32 s%d, s%d, s%d' % (S_H, S_LAST, S_RW))
        z('s_lshl_b32 s%d, s%d, 10' % (S_H, S_H))
        z('s_add_u32 s%d, s%d, 0x%x' % (S_H, S_H, KV_OFF))
        kv_prod(z, 1, PK1, RP)
        z('s_setprio 0')
        z.wait(lgkm='r')
        z.extend(phi_k(0, RB))
        kv_prod(z, 0, acc(0, 0), RP)
        k = len(z) * OPT['kcut'] // 100
        b.extend(z[:k])
        barrier(b, None, 'v3')
        b.extend(z[k:])
        part_write(b, 1)
        b('s_add_u32 s%d, s%d, 4096' % (S_P, S_H))
        b('s_add_u32 s%d, s%d, 8192' % (S_HALF, S_H))
        b('s_cmp_eq_u32 s%d, 3' % S_PEND)
        b('s_cselect_b32 s%d, s%d, 0x%x' % (S_HALF, S_HALF, OOB))
        part_write(b, 0)
        barrier(b, None, 'kk')
        stamp(b, 4)
        R = V_X + 32
        for h in range(3):
            for p in range(4):
                b('ds_read_b128 %s, v%d offset:%d' % (vr(R + 16 * h + 4 * p, 4), V_SEL + 2, h * 16384 + p * 4096), ('red', h))
        for h in range(3):
            r = R + 16 * h
            b.wait(lgkm=[('red', h)])
            for k in (0, 2):
                b('v_pk_add_f32 %s, %s, %s' % (vr(r + k, 2), vr(r + k, 2), vr(r + 4 + k, 2)))
                b('v_pk_add_f32 %s, %s, %s' % (vr(r + 8 + k, 2), vr(r + 8 + k, 2), vr(r + 12 + k, 2)))
                b('v_pk_add_f32 %s, %s, %s' % (vr(r + k, 2), vr(r + k, 2), vr(r + 8 + k, 2)))
            for k in range(4):
                b('buffer_atomic_add_f32 v%d, v%d, %s, s%d offen offset:%d sc1' % (r + k, V_SEL + 3, sr(SWS, 4), (S_H, S_P, S_HALF)[h], k * 256), 'atom')
        stamp(b, 5)
        b('s_lshl_b32 s%d, s%d, 7' % (S_FL, S_LAST))
        b('s_lshl_b32 s%d, s%d, 28' % (S_T1, S_RW))
        b('s_add_u32 s%d, s%d, s%d' % (S_FL, S_FL, S_T1))
        b('s_add_u32 s%d, s%d, 0x%x' % (S_FL, S_FL, FKV_OFF))
        b('s_lshl_b32 s%d, s%d, 4' % (S_T1, S_PEND))
        b('v_cmp_gt_u32 vcc, s%d, v%d' % (S_T1, V_L16))
        b('v_lshlrev_b32 v%d, 3, v%d' % (V_PL, V_L16))
        b('v_cndmask_b32 v%d, v%d, v%d, vcc' % (V_PL, V_FLO, V_PL))
        p2_setup(b)
        b.wait(vm='atom')
        sync_arrive(b, 0)
        sync_wait(b, 0, 4, T)
        stamp(b, 6)
        b('buffer_atomic_add v%d, v%d, %s, s%d offen sc1' % (V_ONE, V_PL, sr(SWS, 4), S_FL))
        b('s_branch L_p2a')
        return b

    return s, body(0), body(1)


V_OUT, V_RD, V_U = 8, 9, 40


def res_load(R):
    s, T = Seg(), R + 8
    s('s_lshl_b32 s%d, s%d, 7' % (S_T0, S_ROLE))
    s('v_lshrrev_b32 v%d, 3, v0' % (T + 1))
    s('v_and_b32 v%d, 0x70, v%d' % (T + 2, V_L16))
    s('v_mul_u32_u24 v%d, %d, v%d' % (V_OUT, XS, T + 1))
    s('v_add_u32 v%d, v%d, v%d' % (V_OUT, V_OUT, T + 2))
    s('buffer_load_dwordx4 %s, v%d, %s, s%d offen' % (vr(R, 4), V_OUT, sr(SX, 4), S_OUTO), 'res')
    s('buffer_load_dwordx4 %s, v%d, %s, s%d offen' % (vr(R + 4, 4), T + 2, sr(SB2, 4), S_T0), 'res')
    return s


def frag_addr(s, T):
    s('v_lshrrev_b32 v%d, 4, v%d' % (T, V_L16))
    s('v_bfe_u32 v%d, v%d, 2, 2' % (T + 1, T))
    s('v_and_b32 v%d, 3, v%d' % (T + 2, T))
    s('v_bfe_u32 v%d, v%d, 4, 1' % (T + 3, T))
    s('v_lshl_add_u32 v%d, v%d, 2, v%d' % (T + 2, T + 3, T + 2))
    s('v_lshrrev_b32 v%d, 1, v%d' % (T + 3, T + 1))
    s('v_lshlrev_b32 v%d, 6, v%d' % (T + 3, T + 3))
    s('v_lshl_add_u32 v%d, v%d, 3, v%d' % (T + 2, T + 2, T + 3))
    s('v_lshl_add_u32 v%d, v%d, 7, v%d' % (T + 2, T + 1, T + 2))
    s('v_lshrrev_b32 v%d, 5, v%d' % (T + 3, T))
    s('v_lshl_add_u32 v%d, v%d, 9, v%d' % (T + 3, T + 3, T + 2))


def bf(par, ct):
    return V_BF + 8 * par + 4 * ct


def acc2(ct, rg):
    return V_ACC + 32 * ct + 16 * rg


def part_addr(g):
    z, T = Seg(), V_NUM
    z('v_bfe_u32 v%d, v%d, 4, 5' % (T, V_L16))
    z('v_and_b32 v%d, 7, v%d' % (T + 1, T))
    z('v_bfe_u32 v%d, v%d, 1, 1' % (T + 2, T))
    z('v_lshrrev_b32 v%d, 9, v%d' % (T + 3, V_L16))
    z('v_xor_b32 v%d, v%d, v%d' % (T + 2, T + 2, T + 3))
    z('v_lshl_add_u32 v%d, v%d, 3, v%d' % (T + 1, T + 2, T + 1))
    z('v_lshlrev_b32 v%d, 4, v%d' % (T + 1, T + 1))
    z('v_lshl_add_u32 v%d, v%d, 8, v%d' % (T + 1, T, T + 1))
    z('v_add_u32 v%d, s%d, v%d' % (T + 8, S_QR0, T + 1))
    if g:
        z('v_add_u32 v%d, s%d, v%d' % (T + 16, S_QR2, T + 1))
    else:
        z('v_add_u32 v%d, 8192, v%d' % (T + 16, T + 8))
    for rg in range(2):
        for k in range(1, 8):
            z('v_xor_b32 v%d, %d, v%d' % (T + 8 + 8 * rg + k, k << 4, T + 8 + 8 * rg))
    return z


def read_addr(g, R):
    z, T = Seg(), R + 8
    z('v_and_b32 v%d, 31, v%d' % (T + 1, T + 1))
    z('v_and_b32 v%d, 7, v%d' % (T + 3, T + 1))
    z('v_bfe_u32 v%d, v%d, 1, 1' % (T + 4, T + 1))
    z('v_lshl_add_u32 v%d, v%d, 3, v%d' % (T + 3, T + 4, T + 3))
    z('v_lshlrev_b32 v%d, 4, v%d' % (T + 3, T + 3))
    z('v_xor_b32 v%d, v%d, v%d' % (T + 3, T + 3, T + 2))
    z('v_lshl_add_u32 v%d, v%d, 8, v%d' % (V_RD, T + 1, T + 3))
    if g:
        z('v_add_u32 v%d, %d, v%d' % (V_RD, R2, V_RD))
    z('v_xor_b32 v%d, 128, v%d' % (V_RD + 1, V_RD))
    return z


def res_unpack(R):
    z, U = Seg(), V_U
    z.wait(vm='res')
    for k in range(4):
        z('v_lshlrev_b32 v%d, 16, v%d' % (U + 2 * k, R + k))
        z('v_and_b32 v%d, 0xffff0000, v%d' % (U + 2 * k + 1, R + k))
        z('v_lshlrev_b32 v%d, 16, v%d' % (R + k, R + 4 + k))
        z('v_and_b32 v%d, 0xffff0000, v%d' % (R + 4 + k, R + 4 + k))
        z('v_add_f32 v%d, v%d, v%d' % (U + 2 * k, U + 2 * k, R + k))
        z('v_add_f32 v%d, v%d, v%d' % (U + 2 * k + 1, U + 2 * k + 1, R + 4 + k))
    return z


def acc_major(s, units, wreg, areg, wtag, atag, fresh, fill=()):
    slots, order = [], [(0, 0), (1, 0), (0, 1), (1, 1)]
    for ct, rg in order:
        for k, u in enumerate(units):
            z = Seg()
            z.wait(vm=[atag(u, rg)], lgkm=[wtag(u, ct)])
            z('v_mfma_f32_32x32x16_bf16 %s, %s, %s, %s' % (vr(acc2(ct, rg), 16), vr(wreg(u, ct), 4), vr(areg(u, rg), 4), '0' if fresh and k == 0 else vr(acc2(ct, rg), 16)))
            slots.append(z)
    n = len(units)
    for k, gi in enumerate(fill):
        slots[k].extend(gi)
    wr = [Ins('ds_write_b128 v%d, %s' % (V_NUM + 8 + 8 * rg + 4 * ct + i, vr(acc2(ct, rg) + 4 * i, 4))) for ct, rg in order for i in range(4)]
    first = 2 * n - 1
    for k in range(8):
        slots[first + k * (2 * n + 1) // 8].append(wr[k])
    for z in slots:
        s.extend(z)
    s.extend(wr[8:])


def final(g):
    s = Seg('final%d' % g)
    D, U = V_AB, V_U
    stamp(s, 8)
    barrier(s)
    stamp(s, 9)
    for w in range(4):
        for h in range(2):
            s('ds_read_b128 %s, v%d offset:%d' % (vr(D + 8 * w + 4 * h, 4), V_RD + h, w * (10240 if g else 12288)), ('fin', w))
    for w in range(4):
        s.wait(lgkm=[('fin', w)])
        for k in range(4):
            s('v_pk_add_f32 %s, %s, %s' % (vr(U + 2 * k, 2), vr(U + 2 * k, 2), vr(D + 8 * w + 2 * k, 2)))
    for k in range(4):
        s('v_cvt_pk_bf16_f32 v%d, v%d, v%d' % (U + k, U + 2 * k, U + 2 * k + 1))
    s('buffer_store_dwordx4 %s, v%d, %s, s%d offen' % (vr(U, 4), V_OUT, sr(SOUT, 4), S_OUTO))
    return s


def phase2b():
    s, T = Seg('p2b'), V_NUM
    s('L_p2b:')
    stamp(s, 5)
    s('s_setprio 1')
    s('v_add_u32 v%d, %d, v%d' % (V_L16B, ACT_G, V_L16))
    s('s_lshl_b32 s%d, s%d, 13' % (S_T0, S_RW))
    s('s_add_u32 s%d, s%d, s%d' % (S_P, S_A, S_T0))
    s('s_add_u32 s%d, s%d, %d' % (S_P, S_P, 112 * 1024))
    s('s_mul_i32 s%d, s%d, %d' % (S_T0, S_RW, 28 * 1024))
    s('s_add_u32 s%d, s%d, s%d' % (S_A, S_A, S_T0))
    DEP, LB = 6, OPT['lb']
    V_PW, V_PX, RES, OF = 11, 14, V_AB + 48, V_AB + 64
    SO = [S_KW + 1 + u if u < 6 else S_HI + u - 6 for u in range(8)]

    def abuf(u, rg):
        return V_AB + 8 * (u % DEP) + 4 * rg if u < 28 else OF + 8 * (u - 28) + 4 * rg

    def aload(z, u):
        ks_dyn(z, S_T0, u)
        z('s_lshl_b32 s%d, s%d, 10' % (S_T0, S_T0))
        z('s_add_u32 s%d, s%d, s%d' % (S_T0, S_T0, S_A))
        for rg in range(2):
            z('buffer_load_dwordx4 %s, v%d, %s, s%d offen sc1' % (vr(abuf(u, rg), 4), V_L16B if rg else V_L16, sr(SWS, 4), S_T0), ('a', u))

    def oloads():
        z = Seg()
        for rg in range(2):
            for u in range(8):
                z('buffer_load_dwordx4 %s, v%d, %s, s%d offen sc1' % (vr(abuf(28 + u, rg), 4), V_L16B if rg else V_L16, sr(SWS, 4), SO[u]), ('o', 28 + u, rg))
        return list(z)

    def word_check(z, u, n, hit=None):
        z.wait(lgkm=[('pw', u)])
        z('v_readfirstlane_b32 s%d, v%d' % (S_T2, V_PW))
        z('s_cmp_lt_u32 s%d, %d' % (S_T2, n))
        if hit:
            z('s_cbranch_scc0 %s' % hit)
            return
        j = nspin[0]
        nspin[0] += 1
        z('s_cbranch_scc1 L_slow%d' % j)
        z('L_ret%d:' % j)
        slow('L_slow%d:' % j)
        slow('s_add_u32 s%d, s%d, 1' % (S_SPIN, S_SPIN))
        slow('s_cmp_gt_u32 s%d, 0x%x' % (S_SPIN, SPIN_LIMIT << 3))
        slow('s_cbranch_scc1 L_ret%d' % j)
        slow('ds_read_b32 v%d, v%d' % (V_PW, V_PX))
        slow('s_waitcnt lgkmcnt(0)')
        slow('v_readfirstlane_b32 s%d, v%d' % (S_T2, V_PW))
        slow('s_nop 0')
        slow('s_cmp_lt_u32 s%d, %d' % (S_T2, n))
        slow('s_cbranch_scc1 L_slow%d' % j)
        slow('s_branch L_ret%d' % j)

    stage_check(s, 0)
    stamp(s, 'c0')
    z = Seg()
    for u in range(DEP - 1):
        if u == OPT['p1at']:
            poll_async(z, 1)
        aload(z, u)
    y = Seg()
    frag_addr(y, T)
    for reg, base in enumerate((S_QR0, S_QR2)):
        y('v_add_u32 v%d, s%d, v%d' % (V_BA + 2 * reg, base, T + 3))
        y('v_xor_b32 v%d, 64, v%d' % (V_BA + 2 * reg + 1, V_BA + 2 * reg))
    y('v_subrev_u32 v%d, 16, v%d' % (V_PX, V_PA))
    s.extend(mix(y, groups(z)))

    def wreg(u, ct):
        return bf(u & 1, ct) if u < 28 else V_AB + 32 * (1 - ct) + 4 * (u - 28)

    def bread(u, ct):
        z = Seg()
        _, reg, off = unit_loc(u)
        z.wait(vm=[('b', u)])
        for h in range(2):
            z('ds_read_b64_tr_b16 %s, v%d offset:%d' % (vr(wreg(u, ct) + 2 * h, 2), V_BA + 2 * reg + ct, off + h * 1024), ('bf', u, ct))
        return z

    s.extend(bread(0, 0) + bread(0, 1))
    late = Seg()
    for u in range(8):
        late('s_xor_b32 s%d, s%d, %d' % (SO[u], S_RO3, u))
        late('s_lshl_b32 s%d, s%d, 10' % (SO[u], SO[u]))
        late('s_add_u32 s%d, s%d, s%d' % (SO[u], SO[u], S_P))
    late = list(read_addr(1, RES)) + list(part_addr(1)) + list(res_unpack(RES)) + list(late)
    SITES = [23, 25, 27, 28]
    U2 = 17 - DEP

    def unit(s, u, extra, word):
        nxt = u + DEP - 1
        z = Seg()
        if nxt < 28:
            aload(z, nxt)
        if 11 <= u + LB < 36:
            dma_b2(z, u + LB)
        if u == 4:
            z.extend(res_load(RES))
        now = groups(z) + [[i] for i in extra]
        if 10 <= u < 22:
            k0, k1 = len(late) * (u - 10) // 12, len(late) * (u - 9) // 12
            now += [[i] for i in late[k0:k1]]
        if u < 27:
            rd = [bread(u + 1, 0), bread(u + 1, 1), Seg(), Seg()]
        else:
            rd = [bread(28 + k, 0) for k in range(4)]
        if word:
            rd[2]('ds_read_b32 v%d, v%d' % (V_PW, V_PX), ('pw', u + 1))
        s.wait(vm=[('a', u)])
        stamp(s, 'u%d' % u)
        k = 0
        for ct in range(2):
            s.wait(lgkm=[('bf', u, ct)])
            for rg in range(2):
                s('v_mfma_f32_32x32x16_bf16 %s, %s, %s, %s' % (vr(acc2(ct, rg), 16), vr(wreg(u, ct), 4), vr(abuf(u, rg), 4), vr(acc2(ct, rg), 16) if u else '0'))
                s.extend(rd[k])
                for gi in range(len(now) * k // 4, len(now) * (k + 1) // 4):
                    s.extend(now[gi])
                k += 1

    assert LB >= 8
    main, alts = [s], []
    for u in range(28):
        if u + DEP - 1 == 8:
            stage_check(s, 1)
            stamp(s, 'c1')
        if u == 7:
            word_check(s, u, 1)
        if u == U2:
            word_check(s, u, 3)
            stamp(s, 'c2')
        if u in SITES:
            word_check(s, u, 7, hit='L_p2o%d' % u)
            a = Seg('p2o%d' % u)
            a('L_p2o%d:' % u)
            stamp(a, 'c3')
            o = oloads()
            for v in range(u, 28):
                unit(a, v, o[:4], False)
                o = o[4:]
            a.extend(o)
            a('s_branch L_p2tail')
            alts.append((list(main), a))
            s = Seg('p2m%d' % u)
            main.append(s)
        unit(s, u, [], u + 1 in SITES + [7, U2])
    word_check(s, 28, 7)
    stamp(s, 'c3')
    s.extend(oloads())
    t = Seg('p2t')
    t('L_p2tail:')
    stamp(t, 'tl')
    fill = [bread(u, 0) for u in range(32, 36)] + [bread(u, 1) for u in range(28, 36)]
    acc_major(t, range(28, 36), wreg, abuf, lambda u, ct: ('bf', u, ct), lambda u, rg: ('o', u, rg), False, fill)
    t.extend(final(1))
    t('s_branch L_fin')
    return [m + [a, t] for m, a in alts] + [main + [t]], [a for _, a in alts] + main + [t]


def phase2a():
    s = Seg('p2a')
    s('L_p2a:')
    poll_base(s)
    s('v_mov_b32 v%d, 3' % V_ONE)
    s.extend(res_load(V_BF))
    s.extend(read_addr(0, V_BF))
    stage_check(s, 2, sync=True, scalar=OPT['ascal'])
    sync_arrive(s, 0)
    stamp(s, 'a2')
    s('v_mov_b32 v%d, 7' % V_ONE)
    stage_check(s, 3, sync=True, scalar=OPT['ascal'])
    sync_arrive(s, 0)
    stamp(s, 7)
    s.wait(lgkm='all')
    s.extend(res_unpack(V_BF))
    s.extend(final(0))
    return s


def fin():
    s = Seg('fin')
    s('L_fin:')
    if OPT['diag']:
        stamp(s, 10)
        s('s_waitcnt lgkmcnt(0)')
        s('v_mov_b32 v4, 0')
        for k in range(11):
            s('v_writelane_b32 v4, s%d, %d' % (S_KA + 2 * k, k))
        s('v_writelane_b32 v4, s%d, 11' % S_SPIN)
        s('s_lshl3_add_u32 s%d, s2, s%d' % (S_T0, S_WV))
        s('s_lshl_b32 s%d, s%d, 8' % (S_T0, S_T0))
        s('s_add_u32 s%d, s%d, 0x%x' % (S_T0, S_T0, TS_OFF))
        s('v_lshrrev_b32 v5, 2, v%d' % V_L16)
        s('buffer_store_dword v4, v5, %s, s%d offen' % (sr(SWS, 4), S_T0))
        if OPT['diag'] == 3:
            s('s_not_b32 s%d, s%d' % (S_T0, S_KA))
            s('v_writelane_b32 v4, s%d, 11' % S_T0)
            s('s_cmp_eq_u32 s%d, 4' % S_WV)
            s('s_cselect_b32 s%d, 16, 0x%x' % (S_T0, OOB))
            s('s_cmp_lt_u32 s%d, 4' % S_ROLE)
            s('s_cselect_b32 s%d, s%d, 0x%x' % (S_T0, S_T0, OOB))
            s('s_mov_b64 exec, 0xfff')
            s('buffer_atomic_umax v4, v5, %s, s%d offen sc1' % (sr(SDBG, 4), S_T0))
    if OPT['diag'] == 5:
        s('s_cmp_lg_u32 s%d, 4' % S_WV)
        s('s_cbranch_scc1 L_end')
        s('s_mov_b64 exec, 1')
        s('s_not_b32 s%d, s%d' % (S_T0, S_KA + 2 * OPT['sa']))
        s('v_mov_b32 v4, s%d' % S_T0)
        s('v_mov_b32 v5, s%d' % (S_KA + 2 * OPT['sb']))
        s('v_mov_b32 v6, 1')
        s('v_mov_b32 v7, 0')
        s('buffer_atomic_umax v4, v7, %s, 0 offen offset:128 sc1' % sr(SDBG, 4))
        s('buffer_atomic_umax v5, v7, %s, 0 offen offset:132 sc1' % sr(SDBG, 4))
        s('s_waitcnt vmcnt(0)')
        s('buffer_atomic_add v6, v7, %s, 0 offen offset:136 sc0 sc1' % sr(SDBG, 4))
        s('s_waitcnt vmcnt(0)')
        s('v_readfirstlane_b32 s%d, v6' % S_T0)
        s('s_cmp_lg_u32 s%d, 255' % S_T0)
        s('s_cbranch_scc1 L_end')
        s('buffer_load_dwordx2 v[4:5], v7, %s, 0 offen offset:128 sc1' % sr(SDBG, 4))
        s('s_waitcnt vmcnt(0)')
        s('v_add_u32 v4, v4, v5')
        s('s_nop 1')
        s('v_readfirstlane_b32 s%d, v4' % S_T0)
        s('s_add_u32 s%d, s%d, 1' % (S_T0, S_T0))
        s('s_mul_i32 s%d, s%d, %d' % (S_T0, S_T0, OPT['mul']))
        s('s_min_u32 s%d, s%d, 200000' % (S_T0, S_T0))
        s('s_memrealtime s[66:67]')
        s('s_waitcnt lgkmcnt(0)')
        s('L_dly:')
        s('s_memrealtime s[68:69]')
        s('s_waitcnt lgkmcnt(0)')
        s('s_sub_u32 s68, s68, s66')
        s('s_cmp_lt_u32 s68, s%d' % S_T0)
        s('s_cbranch_scc1 L_dly')
    if OPT['diag'] == 4:
        s('s_cmp_lg_u32 s2, %d' % OPT['wg'])
        s('s_cbranch_scc1 L_end')
        s('s_cmp_lg_u32 s%d, 4' % S_WV)
        s('s_cbranch_scc1 L_end')
        s('s_sub_u32 s%d, s%d, s%d' % (S_T0, S_KA + 2 * OPT['sb'], S_KA + 2 * OPT['sa']))
        if not OPT['clk']:
            s('s_mul_i32 s%d, s%d, 10' % (S_T0, S_T0))
        s('s_min_u32 s%d, s%d, 200000' % (S_T0, S_T0))
        s('s_memrealtime s[66:67]')
        s('s_waitcnt lgkmcnt(0)')
        s('L_dly:')
        s('s_memrealtime s[68:69]')
        s('s_waitcnt lgkmcnt(0)')
        s('s_sub_u32 s68, s68, s66')
        s('s_cmp_lt_u32 s68, s%d' % S_T0)
        s('s_cbranch_scc1 L_dly')
    s('L_end:')
    s('s_endpgm')
    return s


def main():
    pro, prw, pre = prologue()
    f, fa, fb = lc_role(True)
    q, qa, qb = lc_role(False)
    qo = q_out()
    k, ka, kb = kv_role()
    (p2paths, p2segs), p2a, fi = phase2b(), phase2a(), fin()
    paths = [
        [pro, pre, f, fa, p2a, fi],
        [pro, pre, q, qa, qo, fi],
        [pro, prw, pre, q, qb, qo, fi],
        [pro, prw, pre, k, ka, p2a, fi],
    ]
    for p in p2paths:
        paths += [[pro, prw, pre, f, fb] + p + [fi], [pro, prw, pre, k, kb] + p + [fi]]
    resolve_waits(paths)
    n = pad_hazards(paths)
    assert pad_hazards(paths) == 0
    body = render([pro, prw, pre, f, fa, fb, k, ka, kb, q, qa, qb, qo] + p2segs + [p2a, fi, slow])
    head = open('cdna_kernels/%s.s.ref' % NAME).read().split('\n')
    head = [l for l in head if l.startswith(';') and '@launch' not in l]
    out = '\n'.join(head) + '''
; @launch grid=(256,1,1) block=(512,1,1) lds=%d
.amdgcn_target "amdgcn-amd-amdhsa--gfx950"
.text
.globl %s_kernel
.p2align 8
.type %s_kernel,@function
%s_kernel:
L_codebeg:
%s
L_codeend:
.section .rodata,"a"
.p2align 6
.amdhsa_kernel %s_kernel
  .amdhsa_next_free_vgpr 256
  .amdhsa_next_free_sgpr 102
  .amdhsa_accum_offset 256
  .amdhsa_group_segment_fixed_size 0
  .amdhsa_kernarg_size 88
  .amdhsa_user_sgpr_count 2
  .amdhsa_user_sgpr_kernarg_segment_ptr 1
  .amdhsa_system_sgpr_workgroup_id_x 1
.end_amdhsa_kernel
''' % (LDS_BYTES, NAME, NAME, NAME, body, NAME)
    if OPT['x_plain'] & 1:
        out = '\n'.join(l.replace(' sc1', '') if 'buffer_store_dwordx4' in l else l for l in out.split('\n'))
    if OPT['x_plain'] & 2:
        out = '\n'.join(l.replace(' sc1', '') if 'buffer_load_dwordx4' in l else l for l in out.split('\n'))
    open(sys.argv[1], 'w').write(out)
    print('wrote %s: %d lines, %d pad states' % (sys.argv[1], out.count('\n'), n))


main()
```

```python
import struct
import sys
from asmlib import Seg, Ins, Wait, GAP, interleave, resolve_waits, pad_hazards, render, vr, sr

NAME = 'parallel_sum__linear_attn_block__dense_activation_gelu__prompt'
OPT = dict(back=0, x_wait=0, rot1=2, nlate=1, mul=10, fatom=0, tlb=0, kbar=4, kphi=26, ntail=4, p1at=2, ascal=1, kpf=2, kcut=100, qatom=1, batom=1, pkind=1, x_hit=0, gsp=3, eprio=0, aprio=2, aprio2=2, aprio3=2, lb=10, touch=5, tat=4, twat=3, tkat=0, kprio=1, plead=3, x_noa=0, x_nopoll=0, x_noflag=0, x_nost=0, x_plain=0, rot2=1, dep=6, noatom=0, diag=0, p1only=0, sa=0, sb=10, clk=0, wg=0)
for a in sys.argv[2:]:
    k, v = a.split('=')
    OPT[k] = v if k == 'st' else int(v)
STAMPS = OPT.get('st', 'en,1,2,3,4,5,6,7,8,9,10').split(',')


def f32(x):
    return '0x%08x' % struct.unpack('<I', struct.pack('<f', x))[0]


XS, WQS, W1S = 896, 2688, 3584
ACT_G = 147456
KV_OFF = 0x900000
FKV_OFF = 0x910000
FL_OFF = 0x911000
FL_G = 896
ST_OFF = 0x930000
TS_OFF = 0xA00000
WS_BYTES = 0x10000000
OOB = 0x40000000
R0, R1, R2, MISC = 0, 57344, 114688, 155648
M_ST, M_SY, M_CS, M_R = MISC, MISC + 2048, MISC + 4096, MISC + 7168
LDS_BYTES = 163840
LOG2E = 1.4426950408889634
GC1 = -2.0 * 0.7978845608028654 * LOG2E
GC3 = GC1 * 0.044715
SPIN_LIMIT = 1 << 16

S_WV, S_RW, S_G, S_RB, S_ROLE = 3, 4, 5, 6, 7
SX, SW, SWS, SW2, SWO, SOUT, SB1, SB2, SDBG = 8, 12, 16, 20, 24, 28, 32, 36, 40
S_KA = 44
S_KX, S_KW = 66, 73
S_I2, S_HALF, S_T0, S_T1, S_ONES, S_EPS = 80, 81, 82, 83, 84, 85
S_M0W, S_M0X, S_T3, S_RO, S_H, S_FL = 86, 87, 88, 89, 90, 91
S_HI = 92
S_SPIN, S_T2, S_P, S_LAST, S_PEND, S_L2E = 94, 95, 96, 97, 98, 99
S_PAD = 100
S_B2R, S_QR0, S_RO3, S_QR2, S_A, S_WOR, S_OUTO, S_PL = 66, 67, 68, 69, 70, 71, 72, 73
S_AO = 74

V_L16, V_B2, V_X0, V_X1, V_W, V_CSW, V_CSR = 1, 2, 3, 4, 5, 6, 7
V_SEL, V_CS, V_WA, V_XA, V_EXW, V_EXR, V_ST = 8, 12, 20, 28, 32, 36, 38
V_B1 = 16
V_WB, V_RA = 42, 43
V_POLL, V_PA, V_FLO, V_ONE = 44, 45, 46, 47
V_T = 48
V_ACC, V_X, V_WF = 64, 128, 240
V_B2B, V_BA, V_L16B, V_PL = 3, 4, 12, 13
V_NUM, V_BF, V_AB, V_RES = 16, 48, 128, 192
V_PQ = 80
HND = 49152

slow = Seg('slow')
nspin = [0]


def stamp(s, k):
    if OPT['diag'] and str(k) in STAMPS:
        k = STAMPS.index(str(k))
        s('%s %s' % ('s_memtime' if OPT['diag'] == 2 or OPT['clk'] else 's_memrealtime', sr(S_KA + 2 * k, 2)))


EARLY = ['en', 'ka', 't0', 't1']


def estamp(s, k):
    if OPT['diag'] and k in STAMPS:
        s('%s s[100:101]' % ('s_memtime' if OPT['diag'] == 2 or OPT['clk'] else 's_memrealtime'))
        s('s_waitcnt lgkmcnt(0)')
        s('v_mov_b32 v%d, s100' % (120 + EARLY.index(k)))


class Rebase:
    def __init__(self, regs, base, span):
        self.regs, self.base, self.span = regs, base, span

    def off(self, s, addr):
        if not (self.base <= addr and addr - self.base + self.span <= 65535):
            for r in self.regs:
                s('v_add_u32 v%d, 0x%x, v%d' % (r, (addr - self.base) & 0xffffffff, r))
            self.base = addr
        return addr - self.base


def spin_check(s, vpoll, vexp, vaddr, srd, soff, mask):
    k = nspin[0]
    nspin[0] += 1
    s('v_cmp_ge_u32 vcc, v%d, v%d' % (vpoll, vexp))
    s('s_andn2_b32 s%d, 0x%x, vcc_lo' % (S_T2, mask))
    s('s_cbranch_scc1 L_slow%d' % k)
    s('L_ret%d:' % k)
    slow('L_slow%d:' % k)
    slow('s_add_u32 s%d, s%d, 1' % (S_SPIN, S_SPIN))
    slow('s_cmp_gt_u32 s%d, 0x%x' % (S_SPIN, SPIN_LIMIT))
    slow('s_cbranch_scc1 L_ret%d' % k)
    slow('buffer_load_dword v%d, v%d, %s, %s offen sc1' % (vpoll, vaddr, sr(srd, 4), soff))
    slow('s_waitcnt vmcnt(0)')
    slow('v_cmp_ge_u32 vcc, v%d, v%d' % (vpoll, vexp))
    slow('s_nop 1')
    slow('s_andn2_b32 s%d, 0x%x, vcc_lo' % (S_T2, mask))
    slow('s_cbranch_scc1 L_slow%d' % k)
    slow('s_branch L_ret%d' % k)


def poll_base(s):
    s('s_lshr_b32 s%d, s%d, 1' % (S_PL, S_I2))
    s('s_lshl2_add_u32 s%d, s%d, s%d' % (S_PL, S_PL, S_RW))
    s('s_mul_i32 s%d, s%d, %d' % (S_PL, S_PL, FL_G))
    s('s_add_u32 s%d, s%d, 0x%x' % (S_PL, S_PL, FL_OFF))
    s('v_cmp_gt_u32 vcc, 32, v%d' % V_L16)
    s('v_lshlrev_b32 v%d, 3, v%d' % (V_PL, V_L16))
    s('v_cndmask_b32 v%d, v%d, v%d, vcc' % (V_PL, V_FLO, V_PL))


def poll_async(s, k):
    s('buffer_load_dword v%d, v%d, %s, s%d offen offset:%d sc1' % (V_POLL, V_PL, sr(SWS, 4), S_PL, k * 256), ('poll', k))


def stage_check(s, k, miss=None, sync=False, scalar=False):
    if OPT['x_nopoll']:
        return
    j = nspin[0]
    nspin[0] += 1
    mask = 3 if k < 3 else 1
    if sync:
        s('s_branch L_slow%d' % j)
    else:
        s.wait(vm=[('poll', k)])
        s('v_cmp_ne_u32 vcc, 0, v%d' % V_POLL)
        s('s_andn2_b32 s%d, %d, vcc_lo' % (S_T2, mask))
        if miss:
            s('s_cbranch_scc1 %s' % miss)
            return
        s('s_cbranch_scc1 L_slow%d' % j)
    s('L_ret%d:' % j)
    slow('L_slow%d:' % j)
    slow('s_add_u32 s%d, s%d, 1' % (S_SPIN, S_SPIN))
    slow('s_cmp_gt_u32 s%d, 0x%x' % (S_SPIN, SPIN_LIMIT))
    slow('s_cbranch_scc1 L_ret%d' % j)
    if sync and k == 3 and OPT['back']:
        slow('s_sleep %d' % OPT['back'])
    if scalar:
        slow('s_add_u32 s%d, s%d, %d' % (S_T2, S_PL, k * 256))
        slow('s_add_u32 s%d, s%d, %d' % (S_T1, S_PL, k * 256 + (128 if k < 3 else 0)))
        slow('s_buffer_load_dword s%d, %s, s%d glc' % (S_T2, sr(SWS, 4), S_T2))
        if k < 3:
            slow('s_buffer_load_dword s%d, %s, s%d glc' % (S_T1, sr(SWS, 4), S_T1))
        slow('s_waitcnt lgkmcnt(0)')
        if k < 3:
            slow('s_and_b32 s%d, s%d, s%d' % (S_T2, S_T2, S_T1))
        slow('s_cmp_eq_u32 s%d, 0' % S_T2)
    else:
        slow('buffer_load_dword v%d, v%d, %s, s%d offen offset:%d sc1' % (V_POLL, V_PL, sr(SWS, 4), S_PL, k * 256))
        slow('s_waitcnt vmcnt(0)')
        slow('v_cmp_ne_u32 vcc, 0, v%d' % V_POLL)
        slow('s_nop 1')
        slow('s_andn2_b32 s%d, %d, vcc_lo' % (S_T2, mask))
    slow('s_cbranch_scc1 L_slow%d' % j)
    slow('s_branch L_ret%d' % j)


def poll_check(s, k, n, sync=False, atomic=False):
    j = nspin[0]
    nspin[0] += 1
    if OPT['x_nopoll']:
        return
    if sync:
        s('s_branch L_slow%d' % j)
    else:
        s.wait(vm=[('poll', k)])
        s('v_readfirstlane_b32 s%d, v%d' % (S_T2, V_POLL))
        s('s_cmp_lt_u32 s%d, %d' % (S_T2, n))
        s('s_cbranch_scc1 L_slow%d' % j)
    s('L_ret%d:' % j)
    slow('L_slow%d:' % j)
    slow('s_add_u32 s%d, s%d, 1' % (S_SPIN, S_SPIN))
    slow('s_cmp_gt_u32 s%d, 0x%x' % (S_SPIN, SPIN_LIMIT))
    slow('s_cbranch_scc1 L_ret%d' % j)
    if atomic:
        slow('v_mov_b32 v%d, 0' % V_POLL)
        slow('buffer_atomic_add v%d, v%d, %s, s%d offen offset:%d sc0 sc1' % (V_POLL, V_FLO, sr(SWS, 4), S_PL, k * 128))
        slow('s_waitcnt vmcnt(0)')
        slow('v_readfirstlane_b32 s%d, v%d' % (S_T2, V_POLL))
        slow('s_nop 0')
    else:
        slow('s_add_u32 s%d, s%d, %d' % (S_T2, S_PL, k * 128))
        slow('s_buffer_load_dword s%d, %s, s%d glc' % (S_T2, sr(SWS, 4), S_T2))
        slow('s_waitcnt lgkmcnt(0)')
    slow('s_cmp_lt_u32 s%d, %d' % (S_T2, n))
    slow('s_cbranch_scc1 L_slow%d' % j)
    slow('s_branch L_ret%d' % j)


def srd(s, d, nbytes):
    s('s_mov_b32 s%d, 0x%x' % (d + 2, nbytes))
    s('s_mov_b32 s%d, 0x20000' % (d + 3))


XSLOT = [R2, R2 + 16384, R1 + 8192, R1 + 24576, R1 + 40960, R2, R2 + 16384]


def kv_slot(n):
    return ((n + 4) % 9) * 16384


def prologue():
    s, T = Seg('pro'), V_T
    s('s_cmp_ge_u32 s2, 256')
    s('s_cbranch_scc1 L_end')
    estamp(s, 'en')
    s('s_load_dwordx2 %s, s[0:1], 0' % sr(SX, 2))
    s('s_load_dwordx2 %s, s[0:1], 8' % sr(SW, 2))
    s('s_load_dwordx2 %s, s[0:1], 32' % sr(S_HI, 2))
    s('v_readfirstlane_b32 s%d, v0' % S_WV)
    s('s_getpc_b64 s[82:83]')
    s('s_lshr_b32 s%d, s2, 3' % S_T2)
    s('s_lshl_b32 s%d, s%d, 11' % (S_P, S_T2))
    s('v_lshl_add_u32 v%d, v0, 2, s%d' % (T, S_P))
    s('v_min_u32 v%d, L_codeend-L_codebeg-64, v%d' % (T, T))
    s('global_load_dword v%d, v%d, s[82:83]' % (V_POLL, T))
    s('s_lshr_b32 s%d, s%d, 6' % (S_WV, S_WV))
    s('v_and_b32 v%d, 63, v0' % T)
    s('s_and_b32 s%d, s%d, 7' % (S_ROLE, S_T2))
    s('v_lshrrev_b32 v%d, 3, v%d' % (T + 1, T))
    s('s_lshr_b32 s%d, s%d, 3' % (S_I2, S_T2))
    s('v_lshrrev_b32 v%d, 4, v%d' % (T + 3, T))
    s('s_and_b32 s%d, s2, 1' % S_HALF)
    s('v_lshl_add_u32 v%d, s%d, 4, v%d' % (T + 5, S_WV, T + 1))
    s('s_bfe_u32 s%d, s2, 0x20001' % S_P)
    s('v_mul_u32_u24 v%d, %d, v%d' % (T + 5, XS, T + 5))
    s('s_lshl2_add_u32 s%d, s%d, s%d' % (S_RB, S_P, S_I2))
    s('v_xor_b32 v%d, v%d, v%d' % (T + 6, T, T + 3))
    s('s_lshl1_add_u32 s%d, s%d, s%d' % (S_T2, S_I2, S_ROLE))
    s('v_and_b32 v%d, 7, v%d' % (T + 6, T + 6))
    s('s_add_u32 s%d, s%d, s%d' % (S_T2, S_T2, S_P))
    s('v_lshl_add_u32 v%d, v%d, 4, v%d' % (V_X0, T + 6, T + 5))
    s('s_mul_i32 s%d, s%d, 3' % (S_T0, S_HALF))
    s('v_xor_b32 v%d, 64, v%d' % (V_X1, V_X0))
    s('s_add_u32 s%d, s%d, s%d' % (S_T2, S_T2, S_T0))
    s('v_add_u32 v%d, %d, v%d' % (V_X1, 8 * XS - 1024, V_X1))
    s('s_mul_i32 s%d, s%d, 37' % (S_T1, S_T2))
    s('v_lshlrev_b32 v%d, 2, v%d' % (T + 4, T + 3))
    s('s_lshr_b32 s%d, s%d, 8' % (S_T1, S_T1))
    s('v_xor_b32 v%d, v%d, v%d' % (T + 4, T, T + 4))
    s('s_mul_i32 s%d, s%d, 7' % (S_T1, S_T1))
    s('s_sub_u32 s%d, s%d, s%d' % (S_T2, S_T2, S_T1))
    if OPT['rot1'] == 0:
        s('s_mov_b32 s%d, 0' % S_T2)
    elif OPT['rot1'] == 2:
        s('s_lshr_b32 s%d, s%d, 1' % (S_T2, S_T2))
    elif OPT['rot1'] == 3:
        s('s_and_b32 s%d, s%d, 4' % (S_T2, S_T2))
    elif OPT['rot1'] == 4:
        s('s_and_b32 s%d, s%d, 6' % (S_T2, S_T2))
    s('s_mul_i32 s%d, s%d, %d' % (S_H, S_RB, 128 * XS))
    s('s_lshl_b32 s%d, s%d, 7' % (S_KX, S_T2))
    s('s_add_u32 s%d, s%d, s%d' % (S_KX, S_KX, S_H))
    s('s_and_b32 s%d, s%d, 3' % (S_RW, S_WV))
    s('s_lshr_b32 s%d, s%d, 2' % (S_G, S_WV))
    s('s_lshl_b32 s%d, s%d, 11' % (S_M0X, S_WV))
    s('s_lshl_b32 s%d, s%d, 11' % (S_M0W, S_RW))
    srd(s, SX, 2048 * XS)
    s('s_add_u32 s%d, s%d, s%d' % (S_T0, S_T0, S_ROLE))
    s('s_lshl_b32 s%d, s%d, 7' % (S_T0, S_T0))
    s('s_add_u32 s%d, s%d, %d' % (S_T0, S_T0, XS - 512))
    s('s_lshl2_add_u32 s%d, s%d, s%d' % (S_P, S_HALF, S_ROLE))
    s('s_and_b32 s%d, s%d, 1' % (S_PEND, S_ROLE))
    s('s_lshl_b32 s%d, s%d, 6' % (S_PEND, S_PEND))
    s('s_movk_i32 s%d, %d' % (S_LAST, WQS))
    s('s_cmp_lt_u32 s%d, 4' % S_ROLE)
    s('s_cselect_b32 s%d, %d, s%d' % (S_LAST, W1S, S_LAST))
    s('s_cselect_b32 s%d, s%d, s%d' % (S_P, S_P, S_HALF))
    s('s_cselect_b32 s%d, s%d, 0' % (S_PEND, S_PEND))
    s('s_mul_i32 s%d, s%d, 448' % (S_T1, S_P))
    s('s_add_u32 s%d, s%d, s%d' % (S_T1, S_T1, S_PEND))
    s('s_lshl_b32 s%d, s%d, 6' % (S_RO, S_LAST))
    s('s_mul_i32 s%d, s%d, s%d' % (S_KW, S_T2, S_RO))
    s('s_mul_i32 s%d, s%d, 448' % (SW + 2, S_LAST))
    s('s_mov_b32 s%d, 0x20000' % (SW + 3))
    s('s_lshl_b32 s%d, s%d, 1' % (S_T2, S_RW))
    s('s_add_u32 s%d, s%d, %d' % (S_FL, S_M0X, kv_slot(1)))
    s('s_bitcmp1_b32 0x70, s%d' % S_ROLE)
    s('s_cselect_b32 s%d, s%d, s%d' % (S_T0, S_T0, S_T1))
    s('s_cselect_b32 s%d, s%d, s%d' % (S_T2, S_WV, S_T2))
    s('s_cselect_b32 s%d, s%d, s%d' % (S_FL, S_FL, S_M0W))
    s('s_cselect_b32 s%d, 4, 3' % S_T1)
    s('s_cselect_b32 s%d, 4, 7' % S_T3)
    s('s_cselect_b32 s%d, 1, s%d' % (S_SPIN, S_G))
    s('v_lshrrev_b32 v%d, s%d, v%d' % (T + 5, S_T1, T))
    s('s_lshl_b32 s%d, s%d, 14' % (S_T3, S_T3))
    s('v_lshl_add_u32 v%d, s%d, 3, v%d' % (T + 5, S_T2, T + 5))
    s('s_add_u32 m0, s%d, s%d' % (S_T3, S_M0X))
    s('v_bfe_u32 v%d, v%d, 0, s%d' % (T + 6, T + 4, S_T1))
    s('s_lshr_b32 s%d, s%d, s%d' % (S_T1, S_RO, S_T1))
    s('v_mul_u32_u24 v%d, s%d, v%d' % (T + 5, S_LAST, T + 5))
    s('s_sub_u32 s%d, s%d, 1024' % (S_T1, S_T1))
    s('v_lshl_add_u32 v%d, v%d, 4, s%d' % (T + 6, T + 6, S_T0))
    s('v_add_u32 v%d, v%d, v%d' % (V_W, T + 5, T + 6))
    s('s_cmp_lt_u32 s%d, 4' % S_ROLE)
    s('v_add_u32 v%d, s%d, v%d' % (V_WB, S_T1, V_W))
    s('s_waitcnt lgkmcnt(0)')
    estamp(s, 'ka')
    assert XSLOT[0] == 7 << 14 and kv_slot(0) == 4 << 14
    s('buffer_load_dwordx4 v%d, %s, s%d offen lds' % (V_X0, sr(SX, 4), S_KX), 't0')
    s('s_cselect_b64 %s, %s, %s' % (sr(SW, 2), sr(S_HI, 2), sr(SW, 2)))
    s('buffer_load_dwordx4 v%d, %s, s%d offen offset:1024 lds' % (V_X1, sr(SX, 4), S_KX), 't0')
    s('s_mov_b32 m0, s%d' % S_FL)
    s('s_cmp_eq_u32 s%d, 0' % S_SPIN)
    s('s_cbranch_scc1 L_now')
    w = Seg('prow')
    w('buffer_load_dwordx4 v%d, %s, s%d offen lds' % (V_W, sr(SW, 4), S_KW), 't0')
    w('buffer_load_dwordx4 v%d, %s, s%d offen offset:1024 lds' % (V_WB, sr(SW, 4), S_KW), 't0')
    e = Seg('proe')
    e('L_now:')
    estamp(e, 't0')
    for d, off in ((SWS, 80), (SB1, 40), (SDBG, 72), (SW2, 48), (SWO, 16), (SB2, 56), (SOUT, 64)):
        e('s_load_dwordx2 %s, s[0:1], %d' % (sr(d, 2), off))
    essential(e)
    e('s_cmp_ge_u32 s%d, 7' % S_ROLE)
    e('s_cbranch_scc1 L_q')
    e('s_cmp_ge_u32 s%d, 4' % S_ROLE)
    e('s_cbranch_scc1 L_kv')
    return s, w, e


def zipper(a, b):
    out = []
    for k in range(max(len(a), len(b))):
        out += a[k:k + 1] + b[k:k + 1]
    return out


def essential(z):
    T = V_T
    k, s = Seg(), Seg()
    k('s_add_u32 s%d, s%d, %d' % (S_T2, S_H, XS))
    for c in range(1, 7):
        k('s_add_u32 s%d, s%d, 128' % (S_KX + c, S_KX + c - 1))
        k('s_add_u32 s%d, s%d, s%d' % (S_KW + c, S_KW + c - 1, S_RO))
        k('s_cmp_eq_u32 s%d, s%d' % (S_KX + c, S_T2))
        k('s_cselect_b32 s%d, s%d, s%d' % (S_KX + c, S_H, S_KX + c))
        k('s_cselect_b32 s%d, 0, s%d' % (S_KW + c, S_KW + c))
    k('s_mov_b32 s%d, 0x3f803f80' % S_ONES)
    s('v_lshlrev_b32 v%d, 4, v%d' % (V_L16, T))
    s('v_and_b32 v%d, 1, v%d' % (T + 7, T + 3))
    s('v_and_b32 v%d, 31, v%d' % (T + 8, T))
    s('v_lshrrev_b32 v%d, 5, v%d' % (T + 9, T))
    s('v_bfe_u32 v%d, v%d, 2, 2' % (T + 10, T))
    s('v_and_b32 v%d, 3, v%d' % (T + 11, T))
    s('v_lshl_add_u32 v%d, s%d, 1, v%d' % (T + 12, S_RW, T + 9))
    s('v_bfe_u32 v%d, v%d, 1, 3' % (T + 5, T))
    s('v_xor_b32 v%d, v%d, v%d' % (T + 5, T + 12, T + 5))
    s('v_lshl_add_u32 v%d, s%d, 5, v%d' % (T + 13, S_RW, T + 8))
    s('v_lshlrev_b32 v%d, 7, v%d' % (V_XA, T + 13))
    s('v_lshl_add_u32 v%d, v%d, 4, v%d' % (V_XA, T + 5, V_XA))
    for j in range(1, 4):
        s('v_xor_b32 v%d, %d, v%d' % (V_XA + j, j << 5, V_XA))
    s('v_lshl_add_u32 v%d, v%d, 3, v%d' % (T + 12, T + 12, T + 10))
    s('v_lshl_add_u32 v%d, v%d, 2, v%d' % (T + 14, T + 7, T + 11))
    s('v_and_b32 v%d, 1, v%d' % (T + 5, T + 10))
    s('v_mov_b32 v%d, 0x3f803f80' % (T + 6))
    s('v_cmp_eq_u32 vcc, v%d, v%d' % (T + 5, T + 7))
    for j in range(4):
        s('v_mov_b32 v%d, 0' % (V_ST + j))
    for j in range(4):
        s('v_cndmask_b32 v%d, 0, v%d, vcc' % (V_SEL + j, T + 6))
    s('v_mov_b32 v%d, 0x%x' % (V_FLO, OOB))
    s('v_cmp_eq_u32 vcc, 0, v%d' % T)
    s('v_mov_b32 v%d, 1' % V_ONE)
    s('v_mov_b32 v%d, 0' % (V_EXW + 1))
    s('v_cndmask_b32 v%d, v%d, 0, vcc' % (V_FLO, V_FLO))
    z.extend(zipper(list(k), list(s)))


def deferred(kv):
    s, T = Seg(), V_T
    for k in EARLY:
        if OPT['diag'] and k in STAMPS:
            s('v_readfirstlane_b32 s%d, v%d' % (S_KA + 2 * STAMPS.index(k), 120 + EARLY.index(k)))
    srd(s, SW2, 1792 * XS)
    srd(s, SWO, 448 * XS)
    srd(s, SOUT, 2048 * XS)
    srd(s, SB2, 448 * 2)
    s('s_mov_b32 s%d, %s' % (S_EPS, f32(1e-6)))
    s('s_mov_b32 s%d, %s' % (S_L2E, f32(LOG2E)))
    s('s_mov_b32 s%d, 0' % S_HI)
    s('s_mov_b32 s%d, -1' % (S_HI + 1))
    if kv:
        s('s_mov_b32 s%d, 0xf0000000' % S_PAD)
        s('s_mov_b32 s%d, 0xf0000000' % (S_PAD + 1))
        s('v_mov_b32 v%d, 0' % (V_EXW + 3))
    s('s_mov_b32 s%d, 0' % S_SPIN)
    s('v_and_b32 v%d, 7, v%d' % (T + 4, T + 4))
    s('v_mul_u32_u24 v%d, %d, v%d' % (V_B2, XS, T + 1))
    s('v_lshl_add_u32 v%d, v%d, 4, v%d' % (V_B2, T + 4, V_B2))
    if kv:
        s('s_mov_b32 s%d, %d' % (S_T1, M_CS))
    else:
        s('s_lshl_b32 s%d, s%d, 9' % (S_T1, S_G))
        s('s_add_u32 s%d, s%d, %d' % (S_T1, S_T1, M_CS))
    s('v_lshl_add_u32 v%d, v%d, 4, s%d' % (V_CSR, T + 8, S_T1))
    s('v_lshl_add_u32 v%d, s%d, 2, v%d' % (V_CSW, S_RW, V_CSR))
    s('s_lshl2_add_u32 s%d, s%d, %d' % (S_T1, S_WV, M_SY))
    s('v_mov_b32 v%d, s%d' % (V_PA, S_T1))
    for k in ((0, 128, 160, 192, 224) if kv else (0,)):
        s('ds_write_b32 v%d, v%d offset:%d' % (V_PA, V_EXW + 1, k))
    if not kv:
        s('v_lshlrev_b32 v%d, 4, v%d' % (V_EXR, T + 13))
        s('v_add_u32 v%d, %d, v%d' % (V_EXR, M_ST, V_EXR))
        s('v_lshl_add_u32 v%d, v%d, 3, v%d' % (V_EXR + 1, T + 9, V_EXR))
    s('s_and_b32 s%d, s2, 7' % S_T1)
    s('s_lshl2_add_u32 s%d, s%d, s%d' % (S_I2, S_T1, S_I2))
    s('s_lshl1_add_u32 s%d, s%d, s%d' % (S_T1, S_I2, S_ROLE))
    s('s_and_b32 s%d, s%d, 3' % (S_RO, S_T1))
    s('s_and_b32 s%d, s%d, 4' % (S_T1, S_T1))
    s('s_lshl2_add_u32 s%d, s%d, s%d' % (S_RO, S_T1, S_RO))
    if not OPT['rot2']:
        s('s_mov_b32 s%d, 0' % S_RO)
    return s


def tlb_warm(s):
    if not OPT['tlb']:
        return
    T = V_T
    s('s_cmp_eq_u32 s%d, 0' % S_WV)
    s('s_cselect_b32 s%d, 128, 0x%x' % (S_T1, OOB))
    for r in (SDBG, SW2, SWO, SB2, SOUT):
        s('buffer_load_dword v%d, v%d, %s, s%d offen' % (T + 15, V_FLO, sr(r, 4), S_T1))
    s('v_lshlrev_b32 v%d, 17, v%d' % (T + 5, V_L16))
    s('v_min_u32 v%d, 0x%x, v%d' % (T + 5, 0x9f0000, T + 5))
    s('buffer_load_dword v%d, v%d, %s, s%d offen' % (T + 15, T + 5, sr(SWS, 4), S_T1))


def dma_x(s, c, addr, tag):
    s('s_add_u32 m0, s%d, %d' % (S_M0X, addr))
    s('buffer_load_dwordx4 v%d, %s, s%d offen lds' % (V_X0, sr(SX, 4), S_KX + c), tag)
    s('buffer_load_dwordx4 v%d, %s, s%d offen offset:1024 lds' % (V_X1, sr(SX, 4), S_KX + c), tag)


def dma_w(s, m0base, c, addr, tag):
    s('s_add_u32 m0, s%d, %d' % (m0base, addr))
    s('buffer_load_dwordx4 v%d, %s, s%d offen lds' % (V_W, sr(SW, 4), S_KW + c), tag)
    s('buffer_load_dwordx4 v%d, %s, s%d offen offset:1024 lds' % (V_WB, sr(SW, 4), S_KW + c), tag)


def groups(z):
    out, cur = [], []
    for i in z:
        cur.append(i)
        if i.kind == 'vmem':
            out.append(cur)
            cur = []
    if cur:
        out.append(cur)
    return out


def mix(main, grp, lo=0.0, hi=1.0):
    main = [i for i in main if i is not GAP]
    out, k, n = [], 0, len(main)
    for idx, i in enumerate(main):
        while k < len(grp) and idx >= n * (lo + (hi - lo) * k / len(grp)):
            out.extend(grp[k])
            k += 1
        out.append(i)
    for g in grp[k:]:
        out.extend(g)
    return out


def barrier(z, vm=None, name=None):
    if name:
        stamp(z, name + 'a')
    z.wait(vm=vm, lgkm='all')
    if name:
        stamp(z, name + 'b')
    z('s_barrier')


BLK = [0, 4, 1, 5, 2, 6, 3]


def unit_ks(u):
    return 4 * BLK[u >> 2] + (u & 3)


def unit_loc(u):
    u %= 11
    return (S_QR2, 1, u * 2048) if u < 5 else (S_QR0, 0, (u - 5) * 2048)


def p2_setup(s):
    s('s_lshl_b32 s%d, s%d, 7' % (S_T0, S_ROLE))
    s('s_mul_i32 s%d, s%d, %d' % (S_B2R, S_RW, 448 * XS))
    s('s_add_u32 s%d, s%d, s%d' % (S_B2R, S_B2R, S_T0))
    s('s_mul_i32 s%d, s%d, %d' % (S_WOR, S_RW, 112 * XS))
    s('s_add_u32 s%d, s%d, s%d' % (S_WOR, S_WOR, S_T0))
    s('s_mul_i32 s%d, s%d, %d' % (S_OUTO, S_I2, 64 * XS))
    s('s_add_u32 s%d, s%d, s%d' % (S_OUTO, S_OUTO, S_T0))
    s('s_mul_i32 s%d, s%d, 12288' % (S_QR0, S_RW))
    s('s_lshr_b32 s%d, s%d, 2' % (S_RO3, S_RO))
    s('s_or_b32 s%d, s%d, s%d' % (S_RO3, S_RO3, S_RO))
    s('s_and_b32 s%d, s%d, 7' % (S_RO3, S_RO3))
    s('s_mul_i32 s%d, s%d, 10240' % (S_QR2, S_RW))
    s('s_add_u32 s%d, s%d, %d' % (S_QR2, S_QR2, R2))
    s('s_mul_i32 s%d, s%d, %d' % (S_A, S_I2, 2 * ACT_G))
    s('v_add_u32 v%d, %d, v%d' % (V_B2B, 8 * XS - 1024, V_B2))


def touch_w(s, ffn):
    if not OPT['touch'] & 1:
        return
    T = V_T
    s('s_and_b32 s%d, s%d, 3' % (S_T2, S_ROLE))
    s('s_lshl2_add_u32 s%d, s%d, s%d' % (S_T2, S_RB, S_T2))
    s('s_lshl3_add_u32 s%d, s%d, s%d' % (S_T2, S_T2, S_WV))
    s('s_mul_i32 s%d, s%d, %d' % (S_T2, S_T2, W1S if ffn else WQS))
    s('s_mul_i32 s%d, s%d, %d' % (S_T3, S_HALF, 1792 if ffn else 384))
    s('s_add_u32 s%d, s%d, s%d' % (S_T2, S_T2, S_T3))
    if ffn:
        s('v_min_u32 v%d, 13, v%d' % (T + 2, T))
    else:
        s('v_min_u32 v%d, 11, v%d' % (T + 2, T))
        s('v_lshrrev_b32 v%d, 2, v%d' % (T + 15, T + 2))
        s('v_mad_u32_u24 v%d, v%d, 3, v%d' % (T + 2, T + 15, T + 2))
    s('v_lshlrev_b32 v%d, 7, v%d' % (T + 2, T + 2))
    s('buffer_load_dword v%d, v%d, %s, s%d offen' % (V_POLL, T + 2, sr(SW, 4), S_T2))


def touch_w2(s):
    if not OPT['touch'] & 2:
        return
    T = V_T
    s('s_lshl3_add_u32 s%d, s2, s%d' % (S_T2, S_WV))
    s('s_mul_i32 s%d, s%d, %d' % (S_T2, S_T2, XS))
    s('v_min_u32 v%d, 6, v%d' % (T + 2, T))
    s('v_lshlrev_b32 v%d, 7, v%d' % (T + 2, T + 2))
    s('s_sub_u32 s%d, %d, s%d' % (S_T3, 2047 * XS, S_T2))
    s('buffer_load_dword v%d, v%d, %s, s%d offen' % (V_POLL, T + 2, sr(SW2, 4), S_T2))
    s('buffer_load_dword v%d, v%d, %s, s%d offen' % (V_POLL, T + 2, sr(SWO, 4), S_T3))


def touch_kv(s):
    if not OPT['touch'] & 4:
        return
    T = V_T + 8
    s('s_mul_i32 s%d, s%d, 6' % (S_T2, S_RB))
    s('s_add_u32 s%d, s%d, s%d' % (S_T2, S_T2, S_P))
    s('s_lshl2_add_u32 s%d, s%d, s%d' % (S_T2, S_T2, S_RW))
    s('v_min_u32 v%d, %d, v%d' % (T, 32 * 16, V_L16))
    s('s_mul_i32 s%d, s%d, %d' % (S_T3, S_T2, 33 * 128))
    s('v_lshlrev_b32 v%d, 3, v%d' % (T, T))
    s('buffer_load_dword v%d, v%d, %s, s%d offen' % (T + 1, T, sr(SW2, 4), S_T3))
    s('v_min_u32 v%d, %d, v%d' % (T, 8 * 128, T))
    s('s_mul_i32 s%d, s%d, %d' % (S_T3, S_T2, 9 * 128))
    s('buffer_load_dword v%d, v%d, %s, s%d offen' % (T + 1, T, sr(SWO, 4), S_T3))


def ks_dyn(s, dst, u):
    if u < 24:
        s('s_xor_b32 s%d, s%d, %d' % (dst, S_RO, unit_ks(u)))
    else:
        s('s_and_b32 s%d, s%d, 3' % (dst, S_RO))
        s('s_xor_b32 s%d, s%d, %d' % (dst, dst, unit_ks(u)))


def dma_b2(s, u):
    base, _, off = unit_loc(u)
    if u < 28:
        ks_dyn(s, S_T3, u)
        if OPT['x_hit'] & 2:
            s('s_and_b32 s%d, s%d, 7' % (S_T3, S_T3))
        s('s_add_u32 m0, s%d, %d' % (base, off))
        s('s_mul_i32 s%d, s%d, %d' % (S_T3, S_T3, 16 * XS))
        s('s_add_u32 s%d, s%d, s%d' % (S_T3, S_T3, S_B2R))
    else:
        s('s_xor_b32 s%d, s%d, %d' % (S_T3, S_RO3, u - 28))
        s('s_and_b32 s%d, s%d, 1' % (S_T1, S_T3))
        s('s_mul_i32 s%d, s%d, 7' % (S_T3, S_T3))
        s('s_add_u32 s%d, s%d, s%d' % (S_T3, S_T3, S_T1))
        s('s_add_u32 m0, s%d, %d' % (base, off))
        s('s_mul_i32 s%d, s%d, %d' % (S_T3, S_T3, 2 * XS))
        s('s_add_u32 s%d, s%d, s%d' % (S_T3, S_T3, S_WOR))
    w = SW2 if u < 28 else SWO
    s('buffer_load_dwordx4 v%d, %s, s%d offen lds' % (V_B2, sr(w, 4), S_T3), ('b', u))
    s('buffer_load_dwordx4 v%d, %s, s%d offen offset:1024 lds' % (V_B2B, sr(w, 4), S_T3), ('b', u))


def sync_arrive(s, k):
    s('ds_write_b32 v%d, v%d offset:%d' % (V_PA, V_ONE, k * 32))


def sync_wait(s, k, nw, T):
    j = nspin[0]
    nspin[0] += 1
    s('v_mov_b32 v%d, %d' % (T + 8, M_SY))
    s('L_sy%d:' % j)
    for h in range(nw // 4):
        s('ds_read_b128 %s, v%d offset:%d' % (vr(T + 4 * h, 4), T + 8, k * 32 + h * 16))
    s('s_add_u32 s%d, s%d, 1' % (S_SPIN, S_SPIN))
    s('s_cmp_gt_u32 s%d, 0x%x' % (S_SPIN, SPIN_LIMIT))
    s('s_cbranch_scc1 L_sz%d' % j)
    s.wait(lgkm='all')
    for h in range(1, nw - 1, 2):
        s('v_and_b32 v%d, v%d, v%d' % (T + h, T + h, T + h + 1))
    for h in range(1, nw, 2):
        s('v_and_b32 v%d, v%d, v%d' % (T, T, T + h))
    s('v_readfirstlane_b32 s%d, v%d' % (S_T2, T))
    s('s_cmp_eq_u32 s%d, 0' % S_T2)
    s('s_cbranch_scc1 L_sy%d' % j)
    s('L_sz%d:' % j)
    s.wait(lgkm='all')


def flag(s, off):
    if OPT['fatom']:
        s('buffer_atomic_add v%d, v%d, %s, s%d offen offset:%d sc1' % (V_ONE, V_FLO, sr(SWS, 4), S_FL, off))
    else:
        s('buffer_store_dword v%d, v%d, %s, s%d offen offset:%d sc1' % (V_ONE, V_FLO, sr(SWS, 4), S_FL, off))


def f0_load(s):
    s('buffer_load_dword v%d, v%d, %s, 0 offen sc1' % (V_POLL, V_FLO, sr(SDBG, 4)), 'f0')


def f0_check(s):
    s('v_mov_b32 v%d, 32' % (V_T + 15))
    stamp(s, 'f0a')
    s.wait(vm='f0')
    stamp(s, 'f0b')
    spin_check(s, V_POLL, V_T + 15, V_FLO, SDBG, '0', 1)


def poll_early(s):
    poll_base(s)
    poll_async(s, 0)


def xreg(c, j):
    return V_X + 16 * c + 4 * j


def dots(s, c):
    for j in range(4):
        s.wait(lgkm=[('x', c, j)])
        for r in range(4):
            x = xreg(c, j) + r
            s('v_dot2c_f32_bf16 v%d, s%d, v%d' % (V_ST + (r & 1), S_ONES, x))
            s('v_dot2c_f32_bf16 v%d, v%d, v%d' % (V_ST + 2 + (r & 1), x, x))


def stats_write(s):
    s('v_add_f32 v%d, v%d, v%d' % (V_ST, V_ST, V_ST + 1))
    s('v_add_f32 v%d, v%d, v%d' % (V_ST + 1, V_ST + 2, V_ST + 3))
    s('ds_write_b64 v%d, %s' % (V_EXR + 1, vr(V_ST, 2)))


def stats_final(kind):
    s, T = Seg(), V_T
    s('ds_read_b128 %s, v%d' % (vr(T, 4), V_EXR), 'st')
    s.append(GAP)
    s.wait(lgkm='st')
    s('v_add_f32 v%d, v%d, v%d' % (T, T, T + 2))
    s('v_add_f32 v%d, v%d, v%d' % (T + 1, T + 1, T + 3))
    s('v_mul_f32 v%d, %s, v%d' % (T, f32(1.0 / 448), T))
    s('v_mul_f32 v%d, %s, v%d' % (T + 1, f32(1.0 / 448), T + 1))
    s('v_fma_f32 v%d, -v%d, v%d, v%d' % (T + 1, T, T, T + 1))
    s('v_max_f32 v%d, 0, v%d' % (T + 1, T + 1))
    s('v_cvt_pk_bf16_f32 v%d, v%d, v%d' % (T + 1, T + 1, T + 1))
    s('v_lshlrev_b32 v%d, 16, v%d' % (T + 1, T + 1))
    s('v_add_f32 v%d, %s, v%d' % (T + 1, f32(1e-5), T + 1))
    s('v_cvt_pk_bf16_f32 v%d, v%d, v%d' % (T + 1, T + 1, T + 1))
    s('v_lshlrev_b32 v%d, 16, v%d' % (T + 1, T + 1))
    s('v_sqrt_f32 v%d, v%d' % (T + 1, T + 1))
    s('v_cvt_pk_bf16_f32 v%d, -v%d, -v%d' % (T, T, T))
    s('v_cvt_pk_bf16_f32 v%d, v%d, 0' % (T + 1, T + 1))
    s('v_cndmask_b32 v%d, v%d, 0, %s' % (V_EXR, T, sr(S_HI, 2)))
    s('v_lshlrev_b32 v%d, 16, v%d' % (V_ST + 2, T + 1))
    s('v_rcp_f32 v%d, v%d' % (V_ST + 3, V_ST + 2))
    s('v_cndmask_b32 v%d, v%d, 0, %s' % (V_EXR + 1, T + 1, sr(S_HI, 2)))
    if kind == 'gelu':
        s('v_mul_f32 v%d, %s, v%d' % (V_ST, f32(GC1), V_ST + 3))
        s('v_mul_f32 v%d, v%d, v%d' % (T, V_ST + 3, V_ST + 3))
        s('v_mul_f32 v%d, %s, v%d' % (V_ST + 1, f32(GC3), V_ST + 3))
        s('v_mul_f32 v%d, v%d, v%d' % (V_ST + 1, T, V_ST + 1))
    elif kind == 'phi':
        s('v_mul_f32 v%d, s%d, v%d' % (V_ST, S_L2E, V_ST + 3))
    return s


def ext_parts(acc, off, exw, swap, bias=None, T=V_T + 8):
    r, b, m = Seg(), Seg(), Seg()
    tag = ('cs', id(r))
    r('ds_read_b128 %s, v%d offset:%d' % (vr(T, 4), V_CSR, off), tag)
    b.wait(lgkm=[tag])
    b('v_add_f32 v%d, v%d, v%d' % (T, T, T + 1))
    b('v_add_f32 v%d, v%d, v%d' % (T + 2, T + 2, T + 3))
    b('v_add_f32 v%d, v%d, v%d' % (T, T, T + 2))
    b('v_cvt_pk_bf16_f32 v%d, v%d, v%d' % (T + 1, T, T))
    b('v_lshlrev_b32 v%d, 16, v%d' % (T + 1, T + 1))
    b('v_sub_f32 v%d, v%d, v%d' % (T + 1, T, T + 1))
    b('v_cvt_pk_bf16_f32 v%d, v%d, v%d' % (exw, T, T + 1))
    if bias is not None:
        r('v_mov_b32 v%d, v%d' % (exw + 1, bias))
    x, y = (V_EXR, exw) if swap else (exw, V_EXR)
    m('v_mfma_f32_32x32x8_bf16 %s, %s, %s, %s' % (vr(acc, 16), vr(x, 2), vr(y, 2), vr(acc, 16)))
    KEEP.append(r)
    return r, b, m


KEEP = []


def head(parts, stats=None):
    st = [i for i in stats if i is not GAP] if stats is not None else []
    out = st[:1]
    for p in parts:
        out += p[0]
    out += st[1:]
    for p in parts:
        out += p[1]
    for p in parts:
        out += p[2]
    return out


def epi_rowlane(kind, acc, tag, handoff=False, keep=None):
    s, T = Seg(), V_T
    for grp in range(4):
        a = [acc + 4 * grp + e for e in range(4)]
        t = [T + e for e in range(4)]
        if kind == 'gelu':
            for e in range(4):
                s('v_mul_f32 v%d, v%d, v%d' % (t[e], a[e], a[e]))
            for e in range(4):
                s('v_fma_f32 v%d, v%d, v%d, v%d' % (t[e], t[e], V_ST + 1, V_ST))
            for e in range(4):
                s('v_mul_f32 v%d, v%d, v%d' % (t[e], a[e], t[e]))
            for e in range(4):
                s('v_exp_f32 v%d, v%d' % (t[e], t[e]))
            for e in range(4):
                s('v_fma_f32 v%d, v%d, v%d, v%d' % (t[e], t[e], V_ST + 2, V_ST + 2))
            for e in range(4):
                s('v_rcp_f32 v%d, v%d' % (t[e], t[e]))
            for e in range(4):
                s('v_mul_f32 v%d, v%d, v%d' % (a[e], a[e], t[e]))
        else:
            for e in range(4):
                s('v_mul_f32 v%d, v%d, v%d' % (t[e], a[e], V_ST))
            for e in range(4):
                s('v_exp_f32_e64 v%d, v%d clamp' % (t[e], t[e]))
            for e in range(4):
                s('v_fma_f32 v%d, v%d, v%d, s%d' % (a[e], a[e], V_ST + 3, S_EPS))
            for e in range(4):
                s('v_max_f32 v%d, s%d, v%d' % (a[e], S_EPS, a[e]))
            for e in range(4):
                s('v_add_f32 v%d, v%d, v%d' % (a[e], a[e], t[e]))
        p = acc + 8 * (grp >> 1) + 2 * (grp & 1) if keep is None else keep + 2 * grp
        s('v_cvt_pk_bf16_f32 v%d, v%d, v%d' % (p, a[0], a[1]))
        s('v_cvt_pk_bf16_f32 v%d, v%d, v%d' % (p + 1, a[2], a[3]))
        if kind == 'phi' and grp == 3:
            s('v_cndmask_b32 v%d, v%d, 0, %s' % (p, p, sr(S_HI, 2)))
            s('v_cndmask_b32 v%d, v%d, 0, %s' % (p + 1, p + 1, sr(S_HI, 2)))
        if grp & 1 and keep is None:
            f = grp >> 1
            if handoff:
                s('ds_write_b128 v%d, %s offset:%d' % (V_RA, vr(acc + 8 * f, 4), f * 1024))
                continue
            s('buffer_store_dwordx4 %s, v%d, %s, s%d offen offset:%d sc1' % (vr(acc + 8 * f, 4), V_L16, sr(SWS, 4), S_H, f * 1024), tag)
    return s


def lc_role(ffn):
    kind = 'gelu' if ffn else 'phi'
    nm = 'f' if ffn else 'q'
    s, T = Seg(nm), V_T
    if not ffn:
        s('L_q:')
    if OPT['twat'] < -1:
        touch_w(s, ffn)
    s('s_mul_i32 s%d, s%d, %d' % (S_T1, S_G, 64 if ffn else 56))
    s('v_lshrrev_b32 v%d, 1, v%d' % (T + 6, T + 10))
    s('v_lshl_add_u32 v%d, v%d, 3, s%d' % (T + 5, T + 14, S_T1))
    s('v_lshlrev_b32 v%d, 6, v%d' % (T + 6, T + 6))
    s('v_xor_b32 v%d, v%d, v%d' % (T + 5, T + 5, T + 6))
    s('v_lshl_add_u32 v%d, v%d, 7, v%d' % (V_WA, T + 12, T + 5))
    for j in range(1, 4):
        s('v_xor_b32 v%d, %d, v%d' % (V_WA + j, j << 11, V_WA))
    srd(s, SWS, WS_BYTES)
    srd(s, SDBG, 256)
    s('s_waitcnt lgkmcnt(0)')
    if not ffn:
        s('s_lshl1_add_u32 s%d, s%d, s%d' % (S_T2, S_RB, S_HALF))
        s('s_mul_i32 s%d, s%d, 5' % (S_T1, S_T2))
        s('s_add_u32 s%d, s%d, s%d' % (S_T1, S_T1, S_WV))
        s('s_lshl_b32 s%d, s%d, 10' % (S_T1, S_T1))
        s('s_add_u32 s%d, s%d, 0x%x' % (S_T1, S_T1, KV_OFF))
        s('s_lshl_b32 s%d, s%d, 10' % (S_LAST, S_T2))
        s('s_add_u32 s%d, s%d, 0x%x' % (S_LAST, S_LAST, ST_OFF))
        s('s_cmp_lt_u32 s%d, 5' % S_WV)
        s('s_cselect_b32 s%d, s%d, 0x%x' % (S_T1, S_T1, OOB))
        s('s_cmp_eq_u32 s%d, 5' % S_WV)
        s('s_cselect_b32 s%d, s%d, s%d' % (S_T1, S_LAST, S_T1))
        s('buffer_store_dwordx4 %s, v%d, %s, s%d offen sc1' % (vr(V_ST, 4), V_L16, sr(SWS, 4), S_T1), 'zero')
    s('s_cmp_eq_u32 s%d, 1' % S_G)
    s('s_cbranch_scc1 L_%sb' % nm)
    step = 128 if ffn else 112
    region = [R0, R1, R0, R1]
    acc = V_ACC

    def stream(g):
        z = Seg(nm + 'ab'[g])
        if g:
            z('L_%sb:' % nm)
        xa = Rebase([V_XA + j for j in range(4)], 0, 0)
        wa = Rebase([V_WA + j for j in range(4)], 0, 512)

        def triple(t, c):
            dma_x(t, c, XSLOT[c], ('t', c))
            if g:
                dma_w(t, S_M0W, c, R0 + c * 8192, ('t', c))

        def lc(t, q, c):
            dma_w(t, S_M0W, c, region[q] + c * 8192, ('l', q, c))

        def wread(t, q, c, j):
            o = wa.off(t, region[q] + c * 8192)
            for u in range(2):
                t('ds_read_b64_tr_b16 %s, v%d offset:%d' % (vr(V_WF + 4 * j + 2 * u, 2), V_WA + j, o + u * 512), ('w', q, c, j))

        def xread(t, c, j):
            o = xa.off(t, XSLOT[c])
            t('ds_read_b128 %s, v%d offset:%d' % (vr(xreg(c, j), 4), V_XA + j, o), ('x', c, j))

        def kstep(q, c, j):
            t = Seg()
            t.wait(lgkm=[('w', q, c, j)])
            first = c == 0 and j == 0
            t('v_mfma_f32_32x32x16_bf16 %s, %s, %s, %s' % (vr(acc, 16), vr(V_WF + 4 * j, 4), vr(xreg(c, j), 4), '0' if first else vr(acc, 16)))
            if j == 0:
                t('v_mfma_f32_16x16x32_bf16 %s, %s, %s, %s' % (vr(V_CS, 4), vr(V_SEL, 4), vr(V_WF + 4 * j, 4), '0' if first else vr(V_CS, 4)))
            if c < 6:
                wread(t, q, c + 1, j)
            return t

        def preread(t, q):
            for j in range(4):
                wread(t, q, 0, j)

        def gemm(t, q, fill=(), extra=None):
            t('s_setprio 1')
            slots = [kstep(q, c, j) for c in range(7) for j in range(4)]
            for k, gi in enumerate(groups(extra) if extra is not None else []):
                slots[1 + OPT['gsp'] * k].extend(gi)
            slots[26]('ds_write_b32 v%d, v%d' % (V_CSW, V_CS))
            t.extend(interleave(slots, list(fill), 0, 20))

        def next_col(t, last=False):
            for r in (V_W, V_WB):
                if last and ffn:
                    t('v_add_u32 v%d, s%d, v%d' % (r, S_LAST, r))
                else:
                    t('v_add_u32 v%d, %d, v%d' % (r, step, r))

        def epi(t, q, extra=None, pre=None, handoff=False, hi=0.85, keep=False):
            grp = groups(extra) if extra is not None else []
            t('s_setprio 2')
            t.extend(head([ext_parts(acc, 0, V_EXW, False, V_B1 + q if ffn else None)], pre))
            if not keep:
                t('s_setprio %d' % OPT['eprio'])
            stamp(t, 'x%d' % (2 * q + g + 1))
            for gi in grp[:2]:
                t.extend(gi)
            t.extend(mix(epi_rowlane(kind, acc, ('h', q), handoff, None if ffn else V_PQ + 8 * q), grp[2:], 0.03, hi))
            if ffn:
                t('s_add_u32 s%d, s%d, 4096' % (S_H, S_H))

        def duty(q, chunks, units=(), step_col=True):
            d = Seg()
            if step_col:
                next_col(d, q == 3)
            for k in chunks:
                lc(d, q, k)
            if ffn:
                for u in units:
                    dma_b2(d, u)
            return d

        late = deferred(False)
        late('s_lshl2_add_u32 s%d, s%d, s%d' % (S_H, S_RB, S_RW))
        late('s_mul_i32 s%d, s%d, %d' % (S_H, S_H, ACT_G))
        late('s_add_u32 s%d, s%d, %d' % (S_H, S_H, g * 2048 + (0 if ffn else 112 * 1024)))
        late('s_lshl_b32 s%d, s%d, %d' % (S_T1, S_T0 if ffn else S_HALF, 5 if ffn else 14))
        late('s_add_u32 s%d, s%d, s%d' % (S_H, S_H, S_T1))
        if ffn:
            late('s_add_u32 s%d, s%d, %d' % (S_T1, S_M0W, HND))
            late('v_add_u32 v%d, s%d, v%d' % (V_RA, S_T1, V_L16))
            late('s_mul_i32 s%d, s%d, -8' % (S_LAST, S_PEND))
            late('s_add_u32 s%d, s%d, 128' % (S_LAST, S_LAST))
            srd(late, SB1, 1792 * 2)
            late('v_lshlrev_b32 v%d, 1, v%d' % (T + 5, T + 8))
            for q in range(3):
                late('buffer_load_ushort v%d, v%d, %s, s%d offen offset:%d' % (V_B1 + q, T + 5, sr(SB1, 4), S_T0, q * 128 + g * 64), 'b1')
            if not g:
                late('s_mul_i32 s%d, s%d, -7' % (S_T1, S_PEND))
                late('s_add_u32 s%d, s%d, s%d' % (S_T1, S_T1, S_T0))
                late('s_add_u32 s%d, s%d, 384' % (S_T1, S_T1))
                late('buffer_load_ushort v%d, v%d, %s, s%d offen' % (V_B1 + 3, T + 5, sr(SB1, 4), S_T1), 'b1')
        if g:
            late('s_mov_b32 s%d, 0x%x' % (S_FL, OOB))
        else:
            late('s_lshr_b32 s%d, s%d, 1' % (S_T1, S_P) if ffn else 's_lshl_b32 s%d, s%d, 1' % (S_T1, S_HALF))
            late('s_lshl2_add_u32 s%d, s%d, s%d' % (S_T1, S_RB, S_T1))
            late('s_mul_i32 s%d, s%d, %d' % (S_FL, S_T1, FL_G))
            late('s_lshl1_add_u32 s%d, s%d, s%d' % (S_FL, S_PEND, S_FL))
            late('s_lshl_b32 s%d, s%d, 28' % (S_T1, S_RW))
            late('s_add_u32 s%d, s%d, s%d' % (S_FL, S_FL, S_T1))
            late('s_add_u32 s%d, s%d, 0x%x' % (S_FL, S_FL, FL_OFF))
        NL = OPT['nlate']

        def some(k):
            return late[len(late) * k // NL:len(late) * (k + 1) // NL] if k < NL else []

        triple(z, 1)
        estamp(z, 't1')
        z.extend(some(0))
        if OPT['tat'] < -1:
            touch_w2(z)
        z('s_barrier')
        if g:
            z('s_setprio 1')
        triple(z, 2)
        for c in range(-1, 7):
            if c < 6:
                barrier(z, ['t0', 'zero'] if c < 0 else [('t', c + 1)], 's%d' % c if c >= 0 else 'pre')
            if c < 0:
                stamp(z, 1)
                if not ffn and not g:
                    z('s_lshl_b32 s%d, s%d, 28' % (S_T2, S_WV))
                    z('buffer_atomic_add v%d, v%d, %s, s%d offen sc1' % (V_ONE, V_FLO, sr(SDBG, 4), S_T2))
            d = Seg()
            if c < 3:
                triple(d, c + 4)
            if c == OPT['tat']:
                touch_w2(d)
            if c == 3:
                next_col(d)
            for k in {3: ([], [0]), 4: ([], [1]), 5: ([3], [2])}.get(c, ([], []))[g]:
                lc(d, 1, k)
            if c == OPT['twat']:
                touch_w(d, ffn)
            if g:
                if c == 6:
                    break
                for j in range(4):
                    xread(z, c + 1, j)
                z.extend(mix(some(c + 2), groups(d)))
                if c == 5:
                    preread(z, 0)
                dots(z, c + 1)
            else:
                for j in range(4):
                    if c == 6:
                        z.wait(lgkm=[('x', c, j)])
                    if c >= 0:
                        z.extend(kstep(0, c, j))
                    else:
                        wread(z, 0, 0, j)
                    if c < 6:
                        xread(z, c + 1, j)
                z.extend(mix(some(c + 2), groups(d)))
        if g:
            stats_write(z)
            barrier(z, [('l', 1, 0), 'b1'])
        else:
            z('ds_write_b32 v%d, v%d' % (V_CSW, V_CS))
            barrier(z, 'b1')
        stamp(z, 2)
        if not g:
            d = Seg()
            if not ffn:
                d('v_and_b32 v%d, 0xffff, v%d' % (V_XA, V_EXR))
                d('v_lshl_or_b32 v%d, v%d, 16, v%d' % (V_XA, V_EXR + 1, V_XA))
                d('v_lshrrev_b32 v%d, 2, v%d' % (V_XA + 1, V_L16))
                d('v_lshl_add_u32 v%d, s%d, 7, v%d' % (V_XA + 1, S_RW, V_XA + 1))
                d('v_cndmask_b32 v%d, v%d, v%d, %s' % (V_XA + 1, V_XA + 1, V_FLO, sr(S_HI, 2)))
                d('buffer_store_dword v%d, v%d, %s, s%d offen sc1' % (V_XA, V_XA + 1, sr(SWS, 4), S_LAST))
            f0_load(d)
            if ffn:
                p2_setup(d)
            epi(z, 0, d, pre=stats_final(kind))
            preread(z, 1)
            barrier(z, [('l', 1, 3)], 'e1')
            stamp(z, 'h1')
            gemm(z, 1, extra=duty(2, (1, 2, 3, 4)))
            f0_check(z)
            barrier(z, [('h', 0)], 'e2')
            stamp(z, 'h2')
            epi(z, 1)
            preread(z, 2)
            barrier(z, [('l', 2, 4)], 'e3')
            stamp(z, 3)
            if ffn:
                flag(z, 0)
            gemm(z, 2, extra=duty(3, (1, 2, 3, 4)))
            barrier(z, [('h', 1)], 'e4')
            stamp(z, 'h4')
            epi(z, 2)
            if ffn:
                for k in range(4):
                    z('v_xor_b32 v%d, s%d, v%d' % (V_WA + k, S_PEND, V_WA + k))
            preread(z, 3)
            barrier(z, [('l', 3, 4)], 'e5')
            stamp(z, 4)
            if ffn:
                flag(z, 256)
            gemm(z, 3, extra=duty(0, (), (8, 9, 10), False))
            barrier(z, None, 'e6')
            stamp(z, 5)
            if ffn:
                z('ds_read_b128 %s, v%d' % (vr(V_WF, 4), V_RA), 'hnd')
                z('ds_read_b128 %s, v%d offset:1024' % (vr(V_WF + 4, 4), V_RA), 'hnd')
                z('s_sub_u32 s%d, s%d, 2048' % (S_T0, S_H))
                z('s_cmp_eq_u32 s%d, 0' % S_PEND)
                z('s_cselect_b32 s%d, 0, %d' % (S_T1, 3 * 4096 + 2048))
                z('s_sub_u32 s%d, s%d, s%d' % (S_H, S_H, S_T1))
                d = Seg()
                d.wait(lgkm='hnd')
                for f in range(2):
                    d('buffer_store_dwordx4 %s, v%d, %s, s%d offen offset:%d sc1' % (vr(V_WF + 4 * f, 4), V_L16, sr(SWS, 4), S_T0, f * 1024), 'h5')
                epi(z, 3, d, keep=True)
                z.wait(vm=[('h', 3)])
                sync_arrive(z, 0)
                sync_wait(z, 0, 4, T)
                flag(z, 512)
                stamp(z, 6)
                z('s_branch L_p2a')
            else:
                epi(z, 3)
                z('s_barrier')
                z('s_branch L_qo')
            return z
        d = duty(1, (4, 5, 6), (), False)
        if ffn:
            p2_setup(d)
            dma_b2(d, 0)
        gemm(z, 0, stats_final(kind), d)
        barrier(z, [('l', 1, 6)], 'e1')
        stamp(z, 'h1')
        for q in (1, 2):
            d = duty(q + 1, (0,))
            epi(z, q - 1, d)
            preread(z, q)
            barrier(z, [('l', q + 1, 0)], 'e%d' % (2 * q))
            stamp(z, 'h%d' % (2 * q))
            gemm(z, q, extra=duty(q + 1, (5, 6), (2 * q - 1, 2 * q), False))
            barrier(z, [('l', q + 1, 6)], 'e%d' % (2 * q + 1))
            stamp(z, q + 2)
        if ffn:
            d = Seg()
            poll_early(d)
            for u in range(5, 8):
                dma_b2(d, u)
            epi(z, 2, d, handoff=True, hi=1.0)
            barrier(z, None, 'e6')
            z('s_branch L_p2b')
        else:
            epi(z, 2)
            preread(z, 3)
            barrier(z)
            stamp(z, 5)
            gemm(z, 3)
            barrier(z)
            epi(z, 3)
        return z

    return s, stream(0), stream(1)


def q_out():
    s, T = Seg('qo'), V_T
    NUM, KF, RAW = V_X, V_X + 64, V_X + 96
    s('L_qo:')
    stamp(s, 6)
    s('s_lshl3_add_u32 s%d, s%d, s%d' % (S_T0, S_HALF, S_WV))
    s('s_lshl_b32 s%d, s%d, 7' % (S_PL, S_T0))
    s('s_add_u32 s%d, s%d, 0x%x' % (S_PL, S_PL, FKV_OFF))
    s('s_lshl_b32 s%d, s%d, 12' % (S_T0, S_T0))
    s('s_add_u32 s%d, s%d, 0x%x' % (S_T0, S_T0, KV_OFF))
    s('v_lshrrev_b32 v%d, 2, v%d' % (T, V_L16))
    s('s_add_u32 s%d, s%d, %d' % (S_T1, S_M0X, R2))
    s('v_add_u32 v%d, s%d, v%d' % (T + 1, S_T1, V_L16))
    s('s_lshl_b32 s%d, s%d, 11' % (S_T1, S_G))
    s('s_add_u32 s%d, s%d, %d' % (S_T1, S_T1, R2))
    s('v_add_u32 v%d, s%d, v%d' % (T + 2, S_T1, V_L16))
    poll_check(s, 0, 16, sync=True, atomic=OPT['qatom'])
    stamp(s, 7)
    for r in range(16):
        s('buffer_load_dword v%d, v%d, %s, s%d offen offset:%d sc1' % (RAW + r, T, sr(SWS, 4), S_T0, r * 256), ('kv', r >> 3))
    for f in range(2):
        s.wait(vm=[('kv', f)])
        for k in range(4):
            s('v_cvt_pk_bf16_f32 v%d, v%d, v%d' % (RAW + 8 * f + k, RAW + 8 * f + 2 * k, RAW + 8 * f + 2 * k + 1))
        s('ds_write_b128 v%d, %s offset:%d' % (T + 1, vr(RAW + 8 * f, 4), f * 1024))
    barrier(s)
    stamp(s, 8)
    for q in range(4):
        for f in range(2):
            s('ds_read_b128 %s, v%d offset:%d' % (vr(KF + 8 * q + 4 * f, 4), T + 2, q * 4096 + f * 1024), ('kf', q, f))
    for q in range(4):
        for f in range(2):
            s.wait(lgkm=[('kf', q, f)])
            s('v_mfma_f32_32x32x16_bf16 %s, %s, %s, %s' % (vr(NUM + 16 * q, 16), vr(KF + 8 * q + 4 * f, 4), vr(V_PQ + 8 * q + 4 * f, 4), vr(NUM + 16 * q, 16) if f else '0'))
    for p in range(2):
        for q in (2 * p, 2 * p + 1):
            s('v_add_f32 v%d, s%d, v%d' % (T + 4 + 2 * q, S_EPS, NUM + 16 * q + 12))
            s('v_add_f32 v%d, s%d, v%d' % (T + 5 + 2 * q, S_EPS, NUM + 16 * q + 12))
        for q in (2 * p, 2 * p + 1):
            s('v_permlane32_swap_b32 v%d, v%d' % (T + 4 + 2 * q, T + 5 + 2 * q))
        for q in (2 * p, 2 * p + 1):
            s('v_rcp_f32 v%d, v%d' % (T + 5 + 2 * q, T + 5 + 2 * q))
        for q in (2 * p, 2 * p + 1):
            s('v_cndmask_b32 v%d, v%d, 0, %s' % (T + 4 + 2 * q, T + 5 + 2 * q, sr(S_HI, 2)))
        for q in (2 * p, 2 * p + 1):
            n = NUM + 16 * q
            for f in range(2):
                for k in range(8 * f, 8 * f + 8, 2):
                    sel = 0 if k >= 12 else 1
                    s('v_pk_mul_f32 %s, %s, %s op_sel:[0,%d] op_sel_hi:[1,%d]' % (vr(n + k, 2), vr(n + k, 2), vr(T + 4 + 2 * q, 2), sel, sel))
                for k in range(4):
                    s('v_cvt_pk_bf16_f32 v%d, v%d, v%d' % (n + 8 * f + k, n + 8 * f + 2 * k, n + 8 * f + 2 * k + 1))
                s('buffer_store_dwordx4 %s, v%d, %s, s%d offen offset:%d sc1' % (vr(n + 8 * f, 4), V_L16, sr(SWS, 4), S_H, f * 1024), ('o', p))
            s('s_add_u32 s%d, s%d, 4096' % (S_H, S_H))
    stamp(s, 9)
    barrier(s, 'all')
    flag(s, 768)
    flag(s, 768 + FL_G)
    s('s_branch L_fin')
    return s


def kv_role():
    s, T = Seg('kv'), V_T
    s('L_kv:')
    if OPT['twat'] < -1:
        touch_w(s, False)
    s('s_mul_i32 s%d, s%d, 3' % (S_P, S_HALF))
    s('s_add_u32 s%d, s%d, s%d' % (S_P, S_P, S_ROLE))
    s('s_sub_u32 s%d, s%d, 4' % (S_P, S_P))

    def item(t, n):
        if n >= 14:
            if n == 14:
                t('v_add_u32 v%d, %d, v%d' % (V_W, XS, V_W))
                t('v_add_u32 v%d, %d, v%d' % (V_WB, XS, V_WB))
            dma_w(t, S_M0X, n - 14, kv_slot(n), ('i', n))
        elif n & 1:
            dma_w(t, S_M0X, n >> 1, kv_slot(n), ('i', n))
        else:
            dma_x(t, n >> 1, kv_slot(n), ('i', n))

    s('s_lshl_b32 s%d, s%d, 2' % (S_T1, S_P))
    s('s_lshr_b32 s%d, 0xdb9630, s%d' % (S_LAST, S_T1))
    s('s_and_b32 s%d, s%d, 15' % (S_LAST, S_LAST))
    s('s_lshr_b32 s%d, 0x322333, s%d' % (S_PEND, S_T1))
    s('s_and_b32 s%d, s%d, 15' % (S_PEND, S_PEND))
    s('s_add_u32 s%d, s%d, s%d' % (S_T1, S_LAST, S_G))
    s('s_mul_i32 s%d, s%d, 56' % (S_T1, S_T1))
    s('s_lshl_b32 s%d, s%d, 7' % (S_T0, S_P))
    s('s_sub_u32 s%d, s%d, s%d' % (S_T1, S_T1, S_T0))
    s('s_add_u32 s%d, s%d, 1' % (S_T0, S_G))
    s('s_cmp_lt_u32 s%d, s%d' % (S_T0, S_PEND))
    s('s_cselect_b32 s%d, 56, 0' % S_T0)
    s('v_min_u32 v%d, 6, v%d' % (T + 14, T + 14))
    s('v_lshl_add_u32 v%d, v%d, 3, s%d' % (T + 5, T + 14, S_T1))
    s('v_lshlrev_b32 v%d, 6, v%d' % (T + 6, T + 10))
    for t in range(2):
        if t:
            s('v_add_u32 v%d, s%d, v%d' % (T + 5, S_T0, T + 5))
        s('v_xor_b32 v%d, v%d, v%d' % (T + 11, T + 5, T + 6))
        s('v_lshl_add_u32 v%d, v%d, 8, v%d' % (V_WA + 4 * t, T + 12, T + 11))
        for j in range(1, 4):
            s('v_xor_b32 v%d, %d, v%d' % (V_WA + 4 * t + j, j << 12, V_WA + 4 * t))
    srd(s, SWS, WS_BYTES)
    srd(s, SDBG, 256)
    item(s, 2)
    item(s, 3)
    estamp(s, 't1')
    s.extend(deferred(True))
    s('s_lshl1_add_u32 s%d, s%d, s%d' % (S_H, S_RB, S_HALF))
    s('s_lshl3_add_u32 s%d, s%d, s%d' % (S_H, S_H, S_RW))
    s('s_lshl_b32 s%d, s%d, 7' % (S_H, S_H))
    s('s_add_u32 s%d, s%d, 0x%x' % (S_H, S_H, ST_OFF))
    s('v_lshlrev_b32 v%d, 2, v%d' % (V_ST + 1, T + 8))
    s('s_lshl_b32 s%d, s%d, 7' % (S_T0, S_RW))
    s('s_add_u32 s%d, s%d, %d' % (S_T0, S_T0, M_R))
    s('v_lshl_add_u32 v%d, v%d, 4, s%d' % (V_RA, T + 9, S_T0))
    s('v_add_u32 v%d, s%d, v%d' % (V_ST + 2, S_T0, V_ST + 1))
    s('v_mov_b32 v%d, %d' % (T + 5, M_SY + 128))
    s('v_cndmask_b32 v%d, v%d, v%d, %s' % (V_ST + 3, V_RA, T + 5, sr(S_PAD, 2)))
    s('v_mov_b32 v%d, 0' % (V_EXR + 1))
    s('s_waitcnt lgkmcnt(0)')
    if OPT['tat'] < -1:
        touch_w2(s)
    s('s_cmp_eq_u32 s%d, 1' % S_G)
    s('s_cbranch_scc1 L_kb')

    def body(g):
        b = Seg('kb' if g else 'ka')
        if g:
            b('L_kb:')
        xa = Rebase([V_XA + j for j in range(4)], 0, 0)
        wa = [Rebase([V_WA + 4 * t + j for j in range(4)], 0, 1024) for t in range(2)]
        TS = [[0, 1], [1]] if g else [[0], [0, 1]]
        PK1 = V_X + 48

        def witem(q, c):
            return 2 * c + 1 if q == 0 else 14 + c

        def wf(t, j):
            return (V_ACC + 48 if t != g else V_WF) + 4 * j

        def acc(q, t):
            return V_ACC + 16 * (q + t)

        def wread(z, q, c, j, t):
            o = wa[t].off(z, kv_slot(witem(q, c)))
            for u in range(2):
                z('ds_read_b64_tr_b16 %s, v%d offset:%d' % (vr(wf(t, j) + 2 * u, 2), V_WA + 4 * t + j, o + u * 1024), ('w', q, c, j, t))

        def xread(z, c, j):
            o = xa.off(z, kv_slot(2 * c))
            z('ds_read_b128 %s, v%d offset:%d' % (vr(xreg(c, j), 4), V_XA + j, o))

        def kstep(q, c, j):
            out = []
            first = c == 0 and j == 0
            for t in TS[q]:
                z = Seg()
                z.wait(lgkm=[('w', q, c, j, t)])
                z('v_mfma_f32_32x32x16_bf16 %s, %s, %s, %s' % (vr(acc(q, t), 16), vr(xreg(c, j), 4), vr(wf(t, j), 4), '0' if first else vr(acc(q, t), 16)))
                if j == 0:
                    z('v_mfma_f32_16x16x32_bf16 %s, %s, %s, %s' % (vr(V_CS + 4 * t, 4), vr(V_SEL, 4), vr(wf(t, j), 4), '0' if first else vr(V_CS + 4 * t, 4)))
                if c < 6:
                    wread(z, q, c + 1, j, t)
                    if q == 0 and t == TS[q][-1]:
                        xread(z, c + 1, j)
                elif q == 0 and not g:
                    wread(z, 1, 0, j, 0)
                    wread(z, 1, 0, j, 1)
                if c == 6 and j == 2 and t == TS[q][-1]:
                    for tt in TS[q]:
                        z('ds_write_b32 v%d, v%d offset:%d' % (V_CSW, V_CS + 4 * tt, q * 1536 + (g + tt) * 512))
                out.append(z)
            return out

        def ext(q, t, k):
            return ext_parts(acc(q, t), q * 1536 + (g + t) * 512, (V_EXW, V_EXW + 2, V_CS)[k], True, T=V_T + 4 + 4 * k)

        def rload(z, dst, key, addr=V_RA):
            for i in range(4):
                z('ds_read_b128 %s, v%d offset:%d' % (vr(dst + 4 * i, 4), addr, i * 32), key)

        def stat_load(z):
            z('buffer_load_dword v%d, v%d, %s, s%d offen sc1' % (V_ST, V_ST + 1, sr(SWS, 4), S_H), 'stat')

        def stat_use(z):
            z('v_and_b32 v%d, 0xffff, v%d' % (T, V_ST))
            z('v_lshl_or_b32 v%d, v%d, 16, v%d' % (T, V_ST, T))
            z('v_cndmask_b32 v%d, v%d, 0, %s' % (V_EXR, T, sr(S_HI, 2)))

        def phi_k(t, rb):
            e = Seg()
            for i in range(4):
                a = [acc(0, t) + 4 * i + k for k in range(4)]
                for k in range(4):
                    e('v_fma_f32 v%d, v%d, v%d, s%d' % (a[k], a[k], rb + 4 * i + k, S_EPS))
                for k in range(4):
                    e('v_mul_f32 v%d, s%d, v%d' % (T + k, S_L2E, a[k]))
                for k in range(4):
                    e('v_exp_f32_e64 v%d, v%d clamp' % (T + k, T + k))
                for k in range(4):
                    e('v_max_f32 v%d, s%d, v%d' % (a[k], S_EPS, a[k]))
                for k in range(4):
                    e('v_add_f32 v%d, v%d, v%d' % (a[k], a[k], T + k))
                e('v_cvt_pk_bf16_f32 v%d, v%d, v%d' % (acc(0, t) + 2 * i, a[0], a[1]))
                e('v_cvt_pk_bf16_f32 v%d, v%d, v%d' % (acc(0, t) + 2 * i + 1, a[2], a[3]))
            return e

        def hand_addr(z):
            z('s_mul_i32 s%d, s%d, 10240' % (S_T0, S_RW))
            z('s_add_u32 s%d, s%d, %d' % (S_T0, S_T0, R2 + 8192))
            z('v_add_u32 v%d, s%d, v%d' % (V_XA, S_T0, V_L16))

        def prod_setup(z, rb):
            rload(z, rb, 'r2', V_ST + 3)
            z('v_cndmask_b32 v%d, 0, 1.0, %s' % (V_XA + 1, sr(S_PAD, 2)))
            z('s_lshl_b32 s%d, s%d, 12' % (S_T0, S_RW))
            z('s_add_u32 s%d, s%d, %d' % (S_T0, S_T0, HND + g * 16384))
            z('v_add_u32 v%d, s%d, v%d' % (V_XA + 2, S_T0, V_L16))

        def kv_prod(z, t, pk, rb):
            z.wait(lgkm='r2')
            v, d = acc(1, t), V_X + 16 * t
            for f in range(2):
                for k in range(8 * f, 8 * f + 8):
                    z('v_fma_f32 v%d, v%d, v%d, v%d' % (v + k, v + k, rb + k, V_XA + 1))
                for k in range(4):
                    z('v_cvt_pk_bf16_f32 v%d, v%d, v%d' % (v + 8 * f + k, v + 8 * f + 2 * k, v + 8 * f + 2 * k + 1))
            z('s_setprio 2')
            for f in range(2):
                z('v_mfma_f32_32x32x16_bf16 %s, %s, %s, %s' % (vr(d, 16), vr(pk + 4 * f, 4), vr(v + 8 * f, 4), vr(d, 16) if f else '0'))

        def part_write(z, t):
            for i in range(4):
                z('ds_write_b128 v%d, %s offset:%d' % (V_XA + 2, vr(V_X + 16 * t + 4 * i, 4), t * 16384 + i * 1024))

        if not g:
            b('s_setprio 1')
        for c in range(-1, 7):
            barrier(b, 't0' if c < 0 else [('i', 2 * c + 3 if c < 6 else 14)], 's%d' % c if c >= 0 else 'pre')
            if c < 0:
                stamp(b, 1)
            d = Seg()
            if c == min(OPT['tat'], 2):
                touch_w2(d)
            if g and c == 3:
                f0_load(d)
            if g and c == 5:
                f0_check(d)
            if c < 6 or not g:
                item(d, 2 * c + 6)
                item(d, 2 * c + 7)
            if c == min(OPT['twat'], 2):
                touch_w(d, False)
            if c == 6:
                if g:
                    stat_load(d)
                else:
                    item(d, 20)
            if not g and c >= 0:
                b.extend(d)
            for j in range(4):
                if c >= 0:
                    for z in kstep(0, c, j):
                        b.extend(z)
                else:
                    for t in TS[0]:
                        wread(b, 0, 0, j, t)
                    xread(b, 0, j)
            if g or c < 0:
                b.extend(d)
        barrier(b, [('i', 16)], 's7')
        stamp(b, 2)

        if g:
            RB = V_ACC + 48
            parts = [ext(0, t, t) for t in range(2)]
            for p in parts:
                b.extend(p[0])
            item(b, 18)
            for p in parts:
                b.extend(p[1])
            item(b, 19)
            hand_addr(b)
            b.wait(vm='stat')
            spin_check(b, V_ST, V_ONE, V_ST + 1, SWS, 's%d' % S_H, 0xffffffff)
            b('s_setprio 2')
            stat_use(b)
            b('v_and_b32 v%d, 0xffff0000, v%d' % (T + 1, V_ST))
            b('v_rcp_f32 v%d, v%d' % (T + 1, T + 1))
            for p in parts:
                b.extend(p[2])
            b('ds_write_b32 v%d, v%d' % (V_ST + 2, T + 1))
            rload(b, RB, 'r')
            b('s_setprio 0')
            item(b, 20)
            if OPT['tkat'] == 0:
                touch_kv(b)
            barrier(b, [('i', 18)], 'v0')
            b.extend(phi_k(0, RB))
            for f in range(2):
                b('ds_write_b128 v%d, %s offset:%d' % (V_XA, vr(acc(0, 0) + 4 * f, 4), f * 1024))
            barrier(b, [('i', 20)], 'v1')
            d = Seg()
            if OPT['tkat'] == 1:
                touch_kv(d)
            p2_setup(d)
            for u in range(OPT['kpf']):
                dma_b2(d, u)
            r = Seg()
            for j in range(4):
                wread(r, 1, 0, j, 1)
            b.extend(mix(mix(phi_k(1, RB), [[i] for i in r]), groups(d)))
            prod_setup(b, RB)
            barrier(b, None, 'v2')
            stamp(b, 3)
            b('s_setprio 1')
            for c in range(7):
                for j in range(4):
                    b.extend(kstep(1, c, j)[0])
            barrier(b, None, 'v3')
            b('s_setprio 2')
            b.extend(head([ext(1, 1, 0)]))
            poll_base(b)
            kv_prod(b, 1, acc(0, 1), RB)
            part_write(b, 1)
            poll_async(b, 0)
            barrier(b, None, 'kk')
            stamp(b, 4)
            b('s_setprio 1')
            for u in range(OPT['kpf'], 11):
                dma_b2(b, u)
            b('s_branch L_p2b')
            return b
        for c in range(7):
            if c in (2, 4):
                barrier(b, [('i', 16 + c)], 'v%d' % (c // 2 - 1))
            for j in range(4):
                for z in kstep(1, c, j):
                    b.extend(z)
                if c == 2 and j == 1:
                    stat_load(b)
                if c == 5 and j == 1:
                    hand_addr(b)
                if c == 5 and j == 3:
                    b.wait(vm='stat')
                    stat_use(b)
        barrier(b, None, 'v2')
        stamp(b, 3)
        b('s_setprio 2')
        b('v_mov_b32 v%d, 0' % (V_CS + 1))
        RB, RP = V_X + 64, V_WF
        e = head([ext(1, 1, 0), ext(0, 0, 1), ext(1, 0, 2)])
        z = Seg()
        prod_setup(z, RP)
        for f in range(2):
            z('ds_read_b128 %s, v%d offset:%d' % (vr(PK1 + 4 * f, 4), V_XA, f * 1024), 'r2')
        rload(z, RB, 'r')
        b.extend(e[:3] + list(z) + e[3:])
        b('s_setprio 0')
        z = Seg()
        z('s_lshl_b32 s%d, s%d, 10' % (S_T1, S_RW))
        z('s_add_u32 s%d, s%d, %d' % (S_T1, S_T1, HND))
        z('v_add_u32 v%d, s%d, v%d' % (V_SEL + 2, S_T1, V_L16))
        z('s_cmp_eq_u32 s%d, 3' % S_RW)
        z('s_cselect_b64 vcc, %s, 0' % sr(S_HI, 2))
        z('v_lshrrev_b32 v%d, 2, v%d' % (V_SEL + 3, V_L16))
        z('v_cndmask_b32 v%d, v%d, v%d, vcc' % (V_SEL + 3, V_SEL + 3, V_FLO))
        z('s_lshl2_add_u32 s%d, s%d, s%d' % (S_H, S_LAST, S_RW))
        z('s_lshl_b32 s%d, s%d, 10' % (S_H, S_H))
        z('s_add_u32 s%d, s%d, 0x%x' % (S_H, S_H, KV_OFF))
        kv_prod(z, 1, PK1, RP)
        z('s_setprio 0')
        z.wait(lgkm='r')
        z.extend(phi_k(0, RB))
        kv_prod(z, 0, acc(0, 0), RP)
        k = len(z) * OPT['kcut'] // 100
        b.extend(z[:k])
        barrier(b, None, 'v3')
        b.extend(z[k:])
        part_write(b, 1)
        b('s_add_u32 s%d, s%d, 4096' % (S_P, S_H))
        b('s_add_u32 s%d, s%d, 8192' % (S_HALF, S_H))
        b('s_cmp_eq_u32 s%d, 3' % S_PEND)
        b('s_cselect_b32 s%d, s%d, 0x%x' % (S_HALF, S_HALF, OOB))
        part_write(b, 0)
        barrier(b, None, 'kk')
        stamp(b, 4)
        R = V_X + 32
        for h in range(3):
            for p in range(4):
                b('ds_read_b128 %s, v%d offset:%d' % (vr(R + 16 * h + 4 * p, 4), V_SEL + 2, h * 16384 + p * 4096), ('red', h))
        for h in range(3):
            r = R + 16 * h
            b.wait(lgkm=[('red', h)])
            for k in (0, 2):
                b('v_pk_add_f32 %s, %s, %s' % (vr(r + k, 2), vr(r + k, 2), vr(r + 4 + k, 2)))
                b('v_pk_add_f32 %s, %s, %s' % (vr(r + 8 + k, 2), vr(r + 8 + k, 2), vr(r + 12 + k, 2)))
                b('v_pk_add_f32 %s, %s, %s' % (vr(r + k, 2), vr(r + k, 2), vr(r + 8 + k, 2)))
            for k in range(4):
                b('buffer_atomic_add_f32 v%d, v%d, %s, s%d offen offset:%d sc1' % (r + k, V_SEL + 3, sr(SWS, 4), (S_H, S_P, S_HALF)[h], k * 256), 'atom')
        stamp(b, 5)
        b('s_lshl_b32 s%d, s%d, 7' % (S_FL, S_LAST))
        b('s_lshl_b32 s%d, s%d, 28' % (S_T1, S_RW))
        b('s_add_u32 s%d, s%d, s%d' % (S_FL, S_FL, S_T1))
        b('s_add_u32 s%d, s%d, 0x%x' % (S_FL, S_FL, FKV_OFF))
        b('s_lshl_b32 s%d, s%d, 4' % (S_T1, S_PEND))
        b('v_cmp_gt_u32 vcc, s%d, v%d' % (S_T1, V_L16))
        b('v_lshlrev_b32 v%d, 3, v%d' % (V_PL, V_L16))
        b('v_cndmask_b32 v%d, v%d, v%d, vcc' % (V_PL, V_FLO, V_PL))
        p2_setup(b)
        b.wait(vm='atom')
        sync_arrive(b, 0)
        sync_wait(b, 0, 4, T)
        stamp(b, 6)
        b('buffer_atomic_add v%d, v%d, %s, s%d offen sc1' % (V_ONE, V_PL, sr(SWS, 4), S_FL))
        b('s_branch L_p2a')
        return b

    return s, body(0), body(1)


V_OUT, V_RD, V_U = 8, 9, 40


def res_load(R):
    s, T = Seg(), R + 8
    s('s_lshl_b32 s%d, s%d, 7' % (S_T0, S_ROLE))
    s('v_lshrrev_b32 v%d, 3, v0' % (T + 1))
    s('v_and_b32 v%d, 0x70, v%d' % (T + 2, V_L16))
    s('v_mul_u32_u24 v%d, %d, v%d' % (V_OUT, XS, T + 1))
    s('v_add_u32 v%d, v%d, v%d' % (V_OUT, V_OUT, T + 2))
    s('buffer_load_dwordx4 %s, v%d, %s, s%d offen' % (vr(R, 4), V_OUT, sr(SX, 4), S_OUTO), 'res')
    s('buffer_load_dwordx4 %s, v%d, %s, s%d offen' % (vr(R + 4, 4), T + 2, sr(SB2, 4), S_T0), 'res')
    return s


def frag_addr(s, T):
    s('v_lshrrev_b32 v%d, 4, v%d' % (T, V_L16))
    s('v_bfe_u32 v%d, v%d, 2, 2' % (T + 1, T))
    s('v_and_b32 v%d, 3, v%d' % (T + 2, T))
    s('v_bfe_u32 v%d, v%d, 4, 1' % (T + 3, T))
    s('v_lshl_add_u32 v%d, v%d, 2, v%d' % (T + 2, T + 3, T + 2))
    s('v_lshrrev_b32 v%d, 1, v%d' % (T + 3, T + 1))
    s('v_lshlrev_b32 v%d, 6, v%d' % (T + 3, T + 3))
    s('v_lshl_add_u32 v%d, v%d, 3, v%d' % (T + 2, T + 2, T + 3))
    s('v_lshl_add_u32 v%d, v%d, 7, v%d' % (T + 2, T + 1, T + 2))
    s('v_lshrrev_b32 v%d, 5, v%d' % (T + 3, T))
    s('v_lshl_add_u32 v%d, v%d, 9, v%d' % (T + 3, T + 3, T + 2))


def bf(par, ct):
    return V_BF + 8 * par + 4 * ct


def acc2(ct, rg):
    return V_ACC + 32 * ct + 16 * rg


def part_addr(g):
    z, T = Seg(), V_NUM
    z('v_bfe_u32 v%d, v%d, 4, 5' % (T, V_L16))
    z('v_and_b32 v%d, 7, v%d' % (T + 1, T))
    z('v_bfe_u32 v%d, v%d, 1, 1' % (T + 2, T))
    z('v_lshrrev_b32 v%d, 9, v%d' % (T + 3, V_L16))
    z('v_xor_b32 v%d, v%d, v%d' % (T + 2, T + 2, T + 3))
    z('v_lshl_add_u32 v%d, v%d, 3, v%d' % (T + 1, T + 2, T + 1))
    z('v_lshlrev_b32 v%d, 4, v%d' % (T + 1, T + 1))
    z('v_lshl_add_u32 v%d, v%d, 8, v%d' % (T + 1, T, T + 1))
    z('v_add_u32 v%d, s%d, v%d' % (T + 8, S_QR0, T + 1))
    if g:
        z('v_add_u32 v%d, s%d, v%d' % (T + 16, S_QR2, T + 1))
    else:
        z('v_add_u32 v%d, 8192, v%d' % (T + 16, T + 8))
    for rg in range(2):
        for k in range(1, 8):
            z('v_xor_b32 v%d, %d, v%d' % (T + 8 + 8 * rg + k, k << 4, T + 8 + 8 * rg))
    return z


def read_addr(g, R):
    z, T = Seg(), R + 8
    z('v_and_b32 v%d, 31, v%d' % (T + 1, T + 1))
    z('v_and_b32 v%d, 7, v%d' % (T + 3, T + 1))
    z('v_bfe_u32 v%d, v%d, 1, 1' % (T + 4, T + 1))
    z('v_lshl_add_u32 v%d, v%d, 3, v%d' % (T + 3, T + 4, T + 3))
    z('v_lshlrev_b32 v%d, 4, v%d' % (T + 3, T + 3))
    z('v_xor_b32 v%d, v%d, v%d' % (T + 3, T + 3, T + 2))
    z('v_lshl_add_u32 v%d, v%d, 8, v%d' % (V_RD, T + 1, T + 3))
    if g:
        z('v_add_u32 v%d, %d, v%d' % (V_RD, R2, V_RD))
    z('v_xor_b32 v%d, 128, v%d' % (V_RD + 1, V_RD))
    return z


def res_unpack(R):
    z, U = Seg(), V_U
    z.wait(vm='res')
    for k in range(4):
        z('v_lshlrev_b32 v%d, 16, v%d' % (U + 2 * k, R + k))
        z('v_and_b32 v%d, 0xffff0000, v%d' % (U + 2 * k + 1, R + k))
        z('v_lshlrev_b32 v%d, 16, v%d' % (R + k, R + 4 + k))
        z('v_and_b32 v%d, 0xffff0000, v%d' % (R + 4 + k, R + 4 + k))
        z('v_add_f32 v%d, v%d, v%d' % (U + 2 * k, U + 2 * k, R + k))
        z('v_add_f32 v%d, v%d, v%d' % (U + 2 * k + 1, U + 2 * k + 1, R + 4 + k))
    return z


def acc_major(s, units, wreg, areg, wtag, atag, fresh, fill=()):
    slots, order = [], [(0, 0), (1, 0), (0, 1), (1, 1)]
    for ct, rg in order:
        for k, u in enumerate(units):
            z = Seg()
            z.wait(vm=[atag(u, rg)], lgkm=[wtag(u, ct)])
            z('v_mfma_f32_32x32x16_bf16 %s, %s, %s, %s' % (vr(acc2(ct, rg), 16), vr(wreg(u, ct), 4), vr(areg(u, rg), 4), '0' if fresh and k == 0 else vr(acc2(ct, rg), 16)))
            slots.append(z)
    n = len(units)
    for k, gi in enumerate(fill):
        slots[k].extend(gi)
    wr = [Ins('ds_write_b128 v%d, %s' % (V_NUM + 8 + 8 * rg + 4 * ct + i, vr(acc2(ct, rg) + 4 * i, 4))) for ct, rg in order for i in range(4)]
    first = 2 * n - 1
    for k in range(8):
        slots[first + k * (2 * n + 1) // 8].append(wr[k])
    for z in slots:
        s.extend(z)
    s.extend(wr[8:])


def final(g):
    s = Seg('final%d' % g)
    D, U = V_AB, V_U
    stamp(s, 8)
    barrier(s)
    stamp(s, 9)
    for w in range(4):
        for h in range(2):
            s('ds_read_b128 %s, v%d offset:%d' % (vr(D + 8 * w + 4 * h, 4), V_RD + h, w * (10240 if g else 12288)), ('fin', w))
    for w in range(4):
        s.wait(lgkm=[('fin', w)])
        for k in range(4):
            s('v_pk_add_f32 %s, %s, %s' % (vr(U + 2 * k, 2), vr(U + 2 * k, 2), vr(D + 8 * w + 2 * k, 2)))
    for k in range(4):
        s('v_cvt_pk_bf16_f32 v%d, v%d, v%d' % (U + k, U + 2 * k, U + 2 * k + 1))
    s('buffer_store_dwordx4 %s, v%d, %s, s%d offen' % (vr(U, 4), V_OUT, sr(SOUT, 4), S_OUTO))
    return s


def phase2b():
    s, T = Seg('p2b'), V_NUM
    s('L_p2b:')
    stamp(s, 5)
    s('s_setprio 1')
    s('v_add_u32 v%d, %d, v%d' % (V_L16B, ACT_G, V_L16))
    s('s_lshl_b32 s%d, s%d, 13' % (S_T0, S_RW))
    s('s_add_u32 s%d, s%d, s%d' % (S_P, S_A, S_T0))
    s('s_add_u32 s%d, s%d, %d' % (S_P, S_P, 112 * 1024))
    s('s_mul_i32 s%d, s%d, %d' % (S_T0, S_RW, 28 * 1024))
    s('s_add_u32 s%d, s%d, s%d' % (S_A, S_A, S_T0))
    DEP, LB = 6, OPT['lb']
    V_PW, V_PX, RES, OF = 11, 14, V_AB + 48, V_AB + 64
    SO = [S_KW + 1 + u if u < 6 else S_HI + u - 6 for u in range(8)]

    def abuf(u, rg):
        return V_AB + 8 * (u % DEP) + 4 * rg if u < 28 else OF + 8 * (u - 28) + 4 * rg

    def aload(z, u):
        ks_dyn(z, S_T0, u)
        z('s_lshl_b32 s%d, s%d, 10' % (S_T0, S_T0))
        z('s_add_u32 s%d, s%d, s%d' % (S_T0, S_T0, S_A))
        for rg in range(2):
            z('buffer_load_dwordx4 %s, v%d, %s, s%d offen sc1' % (vr(abuf(u, rg), 4), V_L16B if rg else V_L16, sr(SWS, 4), S_T0), ('a', u))

    def oloads():
        z = Seg()
        for rg in range(2):
            for u in range(8):
                z('buffer_load_dwordx4 %s, v%d, %s, s%d offen sc1' % (vr(abuf(28 + u, rg), 4), V_L16B if rg else V_L16, sr(SWS, 4), SO[u]), ('o', 28 + u, rg))
        return list(z)

    def word_check(z, u, n, hit=None):
        z.wait(lgkm=[('pw', u)])
        z('v_readfirstlane_b32 s%d, v%d' % (S_T2, V_PW))
        z('s_cmp_lt_u32 s%d, %d' % (S_T2, n))
        if hit:
            z('s_cbranch_scc0 %s' % hit)
            return
        j = nspin[0]
        nspin[0] += 1
        z('s_cbranch_scc1 L_slow%d' % j)
        z('L_ret%d:' % j)
        slow('L_slow%d:' % j)
        slow('s_add_u32 s%d, s%d, 1' % (S_SPIN, S_SPIN))
        slow('s_cmp_gt_u32 s%d, 0x%x' % (S_SPIN, SPIN_LIMIT << 3))
        slow('s_cbranch_scc1 L_ret%d' % j)
        slow('ds_read_b32 v%d, v%d' % (V_PW, V_PX))
        slow('s_waitcnt lgkmcnt(0)')
        slow('v_readfirstlane_b32 s%d, v%d' % (S_T2, V_PW))
        slow('s_nop 0')
        slow('s_cmp_lt_u32 s%d, %d' % (S_T2, n))
        slow('s_cbranch_scc1 L_slow%d' % j)
        slow('s_branch L_ret%d' % j)

    stage_check(s, 0)
    stamp(s, 'c0')
    z = Seg()
    for u in range(DEP - 1):
        if u == OPT['p1at']:
            poll_async(z, 1)
        aload(z, u)
    y = Seg()
    frag_addr(y, T)
    for reg, base in enumerate((S_QR0, S_QR2)):
        y('v_add_u32 v%d, s%d, v%d' % (V_BA + 2 * reg, base, T + 3))
        y('v_xor_b32 v%d, 64, v%d' % (V_BA + 2 * reg + 1, V_BA + 2 * reg))
    y('v_subrev_u32 v%d, 16, v%d' % (V_PX, V_PA))
    s.extend(mix(y, groups(z)))

    def wreg(u, ct):
        return bf(u & 1, ct) if u < 28 else V_AB + 32 * (1 - ct) + 4 * (u - 28)

    def bread(u, ct):
        z = Seg()
        _, reg, off = unit_loc(u)
        z.wait(vm=[('b', u)])
        for h in range(2):
            z('ds_read_b64_tr_b16 %s, v%d offset:%d' % (vr(wreg(u, ct) + 2 * h, 2), V_BA + 2 * reg + ct, off + h * 1024), ('bf', u, ct))
        return z

    s.extend(bread(0, 0) + bread(0, 1))
    late = Seg()
    for u in range(8):
        late('s_xor_b32 s%d, s%d, %d' % (SO[u], S_RO3, u))
        late('s_lshl_b32 s%d, s%d, 10' % (SO[u], SO[u]))
        late('s_add_u32 s%d, s%d, s%d' % (SO[u], SO[u], S_P))
    late = list(read_addr(1, RES)) + list(part_addr(1)) + list(res_unpack(RES)) + list(late)
    SITES = [23, 25, 27, 28]
    U2 = 17 - DEP

    def unit(s, u, extra, word):
        nxt = u + DEP - 1
        z = Seg()
        if nxt < 28:
            aload(z, nxt)
        if 11 <= u + LB < 36:
            dma_b2(z, u + LB)
        if u == 4:
            z.extend(res_load(RES))
        now = groups(z) + [[i] for i in extra]
        if 10 <= u < 22:
            k0, k1 = len(late) * (u - 10) // 12, len(late) * (u - 9) // 12
            now += [[i] for i in late[k0:k1]]
        if u < 27:
            rd = [bread(u + 1, 0), bread(u + 1, 1), Seg(), Seg()]
        else:
            rd = [bread(28 + k, 0) for k in range(4)]
        if word:
            rd[2]('ds_read_b32 v%d, v%d' % (V_PW, V_PX), ('pw', u + 1))
        s.wait(vm=[('a', u)])
        stamp(s, 'u%d' % u)
        k = 0
        for ct in range(2):
            s.wait(lgkm=[('bf', u, ct)])
            for rg in range(2):
                s('v_mfma_f32_32x32x16_bf16 %s, %s, %s, %s' % (vr(acc2(ct, rg), 16), vr(wreg(u, ct), 4), vr(abuf(u, rg), 4), vr(acc2(ct, rg), 16) if u else '0'))
                s.extend(rd[k])
                for gi in range(len(now) * k // 4, len(now) * (k + 1) // 4):
                    s.extend(now[gi])
                k += 1

    assert LB >= 8
    main, alts = [s], []
    for u in range(28):
        if u + DEP - 1 == 8:
            stage_check(s, 1)
            stamp(s, 'c1')
        if u == 7:
            word_check(s, u, 1)
        if u == U2:
            word_check(s, u, 3)
            stamp(s, 'c2')
        if u in SITES:
            word_check(s, u, 7, hit='L_p2o%d' % u)
            a = Seg('p2o%d' % u)
            a('L_p2o%d:' % u)
            stamp(a, 'c3')
            o = oloads()
            for v in range(u, 28):
                unit(a, v, o[:4], False)
                o = o[4:]
            a.extend(o)
            a('s_branch L_p2tail')
            alts.append((list(main), a))
            s = Seg('p2m%d' % u)
            main.append(s)
        unit(s, u, [], u + 1 in SITES + [7, U2])
    word_check(s, 28, 7)
    stamp(s, 'c3')
    s.extend(oloads())
    t = Seg('p2t')
    t('L_p2tail:')
    stamp(t, 'tl')
    fill = [bread(u, 0) for u in range(32, 36)] + [bread(u, 1) for u in range(28, 36)]
    acc_major(t, range(28, 36), wreg, abuf, lambda u, ct: ('bf', u, ct), lambda u, rg: ('o', u, rg), False, fill)
    t.extend(final(1))
    t('s_branch L_fin')
    return [m + [a, t] for m, a in alts] + [main + [t]], [a for _, a in alts] + main + [t]


def phase2a():
    s = Seg('p2a')
    s('L_p2a:')
    poll_base(s)
    s('v_mov_b32 v%d, 3' % V_ONE)
    s.extend(res_load(V_BF))
    s.extend(read_addr(0, V_BF))
    stage_check(s, 2, sync=True, scalar=OPT['ascal'])
    sync_arrive(s, 0)
    stamp(s, 'a2')
    s('v_mov_b32 v%d, 7' % V_ONE)
    stage_check(s, 3, sync=True, scalar=OPT['ascal'])
    sync_arrive(s, 0)
    stamp(s, 7)
    s.wait(lgkm='all')
    s.extend(res_unpack(V_BF))
    s.extend(final(0))
    return s


def fin():
    s = Seg('fin')
    s('L_fin:')
    if OPT['diag']:
        stamp(s, 10)
        s('s_waitcnt lgkmcnt(0)')
        s('v_mov_b32 v4, 0')
        for k in range(11):
            s('v_writelane_b32 v4, s%d, %d' % (S_KA + 2 * k, k))
        s('v_writelane_b32 v4, s%d, 11' % S_SPIN)
        s('s_lshl3_add_u32 s%d, s2, s%d' % (S_T0, S_WV))
        s('s_lshl_b32 s%d, s%d, 8' % (S_T0, S_T0))
        s('s_add_u32 s%d, s%d, 0x%x' % (S_T0, S_T0, TS_OFF))
        s('v_lshrrev_b32 v5, 2, v%d' % V_L16)
        s('buffer_store_dword v4, v5, %s, s%d offen' % (sr(SWS, 4), S_T0))
        if OPT['diag'] == 3:
            s('s_not_b32 s%d, s%d' % (S_T0, S_KA))
            s('v_writelane_b32 v4, s%d, 11' % S_T0)
            s('s_cmp_eq_u32 s%d, 4' % S_WV)
            s('s_cselect_b32 s%d, 16, 0x%x' % (S_T0, OOB))
            s('s_cmp_lt_u32 s%d, 4' % S_ROLE)
            s('s_cselect_b32 s%d, s%d, 0x%x' % (S_T0, S_T0, OOB))
            s('s_mov_b64 exec, 0xfff')
            s('buffer_atomic_umax v4, v5, %s, s%d offen sc1' % (sr(SDBG, 4), S_T0))
    if OPT['diag'] == 6:
        s('s_cmp_lg_u32 s%d, 4' % S_WV)
        s('s_cbranch_scc1 L_end')
        s('s_mov_b64 exec, 1')
        s('s_getreg_b32 s%d, hwreg(HW_REG_XCC_ID, 0, 4)' % S_T0)
        s('s_sub_u32 s%d, s%d, s2' % (S_T0, S_T0))
        s('s_and_b32 s%d, s%d, 7' % (S_T0, S_T0))
        s('s_lshl_b32 s%d, 1, s%d' % (S_T0, S_T0))
        s('v_mov_b32 v4, s%d' % S_T0)
        s('v_mov_b32 v6, 1')
        s('v_mov_b32 v7, 0')
        s('buffer_atomic_or v4, v7, %s, 0 offen offset:16 sc1' % sr(SDBG, 4))
        s('s_waitcnt vmcnt(0)')
        s('buffer_atomic_add v6, v7, %s, 0 offen offset:136 sc0 sc1' % sr(SDBG, 4))
        s('s_waitcnt vmcnt(0)')
        s('v_readfirstlane_b32 s%d, v6' % S_T0)
        s('s_cmp_lg_u32 s%d, 255' % S_T0)
        s('s_cbranch_scc1 L_end')
        s('buffer_load_dword v4, v7, %s, 0 offen offset:16 sc1' % sr(SDBG, 4))
        s('s_waitcnt vmcnt(0)')
        s('v_readfirstlane_b32 s%d, v4' % S_T0)
        s('s_bcnt1_i32_b32 s%d, s%d' % (S_T0, S_T0))
        s('s_mul_i32 s%d, s%d, 2000' % (S_T0, S_T0))
        s('s_memrealtime s[66:67]')
        s('s_waitcnt lgkmcnt(0)')
        s('L_dly:')
        s('s_memrealtime s[68:69]')
        s('s_waitcnt lgkmcnt(0)')
        s('s_sub_u32 s68, s68, s66')
        s('s_cmp_lt_u32 s68, s%d' % S_T0)
        s('s_cbranch_scc1 L_dly')
    if OPT['diag'] == 5:
        s('s_cmp_lg_u32 s%d, 4' % S_WV)
        s('s_cbranch_scc1 L_end')
        s('s_mov_b64 exec, 1')
        s('s_not_b32 s%d, s%d' % (S_T0, S_KA + 2 * OPT['sa']))
        s('v_mov_b32 v4, s%d' % S_T0)
        s('v_mov_b32 v5, s%d' % (S_KA + 2 * OPT['sb']))
        s('v_mov_b32 v6, 1')
        s('v_mov_b32 v7, 0')
        s('buffer_atomic_umax v4, v7, %s, 0 offen offset:128 sc1' % sr(SDBG, 4))
        s('buffer_atomic_umax v5, v7, %s, 0 offen offset:132 sc1' % sr(SDBG, 4))
        s('s_waitcnt vmcnt(0)')
        s('buffer_atomic_add v6, v7, %s, 0 offen offset:136 sc0 sc1' % sr(SDBG, 4))
        s('s_waitcnt vmcnt(0)')
        s('v_readfirstlane_b32 s%d, v6' % S_T0)
        s('s_cmp_lg_u32 s%d, 255' % S_T0)
        s('s_cbranch_scc1 L_end')
        s('buffer_load_dwordx2 v[4:5], v7, %s, 0 offen offset:128 sc1' % sr(SDBG, 4))
        s('s_waitcnt vmcnt(0)')
        s('v_add_u32 v4, v4, v5')
        s('s_nop 1')
        s('v_readfirstlane_b32 s%d, v4' % S_T0)
        s('s_add_u32 s%d, s%d, 1' % (S_T0, S_T0))
        s('s_mul_i32 s%d, s%d, %d' % (S_T0, S_T0, OPT['mul']))
        s('s_min_u32 s%d, s%d, 200000' % (S_T0, S_T0))
        s('s_memrealtime s[66:67]')
        s('s_waitcnt lgkmcnt(0)')
        s('L_dly:')
        s('s_memrealtime s[68:69]')
        s('s_waitcnt lgkmcnt(0)')
        s('s_sub_u32 s68, s68, s66')
        s('s_cmp_lt_u32 s68, s%d' % S_T0)
        s('s_cbranch_scc1 L_dly')
    if OPT['diag'] == 4:
        s('s_cmp_lg_u32 s2, %d' % OPT['wg'])
        s('s_cbranch_scc1 L_end')
        s('s_cmp_lg_u32 s%d, 4' % S_WV)
        s('s_cbranch_scc1 L_end')
        s('s_sub_u32 s%d, s%d, s%d' % (S_T0, S_KA + 2 * OPT['sb'], S_KA + 2 * OPT['sa']))
        if not OPT['clk']:
            s('s_mul_i32 s%d, s%d, 10' % (S_T0, S_T0))
        s('s_min_u32 s%d, s%d, 200000' % (S_T0, S_T0))
        s('s_memrealtime s[66:67]')
        s('s_waitcnt lgkmcnt(0)')
        s('L_dly:')
        s('s_memrealtime s[68:69]')
        s('s_waitcnt lgkmcnt(0)')
        s('s_sub_u32 s68, s68, s66')
        s('s_cmp_lt_u32 s68, s%d' % S_T0)
        s('s_cbranch_scc1 L_dly')
    s('L_end:')
    s('s_endpgm')
    return s


def main():
    pro, prw, pre = prologue()
    f, fa, fb = lc_role(True)
    q, qa, qb = lc_role(False)
    qo = q_out()
    k, ka, kb = kv_role()
    (p2paths, p2segs), p2a, fi = phase2b(), phase2a(), fin()
    paths = [
        [pro, pre, f, fa, p2a, fi],
        [pro, pre, q, qa, qo, fi],
        [pro, prw, pre, q, qb, qo, fi],
        [pro, prw, pre, k, ka, p2a, fi],
    ]
    for p in p2paths:
        paths += [[pro, prw, pre, f, fb] + p + [fi], [pro, prw, pre, k, kb] + p + [fi]]
    resolve_waits(paths)
    n = pad_hazards(paths)
    assert pad_hazards(paths) == 0
    body = render([pro, prw, pre, f, fa, fb, k, ka, kb, q, qa, qb, qo] + p2segs + [p2a, fi, slow])
    head = open('cdna_kernels/%s.s.ref' % NAME).read().split('\n')
    head = [l for l in head if l.startswith(';') and '@launch' not in l]
    out = '\n'.join(head) + '''
; @launch grid=(256,1,1) block=(512,1,1) lds=%d
.amdgcn_target "amdgcn-amd-amdhsa--gfx950"
.text
.globl %s_kernel
.p2align 8
.type %s_kernel,@function
%s_kernel:
L_codebeg:
%s
L_codeend:
.section .rodata,"a"
.p2align 6
.amdhsa_kernel %s_kernel
  .amdhsa_next_free_vgpr 256
  .amdhsa_next_free_sgpr 102
  .amdhsa_accum_offset 256
  .amdhsa_group_segment_fixed_size 0
  .amdhsa_kernarg_size 88
  .amdhsa_user_sgpr_count 2
  .amdhsa_user_sgpr_kernarg_segment_ptr 1
  .amdhsa_system_sgpr_workgroup_id_x 1
.end_amdhsa_kernel
''' % (LDS_BYTES, NAME, NAME, NAME, body, NAME)
    if OPT['x_plain'] & 1:
        out = '\n'.join(l.replace(' sc1', '') if 'buffer_store_dwordx4' in l else l for l in out.split('\n'))
    if OPT['x_plain'] & 2:
        out = '\n'.join(l.replace(' sc1', '') if 'buffer_load_dwordx4' in l else l for l in out.split('\n'))
    open(sys.argv[1], 'w').write(out)
    print('wrote %s: %d lines, %d pad states' % (sys.argv[1], out.count('\n'), n))


main()
```

```python
import struct
import sys
from asmlib import Seg, Ins, Wait, GAP, interleave, resolve_waits, pad_hazards, render, vr, sr

NAME = 'parallel_sum__linear_attn_block__dense_activation_gelu__prompt'
OPT = dict(ne=1, ub=1, pmix=1, wv=4, back=0, x_wait=0, rot1=2, nlate=1, mul=10, fatom=0, tlb=0, kbar=4, kphi=26, ntail=4, p1at=2, ascal=1, kpf=2, kcut=85, kb0=24, kb1=104, khead=0, kearly=40, qatom=1, batom=1, pkind=1, x_hit=0, gsp=3, eprio=0, aprio=2, aprio2=2, aprio3=2, lb=10, touch=4, tat=4, twat=3, tkat=1, kprio=1, plead=3, x_noa=0, x_nopoll=0, x_noflag=0, x_nost=0, x_plain=0, rot2=1, dep=6, noatom=0, diag=0, p1only=0, sa=0, sb=10, clk=0, wg=0)
for a in sys.argv[2:]:
    k, v = a.split('=')
    OPT[k] = v if k == 'st' else int(v)
STAMPS = OPT.get('st', 'en,1,2,3,4,5,6,7,8,9,10').split(',')


def f32(x):
    return '0x%08x' % struct.unpack('<I', struct.pack('<f', x))[0]


XS, WQS, W1S = 896, 2688, 3584
ACT_G = 147456
KV_OFF = 0x900000
FKV_OFF = 0x910000
FL_OFF = 0x911000
FL_G = 896
ST_OFF = 0x930000
TS_OFF = 0xA00000
WS_BYTES = 0x10000000
OOB = 0x40000000
R0, R1, R2, MISC = 0, 57344, 114688, 155648
M_ST, M_SY, M_CS, M_R = MISC, MISC + 2048, MISC + 4096, MISC + 7168
LDS_BYTES = 163840
LOG2E = 1.4426950408889634
GC1 = -2.0 * 0.7978845608028654 * LOG2E
GC3 = GC1 * 0.044715
SPIN_LIMIT = 1 << 16

S_WV, S_RW, S_G, S_RB, S_ROLE = 3, 4, 5, 6, 7
SX, SW, SWS, SW2, SWO, SOUT, SB1, SB2, SDBG = 8, 12, 16, 20, 24, 28, 32, 36, 40
S_KA = 44
S_KX, S_KW = 66, 73
S_I2, S_HALF, S_T0, S_T1, S_ONES, S_EPS = 80, 81, 82, 83, 84, 85
S_M0W, S_M0X, S_T3, S_RO, S_H, S_FL = 86, 87, 88, 89, 90, 91
S_HI = 92
S_SPIN, S_T2, S_P, S_LAST, S_PEND, S_L2E = 94, 95, 96, 97, 98, 99
S_PAD = 100
S_B2R, S_QR0, S_RO3, S_QR2, S_A, S_WOR, S_OUTO, S_PL = 66, 67, 68, 69, 70, 71, 72, 73
S_AO = 74

V_L16, V_B2, V_X0, V_X1, V_W, V_CSW, V_CSR = 1, 2, 3, 4, 5, 6, 7
V_SEL, V_CS, V_WA, V_XA, V_EXW, V_EXR, V_ST = 8, 12, 20, 28, 32, 36, 38
V_B1 = 16
V_WB, V_RA = 42, 43
V_POLL, V_PA, V_FLO, V_ONE = 44, 45, 46, 47
V_T = 48
V_ACC, V_X, V_WF = 64, 128, 240
V_B2B, V_BA, V_L16B, V_PL = 3, 4, 12, 13
V_NUM, V_BF, V_AB, V_RES = 16, 48, 128, 192
V_PQ = 80
HND = 49152

slow = Seg('slow')
nspin = [0]


def stamp(s, k):
    if OPT['diag'] and str(k) in STAMPS:
        k = STAMPS.index(str(k))
        s('%s %s' % ('s_memtime' if OPT['diag'] == 2 or OPT['clk'] else 's_memrealtime', sr(S_KA + 2 * k, 2)))


EARLY = ['en', 'ka', 't0', 't1']


def estamp(s, k):
    if OPT['diag'] and k in STAMPS:
        s('%s s[100:101]' % ('s_memtime' if OPT['diag'] == 2 or OPT['clk'] else 's_memrealtime'))
        s('s_waitcnt lgkmcnt(0)')
        s('v_mov_b32 v%d, s100' % (120 + EARLY.index(k)))


class Rebase:
    def __init__(self, regs, base, span):
        self.regs, self.base, self.span = regs, base, span

    def off(self, s, addr):
        if not (self.base <= addr and addr - self.base + self.span <= 65535):
            for r in self.regs:
                s('v_add_u32 v%d, 0x%x, v%d' % (r, (addr - self.base) & 0xffffffff, r))
            self.base = addr
        return addr - self.base


def spin_check(s, vpoll, vexp, vaddr, srd, soff, mask):
    k = nspin[0]
    nspin[0] += 1
    s('v_cmp_ge_u32 vcc, v%d, v%d' % (vpoll, vexp))
    s('s_andn2_b32 s%d, 0x%x, vcc_lo' % (S_T2, mask))
    s('s_cbranch_scc1 L_slow%d' % k)
    s('L_ret%d:' % k)
    slow('L_slow%d:' % k)
    slow('s_add_u32 s%d, s%d, 1' % (S_SPIN, S_SPIN))
    slow('s_cmp_gt_u32 s%d, 0x%x' % (S_SPIN, SPIN_LIMIT))
    slow('s_cbranch_scc1 L_ret%d' % k)
    slow('buffer_load_dword v%d, v%d, %s, %s offen sc1' % (vpoll, vaddr, sr(srd, 4), soff))
    slow('s_waitcnt vmcnt(0)')
    slow('v_cmp_ge_u32 vcc, v%d, v%d' % (vpoll, vexp))
    slow('s_nop 1')
    slow('s_andn2_b32 s%d, 0x%x, vcc_lo' % (S_T2, mask))
    slow('s_cbranch_scc1 L_slow%d' % k)
    slow('s_branch L_ret%d' % k)


def poll_base(s):
    s('s_lshr_b32 s%d, s%d, 1' % (S_PL, S_I2))
    s('s_lshl2_add_u32 s%d, s%d, s%d' % (S_PL, S_PL, S_RW))
    s('s_mul_i32 s%d, s%d, %d' % (S_PL, S_PL, FL_G))
    s('s_add_u32 s%d, s%d, 0x%x' % (S_PL, S_PL, FL_OFF))
    s('v_cmp_gt_u32 vcc, 32, v%d' % V_L16)
    s('v_lshlrev_b32 v%d, 3, v%d' % (V_PL, V_L16))
    s('v_cndmask_b32 v%d, v%d, v%d, vcc' % (V_PL, V_FLO, V_PL))


def poll_async(s, k):
    s('buffer_load_dword v%d, v%d, %s, s%d offen offset:%d sc1' % (V_POLL, V_PL, sr(SWS, 4), S_PL, k * 256), ('poll', k))


def stage_check(s, k, miss=None, sync=False, scalar=False):
    if OPT['x_nopoll']:
        return
    j = nspin[0]
    nspin[0] += 1
    mask = 3 if k < 3 else 1
    if sync:
        s('s_branch L_slow%d' % j)
    else:
        s.wait(vm=[('poll', k)])
        s('v_cmp_ne_u32 vcc, 0, v%d' % V_POLL)
        s('s_andn2_b32 s%d, %d, vcc_lo' % (S_T2, mask))
        if miss:
            s('s_cbranch_scc1 %s' % miss)
            return
        s('s_cbranch_scc1 L_slow%d' % j)
    s('L_ret%d:' % j)
    slow('L_slow%d:' % j)
    slow('s_add_u32 s%d, s%d, 1' % (S_SPIN, S_SPIN))
    slow('s_cmp_gt_u32 s%d, 0x%x' % (S_SPIN, SPIN_LIMIT))
    slow('s_cbranch_scc1 L_ret%d' % j)
    if sync and k == 3 and OPT['back']:
        slow('s_sleep %d' % OPT['back'])
    if scalar:
        slow('s_add_u32 s%d, s%d, %d' % (S_T2, S_PL, k * 256))
        slow('s_add_u32 s%d, s%d, %d' % (S_T1, S_PL, k * 256 + (128 if k < 3 else 0)))
        slow('s_buffer_load_dword s%d, %s, s%d glc' % (S_T2, sr(SWS, 4), S_T2))
        if k < 3:
            slow('s_buffer_load_dword s%d, %s, s%d glc' % (S_T1, sr(SWS, 4), S_T1))
        slow('s_waitcnt lgkmcnt(0)')
        if k < 3:
            slow('s_and_b32 s%d, s%d, s%d' % (S_T2, S_T2, S_T1))
        slow('s_cmp_eq_u32 s%d, 0' % S_T2)
    else:
        slow('buffer_load_dword v%d, v%d, %s, s%d offen offset:%d sc1' % (V_POLL, V_PL, sr(SWS, 4), S_PL, k * 256))
        slow('s_waitcnt vmcnt(0)')
        slow('v_cmp_ne_u32 vcc, 0, v%d' % V_POLL)
        slow('s_nop 1')
        slow('s_andn2_b32 s%d, %d, vcc_lo' % (S_T2, mask))
    slow('s_cbranch_scc1 L_slow%d' % j)
    slow('s_branch L_ret%d' % j)


def poll_check(s, k, n, sync=False, atomic=False):
    j = nspin[0]
    nspin[0] += 1
    if OPT['x_nopoll']:
        return
    if sync:
        s('s_branch L_slow%d' % j)
    else:
        s.wait(vm=[('poll', k)])
        s('v_readfirstlane_b32 s%d, v%d' % (S_T2, V_POLL))
        s('s_cmp_lt_u32 s%d, %d' % (S_T2, n))
        s('s_cbranch_scc1 L_slow%d' % j)
    s('L_ret%d:' % j)
    slow('L_slow%d:' % j)
    slow('s_add_u32 s%d, s%d, 1' % (S_SPIN, S_SPIN))
    slow('s_cmp_gt_u32 s%d, 0x%x' % (S_SPIN, SPIN_LIMIT))
    slow('s_cbranch_scc1 L_ret%d' % j)
    if atomic:
        slow('v_mov_b32 v%d, 0' % V_POLL)
        slow('buffer_atomic_add v%d, v%d, %s, s%d offen offset:%d sc0 sc1' % (V_POLL, V_FLO, sr(SWS, 4), S_PL, k * 128))
        slow('s_waitcnt vmcnt(0)')
        slow('v_readfirstlane_b32 s%d, v%d' % (S_T2, V_POLL))
        slow('s_nop 0')
    else:
        slow('s_add_u32 s%d, s%d, %d' % (S_T2, S_PL, k * 128))
        slow('s_buffer_load_dword s%d, %s, s%d glc' % (S_T2, sr(SWS, 4), S_T2))
        slow('s_waitcnt lgkmcnt(0)')
    slow('s_cmp_lt_u32 s%d, %d' % (S_T2, n))
    slow('s_cbranch_scc1 L_slow%d' % j)
    slow('s_branch L_ret%d' % j)


def srd(s, d, nbytes):
    s('s_mov_b32 s%d, 0x%x' % (d + 2, nbytes))
    s('s_mov_b32 s%d, 0x20000' % (d + 3))


XSLOT = [R2, R2 + 16384, R1 + 8192, R1 + 24576, R1 + 40960, R2, R2 + 16384]


def kv_slot(n):
    return ((n + 4) % 9) * 16384


def prologue():
    s, T = Seg('pro'), V_T
    s('s_cmp_ge_u32 s2, 256')
    s('s_cbranch_scc1 L_end')
    estamp(s, 'en')
    s('s_load_dwordx2 %s, s[0:1], 0' % sr(SX, 2))
    s('s_load_dwordx2 %s, s[0:1], 8' % sr(SW, 2))
    s('s_load_dwordx2 %s, s[0:1], 32' % sr(S_HI, 2))
    s('v_readfirstlane_b32 s%d, v0' % S_WV)
    s('s_getpc_b64 s[82:83]')
    s('s_lshr_b32 s%d, s2, 3' % S_T2)
    s('s_lshl_b32 s%d, s%d, 11' % (S_P, S_T2))
    s('v_lshl_add_u32 v%d, v0, 2, s%d' % (T, S_P))
    s('v_min_u32 v%d, L_codeend-L_codebeg-64, v%d' % (T, T))
    s('global_load_dword v%d, v%d, s[82:83]' % (V_POLL, T))
    s('s_lshr_b32 s%d, s%d, 6' % (S_WV, S_WV))
    s('v_and_b32 v%d, 63, v0' % T)
    s('s_and_b32 s%d, s%d, 7' % (S_ROLE, S_T2))
    s('v_lshrrev_b32 v%d, 3, v%d' % (T + 1, T))
    s('s_lshr_b32 s%d, s%d, 3' % (S_I2, S_T2))
    s('v_lshrrev_b32 v%d, 4, v%d' % (T + 3, T))
    s('s_and_b32 s%d, s2, 1' % S_HALF)
    s('v_lshl_add_u32 v%d, s%d, 4, v%d' % (T + 5, S_WV, T + 1))
    s('s_bfe_u32 s%d, s2, 0x20001' % S_P)
    s('v_mul_u32_u24 v%d, %d, v%d' % (T + 5, XS, T + 5))
    s('s_lshl2_add_u32 s%d, s%d, s%d' % (S_RB, S_P, S_I2))
    s('v_xor_b32 v%d, v%d, v%d' % (T + 6, T, T + 3))
    s('s_lshl1_add_u32 s%d, s%d, s%d' % (S_T2, S_I2, S_ROLE))
    s('v_and_b32 v%d, 7, v%d' % (T + 6, T + 6))
    s('s_add_u32 s%d, s%d, s%d' % (S_T2, S_T2, S_P))
    s('v_lshl_add_u32 v%d, v%d, 4, v%d' % (V_X0, T + 6, T + 5))
    s('s_mul_i32 s%d, s%d, 3' % (S_T0, S_HALF))
    s('v_xor_b32 v%d, 64, v%d' % (V_X1, V_X0))
    s('s_add_u32 s%d, s%d, s%d' % (S_T2, S_T2, S_T0))
    s('v_add_u32 v%d, %d, v%d' % (V_X1, 8 * XS - 1024, V_X1))
    s('s_mul_i32 s%d, s%d, 37' % (S_T1, S_T2))
    s('v_lshlrev_b32 v%d, 2, v%d' % (T + 4, T + 3))
    s('s_lshr_b32 s%d, s%d, 8' % (S_T1, S_T1))
    s('v_xor_b32 v%d, v%d, v%d' % (T + 4, T, T + 4))
    s('s_mul_i32 s%d, s%d, 7' % (S_T1, S_T1))
    s('s_sub_u32 s%d, s%d, s%d' % (S_T2, S_T2, S_T1))
    if OPT['rot1'] == 0:
        s('s_mov_b32 s%d, 0' % S_T2)
    elif OPT['rot1'] == 2:
        s('s_lshr_b32 s%d, s%d, 1' % (S_T2, S_T2))
    elif OPT['rot1'] == 3:
        s('s_and_b32 s%d, s%d, 4' % (S_T2, S_T2))
    elif OPT['rot1'] == 4:
        s('s_and_b32 s%d, s%d, 6' % (S_T2, S_T2))
    s('s_mul_i32 s%d, s%d, %d' % (S_H, S_RB, 128 * XS))
    s('s_lshl_b32 s%d, s%d, 7' % (S_KX, S_T2))
    s('s_add_u32 s%d, s%d, s%d' % (S_KX, S_KX, S_H))
    s('s_and_b32 s%d, s%d, 3' % (S_RW, S_WV))
    s('s_lshr_b32 s%d, s%d, 2' % (S_G, S_WV))
    s('s_lshl_b32 s%d, s%d, 11' % (S_M0X, S_WV))
    s('s_lshl_b32 s%d, s%d, 11' % (S_M0W, S_RW))
    srd(s, SX, 2048 * XS)
    s('s_add_u32 s%d, s%d, s%d' % (S_T0, S_T0, S_ROLE))
    s('s_lshl_b32 s%d, s%d, 7' % (S_T0, S_T0))
    s('s_add_u32 s%d, s%d, %d' % (S_T0, S_T0, XS - 512))
    s('s_lshl2_add_u32 s%d, s%d, s%d' % (S_P, S_HALF, S_ROLE))
    s('s_and_b32 s%d, s%d, 1' % (S_PEND, S_ROLE))
    s('s_lshl_b32 s%d, s%d, 6' % (S_PEND, S_PEND))
    s('s_movk_i32 s%d, %d' % (S_LAST, WQS))
    s('s_cmp_lt_u32 s%d, 4' % S_ROLE)
    s('s_cselect_b32 s%d, %d, s%d' % (S_LAST, W1S, S_LAST))
    s('s_cselect_b32 s%d, s%d, s%d' % (S_P, S_P, S_HALF))
    s('s_cselect_b32 s%d, s%d, 0' % (S_PEND, S_PEND))
    s('s_mul_i32 s%d, s%d, 448' % (S_T1, S_P))
    s('s_add_u32 s%d, s%d, s%d' % (S_T1, S_T1, S_PEND))
    s('s_lshl_b32 s%d, s%d, 6' % (S_RO, S_LAST))
    s('s_mul_i32 s%d, s%d, s%d' % (S_KW, S_T2, S_RO))
    s('s_mul_i32 s%d, s%d, 448' % (SW + 2, S_LAST))
    s('s_mov_b32 s%d, 0x20000' % (SW + 3))
    s('s_lshl_b32 s%d, s%d, 1' % (S_T2, S_RW))
    s('s_add_u32 s%d, s%d, %d' % (S_FL, S_M0X, kv_slot(1)))
    s('s_bitcmp1_b32 0x70, s%d' % S_ROLE)
    s('s_cselect_b32 s%d, s%d, s%d' % (S_T0, S_T0, S_T1))
    s('s_cselect_b32 s%d, s%d, s%d' % (S_T2, S_WV, S_T2))
    s('s_cselect_b32 s%d, s%d, s%d' % (S_FL, S_FL, S_M0W))
    s('s_cselect_b32 s%d, 4, 3' % S_T1)
    s('s_cselect_b32 s%d, 4, 7' % S_T3)
    s('s_cselect_b32 s%d, 1, s%d' % (S_SPIN, S_G))
    s('v_lshrrev_b32 v%d, s%d, v%d' % (T + 5, S_T1, T))
    s('s_lshl_b32 s%d, s%d, 14' % (S_T3, S_T3))
    s('v_lshl_add_u32 v%d, s%d, 3, v%d' % (T + 5, S_T2, T + 5))
    s('s_add_u32 m0, s%d, s%d' % (S_T3, S_M0X))
    s('v_bfe_u32 v%d, v%d, 0, s%d' % (T + 6, T + 4, S_T1))
    s('s_lshr_b32 s%d, s%d, s%d' % (S_T1, S_RO, S_T1))
    s('v_mul_u32_u24 v%d, s%d, v%d' % (T + 5, S_LAST, T + 5))
    s('s_sub_u32 s%d, s%d, 1024' % (S_T1, S_T1))
    s('v_lshl_add_u32 v%d, v%d, 4, s%d' % (T + 6, T + 6, S_T0))
    s('v_add_u32 v%d, v%d, v%d' % (V_W, T + 5, T + 6))
    s('s_cmp_lt_u32 s%d, 4' % S_ROLE)
    s('v_add_u32 v%d, s%d, v%d' % (V_WB, S_T1, V_W))
    s('s_waitcnt lgkmcnt(0)')
    estamp(s, 'ka')
    assert XSLOT[0] == 7 << 14 and kv_slot(0) == 4 << 14
    s('buffer_load_dwordx4 v%d, %s, s%d offen lds' % (V_X0, sr(SX, 4), S_KX), 't0')
    s('s_cselect_b64 %s, %s, %s' % (sr(SW, 2), sr(S_HI, 2), sr(SW, 2)))
    s('buffer_load_dwordx4 v%d, %s, s%d offen offset:1024 lds' % (V_X1, sr(SX, 4), S_KX), 't0')
    s('s_mov_b32 m0, s%d' % S_FL)
    s('s_cmp_eq_u32 s%d, 0' % S_SPIN)
    s('s_cbranch_scc1 L_now')
    w = Seg('prow')
    w('buffer_load_dwordx4 v%d, %s, s%d offen lds' % (V_W, sr(SW, 4), S_KW), 't0')
    w('buffer_load_dwordx4 v%d, %s, s%d offen offset:1024 lds' % (V_WB, sr(SW, 4), S_KW), 't0')
    e = Seg('proe')
    e('L_now:')
    estamp(e, 't0')
    for d, off in ((SWS, 80), (SB1, 40), (SDBG, 72), (SW2, 48), (SWO, 16), (SB2, 56), (SOUT, 64)):
        e('s_load_dwordx2 %s, s[0:1], %d' % (sr(d, 2), off))
    essential(e)
    e('s_cmp_ge_u32 s%d, 7' % S_ROLE)
    e('s_cbranch_scc1 L_q')
    e('s_cmp_ge_u32 s%d, 4' % S_ROLE)
    e('s_cbranch_scc1 L_kv')
    return s, w, e


def zipper(a, b):
    out = []
    for k in range(max(len(a), len(b))):
        out += a[k:k + 1] + b[k:k + 1]
    return out


def essential(z):
    T = V_T
    k, s = Seg(), Seg()
    k('s_add_u32 s%d, s%d, %d' % (S_T2, S_H, XS))
    for c in range(1, 7):
        k('s_add_u32 s%d, s%d, 128' % (S_KX + c, S_KX + c - 1))
        k('s_add_u32 s%d, s%d, s%d' % (S_KW + c, S_KW + c - 1, S_RO))
        k('s_cmp_eq_u32 s%d, s%d' % (S_KX + c, S_T2))
        k('s_cselect_b32 s%d, s%d, s%d' % (S_KX + c, S_H, S_KX + c))
        k('s_cselect_b32 s%d, 0, s%d' % (S_KW + c, S_KW + c))
    k('s_mov_b32 s%d, 0x3f803f80' % S_ONES)
    s('v_lshlrev_b32 v%d, 4, v%d' % (V_L16, T))
    s('v_and_b32 v%d, 1, v%d' % (T + 7, T + 3))
    s('v_and_b32 v%d, 31, v%d' % (T + 8, T))
    s('v_lshrrev_b32 v%d, 5, v%d' % (T + 9, T))
    s('v_bfe_u32 v%d, v%d, 2, 2' % (T + 10, T))
    s('v_and_b32 v%d, 3, v%d' % (T + 11, T))
    s('v_lshl_add_u32 v%d, s%d, 1, v%d' % (T + 12, S_RW, T + 9))
    s('v_bfe_u32 v%d, v%d, 1, 3' % (T + 5, T))
    s('v_xor_b32 v%d, v%d, v%d' % (T + 5, T + 12, T + 5))
    s('v_lshl_add_u32 v%d, s%d, 5, v%d' % (T + 13, S_RW, T + 8))
    s('v_lshlrev_b32 v%d, 7, v%d' % (V_XA, T + 13))
    s('v_lshl_add_u32 v%d, v%d, 4, v%d' % (V_XA, T + 5, V_XA))
    for j in range(1, 4):
        s('v_xor_b32 v%d, %d, v%d' % (V_XA + j, j << 5, V_XA))
    s('v_lshl_add_u32 v%d, v%d, 3, v%d' % (T + 12, T + 12, T + 10))
    s('v_lshl_add_u32 v%d, v%d, 2, v%d' % (T + 14, T + 7, T + 11))
    s('v_and_b32 v%d, 1, v%d' % (T + 5, T + 10))
    s('v_mov_b32 v%d, 0x3f803f80' % (T + 6))
    s('v_cmp_eq_u32 vcc, v%d, v%d' % (T + 5, T + 7))
    for j in range(4):
        s('v_mov_b32 v%d, 0' % (V_ST + j))
    for j in range(4):
        s('v_cndmask_b32 v%d, 0, v%d, vcc' % (V_SEL + j, T + 6))
    s('v_mov_b32 v%d, 0x%x' % (V_FLO, OOB))
    s('v_cmp_eq_u32 vcc, 0, v%d' % T)
    s('v_mov_b32 v%d, 1' % V_ONE)
    s('v_mov_b32 v%d, 0' % (V_EXW + 1))
    s('v_cndmask_b32 v%d, v%d, 0, vcc' % (V_FLO, V_FLO))
    z.extend(zipper(list(k), list(s)))


def deferred(kv):
    s, T = Seg(), V_T
    for k in EARLY:
        if OPT['diag'] and k in STAMPS:
            s('v_readfirstlane_b32 s%d, v%d' % (S_KA + 2 * STAMPS.index(k), 120 + EARLY.index(k)))
    srd(s, SW2, 1792 * XS)
    srd(s, SWO, 448 * XS)
    srd(s, SOUT, 2048 * XS)
    srd(s, SB2, 448 * 2)
    s('s_mov_b32 s%d, %s' % (S_EPS, f32(1e-6)))
    s('s_mov_b32 s%d, %s' % (S_L2E, f32(LOG2E)))
    s('s_mov_b32 s%d, 0' % S_HI)
    s('s_mov_b32 s%d, -1' % (S_HI + 1))
    if kv:
        s('s_mov_b32 s%d, 0xf0000000' % S_PAD)
        s('s_mov_b32 s%d, 0xf0000000' % (S_PAD + 1))
        s('v_mov_b32 v%d, 0' % (V_EXW + 3))
    s('s_mov_b32 s%d, 0' % S_SPIN)
    s('v_and_b32 v%d, 7, v%d' % (T + 4, T + 4))
    s('v_mul_u32_u24 v%d, %d, v%d' % (V_B2, XS, T + 1))
    s('v_lshl_add_u32 v%d, v%d, 4, v%d' % (V_B2, T + 4, V_B2))
    if kv:
        s('s_mov_b32 s%d, %d' % (S_T1, M_CS))
    else:
        s('s_lshl_b32 s%d, s%d, 9' % (S_T1, S_G))
        s('s_add_u32 s%d, s%d, %d' % (S_T1, S_T1, M_CS))
    s('v_lshl_add_u32 v%d, v%d, 4, s%d' % (V_CSR, T + 8, S_T1))
    s('v_lshl_add_u32 v%d, s%d, 2, v%d' % (V_CSW, S_RW, V_CSR))
    s('s_lshl2_add_u32 s%d, s%d, %d' % (S_T1, S_WV, M_SY))
    s('v_mov_b32 v%d, s%d' % (V_PA, S_T1))
    for k in ((0, 128, 160, 192, 224) if kv else (0,)):
        s('ds_write_b32 v%d, v%d offset:%d' % (V_PA, V_EXW + 1, k))
    if not kv:
        s('v_lshlrev_b32 v%d, 4, v%d' % (V_EXR, T + 13))
        s('v_add_u32 v%d, %d, v%d' % (V_EXR, M_ST, V_EXR))
        s('v_lshl_add_u32 v%d, v%d, 3, v%d' % (V_EXR + 1, T + 9, V_EXR))
    s('s_and_b32 s%d, s2, 7' % S_T1)
    s('s_lshl2_add_u32 s%d, s%d, s%d' % (S_I2, S_T1, S_I2))
    s('s_lshl1_add_u32 s%d, s%d, s%d' % (S_T1, S_I2, S_ROLE))
    s('s_and_b32 s%d, s%d, 3' % (S_RO, S_T1))
    s('s_and_b32 s%d, s%d, 4' % (S_T1, S_T1))
    s('s_lshl2_add_u32 s%d, s%d, s%d' % (S_RO, S_T1, S_RO))
    if not OPT['rot2']:
        s('s_mov_b32 s%d, 0' % S_RO)
    return s


def tlb_warm(s):
    if not OPT['tlb']:
        return
    T = V_T
    s('s_cmp_eq_u32 s%d, 0' % S_WV)
    s('s_cselect_b32 s%d, 128, 0x%x' % (S_T1, OOB))
    for r in (SDBG, SW2, SWO, SB2, SOUT):
        s('buffer_load_dword v%d, v%d, %s, s%d offen' % (T + 15, V_FLO, sr(r, 4), S_T1))
    s('v_lshlrev_b32 v%d, 17, v%d' % (T + 5, V_L16))
    s('v_min_u32 v%d, 0x%x, v%d' % (T + 5, 0x9f0000, T + 5))
    s('buffer_load_dword v%d, v%d, %s, s%d offen' % (T + 15, T + 5, sr(SWS, 4), S_T1))


def dma_x(s, c, addr, tag):
    s('s_add_u32 m0, s%d, %d' % (S_M0X, addr))
    s('buffer_load_dwordx4 v%d, %s, s%d offen lds' % (V_X0, sr(SX, 4), S_KX + c), tag)
    s('buffer_load_dwordx4 v%d, %s, s%d offen offset:1024 lds' % (V_X1, sr(SX, 4), S_KX + c), tag)


def dma_w(s, m0base, c, addr, tag):
    s('s_add_u32 m0, s%d, %d' % (m0base, addr))
    s('buffer_load_dwordx4 v%d, %s, s%d offen lds' % (V_W, sr(SW, 4), S_KW + c), tag)
    s('buffer_load_dwordx4 v%d, %s, s%d offen offset:1024 lds' % (V_WB, sr(SW, 4), S_KW + c), tag)


def groups(z):
    out, cur = [], []
    for i in z:
        cur.append(i)
        if i.kind == 'vmem':
            out.append(cur)
            cur = []
    if cur:
        out.append(cur)
    return out


def mix(main, grp, lo=0.0, hi=1.0):
    main = [i for i in main if i is not GAP]
    out, k, n = [], 0, len(main)
    for idx, i in enumerate(main):
        while k < len(grp) and idx >= n * (lo + (hi - lo) * k / len(grp)):
            out.extend(grp[k])
            k += 1
        out.append(i)
    for g in grp[k:]:
        out.extend(g)
    return out


def barrier(z, vm=None, name=None):
    if name:
        stamp(z, name + 'a')
    z.wait(vm=vm, lgkm='all')
    if name:
        stamp(z, name + 'b')
    z('s_barrier')


BLK = [0, 4, 1, 5, 2, 6, 3]


def unit_ks(u):
    return 4 * BLK[u >> 2] + (u & 3)


def unit_loc(u):
    u %= 11
    return (S_QR2, 1, u * 2048) if u < 5 else (S_QR0, 0, (u - 5) * 2048)


def p2_setup(s):
    s('s_lshl_b32 s%d, s%d, 7' % (S_T0, S_ROLE))
    s('s_mul_i32 s%d, s%d, %d' % (S_B2R, S_RW, 448 * XS))
    s('s_add_u32 s%d, s%d, s%d' % (S_B2R, S_B2R, S_T0))
    s('s_mul_i32 s%d, s%d, %d' % (S_WOR, S_RW, 112 * XS))
    s('s_add_u32 s%d, s%d, s%d' % (S_WOR, S_WOR, S_T0))
    s('s_mul_i32 s%d, s%d, %d' % (S_OUTO, S_I2, 64 * XS))
    s('s_add_u32 s%d, s%d, s%d' % (S_OUTO, S_OUTO, S_T0))
    s('s_mul_i32 s%d, s%d, 12288' % (S_QR0, S_RW))
    s('s_lshr_b32 s%d, s%d, 2' % (S_RO3, S_RO))
    s('s_or_b32 s%d, s%d, s%d' % (S_RO3, S_RO3, S_RO))
    s('s_and_b32 s%d, s%d, 7' % (S_RO3, S_RO3))
    s('s_mul_i32 s%d, s%d, 10240' % (S_QR2, S_RW))
    s('s_add_u32 s%d, s%d, %d' % (S_QR2, S_QR2, R2))
    s('s_mul_i32 s%d, s%d, %d' % (S_A, S_I2, 2 * ACT_G))
    s('v_add_u32 v%d, %d, v%d' % (V_B2B, 8 * XS - 1024, V_B2))


def touch_w(s, ffn):
    if not OPT['touch'] & 1:
        return
    T = V_T
    s('s_and_b32 s%d, s%d, 3' % (S_T2, S_ROLE))
    s('s_lshl2_add_u32 s%d, s%d, s%d' % (S_T2, S_RB, S_T2))
    s('s_lshl3_add_u32 s%d, s%d, s%d' % (S_T2, S_T2, S_WV))
    s('s_mul_i32 s%d, s%d, %d' % (S_T2, S_T2, W1S if ffn else WQS))
    s('s_mul_i32 s%d, s%d, %d' % (S_T3, S_HALF, 1792 if ffn else 384))
    s('s_add_u32 s%d, s%d, s%d' % (S_T2, S_T2, S_T3))
    if ffn:
        s('v_min_u32 v%d, 13, v%d' % (T + 2, T))
    else:
        s('v_min_u32 v%d, 11, v%d' % (T + 2, T))
        s('v_lshrrev_b32 v%d, 2, v%d' % (T + 15, T + 2))
        s('v_mad_u32_u24 v%d, v%d, 3, v%d' % (T + 2, T + 15, T + 2))
    s('v_lshlrev_b32 v%d, 7, v%d' % (T + 2, T + 2))
    s('buffer_load_dword v%d, v%d, %s, s%d offen' % (V_EXW, T + 2, sr(SW, 4), S_T2))


def touch_w2(s):
    if not OPT['touch'] & 2:
        return
    T = V_T
    s('s_lshl3_add_u32 s%d, s2, s%d' % (S_T2, S_WV))
    s('s_mul_i32 s%d, s%d, %d' % (S_T2, S_T2, XS))
    s('v_min_u32 v%d, 6, v%d' % (T + 2, T))
    s('v_lshlrev_b32 v%d, 7, v%d' % (T + 2, T + 2))
    s('s_sub_u32 s%d, %d, s%d' % (S_T3, 2047 * XS, S_T2))
    s('buffer_load_dword v%d, v%d, %s, s%d offen' % (V_POLL, T + 2, sr(SW2, 4), S_T2))
    s('buffer_load_dword v%d, v%d, %s, s%d offen' % (V_POLL, T + 2, sr(SWO, 4), S_T3))


def touch_kv(s):
    if not OPT['touch'] & 4:
        return
    T = V_T + 8
    s('s_mul_i32 s%d, s%d, 6' % (S_T2, S_RB))
    s('s_add_u32 s%d, s%d, s%d' % (S_T2, S_T2, S_P))
    s('s_lshl2_add_u32 s%d, s%d, s%d' % (S_T2, S_T2, S_RW))
    s('v_min_u32 v%d, %d, v%d' % (T, 32 * 16, V_L16))
    s('s_mul_i32 s%d, s%d, %d' % (S_T3, S_T2, 33 * 128))
    s('v_lshlrev_b32 v%d, 3, v%d' % (T, T))
    s('buffer_load_dword v%d, v%d, %s, s%d offen' % (T + 1, T, sr(SW2, 4), S_T3))
    s('v_min_u32 v%d, %d, v%d' % (T, 8 * 128, T))
    s('s_mul_i32 s%d, s%d, %d' % (S_T3, S_T2, 9 * 128))
    s('buffer_load_dword v%d, v%d, %s, s%d offen' % (T + 1, T, sr(SWO, 4), S_T3))


def ks_dyn(s, dst, u):
    if u < 24:
        s('s_xor_b32 s%d, s%d, %d' % (dst, S_RO, unit_ks(u)))
    else:
        s('s_and_b32 s%d, s%d, 3' % (dst, S_RO))
        s('s_xor_b32 s%d, s%d, %d' % (dst, dst, unit_ks(u)))


def dma_b2(s, u):
    base, _, off = unit_loc(u)
    if u < 28:
        ks_dyn(s, S_T3, u)
        if OPT['x_hit'] & 2:
            s('s_and_b32 s%d, s%d, 7' % (S_T3, S_T3))
        s('s_add_u32 m0, s%d, %d' % (base, off))
        s('s_mul_i32 s%d, s%d, %d' % (S_T3, S_T3, 16 * XS))
        s('s_add_u32 s%d, s%d, s%d' % (S_T3, S_T3, S_B2R))
    else:
        s('s_xor_b32 s%d, s%d, %d' % (S_T3, S_RO3, u - 28))
        s('s_and_b32 s%d, s%d, 1' % (S_T1, S_T3))
        s('s_mul_i32 s%d, s%d, 7' % (S_T3, S_T3))
        s('s_add_u32 s%d, s%d, s%d' % (S_T3, S_T3, S_T1))
        s('s_add_u32 m0, s%d, %d' % (base, off))
        s('s_mul_i32 s%d, s%d, %d' % (S_T3, S_T3, 2 * XS))
        s('s_add_u32 s%d, s%d, s%d' % (S_T3, S_T3, S_WOR))
    w = SW2 if u < 28 else SWO
    s('buffer_load_dwordx4 v%d, %s, s%d offen lds' % (V_B2, sr(w, 4), S_T3), ('b', u))
    s('buffer_load_dwordx4 v%d, %s, s%d offen offset:1024 lds' % (V_B2B, sr(w, 4), S_T3), ('b', u))


def sync_arrive(s, k):
    s('ds_write_b32 v%d, v%d offset:%d' % (V_PA, V_ONE, k * 32))


def sync_wait(s, k, nw, T):
    j = nspin[0]
    nspin[0] += 1
    s('v_mov_b32 v%d, %d' % (T + 8, M_SY))
    s('L_sy%d:' % j)
    for h in range(nw // 4):
        s('ds_read_b128 %s, v%d offset:%d' % (vr(T + 4 * h, 4), T + 8, k * 32 + h * 16))
    s('s_add_u32 s%d, s%d, 1' % (S_SPIN, S_SPIN))
    s('s_cmp_gt_u32 s%d, 0x%x' % (S_SPIN, SPIN_LIMIT))
    s('s_cbranch_scc1 L_sz%d' % j)
    s.wait(lgkm='all')
    for h in range(1, nw - 1, 2):
        s('v_and_b32 v%d, v%d, v%d' % (T + h, T + h, T + h + 1))
    for h in range(1, nw, 2):
        s('v_and_b32 v%d, v%d, v%d' % (T, T, T + h))
    s('v_readfirstlane_b32 s%d, v%d' % (S_T2, T))
    s('s_cmp_eq_u32 s%d, 0' % S_T2)
    s('s_cbranch_scc1 L_sy%d' % j)
    s('L_sz%d:' % j)
    s.wait(lgkm='all')


def flag(s, off):
    if OPT['fatom']:
        s('buffer_atomic_add v%d, v%d, %s, s%d offen offset:%d sc1' % (V_ONE, V_FLO, sr(SWS, 4), S_FL, off))
    else:
        s('buffer_store_dword v%d, v%d, %s, s%d offen offset:%d sc1' % (V_ONE, V_FLO, sr(SWS, 4), S_FL, off))


def f0_load(s):
    s('buffer_load_dword v%d, v%d, %s, 0 offen sc1' % (V_POLL, V_FLO, sr(SDBG, 4)), 'f0')


def f0_check(s):
    s('v_mov_b32 v%d, 32' % (V_T + 15))
    stamp(s, 'f0a')
    s.wait(vm='f0')
    stamp(s, 'f0b')
    spin_check(s, V_POLL, V_T + 15, V_FLO, SDBG, '0', 1)


def poll_early(s):
    poll_base(s)
    poll_async(s, 0)


def xreg(c, j):
    return V_X + 16 * c + 4 * j


def dots(s, c):
    for j in range(4):
        s.wait(lgkm=[('x', c, j)])
        for r in range(4):
            x = xreg(c, j) + r
            s('v_dot2c_f32_bf16 v%d, s%d, v%d' % (V_ST + (r & 1), S_ONES, x))
            s('v_dot2c_f32_bf16 v%d, v%d, v%d' % (V_ST + 2 + (r & 1), x, x))


def stats_write(s):
    s('v_add_f32 v%d, v%d, v%d' % (V_ST, V_ST, V_ST + 1))
    s('v_add_f32 v%d, v%d, v%d' % (V_ST + 1, V_ST + 2, V_ST + 3))
    s('ds_write_b64 v%d, %s' % (V_EXR + 1, vr(V_ST, 2)))


def stats_final(kind):
    s, T = Seg(), V_T
    s('ds_read_b128 %s, v%d' % (vr(T, 4), V_EXR), 'st')
    s.append(GAP)
    s.wait(lgkm='st')
    s('v_add_f32 v%d, v%d, v%d' % (T, T, T + 2))
    s('v_add_f32 v%d, v%d, v%d' % (T + 1, T + 1, T + 3))
    s('v_mul_f32 v%d, %s, v%d' % (T, f32(1.0 / 448), T))
    s('v_mul_f32 v%d, %s, v%d' % (T + 1, f32(1.0 / 448), T + 1))
    s('v_fma_f32 v%d, -v%d, v%d, v%d' % (T + 1, T, T, T + 1))
    s('v_max_f32 v%d, 0, v%d' % (T + 1, T + 1))
    s('v_cvt_pk_bf16_f32 v%d, v%d, v%d' % (T + 1, T + 1, T + 1))
    s('v_lshlrev_b32 v%d, 16, v%d' % (T + 1, T + 1))
    s('v_add_f32 v%d, %s, v%d' % (T + 1, f32(1e-5), T + 1))
    s('v_cvt_pk_bf16_f32 v%d, v%d, v%d' % (T + 1, T + 1, T + 1))
    s('v_lshlrev_b32 v%d, 16, v%d' % (T + 1, T + 1))
    s('v_sqrt_f32 v%d, v%d' % (T + 1, T + 1))
    s('v_cvt_pk_bf16_f32 v%d, -v%d, -v%d' % (T, T, T))
    s('v_cvt_pk_bf16_f32 v%d, v%d, 0' % (T + 1, T + 1))
    s('v_cndmask_b32 v%d, v%d, 0, %s' % (V_EXR, T, sr(S_HI, 2)))
    s('v_lshlrev_b32 v%d, 16, v%d' % (V_ST + 2, T + 1))
    s('v_rcp_f32 v%d, v%d' % (V_ST + 3, V_ST + 2))
    s('v_cndmask_b32 v%d, v%d, 0, %s' % (V_EXR + 1, T + 1, sr(S_HI, 2)))
    if kind == 'gelu':
        s('v_mul_f32 v%d, %s, v%d' % (V_ST, f32(GC1), V_ST + 3))
        s('v_mul_f32 v%d, v%d, v%d' % (T, V_ST + 3, V_ST + 3))
        s('v_mul_f32 v%d, %s, v%d' % (V_ST + 1, f32(GC3), V_ST + 3))
        s('v_mul_f32 v%d, v%d, v%d' % (V_ST + 1, T, V_ST + 1))
    elif kind == 'phi':
        s('v_mul_f32 v%d, s%d, v%d' % (V_ST, S_L2E, V_ST + 3))
    return s


def ext_parts(acc, off, exw, swap, bias=None, T=V_T + 8):
    r, b, m = Seg(), Seg(), Seg()
    tag = ('cs', id(r))
    r('ds_read_b128 %s, v%d offset:%d' % (vr(T, 4), V_CSR, off), tag)
    b.wait(lgkm=[tag])
    b('v_add_f32 v%d, v%d, v%d' % (T, T, T + 1))
    b('v_add_f32 v%d, v%d, v%d' % (T + 2, T + 2, T + 3))
    b('v_add_f32 v%d, v%d, v%d' % (T, T, T + 2))
    b('v_cvt_pk_bf16_f32 v%d, v%d, v%d' % (T + 1, T, T))
    b('v_lshlrev_b32 v%d, 16, v%d' % (T + 1, T + 1))
    b('v_sub_f32 v%d, v%d, v%d' % (T + 1, T, T + 1))
    b('v_cvt_pk_bf16_f32 v%d, v%d, v%d' % (exw, T, T + 1))
    if bias is not None:
        r('v_mov_b32 v%d, v%d' % (exw + 1, bias))
    x, y = (V_EXR, exw) if swap else (exw, V_EXR)
    m('v_mfma_f32_32x32x8_bf16 %s, %s, %s, %s' % (vr(acc, 16), vr(x, 2), vr(y, 2), vr(acc, 16)))
    KEEP.append(r)
    return r, b, m


KEEP = []


def head(parts, stats=None):
    st = [i for i in stats if i is not GAP] if stats is not None else []
    out = st[:1]
    for p in parts:
        out += p[0]
    out += st[1:]
    for p in parts:
        out += p[1]
    for p in parts:
        out += p[2]
    return out


def epi_rowlane(kind, acc, tag, handoff=False, keep=None):
    s, T = Seg(), V_T
    for grp in range(4):
        a = [acc + 4 * grp + e for e in range(4)]
        t = [T + e for e in range(4)]
        if kind == 'gelu':
            for e in range(4):
                s('v_mul_f32 v%d, v%d, v%d' % (t[e], a[e], a[e]))
            for e in range(4):
                s('v_fma_f32 v%d, v%d, v%d, v%d' % (t[e], t[e], V_ST + 1, V_ST))
            for e in range(4):
                s('v_mul_f32 v%d, v%d, v%d' % (t[e], a[e], t[e]))
            for e in range(4):
                s('v_exp_f32 v%d, v%d' % (t[e], t[e]))
            for e in range(4):
                s('v_fma_f32 v%d, v%d, v%d, v%d' % (t[e], t[e], V_ST + 2, V_ST + 2))
            for e in range(4):
                s('v_rcp_f32 v%d, v%d' % (t[e], t[e]))
            for e in range(4):
                s('v_mul_f32 v%d, v%d, v%d' % (a[e], a[e], t[e]))
        else:
            for e in range(4):
                s('v_mul_f32 v%d, v%d, v%d' % (t[e], a[e], V_ST))
            for e in range(4):
                s('v_exp_f32_e64 v%d, v%d clamp' % (t[e], t[e]))
            for e in range(4):
                s('v_fma_f32 v%d, v%d, v%d, s%d' % (a[e], a[e], V_ST + 3, S_EPS))
            for e in range(4):
                s('v_max_f32 v%d, s%d, v%d' % (a[e], S_EPS, a[e]))
            for e in range(4):
                s('v_add_f32 v%d, v%d, v%d' % (a[e], a[e], t[e]))
        p = acc + 8 * (grp >> 1) + 2 * (grp & 1) if keep is None else keep + 2 * grp
        s('v_cvt_pk_bf16_f32 v%d, v%d, v%d' % (p, a[0], a[1]))
        s('v_cvt_pk_bf16_f32 v%d, v%d, v%d' % (p + 1, a[2], a[3]))
        if kind == 'phi' and grp == 3:
            s('v_cndmask_b32 v%d, v%d, 0, %s' % (p, p, sr(S_HI, 2)))
            s('v_cndmask_b32 v%d, v%d, 0, %s' % (p + 1, p + 1, sr(S_HI, 2)))
        if grp & 1 and keep is None:
            f = grp >> 1
            if handoff:
                s('ds_write_b128 v%d, %s offset:%d' % (V_RA, vr(acc + 8 * f, 4), f * 1024))
                continue
            s('buffer_store_dwordx4 %s, v%d, %s, s%d offen offset:%d sc1' % (vr(acc + 8 * f, 4), V_L16, sr(SWS, 4), S_H, f * 1024), tag)
    return s


def lc_role(ffn):
    kind = 'gelu' if ffn else 'phi'
    nm = 'f' if ffn else 'q'
    s, T = Seg(nm), V_T
    if not ffn:
        s('L_q:')
    if OPT['twat'] < -1:
        touch_w(s, ffn)
    s('s_mul_i32 s%d, s%d, %d' % (S_T1, S_G, 64 if ffn else 56))
    s('v_lshrrev_b32 v%d, 1, v%d' % (T + 6, T + 10))
    s('v_lshl_add_u32 v%d, v%d, 3, s%d' % (T + 5, T + 14, S_T1))
    s('v_lshlrev_b32 v%d, 6, v%d' % (T + 6, T + 6))
    s('v_xor_b32 v%d, v%d, v%d' % (T + 5, T + 5, T + 6))
    s('v_lshl_add_u32 v%d, v%d, 7, v%d' % (V_WA, T + 12, T + 5))
    for j in range(1, 4):
        s('v_xor_b32 v%d, %d, v%d' % (V_WA + j, j << 11, V_WA))
    srd(s, SWS, WS_BYTES)
    srd(s, SDBG, 256)
    s('s_waitcnt lgkmcnt(0)')
    if not ffn:
        s('s_lshl1_add_u32 s%d, s%d, s%d' % (S_T2, S_RB, S_HALF))
        s('s_mul_i32 s%d, s%d, 5' % (S_T1, S_T2))
        s('s_add_u32 s%d, s%d, s%d' % (S_T1, S_T1, S_WV))
        s('s_lshl_b32 s%d, s%d, 10' % (S_T1, S_T1))
        s('s_add_u32 s%d, s%d, 0x%x' % (S_T1, S_T1, KV_OFF))
        s('s_lshl_b32 s%d, s%d, 10' % (S_LAST, S_T2))
        s('s_add_u32 s%d, s%d, 0x%x' % (S_LAST, S_LAST, ST_OFF))
        s('s_cmp_lt_u32 s%d, 5' % S_WV)
        s('s_cselect_b32 s%d, s%d, 0x%x' % (S_T1, S_T1, OOB))
        s('s_cmp_eq_u32 s%d, 5' % S_WV)
        s('s_cselect_b32 s%d, s%d, s%d' % (S_T1, S_LAST, S_T1))
        s('buffer_store_dwordx4 %s, v%d, %s, s%d offen sc1' % (vr(V_ST, 4), V_L16, sr(SWS, 4), S_T1), 'zero')
    s('s_cmp_eq_u32 s%d, 1' % S_G)
    s('s_cbranch_scc1 L_%sb' % nm)
    UA, UB = [([(0,), (2,)], [(1,), (3, 4)]), ([(), ()], [(0, 1), (2, 3, 4)]), ([(0, 1), (3,)], [(2,), (4,)])][OPT['ub']]
    step = 128 if ffn else 112
    region = [R0, R1, R0, R1]
    acc = V_ACC

    def stream(g):
        z = Seg(nm + 'ab'[g])
        if g:
            z('L_%sb:' % nm)
        xa = Rebase([V_XA + j for j in range(4)], 0, 0)
        wa = Rebase([V_WA + j for j in range(4)], 0, 512)

        def triple(t, c):
            dma_x(t, c, XSLOT[c], ('t', c))
            if g:
                dma_w(t, S_M0W, c, R0 + c * 8192, ('t', c))

        def lc(t, q, c):
            dma_w(t, S_M0W, c, region[q] + c * 8192, ('l', q, c))

        def wread(t, q, c, j):
            o = wa.off(t, region[q] + c * 8192)
            for u in range(2):
                t('ds_read_b64_tr_b16 %s, v%d offset:%d' % (vr(V_WF + 4 * j + 2 * u, 2), V_WA + j, o + u * 512), ('w', q, c, j))

        def xread(t, c, j):
            o = xa.off(t, XSLOT[c])
            t('ds_read_b128 %s, v%d offset:%d' % (vr(xreg(c, j), 4), V_XA + j, o), ('x', c, j))

        def kstep(q, c, j):
            t = Seg()
            t.wait(lgkm=[('w', q, c, j)])
            first = c == 0 and j == 0
            t('v_mfma_f32_32x32x16_bf16 %s, %s, %s, %s' % (vr(acc, 16), vr(V_WF + 4 * j, 4), vr(xreg(c, j), 4), '0' if first else vr(acc, 16)))
            if j == 0:
                t('v_mfma_f32_16x16x32_bf16 %s, %s, %s, %s' % (vr(V_CS, 4), vr(V_SEL, 4), vr(V_WF + 4 * j, 4), '0' if first else vr(V_CS, 4)))
            if c < 6:
                wread(t, q, c + 1, j)
            return t

        def preread(t, q):
            for j in range(4):
                wread(t, q, 0, j)

        def gemm(t, q, fill=(), extra=None):
            t('s_setprio 1')
            slots = [kstep(q, c, j) for c in range(7) for j in range(4)]
            for k, gi in enumerate(groups(extra) if extra is not None else []):
                slots[min(1 + OPT['gsp'] * k, 27)].extend(gi)
            slots[26]('ds_write_b32 v%d, v%d' % (V_CSW, V_CS))
            t.extend(interleave(slots, list(fill), 0, 20))

        def next_col(t, last=False):
            for r in (V_W, V_WB):
                if last and ffn:
                    t('v_add_u32 v%d, s%d, v%d' % (r, S_LAST, r))
                else:
                    t('v_add_u32 v%d, %d, v%d' % (r, step, r))

        def epi(t, q, extra=None, pre=None, handoff=False, hi=0.85, keep=False, nxt=None):
            grp = groups(extra) if extra is not None else []
            t('s_setprio 2')
            t.extend(head([ext_parts(acc, 0, V_EXW, False, V_B1 + q if ffn else None)], pre))
            if not keep:
                t('s_setprio %d' % OPT['eprio'])
            stamp(t, 'x%d' % (2 * q + g + 1))
            for gi in grp[:2]:
                t.extend(gi)
            body = mix(epi_rowlane(kind, acc, ('h', q), handoff, None if ffn else V_PQ + 8 * q), grp[2:], 0.03, hi)
            if nxt is not None:
                r = Seg()
                if ffn and not g and nxt == 3:
                    for k in range(4):
                        r('v_xor_b32 v%d, s%d, v%d' % (V_WA + k, S_PEND, V_WA + k))
                preread(r, nxt)
                body = mix(body, [[i] for i in r], 0.55, 0.95) if OPT['pmix'] else body + list(r)
            t.extend(body)
            if ffn:
                t('s_add_u32 s%d, s%d, 4096' % (S_H, S_H))

        def duty(q, chunks, units=(), step_col=True):
            d = Seg()
            if step_col:
                next_col(d, q == 3)
            for k in chunks:
                lc(d, q, k)
            if ffn:
                for u in units:
                    dma_b2(d, u)
            return d

        late = deferred(False)
        late('s_lshl2_add_u32 s%d, s%d, s%d' % (S_H, S_RB, S_RW))
        late('s_mul_i32 s%d, s%d, %d' % (S_H, S_H, ACT_G))
        late('s_add_u32 s%d, s%d, %d' % (S_H, S_H, g * 2048 + (0 if ffn else 112 * 1024)))
        late('s_lshl_b32 s%d, s%d, %d' % (S_T1, S_T0 if ffn else S_HALF, 5 if ffn else 14))
        late('s_add_u32 s%d, s%d, s%d' % (S_H, S_H, S_T1))
        if ffn:
            late('s_add_u32 s%d, s%d, %d' % (S_T1, S_M0W, HND))
            late('v_add_u32 v%d, s%d, v%d' % (V_RA, S_T1, V_L16))
            late('s_mul_i32 s%d, s%d, -8' % (S_LAST, S_PEND))
            late('s_add_u32 s%d, s%d, 128' % (S_LAST, S_LAST))
            srd(late, SB1, 1792 * 2)
            late('v_lshlrev_b32 v%d, 1, v%d' % (T + 5, T + 8))
            for q in range(3):
                late('buffer_load_ushort v%d, v%d, %s, s%d offen offset:%d' % (V_B1 + q, T + 5, sr(SB1, 4), S_T0, q * 128 + g * 64), 'b1')
            if not g:
                late('s_mul_i32 s%d, s%d, -7' % (S_T1, S_PEND))
                late('s_add_u32 s%d, s%d, s%d' % (S_T1, S_T1, S_T0))
                late('s_add_u32 s%d, s%d, 384' % (S_T1, S_T1))
                late('buffer_load_ushort v%d, v%d, %s, s%d offen' % (V_B1 + 3, T + 5, sr(SB1, 4), S_T1), 'b1')
        if g:
            late('s_mov_b32 s%d, 0x%x' % (S_FL, OOB))
        else:
            late('s_lshr_b32 s%d, s%d, 1' % (S_T1, S_P) if ffn else 's_lshl_b32 s%d, s%d, 1' % (S_T1, S_HALF))
            late('s_lshl2_add_u32 s%d, s%d, s%d' % (S_T1, S_RB, S_T1))
            late('s_mul_i32 s%d, s%d, %d' % (S_FL, S_T1, FL_G))
            late('s_lshl1_add_u32 s%d, s%d, s%d' % (S_FL, S_PEND, S_FL))
            late('s_lshl_b32 s%d, s%d, 28' % (S_T1, S_RW))
            late('s_add_u32 s%d, s%d, s%d' % (S_FL, S_FL, S_T1))
            late('s_add_u32 s%d, s%d, 0x%x' % (S_FL, S_FL, FL_OFF))
        NL = OPT['nlate']

        def some(k):
            return late[len(late) * k // NL:len(late) * (k + 1) // NL] if k < NL else []

        triple(z, 1)
        estamp(z, 't1')
        z.extend(some(0))
        if OPT['tat'] < -1:
            touch_w2(z)
        z('s_barrier')
        if g:
            z('s_setprio 1')
        triple(z, 2)
        for c in range(-1, 7):
            if c < 6:
                barrier(z, ['t0', 'zero'] if c < 0 else [('t', c + 1)], 's%d' % c if c >= 0 else 'pre')
            if c < 0:
                stamp(z, 1)
                if not ffn and not g:
                    z('s_lshl_b32 s%d, s%d, 28' % (S_T2, S_WV))
                    z('buffer_atomic_add v%d, v%d, %s, s%d offen sc1' % (V_ONE, V_FLO, sr(SDBG, 4), S_T2))
            d = Seg()
            if c < 3:
                triple(d, c + 4)
            if c == OPT['tat']:
                touch_w2(d)
            if c == 3:
                next_col(d)
            for k in {3: ([], [0]), 4: ([], [1]), 5: ([3], [2])}.get(c, ([], []))[g]:
                lc(d, 1, k)
            if c == OPT['twat']:
                touch_w(d, ffn)
            if g:
                if c == 6:
                    break
                for j in range(4):
                    xread(z, c + 1, j)
                z.extend(mix(some(c + 2), groups(d)))
                if c == 5:
                    preread(z, 0)
                dots(z, c + 1)
            else:
                for j in range(4):
                    if c == 6:
                        z.wait(lgkm=[('x', c, j)])
                    if c >= 0:
                        z.extend(kstep(0, c, j))
                    else:
                        wread(z, 0, 0, j)
                    if c < 6:
                        xread(z, c + 1, j)
                z.extend(mix(some(c + 2), groups(d)))
        if g:
            stats_write(z)
            barrier(z, [('l', 1, 0), 'b1'])
        else:
            z('ds_write_b32 v%d, v%d' % (V_CSW, V_CS))
            barrier(z, 'b1')
        stamp(z, 2)
        if not g:
            d = Seg()
            if not ffn:
                d('v_and_b32 v%d, 0xffff, v%d' % (V_XA, V_EXR))
                d('v_lshl_or_b32 v%d, v%d, 16, v%d' % (V_XA, V_EXR + 1, V_XA))
                d('v_lshrrev_b32 v%d, 2, v%d' % (V_XA + 1, V_L16))
                d('v_lshl_add_u32 v%d, s%d, 7, v%d' % (V_XA + 1, S_RW, V_XA + 1))
                d('v_cndmask_b32 v%d, v%d, v%d, %s' % (V_XA + 1, V_XA + 1, V_FLO, sr(S_HI, 2)))
                d('buffer_store_dword v%d, v%d, %s, s%d offen sc1' % (V_XA, V_XA + 1, sr(SWS, 4), S_LAST))
            f0_load(d)
            NE = OPT['ne']
            epi(z, 0, d, pre=stats_final(kind), nxt=1)
            barrier(z, [('l', 1, 3)], 'e1')
            stamp(z, 'h1')
            d = Seg()
            if ffn:
                p2_setup(d)
            gemm(z, 1, d, duty(2, range(NE, 5)))
            f0_check(z)
            barrier(z, [('h', 0)], 'e2')
            stamp(z, 'h2')
            epi(z, 1, duty(0, (), UA[0], False), nxt=2)
            barrier(z, [('l', 2, 4)], 'e3')
            stamp(z, 3)
            if ffn:
                flag(z, 0)
            gemm(z, 2, extra=duty(3, range(NE, 5)))
            barrier(z, [('h', 1)], 'e4')
            stamp(z, 'h4')
            epi(z, 2, duty(0, (), UA[1], False), nxt=3)
            barrier(z, [('l', 3, 4)], 'e5')
            stamp(z, 4)
            if ffn:
                flag(z, 256)
            gemm(z, 3, extra=duty(0, (), (8, 9, 10), False))
            barrier(z, [('b', u) for u in UA[1]], 'e6')
            stamp(z, 5)
            if ffn:
                z('ds_read_b128 %s, v%d' % (vr(V_WF, 4), V_RA), 'hnd')
                z('ds_read_b128 %s, v%d offset:1024' % (vr(V_WF + 4, 4), V_RA), 'hnd')
                z('s_sub_u32 s%d, s%d, 2048' % (S_T0, S_H))
                z('s_cmp_eq_u32 s%d, 0' % S_PEND)
                z('s_cselect_b32 s%d, 0, %d' % (S_T1, 3 * 4096 + 2048))
                z('s_sub_u32 s%d, s%d, s%d' % (S_H, S_H, S_T1))
                d = Seg()
                d.wait(lgkm='hnd')
                for f in range(2):
                    d('buffer_store_dwordx4 %s, v%d, %s, s%d offen offset:%d sc1' % (vr(V_WF + 4 * f, 4), V_L16, sr(SWS, 4), S_T0, f * 1024), 'h5')
                epi(z, 3, d, keep=True)
                z.wait(vm=[('h', 3)])
                sync_arrive(z, 0)
                sync_wait(z, 0, 4, T)
                flag(z, 512)
                stamp(z, 6)
                z('s_branch L_p2a')
            else:
                epi(z, 3)
                z('s_barrier')
                z('s_branch L_qo')
            return z
        gemm(z, 0, stats_final(kind), duty(1, (4, 5, 6), (), False))
        barrier(z, [('l', 1, 6)], 'e1')
        stamp(z, 'h1')
        for q in (1, 2):
            epi(z, q - 1, duty(q + 1, range(OPT['ne'])), nxt=q)
            barrier(z, [('l', q + 1, 0)], 'e%d' % (2 * q))
            stamp(z, 'h%d' % (2 * q))
            d = duty(q + 1, (5, 6), (), False)
            if ffn and q == 1:
                p2_setup(d)
            d.extend(duty(0, (), UB[q - 1], False))
            gemm(z, q, extra=d)
            barrier(z, [('l', q + 1, 6)], 'e%d' % (2 * q + 1))
            stamp(z, q + 2)
        if ffn:
            d = Seg()
            poll_early(d)
            for u in range(5, 8):
                dma_b2(d, u)
            epi(z, 2, d, handoff=True, hi=1.0)
            barrier(z, None, 'e6')
            z('s_branch L_p2b')
        else:
            epi(z, 2, nxt=3)
            barrier(z)
            stamp(z, 5)
            gemm(z, 3)
            barrier(z)
            epi(z, 3)
        return z

    return s, stream(0), stream(1)


def q_out():
    s, T = Seg('qo'), V_T
    NUM, KF, RAW = V_X, V_X + 64, V_X + 96
    s('L_qo:')
    stamp(s, 6)
    s('s_lshl3_add_u32 s%d, s%d, s%d' % (S_T0, S_HALF, S_WV))
    s('s_lshl_b32 s%d, s%d, 7' % (S_PL, S_T0))
    s('s_add_u32 s%d, s%d, 0x%x' % (S_PL, S_PL, FKV_OFF))
    s('s_lshl_b32 s%d, s%d, 12' % (S_T0, S_T0))
    s('s_add_u32 s%d, s%d, 0x%x' % (S_T0, S_T0, KV_OFF))
    s('v_lshrrev_b32 v%d, 2, v%d' % (T, V_L16))
    s('s_add_u32 s%d, s%d, %d' % (S_T1, S_M0X, R2))
    s('v_add_u32 v%d, s%d, v%d' % (T + 1, S_T1, V_L16))
    s('s_lshl_b32 s%d, s%d, 11' % (S_T1, S_G))
    s('s_add_u32 s%d, s%d, %d' % (S_T1, S_T1, R2))
    s('v_add_u32 v%d, s%d, v%d' % (T + 2, S_T1, V_L16))
    poll_check(s, 0, 16, sync=True, atomic=OPT['qatom'])
    stamp(s, 7)
    for r in range(16):
        s('buffer_load_dword v%d, v%d, %s, s%d offen offset:%d sc1' % (RAW + r, T, sr(SWS, 4), S_T0, r * 256), ('kv', r >> 3))
    for f in range(2):
        s.wait(vm=[('kv', f)])
        for k in range(4):
            s('v_cvt_pk_bf16_f32 v%d, v%d, v%d' % (RAW + 8 * f + k, RAW + 8 * f + 2 * k, RAW + 8 * f + 2 * k + 1))
        s('ds_write_b128 v%d, %s offset:%d' % (T + 1, vr(RAW + 8 * f, 4), f * 1024))
    barrier(s)
    stamp(s, 8)
    for q in range(4):
        for f in range(2):
            s('ds_read_b128 %s, v%d offset:%d' % (vr(KF + 8 * q + 4 * f, 4), T + 2, q * 4096 + f * 1024), ('kf', q, f))
    for q in range(4):
        for f in range(2):
            s.wait(lgkm=[('kf', q, f)])
            s('v_mfma_f32_32x32x16_bf16 %s, %s, %s, %s' % (vr(NUM + 16 * q, 16), vr(KF + 8 * q + 4 * f, 4), vr(V_PQ + 8 * q + 4 * f, 4), vr(NUM + 16 * q, 16) if f else '0'))
    for p in range(2):
        for q in (2 * p, 2 * p + 1):
            s('v_add_f32 v%d, s%d, v%d' % (T + 4 + 2 * q, S_EPS, NUM + 16 * q + 12))
            s('v_add_f32 v%d, s%d, v%d' % (T + 5 + 2 * q, S_EPS, NUM + 16 * q + 12))
        for q in (2 * p, 2 * p + 1):
            s('v_permlane32_swap_b32 v%d, v%d' % (T + 4 + 2 * q, T + 5 + 2 * q))
        for q in (2 * p, 2 * p + 1):
            s('v_rcp_f32 v%d, v%d' % (T + 5 + 2 * q, T + 5 + 2 * q))
        for q in (2 * p, 2 * p + 1):
            s('v_cndmask_b32 v%d, v%d, 0, %s' % (T + 4 + 2 * q, T + 5 + 2 * q, sr(S_HI, 2)))
        for q in (2 * p, 2 * p + 1):
            n = NUM + 16 * q
            for f in range(2):
                for k in range(8 * f, 8 * f + 8, 2):
                    sel = 0 if k >= 12 else 1
                    s('v_pk_mul_f32 %s, %s, %s op_sel:[0,%d] op_sel_hi:[1,%d]' % (vr(n + k, 2), vr(n + k, 2), vr(T + 4 + 2 * q, 2), sel, sel))
                for k in range(4):
                    s('v_cvt_pk_bf16_f32 v%d, v%d, v%d' % (n + 8 * f + k, n + 8 * f + 2 * k, n + 8 * f + 2 * k + 1))
                s('buffer_store_dwordx4 %s, v%d, %s, s%d offen offset:%d sc1' % (vr(n + 8 * f, 4), V_L16, sr(SWS, 4), S_H, f * 1024), ('o', p))
            s('s_add_u32 s%d, s%d, 4096' % (S_H, S_H))
    stamp(s, 9)
    barrier(s, 'all')
    flag(s, 768)
    flag(s, 768 + FL_G)
    s('s_branch L_fin')
    return s


def kv_role():
    s, T = Seg('kv'), V_T
    s('L_kv:')
    if OPT['twat'] < -1:
        touch_w(s, False)
    s('s_mul_i32 s%d, s%d, 3' % (S_P, S_HALF))
    s('s_add_u32 s%d, s%d, s%d' % (S_P, S_P, S_ROLE))
    s('s_sub_u32 s%d, s%d, 4' % (S_P, S_P))

    def item(t, n):
        if n >= 14:
            if n == 14:
                t('v_add_u32 v%d, %d, v%d' % (V_W, XS, V_W))
                t('v_add_u32 v%d, %d, v%d' % (V_WB, XS, V_WB))
            dma_w(t, S_M0X, n - 14, kv_slot(n), ('i', n))
        elif n & 1:
            dma_w(t, S_M0X, n >> 1, kv_slot(n), ('i', n))
        else:
            dma_x(t, n >> 1, kv_slot(n), ('i', n))

    s('s_lshl_b32 s%d, s%d, 2' % (S_T1, S_P))
    s('s_lshr_b32 s%d, 0xdb9630, s%d' % (S_LAST, S_T1))
    s('s_and_b32 s%d, s%d, 15' % (S_LAST, S_LAST))
    s('s_lshr_b32 s%d, 0x322333, s%d' % (S_PEND, S_T1))
    s('s_and_b32 s%d, s%d, 15' % (S_PEND, S_PEND))
    s('s_add_u32 s%d, s%d, s%d' % (S_T1, S_LAST, S_G))
    s('s_mul_i32 s%d, s%d, 56' % (S_T1, S_T1))
    s('s_lshl_b32 s%d, s%d, 7' % (S_T0, S_P))
    s('s_sub_u32 s%d, s%d, s%d' % (S_T1, S_T1, S_T0))
    s('s_add_u32 s%d, s%d, 1' % (S_T0, S_G))
    s('s_cmp_lt_u32 s%d, s%d' % (S_T0, S_PEND))
    s('s_cselect_b32 s%d, 56, 0' % S_T0)
    s('v_min_u32 v%d, 6, v%d' % (T + 14, T + 14))
    s('v_lshl_add_u32 v%d, v%d, 3, s%d' % (T + 5, T + 14, S_T1))
    s('v_lshlrev_b32 v%d, 6, v%d' % (T + 6, T + 10))
    for t in range(2):
        if t:
            s('v_add_u32 v%d, s%d, v%d' % (T + 5, S_T0, T + 5))
        s('v_xor_b32 v%d, v%d, v%d' % (T + 11, T + 5, T + 6))
        s('v_lshl_add_u32 v%d, v%d, 8, v%d' % (V_WA + 4 * t, T + 12, T + 11))
        for j in range(1, 4):
            s('v_xor_b32 v%d, %d, v%d' % (V_WA + 4 * t + j, j << 12, V_WA + 4 * t))
    srd(s, SWS, WS_BYTES)
    srd(s, SDBG, 256)
    item(s, 2)
    item(s, 3)
    estamp(s, 't1')
    s.extend(deferred(True))
    s('s_lshl1_add_u32 s%d, s%d, s%d' % (S_H, S_RB, S_HALF))
    s('s_lshl3_add_u32 s%d, s%d, s%d' % (S_H, S_H, S_RW))
    s('s_lshl_b32 s%d, s%d, 7' % (S_H, S_H))
    s('s_add_u32 s%d, s%d, 0x%x' % (S_H, S_H, ST_OFF))
    s('v_lshlrev_b32 v%d, 2, v%d' % (V_ST + 1, T + 8))
    s('s_lshl_b32 s%d, s%d, 7' % (S_T0, S_RW))
    s('s_add_u32 s%d, s%d, %d' % (S_T0, S_T0, M_R))
    s('v_lshl_add_u32 v%d, v%d, 4, s%d' % (V_RA, T + 9, S_T0))
    s('v_add_u32 v%d, s%d, v%d' % (V_ST + 2, S_T0, V_ST + 1))
    s('v_mov_b32 v%d, %d' % (T + 5, M_SY + 128))
    s('v_cndmask_b32 v%d, v%d, v%d, %s' % (V_ST + 3, V_RA, T + 5, sr(S_PAD, 2)))
    s('v_mov_b32 v%d, 0' % (V_EXR + 1))
    s('s_waitcnt lgkmcnt(0)')
    if OPT['tat'] < -1:
        touch_w2(s)
    s('s_cmp_eq_u32 s%d, 1' % S_G)
    s('s_cbranch_scc1 L_kb')

    def body(g):
        b = Seg('kb' if g else 'ka')
        if g:
            b('L_kb:')
        xa = Rebase([V_XA + j for j in range(4)], 0, 0)
        wa = [Rebase([V_WA + 4 * t + j for j in range(4)], 0, 1024) for t in range(2)]
        TS = [[0, 1], [1]] if g else [[0], [0, 1]]
        PK1 = V_X + 48

        def witem(q, c):
            return 2 * c + 1 if q == 0 else 14 + c

        def wf(t, j):
            return (V_ACC + 48 if t != g else V_WF) + 4 * j

        def acc(q, t):
            return V_ACC + 16 * (q + t)

        def wread(z, q, c, j, t):
            o = wa[t].off(z, kv_slot(witem(q, c)))
            for u in range(2):
                z('ds_read_b64_tr_b16 %s, v%d offset:%d' % (vr(wf(t, j) + 2 * u, 2), V_WA + 4 * t + j, o + u * 1024), ('w', q, c, j, t))

        def xread(z, c, j):
            o = xa.off(z, kv_slot(2 * c))
            z('ds_read_b128 %s, v%d offset:%d' % (vr(xreg(c, j), 4), V_XA + j, o))

        def kstep(q, c, j):
            out = []
            first = c == 0 and j == 0
            for t in TS[q]:
                z = Seg()
                z.wait(lgkm=[('w', q, c, j, t)])
                z('v_mfma_f32_32x32x16_bf16 %s, %s, %s, %s' % (vr(acc(q, t), 16), vr(xreg(c, j), 4), vr(wf(t, j), 4), '0' if first else vr(acc(q, t), 16)))
                if j == 0:
                    z('v_mfma_f32_16x16x32_bf16 %s, %s, %s, %s' % (vr(V_CS + 4 * t, 4), vr(V_SEL, 4), vr(wf(t, j), 4), '0' if first else vr(V_CS + 4 * t, 4)))
                if c < 6:
                    wread(z, q, c + 1, j, t)
                    if q == 0 and t == TS[q][-1]:
                        xread(z, c + 1, j)
                elif q == 0 and not g:
                    wread(z, 1, 0, j, 0)
                if c == 6 and j == 2 and t == TS[q][-1]:
                    for tt in TS[q]:
                        z('ds_write_b32 v%d, v%d offset:%d' % (V_CSW, V_CS + 4 * tt, q * 1536 + (g + tt) * 512))
                out.append(z)
            return out

        def ext(q, t, k):
            return ext_parts(acc(q, t), q * 1536 + (g + t) * 512, (V_EXW, V_EXW + 2, V_CS)[k], True, T=V_T + 4 + 4 * k)

        def rload(z, dst, key, addr=V_RA):
            for i in range(4):
                z('ds_read_b128 %s, v%d offset:%d' % (vr(dst + 4 * i, 4), addr, i * 32), key)

        def stat_load(z):
            z('buffer_load_dword v%d, v%d, %s, s%d offen sc1' % (V_ST, V_ST + 1, sr(SWS, 4), S_H), 'stat')

        def stat_use(z):
            z('v_and_b32 v%d, 0xffff, v%d' % (T, V_ST))
            z('v_lshl_or_b32 v%d, v%d, 16, v%d' % (T, V_ST, T))
            z('v_cndmask_b32 v%d, v%d, 0, %s' % (V_EXR, T, sr(S_HI, 2)))

        def phi_k(t, rb):
            e = Seg()
            for i in range(4):
                a = [acc(0, t) + 4 * i + k for k in range(4)]
                for k in range(4):
                    e('v_fma_f32 v%d, v%d, v%d, s%d' % (a[k], a[k], rb + 4 * i + k, S_EPS))
                for k in range(4):
                    e('v_mul_f32 v%d, s%d, v%d' % (T + k, S_L2E, a[k]))
                for k in range(4):
                    e('v_exp_f32_e64 v%d, v%d clamp' % (T + k, T + k))
                for k in range(4):
                    e('v_max_f32 v%d, s%d, v%d' % (a[k], S_EPS, a[k]))
                for k in range(4):
                    e('v_add_f32 v%d, v%d, v%d' % (a[k], a[k], T + k))
                e('v_cvt_pk_bf16_f32 v%d, v%d, v%d' % (acc(0, t) + 2 * i, a[0], a[1]))
                e('v_cvt_pk_bf16_f32 v%d, v%d, v%d' % (acc(0, t) + 2 * i + 1, a[2], a[3]))
            return e

        def hand_addr(z):
            z('s_mul_i32 s%d, s%d, 10240' % (S_T0, S_RW))
            z('s_add_u32 s%d, s%d, %d' % (S_T0, S_T0, R2 + 8192))
            z('v_add_u32 v%d, s%d, v%d' % (V_XA, S_T0, V_L16))

        def prod_setup(z, rb):
            rload(z, rb, 'r2', V_ST + 3)
            z('v_cndmask_b32 v%d, 0, 1.0, %s' % (V_XA + 1, sr(S_PAD, 2)))
            z('s_lshl_b32 s%d, s%d, 12' % (S_T0, S_RW))
            z('s_add_u32 s%d, s%d, %d' % (S_T0, S_T0, HND + g * 16384))
            z('v_add_u32 v%d, s%d, v%d' % (V_XA + 2, S_T0, V_L16))

        def kv_prod(z, t, pk, rb):
            z.wait(lgkm='r2')
            v, d = acc(1, t), V_X + 16 * t
            for f in range(2):
                for k in range(8 * f, 8 * f + 8):
                    z('v_fma_f32 v%d, v%d, v%d, v%d' % (v + k, v + k, rb + k, V_XA + 1))
                for k in range(4):
                    z('v_cvt_pk_bf16_f32 v%d, v%d, v%d' % (v + 8 * f + k, v + 8 * f + 2 * k, v + 8 * f + 2 * k + 1))
            z('s_setprio 2')
            for f in range(2):
                z('v_mfma_f32_32x32x16_bf16 %s, %s, %s, %s' % (vr(d, 16), vr(pk + 4 * f, 4), vr(v + 8 * f, 4), vr(d, 16) if f else '0'))

        def part_write(z, t):
            for i in range(4):
                z('ds_write_b128 v%d, %s offset:%d' % (V_XA + 2, vr(V_X + 16 * t + 4 * i, 4), t * 16384 + i * 1024))

        if not g:
            b('s_setprio 1')
        for c in range(-1, 7):
            barrier(b, 't0' if c < 0 else [('i', 2 * c + 3 if c < 6 else 14)], 's%d' % c if c >= 0 else 'pre')
            if c < 0:
                stamp(b, 1)
            d = Seg()
            if c == min(OPT['tat'], 2):
                touch_w2(d)
            if g and c == 3:
                f0_load(d)
            if g and c == 5:
                f0_check(d)
            item(d, 2 * c + 6)
            if c < 6:
                item(d, 2 * c + 7)
            if c == OPT['twat']:
                touch_w(d, False)
            if c == 6:
                if g:
                    stat_load(d)
                else:
                    for j in range(4):
                        wread(d, 1, 0, j, 1)
            if not g and c >= 0:
                b.extend(d)
            for j in range(4):
                if c >= 0:
                    for z in kstep(0, c, j):
                        b.extend(z)
                else:
                    for t in TS[0]:
                        wread(b, 0, 0, j, t)
                    xread(b, 0, j)
            if g or c < 0:
                b.extend(d)
        barrier(b, [('i', 16)], 's7')
        stamp(b, 2)

        if g:
            RB = V_ACC + 48
            parts = [ext(0, t, t) for t in range(2)]
            for p in parts:
                b.extend(p[0])
            item(b, 19)
            for p in parts:
                b.extend(p[1])
            item(b, 20)
            hand_addr(b)
            b.wait(vm='stat')
            spin_check(b, V_ST, V_ONE, V_ST + 1, SWS, 's%d' % S_H, 0xffffffff)
            stat_use(b)
            b('v_and_b32 v%d, 0xffff0000, v%d' % (T + 1, V_ST))
            b('v_rcp_f32 v%d, v%d' % (T + 1, T + 1))
            b('s_setprio 2')
            for p in parts:
                b.extend(p[2])
            b('s_setprio 0')
            b('ds_write_b32 v%d, v%d' % (V_ST + 2, T + 1))
            rload(b, RB, 'r')
            e = Seg()
            e.wait(lgkm='r')
            e.extend(phi_k(0, RB))
            for f in range(2):
                e('ds_write_b128 v%d, %s offset:%d' % (V_XA, vr(acc(0, 0) + 4 * f, 4), f * 1024))
            d = Seg()
            touch_kv(d)
            if OPT['kpf']:
                p2_setup(d)
            for u in range(OPT['kpf']):
                dma_b2(d, u)
            r = Seg()
            for j in range(4):
                wread(r, 1, 0, j, 1)
            e.extend(mix(mix(phi_k(1, RB), [[i] for i in r]), groups(d), 0.3, 1.0))
            k0, k1 = OPT['kb0'], OPT['kb1']
            b.extend(e[:k0])
            barrier(b, [('i', 18)], 'v0')
            b.extend(e[k0:k1])
            barrier(b, [('i', 20)], 'v1')
            b.extend(e[k1:])
            prod_setup(b, RB)
            barrier(b, None, 'v2')
            stamp(b, 3)
            b('s_setprio 1')
            d = Seg()
            if not OPT['kpf']:
                p2_setup(d)
            slots = [kstep(1, c, j)[0] for c in range(7) for j in range(4)]
            if OPT['kearly']:
                pre = Seg()
                barrier(pre, None, 'v4')
                slots[20][:0] = pre
            b.extend(interleave(slots, list(d), 2, 19))
            barrier(b, None, 'v3')
            b('s_setprio 2')
            b.extend(head([ext(1, 1, 0)]))
            poll_base(b)
            kv_prod(b, 1, acc(0, 1), RB)
            part_write(b, 1)
            poll_async(b, 0)
            barrier(b, None, 'kk')
            stamp(b, 4)
            b('s_setprio 1')
            for u in range(OPT['kpf'], 11):
                dma_b2(b, u)
            b('s_branch L_p2b')
            return b
        for c in range(7):
            if c in (2, 4):
                barrier(b, [('i', 16 + c)], 'v%d' % (c // 2 - 1))
            for j in range(4):
                for z in kstep(1, c, j):
                    b.extend(z)
                if c < 2:
                    if j == 1:
                        d = Seg()
                        item(d, 19 + c)
                        d = groups(d)
                    if j in (1, 2):
                        b.extend(d[j - 1])
                if c == 2 and j == 1:
                    stat_load(b)
                if c == 5 and j == 1:
                    hand_addr(b)
                if c == 5 and j == 3:
                    b.wait(vm='stat')
                    stat_use(b)
        barrier(b, None, 'v2')
        stamp(b, 3)
        b('s_setprio %d' % OPT['khead'])
        b('v_mov_b32 v%d, 0' % (V_CS + 1))
        RB, RP = V_X + 64, V_WF
        e = head([ext(1, 1, 0), ext(0, 0, 1), ext(1, 0, 2)])
        z = Seg()
        prod_setup(z, RP)
        for f in range(2):
            z('ds_read_b128 %s, v%d offset:%d' % (vr(PK1 + 4 * f, 4), V_XA, f * 1024), 'r2')
        rload(z, RB, 'r')
        b.extend(e[:3] + list(z) + e[3:-3])
        b('s_setprio 2')
        b.extend(e[-3:])
        b('s_setprio 0')
        z = Seg()
        z('s_lshl_b32 s%d, s%d, 10' % (S_T1, S_RW))
        z('s_add_u32 s%d, s%d, %d' % (S_T1, S_T1, HND))
        z('v_add_u32 v%d, s%d, v%d' % (V_SEL + 2, S_T1, V_L16))
        z('s_cmp_eq_u32 s%d, 3' % S_RW)
        z('s_cselect_b64 vcc, %s, 0' % sr(S_HI, 2))
        z('v_lshrrev_b32 v%d, 2, v%d' % (V_SEL + 3, V_L16))
        z('v_cndmask_b32 v%d, v%d, v%d, vcc' % (V_SEL + 3, V_SEL + 3, V_FLO))
        z('s_lshl2_add_u32 s%d, s%d, s%d' % (S_H, S_LAST, S_RW))
        z('s_lshl_b32 s%d, s%d, 10' % (S_H, S_H))
        z('s_add_u32 s%d, s%d, 0x%x' % (S_H, S_H, KV_OFF))
        kv_prod(z, 1, PK1, RP)
        z('s_setprio 0')
        z.wait(lgkm='r')
        e = phi_k(0, RB)
        if OPT['kearly']:
            z.extend(e[:OPT['kearly']])
            barrier(z, None, 'v4')
            w = Seg()
            part_write(w, 1)
            z.extend(mix(e[OPT['kearly']:], [[i] for i in w]))
        else:
            z.extend(e)
        kv_prod(z, 0, acc(0, 0), RP)
        k = len(z) * OPT['kcut'] // 100
        b.extend(z[:k])
        barrier(b, None, 'v3')
        b.extend(z[k:])
        if not OPT['kearly']:
            part_write(b, 1)
        b('s_add_u32 s%d, s%d, 4096' % (S_P, S_H))
        b('s_add_u32 s%d, s%d, 8192' % (S_HALF, S_H))
        b('s_cmp_eq_u32 s%d, 3' % S_PEND)
        b('s_cselect_b32 s%d, s%d, 0x%x' % (S_HALF, S_HALF, OOB))
        part_write(b, 0)
        barrier(b, None, 'kk')
        stamp(b, 4)
        R = V_X + 32
        for h in range(3):
            for p in range(4):
                b('ds_read_b128 %s, v%d offset:%d' % (vr(R + 16 * h + 4 * p, 4), V_SEL + 2, h * 16384 + p * 4096), ('red', h))
        for h in range(3):
            r = R + 16 * h
            b.wait(lgkm=[('red', h)])
            for k in (0, 2):
                b('v_pk_add_f32 %s, %s, %s' % (vr(r + k, 2), vr(r + k, 2), vr(r + 4 + k, 2)))
                b('v_pk_add_f32 %s, %s, %s' % (vr(r + 8 + k, 2), vr(r + 8 + k, 2), vr(r + 12 + k, 2)))
                b('v_pk_add_f32 %s, %s, %s' % (vr(r + k, 2), vr(r + k, 2), vr(r + 8 + k, 2)))
            for k in range(4):
                b('buffer_atomic_add_f32 v%d, v%d, %s, s%d offen offset:%d sc1' % (r + k, V_SEL + 3, sr(SWS, 4), (S_H, S_P, S_HALF)[h], k * 256), 'atom')
        stamp(b, 5)
        b('s_lshl_b32 s%d, s%d, 7' % (S_FL, S_LAST))
        b('s_lshl_b32 s%d, s%d, 28' % (S_T1, S_RW))
        b('s_add_u32 s%d, s%d, s%d' % (S_FL, S_FL, S_T1))
        b('s_add_u32 s%d, s%d, 0x%x' % (S_FL, S_FL, FKV_OFF))
        b('s_lshl_b32 s%d, s%d, 4' % (S_T1, S_PEND))
        b('v_cmp_gt_u32 vcc, s%d, v%d' % (S_T1, V_L16))
        b('v_lshlrev_b32 v%d, 3, v%d' % (V_PL, V_L16))
        b('v_cndmask_b32 v%d, v%d, v%d, vcc' % (V_PL, V_FLO, V_PL))
        p2_setup(b)
        b.wait(vm='atom')
        sync_arrive(b, 0)
        sync_wait(b, 0, 4, T)
        stamp(b, 6)
        b('buffer_atomic_add v%d, v%d, %s, s%d offen sc1' % (V_ONE, V_PL, sr(SWS, 4), S_FL))
        b('s_branch L_p2a')
        return b

    return s, body(0), body(1)


V_OUT, V_RD, V_U = 8, 9, 40


def res_load(R):
    s, T = Seg(), R + 8
    s('s_lshl_b32 s%d, s%d, 7' % (S_T0, S_ROLE))
    s('v_lshrrev_b32 v%d, 3, v0' % (T + 1))
    s('v_and_b32 v%d, 0x70, v%d' % (T + 2, V_L16))
    s('v_mul_u32_u24 v%d, %d, v%d' % (V_OUT, XS, T + 1))
    s('v_add_u32 v%d, v%d, v%d' % (V_OUT, V_OUT, T + 2))
    s('buffer_load_dwordx4 %s, v%d, %s, s%d offen' % (vr(R, 4), V_OUT, sr(SX, 4), S_OUTO), 'res')
    s('buffer_load_dwordx4 %s, v%d, %s, s%d offen' % (vr(R + 4, 4), T + 2, sr(SB2, 4), S_T0), 'res')
    return s


def frag_addr(s, T):
    s('v_lshrrev_b32 v%d, 4, v%d' % (T, V_L16))
    s('v_bfe_u32 v%d, v%d, 2, 2' % (T + 1, T))
    s('v_and_b32 v%d, 3, v%d' % (T + 2, T))
    s('v_bfe_u32 v%d, v%d, 4, 1' % (T + 3, T))
    s('v_lshl_add_u32 v%d, v%d, 2, v%d' % (T + 2, T + 3, T + 2))
    s('v_lshrrev_b32 v%d, 1, v%d' % (T + 3, T + 1))
    s('v_lshlrev_b32 v%d, 6, v%d' % (T + 3, T + 3))
    s('v_lshl_add_u32 v%d, v%d, 3, v%d' % (T + 2, T + 2, T + 3))
    s('v_lshl_add_u32 v%d, v%d, 7, v%d' % (T + 2, T + 1, T + 2))
    s('v_lshrrev_b32 v%d, 5, v%d' % (T + 3, T))
    s('v_lshl_add_u32 v%d, v%d, 9, v%d' % (T + 3, T + 3, T + 2))


def bf(par, ct):
    return V_BF + 8 * par + 4 * ct


def acc2(ct, rg):
    return V_ACC + 32 * ct + 16 * rg


def part_addr(g):
    z, T = Seg(), V_NUM
    z('v_bfe_u32 v%d, v%d, 4, 5' % (T, V_L16))
    z('v_and_b32 v%d, 7, v%d' % (T + 1, T))
    z('v_bfe_u32 v%d, v%d, 1, 1' % (T + 2, T))
    z('v_lshrrev_b32 v%d, 9, v%d' % (T + 3, V_L16))
    z('v_xor_b32 v%d, v%d, v%d' % (T + 2, T + 2, T + 3))
    z('v_lshl_add_u32 v%d, v%d, 3, v%d' % (T + 1, T + 2, T + 1))
    z('v_lshlrev_b32 v%d, 4, v%d' % (T + 1, T + 1))
    z('v_lshl_add_u32 v%d, v%d, 8, v%d' % (T + 1, T, T + 1))
    z('v_add_u32 v%d, s%d, v%d' % (T + 8, S_QR0, T + 1))
    if g:
        z('v_add_u32 v%d, s%d, v%d' % (T + 16, S_QR2, T + 1))
    else:
        z('v_add_u32 v%d, 8192, v%d' % (T + 16, T + 8))
    for rg in range(2):
        for k in range(1, 8):
            z('v_xor_b32 v%d, %d, v%d' % (T + 8 + 8 * rg + k, k << 4, T + 8 + 8 * rg))
    return z


def read_addr(g, R):
    z, T = Seg(), R + 8
    z('v_and_b32 v%d, 31, v%d' % (T + 1, T + 1))
    z('v_and_b32 v%d, 7, v%d' % (T + 3, T + 1))
    z('v_bfe_u32 v%d, v%d, 1, 1' % (T + 4, T + 1))
    z('v_lshl_add_u32 v%d, v%d, 3, v%d' % (T + 3, T + 4, T + 3))
    z('v_lshlrev_b32 v%d, 4, v%d' % (T + 3, T + 3))
    z('v_xor_b32 v%d, v%d, v%d' % (T + 3, T + 3, T + 2))
    z('v_lshl_add_u32 v%d, v%d, 8, v%d' % (V_RD, T + 1, T + 3))
    if g:
        z('v_add_u32 v%d, %d, v%d' % (V_RD, R2, V_RD))
    z('v_xor_b32 v%d, 128, v%d' % (V_RD + 1, V_RD))
    return z


def res_unpack(R):
    z, U = Seg(), V_U
    z.wait(vm='res')
    for k in range(4):
        z('v_lshlrev_b32 v%d, 16, v%d' % (U + 2 * k, R + k))
        z('v_and_b32 v%d, 0xffff0000, v%d' % (U + 2 * k + 1, R + k))
        z('v_lshlrev_b32 v%d, 16, v%d' % (R + k, R + 4 + k))
        z('v_and_b32 v%d, 0xffff0000, v%d' % (R + 4 + k, R + 4 + k))
        z('v_add_f32 v%d, v%d, v%d' % (U + 2 * k, U + 2 * k, R + k))
        z('v_add_f32 v%d, v%d, v%d' % (U + 2 * k + 1, U + 2 * k + 1, R + 4 + k))
    return z


def acc_major(s, units, wreg, areg, wtag, atag, fresh, fill=()):
    slots, order = [], [(0, 0), (1, 0), (0, 1), (1, 1)]
    for ct, rg in order:
        for k, u in enumerate(units):
            z = Seg()
            z.wait(vm=[atag(u, rg)], lgkm=[wtag(u, ct)])
            z('v_mfma_f32_32x32x16_bf16 %s, %s, %s, %s' % (vr(acc2(ct, rg), 16), vr(wreg(u, ct), 4), vr(areg(u, rg), 4), '0' if fresh and k == 0 else vr(acc2(ct, rg), 16)))
            slots.append(z)
    n = len(units)
    for k, gi in enumerate(fill):
        slots[k].extend(gi)
    wr = [Ins('ds_write_b128 v%d, %s' % (V_NUM + 8 + 8 * rg + 4 * ct + i, vr(acc2(ct, rg) + 4 * i, 4))) for ct, rg in order for i in range(4)]
    first = 2 * n - 1
    for k in range(8):
        slots[first + k * (2 * n + 1) // 8].append(wr[k])
    for z in slots:
        s.extend(z)
    s.extend(wr[8:])


def final(g):
    s = Seg('final%d' % g)
    D, U = V_AB, V_U
    stamp(s, 8)
    barrier(s)
    stamp(s, 9)
    for w in range(4):
        for h in range(2):
            s('ds_read_b128 %s, v%d offset:%d' % (vr(D + 8 * w + 4 * h, 4), V_RD + h, w * (10240 if g else 12288)), ('fin', w))
    for w in range(4):
        s.wait(lgkm=[('fin', w)])
        for k in range(4):
            s('v_pk_add_f32 %s, %s, %s' % (vr(U + 2 * k, 2), vr(U + 2 * k, 2), vr(D + 8 * w + 2 * k, 2)))
    for k in range(4):
        s('v_cvt_pk_bf16_f32 v%d, v%d, v%d' % (U + k, U + 2 * k, U + 2 * k + 1))
    s('buffer_store_dwordx4 %s, v%d, %s, s%d offen' % (vr(U, 4), V_OUT, sr(SOUT, 4), S_OUTO))
    return s


def phase2b():
    s, T = Seg('p2b'), V_NUM
    s('L_p2b:')
    stamp(s, 5)
    s('s_setprio 1')
    s('v_add_u32 v%d, %d, v%d' % (V_L16B, ACT_G, V_L16))
    s('s_lshl_b32 s%d, s%d, 13' % (S_T0, S_RW))
    s('s_add_u32 s%d, s%d, s%d' % (S_P, S_A, S_T0))
    s('s_add_u32 s%d, s%d, %d' % (S_P, S_P, 112 * 1024))
    s('s_mul_i32 s%d, s%d, %d' % (S_T0, S_RW, 28 * 1024))
    s('s_add_u32 s%d, s%d, s%d' % (S_A, S_A, S_T0))
    DEP, LB = 6, OPT['lb']
    V_PW, V_PX, RES, OF = 11, 14, V_AB + 48, V_AB + 64
    SO = [S_KW + 1 + u if u < 6 else S_HI + u - 6 for u in range(8)]

    def abuf(u, rg):
        return V_AB + 8 * (u % DEP) + 4 * rg if u < 28 else OF + 8 * (u - 28) + 4 * rg

    def aload(z, u):
        ks_dyn(z, S_T0, u)
        z('s_lshl_b32 s%d, s%d, 10' % (S_T0, S_T0))
        z('s_add_u32 s%d, s%d, s%d' % (S_T0, S_T0, S_A))
        for rg in range(2):
            z('buffer_load_dwordx4 %s, v%d, %s, s%d offen sc1' % (vr(abuf(u, rg), 4), V_L16B if rg else V_L16, sr(SWS, 4), S_T0), ('a', u))

    def oloads():
        z = Seg()
        for rg in range(2):
            for u in range(8):
                z('buffer_load_dwordx4 %s, v%d, %s, s%d offen sc1' % (vr(abuf(28 + u, rg), 4), V_L16B if rg else V_L16, sr(SWS, 4), SO[u]), ('o', 28 + u, rg))
        return list(z)

    def word_check(z, u, n, hit=None):
        z.wait(lgkm=[('pw', u)])
        z('v_readfirstlane_b32 s%d, v%d' % (S_T2, V_PW))
        z('s_cmp_lt_u32 s%d, %d' % (S_T2, n))
        if hit:
            z('s_cbranch_scc0 %s' % hit)
            return
        j = nspin[0]
        nspin[0] += 1
        z('s_cbranch_scc1 L_slow%d' % j)
        z('L_ret%d:' % j)
        slow('L_slow%d:' % j)
        slow('s_add_u32 s%d, s%d, 1' % (S_SPIN, S_SPIN))
        slow('s_cmp_gt_u32 s%d, 0x%x' % (S_SPIN, SPIN_LIMIT << 3))
        slow('s_cbranch_scc1 L_ret%d' % j)
        slow('ds_read_b32 v%d, v%d' % (V_PW, V_PX))
        slow('s_waitcnt lgkmcnt(0)')
        slow('v_readfirstlane_b32 s%d, v%d' % (S_T2, V_PW))
        slow('s_nop 0')
        slow('s_cmp_lt_u32 s%d, %d' % (S_T2, n))
        slow('s_cbranch_scc1 L_slow%d' % j)
        slow('s_branch L_ret%d' % j)

    stage_check(s, 0)
    stamp(s, 'c0')
    z = Seg()
    for u in range(DEP - 1):
        if u == OPT['p1at']:
            poll_async(z, 1)
        aload(z, u)
    y = Seg()
    frag_addr(y, T)
    for reg, base in enumerate((S_QR0, S_QR2)):
        y('v_add_u32 v%d, s%d, v%d' % (V_BA + 2 * reg, base, T + 3))
        y('v_xor_b32 v%d, 64, v%d' % (V_BA + 2 * reg + 1, V_BA + 2 * reg))
    y('v_subrev_u32 v%d, 16, v%d' % (V_PX, V_PA))
    s.extend(mix(y, groups(z)))

    def wreg(u, ct):
        return bf(u & 1, ct) if u < 28 else V_AB + 32 * (1 - ct) + 4 * (u - 28)

    def bread(u, ct):
        z = Seg()
        _, reg, off = unit_loc(u)
        z.wait(vm=[('b', u)])
        for h in range(2):
            z('ds_read_b64_tr_b16 %s, v%d offset:%d' % (vr(wreg(u, ct) + 2 * h, 2), V_BA + 2 * reg + ct, off + h * 1024), ('bf', u, ct))
        return z

    s.extend(bread(0, 0) + bread(0, 1))
    late = Seg()
    for u in range(8):
        late('s_xor_b32 s%d, s%d, %d' % (SO[u], S_RO3, u))
        late('s_lshl_b32 s%d, s%d, 10' % (SO[u], SO[u]))
        late('s_add_u32 s%d, s%d, s%d' % (SO[u], SO[u], S_P))
    late = list(read_addr(1, RES)) + list(part_addr(1)) + list(res_unpack(RES)) + list(late)
    SITES = [23, 25, 27, 28]
    U2 = 17 - DEP

    def unit(s, u, extra, word):
        nxt = u + DEP - 1
        z = Seg()
        if nxt < 28:
            aload(z, nxt)
        if 11 <= u + LB < 36:
            dma_b2(z, u + LB)
        if u == 4:
            z.extend(res_load(RES))
        now = groups(z) + [[i] for i in extra]
        if 10 <= u < 22:
            k0, k1 = len(late) * (u - 10) // 12, len(late) * (u - 9) // 12
            now += [[i] for i in late[k0:k1]]
        if u < 27:
            rd = [bread(u + 1, 0), bread(u + 1, 1), Seg(), Seg()]
        else:
            rd = [bread(28 + k, 0) for k in range(4)]
        if word:
            rd[2]('ds_read_b32 v%d, v%d' % (V_PW, V_PX), ('pw', u + 1))
        s.wait(vm=[('a', u)])
        stamp(s, 'u%d' % u)
        k = 0
        for ct in range(2):
            s.wait(lgkm=[('bf', u, ct)])
            for rg in range(2):
                s('v_mfma_f32_32x32x16_bf16 %s, %s, %s, %s' % (vr(acc2(ct, rg), 16), vr(wreg(u, ct), 4), vr(abuf(u, rg), 4), vr(acc2(ct, rg), 16) if u else '0'))
                s.extend(rd[k])
                for gi in range(len(now) * k // 4, len(now) * (k + 1) // 4):
                    s.extend(now[gi])
                k += 1

    assert LB >= 8
    main, alts = [s], []
    for u in range(28):
        if u + DEP - 1 == 8:
            stage_check(s, 1)
            stamp(s, 'c1')
        if u == 7:
            word_check(s, u, 1)
        if u == U2:
            word_check(s, u, 3)
            stamp(s, 'c2')
        if u in SITES:
            word_check(s, u, 7, hit='L_p2o%d' % u)
            a = Seg('p2o%d' % u)
            a('L_p2o%d:' % u)
            stamp(a, 'c3')
            o = oloads()
            for v in range(u, 28):
                unit(a, v, o[:4], False)
                o = o[4:]
            a.extend(o)
            a('s_branch L_p2tail')
            alts.append((list(main), a))
            s = Seg('p2m%d' % u)
            main.append(s)
        unit(s, u, [], u + 1 in SITES + [7, U2])
    word_check(s, 28, 7)
    stamp(s, 'c3')
    s.extend(oloads())
    t = Seg('p2t')
    t('L_p2tail:')
    stamp(t, 'tl')
    fill = [bread(u, 0) for u in range(32, 36)] + [bread(u, 1) for u in range(28, 36)]
    acc_major(t, range(28, 36), wreg, abuf, lambda u, ct: ('bf', u, ct), lambda u, rg: ('o', u, rg), False, fill)
    t.extend(final(1))
    t('s_branch L_fin')
    return [m + [a, t] for m, a in alts] + [main + [t]], [a for _, a in alts] + main + [t]


def phase2a():
    s = Seg('p2a')
    s('L_p2a:')
    poll_base(s)
    s('v_mov_b32 v%d, 3' % V_ONE)
    s.extend(res_load(V_BF))
    s.extend(read_addr(0, V_BF))
    stage_check(s, 2, sync=True, scalar=OPT['ascal'])
    sync_arrive(s, 0)
    stamp(s, 'a2')
    s('v_mov_b32 v%d, 7' % V_ONE)
    stage_check(s, 3, sync=True, scalar=OPT['ascal'])
    sync_arrive(s, 0)
    stamp(s, 7)
    s.wait(lgkm='all')
    s.extend(res_unpack(V_BF))
    s.extend(final(0))
    return s


def fin():
    s = Seg('fin')
    s('L_fin:')
    if OPT['diag']:
        stamp(s, 10)
        s('s_waitcnt lgkmcnt(0)')
        s('v_mov_b32 v4, 0')
        for k in range(11):
            s('v_writelane_b32 v4, s%d, %d' % (S_KA + 2 * k, k))
        s('v_writelane_b32 v4, s%d, 11' % S_SPIN)
        s('s_lshl3_add_u32 s%d, s2, s%d' % (S_T0, S_WV))
        s('s_lshl_b32 s%d, s%d, 8' % (S_T0, S_T0))
        s('s_add_u32 s%d, s%d, 0x%x' % (S_T0, S_T0, TS_OFF))
        s('v_lshrrev_b32 v5, 2, v%d' % V_L16)
        s('buffer_store_dword v4, v5, %s, s%d offen' % (sr(SWS, 4), S_T0))
        if OPT['diag'] == 3:
            s('s_not_b32 s%d, s%d' % (S_T0, S_KA))
            s('v_writelane_b32 v4, s%d, 11' % S_T0)
            s('s_cmp_eq_u32 s%d, 4' % S_WV)
            s('s_cselect_b32 s%d, 16, 0x%x' % (S_T0, OOB))
            s('s_cmp_lt_u32 s%d, 4' % S_ROLE)
            s('s_cselect_b32 s%d, s%d, 0x%x' % (S_T0, S_T0, OOB))
            s('s_mov_b64 exec, 0xfff')
            s('buffer_atomic_umax v4, v5, %s, s%d offen sc1' % (sr(SDBG, 4), S_T0))
    if OPT['diag'] == 6:
        s('s_cmp_lg_u32 s%d, 4' % S_WV)
        s('s_cbranch_scc1 L_end')
        s('s_mov_b64 exec, 1')
        s('s_getreg_b32 s%d, hwreg(HW_REG_XCC_ID, 0, 4)' % S_T0)
        s('s_sub_u32 s%d, s%d, s2' % (S_T0, S_T0))
        s('s_and_b32 s%d, s%d, 7' % (S_T0, S_T0))
        s('s_lshl_b32 s%d, 1, s%d' % (S_T0, S_T0))
        s('v_mov_b32 v4, s%d' % S_T0)
        s('v_mov_b32 v6, 1')
        s('v_mov_b32 v7, 0')
        s('buffer_atomic_or v4, v7, %s, 0 offen offset:16 sc1' % sr(SDBG, 4))
        s('s_waitcnt vmcnt(0)')
        s('buffer_atomic_add v6, v7, %s, 0 offen offset:136 sc0 sc1' % sr(SDBG, 4))
        s('s_waitcnt vmcnt(0)')
        s('v_readfirstlane_b32 s%d, v6' % S_T0)
        s('s_cmp_lg_u32 s%d, 255' % S_T0)
        s('s_cbranch_scc1 L_end')
        s('buffer_load_dword v4, v7, %s, 0 offen offset:16 sc1' % sr(SDBG, 4))
        s('s_waitcnt vmcnt(0)')
        s('v_readfirstlane_b32 s%d, v4' % S_T0)
        s('s_bcnt1_i32_b32 s%d, s%d' % (S_T0, S_T0))
        s('s_mul_i32 s%d, s%d, 2000' % (S_T0, S_T0))
        s('s_memrealtime s[66:67]')
        s('s_waitcnt lgkmcnt(0)')
        s('L_dly:')
        s('s_memrealtime s[68:69]')
        s('s_waitcnt lgkmcnt(0)')
        s('s_sub_u32 s68, s68, s66')
        s('s_cmp_lt_u32 s68, s%d' % S_T0)
        s('s_cbranch_scc1 L_dly')
    if OPT['diag'] == 5:
        s('s_cmp_lg_u32 s%d, 4' % S_WV)
        s('s_cbranch_scc1 L_end')
        s('s_mov_b64 exec, 1')
        s('s_not_b32 s%d, s%d' % (S_T0, S_KA + 2 * OPT['sa']))
        s('v_mov_b32 v4, s%d' % S_T0)
        s('v_mov_b32 v5, s%d' % (S_KA + 2 * OPT['sb']))
        s('v_mov_b32 v6, 1')
        s('v_mov_b32 v7, 0')
        s('buffer_atomic_umax v4, v7, %s, 0 offen offset:128 sc1' % sr(SDBG, 4))
        s('buffer_atomic_umax v5, v7, %s, 0 offen offset:132 sc1' % sr(SDBG, 4))
        s('s_waitcnt vmcnt(0)')
        s('buffer_atomic_add v6, v7, %s, 0 offen offset:136 sc0 sc1' % sr(SDBG, 4))
        s('s_waitcnt vmcnt(0)')
        s('v_readfirstlane_b32 s%d, v6' % S_T0)
        s('s_cmp_lg_u32 s%d, 255' % S_T0)
        s('s_cbranch_scc1 L_end')
        s('buffer_load_dwordx2 v[4:5], v7, %s, 0 offen offset:128 sc1' % sr(SDBG, 4))
        s('s_waitcnt vmcnt(0)')
        s('v_add_u32 v4, v4, v5')
        s('s_nop 1')
        s('v_readfirstlane_b32 s%d, v4' % S_T0)
        s('s_add_u32 s%d, s%d, 1' % (S_T0, S_T0))
        s('s_mul_i32 s%d, s%d, %d' % (S_T0, S_T0, OPT['mul']))
        s('s_min_u32 s%d, s%d, 200000' % (S_T0, S_T0))
        s('s_memrealtime s[66:67]')
        s('s_waitcnt lgkmcnt(0)')
        s('L_dly:')
        s('s_memrealtime s[68:69]')
        s('s_waitcnt lgkmcnt(0)')
        s('s_sub_u32 s68, s68, s66')
        s('s_cmp_lt_u32 s68, s%d' % S_T0)
        s('s_cbranch_scc1 L_dly')
    if OPT['diag'] == 4:
        s('s_cmp_lg_u32 s2, %d' % OPT['wg'])
        s('s_cbranch_scc1 L_end')
        s('s_cmp_lg_u32 s%d, %d' % (S_WV, OPT['wv']))
        s('s_cbranch_scc1 L_end')
        s('s_sub_u32 s%d, s%d, s%d' % (S_T0, S_KA + 2 * OPT['sb'], S_KA + 2 * OPT['sa']))
        if not OPT['clk']:
            s('s_mul_i32 s%d, s%d, 10' % (S_T0, S_T0))
        s('s_min_u32 s%d, s%d, 200000' % (S_T0, S_T0))
        s('s_memrealtime s[66:67]')
        s('s_waitcnt lgkmcnt(0)')
        s('L_dly:')
        s('s_memrealtime s[68:69]')
        s('s_waitcnt lgkmcnt(0)')
        s('s_sub_u32 s68, s68, s66')
        s('s_cmp_lt_u32 s68, s%d' % S_T0)
        s('s_cbranch_scc1 L_dly')
    s('L_end:')
    s('s_endpgm')
    return s


def main():
    pro, prw, pre = prologue()
    f, fa, fb = lc_role(True)
    q, qa, qb = lc_role(False)
    qo = q_out()
    k, ka, kb = kv_role()
    (p2paths, p2segs), p2a, fi = phase2b(), phase2a(), fin()
    paths = [
        [pro, pre, f, fa, p2a, fi],
        [pro, pre, q, qa, qo, fi],
        [pro, prw, pre, q, qb, qo, fi],
        [pro, prw, pre, k, ka, p2a, fi],
    ]
    for p in p2paths:
        paths += [[pro, prw, pre, f, fb] + p + [fi], [pro, prw, pre, k, kb] + p + [fi]]
    resolve_waits(paths)
    n = pad_hazards(paths)
    assert pad_hazards(paths) == 0
    body = render([pro, prw, pre, f, fa, fb, k, ka, kb, q, qa, qb, qo] + p2segs + [p2a, fi, slow])
    head = open('cdna_kernels/%s.s.ref' % NAME).read().split('\n')
    head = [l for l in head if l.startswith(';') and '@launch' not in l]
    out = '\n'.join(head) + '''
; @launch grid=(256,1,1) block=(512,1,1) lds=%d
.amdgcn_target "amdgcn-amd-amdhsa--gfx950"
.text
.globl %s_kernel
.p2align 8
.type %s_kernel,@function
%s_kernel:
L_codebeg:
%s
L_codeend:
.section .rodata,"a"
.p2align 6
.amdhsa_kernel %s_kernel
  .amdhsa_next_free_vgpr 256
  .amdhsa_next_free_sgpr 102
  .amdhsa_accum_offset 256
  .amdhsa_group_segment_fixed_size 0
  .amdhsa_kernarg_size 88
  .amdhsa_user_sgpr_count 2
  .amdhsa_user_sgpr_kernarg_segment_ptr 1
  .amdhsa_system_sgpr_workgroup_id_x 1
.end_amdhsa_kernel
''' % (LDS_BYTES, NAME, NAME, NAME, body, NAME)
    if OPT['x_plain'] & 1:
        out = '\n'.join(l.replace(' sc1', '') if 'buffer_store_dwordx4' in l else l for l in out.split('\n'))
    if OPT['x_plain'] & 2:
        out = '\n'.join(l.replace(' sc1', '') if 'buffer_load_dwordx4' in l else l for l in out.split('\n'))
    open(sys.argv[1], 'w').write(out)
    print('wrote %s: %d lines, %d pad states' % (sys.argv[1], out.count('\n'), n))


main()
```

```python
import struct
import sys
from asmlib import Seg, Ins, Wait, GAP, interleave, resolve_waits, pad_hazards, render, vr, sr

NAME = 'parallel_sum__linear_attn_block__dense_activation_gelu__prompt'
OPT = dict(rounds=15, opriv=1, oscal=1, na=5, nb=0, b0=9, xfirst=1, osc=0, ne=1, ub=1, pmix=1, wv=4, back=0, x_wait=0, rot1=2, nlate=1, mul=10, fatom=0, tlb=0, kbar=4, kphi=26, ntail=4, p1at=2, ascal=1, kpf=2, kcut=85, kb0=24, kb1=104, khead=0, kearly=40, qatom=1, batom=1, pkind=1, x_hit=0, gsp=3, eprio=0, aprio=2, aprio2=2, aprio3=2, lb=10, touch=5, tat=4, twat=3, tkat=1, kprio=1, plead=3, x_noa=0, x_nopoll=0, x_noflag=0, x_nost=0, x_plain=0, rot2=1, dep=6, noatom=0, diag=0, p1only=0, sa=0, sb=10, clk=0, wg=0)
for a in sys.argv[2:]:
    k, v = a.split('=')
    OPT[k] = v if k == 'st' else int(v)
STAMPS = OPT.get('st', 'en,1,2,3,4,5,6,7,8,9,10').split(',')


def f32(x):
    return '0x%08x' % struct.unpack('<I', struct.pack('<f', x))[0]


XS, WQS, W1S = 896, 2688, 3584
ACT_G = 147456
KV_OFF = 0x900000
FKV_OFF = 0x910000
FL_OFF = 0x911000
FL_G = 896
FO_OFF = 0x920000
ST_OFF = 0x938000
TS_OFF = 0xA00000
WS_BYTES = 0x10000000
OOB = 0x40000000
R0, R1, R2, MISC = 0, 57344, 114688, 155648
M_ST, M_SY, M_CS, M_R = MISC, MISC + 2048, MISC + 4096, MISC + 7168
LDS_BYTES = 163840
LOG2E = 1.4426950408889634
GC1 = -2.0 * 0.7978845608028654 * LOG2E
GC3 = GC1 * 0.044715
SPIN_LIMIT = 1 << 16

S_WV, S_RW, S_G, S_RB, S_ROLE = 3, 4, 5, 6, 7
SX, SW, SWS, SW2, SWO, SOUT, SB1, SB2, SDBG = 8, 12, 16, 20, 24, 28, 32, 36, 40
S_KA = 44
S_KX, S_KW = 66, 73
S_I2, S_HALF, S_T0, S_T1, S_ONES, S_EPS = 80, 81, 82, 83, 84, 85
S_M0W, S_M0X, S_T3, S_RO, S_H, S_FL = 86, 87, 88, 89, 90, 91
S_HI = 92
S_SPIN, S_T2, S_P, S_LAST, S_PEND, S_L2E = 94, 95, 96, 97, 98, 99
S_PAD = 100
S_B2R, S_QR0, S_RO3, S_QR2, S_A, S_WOR, S_OUTO, S_PL = 66, 67, 68, 69, 70, 71, 72, 73
S_AO = 74

V_L16, V_B2, V_X0, V_X1, V_W, V_CSW, V_CSR = 1, 2, 3, 4, 5, 6, 7
V_SEL, V_CS, V_WA, V_XA, V_EXW, V_EXR, V_ST = 8, 12, 20, 28, 32, 36, 38
V_B1 = 16
V_WB, V_RA = 42, 43
V_POLL, V_PA, V_FLO, V_ONE = 44, 45, 46, 47
V_T = 48
V_ACC, V_X, V_WF = 64, 128, 240
V_B2B, V_BA, V_L16B, V_PL = 3, 4, 12, 31
DEP = 6
V_NUM, V_BF, V_AB, V_RES = 16, 48, 128, 192
V_PQ = 80
HND = 49152

slow = Seg('slow')
nspin = [0]


def stamp(s, k):
    if OPT['diag'] and str(k) in STAMPS:
        k = STAMPS.index(str(k))
        s('%s %s' % ('s_memtime' if OPT['diag'] == 2 or OPT['clk'] else 's_memrealtime', sr(S_KA + 2 * k, 2)))


EARLY = ['en', 'ka', 't0', 't1']


def estamp(s, k):
    if OPT['diag'] and k in STAMPS:
        s('%s s[100:101]' % ('s_memtime' if OPT['diag'] == 2 or OPT['clk'] else 's_memrealtime'))
        s('s_waitcnt lgkmcnt(0)')
        s('v_mov_b32 v%d, s100' % (120 + EARLY.index(k)))


class Rebase:
    def __init__(self, regs, base, span):
        self.regs, self.base, self.span = regs, base, span

    def off(self, s, addr):
        if not (self.base <= addr and addr - self.base + self.span <= 65535):
            for r in self.regs:
                s('v_add_u32 v%d, 0x%x, v%d' % (r, (addr - self.base) & 0xffffffff, r))
            self.base = addr
        return addr - self.base


def spin_check(s, vpoll, vexp, vaddr, srd, soff, mask):
    k = nspin[0]
    nspin[0] += 1
    s('v_cmp_ge_u32 vcc, v%d, v%d' % (vpoll, vexp))
    s('s_andn2_b32 s%d, 0x%x, vcc_lo' % (S_T2, mask))
    s('s_cbranch_scc1 L_slow%d' % k)
    s('L_ret%d:' % k)
    slow('L_slow%d:' % k)
    slow('s_add_u32 s%d, s%d, 1' % (S_SPIN, S_SPIN))
    slow('s_cmp_gt_u32 s%d, 0x%x' % (S_SPIN, SPIN_LIMIT))
    slow('s_cbranch_scc1 L_ret%d' % k)
    slow('buffer_load_dword v%d, v%d, %s, %s offen sc1' % (vpoll, vaddr, sr(srd, 4), soff))
    slow('s_waitcnt vmcnt(0)')
    slow('v_cmp_ge_u32 vcc, v%d, v%d' % (vpoll, vexp))
    slow('s_nop 1')
    slow('s_andn2_b32 s%d, 0x%x, vcc_lo' % (S_T2, mask))
    slow('s_cbranch_scc1 L_slow%d' % k)
    slow('s_branch L_ret%d' % k)


def poll_base(s):
    s('s_lshr_b32 s%d, s%d, 1' % (S_PL, S_I2))
    s('s_lshl2_add_u32 s%d, s%d, s%d' % (S_PL, S_PL, S_RW))
    s('s_mul_i32 s%d, s%d, %d' % (S_PL, S_PL, FL_G))
    s('s_add_u32 s%d, s%d, 0x%x' % (S_PL, S_PL, FL_OFF))
    s('v_cmp_gt_u32 vcc, 32, v%d' % V_L16)
    s('v_lshlrev_b32 v%d, 3, v%d' % (V_PL, V_L16))
    s('v_cndmask_b32 v%d, v%d, v%d, vcc' % (V_PL, V_FLO, V_PL))


def poll_async(s, k):
    s('buffer_load_dword v%d, v%d, %s, s%d offen offset:%d sc1' % (V_POLL, V_PL, sr(SWS, 4), S_PL, k * 256), ('poll', k))


def stage_check(s, k, miss=None, sync=False, scalar=False):
    if OPT['x_nopoll']:
        return
    j = nspin[0]
    nspin[0] += 1
    mask = 3 if k < 3 else 1
    if sync:
        s('s_branch L_slow%d' % j)
    else:
        s.wait(vm=[('poll', k)])
        s('v_cmp_ne_u32 vcc, 0, v%d' % V_POLL)
        s('s_andn2_b32 s%d, %d, vcc_lo' % (S_T2, mask))
        if miss:
            s('s_cbranch_scc1 %s' % miss)
            return
        s('s_cbranch_scc1 L_slow%d' % j)
    s('L_ret%d:' % j)
    slow('L_slow%d:' % j)
    slow('s_add_u32 s%d, s%d, 1' % (S_SPIN, S_SPIN))
    slow('s_cmp_gt_u32 s%d, 0x%x' % (S_SPIN, SPIN_LIMIT))
    slow('s_cbranch_scc1 L_ret%d' % j)
    if sync and k == 3 and OPT['back']:
        slow('s_sleep %d' % OPT['back'])
    if scalar:
        slow('s_add_u32 s%d, s%d, %d' % (S_T2, S_PL, k * 256))
        slow('s_add_u32 s%d, s%d, %d' % (S_T1, S_PL, k * 256 + (128 if k < 3 else 0)))
        slow('s_buffer_load_dword s%d, %s, s%d glc' % (S_T2, sr(SWS, 4), S_T2))
        if k < 3:
            slow('s_buffer_load_dword s%d, %s, s%d glc' % (S_T1, sr(SWS, 4), S_T1))
        slow('s_waitcnt lgkmcnt(0)')
        if k < 3:
            slow('s_and_b32 s%d, s%d, s%d' % (S_T2, S_T2, S_T1))
        slow('s_cmp_eq_u32 s%d, 0' % S_T2)
    else:
        slow('buffer_load_dword v%d, v%d, %s, s%d offen offset:%d sc1' % (V_POLL, V_PL, sr(SWS, 4), S_PL, k * 256))
        slow('s_waitcnt vmcnt(0)')
        slow('v_cmp_ne_u32 vcc, 0, v%d' % V_POLL)
        slow('s_nop 1')
        slow('s_andn2_b32 s%d, %d, vcc_lo' % (S_T2, mask))
    slow('s_cbranch_scc1 L_slow%d' % j)
    slow('s_branch L_ret%d' % j)


def poll_check(s, k, n, sync=False, atomic=False):
    j = nspin[0]
    nspin[0] += 1
    if OPT['x_nopoll']:
        return
    if sync:
        s('s_branch L_slow%d' % j)
    else:
        s.wait(vm=[('poll', k)])
        s('v_readfirstlane_b32 s%d, v%d' % (S_T2, V_POLL))
        s('s_cmp_lt_u32 s%d, %d' % (S_T2, n))
        s('s_cbranch_scc1 L_slow%d' % j)
    s('L_ret%d:' % j)
    slow('L_slow%d:' % j)
    slow('s_add_u32 s%d, s%d, 1' % (S_SPIN, S_SPIN))
    slow('s_cmp_gt_u32 s%d, 0x%x' % (S_SPIN, SPIN_LIMIT))
    slow('s_cbranch_scc1 L_ret%d' % j)
    if atomic:
        slow('v_mov_b32 v%d, 0' % V_POLL)
        slow('buffer_atomic_add v%d, v%d, %s, s%d offen offset:%d sc0 sc1' % (V_POLL, V_FLO, sr(SWS, 4), S_PL, k * 128))
        slow('s_waitcnt vmcnt(0)')
        slow('v_readfirstlane_b32 s%d, v%d' % (S_T2, V_POLL))
        slow('s_nop 0')
    else:
        slow('s_add_u32 s%d, s%d, %d' % (S_T2, S_PL, k * 128))
        slow('s_buffer_load_dword s%d, %s, s%d glc' % (S_T2, sr(SWS, 4), S_T2))
        slow('s_waitcnt lgkmcnt(0)')
    slow('s_cmp_lt_u32 s%d, %d' % (S_T2, n))
    slow('s_cbranch_scc1 L_slow%d' % j)
    slow('s_branch L_ret%d' % j)


def srd(s, d, nbytes):
    s('s_mov_b32 s%d, 0x%x' % (d + 2, nbytes))
    s('s_mov_b32 s%d, 0x20000' % (d + 3))


XSLOT = [R2, R2 + 16384, R1 + 8192, R1 + 24576, R1 + 40960, R2, R2 + 16384]


def kv_slot(n):
    return ((n + 4) % 9) * 16384


def prologue():
    s, T = Seg('pro'), V_T
    s('s_cmp_ge_u32 s2, 256')
    s('s_cbranch_scc1 L_end')
    estamp(s, 'en')
    s('s_load_dwordx2 %s, s[0:1], 0' % sr(SX, 2))
    s('s_load_dwordx2 %s, s[0:1], 8' % sr(SW, 2))
    s('s_load_dwordx2 %s, s[0:1], 32' % sr(S_HI, 2))
    s('v_readfirstlane_b32 s%d, v0' % S_WV)
    s('s_getpc_b64 s[82:83]')
    s('s_lshr_b32 s%d, s2, 3' % S_T2)
    s('s_lshl_b32 s%d, s%d, 11' % (S_P, S_T2))
    s('v_lshl_add_u32 v%d, v0, 2, s%d' % (T, S_P))
    s('v_min_u32 v%d, L_codeend-L_codebeg-64, v%d' % (T, T))
    s('global_load_dword v%d, v%d, s[82:83]' % (V_POLL, T))
    s('s_lshr_b32 s%d, s%d, 6' % (S_WV, S_WV))
    s('v_and_b32 v%d, 63, v0' % T)
    s('s_and_b32 s%d, s%d, 7' % (S_ROLE, S_T2))
    s('v_lshrrev_b32 v%d, 3, v%d' % (T + 1, T))
    s('s_lshr_b32 s%d, s%d, 3' % (S_I2, S_T2))
    s('v_lshrrev_b32 v%d, 4, v%d' % (T + 3, T))
    s('s_and_b32 s%d, s2, 1' % S_HALF)
    s('v_lshl_add_u32 v%d, s%d, 4, v%d' % (T + 5, S_WV, T + 1))
    s('s_bfe_u32 s%d, s2, 0x20001' % S_P)
    s('v_mul_u32_u24 v%d, %d, v%d' % (T + 5, XS, T + 5))
    s('s_lshl2_add_u32 s%d, s%d, s%d' % (S_RB, S_P, S_I2))
    s('v_xor_b32 v%d, v%d, v%d' % (T + 6, T, T + 3))
    s('s_lshl1_add_u32 s%d, s%d, s%d' % (S_T2, S_I2, S_ROLE))
    s('v_and_b32 v%d, 7, v%d' % (T + 6, T + 6))
    s('s_add_u32 s%d, s%d, s%d' % (S_T2, S_T2, S_P))
    s('v_lshl_add_u32 v%d, v%d, 4, v%d' % (V_X0, T + 6, T + 5))
    s('s_mul_i32 s%d, s%d, 3' % (S_T0, S_HALF))
    s('v_xor_b32 v%d, 64, v%d' % (V_X1, V_X0))
    s('s_add_u32 s%d, s%d, s%d' % (S_T2, S_T2, S_T0))
    s('v_add_u32 v%d, %d, v%d' % (V_X1, 8 * XS - 1024, V_X1))
    s('s_mul_i32 s%d, s%d, 37' % (S_T1, S_T2))
    s('v_lshlrev_b32 v%d, 2, v%d' % (T + 4, T + 3))
    s('s_lshr_b32 s%d, s%d, 8' % (S_T1, S_T1))
    s('v_xor_b32 v%d, v%d, v%d' % (T + 4, T, T + 4))
    s('s_mul_i32 s%d, s%d, 7' % (S_T1, S_T1))
    s('s_sub_u32 s%d, s%d, s%d' % (S_T2, S_T2, S_T1))
    if OPT['rot1'] == 0:
        s('s_mov_b32 s%d, 0' % S_T2)
    elif OPT['rot1'] == 2:
        s('s_lshr_b32 s%d, s%d, 1' % (S_T2, S_T2))
    elif OPT['rot1'] == 3:
        s('s_and_b32 s%d, s%d, 4' % (S_T2, S_T2))
    elif OPT['rot1'] == 4:
        s('s_and_b32 s%d, s%d, 6' % (S_T2, S_T2))
    s('s_mul_i32 s%d, s%d, %d' % (S_H, S_RB, 128 * XS))
    s('s_lshl_b32 s%d, s%d, 7' % (S_KX, S_T2))
    s('s_add_u32 s%d, s%d, s%d' % (S_KX, S_KX, S_H))
    s('s_lshl_b32 s%d, s%d, 11' % (S_M0X, S_WV))
    s('s_bitcmp1_b32 0x70, s%d' % S_ROLE)
    s('s_cselect_b32 s%d, 4, 7' % S_T3)
    s('s_lshl_b32 s%d, s%d, 14' % (S_T3, S_T3))
    s('s_add_u32 m0, s%d, s%d' % (S_T3, S_M0X))
    srd(s, SX, 2048 * XS)
    assert XSLOT[0] == 7 << 14 and kv_slot(0) == 4 << 14
    if OPT['touch'] & 8:
        s('s_lshl3_add_u32 s%d, s%d, s%d' % (S_T3, S_HALF, S_ROLE))
        s('v_min_u32 v%d, 6, v%d' % (T + 2, T))
        s('s_lshl3_add_u32 s%d, s%d, s%d' % (S_T3, S_T3, S_WV))
        s('v_lshlrev_b32 v%d, 7, v%d' % (T + 2, T + 2))
        s('s_mul_i32 s%d, s%d, %d' % (S_T3, S_T3, XS))
        s('s_add_u32 s%d, s%d, s%d' % (S_T3, S_T3, S_H))
    if OPT['xfirst']:
        s('s_waitcnt lgkmcnt(0)')
        estamp(s, 'ka')
        s('buffer_load_dwordx4 v%d, %s, s%d offen lds' % (V_X0, sr(SX, 4), S_KX), 't0')
        s('buffer_load_dwordx4 v%d, %s, s%d offen offset:1024 lds' % (V_X1, sr(SX, 4), S_KX), 't0')
        if OPT['touch'] & 8:
            s('buffer_load_dword v%d, v%d, %s, s%d offen' % (V_EXW, T + 2, sr(SX, 4), S_T3))
    s('s_and_b32 s%d, s%d, 3' % (S_RW, S_WV))
    s('s_lshr_b32 s%d, s%d, 2' % (S_G, S_WV))
    s('s_lshl_b32 s%d, s%d, 11' % (S_M0W, S_RW))
    s('s_add_u32 s%d, s%d, s%d' % (S_T0, S_T0, S_ROLE))
    s('s_lshl_b32 s%d, s%d, 7' % (S_T0, S_T0))
    s('s_add_u32 s%d, s%d, %d' % (S_T0, S_T0, XS - 512))
    s('s_lshl2_add_u32 s%d, s%d, s%d' % (S_P, S_HALF, S_ROLE))
    s('s_and_b32 s%d, s%d, 1' % (S_PEND, S_ROLE))
    s('s_lshl_b32 s%d, s%d, 6' % (S_PEND, S_PEND))
    s('s_movk_i32 s%d, %d' % (S_LAST, WQS))
    s('s_cmp_lt_u32 s%d, 4' % S_ROLE)
    s('s_cselect_b32 s%d, %d, s%d' % (S_LAST, W1S, S_LAST))
    s('s_cselect_b32 s%d, s%d, s%d' % (S_P, S_P, S_HALF))
    s('s_cselect_b32 s%d, s%d, 0' % (S_PEND, S_PEND))
    s('s_mul_i32 s%d, s%d, 448' % (S_T1, S_P))
    s('s_add_u32 s%d, s%d, s%d' % (S_T1, S_T1, S_PEND))
    s('s_lshl_b32 s%d, s%d, 6' % (S_RO, S_LAST))
    s('s_mul_i32 s%d, s%d, s%d' % (S_KW, S_T2, S_RO))
    s('s_mul_i32 s%d, s%d, 448' % (SW + 2, S_LAST))
    s('s_mov_b32 s%d, 0x20000' % (SW + 3))
    s('s_lshl_b32 s%d, s%d, 1' % (S_T2, S_RW))
    s('s_add_u32 s%d, s%d, %d' % (S_FL, S_M0X, kv_slot(1)))
    s('s_bitcmp1_b32 0x70, s%d' % S_ROLE)
    s('s_cselect_b32 s%d, s%d, s%d' % (S_T0, S_T0, S_T1))
    s('s_cselect_b32 s%d, s%d, s%d' % (S_T2, S_WV, S_T2))
    s('s_cselect_b32 s%d, s%d, s%d' % (S_FL, S_FL, S_M0W))
    s('s_cselect_b32 s%d, 4, 3' % S_T1)
    s('s_cselect_b32 s%d, 1, s%d' % (S_SPIN, S_G))
    s('v_lshrrev_b32 v%d, s%d, v%d' % (T + 5, S_T1, T))
    s('v_lshl_add_u32 v%d, s%d, 3, v%d' % (T + 5, S_T2, T + 5))
    s('v_bfe_u32 v%d, v%d, 0, s%d' % (T + 6, T + 4, S_T1))
    s('s_lshr_b32 s%d, s%d, s%d' % (S_T1, S_RO, S_T1))
    s('v_mul_u32_u24 v%d, s%d, v%d' % (T + 5, S_LAST, T + 5))
    s('s_sub_u32 s%d, s%d, 1024' % (S_T1, S_T1))
    s('v_lshl_add_u32 v%d, v%d, 4, s%d' % (T + 6, T + 6, S_T0))
    s('v_add_u32 v%d, v%d, v%d' % (V_W, T + 5, T + 6))
    s('s_cmp_lt_u32 s%d, 4' % S_ROLE)
    s('v_add_u32 v%d, s%d, v%d' % (V_WB, S_T1, V_W))
    if not OPT['xfirst']:
        s('s_waitcnt lgkmcnt(0)')
        estamp(s, 'ka')
        s('buffer_load_dwordx4 v%d, %s, s%d offen lds' % (V_X0, sr(SX, 4), S_KX), 't0')
        s('buffer_load_dwordx4 v%d, %s, s%d offen offset:1024 lds' % (V_X1, sr(SX, 4), S_KX), 't0')
        if OPT['touch'] & 8:
            s('buffer_load_dword v%d, v%d, %s, s%d offen' % (V_EXW, T + 2, sr(SX, 4), S_T3))
    s('s_cselect_b64 %s, %s, %s' % (sr(SW, 2), sr(S_HI, 2), sr(SW, 2)))
    s('s_mov_b32 m0, s%d' % S_FL)
    s('s_cmp_eq_u32 s%d, 0' % S_SPIN)
    s('s_cbranch_scc1 L_now')
    w = Seg('prow')
    w('buffer_load_dwordx4 v%d, %s, s%d offen lds' % (V_W, sr(SW, 4), S_KW), 't0')
    w('buffer_load_dwordx4 v%d, %s, s%d offen offset:1024 lds' % (V_WB, sr(SW, 4), S_KW), 't0')
    e = Seg('proe')
    e('L_now:')
    if OPT['touch'] & 16:
        e('v_min_u32 v%d, 55, v%d' % (T + 2, T))
        e('s_mul_i32 s%d, s%d, 28' % (S_T3, S_RB))
        e('v_lshrrev_b32 v%d, 1, v%d' % (T + 5, T + 2))
        e('s_mul_i32 s%d, s%d, s%d' % (S_T3, S_T3, S_LAST))
        e('v_mul_u32_u24 v%d, s%d, v%d' % (T + 5, S_LAST, T + 5))
        e('s_add_u32 s%d, s%d, s%d' % (S_T3, S_T3, S_T0))
        e('v_and_b32 v%d, 1, v%d' % (T + 2, T + 2))
        e('s_lshl_b32 s%d, s%d, 28' % (S_T2, S_WV))
        e('v_lshl_add_u32 v%d, v%d, 7, v%d' % (T + 2, T + 2, T + 5))
        e('s_add_u32 s%d, s%d, s%d' % (S_T3, S_T3, S_T2))
        e('buffer_load_dword v%d, v%d, %s, s%d offen' % (V_EXW, T + 2, sr(SW, 4), S_T3))
    estamp(e, 't0')
    for d, off in ((SWS, 80), (SB1, 40), (SDBG, 72), (SW2, 48), (SWO, 16), (SB2, 56), (SOUT, 64)):
        e('s_load_dwordx2 %s, s[0:1], %d' % (sr(d, 2), off))
    essential(e)
    e('s_cmp_ge_u32 s%d, 7' % S_ROLE)
    e('s_cbranch_scc1 L_q')
    e('s_cmp_ge_u32 s%d, 4' % S_ROLE)
    e('s_cbranch_scc1 L_kv')
    return s, w, e


def zipper(a, b):
    out = []
    for k in range(max(len(a), len(b))):
        out += a[k:k + 1] + b[k:k + 1]
    return out


def essential(z):
    T = V_T
    k, s = Seg(), Seg()
    k('s_add_u32 s%d, s%d, %d' % (S_T2, S_H, XS))
    for c in range(1, 7):
        k('s_add_u32 s%d, s%d, 128' % (S_KX + c, S_KX + c - 1))
        k('s_add_u32 s%d, s%d, s%d' % (S_KW + c, S_KW + c - 1, S_RO))
        k('s_cmp_eq_u32 s%d, s%d' % (S_KX + c, S_T2))
        k('s_cselect_b32 s%d, s%d, s%d' % (S_KX + c, S_H, S_KX + c))
        k('s_cselect_b32 s%d, 0, s%d' % (S_KW + c, S_KW + c))
    k('s_mov_b32 s%d, 0x3f803f80' % S_ONES)
    s('v_lshlrev_b32 v%d, 4, v%d' % (V_L16, T))
    s('v_and_b32 v%d, 1, v%d' % (T + 7, T + 3))
    s('v_and_b32 v%d, 31, v%d' % (T + 8, T))
    s('v_lshrrev_b32 v%d, 5, v%d' % (T + 9, T))
    s('v_bfe_u32 v%d, v%d, 2, 2' % (T + 10, T))
    s('v_and_b32 v%d, 3, v%d' % (T + 11, T))
    s('v_lshl_add_u32 v%d, s%d, 1, v%d' % (T + 12, S_RW, T + 9))
    s('v_bfe_u32 v%d, v%d, 1, 3' % (T + 5, T))
    s('v_xor_b32 v%d, v%d, v%d' % (T + 5, T + 12, T + 5))
    s('v_lshl_add_u32 v%d, s%d, 5, v%d' % (T + 13, S_RW, T + 8))
    s('v_lshlrev_b32 v%d, 7, v%d' % (V_XA, T + 13))
    s('v_lshl_add_u32 v%d, v%d, 4, v%d' % (V_XA, T + 5, V_XA))
    for j in range(1, 4):
        s('v_xor_b32 v%d, %d, v%d' % (V_XA + j, j << 5, V_XA))
    s('v_lshl_add_u32 v%d, v%d, 3, v%d' % (T + 12, T + 12, T + 10))
    s('v_lshl_add_u32 v%d, v%d, 2, v%d' % (T + 14, T + 7, T + 11))
    s('v_and_b32 v%d, 1, v%d' % (T + 5, T + 10))
    s('v_mov_b32 v%d, 0x3f803f80' % (T + 6))
    s('v_cmp_eq_u32 vcc, v%d, v%d' % (T + 5, T + 7))
    for j in range(4):
        s('v_mov_b32 v%d, 0' % (V_ST + j))
    for j in range(4):
        s('v_cndmask_b32 v%d, 0, v%d, vcc' % (V_SEL + j, T + 6))
    s('v_mov_b32 v%d, 0x%x' % (V_FLO, OOB))
    s('v_cmp_eq_u32 vcc, 0, v%d' % T)
    s('v_mov_b32 v%d, 1' % V_ONE)
    s('v_mov_b32 v%d, 0' % (V_EXW + 1))
    s('v_cndmask_b32 v%d, v%d, 0, vcc' % (V_FLO, V_FLO))
    z.extend(zipper(list(k), list(s)))


def deferred(kv):
    s, T = Seg(), V_T
    for k in EARLY:
        if OPT['diag'] and k in STAMPS:
            s('v_readfirstlane_b32 s%d, v%d' % (S_KA + 2 * STAMPS.index(k), 120 + EARLY.index(k)))
    srd(s, SW2, 1792 * XS)
    srd(s, SWO, 448 * XS)
    srd(s, SOUT, 2048 * XS)
    srd(s, SB2, 448 * 2)
    s('s_mov_b32 s%d, %s' % (S_EPS, f32(1e-6)))
    s('s_mov_b32 s%d, %s' % (S_L2E, f32(LOG2E)))
    s('s_mov_b32 s%d, 0' % S_HI)
    s('s_mov_b32 s%d, -1' % (S_HI + 1))
    if kv:
        s('s_mov_b32 s%d, 0xf0000000' % S_PAD)
        s('s_mov_b32 s%d, 0xf0000000' % (S_PAD + 1))
        s('v_mov_b32 v%d, 0' % (V_EXW + 3))
    s('s_mov_b32 s%d, 0' % S_SPIN)
    s('v_and_b32 v%d, 7, v%d' % (T + 4, T + 4))
    s('v_mul_u32_u24 v%d, %d, v%d' % (V_B2, XS, T + 1))
    s('v_lshl_add_u32 v%d, v%d, 4, v%d' % (V_B2, T + 4, V_B2))
    if kv:
        s('s_mov_b32 s%d, %d' % (S_T1, M_CS))
    else:
        s('s_lshl_b32 s%d, s%d, 9' % (S_T1, S_G))
        s('s_add_u32 s%d, s%d, %d' % (S_T1, S_T1, M_CS))
    s('v_lshl_add_u32 v%d, v%d, 4, s%d' % (V_CSR, T + 8, S_T1))
    s('v_lshl_add_u32 v%d, s%d, 2, v%d' % (V_CSW, S_RW, V_CSR))
    s('s_lshl2_add_u32 s%d, s%d, %d' % (S_T1, S_WV, M_SY))
    s('v_mov_b32 v%d, s%d' % (V_PA, S_T1))
    for k in ((0, 128, 160, 192, 224) if kv else (0,)):
        s('ds_write_b32 v%d, v%d offset:%d' % (V_PA, V_EXW + 1, k))
    if not kv:
        s('v_lshlrev_b32 v%d, 4, v%d' % (V_EXR, T + 13))
        s('v_add_u32 v%d, %d, v%d' % (V_EXR, M_ST, V_EXR))
        s('v_lshl_add_u32 v%d, v%d, 3, v%d' % (V_EXR + 1, T + 9, V_EXR))
    s('s_and_b32 s%d, s2, 7' % S_T1)
    s('s_lshl2_add_u32 s%d, s%d, s%d' % (S_I2, S_T1, S_I2))
    s('s_lshl1_add_u32 s%d, s%d, s%d' % (S_T1, S_I2, S_ROLE))
    s('s_and_b32 s%d, s%d, 3' % (S_RO, S_T1))
    s('s_and_b32 s%d, s%d, 4' % (S_T1, S_T1))
    s('s_lshl2_add_u32 s%d, s%d, s%d' % (S_RO, S_T1, S_RO))
    if not OPT['rot2']:
        s('s_mov_b32 s%d, 0' % S_RO)
    return s


def tlb_warm(s):
    if not OPT['tlb']:
        return
    T = V_T
    s('s_cmp_eq_u32 s%d, 0' % S_WV)
    s('s_cselect_b32 s%d, 128, 0x%x' % (S_T1, OOB))
    for r in (SDBG, SW2, SWO, SB2, SOUT):
        s('buffer_load_dword v%d, v%d, %s, s%d offen' % (T + 15, V_FLO, sr(r, 4), S_T1))
    s('v_lshlrev_b32 v%d, 17, v%d' % (T + 5, V_L16))
    s('v_min_u32 v%d, 0x%x, v%d' % (T + 5, 0x9f0000, T + 5))
    s('buffer_load_dword v%d, v%d, %s, s%d offen' % (T + 15, T + 5, sr(SWS, 4), S_T1))


def dma_x(s, c, addr, tag):
    s('s_add_u32 m0, s%d, %d' % (S_M0X, addr))
    s('buffer_load_dwordx4 v%d, %s, s%d offen lds' % (V_X0, sr(SX, 4), S_KX + c), tag)
    s('buffer_load_dwordx4 v%d, %s, s%d offen offset:1024 lds' % (V_X1, sr(SX, 4), S_KX + c), tag)


def dma_w(s, m0base, c, addr, tag):
    s('s_add_u32 m0, s%d, %d' % (m0base, addr))
    s('buffer_load_dwordx4 v%d, %s, s%d offen lds' % (V_W, sr(SW, 4), S_KW + c), tag)
    s('buffer_load_dwordx4 v%d, %s, s%d offen offset:1024 lds' % (V_WB, sr(SW, 4), S_KW + c), tag)


def groups(z):
    out, cur = [], []
    for i in z:
        cur.append(i)
        if i.kind == 'vmem':
            out.append(cur)
            cur = []
    if cur:
        out.append(cur)
    return out


def mix(main, grp, lo=0.0, hi=1.0):
    main = [i for i in main if i is not GAP]
    out, k, n = [], 0, len(main)
    for idx, i in enumerate(main):
        while k < len(grp) and idx >= n * (lo + (hi - lo) * k / len(grp)):
            out.extend(grp[k])
            k += 1
        out.append(i)
    for g in grp[k:]:
        out.extend(g)
    return out


def barrier(z, vm=None, name=None):
    if name:
        stamp(z, name + 'a')
    z.wait(vm=vm, lgkm='all')
    if name:
        stamp(z, name + 'b')
    z('s_barrier')


BLK = [0, 4, 1, 5, 2, 6, 3]


def unit_ks(u):
    return 4 * BLK[u >> 2] + (u & 3)


def unit_loc(u):
    u %= 11
    return (S_QR2, 1, u * 2048) if u < 5 else (S_QR0, 0, (u - 5) * 2048)


def p2_setup(s):
    s('s_lshl_b32 s%d, s%d, 7' % (S_T0, S_ROLE))
    s('s_mul_i32 s%d, s%d, %d' % (S_B2R, S_RW, 448 * XS))
    s('s_add_u32 s%d, s%d, s%d' % (S_B2R, S_B2R, S_T0))
    s('s_mul_i32 s%d, s%d, %d' % (S_WOR, S_RW, 112 * XS))
    s('s_add_u32 s%d, s%d, s%d' % (S_WOR, S_WOR, S_T0))
    s('s_mul_i32 s%d, s%d, %d' % (S_OUTO, S_I2, 64 * XS))
    s('s_add_u32 s%d, s%d, s%d' % (S_OUTO, S_OUTO, S_T0))
    s('s_mul_i32 s%d, s%d, 12288' % (S_QR0, S_RW))
    s('s_lshr_b32 s%d, s%d, 2' % (S_RO3, S_RO))
    s('s_or_b32 s%d, s%d, s%d' % (S_RO3, S_RO3, S_RO))
    s('s_and_b32 s%d, s%d, 7' % (S_RO3, S_RO3))
    s('s_mul_i32 s%d, s%d, 10240' % (S_QR2, S_RW))
    s('s_add_u32 s%d, s%d, %d' % (S_QR2, S_QR2, R2))
    s('s_mul_i32 s%d, s%d, %d' % (S_A, S_I2, 2 * ACT_G))
    s('v_add_u32 v%d, %d, v%d' % (V_B2B, 8 * XS - 1024, V_B2))


def touch_w(s, ffn):
    if not OPT['touch'] & 1:
        return
    T = V_T
    s('s_and_b32 s%d, s%d, 3' % (S_T2, S_ROLE))
    s('s_lshl2_add_u32 s%d, s%d, s%d' % (S_T2, S_RB, S_T2))
    s('s_lshl3_add_u32 s%d, s%d, s%d' % (S_T2, S_T2, S_WV))
    s('s_mul_i32 s%d, s%d, %d' % (S_T2, S_T2, W1S if ffn else WQS))
    s('s_mul_i32 s%d, s%d, %d' % (S_T3, S_HALF, 1792 if ffn else 384))
    s('s_add_u32 s%d, s%d, s%d' % (S_T2, S_T2, S_T3))
    if ffn:
        s('v_min_u32 v%d, 13, v%d' % (T + 2, T))
    else:
        s('v_min_u32 v%d, 11, v%d' % (T + 2, T))
        s('v_lshrrev_b32 v%d, 2, v%d' % (T + 15, T + 2))
        s('v_mad_u32_u24 v%d, v%d, 3, v%d' % (T + 2, T + 15, T + 2))
    s('v_lshlrev_b32 v%d, 7, v%d' % (T + 2, T + 2))
    s('buffer_load_dword v%d, v%d, %s, s%d offen' % (V_EXW, T + 2, sr(SW, 4), S_T2))


def touch_w2(s):
    if not OPT['touch'] & 2:
        return
    T = V_T
    s('s_lshl3_add_u32 s%d, s2, s%d' % (S_T2, S_WV))
    s('s_mul_i32 s%d, s%d, %d' % (S_T2, S_T2, XS))
    s('v_min_u32 v%d, 6, v%d' % (T + 2, T))
    s('v_lshlrev_b32 v%d, 7, v%d' % (T + 2, T + 2))
    s('s_sub_u32 s%d, %d, s%d' % (S_T3, 2047 * XS, S_T2))
    s('buffer_load_dword v%d, v%d, %s, s%d offen' % (V_POLL, T + 2, sr(SW2, 4), S_T2))
    s('buffer_load_dword v%d, v%d, %s, s%d offen' % (V_POLL, T + 2, sr(SWO, 4), S_T3))


def touch_kv(s):
    if not OPT['touch'] & 4:
        return
    T = V_T + 8
    s('s_mul_i32 s%d, s%d, 6' % (S_T2, S_RB))
    s('s_add_u32 s%d, s%d, s%d' % (S_T2, S_T2, S_P))
    s('s_lshl2_add_u32 s%d, s%d, s%d' % (S_T2, S_T2, S_RW))
    s('v_min_u32 v%d, %d, v%d' % (T, 32 * 16, V_L16))
    s('s_mul_i32 s%d, s%d, %d' % (S_T3, S_T2, 33 * 128))
    s('v_lshlrev_b32 v%d, 3, v%d' % (T, T))
    s('buffer_load_dword v%d, v%d, %s, s%d offen' % (T + 1, T, sr(SW2, 4), S_T3))
    s('v_min_u32 v%d, %d, v%d' % (T, 8 * 128, T))
    s('s_mul_i32 s%d, s%d, %d' % (S_T3, S_T2, 9 * 128))
    s('buffer_load_dword v%d, v%d, %s, s%d offen' % (T + 1, T, sr(SWO, 4), S_T3))


def touch_l2(s, r, t):
    if not OPT['touch'] & 32 or not OPT['rounds'] >> r & 1:
        return
    s('s_add_u32 s%d, s2, %d' % (S_T3, r))
    s('s_and_b32 s%d, s%d, 3' % (S_T3, S_T3))
    s('s_mul_i32 s%d, s%d, 49' % (S_T3, S_T3))
    s('s_lshr_b32 s%d, s2, 6' % S_T2)
    s('s_mul_i32 s%d, s%d, 3' % (S_T2, S_T2))
    s('s_add_u32 s%d, s%d, s%d' % (S_T2, S_T2, S_ROLE))
    s('s_lshl2_add_u32 s%d, s%d, s%d' % (S_T2, S_T2, S_RW))
    s('s_add_u32 s%d, s%d, s%d' % (S_T3, S_T3, S_T2))
    s('s_sub_u32 s%d, s%d, 16' % (S_T3, S_T3))
    s('v_lshlrev_b32 v%d, 3, v%d' % (t, V_L16))
    s('s_lshl_b32 s%d, s%d, 13' % (S_T3, S_T3))
    s('buffer_load_dword v%d, v%d, %s, s%d offen' % (t, t, sr(SW2, 4), S_T3))


def touch_wo(s, t):
    if not OPT['touch'] & 32:
        return
    s('s_lshr_b32 s%d, s2, 6' % S_T2)
    s('s_lshl3_add_u32 s%d, s%d, s%d' % (S_T2, S_T2, S_WV))
    s('v_min_u32 v%d, %d, v%d' % (t, 48 * 16, V_L16))
    s('s_mul_i32 s%d, s%d, %d' % (S_T2, S_T2, 14 * XS))
    s('v_lshlrev_b32 v%d, 3, v%d' % (t, t))
    s('s_add_u32 s%d, s%d, %d' % (S_T3, S_T2, 7 * XS))
    s('buffer_load_dword v%d, v%d, %s, s%d offen' % (t + 1, t, sr(SWO, 4), S_T2))
    s('buffer_load_dword v%d, v%d, %s, s%d offen' % (t + 1, t, sr(SWO, 4), S_T3))


def ks_dyn(s, dst, u):
    if u < 24:
        s('s_xor_b32 s%d, s%d, %d' % (dst, S_RO, unit_ks(u)))
    else:
        s('s_and_b32 s%d, s%d, 3' % (dst, S_RO))
        s('s_xor_b32 s%d, s%d, %d' % (dst, dst, unit_ks(u)))


def dma_b2(s, u):
    base, _, off = unit_loc(u)
    if u < 28:
        ks_dyn(s, S_T3, u)
        if OPT['x_hit'] & 2:
            s('s_and_b32 s%d, s%d, 7' % (S_T3, S_T3))
        s('s_add_u32 m0, s%d, %d' % (base, off))
        s('s_mul_i32 s%d, s%d, %d' % (S_T3, S_T3, 16 * XS))
        s('s_add_u32 s%d, s%d, s%d' % (S_T3, S_T3, S_B2R))
    else:
        s('s_xor_b32 s%d, s%d, %d' % (S_T3, S_RO3, u - 28))
        s('s_and_b32 s%d, s%d, 1' % (S_T1, S_T3))
        s('s_mul_i32 s%d, s%d, 7' % (S_T3, S_T3))
        s('s_add_u32 s%d, s%d, s%d' % (S_T3, S_T3, S_T1))
        s('s_add_u32 m0, s%d, %d' % (base, off))
        s('s_mul_i32 s%d, s%d, %d' % (S_T3, S_T3, 2 * XS))
        s('s_add_u32 s%d, s%d, s%d' % (S_T3, S_T3, S_WOR))
    w = SW2 if u < 28 else SWO
    s('buffer_load_dwordx4 v%d, %s, s%d offen lds' % (V_B2, sr(w, 4), S_T3), ('b', u))
    s('buffer_load_dwordx4 v%d, %s, s%d offen offset:1024 lds' % (V_B2B, sr(w, 4), S_T3), ('b', u))


def abuf(u, rg):
    return V_AB + 8 * (u % DEP) + 4 * rg if u < 28 else V_AB + 64 + 8 * (u - 28) + 4 * rg


def a_setup(s):
    s('v_add_u32 v%d, %d, v%d' % (V_L16B, ACT_G, V_L16))
    s('s_lshl_b32 s%d, s%d, 13' % (S_T0, S_RW))
    s('s_add_u32 s%d, s%d, s%d' % (S_P, S_A, S_T0))
    s('s_add_u32 s%d, s%d, %d' % (S_P, S_P, 112 * 1024))
    s('s_mul_i32 s%d, s%d, %d' % (S_T0, S_RW, 28 * 1024))
    s('s_add_u32 s%d, s%d, s%d' % (S_A, S_A, S_T0))


def aload(z, u):
    ks_dyn(z, S_T0, u)
    z('s_lshl_b32 s%d, s%d, 10' % (S_T0, S_T0))
    z('s_add_u32 s%d, s%d, s%d' % (S_T0, S_T0, S_A))
    for rg in range(2):
        z('buffer_load_dwordx4 %s, v%d, %s, s%d offen sc1' % (vr(abuf(u, rg), 4), V_L16B if rg else V_L16, sr(SWS, 4), S_T0), ('a', u))


def sync_arrive(s, k):
    s('ds_write_b32 v%d, v%d offset:%d' % (V_PA, V_ONE, k * 32))


def sync_wait(s, k, nw, T):
    j = nspin[0]
    nspin[0] += 1
    s('v_mov_b32 v%d, %d' % (T + 8, M_SY))
    s('L_sy%d:' % j)
    for h in range(nw // 4):
        s('ds_read_b128 %s, v%d offset:%d' % (vr(T + 4 * h, 4), T + 8, k * 32 + h * 16))
    s('s_add_u32 s%d, s%d, 1' % (S_SPIN, S_SPIN))
    s('s_cmp_gt_u32 s%d, 0x%x' % (S_SPIN, SPIN_LIMIT))
    s('s_cbranch_scc1 L_sz%d' % j)
    s.wait(lgkm='all')
    for h in range(1, nw - 1, 2):
        s('v_and_b32 v%d, v%d, v%d' % (T + h, T + h, T + h + 1))
    for h in range(1, nw, 2):
        s('v_and_b32 v%d, v%d, v%d' % (T, T, T + h))
    s('v_readfirstlane_b32 s%d, v%d' % (S_T2, T))
    s('s_cmp_eq_u32 s%d, 0' % S_T2)
    s('s_cbranch_scc1 L_sy%d' % j)
    s('L_sz%d:' % j)
    s.wait(lgkm='all')


def flag(s, off):
    if OPT['fatom']:
        s('buffer_atomic_add v%d, v%d, %s, s%d offen offset:%d sc1' % (V_ONE, V_FLO, sr(SWS, 4), S_FL, off))
    else:
        s('buffer_store_dword v%d, v%d, %s, s%d offen offset:%d sc1' % (V_ONE, V_FLO, sr(SWS, 4), S_FL, off))


def f0_load(s):
    s('buffer_load_dword v%d, v%d, %s, 0 offen sc1' % (V_POLL, V_FLO, sr(SDBG, 4)), 'f0')


def f0_check(s):
    s('v_mov_b32 v%d, 32' % (V_T + 15))
    stamp(s, 'f0a')
    s.wait(vm='f0')
    stamp(s, 'f0b')
    spin_check(s, V_POLL, V_T + 15, V_FLO, SDBG, '0', 1)


def poll_early(s):
    poll_base(s)
    poll_async(s, 0)


def xreg(c, j):
    return V_X + 16 * c + 4 * j


def dots(s, c):
    for j in range(4):
        s.wait(lgkm=[('x', c, j)])
        for r in range(4):
            x = xreg(c, j) + r
            s('v_dot2c_f32_bf16 v%d, s%d, v%d' % (V_ST + (r & 1), S_ONES, x))
            s('v_dot2c_f32_bf16 v%d, v%d, v%d' % (V_ST + 2 + (r & 1), x, x))


def stats_write(s):
    s('v_add_f32 v%d, v%d, v%d' % (V_ST, V_ST, V_ST + 1))
    s('v_add_f32 v%d, v%d, v%d' % (V_ST + 1, V_ST + 2, V_ST + 3))
    s('ds_write_b64 v%d, %s' % (V_EXR + 1, vr(V_ST, 2)))


def stats_final(kind):
    s, T = Seg(), V_T
    s('ds_read_b128 %s, v%d' % (vr(T, 4), V_EXR), 'st')
    s.append(GAP)
    s.wait(lgkm='st')
    s('v_add_f32 v%d, v%d, v%d' % (T, T, T + 2))
    s('v_add_f32 v%d, v%d, v%d' % (T + 1, T + 1, T + 3))
    s('v_mul_f32 v%d, %s, v%d' % (T, f32(1.0 / 448), T))
    s('v_mul_f32 v%d, %s, v%d' % (T + 1, f32(1.0 / 448), T + 1))
    s('v_fma_f32 v%d, -v%d, v%d, v%d' % (T + 1, T, T, T + 1))
    s('v_max_f32 v%d, 0, v%d' % (T + 1, T + 1))
    s('v_cvt_pk_bf16_f32 v%d, v%d, v%d' % (T + 1, T + 1, T + 1))
    s('v_lshlrev_b32 v%d, 16, v%d' % (T + 1, T + 1))
    s('v_add_f32 v%d, %s, v%d' % (T + 1, f32(1e-5), T + 1))
    s('v_cvt_pk_bf16_f32 v%d, v%d, v%d' % (T + 1, T + 1, T + 1))
    s('v_lshlrev_b32 v%d, 16, v%d' % (T + 1, T + 1))
    s('v_sqrt_f32 v%d, v%d' % (T + 1, T + 1))
    s('v_cvt_pk_bf16_f32 v%d, -v%d, -v%d' % (T, T, T))
    s('v_cvt_pk_bf16_f32 v%d, v%d, 0' % (T + 1, T + 1))
    s('v_cndmask_b32 v%d, v%d, 0, %s' % (V_EXR, T, sr(S_HI, 2)))
    s('v_lshlrev_b32 v%d, 16, v%d' % (V_ST + 2, T + 1))
    s('v_rcp_f32 v%d, v%d' % (V_ST + 3, V_ST + 2))
    s('v_cndmask_b32 v%d, v%d, 0, %s' % (V_EXR + 1, T + 1, sr(S_HI, 2)))
    if kind == 'gelu':
        s('v_mul_f32 v%d, %s, v%d' % (V_ST, f32(GC1), V_ST + 3))
        s('v_mul_f32 v%d, v%d, v%d' % (T, V_ST + 3, V_ST + 3))
        s('v_mul_f32 v%d, %s, v%d' % (V_ST + 1, f32(GC3), V_ST + 3))
        s('v_mul_f32 v%d, v%d, v%d' % (V_ST + 1, T, V_ST + 1))
    elif kind == 'phi':
        s('v_mul_f32 v%d, s%d, v%d' % (V_ST, S_L2E, V_ST + 3))
    return s


def ext_parts(acc, off, exw, swap, bias=None, T=V_T + 8):
    r, b, m = Seg(), Seg(), Seg()
    tag = ('cs', id(r))
    r('ds_read_b128 %s, v%d offset:%d' % (vr(T, 4), V_CSR, off), tag)
    b.wait(lgkm=[tag])
    b('v_add_f32 v%d, v%d, v%d' % (T, T, T + 1))
    b('v_add_f32 v%d, v%d, v%d' % (T + 2, T + 2, T + 3))
    b('v_add_f32 v%d, v%d, v%d' % (T, T, T + 2))
    b('v_cvt_pk_bf16_f32 v%d, v%d, v%d' % (T + 1, T, T))
    b('v_lshlrev_b32 v%d, 16, v%d' % (T + 1, T + 1))
    b('v_sub_f32 v%d, v%d, v%d' % (T + 1, T, T + 1))
    b('v_cvt_pk_bf16_f32 v%d, v%d, v%d' % (exw, T, T + 1))
    if bias is not None:
        r('v_mov_b32 v%d, v%d' % (exw + 1, bias))
    x, y = (V_EXR, exw) if swap else (exw, V_EXR)
    m('v_mfma_f32_32x32x8_bf16 %s, %s, %s, %s' % (vr(acc, 16), vr(x, 2), vr(y, 2), vr(acc, 16)))
    KEEP.append(r)
    return r, b, m


KEEP = []


def head(parts, stats=None):
    st = [i for i in stats if i is not GAP] if stats is not None else []
    out = st[:1]
    for p in parts:
        out += p[0]
    out += st[1:]
    for p in parts:
        out += p[1]
    for p in parts:
        out += p[2]
    return out


def epi_rowlane(kind, acc, tag, handoff=False, keep=None):
    s, T = Seg(), V_T
    for grp in range(4):
        a = [acc + 4 * grp + e for e in range(4)]
        t = [T + e for e in range(4)]
        if kind == 'gelu':
            for e in range(4):
                s('v_mul_f32 v%d, v%d, v%d' % (t[e], a[e], a[e]))
            for e in range(4):
                s('v_fma_f32 v%d, v%d, v%d, v%d' % (t[e], t[e], V_ST + 1, V_ST))
            for e in range(4):
                s('v_mul_f32 v%d, v%d, v%d' % (t[e], a[e], t[e]))
            for e in range(4):
                s('v_exp_f32 v%d, v%d' % (t[e], t[e]))
            for e in range(4):
                s('v_fma_f32 v%d, v%d, v%d, v%d' % (t[e], t[e], V_ST + 2, V_ST + 2))
            for e in range(4):
                s('v_rcp_f32 v%d, v%d' % (t[e], t[e]))
            for e in range(4):
                s('v_mul_f32 v%d, v%d, v%d' % (a[e], a[e], t[e]))
        else:
            for e in range(4):
                s('v_mul_f32 v%d, v%d, v%d' % (t[e], a[e], V_ST))
            for e in range(4):
                s('v_exp_f32_e64 v%d, v%d clamp' % (t[e], t[e]))
            for e in range(4):
                s('v_fma_f32 v%d, v%d, v%d, s%d' % (a[e], a[e], V_ST + 3, S_EPS))
            for e in range(4):
                s('v_max_f32 v%d, s%d, v%d' % (a[e], S_EPS, a[e]))
            for e in range(4):
                s('v_add_f32 v%d, v%d, v%d' % (a[e], a[e], t[e]))
        p = acc + 8 * (grp >> 1) + 2 * (grp & 1) if keep is None else keep + 2 * grp
        s('v_cvt_pk_bf16_f32 v%d, v%d, v%d' % (p, a[0], a[1]))
        s('v_cvt_pk_bf16_f32 v%d, v%d, v%d' % (p + 1, a[2], a[3]))
        if kind == 'phi' and grp == 3:
            s('v_cndmask_b32 v%d, v%d, 0, %s' % (p, p, sr(S_HI, 2)))
            s('v_cndmask_b32 v%d, v%d, 0, %s' % (p + 1, p + 1, sr(S_HI, 2)))
        if grp & 1 and keep is None:
            f = grp >> 1
            if handoff:
                s('ds_write_b128 v%d, %s offset:%d' % (V_RA, vr(acc + 8 * f, 4), f * 1024))
                continue
            s('buffer_store_dwordx4 %s, v%d, %s, s%d offen offset:%d sc1' % (vr(acc + 8 * f, 4), V_L16, sr(SWS, 4), S_H, f * 1024), tag)
    return s


def lc_role(ffn):
    kind = 'gelu' if ffn else 'phi'
    nm = 'f' if ffn else 'q'
    s, T = Seg(nm), V_T
    if not ffn:
        s('L_q:')
    if OPT['twat'] < -1:
        touch_w(s, ffn)
    s('s_mul_i32 s%d, s%d, %d' % (S_T1, S_G, 64 if ffn else 56))
    s('v_lshrrev_b32 v%d, 1, v%d' % (T + 6, T + 10))
    s('v_lshl_add_u32 v%d, v%d, 3, s%d' % (T + 5, T + 14, S_T1))
    s('v_lshlrev_b32 v%d, 6, v%d' % (T + 6, T + 6))
    s('v_xor_b32 v%d, v%d, v%d' % (T + 5, T + 5, T + 6))
    s('v_lshl_add_u32 v%d, v%d, 7, v%d' % (V_WA, T + 12, T + 5))
    for j in range(1, 4):
        s('v_xor_b32 v%d, %d, v%d' % (V_WA + j, j << 11, V_WA))
    srd(s, SWS, WS_BYTES)
    srd(s, SDBG, 256)
    s('s_waitcnt lgkmcnt(0)')
    if not ffn:
        s('s_lshl1_add_u32 s%d, s%d, s%d' % (S_T2, S_RB, S_HALF))
        s('s_mul_i32 s%d, s%d, 6' % (S_T1, S_T2))
        s('s_add_u32 s%d, s%d, s%d' % (S_T1, S_T1, S_WV))
        s('s_lshl_b32 s%d, s%d, 10' % (S_T1, S_T1))
        s('s_add_u32 s%d, s%d, 0x%x' % (S_T1, S_T1, KV_OFF))
        s('s_lshl_b32 s%d, s%d, 10' % (S_LAST, S_T2))
        s('s_add_u32 s%d, s%d, 0x%x' % (S_LAST, S_LAST, ST_OFF))
        s('s_cmp_lt_u32 s%d, 6' % S_WV)
        s('s_cselect_b32 s%d, s%d, 0x%x' % (S_T1, S_T1, OOB))
        s('s_cmp_eq_u32 s%d, 6' % S_WV)
        s('s_cselect_b32 s%d, s%d, s%d' % (S_T1, S_LAST, S_T1))
        s('buffer_store_dwordx4 %s, v%d, %s, s%d offen sc1' % (vr(V_ST, 4), V_L16, sr(SWS, 4), S_T1), 'zero')
    s('s_cmp_eq_u32 s%d, 1' % S_G)
    s('s_cbranch_scc1 L_%sb' % nm)
    UA, UB = [([(0,), (2,)], [(1,), (3, 4)]), ([(), ()], [(0, 1), (2, 3, 4)]), ([(0, 1), (3,)], [(2,), (4,)])][OPT['ub']]
    step = 128 if ffn else 112
    region = [R0, R1, R0, R1]
    acc = V_ACC

    def stream(g):
        z = Seg(nm + 'ab'[g])
        if g:
            z('L_%sb:' % nm)
        xa = Rebase([V_XA + j for j in range(4)], 0, 0)
        wa = Rebase([V_WA + j for j in range(4)], 0, 512)

        def triple(t, c):
            dma_x(t, c, XSLOT[c], ('t', c))
            if g:
                dma_w(t, S_M0W, c, R0 + c * 8192, ('t', c))

        def lc(t, q, c):
            dma_w(t, S_M0W, c, region[q] + c * 8192, ('l', q, c))

        def wread(t, q, c, j):
            o = wa.off(t, region[q] + c * 8192)
            for u in range(2):
                t('ds_read_b64_tr_b16 %s, v%d offset:%d' % (vr(V_WF + 4 * j + 2 * u, 2), V_WA + j, o + u * 512), ('w', q, c, j))

        def xread(t, c, j):
            o = xa.off(t, XSLOT[c])
            t('ds_read_b128 %s, v%d offset:%d' % (vr(xreg(c, j), 4), V_XA + j, o), ('x', c, j))

        def kstep(q, c, j):
            t = Seg()
            t.wait(lgkm=[('w', q, c, j)])
            first = c == 0 and j == 0
            t('v_mfma_f32_32x32x16_bf16 %s, %s, %s, %s' % (vr(acc, 16), vr(V_WF + 4 * j, 4), vr(xreg(c, j), 4), '0' if first else vr(acc, 16)))
            if j == 0:
                t('v_mfma_f32_16x16x32_bf16 %s, %s, %s, %s' % (vr(V_CS, 4), vr(V_SEL, 4), vr(V_WF + 4 * j, 4), '0' if first else vr(V_CS, 4)))
            if c < 6:
                wread(t, q, c + 1, j)
            return t

        def preread(t, q):
            for j in range(4):
                wread(t, q, 0, j)

        def gemm(t, q, fill=(), extra=None):
            t('s_setprio 1')
            slots = [kstep(q, c, j) for c in range(7) for j in range(4)]
            for k, gi in enumerate(groups(extra) if extra is not None else []):
                slots[min(1 + OPT['gsp'] * k, 27)].extend(gi)
            slots[26]('ds_write_b32 v%d, v%d' % (V_CSW, V_CS))
            t.extend(interleave(slots, list(fill), 0, 20))

        def next_col(t, last=False):
            for r in (V_W, V_WB):
                if last and ffn:
                    t('v_add_u32 v%d, s%d, v%d' % (r, S_LAST, r))
                else:
                    t('v_add_u32 v%d, %d, v%d' % (r, step, r))

        def epi(t, q, extra=None, pre=None, handoff=False, hi=0.85, keep=False, nxt=None):
            grp = groups(extra) if extra is not None else []
            t('s_setprio 2')
            t.extend(head([ext_parts(acc, 0, V_EXW, False, V_B1 + q if ffn else None)], pre))
            if not keep:
                t('s_setprio %d' % OPT['eprio'])
            stamp(t, 'x%d' % (2 * q + g + 1))
            for gi in grp[:2]:
                t.extend(gi)
            body = mix(epi_rowlane(kind, acc, ('h', q), handoff, None if ffn else V_PQ + 8 * q), grp[2:], 0.03, hi)
            if nxt is not None:
                r = Seg()
                if ffn and not g and nxt == 3:
                    for k in range(4):
                        r('v_xor_b32 v%d, s%d, v%d' % (V_WA + k, S_PEND, V_WA + k))
                preread(r, nxt)
                body = mix(body, [[i] for i in r], 0.55, 0.95) if OPT['pmix'] else body + list(r)
            t.extend(body)
            if ffn:
                t('s_add_u32 s%d, s%d, 4096' % (S_H, S_H))

        def duty(q, chunks, units=(), step_col=True):
            d = Seg()
            if step_col:
                next_col(d, q == 3)
            for k in chunks:
                lc(d, q, k)
            if ffn:
                for u in units:
                    dma_b2(d, u)
            return d

        late = deferred(False)
        late('s_lshl2_add_u32 s%d, s%d, s%d' % (S_H, S_RB, S_RW))
        late('s_mul_i32 s%d, s%d, %d' % (S_H, S_H, ACT_G))
        late('s_add_u32 s%d, s%d, %d' % (S_H, S_H, g * 2048 + (0 if ffn else 112 * 1024)))
        late('s_lshl_b32 s%d, s%d, %d' % (S_T1, S_T0 if ffn else S_HALF, 5 if ffn else 14))
        late('s_add_u32 s%d, s%d, s%d' % (S_H, S_H, S_T1))
        if ffn:
            late('s_add_u32 s%d, s%d, %d' % (S_T1, S_M0W, HND))
            late('v_add_u32 v%d, s%d, v%d' % (V_RA, S_T1, V_L16))
            late('s_mul_i32 s%d, s%d, -8' % (S_LAST, S_PEND))
            late('s_add_u32 s%d, s%d, 128' % (S_LAST, S_LAST))
            srd(late, SB1, 1792 * 2)
            late('v_lshlrev_b32 v%d, 1, v%d' % (T + 5, T + 8))
            for q in range(3):
                late('buffer_load_ushort v%d, v%d, %s, s%d offen offset:%d' % (V_B1 + q, T + 5, sr(SB1, 4), S_T0, q * 128 + g * 64), 'b1')
            if not g:
                late('s_mul_i32 s%d, s%d, -7' % (S_T1, S_PEND))
                late('s_add_u32 s%d, s%d, s%d' % (S_T1, S_T1, S_T0))
                late('s_add_u32 s%d, s%d, 384' % (S_T1, S_T1))
                late('buffer_load_ushort v%d, v%d, %s, s%d offen' % (V_B1 + 3, T + 5, sr(SB1, 4), S_T1), 'b1')
        if g:
            late('s_mov_b32 s%d, 0x%x' % (S_FL, OOB))
        else:
            late('s_lshr_b32 s%d, s%d, 1' % (S_T1, S_P) if ffn else 's_lshl_b32 s%d, s%d, 1' % (S_T1, S_HALF))
            late('s_lshl2_add_u32 s%d, s%d, s%d' % (S_T1, S_RB, S_T1))
            late('s_mul_i32 s%d, s%d, %d' % (S_FL, S_T1, FL_G))
            late('s_lshl1_add_u32 s%d, s%d, s%d' % (S_FL, S_PEND, S_FL))
            late('s_lshl_b32 s%d, s%d, 28' % (S_T1, S_RW))
            late('s_add_u32 s%d, s%d, s%d' % (S_FL, S_FL, S_T1))
            late('s_add_u32 s%d, s%d, 0x%x' % (S_FL, S_FL, FL_OFF))
        NL = OPT['nlate']

        def some(k):
            return late[len(late) * k // NL:len(late) * (k + 1) // NL] if k < NL else []

        triple(z, 1)
        estamp(z, 't1')
        z.extend(some(0))
        if OPT['tat'] < -1:
            touch_w2(z)
        z('s_barrier')
        if g:
            z('s_setprio 1')
        triple(z, 2)
        for c in range(-1, 7):
            if c < 6:
                barrier(z, ['t0', 'zero'] if c < 0 else [('t', c + 1)], 's%d' % c if c >= 0 else 'pre')
            if c < 0:
                stamp(z, 1)
                if not ffn and not g:
                    z('s_lshl_b32 s%d, s%d, 28' % (S_T2, S_WV))
                    z('buffer_atomic_add v%d, v%d, %s, s%d offen sc1' % (V_ONE, V_FLO, sr(SDBG, 4), S_T2))
            d = Seg()
            if c < 3:
                triple(d, c + 4)
            if c == OPT['tat']:
                touch_w2(d)
            if c == 3:
                next_col(d)
            for k in {3: ([], [0]), 4: ([], [1]), 5: ([3], [2])}.get(c, ([], []))[g]:
                lc(d, 1, k)
            if c == OPT['twat']:
                touch_w(d, ffn)
            if g:
                if c == 6:
                    break
                for j in range(4):
                    xread(z, c + 1, j)
                z.extend(mix(some(c + 2), groups(d)))
                if c == 5:
                    preread(z, 0)
                dots(z, c + 1)
            else:
                for j in range(4):
                    if c == 6:
                        z.wait(lgkm=[('x', c, j)])
                    if c >= 0:
                        z.extend(kstep(0, c, j))
                    else:
                        wread(z, 0, 0, j)
                    if c < 6:
                        xread(z, c + 1, j)
                z.extend(mix(some(c + 2), groups(d)))
        if g:
            stats_write(z)
            barrier(z, [('l', 1, 0), 'b1'])
        else:
            z('ds_write_b32 v%d, v%d' % (V_CSW, V_CS))
            barrier(z, 'b1')
        stamp(z, 2)
        if not g:
            d = Seg()
            if not ffn:
                d('v_and_b32 v%d, 0xffff, v%d' % (V_XA, V_EXR))
                d('v_lshl_or_b32 v%d, v%d, 16, v%d' % (V_XA, V_EXR + 1, V_XA))
                d('v_lshrrev_b32 v%d, 2, v%d' % (V_XA + 1, V_L16))
                d('v_lshl_add_u32 v%d, s%d, 7, v%d' % (V_XA + 1, S_RW, V_XA + 1))
                d('v_cndmask_b32 v%d, v%d, v%d, %s' % (V_XA + 1, V_XA + 1, V_FLO, sr(S_HI, 2)))
                d('buffer_store_dword v%d, v%d, %s, s%d offen sc1' % (V_XA, V_XA + 1, sr(SWS, 4), S_LAST))
            f0_load(d)
            NE = OPT['ne']
            epi(z, 0, d, pre=stats_final(kind), nxt=1)
            barrier(z, [('l', 1, 3)], 'e1')
            stamp(z, 'h1')
            d = Seg()
            if ffn:
                p2_setup(d)
            gemm(z, 1, d, duty(2, range(NE, 5)))
            f0_check(z)
            barrier(z, [('h', 0)], 'e2')
            stamp(z, 'h2')
            epi(z, 1, duty(0, (), UA[0], False), nxt=2)
            barrier(z, [('l', 2, 4)], 'e3')
            stamp(z, 3)
            if ffn:
                flag(z, 0)
            gemm(z, 2, extra=duty(3, range(NE, 5)))
            barrier(z, [('h', 1)], 'e4')
            stamp(z, 'h4')
            epi(z, 2, duty(0, (), UA[1], False), nxt=3)
            barrier(z, [('l', 3, 4)], 'e5')
            stamp(z, 4)
            if ffn:
                flag(z, 256)
            gemm(z, 3, extra=duty(0, (), (8, 9, 10), False))
            barrier(z, [('b', u) for u in UA[1]], 'e6')
            stamp(z, 5)
            if ffn:
                z('ds_read_b128 %s, v%d' % (vr(V_WF, 4), V_RA), 'hnd')
                z('ds_read_b128 %s, v%d offset:1024' % (vr(V_WF + 4, 4), V_RA), 'hnd')
                z('s_sub_u32 s%d, s%d, 2048' % (S_T0, S_H))
                z('s_cmp_eq_u32 s%d, 0' % S_PEND)
                z('s_cselect_b32 s%d, 0, %d' % (S_T1, 3 * 4096 + 2048))
                z('s_sub_u32 s%d, s%d, s%d' % (S_H, S_H, S_T1))
                d = Seg()
                d.wait(lgkm='hnd')
                for f in range(2):
                    d('buffer_store_dwordx4 %s, v%d, %s, s%d offen offset:%d sc1' % (vr(V_WF + 4 * f, 4), V_L16, sr(SWS, 4), S_T0, f * 1024), 'h5')
                epi(z, 3, d, keep=True)
                z.wait(vm=[('h', 3)])
                sync_arrive(z, 0)
                sync_wait(z, 0, 4, T)
                flag(z, 512)
                stamp(z, 6)
                z('s_branch L_p2a')
            else:
                d = Seg()
                touch_wo(d, V_XA)
                epi(z, 3, d)
                z('s_barrier')
                z('s_branch L_qo')
            return z
        gemm(z, 0, stats_final(kind), duty(1, (4, 5, 6), (), False))
        barrier(z, [('l', 1, 6)], 'e1')
        stamp(z, 'h1')
        for q in (1, 2):
            epi(z, q - 1, duty(q + 1, range(OPT['ne'])), nxt=q)
            barrier(z, [('l', q + 1, 0)], 'e%d' % (2 * q))
            stamp(z, 'h%d' % (2 * q))
            d = duty(q + 1, (5, 6), (), False)
            if ffn and q == 1:
                p2_setup(d)
            if ffn and q == 2:
                poll_early(d)
            d.extend(duty(0, (), UB[q - 1], False))
            gemm(z, q, extra=d)
            barrier(z, [('l', q + 1, 6)], 'e%d' % (2 * q + 1))
            stamp(z, q + 2)
        if ffn:
            d = Seg()
            a_setup(d)
            stage_check(d, 0)
            for u in range(OPT['na']):
                aload(d, u)
            for u in range(5, 5 + OPT['nb']):
                dma_b2(d, u)
            epi(z, 2, d, handoff=True, hi=1.0)
            barrier(z, None, 'e6')
            z('s_branch L_p2f')
        else:
            d = Seg()
            touch_wo(d, V_XA)
            epi(z, 2, d, nxt=3)
            barrier(z)
            stamp(z, 5)
            gemm(z, 3)
            barrier(z)
            epi(z, 3)
        return z

    return s, stream(0), stream(1)


def q_out():
    s, T = Seg('qo'), V_T
    NUM, KF, RAW = V_X, V_X + 64, V_X + 96
    s('L_qo:')
    stamp(s, 6)
    s('s_lshl3_add_u32 s%d, s%d, s%d' % (S_T0, S_HALF, S_WV))
    s('s_lshl_b32 s%d, s%d, 7' % (S_PL, S_T0))
    s('s_add_u32 s%d, s%d, 0x%x' % (S_PL, S_PL, FKV_OFF))
    s('s_lshl_b32 s%d, s%d, 12' % (S_T0, S_T0))
    s('s_add_u32 s%d, s%d, 0x%x' % (S_T0, S_T0, KV_OFF))
    s('v_lshrrev_b32 v%d, 2, v%d' % (T, V_L16))
    s('s_add_u32 s%d, s%d, %d' % (S_T1, S_M0X, R2))
    s('v_add_u32 v%d, s%d, v%d' % (T + 1, S_T1, V_L16))
    s('s_lshl_b32 s%d, s%d, 11' % (S_T1, S_G))
    s('s_add_u32 s%d, s%d, %d' % (S_T1, S_T1, R2))
    s('v_add_u32 v%d, s%d, v%d' % (T + 2, S_T1, V_L16))
    poll_check(s, 0, 16, sync=True, atomic=OPT['qatom'])
    stamp(s, 7)
    for r in range(16):
        s('buffer_load_dword v%d, v%d, %s, s%d offen offset:%d sc1' % (RAW + r, T, sr(SWS, 4), S_T0, r * 256), ('kv', r >> 3))
    for f in range(2):
        s.wait(vm=[('kv', f)])
        for k in range(4):
            s('v_cvt_pk_bf16_f32 v%d, v%d, v%d' % (RAW + 8 * f + k, RAW + 8 * f + 2 * k, RAW + 8 * f + 2 * k + 1))
        s('ds_write_b128 v%d, %s offset:%d' % (T + 1, vr(RAW + 8 * f, 4), f * 1024))
    barrier(s)
    stamp(s, 8)
    for q in range(4):
        for f in range(2):
            s('ds_read_b128 %s, v%d offset:%d' % (vr(KF + 8 * q + 4 * f, 4), T + 2, q * 4096 + f * 1024), ('kf', q, f))
    for q in range(4):
        for f in range(2):
            s.wait(lgkm=[('kf', q, f)])
            s('v_mfma_f32_32x32x16_bf16 %s, %s, %s, %s' % (vr(NUM + 16 * q, 16), vr(KF + 8 * q + 4 * f, 4), vr(V_PQ + 8 * q + 4 * f, 4), vr(NUM + 16 * q, 16) if f else '0'))
    for p in range(2):
        for q in (2 * p, 2 * p + 1):
            s('v_add_f32 v%d, s%d, v%d' % (T + 4 + 2 * q, S_EPS, NUM + 16 * q + 12))
            s('v_add_f32 v%d, s%d, v%d' % (T + 5 + 2 * q, S_EPS, NUM + 16 * q + 12))
        for q in (2 * p, 2 * p + 1):
            s('v_permlane32_swap_b32 v%d, v%d' % (T + 4 + 2 * q, T + 5 + 2 * q))
        for q in (2 * p, 2 * p + 1):
            s('v_rcp_f32 v%d, v%d' % (T + 5 + 2 * q, T + 5 + 2 * q))
        for q in (2 * p, 2 * p + 1):
            s('v_cndmask_b32 v%d, v%d, 0, %s' % (T + 4 + 2 * q, T + 5 + 2 * q, sr(S_HI, 2)))
        for q in (2 * p, 2 * p + 1):
            n = NUM + 16 * q
            for f in range(2):
                for k in range(8 * f, 8 * f + 8, 2):
                    sel = 0 if k >= 12 else 1
                    s('v_pk_mul_f32 %s, %s, %s op_sel:[0,%d] op_sel_hi:[1,%d]' % (vr(n + k, 2), vr(n + k, 2), vr(T + 4 + 2 * q, 2), sel, sel))
                for k in range(4):
                    s('v_cvt_pk_bf16_f32 v%d, v%d, v%d' % (n + 8 * f + k, n + 8 * f + 2 * k, n + 8 * f + 2 * k + 1))
                s('buffer_store_dwordx4 %s, v%d, %s, s%d offen offset:%d sc1' % (vr(n + 8 * f, 4), V_L16, sr(SWS, 4), S_H, f * 1024), ('o', p))
            s('s_add_u32 s%d, s%d, 4096' % (S_H, S_H))
    stamp(s, 9)
    if OPT['opriv']:
        s('s_lshl1_add_u32 s%d, s%d, s%d' % (S_T0, S_RB, S_HALF))
        s('s_lshl_b32 s%d, s%d, 11' % (S_T0, S_T0))
        s('s_lshl_b32 s%d, s%d, 28' % (S_T1, S_WV))
        s('s_add_u32 s%d, s%d, s%d' % (S_T0, S_T0, S_T1))
        s('s_add_u32 s%d, s%d, 0x%x' % (S_T0, S_T0, FO_OFF))
        s('v_cmp_gt_u32 vcc, 0x100, v%d' % V_L16)
        s('v_lshlrev_b32 v%d, 3, v%d' % (T, V_L16))
        s('v_cndmask_b32 v%d, v%d, v%d, vcc' % (T, V_FLO, T))
        barrier(s, 'all')
        s('buffer_store_dword v%d, v%d, %s, s%d offen sc1' % (V_ONE, T, sr(SWS, 4), S_T0))
    else:
        barrier(s, 'all')
        flag(s, 768)
        flag(s, 768 + FL_G)
    s('s_branch L_fin')
    return s


def kv_role():
    s, T = Seg('kv'), V_T
    s('L_kv:')
    if OPT['twat'] < -1:
        touch_w(s, False)
    s('s_mul_i32 s%d, s%d, 3' % (S_P, S_HALF))
    s('s_add_u32 s%d, s%d, s%d' % (S_P, S_P, S_ROLE))
    s('s_sub_u32 s%d, s%d, 4' % (S_P, S_P))

    def item(t, n):
        if n >= 14:
            if n == 14:
                t('v_add_u32 v%d, %d, v%d' % (V_W, XS, V_W))
                t('v_add_u32 v%d, %d, v%d' % (V_WB, XS, V_WB))
            dma_w(t, S_M0X, n - 14, kv_slot(n), ('i', n))
        elif n & 1:
            dma_w(t, S_M0X, n >> 1, kv_slot(n), ('i', n))
        else:
            dma_x(t, n >> 1, kv_slot(n), ('i', n))

    s('s_lshl_b32 s%d, s%d, 2' % (S_T1, S_P))
    s('s_lshr_b32 s%d, 0xdb9630, s%d' % (S_LAST, S_T1))
    s('s_and_b32 s%d, s%d, 15' % (S_LAST, S_LAST))
    s('s_lshr_b32 s%d, 0x322333, s%d' % (S_PEND, S_T1))
    s('s_and_b32 s%d, s%d, 15' % (S_PEND, S_PEND))
    s('s_add_u32 s%d, s%d, s%d' % (S_T1, S_LAST, S_G))
    s('s_mul_i32 s%d, s%d, 56' % (S_T1, S_T1))
    s('s_lshl_b32 s%d, s%d, 7' % (S_T0, S_P))
    s('s_sub_u32 s%d, s%d, s%d' % (S_T1, S_T1, S_T0))
    s('s_add_u32 s%d, s%d, 1' % (S_T0, S_G))
    s('s_cmp_lt_u32 s%d, s%d' % (S_T0, S_PEND))
    s('s_cselect_b32 s%d, 56, 0' % S_T0)
    s('v_min_u32 v%d, 6, v%d' % (T + 14, T + 14))
    s('v_lshl_add_u32 v%d, v%d, 3, s%d' % (T + 5, T + 14, S_T1))
    s('v_lshlrev_b32 v%d, 6, v%d' % (T + 6, T + 10))
    for t in range(2):
        if t:
            s('v_add_u32 v%d, s%d, v%d' % (T + 5, S_T0, T + 5))
        s('v_xor_b32 v%d, v%d, v%d' % (T + 11, T + 5, T + 6))
        s('v_lshl_add_u32 v%d, v%d, 8, v%d' % (V_WA + 4 * t, T + 12, T + 11))
        for j in range(1, 4):
            s('v_xor_b32 v%d, %d, v%d' % (V_WA + 4 * t + j, j << 12, V_WA + 4 * t))
    srd(s, SWS, WS_BYTES)
    srd(s, SDBG, 256)
    item(s, 2)
    item(s, 3)
    estamp(s, 't1')
    s.extend(deferred(True))
    s('s_lshl1_add_u32 s%d, s%d, s%d' % (S_H, S_RB, S_HALF))
    s('s_lshl3_add_u32 s%d, s%d, s%d' % (S_H, S_H, S_RW))
    s('s_lshl_b32 s%d, s%d, 7' % (S_H, S_H))
    s('s_add_u32 s%d, s%d, 0x%x' % (S_H, S_H, ST_OFF))
    s('v_lshlrev_b32 v%d, 2, v%d' % (V_ST + 1, T + 8))
    s('s_lshl_b32 s%d, s%d, 7' % (S_T0, S_RW))
    s('s_add_u32 s%d, s%d, %d' % (S_T0, S_T0, M_R))
    s('v_lshl_add_u32 v%d, v%d, 4, s%d' % (V_RA, T + 9, S_T0))
    s('v_add_u32 v%d, s%d, v%d' % (V_ST + 2, S_T0, V_ST + 1))
    s('v_mov_b32 v%d, %d' % (T + 5, M_SY + 128))
    s('v_cndmask_b32 v%d, v%d, v%d, %s' % (V_ST + 3, V_RA, T + 5, sr(S_PAD, 2)))
    s('v_mov_b32 v%d, 0' % (V_EXR + 1))
    s('s_waitcnt lgkmcnt(0)')
    if OPT['tat'] < -1:
        touch_w2(s)
    s('s_cmp_eq_u32 s%d, 1' % S_G)
    s('s_cbranch_scc1 L_kb')

    def body(g):
        b = Seg('kb' if g else 'ka')
        if g:
            b('L_kb:')
        xa = Rebase([V_XA + j for j in range(4)], 0, 0)
        wa = [Rebase([V_WA + 4 * t + j for j in range(4)], 0, 1024) for t in range(2)]
        TS = [[0, 1], [1]] if g else [[0], [0, 1]]
        PK1 = V_X + 48

        def witem(q, c):
            return 2 * c + 1 if q == 0 else 14 + c

        def wf(t, j):
            return (V_ACC + 48 if t != g else V_WF) + 4 * j

        def acc(q, t):
            return V_ACC + 16 * (q + t)

        def wread(z, q, c, j, t):
            o = wa[t].off(z, kv_slot(witem(q, c)))
            for u in range(2):
                z('ds_read_b64_tr_b16 %s, v%d offset:%d' % (vr(wf(t, j) + 2 * u, 2), V_WA + 4 * t + j, o + u * 1024), ('w', q, c, j, t))

        def xread(z, c, j):
            o = xa.off(z, kv_slot(2 * c))
            z('ds_read_b128 %s, v%d offset:%d' % (vr(xreg(c, j), 4), V_XA + j, o))

        def kstep(q, c, j):
            out = []
            first = c == 0 and j == 0
            for t in TS[q]:
                z = Seg()
                z.wait(lgkm=[('w', q, c, j, t)])
                z('v_mfma_f32_32x32x16_bf16 %s, %s, %s, %s' % (vr(acc(q, t), 16), vr(xreg(c, j), 4), vr(wf(t, j), 4), '0' if first else vr(acc(q, t), 16)))
                if j == 0:
                    z('v_mfma_f32_16x16x32_bf16 %s, %s, %s, %s' % (vr(V_CS + 4 * t, 4), vr(V_SEL, 4), vr(wf(t, j), 4), '0' if first else vr(V_CS + 4 * t, 4)))
                if c < 6:
                    wread(z, q, c + 1, j, t)
                    if q == 0 and t == TS[q][-1]:
                        xread(z, c + 1, j)
                elif q == 0 and not g:
                    wread(z, 1, 0, j, 0)
                if c == 6 and j == 2 and t == TS[q][-1]:
                    for tt in TS[q]:
                        z('ds_write_b32 v%d, v%d offset:%d' % (V_CSW, V_CS + 4 * tt, q * 1536 + (g + tt) * 512))
                out.append(z)
            return out

        def ext(q, t, k):
            return ext_parts(acc(q, t), q * 1536 + (g + t) * 512, (V_EXW, V_EXW + 2, V_CS)[k], True, T=V_T + 4 + 4 * k)

        def rload(z, dst, key, addr=V_RA):
            for i in range(4):
                z('ds_read_b128 %s, v%d offset:%d' % (vr(dst + 4 * i, 4), addr, i * 32), key)

        def stat_load(z):
            z('buffer_load_dword v%d, v%d, %s, s%d offen sc1' % (V_ST, V_ST + 1, sr(SWS, 4), S_H), 'stat')

        def stat_use(z):
            z('v_and_b32 v%d, 0xffff, v%d' % (T, V_ST))
            z('v_lshl_or_b32 v%d, v%d, 16, v%d' % (T, V_ST, T))
            z('v_cndmask_b32 v%d, v%d, 0, %s' % (V_EXR, T, sr(S_HI, 2)))

        def phi_k(t, rb):
            e = Seg()
            for i in range(4):
                a = [acc(0, t) + 4 * i + k for k in range(4)]
                for k in range(4):
                    e('v_fma_f32 v%d, v%d, v%d, s%d' % (a[k], a[k], rb + 4 * i + k, S_EPS))
                for k in range(4):
                    e('v_mul_f32 v%d, s%d, v%d' % (T + k, S_L2E, a[k]))
                for k in range(4):
                    e('v_exp_f32_e64 v%d, v%d clamp' % (T + k, T + k))
                for k in range(4):
                    e('v_max_f32 v%d, s%d, v%d' % (a[k], S_EPS, a[k]))
                for k in range(4):
                    e('v_add_f32 v%d, v%d, v%d' % (a[k], a[k], T + k))
                e('v_cvt_pk_bf16_f32 v%d, v%d, v%d' % (acc(0, t) + 2 * i, a[0], a[1]))
                e('v_cvt_pk_bf16_f32 v%d, v%d, v%d' % (acc(0, t) + 2 * i + 1, a[2], a[3]))
            return e

        def hand_addr(z):
            z('s_mul_i32 s%d, s%d, 10240' % (S_T0, S_RW))
            z('s_add_u32 s%d, s%d, %d' % (S_T0, S_T0, R2 + 8192))
            z('v_add_u32 v%d, s%d, v%d' % (V_XA, S_T0, V_L16))

        def prod_setup(z, rb):
            rload(z, rb, 'r2', V_ST + 3)
            z('v_cndmask_b32 v%d, 0, 1.0, %s' % (V_XA + 1, sr(S_PAD, 2)))
            z('s_lshl_b32 s%d, s%d, 12' % (S_T0, S_RW))
            z('s_add_u32 s%d, s%d, %d' % (S_T0, S_T0, HND + g * 16384))
            z('v_add_u32 v%d, s%d, v%d' % (V_XA + 2, S_T0, V_L16))

        def kv_prod(z, t, pk, rb):
            z.wait(lgkm='r2')
            v, d = acc(1, t), V_X + 16 * t
            for f in range(2):
                for k in range(8 * f, 8 * f + 8):
                    z('v_fma_f32 v%d, v%d, v%d, v%d' % (v + k, v + k, rb + k, V_XA + 1))
                for k in range(4):
                    z('v_cvt_pk_bf16_f32 v%d, v%d, v%d' % (v + 8 * f + k, v + 8 * f + 2 * k, v + 8 * f + 2 * k + 1))
            z('s_setprio 2')
            for f in range(2):
                z('v_mfma_f32_32x32x16_bf16 %s, %s, %s, %s' % (vr(d, 16), vr(pk + 4 * f, 4), vr(v + 8 * f, 4), vr(d, 16) if f else '0'))

        def part_write(z, t):
            for i in range(4):
                z('ds_write_b128 v%d, %s offset:%d' % (V_XA + 2, vr(V_X + 16 * t + 4 * i, 4), t * 16384 + i * 1024))

        if not g:
            b('s_setprio 1')
        for c in range(-1, 7):
            barrier(b, 't0' if c < 0 else [('i', 2 * c + 3 if c < 6 else 14)], 's%d' % c if c >= 0 else 'pre')
            if c < 0:
                stamp(b, 1)
            d = Seg()
            if c == min(OPT['tat'], 2):
                touch_w2(d)
            if g and c == 3:
                f0_load(d)
            if g and c == 5:
                f0_check(d)
            item(d, 2 * c + 6)
            if c < 6:
                item(d, 2 * c + 7)
            if c == OPT['twat']:
                touch_w(d, False)
            if c == 6:
                if g:
                    stat_load(d)
                else:
                    for j in range(4):
                        wread(d, 1, 0, j, 1)
            if not g and c >= 0:
                b.extend(d)
            for j in range(4):
                if c >= 0:
                    for z in kstep(0, c, j):
                        b.extend(z)
                else:
                    for t in TS[0]:
                        wread(b, 0, 0, j, t)
                    xread(b, 0, j)
            if g or c < 0:
                b.extend(d)
        barrier(b, [('i', 16)], 's7')
        stamp(b, 2)

        if g:
            RB = V_ACC + 48
            parts = [ext(0, t, t) for t in range(2)]
            for p in parts:
                b.extend(p[0])
            item(b, 19)
            for p in parts:
                b.extend(p[1])
            item(b, 20)
            touch_l2(b, 0, V_W)
            hand_addr(b)
            b.wait(vm='stat')
            spin_check(b, V_ST, V_ONE, V_ST + 1, SWS, 's%d' % S_H, 0xffffffff)
            stat_use(b)
            b('v_and_b32 v%d, 0xffff0000, v%d' % (T + 1, V_ST))
            b('v_rcp_f32 v%d, v%d' % (T + 1, T + 1))
            b('s_setprio 2')
            for p in parts:
                b.extend(p[2])
            b('s_setprio 0')
            b('ds_write_b32 v%d, v%d' % (V_ST + 2, T + 1))
            rload(b, RB, 'r')
            e = Seg()
            e.wait(lgkm='r')
            e.extend(phi_k(0, RB))
            for f in range(2):
                e('ds_write_b128 v%d, %s offset:%d' % (V_XA, vr(acc(0, 0) + 4 * f, 4), f * 1024))
            d = Seg()
            touch_kv(d)
            touch_l2(d, 1, V_WB)
            if OPT['kpf']:
                p2_setup(d)
            for u in range(OPT['kpf']):
                dma_b2(d, u)
            r = Seg()
            for j in range(4):
                wread(r, 1, 0, j, 1)
            e.extend(mix(mix(phi_k(1, RB), [[i] for i in r]), groups(d), 0.3, 1.0))
            k0, k1 = OPT['kb0'], OPT['kb1']
            b.extend(e[:k0])
            barrier(b, [('i', 18)], 'v0')
            b.extend(e[k0:k1])
            barrier(b, [('i', 20)], 'v1')
            b.extend(e[k1:])
            prod_setup(b, RB)
            barrier(b, None, 'v2')
            stamp(b, 3)
            b('s_setprio 1')
            d = Seg()
            if not OPT['kpf']:
                p2_setup(d)
            slots = [kstep(1, c, j)[0] for c in range(7) for j in range(4)]
            if OPT['kearly']:
                pre = Seg()
                barrier(pre, None, 'v4')
                slots[20][:0] = pre
            b.extend(interleave(slots, list(d), 2, 19))
            barrier(b, None, 'v3')
            b('s_setprio 2')
            b.extend(head([ext(1, 1, 0)]))
            poll_base(b)
            kv_prod(b, 1, acc(0, 1), RB)
            part_write(b, 1)
            poll_async(b, 0)
            barrier(b, None, 'kk')
            stamp(b, 4)
            a_setup(b)
            b('s_branch L_p2k')
            return b
        for c in range(7):
            if c in (2, 4):
                barrier(b, [('i', 16 + c)], 'v%d' % (c // 2 - 1))
            for j in range(4):
                for z in kstep(1, c, j):
                    b.extend(z)
                if c < 2:
                    if j == 1:
                        d = Seg()
                        item(d, 19 + c)
                        d = groups(d)
                    if j in (1, 2):
                        b.extend(d[j - 1])
                if c == 2 and j == 1:
                    stat_load(b)
                if c == 5 and j == 1:
                    hand_addr(b)
                if c == 5 and j == 3:
                    b.wait(vm='stat')
                    stat_use(b)
        barrier(b, None, 'v2')
        stamp(b, 3)
        b('s_setprio %d' % OPT['khead'])
        b('v_mov_b32 v%d, 0' % (V_CS + 1))
        RB, RP = V_X + 64, V_WF
        e = head([ext(1, 1, 0), ext(0, 0, 1), ext(1, 0, 2)])
        z = Seg()
        prod_setup(z, RP)
        for f in range(2):
            z('ds_read_b128 %s, v%d offset:%d' % (vr(PK1 + 4 * f, 4), V_XA, f * 1024), 'r2')
        rload(z, RB, 'r')
        b.extend(e[:3] + list(z) + e[3:-3])
        b('s_setprio 2')
        b.extend(e[-3:])
        b('s_setprio 0')
        touch_l2(b, 2, V_W)
        z = Seg()
        z('s_lshl_b32 s%d, s%d, 10' % (S_T1, S_RW))
        z('s_add_u32 s%d, s%d, %d' % (S_T1, S_T1, HND))
        z('v_add_u32 v%d, s%d, v%d' % (V_SEL + 2, S_T1, V_L16))
        z('s_cmp_eq_u32 s%d, 3' % S_RW)
        z('s_cselect_b64 vcc, %s, 0' % sr(S_HI, 2))
        z('v_lshrrev_b32 v%d, 2, v%d' % (V_SEL + 3, V_L16))
        z('v_cndmask_b32 v%d, v%d, v%d, vcc' % (V_SEL + 3, V_SEL + 3, V_FLO))
        z('s_lshl2_add_u32 s%d, s%d, s%d' % (S_H, S_LAST, S_RW))
        z('s_lshl_b32 s%d, s%d, 10' % (S_H, S_H))
        z('s_add_u32 s%d, s%d, 0x%x' % (S_H, S_H, KV_OFF))
        kv_prod(z, 1, PK1, RP)
        z('s_setprio 0')
        z.wait(lgkm='r')
        e = phi_k(0, RB)
        if OPT['kearly']:
            z.extend(e[:OPT['kearly']])
            touch_l2(z, 3, V_WB)
            barrier(z, None, 'v4')
            w = Seg()
            part_write(w, 1)
            z.extend(mix(e[OPT['kearly']:], [[i] for i in w]))
        else:
            z.extend(e)
        kv_prod(z, 0, acc(0, 0), RP)
        k = len(z) * OPT['kcut'] // 100
        b.extend(z[:k])
        barrier(b, None, 'v3')
        b.extend(z[k:])
        if not OPT['kearly']:
            part_write(b, 1)
        b('s_add_u32 s%d, s%d, 4096' % (S_P, S_H))
        b('s_add_u32 s%d, s%d, 8192' % (S_HALF, S_H))
        b('s_cmp_eq_u32 s%d, 3' % S_PEND)
        b('s_cselect_b32 s%d, s%d, 0x%x' % (S_HALF, S_HALF, OOB))
        part_write(b, 0)
        barrier(b, None, 'kk')
        stamp(b, 4)
        R = V_X + 32
        for h in range(3):
            for p in range(4):
                b('ds_read_b128 %s, v%d offset:%d' % (vr(R + 16 * h + 4 * p, 4), V_SEL + 2, h * 16384 + p * 4096), ('red', h))
        for h in range(3):
            r = R + 16 * h
            b.wait(lgkm=[('red', h)])
            for k in (0, 2):
                b('v_pk_add_f32 %s, %s, %s' % (vr(r + k, 2), vr(r + k, 2), vr(r + 4 + k, 2)))
                b('v_pk_add_f32 %s, %s, %s' % (vr(r + 8 + k, 2), vr(r + 8 + k, 2), vr(r + 12 + k, 2)))
                b('v_pk_add_f32 %s, %s, %s' % (vr(r + k, 2), vr(r + k, 2), vr(r + 8 + k, 2)))
            for k in range(4):
                b('buffer_atomic_add_f32 v%d, v%d, %s, s%d offen offset:%d sc1' % (r + k, V_SEL + 3, sr(SWS, 4), (S_H, S_P, S_HALF)[h], k * 256), 'atom')
        stamp(b, 5)
        b('s_lshl_b32 s%d, s%d, 7' % (S_FL, S_LAST))
        b('s_lshl_b32 s%d, s%d, 28' % (S_T1, S_RW))
        b('s_add_u32 s%d, s%d, s%d' % (S_FL, S_FL, S_T1))
        b('s_add_u32 s%d, s%d, 0x%x' % (S_FL, S_FL, FKV_OFF))
        b('s_lshl_b32 s%d, s%d, 4' % (S_T1, S_PEND))
        b('v_cmp_gt_u32 vcc, s%d, v%d' % (S_T1, V_L16))
        b('v_lshlrev_b32 v%d, 3, v%d' % (V_PL, V_L16))
        b('v_cndmask_b32 v%d, v%d, v%d, vcc' % (V_PL, V_FLO, V_PL))
        p2_setup(b)
        b.wait(vm='atom')
        sync_arrive(b, 0)
        sync_wait(b, 0, 4, T)
        stamp(b, 6)
        b('buffer_atomic_add v%d, v%d, %s, s%d offen sc1' % (V_ONE, V_PL, sr(SWS, 4), S_FL))
        b('s_branch L_p2a')
        return b

    return s, body(0), body(1)


V_OUT, V_RD, V_U = 8, 9, 40


def res_load(R):
    s, T = Seg(), R + 8
    s('s_lshl_b32 s%d, s%d, 7' % (S_T0, S_ROLE))
    s('v_lshrrev_b32 v%d, 3, v0' % (T + 1))
    s('v_and_b32 v%d, 0x70, v%d' % (T + 2, V_L16))
    s('v_mul_u32_u24 v%d, %d, v%d' % (V_OUT, XS, T + 1))
    s('v_add_u32 v%d, v%d, v%d' % (V_OUT, V_OUT, T + 2))
    s('buffer_load_dwordx4 %s, v%d, %s, s%d offen' % (vr(R, 4), V_OUT, sr(SX, 4), S_OUTO), 'res')
    s('buffer_load_dwordx4 %s, v%d, %s, s%d offen' % (vr(R + 4, 4), T + 2, sr(SB2, 4), S_T0), 'res')
    return s


def frag_addr(s, T):
    s('v_lshrrev_b32 v%d, 4, v%d' % (T, V_L16))
    s('v_bfe_u32 v%d, v%d, 2, 2' % (T + 1, T))
    s('v_and_b32 v%d, 3, v%d' % (T + 2, T))
    s('v_bfe_u32 v%d, v%d, 4, 1' % (T + 3, T))
    s('v_lshl_add_u32 v%d, v%d, 2, v%d' % (T + 2, T + 3, T + 2))
    s('v_lshrrev_b32 v%d, 1, v%d' % (T + 3, T + 1))
    s('v_lshlrev_b32 v%d, 6, v%d' % (T + 3, T + 3))
    s('v_lshl_add_u32 v%d, v%d, 3, v%d' % (T + 2, T + 2, T + 3))
    s('v_lshl_add_u32 v%d, v%d, 7, v%d' % (T + 2, T + 1, T + 2))
    s('v_lshrrev_b32 v%d, 5, v%d' % (T + 3, T))
    s('v_lshl_add_u32 v%d, v%d, 9, v%d' % (T + 3, T + 3, T + 2))


def bf(par, ct):
    return V_BF + 8 * par + 4 * ct


def acc2(ct, rg):
    return V_ACC + 32 * ct + 16 * rg


def part_addr(g):
    z, T = Seg(), V_NUM
    z('v_bfe_u32 v%d, v%d, 4, 5' % (T, V_L16))
    z('v_and_b32 v%d, 7, v%d' % (T + 1, T))
    z('v_bfe_u32 v%d, v%d, 1, 1' % (T + 2, T))
    z('v_lshrrev_b32 v%d, 9, v%d' % (T + 3, V_L16))
    z('v_xor_b32 v%d, v%d, v%d' % (T + 2, T + 2, T + 3))
    z('v_lshl_add_u32 v%d, v%d, 3, v%d' % (T + 1, T + 2, T + 1))
    z('v_lshlrev_b32 v%d, 4, v%d' % (T + 1, T + 1))
    z('v_lshl_add_u32 v%d, v%d, 8, v%d' % (T + 1, T, T + 1))
    z('v_add_u32 v%d, s%d, v%d' % (T + 8, S_QR0, T + 1))
    if g:
        z('v_add_u32 v%d, s%d, v%d' % (T + 16, S_QR2, T + 1))
    else:
        z('v_add_u32 v%d, 8192, v%d' % (T + 16, T + 8))
    for rg in range(2):
        for k in range(1, 8):
            z('v_xor_b32 v%d, %d, v%d' % (T + 8 + 8 * rg + k, k << 4, T + 8 + 8 * rg))
    return z


def read_addr(g, R):
    z, T = Seg(), R + 8
    z('v_and_b32 v%d, 31, v%d' % (T + 1, T + 1))
    z('v_and_b32 v%d, 7, v%d' % (T + 3, T + 1))
    z('v_bfe_u32 v%d, v%d, 1, 1' % (T + 4, T + 1))
    z('v_lshl_add_u32 v%d, v%d, 3, v%d' % (T + 3, T + 4, T + 3))
    z('v_lshlrev_b32 v%d, 4, v%d' % (T + 3, T + 3))
    z('v_xor_b32 v%d, v%d, v%d' % (T + 3, T + 3, T + 2))
    z('v_lshl_add_u32 v%d, v%d, 8, v%d' % (V_RD, T + 1, T + 3))
    if g:
        z('v_add_u32 v%d, %d, v%d' % (V_RD, R2, V_RD))
    z('v_xor_b32 v%d, 128, v%d' % (V_RD + 1, V_RD))
    return z


def res_unpack(R):
    z, U = Seg(), V_U
    z.wait(vm='res')
    for k in range(4):
        z('v_lshlrev_b32 v%d, 16, v%d' % (U + 2 * k, R + k))
        z('v_and_b32 v%d, 0xffff0000, v%d' % (U + 2 * k + 1, R + k))
        z('v_lshlrev_b32 v%d, 16, v%d' % (R + k, R + 4 + k))
        z('v_and_b32 v%d, 0xffff0000, v%d' % (R + 4 + k, R + 4 + k))
        z('v_add_f32 v%d, v%d, v%d' % (U + 2 * k, U + 2 * k, R + k))
        z('v_add_f32 v%d, v%d, v%d' % (U + 2 * k + 1, U + 2 * k + 1, R + 4 + k))
    return z


def acc_major(s, units, wreg, areg, wtag, atag, fresh, fill=()):
    slots, order = [], [(0, 0), (1, 0), (0, 1), (1, 1)]
    for ct, rg in order:
        for k, u in enumerate(units):
            z = Seg()
            z.wait(vm=[atag(u, rg)], lgkm=[wtag(u, ct)])
            z('v_mfma_f32_32x32x16_bf16 %s, %s, %s, %s' % (vr(acc2(ct, rg), 16), vr(wreg(u, ct), 4), vr(areg(u, rg), 4), '0' if fresh and k == 0 else vr(acc2(ct, rg), 16)))
            slots.append(z)
    n = len(units)
    for k, gi in enumerate(fill):
        slots[k].extend(gi)
    wr = [Ins('ds_write_b128 v%d, %s' % (V_NUM + 8 + 8 * rg + 4 * ct + i, vr(acc2(ct, rg) + 4 * i, 4))) for ct, rg in order for i in range(4)]
    first = 2 * n - 1
    for k in range(8):
        slots[first + k * (2 * n + 1) // 8].append(wr[k])
    for z in slots:
        s.extend(z)
    s.extend(wr[8:])


def final(g):
    s = Seg('final%d' % g)
    D, U = V_AB, V_U
    stamp(s, 8)
    barrier(s)
    stamp(s, 9)
    for w in range(4):
        for h in range(2):
            s('ds_read_b128 %s, v%d offset:%d' % (vr(D + 8 * w + 4 * h, 4), V_RD + h, w * (10240 if g else 12288)), ('fin', w))
    for w in range(4):
        s.wait(lgkm=[('fin', w)])
        for k in range(4):
            s('v_pk_add_f32 %s, %s, %s' % (vr(U + 2 * k, 2), vr(U + 2 * k, 2), vr(D + 8 * w + 2 * k, 2)))
    for k in range(4):
        s('v_cvt_pk_bf16_f32 v%d, v%d, v%d' % (U + k, U + 2 * k, U + 2 * k + 1))
    s('buffer_store_dwordx4 %s, v%d, %s, s%d offen' % (vr(U, 4), V_OUT, sr(SOUT, 4), S_OUTO) + ['', ' sc1', ' nt', ' sc0 sc1'][OPT['osc']])
    return s


def phase2b(nm, na, bdone):
    s, T = Seg('p2' + nm), V_NUM
    s('L_p2%s:' % nm)
    stamp(s, 5)
    s('s_setprio 1')
    V_PW, V_PX, RES = 11, 14, V_AB + 48
    SO = [S_KW + 1 + u if u < 6 else S_HI + u - 6 for u in range(8)]
    pend = [v for v in range(36) if v not in bdone]
    first = [v for v in pend if v < OPT['b0']]
    pend = pend[len(first):]
    BS = {}
    for u in range(28):
        n = 1 if u + DEP - 1 < 28 else 2
        BS[u] = [v for v in pend[:n] if v - 10 <= u]
        pend = pend[len(BS[u]):]
    assert not pend

    def oloads():
        z = Seg()
        for rg in range(2):
            for u in range(8):
                z('buffer_load_dwordx4 %s, v%d, %s, s%d offen sc1' % (vr(abuf(28 + u, rg), 4), V_L16B if rg else V_L16, sr(SWS, 4), SO[u]), ('o', 28 + u, rg))
        return list(z)

    def word_check(z, u, n, hit=None):
        z.wait(lgkm=[('pw', u)])
        z('v_readfirstlane_b32 s%d, v%d' % (S_T2, V_PW))
        z('s_cmp_lt_u32 s%d, %d' % (S_T2, n))
        if hit:
            z('s_cbranch_scc0 %s' % hit)
            return
        j = nspin[0]
        nspin[0] += 1
        z('s_cbranch_scc1 L_slow%d' % j)
        z('L_ret%d:' % j)
        slow('L_slow%d:' % j)
        slow('s_add_u32 s%d, s%d, 1' % (S_SPIN, S_SPIN))
        slow('s_cmp_gt_u32 s%d, 0x%x' % (S_SPIN, SPIN_LIMIT << 3))
        slow('s_cbranch_scc1 L_ret%d' % j)
        slow('ds_read_b32 v%d, v%d' % (V_PW, V_PX))
        slow('s_waitcnt lgkmcnt(0)')
        slow('v_readfirstlane_b32 s%d, v%d' % (S_T2, V_PW))
        slow('s_nop 0')
        slow('s_cmp_lt_u32 s%d, %d' % (S_T2, n))
        slow('s_cbranch_scc1 L_slow%d' % j)
        slow('s_branch L_ret%d' % j)

    z = Seg()
    if na == 0:
        for v in first[:2]:
            dma_b2(z, v)
        first = first[2:]
        stage_check(z, 0)
    for u in range(na, DEP - 1):
        if u == OPT['p1at']:
            poll_async(z, 1)
        aload(z, u)
        if first:
            dma_b2(z, first.pop(0))
    if na > OPT['p1at']:
        poll_async(z, 1)
    for v in first:
        dma_b2(z, v)
    y = Seg()
    frag_addr(y, T)
    for reg, base in enumerate((S_QR0, S_QR2)):
        y('v_add_u32 v%d, s%d, v%d' % (V_BA + 2 * reg, base, T + 3))
        y('v_xor_b32 v%d, 64, v%d' % (V_BA + 2 * reg + 1, V_BA + 2 * reg))
    y('v_subrev_u32 v%d, 16, v%d' % (V_PX, V_PA))
    s.extend(mix(y, groups(z)))

    def wreg(u, ct):
        return bf(u & 1, ct) if u < 28 else V_AB + 32 * (1 - ct) + 4 * (u - 28)

    def bread(u, ct):
        z = Seg()
        _, reg, off = unit_loc(u)
        z.wait(vm=[('b', u)])
        for h in range(2):
            z('ds_read_b64_tr_b16 %s, v%d offset:%d' % (vr(wreg(u, ct) + 2 * h, 2), V_BA + 2 * reg + ct, off + h * 1024), ('bf', u, ct))
        return z

    s.extend(bread(0, 0) + bread(0, 1))
    late = Seg()
    for u in range(8):
        late('s_xor_b32 s%d, s%d, %d' % (SO[u], S_RO3, u))
        late('s_lshl_b32 s%d, s%d, 10' % (SO[u], SO[u]))
        late('s_add_u32 s%d, s%d, s%d' % (SO[u], SO[u], S_P))
    late = list(read_addr(1, RES)) + list(part_addr(1)) + list(res_unpack(RES)) + list(late)
    SITES = [23, 25, 27, 28]
    U2 = 17 - DEP

    def unit(s, u, extra, word):
        nxt = u + DEP - 1
        z = Seg()
        if nxt < 28:
            aload(z, nxt)
        for v in BS[u]:
            dma_b2(z, v)
        if u == 4:
            z.extend(res_load(RES))
        now = groups(z) + [[i] for i in extra]
        if 10 <= u < 22:
            k0, k1 = len(late) * (u - 10) // 12, len(late) * (u - 9) // 12
            now += [[i] for i in late[k0:k1]]
        if u < 27:
            rd = [bread(u + 1, 0), bread(u + 1, 1), Seg(), Seg()]
        else:
            rd = [bread(28 + k, 0) for k in range(4)]
        if word:
            rd[2]('ds_read_b32 v%d, v%d' % (V_PW, V_PX), ('pw', u + 1))
        s.wait(vm=[('a', u)])
        stamp(s, 'u%d' % u)
        k = 0
        for ct in range(2):
            s.wait(lgkm=[('bf', u, ct)])
            for rg in range(2):
                s('v_mfma_f32_32x32x16_bf16 %s, %s, %s, %s' % (vr(acc2(ct, rg), 16), vr(wreg(u, ct), 4), vr(abuf(u, rg), 4), vr(acc2(ct, rg), 16) if u else '0'))
                s.extend(rd[k])
                for gi in range(len(now) * k // 4, len(now) * (k + 1) // 4):
                    s.extend(now[gi])
                k += 1

    main, alts = [s], []
    for u in range(28):
        if u + DEP - 1 == 8:
            stage_check(s, 1)
            stamp(s, 'c1')
        if u == 7 and nm == 'f':
            word_check(s, u, 1)
        if u == U2:
            word_check(s, u, 3)
            stamp(s, 'c2')
        if u in SITES:
            word_check(s, u, 7, hit='L_p2o%s%d' % (nm, u))
            a = Seg('p2o%d' % u)
            a('L_p2o%s%d:' % (nm, u))
            stamp(a, 'c3')
            o = oloads()
            for v in range(u, 28):
                unit(a, v, o[:4], False)
                o = o[4:]
            a.extend(o)
            a('s_branch L_p2tail%s' % nm)
            alts.append((list(main), a))
            s = Seg('p2m%d' % u)
            main.append(s)
        unit(s, u, [], u + 1 in SITES + [7, U2])
    word_check(s, 28, 7)
    stamp(s, 'c3')
    s.extend(oloads())
    t = Seg('p2t')
    t('L_p2tail%s:' % nm)
    stamp(t, 'tl')
    fill = [bread(u, 0) for u in range(32, 36)] + [bread(u, 1) for u in range(28, 36)]
    acc_major(t, range(28, 36), wreg, abuf, lambda u, ct: ('bf', u, ct), lambda u, rg: ('o', u, rg), False, fill)
    t.extend(final(1))
    t('s_branch L_fin')
    return [m + [a, t] for m, a in alts] + [main + [t]], [a for _, a in alts] + main + [t]


def phase2a():
    s = Seg('p2a')
    s('L_p2a:')
    poll_base(s)
    s('v_mov_b32 v%d, 3' % V_ONE)
    s.extend(res_load(V_BF))
    s.extend(read_addr(0, V_BF))
    stage_check(s, 2, sync=True, scalar=OPT['ascal'])
    sync_arrive(s, 0)
    stamp(s, 'a2')
    s('v_mov_b32 v%d, 7' % V_ONE)
    if OPT['opriv']:
        s('s_and_b32 s%d, s%d, 30' % (S_T0, S_I2))
        s('s_lshr_b32 s%d, s%d, 1' % (S_T1, S_RW))
        s('s_add_u32 s%d, s%d, s%d' % (S_T0, S_T0, S_T1))
        s('s_and_b32 s%d, s%d, 1' % (S_T1, S_I2))
        s('s_lshl1_add_u32 s%d, s%d, s%d' % (S_T0, S_T0, S_T1))
        s('s_lshl3_add_u32 s%d, s%d, s%d' % (S_T0, S_T0, S_ROLE))
        s('s_lshl_b32 s%d, s%d, 7' % (S_T0, S_T0))
        s('s_add_u32 s%d, s%d, 0x%x' % (S_PL, S_T0, FO_OFF - 768))
    stage_check(s, 3, sync=True, scalar=OPT['oscal'])
    sync_arrive(s, 0)
    stamp(s, 7)
    s.wait(lgkm='all')
    s.extend(res_unpack(V_BF))
    s.extend(final(0))
    return s


def fin():
    s = Seg('fin')
    s('L_fin:')
    if OPT['diag']:
        stamp(s, 10)
        s('s_waitcnt lgkmcnt(0)')
        s('v_mov_b32 v4, 0')
        for k in range(11):
            s('v_writelane_b32 v4, s%d, %d' % (S_KA + 2 * k, k))
        s('v_writelane_b32 v4, s%d, 11' % S_SPIN)
        s('s_lshl3_add_u32 s%d, s2, s%d' % (S_T0, S_WV))
        s('s_lshl_b32 s%d, s%d, 8' % (S_T0, S_T0))
        s('s_add_u32 s%d, s%d, 0x%x' % (S_T0, S_T0, TS_OFF))
        s('v_lshrrev_b32 v5, 2, v%d' % V_L16)
        s('buffer_store_dword v4, v5, %s, s%d offen' % (sr(SWS, 4), S_T0))
        if OPT['diag'] == 3:
            s('s_not_b32 s%d, s%d' % (S_T0, S_KA))
            s('v_writelane_b32 v4, s%d, 11' % S_T0)
            s('s_cmp_eq_u32 s%d, 4' % S_WV)
            s('s_cselect_b32 s%d, 16, 0x%x' % (S_T0, OOB))
            s('s_cmp_lt_u32 s%d, 4' % S_ROLE)
            s('s_cselect_b32 s%d, s%d, 0x%x' % (S_T0, S_T0, OOB))
            s('s_mov_b64 exec, 0xfff')
            s('buffer_atomic_umax v4, v5, %s, s%d offen sc1' % (sr(SDBG, 4), S_T0))
    if OPT['diag'] == 6:
        s('s_cmp_lg_u32 s%d, 4' % S_WV)
        s('s_cbranch_scc1 L_end')
        s('s_mov_b64 exec, 1')
        s('s_getreg_b32 s%d, hwreg(HW_REG_XCC_ID, 0, 4)' % S_T0)
        s('s_sub_u32 s%d, s%d, s2' % (S_T0, S_T0))
        s('s_and_b32 s%d, s%d, 7' % (S_T0, S_T0))
        s('s_lshl_b32 s%d, 1, s%d' % (S_T0, S_T0))
        s('v_mov_b32 v4, s%d' % S_T0)
        s('v_mov_b32 v6, 1')
        s('v_mov_b32 v7, 0')
        s('buffer_atomic_or v4, v7, %s, 0 offen offset:16 sc1' % sr(SDBG, 4))
        s('s_waitcnt vmcnt(0)')
        s('buffer_atomic_add v6, v7, %s, 0 offen offset:136 sc0 sc1' % sr(SDBG, 4))
        s('s_waitcnt vmcnt(0)')
        s('v_readfirstlane_b32 s%d, v6' % S_T0)
        s('s_cmp_lg_u32 s%d, 255' % S_T0)
        s('s_cbranch_scc1 L_end')
        s('buffer_load_dword v4, v7, %s, 0 offen offset:16 sc1' % sr(SDBG, 4))
        s('s_waitcnt vmcnt(0)')
        s('v_readfirstlane_b32 s%d, v4' % S_T0)
        s('s_bcnt1_i32_b32 s%d, s%d' % (S_T0, S_T0))
        s('s_mul_i32 s%d, s%d, 2000' % (S_T0, S_T0))
        s('s_memrealtime s[66:67]')
        s('s_waitcnt lgkmcnt(0)')
        s('L_dly:')
        s('s_memrealtime s[68:69]')
        s('s_waitcnt lgkmcnt(0)')
        s('s_sub_u32 s68, s68, s66')
        s('s_cmp_lt_u32 s68, s%d' % S_T0)
        s('s_cbranch_scc1 L_dly')
    if OPT['diag'] == 5:
        s('s_cmp_lg_u32 s%d, 4' % S_WV)
        s('s_cbranch_scc1 L_end')
        s('s_mov_b64 exec, 1')
        s('s_not_b32 s%d, s%d' % (S_T0, S_KA + 2 * OPT['sa']))
        s('v_mov_b32 v4, s%d' % S_T0)
        s('v_mov_b32 v5, s%d' % (S_KA + 2 * OPT['sb']))
        s('v_mov_b32 v6, 1')
        s('v_mov_b32 v7, 0')
        s('buffer_atomic_umax v4, v7, %s, 0 offen offset:128 sc1' % sr(SDBG, 4))
        s('buffer_atomic_umax v5, v7, %s, 0 offen offset:132 sc1' % sr(SDBG, 4))
        s('s_waitcnt vmcnt(0)')
        s('buffer_atomic_add v6, v7, %s, 0 offen offset:136 sc0 sc1' % sr(SDBG, 4))
        s('s_waitcnt vmcnt(0)')
        s('v_readfirstlane_b32 s%d, v6' % S_T0)
        s('s_cmp_lg_u32 s%d, 255' % S_T0)
        s('s_cbranch_scc1 L_end')
        s('buffer_load_dwordx2 v[4:5], v7, %s, 0 offen offset:128 sc1' % sr(SDBG, 4))
        s('s_waitcnt vmcnt(0)')
        s('v_add_u32 v4, v4, v5')
        s('s_nop 1')
        s('v_readfirstlane_b32 s%d, v4' % S_T0)
        s('s_add_u32 s%d, s%d, 1' % (S_T0, S_T0))
        s('s_mul_i32 s%d, s%d, %d' % (S_T0, S_T0, OPT['mul']))
        s('s_min_u32 s%d, s%d, 200000' % (S_T0, S_T0))
        s('s_memrealtime s[66:67]')
        s('s_waitcnt lgkmcnt(0)')
        s('L_dly:')
        s('s_memrealtime s[68:69]')
        s('s_waitcnt lgkmcnt(0)')
        s('s_sub_u32 s68, s68, s66')
        s('s_cmp_lt_u32 s68, s%d' % S_T0)
        s('s_cbranch_scc1 L_dly')
    if OPT['diag'] == 4:
        s('s_cmp_lg_u32 s2, %d' % OPT['wg'])
        s('s_cbranch_scc1 L_end')
        s('s_cmp_lg_u32 s%d, %d' % (S_WV, OPT['wv']))
        s('s_cbranch_scc1 L_end')
        s('s_sub_u32 s%d, s%d, s%d' % (S_T0, S_KA + 2 * OPT['sb'], S_KA + 2 * OPT['sa']))
        if not OPT['clk']:
            s('s_mul_i32 s%d, s%d, 10' % (S_T0, S_T0))
        s('s_min_u32 s%d, s%d, 200000' % (S_T0, S_T0))
        s('s_memrealtime s[66:67]')
        s('s_waitcnt lgkmcnt(0)')
        s('L_dly:')
        s('s_memrealtime s[68:69]')
        s('s_waitcnt lgkmcnt(0)')
        s('s_sub_u32 s68, s68, s66')
        s('s_cmp_lt_u32 s68, s%d' % S_T0)
        s('s_cbranch_scc1 L_dly')
    s('L_end:')
    s('s_endpgm')
    return s


def main():
    pro, prw, pre = prologue()
    f, fa, fb = lc_role(True)
    q, qa, qb = lc_role(False)
    qo = q_out()
    k, ka, kb = kv_role()
    fpaths, fsegs = phase2b('f', OPT['na'], list(range(5 + OPT['nb'])) + [8, 9, 10])
    kpaths, ksegs = phase2b('k', 0, list(range(OPT['kpf'])))
    p2segs, p2a, fi = fsegs + ksegs, phase2a(), fin()
    paths = [
        [pro, pre, f, fa, p2a, fi],
        [pro, pre, q, qa, qo, fi],
        [pro, prw, pre, q, qb, qo, fi],
        [pro, prw, pre, k, ka, p2a, fi],
    ]
    paths += [[pro, prw, pre, f, fb] + p + [fi] for p in fpaths] + [[pro, prw, pre, k, kb] + p + [fi] for p in kpaths]
    resolve_waits(paths)
    n = pad_hazards(paths)
    assert pad_hazards(paths) == 0
    body = render([pro, prw, pre, f, fa, fb, k, ka, kb, q, qa, qb, qo] + p2segs + [p2a, fi, slow])
    head = open('cdna_kernels/%s.s.ref' % NAME).read().split('\n')
    head = [l for l in head if l.startswith(';') and '@launch' not in l]
    out = '\n'.join(head) + '''
; @launch grid=(256,1,1) block=(512,1,1) lds=%d
.amdgcn_target "amdgcn-amd-amdhsa--gfx950"
.text
.globl %s_kernel
.p2align 8
.type %s_kernel,@function
%s_kernel:
L_codebeg:
%s
L_codeend:
.section .rodata,"a"
.p2align 6
.amdhsa_kernel %s_kernel
  .amdhsa_next_free_vgpr 256
  .amdhsa_next_free_sgpr 102
  .amdhsa_accum_offset 256
  .amdhsa_group_segment_fixed_size 0
  .amdhsa_kernarg_size 88
  .amdhsa_user_sgpr_count 2
  .amdhsa_user_sgpr_kernarg_segment_ptr 1
  .amdhsa_system_sgpr_workgroup_id_x 1
.end_amdhsa_kernel
''' % (LDS_BYTES, NAME, NAME, NAME, body, NAME)
    if OPT['x_plain'] & 1:
        out = '\n'.join(l.replace(' sc1', '') if 'buffer_store_dwordx4' in l else l for l in out.split('\n'))
    if OPT['x_plain'] & 2:
        out = '\n'.join(l.replace(' sc1', '') if 'buffer_load_dwordx4' in l else l for l in out.split('\n'))
    open(sys.argv[1], 'w').write(out)
    print('wrote %s: %d lines, %d pad states' % (sys.argv[1], out.count('\n'), n))


main()
```

```python
import re

REG_RE = re.compile(r'^(-?)(?:abs\()?([vs])(?:(\d+)|\[(\d+):(\d+)\])\)?$')
TRANS = ('v_exp_f32', 'v_rcp_f32', 'v_rsq_f32', 'v_sqrt_f32', 'v_log_f32')
NO_DST_S = ('s_cmp', 's_waitcnt', 's_barrier', 's_nop', 's_branch', 's_cbranch', 's_setprio', 's_sleep', 's_endpgm',
            's_bitcmp')


def regs(tok):
    tok = tok.strip()
    if tok in ('vcc', 'exec', 'm0'):
        return {tok}
    if tok in ('vcc_lo', 'vcc_hi'):
        return {'vcc'}
    m = REG_RE.match(tok)
    if not m:
        return set()
    k = m.group(2)
    if m.group(3) is not None:
        return {(k, int(m.group(3)))}
    return {(k, i) for i in range(int(m.group(4)), int(m.group(5)) + 1)}


def vr(a, n=1):
    return 'v%d' % a if n == 1 else 'v[%d:%d]' % (a, a + n - 1)


def sr(a, n=1):
    return 's%d' % a if n == 1 else 's[%d:%d]' % (a, a + n - 1)


class Ins:
    __slots__ = ('text', 'op', 'rd', 'wr', 'kind', 'tag', 'srcc', 'srcab', 'passes', 'data', 'wait', 'nops', 'n_vm',
                 'n_lgkm', 'lds')

    def __init__(self, text, tag=None):
        self.text = text
        self.tag = tag
        self.rd, self.wr = set(), set()
        self.srcc, self.srcab, self.data = set(), set(), set()
        self.passes = 0
        self.wait = None
        self.nops = 0
        self.n_vm = self.n_lgkm = None
        self.lds = False
        if text.endswith(':') or text.startswith('.') or text.startswith(';'):
            self.op, self.kind = text, 'label'
            return
        parts = text.split(None, 1)
        op = self.op = parts[0]
        rest = parts[1] if len(parts) > 1 else ''
        ops = [o.strip() for o in rest.split(',')] if rest else []
        mods = []
        if ops:
            if 'op_sel' in rest:
                ops = [o.strip() for o in rest[:rest.index('op_sel')].split(',')]
            last = ops[-1].split()
            ops[-1] = last[0] if last else ''
            mods = last[1:]
        R = [regs(o) for o in ops]
        allr = set().union(*R) if R else set()
        if op.startswith('v_mfma'):
            self.kind = 'mfma'
            self.wr = R[0]
            self.srcab = R[1] | R[2]
            self.srcc = R[3]
            self.rd = self.srcab | self.srcc
            self.passes = 4 if '16x16' in op else 8
        elif op.startswith('v_'):
            base = op.replace('_e32', '').replace('_e64', '')
            self.kind = 'trans' if base in TRANS else ('dot' if base.startswith('v_dot') else 'valu')
            self.wr = set(R[0])
            self.rd = set().union(*R[1:]) if len(R) > 1 else set()
            if base.startswith(('v_fmac', 'v_dot2c')):
                self.rd |= R[0]
            if base.startswith('v_permlane'):
                self.wr |= R[1]
                self.rd |= R[0]
        elif op.startswith('ds_'):
            self.kind = 'ds'
            if op.startswith('ds_read'):
                self.wr = R[0]
                self.rd = set().union(*R[1:])
            else:
                self.rd = allr
        elif op.startswith(('buffer_', 'global_')):
            self.kind = 'vmem'
            if 'lds' in mods:
                self.lds = True
                self.rd = allr | {'m0'}
            elif '_load' in op:
                self.wr = R[0]
                self.rd = set().union(*R[1:])
            else:
                self.rd = allr
                if 'atomic' in op and 'sc0' in mods:
                    self.wr = R[0]
                if 'x4' in op or 'x3' in op:
                    self.data = R[0] if op.startswith('buffer_') else R[1]
        elif op.startswith(('s_load', 's_buffer_load', 's_memtime', 's_memrealtime')):
            self.kind = 'smem'
            self.wr = R[0]
            self.rd = set().union(*R[1:]) if len(R) > 1 else set()
        elif op.startswith('s_'):
            self.kind = 'salu'
            if op.startswith(NO_DST_S):
                self.rd = allr
            else:
                self.wr = R[0]
                self.rd = set().union(*R[1:]) if len(R) > 1 else set()
        else:
            raise ValueError(text)


def Wait(vm=None, lgkm=None):
    i = Ins('s_waitcnt 0')
    i.kind = 'wait'
    i.wait = (vm, lgkm)
    return i


class Seg(list):
    def __init__(self, name=''):
        super().__init__()
        self.name = name

    def __call__(self, text, tag=None):
        for line in text.split('\n'):
            line = line.strip()
            if line:
                self.append(Ins(line, tag))
        return self

    def wait(self, vm=None, lgkm=None):
        self.append(Wait(vm, lgkm))
        return self


GAP = 'GAP'


def interleave(slots, filler, start=0, end=None):
    end = len(slots) if end is None else end
    ngap = sum(1 for f in filler if f is GAP)
    real = len(filler) - ngap
    nslot = max(1, end - start - ngap)
    per = real / nslot
    out, fi, credit = [], 0, 0.0
    for k, s in enumerate(slots):
        out.extend(s)
        if start <= k < end:
            if fi < len(filler) and filler[fi] is GAP:
                fi += 1
                continue
            credit += per
            while fi < len(filler) and filler[fi] is not GAP and (credit >= 0.999 or k == end - 1):
                out.append(filler[fi])
                fi += 1
                credit -= 1
            if k == end - 1:
                out.extend(f for f in filler[fi:] if f is not GAP)
                fi = len(filler)
    assert fi == len(filler)
    return out


def _as_list(t):
    if t is None:
        return []
    assert not isinstance(t, tuple)
    return t if isinstance(t, list) else [t]


def resolve_waits(paths):
    known = set()
    for path in paths:
        for seg in path:
            for ins in seg:
                if ins.tag is not None:
                    known.add(ins.tag)
    for path in paths:
        vm, lg = [], []
        vm_done = lg_done = 0
        here = {ins.tag for seg in path for ins in seg}
        for seg in path:
            for ins in seg:
                if ins.kind == 'vmem':
                    vm.append(ins.tag)
                elif ins.kind == 'ds':
                    lg.append(ins.tag)
                elif ins.kind == 'wait':
                    for which, lst, cap in ((0, vm, 63), (1, lg, 15)):
                        need = -1
                        force = False
                        for t in _as_list(ins.wait[which]):
                            if t == 'all':
                                need, force = len(lst) - 1, True
                                continue
                            assert t in known, 'unknown tag %r' % (t,)
                            idx = [k for k, x in enumerate(lst) if x == t]
                            assert idx or t not in here, 'wait before issue: %r' % (t,)
                            if idx:
                                need = max(need, idx[-1])
                        done = vm_done if which == 0 else lg_done
                        if need >= done or force:
                            n = min(len(lst) - 1 - need, cap)
                            if which == 0:
                                ins.n_vm = n if ins.n_vm is None else min(ins.n_vm, n)
                                vm_done = max(vm_done, len(lst) - n)
                            else:
                                ins.n_lgkm = n if ins.n_lgkm is None else min(ins.n_lgkm, n)
                                lg_done = max(lg_done, len(lst) - n)
    seen = set()
    for path in paths:
        for seg in path:
            if id(seg) in seen:
                continue
            seen.add(id(seg))
            keep = []
            for ins in seg:
                if ins.kind == 'wait':
                    if ins.n_vm is None and ins.n_lgkm is None:
                        continue
                    if keep and keep[-1].kind == 'wait':
                        p = keep[-1]
                        for a in ('n_vm', 'n_lgkm'):
                            x, y = getattr(p, a), getattr(ins, a)
                            setattr(p, a, y if x is None else (x if y is None else min(x, y)))
                        continue
                keep.append(ins)
            for ins in keep:
                if ins.kind == 'wait':
                    f = []
                    if ins.n_vm is not None:
                        f.append('vmcnt(%d)' % ins.n_vm)
                    if ins.n_lgkm is not None:
                        f.append('lgkmcnt(%d)' % ins.n_lgkm)
                    ins.text = 's_waitcnt ' + ' '.join(f)
            seg[:] = keep


VALUISH = ('valu', 'trans', 'dot')


def _need(p, c):
    n = 0
    vw = {r for r in p.wr if isinstance(r, tuple) and r[0] == 'v'}
    sw = p.wr - vw
    if p.kind in VALUISH:
        if c.kind == 'mfma' and vw & c.rd:
            n = max(n, 3 if p.kind == 'dot' else 2)
        if c.op.startswith('v_permlane') and vw & c.rd:
            n = max(n, 2)
        if c.op.startswith(('v_readfirstlane', 'v_readlane')) and vw & c.rd:
            n = max(n, 1)
        if p.kind == 'trans' and c.kind in ('valu', 'dot', 'trans') and vw & c.rd:
            n = max(n, 1)
        if p.kind == 'dot' and (vw & (c.rd | c.wr)) and c.op != p.op:
            n = max(n, 3)
        if sw:
            if c.kind in VALUISH and sw & c.rd:
                n = max(n, 2)
            if c.kind == 'vmem' and sw & c.rd:
                n = max(n, 5)
            if c.kind == 'salu' and sw & c.rd:
                n = max(n, 1)
    if p.kind == 'mfma':
        big = 12 if p.passes == 8 else 8
        if c.kind == 'mfma':
            if vw & c.srcab:
                n = max(n, big)
            if vw & c.srcc and not (c.srcc == p.wr and c.op == p.op):
                n = max(n, big - 2)
            if vw & c.wr and not (vw & c.srcc):
                n = max(n, big)
        elif c.kind in VALUISH or c.kind in ('vmem', 'ds'):
            if vw & (c.rd | c.wr):
                n = max(n, big)
        if c.kind in VALUISH and p.srcc & c.wr:
            n = max(n, 7 if p.passes == 8 else 3)
    if p.kind == 'salu' and 'm0' in p.wr and c.kind == 'vmem' and c.lds:
        n = max(n, 1)
    if p.kind == 'vmem' and p.data and p.data & c.wr:
        n = max(n, 2)
    return n


def _states(i):
    if i.kind == 'label':
        return 0
    if i.op == 's_nop':
        return int(i.text.split()[1]) + 1
    return 1


def pad_hazards(paths):
    total = 0
    for path in paths:
        flat = [i for seg in path for i in seg]
        for k, c in enumerate(flat):
            if c.kind in ('label', 'wait'):
                continue
            dist, j = c.nops, k - 1
            while j >= 0 and dist < 12:
                p = flat[j]
                need = _need(p, c)
                if need > dist:
                    total += need - dist
                    c.nops += need - dist
                    dist = need
                dist += _states(p) + p.nops
                j -= 1
    return total


def render(segs):
    out = []
    for seg in segs:
        for i in seg:
            n = i.nops
            while n > 0:
                m = min(n, 16)
                out.append('    s_nop %d' % (m - 1))
                n -= m
            out.append(i.text if i.kind == 'label' else '    ' + i.text)
    return '\n'.join(out)


def verify_async(paths):
    bad = set()
    for path in paths:
        vm, lg, sm = [], [], set()
        for seg in path:
            for i in seg:
                if i.kind == 'label':
                    continue
                if i.op == 's_waitcnt':
                    m = re.search(r'vmcnt\((\d+)\)', i.text)
                    if m:
                        n = int(m.group(1))
                        vm = vm[max(0, len(vm) - n):] if n else []
                    m = re.search(r'lgkmcnt\((\d+)\)', i.text)
                    if m:
                        n = int(m.group(1))
                        lg = lg[max(0, len(lg) - n):] if n else []
                        if n == 0:
                            sm = set()
                    continue
                for q, kind in ((vm, 'vmem'), (lg, 'ds')):
                    for p in q:
                        hit = p.wr & i.rd
                        if not (i.kind == kind and i.wr):
                            hit |= p.wr & i.wr
                        if hit:
                            bad.add('%s: [%s] touches the result of outstanding [%s]' % (seg.name, i.text, p.text))
                if sm & (i.rd | i.wr):
                    bad.add('%s: [%s] touches an outstanding scalar load' % (seg.name, i.text))
                if i.kind == 'vmem':
                    vm.append(i)
                elif i.kind == 'ds':
                    lg.append(i)
                elif i.kind == 'smem' and not i.op.startswith('s_mem'):
                    sm |= i.wr
    return sorted(bad)
```

```python
import struct
import sys
from asmlib import Seg, Ins, Wait, GAP, interleave, resolve_waits, pad_hazards, verify_async, render, vr, sr

NAME = 'parallel_sum__linear_attn_block__dense_activation_gelu__prompt'
OPT = dict(rmap=4, jit=0, rounds=15, opriv=1, oscal=1, na=5, nb=0, b0=9, xfirst=1, osc=0, ne=1, ub=1, pmix=1, wv=4, back=0, x_wait=0, rot1=2, nlate=1, mul=10, fatom=0, tlb=0, kbar=4, kphi=26, ntail=4, p1at=2, ascal=1, kpf=2, kcut=85, kb0=24, kb1=104, khead=0, kearly=40, qatom=1, batom=1, pkind=1, x_hit=0, gsp=3, eprio=0, aprio=2, aprio2=2, aprio3=2, lb=10, touch=5, tat=4, twat=3, tkat=1, kprio=1, plead=3, x_noa=0, x_nopoll=0, x_noflag=0, x_nost=0, x_plain=0, rot2=1, dep=6, noatom=0, diag=0, p1only=0, sa=0, sb=10, clk=0, wg=0)
for a in sys.argv[2:]:
    k, v = a.split('=')
    OPT[k] = v if k == 'st' else int(v)
STAMPS = OPT.get('st', 'en,1,2,3,4,5,6,7,8,9,10').split(',')


def f32(x):
    return '0x%08x' % struct.unpack('<I', struct.pack('<f', x))[0]


XS, WQS, W1S = 896, 2688, 3584
ACT_G = 147456
KV_OFF = 0x900000
FKV_OFF = 0x910000
FL_OFF = 0x911000
FL_G = 896
FO_OFF = 0x920000
ST_OFF = 0x938000
TS_OFF = 0xA00000
WS_BYTES = 0x10000000
OOB = 0x40000000
R0, R1, R2, MISC = 0, 57344, 114688, 155648
M_ST, M_SY, M_CS, M_R = MISC, MISC + 2048, MISC + 4096, MISC + 7168
LDS_BYTES = 163840
LOG2E = 1.4426950408889634
GC1 = -2.0 * 0.7978845608028654 * LOG2E
GC3 = GC1 * 0.044715
SPIN_LIMIT = 1 << 16

S_WV, S_RW, S_G, S_RB, S_ROLE = 3, 4, 5, 6, 7
SX, SW, SWS, SW2, SWO, SOUT, SB1, SB2, SDBG = 8, 12, 16, 20, 24, 28, 32, 36, 40
S_KA = 44
S_KX, S_KW = 66, 73
S_I2, S_HALF, S_T0, S_T1, S_ONES, S_EPS = 80, 81, 82, 83, 84, 85
S_M0W, S_M0X, S_T3, S_RO, S_H, S_FL = 86, 87, 88, 89, 90, 91
S_HI = 92
S_SPIN, S_T2, S_P, S_LAST, S_PEND, S_L2E = 94, 95, 96, 97, 98, 99
S_PAD = 100
S_B2R, S_QR0, S_RO3, S_QR2, S_A, S_WOR, S_OUTO, S_PL = 66, 67, 68, 69, 70, 71, 72, 73
S_AO = 74

V_L16, V_B2, V_X0, V_X1, V_W, V_CSW, V_CSR = 1, 2, 3, 4, 5, 6, 7
V_SEL, V_CS, V_WA, V_XA, V_EXW, V_EXR, V_ST = 8, 12, 20, 28, 32, 36, 38
V_B1 = 16
V_WB, V_RA = 42, 43
V_POLL, V_PA, V_FLO, V_ONE = 44, 45, 46, 47
V_T = 48
V_ACC, V_X, V_WF = 64, 128, 240
V_B2B, V_BA, V_L16B, V_PL = 3, 4, 12, 31
DEP = 6
V_NUM, V_BF, V_AB, V_RES = 16, 48, 128, 192
V_PQ = 80
HND = 49152

slow = Seg('slow')
nspin = [0]


def stamp(s, k):
    if OPT['diag'] and str(k) in STAMPS:
        k = STAMPS.index(str(k))
        s('%s %s' % ('s_memtime' if OPT['diag'] == 2 or OPT['clk'] else 's_memrealtime', sr(S_KA + 2 * k, 2)))


EARLY = ['en', 'ka', 't0', 't1']


def estamp(s, k):
    if OPT['diag'] and k in STAMPS:
        s('%s s[100:101]' % ('s_memtime' if OPT['diag'] == 2 or OPT['clk'] else 's_memrealtime'))
        s('s_waitcnt lgkmcnt(0)')
        s('v_mov_b32 v%d, s100' % (120 + EARLY.index(k)))


class Rebase:
    def __init__(self, regs, base, span):
        self.regs, self.base, self.span = regs, base, span

    def off(self, s, addr):
        if not (self.base <= addr and addr - self.base + self.span <= 65535):
            for r in self.regs:
                s('v_add_u32 v%d, 0x%x, v%d' % (r, (addr - self.base) & 0xffffffff, r))
            self.base = addr
        return addr - self.base


def spin_check(s, vpoll, vexp, vaddr, srd, soff, mask):
    k = nspin[0]
    nspin[0] += 1
    s('v_cmp_ge_u32 vcc, v%d, v%d' % (vpoll, vexp))
    s('s_andn2_b32 s%d, 0x%x, vcc_lo' % (S_T2, mask))
    s('s_cbranch_scc1 L_slow%d' % k)
    s('L_ret%d:' % k)
    slow('L_slow%d:' % k)
    slow('s_add_u32 s%d, s%d, 1' % (S_SPIN, S_SPIN))
    slow('s_cmp_gt_u32 s%d, 0x%x' % (S_SPIN, SPIN_LIMIT))
    slow('s_cbranch_scc1 L_ret%d' % k)
    slow('buffer_load_dword v%d, v%d, %s, %s offen sc1' % (vpoll, vaddr, sr(srd, 4), soff))
    slow('s_waitcnt vmcnt(0)')
    slow('v_cmp_ge_u32 vcc, v%d, v%d' % (vpoll, vexp))
    slow('s_nop 1')
    slow('s_andn2_b32 s%d, 0x%x, vcc_lo' % (S_T2, mask))
    slow('s_cbranch_scc1 L_slow%d' % k)
    slow('s_branch L_ret%d' % k)


def poll_base(s):
    s('s_lshr_b32 s%d, s%d, 1' % (S_PL, S_I2))
    s('s_lshl2_add_u32 s%d, s%d, s%d' % (S_PL, S_PL, S_RW))
    s('s_mul_i32 s%d, s%d, %d' % (S_PL, S_PL, FL_G))
    s('s_add_u32 s%d, s%d, 0x%x' % (S_PL, S_PL, FL_OFF))
    s('v_cmp_gt_u32 vcc, 32, v%d' % V_L16)
    s('v_lshlrev_b32 v%d, 3, v%d' % (V_PL, V_L16))
    s('v_cndmask_b32 v%d, v%d, v%d, vcc' % (V_PL, V_FLO, V_PL))


def poll_async(s, k):
    s('buffer_load_dword v%d, v%d, %s, s%d offen offset:%d sc1' % (V_POLL, V_PL, sr(SWS, 4), S_PL, k * 256), ('poll', k))


def stage_check(s, k, miss=None, sync=False, scalar=False):
    if OPT['x_nopoll']:
        return
    j = nspin[0]
    nspin[0] += 1
    mask = 3 if k < 3 else 1
    if sync:
        s('s_branch L_slow%d' % j)
    else:
        s.wait(vm=[('poll', k)])
        s('v_cmp_ne_u32 vcc, 0, v%d' % V_POLL)
        s('s_andn2_b32 s%d, %d, vcc_lo' % (S_T2, mask))
        if miss:
            s('s_cbranch_scc1 %s' % miss)
            return
        s('s_cbranch_scc1 L_slow%d' % j)
    s('L_ret%d:' % j)
    slow('L_slow%d:' % j)
    slow('s_add_u32 s%d, s%d, 1' % (S_SPIN, S_SPIN))
    slow('s_cmp_gt_u32 s%d, 0x%x' % (S_SPIN, SPIN_LIMIT))
    slow('s_cbranch_scc1 L_ret%d' % j)
    if sync and k == 3 and OPT['back']:
        slow('s_sleep %d' % OPT['back'])
    if scalar:
        slow('s_add_u32 s%d, s%d, %d' % (S_T2, S_PL, k * 256))
        slow('s_add_u32 s%d, s%d, %d' % (S_T1, S_PL, k * 256 + (128 if k < 3 else 0)))
        slow('s_buffer_load_dword s%d, %s, s%d glc' % (S_T2, sr(SWS, 4), S_T2))
        if k < 3:
            slow('s_buffer_load_dword s%d, %s, s%d glc' % (S_T1, sr(SWS, 4), S_T1))
        slow('s_waitcnt lgkmcnt(0)')
        if k < 3:
            slow('s_and_b32 s%d, s%d, s%d' % (S_T2, S_T2, S_T1))
        slow('s_cmp_eq_u32 s%d, 0' % S_T2)
    else:
        slow('buffer_load_dword v%d, v%d, %s, s%d offen offset:%d sc1' % (V_POLL, V_PL, sr(SWS, 4), S_PL, k * 256))
        slow('s_waitcnt vmcnt(0)')
        slow('v_cmp_ne_u32 vcc, 0, v%d' % V_POLL)
        slow('s_nop 1')
        slow('s_andn2_b32 s%d, %d, vcc_lo' % (S_T2, mask))
    slow('s_cbranch_scc1 L_slow%d' % j)
    slow('s_branch L_ret%d' % j)


def poll_check(s, k, n, sync=False, atomic=False):
    j = nspin[0]
    nspin[0] += 1
    if OPT['x_nopoll']:
        return
    if sync:
        s('s_branch L_slow%d' % j)
    else:
        s.wait(vm=[('poll', k)])
        s('v_readfirstlane_b32 s%d, v%d' % (S_T2, V_POLL))
        s('s_cmp_lt_u32 s%d, %d' % (S_T2, n))
        s('s_cbranch_scc1 L_slow%d' % j)
    s('L_ret%d:' % j)
    slow('L_slow%d:' % j)
    slow('s_add_u32 s%d, s%d, 1' % (S_SPIN, S_SPIN))
    slow('s_cmp_gt_u32 s%d, 0x%x' % (S_SPIN, SPIN_LIMIT))
    slow('s_cbranch_scc1 L_ret%d' % j)
    if atomic:
        slow('v_mov_b32 v%d, 0' % V_POLL)
        slow('buffer_atomic_add v%d, v%d, %s, s%d offen offset:%d sc0 sc1' % (V_POLL, V_FLO, sr(SWS, 4), S_PL, k * 128))
        slow('s_waitcnt vmcnt(0)')
        slow('v_readfirstlane_b32 s%d, v%d' % (S_T2, V_POLL))
        slow('s_nop 0')
    else:
        slow('s_add_u32 s%d, s%d, %d' % (S_T2, S_PL, k * 128))
        slow('s_buffer_load_dword s%d, %s, s%d glc' % (S_T2, sr(SWS, 4), S_T2))
        slow('s_waitcnt lgkmcnt(0)')
    slow('s_cmp_lt_u32 s%d, %d' % (S_T2, n))
    slow('s_cbranch_scc1 L_slow%d' % j)
    slow('s_branch L_ret%d' % j)


def srd(s, d, nbytes):
    s('s_mov_b32 s%d, 0x%x' % (d + 2, nbytes))
    s('s_mov_b32 s%d, 0x20000' % (d + 3))


XSLOT = [R2, R2 + 16384, R1 + 8192, R1 + 24576, R1 + 40960, R2, R2 + 16384]


def kv_slot(n):
    return ((n + 4) % 9) * 16384


def prologue():
    s, T = Seg('pro'), V_T
    s('s_cmp_ge_u32 s2, 256')
    s('s_cbranch_scc1 L_end')
    estamp(s, 'en')
    s('s_load_dwordx2 %s, s[0:1], 0' % sr(SX, 2))
    s('s_load_dwordx2 %s, s[0:1], 8' % sr(SW, 2))
    s('s_load_dwordx2 %s, s[0:1], 32' % sr(S_HI, 2))
    s('v_readfirstlane_b32 s%d, v0' % S_WV)
    s('s_getpc_b64 s[82:83]')
    s('s_lshr_b32 s%d, s2, 3' % S_T2)
    s('s_lshl_b32 s%d, s%d, 11' % (S_P, S_T2))
    s('v_lshl_add_u32 v%d, v0, 2, s%d' % (T, S_P))
    s('v_min_u32 v%d, L_codeend-L_codebeg-64, v%d' % (T, T))
    s('global_load_dword v%d, v%d, s[82:83]' % (V_POLL, T))
    s('s_lshr_b32 s%d, s%d, 6' % (S_WV, S_WV))
    s('v_and_b32 v%d, 63, v0' % T)
    if OPT['rmap'] < 0:
        s('s_and_b32 s%d, s%d, 7' % (S_ROLE, S_T2))
        s('v_lshrrev_b32 v%d, 3, v%d' % (T + 1, T))
        s('s_lshr_b32 s%d, s%d, 3' % (S_I2, S_T2))
    else:
        s('s_add_u32 s%d, s%d, %d' % (S_ROLE, S_T2, 4 * OPT['rmap']))
        s('v_lshrrev_b32 v%d, 3, v%d' % (T + 1, T))
        s('s_bfe_u32 s%d, s%d, 0x30002' % (S_ROLE, S_ROLE))
        s('s_and_b32 s%d, s%d, 3' % (S_I2, S_T2))
    s('v_lshrrev_b32 v%d, 4, v%d' % (T + 3, T))
    s('s_and_b32 s%d, s2, 1' % S_HALF)
    s('v_lshl_add_u32 v%d, s%d, 4, v%d' % (T + 5, S_WV, T + 1))
    s('s_bfe_u32 s%d, s2, 0x20001' % S_P)
    s('v_mul_u32_u24 v%d, %d, v%d' % (T + 5, XS, T + 5))
    s('s_lshl2_add_u32 s%d, s%d, s%d' % (S_RB, S_P, S_I2))
    s('v_xor_b32 v%d, v%d, v%d' % (T + 6, T, T + 3))
    s('s_lshl1_add_u32 s%d, s%d, s%d' % (S_T2, S_I2, S_ROLE))
    s('v_and_b32 v%d, 7, v%d' % (T + 6, T + 6))
    s('s_add_u32 s%d, s%d, s%d' % (S_T2, S_T2, S_P))
    s('v_lshl_add_u32 v%d, v%d, 4, v%d' % (V_X0, T + 6, T + 5))
    s('s_mul_i32 s%d, s%d, 3' % (S_T0, S_HALF))
    s('v_xor_b32 v%d, 64, v%d' % (V_X1, V_X0))
    s('s_add_u32 s%d, s%d, s%d' % (S_T2, S_T2, S_T0))
    s('v_add_u32 v%d, %d, v%d' % (V_X1, 8 * XS - 1024, V_X1))
    s('s_mul_i32 s%d, s%d, 37' % (S_T1, S_T2))
    s('v_lshlrev_b32 v%d, 2, v%d' % (T + 4, T + 3))
    s('s_lshr_b32 s%d, s%d, 8' % (S_T1, S_T1))
    s('v_xor_b32 v%d, v%d, v%d' % (T + 4, T, T + 4))
    s('s_mul_i32 s%d, s%d, 7' % (S_T1, S_T1))
    s('s_sub_u32 s%d, s%d, s%d' % (S_T2, S_T2, S_T1))
    if OPT['rot1'] == 0:
        s('s_mov_b32 s%d, 0' % S_T2)
    elif OPT['rot1'] == 2:
        s('s_lshr_b32 s%d, s%d, 1' % (S_T2, S_T2))
    elif OPT['rot1'] == 3:
        s('s_and_b32 s%d, s%d, 4' % (S_T2, S_T2))
    elif OPT['rot1'] == 4:
        s('s_and_b32 s%d, s%d, 6' % (S_T2, S_T2))
    s('s_mul_i32 s%d, s%d, %d' % (S_H, S_RB, 128 * XS))
    s('s_lshl_b32 s%d, s%d, 7' % (S_KX, S_T2))
    s('s_add_u32 s%d, s%d, s%d' % (S_KX, S_KX, S_H))
    s('s_lshl_b32 s%d, s%d, 11' % (S_M0X, S_WV))
    s('s_bitcmp1_b32 0x70, s%d' % S_ROLE)
    s('s_cselect_b32 s%d, 4, 7' % S_T3)
    s('s_lshl_b32 s%d, s%d, 14' % (S_T3, S_T3))
    s('s_add_u32 m0, s%d, s%d' % (S_T3, S_M0X))
    srd(s, SX, 2048 * XS)
    assert XSLOT[0] == 7 << 14 and kv_slot(0) == 4 << 14
    if OPT['touch'] & 8:
        s('s_lshl3_add_u32 s%d, s%d, s%d' % (S_T3, S_HALF, S_ROLE))
        s('v_min_u32 v%d, 6, v%d' % (T + 2, T))
        s('s_lshl3_add_u32 s%d, s%d, s%d' % (S_T3, S_T3, S_WV))
        s('v_lshlrev_b32 v%d, 7, v%d' % (T + 2, T + 2))
        s('s_mul_i32 s%d, s%d, %d' % (S_T3, S_T3, XS))
        s('s_add_u32 s%d, s%d, s%d' % (S_T3, S_T3, S_H))
    if OPT['xfirst']:
        s('s_waitcnt lgkmcnt(0)')
        estamp(s, 'ka')
        s('buffer_load_dwordx4 v%d, %s, s%d offen lds' % (V_X0, sr(SX, 4), S_KX), 't0')
        s('buffer_load_dwordx4 v%d, %s, s%d offen offset:1024 lds' % (V_X1, sr(SX, 4), S_KX), 't0')
        if OPT['touch'] & 8:
            s('buffer_load_dword v%d, v%d, %s, s%d offen' % (V_EXW, T + 2, sr(SX, 4), S_T3))
    s('s_and_b32 s%d, s%d, 3' % (S_RW, S_WV))
    s('s_lshr_b32 s%d, s%d, 2' % (S_G, S_WV))
    s('s_lshl_b32 s%d, s%d, 11' % (S_M0W, S_RW))
    s('s_add_u32 s%d, s%d, s%d' % (S_T0, S_T0, S_ROLE))
    s('s_lshl_b32 s%d, s%d, 7' % (S_T0, S_T0))
    s('s_add_u32 s%d, s%d, %d' % (S_T0, S_T0, XS - 512))
    s('s_lshl2_add_u32 s%d, s%d, s%d' % (S_P, S_HALF, S_ROLE))
    s('s_and_b32 s%d, s%d, 1' % (S_PEND, S_ROLE))
    s('s_lshl_b32 s%d, s%d, 6' % (S_PEND, S_PEND))
    s('s_movk_i32 s%d, %d' % (S_LAST, WQS))
    s('s_cmp_lt_u32 s%d, 4' % S_ROLE)
    s('s_cselect_b32 s%d, %d, s%d' % (S_LAST, W1S, S_LAST))
    s('s_cselect_b32 s%d, s%d, s%d' % (S_P, S_P, S_HALF))
    s('s_cselect_b32 s%d, s%d, 0' % (S_PEND, S_PEND))
    s('s_mul_i32 s%d, s%d, 448' % (S_T1, S_P))
    s('s_add_u32 s%d, s%d, s%d' % (S_T1, S_T1, S_PEND))
    s('s_lshl_b32 s%d, s%d, 6' % (S_RO, S_LAST))
    s('s_mul_i32 s%d, s%d, s%d' % (S_KW, S_T2, S_RO))
    s('s_mul_i32 s%d, s%d, 448' % (SW + 2, S_LAST))
    s('s_mov_b32 s%d, 0x20000' % (SW + 3))
    s('s_lshl_b32 s%d, s%d, 1' % (S_T2, S_RW))
    s('s_add_u32 s%d, s%d, %d' % (S_FL, S_M0X, kv_slot(1)))
    s('s_bitcmp1_b32 0x70, s%d' % S_ROLE)
    s('s_cselect_b32 s%d, s%d, s%d' % (S_T0, S_T0, S_T1))
    s('s_cselect_b32 s%d, s%d, s%d' % (S_T2, S_WV, S_T2))
    s('s_cselect_b32 s%d, s%d, s%d' % (S_FL, S_FL, S_M0W))
    s('s_cselect_b32 s%d, 4, 3' % S_T1)
    s('s_cselect_b32 s%d, 1, s%d' % (S_SPIN, S_G))
    s('v_lshrrev_b32 v%d, s%d, v%d' % (T + 5, S_T1, T))
    s('v_lshl_add_u32 v%d, s%d, 3, v%d' % (T + 5, S_T2, T + 5))
    s('v_bfe_u32 v%d, v%d, 0, s%d' % (T + 6, T + 4, S_T1))
    s('s_lshr_b32 s%d, s%d, s%d' % (S_T1, S_RO, S_T1))
    s('v_mul_u32_u24 v%d, s%d, v%d' % (T + 5, S_LAST, T + 5))
    s('s_sub_u32 s%d, s%d, 1024' % (S_T1, S_T1))
    s('v_lshl_add_u32 v%d, v%d, 4, s%d' % (T + 6, T + 6, S_T0))
    s('v_add_u32 v%d, v%d, v%d' % (V_W, T + 5, T + 6))
    s('s_cmp_lt_u32 s%d, 4' % S_ROLE)
    s('v_add_u32 v%d, s%d, v%d' % (V_WB, S_T1, V_W))
    if not OPT['xfirst']:
        s('s_waitcnt lgkmcnt(0)')
        estamp(s, 'ka')
        s('buffer_load_dwordx4 v%d, %s, s%d offen lds' % (V_X0, sr(SX, 4), S_KX), 't0')
        s('buffer_load_dwordx4 v%d, %s, s%d offen offset:1024 lds' % (V_X1, sr(SX, 4), S_KX), 't0')
        if OPT['touch'] & 8:
            s('buffer_load_dword v%d, v%d, %s, s%d offen' % (V_EXW, T + 2, sr(SX, 4), S_T3))
    s('s_cselect_b64 %s, %s, %s' % (sr(SW, 2), sr(S_HI, 2), sr(SW, 2)))
    s('s_mov_b32 m0, s%d' % S_FL)
    s('s_cmp_eq_u32 s%d, 0' % S_SPIN)
    s('s_cbranch_scc1 L_now')
    w = Seg('prow')
    w('buffer_load_dwordx4 v%d, %s, s%d offen lds' % (V_W, sr(SW, 4), S_KW), 't0')
    w('buffer_load_dwordx4 v%d, %s, s%d offen offset:1024 lds' % (V_WB, sr(SW, 4), S_KW), 't0')
    e = Seg('proe')
    e('L_now:')
    if OPT['touch'] & 16:
        e('v_min_u32 v%d, 55, v%d' % (T + 2, T))
        e('s_mul_i32 s%d, s%d, 28' % (S_T3, S_RB))
        e('v_lshrrev_b32 v%d, 1, v%d' % (T + 5, T + 2))
        e('s_mul_i32 s%d, s%d, s%d' % (S_T3, S_T3, S_LAST))
        e('v_mul_u32_u24 v%d, s%d, v%d' % (T + 5, S_LAST, T + 5))
        e('s_add_u32 s%d, s%d, s%d' % (S_T3, S_T3, S_T0))
        e('v_and_b32 v%d, 1, v%d' % (T + 2, T + 2))
        e('s_lshl_b32 s%d, s%d, 28' % (S_T2, S_WV))
        e('v_lshl_add_u32 v%d, v%d, 7, v%d' % (T + 2, T + 2, T + 5))
        e('s_add_u32 s%d, s%d, s%d' % (S_T3, S_T3, S_T2))
        e('buffer_load_dword v%d, v%d, %s, s%d offen' % (V_EXW, T + 2, sr(SW, 4), S_T3))
    estamp(e, 't0')
    for d, off in ((SWS, 80), (SB1, 40), (SDBG, 72), (SW2, 48), (SWO, 16), (SB2, 56), (SOUT, 64)):
        e('s_load_dwordx2 %s, s[0:1], %d' % (sr(d, 2), off))
    essential(e)
    e('s_cmp_ge_u32 s%d, 7' % S_ROLE)
    e('s_cbranch_scc1 L_q')
    e('s_cmp_ge_u32 s%d, 4' % S_ROLE)
    e('s_cbranch_scc1 L_kv')
    return s, w, e


def zipper(a, b):
    out = []
    for k in range(max(len(a), len(b))):
        out += a[k:k + 1] + b[k:k + 1]
    return out


def essential(z):
    T = V_T
    k, s = Seg(), Seg()
    k('s_add_u32 s%d, s%d, %d' % (S_T2, S_H, XS))
    for c in range(1, 7):
        k('s_add_u32 s%d, s%d, 128' % (S_KX + c, S_KX + c - 1))
        k('s_add_u32 s%d, s%d, s%d' % (S_KW + c, S_KW + c - 1, S_RO))
        k('s_cmp_eq_u32 s%d, s%d' % (S_KX + c, S_T2))
        k('s_cselect_b32 s%d, s%d, s%d' % (S_KX + c, S_H, S_KX + c))
        k('s_cselect_b32 s%d, 0, s%d' % (S_KW + c, S_KW + c))
    k('s_mov_b32 s%d, 0x3f803f80' % S_ONES)
    s('v_lshlrev_b32 v%d, 4, v%d' % (V_L16, T))
    s('v_and_b32 v%d, 1, v%d' % (T + 7, T + 3))
    s('v_and_b32 v%d, 31, v%d' % (T + 8, T))
    s('v_lshrrev_b32 v%d, 5, v%d' % (T + 9, T))
    s('v_bfe_u32 v%d, v%d, 2, 2' % (T + 10, T))
    s('v_and_b32 v%d, 3, v%d' % (T + 11, T))
    s('v_lshl_add_u32 v%d, s%d, 1, v%d' % (T + 12, S_RW, T + 9))
    s('v_bfe_u32 v%d, v%d, 1, 3' % (T + 5, T))
    s('v_xor_b32 v%d, v%d, v%d' % (T + 5, T + 12, T + 5))
    s('v_lshl_add_u32 v%d, s%d, 5, v%d' % (T + 13, S_RW, T + 8))
    s('v_lshlrev_b32 v%d, 7, v%d' % (V_XA, T + 13))
    s('v_lshl_add_u32 v%d, v%d, 4, v%d' % (V_XA, T + 5, V_XA))
    for j in range(1, 4):
        s('v_xor_b32 v%d, %d, v%d' % (V_XA + j, j << 5, V_XA))
    s('v_lshl_add_u32 v%d, v%d, 3, v%d' % (T + 12, T + 12, T + 10))
    s('v_lshl_add_u32 v%d, v%d, 2, v%d' % (T + 14, T + 7, T + 11))
    s('v_and_b32 v%d, 1, v%d' % (T + 5, T + 10))
    s('v_mov_b32 v%d, 0x3f803f80' % (T + 6))
    s('v_cmp_eq_u32 vcc, v%d, v%d' % (T + 5, T + 7))
    for j in range(4):
        s('v_mov_b32 v%d, 0' % (V_ST + j))
    for j in range(4):
        s('v_cndmask_b32 v%d, 0, v%d, vcc' % (V_SEL + j, T + 6))
    s('v_mov_b32 v%d, 0x%x' % (V_FLO, OOB))
    s('v_cmp_eq_u32 vcc, 0, v%d' % T)
    s('v_mov_b32 v%d, 1' % V_ONE)
    s('v_mov_b32 v%d, 0' % (V_EXW + 1))
    s('v_cndmask_b32 v%d, v%d, 0, vcc' % (V_FLO, V_FLO))
    z.extend(zipper(list(k), list(s)))


def deferred(kv):
    s, T = Seg(), V_T
    for k in EARLY:
        if OPT['diag'] and k in STAMPS:
            s('v_readfirstlane_b32 s%d, v%d' % (S_KA + 2 * STAMPS.index(k), 120 + EARLY.index(k)))
    srd(s, SW2, 1792 * XS)
    srd(s, SWO, 448 * XS)
    srd(s, SOUT, 2048 * XS)
    srd(s, SB2, 448 * 2)
    s('s_mov_b32 s%d, %s' % (S_EPS, f32(1e-6)))
    s('s_mov_b32 s%d, %s' % (S_L2E, f32(LOG2E)))
    s('s_mov_b32 s%d, 0' % S_HI)
    s('s_mov_b32 s%d, -1' % (S_HI + 1))
    if kv:
        s('s_mov_b32 s%d, 0xf0000000' % S_PAD)
        s('s_mov_b32 s%d, 0xf0000000' % (S_PAD + 1))
        s('v_mov_b32 v%d, 0' % (V_EXW + 3))
    s('s_mov_b32 s%d, 0' % S_SPIN)
    s('v_and_b32 v%d, 7, v%d' % (T + 4, T + 4))
    s('v_mul_u32_u24 v%d, %d, v%d' % (V_B2, XS, T + 1))
    s('v_lshl_add_u32 v%d, v%d, 4, v%d' % (V_B2, T + 4, V_B2))
    if kv:
        s('s_mov_b32 s%d, %d' % (S_T1, M_CS))
    else:
        s('s_lshl_b32 s%d, s%d, 9' % (S_T1, S_G))
        s('s_add_u32 s%d, s%d, %d' % (S_T1, S_T1, M_CS))
    s('v_lshl_add_u32 v%d, v%d, 4, s%d' % (V_CSR, T + 8, S_T1))
    s('v_lshl_add_u32 v%d, s%d, 2, v%d' % (V_CSW, S_RW, V_CSR))
    s('s_lshl2_add_u32 s%d, s%d, %d' % (S_T1, S_WV, M_SY))
    s('v_mov_b32 v%d, s%d' % (V_PA, S_T1))
    for k in ((0, 128, 160, 192, 224) if kv else (0,)):
        s('ds_write_b32 v%d, v%d offset:%d' % (V_PA, V_EXW + 1, k))
    if not kv:
        s('v_lshlrev_b32 v%d, 4, v%d' % (V_EXR, T + 13))
        s('v_add_u32 v%d, %d, v%d' % (V_EXR, M_ST, V_EXR))
        s('v_lshl_add_u32 v%d, v%d, 3, v%d' % (V_EXR + 1, T + 9, V_EXR))
    s('s_and_b32 s%d, s2, 7' % S_T1)
    s('s_lshl2_add_u32 s%d, s%d, s%d' % (S_I2, S_T1, S_I2))
    s('s_lshl1_add_u32 s%d, s%d, s%d' % (S_T1, S_I2, S_ROLE))
    s('s_and_b32 s%d, s%d, 3' % (S_RO, S_T1))
    s('s_and_b32 s%d, s%d, 4' % (S_T1, S_T1))
    s('s_lshl2_add_u32 s%d, s%d, s%d' % (S_RO, S_T1, S_RO))
    if not OPT['rot2']:
        s('s_mov_b32 s%d, 0' % S_RO)
    return s


def tlb_warm(s):
    if not OPT['tlb']:
        return
    T = V_T
    s('s_cmp_eq_u32 s%d, 0' % S_WV)
    s('s_cselect_b32 s%d, 128, 0x%x' % (S_T1, OOB))
    for r in (SDBG, SW2, SWO, SB2, SOUT):
        s('buffer_load_dword v%d, v%d, %s, s%d offen' % (T + 15, V_FLO, sr(r, 4), S_T1))
    s('v_lshlrev_b32 v%d, 17, v%d' % (T + 5, V_L16))
    s('v_min_u32 v%d, 0x%x, v%d' % (T + 5, 0x9f0000, T + 5))
    s('buffer_load_dword v%d, v%d, %s, s%d offen' % (T + 15, T + 5, sr(SWS, 4), S_T1))


def dma_x(s, c, addr, tag):
    s('s_add_u32 m0, s%d, %d' % (S_M0X, addr))
    s('buffer_load_dwordx4 v%d, %s, s%d offen lds' % (V_X0, sr(SX, 4), S_KX + c), tag)
    s('buffer_load_dwordx4 v%d, %s, s%d offen offset:1024 lds' % (V_X1, sr(SX, 4), S_KX + c), tag)


def dma_w(s, m0base, c, addr, tag):
    s('s_add_u32 m0, s%d, %d' % (m0base, addr))
    s('buffer_load_dwordx4 v%d, %s, s%d offen lds' % (V_W, sr(SW, 4), S_KW + c), tag)
    s('buffer_load_dwordx4 v%d, %s, s%d offen offset:1024 lds' % (V_WB, sr(SW, 4), S_KW + c), tag)


def groups(z):
    out, cur = [], []
    for i in z:
        cur.append(i)
        if i.kind == 'vmem':
            out.append(cur)
            cur = []
    if cur:
        out.append(cur)
    return out


def mix(main, grp, lo=0.0, hi=1.0):
    main = [i for i in main if i is not GAP]
    out, k, n = [], 0, len(main)
    for idx, i in enumerate(main):
        while k < len(grp) and idx >= n * (lo + (hi - lo) * k / len(grp)):
            out.extend(grp[k])
            k += 1
        out.append(i)
    for g in grp[k:]:
        out.extend(g)
    return out


def barrier(z, vm=None, name=None):
    if name:
        stamp(z, name + 'a')
    z.wait(vm=vm, lgkm='all')
    if name:
        stamp(z, name + 'b')
    z('s_barrier')


BLK = [0, 4, 1, 5, 2, 6, 3]


def unit_ks(u):
    return 4 * BLK[u >> 2] + (u & 3)


def unit_loc(u):
    u %= 11
    return (S_QR2, 1, u * 2048) if u < 5 else (S_QR0, 0, (u - 5) * 2048)


def p2_setup(s):
    s('s_lshl_b32 s%d, s%d, 7' % (S_T0, S_ROLE))
    s('s_mul_i32 s%d, s%d, %d' % (S_B2R, S_RW, 448 * XS))
    s('s_add_u32 s%d, s%d, s%d' % (S_B2R, S_B2R, S_T0))
    s('s_mul_i32 s%d, s%d, %d' % (S_WOR, S_RW, 112 * XS))
    s('s_add_u32 s%d, s%d, s%d' % (S_WOR, S_WOR, S_T0))
    s('s_mul_i32 s%d, s%d, %d' % (S_OUTO, S_I2, 64 * XS))
    s('s_add_u32 s%d, s%d, s%d' % (S_OUTO, S_OUTO, S_T0))
    s('s_mul_i32 s%d, s%d, 12288' % (S_QR0, S_RW))
    s('s_lshr_b32 s%d, s%d, 2' % (S_RO3, S_RO))
    s('s_or_b32 s%d, s%d, s%d' % (S_RO3, S_RO3, S_RO))
    s('s_and_b32 s%d, s%d, 7' % (S_RO3, S_RO3))
    s('s_mul_i32 s%d, s%d, 10240' % (S_QR2, S_RW))
    s('s_add_u32 s%d, s%d, %d' % (S_QR2, S_QR2, R2))
    s('s_mul_i32 s%d, s%d, %d' % (S_A, S_I2, 2 * ACT_G))
    s('v_add_u32 v%d, %d, v%d' % (V_B2B, 8 * XS - 1024, V_B2))


def touch_w(s, ffn, junk=127):
    if not OPT['touch'] & 1:
        return
    T = V_T
    s('s_and_b32 s%d, s%d, 3' % (S_T2, S_ROLE))
    s('s_lshl2_add_u32 s%d, s%d, s%d' % (S_T2, S_RB, S_T2))
    s('s_lshl3_add_u32 s%d, s%d, s%d' % (S_T2, S_T2, S_WV))
    s('s_mul_i32 s%d, s%d, %d' % (S_T2, S_T2, W1S if ffn else WQS))
    s('s_mul_i32 s%d, s%d, %d' % (S_T3, S_HALF, 1792 if ffn else 384))
    s('s_add_u32 s%d, s%d, s%d' % (S_T2, S_T2, S_T3))
    if ffn:
        s('v_min_u32 v%d, 13, v%d' % (T + 2, T))
    else:
        s('v_min_u32 v%d, 11, v%d' % (T + 2, T))
        s('v_lshrrev_b32 v%d, 2, v%d' % (T + 15, T + 2))
        s('v_mad_u32_u24 v%d, v%d, 3, v%d' % (T + 2, T + 15, T + 2))
    s('v_lshlrev_b32 v%d, 7, v%d' % (T + 2, T + 2))
    s('buffer_load_dword v%d, v%d, %s, s%d offen' % (junk, T + 2, sr(SW, 4), S_T2))


def touch_w2(s):
    if not OPT['touch'] & 2:
        return
    T = V_T
    s('s_lshl3_add_u32 s%d, s2, s%d' % (S_T2, S_WV))
    s('s_mul_i32 s%d, s%d, %d' % (S_T2, S_T2, XS))
    s('v_min_u32 v%d, 6, v%d' % (T + 2, T))
    s('v_lshlrev_b32 v%d, 7, v%d' % (T + 2, T + 2))
    s('s_sub_u32 s%d, %d, s%d' % (S_T3, 2047 * XS, S_T2))
    s('buffer_load_dword v%d, v%d, %s, s%d offen' % (V_POLL, T + 2, sr(SW2, 4), S_T2))
    s('buffer_load_dword v%d, v%d, %s, s%d offen' % (V_POLL, T + 2, sr(SWO, 4), S_T3))


def touch_kv(s):
    if not OPT['touch'] & 4:
        return
    T = V_T + 8
    s('s_mul_i32 s%d, s%d, 6' % (S_T2, S_RB))
    s('s_add_u32 s%d, s%d, s%d' % (S_T2, S_T2, S_P))
    s('s_lshl2_add_u32 s%d, s%d, s%d' % (S_T2, S_T2, S_RW))
    s('v_min_u32 v%d, %d, v%d' % (T, 32 * 16, V_L16))
    s('s_mul_i32 s%d, s%d, %d' % (S_T3, S_T2, 33 * 128))
    s('v_lshlrev_b32 v%d, 3, v%d' % (T, T))
    s('buffer_load_dword v%d, v%d, %s, s%d offen' % (T + 1, T, sr(SW2, 4), S_T3))
    s('v_min_u32 v%d, %d, v%d' % (T, 8 * 128, T))
    s('s_mul_i32 s%d, s%d, %d' % (S_T3, S_T2, 9 * 128))
    s('buffer_load_dword v%d, v%d, %s, s%d offen' % (T + 1, T, sr(SWO, 4), S_T3))


def touch_l2(s, r, t):
    if not OPT['touch'] & 32 or not OPT['rounds'] >> r & 1:
        return
    s('s_add_u32 s%d, s2, %d' % (S_T3, r))
    s('s_and_b32 s%d, s%d, 3' % (S_T3, S_T3))
    s('s_mul_i32 s%d, s%d, 49' % (S_T3, S_T3))
    s('s_lshr_b32 s%d, s2, 6' % S_T2)
    s('s_mul_i32 s%d, s%d, 3' % (S_T2, S_T2))
    s('s_add_u32 s%d, s%d, s%d' % (S_T2, S_T2, S_ROLE))
    s('s_lshl2_add_u32 s%d, s%d, s%d' % (S_T2, S_T2, S_RW))
    s('s_add_u32 s%d, s%d, s%d' % (S_T3, S_T3, S_T2))
    s('s_sub_u32 s%d, s%d, 16' % (S_T3, S_T3))
    s('v_lshlrev_b32 v%d, 3, v%d' % (t, V_L16))
    s('s_lshl_b32 s%d, s%d, 13' % (S_T3, S_T3))
    s('buffer_load_dword v%d, v%d, %s, s%d offen' % (t, t, sr(SW2, 4), S_T3))


def touch_wo(s, t):
    if not OPT['touch'] & 32:
        return
    s('s_lshr_b32 s%d, s2, 6' % S_T2)
    s('s_lshl3_add_u32 s%d, s%d, s%d' % (S_T2, S_T2, S_WV))
    s('v_min_u32 v%d, %d, v%d' % (t, 48 * 16, V_L16))
    s('s_mul_i32 s%d, s%d, %d' % (S_T2, S_T2, 14 * XS))
    s('v_lshlrev_b32 v%d, 3, v%d' % (t, t))
    s('s_add_u32 s%d, s%d, %d' % (S_T3, S_T2, 7 * XS))
    s('buffer_load_dword v%d, v%d, %s, s%d offen' % (t + 1, t, sr(SWO, 4), S_T2))
    s('buffer_load_dword v%d, v%d, %s, s%d offen' % (t + 1, t, sr(SWO, 4), S_T3))


def ks_dyn(s, dst, u):
    if u < 24:
        s('s_xor_b32 s%d, s%d, %d' % (dst, S_RO, unit_ks(u)))
    else:
        s('s_and_b32 s%d, s%d, 3' % (dst, S_RO))
        s('s_xor_b32 s%d, s%d, %d' % (dst, dst, unit_ks(u)))


def dma_b2(s, u):
    base, _, off = unit_loc(u)
    if u < 28:
        ks_dyn(s, S_T3, u)
        if OPT['x_hit'] & 2:
            s('s_and_b32 s%d, s%d, 7' % (S_T3, S_T3))
        s('s_add_u32 m0, s%d, %d' % (base, off))
        s('s_mul_i32 s%d, s%d, %d' % (S_T3, S_T3, 16 * XS))
        s('s_add_u32 s%d, s%d, s%d' % (S_T3, S_T3, S_B2R))
    else:
        s('s_xor_b32 s%d, s%d, %d' % (S_T3, S_RO3, u - 28))
        s('s_and_b32 s%d, s%d, 1' % (S_T1, S_T3))
        s('s_mul_i32 s%d, s%d, 7' % (S_T3, S_T3))
        s('s_add_u32 s%d, s%d, s%d' % (S_T3, S_T3, S_T1))
        s('s_add_u32 m0, s%d, %d' % (base, off))
        s('s_mul_i32 s%d, s%d, %d' % (S_T3, S_T3, 2 * XS))
        s('s_add_u32 s%d, s%d, s%d' % (S_T3, S_T3, S_WOR))
    w = SW2 if u < 28 else SWO
    s('buffer_load_dwordx4 v%d, %s, s%d offen lds' % (V_B2, sr(w, 4), S_T3), ('b', u))
    s('buffer_load_dwordx4 v%d, %s, s%d offen offset:1024 lds' % (V_B2B, sr(w, 4), S_T3), ('b', u))


def abuf(u, rg):
    return V_AB + 8 * (u % DEP) + 4 * rg if u < 28 else V_AB + 64 + 8 * (u - 28) + 4 * rg


def a_setup(s):
    s('v_add_u32 v%d, %d, v%d' % (V_L16B, ACT_G, V_L16))
    s('s_lshl_b32 s%d, s%d, 13' % (S_T0, S_RW))
    s('s_add_u32 s%d, s%d, s%d' % (S_P, S_A, S_T0))
    s('s_add_u32 s%d, s%d, %d' % (S_P, S_P, 112 * 1024))
    s('s_mul_i32 s%d, s%d, %d' % (S_T0, S_RW, 28 * 1024))
    s('s_add_u32 s%d, s%d, s%d' % (S_A, S_A, S_T0))


def aload(z, u):
    ks_dyn(z, S_T0, u)
    z('s_lshl_b32 s%d, s%d, 10' % (S_T0, S_T0))
    z('s_add_u32 s%d, s%d, s%d' % (S_T0, S_T0, S_A))
    for rg in range(2):
        z('buffer_load_dwordx4 %s, v%d, %s, s%d offen sc1' % (vr(abuf(u, rg), 4), V_L16B if rg else V_L16, sr(SWS, 4), S_T0), ('a', u))


def sync_arrive(s, k):
    s('ds_write_b32 v%d, v%d offset:%d' % (V_PA, V_ONE, k * 32))


def sync_wait(s, k, nw, T):
    j = nspin[0]
    nspin[0] += 1
    s('v_mov_b32 v%d, %d' % (T + 8, M_SY))
    s('L_sy%d:' % j)
    for h in range(nw // 4):
        s('ds_read_b128 %s, v%d offset:%d' % (vr(T + 4 * h, 4), T + 8, k * 32 + h * 16))
    s('s_add_u32 s%d, s%d, 1' % (S_SPIN, S_SPIN))
    s('s_cmp_gt_u32 s%d, 0x%x' % (S_SPIN, SPIN_LIMIT))
    s('s_cbranch_scc1 L_sz%d' % j)
    s.wait(lgkm='all')
    for h in range(1, nw - 1, 2):
        s('v_and_b32 v%d, v%d, v%d' % (T + h, T + h, T + h + 1))
    for h in range(1, nw, 2):
        s('v_and_b32 v%d, v%d, v%d' % (T, T, T + h))
    s('v_readfirstlane_b32 s%d, v%d' % (S_T2, T))
    s('s_cmp_eq_u32 s%d, 0' % S_T2)
    s('s_cbranch_scc1 L_sy%d' % j)
    s('L_sz%d:' % j)
    s.wait(lgkm='all')


def flag(s, off):
    if OPT['fatom']:
        s('buffer_atomic_add v%d, v%d, %s, s%d offen offset:%d sc1' % (V_ONE, V_FLO, sr(SWS, 4), S_FL, off))
    else:
        s('buffer_store_dword v%d, v%d, %s, s%d offen offset:%d sc1' % (V_ONE, V_FLO, sr(SWS, 4), S_FL, off))


def f0_load(s):
    s('buffer_load_dword v%d, v%d, %s, 0 offen sc1' % (V_POLL, V_FLO, sr(SDBG, 4)), 'f0')


def f0_check(s):
    s('v_mov_b32 v%d, 32' % (V_T + 15))
    stamp(s, 'f0a')
    s.wait(vm='f0')
    stamp(s, 'f0b')
    spin_check(s, V_POLL, V_T + 15, V_FLO, SDBG, '0', 1)


def poll_early(s):
    poll_base(s)
    poll_async(s, 0)


def xreg(c, j):
    return V_X + 16 * c + 4 * j


def dots(s, c):
    for j in range(4):
        s.wait(lgkm=[('x', c, j)])
        for r in range(4):
            x = xreg(c, j) + r
            s('v_dot2c_f32_bf16 v%d, s%d, v%d' % (V_ST + (r & 1), S_ONES, x))
            s('v_dot2c_f32_bf16 v%d, v%d, v%d' % (V_ST + 2 + (r & 1), x, x))


def stats_write(s):
    s('v_add_f32 v%d, v%d, v%d' % (V_ST, V_ST, V_ST + 1))
    s('v_add_f32 v%d, v%d, v%d' % (V_ST + 1, V_ST + 2, V_ST + 3))
    s('ds_write_b64 v%d, %s' % (V_EXR + 1, vr(V_ST, 2)))


def stats_final(kind):
    s, T = Seg(), V_T
    s('ds_read_b128 %s, v%d' % (vr(T, 4), V_EXR), 'st')
    s.append(GAP)
    s.wait(lgkm='st')
    s('v_add_f32 v%d, v%d, v%d' % (T, T, T + 2))
    s('v_add_f32 v%d, v%d, v%d' % (T + 1, T + 1, T + 3))
    s('v_mul_f32 v%d, %s, v%d' % (T, f32(1.0 / 448), T))
    s('v_mul_f32 v%d, %s, v%d' % (T + 1, f32(1.0 / 448), T + 1))
    s('v_fma_f32 v%d, -v%d, v%d, v%d' % (T + 1, T, T, T + 1))
    s('v_max_f32 v%d, 0, v%d' % (T + 1, T + 1))
    s('v_cvt_pk_bf16_f32 v%d, v%d, v%d' % (T + 1, T + 1, T + 1))
    s('v_lshlrev_b32 v%d, 16, v%d' % (T + 1, T + 1))
    s('v_add_f32 v%d, %s, v%d' % (T + 1, f32(1e-5), T + 1))
    s('v_cvt_pk_bf16_f32 v%d, v%d, v%d' % (T + 1, T + 1, T + 1))
    s('v_lshlrev_b32 v%d, 16, v%d' % (T + 1, T + 1))
    s('v_sqrt_f32 v%d, v%d' % (T + 1, T + 1))
    s('v_cvt_pk_bf16_f32 v%d, -v%d, -v%d' % (T, T, T))
    s('v_cvt_pk_bf16_f32 v%d, v%d, 0' % (T + 1, T + 1))
    s('v_cndmask_b32 v%d, v%d, 0, %s' % (V_EXR, T, sr(S_HI, 2)))
    s('v_lshlrev_b32 v%d, 16, v%d' % (V_ST + 2, T + 1))
    s('v_rcp_f32 v%d, v%d' % (V_ST + 3, V_ST + 2))
    s('v_cndmask_b32 v%d, v%d, 0, %s' % (V_EXR + 1, T + 1, sr(S_HI, 2)))
    if kind == 'gelu':
        s('v_mul_f32 v%d, %s, v%d' % (V_ST, f32(GC1), V_ST + 3))
        s('v_mul_f32 v%d, v%d, v%d' % (T, V_ST + 3, V_ST + 3))
        s('v_mul_f32 v%d, %s, v%d' % (V_ST + 1, f32(GC3), V_ST + 3))
        s('v_mul_f32 v%d, v%d, v%d' % (V_ST + 1, T, V_ST + 1))
    elif kind == 'phi':
        s('v_mul_f32 v%d, s%d, v%d' % (V_ST, S_L2E, V_ST + 3))
    return s


def ext_parts(acc, off, exw, swap, bias=None, T=V_T + 8):
    r, b, m = Seg(), Seg(), Seg()
    tag = ('cs', id(r))
    r('ds_read_b128 %s, v%d offset:%d' % (vr(T, 4), V_CSR, off), tag)
    b.wait(lgkm=[tag])
    b('v_add_f32 v%d, v%d, v%d' % (T, T, T + 1))
    b('v_add_f32 v%d, v%d, v%d' % (T + 2, T + 2, T + 3))
    b('v_add_f32 v%d, v%d, v%d' % (T, T, T + 2))
    b('v_cvt_pk_bf16_f32 v%d, v%d, v%d' % (T + 1, T, T))
    b('v_lshlrev_b32 v%d, 16, v%d' % (T + 1, T + 1))
    b('v_sub_f32 v%d, v%d, v%d' % (T + 1, T, T + 1))
    b('v_cvt_pk_bf16_f32 v%d, v%d, v%d' % (exw, T, T + 1))
    if bias is not None:
        r('v_mov_b32 v%d, v%d' % (exw + 1, bias))
    x, y = (V_EXR, exw) if swap else (exw, V_EXR)
    m('v_mfma_f32_32x32x8_bf16 %s, %s, %s, %s' % (vr(acc, 16), vr(x, 2), vr(y, 2), vr(acc, 16)))
    KEEP.append(r)
    return r, b, m


KEEP = []


def head(parts, stats=None):
    st = [i for i in stats if i is not GAP] if stats is not None else []
    out = st[:1]
    for p in parts:
        out += p[0]
    out += st[1:]
    for p in parts:
        out += p[1]
    for p in parts:
        out += p[2]
    return out


def epi_rowlane(kind, acc, tag, handoff=False, keep=None):
    s, T = Seg(), V_T
    for grp in range(4):
        a = [acc + 4 * grp + e for e in range(4)]
        t = [T + e for e in range(4)]
        if kind == 'gelu':
            for e in range(4):
                s('v_mul_f32 v%d, v%d, v%d' % (t[e], a[e], a[e]))
            for e in range(4):
                s('v_fma_f32 v%d, v%d, v%d, v%d' % (t[e], t[e], V_ST + 1, V_ST))
            for e in range(4):
                s('v_mul_f32 v%d, v%d, v%d' % (t[e], a[e], t[e]))
            for e in range(4):
                s('v_exp_f32 v%d, v%d' % (t[e], t[e]))
            for e in range(4):
                s('v_fma_f32 v%d, v%d, v%d, v%d' % (t[e], t[e], V_ST + 2, V_ST + 2))
            for e in range(4):
                s('v_rcp_f32 v%d, v%d' % (t[e], t[e]))
            for e in range(4):
                s('v_mul_f32 v%d, v%d, v%d' % (a[e], a[e], t[e]))
        else:
            for e in range(4):
                s('v_mul_f32 v%d, v%d, v%d' % (t[e], a[e], V_ST))
            for e in range(4):
                s('v_exp_f32_e64 v%d, v%d clamp' % (t[e], t[e]))
            for e in range(4):
                s('v_fma_f32 v%d, v%d, v%d, s%d' % (a[e], a[e], V_ST + 3, S_EPS))
            for e in range(4):
                s('v_max_f32 v%d, s%d, v%d' % (a[e], S_EPS, a[e]))
            for e in range(4):
                s('v_add_f32 v%d, v%d, v%d' % (a[e], a[e], t[e]))
        p = acc + 8 * (grp >> 1) + 2 * (grp & 1) if keep is None else keep + 2 * grp
        s('v_cvt_pk_bf16_f32 v%d, v%d, v%d' % (p, a[0], a[1]))
        s('v_cvt_pk_bf16_f32 v%d, v%d, v%d' % (p + 1, a[2], a[3]))
        if kind == 'phi' and grp == 3:
            s('v_cndmask_b32 v%d, v%d, 0, %s' % (p, p, sr(S_HI, 2)))
            s('v_cndmask_b32 v%d, v%d, 0, %s' % (p + 1, p + 1, sr(S_HI, 2)))
        if grp & 1 and keep is None:
            f = grp >> 1
            if handoff:
                s('ds_write_b128 v%d, %s offset:%d' % (V_RA, vr(acc + 8 * f, 4), f * 1024))
                continue
            s('buffer_store_dwordx4 %s, v%d, %s, s%d offen offset:%d sc1' % (vr(acc + 8 * f, 4), V_L16, sr(SWS, 4), S_H, f * 1024), tag)
    return s


def lc_role(ffn):
    kind = 'gelu' if ffn else 'phi'
    nm = 'f' if ffn else 'q'
    s, T = Seg(nm), V_T
    if not ffn:
        s('L_q:')
    if OPT['twat'] < -1:
        touch_w(s, ffn)
    s('s_mul_i32 s%d, s%d, %d' % (S_T1, S_G, 64 if ffn else 56))
    s('v_lshrrev_b32 v%d, 1, v%d' % (T + 6, T + 10))
    s('v_lshl_add_u32 v%d, v%d, 3, s%d' % (T + 5, T + 14, S_T1))
    s('v_lshlrev_b32 v%d, 6, v%d' % (T + 6, T + 6))
    s('v_xor_b32 v%d, v%d, v%d' % (T + 5, T + 5, T + 6))
    s('v_lshl_add_u32 v%d, v%d, 7, v%d' % (V_WA, T + 12, T + 5))
    for j in range(1, 4):
        s('v_xor_b32 v%d, %d, v%d' % (V_WA + j, j << 11, V_WA))
    srd(s, SWS, WS_BYTES)
    srd(s, SDBG, 256)
    s('s_waitcnt lgkmcnt(0)')
    if not ffn:
        s('s_lshl1_add_u32 s%d, s%d, s%d' % (S_T2, S_RB, S_HALF))
        s('s_mul_i32 s%d, s%d, 6' % (S_T1, S_T2))
        s('s_add_u32 s%d, s%d, s%d' % (S_T1, S_T1, S_WV))
        s('s_lshl_b32 s%d, s%d, 10' % (S_T1, S_T1))
        s('s_add_u32 s%d, s%d, 0x%x' % (S_T1, S_T1, KV_OFF))
        s('s_lshl_b32 s%d, s%d, 10' % (S_LAST, S_T2))
        s('s_add_u32 s%d, s%d, 0x%x' % (S_LAST, S_LAST, ST_OFF))
        s('s_cmp_lt_u32 s%d, 6' % S_WV)
        s('s_cselect_b32 s%d, s%d, 0x%x' % (S_T1, S_T1, OOB))
        s('s_cmp_eq_u32 s%d, 6' % S_WV)
        s('s_cselect_b32 s%d, s%d, s%d' % (S_T1, S_LAST, S_T1))
        s('buffer_store_dwordx4 %s, v%d, %s, s%d offen sc1' % (vr(V_ST, 4), V_L16, sr(SWS, 4), S_T1), 'zero')
    s('s_cmp_eq_u32 s%d, 1' % S_G)
    s('s_cbranch_scc1 L_%sb' % nm)
    UA, UB = [([(0,), (2,)], [(1,), (3, 4)]), ([(), ()], [(0, 1), (2, 3, 4)]), ([(0, 1), (3,)], [(2,), (4,)])][OPT['ub']]
    step = 128 if ffn else 112
    region = [R0, R1, R0, R1]
    acc = V_ACC

    def stream(g):
        z = Seg(nm + 'ab'[g])
        if g:
            z('L_%sb:' % nm)
        xa = Rebase([V_XA + j for j in range(4)], 0, 0)
        wa = Rebase([V_WA + j for j in range(4)], 0, 512)

        def triple(t, c):
            dma_x(t, c, XSLOT[c], ('t', c))
            if g:
                dma_w(t, S_M0W, c, R0 + c * 8192, ('t', c))

        def lc(t, q, c):
            dma_w(t, S_M0W, c, region[q] + c * 8192, ('l', q, c))

        def wread(t, q, c, j):
            o = wa.off(t, region[q] + c * 8192)
            for u in range(2):
                t('ds_read_b64_tr_b16 %s, v%d offset:%d' % (vr(V_WF + 4 * j + 2 * u, 2), V_WA + j, o + u * 512), ('w', q, c, j))

        def xread(t, c, j):
            o = xa.off(t, XSLOT[c])
            t('ds_read_b128 %s, v%d offset:%d' % (vr(xreg(c, j), 4), V_XA + j, o), ('x', c, j))

        def kstep(q, c, j):
            t = Seg()
            t.wait(lgkm=[('w', q, c, j)])
            first = c == 0 and j == 0
            t('v_mfma_f32_32x32x16_bf16 %s, %s, %s, %s' % (vr(acc, 16), vr(V_WF + 4 * j, 4), vr(xreg(c, j), 4), '0' if first else vr(acc, 16)))
            if j == 0:
                t('v_mfma_f32_16x16x32_bf16 %s, %s, %s, %s' % (vr(V_CS, 4), vr(V_SEL, 4), vr(V_WF + 4 * j, 4), '0' if first else vr(V_CS, 4)))
            if c < 6:
                wread(t, q, c + 1, j)
            return t

        def preread(t, q):
            for j in range(4):
                wread(t, q, 0, j)

        def gemm(t, q, fill=(), extra=None):
            t('s_setprio 1')
            slots = [kstep(q, c, j) for c in range(7) for j in range(4)]
            for k, gi in enumerate(groups(extra) if extra is not None else []):
                slots[min(1 + OPT['gsp'] * k, 27)].extend(gi)
            slots[26]('ds_write_b32 v%d, v%d' % (V_CSW, V_CS))
            t.extend(interleave(slots, list(fill), 0, 20))

        def next_col(t, last=False):
            for r in (V_W, V_WB):
                if last and ffn:
                    t('v_add_u32 v%d, s%d, v%d' % (r, S_LAST, r))
                else:
                    t('v_add_u32 v%d, %d, v%d' % (r, step, r))

        def epi(t, q, extra=None, pre=None, handoff=False, hi=0.85, keep=False, nxt=None):
            grp = groups(extra) if extra is not None else []
            t('s_setprio 2')
            t.extend(head([ext_parts(acc, 0, V_EXW, False, V_B1 + q if ffn else None)], pre))
            if not keep:
                t('s_setprio %d' % OPT['eprio'])
            stamp(t, 'x%d' % (2 * q + g + 1))
            for gi in grp[:2]:
                t.extend(gi)
            body = mix(epi_rowlane(kind, acc, ('h', q), handoff, None if ffn else V_PQ + 8 * q), grp[2:], 0.03, hi)
            if nxt is not None:
                r = Seg()
                if ffn and not g and nxt == 3:
                    for k in range(4):
                        r('v_xor_b32 v%d, s%d, v%d' % (V_WA + k, S_PEND, V_WA + k))
                preread(r, nxt)
                body = mix(body, [[i] for i in r], 0.55, 0.95) if OPT['pmix'] else body + list(r)
            t.extend(body)
            if ffn:
                t('s_add_u32 s%d, s%d, 4096' % (S_H, S_H))

        def duty(q, chunks, units=(), step_col=True):
            d = Seg()
            if step_col:
                next_col(d, q == 3)
            for k in chunks:
                lc(d, q, k)
            if ffn:
                for u in units:
                    dma_b2(d, u)
            return d

        late = deferred(False)
        late('s_lshl2_add_u32 s%d, s%d, s%d' % (S_H, S_RB, S_RW))
        late('s_mul_i32 s%d, s%d, %d' % (S_H, S_H, ACT_G))
        late('s_add_u32 s%d, s%d, %d' % (S_H, S_H, g * 2048 + (0 if ffn else 112 * 1024)))
        late('s_lshl_b32 s%d, s%d, %d' % (S_T1, S_T0 if ffn else S_HALF, 5 if ffn else 14))
        late('s_add_u32 s%d, s%d, s%d' % (S_H, S_H, S_T1))
        if ffn:
            late('s_add_u32 s%d, s%d, %d' % (S_T1, S_M0W, HND))
            late('v_add_u32 v%d, s%d, v%d' % (V_RA, S_T1, V_L16))
            late('s_mul_i32 s%d, s%d, -8' % (S_LAST, S_PEND))
            late('s_add_u32 s%d, s%d, 128' % (S_LAST, S_LAST))
            srd(late, SB1, 1792 * 2)
            late('v_lshlrev_b32 v%d, 1, v%d' % (T + 5, T + 8))
            for q in range(3):
                late('buffer_load_ushort v%d, v%d, %s, s%d offen offset:%d' % (V_B1 + q, T + 5, sr(SB1, 4), S_T0, q * 128 + g * 64), 'b1')
            if not g:
                late('s_mul_i32 s%d, s%d, -7' % (S_T1, S_PEND))
                late('s_add_u32 s%d, s%d, s%d' % (S_T1, S_T1, S_T0))
                late('s_add_u32 s%d, s%d, 384' % (S_T1, S_T1))
                late('buffer_load_ushort v%d, v%d, %s, s%d offen' % (V_B1 + 3, T + 5, sr(SB1, 4), S_T1), 'b1')
        if g:
            late('s_mov_b32 s%d, 0x%x' % (S_FL, OOB))
        else:
            late('s_lshr_b32 s%d, s%d, 1' % (S_T1, S_P) if ffn else 's_lshl_b32 s%d, s%d, 1' % (S_T1, S_HALF))
            late('s_lshl2_add_u32 s%d, s%d, s%d' % (S_T1, S_RB, S_T1))
            late('s_mul_i32 s%d, s%d, %d' % (S_FL, S_T1, FL_G))
            late('s_lshl1_add_u32 s%d, s%d, s%d' % (S_FL, S_PEND, S_FL))
            late('s_lshl_b32 s%d, s%d, 28' % (S_T1, S_RW))
            late('s_add_u32 s%d, s%d, s%d' % (S_FL, S_FL, S_T1))
            late('s_add_u32 s%d, s%d, 0x%x' % (S_FL, S_FL, FL_OFF))
        NL = OPT['nlate']

        def some(k):
            return late[len(late) * k // NL:len(late) * (k + 1) // NL] if k < NL else []

        triple(z, 1)
        estamp(z, 't1')
        z.extend(some(0))
        if OPT['tat'] < -1:
            touch_w2(z)
        z('s_barrier')
        if g:
            z('s_setprio 1')
        triple(z, 2)
        for c in range(-1, 7):
            if c < 6:
                barrier(z, ['t0', 'zero'] if c < 0 else [('t', c + 1)], 's%d' % c if c >= 0 else 'pre')
            if c < 0:
                stamp(z, 1)
                if not ffn and not g:
                    z('s_lshl_b32 s%d, s%d, 28' % (S_T2, S_WV))
                    z('buffer_atomic_add v%d, v%d, %s, s%d offen sc1' % (V_ONE, V_FLO, sr(SDBG, 4), S_T2))
            d = Seg()
            if c < 3:
                triple(d, c + 4)
            if c == OPT['tat']:
                touch_w2(d)
            if c == 3:
                next_col(d)
            for k in {3: ([], [0]), 4: ([], [1]), 5: ([3], [2])}.get(c, ([], []))[g]:
                lc(d, 1, k)
            if c == OPT['twat']:
                touch_w(d, ffn)
            if g:
                if c == 6:
                    break
                for j in range(4):
                    xread(z, c + 1, j)
                z.extend(mix(some(c + 2), groups(d)))
                if c == 5:
                    preread(z, 0)
                dots(z, c + 1)
            else:
                for j in range(4):
                    if c == 6:
                        z.wait(lgkm=[('x', c, j)])
                    if c >= 0:
                        z.extend(kstep(0, c, j))
                    else:
                        wread(z, 0, 0, j)
                    if c < 6:
                        xread(z, c + 1, j)
                z.extend(mix(some(c + 2), groups(d)))
        if g:
            stats_write(z)
            barrier(z, [('l', 1, 0), 'b1'])
        else:
            z('ds_write_b32 v%d, v%d' % (V_CSW, V_CS))
            barrier(z, 'b1')
        stamp(z, 2)
        if not g:
            d = Seg()
            if not ffn:
                d('v_and_b32 v%d, 0xffff, v%d' % (V_XA, V_EXR))
                d('v_lshl_or_b32 v%d, v%d, 16, v%d' % (V_XA, V_EXR + 1, V_XA))
                d('v_lshrrev_b32 v%d, 2, v%d' % (V_XA + 1, V_L16))
                d('v_lshl_add_u32 v%d, s%d, 7, v%d' % (V_XA + 1, S_RW, V_XA + 1))
                d('v_cndmask_b32 v%d, v%d, v%d, %s' % (V_XA + 1, V_XA + 1, V_FLO, sr(S_HI, 2)))
                d('buffer_store_dword v%d, v%d, %s, s%d offen sc1' % (V_XA, V_XA + 1, sr(SWS, 4), S_LAST))
            f0_load(d)
            NE = OPT['ne']
            epi(z, 0, d, pre=stats_final(kind), nxt=1)
            barrier(z, [('l', 1, 3)], 'e1')
            stamp(z, 'h1')
            d = Seg()
            if ffn:
                p2_setup(d)
            gemm(z, 1, d, duty(2, range(NE, 5)))
            f0_check(z)
            barrier(z, [('h', 0)], 'e2')
            stamp(z, 'h2')
            epi(z, 1, duty(0, (), UA[0], False), nxt=2)
            barrier(z, [('l', 2, 4)], 'e3')
            stamp(z, 3)
            if ffn:
                flag(z, 0)
            gemm(z, 2, extra=duty(3, range(NE, 5)))
            barrier(z, [('h', 1)], 'e4')
            stamp(z, 'h4')
            epi(z, 2, duty(0, (), UA[1], False), nxt=3)
            barrier(z, [('l', 3, 4)], 'e5')
            stamp(z, 4)
            if ffn:
                flag(z, 256)
            gemm(z, 3, extra=duty(0, (), (8, 9, 10), False))
            barrier(z, [('b', u) for u in UA[1]], 'e6')
            stamp(z, 5)
            if ffn:
                z('ds_read_b128 %s, v%d' % (vr(V_WF, 4), V_RA), 'hnd')
                z('ds_read_b128 %s, v%d offset:1024' % (vr(V_WF + 4, 4), V_RA), 'hnd')
                z('s_sub_u32 s%d, s%d, 2048' % (S_T0, S_H))
                z('s_cmp_eq_u32 s%d, 0' % S_PEND)
                z('s_cselect_b32 s%d, 0, %d' % (S_T1, 3 * 4096 + 2048))
                z('s_sub_u32 s%d, s%d, s%d' % (S_H, S_H, S_T1))
                d = Seg()
                d.wait(lgkm='hnd')
                for f in range(2):
                    d('buffer_store_dwordx4 %s, v%d, %s, s%d offen offset:%d sc1' % (vr(V_WF + 4 * f, 4), V_L16, sr(SWS, 4), S_T0, f * 1024), 'h5')
                epi(z, 3, d, keep=True)
                z.wait(vm=[('h', 3)])
                sync_arrive(z, 0)
                sync_wait(z, 0, 4, T)
                flag(z, 512)
                stamp(z, 6)
                z('s_branch L_p2a')
            else:
                d = Seg()
                touch_wo(d, V_XA)
                epi(z, 3, d)
                z('s_barrier')
                z('s_branch L_qo')
            return z
        gemm(z, 0, stats_final(kind), duty(1, (4, 5, 6), (), False))
        barrier(z, [('l', 1, 6)], 'e1')
        stamp(z, 'h1')
        for q in (1, 2):
            epi(z, q - 1, duty(q + 1, range(OPT['ne'])), nxt=q)
            barrier(z, [('l', q + 1, 0)], 'e%d' % (2 * q))
            stamp(z, 'h%d' % (2 * q))
            d = duty(q + 1, (5, 6), (), False)
            if ffn and q == 1:
                p2_setup(d)
            if ffn and q == 2:
                poll_early(d)
            d.extend(duty(0, (), UB[q - 1], False))
            gemm(z, q, extra=d)
            barrier(z, [('l', q + 1, 6)], 'e%d' % (2 * q + 1))
            stamp(z, q + 2)
        if ffn:
            d = Seg()
            a_setup(d)
            stage_check(d, 0)
            for u in range(OPT['na']):
                aload(d, u)
            for u in range(5, 5 + OPT['nb']):
                dma_b2(d, u)
            epi(z, 2, d, handoff=True, hi=1.0)
            barrier(z, None, 'e6')
            z('s_branch L_p2f')
        else:
            d = Seg()
            touch_wo(d, V_XA)
            epi(z, 2, d, nxt=3)
            barrier(z)
            stamp(z, 5)
            gemm(z, 3)
            barrier(z)
            epi(z, 3)
        return z

    return s, stream(0), stream(1)


def q_out():
    s, T = Seg('qo'), V_T
    NUM, KF, RAW = V_X, V_X + 64, V_X + 96
    s('L_qo:')
    stamp(s, 6)
    s('s_lshl3_add_u32 s%d, s%d, s%d' % (S_T0, S_HALF, S_WV))
    s('s_lshl_b32 s%d, s%d, 7' % (S_PL, S_T0))
    s('s_add_u32 s%d, s%d, 0x%x' % (S_PL, S_PL, FKV_OFF))
    s('s_lshl_b32 s%d, s%d, 12' % (S_T0, S_T0))
    s('s_add_u32 s%d, s%d, 0x%x' % (S_T0, S_T0, KV_OFF))
    s('v_lshrrev_b32 v%d, 2, v%d' % (T, V_L16))
    s('s_add_u32 s%d, s%d, %d' % (S_T1, S_M0X, R2))
    s('v_add_u32 v%d, s%d, v%d' % (T + 1, S_T1, V_L16))
    s('s_lshl_b32 s%d, s%d, 11' % (S_T1, S_G))
    s('s_add_u32 s%d, s%d, %d' % (S_T1, S_T1, R2))
    s('v_add_u32 v%d, s%d, v%d' % (T + 2, S_T1, V_L16))
    poll_check(s, 0, 16, sync=True, atomic=OPT['qatom'])
    stamp(s, 7)
    for r in range(16):
        s('buffer_load_dword v%d, v%d, %s, s%d offen offset:%d sc1' % (RAW + r, T, sr(SWS, 4), S_T0, r * 256), ('kv', r >> 3))
    for f in range(2):
        s.wait(vm=[('kv', f)])
        for k in range(4):
            s('v_cvt_pk_bf16_f32 v%d, v%d, v%d' % (RAW + 8 * f + k, RAW + 8 * f + 2 * k, RAW + 8 * f + 2 * k + 1))
        s('ds_write_b128 v%d, %s offset:%d' % (T + 1, vr(RAW + 8 * f, 4), f * 1024))
    barrier(s)
    stamp(s, 8)
    for q in range(4):
        for f in range(2):
            s('ds_read_b128 %s, v%d offset:%d' % (vr(KF + 8 * q + 4 * f, 4), T + 2, q * 4096 + f * 1024), ('kf', q, f))
    for q in range(4):
        for f in range(2):
            s.wait(lgkm=[('kf', q, f)])
            s('v_mfma_f32_32x32x16_bf16 %s, %s, %s, %s' % (vr(NUM + 16 * q, 16), vr(KF + 8 * q + 4 * f, 4), vr(V_PQ + 8 * q + 4 * f, 4), vr(NUM + 16 * q, 16) if f else '0'))
    for p in range(2):
        for q in (2 * p, 2 * p + 1):
            s('v_add_f32 v%d, s%d, v%d' % (T + 4 + 2 * q, S_EPS, NUM + 16 * q + 12))
            s('v_add_f32 v%d, s%d, v%d' % (T + 5 + 2 * q, S_EPS, NUM + 16 * q + 12))
        for q in (2 * p, 2 * p + 1):
            s('v_permlane32_swap_b32 v%d, v%d' % (T + 4 + 2 * q, T + 5 + 2 * q))
        for q in (2 * p, 2 * p + 1):
            s('v_rcp_f32 v%d, v%d' % (T + 5 + 2 * q, T + 5 + 2 * q))
        for q in (2 * p, 2 * p + 1):
            s('v_cndmask_b32 v%d, v%d, 0, %s' % (T + 4 + 2 * q, T + 5 + 2 * q, sr(S_HI, 2)))
        for q in (2 * p, 2 * p + 1):
            n = NUM + 16 * q
            for f in range(2):
                for k in range(8 * f, 8 * f + 8, 2):
                    sel = 0 if k >= 12 else 1
                    s('v_pk_mul_f32 %s, %s, %s op_sel:[0,%d] op_sel_hi:[1,%d]' % (vr(n + k, 2), vr(n + k, 2), vr(T + 4 + 2 * q, 2), sel, sel))
                for k in range(4):
                    s('v_cvt_pk_bf16_f32 v%d, v%d, v%d' % (n + 8 * f + k, n + 8 * f + 2 * k, n + 8 * f + 2 * k + 1))
                s('buffer_store_dwordx4 %s, v%d, %s, s%d offen offset:%d sc1' % (vr(n + 8 * f, 4), V_L16, sr(SWS, 4), S_H, f * 1024), ('o', p))
            s('s_add_u32 s%d, s%d, 4096' % (S_H, S_H))
    stamp(s, 9)
    if OPT['opriv']:
        s('s_lshl1_add_u32 s%d, s%d, s%d' % (S_T0, S_RB, S_HALF))
        s('s_lshl_b32 s%d, s%d, 11' % (S_T0, S_T0))
        s('s_lshl_b32 s%d, s%d, 28' % (S_T1, S_WV))
        s('s_add_u32 s%d, s%d, s%d' % (S_T0, S_T0, S_T1))
        s('s_add_u32 s%d, s%d, 0x%x' % (S_T0, S_T0, FO_OFF))
        s('v_cmp_gt_u32 vcc, 0x100, v%d' % V_L16)
        s('v_lshlrev_b32 v%d, 3, v%d' % (T, V_L16))
        s('v_cndmask_b32 v%d, v%d, v%d, vcc' % (T, V_FLO, T))
        barrier(s, 'all')
        s('buffer_store_dword v%d, v%d, %s, s%d offen sc1' % (V_ONE, T, sr(SWS, 4), S_T0))
    else:
        barrier(s, 'all')
        flag(s, 768)
        flag(s, 768 + FL_G)
    s('s_branch L_fin')
    return s


def kv_role():
    s, T = Seg('kv'), V_T
    s('L_kv:')
    if OPT['twat'] < -1:
        touch_w(s, False, V_EXW)
    s('s_mul_i32 s%d, s%d, 3' % (S_P, S_HALF))
    s('s_add_u32 s%d, s%d, s%d' % (S_P, S_P, S_ROLE))
    s('s_sub_u32 s%d, s%d, 4' % (S_P, S_P))

    def item(t, n):
        if n >= 14:
            if n == 14:
                t('v_add_u32 v%d, %d, v%d' % (V_W, XS, V_W))
                t('v_add_u32 v%d, %d, v%d' % (V_WB, XS, V_WB))
            dma_w(t, S_M0X, n - 14, kv_slot(n), ('i', n))
        elif n & 1:
            dma_w(t, S_M0X, n >> 1, kv_slot(n), ('i', n))
        else:
            dma_x(t, n >> 1, kv_slot(n), ('i', n))

    s('s_lshl_b32 s%d, s%d, 2' % (S_T1, S_P))
    s('s_lshr_b32 s%d, 0xdb9630, s%d' % (S_LAST, S_T1))
    s('s_and_b32 s%d, s%d, 15' % (S_LAST, S_LAST))
    s('s_lshr_b32 s%d, 0x322333, s%d' % (S_PEND, S_T1))
    s('s_and_b32 s%d, s%d, 15' % (S_PEND, S_PEND))
    s('s_add_u32 s%d, s%d, s%d' % (S_T1, S_LAST, S_G))
    s('s_mul_i32 s%d, s%d, 56' % (S_T1, S_T1))
    s('s_lshl_b32 s%d, s%d, 7' % (S_T0, S_P))
    s('s_sub_u32 s%d, s%d, s%d' % (S_T1, S_T1, S_T0))
    s('s_add_u32 s%d, s%d, 1' % (S_T0, S_G))
    s('s_cmp_lt_u32 s%d, s%d' % (S_T0, S_PEND))
    s('s_cselect_b32 s%d, 56, 0' % S_T0)
    s('v_min_u32 v%d, 6, v%d' % (T + 14, T + 14))
    s('v_lshl_add_u32 v%d, v%d, 3, s%d' % (T + 5, T + 14, S_T1))
    s('v_lshlrev_b32 v%d, 6, v%d' % (T + 6, T + 10))
    for t in range(2):
        if t:
            s('v_add_u32 v%d, s%d, v%d' % (T + 5, S_T0, T + 5))
        s('v_xor_b32 v%d, v%d, v%d' % (T + 11, T + 5, T + 6))
        s('v_lshl_add_u32 v%d, v%d, 8, v%d' % (V_WA + 4 * t, T + 12, T + 11))
        for j in range(1, 4):
            s('v_xor_b32 v%d, %d, v%d' % (V_WA + 4 * t + j, j << 12, V_WA + 4 * t))
    srd(s, SWS, WS_BYTES)
    srd(s, SDBG, 256)
    item(s, 2)
    item(s, 3)
    estamp(s, 't1')
    s.extend(deferred(True))
    s('s_lshl1_add_u32 s%d, s%d, s%d' % (S_H, S_RB, S_HALF))
    s('s_lshl3_add_u32 s%d, s%d, s%d' % (S_H, S_H, S_RW))
    s('s_lshl_b32 s%d, s%d, 7' % (S_H, S_H))
    s('s_add_u32 s%d, s%d, 0x%x' % (S_H, S_H, ST_OFF))
    s('v_lshlrev_b32 v%d, 2, v%d' % (V_ST + 1, T + 8))
    s('s_lshl_b32 s%d, s%d, 7' % (S_T0, S_RW))
    s('s_add_u32 s%d, s%d, %d' % (S_T0, S_T0, M_R))
    s('v_lshl_add_u32 v%d, v%d, 4, s%d' % (V_RA, T + 9, S_T0))
    s('v_add_u32 v%d, s%d, v%d' % (V_ST + 2, S_T0, V_ST + 1))
    s('v_mov_b32 v%d, %d' % (T + 5, M_SY + 128))
    s('v_cndmask_b32 v%d, v%d, v%d, %s' % (V_ST + 3, V_RA, T + 5, sr(S_PAD, 2)))
    s('v_mov_b32 v%d, 0' % (V_EXR + 1))
    s('s_waitcnt lgkmcnt(0)')
    if OPT['tat'] < -1:
        touch_w2(s)
    s('s_cmp_eq_u32 s%d, 1' % S_G)
    s('s_cbranch_scc1 L_kb')

    def body(g):
        b = Seg('kb' if g else 'ka')
        if g:
            b('L_kb:')
        xa = Rebase([V_XA + j for j in range(4)], 0, 0)
        wa = [Rebase([V_WA + 4 * t + j for j in range(4)], 0, 1024) for t in range(2)]
        TS = [[0, 1], [1]] if g else [[0], [0, 1]]
        PK1 = V_X + 48

        def witem(q, c):
            return 2 * c + 1 if q == 0 else 14 + c

        def wf(t, j):
            return (V_ACC + 48 if t != g else V_WF) + 4 * j

        def acc(q, t):
            return V_ACC + 16 * (q + t)

        def wread(z, q, c, j, t):
            o = wa[t].off(z, kv_slot(witem(q, c)))
            for u in range(2):
                z('ds_read_b64_tr_b16 %s, v%d offset:%d' % (vr(wf(t, j) + 2 * u, 2), V_WA + 4 * t + j, o + u * 1024), ('w', q, c, j, t))

        def xread(z, c, j):
            o = xa.off(z, kv_slot(2 * c))
            z('ds_read_b128 %s, v%d offset:%d' % (vr(xreg(c, j), 4), V_XA + j, o))

        def kstep(q, c, j):
            out = []
            first = c == 0 and j == 0
            for t in TS[q]:
                z = Seg()
                z.wait(lgkm=[('w', q, c, j, t)])
                z('v_mfma_f32_32x32x16_bf16 %s, %s, %s, %s' % (vr(acc(q, t), 16), vr(xreg(c, j), 4), vr(wf(t, j), 4), '0' if first else vr(acc(q, t), 16)))
                if j == 0:
                    z('v_mfma_f32_16x16x32_bf16 %s, %s, %s, %s' % (vr(V_CS + 4 * t, 4), vr(V_SEL, 4), vr(wf(t, j), 4), '0' if first else vr(V_CS + 4 * t, 4)))
                if c < 6:
                    wread(z, q, c + 1, j, t)
                    if q == 0 and t == TS[q][-1]:
                        xread(z, c + 1, j)
                elif q == 0 and not g:
                    wread(z, 1, 0, j, 0)
                if c == 6 and j == 2 and t == TS[q][-1]:
                    for tt in TS[q]:
                        z('ds_write_b32 v%d, v%d offset:%d' % (V_CSW, V_CS + 4 * tt, q * 1536 + (g + tt) * 512))
                out.append(z)
            return out

        def ext(q, t, k):
            return ext_parts(acc(q, t), q * 1536 + (g + t) * 512, (V_EXW, V_EXW + 2, V_CS)[k], True, T=V_T + 4 + 4 * k)

        def rload(z, dst, key, addr=V_RA):
            for i in range(4):
                z('ds_read_b128 %s, v%d offset:%d' % (vr(dst + 4 * i, 4), addr, i * 32), key)

        def stat_load(z):
            z('buffer_load_dword v%d, v%d, %s, s%d offen sc1' % (V_ST, V_ST + 1, sr(SWS, 4), S_H), 'stat')

        def stat_use(z):
            z('v_and_b32 v%d, 0xffff, v%d' % (T, V_ST))
            z('v_lshl_or_b32 v%d, v%d, 16, v%d' % (T, V_ST, T))
            z('v_cndmask_b32 v%d, v%d, 0, %s' % (V_EXR, T, sr(S_HI, 2)))

        def phi_k(t, rb):
            e = Seg()
            for i in range(4):
                a = [acc(0, t) + 4 * i + k for k in range(4)]
                for k in range(4):
                    e('v_fma_f32 v%d, v%d, v%d, s%d' % (a[k], a[k], rb + 4 * i + k, S_EPS))
                for k in range(4):
                    e('v_mul_f32 v%d, s%d, v%d' % (T + k, S_L2E, a[k]))
                for k in range(4):
                    e('v_exp_f32_e64 v%d, v%d clamp' % (T + k, T + k))
                for k in range(4):
                    e('v_max_f32 v%d, s%d, v%d' % (a[k], S_EPS, a[k]))
                for k in range(4):
                    e('v_add_f32 v%d, v%d, v%d' % (a[k], a[k], T + k))
                e('v_cvt_pk_bf16_f32 v%d, v%d, v%d' % (acc(0, t) + 2 * i, a[0], a[1]))
                e('v_cvt_pk_bf16_f32 v%d, v%d, v%d' % (acc(0, t) + 2 * i + 1, a[2], a[3]))
            return e

        def hand_addr(z):
            z('s_mul_i32 s%d, s%d, 10240' % (S_T0, S_RW))
            z('s_add_u32 s%d, s%d, %d' % (S_T0, S_T0, R2 + 8192))
            z('v_add_u32 v%d, s%d, v%d' % (V_XA, S_T0, V_L16))

        def prod_setup(z, rb):
            rload(z, rb, 'r2', V_ST + 3)
            z('v_cndmask_b32 v%d, 0, 1.0, %s' % (V_XA + 1, sr(S_PAD, 2)))
            z('s_lshl_b32 s%d, s%d, 12' % (S_T0, S_RW))
            z('s_add_u32 s%d, s%d, %d' % (S_T0, S_T0, HND + g * 16384))
            z('v_add_u32 v%d, s%d, v%d' % (V_XA + 2, S_T0, V_L16))

        def kv_prod(z, t, pk, rb):
            z.wait(lgkm='r2')
            v, d = acc(1, t), V_X + 16 * t
            for f in range(2):
                for k in range(8 * f, 8 * f + 8):
                    z('v_fma_f32 v%d, v%d, v%d, v%d' % (v + k, v + k, rb + k, V_XA + 1))
                for k in range(4):
                    z('v_cvt_pk_bf16_f32 v%d, v%d, v%d' % (v + 8 * f + k, v + 8 * f + 2 * k, v + 8 * f + 2 * k + 1))
            z('s_setprio 2')
            for f in range(2):
                z('v_mfma_f32_32x32x16_bf16 %s, %s, %s, %s' % (vr(d, 16), vr(pk + 4 * f, 4), vr(v + 8 * f, 4), vr(d, 16) if f else '0'))

        def part_write(z, t):
            for i in range(4):
                z('ds_write_b128 v%d, %s offset:%d' % (V_XA + 2, vr(V_X + 16 * t + 4 * i, 4), t * 16384 + i * 1024))

        if not g:
            b('s_setprio 1')
        for c in range(-1, 7):
            barrier(b, 't0' if c < 0 else [('i', 2 * c + 3 if c < 6 else 14)], 's%d' % c if c >= 0 else 'pre')
            if c < 0:
                stamp(b, 1)
            d = Seg()
            if c == min(OPT['tat'], 2):
                touch_w2(d)
            if g and c == 3:
                f0_load(d)
            if g and c == 5:
                f0_check(d)
            item(d, 2 * c + 6)
            if c < 6:
                item(d, 2 * c + 7)
            if c == OPT['twat']:
                touch_w(d, False, V_EXW)
            if c == 6:
                if g:
                    stat_load(d)
                else:
                    for j in range(4):
                        wread(d, 1, 0, j, 1)
            if not g and c >= 0:
                b.extend(d)
            for j in range(4):
                if c >= 0:
                    for z in kstep(0, c, j):
                        b.extend(z)
                else:
                    for t in TS[0]:
                        wread(b, 0, 0, j, t)
                    xread(b, 0, j)
            if g or c < 0:
                b.extend(d)
        barrier(b, [('i', 16)], 's7')
        stamp(b, 2)

        if g:
            RB = V_ACC + 48
            parts = [ext(0, t, t) for t in range(2)]
            for p in parts:
                b.extend(p[0])
            item(b, 19)
            for p in parts:
                b.extend(p[1])
            item(b, 20)
            touch_l2(b, 0, V_W)
            hand_addr(b)
            b.wait(vm='stat')
            spin_check(b, V_ST, V_ONE, V_ST + 1, SWS, 's%d' % S_H, 0xffffffff)
            stat_use(b)
            b('v_and_b32 v%d, 0xffff0000, v%d' % (T + 1, V_ST))
            b('v_rcp_f32 v%d, v%d' % (T + 1, T + 1))
            b('s_setprio 2')
            for p in parts:
                b.extend(p[2])
            b('s_setprio 0')
            b('ds_write_b32 v%d, v%d' % (V_ST + 2, T + 1))
            rload(b, RB, 'r')
            e = Seg()
            e.wait(lgkm='r')
            e.extend(phi_k(0, RB))
            for f in range(2):
                e('ds_write_b128 v%d, %s offset:%d' % (V_XA, vr(acc(0, 0) + 4 * f, 4), f * 1024))
            d = Seg()
            touch_kv(d)
            touch_l2(d, 1, V_WB)
            if OPT['kpf']:
                p2_setup(d)
            for u in range(OPT['kpf']):
                dma_b2(d, u)
            r = Seg()
            for j in range(4):
                wread(r, 1, 0, j, 1)
            e.extend(mix(mix(phi_k(1, RB), [[i] for i in r]), groups(d), 0.3, 1.0))
            k0, k1 = OPT['kb0'], OPT['kb1']
            b.extend(e[:k0])
            barrier(b, [('i', 18)], 'v0')
            b.extend(e[k0:k1])
            barrier(b, [('i', 20)], 'v1')
            b.extend(e[k1:])
            prod_setup(b, RB)
            barrier(b, None, 'v2')
            stamp(b, 3)
            b('s_setprio 1')
            d = Seg()
            if not OPT['kpf']:
                p2_setup(d)
            slots = [kstep(1, c, j)[0] for c in range(7) for j in range(4)]
            if OPT['kearly']:
                pre = Seg()
                barrier(pre, None, 'v4')
                slots[20][:0] = pre
            b.extend(interleave(slots, list(d), 2, 19))
            barrier(b, None, 'v3')
            b('s_setprio 2')
            b.extend(head([ext(1, 1, 0)]))
            poll_base(b)
            kv_prod(b, 1, acc(0, 1), RB)
            part_write(b, 1)
            poll_async(b, 0)
            barrier(b, None, 'kk')
            stamp(b, 4)
            a_setup(b)
            b('s_branch L_p2k')
            return b
        for c in range(7):
            if c in (2, 4):
                barrier(b, [('i', 16 + c)], 'v%d' % (c // 2 - 1))
            for j in range(4):
                for z in kstep(1, c, j):
                    b.extend(z)
                if c < 2:
                    if j == 1:
                        d = Seg()
                        item(d, 19 + c)
                        d = groups(d)
                    if j in (1, 2):
                        b.extend(d[j - 1])
                if c == 2 and j == 1:
                    stat_load(b)
                if c == 5 and j == 1:
                    hand_addr(b)
                if c == 5 and j == 3:
                    b.wait(vm='stat')
                    stat_use(b)
        barrier(b, None, 'v2')
        stamp(b, 3)
        b('s_setprio %d' % OPT['khead'])
        b('v_mov_b32 v%d, 0' % (V_CS + 1))
        RB, RP = V_X + 64, V_WF
        e = head([ext(1, 1, 0), ext(0, 0, 1), ext(1, 0, 2)])
        z = Seg()
        prod_setup(z, RP)
        for f in range(2):
            z('ds_read_b128 %s, v%d offset:%d' % (vr(PK1 + 4 * f, 4), V_XA, f * 1024), 'r2')
        rload(z, RB, 'r')
        b.extend(e[:3] + list(z) + e[3:-3])
        b('s_setprio 2')
        b.extend(e[-3:])
        b('s_setprio 0')
        touch_l2(b, 2, V_W)
        z = Seg()
        z('s_lshl_b32 s%d, s%d, 10' % (S_T1, S_RW))
        z('s_add_u32 s%d, s%d, %d' % (S_T1, S_T1, HND))
        z('v_add_u32 v%d, s%d, v%d' % (V_SEL + 2, S_T1, V_L16))
        z('s_cmp_eq_u32 s%d, 3' % S_RW)
        z('s_cselect_b64 vcc, %s, 0' % sr(S_HI, 2))
        z('v_lshrrev_b32 v%d, 2, v%d' % (V_SEL + 3, V_L16))
        z('v_cndmask_b32 v%d, v%d, v%d, vcc' % (V_SEL + 3, V_SEL + 3, V_FLO))
        z('s_lshl2_add_u32 s%d, s%d, s%d' % (S_H, S_LAST, S_RW))
        z('s_lshl_b32 s%d, s%d, 10' % (S_H, S_H))
        z('s_add_u32 s%d, s%d, 0x%x' % (S_H, S_H, KV_OFF))
        kv_prod(z, 1, PK1, RP)
        z('s_setprio 0')
        z.wait(lgkm='r')
        e = phi_k(0, RB)
        if OPT['kearly']:
            z.extend(e[:OPT['kearly']])
            touch_l2(z, 3, V_WB)
            barrier(z, None, 'v4')
            w = Seg()
            part_write(w, 1)
            z.extend(mix(e[OPT['kearly']:], [[i] for i in w]))
        else:
            z.extend(e)
        kv_prod(z, 0, acc(0, 0), RP)
        k = len(z) * OPT['kcut'] // 100
        b.extend(z[:k])
        barrier(b, None, 'v3')
        b.extend(z[k:])
        if not OPT['kearly']:
            part_write(b, 1)
        b('s_add_u32 s%d, s%d, 4096' % (S_P, S_H))
        b('s_add_u32 s%d, s%d, 8192' % (S_HALF, S_H))
        b('s_cmp_eq_u32 s%d, 3' % S_PEND)
        b('s_cselect_b32 s%d, s%d, 0x%x' % (S_HALF, S_HALF, OOB))
        part_write(b, 0)
        barrier(b, None, 'kk')
        stamp(b, 4)
        R = V_X + 32
        for h in range(3):
            for p in range(4):
                b('ds_read_b128 %s, v%d offset:%d' % (vr(R + 16 * h + 4 * p, 4), V_SEL + 2, h * 16384 + p * 4096), ('red', h))
        for h in range(3):
            r = R + 16 * h
            b.wait(lgkm=[('red', h)])
            for k in (0, 2):
                b('v_pk_add_f32 %s, %s, %s' % (vr(r + k, 2), vr(r + k, 2), vr(r + 4 + k, 2)))
                b('v_pk_add_f32 %s, %s, %s' % (vr(r + 8 + k, 2), vr(r + 8 + k, 2), vr(r + 12 + k, 2)))
                b('v_pk_add_f32 %s, %s, %s' % (vr(r + k, 2), vr(r + k, 2), vr(r + 8 + k, 2)))
            for k in range(4):
                b('buffer_atomic_add_f32 v%d, v%d, %s, s%d offen offset:%d sc1' % (r + k, V_SEL + 3, sr(SWS, 4), (S_H, S_P, S_HALF)[h], k * 256), 'atom')
        stamp(b, 5)
        b('s_lshl_b32 s%d, s%d, 7' % (S_FL, S_LAST))
        b('s_lshl_b32 s%d, s%d, 28' % (S_T1, S_RW))
        b('s_add_u32 s%d, s%d, s%d' % (S_FL, S_FL, S_T1))
        b('s_add_u32 s%d, s%d, 0x%x' % (S_FL, S_FL, FKV_OFF))
        b('s_lshl_b32 s%d, s%d, 4' % (S_T1, S_PEND))
        b('v_cmp_gt_u32 vcc, s%d, v%d' % (S_T1, V_L16))
        b('v_lshlrev_b32 v%d, 3, v%d' % (V_PL, V_L16))
        b('v_cndmask_b32 v%d, v%d, v%d, vcc' % (V_PL, V_FLO, V_PL))
        p2_setup(b)
        b.wait(vm='atom')
        sync_arrive(b, 0)
        sync_wait(b, 0, 4, T)
        stamp(b, 6)
        b('buffer_atomic_add v%d, v%d, %s, s%d offen sc1' % (V_ONE, V_PL, sr(SWS, 4), S_FL))
        b('s_branch L_p2a')
        return b

    return s, body(0), body(1)


V_OUT, V_RD, V_U = 8, 9, 40


def res_load(R):
    s, T = Seg(), R + 8
    s('s_lshl_b32 s%d, s%d, 7' % (S_T0, S_ROLE))
    s('v_lshrrev_b32 v%d, 3, v0' % (T + 1))
    s('v_and_b32 v%d, 0x70, v%d' % (T + 2, V_L16))
    s('v_mul_u32_u24 v%d, %d, v%d' % (V_OUT, XS, T + 1))
    s('v_add_u32 v%d, v%d, v%d' % (V_OUT, V_OUT, T + 2))
    s('buffer_load_dwordx4 %s, v%d, %s, s%d offen' % (vr(R, 4), V_OUT, sr(SX, 4), S_OUTO), 'res')
    s('buffer_load_dwordx4 %s, v%d, %s, s%d offen' % (vr(R + 4, 4), T + 2, sr(SB2, 4), S_T0), 'res')
    return s


def frag_addr(s, T):
    s('v_lshrrev_b32 v%d, 4, v%d' % (T, V_L16))
    s('v_bfe_u32 v%d, v%d, 2, 2' % (T + 1, T))
    s('v_and_b32 v%d, 3, v%d' % (T + 2, T))
    s('v_bfe_u32 v%d, v%d, 4, 1' % (T + 3, T))
    s('v_lshl_add_u32 v%d, v%d, 2, v%d' % (T + 2, T + 3, T + 2))
    s('v_lshrrev_b32 v%d, 1, v%d' % (T + 3, T + 1))
    s('v_lshlrev_b32 v%d, 6, v%d' % (T + 3, T + 3))
    s('v_lshl_add_u32 v%d, v%d, 3, v%d' % (T + 2, T + 2, T + 3))
    s('v_lshl_add_u32 v%d, v%d, 7, v%d' % (T + 2, T + 1, T + 2))
    s('v_lshrrev_b32 v%d, 5, v%d' % (T + 3, T))
    s('v_lshl_add_u32 v%d, v%d, 9, v%d' % (T + 3, T + 3, T + 2))


def bf(par, ct):
    return V_BF + 8 * par + 4 * ct


def acc2(ct, rg):
    return V_ACC + 32 * ct + 16 * rg


def part_addr(g):
    z, T = Seg(), V_NUM
    z('v_bfe_u32 v%d, v%d, 4, 5' % (T, V_L16))
    z('v_and_b32 v%d, 7, v%d' % (T + 1, T))
    z('v_bfe_u32 v%d, v%d, 1, 1' % (T + 2, T))
    z('v_lshrrev_b32 v%d, 9, v%d' % (T + 3, V_L16))
    z('v_xor_b32 v%d, v%d, v%d' % (T + 2, T + 2, T + 3))
    z('v_lshl_add_u32 v%d, v%d, 3, v%d' % (T + 1, T + 2, T + 1))
    z('v_lshlrev_b32 v%d, 4, v%d' % (T + 1, T + 1))
    z('v_lshl_add_u32 v%d, v%d, 8, v%d' % (T + 1, T, T + 1))
    z('v_add_u32 v%d, s%d, v%d' % (T + 8, S_QR0, T + 1))
    if g:
        z('v_add_u32 v%d, s%d, v%d' % (T + 16, S_QR2, T + 1))
    else:
        z('v_add_u32 v%d, 8192, v%d' % (T + 16, T + 8))
    for rg in range(2):
        for k in range(1, 8):
            z('v_xor_b32 v%d, %d, v%d' % (T + 8 + 8 * rg + k, k << 4, T + 8 + 8 * rg))
    return z


def read_addr(g, R):
    z, T = Seg(), R + 8
    z('v_and_b32 v%d, 31, v%d' % (T + 1, T + 1))
    z('v_and_b32 v%d, 7, v%d' % (T + 3, T + 1))
    z('v_bfe_u32 v%d, v%d, 1, 1' % (T + 4, T + 1))
    z('v_lshl_add_u32 v%d, v%d, 3, v%d' % (T + 3, T + 4, T + 3))
    z('v_lshlrev_b32 v%d, 4, v%d' % (T + 3, T + 3))
    z('v_xor_b32 v%d, v%d, v%d' % (T + 3, T + 3, T + 2))
    z('v_lshl_add_u32 v%d, v%d, 8, v%d' % (V_RD, T + 1, T + 3))
    if g:
        z('v_add_u32 v%d, %d, v%d' % (V_RD, R2, V_RD))
    z('v_xor_b32 v%d, 128, v%d' % (V_RD + 1, V_RD))
    return z


def res_unpack(R):
    z, U = Seg(), V_U
    z.wait(vm='res')
    for k in range(4):
        z('v_lshlrev_b32 v%d, 16, v%d' % (U + 2 * k, R + k))
        z('v_and_b32 v%d, 0xffff0000, v%d' % (U + 2 * k + 1, R + k))
        z('v_lshlrev_b32 v%d, 16, v%d' % (R + k, R + 4 + k))
        z('v_and_b32 v%d, 0xffff0000, v%d' % (R + 4 + k, R + 4 + k))
        z('v_add_f32 v%d, v%d, v%d' % (U + 2 * k, U + 2 * k, R + k))
        z('v_add_f32 v%d, v%d, v%d' % (U + 2 * k + 1, U + 2 * k + 1, R + 4 + k))
    return z


def acc_major(s, units, wreg, areg, wtag, atag, fresh, fill=()):
    slots, order = [], [(0, 0), (1, 0), (0, 1), (1, 1)]
    for ct, rg in order:
        for k, u in enumerate(units):
            z = Seg()
            z.wait(vm=[atag(u, rg)], lgkm=[wtag(u, ct)])
            z('v_mfma_f32_32x32x16_bf16 %s, %s, %s, %s' % (vr(acc2(ct, rg), 16), vr(wreg(u, ct), 4), vr(areg(u, rg), 4), '0' if fresh and k == 0 else vr(acc2(ct, rg), 16)))
            slots.append(z)
    n = len(units)
    for k, gi in enumerate(fill):
        slots[k].extend(gi)
    wr = [Ins('ds_write_b128 v%d, %s' % (V_NUM + 8 + 8 * rg + 4 * ct + i, vr(acc2(ct, rg) + 4 * i, 4))) for ct, rg in order for i in range(4)]
    first = 2 * n - 1
    for k in range(8):
        slots[first + k * (2 * n + 1) // 8].append(wr[k])
    for z in slots:
        s.extend(z)
    s.extend(wr[8:])


def final(g):
    s = Seg('final%d' % g)
    D, U = V_AB, V_U
    stamp(s, 8)
    barrier(s)
    stamp(s, 9)
    for w in range(4):
        for h in range(2):
            s('ds_read_b128 %s, v%d offset:%d' % (vr(D + 8 * w + 4 * h, 4), V_RD + h, w * (10240 if g else 12288)), ('fin', w))
    for w in range(4):
        s.wait(lgkm=[('fin', w)])
        for k in range(4):
            s('v_pk_add_f32 %s, %s, %s' % (vr(U + 2 * k, 2), vr(U + 2 * k, 2), vr(D + 8 * w + 2 * k, 2)))
    for k in range(4):
        s('v_cvt_pk_bf16_f32 v%d, v%d, v%d' % (U + k, U + 2 * k, U + 2 * k + 1))
    s('buffer_store_dwordx4 %s, v%d, %s, s%d offen' % (vr(U, 4), V_OUT, sr(SOUT, 4), S_OUTO) + ['', ' sc1', ' nt', ' sc0 sc1'][OPT['osc']])
    return s


def phase2b(nm, na, bdone):
    s, T = Seg('p2' + nm), V_NUM
    s('L_p2%s:' % nm)
    stamp(s, 5)
    s('s_setprio 1')
    V_PW, V_PX, RES = 11, 14, V_AB + 48
    SO = [S_KW + 1 + u if u < 6 else S_HI + u - 6 for u in range(8)]
    pend = [v for v in range(36) if v not in bdone]
    first = [v for v in pend if v < OPT['b0']]
    pend = pend[len(first):]
    BS = {}
    for u in range(28):
        n = 1 if u + DEP - 1 < 28 else 2
        BS[u] = [v for v in pend[:n] if v - 10 <= u]
        pend = pend[len(BS[u]):]
    assert not pend

    def oloads():
        z = Seg()
        for rg in range(2):
            for u in range(8):
                z('buffer_load_dwordx4 %s, v%d, %s, s%d offen sc1' % (vr(abuf(28 + u, rg), 4), V_L16B if rg else V_L16, sr(SWS, 4), SO[u]), ('o', 28 + u, rg))
        return list(z)

    def word_check(z, u, n, hit=None):
        z.wait(lgkm=[('pw', u)])
        z('v_readfirstlane_b32 s%d, v%d' % (S_T2, V_PW))
        z('s_cmp_lt_u32 s%d, %d' % (S_T2, n))
        if hit:
            z('s_cbranch_scc0 %s' % hit)
            return
        j = nspin[0]
        nspin[0] += 1
        z('s_cbranch_scc1 L_slow%d' % j)
        z('L_ret%d:' % j)
        slow('L_slow%d:' % j)
        slow('s_add_u32 s%d, s%d, 1' % (S_SPIN, S_SPIN))
        slow('s_cmp_gt_u32 s%d, 0x%x' % (S_SPIN, SPIN_LIMIT << 3))
        slow('s_cbranch_scc1 L_ret%d' % j)
        slow('ds_read_b32 v%d, v%d' % (V_PW, V_PX))
        slow('s_waitcnt lgkmcnt(0)')
        slow('v_readfirstlane_b32 s%d, v%d' % (S_T2, V_PW))
        slow('s_nop 0')
        slow('s_cmp_lt_u32 s%d, %d' % (S_T2, n))
        slow('s_cbranch_scc1 L_slow%d' % j)
        slow('s_branch L_ret%d' % j)

    z = Seg()
    if na == 0:
        for v in first[:2]:
            dma_b2(z, v)
        first = first[2:]
        stage_check(z, 0)
    for u in range(na, DEP - 1):
        if u == OPT['p1at']:
            poll_async(z, 1)
        aload(z, u)
        if first:
            dma_b2(z, first.pop(0))
    if na > OPT['p1at']:
        poll_async(z, 1)
    for v in first:
        dma_b2(z, v)
    y = Seg()
    frag_addr(y, T)
    for reg, base in enumerate((S_QR0, S_QR2)):
        y('v_add_u32 v%d, s%d, v%d' % (V_BA + 2 * reg, base, T + 3))
        y('v_xor_b32 v%d, 64, v%d' % (V_BA + 2 * reg + 1, V_BA + 2 * reg))
    y('v_subrev_u32 v%d, 16, v%d' % (V_PX, V_PA))
    s.extend(mix(y, groups(z)))

    def wreg(u, ct):
        return bf(u & 1, ct) if u < 28 else V_AB + 32 * (1 - ct) + 4 * (u - 28)

    def bread(u, ct):
        z = Seg()
        _, reg, off = unit_loc(u)
        z.wait(vm=[('b', u)])
        for h in range(2):
            z('ds_read_b64_tr_b16 %s, v%d offset:%d' % (vr(wreg(u, ct) + 2 * h, 2), V_BA + 2 * reg + ct, off + h * 1024), ('bf', u, ct))
        return z

    s.extend(bread(0, 0) + bread(0, 1))
    late = Seg()
    for u in range(8):
        late('s_xor_b32 s%d, s%d, %d' % (SO[u], S_RO3, u))
        late('s_lshl_b32 s%d, s%d, 10' % (SO[u], SO[u]))
        late('s_add_u32 s%d, s%d, s%d' % (SO[u], SO[u], S_P))
    late = list(read_addr(1, RES)) + list(part_addr(1)) + list(res_unpack(RES)) + list(late)
    SITES = [23, 25, 27, 28]
    U2 = 17 - DEP

    def unit(s, u, extra, word):
        nxt = u + DEP - 1
        z = Seg()
        if nxt < 28:
            aload(z, nxt)
        for v in BS[u]:
            dma_b2(z, v)
        if u == 4:
            z.extend(res_load(RES))
        now = groups(z) + [[i] for i in extra]
        if 10 <= u < 22:
            k0, k1 = len(late) * (u - 10) // 12, len(late) * (u - 9) // 12
            now += [[i] for i in late[k0:k1]]
        if u < 27:
            rd = [bread(u + 1, 0), bread(u + 1, 1), Seg(), Seg()]
        else:
            rd = [bread(28 + k, 0) for k in range(4)]
        if word:
            rd[2]('ds_read_b32 v%d, v%d' % (V_PW, V_PX), ('pw', u + 1))
        s.wait(vm=[('a', u)])
        stamp(s, 'u%d' % u)
        k = 0
        for ct in range(2):
            s.wait(lgkm=[('bf', u, ct)])
            for rg in range(2):
                s('v_mfma_f32_32x32x16_bf16 %s, %s, %s, %s' % (vr(acc2(ct, rg), 16), vr(wreg(u, ct), 4), vr(abuf(u, rg), 4), vr(acc2(ct, rg), 16) if u else '0'))
                s.extend(rd[k])
                for gi in range(len(now) * k // 4, len(now) * (k + 1) // 4):
                    s.extend(now[gi])
                k += 1

    main, alts = [s], []
    for u in range(28):
        if u + DEP - 1 == 8:
            stage_check(s, 1)
            stamp(s, 'c1')
        if u == 7 and nm == 'f':
            word_check(s, u, 1)
        if u == U2:
            word_check(s, u, 3)
            stamp(s, 'c2')
        if u in SITES:
            word_check(s, u, 7, hit='L_p2o%s%d' % (nm, u))
            a = Seg('p2o%d' % u)
            a('L_p2o%s%d:' % (nm, u))
            stamp(a, 'c3')
            o = oloads()
            for v in range(u, 28):
                unit(a, v, o[:4], False)
                o = o[4:]
            a.extend(o)
            a('s_branch L_p2tail%s' % nm)
            alts.append((list(main), a))
            s = Seg('p2m%d' % u)
            main.append(s)
        unit(s, u, [], u + 1 in SITES + [7, U2])
    word_check(s, 28, 7)
    stamp(s, 'c3')
    s.extend(oloads())
    t = Seg('p2t')
    t('L_p2tail%s:' % nm)
    stamp(t, 'tl')
    fill = [bread(u, 0) for u in range(32, 36)] + [bread(u, 1) for u in range(28, 36)]
    acc_major(t, range(28, 36), wreg, abuf, lambda u, ct: ('bf', u, ct), lambda u, rg: ('o', u, rg), False, fill)
    t.extend(final(1))
    t('s_branch L_fin')
    return [m + [a, t] for m, a in alts] + [main + [t]], [a for _, a in alts] + main + [t]


def phase2a():
    s = Seg('p2a')
    s('L_p2a:')
    poll_base(s)
    s('v_mov_b32 v%d, 3' % V_ONE)
    s.extend(res_load(V_BF))
    s.extend(read_addr(0, V_BF))
    stage_check(s, 2, sync=True, scalar=OPT['ascal'])
    sync_arrive(s, 0)
    stamp(s, 'a2')
    s('v_mov_b32 v%d, 7' % V_ONE)
    if OPT['opriv']:
        s('s_and_b32 s%d, s%d, 30' % (S_T0, S_I2))
        s('s_lshr_b32 s%d, s%d, 1' % (S_T1, S_RW))
        s('s_add_u32 s%d, s%d, s%d' % (S_T0, S_T0, S_T1))
        s('s_and_b32 s%d, s%d, 1' % (S_T1, S_I2))
        s('s_lshl1_add_u32 s%d, s%d, s%d' % (S_T0, S_T0, S_T1))
        s('s_lshl3_add_u32 s%d, s%d, s%d' % (S_T0, S_T0, S_ROLE))
        s('s_lshl_b32 s%d, s%d, 7' % (S_T0, S_T0))
        s('s_add_u32 s%d, s%d, 0x%x' % (S_PL, S_T0, FO_OFF - 768))
    stage_check(s, 3, sync=True, scalar=OPT['oscal'])
    sync_arrive(s, 0)
    stamp(s, 7)
    s.wait(lgkm='all')
    s.extend(res_unpack(V_BF))
    s.extend(final(0))
    return s


def fin():
    s = Seg('fin')
    s('L_fin:')
    if OPT['diag']:
        stamp(s, 10)
        s('s_waitcnt lgkmcnt(0)')
        s('v_mov_b32 v4, 0')
        for k in range(11):
            s('v_writelane_b32 v4, s%d, %d' % (S_KA + 2 * k, k))
        s('v_writelane_b32 v4, s%d, 11' % S_SPIN)
        s('s_lshl3_add_u32 s%d, s2, s%d' % (S_T0, S_WV))
        s('s_lshl_b32 s%d, s%d, 8' % (S_T0, S_T0))
        s('s_add_u32 s%d, s%d, 0x%x' % (S_T0, S_T0, TS_OFF))
        s('v_lshrrev_b32 v5, 2, v%d' % V_L16)
        s('buffer_store_dword v4, v5, %s, s%d offen' % (sr(SWS, 4), S_T0))
        if OPT['diag'] == 3:
            s('s_not_b32 s%d, s%d' % (S_T0, S_KA))
            s('v_writelane_b32 v4, s%d, 11' % S_T0)
            s('s_cmp_eq_u32 s%d, 4' % S_WV)
            s('s_cselect_b32 s%d, 16, 0x%x' % (S_T0, OOB))
            s('s_cmp_lt_u32 s%d, 4' % S_ROLE)
            s('s_cselect_b32 s%d, s%d, 0x%x' % (S_T0, S_T0, OOB))
            s('s_mov_b64 exec, 0xfff')
            s('buffer_atomic_umax v4, v5, %s, s%d offen sc1' % (sr(SDBG, 4), S_T0))
    if OPT['diag'] == 6:
        s('s_cmp_lg_u32 s%d, 4' % S_WV)
        s('s_cbranch_scc1 L_end')
        s('s_mov_b64 exec, 1')
        s('s_getreg_b32 s%d, hwreg(HW_REG_XCC_ID, 0, 4)' % S_T0)
        s('s_sub_u32 s%d, s%d, s2' % (S_T0, S_T0))
        s('s_and_b32 s%d, s%d, 7' % (S_T0, S_T0))
        s('s_lshl_b32 s%d, 1, s%d' % (S_T0, S_T0))
        s('v_mov_b32 v4, s%d' % S_T0)
        s('v_mov_b32 v6, 1')
        s('v_mov_b32 v7, 0')
        s('buffer_atomic_or v4, v7, %s, 0 offen offset:16 sc1' % sr(SDBG, 4))
        s('s_waitcnt vmcnt(0)')
        s('buffer_atomic_add v6, v7, %s, 0 offen offset:136 sc0 sc1' % sr(SDBG, 4))
        s('s_waitcnt vmcnt(0)')
        s('v_readfirstlane_b32 s%d, v6' % S_T0)
        s('s_cmp_lg_u32 s%d, 255' % S_T0)
        s('s_cbranch_scc1 L_end')
        s('buffer_load_dword v4, v7, %s, 0 offen offset:16 sc1' % sr(SDBG, 4))
        s('s_waitcnt vmcnt(0)')
        s('v_readfirstlane_b32 s%d, v4' % S_T0)
        s('s_bcnt1_i32_b32 s%d, s%d' % (S_T0, S_T0))
        s('s_mul_i32 s%d, s%d, 2000' % (S_T0, S_T0))
        s('s_memrealtime s[66:67]')
        s('s_waitcnt lgkmcnt(0)')
        s('L_dly:')
        s('s_memrealtime s[68:69]')
        s('s_waitcnt lgkmcnt(0)')
        s('s_sub_u32 s68, s68, s66')
        s('s_cmp_lt_u32 s68, s%d' % S_T0)
        s('s_cbranch_scc1 L_dly')
    if OPT['diag'] == 5:
        s('s_cmp_lg_u32 s%d, 4' % S_WV)
        s('s_cbranch_scc1 L_end')
        s('s_mov_b64 exec, 1')
        s('s_not_b32 s%d, s%d' % (S_T0, S_KA + 2 * OPT['sa']))
        s('v_mov_b32 v4, s%d' % S_T0)
        s('v_mov_b32 v5, s%d' % (S_KA + 2 * OPT['sb']))
        s('v_mov_b32 v6, 1')
        s('v_mov_b32 v7, 0')
        s('buffer_atomic_umax v4, v7, %s, 0 offen offset:128 sc1' % sr(SDBG, 4))
        s('buffer_atomic_umax v5, v7, %s, 0 offen offset:132 sc1' % sr(SDBG, 4))
        s('s_waitcnt vmcnt(0)')
        s('buffer_atomic_add v6, v7, %s, 0 offen offset:136 sc0 sc1' % sr(SDBG, 4))
        s('s_waitcnt vmcnt(0)')
        s('v_readfirstlane_b32 s%d, v6' % S_T0)
        s('s_cmp_lg_u32 s%d, 255' % S_T0)
        s('s_cbranch_scc1 L_end')
        s('buffer_load_dwordx2 v[4:5], v7, %s, 0 offen offset:128 sc1' % sr(SDBG, 4))
        s('s_waitcnt vmcnt(0)')
        s('v_add_u32 v4, v4, v5')
        s('s_nop 1')
        s('v_readfirstlane_b32 s%d, v4' % S_T0)
        s('s_add_u32 s%d, s%d, 1' % (S_T0, S_T0))
        s('s_mul_i32 s%d, s%d, %d' % (S_T0, S_T0, OPT['mul']))
        s('s_min_u32 s%d, s%d, 200000' % (S_T0, S_T0))
        s('s_memrealtime s[66:67]')
        s('s_waitcnt lgkmcnt(0)')
        s('L_dly:')
        s('s_memrealtime s[68:69]')
        s('s_waitcnt lgkmcnt(0)')
        s('s_sub_u32 s68, s68, s66')
        s('s_cmp_lt_u32 s68, s%d' % S_T0)
        s('s_cbranch_scc1 L_dly')
    if OPT['diag'] == 4:
        s('s_cmp_lg_u32 s2, %d' % OPT['wg'])
        s('s_cbranch_scc1 L_end')
        s('s_cmp_lg_u32 s%d, %d' % (S_WV, OPT['wv']))
        s('s_cbranch_scc1 L_end')
        s('s_sub_u32 s%d, s%d, s%d' % (S_T0, S_KA + 2 * OPT['sb'], S_KA + 2 * OPT['sa']))
        if not OPT['clk']:
            s('s_mul_i32 s%d, s%d, 10' % (S_T0, S_T0))
        s('s_min_u32 s%d, s%d, 200000' % (S_T0, S_T0))
        s('s_memrealtime s[66:67]')
        s('s_waitcnt lgkmcnt(0)')
        s('L_dly:')
        s('s_memrealtime s[68:69]')
        s('s_waitcnt lgkmcnt(0)')
        s('s_sub_u32 s68, s68, s66')
        s('s_cmp_lt_u32 s68, s%d' % S_T0)
        s('s_cbranch_scc1 L_dly')
    s('L_end:')
    s('s_endpgm')
    return s


def main():
    pro, prw, pre = prologue()
    f, fa, fb = lc_role(True)
    q, qa, qb = lc_role(False)
    qo = q_out()
    k, ka, kb = kv_role()
    fpaths, fsegs = phase2b('f', OPT['na'], list(range(5 + OPT['nb'])) + [8, 9, 10])
    kpaths, ksegs = phase2b('k', 0, list(range(OPT['kpf'])))
    p2segs, p2a, fi = fsegs + ksegs, phase2a(), fin()
    paths = [
        [pro, pre, f, fa, p2a, fi],
        [pro, pre, q, qa, qo, fi],
        [pro, prw, pre, q, qb, qo, fi],
        [pro, prw, pre, k, ka, p2a, fi],
    ]
    paths += [[pro, prw, pre, f, fb] + p + [fi] for p in fpaths] + [[pro, prw, pre, k, kb] + p + [fi] for p in kpaths]
    if OPT['jit']:
        import random
        rnd, seen = random.Random(OPT['jit']), set()
        for p in paths:
            for seg in p:
                if id(seg) in seen:
                    continue
                seen.add(id(seg))
                out = []
                for i in seg:
                    out.append(i)
                    if i.op == 's_barrier' or (i.kind == 'label' and i.text.startswith(('L_ret', 'L_p2'))):
                        j = nspin[0]
                        nspin[0] += 1
                        out += [Ins('s_add_u32 s64, s2, s%d' % S_WV), Ins('s_bitcmp1_b32 0x%x, s64' % rnd.getrandbits(32)),
                                Ins('s_cbranch_scc0 L_j%d' % j), Ins('s_sleep %d' % rnd.choice((2, 5, 12, 30))), Ins('L_j%d:' % j)]
                seg[:] = out
    resolve_waits(paths)
    bad = verify_async(paths)
    assert not bad, '\n'.join(bad)
    n = pad_hazards(paths)
    assert pad_hazards(paths) == 0
    body = render([pro, prw, pre, f, fa, fb, k, ka, kb, q, qa, qb, qo] + p2segs + [p2a, fi, slow])
    head = open('cdna_kernels/%s.s.ref' % NAME).read().split('\n')
    head = [l for l in head if l.startswith(';') and '@launch' not in l]
    out = '\n'.join(head) + '''
; @launch grid=(256,1,1) block=(512,1,1) lds=%d
.amdgcn_target "amdgcn-amd-amdhsa--gfx950"
.text
.globl %s_kernel
.p2align 8
.type %s_kernel,@function
%s_kernel:
L_codebeg:
%s
L_codeend:
.section .rodata,"a"
.p2align 6
.amdhsa_kernel %s_kernel
  .amdhsa_next_free_vgpr 256
  .amdhsa_next_free_sgpr 102
  .amdhsa_accum_offset 256
  .amdhsa_group_segment_fixed_size 0
  .amdhsa_kernarg_size 88
  .amdhsa_user_sgpr_count 2
  .amdhsa_user_sgpr_kernarg_segment_ptr 1
  .amdhsa_system_sgpr_workgroup_id_x 1
.end_amdhsa_kernel
''' % (LDS_BYTES, NAME, NAME, NAME, body, NAME)
    if OPT['x_plain'] & 1:
        out = '\n'.join(l.replace(' sc1', '') if 'buffer_store_dwordx4' in l else l for l in out.split('\n'))
    if OPT['x_plain'] & 2:
        out = '\n'.join(l.replace(' sc1', '') if 'buffer_load_dwordx4' in l else l for l in out.split('\n'))
    open(sys.argv[1], 'w').write(out)
    print('wrote %s: %d lines, %d pad states' % (sys.argv[1], out.count('\n'), n))


main()
```

```python
import re

REG_RE = re.compile(r'^(-?)(?:abs\()?([vs])(?:(\d+)|\[(\d+):(\d+)\])\)?$')
TRANS = ('v_exp_f32', 'v_rcp_f32', 'v_rsq_f32', 'v_sqrt_f32', 'v_log_f32')
NO_DST_S = ('s_cmp', 's_waitcnt', 's_barrier', 's_nop', 's_branch', 's_cbranch', 's_setprio', 's_sleep', 's_endpgm',
            's_bitcmp')


def regs(tok):
    tok = tok.strip()
    if tok in ('vcc', 'exec', 'm0'):
        return {tok}
    if tok in ('vcc_lo', 'vcc_hi'):
        return {'vcc'}
    m = REG_RE.match(tok)
    if not m:
        return set()
    k = m.group(2)
    if m.group(3) is not None:
        return {(k, int(m.group(3)))}
    return {(k, i) for i in range(int(m.group(4)), int(m.group(5)) + 1)}


def vr(a, n=1):
    return 'v%d' % a if n == 1 else 'v[%d:%d]' % (a, a + n - 1)


def sr(a, n=1):
    return 's%d' % a if n == 1 else 's[%d:%d]' % (a, a + n - 1)


class Ins:
    __slots__ = ('text', 'op', 'rd', 'wr', 'kind', 'tag', 'srcc', 'srcab', 'passes', 'data', 'wait', 'nops', 'n_vm',
                 'n_lgkm', 'lds')

    def __init__(self, text, tag=None):
        self.text = text
        self.tag = tag
        self.rd, self.wr = set(), set()
        self.srcc, self.srcab, self.data = set(), set(), set()
        self.passes = 0
        self.wait = None
        self.nops = 0
        self.n_vm = self.n_lgkm = None
        self.lds = False
        if text.endswith(':') or text.startswith('.') or text.startswith(';'):
            self.op, self.kind = text, 'label'
            return
        parts = text.split(None, 1)
        op = self.op = parts[0]
        rest = parts[1] if len(parts) > 1 else ''
        ops = [o.strip() for o in rest.split(',')] if rest else []
        mods = []
        if ops:
            if 'op_sel' in rest:
                ops = [o.strip() for o in rest[:rest.index('op_sel')].split(',')]
            last = ops[-1].split()
            ops[-1] = last[0] if last else ''
            mods = last[1:]
        R = [regs(o) for o in ops]
        allr = set().union(*R) if R else set()
        if op.startswith('v_mfma'):
            self.kind = 'mfma'
            self.wr = R[0]
            self.srcab = R[1] | R[2]
            self.srcc = R[3]
            self.rd = self.srcab | self.srcc
            self.passes = 4 if '16x16' in op else 8
        elif op.startswith('v_'):
            base = op.replace('_e32', '').replace('_e64', '')
            self.kind = 'trans' if base in TRANS else ('dot' if base.startswith('v_dot') else 'valu')
            self.wr = set(R[0])
            self.rd = set().union(*R[1:]) if len(R) > 1 else set()
            if base.startswith(('v_fmac', 'v_dot2c')):
                self.rd |= R[0]
            if base.startswith('v_permlane'):
                self.wr |= R[1]
                self.rd |= R[0]
        elif op.startswith('ds_'):
            self.kind = 'ds'
            if op.startswith('ds_read'):
                self.wr = R[0]
                self.rd = set().union(*R[1:])
            else:
                self.rd = allr
        elif op.startswith(('buffer_', 'global_')):
            self.kind = 'vmem'
            if 'lds' in mods:
                self.lds = True
                self.rd = allr | {'m0'}
            elif '_load' in op:
                self.wr = R[0]
                self.rd = set().union(*R[1:])
            else:
                self.rd = allr
                if 'atomic' in op and 'sc0' in mods:
                    self.wr = R[0]
                if 'x4' in op or 'x3' in op:
                    self.data = R[0] if op.startswith('buffer_') else R[1]
        elif op.startswith(('s_load', 's_buffer_load', 's_memtime', 's_memrealtime')):
            self.kind = 'smem'
            self.wr = R[0]
            self.rd = set().union(*R[1:]) if len(R) > 1 else set()
        elif op.startswith('s_'):
            self.kind = 'salu'
            if op.startswith(NO_DST_S):
                self.rd = allr
            else:
                self.wr = R[0]
                self.rd = set().union(*R[1:]) if len(R) > 1 else set()
        else:
            raise ValueError(text)


def Wait(vm=None, lgkm=None):
    i = Ins('s_waitcnt 0')
    i.kind = 'wait'
    i.wait = (vm, lgkm)
    return i


class Seg(list):
    def __init__(self, name=''):
        super().__init__()
        self.name = name

    def __call__(self, text, tag=None):
        for line in text.split('\n'):
            line = line.strip()
            if line:
                self.append(Ins(line, tag))
        return self

    def wait(self, vm=None, lgkm=None):
        self.append(Wait(vm, lgkm))
        return self


GAP = 'GAP'


def interleave(slots, filler, start=0, end=None):
    end = len(slots) if end is None else end
    ngap = sum(1 for f in filler if f is GAP)
    real = len(filler) - ngap
    nslot = max(1, end - start - ngap)
    per = real / nslot
    out, fi, credit = [], 0, 0.0
    for k, s in enumerate(slots):
        out.extend(s)
        if start <= k < end:
            if fi < len(filler) and filler[fi] is GAP:
                fi += 1
                continue
            credit += per
            while fi < len(filler) and filler[fi] is not GAP and (credit >= 0.999 or k == end - 1):
                out.append(filler[fi])
                fi += 1
                credit -= 1
            if k == end - 1:
                out.extend(f for f in filler[fi:] if f is not GAP)
                fi = len(filler)
    assert fi == len(filler)
    return out


def _as_list(t):
    if t is None:
        return []
    assert not isinstance(t, tuple)
    return t if isinstance(t, list) else [t]


def resolve_waits(paths):
    known = set()
    for path in paths:
        for seg in path:
            for ins in seg:
                if ins.tag is not None:
                    known.add(ins.tag)
    for path in paths:
        vm, lg = [], []
        vm_done = lg_done = 0
        here = {ins.tag for seg in path for ins in seg}
        for seg in path:
            for ins in seg:
                if ins.kind == 'vmem':
                    vm.append(ins.tag)
                elif ins.kind == 'ds':
                    lg.append(ins.tag)
                elif ins.kind == 'wait':
                    for which, lst, cap in ((0, vm, 63), (1, lg, 15)):
                        need = -1
                        force = False
                        for t in _as_list(ins.wait[which]):
                            if t == 'all':
                                need, force = len(lst) - 1, True
                                continue
                            assert t in known, 'unknown tag %r' % (t,)
                            idx = [k for k, x in enumerate(lst) if x == t]
                            assert idx or t not in here, 'wait before issue: %r' % (t,)
                            if idx:
                                need = max(need, idx[-1])
                        done = vm_done if which == 0 else lg_done
                        if need >= done or force:
                            n = min(len(lst) - 1 - need, cap)
                            if which == 0:
                                ins.n_vm = n if ins.n_vm is None else min(ins.n_vm, n)
                                vm_done = max(vm_done, len(lst) - n)
                            else:
                                ins.n_lgkm = n if ins.n_lgkm is None else min(ins.n_lgkm, n)
                                lg_done = max(lg_done, len(lst) - n)
    seen = set()
    for path in paths:
        for seg in path:
            if id(seg) in seen:
                continue
            seen.add(id(seg))
            keep = []
            for ins in seg:
                if ins.kind == 'wait':
                    if ins.n_vm is None and ins.n_lgkm is None:
                        continue
                    if keep and keep[-1].kind == 'wait':
                        p = keep[-1]
                        for a in ('n_vm', 'n_lgkm'):
                            x, y = getattr(p, a), getattr(ins, a)
                            setattr(p, a, y if x is None else (x if y is None else min(x, y)))
                        continue
                keep.append(ins)
            for ins in keep:
                if ins.kind == 'wait':
                    f = []
                    if ins.n_vm is not None:
                        f.append('vmcnt(%d)' % ins.n_vm)
                    if ins.n_lgkm is not None:
                        f.append('lgkmcnt(%d)' % ins.n_lgkm)
                    ins.text = 's_waitcnt ' + ' '.join(f)
            seg[:] = keep


VALUISH = ('valu', 'trans', 'dot')


def _need(p, c):
    n = 0
    vw = {r for r in p.wr if isinstance(r, tuple) and r[0] == 'v'}
    sw = p.wr - vw
    if p.kind in VALUISH:
        if c.kind == 'mfma' and vw & c.rd:
            n = max(n, 3 if p.kind == 'dot' else 2)
        if c.op.startswith('v_permlane') and vw & c.rd:
            n = max(n, 2)
        if c.op.startswith(('v_readfirstlane', 'v_readlane')) and vw & c.rd:
            n = max(n, 1)
        if p.kind == 'trans' and c.kind in ('valu', 'dot', 'trans') and vw & c.rd:
            n = max(n, 1)
        if p.kind == 'dot' and (vw & (c.rd | c.wr)) and c.op != p.op:
            n = max(n, 3)
        if sw:
            if c.kind in VALUISH and sw & c.rd:
                n = max(n, 2)
            if c.kind == 'vmem' and sw & c.rd:
                n = max(n, 5)
            if c.kind == 'salu' and sw & c.rd:
                n = max(n, 1)
    if p.kind == 'mfma':
        big = 12 if p.passes == 8 else 8
        if c.kind == 'mfma':
            if vw & c.srcab:
                n = max(n, big)
            if vw & c.srcc and not (c.srcc == p.wr and c.op == p.op):
                n = max(n, big - 2)
            if vw & c.wr and not (vw & c.srcc):
                n = max(n, big)
        elif c.kind in VALUISH or c.kind in ('vmem', 'ds'):
            if vw & (c.rd | c.wr):
                n = max(n, big)
        if c.kind in VALUISH and p.srcc & c.wr:
            n = max(n, 7 if p.passes == 8 else 3)
    if p.kind == 'salu' and 'm0' in p.wr and c.kind == 'vmem' and c.lds:
        n = max(n, 1)
    if p.kind == 'vmem' and p.data and p.data & c.wr:
        n = max(n, 2)
    return n


def _states(i):
    if i.kind == 'label':
        return 0
    if i.op == 's_nop':
        return int(i.text.split()[1]) + 1
    return 1


def pad_hazards(paths):
    total = 0
    for path in paths:
        flat = [i for seg in path for i in seg]
        for k, c in enumerate(flat):
            if c.kind in ('label', 'wait'):
                continue
            dist, j = c.nops, k - 1
            while j >= 0 and dist < 12:
                p = flat[j]
                need = _need(p, c)
                if need > dist:
                    total += need - dist
                    c.nops += need - dist
                    dist = need
                dist += _states(p) + p.nops
                j -= 1
    return total


def render(segs):
    out = []
    for seg in segs:
        for i in seg:
            n = i.nops
            while n > 0:
                m = min(n, 16)
                out.append('    s_nop %d' % (m - 1))
                n -= m
            out.append(i.text if i.kind == 'label' else '    ' + i.text)
    return '\n'.join(out)


def verify_async(paths):
    bad = set()
    for path in paths:
        vm, lg, sm = [], [], set()
        for seg in path:
            for i in seg:
                if i.kind == 'label':
                    continue
                if i.op == 's_waitcnt':
                    m = re.search(r'vmcnt\((\d+)\)', i.text)
                    if m:
                        n = int(m.group(1))
                        vm = vm[max(0, len(vm) - n):] if n else []
                    m = re.search(r'lgkmcnt\((\d+)\)', i.text)
                    if m:
                        n = int(m.group(1))
                        lg = lg[max(0, len(lg) - n):] if n else []
                        if n == 0:
                            sm = set()
                    continue
                for q, kind in ((vm, 'vmem'), (lg, 'ds')):
                    for p in q:
                        hit = p.wr & i.rd
                        if not (i.kind == kind and i.wr):
                            hit |= p.wr & i.wr
                        if hit:
                            bad.add('%s: [%s] touches the result of outstanding [%s]' % (seg.name, i.text, p.text))
                if sm & (i.rd | i.wr):
                    bad.add('%s: [%s] touches an outstanding scalar load' % (seg.name, i.text))
                if i.kind == 'vmem':
                    vm.append(i)
                elif i.kind == 'ds':
                    lg.append(i)
                elif i.kind == 'smem' and not i.op.startswith('s_mem'):
                    sm |= i.wr
    return sorted(bad)


def hoist_m0(paths):
    seen = set()
    for path in paths:
        for seg in path:
            if id(seg) in seen:
                continue
            seen.add(id(seg))
            for k in range(1, len(seg) - 1):
                a, m, d = seg[k - 1], seg[k], seg[k + 1]
                if m.kind == 'salu' and 'm0' in m.wr and d.kind == 'vmem' and d.lds and a.kind in ('valu', 'trans', 'ds', 'mfma', 'dot') \
                        and not (a.wr & m.rd):
                    seg[k - 1], seg[k] = m, a
```

```python
import struct
import sys
from asmlib import Seg, Ins, Wait, GAP, interleave, resolve_waits, pad_hazards, verify_async, hoist_m0, render, vr, sr

NAME = 'parallel_sum__linear_attn_block__dense_activation_gelu__prompt'
OPT = dict(kv4=3, kua=3, kub=0, x_free=0, x_freek=0, tf0=2, tfp=45, x_drop=0, gray=0, hoist=1, wj=1, tfat=2, kpa=1, otail=6, oper=3, rmap=4, jit=0, rounds=15, opriv=1, oscal=1, na=5, nb=0, b0=9, xfirst=1, osc=0, ne=1, ub=0, b0f=9, pmix=1, wv=4, back=0, x_wait=0, rot1=6, nlate=1, mul=10, fatom=0, tlb=0, kbar=4, kphi=26, ntail=4, p1at=2, ascal=1, kpf=4, kcut=4, kb0=24, kb1=104, khead=0, kearly=8, qatom=1, batom=1, pkind=1, x_hit=0, gsp=3, eprio=0, aprio=2, aprio2=2, aprio3=2, lb=10, touch=69, tat=4, twat=3, tkat=1, kprio=1, plead=3, x_noa=0, x_nopoll=0, x_noflag=0, x_nost=0, x_plain=0, rot2=1, dep=6, noatom=0, diag=0, p1only=0, sa=0, sb=10, clk=0, wg=0)
for a in sys.argv[2:]:
    k, v = a.split('=')
    OPT[k] = v if k == 'st' else int(v)
STAMPS = OPT.get('st', 'en,1,2,3,4,5,6,7,8,9,10').split(',')


def f32(x):
    return '0x%08x' % struct.unpack('<I', struct.pack('<f', x))[0]


XS, WQS, W1S = 896, 2688, 3584
ACT_G = 147456
KV_OFF = 0x900000
FKV_OFF = 0x910000
FL_OFF = 0x911000
FL_G = 896
FO_OFF = 0x920000
ST_OFF = 0x938000
TS_OFF = 0xA00000
WS_BYTES = 0x10000000
OOB = 0x40000000
R0, R1, R2, MISC = 0, 57344, 114688, 155648
M_ST, M_SY, M_CS, M_R = MISC, MISC + 2048, MISC + 4096, MISC + 7168
LDS_BYTES = 163840
LOG2E = 1.4426950408889634
GC1 = -2.0 * 0.7978845608028654 * LOG2E
GC3 = GC1 * 0.044715
SPIN_LIMIT = 1 << 16

S_WV, S_RW, S_G, S_RB, S_ROLE = 3, 4, 5, 6, 7
SX, SW, SWS, SW2, SWO, SOUT, SB1, SB2, SDBG = 8, 12, 16, 20, 24, 28, 32, 36, 40
S_KA = 44
S_KX, S_KW = 66, 73
S_I2, S_HALF, S_T0, S_T1, S_ONES, S_EPS = 80, 81, 82, 83, 84, 85
S_M0W, S_M0X, S_T3, S_RO, S_H, S_FL = 86, 87, 88, 89, 90, 91
S_HI = 92
S_SPIN, S_T2, S_P, S_LAST, S_PEND, S_L2E = 94, 95, 96, 97, 98, 99
S_PAD = 100
S_B2R, S_QR0, S_RO3, S_QR2, S_A, S_WOR, S_OUTO, S_PL = 66, 67, 68, 69, 70, 71, 72, 73
S_AO = 74

V_L16, V_B2, V_X0, V_X1, V_W, V_CSW, V_CSR = 1, 2, 3, 4, 5, 6, 7
V_SEL, V_CS, V_WA, V_XA, V_EXW, V_EXR, V_ST = 8, 12, 20, 28, 32, 36, 38
V_B1 = 16
V_WB, V_RA = 42, 43
V_POLL, V_PA, V_FLO, V_ONE = 44, 45, 46, 47
V_T = 48
V_ACC, V_X, V_WF = 64, 128, 240
V_B2B, V_BA, V_L16B, V_PL = 3, 4, 12, 31
DEP = 6
V_NUM, V_BF, V_AB, V_RES = 16, 48, 128, 192
V_PQ = 80
HND = 49152

slow = Seg('slow')
nspin = [0]


def stamp(s, k):
    if OPT['diag'] and str(k) in STAMPS:
        k = STAMPS.index(str(k))
        s('%s %s' % ('s_memtime' if OPT['diag'] == 2 or OPT['clk'] else 's_memrealtime', sr(S_KA + 2 * k, 2)))


EARLY = ['en', 'ka', 't0', 't1']


def estamp(s, k):
    if OPT['diag'] and k in STAMPS:
        s('%s s[100:101]' % ('s_memtime' if OPT['diag'] == 2 or OPT['clk'] else 's_memrealtime'))
        s('s_waitcnt lgkmcnt(0)')
        s('v_mov_b32 v%d, s100' % (120 + EARLY.index(k)))


class Rebase:
    def __init__(self, regs, base, span):
        self.regs, self.base, self.span = regs, base, span

    def off(self, s, addr):
        if not (self.base <= addr and addr - self.base + self.span <= 65535):
            for r in self.regs:
                s('v_add_u32 v%d, 0x%x, v%d' % (r, (addr - self.base) & 0xffffffff, r))
            self.base = addr
        return addr - self.base


def spin_check(s, vpoll, vexp, vaddr, srd, soff, mask):
    k = nspin[0]
    nspin[0] += 1
    s('v_cmp_ge_u32 vcc, v%d, v%d' % (vpoll, vexp))
    s('s_andn2_b32 s%d, 0x%x, vcc_lo' % (S_T2, mask))
    s('s_cbranch_scc1 L_slow%d' % k)
    s('L_ret%d:' % k)
    slow('L_slow%d:' % k)
    slow('s_add_u32 s%d, s%d, 1' % (S_SPIN, S_SPIN))
    slow('s_cmp_gt_u32 s%d, 0x%x' % (S_SPIN, SPIN_LIMIT))
    slow('s_cbranch_scc1 L_ret%d' % k)
    slow('buffer_load_dword v%d, v%d, %s, %s offen sc1' % (vpoll, vaddr, sr(srd, 4), soff))
    slow('s_waitcnt vmcnt(0)')
    slow('v_cmp_ge_u32 vcc, v%d, v%d' % (vpoll, vexp))
    slow('s_nop 1')
    slow('s_andn2_b32 s%d, 0x%x, vcc_lo' % (S_T2, mask))
    slow('s_cbranch_scc1 L_slow%d' % k)
    slow('s_branch L_ret%d' % k)


def poll_base(s):
    s('s_lshr_b32 s%d, s%d, 1' % (S_PL, S_I2))
    s('s_lshl2_add_u32 s%d, s%d, s%d' % (S_PL, S_PL, S_RW))
    s('s_mul_i32 s%d, s%d, %d' % (S_PL, S_PL, FL_G))
    s('s_add_u32 s%d, s%d, 0x%x' % (S_PL, S_PL, FL_OFF))
    s('v_cmp_gt_u32 vcc, 32, v%d' % V_L16)
    s('v_lshlrev_b32 v%d, 3, v%d' % (V_PL, V_L16))
    s('v_cndmask_b32 v%d, v%d, v%d, vcc' % (V_PL, V_FLO, V_PL))


def poll_async(s, k):
    s('buffer_load_dword v%d, v%d, %s, s%d offen offset:%d sc1' % (V_POLL, V_PL, sr(SWS, 4), S_PL, k * 256), ('poll', k))


def stage_check(s, k, miss=None, sync=False, scalar=False):
    if OPT['x_nopoll']:
        return
    j = nspin[0]
    nspin[0] += 1
    mask = 3 if k < 3 else 1
    if sync:
        s('s_branch L_slow%d' % j)
    else:
        s.wait(vm=[('poll', k)])
        s('v_cmp_ne_u32 vcc, 0, v%d' % V_POLL)
        s('s_andn2_b32 s%d, %d, vcc_lo' % (S_T2, mask))
        if miss:
            s('s_cbranch_scc1 %s' % miss)
            return
        s('s_cbranch_scc1 L_slow%d' % j)
    s('L_ret%d:' % j)
    slow('L_slow%d:' % j)
    slow('s_add_u32 s%d, s%d, 1' % (S_SPIN, S_SPIN))
    slow('s_cmp_gt_u32 s%d, 0x%x' % (S_SPIN, SPIN_LIMIT))
    slow('s_cbranch_scc1 L_ret%d' % j)
    if sync and k == 3 and OPT['back']:
        slow('s_sleep %d' % OPT['back'])
    if scalar:
        slow('s_add_u32 s%d, s%d, %d' % (S_T2, S_PL, k * 256))
        slow('s_add_u32 s%d, s%d, %d' % (S_T1, S_PL, k * 256 + (128 if k < 3 else 0)))
        slow('s_buffer_load_dword s%d, %s, s%d glc' % (S_T2, sr(SWS, 4), S_T2))
        if k < 3:
            slow('s_buffer_load_dword s%d, %s, s%d glc' % (S_T1, sr(SWS, 4), S_T1))
        slow('s_waitcnt lgkmcnt(0)')
        if k < 3:
            slow('s_and_b32 s%d, s%d, s%d' % (S_T2, S_T2, S_T1))
        slow('s_cmp_eq_u32 s%d, 0' % S_T2)
    else:
        slow('buffer_load_dword v%d, v%d, %s, s%d offen offset:%d sc1' % (V_POLL, V_PL, sr(SWS, 4), S_PL, k * 256))
        slow('s_waitcnt vmcnt(0)')
        slow('v_cmp_ne_u32 vcc, 0, v%d' % V_POLL)
        slow('s_nop 1')
        slow('s_andn2_b32 s%d, %d, vcc_lo' % (S_T2, mask))
    slow('s_cbranch_scc1 L_slow%d' % j)
    slow('s_branch L_ret%d' % j)


def poll_check(s, k, n, sync=False, atomic=False):
    j = nspin[0]
    nspin[0] += 1
    if OPT['x_nopoll']:
        return
    if sync:
        s('s_branch L_slow%d' % j)
    else:
        s.wait(vm=[('poll', k)])
        s('v_readfirstlane_b32 s%d, v%d' % (S_T2, V_POLL))
        s('s_cmp_lt_u32 s%d, %d' % (S_T2, n))
        s('s_cbranch_scc1 L_slow%d' % j)
    s('L_ret%d:' % j)
    slow('L_slow%d:' % j)
    slow('s_add_u32 s%d, s%d, 1' % (S_SPIN, S_SPIN))
    slow('s_cmp_gt_u32 s%d, 0x%x' % (S_SPIN, SPIN_LIMIT))
    slow('s_cbranch_scc1 L_ret%d' % j)
    if atomic:
        slow('v_mov_b32 v%d, 0' % V_POLL)
        slow('buffer_atomic_add v%d, v%d, %s, s%d offen offset:%d sc0 sc1' % (V_POLL, V_FLO, sr(SWS, 4), S_PL, k * 128))
        slow('s_waitcnt vmcnt(0)')
        slow('v_readfirstlane_b32 s%d, v%d' % (S_T2, V_POLL))
        slow('s_nop 0')
    else:
        slow('s_add_u32 s%d, s%d, %d' % (S_T2, S_PL, k * 128))
        slow('s_buffer_load_dword s%d, %s, s%d glc' % (S_T2, sr(SWS, 4), S_T2))
        slow('s_waitcnt lgkmcnt(0)')
    slow('s_cmp_lt_u32 s%d, %d' % (S_T2, n))
    slow('s_cbranch_scc1 L_slow%d' % j)
    slow('s_branch L_ret%d' % j)


def srd(s, d, nbytes):
    s('s_mov_b32 s%d, 0x%x' % (d + 2, nbytes))
    s('s_mov_b32 s%d, 0x20000' % (d + 3))


XSLOT = [R2, R2 + 16384, R1 + 8192, R1 + 24576, R1 + 40960, R2, R2 + 16384]


def kv_slot(n):
    return ((n + 4) % 9) * 16384


def prologue():
    s, T = Seg('pro'), V_T
    s('s_cmp_ge_u32 s2, 256')
    s('s_cbranch_scc1 L_end')
    estamp(s, 'en')
    s('s_load_dwordx2 %s, s[0:1], 0' % sr(SX, 2))
    s('s_load_dwordx2 %s, s[0:1], 8' % sr(SW, 2))
    s('s_load_dwordx2 %s, s[0:1], 32' % sr(S_HI, 2))
    s('v_readfirstlane_b32 s%d, v0' % S_WV)
    s('s_getpc_b64 s[82:83]')
    s('s_lshr_b32 s%d, s2, 3' % S_T2)
    s('s_lshl_b32 s%d, s%d, 11' % (S_P, S_T2))
    s('v_lshl_add_u32 v%d, v0, 2, s%d' % (T, S_P))
    s('v_min_u32 v%d, L_codeend-L_codebeg-64, v%d' % (T, T))
    s('global_load_dword v%d, v%d, s[82:83]' % (V_POLL, T))
    s('s_lshr_b32 s%d, s%d, 6' % (S_WV, S_WV))
    s('v_and_b32 v%d, 63, v0' % T)
    if OPT['rmap'] < 0:
        s('s_and_b32 s%d, s%d, 7' % (S_ROLE, S_T2))
        s('v_lshrrev_b32 v%d, 3, v%d' % (T + 1, T))
        s('s_lshr_b32 s%d, s%d, 3' % (S_I2, S_T2))
    else:
        s('s_add_u32 s%d, s%d, %d' % (S_ROLE, S_T2, 4 * OPT['rmap']))
        s('v_lshrrev_b32 v%d, 3, v%d' % (T + 1, T))
        s('s_bfe_u32 s%d, s%d, 0x30002' % (S_ROLE, S_ROLE))
        s('s_and_b32 s%d, s%d, 3' % (S_I2, S_T2))
    s('v_lshrrev_b32 v%d, 4, v%d' % (T + 3, T))
    s('s_and_b32 s%d, s2, 1' % S_HALF)
    s('v_lshl_add_u32 v%d, s%d, 4, v%d' % (T + 5, S_WV, T + 1))
    s('s_bfe_u32 s%d, s2, 0x20001' % S_P)
    s('v_mul_u32_u24 v%d, %d, v%d' % (T + 5, XS, T + 5))
    s('s_lshl2_add_u32 s%d, s%d, s%d' % (S_RB, S_P, S_I2))
    s('v_xor_b32 v%d, v%d, v%d' % (T + 6, T, T + 3))
    s('s_lshl1_add_u32 s%d, s%d, s%d' % (S_T2, S_I2, S_ROLE))
    s('v_and_b32 v%d, 7, v%d' % (T + 6, T + 6))
    s('s_add_u32 s%d, s%d, s%d' % (S_T2, S_T2, S_P))
    s('v_lshl_add_u32 v%d, v%d, 4, v%d' % (V_X0, T + 6, T + 5))
    s('s_mul_i32 s%d, s%d, 3' % (S_T0, S_HALF))
    s('v_xor_b32 v%d, 64, v%d' % (V_X1, V_X0))
    s('s_add_u32 s%d, s%d, s%d' % (S_T2, S_T2, S_T0))
    s('v_add_u32 v%d, %d, v%d' % (V_X1, 8 * XS - 1024, V_X1))
    if OPT['rot1'] >= 5:
        ca, cb, cc, m = {5: (4, 2, 1, 1), 6: (1, 4, 2, 1), 7: (0, 4, 2, 1), 8: (2, 1, 2, 3), 9: (1, 3, 2, 3)}[OPT['rot1']]
        s('s_add_u32 s%d, s%d, s%d' % (S_T2, S_I2, S_ROLE))
        s('s_and_b32 s%d, s%d, %d' % (S_T2, S_T2, m))
        s('s_mul_i32 s%d, s%d, %d' % (S_T2, S_T2, ca))
        s('s_mul_i32 s%d, s%d, %d' % (S_T1, S_HALF, cb))
        s('s_add_u32 s%d, s%d, s%d' % (S_T2, S_T2, S_T1))
        s('s_mul_i32 s%d, s%d, %d' % (S_T1, S_P, cc))
        s('s_add_u32 s%d, s%d, s%d' % (S_T2, S_T2, S_T1))
    s('s_mul_i32 s%d, s%d, 37' % (S_T1, S_T2))
    s('v_lshlrev_b32 v%d, 2, v%d' % (T + 4, T + 3))
    s('s_lshr_b32 s%d, s%d, 8' % (S_T1, S_T1))
    s('v_xor_b32 v%d, v%d, v%d' % (T + 4, T, T + 4))
    s('s_mul_i32 s%d, s%d, 7' % (S_T1, S_T1))
    s('s_sub_u32 s%d, s%d, s%d' % (S_T2, S_T2, S_T1))
    if OPT['rot1'] == 0:
        s('s_mov_b32 s%d, 0' % S_T2)
    elif OPT['rot1'] == 2:
        s('s_lshr_b32 s%d, s%d, 1' % (S_T2, S_T2))
    elif OPT['rot1'] == 3:
        s('s_and_b32 s%d, s%d, 4' % (S_T2, S_T2))
    elif OPT['rot1'] == 4:
        s('s_and_b32 s%d, s%d, 6' % (S_T2, S_T2))
    s('s_mul_i32 s%d, s%d, %d' % (S_H, S_RB, 128 * XS))
    s('s_lshl_b32 s%d, s%d, 7' % (S_KX, S_T2))
    s('s_add_u32 s%d, s%d, s%d' % (S_KX, S_KX, S_H))
    s('s_lshl_b32 s%d, s%d, 11' % (S_M0X, S_WV))
    s('s_bitcmp1_b32 0x70, s%d' % S_ROLE)
    s('s_cselect_b32 s%d, 4, 7' % S_T3)
    s('s_lshl_b32 s%d, s%d, 14' % (S_T3, S_T3))
    s('s_add_u32 m0, s%d, s%d' % (S_T3, S_M0X))
    srd(s, SX, 2048 * XS)
    assert XSLOT[0] == 7 << 14 and kv_slot(0) == 4 << 14
    if OPT['touch'] & 8:
        s('s_lshl3_add_u32 s%d, s%d, s%d' % (S_T3, S_HALF, S_ROLE))
        s('v_min_u32 v%d, 6, v%d' % (T + 2, T))
        s('s_lshl3_add_u32 s%d, s%d, s%d' % (S_T3, S_T3, S_WV))
        s('v_lshlrev_b32 v%d, 7, v%d' % (T + 2, T + 2))
        s('s_mul_i32 s%d, s%d, %d' % (S_T3, S_T3, XS))
        s('s_add_u32 s%d, s%d, s%d' % (S_T3, S_T3, S_H))
    if OPT['xfirst']:
        s('s_waitcnt lgkmcnt(0)')
        estamp(s, 'ka')
        s('buffer_load_dwordx4 v%d, %s, s%d offen lds' % (V_X0, sr(SX, 4), S_KX), 't0')
        s('buffer_load_dwordx4 v%d, %s, s%d offen offset:1024 lds' % (V_X1, sr(SX, 4), S_KX), 't0')
        if OPT['touch'] & 8:
            s('buffer_load_dword v%d, v%d, %s, s%d offen' % (V_EXW, T + 2, sr(SX, 4), S_T3))
    s('s_and_b32 s%d, s%d, 3' % (S_RW, S_WV))
    s('s_lshr_b32 s%d, s%d, 2' % (S_G, S_WV))
    s('s_lshl_b32 s%d, s%d, 11' % (S_M0W, S_RW))
    s('s_add_u32 s%d, s%d, s%d' % (S_T0, S_T0, S_ROLE))
    s('s_lshl_b32 s%d, s%d, 7' % (S_T0, S_T0))
    s('s_add_u32 s%d, s%d, %d' % (S_T0, S_T0, XS - 512))
    s('s_lshl2_add_u32 s%d, s%d, s%d' % (S_P, S_HALF, S_ROLE))
    s('s_and_b32 s%d, s%d, 1' % (S_PEND, S_ROLE))
    s('s_lshl_b32 s%d, s%d, 6' % (S_PEND, S_PEND))
    s('s_movk_i32 s%d, %d' % (S_LAST, WQS))
    s('s_cmp_lt_u32 s%d, 4' % S_ROLE)
    s('s_cselect_b32 s%d, %d, s%d' % (S_LAST, W1S, S_LAST))
    s('s_cselect_b32 s%d, s%d, s%d' % (S_P, S_P, S_HALF))
    s('s_cselect_b32 s%d, s%d, 0' % (S_PEND, S_PEND))
    s('s_mul_i32 s%d, s%d, 448' % (S_T1, S_P))
    s('s_add_u32 s%d, s%d, s%d' % (S_T1, S_T1, S_PEND))
    s('s_lshl_b32 s%d, s%d, 6' % (S_RO, S_LAST))
    s('s_mul_i32 s%d, s%d, s%d' % (S_KW, S_T2, S_RO))
    s('s_mul_i32 s%d, s%d, 448' % (SW + 2, S_LAST))
    s('s_mov_b32 s%d, 0x20000' % (SW + 3))
    s('s_lshl_b32 s%d, s%d, 1' % (S_T2, S_RW))
    s('s_add_u32 s%d, s%d, %d' % (S_FL, S_M0X, kv_slot(1)))
    s('s_bitcmp1_b32 0x70, s%d' % S_ROLE)
    s('s_cselect_b32 s%d, s%d, s%d' % (S_T0, S_T0, S_T1))
    s('s_cselect_b32 s%d, s%d, s%d' % (S_T2, S_WV, S_T2))
    s('s_cselect_b32 s%d, s%d, s%d' % (S_FL, S_FL, S_M0W))
    s('s_cselect_b32 s%d, 4, 3' % S_T1)
    s('s_cselect_b32 s%d, 1, s%d' % (S_SPIN, S_G))
    s('v_lshrrev_b32 v%d, s%d, v%d' % (T + 5, S_T1, T))
    s('v_lshl_add_u32 v%d, s%d, 3, v%d' % (T + 5, S_T2, T + 5))
    s('v_bfe_u32 v%d, v%d, 0, s%d' % (T + 6, T + 4, S_T1))
    s('s_lshr_b32 s%d, s%d, s%d' % (S_T1, S_RO, S_T1))
    s('v_mul_u32_u24 v%d, s%d, v%d' % (T + 5, S_LAST, T + 5))
    s('s_sub_u32 s%d, s%d, 1024' % (S_T1, S_T1))
    s('v_lshl_add_u32 v%d, v%d, 4, s%d' % (T + 6, T + 6, S_T0))
    s('v_add_u32 v%d, v%d, v%d' % (V_W, T + 5, T + 6))
    s('s_cmp_lt_u32 s%d, 4' % S_ROLE)
    s('v_add_u32 v%d, s%d, v%d' % (V_WB, S_T1, V_W))
    if not OPT['xfirst']:
        s('s_waitcnt lgkmcnt(0)')
        estamp(s, 'ka')
        s('buffer_load_dwordx4 v%d, %s, s%d offen lds' % (V_X0, sr(SX, 4), S_KX), 't0')
        s('buffer_load_dwordx4 v%d, %s, s%d offen offset:1024 lds' % (V_X1, sr(SX, 4), S_KX), 't0')
        if OPT['touch'] & 8:
            s('buffer_load_dword v%d, v%d, %s, s%d offen' % (V_EXW, T + 2, sr(SX, 4), S_T3))
    s('s_cselect_b64 %s, %s, %s' % (sr(SW, 2), sr(S_HI, 2), sr(SW, 2)))
    s('s_mov_b32 m0, s%d' % S_FL)
    s('s_cmp_eq_u32 s%d, 0' % S_SPIN)
    s('s_cbranch_scc1 L_now')
    w = Seg('prow')
    w('buffer_load_dwordx4 v%d, %s, s%d offen lds' % (V_W, sr(SW, 4), S_KW), 't0')
    w('buffer_load_dwordx4 v%d, %s, s%d offen offset:1024 lds' % (V_WB, sr(SW, 4), S_KW), 't0')
    e = Seg('proe')
    e('L_now:')
    if OPT['touch'] & 16:
        e('v_min_u32 v%d, 55, v%d' % (T + 2, T))
        e('s_mul_i32 s%d, s%d, 28' % (S_T3, S_RB))
        e('v_lshrrev_b32 v%d, 1, v%d' % (T + 5, T + 2))
        e('s_mul_i32 s%d, s%d, s%d' % (S_T3, S_T3, S_LAST))
        e('v_mul_u32_u24 v%d, s%d, v%d' % (T + 5, S_LAST, T + 5))
        e('s_add_u32 s%d, s%d, s%d' % (S_T3, S_T3, S_T0))
        e('v_and_b32 v%d, 1, v%d' % (T + 2, T + 2))
        e('s_lshl_b32 s%d, s%d, 28' % (S_T2, S_WV))
        e('v_lshl_add_u32 v%d, v%d, 7, v%d' % (T + 2, T + 2, T + 5))
        e('s_add_u32 s%d, s%d, s%d' % (S_T3, S_T3, S_T2))
        e('buffer_load_dword v%d, v%d, %s, s%d offen' % (V_EXW, T + 2, sr(SW, 4), S_T3))
    estamp(e, 't0')
    for d, off in ((SWS, 80), (SB1, 40), (SDBG, 72), (SW2, 48), (SWO, 16), (SB2, 56), (SOUT, 64)):
        e('s_load_dwordx2 %s, s[0:1], %d' % (sr(d, 2), off))
    essential(e)
    e('s_cmp_ge_u32 s%d, 7' % S_ROLE)
    e('s_cbranch_scc1 L_q')
    e('s_cmp_ge_u32 s%d, 4' % S_ROLE)
    e('s_cbranch_scc1 L_kv')
    return s, w, e


def zipper(a, b):
    out = []
    for k in range(max(len(a), len(b))):
        out += a[k:k + 1] + b[k:k + 1]
    return out


def essential(z):
    T = V_T
    k, s = Seg(), Seg()
    k('s_add_u32 s%d, s%d, %d' % (S_T2, S_H, XS))
    for c in range(1, 7):
        k('s_add_u32 s%d, s%d, 128' % (S_KX + c, S_KX + c - 1))
        k('s_add_u32 s%d, s%d, s%d' % (S_KW + c, S_KW + c - 1, S_RO))
        k('s_cmp_eq_u32 s%d, s%d' % (S_KX + c, S_T2))
        k('s_cselect_b32 s%d, s%d, s%d' % (S_KX + c, S_H, S_KX + c))
        k('s_cselect_b32 s%d, 0, s%d' % (S_KW + c, S_KW + c))
    k('s_mov_b32 s%d, 0x3f803f80' % S_ONES)
    s('v_lshlrev_b32 v%d, 4, v%d' % (V_L16, T))
    s('v_and_b32 v%d, 1, v%d' % (T + 7, T + 3))
    s('v_and_b32 v%d, 31, v%d' % (T + 8, T))
    s('v_lshrrev_b32 v%d, 5, v%d' % (T + 9, T))
    s('v_bfe_u32 v%d, v%d, 2, 2' % (T + 10, T))
    s('v_and_b32 v%d, 3, v%d' % (T + 11, T))
    s('v_lshl_add_u32 v%d, s%d, 1, v%d' % (T + 12, S_RW, T + 9))
    s('v_bfe_u32 v%d, v%d, 1, 3' % (T + 5, T))
    s('v_xor_b32 v%d, v%d, v%d' % (T + 5, T + 12, T + 5))
    s('v_lshl_add_u32 v%d, s%d, 5, v%d' % (T + 13, S_RW, T + 8))
    s('v_lshlrev_b32 v%d, 7, v%d' % (V_XA, T + 13))
    s('v_lshl_add_u32 v%d, v%d, 4, v%d' % (V_XA, T + 5, V_XA))
    for j in range(1, 4):
        s('v_xor_b32 v%d, %d, v%d' % (V_XA + j, j << 5, V_XA))
    s('v_lshl_add_u32 v%d, v%d, 3, v%d' % (T + 12, T + 12, T + 10))
    s('v_lshl_add_u32 v%d, v%d, 2, v%d' % (T + 14, T + 7, T + 11))
    s('v_and_b32 v%d, 1, v%d' % (T + 5, T + 10))
    s('v_mov_b32 v%d, 0x3f803f80' % (T + 6))
    s('v_cmp_eq_u32 vcc, v%d, v%d' % (T + 5, T + 7))
    for j in range(4):
        s('v_mov_b32 v%d, 0' % (V_ST + j))
    for j in range(4):
        s('v_cndmask_b32 v%d, 0, v%d, vcc' % (V_SEL + j, T + 6))
    s('v_mov_b32 v%d, 0x%x' % (V_FLO, OOB))
    s('v_cmp_eq_u32 vcc, 0, v%d' % T)
    s('v_mov_b32 v%d, 1' % V_ONE)
    s('v_mov_b32 v%d, 0' % (V_EXW + 1))
    s('v_cndmask_b32 v%d, v%d, 0, vcc' % (V_FLO, V_FLO))
    z.extend(zipper(list(k), list(s)))


def deferred(kv):
    s, T = Seg(), V_T
    for k in EARLY:
        if OPT['diag'] and k in STAMPS:
            s('v_readfirstlane_b32 s%d, v%d' % (S_KA + 2 * STAMPS.index(k), 120 + EARLY.index(k)))
    srd(s, SW2, 1792 * XS)
    srd(s, SWO, 448 * XS)
    srd(s, SOUT, 2048 * XS)
    srd(s, SB2, 448 * 2)
    s('s_mov_b32 s%d, %s' % (S_EPS, f32(1e-6)))
    s('s_mov_b32 s%d, %s' % (S_L2E, f32(LOG2E)))
    s('s_mov_b32 s%d, 0' % S_HI)
    s('s_mov_b32 s%d, -1' % (S_HI + 1))
    if kv:
        s('s_mov_b32 s%d, 0xf0000000' % S_PAD)
        s('s_mov_b32 s%d, 0xf0000000' % (S_PAD + 1))
        s('v_mov_b32 v%d, 0' % (V_EXW + 3))
    s('s_mov_b32 s%d, 0' % S_SPIN)
    s('v_and_b32 v%d, 7, v%d' % (T + 4, T + 4))
    s('v_mul_u32_u24 v%d, %d, v%d' % (V_B2, XS, T + 1))
    s('v_lshl_add_u32 v%d, v%d, 4, v%d' % (V_B2, T + 4, V_B2))
    if kv:
        s('s_mov_b32 s%d, %d' % (S_T1, M_CS))
    else:
        s('s_lshl_b32 s%d, s%d, 9' % (S_T1, S_G))
        s('s_add_u32 s%d, s%d, %d' % (S_T1, S_T1, M_CS))
    s('v_lshl_add_u32 v%d, v%d, 4, s%d' % (V_CSR, T + 8, S_T1))
    s('v_lshl_add_u32 v%d, s%d, 2, v%d' % (V_CSW, S_RW, V_CSR))
    s('s_lshl2_add_u32 s%d, s%d, %d' % (S_T1, S_WV, M_SY))
    s('v_mov_b32 v%d, s%d' % (V_PA, S_T1))
    for k in ((0, 128, 160, 192, 224) if kv else (0,)):
        s('ds_write_b32 v%d, v%d offset:%d' % (V_PA, V_EXW + 1, k))
    if not kv:
        s('v_lshlrev_b32 v%d, 2, v%d' % (V_EXR + 1, T + 13))
        s('v_add_u32 v%d, %d, v%d' % (V_EXR, M_ST, V_EXR + 1))
    s('s_and_b32 s%d, s2, 7' % S_T1)
    s('s_lshl2_add_u32 s%d, s%d, s%d' % (S_I2, S_T1, S_I2))
    s('s_lshl1_add_u32 s%d, s%d, s%d' % (S_T1, S_I2, S_ROLE))
    s('s_and_b32 s%d, s%d, 3' % (S_RO, S_T1))
    s('s_and_b32 s%d, s%d, 4' % (S_T1, S_T1))
    s('s_lshl2_add_u32 s%d, s%d, s%d' % (S_RO, S_T1, S_RO))
    if not OPT['rot2']:
        s('s_mov_b32 s%d, 0' % S_RO)
    return s


def tlb_warm(s):
    if not OPT['tlb']:
        return
    T = V_T
    s('s_cmp_eq_u32 s%d, 0' % S_WV)
    s('s_cselect_b32 s%d, 128, 0x%x' % (S_T1, OOB))
    for r in (SDBG, SW2, SWO, SB2, SOUT):
        s('buffer_load_dword v%d, v%d, %s, s%d offen' % (T + 15, V_FLO, sr(r, 4), S_T1))
    s('v_lshlrev_b32 v%d, 17, v%d' % (T + 5, V_L16))
    s('v_min_u32 v%d, 0x%x, v%d' % (T + 5, 0x9f0000, T + 5))
    s('buffer_load_dword v%d, v%d, %s, s%d offen' % (T + 15, T + 5, sr(SWS, 4), S_T1))


def dma_x(s, c, addr, tag):
    s('s_add_u32 m0, s%d, %d' % (S_M0X, addr))
    s('buffer_load_dwordx4 v%d, %s, s%d offen lds' % (V_X0, sr(SX, 4), S_KX + c), tag)
    s('buffer_load_dwordx4 v%d, %s, s%d offen offset:1024 lds' % (V_X1, sr(SX, 4), S_KX + c), tag)


def dma_w(s, m0base, c, addr, tag):
    s('s_add_u32 m0, s%d, %d' % (m0base, addr))
    s('buffer_load_dwordx4 v%d, %s, s%d offen lds' % (V_W, sr(SW, 4), S_KW + c), tag)
    s('buffer_load_dwordx4 v%d, %s, s%d offen offset:1024 lds' % (V_WB, sr(SW, 4), S_KW + c), tag)


def groups(z):
    out, cur = [], []
    for i in z:
        cur.append(i)
        if i.kind == 'vmem':
            out.append(cur)
            cur = []
    if cur:
        out.append(cur)
    return out


def mix(main, grp, lo=0.0, hi=1.0):
    main = [i for i in main if i is not GAP]
    out, k, n = [], 0, len(main)
    for idx, i in enumerate(main):
        while k < len(grp) and idx >= n * (lo + (hi - lo) * k / len(grp)):
            out.extend(grp[k])
            k += 1
        out.append(i)
    for g in grp[k:]:
        out.extend(g)
    return out


def barrier(z, vm=None, name=None):
    if name:
        stamp(z, name + 'a')
    z.wait(vm=vm, lgkm='all')
    if name:
        stamp(z, name + 'b')
    z('s_barrier')


BLK = [0, 4, 1, 5, 2, 6, 3]


def unit_ks(u):
    return 4 * BLK[u >> 2] + (u & 3)


R3 = R1 + 28672
S_QR3 = 100
V_W3, V_WA3 = 125, 126
BA = [4, 5, 6, 7, 13, 15]
RING = [11]


def unit_loc(u):
    u %= RING[0]
    if u < 5:
        return S_QR2, 1, u * 2048
    if u < RING[0] - 6:
        return S_QR3, 2, (u - 5) * 2048
    return S_QR0, 0, (u - RING[0] + 6) * 2048


def p2_setup(s):
    s('s_lshl_b32 s%d, s%d, 7' % (S_T0, S_ROLE))
    s('s_mul_i32 s%d, s%d, %d' % (S_B2R, S_RW, 448 * XS))
    s('s_add_u32 s%d, s%d, s%d' % (S_B2R, S_B2R, S_T0))
    s('s_mul_i32 s%d, s%d, %d' % (S_WOR, S_RW, 112 * XS))
    s('s_add_u32 s%d, s%d, s%d' % (S_WOR, S_WOR, S_T0))
    s('s_mul_i32 s%d, s%d, %d' % (S_OUTO, S_I2, 64 * XS))
    s('s_add_u32 s%d, s%d, s%d' % (S_OUTO, S_OUTO, S_T0))
    s('s_mul_i32 s%d, s%d, 12288' % (S_QR0, S_RW))
    s('s_lshr_b32 s%d, s%d, 2' % (S_RO3, S_RO))
    s('s_or_b32 s%d, s%d, s%d' % (S_RO3, S_RO3, S_RO))
    s('s_and_b32 s%d, s%d, 7' % (S_RO3, S_RO3))
    s('s_mul_i32 s%d, s%d, 10240' % (S_QR2, S_RW))
    s('s_add_u32 s%d, s%d, %d' % (S_QR2, S_QR2, R2))
    if RING[0] == 14:
        s('s_mul_i32 s%d, s%d, 6144' % (S_QR3, S_RW))
        s('s_add_u32 s%d, s%d, %d' % (S_QR3, S_QR3, R3))
    s('s_mul_i32 s%d, s%d, %d' % (S_A, S_I2, 2 * ACT_G))
    s('v_add_u32 v%d, %d, v%d' % (V_B2B, 8 * XS - 1024, V_B2))


def touch_w(s, ffn, junk=127):
    if not OPT['touch'] & 1:
        return
    T = V_T
    s('s_and_b32 s%d, s%d, 3' % (S_T2, S_ROLE))
    s('s_lshl2_add_u32 s%d, s%d, s%d' % (S_T2, S_RB, S_T2))
    s('s_lshl3_add_u32 s%d, s%d, s%d' % (S_T2, S_T2, S_WV))
    s('s_mul_i32 s%d, s%d, %d' % (S_T2, S_T2, W1S if ffn else WQS))
    s('s_mul_i32 s%d, s%d, %d' % (S_T3, S_HALF, 1792 if ffn else 384))
    s('s_add_u32 s%d, s%d, s%d' % (S_T2, S_T2, S_T3))
    if ffn:
        s('v_min_u32 v%d, 13, v%d' % (T + 2, T))
    else:
        s('v_min_u32 v%d, 11, v%d' % (T + 2, T))
        s('v_lshrrev_b32 v%d, 2, v%d' % (T + 15, T + 2))
        s('v_mad_u32_u24 v%d, v%d, 3, v%d' % (T + 2, T + 15, T + 2))
    s('v_lshlrev_b32 v%d, 7, v%d' % (T + 2, T + 2))
    s('buffer_load_dword v%d, v%d, %s, s%d offen' % (junk, T + 2, sr(SW, 4), S_T2))


def touch_qv(s, junk=127):
    T = V_T
    s('s_lshl3_add_u32 s%d, s%d, s%d' % (S_T2, S_RB, S_WV))
    s('s_mul_i32 s%d, s%d, %d' % (S_T2, S_T2, 4 * WQS))
    s('s_mul_i32 s%d, s%d, 384' % (S_T3, S_HALF))
    s('s_add_u32 s%d, s%d, s%d' % (S_T2, S_T2, S_T3))
    s('v_min_u32 v%d, 31, v%d' % (T + 2, T))
    s('v_lshrrev_b32 v%d, 3, v%d' % (T + 15, T + 2))
    s('v_mad_u32_u24 v%d, v%d, 13, v%d' % (T + 15, T + 15, T + 2))
    s('v_bfe_u32 v%d, v%d, 2, 1' % (T + 2, T + 2))
    s('v_mad_u32_u24 v%d, v%d, 10, v%d' % (T + 2, T + 2, T + 15))
    s('v_lshlrev_b32 v%d, 7, v%d' % (T + 2, T + 2))
    s('buffer_load_dword v%d, v%d, %s, s%d offen' % (junk, T + 2, sr(SW, 4), S_T2))


def touch_ffn(s, t, junk=127):
    s('s_lshl3_add_u32 s%d, s%d, s%d' % (S_T2, S_RB, S_P))
    s('s_lshl2_add_u32 s%d, s%d, s%d' % (S_T2, S_T2, S_RW))
    s('v_min_u32 v%d, %d, v%d' % (t, 24 * 16, V_L16))
    s('s_mul_i32 s%d, s%d, %d' % (S_T3, S_T2, 25 * 128))
    s('v_lshlrev_b32 v%d, 3, v%d' % (t, t))
    s('buffer_load_dword v%d, v%d, %s, s%d offen' % (junk, t, sr(SW2, 4), S_T3))
    s('v_min_u32 v%d, %d, v%d' % (t, 6 * 128, t))
    s('s_mul_i32 s%d, s%d, %d' % (S_T3, S_T2, 7 * 128))
    s('buffer_load_dword v%d, v%d, %s, s%d offen' % (junk, t, sr(SWO, 4), S_T3))


def touch_fl2(s, h, t, junk=127):
    k = h - OPT['tf0']
    if not OPT['touch'] & 256 or not 0 <= k < 4 or not OPT['rounds'] >> k & 1:
        return
    s('s_add_u32 s%d, s2, %d' % (S_T3, k))
    s('s_and_b32 s%d, s%d, 3' % (S_T3, S_T3))
    s('s_and_b32 s%d, s%d, 3' % (S_T2, S_I2))
    s('s_lshl2_add_u32 s%d, s%d, s%d' % (S_T3, S_T3, S_T2))
    s('s_lshl2_add_u32 s%d, s%d, s%d' % (S_T3, S_T3, S_ROLE))
    s('s_lshl2_add_u32 s%d, s%d, s%d' % (S_T3, S_T3, S_RW))
    s('v_min_u32 v%d, %d, v%d' % (t, 48 * 16, V_L16))
    s('s_mul_i32 s%d, s%d, %d' % (S_T3, S_T3, 7 * XS))
    s('v_lshlrev_b32 v%d, 3, v%d' % (t, t))
    s('buffer_load_dword v%d, v%d, %s, s%d offen' % (junk, t, sr(SW2, 4), S_T3))


def touch_w2(s):
    if not OPT['touch'] & 2:
        return
    T = V_T
    s('s_lshl3_add_u32 s%d, s2, s%d' % (S_T2, S_WV))
    s('s_mul_i32 s%d, s%d, %d' % (S_T2, S_T2, XS))
    s('v_min_u32 v%d, 6, v%d' % (T + 2, T))
    s('v_lshlrev_b32 v%d, 7, v%d' % (T + 2, T + 2))
    s('s_sub_u32 s%d, %d, s%d' % (S_T3, 2047 * XS, S_T2))
    s('buffer_load_dword v%d, v%d, %s, s%d offen' % (V_POLL, T + 2, sr(SW2, 4), S_T2))
    s('buffer_load_dword v%d, v%d, %s, s%d offen' % (V_POLL, T + 2, sr(SWO, 4), S_T3))


def touch_kv(s):
    if not OPT['touch'] & 4:
        return
    T = V_T + 8
    s('s_mul_i32 s%d, s%d, 6' % (S_T2, S_RB))
    s('s_add_u32 s%d, s%d, s%d' % (S_T2, S_T2, S_P))
    s('s_lshl2_add_u32 s%d, s%d, s%d' % (S_T2, S_T2, S_RW))
    s('v_min_u32 v%d, %d, v%d' % (T, 32 * 16, V_L16))
    s('s_mul_i32 s%d, s%d, %d' % (S_T3, S_T2, 33 * 128))
    s('v_lshlrev_b32 v%d, 3, v%d' % (T, T))
    s('buffer_load_dword v%d, v%d, %s, s%d offen' % (T + 1, T, sr(SW2, 4), S_T3))
    s('v_min_u32 v%d, %d, v%d' % (T, 8 * 128, T))
    s('s_mul_i32 s%d, s%d, %d' % (S_T3, S_T2, 9 * 128))
    s('buffer_load_dword v%d, v%d, %s, s%d offen' % (T + 1, T, sr(SWO, 4), S_T3))


def touch_l2(s, r, t):
    if not OPT['touch'] & 32 or not OPT['rounds'] >> r & 1:
        return
    s('s_add_u32 s%d, s2, %d' % (S_T3, r))
    s('s_and_b32 s%d, s%d, 3' % (S_T3, S_T3))
    s('s_mul_i32 s%d, s%d, 49' % (S_T3, S_T3))
    s('s_lshr_b32 s%d, s2, 6' % S_T2)
    s('s_mul_i32 s%d, s%d, 3' % (S_T2, S_T2))
    s('s_add_u32 s%d, s%d, s%d' % (S_T2, S_T2, S_ROLE))
    s('s_lshl2_add_u32 s%d, s%d, s%d' % (S_T2, S_T2, S_RW))
    s('s_add_u32 s%d, s%d, s%d' % (S_T3, S_T3, S_T2))
    s('s_sub_u32 s%d, s%d, 16' % (S_T3, S_T3))
    s('v_lshlrev_b32 v%d, 3, v%d' % (t, V_L16))
    s('s_lshl_b32 s%d, s%d, 13' % (S_T3, S_T3))
    s('buffer_load_dword v%d, v%d, %s, s%d offen' % (t, t, sr(SW2, 4), S_T3))


def touch_wo(s, t):
    if not OPT['touch'] & (32 | 256):
        return
    s('s_and_b32 s%d, s%d, 3' % (S_T2, S_I2))
    s('s_lshl3_add_u32 s%d, s%d, s%d' % (S_T2, S_T2, S_WV))
    s('v_min_u32 v%d, %d, v%d' % (t, 48 * 16, V_L16))
    s('s_mul_i32 s%d, s%d, %d' % (S_T2, S_T2, 14 * XS))
    s('v_lshlrev_b32 v%d, 3, v%d' % (t, t))
    s('s_add_u32 s%d, s%d, %d' % (S_T3, S_T2, 7 * XS))
    s('buffer_load_dword v%d, v%d, %s, s%d offen' % (t + 1, t, sr(SWO, 4), S_T2))
    s('buffer_load_dword v%d, v%d, %s, s%d offen' % (t + 1, t, sr(SWO, 4), S_T3))


def ks_dyn(s, dst, u):
    if u < 24:
        s('s_xor_b32 s%d, s%d, %d' % (dst, S_RO, unit_ks(u)))
    else:
        s('s_and_b32 s%d, s%d, 3' % (dst, S_RO))
        s('s_xor_b32 s%d, s%d, %d' % (dst, dst, unit_ks(u)))


def dma_b2(s, u):
    base, _, off = unit_loc(u)
    if u < 28:
        ks_dyn(s, S_T3, u)
        if OPT['x_hit'] & 2:
            s('s_and_b32 s%d, s%d, 7' % (S_T3, S_T3))
        s('s_add_u32 m0, s%d, %d' % (base, off))
        s('s_mul_i32 s%d, s%d, %d' % (S_T3, S_T3, 16 * XS))
        s('s_add_u32 s%d, s%d, s%d' % (S_T3, S_T3, S_B2R))
    else:
        s('s_xor_b32 s%d, s%d, %d' % (S_T3, S_RO3, u - 28))
        s('s_and_b32 s%d, s%d, 1' % (S_T1, S_T3))
        s('s_mul_i32 s%d, s%d, 7' % (S_T3, S_T3))
        s('s_add_u32 s%d, s%d, s%d' % (S_T3, S_T3, S_T1))
        s('s_add_u32 m0, s%d, %d' % (base, off))
        s('s_mul_i32 s%d, s%d, %d' % (S_T3, S_T3, 2 * XS))
        s('s_add_u32 s%d, s%d, s%d' % (S_T3, S_T3, S_WOR))
    w = SW2 if u < 28 else SWO
    s('buffer_load_dwordx4 v%d, %s, s%d offen lds' % (V_B2, sr(w, 4), S_T3), ('b', u))
    s('buffer_load_dwordx4 v%d, %s, s%d offen offset:1024 lds' % (V_B2B, sr(w, 4), S_T3), ('b', u))


def abuf(u, rg):
    return V_AB + 8 * (u % DEP) + 4 * rg if u < 28 else V_AB + 64 + 8 * (u - 28) + 4 * rg


def a_setup(s):
    s('v_add_u32 v%d, %d, v%d' % (V_L16B, ACT_G, V_L16))
    s('s_lshl_b32 s%d, s%d, 13' % (S_T0, S_RW))
    s('s_add_u32 s%d, s%d, s%d' % (S_P, S_A, S_T0))
    s('s_add_u32 s%d, s%d, %d' % (S_P, S_P, 112 * 1024))
    s('s_mul_i32 s%d, s%d, %d' % (S_T0, S_RW, 28 * 1024))
    s('s_add_u32 s%d, s%d, s%d' % (S_A, S_A, S_T0))


def aload(z, u):
    ks_dyn(z, S_T0, u)
    z('s_lshl_b32 s%d, s%d, 10' % (S_T0, S_T0))
    z('s_add_u32 s%d, s%d, s%d' % (S_T0, S_T0, S_A))
    for rg in range(2):
        z('buffer_load_dwordx4 %s, v%d, %s, s%d offen sc1' % (vr(abuf(u, rg), 4), V_L16B if rg else V_L16, sr(SWS, 4), S_T0), ('a', u))


def sync_arrive(s, k):
    s('ds_write_b32 v%d, v%d offset:%d' % (V_PA, V_ONE, k * 32))


def sync_wait(s, k, nw, T):
    j = nspin[0]
    nspin[0] += 1
    s('v_mov_b32 v%d, %d' % (T + 8, M_SY))
    s('L_sy%d:' % j)
    for h in range(nw // 4):
        s('ds_read_b128 %s, v%d offset:%d' % (vr(T + 4 * h, 4), T + 8, k * 32 + h * 16))
    s('s_add_u32 s%d, s%d, 1' % (S_SPIN, S_SPIN))
    s('s_cmp_gt_u32 s%d, 0x%x' % (S_SPIN, SPIN_LIMIT))
    s('s_cbranch_scc1 L_sz%d' % j)
    s.wait(lgkm='all')
    for h in range(1, nw - 1, 2):
        s('v_and_b32 v%d, v%d, v%d' % (T + h, T + h, T + h + 1))
    for h in range(1, nw, 2):
        s('v_and_b32 v%d, v%d, v%d' % (T, T, T + h))
    s('v_readfirstlane_b32 s%d, v%d' % (S_T2, T))
    s('s_cmp_eq_u32 s%d, 0' % S_T2)
    s('s_cbranch_scc1 L_sy%d' % j)
    s('L_sz%d:' % j)
    s.wait(lgkm='all')


def flag(s, off):
    if OPT['fatom']:
        s('buffer_atomic_add v%d, v%d, %s, s%d offen offset:%d sc1' % (V_ONE, V_FLO, sr(SWS, 4), S_FL, off))
    else:
        s('buffer_store_dword v%d, v%d, %s, s%d offen offset:%d sc1' % (V_ONE, V_FLO, sr(SWS, 4), S_FL, off))


def f0_load(s):
    s('buffer_load_dword v%d, v%d, %s, 0 offen sc1' % (V_POLL, V_FLO, sr(SDBG, 4)), 'f0')


def f0_check(s):
    s('v_mov_b32 v%d, 32' % (V_T + 15))
    stamp(s, 'f0a')
    s.wait(vm='f0')
    stamp(s, 'f0b')
    spin_check(s, V_POLL, V_T + 15, V_FLO, SDBG, '0', 1)


def poll_early(s):
    poll_base(s)
    poll_async(s, 0)


def xreg(c, j):
    return V_X + 16 * c + 4 * j


def dots(s, c):
    for j in range(4):
        s.wait(lgkm=[('x', c, j)])
        for r in range(4):
            x = xreg(c, j) + r
            s('v_dot2c_f32_bf16 v%d, s%d, v%d' % (V_ST + (r & 1), S_ONES, x))
            s('v_dot2c_f32_bf16 v%d, v%d, v%d' % (V_ST + 2 + (r & 1), x, x))


def stats_pack(s):
    T = V_T
    s('v_add_f32 v%d, v%d, v%d' % (T, V_ST, V_ST + 1))
    s('v_add_f32 v%d, v%d, v%d' % (T + 2, V_ST, V_ST + 1))
    s('v_add_f32 v%d, v%d, v%d' % (T + 1, V_ST + 2, V_ST + 3))
    s('v_add_f32 v%d, v%d, v%d' % (T + 3, V_ST + 2, V_ST + 3))
    s('v_permlane32_swap_b32 v%d, v%d' % (T, T + 2))
    s('v_permlane32_swap_b32 v%d, v%d' % (T + 1, T + 3))
    s('v_add_f32 v%d, v%d, v%d' % (T, T, T + 2))
    s('v_add_f32 v%d, v%d, v%d' % (T + 1, T + 1, T + 3))
    s('v_mul_f32 v%d, %s, v%d' % (T, f32(1.0 / 448), T))
    s('v_mul_f32 v%d, %s, v%d' % (T + 1, f32(1.0 / 448), T + 1))
    s('v_fma_f32 v%d, -v%d, v%d, v%d' % (T + 1, T, T, T + 1))
    s('v_max_f32 v%d, 0, v%d' % (T + 1, T + 1))
    s('v_cvt_pk_bf16_f32 v%d, v%d, v%d' % (T + 1, T + 1, T + 1))
    s('v_lshlrev_b32 v%d, 16, v%d' % (T + 1, T + 1))
    s('v_add_f32 v%d, %s, v%d' % (T + 1, f32(1e-5), T + 1))
    s('v_cvt_pk_bf16_f32 v%d, v%d, v%d' % (T + 1, T + 1, T + 1))
    s('v_lshlrev_b32 v%d, 16, v%d' % (T + 1, T + 1))
    s('v_sqrt_f32 v%d, v%d' % (T + 1, T + 1))
    s('v_cvt_pk_bf16_f32 v%d, -v%d, v%d' % (T, T, T + 1))
    s('ds_write_b32 v%d, v%d' % (V_EXR, T))


def stats_final(kind, read=True):
    s, T = Seg(), V_T
    if read:
        s('ds_read_b32 v%d, v%d' % (T, V_EXR), 'st')
        s.wait(lgkm='st')
    s('v_and_b32 v%d, 0xffff0000, v%d' % (V_ST + 2, T))
    s('v_rcp_f32 v%d, v%d' % (V_ST + 3, V_ST + 2))
    s('v_cndmask_b32 v%d, v%d, 0, %s' % (T, T, sr(S_HI, 2)))
    s('v_and_b32 v%d, 0xffff, v%d' % (T + 1, T))
    s('v_lshl_or_b32 v%d, v%d, 16, v%d' % (V_EXR, T, T + 1))
    s('v_lshrrev_b32 v%d, 16, v%d' % (V_EXR + 1, T))
    if kind == 'gelu':
        s('v_mul_f32 v%d, %s, v%d' % (V_ST, f32(GC1), V_ST + 3))
        s('v_mul_f32 v%d, v%d, v%d' % (T, V_ST + 3, V_ST + 3))
        s('v_mul_f32 v%d, %s, v%d' % (V_ST + 1, f32(GC3), V_ST + 3))
        s('v_mul_f32 v%d, v%d, v%d' % (V_ST + 1, T, V_ST + 1))
    else:
        s('v_mul_f32 v%d, s%d, v%d' % (V_ST, S_L2E, V_ST + 3))
    return s


def ext_parts(acc, off, exw, swap, bias=None, T=V_T + 8):
    r, b, m = Seg(), Seg(), Seg()
    tag = ('cs', id(r))
    r('ds_read_b128 %s, v%d offset:%d' % (vr(T, 4), V_CSR, off), tag)
    b.wait(lgkm=[tag])
    b('v_add_f32 v%d, v%d, v%d' % (T, T, T + 1))
    b('v_add_f32 v%d, v%d, v%d' % (T + 2, T + 2, T + 3))
    b('v_add_f32 v%d, v%d, v%d' % (T, T, T + 2))
    b('v_cvt_pk_bf16_f32 v%d, v%d, v%d' % (T + 1, T, T))
    b('v_lshlrev_b32 v%d, 16, v%d' % (T + 1, T + 1))
    b('v_sub_f32 v%d, v%d, v%d' % (T + 1, T, T + 1))
    b('v_cvt_pk_bf16_f32 v%d, v%d, v%d' % (exw, T, T + 1))
    if bias is not None:
        r('v_mov_b32 v%d, v%d' % (exw + 1, bias))
    x, y = (V_EXR, exw) if swap else (exw, V_EXR)
    m('v_mfma_f32_32x32x8_bf16 %s, %s, %s, %s' % (vr(acc, 16), vr(x, 2), vr(y, 2), vr(acc, 16)))
    KEEP.append(r)
    return r, b, m


KEEP = []


def head(parts, stats=None):
    st = [i for i in stats if i is not GAP] if stats is not None else []
    out = st[:1]
    for p in parts:
        out += p[0]
    out += st[1:]
    for p in parts:
        out += p[1]
    for p in parts:
        out += p[2]
    return out


def epi_rowlane(kind, acc, tag, handoff=False, keep=None):
    s, T = Seg(), V_T
    for grp in range(4):
        a = [acc + 4 * grp + e for e in range(4)]
        t = [T + e for e in range(4)]
        if kind == 'gelu':
            for e in range(4):
                s('v_mul_f32 v%d, v%d, v%d' % (t[e], a[e], a[e]))
            for e in range(4):
                s('v_fma_f32 v%d, v%d, v%d, v%d' % (t[e], t[e], V_ST + 1, V_ST))
            for e in range(4):
                s('v_mul_f32 v%d, v%d, v%d' % (t[e], a[e], t[e]))
            for e in range(4):
                s('v_exp_f32 v%d, v%d' % (t[e], t[e]))
            for e in range(4):
                s('v_fma_f32 v%d, v%d, v%d, v%d' % (t[e], t[e], V_ST + 2, V_ST + 2))
            for e in range(4):
                s('v_rcp_f32 v%d, v%d' % (t[e], t[e]))
            for e in range(4):
                s('v_mul_f32 v%d, v%d, v%d' % (a[e], a[e], t[e]))
        else:
            for e in range(4):
                s('v_mul_f32 v%d, v%d, v%d' % (t[e], a[e], V_ST))
            for e in range(4):
                s('v_exp_f32_e64 v%d, v%d clamp' % (t[e], t[e]))
            for e in range(4):
                s('v_fma_f32 v%d, v%d, v%d, s%d' % (a[e], a[e], V_ST + 3, S_EPS))
            for e in range(4):
                s('v_max_f32 v%d, s%d, v%d' % (a[e], S_EPS, a[e]))
            for e in range(4):
                s('v_add_f32 v%d, v%d, v%d' % (a[e], a[e], t[e]))
        p = acc + 8 * (grp >> 1) + 2 * (grp & 1) if keep is None else keep + 2 * grp
        s('v_cvt_pk_bf16_f32 v%d, v%d, v%d' % (p, a[0], a[1]))
        s('v_cvt_pk_bf16_f32 v%d, v%d, v%d' % (p + 1, a[2], a[3]))
        if kind == 'phi' and grp == 3:
            s('v_cndmask_b32 v%d, v%d, 0, %s' % (p, p, sr(S_HI, 2)))
            s('v_cndmask_b32 v%d, v%d, 0, %s' % (p + 1, p + 1, sr(S_HI, 2)))
        if grp & 1 and keep is None:
            f = grp >> 1
            if handoff:
                s('ds_write_b128 v%d, %s offset:%d' % (V_RA, vr(acc + 8 * f, 4), f * 1024))
                continue
            s('buffer_store_dwordx4 %s, v%d, %s, s%d offen offset:%d sc1' % (vr(acc + 8 * f, 4), V_L16, sr(SWS, 4), S_H, f * 1024), tag)
    return s


def lc_role(ffn):
    kind = 'gelu' if ffn else 'phi'
    RING[0] = 14
    nm = 'f' if ffn else 'q'
    s, T = Seg(nm), V_T
    if not ffn:
        s('L_q:')
    if OPT['twat'] < -1:
        touch_w(s, ffn)
    s('s_mul_i32 s%d, s%d, %d' % (S_T1, S_G, 64 if ffn else 56))
    s('v_lshrrev_b32 v%d, 1, v%d' % (T + 6, T + 10))
    s('v_lshl_add_u32 v%d, v%d, 3, s%d' % (T + 5, T + 14, S_T1))
    s('v_lshlrev_b32 v%d, 6, v%d' % (T + 6, T + 6))
    s('v_xor_b32 v%d, v%d, v%d' % (T + 5, T + 5, T + 6))
    s('v_lshl_add_u32 v%d, v%d, 7, v%d' % (V_WA, T + 12, T + 5))
    for j in range(1, 4):
        s('v_xor_b32 v%d, %d, v%d' % (V_WA + j, j << 11, V_WA))
    srd(s, SWS, WS_BYTES)
    srd(s, SDBG, 256)
    s('s_waitcnt lgkmcnt(0)')
    if not ffn:
        s('s_lshl1_add_u32 s%d, s%d, s%d' % (S_T2, S_RB, S_HALF))
        s('s_mul_i32 s%d, s%d, 6' % (S_T1, S_T2))
        s('s_add_u32 s%d, s%d, s%d' % (S_T1, S_T1, S_WV))
        s('s_lshl_b32 s%d, s%d, 10' % (S_T1, S_T1))
        s('s_add_u32 s%d, s%d, 0x%x' % (S_T1, S_T1, KV_OFF))
        s('s_lshl_b32 s%d, s%d, 10' % (S_LAST, S_T2))
        s('s_add_u32 s%d, s%d, 0x%x' % (S_LAST, S_LAST, ST_OFF))
        s('s_cmp_lt_u32 s%d, 6' % S_WV)
        s('s_cselect_b32 s%d, s%d, 0x%x' % (S_T1, S_T1, OOB))
        s('s_cmp_eq_u32 s%d, 6' % S_WV)
        s('s_cselect_b32 s%d, s%d, s%d' % (S_T1, S_LAST, S_T1))
        s('buffer_store_dwordx4 %s, v%d, %s, s%d offen sc1' % (vr(V_ST, 4), V_L16, sr(SWS, 4), S_T1), 'zero')
    s('s_cmp_eq_u32 s%d, 1' % S_G)
    s('s_cbranch_scc1 L_%sb' % nm)
    UA, UB = [([(), (5,), (7,)], [(0, 1), (2,), (3, 4, 6)]), ([(), (5, 6), ()], [(0, 1), (2,), (3, 4, 7)]),
              ([(0,), (5, 6), (7,)], [(1,), (2,), (3, 4)])][OPT['ub']]
    step = 128 if ffn else 112
    region = [R0, R1, R0, R1]
    acc = V_ACC

    def stream(g):
        z = Seg(nm + 'ab'[g])
        if g:
            z('L_%sb:' % nm)
        xa = Rebase([V_XA + j for j in range(4)], 0, 0)
        wa = Rebase([V_WA + j for j in range(4)], 0, 512)

        def triple(t, c):
            dma_x(t, c, XSLOT[c], ('t', c))
            if g:
                dma_w(t, S_M0W, c, R0 + c * 8192, ('t', c))

        def lc(t, q, c):
            if ffn and q == 3:
                t('s_add_u32 m0, s%d, %d' % (S_M0W, R1 + c * 4096))
                t('buffer_load_dwordx4 v%d, %s, s%d offen lds' % (V_W3, sr(SW, 4), S_KW + c), ('l', q, c))
                return
            dma_w(t, S_M0W, c, region[q] + c * 8192, ('l', q, c))

        def wread(t, q, c, j):
            half = ffn and q == 3
            o = c * 4096 if half else wa.off(t, region[q] + c * 8192)
            for u in range(2):
                t('ds_read_b64_tr_b16 %s, v%d offset:%d' % (vr(V_WF + 4 * j + 2 * u, 2), V_WA + j, o + u * (256 if half else 512)), ('w', q, c, j))

        def xread(t, c, j):
            o = xa.off(t, XSLOT[c])
            t('ds_read_b128 %s, v%d offset:%d' % (vr(xreg(c, j), 4), V_XA + j, o), ('x', c, j))

        def kstep(q, c, j):
            t = Seg()
            t.wait(lgkm=[('w', q, c, j | OPT['wj'])])
            first = c == 0 and j == 0
            t('v_mfma_f32_32x32x16_bf16 %s, %s, %s, %s' % (vr(acc, 16), vr(V_WF + 4 * j, 4), vr(xreg(c, j), 4), '0' if first else vr(acc, 16)))
            if j == 0:
                t('v_mfma_f32_16x16x32_bf16 %s, %s, %s, %s' % (vr(V_CS, 4), vr(V_SEL, 4), vr(V_WF + 4 * j, 4), '0' if first else vr(V_CS, 4)))
            if c < 6:
                wread(t, q, c + 1, j)
            return t

        def preread(t, q):
            for j in range(4):
                wread(t, q, 0, j)

        def gemm(t, q, fill=(), extra=None):
            t('s_setprio 1')
            slots = [kstep(q, c, j) for c in range(7) for j in range(4)]
            for k, gi in enumerate(groups(extra) if extra is not None else []):
                slots[min(1 + OPT['gsp'] * k, 27)].extend(gi)
            slots[26]('ds_write_b32 v%d, v%d' % (V_CSW, V_CS))
            t.extend(interleave(slots, list(fill), 0, 20))

        def next_col(t, last=False):
            if last and ffn:
                t('s_lshr_b32 s%d, s%d, 1' % (S_M0W, S_M0W))
                return
            for r in (V_W, V_WB):
                t('v_add_u32 v%d, %d, v%d' % (r, step, r))

        def epi(t, q, extra=None, pre=None, handoff=False, hi=0.85, keep=False, nxt=None, lo=0.03, early=2):
            grp = groups(extra) if extra is not None else []
            t('s_setprio 2')
            t.extend(head([ext_parts(acc, 0, V_EXW, False, V_B1 + q if ffn else None)], pre))
            if not keep:
                t('s_setprio %d' % OPT['eprio'])
            stamp(t, 'x%d' % (2 * q + g + 1))
            for gi in grp[:early]:
                t.extend(gi)
            body = mix(epi_rowlane(kind, acc, ('h', q), handoff, None if ffn else V_PQ + 8 * q), grp[early:], lo, hi)
            if ffn:
                r = Seg()
                touch_fl2(r, 2 * q + g + 1, V_XA + 1)
                body = mix(body, [list(r)], OPT['tfp'] / 100, 1.0)
            if nxt is not None:
                r = Seg()
                if ffn and not g and nxt == 3:
                    for k in range(4):
                        r('v_xor_b32 v%d, %d, v%d' % (V_WA + k, k << 10, V_WA3))
                preread(r, nxt)
                body = mix(body, [[i] for i in r], 0.55, 0.95) if OPT['pmix'] else body + list(r)
            t.extend(body)
            if ffn:
                t('s_add_u32 s%d, s%d, 4096' % (S_H, S_H))

        def duty(q, chunks, units=(), step_col=True):
            d = Seg()
            if step_col:
                next_col(d, q == 3)
            for k in chunks:
                lc(d, q, k)
            if ffn:
                for u in units:
                    dma_b2(d, u)
            return d

        late = deferred(False)
        late('s_lshl2_add_u32 s%d, s%d, s%d' % (S_H, S_RB, S_RW))
        late('s_mul_i32 s%d, s%d, %d' % (S_H, S_H, ACT_G))
        late('s_add_u32 s%d, s%d, %d' % (S_H, S_H, g * 2048 + (0 if ffn else 112 * 1024)))
        late('s_lshl_b32 s%d, s%d, %d' % (S_T1, S_T0 if ffn else S_HALF, 5 if ffn else 14))
        late('s_add_u32 s%d, s%d, s%d' % (S_H, S_H, S_T1))
        if ffn:
            late('s_add_u32 s%d, s%d, %d' % (S_T1, S_M0W, HND))
            late('v_add_u32 v%d, s%d, v%d' % (V_RA, S_T1, V_L16))
            late('s_mul_i32 s%d, s%d, -7' % (S_LAST, S_PEND))
            late('s_add_u32 s%d, s%d, s%d' % (S_LAST, S_LAST, S_T0))
            late('s_add_u32 s%d, s%d, 384' % (S_LAST, S_LAST))
            late('v_lshrrev_b32 v%d, 2, v%d' % (T + 5, T))
            late('v_lshl_add_u32 v%d, s%d, 4, v%d' % (T + 5, S_RW, T + 5))
            late('v_mul_u32_u24 v%d, %d, v%d' % (T + 5, W1S, T + 5))
            late('v_lshl_add_u32 v%d, v%d, 4, s%d' % (V_W3, T + 11, S_LAST))
            late('v_add_u32 v%d, v%d, v%d' % (V_W3, V_W3, T + 5))
            if not g:
                late('v_lshl_add_u32 v%d, v%d, 3, v%d' % (T + 5, T + 12, T + 14))
                late('v_lshlrev_b32 v%d, 3, v%d' % (T + 5, T + 5))
                late('v_add_u32 v%d, %d, v%d' % (V_WA3, R1, T + 5))
            srd(late, SB1, 1792 * 2)
            late('v_lshlrev_b32 v%d, 1, v%d' % (T + 5, T + 8))
            for q in range(3):
                late('buffer_load_ushort v%d, v%d, %s, s%d offen offset:%d' % (V_B1 + q, T + 5, sr(SB1, 4), S_T0, q * 128 + g * 64), 'b1')
            if not g:
                late('buffer_load_ushort v%d, v%d, %s, s%d offen' % (V_B1 + 3, T + 5, sr(SB1, 4), S_LAST), 'b1')
        if g:
            late('s_mov_b32 s%d, 0x%x' % (S_FL, OOB))
        else:
            late('s_lshr_b32 s%d, s%d, 1' % (S_T1, S_P) if ffn else 's_lshl_b32 s%d, s%d, 1' % (S_T1, S_HALF))
            late('s_lshl2_add_u32 s%d, s%d, s%d' % (S_T1, S_RB, S_T1))
            late('s_mul_i32 s%d, s%d, %d' % (S_FL, S_T1, FL_G))
            late('s_lshl1_add_u32 s%d, s%d, s%d' % (S_FL, S_PEND, S_FL))
            late('s_lshl_b32 s%d, s%d, 28' % (S_T1, S_RW))
            late('s_add_u32 s%d, s%d, s%d' % (S_FL, S_FL, S_T1))
            late('s_add_u32 s%d, s%d, 0x%x' % (S_FL, S_FL, FL_OFF))
        NL = OPT['nlate']

        def some(k):
            return late[len(late) * k // NL:len(late) * (k + 1) // NL] if k < NL else []

        triple(z, 1)
        estamp(z, 't1')
        z.extend(some(0))
        if OPT['tat'] < -1:
            touch_w2(z)
        z('s_barrier')
        if g:
            z('s_setprio 1')
        triple(z, 2)
        for c in range(-1, 7):
            if c < 6:
                barrier(z, ['t0', 'zero'] if c < 0 else [('t', c + 1)], 's%d' % c if c >= 0 else 'pre')
            if c < 0:
                stamp(z, 1)
                if not ffn and not g:
                    z('s_lshl_b32 s%d, s%d, 28' % (S_T2, S_WV))
                    z('buffer_atomic_add v%d, v%d, %s, s%d offen sc1' % (V_ONE, V_FLO, sr(SDBG, 4), S_T2))
            d = Seg()
            if c < 3:
                triple(d, c + 4)
            if c == OPT['tat']:
                touch_w2(d)
            if c == 3:
                next_col(d)
            for k in {3: ([], [0]), 4: ([], [1]), 5: ([], [2]), 6: ([3], [])}.get(c, ([], []))[g]:
                lc(d, 1, k)
            if c == 4 and ffn:
                p2_setup(d)
            if c == OPT['twat']:
                if ffn or not OPT['touch'] & 64:
                    touch_w(d, ffn)
                else:
                    touch_qv(d)
            if g:
                if c == 6:
                    break
                for j in range(4):
                    xread(z, c + 1, j)
                if c < 5:
                    z.extend(mix(some(c + 2), groups(d)))
                if c == 3:
                    preread(z, 0)
                dots(z, c + 1)
                if c == 5:
                    stats_pack(z)
                    if not ffn:
                        z('buffer_store_dword v%d, v%d, %s, s%d offen sc1' % (T, V_EXR + 1, sr(SWS, 4), S_LAST))
                    z.extend(d)
                    z.extend(stats_final(kind, False))
            else:
                for j in range(4):
                    if c == 6:
                        z.wait(lgkm=[('x', c, j)])
                    if c >= 0:
                        z.extend(kstep(0, c, j))
                    else:
                        wread(z, 0, 0, j)
                    if c < 6:
                        xread(z, c + 1, j)
                z.extend(mix(some(c + 2), groups(d)))
                if c == 6:
                    z.insert(len(z) - 1, Ins('ds_write_b32 v%d, v%d' % (V_CSW, V_CS)))
        if g:
            barrier(z, [('l', 1, 0), 'b1'])
        else:
            barrier(z, 'b1')
        stamp(z, 2)
        if not g:
            d = Seg()
            f0_load(d)
            NE = OPT['ne']
            epi(z, 0, d, pre=stats_final(kind), nxt=1)
            barrier(z, [('l', 1, 3)], 'e1')
            stamp(z, 'h1')
            gemm(z, 1, extra=duty(2, range(NE, 5)))
            f0_check(z)
            barrier(z, [('h', 0)], 'e2')
            stamp(z, 'h2')
            d = duty(0, (), UA[0], False)
            if ffn and OPT['touch'] & 128 and OPT['tfat'] == 3:
                touch_ffn(d, V_XA)
            epi(z, 1, d, nxt=2, lo=0.5, early=2 * len(UA[0]))
            barrier(z, [('l', 2, 4)], 'e3')
            stamp(z, 3)
            if ffn:
                flag(z, 0)
            gemm(z, 2, extra=duty(3, range(NE, 5), UA[1]))
            barrier(z, [('h', 1)], 'e4')
            stamp(z, 'h4')
            epi(z, 2, duty(0, (), UA[2], False), nxt=3)
            barrier(z, [('l', 3, 4)], 'e5')
            stamp(z, 4)
            if ffn:
                flag(z, 256)
            gemm(z, 3, extra=duty(0, (), (11, 12, 13), False))
            barrier(z, [('b', u) for u in UA[1] + UA[2]], 'e6')
            stamp(z, 5)
            if ffn:
                z('ds_read_b128 %s, v%d' % (vr(V_WF, 4), V_RA), 'hnd')
                z('ds_read_b128 %s, v%d offset:1024' % (vr(V_WF + 4, 4), V_RA), 'hnd')
                z('s_sub_u32 s%d, s%d, 2048' % (S_T0, S_H))
                z('s_cmp_eq_u32 s%d, 0' % S_PEND)
                z('s_cselect_b32 s%d, 0, %d' % (S_T1, 3 * 4096 + 2048))
                z('s_sub_u32 s%d, s%d, s%d' % (S_H, S_H, S_T1))
                d = Seg()
                d.wait(lgkm='hnd')
                for f in range(2):
                    d('buffer_store_dwordx4 %s, v%d, %s, s%d offen offset:%d sc1' % (vr(V_WF + 4 * f, 4), V_L16, sr(SWS, 4), S_T0, f * 1024), 'h5')
                epi(z, 3, d, keep=True)
                z.wait(vm=[('h', 3)])
                sync_arrive(z, 0)
                sync_wait(z, 0, 4, T)
                flag(z, 512)
                stamp(z, 6)
                z('s_branch L_p2a')
            else:
                d = Seg()
                touch_wo(d, V_XA)
                epi(z, 3, d)
                q_fetch(z)
                z('s_branch L_qo')
            return z
        gemm(z, 0, extra=duty(1, (4, 5, 6), (), False))
        barrier(z, [('l', 1, 6)], 'e1')
        stamp(z, 'h1')
        for q in (1, 2):
            d = duty(q + 1, range(OPT['ne']), UB[1] if q == 2 else ())
            if ffn and OPT['touch'] & 128 and 2 * q == OPT['tfat']:
                d('s_nop 0')
                touch_ffn(d, V_XA)
            epi(z, q - 1, d, nxt=q, lo=0.2)
            barrier(z, [('l', q + 1, 0)], 'e%d' % (2 * q))
            stamp(z, 'h%d' % (2 * q))
            d = duty(q + 1, (5, 6), (), False)
            if ffn and q == 2:
                poll_early(d)
            d.extend(duty(0, (), UB[2 * q - 2], False))
            gemm(z, q, extra=d)
            barrier(z, [('l', q + 1, 6)], 'e%d' % (2 * q + 1))
            stamp(z, q + 2)
        if ffn:
            d = Seg()
            a_setup(d)
            stage_check(d, 0)
            for u in range(OPT['na']):
                aload(d, u)
            for u in range(8, 8 + OPT['nb']):
                dma_b2(d, u)
            epi(z, 2, d, handoff=True, hi=1.0)
            barrier(z, None, 'e6')
            z('s_branch L_p2f')
        else:
            d = Seg()
            touch_wo(d, V_XA)
            epi(z, 2, d, nxt=3)
            barrier(z)
            stamp(z, 5)
            gemm(z, 3)
            barrier(z)
            epi(z, 3)
            stamp(z, 6)
        return z

    return s, stream(0), stream(1)


def q_fetch(s):
    T, RAW = V_T, V_X
    s('s_lshl2_add_u32 s%d, s%d, s%d' % (S_T0, S_HALF, S_RW))
    s('s_lshl_b32 s%d, s%d, 8' % (S_PL, S_T0))
    s('s_add_u32 s%d, s%d, 0x%x' % (S_PL, S_PL, FKV_OFF))
    s('s_lshl_b32 s%d, s%d, 13' % (S_T0, S_T0))
    s('s_add_u32 s%d, s%d, 0x%x' % (S_T0, S_T0, KV_OFF))
    s('s_add_u32 s%d, s%d, 4096' % (S_T3, S_T0))
    s('v_cmp_gt_u32 vcc, 32, v%d' % V_L16)
    s('v_lshlrev_b32 v%d, 3, v%d' % (V_PL, V_L16))
    s('v_cndmask_b32 v%d, v%d, v%d, vcc' % (V_PL, V_FLO, V_PL))
    s('v_lshrrev_b32 v%d, 2, v%d' % (T, V_L16))
    s('s_lshl1_add_u32 s%d, s%d, %d' % (S_T1, S_M0W, R2))
    s('v_add_u32 v%d, s%d, v%d' % (T + 1, S_T1, V_L16))
    s('s_barrier')
    stamp(s, 6)
    j = nspin[0]
    nspin[0] += 1
    s('L_qs%d:' % j)
    s('v_mov_b32 v%d, 0' % V_POLL)
    s('buffer_atomic_add v%d, v%d, %s, s%d offen sc0 sc1' % (V_POLL, V_PL, sr(SWS, 4), S_PL))
    s('s_add_u32 s%d, s%d, 1' % (S_SPIN, S_SPIN))
    s('s_cmp_gt_u32 s%d, 0x%x' % (S_SPIN, SPIN_LIMIT))
    s.wait(vm='all')
    s('s_cbranch_scc1 L_qz%d' % j)
    s('v_cmp_le_u32 vcc, 16, v%d' % V_POLL)
    s('s_andn2_b32 s%d, 3, vcc_lo' % S_T2)
    s('s_cbranch_scc1 L_qs%d' % j)
    s('L_qz%d:' % j)
    stamp(s, 7)
    for r in range(32):
        s('buffer_load_dword v%d, v%d, %s, s%d offen offset:%d sc1' % (RAW + r, T, sr(SWS, 4), S_T3 if r >= 16 else S_T0, (r & 15) * 256), ('kv', r >> 3))
    for f in range(4):
        s.wait(vm=[('kv', f)])
        for k in range(4):
            s('v_cvt_pk_bf16_f32 v%d, v%d, v%d' % (RAW + 8 * f + k, RAW + 8 * f + 2 * k, RAW + 8 * f + 2 * k + 1))
        s('ds_write_b128 v%d, %s offset:%d' % (T + 1, vr(RAW + 8 * f, 4), f * 1024))


def q_out():
    s, T = Seg('qo'), V_T
    NUM, KF, RAW = V_X, V_X + 64, V_X + 96
    s('L_qo:')
    s('s_lshl_b32 s%d, s%d, 11' % (S_T1, S_G))
    s('s_add_u32 s%d, s%d, %d' % (S_T1, S_T1, R2))
    s('v_add_u32 v%d, s%d, v%d' % (T + 2, S_T1, V_L16))
    barrier(s)
    stamp(s, 8)
    for q in range(4):
        for f in range(2):
            s('ds_read_b128 %s, v%d offset:%d' % (vr(KF + 8 * q + 4 * f, 4), T + 2, q * 4096 + f * 1024), ('kf', q, f))
    def num(q):
        z = Seg()
        for f in range(2):
            z.wait(lgkm=[('kf', q, f)])
            z('v_mfma_f32_32x32x16_bf16 %s, %s, %s, %s' % (vr(NUM + 16 * q, 16), vr(KF + 8 * q + 4 * f, 4), vr(V_PQ + 8 * q + 4 * f, 4), vr(NUM + 16 * q, 16) if f else '0'))
        return z

    s.extend(num(0) + num(1))
    for q in range(4):
        n = NUM + 16 * q
        s('v_add_f32 v%d, s%d, v%d' % (T + 4, S_EPS, n + 12))
        s('v_add_f32 v%d, s%d, v%d' % (T + 5, S_EPS, n + 12))
        s('v_permlane32_swap_b32 v%d, v%d' % (T + 4, T + 5))
        s('v_rcp_f32 v%d, v%d' % (T + 5, T + 5))
        s('v_cndmask_b32 v%d, v%d, 0, %s' % (T + 4, T + 5, sr(S_HI, 2)))
        for f in range(2):
            for k in range(8 * f, 8 * f + 8, 2):
                sel = 0 if k >= 12 else 1
                s('v_pk_mul_f32 %s, %s, %s op_sel:[0,%d] op_sel_hi:[1,%d]' % (vr(n + k, 2), vr(n + k, 2), vr(T + 4, 2), sel, sel))
            for k in range(4):
                s('v_cvt_pk_bf16_f32 v%d, v%d, v%d' % (n + 8 * f + k, n + 8 * f + 2 * k, n + 8 * f + 2 * k + 1))
            if f == 1 and q < 2:
                s.extend(num(q + 2))
            s('buffer_store_dwordx4 %s, v%d, %s, s%d offen offset:%d sc1' % (vr(n + 8 * f, 4), V_L16, sr(SWS, 4), S_H, f * 1024))
        s('s_add_u32 s%d, s%d, 4096' % (S_H, S_H))
    stamp(s, 9)
    if OPT['opriv']:
        s('s_lshl1_add_u32 s%d, s%d, s%d' % (S_T0, S_RB, S_HALF))
        s('s_lshl_b32 s%d, s%d, 11' % (S_T0, S_T0))
        s('s_lshl_b32 s%d, s%d, 28' % (S_T1, S_WV))
        s('s_add_u32 s%d, s%d, s%d' % (S_T0, S_T0, S_T1))
        s('s_add_u32 s%d, s%d, 0x%x' % (S_T0, S_T0, FO_OFF))
        s('v_cmp_gt_u32 vcc, 0x100, v%d' % V_L16)
        s('v_lshlrev_b32 v%d, 3, v%d' % (T, V_L16))
        s('v_cndmask_b32 v%d, v%d, v%d, vcc' % (T, V_FLO, T))
        barrier(s, 'all')
        s('buffer_store_dword v%d, v%d, %s, s%d offen sc1' % (V_ONE, T, sr(SWS, 4), S_T0))
    else:
        barrier(s, 'all')
        flag(s, 768)
        flag(s, 768 + FL_G)
    s('s_branch L_fin')
    return s


def kv_role():
    s, T = Seg('kv'), V_T
    RING[0] = 11
    s('L_kv:')
    if OPT['twat'] < -1:
        touch_w(s, False, V_EXW)
    s('s_mul_i32 s%d, s%d, 3' % (S_P, S_HALF))
    s('s_add_u32 s%d, s%d, s%d' % (S_P, S_P, S_ROLE))
    s('s_sub_u32 s%d, s%d, 4' % (S_P, S_P))

    def item(t, n):
        if n >= 14:
            if n == 14:
                t('v_add_u32 v%d, %d, v%d' % (V_W, XS, V_W))
                t('v_add_u32 v%d, %d, v%d' % (V_WB, XS, V_WB))
            dma_w(t, S_M0X, n - 14, kv_slot(n), ('i', n))
        elif n & 1:
            dma_w(t, S_M0X, n >> 1, kv_slot(n), ('i', n))
        else:
            dma_x(t, n >> 1, kv_slot(n), ('i', n))

    s('s_lshl_b32 s%d, s%d, 2' % (S_T1, S_P))
    s('s_lshr_b32 s%d, 0xdb9630, s%d' % (S_LAST, S_T1))
    s('s_and_b32 s%d, s%d, 15' % (S_LAST, S_LAST))
    s('s_lshr_b32 s%d, 0x322333, s%d' % (S_PEND, S_T1))
    s('s_and_b32 s%d, s%d, 15' % (S_PEND, S_PEND))
    s('s_add_u32 s%d, s%d, s%d' % (S_T1, S_LAST, S_G))
    s('s_mul_i32 s%d, s%d, 56' % (S_T1, S_T1))
    s('s_lshl_b32 s%d, s%d, 7' % (S_T0, S_P))
    s('s_sub_u32 s%d, s%d, s%d' % (S_T1, S_T1, S_T0))
    s('s_add_u32 s%d, s%d, 1' % (S_T0, S_G))
    s('s_cmp_lt_u32 s%d, s%d' % (S_T0, S_PEND))
    s('s_cselect_b32 s%d, 56, 0' % S_T0)
    s('v_min_u32 v%d, 6, v%d' % (T + 14, T + 14))
    s('v_lshl_add_u32 v%d, v%d, 3, s%d' % (T + 5, T + 14, S_T1))
    s('v_lshlrev_b32 v%d, 6, v%d' % (T + 6, T + 10))
    for t in range(2):
        if t:
            s('v_add_u32 v%d, s%d, v%d' % (T + 5, S_T0, T + 5))
        s('v_xor_b32 v%d, v%d, v%d' % (T + 11, T + 5, T + 6))
        s('v_lshl_add_u32 v%d, v%d, 8, v%d' % (V_WA + 4 * t, T + 12, T + 11))
        for j in range(1, 4):
            s('v_xor_b32 v%d, %d, v%d' % (V_WA + 4 * t + j, j << 12, V_WA + 4 * t))
    srd(s, SWS, WS_BYTES)
    srd(s, SDBG, 256)
    item(s, 2)
    item(s, 3)
    estamp(s, 't1')
    s.extend(deferred(True))
    s('s_lshl1_add_u32 s%d, s%d, s%d' % (S_H, S_RB, S_HALF))
    s('s_lshl3_add_u32 s%d, s%d, s%d' % (S_H, S_H, S_RW))
    s('s_lshl_b32 s%d, s%d, 7' % (S_H, S_H))
    s('s_add_u32 s%d, s%d, 0x%x' % (S_H, S_H, ST_OFF))
    s('v_lshlrev_b32 v%d, 2, v%d' % (V_ST + 1, T + 8))
    s('s_lshl_b32 s%d, s%d, 7' % (S_T0, S_RW))
    s('s_add_u32 s%d, s%d, %d' % (S_T0, S_T0, M_R))
    s('v_lshl_add_u32 v%d, v%d, 4, s%d' % (V_RA, T + 9, S_T0))
    s('v_add_u32 v%d, s%d, v%d' % (V_ST + 2, S_T0, V_ST + 1))
    s('v_mov_b32 v%d, %d' % (T + 5, M_SY + 128))
    s('v_cndmask_b32 v%d, v%d, v%d, %s' % (V_ST + 3, V_RA, T + 5, sr(S_PAD, 2)))
    s('v_mov_b32 v%d, 0' % (V_EXR + 1))
    s('s_waitcnt lgkmcnt(0)')
    if OPT['tat'] < -1:
        touch_w2(s)
    s('s_cmp_eq_u32 s%d, 1' % S_G)
    s('s_cbranch_scc1 L_kb')

    def body(g):
        b = Seg('kb' if g else 'ka')
        if g:
            b('L_kb:')
        xa = Rebase([V_XA + j for j in range(4)], 0, 0)
        wa = [Rebase([V_WA + 4 * t + j for j in range(4)], 0, 1024) for t in range(2)]
        TS = [[0, 1], [1]] if g else [[0], [0, 1]]
        PK1 = V_X + 48

        def witem(q, c):
            return 2 * c + 1 if q == 0 else 14 + c

        def wf(t, j):
            return (V_ACC + 48 if t != g else V_WF) + 4 * j

        def acc(q, t):
            return V_ACC + 16 * (q + t)

        def wread(z, q, c, j, t):
            o = wa[t].off(z, kv_slot(witem(q, c)))
            for u in range(2):
                z('ds_read_b64_tr_b16 %s, v%d offset:%d' % (vr(wf(t, j) + 2 * u, 2), V_WA + 4 * t + j, o + u * 1024), ('w', q, c, j, t))

        def xread(z, c, j):
            o = xa.off(z, kv_slot(2 * c))
            z('ds_read_b128 %s, v%d offset:%d' % (vr(xreg(c, j), 4), V_XA + j, o))

        def kstep(q, c, j):
            out = []
            first = c == 0 and j == 0
            for t in TS[q]:
                z = Seg()
                z.wait(lgkm=[('w', q, c, j, t), ('w', q, c, j, TS[q][-1]) if len(TS[q]) > 1 else ('w', q, c, j | 1, t)] if OPT['wj'] else [('w', q, c, j, t)])
                z('v_mfma_f32_32x32x16_bf16 %s, %s, %s, %s' % (vr(acc(q, t), 16), vr(xreg(c, j), 4), vr(wf(t, j), 4), '0' if first else vr(acc(q, t), 16)))
                if j == 0:
                    z('v_mfma_f32_16x16x32_bf16 %s, %s, %s, %s' % (vr(V_CS + 4 * t, 4), vr(V_SEL, 4), vr(wf(t, j), 4), '0' if first else vr(V_CS + 4 * t, 4)))
                if c < 6:
                    wread(z, q, c + 1, j, t)
                    if q == 0 and t == TS[q][-1]:
                        xread(z, c + 1, j)
                elif q == 0 and not g:
                    wread(z, 1, 0, j, 0)
                if c == 6 and j == 2 and t == TS[q][-1]:
                    for tt in TS[q]:
                        z('ds_write_b32 v%d, v%d offset:%d' % (V_CSW, V_CS + 4 * tt, q * 1536 + (g + tt) * 512))
                out.append(z)
            return out

        def ext(q, t, k):
            return ext_parts(acc(q, t), q * 1536 + (g + t) * 512, (V_EXW, V_EXW + 2, V_CS)[k], True, T=V_T + 4 + 4 * k)

        def rload(z, dst, key, addr=V_RA):
            for i in range(4):
                z('ds_read_b128 %s, v%d offset:%d' % (vr(dst + 4 * i, 4), addr, i * 32), key)

        def stat_load(z):
            z('buffer_load_dword v%d, v%d, %s, s%d offen sc1' % (V_ST, V_ST + 1, sr(SWS, 4), S_H), 'stat')

        def stat_use(z):
            z('v_and_b32 v%d, 0xffff, v%d' % (T, V_ST))
            z('v_lshl_or_b32 v%d, v%d, 16, v%d' % (T, V_ST, T))
            z('v_cndmask_b32 v%d, v%d, 0, %s' % (V_EXR, T, sr(S_HI, 2)))

        def phi_k(t, rb):
            e = Seg()
            for i in range(4):
                a = [acc(0, t) + 4 * i + k for k in range(4)]
                for k in range(4):
                    e('v_fma_f32 v%d, v%d, v%d, s%d' % (a[k], a[k], rb + 4 * i + k, S_EPS))
                for k in range(4):
                    e('v_mul_f32 v%d, s%d, v%d' % (T + k, S_L2E, a[k]))
                for k in range(4):
                    e('v_exp_f32_e64 v%d, v%d clamp' % (T + k, T + k))
                for k in range(4):
                    e('v_max_f32 v%d, s%d, v%d' % (a[k], S_EPS, a[k]))
                for k in range(4):
                    e('v_add_f32 v%d, v%d, v%d' % (a[k], a[k], T + k))
                e('v_cvt_pk_bf16_f32 v%d, v%d, v%d' % (acc(0, t) + 2 * i, a[0], a[1]))
                e('v_cvt_pk_bf16_f32 v%d, v%d, v%d' % (acc(0, t) + 2 * i + 1, a[2], a[3]))
            return e

        def hand_addr(z):
            z('s_mul_i32 s%d, s%d, 10240' % (S_T0, S_RW))
            z('s_add_u32 s%d, s%d, %d' % (S_T0, S_T0, R2 + 8192))
            z('v_add_u32 v%d, s%d, v%d' % (V_XA, S_T0, V_L16))

        def prod_setup(z, rb):
            rload(z, rb, 'r2', V_ST + 3)
            z('v_cndmask_b32 v%d, 0, 1.0, %s' % (V_XA + 1, sr(S_PAD, 2)))
            z('s_lshl_b32 s%d, s%d, 12' % (S_T0, S_RW))
            z('s_add_u32 s%d, s%d, %d' % (S_T0, S_T0, HND))
            z('v_add_u32 v%d, s%d, v%d' % (V_XA + 2, S_T0, V_L16))

        def kv_prod(z, t, pk, rb):
            z.wait(lgkm='r2')
            v, d = acc(1, t), V_X + 16 * t
            for f in range(2):
                for k in range(8 * f, 8 * f + 8):
                    z('v_fma_f32 v%d, v%d, v%d, v%d' % (v + k, v + k, rb + k, V_XA + 1))
                for k in range(4):
                    z('v_cvt_pk_bf16_f32 v%d, v%d, v%d' % (v + 8 * f + k, v + 8 * f + 2 * k, v + 8 * f + 2 * k + 1))
            z('s_setprio 2')
            for f in range(2):
                z('v_mfma_f32_32x32x16_bf16 %s, %s, %s, %s' % (vr(d, 16), vr(pk + 4 * f, 4), vr(v + 8 * f, 4), vr(d, 16) if f else '0'))

        def part_write(z, t):
            for i in range(4):
                z('ds_write_b128 v%d, %s offset:%d' % (V_XA + 2, vr(V_X + 16 * t + 4 * i, 4), (1, 0, 2)[g + t] * 16384 + i * 1024))

        if not g:
            b('s_setprio 1')
        for c in range(-1, 7):
            barrier(b, 't0' if c < 0 else [('i', 2 * c + 3 if c < 6 else 14)], 's%d' % c if c >= 0 else 'pre')
            if c < 0:
                stamp(b, 1)
            d = Seg()
            if c == min(OPT['tat'], 2):
                touch_w2(d)
            if g and c == 3:
                f0_load(d)
            if g and c == 5:
                f0_check(d)
            item(d, 2 * c + 6)
            if c == 4:
                p2_setup(d)
            if c < 6:
                item(d, 2 * c + 7)
            if c == OPT['twat'] and not OPT['touch'] & 64:
                touch_w(d, False, V_EXW)
            if c == 6:
                if g:
                    stat_load(d)
                else:
                    for j in range(4):
                        wread(d, 1, 0, j, 1)
            if not g and c >= 0:
                b.extend(d)
            for j in range(4):
                if c >= 0:
                    for z in kstep(0, c, j):
                        b.extend(z)
                else:
                    for t in TS[0]:
                        wread(b, 0, 0, j, t)
                    xread(b, 0, j)
            if g or c < 0:
                b.extend(d)
        barrier(b, [('i', 16)], 's7')
        stamp(b, 2)

        if g:
            RB = V_ACC + 48
            parts = [ext(0, t, t) for t in range(2)]
            for p in parts:
                b.extend(p[0])
            item(b, 19)
            for p in parts:
                b.extend(p[1])
            item(b, 20)
            touch_l2(b, 0, V_W)
            hand_addr(b)
            b.wait(vm='stat')
            spin_check(b, V_ST, V_ONE, V_ST + 1, SWS, 's%d' % S_H, 0xffffffff)
            stat_use(b)
            b('v_and_b32 v%d, 0xffff0000, v%d' % (T + 1, V_ST))
            b('v_rcp_f32 v%d, v%d' % (T + 1, T + 1))
            b('s_setprio 2')
            for p in parts:
                b.extend(p[2])
            b('s_setprio 0')
            b('ds_write_b32 v%d, v%d' % (V_ST + 2, T + 1))
            rload(b, RB, 'r')
            if OPT['tkat'] == 0:
                touch_kv(b)
            e = Seg()
            e.wait(lgkm='r')
            e.extend(phi_k(0, RB))
            for f in range(2):
                e('ds_write_b128 v%d, %s offset:%d' % (V_XA, vr(acc(0, 0) + 4 * f, 4), f * 1024))
            d = Seg()
            if OPT['tkat'] == 1:
                touch_kv(d)
            touch_l2(d, 1, V_WB)
            if not OPT['kpa']:
                for u in range(OPT['kpf']):
                    dma_b2(d, u)
            r = Seg()
            for j in range(4):
                wread(r, 1, 0, j, 1)
            e.extend(mix(mix(phi_k(1, RB), [[i] for i in r]), groups(d), 0.3, 1.0))
            k0, k1 = OPT['kb0'], OPT['kb1']
            b.extend(e[:k0])
            barrier(b, [('i', 18)], 'v0')
            b.extend(e[k0:k1])
            barrier(b, [('i', 20)], 'v1')
            b.extend(e[k1:])
            prod_setup(b, RB)
            barrier(b, None, 'v2')
            stamp(b, 3)
            b('s_setprio 1')
            d = Seg()
            slots = [kstep(1, c, j)[0] for c in range(7) for j in range(4)]
            pre = Seg()
            barrier(pre, None, 'v4')
            slots[4 * OPT['kv4']][:0] = pre
            for u in range(4, 4 + OPT['kub']):
                dma_b2(d, u)
            for k, gi in enumerate(groups(d)):
                slots[min(4 * OPT['kv4'] + 3 + 2 * k, 27)].extend(gi)
            for z in slots:
                b.extend(z)
            barrier(b, None, 'v3')
            b('s_setprio 2')
            b.extend(head([ext(1, 1, 0)]))
            poll_early(b)
            kv_prod(b, 1, acc(0, 1), RB)
            a_setup(b)
            part_write(b, 1)
            barrier(b, None, 'kk')
            stamp(b, 4)
            b('s_branch L_p2k')
            return b
        pf = []
        for c in range(7):
            if c in (2, 4):
                barrier(b, [('i', 16 + c)], 'v%d' % (c // 2 - 1))
            for j in range(4):
                for z in kstep(1, c, j):
                    b.extend(z)
                if c < 2:
                    if j == 1:
                        d = Seg()
                        item(d, 19 + c)
                        d = groups(d)
                    if j in (1, 2):
                        b.extend(d[j - 1])
                if OPT['kpa'] and c == 2 and j == 0:
                    pf = Seg()
                    for u in range(OPT['kpf']):
                        dma_b2(pf, u)
                    pf = groups(pf)
                if OPT['kpa'] and pf and ((c >= 3 and j & 1) if OPT['kpa'] == 1 else c >= 5):
                    b.extend(pf.pop(0))
                if c == 2 and j == 1:
                    stat_load(b)
                if c == 5 and j == 1:
                    hand_addr(b)
                if c == 5 and j == 3:
                    b.wait(vm='stat')
                    stat_use(b)
        barrier(b, None, 'v2')
        stamp(b, 3)
        b('s_setprio %d' % OPT['khead'])
        b('v_mov_b32 v%d, 0' % (V_CS + 1))
        RB, RP = V_X + 64, V_WF
        e = head([ext(1, 1, 0), ext(0, 0, 1), ext(1, 0, 2)])
        z = Seg()
        prod_setup(z, RP)
        for f in range(2):
            z('ds_read_b128 %s, v%d offset:%d' % (vr(PK1 + 4 * f, 4), V_XA, f * 1024), 'r2')
        rload(z, RB, 'r')
        b.extend(e[:3] + list(z) + e[3:-3])
        b('s_setprio 2')
        b.extend(e[-3:])
        b('s_setprio 0')
        touch_l2(b, 2, V_W)
        z = Seg()
        z('s_lshl_b32 s%d, s%d, 10' % (S_T1, S_RW))
        z('s_add_u32 s%d, s%d, %d' % (S_T1, S_T1, HND))
        z('v_add_u32 v%d, s%d, v%d' % (V_SEL + 2, S_T1, V_L16))
        z('s_cmp_eq_u32 s%d, 3' % S_RW)
        z('s_cselect_b64 vcc, %s, 0' % sr(S_HI, 2))
        z('v_lshrrev_b32 v%d, 2, v%d' % (V_SEL + 3, V_L16))
        z('v_cndmask_b32 v%d, v%d, v%d, vcc' % (V_SEL + 3, V_SEL + 3, V_FLO))
        z('s_lshl2_add_u32 s%d, s%d, s%d' % (S_H, S_LAST, S_RW))
        z('s_lshl_b32 s%d, s%d, 10' % (S_H, S_H))
        z('s_add_u32 s%d, s%d, 0x%x' % (S_H, S_H, KV_OFF))
        kv_prod(z, 1, PK1, RP)
        z('s_setprio 0')
        z.wait(lgkm='r')
        e = phi_k(0, RB)
        z.extend(e[:OPT['kearly']])
        barrier(z, None, 'v4')
        w, d = Seg(), Seg()
        part_write(w, 1)
        for u in range(4 + OPT['kub'], 4 + OPT['kub'] + OPT['kua']):
            dma_b2(d, u)
        z.extend(mix(e[OPT['kearly']:], [[i] for i in w] + groups(d)))
        k = len(z) + OPT['kcut']
        kv_prod(z, 0, acc(0, 0), RP)
        b.extend(z[:k])
        barrier(b, None, 'v3')
        b.extend(z[k:])
        b('s_add_u32 s%d, s%d, 4096' % (S_P, S_H))
        b('s_add_u32 s%d, s%d, 8192' % (S_HALF, S_H))
        b('s_cmp_eq_u32 s%d, 3' % S_PEND)
        b('s_cselect_b32 s%d, s%d, 0x%x' % (S_HALF, S_HALF, OOB))
        part_write(b, 0)
        barrier(b, 'all', 'kk')
        stamp(b, 4)
        R = V_X + 32
        for h in range(3):
            for p in range(4):
                b('ds_read_b128 %s, v%d offset:%d' % (vr(R + 16 * h + 4 * p, 4), V_SEL + 2, (1, 0, 2)[h] * 16384 + p * 4096), ('red', h))
        for h in range(3):
            r = R + 16 * h
            b.wait(lgkm=[('red', h)])
            for k in (0, 2):
                b('v_pk_add_f32 %s, %s, %s' % (vr(r + k, 2), vr(r + k, 2), vr(r + 4 + k, 2)))
                b('v_pk_add_f32 %s, %s, %s' % (vr(r + 8 + k, 2), vr(r + 8 + k, 2), vr(r + 12 + k, 2)))
                b('v_pk_add_f32 %s, %s, %s' % (vr(r + k, 2), vr(r + k, 2), vr(r + 8 + k, 2)))
            for k in range(4):
                b('buffer_atomic_add_f32 v%d, v%d, %s, s%d offen offset:%d sc1' % (r + k, V_SEL + 3, sr(SWS, 4), (S_H, S_P, S_HALF)[h], k * 256), 'atom')
        stamp(b, 5)
        b('s_lshl_b32 s%d, s%d, 7' % (S_FL, S_LAST))
        b('s_lshl_b32 s%d, s%d, 28' % (S_T1, S_RW))
        b('s_add_u32 s%d, s%d, s%d' % (S_FL, S_FL, S_T1))
        b('s_add_u32 s%d, s%d, 0x%x' % (S_FL, S_FL, FKV_OFF))
        b('s_lshl_b32 s%d, s%d, 4' % (S_T1, S_PEND))
        b('v_cmp_gt_u32 vcc, s%d, v%d' % (S_T1, V_L16))
        b('v_lshlrev_b32 v%d, 3, v%d' % (V_PL, V_L16))
        b('v_cndmask_b32 v%d, v%d, v%d, vcc' % (V_PL, V_FLO, V_PL))
        b.wait(vm='atom')
        sync_arrive(b, 0)
        sync_wait(b, 0, 4, T)
        stamp(b, 6)
        b('buffer_atomic_add v%d, v%d, %s, s%d offen sc1' % (V_ONE, V_PL, sr(SWS, 4), S_FL))
        b('s_branch L_p2a')
        return b

    return s, body(0), body(1)


V_OUT, V_RD, V_U = 8, 9, 40


def res_load(R):
    s, T = Seg(), R + 8
    s('s_lshl_b32 s%d, s%d, 7' % (S_T0, S_ROLE))
    s('v_lshrrev_b32 v%d, 3, v0' % (T + 1))
    s('v_and_b32 v%d, 0x70, v%d' % (T + 2, V_L16))
    s('v_mul_u32_u24 v%d, %d, v%d' % (V_OUT, XS, T + 1))
    s('v_add_u32 v%d, v%d, v%d' % (V_OUT, V_OUT, T + 2))
    s('buffer_load_dwordx4 %s, v%d, %s, s%d offen' % (vr(R, 4), V_OUT, sr(SX, 4), S_OUTO), 'res')
    s('buffer_load_dwordx4 %s, v%d, %s, s%d offen' % (vr(R + 4, 4), T + 2, sr(SB2, 4), S_T0), 'res')
    return s


def frag_addr(s, T):
    s('v_lshrrev_b32 v%d, 4, v%d' % (T, V_L16))
    s('v_bfe_u32 v%d, v%d, 2, 2' % (T + 1, T))
    s('v_and_b32 v%d, 3, v%d' % (T + 2, T))
    s('v_bfe_u32 v%d, v%d, 4, 1' % (T + 3, T))
    s('v_lshl_add_u32 v%d, v%d, 2, v%d' % (T + 2, T + 3, T + 2))
    s('v_lshrrev_b32 v%d, 1, v%d' % (T + 3, T + 1))
    s('v_lshlrev_b32 v%d, 6, v%d' % (T + 3, T + 3))
    s('v_lshl_add_u32 v%d, v%d, 3, v%d' % (T + 2, T + 2, T + 3))
    s('v_lshl_add_u32 v%d, v%d, 7, v%d' % (T + 2, T + 1, T + 2))
    s('v_lshrrev_b32 v%d, 5, v%d' % (T + 3, T))
    s('v_lshl_add_u32 v%d, v%d, 9, v%d' % (T + 3, T + 3, T + 2))


def bf(par, ct):
    return V_BF + 8 * par + 4 * ct


def acc2(ct, rg):
    return V_ACC + 32 * ct + 16 * rg


def part_addr(g):
    z, T = Seg(), V_NUM
    z('v_bfe_u32 v%d, v%d, 4, 5' % (T, V_L16))
    z('v_and_b32 v%d, 7, v%d' % (T + 1, T))
    z('v_bfe_u32 v%d, v%d, 1, 1' % (T + 2, T))
    z('v_lshrrev_b32 v%d, 9, v%d' % (T + 3, V_L16))
    z('v_xor_b32 v%d, v%d, v%d' % (T + 2, T + 2, T + 3))
    z('v_lshl_add_u32 v%d, v%d, 3, v%d' % (T + 1, T + 2, T + 1))
    z('v_lshlrev_b32 v%d, 4, v%d' % (T + 1, T + 1))
    z('v_lshl_add_u32 v%d, v%d, 8, v%d' % (T + 1, T, T + 1))
    z('v_add_u32 v%d, s%d, v%d' % (T + 8, S_QR0, T + 1))
    if g:
        z('v_add_u32 v%d, s%d, v%d' % (T + 16, S_QR2, T + 1))
    else:
        z('v_add_u32 v%d, 8192, v%d' % (T + 16, T + 8))
    for rg in range(2):
        for k in range(1, 8):
            z('v_xor_b32 v%d, %d, v%d' % (T + 8 + 8 * rg + k, k << 4, T + 8 + 8 * rg))
    return z


def read_addr(g, R):
    z, T = Seg(), R + 8
    z('v_and_b32 v%d, 31, v%d' % (T + 1, T + 1))
    z('v_and_b32 v%d, 7, v%d' % (T + 3, T + 1))
    z('v_bfe_u32 v%d, v%d, 1, 1' % (T + 4, T + 1))
    z('v_lshl_add_u32 v%d, v%d, 3, v%d' % (T + 3, T + 4, T + 3))
    z('v_lshlrev_b32 v%d, 4, v%d' % (T + 3, T + 3))
    z('v_xor_b32 v%d, v%d, v%d' % (T + 3, T + 3, T + 2))
    z('v_lshl_add_u32 v%d, v%d, 8, v%d' % (V_RD, T + 1, T + 3))
    if g:
        z('v_add_u32 v%d, %d, v%d' % (V_RD, R2, V_RD))
    z('v_xor_b32 v%d, 128, v%d' % (V_RD + 1, V_RD))
    return z


def res_unpack(R):
    z, U = Seg(), V_U
    z.wait(vm='res')
    for k in range(4):
        z('v_lshlrev_b32 v%d, 16, v%d' % (U + 2 * k, R + k))
        z('v_and_b32 v%d, 0xffff0000, v%d' % (U + 2 * k + 1, R + k))
        z('v_lshlrev_b32 v%d, 16, v%d' % (R + k, R + 4 + k))
        z('v_and_b32 v%d, 0xffff0000, v%d' % (R + 4 + k, R + 4 + k))
        z('v_add_f32 v%d, v%d, v%d' % (U + 2 * k, U + 2 * k, R + k))
        z('v_add_f32 v%d, v%d, v%d' % (U + 2 * k + 1, U + 2 * k + 1, R + 4 + k))
    return z


def acc_major(s, units, wreg, areg, wtag, atag, fresh, fill=()):
    slots, order = [], [(0, 0), (1, 0), (0, 1), (1, 1)]
    for ct, rg in order:
        for k, u in enumerate(units):
            z = Seg()
            z.wait(vm=[atag(u, rg)], lgkm=[wtag(u, ct)])
            z('v_mfma_f32_32x32x16_bf16 %s, %s, %s, %s' % (vr(acc2(ct, rg), 16), vr(wreg(u, ct), 4), vr(areg(u, rg), 4), '0' if fresh and k == 0 else vr(acc2(ct, rg), 16)))
            slots.append(z)
    n = len(units)
    for k, gi in enumerate(fill):
        slots[k].extend(gi)
    wr = [Ins('ds_write_b128 v%d, %s' % (V_NUM + 8 + 8 * rg + 4 * ct + i, vr(acc2(ct, rg) + 4 * i, 4))) for ct, rg in order for i in range(4)]
    first = 2 * n - 1
    for k in range(8):
        slots[first + k * (2 * n + 1) // 8].append(wr[k])
    for z in slots:
        s.extend(z)
    s.extend(wr[8:])


def final(g):
    s = Seg('final%d' % g)
    D, U = V_AB, V_U
    stamp(s, 8)
    barrier(s)
    stamp(s, 9)
    for w in range(4):
        for h in range(2):
            s('ds_read_b128 %s, v%d offset:%d' % (vr(D + 8 * w + 4 * h, 4), V_RD + h, w * (10240 if g else 12288)), ('fin', w))
    for w in range(4):
        s.wait(lgkm=[('fin', w)])
        for k in range(4):
            s('v_pk_add_f32 %s, %s, %s' % (vr(U + 2 * k, 2), vr(U + 2 * k, 2), vr(D + 8 * w + 2 * k, 2)))
    for k in range(4):
        s('v_cvt_pk_bf16_f32 v%d, v%d, v%d' % (U + k, U + 2 * k, U + 2 * k + 1))
    s('buffer_store_dwordx4 %s, v%d, %s, s%d offen' % (vr(U, 4), V_OUT, sr(SOUT, 4), S_OUTO) + ['', ' sc1', ' nt', ' sc0 sc1'][OPT['osc']])
    return s


def phase2b(nm, na, bdone):
    s, T = Seg('p2' + nm), V_NUM
    RING[0] = 14 if nm == 'f' else 11
    UW = 10
    s('L_p2%s:' % nm)
    stamp(s, 5)
    s('s_setprio 1')
    V_PW, V_PX, RES = 11, 14, V_AB + 48
    SO = [S_KW + 1 + u if u < 6 else S_HI + u - 6 for u in range(8)]
    pend = [v for v in range(36) if v not in bdone]
    first = [v for v in pend if v < OPT['b0' if nm == 'k' else 'b0f']]
    pend = pend[len(first):]
    BS = {}
    for u in range(28):
        n = 1 if u + DEP - 1 < 28 else 2
        BS[u] = [v for v in pend[:n] if v - RING[0] + 1 <= u]
        pend = pend[len(BS[u]):]
    assert not pend

    def oloads():
        z = Seg()
        for rg in range(2):
            for u in range(8):
                z('buffer_load_dwordx4 %s, v%d, %s, s%d offen sc1' % (vr(abuf(28 + u, rg), 4), V_L16B if rg else V_L16, sr(SWS, 4), SO[u]), ('o', 28 + u, rg))
        return list(z)

    def word_check(z, u, n, hit=None):
        z.wait(lgkm=[('pw', u)])
        z('v_readfirstlane_b32 s%d, v%d' % (S_T2, V_PW))
        z('s_cmp_lt_u32 s%d, %d' % (S_T2, n))
        if hit:
            z('s_cbranch_scc0 %s' % hit)
            return
        j = nspin[0]
        nspin[0] += 1
        z('s_cbranch_scc1 L_slow%d' % j)
        z('L_ret%d:' % j)
        slow('L_slow%d:' % j)
        slow('s_add_u32 s%d, s%d, 1' % (S_SPIN, S_SPIN))
        slow('s_cmp_gt_u32 s%d, 0x%x' % (S_SPIN, SPIN_LIMIT << 3))
        slow('s_cbranch_scc1 L_ret%d' % j)
        slow('ds_read_b32 v%d, v%d' % (V_PW, V_PX))
        slow('s_waitcnt lgkmcnt(0)')
        slow('v_readfirstlane_b32 s%d, v%d' % (S_T2, V_PW))
        slow('s_nop 0')
        slow('s_cmp_lt_u32 s%d, %d' % (S_T2, n))
        slow('s_cbranch_scc1 L_slow%d' % j)
        slow('s_branch L_ret%d' % j)

    z = Seg()
    if na == 0:
        for v in first[:2]:
            dma_b2(z, v)
        first = first[2:]
        stage_check(z, 0)
    for u in range(na, DEP - 1):
        if u == OPT['p1at']:
            poll_async(z, 1)
        aload(z, u)
        if first:
            dma_b2(z, first.pop(0))
    if na > OPT['p1at']:
        poll_async(z, 1)
    for v in first:
        dma_b2(z, v)
    y = Seg()
    frag_addr(y, T)
    for reg, base in enumerate((S_QR0, S_QR2, S_QR3)[:3 if nm == 'f' else 2]):
        y('v_add_u32 v%d, s%d, v%d' % (BA[2 * reg], base, T + 3))
        y('v_xor_b32 v%d, 64, v%d' % (BA[2 * reg + 1], BA[2 * reg]))
    y('v_subrev_u32 v%d, 16, v%d' % (V_PX, V_PA))
    s.extend(mix(y, groups(z)))

    def wreg(u, ct):
        return bf(u & 1, ct) if u < 28 else V_AB + 32 * (1 - ct) + 4 * (u - 28)

    def bread(u, ct):
        z = Seg()
        _, reg, off = unit_loc(u)
        if not (OPT['x_free'] and u < 11):
            z.wait(vm=[('b', u)])
        for h in range(2):
            z('ds_read_b64_tr_b16 %s, v%d offset:%d' % (vr(wreg(u, ct) + 2 * h, 2), BA[2 * reg + ct], off + h * 1024), ('bf', u, ct))
        return z

    s.extend(bread(0, 0) + bread(0, 1))
    late = Seg()
    for u in range(8):
        late('s_xor_b32 s%d, s%d, %d' % (SO[u], S_RO3, u))
        late('s_lshl_b32 s%d, s%d, 10' % (SO[u], SO[u]))
        late('s_add_u32 s%d, s%d, s%d' % (SO[u], SO[u], S_P))
    late = list(read_addr(1, RES)) + list(part_addr(1)) + list(res_unpack(RES)) + list(late)
    SITES = [23, 25, 27, 28]
    U2 = 17 - DEP

    def unit(s, u, extra, word):
        nxt = u + DEP - 1
        z = Seg()
        if nxt < 28:
            aload(z, nxt)
        for v in BS[u]:
            dma_b2(z, v)
        if u == 4:
            z.extend(res_load(RES))
        now = groups(z) + [[i] for i in extra]
        if 10 <= u < 22:
            k0, k1 = len(late) * (u - 10) // 12, len(late) * (u - 9) // 12
            now += [[i] for i in late[k0:k1]]
        if u < 27:
            rd = [bread(u + 1, 0), bread(u + 1, 1), Seg(), Seg()]
        else:
            rd = [bread(28 + k, 0) for k in range(4)]
        if word:
            rd[2]('ds_read_b32 v%d, v%d' % (V_PW, V_PX), ('pw', u + 1))
        s.wait(vm=[('a', u)])
        stamp(s, 'u%d' % u)
        k = 0
        for ct in range(2):
            s.wait(lgkm=[('bf', u, ct)])
            for rg in ((1, 0) if ct and OPT['gray'] else (0, 1)):
                s('v_mfma_f32_32x32x16_bf16 %s, %s, %s, %s' % (vr(acc2(ct, rg), 16), vr(wreg(u, ct), 4), vr(abuf(u, rg), 4), vr(acc2(ct, rg), 16) if u else '0'))
                s.extend(rd[k])
                for gi in range(len(now) * k // 4, len(now) * (k + 1) // 4):
                    s.extend(now[gi])
                k += 1

    main, alts = [s], []
    for u in range(28):
        if u + DEP - 1 == 8:
            stage_check(s, 1)
            stamp(s, 'c1')
        if u == UW and nm == 'f':
            word_check(s, u, 1)
        if u == U2:
            word_check(s, u, 3)
            stamp(s, 'c2')
        if u in SITES:
            word_check(s, u, 7, hit='L_p2o%s%d' % (nm, u))
            a = Seg('p2o%d' % u)
            a('L_p2o%s%d:' % (nm, u))
            stamp(a, 'c3')
            o = oloads()[:16 - OPT['otail']]
            for v in range(u, 28):
                unit(a, v, o[:OPT['oper']], False)
                o = o[OPT['oper']:]
            a.extend(o)
            a('s_branch L_p2tail%s' % nm)
            alts.append((list(main), a))
            s = Seg('p2m%d' % u)
            main.append(s)
        unit(s, u, [], u + 1 in SITES + [UW, U2])
    word_check(s, 28, 7)
    stamp(s, 'c3')
    s.extend(oloads()[:16 - OPT['otail']])
    t = Seg('p2t')
    t('L_p2tail%s:' % nm)
    stamp(t, 'tl')
    fill = [bread(u, 0) for u in range(32, 36)] + [bread(u, 1) for u in range(28, 36)]
    for k, i in enumerate(oloads()[16 - OPT['otail']:]):
        fill[k] = [i] + list(fill[k])
    acc_major(t, range(28, 36), wreg, abuf, lambda u, ct: ('bf', u, ct), lambda u, rg: ('o', u, rg), False, fill)
    t.extend(final(1))
    t('s_branch L_fin')
    return [m + [a, t] for m, a in alts] + [main + [t]], [a for _, a in alts] + main + [t]


def phase2a():
    s = Seg('p2a')
    s('L_p2a:')
    poll_base(s)
    s('v_mov_b32 v%d, 3' % V_ONE)
    s.extend(res_load(V_BF))
    s.extend(read_addr(0, V_BF))
    stage_check(s, 2, sync=True, scalar=OPT['ascal'])
    sync_arrive(s, 0)
    stamp(s, 'a2')
    s('v_mov_b32 v%d, 7' % V_ONE)
    if OPT['opriv']:
        s('s_and_b32 s%d, s%d, 30' % (S_T0, S_I2))
        s('s_lshr_b32 s%d, s%d, 1' % (S_T1, S_RW))
        s('s_add_u32 s%d, s%d, s%d' % (S_T0, S_T0, S_T1))
        s('s_and_b32 s%d, s%d, 1' % (S_T1, S_I2))
        s('s_lshl1_add_u32 s%d, s%d, s%d' % (S_T0, S_T0, S_T1))
        s('s_lshl3_add_u32 s%d, s%d, s%d' % (S_T0, S_T0, S_ROLE))
        s('s_lshl_b32 s%d, s%d, 7' % (S_T0, S_T0))
        s('s_add_u32 s%d, s%d, 0x%x' % (S_PL, S_T0, FO_OFF - 768))
    stage_check(s, 3, sync=True, scalar=OPT['oscal'])
    sync_arrive(s, 0)
    stamp(s, 7)
    s.wait(lgkm='all')
    s.extend(res_unpack(V_BF))
    s.extend(final(0))
    return s


def fin():
    s = Seg('fin')
    s('L_fin:')
    if OPT['diag']:
        stamp(s, 10)
        s('s_waitcnt lgkmcnt(0)')
        s('v_mov_b32 v4, 0')
        for k in range(11):
            s('v_writelane_b32 v4, s%d, %d' % (S_KA + 2 * k, k))
        s('v_writelane_b32 v4, s%d, 11' % S_SPIN)
        s('s_lshl3_add_u32 s%d, s2, s%d' % (S_T0, S_WV))
        s('s_lshl_b32 s%d, s%d, 8' % (S_T0, S_T0))
        s('s_add_u32 s%d, s%d, 0x%x' % (S_T0, S_T0, TS_OFF))
        s('v_lshrrev_b32 v5, 2, v%d' % V_L16)
        s('buffer_store_dword v4, v5, %s, s%d offen' % (sr(SWS, 4), S_T0))
        if OPT['diag'] == 3:
            s('s_not_b32 s%d, s%d' % (S_T0, S_KA))
            s('v_writelane_b32 v4, s%d, 11' % S_T0)
            s('s_cmp_eq_u32 s%d, 4' % S_WV)
            s('s_cselect_b32 s%d, 16, 0x%x' % (S_T0, OOB))
            s('s_cmp_lt_u32 s%d, 4' % S_ROLE)
            s('s_cselect_b32 s%d, s%d, 0x%x' % (S_T0, S_T0, OOB))
            s('s_mov_b64 exec, 0xfff')
            s('buffer_atomic_umax v4, v5, %s, s%d offen sc1' % (sr(SDBG, 4), S_T0))
    if OPT['diag'] == 6:
        s('s_cmp_lg_u32 s%d, 4' % S_WV)
        s('s_cbranch_scc1 L_end')
        s('s_mov_b64 exec, 1')
        s('s_getreg_b32 s%d, hwreg(HW_REG_XCC_ID, 0, 4)' % S_T0)
        s('s_sub_u32 s%d, s%d, s2' % (S_T0, S_T0))
        s('s_and_b32 s%d, s%d, 7' % (S_T0, S_T0))
        s('s_lshl_b32 s%d, 1, s%d' % (S_T0, S_T0))
        s('v_mov_b32 v4, s%d' % S_T0)
        s('v_mov_b32 v6, 1')
        s('v_mov_b32 v7, 0')
        s('buffer_atomic_or v4, v7, %s, 0 offen offset:16 sc1' % sr(SDBG, 4))
        s('s_waitcnt vmcnt(0)')
        s('buffer_atomic_add v6, v7, %s, 0 offen offset:136 sc0 sc1' % sr(SDBG, 4))
        s('s_waitcnt vmcnt(0)')
        s('v_readfirstlane_b32 s%d, v6' % S_T0)
        s('s_cmp_lg_u32 s%d, 255' % S_T0)
        s('s_cbranch_scc1 L_end')
        s('buffer_load_dword v4, v7, %s, 0 offen offset:16 sc1' % sr(SDBG, 4))
        s('s_waitcnt vmcnt(0)')
        s('v_readfirstlane_b32 s%d, v4' % S_T0)
        s('s_bcnt1_i32_b32 s%d, s%d' % (S_T0, S_T0))
        s('s_mul_i32 s%d, s%d, 2000' % (S_T0, S_T0))
        s('s_memrealtime s[66:67]')
        s('s_waitcnt lgkmcnt(0)')
        s('L_dly:')
        s('s_memrealtime s[68:69]')
        s('s_waitcnt lgkmcnt(0)')
        s('s_sub_u32 s68, s68, s66')
        s('s_cmp_lt_u32 s68, s%d' % S_T0)
        s('s_cbranch_scc1 L_dly')
    if OPT['diag'] == 5:
        s('s_cmp_lg_u32 s%d, 4' % S_WV)
        s('s_cbranch_scc1 L_end')
        s('s_mov_b64 exec, 1')
        s('s_not_b32 s%d, s%d' % (S_T0, S_KA + 2 * OPT['sa']))
        s('v_mov_b32 v4, s%d' % S_T0)
        s('v_mov_b32 v5, s%d' % (S_KA + 2 * OPT['sb']))
        s('v_mov_b32 v6, 1')
        s('v_mov_b32 v7, 0')
        s('buffer_atomic_umax v4, v7, %s, 0 offen offset:128 sc1' % sr(SDBG, 4))
        s('buffer_atomic_umax v5, v7, %s, 0 offen offset:132 sc1' % sr(SDBG, 4))
        s('s_waitcnt vmcnt(0)')
        s('buffer_atomic_add v6, v7, %s, 0 offen offset:136 sc0 sc1' % sr(SDBG, 4))
        s('s_waitcnt vmcnt(0)')
        s('v_readfirstlane_b32 s%d, v6' % S_T0)
        s('s_cmp_lg_u32 s%d, 255' % S_T0)
        s('s_cbranch_scc1 L_end')
        s('buffer_load_dwordx2 v[4:5], v7, %s, 0 offen offset:128 sc1' % sr(SDBG, 4))
        s('s_waitcnt vmcnt(0)')
        s('v_add_u32 v4, v4, v5')
        s('s_nop 1')
        s('v_readfirstlane_b32 s%d, v4' % S_T0)
        s('s_add_u32 s%d, s%d, 1' % (S_T0, S_T0))
        s('s_mul_i32 s%d, s%d, %d' % (S_T0, S_T0, OPT['mul']))
        s('s_min_u32 s%d, s%d, 200000' % (S_T0, S_T0))
        s('s_memrealtime s[66:67]')
        s('s_waitcnt lgkmcnt(0)')
        s('L_dly:')
        s('s_memrealtime s[68:69]')
        s('s_waitcnt lgkmcnt(0)')
        s('s_sub_u32 s68, s68, s66')
        s('s_cmp_lt_u32 s68, s%d' % S_T0)
        s('s_cbranch_scc1 L_dly')
    if OPT['diag'] == 4:
        s('s_cmp_lg_u32 s2, %d' % OPT['wg'])
        s('s_cbranch_scc1 L_end')
        s('s_cmp_lg_u32 s%d, %d' % (S_WV, OPT['wv']))
        s('s_cbranch_scc1 L_end')
        s('s_sub_u32 s%d, s%d, s%d' % (S_T0, S_KA + 2 * OPT['sb'], S_KA + 2 * OPT['sa']))
        if not OPT['clk']:
            s('s_mul_i32 s%d, s%d, 10' % (S_T0, S_T0))
        s('s_min_u32 s%d, s%d, 200000' % (S_T0, S_T0))
        s('s_memrealtime s[66:67]')
        s('s_waitcnt lgkmcnt(0)')
        s('L_dly:')
        s('s_memrealtime s[68:69]')
        s('s_waitcnt lgkmcnt(0)')
        s('s_sub_u32 s68, s68, s66')
        s('s_cmp_lt_u32 s68, s%d' % S_T0)
        s('s_cbranch_scc1 L_dly')
    s('L_end:')
    s('s_endpgm')
    return s


def main():
    pro, prw, pre = prologue()
    f, fa, fb = lc_role(True)
    q, qa, qb = lc_role(False)
    qo = q_out()
    k, ka, kb = kv_role()
    fpaths, fsegs = phase2b('f', OPT['na'], list(range(8 + OPT['nb'])) + [11, 12, 13])
    kpaths, ksegs = phase2b('k', 0, list(range(4 + OPT['kua'] + OPT['kub'] + OPT['x_freek'])))
    assert OPT['kpf'] == 4
    p2segs, p2a, fi = fsegs + ksegs, phase2a(), fin()
    paths = [
        [pro, pre, f, fa, p2a, fi],
        [pro, pre, q, qa, qo, fi],
        [pro, prw, pre, q, qb, qo, fi],
        [pro, prw, pre, k, ka, p2a, fi],
    ]
    paths += [[pro, prw, pre, f, fb] + p + [fi] for p in fpaths] + [[pro, prw, pre, k, kb] + p + [fi] for p in kpaths]
    if OPT['jit']:
        import random
        rnd, seen = random.Random(OPT['jit']), set()
        for p in paths:
            for seg in p:
                if id(seg) in seen:
                    continue
                seen.add(id(seg))
                out = []
                for i in seg:
                    out.append(i)
                    if i.op == 's_barrier' or (i.kind == 'label' and i.text.startswith(('L_ret', 'L_p2'))):
                        j = nspin[0]
                        nspin[0] += 1
                        out += [Ins('s_add_u32 s64, s2, s%d' % S_WV), Ins('s_bitcmp1_b32 0x%x, s64' % rnd.getrandbits(32)),
                                Ins('s_cbranch_scc0 L_j%d' % j), Ins('s_sleep %d' % rnd.choice((2, 5, 12, 30))), Ins('L_j%d:' % j)]
                seg[:] = out
    resolve_waits(paths)
    if OPT['hoist']:
        hoist_m0(paths)
    bad = verify_async(paths)
    assert not bad, '\n'.join(bad)
    n = pad_hazards(paths)
    assert pad_hazards(paths) == 0
    body = render([pro, prw, pre, f, fa, fb, k, ka, kb, q, qa, qb, qo] + p2segs + [p2a, fi, slow])
    head = open('cdna_kernels/%s.s.ref' % NAME).read().split('\n')
    head = [l for l in head if l.startswith(';') and '@launch' not in l]
    out = '\n'.join(head) + '''
; @launch grid=(256,1,1) block=(512,1,1) lds=%d
.amdgcn_target "amdgcn-amd-amdhsa--gfx950"
.text
.globl %s_kernel
.p2align 8
.type %s_kernel,@function
%s_kernel:
L_codebeg:
%s
L_codeend:
.section .rodata,"a"
.p2align 6
.amdhsa_kernel %s_kernel
  .amdhsa_next_free_vgpr 256
  .amdhsa_next_free_sgpr 102
  .amdhsa_accum_offset 256
  .amdhsa_group_segment_fixed_size 0
  .amdhsa_kernarg_size 88
  .amdhsa_user_sgpr_count 2
  .amdhsa_user_sgpr_kernarg_segment_ptr 1
  .amdhsa_system_sgpr_workgroup_id_x 1
.end_amdhsa_kernel
''' % (LDS_BYTES, NAME, NAME, NAME, body, NAME)
    if OPT['x_plain'] & 1:
        out = '\n'.join(l.replace(' sc1', '') if 'buffer_store_dwordx4' in l else l for l in out.split('\n'))
    if OPT['x_plain'] & 2:
        out = '\n'.join(l.replace(' sc1', '') if 'buffer_load_dwordx4' in l else l for l in out.split('\n'))
    if OPT['x_drop'] & 1:
        out = '\n'.join('    s_nop 0' if 'v_mfma_f32_16x16x32' in l else l for l in out.split('\n'))
    if OPT['x_drop'] & 16:
        i, j = out.index('L_kv:'), out.index('L_q:')
        out = out[:i] + '\n'.join('    s_nop 0' if 'v_mfma_f32_16x16x32' in l or 'v_max_f32' in l or 'v_mul_f32' in l else l for l in out[i:j].split('\n')) + out[j:]
    if OPT['x_drop'] & 2:
        out = '\n'.join('    s_nop 0' if 'v_dot2c' in l else l for l in out.split('\n'))
    if OPT['x_drop'] & 4:
        i, j = out.index('L_p2of23:'), out.index('L_p2a:')
        out = out[:i] + '\n'.join('    s_nop 7' if 'v_mfma' in l else l for l in out[i:j].split('\n')) + out[j:]
    if OPT['x_drop'] & 8:
        i = out.index('L_p2of23:')
        out = '\n'.join('    s_nop 7' if 'v_mfma_f32_32x32x16' in l else l for l in out[:i].split('\n')) + out[i:]
    open(sys.argv[1], 'w').write(out)
    print('wrote %s: %d lines, %d pad states' % (sys.argv[1], out.count('\n'), n))


main()
```

```python
import struct
import sys
from asmlib import Seg, Ins, Wait, GAP, interleave, resolve_waits, pad_hazards, verify_async, hoist_m0, render, vr, sr

NAME = 'parallel_sum__linear_attn_block__dense_activation_gelu__prompt'
OPT = dict(kres=1, kna=3, kne=6, k2=0, qsplit=0, sites=0, kv4=3, kua=3, kub=0, x_free=0, x_freek=0, tf0=2, tfp=45, x_drop=0, gray=0, hoist=1, wj=1, tfat=2, kpa=1, otail=7, oper=3, rmap=4, jit=0, rounds=15, opriv=1, oscal=1, na=5, nb=0, b0=9, xfirst=1, osc=0, ne=1, ub=0, b0f=9, pmix=1, wv=4, back=0, x_wait=0, rot1=6, nlate=1, mul=10, fatom=0, tlb=0, kbar=4, kphi=26, ntail=4, p1at=2, ascal=1, kpf=4, kcut=4, kb0=24, kb1=104, khead=0, kearly=8, qatom=1, batom=1, pkind=1, x_hit=0, gsp=3, eprio=0, aprio=2, aprio2=2, aprio3=2, lb=10, touch=69, tat=4, twat=3, tkat=1, kprio=1, plead=3, x_noa=0, x_nopoll=0, x_noflag=0, x_nost=0, x_plain=0, rot2=1, dep=6, noatom=0, diag=0, p1only=0, sa=0, sb=10, clk=0, wg=0)
for a in sys.argv[2:]:
    k, v = a.split('=')
    OPT[k] = v if k == 'st' else int(v)
STAMPS = OPT.get('st', 'en,1,2,3,4,5,6,7,8,9,10').split(',')


def f32(x):
    return '0x%08x' % struct.unpack('<I', struct.pack('<f', x))[0]


XS, WQS, W1S = 896, 2688, 3584
ACT_G = 147456
KV_OFF = 0x900000
FKV_OFF = 0x910000
FL_OFF = 0x911000
FL_G = 896
FO_OFF = 0x920000
ST_OFF = 0x938000
TS_OFF = 0xA00000
WS_BYTES = 0x10000000
OOB = 0x40000000
R0, R1, R2, MISC = 0, 57344, 114688, 155648
M_ST, M_SY, M_CS, M_R = MISC, MISC + 2048, MISC + 4096, MISC + 7168
LDS_BYTES = 163840
LOG2E = 1.4426950408889634
GC1 = -2.0 * 0.7978845608028654 * LOG2E
GC3 = GC1 * 0.044715
SPIN_LIMIT = 1 << 16

S_WV, S_RW, S_G, S_RB, S_ROLE = 3, 4, 5, 6, 7
SX, SW, SWS, SW2, SWO, SOUT, SB1, SB2, SDBG = 8, 12, 16, 20, 24, 28, 32, 36, 40
S_KA = 44
S_KX, S_KW = 66, 73
S_I2, S_HALF, S_T0, S_T1, S_ONES, S_EPS = 80, 81, 82, 83, 84, 85
S_M0W, S_M0X, S_T3, S_RO, S_H, S_FL = 86, 87, 88, 89, 90, 91
S_HI = 92
S_SPIN, S_T2, S_P, S_LAST, S_PEND, S_L2E = 94, 95, 96, 97, 98, 99
S_PAD = 100
S_B2R, S_QR0, S_RO3, S_QR2, S_A, S_WOR, S_OUTO, S_PL = 66, 67, 68, 69, 70, 71, 72, 73
S_AO = 74

V_L16, V_B2, V_X0, V_X1, V_W, V_CSW, V_CSR = 1, 2, 3, 4, 5, 6, 7
V_SEL, V_CS, V_WA, V_XA, V_EXW, V_EXR, V_ST = 8, 12, 20, 28, 32, 36, 38
V_B1 = 16
V_WB, V_RA = 42, 43
V_POLL, V_PA, V_FLO, V_ONE = 44, 45, 46, 47
V_T = 48
V_ACC, V_X, V_WF = 64, 128, 240
V_B2B, V_BA, V_L16B, V_PL = 3, 4, 12, 31
DEP = 6
V_NUM, V_BF, V_AB, V_RES = 16, 48, 128, 192
V_PQ = 80
HND = 49152

slow = Seg('slow')
nspin = [0]


def stamp(s, k):
    if OPT['diag'] and str(k) in STAMPS:
        k = STAMPS.index(str(k))
        s('%s %s' % ('s_memtime' if OPT['diag'] == 2 or OPT['clk'] else 's_memrealtime', sr(S_KA + 2 * k, 2)))


EARLY = ['en', 'ka', 't0', 't1']


def estamp(s, k):
    if OPT['diag'] and k in STAMPS:
        s('%s s[100:101]' % ('s_memtime' if OPT['diag'] == 2 or OPT['clk'] else 's_memrealtime'))
        s('s_waitcnt lgkmcnt(0)')
        s('v_mov_b32 v%d, s100' % (120 + EARLY.index(k)))


class Rebase:
    def __init__(self, regs, base, span):
        self.regs, self.base, self.span = regs, base, span

    def off(self, s, addr):
        if not (self.base <= addr and addr - self.base + self.span <= 65535):
            for r in self.regs:
                s('v_add_u32 v%d, 0x%x, v%d' % (r, (addr - self.base) & 0xffffffff, r))
            self.base = addr
        return addr - self.base


def spin_check(s, vpoll, vexp, vaddr, srd, soff, mask):
    k = nspin[0]
    nspin[0] += 1
    s('v_cmp_ge_u32 vcc, v%d, v%d' % (vpoll, vexp))
    s('s_andn2_b32 s%d, 0x%x, vcc_lo' % (S_T2, mask))
    s('s_cbranch_scc1 L_slow%d' % k)
    s('L_ret%d:' % k)
    slow('L_slow%d:' % k)
    slow('s_add_u32 s%d, s%d, 1' % (S_SPIN, S_SPIN))
    slow('s_cmp_gt_u32 s%d, 0x%x' % (S_SPIN, SPIN_LIMIT))
    slow('s_cbranch_scc1 L_ret%d' % k)
    slow('buffer_load_dword v%d, v%d, %s, %s offen sc1' % (vpoll, vaddr, sr(srd, 4), soff))
    slow('s_waitcnt vmcnt(0)')
    slow('v_cmp_ge_u32 vcc, v%d, v%d' % (vpoll, vexp))
    slow('s_nop 1')
    slow('s_andn2_b32 s%d, 0x%x, vcc_lo' % (S_T2, mask))
    slow('s_cbranch_scc1 L_slow%d' % k)
    slow('s_branch L_ret%d' % k)


def poll_base(s):
    s('s_lshr_b32 s%d, s%d, 1' % (S_PL, S_I2))
    s('s_lshl2_add_u32 s%d, s%d, s%d' % (S_PL, S_PL, S_RW))
    s('s_mul_i32 s%d, s%d, %d' % (S_PL, S_PL, FL_G))
    s('s_add_u32 s%d, s%d, 0x%x' % (S_PL, S_PL, FL_OFF))
    s('v_cmp_gt_u32 vcc, 32, v%d' % V_L16)
    s('v_lshlrev_b32 v%d, 3, v%d' % (V_PL, V_L16))
    s('v_cndmask_b32 v%d, v%d, v%d, vcc' % (V_PL, V_FLO, V_PL))


def poll_async(s, k):
    s('buffer_load_dword v%d, v%d, %s, s%d offen offset:%d sc1' % (V_POLL, V_PL, sr(SWS, 4), S_PL, k * 256), ('poll', k))


def stage_check(s, k, miss=None, sync=False, scalar=False):
    if OPT['x_nopoll']:
        return
    j = nspin[0]
    nspin[0] += 1
    mask = 3 if k < 3 else 1
    if sync:
        s('s_branch L_slow%d' % j)
    else:
        s.wait(vm=[('poll', k)])
        s('v_cmp_ne_u32 vcc, 0, v%d' % V_POLL)
        s('s_andn2_b32 s%d, %d, vcc_lo' % (S_T2, mask))
        if miss:
            s('s_cbranch_scc1 %s' % miss)
            return
        s('s_cbranch_scc1 L_slow%d' % j)
    s('L_ret%d:' % j)
    slow('L_slow%d:' % j)
    slow('s_add_u32 s%d, s%d, 1' % (S_SPIN, S_SPIN))
    slow('s_cmp_gt_u32 s%d, 0x%x' % (S_SPIN, SPIN_LIMIT))
    slow('s_cbranch_scc1 L_ret%d' % j)
    if sync and k == 3 and OPT['back']:
        slow('s_sleep %d' % OPT['back'])
    if scalar:
        slow('s_add_u32 s%d, s%d, %d' % (S_T2, S_PL, k * 256))
        slow('s_add_u32 s%d, s%d, %d' % (S_T1, S_PL, k * 256 + (128 if k < 3 else 0)))
        slow('s_buffer_load_dword s%d, %s, s%d glc' % (S_T2, sr(SWS, 4), S_T2))
        if k < 3:
            slow('s_buffer_load_dword s%d, %s, s%d glc' % (S_T1, sr(SWS, 4), S_T1))
        slow('s_waitcnt lgkmcnt(0)')
        if k < 3:
            slow('s_and_b32 s%d, s%d, s%d' % (S_T2, S_T2, S_T1))
        slow('s_cmp_eq_u32 s%d, 0' % S_T2)
    else:
        slow('buffer_load_dword v%d, v%d, %s, s%d offen offset:%d sc1' % (V_POLL, V_PL, sr(SWS, 4), S_PL, k * 256))
        slow('s_waitcnt vmcnt(0)')
        slow('v_cmp_ne_u32 vcc, 0, v%d' % V_POLL)
        slow('s_nop 1')
        slow('s_andn2_b32 s%d, %d, vcc_lo' % (S_T2, mask))
    slow('s_cbranch_scc1 L_slow%d' % j)
    slow('s_branch L_ret%d' % j)


def poll_check(s, k, n, sync=False, atomic=False):
    j = nspin[0]
    nspin[0] += 1
    if OPT['x_nopoll']:
        return
    if sync:
        s('s_branch L_slow%d' % j)
    else:
        s.wait(vm=[('poll', k)])
        s('v_readfirstlane_b32 s%d, v%d' % (S_T2, V_POLL))
        s('s_cmp_lt_u32 s%d, %d' % (S_T2, n))
        s('s_cbranch_scc1 L_slow%d' % j)
    s('L_ret%d:' % j)
    slow('L_slow%d:' % j)
    slow('s_add_u32 s%d, s%d, 1' % (S_SPIN, S_SPIN))
    slow('s_cmp_gt_u32 s%d, 0x%x' % (S_SPIN, SPIN_LIMIT))
    slow('s_cbranch_scc1 L_ret%d' % j)
    if atomic:
        slow('v_mov_b32 v%d, 0' % V_POLL)
        slow('buffer_atomic_add v%d, v%d, %s, s%d offen offset:%d sc0 sc1' % (V_POLL, V_FLO, sr(SWS, 4), S_PL, k * 128))
        slow('s_waitcnt vmcnt(0)')
        slow('v_readfirstlane_b32 s%d, v%d' % (S_T2, V_POLL))
        slow('s_nop 0')
    else:
        slow('s_add_u32 s%d, s%d, %d' % (S_T2, S_PL, k * 128))
        slow('s_buffer_load_dword s%d, %s, s%d glc' % (S_T2, sr(SWS, 4), S_T2))
        slow('s_waitcnt lgkmcnt(0)')
    slow('s_cmp_lt_u32 s%d, %d' % (S_T2, n))
    slow('s_cbranch_scc1 L_slow%d' % j)
    slow('s_branch L_ret%d' % j)


def srd(s, d, nbytes):
    s('s_mov_b32 s%d, 0x%x' % (d + 2, nbytes))
    s('s_mov_b32 s%d, 0x20000' % (d + 3))


XSLOT = [R2, R2 + 16384, R1 + 8192, R1 + 24576, R1 + 40960, R2, R2 + 16384]


def kv_slot(n):
    return ((n + 4) % 9) * 16384


def prologue():
    s, T = Seg('pro'), V_T
    s('s_cmp_ge_u32 s2, 256')
    s('s_cbranch_scc1 L_end')
    estamp(s, 'en')
    s('s_load_dwordx2 %s, s[0:1], 0' % sr(SX, 2))
    s('s_load_dwordx2 %s, s[0:1], 8' % sr(SW, 2))
    s('s_load_dwordx2 %s, s[0:1], 32' % sr(S_HI, 2))
    s('v_readfirstlane_b32 s%d, v0' % S_WV)
    s('s_getpc_b64 s[82:83]')
    s('s_lshr_b32 s%d, s2, 3' % S_T2)
    s('s_lshl_b32 s%d, s%d, 11' % (S_P, S_T2))
    s('v_lshl_add_u32 v%d, v0, 2, s%d' % (T, S_P))
    s('v_min_u32 v%d, L_codeend-L_codebeg-64, v%d' % (T, T))
    s('global_load_dword v%d, v%d, s[82:83]' % (V_POLL, T))
    s('s_lshr_b32 s%d, s%d, 6' % (S_WV, S_WV))
    s('v_and_b32 v%d, 63, v0' % T)
    if OPT['rmap'] < 0:
        s('s_and_b32 s%d, s%d, 7' % (S_ROLE, S_T2))
        s('v_lshrrev_b32 v%d, 3, v%d' % (T + 1, T))
        s('s_lshr_b32 s%d, s%d, 3' % (S_I2, S_T2))
    else:
        s('s_add_u32 s%d, s%d, %d' % (S_ROLE, S_T2, 4 * OPT['rmap']))
        s('v_lshrrev_b32 v%d, 3, v%d' % (T + 1, T))
        s('s_bfe_u32 s%d, s%d, 0x30002' % (S_ROLE, S_ROLE))
        s('s_and_b32 s%d, s%d, 3' % (S_I2, S_T2))
    s('v_lshrrev_b32 v%d, 4, v%d' % (T + 3, T))
    s('s_and_b32 s%d, s2, 1' % S_HALF)
    s('v_lshl_add_u32 v%d, s%d, 4, v%d' % (T + 5, S_WV, T + 1))
    s('s_bfe_u32 s%d, s2, 0x20001' % S_P)
    s('v_mul_u32_u24 v%d, %d, v%d' % (T + 5, XS, T + 5))
    s('s_lshl2_add_u32 s%d, s%d, s%d' % (S_RB, S_P, S_I2))
    s('v_xor_b32 v%d, v%d, v%d' % (T + 6, T, T + 3))
    s('s_lshl1_add_u32 s%d, s%d, s%d' % (S_T2, S_I2, S_ROLE))
    s('v_and_b32 v%d, 7, v%d' % (T + 6, T + 6))
    s('s_add_u32 s%d, s%d, s%d' % (S_T2, S_T2, S_P))
    s('v_lshl_add_u32 v%d, v%d, 4, v%d' % (V_X0, T + 6, T + 5))
    s('s_mul_i32 s%d, s%d, 3' % (S_T0, S_HALF))
    s('v_xor_b32 v%d, 64, v%d' % (V_X1, V_X0))
    s('s_add_u32 s%d, s%d, s%d' % (S_T2, S_T2, S_T0))
    s('v_add_u32 v%d, %d, v%d' % (V_X1, 8 * XS - 1024, V_X1))
    if OPT['rot1'] >= 5:
        ca, cb, cc, m = {5: (4, 2, 1, 1), 6: (1, 4, 2, 1), 7: (0, 4, 2, 1), 8: (2, 1, 2, 3), 9: (1, 3, 2, 3)}[OPT['rot1']]
        s('s_add_u32 s%d, s%d, s%d' % (S_T2, S_I2, S_ROLE))
        s('s_and_b32 s%d, s%d, %d' % (S_T2, S_T2, m))
        s('s_mul_i32 s%d, s%d, %d' % (S_T2, S_T2, ca))
        s('s_mul_i32 s%d, s%d, %d' % (S_T1, S_HALF, cb))
        s('s_add_u32 s%d, s%d, s%d' % (S_T2, S_T2, S_T1))
        s('s_mul_i32 s%d, s%d, %d' % (S_T1, S_P, cc))
        s('s_add_u32 s%d, s%d, s%d' % (S_T2, S_T2, S_T1))
    s('s_mul_i32 s%d, s%d, 37' % (S_T1, S_T2))
    s('v_lshlrev_b32 v%d, 2, v%d' % (T + 4, T + 3))
    s('s_lshr_b32 s%d, s%d, 8' % (S_T1, S_T1))
    s('v_xor_b32 v%d, v%d, v%d' % (T + 4, T, T + 4))
    s('s_mul_i32 s%d, s%d, 7' % (S_T1, S_T1))
    s('s_sub_u32 s%d, s%d, s%d' % (S_T2, S_T2, S_T1))
    if OPT['rot1'] == 0:
        s('s_mov_b32 s%d, 0' % S_T2)
    elif OPT['rot1'] == 2:
        s('s_lshr_b32 s%d, s%d, 1' % (S_T2, S_T2))
    elif OPT['rot1'] == 3:
        s('s_and_b32 s%d, s%d, 4' % (S_T2, S_T2))
    elif OPT['rot1'] == 4:
        s('s_and_b32 s%d, s%d, 6' % (S_T2, S_T2))
    s('s_mul_i32 s%d, s%d, %d' % (S_H, S_RB, 128 * XS))
    s('s_lshl_b32 s%d, s%d, 7' % (S_KX, S_T2))
    s('s_add_u32 s%d, s%d, s%d' % (S_KX, S_KX, S_H))
    s('s_lshl_b32 s%d, s%d, 11' % (S_M0X, S_WV))
    s('s_bitcmp1_b32 0x70, s%d' % S_ROLE)
    s('s_cselect_b32 s%d, 4, 7' % S_T3)
    s('s_lshl_b32 s%d, s%d, 14' % (S_T3, S_T3))
    s('s_add_u32 m0, s%d, s%d' % (S_T3, S_M0X))
    srd(s, SX, 2048 * XS)
    assert XSLOT[0] == 7 << 14 and kv_slot(0) == 4 << 14
    if OPT['touch'] & 8:
        s('s_lshl3_add_u32 s%d, s%d, s%d' % (S_T3, S_HALF, S_ROLE))
        s('v_min_u32 v%d, 6, v%d' % (T + 2, T))
        s('s_lshl3_add_u32 s%d, s%d, s%d' % (S_T3, S_T3, S_WV))
        s('v_lshlrev_b32 v%d, 7, v%d' % (T + 2, T + 2))
        s('s_mul_i32 s%d, s%d, %d' % (S_T3, S_T3, XS))
        s('s_add_u32 s%d, s%d, s%d' % (S_T3, S_T3, S_H))
    if OPT['xfirst']:
        s('s_waitcnt lgkmcnt(0)')
        estamp(s, 'ka')
        s('buffer_load_dwordx4 v%d, %s, s%d offen lds' % (V_X0, sr(SX, 4), S_KX), 't0')
        s('buffer_load_dwordx4 v%d, %s, s%d offen offset:1024 lds' % (V_X1, sr(SX, 4), S_KX), 't0')
        if OPT['touch'] & 8:
            s('buffer_load_dword v%d, v%d, %s, s%d offen' % (V_EXW, T + 2, sr(SX, 4), S_T3))
    s('s_and_b32 s%d, s%d, 3' % (S_RW, S_WV))
    s('s_lshr_b32 s%d, s%d, 2' % (S_G, S_WV))
    s('s_lshl_b32 s%d, s%d, 11' % (S_M0W, S_RW))
    s('s_add_u32 s%d, s%d, s%d' % (S_T0, S_T0, S_ROLE))
    s('s_lshl_b32 s%d, s%d, 7' % (S_T0, S_T0))
    s('s_add_u32 s%d, s%d, %d' % (S_T0, S_T0, XS - 512))
    s('s_lshl2_add_u32 s%d, s%d, s%d' % (S_P, S_HALF, S_ROLE))
    s('s_and_b32 s%d, s%d, 1' % (S_PEND, S_ROLE))
    s('s_lshl_b32 s%d, s%d, 6' % (S_PEND, S_PEND))
    s('s_movk_i32 s%d, %d' % (S_LAST, WQS))
    s('s_cmp_lt_u32 s%d, 4' % S_ROLE)
    s('s_cselect_b32 s%d, %d, s%d' % (S_LAST, W1S, S_LAST))
    s('s_cselect_b32 s%d, s%d, s%d' % (S_P, S_P, S_HALF))
    s('s_cselect_b32 s%d, s%d, 0' % (S_PEND, S_PEND))
    s('s_mul_i32 s%d, s%d, 448' % (S_T1, S_P))
    s('s_add_u32 s%d, s%d, s%d' % (S_T1, S_T1, S_PEND))
    s('s_lshl_b32 s%d, s%d, 6' % (S_RO, S_LAST))
    s('s_mul_i32 s%d, s%d, s%d' % (S_KW, S_T2, S_RO))
    s('s_mul_i32 s%d, s%d, 448' % (SW + 2, S_LAST))
    s('s_mov_b32 s%d, 0x20000' % (SW + 3))
    s('s_lshl_b32 s%d, s%d, 1' % (S_T2, S_RW))
    s('s_add_u32 s%d, s%d, %d' % (S_FL, S_M0X, kv_slot(1)))
    s('s_bitcmp1_b32 0x70, s%d' % S_ROLE)
    s('s_cselect_b32 s%d, s%d, s%d' % (S_T0, S_T0, S_T1))
    s('s_cselect_b32 s%d, s%d, s%d' % (S_T2, S_WV, S_T2))
    s('s_cselect_b32 s%d, s%d, s%d' % (S_FL, S_FL, S_M0W))
    s('s_cselect_b32 s%d, 4, 3' % S_T1)
    s('s_cselect_b32 s%d, 1, s%d' % (S_SPIN, S_G))
    s('v_lshrrev_b32 v%d, s%d, v%d' % (T + 5, S_T1, T))
    s('v_lshl_add_u32 v%d, s%d, 3, v%d' % (T + 5, S_T2, T + 5))
    s('v_bfe_u32 v%d, v%d, 0, s%d' % (T + 6, T + 4, S_T1))
    s('s_lshr_b32 s%d, s%d, s%d' % (S_T1, S_RO, S_T1))
    s('v_mul_u32_u24 v%d, s%d, v%d' % (T + 5, S_LAST, T + 5))
    s('s_sub_u32 s%d, s%d, 1024' % (S_T1, S_T1))
    s('v_lshl_add_u32 v%d, v%d, 4, s%d' % (T + 6, T + 6, S_T0))
    s('v_add_u32 v%d, v%d, v%d' % (V_W, T + 5, T + 6))
    s('s_cmp_lt_u32 s%d, 4' % S_ROLE)
    s('v_add_u32 v%d, s%d, v%d' % (V_WB, S_T1, V_W))
    if not OPT['xfirst']:
        s('s_waitcnt lgkmcnt(0)')
        estamp(s, 'ka')
        s('buffer_load_dwordx4 v%d, %s, s%d offen lds' % (V_X0, sr(SX, 4), S_KX), 't0')
        s('buffer_load_dwordx4 v%d, %s, s%d offen offset:1024 lds' % (V_X1, sr(SX, 4), S_KX), 't0')
        if OPT['touch'] & 8:
            s('buffer_load_dword v%d, v%d, %s, s%d offen' % (V_EXW, T + 2, sr(SX, 4), S_T3))
    s('s_cselect_b64 %s, %s, %s' % (sr(SW, 2), sr(S_HI, 2), sr(SW, 2)))
    s('s_mov_b32 m0, s%d' % S_FL)
    s('s_cmp_eq_u32 s%d, 0' % S_SPIN)
    s('s_cbranch_scc1 L_now')
    w = Seg('prow')
    w('buffer_load_dwordx4 v%d, %s, s%d offen lds' % (V_W, sr(SW, 4), S_KW), 't0')
    w('buffer_load_dwordx4 v%d, %s, s%d offen offset:1024 lds' % (V_WB, sr(SW, 4), S_KW), 't0')
    e = Seg('proe')
    e('L_now:')
    if OPT['touch'] & 16:
        e('v_min_u32 v%d, 55, v%d' % (T + 2, T))
        e('s_mul_i32 s%d, s%d, 28' % (S_T3, S_RB))
        e('v_lshrrev_b32 v%d, 1, v%d' % (T + 5, T + 2))
        e('s_mul_i32 s%d, s%d, s%d' % (S_T3, S_T3, S_LAST))
        e('v_mul_u32_u24 v%d, s%d, v%d' % (T + 5, S_LAST, T + 5))
        e('s_add_u32 s%d, s%d, s%d' % (S_T3, S_T3, S_T0))
        e('v_and_b32 v%d, 1, v%d' % (T + 2, T + 2))
        e('s_lshl_b32 s%d, s%d, 28' % (S_T2, S_WV))
        e('v_lshl_add_u32 v%d, v%d, 7, v%d' % (T + 2, T + 2, T + 5))
        e('s_add_u32 s%d, s%d, s%d' % (S_T3, S_T3, S_T2))
        e('buffer_load_dword v%d, v%d, %s, s%d offen' % (V_EXW, T + 2, sr(SW, 4), S_T3))
    estamp(e, 't0')
    for d, off in ((SWS, 80), (SB1, 40), (SDBG, 72), (SW2, 48), (SWO, 16), (SB2, 56), (SOUT, 64)):
        e('s_load_dwordx2 %s, s[0:1], %d' % (sr(d, 2), off))
    essential(e)
    e('s_cmp_ge_u32 s%d, 7' % S_ROLE)
    e('s_cbranch_scc1 L_q')
    e('s_cmp_ge_u32 s%d, 4' % S_ROLE)
    e('s_cbranch_scc1 L_kv')
    return s, w, e


def zipper(a, b):
    out = []
    for k in range(max(len(a), len(b))):
        out += a[k:k + 1] + b[k:k + 1]
    return out


def essential(z):
    T = V_T
    k, s = Seg(), Seg()
    k('s_add_u32 s%d, s%d, %d' % (S_T2, S_H, XS))
    for c in range(1, 7):
        k('s_add_u32 s%d, s%d, 128' % (S_KX + c, S_KX + c - 1))
        k('s_add_u32 s%d, s%d, s%d' % (S_KW + c, S_KW + c - 1, S_RO))
        k('s_cmp_eq_u32 s%d, s%d' % (S_KX + c, S_T2))
        k('s_cselect_b32 s%d, s%d, s%d' % (S_KX + c, S_H, S_KX + c))
        k('s_cselect_b32 s%d, 0, s%d' % (S_KW + c, S_KW + c))
    k('s_mov_b32 s%d, 0x3f803f80' % S_ONES)
    s('v_lshlrev_b32 v%d, 4, v%d' % (V_L16, T))
    s('v_and_b32 v%d, 1, v%d' % (T + 7, T + 3))
    s('v_and_b32 v%d, 31, v%d' % (T + 8, T))
    s('v_lshrrev_b32 v%d, 5, v%d' % (T + 9, T))
    s('v_bfe_u32 v%d, v%d, 2, 2' % (T + 10, T))
    s('v_and_b32 v%d, 3, v%d' % (T + 11, T))
    s('v_lshl_add_u32 v%d, s%d, 1, v%d' % (T + 12, S_RW, T + 9))
    s('v_bfe_u32 v%d, v%d, 1, 3' % (T + 5, T))
    s('v_xor_b32 v%d, v%d, v%d' % (T + 5, T + 12, T + 5))
    s('v_lshl_add_u32 v%d, s%d, 5, v%d' % (T + 13, S_RW, T + 8))
    s('v_lshlrev_b32 v%d, 7, v%d' % (V_XA, T + 13))
    s('v_lshl_add_u32 v%d, v%d, 4, v%d' % (V_XA, T + 5, V_XA))
    for j in range(1, 4):
        s('v_xor_b32 v%d, %d, v%d' % (V_XA + j, j << 5, V_XA))
    s('v_lshl_add_u32 v%d, v%d, 3, v%d' % (T + 12, T + 12, T + 10))
    s('v_lshl_add_u32 v%d, v%d, 2, v%d' % (T + 14, T + 7, T + 11))
    s('v_and_b32 v%d, 1, v%d' % (T + 5, T + 10))
    s('v_mov_b32 v%d, 0x3f803f80' % (T + 6))
    s('v_cmp_eq_u32 vcc, v%d, v%d' % (T + 5, T + 7))
    for j in range(4):
        s('v_mov_b32 v%d, 0' % (V_ST + j))
    for j in range(4):
        s('v_cndmask_b32 v%d, 0, v%d, vcc' % (V_SEL + j, T + 6))
    s('v_mov_b32 v%d, 0x%x' % (V_FLO, OOB))
    s('v_cmp_eq_u32 vcc, 0, v%d' % T)
    s('v_mov_b32 v%d, 1' % V_ONE)
    s('v_mov_b32 v%d, 0' % (V_EXW + 1))
    s('v_cndmask_b32 v%d, v%d, 0, vcc' % (V_FLO, V_FLO))
    z.extend(zipper(list(k), list(s)))


def deferred(kv):
    s, T = Seg(), V_T
    for k in EARLY:
        if OPT['diag'] and k in STAMPS:
            s('v_readfirstlane_b32 s%d, v%d' % (S_KA + 2 * STAMPS.index(k), 120 + EARLY.index(k)))
    srd(s, SW2, 1792 * XS)
    srd(s, SWO, 448 * XS)
    srd(s, SOUT, 2048 * XS)
    srd(s, SB2, 448 * 2)
    s('s_mov_b32 s%d, %s' % (S_EPS, f32(1e-6)))
    s('s_mov_b32 s%d, %s' % (S_L2E, f32(LOG2E)))
    s('s_mov_b32 s%d, 0' % S_HI)
    s('s_mov_b32 s%d, -1' % (S_HI + 1))
    if kv:
        s('s_mov_b32 s%d, 0xf0000000' % S_PAD)
        s('s_mov_b32 s%d, 0xf0000000' % (S_PAD + 1))
        s('v_mov_b32 v%d, 0' % (V_EXW + 3))
    s('s_mov_b32 s%d, 0' % S_SPIN)
    s('v_and_b32 v%d, 7, v%d' % (T + 4, T + 4))
    s('v_mul_u32_u24 v%d, %d, v%d' % (V_B2, XS, T + 1))
    s('v_lshl_add_u32 v%d, v%d, 4, v%d' % (V_B2, T + 4, V_B2))
    if kv:
        s('s_mov_b32 s%d, %d' % (S_T1, M_CS))
    else:
        s('s_lshl_b32 s%d, s%d, 9' % (S_T1, S_G))
        s('s_add_u32 s%d, s%d, %d' % (S_T1, S_T1, M_CS))
    s('v_lshl_add_u32 v%d, v%d, 4, s%d' % (V_CSR, T + 8, S_T1))
    s('v_lshl_add_u32 v%d, s%d, 2, v%d' % (V_CSW, S_RW, V_CSR))
    s('s_lshl2_add_u32 s%d, s%d, %d' % (S_T1, S_WV, M_SY))
    s('v_mov_b32 v%d, s%d' % (V_PA, S_T1))
    for k in ((0, 128, 160, 192, 224) if kv else (0,)):
        s('ds_write_b32 v%d, v%d offset:%d' % (V_PA, V_EXW + 1, k))
    if not kv:
        s('v_lshlrev_b32 v%d, 2, v%d' % (V_EXR + 1, T + 13))
        s('v_add_u32 v%d, %d, v%d' % (V_EXR, M_ST, V_EXR + 1))
    s('s_and_b32 s%d, s2, 7' % S_T1)
    s('s_lshl2_add_u32 s%d, s%d, s%d' % (S_I2, S_T1, S_I2))
    s('s_lshl1_add_u32 s%d, s%d, s%d' % (S_T1, S_I2, S_ROLE))
    s('s_and_b32 s%d, s%d, 3' % (S_RO, S_T1))
    s('s_and_b32 s%d, s%d, 4' % (S_T1, S_T1))
    s('s_lshl2_add_u32 s%d, s%d, s%d' % (S_RO, S_T1, S_RO))
    if not OPT['rot2']:
        s('s_mov_b32 s%d, 0' % S_RO)
    return s


def tlb_warm(s):
    if not OPT['tlb']:
        return
    T = V_T
    s('s_cmp_eq_u32 s%d, 0' % S_WV)
    s('s_cselect_b32 s%d, 128, 0x%x' % (S_T1, OOB))
    for r in (SDBG, SW2, SWO, SB2, SOUT):
        s('buffer_load_dword v%d, v%d, %s, s%d offen' % (T + 15, V_FLO, sr(r, 4), S_T1))
    s('v_lshlrev_b32 v%d, 17, v%d' % (T + 5, V_L16))
    s('v_min_u32 v%d, 0x%x, v%d' % (T + 5, 0x9f0000, T + 5))
    s('buffer_load_dword v%d, v%d, %s, s%d offen' % (T + 15, T + 5, sr(SWS, 4), S_T1))


def dma_x(s, c, addr, tag):
    s('s_add_u32 m0, s%d, %d' % (S_M0X, addr))
    s('buffer_load_dwordx4 v%d, %s, s%d offen lds' % (V_X0, sr(SX, 4), S_KX + c), tag)
    s('buffer_load_dwordx4 v%d, %s, s%d offen offset:1024 lds' % (V_X1, sr(SX, 4), S_KX + c), tag)


def dma_w(s, m0base, c, addr, tag):
    s('s_add_u32 m0, s%d, %d' % (m0base, addr))
    s('buffer_load_dwordx4 v%d, %s, s%d offen lds' % (V_W, sr(SW, 4), S_KW + c), tag)
    s('buffer_load_dwordx4 v%d, %s, s%d offen offset:1024 lds' % (V_WB, sr(SW, 4), S_KW + c), tag)


def groups(z):
    out, cur = [], []
    for i in z:
        cur.append(i)
        if i.kind == 'vmem':
            out.append(cur)
            cur = []
    if cur:
        out.append(cur)
    return out


def mix(main, grp, lo=0.0, hi=1.0):
    main = [i for i in main if i is not GAP]
    out, k, n = [], 0, len(main)
    for idx, i in enumerate(main):
        while k < len(grp) and idx >= n * (lo + (hi - lo) * k / len(grp)):
            out.extend(grp[k])
            k += 1
        out.append(i)
    for g in grp[k:]:
        out.extend(g)
    return out


def barrier(z, vm=None, name=None):
    if name:
        stamp(z, name + 'a')
    z.wait(vm=vm, lgkm='all')
    if name:
        stamp(z, name + 'b')
    z('s_barrier')


BLK = [0, 4, 1, 5, 2, 6, 3]


def unit_ks(u):
    return 4 * BLK[u >> 2] + (u & 3)


R3 = R1 + 28672
S_QR3 = 100
V_W3, V_WA3 = 125, 126
V_B2S = 0
BA = [4, 5, 6, 7, 13, 15]
RING = [11]


def unit_loc(u):
    u %= RING[0]
    if u < 5:
        return S_QR2, 1, u * 2048
    if u < RING[0] - 6:
        return S_QR3, 2, (u - 5) * 2048
    return S_QR0, 0, (u - RING[0] + 6) * 2048


def p2_setup(s):
    s('s_lshl_b32 s%d, s%d, 7' % (S_T0, S_ROLE))
    s('s_mul_i32 s%d, s%d, %d' % (S_B2R, S_RW, 448 * XS))
    s('s_add_u32 s%d, s%d, s%d' % (S_B2R, S_B2R, S_T0))
    s('s_lshr_b32 s%d, s%d, 1' % (S_WOR, S_RW))
    s('s_mul_i32 s%d, s%d, 6' % (S_WOR, S_WOR))
    s('s_add_u32 s%d, s%d, s%d' % (S_WOR, S_WOR, S_RW))
    s('s_mul_i32 s%d, s%d, %d' % (S_WOR, S_WOR, 28 * XS))
    s('s_add_u32 s%d, s%d, s%d' % (S_WOR, S_WOR, S_T0))
    s('s_mul_i32 s%d, s%d, %d' % (S_OUTO, S_I2, 64 * XS))
    s('s_add_u32 s%d, s%d, s%d' % (S_OUTO, S_OUTO, S_T0))
    s('s_mul_i32 s%d, s%d, 12288' % (S_QR0, S_RW))
    s('s_mul_i32 s%d, s%d, 10240' % (S_QR2, S_RW))
    s('s_add_u32 s%d, s%d, %d' % (S_QR2, S_QR2, R2))
    if RING[0] == 14:
        s('s_mul_i32 s%d, s%d, 6144' % (S_QR3, S_RW))
        s('s_add_u32 s%d, s%d, %d' % (S_QR3, S_QR3, R3))
    s('s_mul_i32 s%d, s%d, %d' % (S_A, S_I2, 2 * ACT_G))
    s('v_add_u32 v%d, %d, v%d' % (V_B2B, 8 * XS - 1024, V_B2))


def touch_w(s, ffn, junk=127):
    if not OPT['touch'] & 1:
        return
    T = V_T
    s('s_and_b32 s%d, s%d, 3' % (S_T2, S_ROLE))
    s('s_lshl2_add_u32 s%d, s%d, s%d' % (S_T2, S_RB, S_T2))
    s('s_lshl3_add_u32 s%d, s%d, s%d' % (S_T2, S_T2, S_WV))
    s('s_mul_i32 s%d, s%d, %d' % (S_T2, S_T2, W1S if ffn else WQS))
    s('s_mul_i32 s%d, s%d, %d' % (S_T3, S_HALF, 1792 if ffn else 384))
    s('s_add_u32 s%d, s%d, s%d' % (S_T2, S_T2, S_T3))
    if ffn:
        s('v_min_u32 v%d, 13, v%d' % (T + 2, T))
    else:
        s('v_min_u32 v%d, 11, v%d' % (T + 2, T))
        s('v_lshrrev_b32 v%d, 2, v%d' % (T + 15, T + 2))
        s('v_mad_u32_u24 v%d, v%d, 3, v%d' % (T + 2, T + 15, T + 2))
    s('v_lshlrev_b32 v%d, 7, v%d' % (T + 2, T + 2))
    s('buffer_load_dword v%d, v%d, %s, s%d offen' % (junk, T + 2, sr(SW, 4), S_T2))


def touch_qv(s, junk=127):
    T = V_T
    s('s_lshl3_add_u32 s%d, s%d, s%d' % (S_T2, S_RB, S_WV))
    s('s_mul_i32 s%d, s%d, %d' % (S_T2, S_T2, 4 * WQS))
    s('s_mul_i32 s%d, s%d, 384' % (S_T3, S_HALF))
    s('s_add_u32 s%d, s%d, s%d' % (S_T2, S_T2, S_T3))
    s('v_min_u32 v%d, 31, v%d' % (T + 2, T))
    s('v_lshrrev_b32 v%d, 3, v%d' % (T + 15, T + 2))
    s('v_mad_u32_u24 v%d, v%d, 13, v%d' % (T + 15, T + 15, T + 2))
    s('v_bfe_u32 v%d, v%d, 2, 1' % (T + 2, T + 2))
    s('v_mad_u32_u24 v%d, v%d, 10, v%d' % (T + 2, T + 2, T + 15))
    s('v_lshlrev_b32 v%d, 7, v%d' % (T + 2, T + 2))
    s('buffer_load_dword v%d, v%d, %s, s%d offen' % (junk, T + 2, sr(SW, 4), S_T2))


def touch_ffn(s, t, junk=127):
    s('s_lshl3_add_u32 s%d, s%d, s%d' % (S_T2, S_RB, S_P))
    s('s_lshl2_add_u32 s%d, s%d, s%d' % (S_T2, S_T2, S_RW))
    s('v_min_u32 v%d, %d, v%d' % (t, 24 * 16, V_L16))
    s('s_mul_i32 s%d, s%d, %d' % (S_T3, S_T2, 25 * 128))
    s('v_lshlrev_b32 v%d, 3, v%d' % (t, t))
    s('buffer_load_dword v%d, v%d, %s, s%d offen' % (junk, t, sr(SW2, 4), S_T3))
    s('v_min_u32 v%d, %d, v%d' % (t, 6 * 128, t))
    s('s_mul_i32 s%d, s%d, %d' % (S_T3, S_T2, 7 * 128))
    s('buffer_load_dword v%d, v%d, %s, s%d offen' % (junk, t, sr(SWO, 4), S_T3))


def touch_fl2(s, h, t, junk=127):
    k = h - OPT['tf0']
    if not OPT['touch'] & 256 or not 0 <= k < 4 or not OPT['rounds'] >> k & 1:
        return
    s('s_add_u32 s%d, s2, %d' % (S_T3, k))
    s('s_and_b32 s%d, s%d, 3' % (S_T3, S_T3))
    s('s_and_b32 s%d, s%d, 3' % (S_T2, S_I2))
    s('s_lshl2_add_u32 s%d, s%d, s%d' % (S_T3, S_T3, S_T2))
    s('s_lshl2_add_u32 s%d, s%d, s%d' % (S_T3, S_T3, S_ROLE))
    s('s_lshl2_add_u32 s%d, s%d, s%d' % (S_T3, S_T3, S_RW))
    s('v_min_u32 v%d, %d, v%d' % (t, 48 * 16, V_L16))
    s('s_mul_i32 s%d, s%d, %d' % (S_T3, S_T3, 7 * XS))
    s('v_lshlrev_b32 v%d, 3, v%d' % (t, t))
    s('buffer_load_dword v%d, v%d, %s, s%d offen' % (junk, t, sr(SW2, 4), S_T3))


def touch_w2(s):
    if not OPT['touch'] & 2:
        return
    T = V_T
    s('s_lshl3_add_u32 s%d, s2, s%d' % (S_T2, S_WV))
    s('s_mul_i32 s%d, s%d, %d' % (S_T2, S_T2, XS))
    s('v_min_u32 v%d, 6, v%d' % (T + 2, T))
    s('v_lshlrev_b32 v%d, 7, v%d' % (T + 2, T + 2))
    s('s_sub_u32 s%d, %d, s%d' % (S_T3, 2047 * XS, S_T2))
    s('buffer_load_dword v%d, v%d, %s, s%d offen' % (V_POLL, T + 2, sr(SW2, 4), S_T2))
    s('buffer_load_dword v%d, v%d, %s, s%d offen' % (V_POLL, T + 2, sr(SWO, 4), S_T3))


def touch_kv(s):
    if not OPT['touch'] & 4:
        return
    T = V_T + 8
    s('s_mul_i32 s%d, s%d, 6' % (S_T2, S_RB))
    s('s_add_u32 s%d, s%d, s%d' % (S_T2, S_T2, S_P))
    s('s_lshl2_add_u32 s%d, s%d, s%d' % (S_T2, S_T2, S_RW))
    s('v_min_u32 v%d, %d, v%d' % (T, 32 * 16, V_L16))
    s('s_mul_i32 s%d, s%d, %d' % (S_T3, S_T2, 33 * 128))
    s('v_lshlrev_b32 v%d, 3, v%d' % (T, T))
    s('buffer_load_dword v%d, v%d, %s, s%d offen' % (T + 1, T, sr(SW2, 4), S_T3))
    s('v_min_u32 v%d, %d, v%d' % (T, 8 * 128, T))
    s('s_mul_i32 s%d, s%d, %d' % (S_T3, S_T2, 9 * 128))
    s('buffer_load_dword v%d, v%d, %s, s%d offen' % (T + 1, T, sr(SWO, 4), S_T3))


def touch_l2(s, r, t):
    if not OPT['touch'] & 32 or not OPT['rounds'] >> r & 1:
        return
    s('s_add_u32 s%d, s2, %d' % (S_T3, r))
    s('s_and_b32 s%d, s%d, 3' % (S_T3, S_T3))
    s('s_mul_i32 s%d, s%d, 49' % (S_T3, S_T3))
    s('s_lshr_b32 s%d, s2, 6' % S_T2)
    s('s_mul_i32 s%d, s%d, 3' % (S_T2, S_T2))
    s('s_add_u32 s%d, s%d, s%d' % (S_T2, S_T2, S_ROLE))
    s('s_lshl2_add_u32 s%d, s%d, s%d' % (S_T2, S_T2, S_RW))
    s('s_add_u32 s%d, s%d, s%d' % (S_T3, S_T3, S_T2))
    s('s_sub_u32 s%d, s%d, 16' % (S_T3, S_T3))
    s('v_lshlrev_b32 v%d, 3, v%d' % (t, V_L16))
    s('s_lshl_b32 s%d, s%d, 13' % (S_T3, S_T3))
    s('buffer_load_dword v%d, v%d, %s, s%d offen' % (t, t, sr(SW2, 4), S_T3))


def touch_wo(s, t):
    if not OPT['touch'] & (32 | 256):
        return
    s('s_and_b32 s%d, s%d, 3' % (S_T2, S_I2))
    s('s_lshl3_add_u32 s%d, s%d, s%d' % (S_T2, S_T2, S_WV))
    s('v_min_u32 v%d, %d, v%d' % (t, 48 * 16, V_L16))
    s('s_mul_i32 s%d, s%d, %d' % (S_T2, S_T2, 14 * XS))
    s('v_lshlrev_b32 v%d, 3, v%d' % (t, t))
    s('s_add_u32 s%d, s%d, %d' % (S_T3, S_T2, 7 * XS))
    s('buffer_load_dword v%d, v%d, %s, s%d offen' % (t + 1, t, sr(SWO, 4), S_T2))
    s('buffer_load_dword v%d, v%d, %s, s%d offen' % (t + 1, t, sr(SWO, 4), S_T3))


def ks_dyn(s, dst, u):
    if u < 24:
        s('s_xor_b32 s%d, s%d, %d' % (dst, S_RO, unit_ks(u)))
    else:
        s('s_and_b32 s%d, s%d, 3' % (dst, S_RO))
        s('s_xor_b32 s%d, s%d, %d' % (dst, dst, unit_ks(u)))


def dma_b2(s, u):
    base, _, off = unit_loc(u)
    if u < 28:
        ks_dyn(s, S_T3, u)
        if OPT['x_hit'] & 2:
            s('s_and_b32 s%d, s%d, 7' % (S_T3, S_T3))
        s('s_add_u32 m0, s%d, %d' % (base, off))
        s('s_mul_i32 s%d, s%d, %d' % (S_T3, S_T3, 16 * XS))
        s('s_add_u32 s%d, s%d, s%d' % (S_T3, S_T3, S_B2R))
        s('buffer_load_dwordx4 v%d, %s, s%d offen lds' % (V_B2, sr(SW2, 4), S_T3), ('b', u))
        s('buffer_load_dwordx4 v%d, %s, s%d offen offset:1024 lds' % (V_B2B, sr(SW2, 4), S_T3), ('b', u))
        return
    s('s_add_u32 m0, s%d, %d' % (base, off))
    for h in range(2):
        p, r = divmod(2 * (u - 28) + h, 7)
        row = 112 * p + (8 * r if r <= 3 else 56 + 8 * (r - 4))
        s('s_add_u32 s%d, s%d, %d' % (S_T3, S_WOR, row * XS - h * 1024))
        s('buffer_load_dwordx4 v%d, %s, s%d offen offset:%d lds' % (V_B2S if r == 3 else V_B2, sr(SWO, 4), S_T3, h * 1024), ('b', u))


V_OUT, V_RD, V_U = 8, 9, 248


def res_load(R):
    s = Seg()
    s('v_lshrrev_b32 v%d, 3, v0' % (R + 8))
    s('v_and_b32 v%d, 0x70, v%d' % (R + 9, V_L16))
    s('v_mul_u32_u24 v%d, %d, v%d' % (R + 8, XS, R + 8))
    s('s_lshl_b32 s%d, s%d, 7' % (S_T2, S_ROLE))
    s('v_add_u32 v%d, v%d, v%d' % (R + 8, R + 8, R + 9))
    s('buffer_load_dwordx4 %s, v%d, %s, s%d offen' % (vr(R, 4), R + 8, sr(SX, 4), S_OUTO), 'res')
    s('buffer_load_dwordx4 %s, v%d, %s, s%d offen' % (vr(R + 4, 4), R + 9, sr(SB2, 4), S_T2), 'res')
    return s


def res_unpack(R):
    z, U = Seg(), V_U
    z('v_mov_b32 v%d, v%d' % (V_OUT, R + 8))
    z.wait(vm='res')
    for k in range(4):
        z('v_lshlrev_b32 v%d, 16, v%d' % (U + 2 * k, R + k))
        z('v_and_b32 v%d, 0xffff0000, v%d' % (U + 2 * k + 1, R + k))
        z('v_lshlrev_b32 v%d, 16, v%d' % (R + k, R + 4 + k))
        z('v_and_b32 v%d, 0xffff0000, v%d' % (R + 4 + k, R + 4 + k))
        z('v_add_f32 v%d, v%d, v%d' % (U + 2 * k, U + 2 * k, R + k))
        z('v_add_f32 v%d, v%d, v%d' % (U + 2 * k + 1, U + 2 * k + 1, R + 4 + k))
    return z


RES_F, RES_KA, RES_KB = 108, V_X + 84, V_ACC


def abuf(u, rg):
    return V_AB + 8 * (u % DEP) + 4 * rg if u < 28 else V_AB + 64 + 8 * (u - 28) + 4 * rg


def a_setup(s):
    s('v_add_u32 v%d, %d, v%d' % (V_L16B, ACT_G, V_L16))
    s('s_mul_i32 s%d, s%d, 7168' % (S_T0, S_RW))
    s('s_add_u32 s%d, s%d, s%d' % (S_P, S_A, S_T0))
    s('s_add_u32 s%d, s%d, %d' % (S_P, S_P, 112 * 1024))
    s('s_add_u32 s%d, s%d, 4096' % (S_RO3, S_P))
    s('s_mul_i32 s%d, s%d, %d' % (S_T0, S_RW, 28 * 1024))
    s('s_add_u32 s%d, s%d, s%d' % (S_A, S_A, S_T0))


def aload(z, u):
    ks_dyn(z, S_T0, u)
    z('s_lshl_b32 s%d, s%d, 10' % (S_T0, S_T0))
    z('s_add_u32 s%d, s%d, s%d' % (S_T0, S_T0, S_A))
    for rg in range(2):
        z('buffer_load_dwordx4 %s, v%d, %s, s%d offen sc1' % (vr(abuf(u, rg), 4), V_L16B if rg else V_L16, sr(SWS, 4), S_T0), ('a', u))


def sync_arrive(s, k):
    s('ds_write_b32 v%d, v%d offset:%d' % (V_PA, V_ONE, k * 32))


def sync_wait(s, k, nw, T):
    j = nspin[0]
    nspin[0] += 1
    s('v_mov_b32 v%d, %d' % (T + 8, M_SY))
    s('L_sy%d:' % j)
    for h in range(nw // 4):
        s('ds_read_b128 %s, v%d offset:%d' % (vr(T + 4 * h, 4), T + 8, k * 32 + h * 16))
    s('s_add_u32 s%d, s%d, 1' % (S_SPIN, S_SPIN))
    s('s_cmp_gt_u32 s%d, 0x%x' % (S_SPIN, SPIN_LIMIT))
    s('s_cbranch_scc1 L_sz%d' % j)
    s.wait(lgkm='all')
    for h in range(1, nw - 1, 2):
        s('v_and_b32 v%d, v%d, v%d' % (T + h, T + h, T + h + 1))
    for h in range(1, nw, 2):
        s('v_and_b32 v%d, v%d, v%d' % (T, T, T + h))
    s('v_readfirstlane_b32 s%d, v%d' % (S_T2, T))
    s('s_cmp_eq_u32 s%d, 0' % S_T2)
    s('s_cbranch_scc1 L_sy%d' % j)
    s('L_sz%d:' % j)
    s.wait(lgkm='all')


def flag(s, off):
    if OPT['fatom']:
        s('buffer_atomic_add v%d, v%d, %s, s%d offen offset:%d sc1' % (V_ONE, V_FLO, sr(SWS, 4), S_FL, off))
    else:
        s('buffer_store_dword v%d, v%d, %s, s%d offen offset:%d sc1' % (V_ONE, V_FLO, sr(SWS, 4), S_FL, off))


def f0_load(s):
    s('buffer_load_dword v%d, v%d, %s, 0 offen sc1' % (V_POLL, V_FLO, sr(SDBG, 4)), 'f0')


def f0_check(s):
    s('v_mov_b32 v%d, 32' % (V_T + 15))
    stamp(s, 'f0a')
    s.wait(vm='f0')
    stamp(s, 'f0b')
    spin_check(s, V_POLL, V_T + 15, V_FLO, SDBG, '0', 1)


def poll_early(s):
    poll_base(s)
    poll_async(s, 0)


def xreg(c, j):
    return V_X + 16 * c + 4 * j


def dots(s, c):
    for j in range(4):
        s.wait(lgkm=[('x', c, j)])
        for r in range(4):
            x = xreg(c, j) + r
            s('v_dot2c_f32_bf16 v%d, s%d, v%d' % (V_ST + (r & 1), S_ONES, x))
            s('v_dot2c_f32_bf16 v%d, v%d, v%d' % (V_ST + 2 + (r & 1), x, x))


def stats_pack(s):
    T = V_T
    s('v_add_f32 v%d, v%d, v%d' % (T, V_ST, V_ST + 1))
    s('v_add_f32 v%d, v%d, v%d' % (T + 2, V_ST, V_ST + 1))
    s('v_add_f32 v%d, v%d, v%d' % (T + 1, V_ST + 2, V_ST + 3))
    s('v_add_f32 v%d, v%d, v%d' % (T + 3, V_ST + 2, V_ST + 3))
    s('v_permlane32_swap_b32 v%d, v%d' % (T, T + 2))
    s('v_permlane32_swap_b32 v%d, v%d' % (T + 1, T + 3))
    s('v_add_f32 v%d, v%d, v%d' % (T, T, T + 2))
    s('v_add_f32 v%d, v%d, v%d' % (T + 1, T + 1, T + 3))
    s('v_mul_f32 v%d, %s, v%d' % (T, f32(1.0 / 448), T))
    s('v_mul_f32 v%d, %s, v%d' % (T + 1, f32(1.0 / 448), T + 1))
    s('v_fma_f32 v%d, -v%d, v%d, v%d' % (T + 1, T, T, T + 1))
    s('v_max_f32 v%d, 0, v%d' % (T + 1, T + 1))
    s('v_cvt_pk_bf16_f32 v%d, v%d, v%d' % (T + 1, T + 1, T + 1))
    s('v_lshlrev_b32 v%d, 16, v%d' % (T + 1, T + 1))
    s('v_add_f32 v%d, %s, v%d' % (T + 1, f32(1e-5), T + 1))
    s('v_cvt_pk_bf16_f32 v%d, v%d, v%d' % (T + 1, T + 1, T + 1))
    s('v_lshlrev_b32 v%d, 16, v%d' % (T + 1, T + 1))
    s('v_sqrt_f32 v%d, v%d' % (T + 1, T + 1))
    s('v_cvt_pk_bf16_f32 v%d, -v%d, v%d' % (T, T, T + 1))
    s('ds_write_b32 v%d, v%d' % (V_EXR, T))


def stats_final(kind, read=True):
    s, T = Seg(), V_T
    if read:
        s('ds_read_b32 v%d, v%d' % (T, V_EXR), 'st')
        s.wait(lgkm='st')
    s('v_and_b32 v%d, 0xffff0000, v%d' % (V_ST + 2, T))
    s('v_rcp_f32 v%d, v%d' % (V_ST + 3, V_ST + 2))
    s('v_cndmask_b32 v%d, v%d, 0, %s' % (T, T, sr(S_HI, 2)))
    s('v_and_b32 v%d, 0xffff, v%d' % (T + 1, T))
    s('v_lshl_or_b32 v%d, v%d, 16, v%d' % (V_EXR, T, T + 1))
    s('v_lshrrev_b32 v%d, 16, v%d' % (V_EXR + 1, T))
    if kind == 'gelu':
        s('v_mul_f32 v%d, %s, v%d' % (V_ST, f32(GC1), V_ST + 3))
        s('v_mul_f32 v%d, v%d, v%d' % (T, V_ST + 3, V_ST + 3))
        s('v_mul_f32 v%d, %s, v%d' % (V_ST + 1, f32(GC3), V_ST + 3))
        s('v_mul_f32 v%d, v%d, v%d' % (V_ST + 1, T, V_ST + 1))
    else:
        s('v_mul_f32 v%d, s%d, v%d' % (V_ST, S_L2E, V_ST + 3))
    return s


def ext_parts(acc, off, exw, swap, bias=None, T=V_T + 8):
    r, b, m = Seg(), Seg(), Seg()
    tag = ('cs', id(r))
    r('ds_read_b128 %s, v%d offset:%d' % (vr(T, 4), V_CSR, off), tag)
    b.wait(lgkm=[tag])
    b('v_add_f32 v%d, v%d, v%d' % (T, T, T + 1))
    b('v_add_f32 v%d, v%d, v%d' % (T + 2, T + 2, T + 3))
    b('v_add_f32 v%d, v%d, v%d' % (T, T, T + 2))
    b('v_cvt_pk_bf16_f32 v%d, v%d, v%d' % (T + 1, T, T))
    b('v_lshlrev_b32 v%d, 16, v%d' % (T + 1, T + 1))
    b('v_sub_f32 v%d, v%d, v%d' % (T + 1, T, T + 1))
    b('v_cvt_pk_bf16_f32 v%d, v%d, v%d' % (exw, T, T + 1))
    if bias is not None:
        r('v_mov_b32 v%d, v%d' % (exw + 1, bias))
    x, y = (V_EXR, exw) if swap else (exw, V_EXR)
    m('v_mfma_f32_32x32x8_bf16 %s, %s, %s, %s' % (vr(acc, 16), vr(x, 2), vr(y, 2), vr(acc, 16)))
    KEEP.append(r)
    return r, b, m


KEEP = []


def head(parts, stats=None):
    st = [i for i in stats if i is not GAP] if stats is not None else []
    out = st[:1]
    for p in parts:
        out += p[0]
    out += st[1:]
    for p in parts:
        out += p[1]
    for p in parts:
        out += p[2]
    return out


def epi_rowlane(kind, acc, tag, handoff=False, keep=None):
    s, T = Seg(), V_T
    for grp in range(4):
        a = [acc + 4 * grp + e for e in range(4)]
        t = [T + e for e in range(4)]
        if kind == 'gelu':
            for e in range(4):
                s('v_mul_f32 v%d, v%d, v%d' % (t[e], a[e], a[e]))
            for e in range(4):
                s('v_fma_f32 v%d, v%d, v%d, v%d' % (t[e], t[e], V_ST + 1, V_ST))
            for e in range(4):
                s('v_mul_f32 v%d, v%d, v%d' % (t[e], a[e], t[e]))
            for e in range(4):
                s('v_exp_f32 v%d, v%d' % (t[e], t[e]))
            for e in range(4):
                s('v_fma_f32 v%d, v%d, v%d, v%d' % (t[e], t[e], V_ST + 2, V_ST + 2))
            for e in range(4):
                s('v_rcp_f32 v%d, v%d' % (t[e], t[e]))
            for e in range(4):
                s('v_mul_f32 v%d, v%d, v%d' % (a[e], a[e], t[e]))
        else:
            for e in range(4):
                s('v_mul_f32 v%d, v%d, v%d' % (t[e], a[e], V_ST))
            for e in range(4):
                s('v_exp_f32_e64 v%d, v%d clamp' % (t[e], t[e]))
            for e in range(4):
                s('v_fma_f32 v%d, v%d, v%d, s%d' % (a[e], a[e], V_ST + 3, S_EPS))
            for e in range(4):
                s('v_max_f32 v%d, s%d, v%d' % (a[e], S_EPS, a[e]))
            for e in range(4):
                s('v_add_f32 v%d, v%d, v%d' % (a[e], a[e], t[e]))
        p = acc + 8 * (grp >> 1) + 2 * (grp & 1) if keep is None else keep + 2 * grp
        s('v_cvt_pk_bf16_f32 v%d, v%d, v%d' % (p, a[0], a[1]))
        s('v_cvt_pk_bf16_f32 v%d, v%d, v%d' % (p + 1, a[2], a[3]))
        if kind == 'phi' and grp == 3:
            s('v_cndmask_b32 v%d, v%d, 0, %s' % (p, p, sr(S_HI, 2)))
            s('v_cndmask_b32 v%d, v%d, 0, %s' % (p + 1, p + 1, sr(S_HI, 2)))
        if grp & 1 and keep is None:
            f = grp >> 1
            if handoff:
                s('ds_write_b128 v%d, %s offset:%d' % (V_RA, vr(acc + 8 * f, 4), f * 1024))
                continue
            s('buffer_store_dwordx4 %s, v%d, %s, s%d offen offset:%d sc1' % (vr(acc + 8 * f, 4), V_L16, sr(SWS, 4), S_H, f * 1024), tag)
    return s


def lc_role(ffn):
    kind = 'gelu' if ffn else 'phi'
    RING[0] = 14
    nm = 'f' if ffn else 'q'
    s, T = Seg(nm), V_T
    if not ffn:
        s('L_q:')
    if OPT['twat'] < -1:
        touch_w(s, ffn)
    s('s_mul_i32 s%d, s%d, %d' % (S_T1, S_G, 64 if ffn else 56))
    s('v_lshrrev_b32 v%d, 1, v%d' % (T + 6, T + 10))
    s('v_lshl_add_u32 v%d, v%d, 3, s%d' % (T + 5, T + 14, S_T1))
    s('v_lshlrev_b32 v%d, 6, v%d' % (T + 6, T + 6))
    s('v_xor_b32 v%d, v%d, v%d' % (T + 5, T + 5, T + 6))
    s('v_lshl_add_u32 v%d, v%d, 7, v%d' % (V_WA, T + 12, T + 5))
    for j in range(1, 4):
        s('v_xor_b32 v%d, %d, v%d' % (V_WA + j, j << 11, V_WA))
    srd(s, SWS, WS_BYTES)
    srd(s, SDBG, 256)
    s('s_waitcnt lgkmcnt(0)')
    if not ffn:
        s('s_lshl1_add_u32 s%d, s%d, s%d' % (S_T2, S_RB, S_HALF))
        s('s_mul_i32 s%d, s%d, 6' % (S_T1, S_T2))
        s('s_add_u32 s%d, s%d, s%d' % (S_T1, S_T1, S_WV))
        s('s_lshl_b32 s%d, s%d, 10' % (S_T1, S_T1))
        s('s_add_u32 s%d, s%d, 0x%x' % (S_T1, S_T1, KV_OFF))
        s('s_lshl_b32 s%d, s%d, 10' % (S_LAST, S_T2))
        s('s_add_u32 s%d, s%d, 0x%x' % (S_LAST, S_LAST, ST_OFF))
        s('s_cmp_lt_u32 s%d, 6' % S_WV)
        s('s_cselect_b32 s%d, s%d, 0x%x' % (S_T1, S_T1, OOB))
        s('s_cmp_eq_u32 s%d, 6' % S_WV)
        s('s_cselect_b32 s%d, s%d, s%d' % (S_T1, S_LAST, S_T1))
        s('buffer_store_dwordx4 %s, v%d, %s, s%d offen sc1' % (vr(V_ST, 4), V_L16, sr(SWS, 4), S_T1), 'zero')
    s('s_cmp_eq_u32 s%d, 1' % S_G)
    s('s_cbranch_scc1 L_%sb' % nm)
    UA, UB = [([(), (5,), (7,)], [(0, 1), (2,), (3, 4, 6)]), ([(), (5, 6), ()], [(0, 1), (2,), (3, 4, 7)]),
              ([(0,), (5, 6), (7,)], [(1,), (2,), (3, 4)])][OPT['ub']]
    step = 128 if ffn else 112
    region = [R0, R1, R0, R1]
    acc = V_ACC

    def stream(g):
        z = Seg(nm + 'ab'[g])
        if g:
            z('L_%sb:' % nm)
        xa = Rebase([V_XA + j for j in range(4)], 0, 0)
        wa = Rebase([V_WA + j for j in range(4)], 0, 512)

        def triple(t, c):
            dma_x(t, c, XSLOT[c], ('t', c))
            if g:
                dma_w(t, S_M0W, c, R0 + c * 8192, ('t', c))

        def lc(t, q, c):
            if ffn and q == 3:
                t('s_add_u32 m0, s%d, %d' % (S_M0W, R1 + c * 4096))
                t('buffer_load_dwordx4 v%d, %s, s%d offen lds' % (V_W3, sr(SW, 4), S_KW + c), ('l', q, c))
                return
            dma_w(t, S_M0W, c, region[q] + c * 8192, ('l', q, c))

        def wread(t, q, c, j):
            half = ffn and q == 3
            o = c * 4096 if half else wa.off(t, region[q] + c * 8192)
            for u in range(2):
                t('ds_read_b64_tr_b16 %s, v%d offset:%d' % (vr(V_WF + 4 * j + 2 * u, 2), V_WA + j, o + u * (256 if half else 512)), ('w', q, c, j))

        def xread(t, c, j):
            o = xa.off(t, XSLOT[c])
            t('ds_read_b128 %s, v%d offset:%d' % (vr(xreg(c, j), 4), V_XA + j, o), ('x', c, j))

        def kstep(q, c, j):
            t = Seg()
            t.wait(lgkm=[('w', q, c, j | OPT['wj'])])
            first = c == 0 and j == 0
            t('v_mfma_f32_32x32x16_bf16 %s, %s, %s, %s' % (vr(acc, 16), vr(V_WF + 4 * j, 4), vr(xreg(c, j), 4), '0' if first else vr(acc, 16)))
            if j == 0:
                t('v_mfma_f32_16x16x32_bf16 %s, %s, %s, %s' % (vr(V_CS, 4), vr(V_SEL, 4), vr(V_WF + 4 * j, 4), '0' if first else vr(V_CS, 4)))
            if c < 6:
                wread(t, q, c + 1, j)
            return t

        def preread(t, q):
            for j in range(4):
                wread(t, q, 0, j)

        def gemm(t, q, fill=(), extra=None):
            t('s_setprio 1')
            slots = [kstep(q, c, j) for c in range(7) for j in range(4)]
            for k, gi in enumerate(groups(extra) if extra is not None else []):
                slots[min(1 + OPT['gsp'] * k, 27)].extend(gi)
            slots[26]('ds_write_b32 v%d, v%d' % (V_CSW, V_CS))
            t.extend(interleave(slots, list(fill), 0, 20))

        def next_col(t, last=False):
            if last and ffn:
                t('s_lshr_b32 s%d, s%d, 1' % (S_M0W, S_M0W))
                return
            for r in (V_W, V_WB):
                t('v_add_u32 v%d, %d, v%d' % (r, step, r))

        def epi(t, q, extra=None, pre=None, handoff=False, hi=0.85, keep=False, nxt=None, lo=0.03, early=2):
            grp = groups(extra) if extra is not None else []
            t('s_setprio 2')
            t.extend(head([ext_parts(acc, 0, V_EXW, False, V_B1 + q if ffn else None)], pre))
            if not keep:
                t('s_setprio %d' % OPT['eprio'])
            stamp(t, 'x%d' % (2 * q + g + 1))
            for gi in grp[:early]:
                t.extend(gi)
            body = mix(epi_rowlane(kind, acc, ('h', q), handoff, None if ffn else V_PQ + 8 * q), grp[early:], lo, hi)
            if ffn:
                r = Seg()
                touch_fl2(r, 2 * q + g + 1, V_XA + 1)
                body = mix(body, [list(r)], OPT['tfp'] / 100, 1.0)
            if nxt is not None:
                r = Seg()
                if ffn and not g and nxt == 3:
                    for k in range(4):
                        r('v_xor_b32 v%d, %d, v%d' % (V_WA + k, k << 10, V_WA3))
                preread(r, nxt)
                body = mix(body, [[i] for i in r], 0.55, 0.95) if OPT['pmix'] else body + list(r)
            t.extend(body)
            if ffn:
                t('s_add_u32 s%d, s%d, 4096' % (S_H, S_H))

        def duty(q, chunks, units=(), step_col=True):
            d = Seg()
            if step_col:
                next_col(d, q == 3)
            for k in chunks:
                lc(d, q, k)
            if ffn:
                for u in units:
                    dma_b2(d, u)
            return d

        late = deferred(False)
        late('s_lshl2_add_u32 s%d, s%d, s%d' % (S_H, S_RB, S_RW))
        late('s_mul_i32 s%d, s%d, %d' % (S_H, S_H, ACT_G))
        late('s_add_u32 s%d, s%d, %d' % (S_H, S_H, g * 2048 if ffn else g * 7168 + 112 * 1024))
        late('s_mul_i32 s%d, s%d, %d' % (S_T1, S_T0 if ffn else S_HALF, 32 if ffn else 14336))
        late('s_add_u32 s%d, s%d, s%d' % (S_H, S_H, S_T1))
        if ffn:
            late('s_add_u32 s%d, s%d, %d' % (S_T1, S_M0W, HND))
            late('v_add_u32 v%d, s%d, v%d' % (V_RA, S_T1, V_L16))
            late('s_mul_i32 s%d, s%d, -7' % (S_LAST, S_PEND))
            late('s_add_u32 s%d, s%d, s%d' % (S_LAST, S_LAST, S_T0))
            late('s_add_u32 s%d, s%d, 384' % (S_LAST, S_LAST))
            late('v_lshrrev_b32 v%d, 2, v%d' % (T + 5, T))
            late('v_lshl_add_u32 v%d, s%d, 4, v%d' % (T + 5, S_RW, T + 5))
            late('v_mul_u32_u24 v%d, %d, v%d' % (T + 5, W1S, T + 5))
            late('v_lshl_add_u32 v%d, v%d, 4, s%d' % (V_W3, T + 11, S_LAST))
            late('v_add_u32 v%d, v%d, v%d' % (V_W3, V_W3, T + 5))
            if not g:
                late('v_lshl_add_u32 v%d, v%d, 3, v%d' % (T + 5, T + 12, T + 14))
                late('v_lshlrev_b32 v%d, 3, v%d' % (T + 5, T + 5))
                late('v_add_u32 v%d, %d, v%d' % (V_WA3, R1, T + 5))
            srd(late, SB1, 1792 * 2)
            late('v_lshlrev_b32 v%d, 1, v%d' % (T + 5, T + 8))
            for q in range(3):
                late('buffer_load_ushort v%d, v%d, %s, s%d offen offset:%d' % (V_B1 + q, T + 5, sr(SB1, 4), S_T0, q * 128 + g * 64), 'b1')
            if not g:
                late('buffer_load_ushort v%d, v%d, %s, s%d offen' % (V_B1 + 3, T + 5, sr(SB1, 4), S_LAST), 'b1')
        if g:
            late('s_mov_b32 s%d, 0x%x' % (S_FL, OOB))
        else:
            late('s_lshr_b32 s%d, s%d, 1' % (S_T1, S_P) if ffn else 's_lshl_b32 s%d, s%d, 1' % (S_T1, S_HALF))
            late('s_lshl2_add_u32 s%d, s%d, s%d' % (S_T1, S_RB, S_T1))
            late('s_mul_i32 s%d, s%d, %d' % (S_FL, S_T1, FL_G))
            late('s_lshl1_add_u32 s%d, s%d, s%d' % (S_FL, S_PEND, S_FL))
            late('s_lshl_b32 s%d, s%d, 28' % (S_T1, S_RW))
            late('s_add_u32 s%d, s%d, s%d' % (S_FL, S_FL, S_T1))
            late('s_add_u32 s%d, s%d, 0x%x' % (S_FL, S_FL, FL_OFF))
        NL = OPT['nlate']

        def some(k):
            return late[len(late) * k // NL:len(late) * (k + 1) // NL] if k < NL else []

        triple(z, 1)
        estamp(z, 't1')
        z.extend(some(0))
        if OPT['tat'] < -1:
            touch_w2(z)
        z('s_barrier')
        if g:
            z('s_setprio 1')
        triple(z, 2)
        for c in range(-1, 7):
            if c < 6:
                barrier(z, ['t0', 'zero'] if c < 0 else [('t', c + 1)], 's%d' % c if c >= 0 else 'pre')
            if c < 0:
                stamp(z, 1)
                if not ffn and not g:
                    z('s_lshl_b32 s%d, s%d, 28' % (S_T2, S_WV))
                    z('buffer_atomic_add v%d, v%d, %s, s%d offen sc1' % (V_ONE, V_FLO, sr(SDBG, 4), S_T2))
            d = Seg()
            if c < 3:
                triple(d, c + 4)
            if c == OPT['tat']:
                touch_w2(d)
            if c == 3:
                next_col(d)
            for k in {3: ([], [0]), 4: ([], [1]), 5: ([], [2]), 6: ([3], [])}.get(c, ([], []))[g]:
                lc(d, 1, k)
            if c == 4 and ffn:
                p2_setup(d)
            if c == OPT['twat']:
                if ffn or not OPT['touch'] & 64:
                    touch_w(d, ffn)
                else:
                    touch_qv(d)
            if g:
                if c == 6:
                    break
                for j in range(4):
                    xread(z, c + 1, j)
                if c < 5:
                    z.extend(mix(some(c + 2), groups(d)))
                if c == 3:
                    preread(z, 0)
                dots(z, c + 1)
                if c == 5:
                    stats_pack(z)
                    if not ffn:
                        z('buffer_store_dword v%d, v%d, %s, s%d offen sc1' % (T, V_EXR + 1, sr(SWS, 4), S_LAST))
                    z.extend(d)
                    z.extend(stats_final(kind, False))
            else:
                for j in range(4):
                    if c == 6:
                        z.wait(lgkm=[('x', c, j)])
                    if c >= 0:
                        z.extend(kstep(0, c, j))
                    else:
                        wread(z, 0, 0, j)
                    if c < 6:
                        xread(z, c + 1, j)
                z.extend(mix(some(c + 2), groups(d)))
                if c == 6:
                    z.insert(len(z) - 1, Ins('ds_write_b32 v%d, v%d' % (V_CSW, V_CS)))
        if g:
            barrier(z, [('l', 1, 0), 'b1'])
        else:
            barrier(z, 'b1')
        stamp(z, 2)
        if not g:
            d = Seg()
            f0_load(d)
            NE = OPT['ne']
            epi(z, 0, d, pre=stats_final(kind), nxt=1)
            barrier(z, [('l', 1, 3)], 'e1')
            stamp(z, 'h1')
            gemm(z, 1, extra=duty(2, range(NE, 5)))
            f0_check(z)
            barrier(z, [('h', 0)], 'e2')
            stamp(z, 'h2')
            d = duty(0, (), UA[0], False)
            if ffn:
                d.extend(res_load(RES_F))
            epi(z, 1, d, nxt=2, lo=0.5, early=2 * len(UA[0]))
            barrier(z, [('l', 2, 4)], 'e3')
            stamp(z, 3)
            if ffn:
                flag(z, 0)
            gemm(z, 2, extra=duty(3, range(NE, 5), UA[1]))
            barrier(z, [('h', 1)], 'e4')
            stamp(z, 'h4')
            epi(z, 2, duty(0, (), UA[2], False), nxt=3)
            barrier(z, [('l', 3, 4)], 'e5')
            stamp(z, 4)
            if ffn:
                flag(z, 256)
            gemm(z, 3, extra=duty(0, (), (11, 12, 13), False))
            barrier(z, [('b', u) for u in UA[1] + UA[2]], 'e6')
            stamp(z, 5)
            if ffn:
                z('ds_read_b128 %s, v%d' % (vr(V_WF, 4), V_RA), 'hnd')
                z('ds_read_b128 %s, v%d offset:1024' % (vr(V_WF + 4, 4), V_RA), 'hnd')
                z('s_sub_u32 s%d, s%d, 2048' % (S_T0, S_H))
                z('s_cmp_eq_u32 s%d, 0' % S_PEND)
                z('s_cselect_b32 s%d, 0, %d' % (S_T1, 3 * 4096 + 2048))
                z('s_sub_u32 s%d, s%d, s%d' % (S_H, S_H, S_T1))
                d = Seg()
                d.wait(lgkm='hnd')
                for f in range(2):
                    d('buffer_store_dwordx4 %s, v%d, %s, s%d offen offset:%d sc1' % (vr(V_WF + 4 * f, 4), V_L16, sr(SWS, 4), S_T0, f * 1024), 'h5')
                epi(z, 3, d, keep=True)
                z('s_lshl1_add_u32 s%d, s%d, s%d' % (S_T0, S_RB, S_HALF))
                z('s_lshl_b32 s%d, s%d, 9' % (S_T0, S_T0))
                z('s_add_u32 s%d, s%d, s%d' % (S_T0, S_T0, S_ROLE))
                z('s_lshl_b32 s%d, s%d, 28' % (S_T1, S_RW))
                z('s_lshl2_add_u32 s%d, s%d, s%d' % (S_T0, S_T0, S_T1))
                z('s_add_u32 s%d, s%d, 0x%x' % (S_T0, S_T0, FO_OFF + 8))
                z('v_cmp_gt_u32 vcc, 0x100, v%d' % V_L16)
                z('v_lshlrev_b32 v%d, 3, v%d' % (V_PL, V_L16))
                z('v_cndmask_b32 v%d, v%d, v%d, vcc' % (V_PL, V_FLO, V_PL))
                z.wait(vm=[('h', 3)])
                sync_arrive(z, 0)
                sync_wait(z, 0, 4, T)
                z('buffer_store_dword v%d, v%d, %s, s%d offen sc1' % (V_ONE, V_PL, sr(SWS, 4), S_T0))
                z.extend(res_unpack(RES_F))
                stamp(z, 6)
                z('s_branch L_p2a')
            else:
                d = Seg()
                touch_wo(d, V_XA)
                epi(z, 3, d)
                q_fetch(z)
                z('s_branch L_qo')
            return z
        d = duty(1, (4, 5, 6), (), False)
        if ffn:
            d.extend(res_load(RES_F))
        gemm(z, 0, extra=d)
        barrier(z, [('l', 1, 6)], 'e1')
        stamp(z, 'h1')
        for q in (1, 2):
            d = duty(q + 1, range(OPT['ne']), UB[1] if q == 2 else ())
            if ffn and OPT['touch'] & 128 and 2 * q == OPT['tfat']:
                d('s_nop 0')
                touch_ffn(d, V_XA)
            epi(z, q - 1, d, nxt=q, lo=0.2)
            barrier(z, [('l', q + 1, 0)], 'e%d' % (2 * q))
            stamp(z, 'h%d' % (2 * q))
            d = duty(q + 1, (5, 6), (), False)
            if ffn and q == 2:
                poll_early(d)
            d.extend(duty(0, (), UB[2 * q - 2], False))
            gemm(z, q, extra=d)
            barrier(z, [('l', q + 1, 6)], 'e%d' % (2 * q + 1))
            stamp(z, q + 2)
        if ffn:
            d = Seg()
            a_setup(d)
            stage_check(d, 0)
            for u in range(OPT['na']):
                aload(d, u)
            for u in range(8, 8 + OPT['nb']):
                dma_b2(d, u)
            epi(z, 2, d, handoff=True, hi=1.0)
            barrier(z, None, 'e6')
            z('s_branch L_p2f')
        else:
            d = Seg()
            touch_wo(d, V_XA)
            epi(z, 2, d, nxt=3)
            barrier(z)
            stamp(z, 5)
            gemm(z, 3)
            barrier(z)
            epi(z, 3)
            stamp(z, 6)
        return z

    return s, stream(0), stream(1)


def q_fetch(s):
    T, RAW = V_T, V_X
    s('s_lshl2_add_u32 s%d, s%d, s%d' % (S_T0, S_HALF, S_RW))
    s('s_lshl_b32 s%d, s%d, 8' % (S_PL, S_T0))
    s('s_add_u32 s%d, s%d, 0x%x' % (S_PL, S_PL, FKV_OFF))
    s('s_lshl_b32 s%d, s%d, 13' % (S_T0, S_T0))
    s('s_add_u32 s%d, s%d, 0x%x' % (S_T0, S_T0, KV_OFF))
    s('s_add_u32 s%d, s%d, 4096' % (S_T3, S_T0))
    s('v_cmp_gt_u32 vcc, 32, v%d' % V_L16)
    s('v_lshlrev_b32 v%d, 3, v%d' % (V_PL, V_L16))
    s('v_cndmask_b32 v%d, v%d, v%d, vcc' % (V_PL, V_FLO, V_PL))
    s('v_lshrrev_b32 v%d, 2, v%d' % (T, V_L16))
    s('s_lshl1_add_u32 s%d, s%d, %d' % (S_T1, S_M0W, R2))
    s('v_add_u32 v%d, s%d, v%d' % (T + 1, S_T1, V_L16))
    s('s_barrier')
    stamp(s, 6)
    j = nspin[0]
    nspin[0] += 1
    s('L_qs%d:' % j)
    s('v_mov_b32 v%d, 0' % V_POLL)
    s('buffer_atomic_add v%d, v%d, %s, s%d offen sc0 sc1' % (V_POLL, V_PL, sr(SWS, 4), S_PL))
    s('s_add_u32 s%d, s%d, 1' % (S_SPIN, S_SPIN))
    s('s_cmp_gt_u32 s%d, 0x%x' % (S_SPIN, SPIN_LIMIT))
    s.wait(vm='all')
    s('s_cbranch_scc1 L_qz%d' % j)
    s('v_cmp_le_u32 vcc, 16, v%d' % V_POLL)
    s('s_andn2_b32 s%d, 3, vcc_lo' % S_T2)
    s('s_cbranch_scc1 L_qs%d' % j)
    s('L_qz%d:' % j)
    stamp(s, 7)
    if OPT['qsplit']:
        return
    for r in range(32):
        s('buffer_load_dword v%d, v%d, %s, s%d offen offset:%d sc1' % (RAW + r, T, sr(SWS, 4), S_T3 if r >= 16 else S_T0, (r & 15) * 256), ('kv', r >> 3))
    for f in range(4):
        s.wait(vm=[('kv', f)])
        for k in range(4):
            s('v_cvt_pk_bf16_f32 v%d, v%d, v%d' % (RAW + 8 * f + k, RAW + 8 * f + 2 * k, RAW + 8 * f + 2 * k + 1))
        s('ds_write_b128 v%d, %s offset:%d' % (T + 1, vr(RAW + 8 * f, 4), f * 1024))


def q_out():
    s, T = Seg('qo'), V_T
    NUM, KF, RAW = V_X, V_X + 64, V_X + 96
    s('L_qo:')
    s('s_lshl_b32 s%d, s%d, 11' % (S_T1, S_G))
    s('s_add_u32 s%d, s%d, %d' % (S_T1, S_T1, R2))
    s('v_add_u32 v%d, s%d, v%d' % (T + 2, S_T1, V_L16))
    if OPT['qsplit']:
        s('s_lshl3_add_u32 s%d, s%d, s%d' % (S_T0, S_HALF, S_WV))
        s('s_lshl_b32 s%d, s%d, 12' % (S_T0, S_T0))
        s('s_add_u32 s%d, s%d, 0x%x' % (S_T0, S_T0, KV_OFF))
        s('v_lshrrev_b32 v%d, 2, v%d' % (T, V_L16))
        s('s_add_u32 s%d, s%d, %d' % (S_T1, S_M0X, R2))
        s('v_add_u32 v%d, s%d, v%d' % (T + 1, S_T1, V_L16))
        s('s_barrier')
        for r in range(16):
            s('buffer_load_dword v%d, v%d, %s, s%d offen offset:%d sc1' % (RAW + r, T, sr(SWS, 4), S_T0, r * 256), ('kv', r >> 3))
        for f in range(2):
            s.wait(vm=[('kv', f)])
            for k in range(4):
                s('v_cvt_pk_bf16_f32 v%d, v%d, v%d' % (RAW + 8 * f + k, RAW + 8 * f + 2 * k, RAW + 8 * f + 2 * k + 1))
            s('ds_write_b128 v%d, %s offset:%d' % (T + 1, vr(RAW + 8 * f, 4), f * 1024))
    barrier(s)
    stamp(s, 8)
    for q in range(4):
        for f in range(2):
            s('ds_read_b128 %s, v%d offset:%d' % (vr(KF + 8 * q + 4 * f, 4), T + 2, q * 4096 + f * 1024), ('kf', q, f))
    def num(q):
        z = Seg()
        for f in range(2):
            z.wait(lgkm=[('kf', q, f)])
            z('v_mfma_f32_32x32x16_bf16 %s, %s, %s, %s' % (vr(NUM + 16 * q, 16), vr(KF + 8 * q + 4 * f, 4), vr(V_PQ + 8 * q + 4 * f, 4), vr(NUM + 16 * q, 16) if f else '0'))
        return z

    s.extend(num(0) + num(1))
    O, done = V_X + 96, 0
    s('s_add_u32 s%d, s%d, 4096' % (S_T0, S_H))
    for q in range(4):
        n, p = NUM + 16 * q, q >> 1
        dst = [O + 14 * p + k for k in range(8)] if q % 2 == 0 else [O + 14 * p + 8 + k for k in range(6)] + [T + 6, T + 7]
        s('v_add_f32 v%d, s%d, v%d' % (T + 4, S_EPS, n + 12))
        s('v_add_f32 v%d, s%d, v%d' % (T + 5, S_EPS, n + 12))
        s('v_permlane32_swap_b32 v%d, v%d' % (T + 4, T + 5))
        s('v_rcp_f32 v%d, v%d' % (T + 5, T + 5))
        for f in ((0, 1) if q % 2 == 0 else (1, 0)):
            for k in range(8 * f, 8 * f + 8, 2):
                s('v_pk_mul_f32 %s, %s, %s op_sel:[0,1] op_sel_hi:[1,1]' % (vr(n + k, 2), vr(n + k, 2), vr(T + 4, 2)))
            for k in (2, 3, 0, 1):
                s('v_cvt_pk_bf16_f32 v%d, v%d, v%d' % (dst[4 * f + k], n + 8 * f + 2 * k, n + 8 * f + 2 * k + 1))
            if q % 2 and f:
                for k in range(2):
                    s('v_permlane32_swap_b32 v%d, v%d' % (O + 14 * p + 6 + k, T + 6 + k))
            if q < 2 and f != q:
                s.extend(num(q + 2))
            ready = {(0, 0): 1, (1, 1): 2, (1, 0): 3, (2, 0): 4, (2, 1): 5, (3, 0): 7}.get((q, f), done)
            for v in range(done, ready):
                s('buffer_store_dwordx4 %s, v%d, %s, s%d offen offset:%d sc1' % (vr(O + 4 * v, 4), V_L16, sr(SWS, 4), S_T0 if v >= 4 else S_H, (v & 3) * 1024))
            done = ready
    stamp(s, 9)
    if OPT['opriv']:
        s('s_lshl1_add_u32 s%d, s%d, s%d' % (S_T0, S_RB, S_HALF))
        s('s_lshl_b32 s%d, s%d, 11' % (S_T0, S_T0))
        s('s_lshl_b32 s%d, s%d, 28' % (S_T1, S_WV))
        s('s_add_u32 s%d, s%d, s%d' % (S_T0, S_T0, S_T1))
        s('s_add_u32 s%d, s%d, 0x%x' % (S_T0, S_T0, FO_OFF))
        s('v_cmp_gt_u32 vcc, 0x100, v%d' % V_L16)
        s('v_lshlrev_b32 v%d, 3, v%d' % (T, V_L16))
        s('v_cndmask_b32 v%d, v%d, v%d, vcc' % (T, V_FLO, T))
        barrier(s, 'all')
        s('buffer_store_dword v%d, v%d, %s, s%d offen sc1' % (V_ONE, T, sr(SWS, 4), S_T0))
    else:
        barrier(s, 'all')
        flag(s, 768)
        flag(s, 768 + FL_G)
    s('s_branch L_fin')
    return s


def kv_role():
    s, T = Seg('kv'), V_T
    RING[0] = 11
    s('L_kv:')
    if OPT['twat'] < -1:
        touch_w(s, False, V_EXW)
    s('s_mul_i32 s%d, s%d, 3' % (S_P, S_HALF))
    s('s_add_u32 s%d, s%d, s%d' % (S_P, S_P, S_ROLE))
    s('s_sub_u32 s%d, s%d, 4' % (S_P, S_P))

    def item(t, n):
        if n >= 14:
            if n == 14:
                t('v_add_u32 v%d, %d, v%d' % (V_W, XS, V_W))
                t('v_add_u32 v%d, %d, v%d' % (V_WB, XS, V_WB))
            dma_w(t, S_M0X, n - 14, kv_slot(n), ('i', n))
        elif n & 1:
            dma_w(t, S_M0X, n >> 1, kv_slot(n), ('i', n))
        else:
            dma_x(t, n >> 1, kv_slot(n), ('i', n))

    s('s_lshl_b32 s%d, s%d, 2' % (S_T1, S_P))
    s('s_lshr_b32 s%d, 0xdb9630, s%d' % (S_LAST, S_T1))
    s('s_and_b32 s%d, s%d, 15' % (S_LAST, S_LAST))
    s('s_lshr_b32 s%d, 0x322333, s%d' % (S_PEND, S_T1))
    s('s_and_b32 s%d, s%d, 15' % (S_PEND, S_PEND))
    s('s_add_u32 s%d, s%d, s%d' % (S_T1, S_LAST, S_G))
    s('s_mul_i32 s%d, s%d, 56' % (S_T1, S_T1))
    s('s_lshl_b32 s%d, s%d, 7' % (S_T0, S_P))
    s('s_sub_u32 s%d, s%d, s%d' % (S_T1, S_T1, S_T0))
    s('s_add_u32 s%d, s%d, 1' % (S_T0, S_G))
    s('s_cmp_lt_u32 s%d, s%d' % (S_T0, S_PEND))
    s('s_cselect_b32 s%d, 56, 0' % S_T0)
    s('v_min_u32 v%d, 6, v%d' % (T + 14, T + 14))
    s('v_lshl_add_u32 v%d, v%d, 3, s%d' % (T + 5, T + 14, S_T1))
    s('v_lshlrev_b32 v%d, 6, v%d' % (T + 6, T + 10))
    for t in range(2):
        if t:
            s('v_add_u32 v%d, s%d, v%d' % (T + 5, S_T0, T + 5))
        s('v_xor_b32 v%d, v%d, v%d' % (T + 11, T + 5, T + 6))
        s('v_lshl_add_u32 v%d, v%d, 8, v%d' % (V_WA + 4 * t, T + 12, T + 11))
        for j in range(1, 4):
            s('v_xor_b32 v%d, %d, v%d' % (V_WA + 4 * t + j, j << 12, V_WA + 4 * t))
    srd(s, SWS, WS_BYTES)
    srd(s, SDBG, 256)
    item(s, 2)
    item(s, 3)
    estamp(s, 't1')
    s.extend(deferred(True))
    s('s_lshl1_add_u32 s%d, s%d, s%d' % (S_H, S_RB, S_HALF))
    s('s_lshl3_add_u32 s%d, s%d, s%d' % (S_H, S_H, S_RW))
    s('s_lshl_b32 s%d, s%d, 7' % (S_H, S_H))
    s('s_add_u32 s%d, s%d, 0x%x' % (S_H, S_H, ST_OFF))
    s('v_lshlrev_b32 v%d, 2, v%d' % (V_ST + 1, T + 8))
    s('s_lshl_b32 s%d, s%d, 7' % (S_T0, S_RW))
    s('s_add_u32 s%d, s%d, %d' % (S_T0, S_T0, M_R))
    s('v_lshl_add_u32 v%d, v%d, 4, s%d' % (V_RA, T + 9, S_T0))
    s('v_add_u32 v%d, s%d, v%d' % (V_ST + 2, S_T0, V_ST + 1))
    s('v_mov_b32 v%d, %d' % (T + 5, M_SY + 128))
    s('v_cndmask_b32 v%d, v%d, v%d, %s' % (V_ST + 3, V_RA, T + 5, sr(S_PAD, 2)))
    s('v_mov_b32 v%d, 0' % (V_EXR + 1))
    s('s_waitcnt lgkmcnt(0)')
    if OPT['tat'] < -1:
        touch_w2(s)
    s('s_cmp_eq_u32 s%d, 1' % S_G)
    s('s_cbranch_scc1 L_kb')

    def body(g):
        b = Seg('kb' if g else 'ka')
        if g:
            b('L_kb:')
        xa = Rebase([V_XA + j for j in range(4)], 0, 0)
        wa = [Rebase([V_WA + 4 * t + j for j in range(4)], 0, 1024) for t in range(2)]
        TS = [[0, 1], [1]] if g else [[0], [0, 1]]
        PK1 = V_X + 48

        def witem(q, c):
            return 2 * c + 1 if q == 0 else 14 + c

        def wf(t, j):
            return (V_ACC + 48 if t != g else V_WF) + 4 * j

        def acc(q, t):
            return V_ACC + 16 * (q + t)

        def wread(z, q, c, j, t):
            o = wa[t].off(z, kv_slot(witem(q, c)))
            for u in range(2):
                z('ds_read_b64_tr_b16 %s, v%d offset:%d' % (vr(wf(t, j) + 2 * u, 2), V_WA + 4 * t + j, o + u * 1024), ('w', q, c, j, t))

        def xread(z, c, j):
            o = xa.off(z, kv_slot(2 * c))
            z('ds_read_b128 %s, v%d offset:%d' % (vr(xreg(c, j), 4), V_XA + j, o))

        def kstep(q, c, j):
            out = []
            first = c == 0 and j == 0
            for t in TS[q]:
                z = Seg()
                z.wait(lgkm=[('w', q, c, j, t), ('w', q, c, j, TS[q][-1]) if len(TS[q]) > 1 else ('w', q, c, j | 1, t)] if OPT['wj'] else [('w', q, c, j, t)])
                z('v_mfma_f32_32x32x16_bf16 %s, %s, %s, %s' % (vr(acc(q, t), 16), vr(xreg(c, j), 4), vr(wf(t, j), 4), '0' if first else vr(acc(q, t), 16)))
                if j == 0:
                    z('v_mfma_f32_16x16x32_bf16 %s, %s, %s, %s' % (vr(V_CS + 4 * t, 4), vr(V_SEL, 4), vr(wf(t, j), 4), '0' if first else vr(V_CS + 4 * t, 4)))
                if c < 6:
                    wread(z, q, c + 1, j, t)
                    if q == 0 and t == TS[q][-1]:
                        xread(z, c + 1, j)
                elif q == 0 and not g:
                    wread(z, 1, 0, j, 0)
                if c == 6 and j == 2 and t == TS[q][-1]:
                    for tt in TS[q]:
                        z('ds_write_b32 v%d, v%d offset:%d' % (V_CSW, V_CS + 4 * tt, q * 1536 + (g + tt) * 512))
                out.append(z)
            return out

        def ext(q, t, k):
            return ext_parts(acc(q, t), q * 1536 + (g + t) * 512, (V_EXW, V_EXW + 2, V_CS)[k], True, T=V_T + 4 + 4 * k)

        def rload(z, dst, key, addr=V_RA):
            for i in range(4):
                z('ds_read_b128 %s, v%d offset:%d' % (vr(dst + 4 * i, 4), addr, i * 32), key)

        def stat_load(z):
            z('buffer_load_dword v%d, v%d, %s, s%d offen sc1' % (V_ST, V_ST + 1, sr(SWS, 4), S_H), 'stat')

        def stat_use(z):
            z('v_and_b32 v%d, 0xffff, v%d' % (T, V_ST))
            z('v_lshl_or_b32 v%d, v%d, 16, v%d' % (T, V_ST, T))
            z('v_cndmask_b32 v%d, v%d, 0, %s' % (V_EXR, T, sr(S_HI, 2)))

        def phi_k(t, rb):
            e = Seg()
            for i in range(4):
                a = [acc(0, t) + 4 * i + k for k in range(4)]
                for k in range(4):
                    e('v_fma_f32 v%d, v%d, v%d, s%d' % (a[k], a[k], rb + 4 * i + k, S_EPS))
                for k in range(4):
                    e('v_mul_f32 v%d, s%d, v%d' % (T + k, S_L2E, a[k]))
                for k in range(4):
                    e('v_exp_f32_e64 v%d, v%d clamp' % (T + k, T + k))
                for k in range(4):
                    e('v_max_f32 v%d, s%d, v%d' % (a[k], S_EPS, a[k]))
                for k in range(4):
                    e('v_add_f32 v%d, v%d, v%d' % (a[k], a[k], T + k))
                e('v_cvt_pk_bf16_f32 v%d, v%d, v%d' % (acc(0, t) + 2 * i, a[0], a[1]))
                e('v_cvt_pk_bf16_f32 v%d, v%d, v%d' % (acc(0, t) + 2 * i + 1, a[2], a[3]))
            return e

        def hand_addr(z):
            z('s_mul_i32 s%d, s%d, 10240' % (S_T0, S_RW))
            z('s_add_u32 s%d, s%d, %d' % (S_T0, S_T0, R2 + 8192))
            z('v_add_u32 v%d, s%d, v%d' % (V_XA, S_T0, V_L16))

        def prod_setup(z, rb):
            rload(z, rb, 'r2', V_ST + 3)
            z('v_cndmask_b32 v%d, 0, 1.0, %s' % (V_XA + 1, sr(S_PAD, 2)))
            z('s_lshl_b32 s%d, s%d, 12' % (S_T0, S_RW))
            z('s_add_u32 s%d, s%d, %d' % (S_T0, S_T0, HND))
            z('v_add_u32 v%d, s%d, v%d' % (V_XA + 2, S_T0, V_L16))

        def kv_prod(z, t, pk, rb):
            z.wait(lgkm='r2')
            v, d = acc(1, t), V_X + 16 * t + 64 * g
            for f in range(2):
                for k in range(8 * f, 8 * f + 8):
                    z('v_fma_f32 v%d, v%d, v%d, v%d' % (v + k, v + k, rb + k, V_XA + 1))
                for k in range(4):
                    z('v_cvt_pk_bf16_f32 v%d, v%d, v%d' % (v + 8 * f + k, v + 8 * f + 2 * k, v + 8 * f + 2 * k + 1))
            z('s_setprio 2')
            for f in range(2):
                z('v_mfma_f32_32x32x16_bf16 %s, %s, %s, %s' % (vr(d, 16), vr(pk + 4 * f, 4), vr(v + 8 * f, 4), vr(d, 16) if f else '0'))

        def part_write(z, t):
            for i in range(4):
                z('ds_write_b128 v%d, %s offset:%d' % (V_XA + 2, vr(V_X + 16 * t + 64 * g + 4 * i, 4), (1, 0, 2)[g + t] * 16384 + i * 1024))

        if not g:
            b('s_setprio 1')
        for c in range(-1, 7):
            barrier(b, 't0' if c < 0 else [('i', 2 * c + 3 if c < 6 else 14)], 's%d' % c if c >= 0 else 'pre')
            if c < 0:
                stamp(b, 1)
            d = Seg()
            if c == min(OPT['tat'], 2):
                touch_w2(d)
            if g and c == 3:
                f0_load(d)
            if g and c == 5:
                f0_check(d)
            item(d, 2 * c + 6)
            if c == 4:
                p2_setup(d)
            if c < 6:
                item(d, 2 * c + 7)
            if c == OPT['twat'] and not OPT['touch'] & 64:
                touch_w(d, False, V_EXW)
            if c == 6:
                if g:
                    stat_load(d)
                else:
                    for j in range(4):
                        wread(d, 1, 0, j, 1)
            if not g and c >= 0:
                b.extend(d)
            for j in range(4):
                if c >= 0:
                    for z in kstep(0, c, j):
                        b.extend(z)
                else:
                    for t in TS[0]:
                        wread(b, 0, 0, j, t)
                    xread(b, 0, j)
            if g or c < 0:
                b.extend(d)
        barrier(b, [('i', 16)], 's7')
        stamp(b, 2)

        if g:
            RB = V_ACC + 48
            parts = [ext(0, t, t) for t in range(2)]
            for p in parts:
                b.extend(p[0])
            item(b, 19)
            for p in parts:
                b.extend(p[1])
            item(b, 20)
            touch_l2(b, 0, V_W)
            hand_addr(b)
            b.wait(vm='stat')
            spin_check(b, V_ST, V_ONE, V_ST + 1, SWS, 's%d' % S_H, 0xffffffff)
            stat_use(b)
            b('v_and_b32 v%d, 0xffff0000, v%d' % (T + 1, V_ST))
            b('v_rcp_f32 v%d, v%d' % (T + 1, T + 1))
            b('s_setprio 2')
            for p in parts:
                b.extend(p[2])
            b('s_setprio 0')
            b('ds_write_b32 v%d, v%d' % (V_ST + 2, T + 1))
            rload(b, RB, 'r')
            if OPT['tkat'] == 0:
                touch_kv(b)
            e = Seg()
            e.wait(lgkm='r')
            e.extend(phi_k(0, RB))
            for f in range(2):
                e('ds_write_b128 v%d, %s offset:%d' % (V_XA, vr(acc(0, 0) + 4 * f, 4), f * 1024))
            d = Seg()
            if OPT['tkat'] == 1:
                touch_kv(d)
            touch_l2(d, 1, V_WB)
            if not OPT['kpa']:
                for u in range(OPT['kpf']):
                    dma_b2(d, u)
            r = Seg()
            for j in range(4):
                wread(r, 1, 0, j, 1)
            e.extend(mix(mix(phi_k(1, RB), [[i] for i in r]), groups(d), 0.3, 1.0))
            k0, k1 = OPT['kb0'], OPT['kb1']
            b.extend(e[:k0])
            barrier(b, [('i', 18)], 'v0')
            b.extend(e[k0:k1])
            barrier(b, [('i', 20)], 'v1')
            b.extend(e[k1:])
            prod_setup(b, RB)
            barrier(b, None, 'v2')
            stamp(b, 3)
            b('s_setprio 1')
            d = Seg()
            slots = [kstep(1, c, j)[0] for c in range(7) for j in range(4)]
            pre = Seg()
            barrier(pre, None, 'v4')
            slots[4 * OPT['kv4']][:0] = pre
            if OPT['kna']:
                poll_early(d)
            d.extend(res_load(RES_KB))
            for u in range(4, 4 + OPT['kub']):
                dma_b2(d, u)
            for k, gi in enumerate(groups(d)):
                slots[min(4 * OPT['kv4'] + 3 + 2 * k, 27)].extend(gi)
            for z in slots:
                b.extend(z)
            barrier(b, None, 'v3')
            b('s_setprio 2')
            b.extend(head([ext(1, 1, 0)]))
            d = Seg()
            if OPT['kna']:
                a_setup(b)
                stage_check(b, 0)
                for u in range(OPT['kna']):
                    aload(d, u)
            else:
                poll_early(b)
            d = groups(d)
            z = Seg()
            kv_prod(z, 1, acc(0, 1), RB)
            b.extend(mix(z, d[:OPT['kne']]))
            if not OPT['kna']:
                a_setup(b)
            part_write(b, 1)
            for gi in d[OPT['kne']:]:
                b.extend(gi)
            barrier(b, None, 'kk')
            stamp(b, 4)
            if OPT['k2']:
                b('s_barrier')
            b('s_branch L_p2k')
            return b
        pf = []
        for c in range(7):
            if c in (2, 4):
                barrier(b, [('i', 16 + c)], 'v%d' % (c // 2 - 1))
            for j in range(4):
                for z in kstep(1, c, j):
                    b.extend(z)
                if c < 2:
                    if j == 1:
                        d = Seg()
                        item(d, 19 + c)
                        d = groups(d)
                    if j in (1, 2):
                        b.extend(d[j - 1])
                if OPT['kpa'] and c == 2 and j == 0:
                    pf = Seg()
                    for u in range(OPT['kpf']):
                        dma_b2(pf, u)
                    pf = groups(pf)
                if OPT['kpa'] and pf and ((c >= 3 and j & 1) if OPT['kpa'] == 1 else c >= 5):
                    b.extend(pf.pop(0))
                if c == 2 and j == 1:
                    stat_load(b)
                if c == 5 and j == 1:
                    hand_addr(b)
                if c == 5 and j == 3:
                    b.wait(vm='stat')
                    stat_use(b)
        barrier(b, None, 'v2')
        stamp(b, 3)
        b('s_setprio %d' % OPT['khead'])
        b('v_mov_b32 v%d, 0' % (V_CS + 1))
        RB, RP = V_X + 64, V_WF
        e = head([ext(1, 1, 0), ext(0, 0, 1), ext(1, 0, 2)])
        z = Seg()
        prod_setup(z, RP)
        for f in range(2):
            z('ds_read_b128 %s, v%d offset:%d' % (vr(PK1 + 4 * f, 4), V_XA, f * 1024), 'r2')
        rload(z, RB, 'r')
        b.extend(e[:3] + list(z) + e[3:-3])
        b('s_setprio 2')
        b.extend(e[-3:])
        b('s_setprio 0')
        if OPT['kres']:
            b.extend(res_load(RES_KA))
        z = Seg()
        z('s_lshl_b32 s%d, s%d, 10' % (S_T1, S_RW))
        z('s_add_u32 s%d, s%d, %d' % (S_T1, S_T1, HND))
        z('v_add_u32 v%d, s%d, v%d' % (V_SEL + 2, S_T1, V_L16))
        z('s_cmp_eq_u32 s%d, 3' % S_RW)
        z('s_cselect_b64 vcc, %s, 0' % sr(S_HI, 2))
        z('v_lshrrev_b32 v%d, 2, v%d' % (V_SEL + 3, V_L16))
        z('v_cndmask_b32 v%d, v%d, v%d, vcc' % (V_SEL + 3, V_SEL + 3, V_FLO))
        z('s_lshl2_add_u32 s%d, s%d, s%d' % (S_H, S_LAST, S_RW))
        z('s_lshl_b32 s%d, s%d, 10' % (S_H, S_H))
        z('s_add_u32 s%d, s%d, 0x%x' % (S_H, S_H, KV_OFF))
        kv_prod(z, 1, PK1, RP)
        z('s_setprio 0')
        z.wait(lgkm='r')
        e = phi_k(0, RB)
        z.extend(e[:OPT['kearly']])
        barrier(z, None, 'v4')
        w, d = Seg(), Seg()
        part_write(w, 1)
        for u in range(4 + OPT['kub'], 4 + OPT['kub'] + OPT['kua']):
            dma_b2(d, u)
        z.extend(mix(e[OPT['kearly']:], [[i] for i in w] + groups(d)))
        k = len(z) + OPT['kcut']
        kv_prod(z, 0, acc(0, 0), RP)
        b.extend(z[:k])
        barrier(b, None, 'v3')
        b.extend(z[k:])
        b('s_add_u32 s%d, s%d, 4096' % (S_P, S_H))
        b('s_add_u32 s%d, s%d, 8192' % (S_HALF, S_H))
        b('s_cmp_eq_u32 s%d, 3' % S_PEND)
        b('s_cselect_b32 s%d, s%d, 0x%x' % (S_HALF, S_HALF, OOB))
        part_write(b, 0)
        barrier(b, 'all', 'kk')
        stamp(b, 4)
        R = V_X + 32
        for h in range(3):
            for p in range(4):
                b('ds_read_b128 %s, v%d offset:%d' % (vr(R + 16 * h + 4 * p, 4), V_SEL + 2, (1, 0, 2)[h] * 16384 + p * 4096), ('red', h))
        for h in range(3):
            r = R + 16 * h
            b.wait(lgkm=[('red', h)])
            for k in (0, 2):
                b('v_pk_add_f32 %s, %s, %s' % (vr(r + k, 2), vr(r + k, 2), vr(r + 4 + k, 2)))
                b('v_pk_add_f32 %s, %s, %s' % (vr(r + 8 + k, 2), vr(r + 8 + k, 2), vr(r + 12 + k, 2)))
                b('v_pk_add_f32 %s, %s, %s' % (vr(r + k, 2), vr(r + k, 2), vr(r + 8 + k, 2)))
            for k in range(4):
                b('buffer_atomic_add_f32 v%d, v%d, %s, s%d offen offset:%d sc1' % (r + k, V_SEL + 3, sr(SWS, 4), (S_H, S_P, S_HALF)[h], k * 256), 'atom')
        if OPT['k2']:
            b('s_barrier')
        stamp(b, 5)
        b('s_lshl_b32 s%d, s%d, 7' % (S_FL, S_LAST))
        b('s_lshl_b32 s%d, s%d, 28' % (S_T1, S_RW))
        b('s_add_u32 s%d, s%d, s%d' % (S_FL, S_FL, S_T1))
        b('s_add_u32 s%d, s%d, 0x%x' % (S_FL, S_FL, FKV_OFF))
        b('s_lshl_b32 s%d, s%d, 4' % (S_T1, S_PEND))
        b('v_cmp_gt_u32 vcc, s%d, v%d' % (S_T1, V_L16))
        b('v_lshlrev_b32 v%d, 3, v%d' % (V_PL, V_L16))
        b('v_cndmask_b32 v%d, v%d, v%d, vcc' % (V_PL, V_FLO, V_PL))
        if not OPT['kres']:
            b.extend(res_load(RES_KA))
        b.wait(vm='atom')
        sync_arrive(b, 0)
        sync_wait(b, 0, 4, T)
        stamp(b, 6)
        b('buffer_atomic_add v%d, v%d, %s, s%d offen sc1' % (V_ONE, V_PL, sr(SWS, 4), S_FL))
        b.extend(res_unpack(RES_KA))
        b('s_branch L_p2a')
        return b

    return s, body(0), body(1)


def frag_addr(s, T):
    s('v_lshrrev_b32 v%d, 4, v%d' % (T, V_L16))
    s('v_bfe_u32 v%d, v%d, 2, 2' % (T + 1, T))
    s('v_and_b32 v%d, 3, v%d' % (T + 2, T))
    s('v_bfe_u32 v%d, v%d, 4, 1' % (T + 3, T))
    s('v_lshl_add_u32 v%d, v%d, 2, v%d' % (T + 2, T + 3, T + 2))
    s('v_lshrrev_b32 v%d, 1, v%d' % (T + 3, T + 1))
    s('v_lshlrev_b32 v%d, 6, v%d' % (T + 3, T + 3))
    s('v_lshl_add_u32 v%d, v%d, 3, v%d' % (T + 2, T + 2, T + 3))
    s('v_lshl_add_u32 v%d, v%d, 7, v%d' % (T + 2, T + 1, T + 2))
    s('v_lshrrev_b32 v%d, 5, v%d' % (T + 3, T))
    s('v_lshl_add_u32 v%d, v%d, 9, v%d' % (T + 3, T + 3, T + 2))


def bf(par, ct):
    return V_BF + 8 * par + 4 * ct


def acc2(ct, rg):
    return V_ACC + 32 * ct + 16 * rg


def part_addr(g):
    z, T = Seg(), V_NUM
    z('v_bfe_u32 v%d, v%d, 4, 5' % (T, V_L16))
    z('v_and_b32 v%d, 7, v%d' % (T + 1, T))
    z('v_bfe_u32 v%d, v%d, 1, 1' % (T + 2, T))
    z('v_lshrrev_b32 v%d, 9, v%d' % (T + 3, V_L16))
    z('v_xor_b32 v%d, v%d, v%d' % (T + 2, T + 2, T + 3))
    z('v_lshl_add_u32 v%d, v%d, 3, v%d' % (T + 1, T + 2, T + 1))
    z('v_lshlrev_b32 v%d, 4, v%d' % (T + 1, T + 1))
    z('v_lshl_add_u32 v%d, v%d, 8, v%d' % (T + 1, T, T + 1))
    z('v_add_u32 v%d, s%d, v%d' % (T + 8, S_QR0, T + 1))
    if g:
        z('v_add_u32 v%d, s%d, v%d' % (T + 16, S_QR2, T + 1))
    else:
        z('v_add_u32 v%d, 8192, v%d' % (T + 16, T + 8))
    for rg in range(2):
        for k in range(1, 8):
            z('v_xor_b32 v%d, %d, v%d' % (T + 8 + 8 * rg + k, k << 4, T + 8 + 8 * rg))
    return z


def read_addr(g, R):
    z, T = Seg(), R
    z('v_bfe_u32 v%d, v0, 3, 5' % (T + 1))
    z('v_and_b32 v%d, 0x70, v%d' % (T + 2, V_L16))
    z('v_and_b32 v%d, 7, v%d' % (T + 3, T + 1))
    z('v_bfe_u32 v%d, v%d, 1, 1' % (T + 4, T + 1))
    z('v_lshl_add_u32 v%d, v%d, 3, v%d' % (T + 3, T + 4, T + 3))
    z('v_lshlrev_b32 v%d, 4, v%d' % (T + 3, T + 3))
    z('v_xor_b32 v%d, v%d, v%d' % (T + 3, T + 3, T + 2))
    z('v_lshl_add_u32 v%d, v%d, 8, v%d' % (V_RD, T + 1, T + 3))
    if g:
        z('v_add_u32 v%d, %d, v%d' % (V_RD, R2, V_RD))
    z('v_xor_b32 v%d, 128, v%d' % (V_RD + 1, V_RD))
    return z


def acc_major(s, units, wreg, areg, wtag, atag, fresh, fill=()):
    slots, order = [], [(0, 0), (1, 0), (0, 1), (1, 1)]
    for ct, rg in order:
        for k, u in enumerate(units):
            z = Seg()
            z.wait(vm=[atag(u, rg)], lgkm=[wtag(u, ct)])
            z('v_mfma_f32_32x32x16_bf16 %s, %s, %s, %s' % (vr(acc2(ct, rg), 16), vr(wreg(u, ct), 4), vr(areg(u, rg), 4), '0' if fresh and k == 0 else vr(acc2(ct, rg), 16)))
            slots.append(z)
    n = len(units)
    for k, gi in enumerate(fill):
        slots[k].extend(gi)
    wr = [Ins('ds_write_b128 v%d, %s' % (V_NUM + 8 + 8 * rg + 4 * ct + i, vr(acc2(ct, rg) + 4 * i, 4))) for ct, rg in order for i in range(4)]
    first = 2 * n - 1
    for k in range(8):
        slots[first + k * (2 * n + 1) // 8].append(wr[k])
    for z in slots:
        s.extend(z)
    s.extend(wr[8:])


def final(g):
    s = Seg('final%d' % g)
    D, U = V_AB, V_U
    stamp(s, 8)
    barrier(s)
    stamp(s, 9)
    for w in range(4):
        for h in range(2):
            s('ds_read_b128 %s, v%d offset:%d' % (vr(D + 8 * w + 4 * h, 4), V_RD + h, w * (10240 if g else 12288)), ('fin', w))
    for w in range(4):
        s.wait(lgkm=[('fin', w)])
        for k in range(4):
            s('v_pk_add_f32 %s, %s, %s' % (vr(U + 2 * k, 2), vr(U + 2 * k, 2), vr(D + 8 * w + 2 * k, 2)))
    for k in range(4):
        s('v_cvt_pk_bf16_f32 v%d, v%d, v%d' % (U + k, U + 2 * k, U + 2 * k + 1))
    s('buffer_store_dwordx4 %s, v%d, %s, s%d offen' % (vr(U, 4), V_OUT, sr(SOUT, 4), S_OUTO) + ['', ' sc1', ' nt', ' sc0 sc1'][OPT['osc']])
    return s


def phase2b(nm, na, bdone):
    s, T = Seg('p2' + nm), V_NUM
    RING[0] = 14 if nm == 'f' else 11
    UW = 10
    s('L_p2%s:' % nm)
    stamp(s, 5)
    s('s_setprio 1')
    V_PW, V_PX, RES = 11, 14, V_AB + 48
    pend = [v for v in range(35) if v not in bdone]
    first = [v for v in pend if v < OPT['b0' if nm == 'k' else 'b0f']]
    pend = pend[len(first):]
    BS = {}
    for u in range(28):
        n = 1 if u + DEP - 1 < 28 else 2
        BS[u] = [v for v in pend[:n] if v - RING[0] + 1 <= u]
        pend = pend[len(BS[u]):]
    assert not pend

    def oloads():
        z = Seg()
        for rg in range(2):
            for u in range(7):
                z('buffer_load_dwordx4 %s, v%d, %s, s%d offen offset:%d sc1' % (vr(abuf(28 + u, rg), 4), V_L16B if rg else V_L16, sr(SWS, 4), S_RO3 if u >= 4 else S_P, (u & 3) * 1024), ('o', 28 + u, rg))
        return list(z)

    def word_check(z, u, n, hit=None):
        z.wait(lgkm=[('pw', u)])
        z('v_readfirstlane_b32 s%d, v%d' % (S_T2, V_PW))
        z('s_cmp_lt_u32 s%d, %d' % (S_T2, n))
        if hit:
            z('s_cbranch_scc0 %s' % hit)
            return
        j = nspin[0]
        nspin[0] += 1
        z('s_cbranch_scc1 L_slow%d' % j)
        z('L_ret%d:' % j)
        slow('L_slow%d:' % j)
        slow('s_add_u32 s%d, s%d, 1' % (S_SPIN, S_SPIN))
        slow('s_cmp_gt_u32 s%d, 0x%x' % (S_SPIN, SPIN_LIMIT << 3))
        slow('s_cbranch_scc1 L_ret%d' % j)
        slow('ds_read_b32 v%d, v%d' % (V_PW, V_PX))
        slow('s_waitcnt lgkmcnt(0)')
        slow('v_readfirstlane_b32 s%d, v%d' % (S_T2, V_PW))
        slow('s_nop 0')
        slow('s_cmp_lt_u32 s%d, %d' % (S_T2, n))
        slow('s_cbranch_scc1 L_slow%d' % j)
        slow('s_branch L_ret%d' % j)

    z = Seg()
    if na == 0:
        for v in first[:2]:
            dma_b2(z, v)
        first = first[2:]
        stage_check(z, 0)
    for u in range(na, DEP - 1):
        if u == OPT['p1at']:
            poll_async(z, 1)
        aload(z, u)
        if first:
            dma_b2(z, first.pop(0))
    if na > OPT['p1at']:
        poll_async(z, 1)
    for v in first:
        dma_b2(z, v)
    y = Seg()
    frag_addr(y, T)
    for reg, base in enumerate((S_QR0, S_QR2, S_QR3)[:3 if nm == 'f' else 2]):
        y('v_add_u32 v%d, s%d, v%d' % (BA[2 * reg], base, T + 3))
        y('v_xor_b32 v%d, 64, v%d' % (BA[2 * reg + 1], BA[2 * reg]))
    y('v_subrev_u32 v%d, 16, v%d' % (V_PX, V_PA))
    y.extend(res_unpack(RES_F if nm == 'f' else RES_KB))
    s.extend(mix(y, groups(z)))

    def wreg(u, ct):
        return bf(u & 1, ct) if u < 28 else V_AB + 32 * (1 - ct) + 4 * (u - 28)

    def bread(u, ct):
        z = Seg()
        _, reg, off = unit_loc(u)
        if not (OPT['x_free'] and u < 11):
            z.wait(vm=[('b', u)])
        for h in range(2):
            z('ds_read_b64_tr_b16 %s, v%d offset:%d' % (vr(wreg(u, ct) + 2 * h, 2), BA[2 * reg + ct], off + h * 1024), ('bf', u, ct))
        return z

    s.extend(bread(0, 0) + bread(0, 1))
    late = Seg()
    late('v_add_u32 v%d, %d, v%d' % (V_B2S, 52 * XS, V_B2))
    late('v_cndmask_b32 v%d, v%d, v%d, %s' % (V_B2S, V_B2, V_B2S, sr(S_HI, 2)))
    late = list(read_addr(1, RES)) + list(late) + list(part_addr(1))
    SITES = [[23, 25, 27, 28], [23, 24, 26, 28], [21, 23, 25, 28], [22, 24, 26, 28]][OPT['sites']]
    U2 = 17 - DEP

    def unit(s, u, extra, word):
        nxt = u + DEP - 1
        z = Seg()
        if nxt < 28:
            aload(z, nxt)
        for v in BS[u]:
            dma_b2(z, v)
        now = groups(z) + [[i] for i in extra]
        if 10 <= u < 20:
            k0, k1 = len(late) * (u - 10) // 10, len(late) * (u - 9) // 10
            now += [[i] for i in late[k0:k1]]
        if u < 27:
            rd = [bread(u + 1, 0), bread(u + 1, 1), Seg(), Seg()]
        else:
            rd = [bread(28 + k, 0) for k in range(4)]
        if word:
            rd[2]('ds_read_b32 v%d, v%d' % (V_PW, V_PX), ('pw', u + 1))
        s.wait(vm=[('a', u)])
        stamp(s, 'u%d' % u)
        k = 0
        for ct in range(2):
            s.wait(lgkm=[('bf', u, ct)])
            for rg in ((1, 0) if ct and OPT['gray'] else (0, 1)):
                s('v_mfma_f32_32x32x16_bf16 %s, %s, %s, %s' % (vr(acc2(ct, rg), 16), vr(wreg(u, ct), 4), vr(abuf(u, rg), 4), vr(acc2(ct, rg), 16) if u else '0'))
                s.extend(rd[k])
                for gi in range(len(now) * k // 4, len(now) * (k + 1) // 4):
                    s.extend(now[gi])
                k += 1

    main, alts = [s], []
    for u in range(28):
        if u + DEP - 1 == 8:
            stage_check(s, 1)
            stamp(s, 'c1')
        if u == UW and nm == 'f':
            word_check(s, u, 1)
        if u == U2:
            word_check(s, u, 3)
            stamp(s, 'c2')
        if u in SITES:
            word_check(s, u, 7, hit='L_p2o%s%d' % (nm, u))
            a = Seg('p2o%d' % u)
            a('L_p2o%s%d:' % (nm, u))
            stamp(a, 'c3')
            o = oloads()[:14 - OPT['otail']]
            for v in range(u, 28):
                unit(a, v, o[:OPT['oper']], False)
                o = o[OPT['oper']:]
            a.extend(o)
            a('s_branch L_p2tail%s' % nm)
            alts.append((list(main), a))
            s = Seg('p2m%d' % u)
            main.append(s)
        unit(s, u, [], u + 1 in SITES + [UW, U2])
    word_check(s, 28, 7)
    stamp(s, 'c3')
    s.extend(oloads()[:14 - OPT['otail']])
    t = Seg('p2t')
    t('L_p2tail%s:' % nm)
    stamp(t, 'tl')
    fill = [bread(u, 0) for u in range(32, 35)] + [bread(u, 1) for u in range(28, 35)]
    for k, i in enumerate(oloads()[14 - OPT['otail']:]):
        fill[k] = [i] + list(fill[k])
    acc_major(t, range(28, 35), wreg, abuf, lambda u, ct: ('bf', u, ct), lambda u, rg: ('o', u, rg), False, fill)
    t.extend(final(1))
    t('s_branch L_fin')
    return [m + [a, t] for m, a in alts] + [main + [t]], [a for _, a in alts] + main + [t]


def phase2a():
    s = Seg('p2a')
    s('L_p2a:')
    s('s_and_b32 s%d, s%d, 30' % (S_T0, S_I2))
    s('s_lshr_b32 s%d, s%d, 1' % (S_T1, S_RW))
    s('s_add_u32 s%d, s%d, s%d' % (S_T0, S_T0, S_T1))
    s('s_and_b32 s%d, s%d, 1' % (S_T1, S_I2))
    s('s_lshl1_add_u32 s%d, s%d, s%d' % (S_T0, S_T0, S_T1))
    s('s_lshl3_add_u32 s%d, s%d, s%d' % (S_T0, S_T0, S_ROLE))
    s('s_lshl_b32 s%d, s%d, 7' % (S_T0, S_T0))
    s('s_add_u32 s%d, s%d, 0x%x' % (S_PL, S_T0, FO_OFF))
    s('s_and_b32 s%d, s%d, 1' % (S_T1, S_RW))
    s('s_lshl3_add_u32 s%d, s%d, s%d' % (S_T3, S_T1, S_PL))
    s('s_add_u32 s%d, s%d, 8' % (S_T3, S_T3))
    for val, nm in ((3, 'a2'), (7, 7)):
        j = nspin[0]
        nspin[0] += 1
        s('v_mov_b32 v%d, %d' % (V_BF + 8 + val, val))
        if not OPT['x_nopoll']:
            s('L_pa%d:' % j)
            if val == 3:
                s('s_buffer_load_dwordx2 %s, %s, s%d glc' % (sr(S_T0, 2), sr(SWS, 4), S_T3))
            else:
                s('s_buffer_load_dword s%d, %s, s%d glc' % (S_T0, sr(SWS, 4), S_PL))
            s('s_add_u32 s%d, s%d, 1' % (S_SPIN, S_SPIN))
            s('s_cmp_gt_u32 s%d, 0x%x' % (S_SPIN, SPIN_LIMIT))
            s('s_waitcnt lgkmcnt(0)')
            s('s_cbranch_scc1 L_pz%d' % j)
            s('s_and_b32 s%d, s%d, s%d' % (S_T0, S_T0, S_T1 if val == 3 else S_T0))
            s('s_cbranch_scc0 L_pa%d' % j)
            s('L_pz%d:' % j)
        s('ds_write_b32 v%d, v%d' % (V_PA, V_BF + 8 + val))
        stamp(s, nm)
        if val == 3:
            s.extend(read_addr(0, V_BF))
    s.extend(final(0))
    return s


def fin():
    s = Seg('fin')
    s('L_fin:')
    if OPT['diag']:
        stamp(s, 10)
        s('s_waitcnt lgkmcnt(0)')
        s('v_mov_b32 v4, 0')
        for k in range(11):
            s('v_writelane_b32 v4, s%d, %d' % (S_KA + 2 * k, k))
        s('v_writelane_b32 v4, s%d, 11' % S_SPIN)
        s('s_lshl3_add_u32 s%d, s2, s%d' % (S_T0, S_WV))
        s('s_lshl_b32 s%d, s%d, 8' % (S_T0, S_T0))
        s('s_add_u32 s%d, s%d, 0x%x' % (S_T0, S_T0, TS_OFF))
        s('v_lshrrev_b32 v5, 2, v%d' % V_L16)
        s('buffer_store_dword v4, v5, %s, s%d offen' % (sr(SWS, 4), S_T0))
        if OPT['diag'] == 3:
            s('s_not_b32 s%d, s%d' % (S_T0, S_KA))
            s('v_writelane_b32 v4, s%d, 11' % S_T0)
            s('s_cmp_eq_u32 s%d, 4' % S_WV)
            s('s_cselect_b32 s%d, 16, 0x%x' % (S_T0, OOB))
            s('s_cmp_lt_u32 s%d, 4' % S_ROLE)
            s('s_cselect_b32 s%d, s%d, 0x%x' % (S_T0, S_T0, OOB))
            s('s_mov_b64 exec, 0xfff')
            s('buffer_atomic_umax v4, v5, %s, s%d offen sc1' % (sr(SDBG, 4), S_T0))
    if OPT['diag'] == 6:
        s('s_cmp_lg_u32 s%d, 4' % S_WV)
        s('s_cbranch_scc1 L_end')
        s('s_mov_b64 exec, 1')
        s('s_getreg_b32 s%d, hwreg(HW_REG_XCC_ID, 0, 4)' % S_T0)
        s('s_sub_u32 s%d, s%d, s2' % (S_T0, S_T0))
        s('s_and_b32 s%d, s%d, 7' % (S_T0, S_T0))
        s('s_lshl_b32 s%d, 1, s%d' % (S_T0, S_T0))
        s('v_mov_b32 v4, s%d' % S_T0)
        s('v_mov_b32 v6, 1')
        s('v_mov_b32 v7, 0')
        s('buffer_atomic_or v4, v7, %s, 0 offen offset:16 sc1' % sr(SDBG, 4))
        s('s_waitcnt vmcnt(0)')
        s('buffer_atomic_add v6, v7, %s, 0 offen offset:136 sc0 sc1' % sr(SDBG, 4))
        s('s_waitcnt vmcnt(0)')
        s('v_readfirstlane_b32 s%d, v6' % S_T0)
        s('s_cmp_lg_u32 s%d, 255' % S_T0)
        s('s_cbranch_scc1 L_end')
        s('buffer_load_dword v4, v7, %s, 0 offen offset:16 sc1' % sr(SDBG, 4))
        s('s_waitcnt vmcnt(0)')
        s('v_readfirstlane_b32 s%d, v4' % S_T0)
        s('s_bcnt1_i32_b32 s%d, s%d' % (S_T0, S_T0))
        s('s_mul_i32 s%d, s%d, 2000' % (S_T0, S_T0))
        s('s_memrealtime s[66:67]')
        s('s_waitcnt lgkmcnt(0)')
        s('L_dly:')
        s('s_memrealtime s[68:69]')
        s('s_waitcnt lgkmcnt(0)')
        s('s_sub_u32 s68, s68, s66')
        s('s_cmp_lt_u32 s68, s%d' % S_T0)
        s('s_cbranch_scc1 L_dly')
    if OPT['diag'] == 5:
        s('s_cmp_lg_u32 s%d, 4' % S_WV)
        s('s_cbranch_scc1 L_end')
        s('s_mov_b64 exec, 1')
        s('s_not_b32 s%d, s%d' % (S_T0, S_KA + 2 * OPT['sa']))
        s('v_mov_b32 v4, s%d' % S_T0)
        s('v_mov_b32 v5, s%d' % (S_KA + 2 * OPT['sb']))
        s('v_mov_b32 v6, 1')
        s('v_mov_b32 v7, 0')
        s('buffer_atomic_umax v4, v7, %s, 0 offen offset:128 sc1' % sr(SDBG, 4))
        s('buffer_atomic_umax v5, v7, %s, 0 offen offset:132 sc1' % sr(SDBG, 4))
        s('s_waitcnt vmcnt(0)')
        s('buffer_atomic_add v6, v7, %s, 0 offen offset:136 sc0 sc1' % sr(SDBG, 4))
        s('s_waitcnt vmcnt(0)')
        s('v_readfirstlane_b32 s%d, v6' % S_T0)
        s('s_cmp_lg_u32 s%d, 255' % S_T0)
        s('s_cbranch_scc1 L_end')
        s('buffer_load_dwordx2 v[4:5], v7, %s, 0 offen offset:128 sc1' % sr(SDBG, 4))
        s('s_waitcnt vmcnt(0)')
        s('v_add_u32 v4, v4, v5')
        s('s_nop 1')
        s('v_readfirstlane_b32 s%d, v4' % S_T0)
        s('s_add_u32 s%d, s%d, 1' % (S_T0, S_T0))
        s('s_mul_i32 s%d, s%d, %d' % (S_T0, S_T0, OPT['mul']))
        s('s_min_u32 s%d, s%d, 200000' % (S_T0, S_T0))
        s('s_memrealtime s[66:67]')
        s('s_waitcnt lgkmcnt(0)')
        s('L_dly:')
        s('s_memrealtime s[68:69]')
        s('s_waitcnt lgkmcnt(0)')
        s('s_sub_u32 s68, s68, s66')
        s('s_cmp_lt_u32 s68, s%d' % S_T0)
        s('s_cbranch_scc1 L_dly')
    if OPT['diag'] == 4:
        s('s_cmp_lg_u32 s2, %d' % OPT['wg'])
        s('s_cbranch_scc1 L_end')
        s('s_cmp_lg_u32 s%d, %d' % (S_WV, OPT['wv']))
        s('s_cbranch_scc1 L_end')
        s('s_sub_u32 s%d, s%d, s%d' % (S_T0, S_KA + 2 * OPT['sb'], S_KA + 2 * OPT['sa']))
        if not OPT['clk']:
            s('s_mul_i32 s%d, s%d, 10' % (S_T0, S_T0))
        s('s_min_u32 s%d, s%d, 200000' % (S_T0, S_T0))
        s('s_memrealtime s[66:67]')
        s('s_waitcnt lgkmcnt(0)')
        s('L_dly:')
        s('s_memrealtime s[68:69]')
        s('s_waitcnt lgkmcnt(0)')
        s('s_sub_u32 s68, s68, s66')
        s('s_cmp_lt_u32 s68, s%d' % S_T0)
        s('s_cbranch_scc1 L_dly')
    s('L_end:')
    s('s_endpgm')
    return s


def main():
    pro, prw, pre = prologue()
    f, fa, fb = lc_role(True)
    q, qa, qb = lc_role(False)
    qo = q_out()
    k, ka, kb = kv_role()
    fpaths, fsegs = phase2b('f', OPT['na'], list(range(8 + OPT['nb'])) + [11, 12, 13])
    kpaths, ksegs = phase2b('k', OPT['kna'], list(range(4 + OPT['kua'] + OPT['kub'] + OPT['x_freek'])))
    assert OPT['kpf'] == 4
    p2segs, p2a, fi = fsegs + ksegs, phase2a(), fin()
    paths = [
        [pro, pre, f, fa, p2a, fi],
        [pro, pre, q, qa, qo, fi],
        [pro, prw, pre, q, qb, qo, fi],
        [pro, prw, pre, k, ka, p2a, fi],
    ]
    paths += [[pro, prw, pre, f, fb] + p + [fi] for p in fpaths] + [[pro, prw, pre, k, kb] + p + [fi] for p in kpaths]
    if OPT['jit']:
        import random
        rnd, seen = random.Random(OPT['jit']), set()
        for p in paths:
            for seg in p:
                if id(seg) in seen:
                    continue
                seen.add(id(seg))
                out = []
                for i in seg:
                    out.append(i)
                    if i.op == 's_barrier' or (i.kind == 'label' and i.text.startswith(('L_ret', 'L_p2'))):
                        j = nspin[0]
                        nspin[0] += 1
                        out += [Ins('s_add_u32 s64, s2, s%d' % S_WV), Ins('s_bitcmp1_b32 0x%x, s64' % rnd.getrandbits(32)),
                                Ins('s_cbranch_scc0 L_j%d' % j), Ins('s_sleep %d' % rnd.choice((2, 5, 12, 30))), Ins('L_j%d:' % j)]
                seg[:] = out
    resolve_waits(paths)
    if OPT['hoist']:
        hoist_m0(paths)
    bad = verify_async(paths)
    assert not bad, '\n'.join(bad)
    n = pad_hazards(paths)
    assert pad_hazards(paths) == 0
    body = render([pro, prw, pre, f, fa, fb, k, ka, kb, q, qa, qb, qo] + p2segs + [p2a, fi, slow])
    head = open('cdna_kernels/%s.s.ref' % NAME).read().split('\n')
    head = [l for l in head if l.startswith(';') and '@launch' not in l]
    out = '\n'.join(head) + '''
; @launch grid=(256,1,1) block=(512,1,1) lds=%d
.amdgcn_target "amdgcn-amd-amdhsa--gfx950"
.text
.globl %s_kernel
.p2align 8
.type %s_kernel,@function
%s_kernel:
L_codebeg:
%s
L_codeend:
.section .rodata,"a"
.p2align 6
.amdhsa_kernel %s_kernel
  .amdhsa_next_free_vgpr 256
  .amdhsa_next_free_sgpr 102
  .amdhsa_accum_offset 256
  .amdhsa_group_segment_fixed_size 0
  .amdhsa_kernarg_size 88
  .amdhsa_user_sgpr_count 2
  .amdhsa_user_sgpr_kernarg_segment_ptr 1
  .amdhsa_system_sgpr_workgroup_id_x 1
.end_amdhsa_kernel
''' % (LDS_BYTES, NAME, NAME, NAME, body, NAME)
    if OPT['x_plain'] & 1:
        out = '\n'.join(l.replace(' sc1', '') if 'buffer_store_dwordx4' in l else l for l in out.split('\n'))
    if OPT['x_plain'] & 2:
        out = '\n'.join(l.replace(' sc1', '') if 'buffer_load_dwordx4' in l else l for l in out.split('\n'))
    if OPT['x_drop'] & 1:
        out = '\n'.join('    s_nop 0' if 'v_mfma_f32_16x16x32' in l else l for l in out.split('\n'))
    if OPT['x_drop'] & 16:
        i, j = out.index('L_kv:'), out.index('L_q:')
        out = out[:i] + '\n'.join('    s_nop 0' if 'v_mfma_f32_16x16x32' in l or 'v_max_f32' in l or 'v_mul_f32' in l else l for l in out[i:j].split('\n')) + out[j:]
    if OPT['x_drop'] & 2:
        out = '\n'.join('    s_nop 0' if 'v_dot2c' in l else l for l in out.split('\n'))
    if OPT['x_drop'] & 4:
        i, j = out.index('L_p2of23:'), out.index('L_p2a:')
        out = out[:i] + '\n'.join('    s_nop 7' if 'v_mfma' in l else l for l in out[i:j].split('\n')) + out[j:]
    if OPT['x_drop'] & 8:
        i = out.index('L_p2of23:')
        out = '\n'.join('    s_nop 7' if 'v_mfma_f32_32x32x16' in l else l for l in out[:i].split('\n')) + out[i:]
    open(sys.argv[1], 'w').write(out)
    print('wrote %s: %d lines, %d pad states' % (sys.argv[1], out.count('\n'), n))


main()
```

```python
import struct
import sys
from asmlib import Seg, Ins, Wait, GAP, interleave, resolve_waits, pad_hazards, verify_async, hoist_m0, render, vr, sr

NAME = 'parallel_sum__linear_attn_block__dense_activation_gelu__prompt'
OPT = dict(ecarry=0, carry=2, kn4=2, kn5=6, kn6=9, kep=16, s6=1, npre=0, lcs=0, actg=288, two=0, wpos=0, kres=1, kna=3, kne=4, k2=0, qsplit=0, sites=0, kv4=3, kua=3, kub=0, x_free=0, x_freek=0, tf0=2, tfp=45, x_drop=0, gray=0, hoist=1, wj=1, tfat=1, kpa=1, otail=7, oper=3, rmap=4, jit=0, rounds=15, opriv=1, oscal=1, na=5, nb=0, b0=9, xfirst=1, osc=0, ne=1, ub=0, b0f=9, pmix=1, wv=4, back=0, x_wait=0, rot1=6, nlate=1, mul=10, fatom=0, tlb=0, kbar=4, kphi=26, ntail=4, p1at=2, ascal=1, kpf=4, kcut=4, kb0=24, kb1=104, khead=0, kearly=8, qatom=1, batom=1, pkind=1, x_hit=0, gsp=3, eprio=0, aprio=2, aprio2=2, aprio3=2, lb=10, touch=193, tat=4, twat=3, tkat=1, kprio=0, plead=3, x_noa=0, x_nopoll=0, x_noflag=0, x_nost=0, x_plain=0, rot2=1, dep=6, noatom=0, diag=0, p1only=0, sa=0, sb=10, clk=0, wg=0)
for a in sys.argv[2:]:
    k, v = a.split('=')
    OPT[k] = v if k == 'st' else int(v)
STAMPS = OPT.get('st', 'en,2,4,5,6,7,10').split(',')


assert len(STAMPS) <= 7


def f32(x):
    return '0x%08x' % struct.unpack('<I', struct.pack('<f', x))[0]


XS, WQS, W1S = 896, 2688, 3584
ACT_G = OPT['actg'] * 512
KV_OFF = 0x900000
FKV_OFF = 0x910000
FL_OFF = 0x911000
FL_G = 896
FO_OFF = 0x920000
ST_OFF = 0x938000
TS_OFF = 0xA00000
WS_BYTES = 0x10000000
OOB = 0x40000000
R0, R1, R2, MISC = 0, 57344, 114688, 155648
M_ST, M_SY, M_CS, M_R = MISC, MISC + 2048, MISC + 4096, MISC + 7168
LDS_BYTES = 163840
LOG2E = 1.4426950408889634
GC1 = -2.0 * 0.7978845608028654 * LOG2E
GC3 = GC1 * 0.044715
SPIN_LIMIT = 1 << 16

S_WV, S_RW, S_G, S_RB, S_ROLE = 3, 4, 5, 6, 7
SX, SW, SWS, SW2, SWO, SOUT, SB1, SB2, SDBG = 8, 12, 16, 20, 24, 28, 32, 36, 40
S_KA = 44
S_KX, S_KW = 66, 73
S_I2, S_HALF, S_T0, S_T1, S_ONES, S_EPS = 80, 81, 82, 83, 84, 85
S_M0W, S_M0X, S_T3, S_RO, S_H, S_FL = 86, 87, 88, 89, 90, 91
S_HI = 92
S_SPIN, S_T2, S_P, S_LAST, S_PEND, S_L2E = 94, 95, 96, 97, 98, 99
S_PAD = 100
S_B2R, S_QR0, S_QR2, S_A, S_WOR, S_OUTO, S_G0, S_G2 = 58, 59, 60, 61, 62, 63, 64, 65
S_RO3, S_PL = 68, 73
S_AO = 74

V_L16, V_B2, V_X0, V_X1, V_W, V_CSW, V_CSR = 1, 2, 3, 4, 5, 6, 7
V_SEL, V_CS, V_WA, V_XA, V_EXW, V_EXR, V_ST = 8, 12, 20, 28, 32, 36, 38
V_B1 = 16
V_WB, V_RA = 42, 43
V_POLL, V_PA, V_FLO, V_ONE = 44, 45, 46, 47
V_T = 48
V_ACC, V_X, V_WF = 64, 128, 240
V_B2B, V_BA, V_L16B, V_PL = 3, 4, 12, 31
DEP = 6
V_NUM, V_BF, V_AB, V_RES = 16, 48, 128, 192
V_PQ = 80
HND = 49152

slow = Seg('slow')
nspin = [0]


def stamp(s, k):
    if OPT['diag'] and str(k) in STAMPS:
        k = STAMPS.index(str(k))
        s('%s %s' % ('s_memtime' if OPT['diag'] == 2 or OPT['clk'] else 's_memrealtime', sr(S_KA + 2 * k, 2)))


EARLY = ['en', 'ka', 't0', 't1']


def estamp(s, k):
    if OPT['diag'] and k in STAMPS:
        s('%s s[100:101]' % ('s_memtime' if OPT['diag'] == 2 or OPT['clk'] else 's_memrealtime'))
        s('s_waitcnt lgkmcnt(0)')
        s('v_mov_b32 v%d, s100' % (120 + EARLY.index(k)))


class Rebase:
    def __init__(self, regs, base, span):
        self.regs, self.base, self.span = regs, base, span

    def off(self, s, addr):
        if not (self.base <= addr and addr - self.base + self.span <= 65535):
            for r in self.regs:
                s('v_add_u32 v%d, 0x%x, v%d' % (r, (addr - self.base) & 0xffffffff, r))
            self.base = addr
        return addr - self.base


def spin_check(s, vpoll, vexp, vaddr, srd, soff, mask):
    k = nspin[0]
    nspin[0] += 1
    s('v_cmp_ge_u32 vcc, v%d, v%d' % (vpoll, vexp))
    s('s_andn2_b32 s%d, 0x%x, vcc_lo' % (S_T2, mask))
    s('s_cbranch_scc1 L_slow%d' % k)
    s('L_ret%d:' % k)
    slow('L_slow%d:' % k)
    slow('s_add_u32 s%d, s%d, 1' % (S_SPIN, S_SPIN))
    slow('s_cmp_gt_u32 s%d, 0x%x' % (S_SPIN, SPIN_LIMIT))
    slow('s_cbranch_scc1 L_ret%d' % k)
    slow('buffer_load_dword v%d, v%d, %s, %s offen sc1' % (vpoll, vaddr, sr(srd, 4), soff))
    slow('s_waitcnt vmcnt(0)')
    slow('v_cmp_ge_u32 vcc, v%d, v%d' % (vpoll, vexp))
    slow('s_nop 1')
    slow('s_andn2_b32 s%d, 0x%x, vcc_lo' % (S_T2, mask))
    slow('s_cbranch_scc1 L_slow%d' % k)
    slow('s_branch L_ret%d' % k)


def poll_base(s):
    s('s_lshr_b32 s%d, s%d, 1' % (S_PL, S_I2))
    s('s_lshl2_add_u32 s%d, s%d, s%d' % (S_PL, S_PL, S_RW))
    s('s_mul_i32 s%d, s%d, %d' % (S_PL, S_PL, FL_G))
    s('s_add_u32 s%d, s%d, 0x%x' % (S_PL, S_PL, FL_OFF))
    s('v_cmp_gt_u32 vcc, 32, v%d' % V_L16)
    s('v_lshlrev_b32 v%d, 3, v%d' % (V_PL, V_L16))
    s('v_cndmask_b32 v%d, v%d, v%d, vcc' % (V_PL, V_FLO, V_PL))


def poll_async(s, k):
    s('buffer_load_dword v%d, v%d, %s, s%d offen offset:%d sc1' % (V_POLL, V_PL, sr(SWS, 4), S_PL, k * 256), ('poll', k))


def stage_check(s, k, miss=None, sync=False, scalar=False):
    if OPT['x_nopoll']:
        return
    j = nspin[0]
    nspin[0] += 1
    mask = 3 if k < 3 else 1
    if sync:
        s('s_branch L_slow%d' % j)
    else:
        s.wait(vm=[('poll', k)])
        s('v_cmp_ne_u32 vcc, 0, v%d' % V_POLL)
        s('s_andn2_b32 s%d, %d, vcc_lo' % (S_T2, mask))
        if miss:
            s('s_cbranch_scc1 %s' % miss)
            return
        s('s_cbranch_scc1 L_slow%d' % j)
    s('L_ret%d:' % j)
    slow('L_slow%d:' % j)
    slow('s_add_u32 s%d, s%d, 1' % (S_SPIN, S_SPIN))
    slow('s_cmp_gt_u32 s%d, 0x%x' % (S_SPIN, SPIN_LIMIT))
    slow('s_cbranch_scc1 L_ret%d' % j)
    if sync and k == 3 and OPT['back']:
        slow('s_sleep %d' % OPT['back'])
    if scalar:
        slow('s_add_u32 s%d, s%d, %d' % (S_T2, S_PL, k * 256))
        slow('s_add_u32 s%d, s%d, %d' % (S_T1, S_PL, k * 256 + (128 if k < 3 else 0)))
        slow('s_buffer_load_dword s%d, %s, s%d glc' % (S_T2, sr(SWS, 4), S_T2))
        if k < 3:
            slow('s_buffer_load_dword s%d, %s, s%d glc' % (S_T1, sr(SWS, 4), S_T1))
        slow('s_waitcnt lgkmcnt(0)')
        if k < 3:
            slow('s_and_b32 s%d, s%d, s%d' % (S_T2, S_T2, S_T1))
        slow('s_cmp_eq_u32 s%d, 0' % S_T2)
    else:
        slow('buffer_load_dword v%d, v%d, %s, s%d offen offset:%d sc1' % (V_POLL, V_PL, sr(SWS, 4), S_PL, k * 256))
        slow('s_waitcnt vmcnt(0)')
        slow('v_cmp_ne_u32 vcc, 0, v%d' % V_POLL)
        slow('s_nop 1')
        slow('s_andn2_b32 s%d, %d, vcc_lo' % (S_T2, mask))
    slow('s_cbranch_scc1 L_slow%d' % j)
    slow('s_branch L_ret%d' % j)


def poll_check(s, k, n, sync=False, atomic=False):
    j = nspin[0]
    nspin[0] += 1
    if OPT['x_nopoll']:
        return
    if sync:
        s('s_branch L_slow%d' % j)
    else:
        s.wait(vm=[('poll', k)])
        s('v_readfirstlane_b32 s%d, v%d' % (S_T2, V_POLL))
        s('s_cmp_lt_u32 s%d, %d' % (S_T2, n))
        s('s_cbranch_scc1 L_slow%d' % j)
    s('L_ret%d:' % j)
    slow('L_slow%d:' % j)
    slow('s_add_u32 s%d, s%d, 1' % (S_SPIN, S_SPIN))
    slow('s_cmp_gt_u32 s%d, 0x%x' % (S_SPIN, SPIN_LIMIT))
    slow('s_cbranch_scc1 L_ret%d' % j)
    if atomic:
        slow('v_mov_b32 v%d, 0' % V_POLL)
        slow('buffer_atomic_add v%d, v%d, %s, s%d offen offset:%d sc0 sc1' % (V_POLL, V_FLO, sr(SWS, 4), S_PL, k * 128))
        slow('s_waitcnt vmcnt(0)')
        slow('v_readfirstlane_b32 s%d, v%d' % (S_T2, V_POLL))
        slow('s_nop 0')
    else:
        slow('s_add_u32 s%d, s%d, %d' % (S_T2, S_PL, k * 128))
        slow('s_buffer_load_dword s%d, %s, s%d glc' % (S_T2, sr(SWS, 4), S_T2))
        slow('s_waitcnt lgkmcnt(0)')
    slow('s_cmp_lt_u32 s%d, %d' % (S_T2, n))
    slow('s_cbranch_scc1 L_slow%d' % j)
    slow('s_branch L_ret%d' % j)


def srd(s, d, nbytes):
    s('s_mov_b32 s%d, 0x%x' % (d + 2, nbytes))
    s('s_mov_b32 s%d, 0x20000' % (d + 3))


XSLOT = [R2, R2 + 16384, R1 + 8192, R1 + 24576, R1 + 40960, R2, R2 + 16384]


def kv_slot(n):
    return ((n + 4) % 9) * 16384


def prologue():
    s, T = Seg('pro'), V_T
    s('s_cmp_ge_u32 s2, 256')
    s('s_cbranch_scc1 L_end')
    estamp(s, 'en')
    s('s_load_dwordx2 %s, s[0:1], 0' % sr(SX, 2))
    s('s_load_dwordx2 %s, s[0:1], 8' % sr(SW, 2))
    s('s_load_dwordx2 %s, s[0:1], 32' % sr(S_HI, 2))
    s('v_readfirstlane_b32 s%d, v0' % S_WV)
    s('s_getpc_b64 s[82:83]')
    s('s_lshr_b32 s%d, s2, 3' % S_T2)
    s('s_lshl_b32 s%d, s%d, 11' % (S_P, S_T2))
    s('v_lshl_add_u32 v%d, v0, 2, s%d' % (T, S_P))
    s('v_min_u32 v%d, L_codeend-L_codebeg-64, v%d' % (T, T))
    s('global_load_dword v%d, v%d, s[82:83]' % (V_POLL, T))
    s('s_lshr_b32 s%d, s%d, 6' % (S_WV, S_WV))
    s('v_and_b32 v%d, 63, v0' % T)
    if OPT['rmap'] < 0:
        s('s_and_b32 s%d, s%d, 7' % (S_ROLE, S_T2))
        s('v_lshrrev_b32 v%d, 3, v%d' % (T + 1, T))
        s('s_lshr_b32 s%d, s%d, 3' % (S_I2, S_T2))
    else:
        s('s_add_u32 s%d, s%d, %d' % (S_ROLE, S_T2, 4 * OPT['rmap']))
        s('v_lshrrev_b32 v%d, 3, v%d' % (T + 1, T))
        s('s_bfe_u32 s%d, s%d, 0x30002' % (S_ROLE, S_ROLE))
        s('s_and_b32 s%d, s%d, 3' % (S_I2, S_T2))
    s('v_lshrrev_b32 v%d, 4, v%d' % (T + 3, T))
    s('s_and_b32 s%d, s2, 1' % S_HALF)
    s('v_lshl_add_u32 v%d, s%d, 4, v%d' % (T + 5, S_WV, T + 1))
    s('s_bfe_u32 s%d, s2, 0x20001' % S_P)
    s('v_mul_u32_u24 v%d, %d, v%d' % (T + 5, XS, T + 5))
    s('s_lshl2_add_u32 s%d, s%d, s%d' % (S_RB, S_P, S_I2))
    s('v_xor_b32 v%d, v%d, v%d' % (T + 6, T, T + 3))
    s('s_add_u32 s%d, s%d, s%d' % (S_T2, S_I2, S_ROLE))
    s('v_and_b32 v%d, 7, v%d' % (T + 6, T + 6))
    s('s_and_b32 s%d, s%d, 1' % (S_T2, S_T2))
    s('v_lshl_add_u32 v%d, v%d, 4, v%d' % (V_X0, T + 6, T + 5))
    s('s_lshl2_add_u32 s%d, s%d, s%d' % (S_T2, S_HALF, S_T2))
    s('v_xor_b32 v%d, 64, v%d' % (V_X1, V_X0))
    s('s_lshl1_add_u32 s%d, s%d, s%d' % (S_T2, S_P, S_T2))
    s('v_add_u32 v%d, %d, v%d' % (V_X1, 8 * XS - 1024, V_X1))
    s('s_cmp_ge_u32 s%d, 7' % S_T2)
    s('s_cselect_b32 s%d, 7, 0' % S_T1)
    s('s_sub_u32 s%d, s%d, s%d' % (S_T2, S_T2, S_T1))
    s('s_mul_i32 s%d, s%d, %d' % (S_H, S_RB, 128 * XS))
    s('s_lshl_b32 s%d, s%d, 7' % (S_KX, S_T2))
    s('s_add_u32 s%d, s%d, s%d' % (S_KX, S_KX, S_H))
    s('s_lshl_b32 s%d, s%d, 11' % (S_M0X, S_WV))
    s('s_bitcmp1_b32 0x70, s%d' % S_ROLE)
    s('s_cselect_b32 s%d, 4, 7' % S_T3)
    s('s_lshl_b32 s%d, s%d, 14' % (S_T3, S_T3))
    s('s_add_u32 m0, s%d, s%d' % (S_T3, S_M0X))
    srd(s, SX, 2048 * XS)
    assert XSLOT[0] == 7 << 14 and kv_slot(0) == 4 << 14
    if OPT['touch'] & 8:
        s('s_lshl3_add_u32 s%d, s%d, s%d' % (S_T3, S_HALF, S_ROLE))
        s('v_min_u32 v%d, 6, v%d' % (T + 2, T))
        s('s_lshl3_add_u32 s%d, s%d, s%d' % (S_T3, S_T3, S_WV))
        s('v_lshlrev_b32 v%d, 7, v%d' % (T + 2, T + 2))
        s('s_mul_i32 s%d, s%d, %d' % (S_T3, S_T3, XS))
        s('s_add_u32 s%d, s%d, s%d' % (S_T3, S_T3, S_H))
    if OPT['xfirst']:
        s('s_waitcnt lgkmcnt(0)')
        estamp(s, 'ka')
        s('buffer_load_dwordx4 v%d, %s, s%d offen lds' % (V_X0, sr(SX, 4), S_KX), 't0')
        s('buffer_load_dwordx4 v%d, %s, s%d offen offset:1024 lds' % (V_X1, sr(SX, 4), S_KX), 't0')
        if OPT['touch'] & 8:
            s('buffer_load_dword v%d, v%d, %s, s%d offen' % (V_EXW, T + 2, sr(SX, 4), S_T3))
    s('s_and_b32 s%d, s%d, 3' % (S_RW, S_WV))
    s('s_lshr_b32 s%d, s%d, 2' % (S_G, S_WV))
    s('s_lshl_b32 s%d, s%d, 11' % (S_M0W, S_RW))
    s('s_mul_i32 s%d, s%d, 3' % (S_T0, S_HALF))
    s('v_lshlrev_b32 v%d, 2, v%d' % (T + 4, T + 3))
    s('s_add_u32 s%d, s%d, s%d' % (S_T0, S_T0, S_ROLE))
    s('v_xor_b32 v%d, v%d, v%d' % (T + 4, T, T + 4))
    s('s_lshl_b32 s%d, s%d, 7' % (S_T0, S_T0))
    s('s_add_u32 s%d, s%d, %d' % (S_T0, S_T0, XS - 512))
    s('s_lshl2_add_u32 s%d, s%d, s%d' % (S_P, S_HALF, S_ROLE))
    s('s_and_b32 s%d, s%d, 1' % (S_PEND, S_ROLE))
    s('s_lshl_b32 s%d, s%d, 6' % (S_PEND, S_PEND))
    s('s_movk_i32 s%d, %d' % (S_LAST, WQS))
    s('s_cmp_lt_u32 s%d, 4' % S_ROLE)
    s('s_cselect_b32 s%d, %d, s%d' % (S_LAST, W1S, S_LAST))
    s('s_cselect_b32 s%d, s%d, s%d' % (S_P, S_P, S_HALF))
    s('s_cselect_b32 s%d, s%d, 0' % (S_PEND, S_PEND))
    s('s_mul_i32 s%d, s%d, 448' % (S_T1, S_P))
    s('s_add_u32 s%d, s%d, s%d' % (S_T1, S_T1, S_PEND))
    s('s_lshl_b32 s%d, s%d, 6' % (S_RO, S_LAST))
    s('s_mul_i32 s%d, s%d, s%d' % (S_KW, S_T2, S_RO))
    s('s_mul_i32 s%d, s%d, 448' % (SW + 2, S_LAST))
    s('s_mov_b32 s%d, 0x20000' % (SW + 3))
    s('s_lshl_b32 s%d, s%d, 1' % (S_T2, S_RW))
    s('s_add_u32 s%d, s%d, %d' % (S_FL, S_M0X, kv_slot(1)))
    s('s_bitcmp1_b32 0x70, s%d' % S_ROLE)
    s('s_cselect_b32 s%d, s%d, s%d' % (S_T0, S_T0, S_T1))
    s('s_cselect_b32 s%d, s%d, s%d' % (S_T2, S_WV, S_T2))
    s('s_cselect_b32 s%d, s%d, s%d' % (S_FL, S_FL, S_M0W))
    s('s_cselect_b32 s%d, 4, 3' % S_T1)
    s('s_cselect_b32 s%d, 1, s%d' % (S_SPIN, S_G))
    s('v_lshrrev_b32 v%d, s%d, v%d' % (T + 5, S_T1, T))
    s('v_lshl_add_u32 v%d, s%d, 3, v%d' % (T + 5, S_T2, T + 5))
    s('v_bfe_u32 v%d, v%d, 0, s%d' % (T + 6, T + 4, S_T1))
    s('s_lshr_b32 s%d, s%d, s%d' % (S_T1, S_RO, S_T1))
    s('v_mul_u32_u24 v%d, s%d, v%d' % (T + 5, S_LAST, T + 5))
    s('s_sub_u32 s%d, s%d, 1024' % (S_T1, S_T1))
    s('v_lshl_add_u32 v%d, v%d, 4, s%d' % (T + 6, T + 6, S_T0))
    s('v_add_u32 v%d, v%d, v%d' % (V_W, T + 5, T + 6))
    s('s_cmp_lt_u32 s%d, 4' % S_ROLE)
    s('v_add_u32 v%d, s%d, v%d' % (V_WB, S_T1, V_W))
    if not OPT['xfirst']:
        s('s_waitcnt lgkmcnt(0)')
        estamp(s, 'ka')
        s('buffer_load_dwordx4 v%d, %s, s%d offen lds' % (V_X0, sr(SX, 4), S_KX), 't0')
        s('buffer_load_dwordx4 v%d, %s, s%d offen offset:1024 lds' % (V_X1, sr(SX, 4), S_KX), 't0')
        if OPT['touch'] & 8:
            s('buffer_load_dword v%d, v%d, %s, s%d offen' % (V_EXW, T + 2, sr(SX, 4), S_T3))
    s('s_cselect_b64 %s, %s, %s' % (sr(SW, 2), sr(S_HI, 2), sr(SW, 2)))
    s('s_mov_b32 m0, s%d' % S_FL)
    s('s_cmp_eq_u32 s%d, 0' % S_SPIN)
    s('s_cbranch_scc1 L_now')
    w = Seg('prow')
    w('buffer_load_dwordx4 v%d, %s, s%d offen lds' % (V_W, sr(SW, 4), S_KW), 't0')
    w('buffer_load_dwordx4 v%d, %s, s%d offen offset:1024 lds' % (V_WB, sr(SW, 4), S_KW), 't0')
    e = Seg('proe')
    e('L_now:')
    if OPT['touch'] & 16:
        e('v_min_u32 v%d, 55, v%d' % (T + 2, T))
        e('s_mul_i32 s%d, s%d, 28' % (S_T3, S_RB))
        e('v_lshrrev_b32 v%d, 1, v%d' % (T + 5, T + 2))
        e('s_mul_i32 s%d, s%d, s%d' % (S_T3, S_T3, S_LAST))
        e('v_mul_u32_u24 v%d, s%d, v%d' % (T + 5, S_LAST, T + 5))
        e('s_add_u32 s%d, s%d, s%d' % (S_T3, S_T3, S_T0))
        e('v_and_b32 v%d, 1, v%d' % (T + 2, T + 2))
        e('s_lshl_b32 s%d, s%d, 28' % (S_T2, S_WV))
        e('v_lshl_add_u32 v%d, v%d, 7, v%d' % (T + 2, T + 2, T + 5))
        e('s_add_u32 s%d, s%d, s%d' % (S_T3, S_T3, S_T2))
        e('buffer_load_dword v%d, v%d, %s, s%d offen' % (V_EXW, T + 2, sr(SW, 4), S_T3))
    estamp(e, 't0')
    for d, off in ((SWS, 80), (SB1, 40), (SDBG, 72), (SW2, 48), (SWO, 16), (SB2, 56), (SOUT, 64)):
        e('s_load_dwordx2 %s, s[0:1], %d' % (sr(d, 2), off))
    essential(e)
    e('s_cmp_ge_u32 s%d, 7' % S_ROLE)
    e('s_cbranch_scc1 L_q')
    e('s_cmp_ge_u32 s%d, 4' % S_ROLE)
    e('s_cbranch_scc1 L_kv')
    return s, w, e


def zipper(a, b):
    out = []
    for k in range(max(len(a), len(b))):
        out += a[k:k + 1] + b[k:k + 1]
    return out


def essential(z):
    T = V_T
    k, s = Seg(), Seg()
    k('s_add_u32 s%d, s%d, %d' % (S_T2, S_H, XS))
    for c in range(1, 7):
        k('s_add_u32 s%d, s%d, 128' % (S_KX + c, S_KX + c - 1))
        k('s_add_u32 s%d, s%d, s%d' % (S_KW + c, S_KW + c - 1, S_RO))
        k('s_cmp_eq_u32 s%d, s%d' % (S_KX + c, S_T2))
        k('s_cselect_b32 s%d, s%d, s%d' % (S_KX + c, S_H, S_KX + c))
        k('s_cselect_b32 s%d, 0, s%d' % (S_KW + c, S_KW + c))
    k('s_mov_b32 s%d, 0x3f803f80' % S_ONES)
    s('v_lshlrev_b32 v%d, 4, v%d' % (V_L16, T))
    s('v_and_b32 v%d, 1, v%d' % (T + 7, T + 3))
    s('v_and_b32 v%d, 31, v%d' % (T + 8, T))
    s('v_lshrrev_b32 v%d, 5, v%d' % (T + 9, T))
    s('v_bfe_u32 v%d, v%d, 2, 2' % (T + 10, T))
    s('v_and_b32 v%d, 3, v%d' % (T + 11, T))
    s('v_lshl_add_u32 v%d, s%d, 1, v%d' % (T + 12, S_RW, T + 9))
    s('v_bfe_u32 v%d, v%d, 1, 3' % (T + 5, T))
    s('v_xor_b32 v%d, v%d, v%d' % (T + 5, T + 12, T + 5))
    s('v_lshl_add_u32 v%d, s%d, 5, v%d' % (T + 13, S_RW, T + 8))
    s('v_lshlrev_b32 v%d, 7, v%d' % (V_XA, T + 13))
    s('v_lshl_add_u32 v%d, v%d, 4, v%d' % (V_XA, T + 5, V_XA))
    for j in range(1, 4):
        s('v_xor_b32 v%d, %d, v%d' % (V_XA + j, j << 5, V_XA))
    s('v_lshl_add_u32 v%d, v%d, 3, v%d' % (T + 12, T + 12, T + 10))
    s('v_lshl_add_u32 v%d, v%d, 2, v%d' % (T + 14, T + 7, T + 11))
    s('v_and_b32 v%d, 1, v%d' % (T + 5, T + 10))
    s('v_mov_b32 v%d, 0x3f803f80' % (T + 6))
    s('v_cmp_eq_u32 vcc, v%d, v%d' % (T + 5, T + 7))
    for j in range(4):
        s('v_mov_b32 v%d, 0' % (V_ST + j))
    for j in range(4):
        s('v_cndmask_b32 v%d, 0, v%d, vcc' % (V_SEL + j, T + 6))
    s('v_mov_b32 v%d, 0x%x' % (V_FLO, OOB))
    s('v_cmp_eq_u32 vcc, 0, v%d' % T)
    s('v_mov_b32 v%d, 1' % V_ONE)
    s('v_mov_b32 v%d, 0' % (V_EXW + 1))
    s('v_cndmask_b32 v%d, v%d, 0, vcc' % (V_FLO, V_FLO))
    z.extend(zipper(list(k), list(s)))


def deferred(kv):
    s, T = Seg(), V_T
    for k in EARLY:
        if OPT['diag'] and k in STAMPS:
            s('v_readfirstlane_b32 s%d, v%d' % (S_KA + 2 * STAMPS.index(k), 120 + EARLY.index(k)))
    srd(s, SW2, 1792 * XS)
    srd(s, SWO, 448 * XS)
    srd(s, SOUT, 2048 * XS)
    srd(s, SB2, 448 * 2)
    s('s_mov_b32 s%d, %s' % (S_EPS, f32(1e-6)))
    s('s_mov_b32 s%d, %s' % (S_L2E, f32(LOG2E)))
    s('s_mov_b32 s%d, 0' % S_HI)
    s('s_mov_b32 s%d, -1' % (S_HI + 1))
    if kv:
        s('s_mov_b32 s%d, 0xf0000000' % S_PAD)
        s('s_mov_b32 s%d, 0xf0000000' % (S_PAD + 1))
        s('v_mov_b32 v%d, 0' % (V_EXW + 3))
    s('s_mov_b32 s%d, 0' % S_SPIN)
    s('v_and_b32 v%d, 7, v%d' % (T + 4, T + 4))
    s('v_mul_u32_u24 v%d, %d, v%d' % (V_B2, XS, T + 1))
    s('v_lshl_add_u32 v%d, v%d, 4, v%d' % (V_B2, T + 4, V_B2))
    if kv:
        s('s_mov_b32 s%d, %d' % (S_T1, M_CS))
    else:
        s('s_lshl_b32 s%d, s%d, 9' % (S_T1, S_G))
        s('s_add_u32 s%d, s%d, %d' % (S_T1, S_T1, M_CS))
    s('v_lshl_add_u32 v%d, v%d, 4, s%d' % (V_CSR, T + 8, S_T1))
    s('v_lshl_add_u32 v%d, s%d, 2, v%d' % (V_CSW, S_RW, V_CSR))
    s('s_lshl2_add_u32 s%d, s%d, %d' % (S_T1, S_WV, M_SY))
    s('v_mov_b32 v%d, s%d' % (V_PA, S_T1))
    for k in ((0, 128, 160, 192, 224) if kv else (0,)):
        s('ds_write_b32 v%d, v%d offset:%d' % (V_PA, V_EXW + 1, k))
    if not kv:
        s('v_lshlrev_b32 v%d, 2, v%d' % (V_EXR + 1, T + 13))
        s('v_add_u32 v%d, %d, v%d' % (V_EXR, M_ST, V_EXR + 1))
    s('s_and_b32 s%d, s2, 7' % S_T1)
    s('s_lshl2_add_u32 s%d, s%d, s%d' % (S_I2, S_T1, S_I2))
    if OPT['rot2'] == 2:
        s('s_add_u32 s%d, s%d, s%d' % (S_T1, S_I2, S_ROLE))
    elif OPT['rot2'] == 3:
        s('s_add_u32 s%d, s%d, s%d' % (S_T1, S_I2, S_ROLE))
        s('s_and_b32 s%d, s%d, 3' % (S_T1, S_T1))
    elif OPT['rot2'] == 4:
        s('s_add_u32 s%d, s%d, s%d' % (S_T1, S_I2, S_ROLE))
        s('s_and_b32 s%d, s%d, 1' % (S_T1, S_T1))
    else:
        s('s_lshl1_add_u32 s%d, s%d, s%d' % (S_T1, S_I2, S_ROLE))
    s('s_and_b32 s%d, s%d, 3' % (S_RO, S_T1))
    s('s_and_b32 s%d, s%d, 4' % (S_T1, S_T1))
    s('s_lshl2_add_u32 s%d, s%d, s%d' % (S_RO, S_T1, S_RO))
    if not OPT['rot2']:
        s('s_mov_b32 s%d, 0' % S_RO)
    return s


def tlb_warm(s):
    if not OPT['tlb']:
        return
    T = V_T
    s('s_cmp_eq_u32 s%d, 0' % S_WV)
    s('s_cselect_b32 s%d, 128, 0x%x' % (S_T1, OOB))
    for r in (SDBG, SW2, SWO, SB2, SOUT):
        s('buffer_load_dword v%d, v%d, %s, s%d offen' % (T + 15, V_FLO, sr(r, 4), S_T1))
    s('v_lshlrev_b32 v%d, 17, v%d' % (T + 5, V_L16))
    s('v_min_u32 v%d, 0x%x, v%d' % (T + 5, 0x9f0000, T + 5))
    s('buffer_load_dword v%d, v%d, %s, s%d offen' % (T + 15, T + 5, sr(SWS, 4), S_T1))


def dma_x(s, c, addr, tag):
    s('s_add_u32 m0, s%d, %d' % (S_M0X, addr))
    s('buffer_load_dwordx4 v%d, %s, s%d offen lds' % (V_X0, sr(SX, 4), S_KX + c), tag)
    s('buffer_load_dwordx4 v%d, %s, s%d offen offset:1024 lds' % (V_X1, sr(SX, 4), S_KX + c), tag)


def dma_w(s, m0base, c, addr, tag):
    s('s_add_u32 m0, s%d, %d' % (m0base, addr))
    s('buffer_load_dwordx4 v%d, %s, s%d offen lds' % (V_W, sr(SW, 4), S_KW + c), tag)
    s('buffer_load_dwordx4 v%d, %s, s%d offen offset:1024 lds' % (V_WB, sr(SW, 4), S_KW + c), tag)


def groups(z):
    out, cur = [], []
    for i in z:
        cur.append(i)
        if i.kind == 'vmem':
            out.append(cur)
            cur = []
    if cur:
        out.append(cur)
    return out


def mix(main, grp, lo=0.0, hi=1.0):
    main = [i for i in main if i is not GAP]
    out, k, n = [], 0, len(main)
    for idx, i in enumerate(main):
        while k < len(grp) and idx >= n * (lo + (hi - lo) * k / len(grp)):
            out.extend(grp[k])
            k += 1
        out.append(i)
    for g in grp[k:]:
        out.extend(g)
    return out


def barrier(z, vm=None, name=None):
    if name:
        stamp(z, name + 'a')
    z.wait(vm=vm, lgkm='all')
    if name:
        stamp(z, name + 'b')
    z('s_barrier')


BLK = [0, 4, 1, 5, 2, 6, 3]


def unit_ks(u):
    return 4 * BLK[u >> 2] + (u & 3)


R3 = R1 + 28672
S_QR3 = 100
V_W3, V_WA3 = 125, 126
V_B2S = 0
BA = [4, 5, 6, 7, 13, 15]
RING = [11]


def unit_loc(u):
    u %= RING[0]
    if u < 5:
        return S_QR2, 1, u * 2048
    if u < RING[0] - 6:
        return S_QR3, 2, (u - 5) * 2048
    return S_QR0, 0, (u - RING[0] + 6) * 2048


def p2_setup(s):
    S_T0 = S_T1
    s('s_lshl_b32 s%d, s%d, 7' % (S_T0, S_ROLE))
    s('s_mul_i32 s%d, s%d, %d' % (S_B2R, S_RW, 448 * XS))
    s('s_add_u32 s%d, s%d, s%d' % (S_B2R, S_B2R, S_T0))
    s('s_lshr_b32 s%d, s%d, 1' % (S_WOR, S_RW))
    s('s_mul_i32 s%d, s%d, 6' % (S_WOR, S_WOR))
    s('s_add_u32 s%d, s%d, s%d' % (S_WOR, S_WOR, S_RW))
    s('s_mul_i32 s%d, s%d, %d' % (S_WOR, S_WOR, 28 * XS))
    s('s_add_u32 s%d, s%d, s%d' % (S_WOR, S_WOR, S_T0))
    s('s_mul_i32 s%d, s%d, %d' % (S_OUTO, S_I2, 64 * XS))
    s('s_add_u32 s%d, s%d, s%d' % (S_OUTO, S_OUTO, S_T0))
    s('s_mul_i32 s%d, s%d, 12288' % (S_QR0, S_RW))
    s('s_mul_i32 s%d, s%d, 10240' % (S_QR2, S_RW))
    s('s_add_u32 s%d, s%d, %d' % (S_QR2, S_QR2, R2))
    if RING[0] == 14:
        s('s_mul_i32 s%d, s%d, 6144' % (S_QR3, S_RW))
        s('s_add_u32 s%d, s%d, %d' % (S_QR3, S_QR3, R3))
    s('s_mul_i32 s%d, s%d, %d' % (S_A, S_I2, 2 * ACT_G))


def b2b_setup(s):
    s('v_add_u32 v%d, %d, v%d' % (V_B2B, 8 * XS - 1024, V_B2))


def touch_w(s, ffn, junk=127):
    if not OPT['touch'] & 1:
        return
    T = V_T
    s('s_and_b32 s%d, s%d, 3' % (S_T2, S_ROLE))
    s('s_lshl2_add_u32 s%d, s%d, s%d' % (S_T2, S_RB, S_T2))
    s('s_lshl3_add_u32 s%d, s%d, s%d' % (S_T2, S_T2, S_WV))
    s('s_mul_i32 s%d, s%d, %d' % (S_T2, S_T2, W1S if ffn else WQS))
    s('s_mul_i32 s%d, s%d, %d' % (S_T3, S_HALF, 1792 if ffn else 384))
    s('s_add_u32 s%d, s%d, s%d' % (S_T2, S_T2, S_T3))
    if ffn:
        s('v_min_u32 v%d, 13, v%d' % (T + 2, T))
    else:
        s('v_min_u32 v%d, 11, v%d' % (T + 2, T))
        s('v_lshrrev_b32 v%d, 2, v%d' % (T + 15, T + 2))
        s('v_mad_u32_u24 v%d, v%d, 3, v%d' % (T + 2, T + 15, T + 2))
    s('v_lshlrev_b32 v%d, 7, v%d' % (T + 2, T + 2))
    s('buffer_load_dword v%d, v%d, %s, s%d offen' % (junk, T + 2, sr(SW, 4), S_T2))


def touch_qv(s, junk=127):
    T = V_T
    s('s_lshl3_add_u32 s%d, s%d, s%d' % (S_T2, S_RB, S_WV))
    s('s_mul_i32 s%d, s%d, %d' % (S_T2, S_T2, 4 * WQS))
    s('s_mul_i32 s%d, s%d, 384' % (S_T3, S_HALF))
    s('s_add_u32 s%d, s%d, s%d' % (S_T2, S_T2, S_T3))
    s('v_min_u32 v%d, 15, v%d' % (T + 2, T))
    s('v_lshrrev_b32 v%d, 2, v%d' % (T + 15, T + 2))
    s('v_mad_u32_u24 v%d, v%d, 17, v%d' % (T + 2, T + 15, T + 2))
    s('v_lshlrev_b32 v%d, 7, v%d' % (T + 2, T + 2))
    s('buffer_load_dword v%d, v%d, %s, s%d offen' % (junk, T + 2, sr(SW, 4), S_T2))


def touch_ffn(s, t, junk=127):
    s('s_lshl3_add_u32 s%d, s%d, s%d' % (S_T2, S_RB, S_P))
    s('s_lshl2_add_u32 s%d, s%d, s%d' % (S_T2, S_T2, S_RW))
    s('v_min_u32 v%d, %d, v%d' % (t, 24 * 16, V_L16))
    s('s_mul_i32 s%d, s%d, %d' % (S_T3, S_T2, 25 * 128))
    s('v_lshlrev_b32 v%d, 3, v%d' % (t, t))
    s('buffer_load_dword v%d, v%d, %s, s%d offen' % (junk, t, sr(SW2, 4), S_T3))
    s('v_min_u32 v%d, %d, v%d' % (t, 6 * 128, t))
    s('s_mul_i32 s%d, s%d, %d' % (S_T3, S_T2, 7 * 128))
    s('buffer_load_dword v%d, v%d, %s, s%d offen' % (junk, t, sr(SWO, 4), S_T3))


def touch_fl2(s, h, t, junk=127):
    k = h - OPT['tf0']
    if not OPT['touch'] & 256 or not 0 <= k < 4 or not OPT['rounds'] >> k & 1:
        return
    s('s_add_u32 s%d, s2, %d' % (S_T3, k))
    s('s_and_b32 s%d, s%d, 3' % (S_T3, S_T3))
    s('s_and_b32 s%d, s%d, 3' % (S_T2, S_I2))
    s('s_lshl2_add_u32 s%d, s%d, s%d' % (S_T3, S_T3, S_T2))
    s('s_lshl2_add_u32 s%d, s%d, s%d' % (S_T3, S_T3, S_ROLE))
    s('s_lshl2_add_u32 s%d, s%d, s%d' % (S_T3, S_T3, S_RW))
    s('v_min_u32 v%d, %d, v%d' % (t, 48 * 16, V_L16))
    s('s_mul_i32 s%d, s%d, %d' % (S_T3, S_T3, 7 * XS))
    s('v_lshlrev_b32 v%d, 3, v%d' % (t, t))
    s('buffer_load_dword v%d, v%d, %s, s%d offen' % (junk, t, sr(SW2, 4), S_T3))


def touch_w2(s):
    if not OPT['touch'] & 2:
        return
    T = V_T
    s('s_lshl3_add_u32 s%d, s2, s%d' % (S_T2, S_WV))
    s('s_mul_i32 s%d, s%d, %d' % (S_T2, S_T2, XS))
    s('v_min_u32 v%d, 6, v%d' % (T + 2, T))
    s('v_lshlrev_b32 v%d, 7, v%d' % (T + 2, T + 2))
    s('s_sub_u32 s%d, %d, s%d' % (S_T3, 2047 * XS, S_T2))
    s('buffer_load_dword v%d, v%d, %s, s%d offen' % (V_POLL, T + 2, sr(SW2, 4), S_T2))
    s('buffer_load_dword v%d, v%d, %s, s%d offen' % (V_POLL, T + 2, sr(SWO, 4), S_T3))


def touch_kv(s, both):
    if not OPT['touch'] & 4:
        return
    T = V_T + 8
    s('s_mul_i32 s%d, s%d, 6' % (S_T2, S_RB))
    s('s_add_u32 s%d, s%d, s%d' % (S_T2, S_T2, S_P))
    s('s_lshl3_add_u32 s%d, s%d, s%d' % (S_T2, S_T2, S_WV))
    s('v_min_u32 v%d, %d, v%d' % (T, 16 * 16, V_L16))
    s('s_mul_i32 s%d, s%d, %d' % (S_T3, S_T2, 17 * 128))
    s('v_lshlrev_b32 v%d, 3, v%d' % (T, T))
    s('buffer_load_dword v%d, v%d, %s, s%d offen' % (V_WA + 4, T, sr(SW2, 4), S_T3))
    s('v_min_u32 v%d, %d, v%d' % (T, 4 * 128, T))
    s('s_mul_i32 s%d, s%d, %d' % (S_T3, S_T2, 5 * 128))
    s('buffer_load_dword v%d, v%d, %s, s%d offen' % (V_WA + 4, T, sr(SWO, 4), S_T3))


def touch_l2(s, r, t):
    if not OPT['touch'] & 32 or not OPT['rounds'] >> r & 1:
        return
    s('s_add_u32 s%d, s2, %d' % (S_T3, r))
    s('s_and_b32 s%d, s%d, 3' % (S_T3, S_T3))
    s('s_mul_i32 s%d, s%d, 49' % (S_T3, S_T3))
    s('s_lshr_b32 s%d, s2, 6' % S_T2)
    s('s_mul_i32 s%d, s%d, 3' % (S_T2, S_T2))
    s('s_add_u32 s%d, s%d, s%d' % (S_T2, S_T2, S_ROLE))
    s('s_lshl2_add_u32 s%d, s%d, s%d' % (S_T2, S_T2, S_RW))
    s('s_add_u32 s%d, s%d, s%d' % (S_T3, S_T3, S_T2))
    s('s_sub_u32 s%d, s%d, 16' % (S_T3, S_T3))
    s('v_lshlrev_b32 v%d, 3, v%d' % (t, V_L16))
    s('s_lshl_b32 s%d, s%d, 13' % (S_T3, S_T3))
    s('buffer_load_dword v%d, v%d, %s, s%d offen' % (t, t, sr(SW2, 4), S_T3))


def touch_wo(s, t):
    if not OPT['touch'] & (32 | 256):
        return
    s('s_and_b32 s%d, s%d, 3' % (S_T2, S_I2))
    s('s_lshl3_add_u32 s%d, s%d, s%d' % (S_T2, S_T2, S_WV))
    s('v_min_u32 v%d, %d, v%d' % (t, 48 * 16, V_L16))
    s('s_mul_i32 s%d, s%d, %d' % (S_T2, S_T2, 14 * XS))
    s('v_lshlrev_b32 v%d, 3, v%d' % (t, t))
    s('s_add_u32 s%d, s%d, %d' % (S_T3, S_T2, 7 * XS))
    s('buffer_load_dword v%d, v%d, %s, s%d offen' % (t + 1, t, sr(SWO, 4), S_T2))
    s('buffer_load_dword v%d, v%d, %s, s%d offen' % (t + 1, t, sr(SWO, 4), S_T3))


def ks_dyn(s, dst, u):
    if u < 24:
        s('s_xor_b32 s%d, s%d, %d' % (dst, S_RO, unit_ks(u)))
    else:
        s('s_and_b32 s%d, s%d, 3' % (dst, S_RO))
        s('s_xor_b32 s%d, s%d, %d' % (dst, dst, unit_ks(u)))


def dma_b2(s, u):
    base, _, off = unit_loc(u)
    if u < 28:
        ks_dyn(s, S_T3, u)
        if OPT['x_hit'] & 2:
            s('s_and_b32 s%d, s%d, 7' % (S_T3, S_T3))
        s('s_add_u32 m0, s%d, %d' % (base, off))
        s('s_mul_i32 s%d, s%d, %d' % (S_T3, S_T3, 16 * XS))
        s('s_add_u32 s%d, s%d, s%d' % (S_T3, S_T3, S_B2R))
        s('buffer_load_dwordx4 v%d, %s, s%d offen lds' % (V_B2, sr(SW2, 4), S_T3), ('b', u))
        s('buffer_load_dwordx4 v%d, %s, s%d offen offset:1024 lds' % (V_B2B, sr(SW2, 4), S_T3), ('b', u))
        return
    s('s_add_u32 m0, s%d, %d' % (base, off))
    for h in range(2):
        p, r = divmod(2 * (u - 28) + h, 7)
        row = 112 * p + (8 * r if r <= 3 else 56 + 8 * (r - 4))
        s('s_add_u32 s%d, s%d, %d' % (S_T3, S_WOR, row * XS - h * 1024))
        s('buffer_load_dwordx4 v%d, %s, s%d offen offset:%d lds' % (V_B2S if r == 3 else V_B2, sr(SWO, 4), S_T3, h * 1024), ('b', u))


V_OUT, V_RD, V_U = 8, 9, 248


def res_load(R):
    s = Seg()
    s('v_lshrrev_b32 v%d, 3, v0' % (R + 8))
    s('v_and_b32 v%d, 0x70, v%d' % (R + 9, V_L16))
    s('v_mul_u32_u24 v%d, %d, v%d' % (R + 8, XS, R + 8))
    s('s_lshl_b32 s%d, s%d, 7' % (S_T2, S_ROLE))
    s('v_add_u32 v%d, v%d, v%d' % (R + 8, R + 8, R + 9))
    s('buffer_load_dwordx4 %s, v%d, %s, s%d offen' % (vr(R, 4), R + 8, sr(SX, 4), S_OUTO), 'res')
    s('buffer_load_dwordx4 %s, v%d, %s, s%d offen' % (vr(R + 4, 4), R + 9, sr(SB2, 4), S_T2), 'res')
    return s


def res_unpack(R):
    z, U = Seg(), V_U
    z('v_mov_b32 v%d, v%d' % (V_OUT, R + 8))
    z.wait(vm='res')
    for k in range(4):
        z('v_lshlrev_b32 v%d, 16, v%d' % (U + 2 * k, R + k))
        z('v_and_b32 v%d, 0xffff0000, v%d' % (U + 2 * k + 1, R + k))
        z('v_lshlrev_b32 v%d, 16, v%d' % (R + k, R + 4 + k))
        z('v_and_b32 v%d, 0xffff0000, v%d' % (R + 4 + k, R + 4 + k))
        z('v_add_f32 v%d, v%d, v%d' % (U + 2 * k, U + 2 * k, R + k))
        z('v_add_f32 v%d, v%d, v%d' % (U + 2 * k + 1, U + 2 * k + 1, R + 4 + k))
    return z


RES_F, RES_K = 108, V_ACC + 54


def abuf(u, rg):
    return V_AB + 8 * (u % DEP) + 4 * rg if u < 28 else V_AB + 64 + 8 * (u - 28) + 4 * rg


def a_setup(s):
    s('v_add_u32 v%d, %d, v%d' % (V_L16B, ACT_G, V_L16))
    s('s_mul_i32 s%d, s%d, 7168' % (S_T0, S_RW))
    s('s_add_u32 s%d, s%d, s%d' % (S_P, S_A, S_T0))
    s('s_add_u32 s%d, s%d, %d' % (S_P, S_P, 112 * 1024))
    s('s_add_u32 s%d, s%d, 4096' % (S_RO3, S_P))
    s('s_mul_i32 s%d, s%d, %d' % (S_T0, S_RW, 28 * 1024))
    s('s_add_u32 s%d, s%d, s%d' % (S_A, S_A, S_T0))


def aload(z, u):
    ks_dyn(z, S_T0, u)
    z('s_lshl_b32 s%d, s%d, 10' % (S_T0, S_T0))
    z('s_add_u32 s%d, s%d, s%d' % (S_T0, S_T0, S_A))
    for rg in range(2):
        z('buffer_load_dwordx4 %s, v%d, %s, s%d offen sc1' % (vr(abuf(u, rg), 4), V_L16B if rg else V_L16, sr(SWS, 4), S_T0), ('a', u))


def sync_arrive(s, k):
    s('ds_write_b32 v%d, v%d offset:%d' % (V_PA, V_ONE, k * 32))


def sync_wait(s, k, nw, T):
    j = nspin[0]
    nspin[0] += 1
    s('v_mov_b32 v%d, %d' % (T + 8, M_SY))
    s('L_sy%d:' % j)
    for h in range(nw // 4):
        s('ds_read_b128 %s, v%d offset:%d' % (vr(T + 4 * h, 4), T + 8, k * 32 + h * 16))
    s('s_add_u32 s%d, s%d, 1' % (S_SPIN, S_SPIN))
    s('s_cmp_gt_u32 s%d, 0x%x' % (S_SPIN, SPIN_LIMIT))
    s('s_cbranch_scc1 L_sz%d' % j)
    s.wait(lgkm='all')
    for h in range(1, nw - 1, 2):
        s('v_and_b32 v%d, v%d, v%d' % (T + h, T + h, T + h + 1))
    for h in range(1, nw, 2):
        s('v_and_b32 v%d, v%d, v%d' % (T, T, T + h))
    s('v_readfirstlane_b32 s%d, v%d' % (S_T2, T))
    s('s_cmp_eq_u32 s%d, 0' % S_T2)
    s('s_cbranch_scc1 L_sy%d' % j)
    s('L_sz%d:' % j)
    s.wait(lgkm='all')


def flag(s, off):
    if OPT['fatom']:
        s('buffer_atomic_add v%d, v%d, %s, s%d offen offset:%d sc1' % (V_ONE, V_FLO, sr(SWS, 4), S_FL, off))
    else:
        s('buffer_store_dword v%d, v%d, %s, s%d offen offset:%d sc1' % (V_ONE, V_FLO, sr(SWS, 4), S_FL, off))


def f0_load(s):
    s('buffer_load_dword v%d, v%d, %s, 0 offen sc1' % (V_POLL, V_FLO, sr(SDBG, 4)), 'f0')


def f0_check(s):
    s('v_mov_b32 v%d, 32' % (V_T + 15))
    stamp(s, 'f0a')
    s.wait(vm='f0')
    stamp(s, 'f0b')
    spin_check(s, V_POLL, V_T + 15, V_FLO, SDBG, '0', 1)


def poll_early(s):
    poll_base(s)
    poll_async(s, 0)


def xreg(c, j):
    return V_X + 16 * c + 4 * j


def dots(s, c):
    for j in range(4):
        s.wait(lgkm=[('x', c, j)])
        for r in range(4):
            x = xreg(c, j) + r
            s('v_dot2c_f32_bf16 v%d, s%d, v%d' % (V_ST + (r & 1), S_ONES, x))
            s('v_dot2c_f32_bf16 v%d, v%d, v%d' % (V_ST + 2 + (r & 1), x, x))


def stats_pack(s):
    T = V_T
    s('v_add_f32 v%d, v%d, v%d' % (T, V_ST, V_ST + 1))
    s('v_add_f32 v%d, v%d, v%d' % (T + 2, V_ST, V_ST + 1))
    s('v_add_f32 v%d, v%d, v%d' % (T + 1, V_ST + 2, V_ST + 3))
    s('v_add_f32 v%d, v%d, v%d' % (T + 3, V_ST + 2, V_ST + 3))
    s('v_permlane32_swap_b32 v%d, v%d' % (T, T + 2))
    s('v_permlane32_swap_b32 v%d, v%d' % (T + 1, T + 3))
    s('v_add_f32 v%d, v%d, v%d' % (T, T, T + 2))
    s('v_add_f32 v%d, v%d, v%d' % (T + 1, T + 1, T + 3))
    s('v_mul_f32 v%d, %s, v%d' % (T, f32(1.0 / 448), T))
    s('v_mul_f32 v%d, %s, v%d' % (T + 1, f32(1.0 / 448), T + 1))
    s('v_fma_f32 v%d, -v%d, v%d, v%d' % (T + 1, T, T, T + 1))
    s('v_max_f32 v%d, 0, v%d' % (T + 1, T + 1))
    s('v_cvt_pk_bf16_f32 v%d, v%d, v%d' % (T + 1, T + 1, T + 1))
    s('v_lshlrev_b32 v%d, 16, v%d' % (T + 1, T + 1))
    s('v_add_f32 v%d, %s, v%d' % (T + 1, f32(1e-5), T + 1))
    s('v_cvt_pk_bf16_f32 v%d, v%d, v%d' % (T + 1, T + 1, T + 1))
    s('v_lshlrev_b32 v%d, 16, v%d' % (T + 1, T + 1))
    s('v_sqrt_f32 v%d, v%d' % (T + 1, T + 1))
    s('v_cvt_pk_bf16_f32 v%d, -v%d, v%d' % (T, T, T + 1))
    s('ds_write_b32 v%d, v%d' % (V_EXR, T))


def stats_final(kind, read=True):
    s, T = Seg(), V_T
    if read:
        s('ds_read_b32 v%d, v%d' % (T, V_EXR), 'st')
        s.wait(lgkm='st')
    s('v_and_b32 v%d, 0xffff0000, v%d' % (V_ST + 2, T))
    s('v_rcp_f32 v%d, v%d' % (V_ST + 3, V_ST + 2))
    s('v_cndmask_b32 v%d, v%d, 0, %s' % (T, T, sr(S_HI, 2)))
    s('v_and_b32 v%d, 0xffff, v%d' % (T + 1, T))
    s('v_lshl_or_b32 v%d, v%d, 16, v%d' % (V_EXR, T, T + 1))
    s('v_lshrrev_b32 v%d, 16, v%d' % (V_EXR + 1, T))
    if kind == 'gelu':
        s('v_mul_f32 v%d, %s, v%d' % (V_ST, f32(GC1), V_ST + 3))
        s('v_mul_f32 v%d, v%d, v%d' % (T, V_ST + 3, V_ST + 3))
        s('v_mul_f32 v%d, %s, v%d' % (V_ST + 1, f32(GC3), V_ST + 3))
        s('v_mul_f32 v%d, v%d, v%d' % (V_ST + 1, T, V_ST + 1))
    else:
        s('v_mul_f32 v%d, s%d, v%d' % (V_ST, S_L2E, V_ST + 3))
    return s


def ext_parts(acc, off, exw, swap, bias=None, T=V_T + 8):
    r, b, m = Seg(), Seg(), Seg()
    tag = ('cs', id(r))
    r('ds_read_b128 %s, v%d offset:%d' % (vr(T, 4), V_CSR, off), tag)
    b.wait(lgkm=[tag])
    b('v_add_f32 v%d, v%d, v%d' % (T, T, T + 1))
    b('v_add_f32 v%d, v%d, v%d' % (T + 2, T + 2, T + 3))
    b('v_add_f32 v%d, v%d, v%d' % (T, T, T + 2))
    b('v_cvt_pk_bf16_f32 v%d, v%d, v%d' % (T + 1, T, T))
    b('v_lshlrev_b32 v%d, 16, v%d' % (T + 1, T + 1))
    b('v_sub_f32 v%d, v%d, v%d' % (T + 1, T, T + 1))
    b('v_cvt_pk_bf16_f32 v%d, v%d, v%d' % (exw, T, T + 1))
    if bias is not None:
        r('v_mov_b32 v%d, v%d' % (exw + 1, bias))
    x, y = (V_EXR, exw) if swap else (exw, V_EXR)
    m('v_mfma_f32_32x32x8_bf16 %s, %s, %s, %s' % (vr(acc, 16), vr(x, 2), vr(y, 2), vr(acc, 16)))
    KEEP.append(r)
    return r, b, m


KEEP = []


def head(parts, stats=None):
    st = [i for i in stats if i is not GAP] if stats is not None else []
    out = st[:1]
    for p in parts:
        out += p[0]
    out += st[1:]
    for p in parts:
        out += p[1]
    for p in parts:
        out += p[2]
    return out


def epi_rowlane(kind, acc, tag, handoff=False, keep=None):
    s, T = Seg(), V_T
    for grp in range(4):
        a = [acc + 4 * grp + e for e in range(4)]
        t = [T + e for e in range(4)]
        if kind == 'gelu':
            for e in range(4):
                s('v_mul_f32 v%d, v%d, v%d' % (t[e], a[e], a[e]))
            for e in range(4):
                s('v_fma_f32 v%d, v%d, v%d, v%d' % (t[e], t[e], V_ST + 1, V_ST))
            for e in range(4):
                s('v_mul_f32 v%d, v%d, v%d' % (t[e], a[e], t[e]))
            for e in range(4):
                s('v_exp_f32 v%d, v%d' % (t[e], t[e]))
            for e in range(4):
                s('v_fma_f32 v%d, v%d, v%d, v%d' % (t[e], t[e], V_ST + 2, V_ST + 2))
            for e in range(4):
                s('v_rcp_f32 v%d, v%d' % (t[e], t[e]))
            for e in range(4):
                s('v_mul_f32 v%d, v%d, v%d' % (a[e], a[e], t[e]))
        else:
            for e in range(4):
                s('v_mul_f32 v%d, v%d, v%d' % (t[e], a[e], V_ST))
            for e in range(4):
                s('v_exp_f32_e64 v%d, v%d clamp' % (t[e], t[e]))
            for e in range(4):
                s('v_fma_f32 v%d, v%d, v%d, s%d' % (a[e], a[e], V_ST + 3, S_EPS))
            for e in range(4):
                s('v_max_f32 v%d, s%d, v%d' % (a[e], S_EPS, a[e]))
            for e in range(4):
                s('v_add_f32 v%d, v%d, v%d' % (a[e], a[e], t[e]))
        p = acc + 8 * (grp >> 1) + 2 * (grp & 1) if keep is None else keep + 2 * grp
        s('v_cvt_pk_bf16_f32 v%d, v%d, v%d' % (p, a[0], a[1]))
        s('v_cvt_pk_bf16_f32 v%d, v%d, v%d' % (p + 1, a[2], a[3]))
        if kind == 'phi' and grp == 3:
            s('v_cndmask_b32 v%d, v%d, 0, %s' % (p, p, sr(S_HI, 2)))
            s('v_cndmask_b32 v%d, v%d, 0, %s' % (p + 1, p + 1, sr(S_HI, 2)))
        if grp & 1 and keep is None:
            f = grp >> 1
            if handoff:
                s('ds_write_b128 v%d, %s offset:%d' % (V_RA, vr(acc + 8 * f, 4), f * 1024))
                continue
            s('buffer_store_dwordx4 %s, v%d, %s, s%d offen offset:%d sc1' % (vr(acc + 8 * f, 4), V_L16, sr(SWS, 4), S_H, f * 1024), tag)
    return s


def lc_role(ffn):
    kind = 'gelu' if ffn else 'phi'
    RING[0] = 14
    nm = 'f' if ffn else 'q'
    s, T = Seg(nm), V_T
    if not ffn:
        s('L_q:')
    if OPT['twat'] < -1:
        touch_w(s, ffn)
    s('s_mul_i32 s%d, s%d, %d' % (S_T1, S_G, 64 if ffn else 56))
    s('v_lshrrev_b32 v%d, 1, v%d' % (T + 6, T + 10))
    s('v_lshl_add_u32 v%d, v%d, 3, s%d' % (T + 5, T + 14, S_T1))
    s('v_lshlrev_b32 v%d, 6, v%d' % (T + 6, T + 6))
    s('v_xor_b32 v%d, v%d, v%d' % (T + 5, T + 5, T + 6))
    s('v_lshl_add_u32 v%d, v%d, 7, v%d' % (V_WA, T + 12, T + 5))
    for j in range(1, 4):
        s('v_xor_b32 v%d, %d, v%d' % (V_WA + j, j << 11, V_WA))
    srd(s, SWS, WS_BYTES)
    srd(s, SDBG, 256)
    s('s_waitcnt lgkmcnt(0)')
    if not ffn:
        s('s_lshl1_add_u32 s%d, s%d, s%d' % (S_T2, S_RB, S_HALF))
        s('s_mul_i32 s%d, s%d, 6' % (S_T1, S_T2))
        s('s_add_u32 s%d, s%d, s%d' % (S_T1, S_T1, S_WV))
        s('s_lshl_b32 s%d, s%d, 10' % (S_T1, S_T1))
        s('s_add_u32 s%d, s%d, 0x%x' % (S_T1, S_T1, KV_OFF))
        s('s_lshl_b32 s%d, s%d, 10' % (S_LAST, S_T2))
        s('s_add_u32 s%d, s%d, 0x%x' % (S_LAST, S_LAST, ST_OFF))
        s('s_cmp_lt_u32 s%d, 6' % S_WV)
        s('s_cselect_b32 s%d, s%d, 0x%x' % (S_T1, S_T1, OOB))
        s('s_cmp_eq_u32 s%d, 6' % S_WV)
        s('s_cselect_b32 s%d, s%d, s%d' % (S_T1, S_LAST, S_T1))
        s('buffer_store_dwordx4 %s, v%d, %s, s%d offen sc1' % (vr(V_ST, 4), V_L16, sr(SWS, 4), S_T1), 'zero')
    s('s_cmp_eq_u32 s%d, 1' % S_G)
    s('s_cbranch_scc1 L_%sb' % nm)
    UA, UB = [([(), (5,), (7,)], [(0, 1), (2,), (3, 4, 6)]), ([(), (5, 6), ()], [(0, 1), (2,), (3, 4, 7)]),
              ([(0,), (5, 6), (7,)], [(1,), (2,), (3, 4)])][OPT['ub']]
    LCS = [{3: ([], [0]), 4: ([], [1]), 5: ([], [2]), 6: ([3], []), 7: ([], [4, 5, 6])},
           {3: ([1], [0]), 4: ([3], [2]), 7: ([], [4, 5, 6])},
           {3: ([1], [0]), 4: ([], [2]), 7: ([3], [4, 5, 6])},
           {3: ([], [0]), 4: ([], [1]), 7: ([2, 3], [4, 5, 6])},
           {3: ([2], [0, 1]), 4: ([4], [3]), 7: ([], [5, 6])},
           {3: ([2], [0, 1]), 4: ([5], [3, 4]), 7: ([], [6])}][OPT['lcs']]
    step = 128 if ffn else 112
    region = [R0, R1, R0, R1]
    acc = V_ACC

    def stream(g):
        z = Seg(nm + 'ab'[g])
        if g:
            z('L_%sb:' % nm)
        xa = Rebase([V_XA + j for j in range(4)], 0, 0)
        wa = Rebase([V_WA + j for j in range(4)], 0, 512)

        def triple(t, c):
            dma_x(t, c, XSLOT[c], ('t', c))
            if g:
                dma_w(t, S_M0W, c, R0 + c * 8192, ('t', c))

        def lc(t, q, c):
            if ffn and q == 3:
                t('s_add_u32 m0, s%d, %d' % (S_M0W, R1 + c * 4096))
                t('buffer_load_dwordx4 v%d, %s, s%d offen lds' % (V_W3, sr(SW, 4), S_KW + c), ('l', q, c))
                return
            dma_w(t, S_M0W, c, region[q] + c * 8192, ('l', q, c))

        def wread(t, q, c, j):
            half = ffn and q == 3
            o = c * 4096 if half else wa.off(t, region[q] + c * 8192)
            for u in range(2):
                t('ds_read_b64_tr_b16 %s, v%d offset:%d' % (vr(V_WF + 4 * j + 2 * u, 2), V_WA + j, o + u * (256 if half else 512)), ('w', q, c, j))

        def xread(t, c, j):
            o = xa.off(t, XSLOT[c])
            t('ds_read_b128 %s, v%d offset:%d' % (vr(xreg(c, j), 4), V_XA + j, o), ('x', c, j))

        def kstep(q, c, j):
            t = Seg()
            t.wait(lgkm=[('w', q, c, j | OPT['wj'])])
            first = c == 0 and j == 0
            t('v_mfma_f32_32x32x16_bf16 %s, %s, %s, %s' % (vr(acc, 16), vr(V_WF + 4 * j, 4), vr(xreg(c, j), 4), '0' if first else vr(acc, 16)))
            if j == 0:
                t('v_mfma_f32_16x16x32_bf16 %s, %s, %s, %s' % (vr(V_CS, 4), vr(V_SEL, 4), vr(V_WF + 4 * j, 4), '0' if first else vr(V_CS, 4)))
            if c < 6:
                wread(t, q, c + 1, j)
            return t

        def preread(t, q):
            for j in range(4):
                wread(t, q, 0, j)

        carry, ecarry = [], []

        def gemm(t, q, fill=(), extra=None):
            t('s_setprio 1')
            t.extend(ecarry)
            ecarry[:] = []
            slots = [kstep(q, c, j) for c in range(7) for j in range(4)]
            for k, gi in enumerate(groups(extra) if extra is not None else []):
                slots[min(1 + OPT['gsp'] * k, 24)].extend(gi)
            n = 28 - OPT['carry']
            slots[min(26, n - 1)]('ds_write_b32 v%d, v%d' % (V_CSW, V_CS))
            for z in slots[:n]:
                t.extend(z)
            carry[:] = [i for z in slots[n:] for i in z]

        def next_col(t, last=False):
            if last and ffn:
                t('s_lshr_b32 s%d, s%d, 1' % (S_M0W, S_M0W))
                return
            for r in (V_W, V_WB):
                t('v_add_u32 v%d, %d, v%d' % (r, step, r))

        def epi(t, q, extra=None, pre=None, handoff=False, hi=0.85, keep=False, nxt=None, lo=0.03, early=2):
            grp = groups(extra) if extra is not None else []
            t('s_setprio 2')
            parts = ext_parts(acc, 0, V_EXW, False, V_B1 + q if ffn else None)
            parts[0].extend(carry)
            carry[:] = []
            t.extend(head([parts], pre))
            if not keep:
                t('s_setprio %d' % OPT['eprio'])
            stamp(t, 'x%d' % (2 * q + g + 1))
            for gi in grp[:early]:
                t.extend(gi)
            body = mix(epi_rowlane(kind, acc, ('h', q), handoff, None if ffn else V_PQ + 8 * q), grp[early:], lo, hi)
            if ffn:
                r = Seg()
                touch_fl2(r, 2 * q + g + 1, V_XA + 1)
                body = mix(body, [list(r)], OPT['tfp'] / 100, 1.0)
            if nxt is not None:
                r = Seg()
                if ffn and not g and nxt == 3:
                    for k in range(4):
                        r('v_xor_b32 v%d, %d, v%d' % (V_WA + k, k << 10, V_WA3))
                preread(r, nxt)
                body = mix(body, [[i] for i in r], 0.45, 0.8) if OPT['pmix'] else body + list(r)
            body = list(body)
            if ffn:
                body.append(Ins('s_add_u32 s%d, s%d, 4096' % (S_H, S_H)))
            n = len(body) - (OPT['ecarry'] if ffn and nxt is not None else 0)
            t.extend(body[:n])
            ecarry[:] = body[n:]

        def duty(q, chunks, units=(), step_col=True):
            d = Seg()
            if step_col:
                next_col(d, q == 3)
            for k in chunks:
                lc(d, q, k)
            if ffn:
                for u in units:
                    dma_b2(d, u)
            return d

        late = deferred(False)
        if ffn:
            p2_setup(late)
        late('s_lshl2_add_u32 s%d, s%d, s%d' % (S_H, S_RB, S_RW))
        late('s_mul_i32 s%d, s%d, %d' % (S_H, S_H, ACT_G))
        late('s_add_u32 s%d, s%d, %d' % (S_H, S_H, g * 2048 if ffn else g * 7168 + 112 * 1024))
        late('s_mul_i32 s%d, s%d, %d' % (S_T1, S_T0 if ffn else S_HALF, 32 if ffn else 14336))
        late('s_add_u32 s%d, s%d, s%d' % (S_H, S_H, S_T1))
        if ffn:
            late('s_add_u32 s%d, s%d, %d' % (S_T1, S_M0W, HND))
            late('v_add_u32 v%d, s%d, v%d' % (V_RA, S_T1, V_L16))
            late('s_mul_i32 s%d, s%d, -7' % (S_LAST, S_PEND))
            late('s_add_u32 s%d, s%d, s%d' % (S_LAST, S_LAST, S_T0))
            late('s_add_u32 s%d, s%d, 384' % (S_LAST, S_LAST))
            late('v_lshrrev_b32 v%d, 2, v%d' % (T + 5, T))
            late('v_lshl_add_u32 v%d, s%d, 4, v%d' % (T + 5, S_RW, T + 5))
            late('v_mul_u32_u24 v%d, %d, v%d' % (T + 5, W1S, T + 5))
            late('v_lshl_add_u32 v%d, v%d, 4, s%d' % (V_W3, T + 11, S_LAST))
            late('v_add_u32 v%d, v%d, v%d' % (V_W3, V_W3, T + 5))
            if not g:
                late('v_lshl_add_u32 v%d, v%d, 3, v%d' % (T + 5, T + 12, T + 14))
                late('v_lshlrev_b32 v%d, 3, v%d' % (T + 5, T + 5))
                late('v_add_u32 v%d, %d, v%d' % (V_WA3, R1, T + 5))
            srd(late, SB1, 1792 * 2)
            late('v_lshlrev_b32 v%d, 1, v%d' % (T + 5, T + 8))
            for q in range(3):
                late('buffer_load_ushort v%d, v%d, %s, s%d offen offset:%d' % (V_B1 + q, T + 5, sr(SB1, 4), S_T0, q * 128 + g * 64), 'b1')
            if not g:
                late('buffer_load_ushort v%d, v%d, %s, s%d offen' % (V_B1 + 3, T + 5, sr(SB1, 4), S_LAST), 'b1')
        if g:
            late('s_mov_b32 s%d, 0x%x' % (S_FL, OOB))
        else:
            late('s_lshr_b32 s%d, s%d, 1' % (S_T1, S_P) if ffn else 's_lshl_b32 s%d, s%d, 1' % (S_T1, S_HALF))
            late('s_lshl2_add_u32 s%d, s%d, s%d' % (S_T1, S_RB, S_T1))
            late('s_mul_i32 s%d, s%d, %d' % (S_FL, S_T1, FL_G))
            late('s_lshl1_add_u32 s%d, s%d, s%d' % (S_FL, S_PEND, S_FL))
            late('s_lshl_b32 s%d, s%d, 28' % (S_T1, S_RW))
            late('s_add_u32 s%d, s%d, s%d' % (S_FL, S_FL, S_T1))
            late('s_add_u32 s%d, s%d, 0x%x' % (S_FL, S_FL, FL_OFF))
        NL = OPT['nlate']

        def some(k):
            return late[len(late) * k // NL:len(late) * (k + 1) // NL] if k < NL else []

        triple(z, 1)
        estamp(z, 't1')
        z.extend(some(0))
        if OPT['tat'] < -1:
            touch_w2(z)
        z('s_barrier')
        if g:
            z('s_setprio 1')
        triple(z, 2)
        for c in range(-1, 7):
            if c < 6:
                barrier(z, ['t0', 'zero'] if c < 0 else [('t', c + 1)], 's%d' % c if c >= 0 else 'pre')
            if c < 0:
                stamp(z, 1)
                if not ffn and not g:
                    z('s_lshl_b32 s%d, s%d, 28' % (S_T2, S_WV))
                    z('buffer_atomic_add v%d, v%d, %s, s%d offen sc1' % (V_ONE, V_FLO, sr(SDBG, 4), S_T2))
            d = Seg()
            if c < 3:
                triple(d, c + 4)
            if c == OPT['tat']:
                touch_w2(d)
            if c == 3:
                next_col(d)
            for k in LCS.get(c, ([], []))[g]:
                lc(d, 1, k)
            if c == 4 and ffn:
                b2b_setup(d)
                if not g and OPT['touch'] & 128 and OPT['tfat'] == 0:
                    touch_ffn(d, V_T + 2)
            if c == OPT['twat']:
                if ffn or not OPT['touch'] & 64:
                    touch_w(d, ffn)
                else:
                    touch_qv(d)
            if g:
                if c == 6:
                    break
                for j in range(4):
                    xread(z, c + 1, j)
                if c < 5:
                    z.extend(mix(some(c + 2), groups(d)))
                if c == 3:
                    preread(z, 0)
                dots(z, c + 1)
                if c == 5:
                    if OPT['s6']:
                        z('s_barrier')
                    stats_pack(z)
                    if not ffn:
                        z('buffer_store_dword v%d, v%d, %s, s%d offen sc1' % (T, V_EXR + 1, sr(SWS, 4), S_LAST))
                    z.extend(d)
                    z.extend(stats_final(kind, False))
            else:
                if c == 6 and OPT['s6']:
                    z('s_barrier')
                for j in range(4):
                    if c == 6:
                        z.wait(lgkm=[('x', c, j)])
                    if c >= 0:
                        z.extend(kstep(0, c, j))
                    else:
                        wread(z, 0, 0, j)
                    if c < 6:
                        xread(z, c + 1, j)
                z.extend(mix(some(c + 2), groups(d)))
                if c == 6:
                    z.insert(len(z) - (1 if len(d) else 0), Ins('ds_write_b32 v%d, v%d' % (V_CSW, V_CS)))
        if g:
            barrier(z, ['b1'] if OPT['npre'] else [('l', 1, 0), 'b1'], 'e0')
        else:
            barrier(z, 'b1', 'e0')
        stamp(z, 2)
        if not g:
            d = Seg()
            d.extend(duty(1, LCS[7][0], (), False))
            f0_load(d)
            if ffn and OPT['touch'] & 128 and OPT['tfat'] == 1:
                touch_ffn(d, V_XA)
            NE = OPT['ne']
            epi(z, 0, d, pre=stats_final(kind), nxt=None if OPT['npre'] else 1, **(dict(early=1, lo=0.6) if OPT['tfat'] == 1 else dict(hi=0.4)))
            barrier(z, [('l', 1, k) for k in range(7)], 'e1')
            stamp(z, 'h1')
            if OPT['npre']:
                z('s_setprio 3')
                preread(z, 1)
            gemm(z, 1, extra=duty(2, range(NE, 5)))
            f0_check(z)
            barrier(z, [('h', 0)], 'e2')
            stamp(z, 'h2')
            d = duty(0, (), UA[0], False)
            if ffn:
                d.extend(res_load(RES_F))
            epi(z, 1, d, nxt=2, lo=0.5, early=2 * len(UA[0]))
            barrier(z, [('l', 2, 4)], 'e3')
            stamp(z, 3)
            if ffn:
                flag(z, 0)
            gemm(z, 2, extra=duty(3, range(NE, 5), UA[1]))
            barrier(z, [('h', 1)], 'e4')
            stamp(z, 'h4')
            epi(z, 2, duty(0, (), UA[2], False), nxt=3)
            barrier(z, [('l', 3, 4)], 'e5')
            stamp(z, 4)
            if ffn:
                flag(z, 256)
            gemm(z, 3, extra=duty(0, (), (11, 12, 13), False))
            barrier(z, [('b', u) for u in UA[1] + UA[2]], 'e6')
            stamp(z, 5)
            if ffn:
                z('ds_read_b128 %s, v%d' % (vr(V_PQ, 4), V_RA), 'hnd')
                z('ds_read_b128 %s, v%d offset:1024' % (vr(V_PQ + 4, 4), V_RA), 'hnd')
                z('s_sub_u32 s%d, s%d, 2048' % (S_T0, S_H))
                z('s_cmp_eq_u32 s%d, 0' % S_PEND)
                z('s_cselect_b32 s%d, 0, %d' % (S_T1, 3 * 4096 + 2048))
                z('s_sub_u32 s%d, s%d, s%d' % (S_H, S_H, S_T1))
                d = Seg()
                d.wait(lgkm='hnd')
                for f in range(2):
                    d('buffer_store_dwordx4 %s, v%d, %s, s%d offen offset:%d sc1' % (vr(V_PQ + 4 * f, 4), V_L16, sr(SWS, 4), S_T0, f * 1024), 'h5')
                epi(z, 3, d, keep=True)
                z('s_lshl1_add_u32 s%d, s%d, s%d' % (S_T0, S_RB, S_HALF))
                z('s_lshl_b32 s%d, s%d, 9' % (S_T0, S_T0))
                z('s_add_u32 s%d, s%d, s%d' % (S_T0, S_T0, S_ROLE))
                z('s_lshl_b32 s%d, s%d, 28' % (S_T1, S_RW))
                z('s_lshl2_add_u32 s%d, s%d, s%d' % (S_T0, S_T0, S_T1))
                z('s_add_u32 s%d, s%d, 0x%x' % (S_T0, S_T0, FO_OFF + 8))
                z('v_cmp_gt_u32 vcc, 0x100, v%d' % V_L16)
                z('v_lshlrev_b32 v%d, 3, v%d' % (V_PL, V_L16))
                z('v_cndmask_b32 v%d, v%d, v%d, vcc' % (V_PL, V_FLO, V_PL))
                z.wait(vm=[('h', 3)])
                sync_arrive(z, 0)
                sync_wait(z, 0, 4, T)
                z('buffer_store_dword v%d, v%d, %s, s%d offen sc1' % (V_ONE, V_PL, sr(SWS, 4), S_T0))
                z.extend(res_unpack(RES_F))
                stamp(z, 6)
                z('s_branch L_p2a')
            else:
                d = Seg()
                touch_wo(d, V_XA)
                epi(z, 3, d)
                q_fetch(z)
                z('s_branch L_qo')
            return z
        d = duty(1, LCS[7][1], (), False)
        if ffn:
            d.extend(res_load(RES_F))
        gemm(z, 0, extra=d)
        barrier(z, [('l', 1, 6)], 'e1')
        stamp(z, 'h1')
        for q in (1, 2):
            d = duty(q + 1, range(OPT['ne']), UB[1] if q == 2 else ())
            if ffn and OPT['touch'] & 128 and 2 * q == OPT['tfat']:
                d('s_nop 0')
                touch_ffn(d, V_XA)
            epi(z, q - 1, d, nxt=q, lo=0.2)
            barrier(z, [('l', q + 1, 0)], 'e%d' % (2 * q))
            stamp(z, 'h%d' % (2 * q))
            d = duty(q + 1, (5, 6), (), False)
            if ffn and q == 2:
                poll_early(d)
            d.extend(duty(0, (), UB[2 * q - 2], False))
            gemm(z, q, extra=d)
            barrier(z, [('l', q + 1, 6), ('h', q - 1)], 'e%d' % (2 * q + 1))
            stamp(z, q + 2)
        if ffn:
            d = Seg()
            a_setup(d)
            stage_check(d, 0)
            for u in range(OPT['na']):
                aload(d, u)
            for u in range(8, 8 + OPT['nb']):
                dma_b2(d, u)
            epi(z, 2, d, handoff=True, hi=1.0)
            barrier(z, None, 'e6')
            z('s_branch L_p2f')
        else:
            d = Seg()
            touch_wo(d, V_XA)
            epi(z, 2, d, nxt=3)
            barrier(z)
            stamp(z, 5)
            gemm(z, 3)
            barrier(z)
            epi(z, 3)
            stamp(z, 6)
        return z

    return s, stream(0), stream(1)


def q_fetch(s):
    T, RAW = V_T, V_X
    s('s_lshl2_add_u32 s%d, s%d, s%d' % (S_T0, S_HALF, S_RW))
    s('s_lshl_b32 s%d, s%d, 8' % (S_PL, S_T0))
    s('s_add_u32 s%d, s%d, 0x%x' % (S_PL, S_PL, FKV_OFF))
    s('s_lshl_b32 s%d, s%d, 13' % (S_T0, S_T0))
    s('s_add_u32 s%d, s%d, 0x%x' % (S_T0, S_T0, KV_OFF))
    s('s_add_u32 s%d, s%d, 4096' % (S_T3, S_T0))
    s('v_cmp_gt_u32 vcc, 32, v%d' % V_L16)
    s('v_lshlrev_b32 v%d, 3, v%d' % (V_PL, V_L16))
    s('v_cndmask_b32 v%d, v%d, v%d, vcc' % (V_PL, V_FLO, V_PL))
    s('v_lshrrev_b32 v%d, 2, v%d' % (T, V_L16))
    s('s_lshl1_add_u32 s%d, s%d, %d' % (S_T1, S_M0W, R2))
    s('v_add_u32 v%d, s%d, v%d' % (T + 1, S_T1, V_L16))
    s('s_barrier')
    stamp(s, 6)
    j = nspin[0]
    nspin[0] += 1
    s('L_qs%d:' % j)
    s('v_mov_b32 v%d, 0' % V_POLL)
    s('buffer_atomic_add v%d, v%d, %s, s%d offen sc0 sc1' % (V_POLL, V_PL, sr(SWS, 4), S_PL))
    s('s_add_u32 s%d, s%d, 1' % (S_SPIN, S_SPIN))
    s('s_cmp_gt_u32 s%d, 0x%x' % (S_SPIN, SPIN_LIMIT))
    s.wait(vm='all')
    s('s_cbranch_scc1 L_qz%d' % j)
    s('v_cmp_le_u32 vcc, 16, v%d' % V_POLL)
    s('s_andn2_b32 s%d, 3, vcc_lo' % S_T2)
    s('s_cbranch_scc1 L_qs%d' % j)
    s('L_qz%d:' % j)
    stamp(s, 7)
    if OPT['qsplit']:
        return
    for r in range(32):
        s('buffer_load_dword v%d, v%d, %s, s%d offen offset:%d sc1' % (RAW + r, T, sr(SWS, 4), S_T3 if r >= 16 else S_T0, (r & 15) * 256), ('kv', r >> 3))
    for f in range(4):
        s.wait(vm=[('kv', f)])
        for k in range(4):
            s('v_cvt_pk_bf16_f32 v%d, v%d, v%d' % (RAW + 8 * f + k, RAW + 8 * f + 2 * k, RAW + 8 * f + 2 * k + 1))
        s('ds_write_b128 v%d, %s offset:%d' % (T + 1, vr(RAW + 8 * f, 4), f * 1024))


def q_out():
    s, T = Seg('qo'), V_T
    NUM, KF, RAW = V_X, V_X + 64, V_X + 96
    s('L_qo:')
    s('s_lshl_b32 s%d, s%d, 11' % (S_T1, S_G))
    s('s_add_u32 s%d, s%d, %d' % (S_T1, S_T1, R2))
    s('v_add_u32 v%d, s%d, v%d' % (T + 2, S_T1, V_L16))
    if OPT['qsplit']:
        s('s_lshl3_add_u32 s%d, s%d, s%d' % (S_T0, S_HALF, S_WV))
        s('s_lshl_b32 s%d, s%d, 12' % (S_T0, S_T0))
        s('s_add_u32 s%d, s%d, 0x%x' % (S_T0, S_T0, KV_OFF))
        s('v_lshrrev_b32 v%d, 2, v%d' % (T, V_L16))
        s('s_add_u32 s%d, s%d, %d' % (S_T1, S_M0X, R2))
        s('v_add_u32 v%d, s%d, v%d' % (T + 1, S_T1, V_L16))
        s('s_barrier')
        for r in range(16):
            s('buffer_load_dword v%d, v%d, %s, s%d offen offset:%d sc1' % (RAW + r, T, sr(SWS, 4), S_T0, r * 256), ('kv', r >> 3))
        for f in range(2):
            s.wait(vm=[('kv', f)])
            for k in range(4):
                s('v_cvt_pk_bf16_f32 v%d, v%d, v%d' % (RAW + 8 * f + k, RAW + 8 * f + 2 * k, RAW + 8 * f + 2 * k + 1))
            s('ds_write_b128 v%d, %s offset:%d' % (T + 1, vr(RAW + 8 * f, 4), f * 1024))
    barrier(s)
    stamp(s, 8)
    for q in range(4):
        for f in range(2):
            s('ds_read_b128 %s, v%d offset:%d' % (vr(KF + 8 * q + 4 * f, 4), T + 2, q * 4096 + f * 1024), ('kf', q, f))
    def num(q):
        z = Seg()
        for f in range(2):
            z.wait(lgkm=[('kf', q, f)])
            z('v_mfma_f32_32x32x16_bf16 %s, %s, %s, %s' % (vr(NUM + 16 * q, 16), vr(KF + 8 * q + 4 * f, 4), vr(V_PQ + 8 * q + 4 * f, 4), vr(NUM + 16 * q, 16) if f else '0'))
        return z

    s.extend(num(0) + num(1))
    O, done = V_X + 96, 0
    s('s_add_u32 s%d, s%d, 4096' % (S_T0, S_H))
    for q in range(4):
        n, p = NUM + 16 * q, q >> 1
        dst = [O + 14 * p + k for k in range(8)] if q % 2 == 0 else [O + 14 * p + 8 + k for k in range(6)] + [T + 6, T + 7]
        s('v_add_f32 v%d, s%d, v%d' % (T + 4, S_EPS, n + 12))
        s('v_add_f32 v%d, s%d, v%d' % (T + 5, S_EPS, n + 12))
        s('v_permlane32_swap_b32 v%d, v%d' % (T + 4, T + 5))
        s('v_rcp_f32 v%d, v%d' % (T + 5, T + 5))
        for f in ((0, 1) if q % 2 == 0 else (1, 0)):
            for k in range(8 * f, 8 * f + 8, 2):
                s('v_pk_mul_f32 %s, %s, %s op_sel:[0,1] op_sel_hi:[1,1]' % (vr(n + k, 2), vr(n + k, 2), vr(T + 4, 2)))
            for k in (2, 3, 0, 1):
                s('v_cvt_pk_bf16_f32 v%d, v%d, v%d' % (dst[4 * f + k], n + 8 * f + 2 * k, n + 8 * f + 2 * k + 1))
            if q % 2 and f:
                for k in range(2):
                    s('v_permlane32_swap_b32 v%d, v%d' % (O + 14 * p + 6 + k, T + 6 + k))
            if q < 2 and f != q:
                s.extend(num(q + 2))
            ready = {(0, 0): 1, (1, 1): 2, (1, 0): 3, (2, 0): 4, (2, 1): 5, (3, 0): 7}.get((q, f), done)
            for v in range(done, ready):
                s('buffer_store_dwordx4 %s, v%d, %s, s%d offen offset:%d sc1' % (vr(O + 4 * v, 4), V_L16, sr(SWS, 4), S_T0 if v >= 4 else S_H, (v & 3) * 1024))
            done = ready
    stamp(s, 9)
    if OPT['opriv']:
        s('s_lshl1_add_u32 s%d, s%d, s%d' % (S_T0, S_RB, S_HALF))
        s('s_lshl_b32 s%d, s%d, 11' % (S_T0, S_T0))
        s('s_lshl_b32 s%d, s%d, 28' % (S_T1, S_WV))
        s('s_add_u32 s%d, s%d, s%d' % (S_T0, S_T0, S_T1))
        s('s_add_u32 s%d, s%d, 0x%x' % (S_T0, S_T0, FO_OFF))
        s('v_cmp_gt_u32 vcc, 0x100, v%d' % V_L16)
        s('v_lshlrev_b32 v%d, 3, v%d' % (T, V_L16))
        s('v_cndmask_b32 v%d, v%d, v%d, vcc' % (T, V_FLO, T))
        barrier(s, 'all')
        s('buffer_store_dword v%d, v%d, %s, s%d offen sc1' % (V_ONE, T, sr(SWS, 4), S_T0))
    else:
        barrier(s, 'all')
        flag(s, 768)
        flag(s, 768 + FL_G)
    s('s_branch L_fin')
    return s


def kv_role():
    s, T = Seg('kv'), V_T
    RING[0] = 11
    XF, WF, AD = V_X, V_X + 32, V_X + 80
    V_WV, V_WVB, V_B2G = V_WA, V_WA + 1, V_WA + 2
    CS, EXW = [V_CS, V_CS + 4, V_ACC + 48], [V_EXW, V_EXW + 2, V_ACC + 52]
    HOFF = 98304
    RB, RP, ONE, PW, D0 = AD, AD + 16, V_XA, V_XA + 2, V_X + 48
    s('L_kv:')
    s('v_add_u32 v%d, %d, v%d' % (V_WV, XS, V_W))
    s('v_add_u32 v%d, %d, v%d' % (V_WVB, XS, V_WB))

    def third(c):
        return ((c + 1) % 3) * 49152

    def item(t, c, k):
        if k == 1:
            dma_x(t, c, third(c) + 16384, ('i', c))
        elif k == 2:
            dma_w(t, S_M0X, c, third(c) + 32768, ('i', c))
        else:
            t('s_add_u32 m0, s%d, %d' % (S_M0X, third(c)))
            t('buffer_load_dwordx4 v%d, %s, s%d offen lds' % (V_WV, sr(SW, 4), S_KW + c), ('i', c))
            t('buffer_load_dwordx4 v%d, %s, s%d offen offset:1024 lds' % (V_WVB, sr(SW, 4), S_KW + c), ('i', c))

    assert third(0) + 16384 == kv_slot(0) and third(0) + 32768 == kv_slot(1)
    item(s, 0, 0)
    s('s_mul_i32 s%d, s%d, 3' % (S_P, S_HALF))
    s('s_add_u32 s%d, s%d, s%d' % (S_P, S_P, S_ROLE))
    s('s_sub_u32 s%d, s%d, 4' % (S_P, S_P))
    s('s_lshl_b32 s%d, s%d, 2' % (S_T1, S_P))
    s('s_lshr_b32 s%d, 0xdb9630, s%d' % (S_LAST, S_T1))
    s('s_and_b32 s%d, s%d, 15' % (S_LAST, S_LAST))
    s('s_lshr_b32 s%d, 0x322333, s%d' % (S_PEND, S_T1))
    s('s_and_b32 s%d, s%d, 15' % (S_PEND, S_PEND))
    s('s_mul_i32 s%d, s%d, 56' % (S_T1, S_LAST))
    s('s_lshl_b32 s%d, s%d, 7' % (S_T0, S_P))
    s('s_sub_u32 s%d, s%d, s%d' % (S_T1, S_T1, S_T0))
    s('s_sub_u32 s%d, s%d, 1' % (S_T0, S_PEND))
    s('s_mul_i32 s%d, s%d, s%d' % (S_T0, S_T0, S_G))
    s('s_mul_i32 s%d, s%d, 56' % (S_T0, S_T0))
    s('s_add_u32 s%d, s%d, s%d' % (S_T0, S_T0, S_T1))
    s('s_add_u32 s%d, s%d, 56' % (S_T1, S_T1))
    s('v_min_u32 v%d, 6, v%d' % (T + 14, T + 14))
    s('v_lshlrev_b32 v%d, 6, v%d' % (T + 6, T + 10))
    for t, h in ((1, S_T0), (2, S_T1)):
        s('v_lshl_add_u32 v%d, v%d, 3, s%d' % (T + 5, T + 14, h))
        s('v_xor_b32 v%d, v%d, v%d' % (T + 5, T + 5, T + 6))
        s('v_lshl_add_u32 v%d, v%d, 8, v%d' % (AD + 4 * t, T + 12, T + 5))
    s('s_lshl_b32 s%d, s%d, 15' % (S_T0, S_G))
    s('s_sub_u32 s%d, 32768, s%d' % (S_T0, S_T0))
    s('v_add_u32 v%d, 32768, v%d' % (AD, AD + 4))
    s('v_add_u32 v%d, s%d, v%d' % (AD + 8, S_T0, AD + 8))
    srd(s, SWS, WS_BYTES)
    srd(s, SDBG, 256)
    for t in range(3):
        for j in range(1, 4):
            s('v_xor_b32 v%d, %d, v%d' % (AD + 4 * t + j, j << 12, AD + 4 * t))
    for j in range(4):
        s('v_add_u32 v%d, 16384, v%d' % (AD + 12 + j, V_XA + j))
    s.extend(deferred(True))
    for k in range(16):
        s('v_add_u32 v%d, 98304, v%d' % (AD + 16 + k, AD + k))
    s('s_lshl1_add_u32 s%d, s%d, s%d' % (S_H, S_RB, S_HALF))
    s('s_lshl3_add_u32 s%d, s%d, s%d' % (S_H, S_H, S_RW))
    s('s_lshl_b32 s%d, s%d, 7' % (S_H, S_H))
    s('s_add_u32 s%d, s%d, 0x%x' % (S_H, S_H, ST_OFF))
    s('v_lshlrev_b32 v%d, 2, v%d' % (V_ST + 1, T + 8))
    s('s_lshl_b32 s%d, s%d, 7' % (S_T0, S_WV))
    s('s_add_u32 s%d, s%d, %d' % (S_T0, S_T0, M_R))
    s('v_lshl_add_u32 v%d, v%d, 4, s%d' % (V_RA, T + 9, S_T0))
    s('v_add_u32 v%d, s%d, v%d' % (V_ST + 2, S_T0, V_ST + 1))
    s('v_mov_b32 v%d, %d' % (T + 5, M_SY + 128))
    s('v_cndmask_b32 v%d, v%d, v%d, %s' % (V_ST + 3, V_RA, T + 5, sr(S_PAD, 2)))
    s('v_mov_b32 v%d, 0' % (V_EXR + 1))
    s('v_mov_b32 v%d, 0' % (EXW[2] + 1))
    s('s_mul_i32 s%d, s%d, 1536' % (S_T0, S_G))
    s('v_add_u32 v%d, s%d, v%d' % (V_CSR, S_T0, V_CSR))
    s('v_add_u32 v%d, s%d, v%d' % (V_CSW, S_T0, V_CSW))
    s('s_mul_i32 s%d, s%d, %d' % (S_T0, S_G, 8 * XS))
    s('v_add_u32 v%d, s%d, v%d' % (V_B2G, S_T0, V_B2))
    p2_setup(s)
    s('s_lshl_b32 s%d, s%d, 10' % (S_T0, S_G))
    s('s_add_u32 s%d, s%d, s%d' % (S_G0, S_QR0, S_T0))
    s('s_add_u32 s%d, s%d, s%d' % (S_G2, S_QR2, S_T0))
    for k in (1, 2, 0):
        item(s, 1, k)
    estamp(s, 't1')
    s('s_waitcnt lgkmcnt(0)')

    def addr(k, c):
        o = third(c)
        return (AD + k, o) if o < 98304 else (AD + 16 + k, 0)

    def wread(z, c, j, t):
        a, o = addr(4 * t + j, c)
        for u in range(2):
            z('ds_read_b64_tr_b16 %s, v%d offset:%d' % (vr(WF + 16 * t + 4 * j + 2 * u, 2), a, o + u * 1024))

    def xread(z, c, j):
        a, o = addr(12 + j, c)
        z('ds_read_b128 %s, v%d offset:%d' % (vr(XF + 16 * (c & 1) + 4 * j, 4), a, o))

    def acc(t):
        return V_ACC + 16 * t

    def b2_half(z, u):
        base, _, off = unit_loc(u)
        ks_dyn(z, S_T3, u)
        z('s_mul_i32 s%d, s%d, %d' % (S_T3, S_T3, 16 * XS))
        z('s_add_u32 m0, s%d, %d' % (S_G0 if base == S_QR0 else S_G2, off))
        z('s_add_u32 s%d, s%d, s%d' % (S_T3, S_T3, S_B2R))
        z('buffer_load_dwordx4 v%d, %s, s%d offen lds' % (V_B2G, sr(SW2, 4), S_T3), 'bh')

    for c in range(-1, 7):
        barrier(s, ['t0', ('i', 0)] if c < 0 else [('i', c + 1)] if c < 6 else None, 's%d' % c if c >= 0 else 'pre')
        if c < 0:
            stamp(s, 1)
        d = Seg()
        if c == 1:
            f0_load(d)
        if c < 4:
            for k in (1, 2, 0):
                item(d, c + 3, k)
        if c == 3:
            f0_check(d)
        n4, n5, n6 = OPT['kn4'], OPT['kn5'], OPT['kn6']
        if c == 4:
            d('buffer_load_dword v%d, v%d, %s, s%d offen sc1' % (V_ST, V_ST + 1, sr(SWS, 4), S_H), 'stat')
            touch_kv(d, True)
            for u in range(n4):
                b2_half(d, u)
        if c == 4:
            d.extend(res_load(RES_K))
        if c == 5:
            for u in range(n4, n5):
                b2_half(d, u)
            d.wait(vm='stat')
            spin_check(d, V_ST, V_ONE, V_ST + 1, SWS, 's%d' % S_H, 0xffffffff)
            d('v_and_b32 v%d, 0xffff0000, v%d' % (T + 1, V_ST))
            d('v_rcp_f32 v%d, v%d' % (T + 1, T + 1))
            d('v_and_b32 v%d, 0xffff, v%d' % (T, V_ST))
            d('v_lshl_or_b32 v%d, v%d, 16, v%d' % (T, V_ST, T))
            d('v_cndmask_b32 v%d, v%d, 0, %s' % (V_EXR, T, sr(S_HI, 2)))
            d('ds_write_b32 v%d, v%d' % (V_ST + 2, T + 1))
        if c == 6:
            for u in range(n5, n6):
                b2_half(d, u)
        d = groups(d)
        slots = []
        for j in range(4):
            for t in range(3):
                z = Seg()
                if c >= 0:
                    first = c == 0 and j == 0
                    z('v_mfma_f32_32x32x16_bf16 %s, %s, %s, %s' % (vr(acc(t), 16), vr(XF + 16 * (c & 1) + 4 * j, 4), vr(WF + 16 * t + 4 * j, 4), '0' if first else vr(acc(t), 16)))
                    if j == 0:
                        z('v_mfma_f32_16x16x32_bf16 %s, %s, %s, %s' % (vr(CS[t], 4), vr(V_SEL, 4), vr(WF + 16 * t, 4), '0' if first else vr(CS[t], 4)))
                if c < 6:
                    wread(z, c + 1, j, t)
                    if t == 1:
                        xread(z, c + 1, j)
                slots.append(z)
        if c == 6:
            for i in range(4):
                slots[i]('ds_read_b128 %s, v%d offset:%d' % (vr(RB + 4 * i, 4), V_RA, i * 32))
                slots[i]('ds_read_b128 %s, v%d offset:%d' % (vr(RP + 4 * i, 4), V_ST + 3, i * 32))
            z = slots[4]
            z('v_cndmask_b32 v%d, 0, 1.0, %s' % (ONE, sr(S_PAD, 2)))
            z('s_lshl_b32 s%d, s%d, 12' % (S_T0, S_RW))
            z('s_add_u32 s%d, s%d, %d' % (S_T0, S_T0, HND))
            z('v_add_u32 v%d, s%d, v%d' % (PW, S_T0, V_L16))
            for t in range(3):
                z('ds_write_b32 v%d, v%d offset:%d' % (V_CSW, CS[t], t * 512))
            z = slots[5]
            z('s_add_u32 s%d, s%d, %d' % (S_T0, S_M0W, HOFF))
            z('v_add_u32 v%d, s%d, v%d' % (V_RA, S_T0, V_L16))
            barrier(z, None, 's7')
            parts = [ext_parts(acc(t), t * 512, EXW[t], True, T=V_T + 4 + 4 * t) for t in range(3)]
            for t in range(3):
                z.extend(parts[t][0])
                slots[9 + t].extend(parts[t][1])
            for k, gi in enumerate(d):
                slots[6 + k * 3 // len(d)].extend(gi)
            for p in parts:
                slots[11].extend(p[2])
        else:
            for k, gi in enumerate(d):
                slots[min(11, 1 + k * 11 // len(d))].extend(gi)
        for z in slots:
            s.extend(z)
    stamp(s, 2)
    s('s_cmp_eq_u32 s%d, 1' % S_G)
    s('s_cbranch_scc1 L_kb')

    def phi(z, t):
        for i in range(4):
            a = acc(t) + 4 * i
            for k in (0, 2):
                z('v_pk_fma_f32 %s, %s, %s, %s op_sel:[0,0,1] op_sel_hi:[1,1,1]' % (vr(a + k, 2), vr(a + k, 2), vr(RB + 4 * i + k, 2), sr(S_EPS - 1, 2)))
            for k in (0, 2):
                z('v_pk_mul_f32 %s, %s, %s op_sel:[0,1] op_sel_hi:[1,1]' % (vr(T + k, 2), vr(a + k, 2), sr(S_L2E - 1, 2)))
            for k in range(4):
                z('v_exp_f32_e64 v%d, v%d clamp' % (T + k, T + k))
            for k in range(4):
                z('v_max_f32 v%d, s%d, v%d' % (a + k, S_EPS, a + k))
            for k in (0, 2):
                z('v_pk_add_f32 %s, %s, %s' % (vr(a + k, 2), vr(a + k, 2), vr(T + k, 2)))
            for k in range(2):
                z('v_cvt_pk_bf16_f32 v%d, v%d, v%d' % (acc(t) + 2 * i + k, a + 2 * k, a + 2 * k + 1))

    def veps(z, t):
        a = acc(t)
        for k in range(0, 16, 2):
            z('v_pk_fma_f32 %s, %s, %s, %s op_sel:[0,0,0] op_sel_hi:[1,1,0]' % (vr(a + k, 2), vr(a + k, 2), vr(RP + k, 2), vr(ONE, 2)))
        for k in range(8):
            z('v_cvt_pk_bf16_f32 v%d, v%d, v%d' % (a + k, a + 2 * k, a + 2 * k + 1))

    def prod(z, d, pk, v):
        for f in range(2):
            z('v_mfma_f32_32x32x16_bf16 %s, %s, %s, %s' % (vr(d, 16), vr(pk + 4 * f, 4), vr(v + 4 * f, 4), vr(d, 16) if f else '0'))

    def part_write(d, h):
        return [[Ins('ds_write_b128 v%d, %s offset:%d' % (PW, vr(d + 4 * i, 4), h * 16384 + i * 1024))] for i in range(4)]

    b = Seg('kb')
    b('L_kb:')
    b('s_setprio 1')
    b2b_setup(b)
    a_setup(b)
    veps(b, 2)
    for f in range(2):
        b('ds_write_b128 v%d, %s offset:%d' % (V_RA, vr(acc(2) + 4 * f, 4), f * 1024))
    poll_early(b)
    b('s_setprio %d' % OPT['kprio'])
    barrier(b, None, 'v0')
    z, d = Seg(), Seg()
    veps(z, 1)
    phi(z, 0)
    prod(z, D0, acc(0), acc(1))
    stage_check(d, 0)
    for u in range(OPT['kna']):
        aload(d, u)
    d = groups(d)
    b.extend(mix(z, d[:OPT['kne']], 0.2, 1.0))
    for gi in d[OPT['kne']:OPT['kne'] + 2] + part_write(D0, 2) + d[OPT['kne'] + 2:]:
        b.extend(gi)
    barrier(b, None, 'kk')
    stamp(b, 4)
    b('s_branch L_p2k')
    kb = b
    b = Seg('ka')
    b('s_lshl_b32 s%d, s%d, 10' % (S_T1, S_RW))
    b('s_add_u32 s%d, s%d, %d' % (S_T1, S_T1, HND))
    b('v_add_u32 v%d, s%d, v%d' % (V_SEL + 2, S_T1, V_L16))
    b('s_cmp_eq_u32 s%d, 3' % S_RW)
    b('s_cselect_b64 vcc, %s, 0' % sr(S_HI, 2))
    b('v_lshrrev_b32 v%d, 2, v%d' % (V_SEL + 3, V_L16))
    b('v_cndmask_b32 v%d, v%d, v%d, vcc' % (V_SEL + 3, V_SEL + 3, V_FLO))
    b('s_lshl2_add_u32 s%d, s%d, s%d' % (S_H, S_LAST, S_RW))
    b('s_lshl_b32 s%d, s%d, 10' % (S_H, S_H))
    b('s_add_u32 s%d, s%d, 0x%x' % (S_H, S_H, KV_OFF))
    z = Seg()
    phi(z, 2)
    b.extend(z[:OPT['kep']])
    barrier(b, None, 'v0')
    V1 = V_X
    for f in range(2):
        b('ds_read_b128 %s, v%d offset:%d' % (vr(V1 + 4 * f, 4), V_RA, f * 1024), 'v1')
    b.extend(z[OPT['kep']:])
    b.wait(lgkm='v1')
    prod(b, D0 + 16, acc(2), V1)
    z = Seg()
    veps(z, 1)
    phi(z, 0)
    b.extend(mix(z, part_write(D0 + 16, 1), 0.25, 0.9))
    prod(b, D0, acc(0), acc(1))
    b('s_add_u32 s%d, s%d, 4096' % (S_P, S_H))
    b('s_add_u32 s%d, s%d, 8192' % (S_HALF, S_H))
    b('s_cmp_eq_u32 s%d, 3' % S_PEND)
    b('s_cselect_b32 s%d, s%d, 0x%x' % (S_HALF, S_HALF, OOB))
    b('s_lshl_b32 s%d, s%d, 7' % (S_FL, S_LAST))
    b('s_lshl_b32 s%d, s%d, 28' % (S_T1, S_RW))
    b('s_add_u32 s%d, s%d, s%d' % (S_FL, S_FL, S_T1))
    b('s_add_u32 s%d, s%d, 0x%x' % (S_FL, S_FL, FKV_OFF))
    b('s_lshl_b32 s%d, s%d, 4' % (S_T1, S_PEND))
    b('v_cmp_gt_u32 vcc, s%d, v%d' % (S_T1, V_L16))
    b('v_lshlrev_b32 v%d, 3, v%d' % (V_PL, V_L16))
    b('v_cndmask_b32 v%d, v%d, v%d, vcc' % (V_PL, V_FLO, V_PL))
    for gi in part_write(D0, 0):
        b.extend(gi)
    b('s_setprio 2')
    barrier(b, 'all', 'kk')
    stamp(b, 4)
    R = V_X
    for h in range(3):
        for p in range(4):
            b('ds_read_b128 %s, v%d offset:%d' % (vr(R + 16 * h + 4 * p, 4), V_SEL + 2, h * 16384 + p * 4096), ('red', h))
    for h in range(3):
        r = R + 16 * h
        b.wait(lgkm=[('red', h)])
        for k in (0, 2):
            b('v_pk_add_f32 %s, %s, %s' % (vr(r + k, 2), vr(r + k, 2), vr(r + 4 + k, 2)))
            b('v_pk_add_f32 %s, %s, %s' % (vr(r + 8 + k, 2), vr(r + 8 + k, 2), vr(r + 12 + k, 2)))
            b('v_pk_add_f32 %s, %s, %s' % (vr(r + k, 2), vr(r + k, 2), vr(r + 8 + k, 2)))
        for k in range(4):
            b('buffer_atomic_add_f32 v%d, v%d, %s, s%d offen offset:%d sc1' % (r + k, V_SEL + 3, sr(SWS, 4), (S_H, S_P, S_HALF)[h], k * 256), 'atom')
    stamp(b, 5)
    b.extend(res_unpack(RES_K))
    b.wait(vm='atom')
    sync_arrive(b, 0)
    sync_wait(b, 0, 4, T)
    stamp(b, 6)
    b('buffer_atomic_add v%d, v%d, %s, s%d offen sc1' % (V_ONE, V_PL, sr(SWS, 4), S_FL))
    b('s_branch L_p2a')
    return s, b, kb


def frag_addr(s, T):
    s('v_lshrrev_b32 v%d, 4, v%d' % (T, V_L16))
    s('v_bfe_u32 v%d, v%d, 2, 2' % (T + 1, T))
    s('v_and_b32 v%d, 3, v%d' % (T + 2, T))
    s('v_bfe_u32 v%d, v%d, 4, 1' % (T + 3, T))
    s('v_lshl_add_u32 v%d, v%d, 2, v%d' % (T + 2, T + 3, T + 2))
    s('v_lshrrev_b32 v%d, 1, v%d' % (T + 3, T + 1))
    s('v_lshlrev_b32 v%d, 6, v%d' % (T + 3, T + 3))
    s('v_lshl_add_u32 v%d, v%d, 3, v%d' % (T + 2, T + 2, T + 3))
    s('v_lshl_add_u32 v%d, v%d, 7, v%d' % (T + 2, T + 1, T + 2))
    s('v_lshrrev_b32 v%d, 5, v%d' % (T + 3, T))
    s('v_lshl_add_u32 v%d, v%d, 9, v%d' % (T + 3, T + 3, T + 2))


def bf(par, ct):
    return V_BF + 8 * par + 4 * ct


def acc2(ct, rg):
    return V_ACC + 32 * ct + 16 * rg


def part_addr(g):
    z, T = Seg(), V_NUM
    z('v_bfe_u32 v%d, v%d, 4, 5' % (T, V_L16))
    z('v_and_b32 v%d, 7, v%d' % (T + 1, T))
    z('v_bfe_u32 v%d, v%d, 1, 1' % (T + 2, T))
    z('v_lshrrev_b32 v%d, 9, v%d' % (T + 3, V_L16))
    z('v_xor_b32 v%d, v%d, v%d' % (T + 2, T + 2, T + 3))
    z('v_lshl_add_u32 v%d, v%d, 3, v%d' % (T + 1, T + 2, T + 1))
    z('v_lshlrev_b32 v%d, 4, v%d' % (T + 1, T + 1))
    z('v_lshl_add_u32 v%d, v%d, 8, v%d' % (T + 1, T, T + 1))
    z('v_add_u32 v%d, s%d, v%d' % (T + 8, S_QR0, T + 1))
    if g:
        z('v_add_u32 v%d, s%d, v%d' % (T + 16, S_QR2, T + 1))
    else:
        z('v_add_u32 v%d, 8192, v%d' % (T + 16, T + 8))
    for rg in range(2):
        for k in range(1, 8):
            z('v_xor_b32 v%d, %d, v%d' % (T + 8 + 8 * rg + k, k << 4, T + 8 + 8 * rg))
    return z


def read_addr(g, R):
    z, T = Seg(), R
    z('v_bfe_u32 v%d, v0, 3, 5' % (T + 1))
    z('v_and_b32 v%d, 0x70, v%d' % (T + 2, V_L16))
    z('v_and_b32 v%d, 7, v%d' % (T + 3, T + 1))
    z('v_bfe_u32 v%d, v%d, 1, 1' % (T + 4, T + 1))
    z('v_lshl_add_u32 v%d, v%d, 3, v%d' % (T + 3, T + 4, T + 3))
    z('v_lshlrev_b32 v%d, 4, v%d' % (T + 3, T + 3))
    z('v_xor_b32 v%d, v%d, v%d' % (T + 3, T + 3, T + 2))
    z('v_lshl_add_u32 v%d, v%d, 8, v%d' % (V_RD, T + 1, T + 3))
    if g:
        z('v_add_u32 v%d, %d, v%d' % (V_RD, R2, V_RD))
    z('v_xor_b32 v%d, 128, v%d' % (V_RD + 1, V_RD))
    return z


def acc_major(s, units, wreg, areg, wtag, atag, fresh, fill=()):
    slots, order = [], [(0, 0), (1, 0), (0, 1), (1, 1)]
    for ct, rg in order:
        for k, u in enumerate(units):
            z = Seg()
            z.wait(vm=[atag(u, rg)], lgkm=[wtag(u, ct)])
            z('v_mfma_f32_32x32x16_bf16 %s, %s, %s, %s' % (vr(acc2(ct, rg), 16), vr(wreg(u, ct), 4), vr(areg(u, rg), 4), '0' if fresh and k == 0 else vr(acc2(ct, rg), 16)))
            slots.append(z)
    n = len(units)
    for k, gi in enumerate(fill):
        slots[k].extend(gi)
    wr = [Ins('ds_write_b128 v%d, %s' % (V_NUM + 8 + 8 * rg + 4 * ct + i, vr(acc2(ct, rg) + 4 * i, 4))) for ct, rg in order for i in range(4)]
    pos = [[13, 14, 16, 18, 20, 22, 24, 26], [10, 11, 13, 14, 18, 19, 21, 22, 26, 27], [10, 12, 14, 16, 18, 20, 22, 24, 26, 27]][OPT['wpos']]
    for k, p in enumerate(pos):
        slots[p].append(wr[k])
    for z in slots:
        s.extend(z)
    s.extend(wr[len(pos):])


def final(g):
    s = Seg('final%d' % g)
    D, U = V_AB, V_U
    stamp(s, 8)
    barrier(s)
    stamp(s, 9)
    for w in range(4):
        for h in range(2):
            s('ds_read_b128 %s, v%d offset:%d' % (vr(D + 8 * w + 4 * h, 4), V_RD + h, w * (10240 if g else 12288)), ('fin', w))
    for w in range(4):
        s.wait(lgkm=[('fin', w)])
        for k in range(4):
            s('v_pk_add_f32 %s, %s, %s' % (vr(U + 2 * k, 2), vr(U + 2 * k, 2), vr(D + 8 * w + 2 * k, 2)))
    for k in range(4):
        s('v_cvt_pk_bf16_f32 v%d, v%d, v%d' % (U + k, U + 2 * k, U + 2 * k + 1))
    s('buffer_store_dwordx4 %s, v%d, %s, s%d offen' % (vr(U, 4), V_OUT, sr(SOUT, 4), S_OUTO) + ['', ' sc1', ' nt', ' sc0 sc1'][OPT['osc']])
    return s


def phase2b(nm, na, bdone):
    s, T = Seg('p2' + nm), V_NUM
    RING[0] = 14 if nm == 'f' else 11
    UW = 10
    s('L_p2%s:' % nm)
    stamp(s, 5)
    s('s_setprio 1')
    V_PW, V_PX, RES = 11, 14, V_AB + 48
    pend = [v for v in range(35) if v not in bdone]
    first = [v for v in pend if v < OPT['b0' if nm == 'k' else 'b0f']]
    pend = pend[len(first):]
    BS = {}
    for u in range(28):
        n = 1 if u + DEP - 1 < 28 else 2
        BS[u] = [v for v in pend[:n] if v - RING[0] + 1 <= u]
        pend = pend[len(BS[u]):]
    assert not pend

    def oloads():
        z = Seg()
        for rg in range(2):
            for u in range(7):
                z('buffer_load_dwordx4 %s, v%d, %s, s%d offen offset:%d sc1' % (vr(abuf(28 + u, rg), 4), V_L16B if rg else V_L16, sr(SWS, 4), S_RO3 if u >= 4 else S_P, (u & 3) * 1024), ('o', 28 + u, rg))
        return list(z)

    def word_check(z, u, n, hit=None):
        z.wait(lgkm=[('pw', u)])
        z('v_readfirstlane_b32 s%d, v%d' % (S_T2, V_PW))
        z('s_cmp_lt_u32 s%d, %d' % (S_T2, n))
        if hit:
            z('s_cbranch_scc0 %s' % hit)
            return
        j = nspin[0]
        nspin[0] += 1
        z('s_cbranch_scc1 L_slow%d' % j)
        z('L_ret%d:' % j)
        slow('L_slow%d:' % j)
        slow('s_add_u32 s%d, s%d, 1' % (S_SPIN, S_SPIN))
        slow('s_cmp_gt_u32 s%d, 0x%x' % (S_SPIN, SPIN_LIMIT << 3))
        slow('s_cbranch_scc1 L_ret%d' % j)
        slow('ds_read_b32 v%d, v%d' % (V_PW, V_PX))
        slow('s_waitcnt lgkmcnt(0)')
        slow('v_readfirstlane_b32 s%d, v%d' % (S_T2, V_PW))
        slow('s_nop 0')
        slow('s_cmp_lt_u32 s%d, %d' % (S_T2, n))
        slow('s_cbranch_scc1 L_slow%d' % j)
        slow('s_branch L_ret%d' % j)

    z = Seg()
    if na == 0:
        for v in first[:2]:
            dma_b2(z, v)
        first = first[2:]
        stage_check(z, 0)
    for u in range(na, DEP - 1):
        if u == OPT['p1at']:
            poll_async(z, 1)
        aload(z, u)
        if first:
            dma_b2(z, first.pop(0))
    if na > OPT['p1at']:
        poll_async(z, 1)
    for v in first:
        dma_b2(z, v)
    y = Seg()
    frag_addr(y, T)
    for reg, base in enumerate((S_QR0, S_QR2, S_QR3)[:3 if nm == 'f' else 2]):
        y('v_add_u32 v%d, s%d, v%d' % (BA[2 * reg], base, T + 3))
        y('v_xor_b32 v%d, 64, v%d' % (BA[2 * reg + 1], BA[2 * reg]))
    y('v_subrev_u32 v%d, 16, v%d' % (V_PX, V_PA))
    y.extend(res_unpack(RES_F if nm == 'f' else RES_K))
    s.extend(mix(y, groups(z)))

    def wreg(u, ct):
        return bf(u & 1, ct) if u < 28 else V_AB + 32 * (1 - ct) + 4 * (u - 28)

    def bread(u, ct):
        z = Seg()
        _, reg, off = unit_loc(u)
        if not (OPT['x_free'] and u < 11):
            z.wait(vm=[('b', u)])
        for h in range(2):
            z('ds_read_b64_tr_b16 %s, v%d offset:%d' % (vr(wreg(u, ct) + 2 * h, 2), BA[2 * reg + ct], off + h * 1024), ('bf', u, ct))
        return z

    s.extend(bread(0, 0) + bread(0, 1))
    late = Seg()
    late('v_add_u32 v%d, %d, v%d' % (V_B2S, 52 * XS, V_B2))
    late('v_cndmask_b32 v%d, v%d, v%d, %s' % (V_B2S, V_B2, V_B2S, sr(S_HI, 2)))
    late = list(read_addr(1, RES)) + list(late) + list(part_addr(1))
    SITES = [[23, 25, 27, 28], [23, 24, 26, 28], [21, 23, 25, 28], [22, 24, 26, 28]][OPT['sites']]
    U2 = 17 - DEP

    def unit(s, u, extra, word):
        nxt = u + DEP - 1
        z = Seg()
        if nxt < 28:
            aload(z, nxt)
        for v in BS[u]:
            dma_b2(z, v)
        now = groups(z) + [[i] for i in extra]
        if 10 <= u < 20:
            k0, k1 = len(late) * (u - 10) // 10, len(late) * (u - 9) // 10
            now += [[i] for i in late[k0:k1]]
        if u < 27:
            rd = [bread(u + 1, 0), bread(u + 1, 1), Seg(), Seg()]
        else:
            rd = [bread(28 + k, 0) for k in range(4)]
        if word:
            rd[2]('ds_read_b32 v%d, v%d' % (V_PW, V_PX), ('pw', u + 1))
        s.wait(vm=[('a', u)])
        stamp(s, 'u%d' % u)
        k = 0
        for ct in range(2):
            s.wait(lgkm=[('bf', u, ct)])
            for rg in ((1, 0) if ct and OPT['gray'] else (0, 1)):
                s('v_mfma_f32_32x32x16_bf16 %s, %s, %s, %s' % (vr(acc2(ct, rg), 16), vr(wreg(u, ct), 4), vr(abuf(u, rg), 4), vr(acc2(ct, rg), 16) if u else '0'))
                s.extend(rd[k])
                for gi in range(len(now) * k // 4, len(now) * (k + 1) // 4):
                    s.extend(now[gi])
                k += 1

    main, alts = [s], []
    for u in range(28):
        if u + DEP - 1 == 8:
            stage_check(s, 1)
            stamp(s, 'c1')
        if u == UW and nm == 'f':
            word_check(s, u, 1)
        if u == U2:
            word_check(s, u, 3)
            stamp(s, 'c2')
        if u in SITES:
            word_check(s, u, 7, hit='L_p2o%s%d' % (nm, u))
            a = Seg('p2o%d' % u)
            a('L_p2o%s%d:' % (nm, u))
            stamp(a, 'c3')
            o = oloads()[:14 - OPT['otail']]
            for v in range(u, 28):
                unit(a, v, o[:OPT['oper']], False)
                o = o[OPT['oper']:]
            a.extend(o)
            a('s_branch L_p2tail%s' % nm)
            alts.append((list(main), a))
            s = Seg('p2m%d' % u)
            main.append(s)
        unit(s, u, [], u + 1 in SITES + [UW, U2])
    word_check(s, 28, 7)
    stamp(s, 'c3')
    s.extend(oloads()[:14 - OPT['otail']])
    t = Seg('p2t')
    t('L_p2tail%s:' % nm)
    stamp(t, 'tl')
    fill = [bread(u, 0) for u in range(32, 35)] + [bread(u, 1) for u in range(28, 35)]
    for k, i in enumerate(oloads()[14 - OPT['otail']:]):
        fill[k] = [i] + list(fill[k])
    acc_major(t, range(28, 35), wreg, abuf, lambda u, ct: ('bf', u, ct), lambda u, rg: ('o', u, rg), False, fill)
    t.extend(final(1))
    t('s_branch L_fin')
    return [m + [a, t] for m, a in alts] + [main + [t]], [a for _, a in alts] + main + [t]


def phase2a():
    s = Seg('p2a')
    s('L_p2a:')
    s('s_and_b32 s%d, s%d, 30' % (S_T0, S_I2))
    s('s_lshr_b32 s%d, s%d, 1' % (S_T1, S_RW))
    s('s_add_u32 s%d, s%d, s%d' % (S_T0, S_T0, S_T1))
    s('s_and_b32 s%d, s%d, 1' % (S_T1, S_I2))
    s('s_lshl1_add_u32 s%d, s%d, s%d' % (S_T0, S_T0, S_T1))
    s('s_lshl3_add_u32 s%d, s%d, s%d' % (S_T0, S_T0, S_ROLE))
    s('s_lshl_b32 s%d, s%d, 7' % (S_T0, S_T0))
    s('s_add_u32 s%d, s%d, 0x%x' % (S_PL, S_T0, FO_OFF))
    s('s_and_b32 s%d, s%d, 1' % (S_T1, S_RW))
    s('s_lshl3_add_u32 s%d, s%d, s%d' % (S_T3, S_T1, S_PL))
    s('s_add_u32 s%d, s%d, 8' % (S_T3, S_T3))
    for val, nm in ((3, 'a2'), (7, 7)):
        j = nspin[0]
        nspin[0] += 1
        s('v_mov_b32 v%d, %d' % (V_BF + 8 + val, val))
        if not OPT['x_nopoll']:
            s('L_pa%d:' % j)
            if val == 3:
                s('s_buffer_load_dwordx2 %s, %s, s%d glc' % (sr(S_T0, 2), sr(SWS, 4), S_T3))
            else:
                s('s_buffer_load_dword s%d, %s, s%d glc' % (S_T0, sr(SWS, 4), S_PL))
            s('s_add_u32 s%d, s%d, 1' % (S_SPIN, S_SPIN))
            s('s_cmp_gt_u32 s%d, 0x%x' % (S_SPIN, SPIN_LIMIT))
            s('s_waitcnt lgkmcnt(0)')
            s('s_cbranch_scc1 L_pz%d' % j)
            s('s_and_b32 s%d, s%d, s%d' % (S_T0, S_T0, S_T1 if val == 3 else S_T0))
            s('s_cbranch_scc0 L_pa%d' % j)
            s('L_pz%d:' % j)
        s('ds_write_b32 v%d, v%d' % (V_PA, V_BF + 8 + val))
        stamp(s, nm)
        if val == 3:
            s.extend(read_addr(0, V_BF))
    s.extend(final(0))
    return s


def fin():
    s = Seg('fin')
    s('L_fin:')
    if OPT['diag']:
        stamp(s, 10)
        s('s_waitcnt lgkmcnt(0)')
        s('v_mov_b32 v4, 0')
        for k in range(7):
            s('v_writelane_b32 v4, s%d, %d' % (S_KA + 2 * k, k))
        s('v_writelane_b32 v4, s%d, 11' % S_SPIN)
        s('s_lshl3_add_u32 s%d, s2, s%d' % (S_T0, S_WV))
        s('s_lshl_b32 s%d, s%d, 8' % (S_T0, S_T0))
        s('s_add_u32 s%d, s%d, 0x%x' % (S_T0, S_T0, TS_OFF))
        s('v_lshrrev_b32 v5, 2, v%d' % V_L16)
        s('buffer_store_dword v4, v5, %s, s%d offen' % (sr(SWS, 4), S_T0))
        if OPT['diag'] == 3:
            s('s_not_b32 s%d, s%d' % (S_T0, S_KA))
            s('v_writelane_b32 v4, s%d, 11' % S_T0)
            s('s_cmp_eq_u32 s%d, 4' % S_WV)
            s('s_cselect_b32 s%d, 16, 0x%x' % (S_T0, OOB))
            s('s_cmp_lt_u32 s%d, 4' % S_ROLE)
            s('s_cselect_b32 s%d, s%d, 0x%x' % (S_T0, S_T0, OOB))
            s('s_mov_b64 exec, 0xfff')
            s('buffer_atomic_umax v4, v5, %s, s%d offen sc1' % (sr(SDBG, 4), S_T0))
    if OPT['diag'] == 6:
        s('s_cmp_lg_u32 s%d, 4' % S_WV)
        s('s_cbranch_scc1 L_end')
        s('s_mov_b64 exec, 1')
        s('s_getreg_b32 s%d, hwreg(HW_REG_XCC_ID, 0, 4)' % S_T0)
        s('s_sub_u32 s%d, s%d, s2' % (S_T0, S_T0))
        s('s_and_b32 s%d, s%d, 7' % (S_T0, S_T0))
        s('s_lshl_b32 s%d, 1, s%d' % (S_T0, S_T0))
        s('v_mov_b32 v4, s%d' % S_T0)
        s('v_mov_b32 v6, 1')
        s('v_mov_b32 v7, 0')
        s('buffer_atomic_or v4, v7, %s, 0 offen offset:16 sc1' % sr(SDBG, 4))
        s('s_waitcnt vmcnt(0)')
        s('buffer_atomic_add v6, v7, %s, 0 offen offset:136 sc0 sc1' % sr(SDBG, 4))
        s('s_waitcnt vmcnt(0)')
        s('v_readfirstlane_b32 s%d, v6' % S_T0)
        s('s_cmp_lg_u32 s%d, 255' % S_T0)
        s('s_cbranch_scc1 L_end')
        s('buffer_load_dword v4, v7, %s, 0 offen offset:16 sc1' % sr(SDBG, 4))
        s('s_waitcnt vmcnt(0)')
        s('v_readfirstlane_b32 s%d, v4' % S_T0)
        s('s_bcnt1_i32_b32 s%d, s%d' % (S_T0, S_T0))
        s('s_mul_i32 s%d, s%d, 2000' % (S_T0, S_T0))
        s('s_memrealtime s[66:67]')
        s('s_waitcnt lgkmcnt(0)')
        s('L_dly:')
        s('s_memrealtime s[68:69]')
        s('s_waitcnt lgkmcnt(0)')
        s('s_sub_u32 s68, s68, s66')
        s('s_cmp_lt_u32 s68, s%d' % S_T0)
        s('s_cbranch_scc1 L_dly')
    if OPT['diag'] == 5:
        s('s_cmp_lg_u32 s%d, 4' % S_WV)
        s('s_cbranch_scc1 L_end')
        s('s_mov_b64 exec, 1')
        s('s_not_b32 s%d, s%d' % (S_T0, S_KA + 2 * OPT['sa']))
        s('v_mov_b32 v4, s%d' % S_T0)
        s('v_mov_b32 v5, s%d' % (S_KA + 2 * OPT['sb']))
        s('v_mov_b32 v6, 1')
        s('v_mov_b32 v7, 0')
        s('buffer_atomic_umax v4, v7, %s, 0 offen offset:128 sc1' % sr(SDBG, 4))
        s('buffer_atomic_umax v5, v7, %s, 0 offen offset:132 sc1' % sr(SDBG, 4))
        s('s_waitcnt vmcnt(0)')
        s('buffer_atomic_add v6, v7, %s, 0 offen offset:136 sc0 sc1' % sr(SDBG, 4))
        s('s_waitcnt vmcnt(0)')
        s('v_readfirstlane_b32 s%d, v6' % S_T0)
        s('s_cmp_lg_u32 s%d, 255' % S_T0)
        s('s_cbranch_scc1 L_end')
        s('buffer_load_dwordx2 v[4:5], v7, %s, 0 offen offset:128 sc1' % sr(SDBG, 4))
        s('s_waitcnt vmcnt(0)')
        s('v_add_u32 v4, v4, v5')
        s('s_nop 1')
        s('v_readfirstlane_b32 s%d, v4' % S_T0)
        s('s_add_u32 s%d, s%d, 1' % (S_T0, S_T0))
        s('s_mul_i32 s%d, s%d, %d' % (S_T0, S_T0, OPT['mul']))
        s('s_min_u32 s%d, s%d, 200000' % (S_T0, S_T0))
        s('s_memrealtime s[66:67]')
        s('s_waitcnt lgkmcnt(0)')
        s('L_dly:')
        s('s_memrealtime s[68:69]')
        s('s_waitcnt lgkmcnt(0)')
        s('s_sub_u32 s68, s68, s66')
        s('s_cmp_lt_u32 s68, s%d' % S_T0)
        s('s_cbranch_scc1 L_dly')
    if OPT['diag'] == 4:
        s('s_cmp_lg_u32 s2, %d' % OPT['wg'])
        s('s_cbranch_scc1 L_end')
        s('s_cmp_lg_u32 s%d, %d' % (S_WV, OPT['wv']))
        s('s_cbranch_scc1 L_end')
        s('s_sub_u32 s%d, s%d, s%d' % (S_T0, S_KA + 2 * OPT['sb'], S_KA + 2 * OPT['sa']))
        if not OPT['clk']:
            s('s_mul_i32 s%d, s%d, 10' % (S_T0, S_T0))
        s('s_min_u32 s%d, s%d, 200000' % (S_T0, S_T0))
        s('s_memrealtime s[66:67]')
        s('s_waitcnt lgkmcnt(0)')
        s('L_dly:')
        s('s_memrealtime s[68:69]')
        s('s_waitcnt lgkmcnt(0)')
        s('s_sub_u32 s68, s68, s66')
        s('s_cmp_lt_u32 s68, s%d' % S_T0)
        s('s_cbranch_scc1 L_dly')
    s('L_end:')
    s('s_endpgm')
    return s


def main():
    pro, prw, pre = prologue()
    f, fa, fb = lc_role(True)
    q, qa, qb = lc_role(False)
    qo = q_out()
    k, ka, kb = kv_role()
    fpaths, fsegs = phase2b('f', OPT['na'], list(range(8 + OPT['nb'])) + [11, 12, 13])
    kpaths, ksegs = phase2b('k', OPT['kna'], list(range(OPT['kn6'])))
    p2segs, p2a, fi = fsegs + ksegs, phase2a(), fin()
    paths = [
        [pro, pre, f, fa, p2a, fi],
        [pro, pre, q, qa, qo, fi],
        [pro, prw, pre, q, qb, qo, fi],
        [pro, prw, pre, k, ka, p2a, fi],
    ]
    paths += [[pro, prw, pre, f, fb] + p + [fi] for p in fpaths] + [[pro, prw, pre, k, kb] + p + [fi] for p in kpaths]
    if OPT['jit']:
        import random
        rnd, seen = random.Random(OPT['jit']), set()
        for p in paths:
            for seg in p:
                if id(seg) in seen:
                    continue
                seen.add(id(seg))
                out = []
                for i in seg:
                    out.append(i)
                    if i.op == 's_barrier' or (i.kind == 'label' and i.text.startswith(('L_ret', 'L_p2'))):
                        j = nspin[0]
                        nspin[0] += 1
                        out += [Ins('s_add_u32 s56, s2, s%d' % S_WV), Ins('s_bitcmp1_b32 0x%x, s56' % rnd.getrandbits(32)),
                                Ins('s_cbranch_scc0 L_j%d' % j), Ins('s_sleep %d' % rnd.choice((2, 5, 12, 30))), Ins('L_j%d:' % j)]
                seg[:] = out
    resolve_waits(paths)
    if OPT['hoist']:
        hoist_m0(paths)
    bad = verify_async(paths)
    assert not bad, '\n'.join(bad)
    n = pad_hazards(paths)
    assert pad_hazards(paths) == 0
    body = render([pro, prw, pre, f, fa, fb, k, ka, kb, q, qa, qb, qo] + p2segs + [p2a, fi, slow])
    head = open('cdna_kernels/%s.s.ref' % NAME).read().split('\n')
    head = [l for l in head if l.startswith(';') and '@launch' not in l]
    out = '\n'.join(head) + '''
; @launch grid=(256,1,1) block=(512,1,1) lds=%d
.amdgcn_target "amdgcn-amd-amdhsa--gfx950"
.text
.globl %s_kernel
.p2align 8
.type %s_kernel,@function
%s_kernel:
L_codebeg:
%s
L_codeend:
.section .rodata,"a"
.p2align 6
.amdhsa_kernel %s_kernel
  .amdhsa_next_free_vgpr 256
  .amdhsa_next_free_sgpr 102
  .amdhsa_accum_offset 256
  .amdhsa_group_segment_fixed_size 0
  .amdhsa_kernarg_size 88
  .amdhsa_user_sgpr_count 2
  .amdhsa_user_sgpr_kernarg_segment_ptr 1
  .amdhsa_system_sgpr_workgroup_id_x 1
.end_amdhsa_kernel
''' % (LDS_BYTES, NAME, NAME, NAME, body, NAME)
    if OPT['x_plain'] & 1:
        out = '\n'.join(l.replace(' sc1', '') if 'buffer_store_dwordx4' in l else l for l in out.split('\n'))
    if OPT['x_plain'] & 2:
        out = '\n'.join(l.replace(' sc1', '') if 'buffer_load_dwordx4' in l else l for l in out.split('\n'))
    if OPT['x_drop'] & 1:
        out = '\n'.join('    s_nop 0' if 'v_mfma_f32_16x16x32' in l else l for l in out.split('\n'))
    if OPT['x_drop'] & 16:
        i, j = out.index('L_kv:'), out.index('L_q:')
        out = out[:i] + '\n'.join('    s_nop 0' if 'v_mfma_f32_16x16x32' in l or 'v_max_f32' in l or 'v_mul_f32' in l else l for l in out[i:j].split('\n')) + out[j:]
    if OPT['x_drop'] & 32:
        j = out.index('L_kv:')
        out = '\n'.join('    s_nop 0' if 'v_mfma_f32_16x16x32' in l or 'v_fma_f32' in l else l for l in out[:j].split('\n')) + out[j:]
    if OPT['x_drop'] & 2:
        out = '\n'.join('    s_nop 0' if 'v_dot2c' in l else l for l in out.split('\n'))
    if OPT['x_drop'] & 4:
        i, j = out.index('L_p2of23:'), out.index('L_p2a:')
        out = out[:i] + '\n'.join('    s_nop 7' if 'v_mfma' in l else l for l in out[i:j].split('\n')) + out[j:]
    if OPT['x_drop'] & 8:
        i = out.index('L_p2of23:')
        out = '\n'.join('    s_nop 7' if 'v_mfma_f32_32x32x16' in l else l for l in out[:i].split('\n')) + out[i:]
    open(sys.argv[1], 'w').write(out)
    print('wrote %s: %d lines, %d pad states' % (sys.argv[1], out.count('\n'), n))


main()
```

```python
import struct
import sys
from asmlib import Seg, Ins, Wait, GAP, interleave, resolve_waits, pad_hazards, verify_async, hoist_m0, render, vr, sr

NAME = 'parallel_sum__linear_attn_block__dense_activation_gelu__prompt'
OPT = dict(zpad=16, x_late=0, x_mask=0x08080808, ecarry=0, carry=2, kn4=2, kn5=6, kn6=9, kep=16, s6=1, npre=0, lcs=0, actg=288, two=1, wpos=0, kres=1, kna=3, kne=6, k2=0, qsplit=0, sites=0, kv4=3, kua=3, kub=0, x_free=0, x_freek=0, tf0=2, tfp=45, x_drop=0, gray=0, hoist=1, wj=1, tfat=1, kpa=1, otail=7, oper=3, rmap=4, jit=0, rounds=15, opriv=1, oscal=1, na=5, nb=0, b0=9, xfirst=1, osc=0, ne=1, ub=0, b0f=9, pmix=1, wv=4, back=0, x_wait=0, rot1=6, nlate=1, mul=10, fatom=0, tlb=0, kbar=4, kphi=26, ntail=4, p1at=2, ascal=1, kpf=4, kcut=4, kb0=24, kb1=104, khead=0, kearly=8, qatom=1, batom=1, pkind=1, x_hit=0, gsp=3, eprio=0, aprio=2, aprio2=2, aprio3=2, lb=10, touch=69, tat=4, twat=3, tkat=1, kprio=0, plead=3, x_noa=0, x_nopoll=0, x_noflag=0, x_nost=0, x_plain=0, rot2=1, dep=6, noatom=0, diag=0, p1only=0, sa=0, sb=10, clk=0, wg=0)
for a in sys.argv[2:]:
    k, v = a.split('=')
    OPT[k] = v if k == 'st' else int(v)
STAMPS = OPT.get('st', 'en,2,4,5,6,7,10').split(',')


assert len(STAMPS) <= 7


def f32(x):
    return '0x%08x' % struct.unpack('<I', struct.pack('<f', x))[0]


XS, WQS, W1S = 896, 2688, 3584
ACT_G = OPT['actg'] * 512
KV_OFF = 0x900000
FKV_OFF = 0x910000
FL_OFF = 0x911000
FL_G = 896
FO_OFF = 0x920000
ST_OFF = 0x938000
TS_OFF = 0xA00000
WS_BYTES = 0x10000000
OOB = 0x40000000
R0, R1, R2, MISC = 0, 57344, 114688, 155648
M_ST, M_SY, M_CS, M_R = MISC, MISC + 2048, MISC + 4096, MISC + 7168
LDS_BYTES = 163840
LOG2E = 1.4426950408889634
GC1 = -2.0 * 0.7978845608028654 * LOG2E
GC3 = GC1 * 0.044715
SPIN_LIMIT = 1 << 16

S_WV, S_RW, S_G, S_RB, S_ROLE = 3, 4, 5, 6, 7
SX, SW, SWS, SW2, SWO, SOUT, SB1, SB2, SDBG = 8, 12, 16, 20, 24, 28, 32, 36, 40
S_KA = 44
S_KX, S_KW = 66, 73
S_I2, S_HALF, S_T0, S_T1, S_ONES, S_EPS = 80, 81, 82, 83, 84, 85
S_M0W, S_M0X, S_T3, S_RO, S_H, S_FL = 86, 87, 88, 89, 90, 91
S_HI = 92
S_SPIN, S_T2, S_P, S_LAST, S_PEND, S_L2E = 94, 95, 96, 97, 98, 99
S_PAD = 100
S_B2R, S_QR0, S_QR2, S_A, S_WOR, S_OUTO, S_G0, S_G2 = 58, 59, 60, 61, 62, 63, 64, 65
S_RO3, S_PL = 68, 73
S_AO = 74

V_L16, V_B2, V_X0, V_X1, V_W, V_CSW, V_CSR = 1, 2, 3, 4, 5, 6, 7
V_SEL, V_CS, V_WA, V_XA, V_EXW, V_EXR, V_ST = 8, 12, 20, 28, 32, 36, 38
V_B1 = 16
V_WB, V_RA = 42, 43
V_POLL, V_PA, V_FLO, V_ONE = 44, 45, 46, 47
V_T = 48
V_ACC, V_X, V_WF = 64, 128, 240
V_B2B, V_BA, V_L16B, V_PL = 3, 4, 12, 31
DEP = 6
V_NUM, V_BF, V_AB, V_RES = 16, 48, 128, 192
V_PQ = 80
HND = 49152

slow = Seg('slow')
nspin = [0]


def stamp(s, k):
    if OPT['diag'] and str(k) in STAMPS:
        k = STAMPS.index(str(k))
        s('%s %s' % ('s_memtime' if OPT['diag'] == 2 or OPT['clk'] else 's_memrealtime', sr(S_KA + 2 * k, 2)))


EARLY = ['en', 'ka', 't0', 't1']


def estamp(s, k):
    if OPT['diag'] and k in STAMPS:
        s('%s s[100:101]' % ('s_memtime' if OPT['diag'] == 2 or OPT['clk'] else 's_memrealtime'))
        s('s_waitcnt lgkmcnt(0)')
        s('v_mov_b32 v%d, s100' % (120 + EARLY.index(k)))


class Rebase:
    def __init__(self, regs, base, span):
        self.regs, self.base, self.span = regs, base, span

    def off(self, s, addr):
        if not (self.base <= addr and addr - self.base + self.span <= 65535):
            for r in self.regs:
                s('v_add_u32 v%d, 0x%x, v%d' % (r, (addr - self.base) & 0xffffffff, r))
            self.base = addr
        return addr - self.base


def spin_check(s, vpoll, vexp, vaddr, srd, soff, mask):
    k = nspin[0]
    nspin[0] += 1
    s('v_cmp_ge_u32 vcc, v%d, v%d' % (vpoll, vexp))
    s('s_andn2_b32 s%d, 0x%x, vcc_lo' % (S_T2, mask))
    s('s_cbranch_scc1 L_slow%d' % k)
    s('L_ret%d:' % k)
    slow('L_slow%d:' % k)
    slow('s_add_u32 s%d, s%d, 1' % (S_SPIN, S_SPIN))
    slow('s_cmp_gt_u32 s%d, 0x%x' % (S_SPIN, SPIN_LIMIT))
    slow('s_cbranch_scc1 L_ret%d' % k)
    slow('buffer_load_dword v%d, v%d, %s, %s offen sc1' % (vpoll, vaddr, sr(srd, 4), soff))
    slow('s_waitcnt vmcnt(0)')
    slow('v_cmp_ge_u32 vcc, v%d, v%d' % (vpoll, vexp))
    slow('s_nop 1')
    slow('s_andn2_b32 s%d, 0x%x, vcc_lo' % (S_T2, mask))
    slow('s_cbranch_scc1 L_slow%d' % k)
    slow('s_branch L_ret%d' % k)


def poll_base(s):
    s('s_lshr_b32 s%d, s%d, 1' % (S_PL, S_I2))
    s('s_lshl2_add_u32 s%d, s%d, s%d' % (S_PL, S_PL, S_RW))
    s('s_mul_i32 s%d, s%d, %d' % (S_PL, S_PL, FL_G))
    s('s_add_u32 s%d, s%d, 0x%x' % (S_PL, S_PL, FL_OFF))
    s('v_cmp_gt_u32 vcc, 32, v%d' % V_L16)
    s('v_lshlrev_b32 v%d, 3, v%d' % (V_PL, V_L16))
    s('v_cndmask_b32 v%d, v%d, v%d, vcc' % (V_PL, V_FLO, V_PL))


def poll_async(s, k):
    s('buffer_load_dword v%d, v%d, %s, s%d offen offset:%d sc1' % (V_POLL, V_PL, sr(SWS, 4), S_PL, k * 256), ('poll', k))


def stage_check(s, k, miss=None, sync=False, scalar=False):
    if OPT['x_nopoll']:
        return
    j = nspin[0]
    nspin[0] += 1
    mask = 3 if k < 3 else 1
    if sync:
        s('s_branch L_slow%d' % j)
    else:
        s.wait(vm=[('poll', k)])
        s('v_cmp_ne_u32 vcc, 0, v%d' % V_POLL)
        s('s_andn2_b32 s%d, %d, vcc_lo' % (S_T2, mask))
        if miss:
            s('s_cbranch_scc1 %s' % miss)
            return
        s('s_cbranch_scc1 L_slow%d' % j)
    s('L_ret%d:' % j)
    slow('L_slow%d:' % j)
    slow('s_add_u32 s%d, s%d, 1' % (S_SPIN, S_SPIN))
    slow('s_cmp_gt_u32 s%d, 0x%x' % (S_SPIN, SPIN_LIMIT))
    slow('s_cbranch_scc1 L_ret%d' % j)
    if sync and k == 3 and OPT['back']:
        slow('s_sleep %d' % OPT['back'])
    if scalar:
        slow('s_add_u32 s%d, s%d, %d' % (S_T2, S_PL, k * 256))
        slow('s_add_u32 s%d, s%d, %d' % (S_T1, S_PL, k * 256 + (128 if k < 3 else 0)))
        slow('s_buffer_load_dword s%d, %s, s%d glc' % (S_T2, sr(SWS, 4), S_T2))
        if k < 3:
            slow('s_buffer_load_dword s%d, %s, s%d glc' % (S_T1, sr(SWS, 4), S_T1))
        slow('s_waitcnt lgkmcnt(0)')
        if k < 3:
            slow('s_and_b32 s%d, s%d, s%d' % (S_T2, S_T2, S_T1))
        slow('s_cmp_eq_u32 s%d, 0' % S_T2)
    else:
        slow('buffer_load_dword v%d, v%d, %s, s%d offen offset:%d sc1' % (V_POLL, V_PL, sr(SWS, 4), S_PL, k * 256))
        slow('s_waitcnt vmcnt(0)')
        slow('v_cmp_ne_u32 vcc, 0, v%d' % V_POLL)
        slow('s_nop 1')
        slow('s_andn2_b32 s%d, %d, vcc_lo' % (S_T2, mask))
    slow('s_cbranch_scc1 L_slow%d' % j)
    slow('s_branch L_ret%d' % j)


def poll_check(s, k, n, sync=False, atomic=False):
    j = nspin[0]
    nspin[0] += 1
    if OPT['x_nopoll']:
        return
    if sync:
        s('s_branch L_slow%d' % j)
    else:
        s.wait(vm=[('poll', k)])
        s('v_readfirstlane_b32 s%d, v%d' % (S_T2, V_POLL))
        s('s_cmp_lt_u32 s%d, %d' % (S_T2, n))
        s('s_cbranch_scc1 L_slow%d' % j)
    s('L_ret%d:' % j)
    slow('L_slow%d:' % j)
    slow('s_add_u32 s%d, s%d, 1' % (S_SPIN, S_SPIN))
    slow('s_cmp_gt_u32 s%d, 0x%x' % (S_SPIN, SPIN_LIMIT))
    slow('s_cbranch_scc1 L_ret%d' % j)
    if atomic:
        slow('v_mov_b32 v%d, 0' % V_POLL)
        slow('buffer_atomic_add v%d, v%d, %s, s%d offen offset:%d sc0 sc1' % (V_POLL, V_FLO, sr(SWS, 4), S_PL, k * 128))
        slow('s_waitcnt vmcnt(0)')
        slow('v_readfirstlane_b32 s%d, v%d' % (S_T2, V_POLL))
        slow('s_nop 0')
    else:
        slow('s_add_u32 s%d, s%d, %d' % (S_T2, S_PL, k * 128))
        slow('s_buffer_load_dword s%d, %s, s%d glc' % (S_T2, sr(SWS, 4), S_T2))
        slow('s_waitcnt lgkmcnt(0)')
    slow('s_cmp_lt_u32 s%d, %d' % (S_T2, n))
    slow('s_cbranch_scc1 L_slow%d' % j)
    slow('s_branch L_ret%d' % j)


def srd(s, d, nbytes):
    s('s_mov_b32 s%d, 0x%x' % (d + 2, nbytes))
    s('s_mov_b32 s%d, 0x20000' % (d + 3))


XSLOT = [R2, R2 + 16384, R1 + 8192, R1 + 24576, R1 + 40960, R2, R2 + 16384]


def kv_slot(n):
    return ((n + 4) % 9) * 16384


def prologue():
    s, T = Seg('pro'), V_T
    s('s_cmp_ge_u32 s2, 256')
    s('s_cbranch_scc1 L_end')
    estamp(s, 'en')
    if OPT['x_late']:
        s('s_bitcmp1_b32 0x%x, s2' % OPT['x_mask'])
        s('s_cbranch_scc0 L_nolate')
        s('s_sleep %d' % OPT['x_late'])
        s('L_nolate:')
    s('s_load_dwordx2 %s, s[0:1], 0' % sr(SX, 2))
    s('s_load_dwordx2 %s, s[0:1], 8' % sr(SW, 2))
    s('s_load_dwordx2 %s, s[0:1], 32' % sr(S_HI, 2))
    s('v_readfirstlane_b32 s%d, v0' % S_WV)
    s('s_getpc_b64 s[82:83]')
    s('s_lshr_b32 s%d, s2, 3' % S_T2)
    s('s_lshl_b32 s%d, s%d, 11' % (S_P, S_T2))
    s('v_lshl_add_u32 v%d, v0, 2, s%d' % (T, S_P))
    s('v_min_u32 v%d, L_codeend-L_codebeg-64, v%d' % (T, T))
    s('global_load_dword v%d, v%d, s[82:83]' % (V_POLL, T))
    s('s_lshr_b32 s%d, s%d, 6' % (S_WV, S_WV))
    s('v_and_b32 v%d, 63, v0' % T)
    if OPT['rmap'] < 0:
        s('s_and_b32 s%d, s%d, 7' % (S_ROLE, S_T2))
        s('v_lshrrev_b32 v%d, 3, v%d' % (T + 1, T))
        s('s_lshr_b32 s%d, s%d, 3' % (S_I2, S_T2))
    else:
        s('s_add_u32 s%d, s%d, %d' % (S_ROLE, S_T2, 4 * OPT['rmap']))
        s('v_lshrrev_b32 v%d, 3, v%d' % (T + 1, T))
        s('s_bfe_u32 s%d, s%d, 0x30002' % (S_ROLE, S_ROLE))
        s('s_and_b32 s%d, s%d, 3' % (S_I2, S_T2))
    s('v_lshrrev_b32 v%d, 4, v%d' % (T + 3, T))
    s('s_and_b32 s%d, s2, 1' % S_HALF)
    s('v_lshl_add_u32 v%d, s%d, 4, v%d' % (T + 5, S_WV, T + 1))
    s('s_bfe_u32 s%d, s2, 0x20001' % S_P)
    s('v_mul_u32_u24 v%d, %d, v%d' % (T + 5, XS, T + 5))
    s('s_lshl2_add_u32 s%d, s%d, s%d' % (S_RB, S_P, S_I2))
    s('v_xor_b32 v%d, v%d, v%d' % (T + 6, T, T + 3))
    s('s_add_u32 s%d, s%d, s%d' % (S_T2, S_I2, S_ROLE))
    s('v_and_b32 v%d, 7, v%d' % (T + 6, T + 6))
    s('s_and_b32 s%d, s%d, 1' % (S_T2, S_T2))
    s('v_lshl_add_u32 v%d, v%d, 4, v%d' % (V_X0, T + 6, T + 5))
    s('s_lshl2_add_u32 s%d, s%d, s%d' % (S_T2, S_HALF, S_T2))
    s('v_xor_b32 v%d, 64, v%d' % (V_X1, V_X0))
    s('s_lshl1_add_u32 s%d, s%d, s%d' % (S_T2, S_P, S_T2))
    s('v_add_u32 v%d, %d, v%d' % (V_X1, 8 * XS - 1024, V_X1))
    s('s_cmp_ge_u32 s%d, 7' % S_T2)
    s('s_cselect_b32 s%d, 7, 0' % S_T1)
    s('s_sub_u32 s%d, s%d, s%d' % (S_T2, S_T2, S_T1))
    s('s_mul_i32 s%d, s%d, %d' % (S_H, S_RB, 128 * XS))
    s('s_lshl_b32 s%d, s%d, 7' % (S_KX, S_T2))
    s('s_add_u32 s%d, s%d, s%d' % (S_KX, S_KX, S_H))
    s('s_lshl_b32 s%d, s%d, 11' % (S_M0X, S_WV))
    s('s_bitcmp1_b32 0x70, s%d' % S_ROLE)
    s('s_cselect_b32 s%d, 4, 7' % S_T3)
    s('s_lshl_b32 s%d, s%d, 14' % (S_T3, S_T3))
    s('s_add_u32 m0, s%d, s%d' % (S_T3, S_M0X))
    srd(s, SX, 2048 * XS)
    assert XSLOT[0] == 7 << 14 and kv_slot(0) == 4 << 14
    if OPT['touch'] & 8:
        s('s_lshl3_add_u32 s%d, s%d, s%d' % (S_T3, S_HALF, S_ROLE))
        s('v_min_u32 v%d, 6, v%d' % (T + 2, T))
        s('s_lshl3_add_u32 s%d, s%d, s%d' % (S_T3, S_T3, S_WV))
        s('v_lshlrev_b32 v%d, 7, v%d' % (T + 2, T + 2))
        s('s_mul_i32 s%d, s%d, %d' % (S_T3, S_T3, XS))
        s('s_add_u32 s%d, s%d, s%d' % (S_T3, S_T3, S_H))
    if OPT['xfirst']:
        s('s_waitcnt lgkmcnt(0)')
        estamp(s, 'ka')
        s('buffer_load_dwordx4 v%d, %s, s%d offen lds' % (V_X0, sr(SX, 4), S_KX), 't0')
        s('buffer_load_dwordx4 v%d, %s, s%d offen offset:1024 lds' % (V_X1, sr(SX, 4), S_KX), 't0')
        if OPT['touch'] & 8:
            s('buffer_load_dword v%d, v%d, %s, s%d offen' % (V_EXW, T + 2, sr(SX, 4), S_T3))
    s('s_and_b32 s%d, s%d, 3' % (S_RW, S_WV))
    s('s_lshr_b32 s%d, s%d, 2' % (S_G, S_WV))
    s('s_lshl_b32 s%d, s%d, 11' % (S_M0W, S_RW))
    s('s_mul_i32 s%d, s%d, 3' % (S_T0, S_HALF))
    s('v_lshlrev_b32 v%d, 2, v%d' % (T + 4, T + 3))
    s('s_add_u32 s%d, s%d, s%d' % (S_T0, S_T0, S_ROLE))
    s('v_xor_b32 v%d, v%d, v%d' % (T + 4, T, T + 4))
    s('s_lshl_b32 s%d, s%d, 7' % (S_T0, S_T0))
    s('s_add_u32 s%d, s%d, %d' % (S_T0, S_T0, XS - 512))
    s('s_lshl2_add_u32 s%d, s%d, s%d' % (S_P, S_HALF, S_ROLE))
    s('s_and_b32 s%d, s%d, 1' % (S_PEND, S_ROLE))
    s('s_lshl_b32 s%d, s%d, 6' % (S_PEND, S_PEND))
    s('s_movk_i32 s%d, %d' % (S_LAST, WQS))
    s('s_cmp_lt_u32 s%d, 4' % S_ROLE)
    s('s_cselect_b32 s%d, %d, s%d' % (S_LAST, W1S, S_LAST))
    s('s_cselect_b32 s%d, s%d, s%d' % (S_P, S_P, S_HALF))
    s('s_cselect_b32 s%d, s%d, 0' % (S_PEND, S_PEND))
    s('s_mul_i32 s%d, s%d, 448' % (S_T1, S_P))
    s('s_add_u32 s%d, s%d, s%d' % (S_T1, S_T1, S_PEND))
    s('s_lshl_b32 s%d, s%d, 6' % (S_RO, S_LAST))
    s('s_mul_i32 s%d, s%d, s%d' % (S_KW, S_T2, S_RO))
    s('s_mul_i32 s%d, s%d, 448' % (SW + 2, S_LAST))
    s('s_mov_b32 s%d, 0x20000' % (SW + 3))
    s('s_lshl_b32 s%d, s%d, 1' % (S_T2, S_RW))
    s('s_add_u32 s%d, s%d, %d' % (S_FL, S_M0X, kv_slot(1)))
    s('s_bitcmp1_b32 0x70, s%d' % S_ROLE)
    s('s_cselect_b32 s%d, s%d, s%d' % (S_T0, S_T0, S_T1))
    s('s_cselect_b32 s%d, s%d, s%d' % (S_T2, S_WV, S_T2))
    s('s_cselect_b32 s%d, s%d, s%d' % (S_FL, S_FL, S_M0W))
    s('s_cselect_b32 s%d, 4, 3' % S_T1)
    s('s_cselect_b32 s%d, 1, s%d' % (S_SPIN, S_G))
    s('v_lshrrev_b32 v%d, s%d, v%d' % (T + 5, S_T1, T))
    s('v_lshl_add_u32 v%d, s%d, 3, v%d' % (T + 5, S_T2, T + 5))
    s('v_bfe_u32 v%d, v%d, 0, s%d' % (T + 6, T + 4, S_T1))
    s('s_lshr_b32 s%d, s%d, s%d' % (S_T1, S_RO, S_T1))
    s('v_mul_u32_u24 v%d, s%d, v%d' % (T + 5, S_LAST, T + 5))
    s('s_sub_u32 s%d, s%d, 1024' % (S_T1, S_T1))
    s('v_lshl_add_u32 v%d, v%d, 4, s%d' % (T + 6, T + 6, S_T0))
    s('v_add_u32 v%d, v%d, v%d' % (V_W, T + 5, T + 6))
    s('s_cmp_lt_u32 s%d, 4' % S_ROLE)
    s('v_add_u32 v%d, s%d, v%d' % (V_WB, S_T1, V_W))
    if not OPT['xfirst']:
        s('s_waitcnt lgkmcnt(0)')
        estamp(s, 'ka')
        s('buffer_load_dwordx4 v%d, %s, s%d offen lds' % (V_X0, sr(SX, 4), S_KX), 't0')
        s('buffer_load_dwordx4 v%d, %s, s%d offen offset:1024 lds' % (V_X1, sr(SX, 4), S_KX), 't0')
        if OPT['touch'] & 8:
            s('buffer_load_dword v%d, v%d, %s, s%d offen' % (V_EXW, T + 2, sr(SX, 4), S_T3))
    s('s_cselect_b64 %s, %s, %s' % (sr(SW, 2), sr(S_HI, 2), sr(SW, 2)))
    s('s_mov_b32 m0, s%d' % S_FL)
    s('s_cmp_eq_u32 s%d, 0' % S_SPIN)
    s('s_cbranch_scc1 L_now')
    w = Seg('prow')
    w('buffer_load_dwordx4 v%d, %s, s%d offen lds' % (V_W, sr(SW, 4), S_KW), 't0')
    w('buffer_load_dwordx4 v%d, %s, s%d offen offset:1024 lds' % (V_WB, sr(SW, 4), S_KW), 't0')
    e = Seg('proe')
    e('L_now:')
    if OPT['touch'] & 16:
        e('v_min_u32 v%d, 55, v%d' % (T + 2, T))
        e('s_mul_i32 s%d, s%d, 28' % (S_T3, S_RB))
        e('v_lshrrev_b32 v%d, 1, v%d' % (T + 5, T + 2))
        e('s_mul_i32 s%d, s%d, s%d' % (S_T3, S_T3, S_LAST))
        e('v_mul_u32_u24 v%d, s%d, v%d' % (T + 5, S_LAST, T + 5))
        e('s_add_u32 s%d, s%d, s%d' % (S_T3, S_T3, S_T0))
        e('v_and_b32 v%d, 1, v%d' % (T + 2, T + 2))
        e('s_lshl_b32 s%d, s%d, 28' % (S_T2, S_WV))
        e('v_lshl_add_u32 v%d, v%d, 7, v%d' % (T + 2, T + 2, T + 5))
        e('s_add_u32 s%d, s%d, s%d' % (S_T3, S_T3, S_T2))
        e('buffer_load_dword v%d, v%d, %s, s%d offen' % (V_EXW, T + 2, sr(SW, 4), S_T3))
    estamp(e, 't0')
    for d, off in ((SWS, 80), (SB1, 40), (SDBG, 72), (SW2, 48), (SWO, 16), (SB2, 56), (SOUT, 64)):
        e('s_load_dwordx2 %s, s[0:1], %d' % (sr(d, 2), off))
    essential(e)
    e('s_cmp_ge_u32 s%d, 7' % S_ROLE)
    e('s_cbranch_scc1 L_q')
    e('s_cmp_ge_u32 s%d, 4' % S_ROLE)
    e('s_cbranch_scc1 L_kv')
    return s, w, e


def zipper(a, b):
    out = []
    for k in range(max(len(a), len(b))):
        out += a[k:k + 1] + b[k:k + 1]
    return out


def essential(z):
    T = V_T
    k, s = Seg(), Seg()
    k('s_add_u32 s%d, s%d, %d' % (S_T2, S_H, XS))
    for c in range(1, 7):
        k('s_add_u32 s%d, s%d, 128' % (S_KX + c, S_KX + c - 1))
        k('s_add_u32 s%d, s%d, s%d' % (S_KW + c, S_KW + c - 1, S_RO))
        k('s_cmp_eq_u32 s%d, s%d' % (S_KX + c, S_T2))
        k('s_cselect_b32 s%d, s%d, s%d' % (S_KX + c, S_H, S_KX + c))
        k('s_cselect_b32 s%d, 0, s%d' % (S_KW + c, S_KW + c))
    k('s_mov_b32 s%d, 0x3f803f80' % S_ONES)
    s('v_lshlrev_b32 v%d, 4, v%d' % (V_L16, T))
    s('v_and_b32 v%d, 1, v%d' % (T + 7, T + 3))
    s('v_and_b32 v%d, 31, v%d' % (T + 8, T))
    s('v_lshrrev_b32 v%d, 5, v%d' % (T + 9, T))
    s('v_bfe_u32 v%d, v%d, 2, 2' % (T + 10, T))
    s('v_and_b32 v%d, 3, v%d' % (T + 11, T))
    s('v_lshl_add_u32 v%d, s%d, 1, v%d' % (T + 12, S_RW, T + 9))
    s('v_bfe_u32 v%d, v%d, 1, 3' % (T + 5, T))
    s('v_xor_b32 v%d, v%d, v%d' % (T + 5, T + 12, T + 5))
    s('v_lshl_add_u32 v%d, s%d, 5, v%d' % (T + 13, S_RW, T + 8))
    s('v_lshlrev_b32 v%d, 7, v%d' % (V_XA, T + 13))
    s('v_lshl_add_u32 v%d, v%d, 4, v%d' % (V_XA, T + 5, V_XA))
    for j in range(1, 4):
        s('v_xor_b32 v%d, %d, v%d' % (V_XA + j, j << 5, V_XA))
    s('v_lshl_add_u32 v%d, v%d, 3, v%d' % (T + 12, T + 12, T + 10))
    s('v_lshl_add_u32 v%d, v%d, 2, v%d' % (T + 14, T + 7, T + 11))
    s('v_and_b32 v%d, 1, v%d' % (T + 5, T + 10))
    s('v_mov_b32 v%d, 0x3f803f80' % (T + 6))
    s('v_cmp_eq_u32 vcc, v%d, v%d' % (T + 5, T + 7))
    for j in range(4):
        s('v_mov_b32 v%d, 0' % (V_ST + j))
    for j in range(4):
        s('v_cndmask_b32 v%d, 0, v%d, vcc' % (V_SEL + j, T + 6))
    s('v_mov_b32 v%d, 0x%x' % (V_FLO, OOB))
    s('v_cmp_eq_u32 vcc, 0, v%d' % T)
    s('v_mov_b32 v%d, 1' % V_ONE)
    s('v_mov_b32 v%d, 0' % (V_EXW + 1))
    s('v_cndmask_b32 v%d, v%d, 0, vcc' % (V_FLO, V_FLO))
    z.extend(zipper(list(k), list(s)))


def deferred(kv):
    s, T = Seg(), V_T
    for k in EARLY:
        if OPT['diag'] and k in STAMPS:
            s('v_readfirstlane_b32 s%d, v%d' % (S_KA + 2 * STAMPS.index(k), 120 + EARLY.index(k)))
    srd(s, SW2, 1792 * XS)
    srd(s, SWO, 448 * XS)
    srd(s, SOUT, 2048 * XS)
    srd(s, SB2, 448 * 2)
    s('s_mov_b32 s%d, %s' % (S_EPS, f32(1e-6)))
    s('s_mov_b32 s%d, %s' % (S_L2E, f32(LOG2E)))
    s('s_mov_b32 s%d, 0' % S_HI)
    s('s_mov_b32 s%d, -1' % (S_HI + 1))
    if kv:
        s('s_mov_b32 s%d, 0xf0000000' % S_PAD)
        s('s_mov_b32 s%d, 0xf0000000' % (S_PAD + 1))
        s('v_mov_b32 v%d, 0' % (V_EXW + 3))
    s('s_mov_b32 s%d, 0' % S_SPIN)
    s('v_and_b32 v%d, 7, v%d' % (T + 4, T + 4))
    s('v_mul_u32_u24 v%d, %d, v%d' % (V_B2, XS, T + 1))
    s('v_lshl_add_u32 v%d, v%d, 4, v%d' % (V_B2, T + 4, V_B2))
    if kv:
        s('s_mov_b32 s%d, %d' % (S_T1, M_CS))
    else:
        s('s_lshl_b32 s%d, s%d, 9' % (S_T1, S_G))
        s('s_add_u32 s%d, s%d, %d' % (S_T1, S_T1, M_CS))
    s('v_lshl_add_u32 v%d, v%d, 4, s%d' % (V_CSR, T + 8, S_T1))
    s('v_lshl_add_u32 v%d, s%d, 2, v%d' % (V_CSW, S_RW, V_CSR))
    s('s_lshl2_add_u32 s%d, s%d, %d' % (S_T1, S_WV, M_SY))
    s('v_mov_b32 v%d, s%d' % (V_PA, S_T1))
    for k in ((0, 128, 160, 192, 224) if kv else (0,)):
        s('ds_write_b32 v%d, v%d offset:%d' % (V_PA, V_EXW + 1, k))
    if not kv:
        s('v_lshlrev_b32 v%d, 2, v%d' % (V_EXR + 1, T + 13))
        s('v_add_u32 v%d, %d, v%d' % (V_EXR, M_ST, V_EXR + 1))
    s('s_and_b32 s%d, s2, 7' % S_T1)
    s('s_lshl2_add_u32 s%d, s%d, s%d' % (S_I2, S_T1, S_I2))
    if OPT['rot2'] == 2:
        s('s_add_u32 s%d, s%d, s%d' % (S_T1, S_I2, S_ROLE))
    elif OPT['rot2'] == 3:
        s('s_add_u32 s%d, s%d, s%d' % (S_T1, S_I2, S_ROLE))
        s('s_and_b32 s%d, s%d, 3' % (S_T1, S_T1))
    elif OPT['rot2'] == 4:
        s('s_add_u32 s%d, s%d, s%d' % (S_T1, S_I2, S_ROLE))
        s('s_and_b32 s%d, s%d, 1' % (S_T1, S_T1))
    else:
        s('s_lshl1_add_u32 s%d, s%d, s%d' % (S_T1, S_I2, S_ROLE))
    s('s_and_b32 s%d, s%d, 3' % (S_RO, S_T1))
    s('s_and_b32 s%d, s%d, 4' % (S_T1, S_T1))
    s('s_lshl2_add_u32 s%d, s%d, s%d' % (S_RO, S_T1, S_RO))
    if not OPT['rot2']:
        s('s_mov_b32 s%d, 0' % S_RO)
    return s


def tlb_warm(s):
    if not OPT['tlb']:
        return
    T = V_T
    s('s_cmp_eq_u32 s%d, 0' % S_WV)
    s('s_cselect_b32 s%d, 128, 0x%x' % (S_T1, OOB))
    for r in (SDBG, SW2, SWO, SB2, SOUT):
        s('buffer_load_dword v%d, v%d, %s, s%d offen' % (T + 15, V_FLO, sr(r, 4), S_T1))
    s('v_lshlrev_b32 v%d, 17, v%d' % (T + 5, V_L16))
    s('v_min_u32 v%d, 0x%x, v%d' % (T + 5, 0x9f0000, T + 5))
    s('buffer_load_dword v%d, v%d, %s, s%d offen' % (T + 15, T + 5, sr(SWS, 4), S_T1))


def dma_x(s, c, addr, tag):
    s('s_add_u32 m0, s%d, %d' % (S_M0X, addr))
    s('buffer_load_dwordx4 v%d, %s, s%d offen lds' % (V_X0, sr(SX, 4), S_KX + c), tag)
    s('buffer_load_dwordx4 v%d, %s, s%d offen offset:1024 lds' % (V_X1, sr(SX, 4), S_KX + c), tag)


def dma_w(s, m0base, c, addr, tag):
    s('s_add_u32 m0, s%d, %d' % (m0base, addr))
    s('buffer_load_dwordx4 v%d, %s, s%d offen lds' % (V_W, sr(SW, 4), S_KW + c), tag)
    s('buffer_load_dwordx4 v%d, %s, s%d offen offset:1024 lds' % (V_WB, sr(SW, 4), S_KW + c), tag)


def groups(z):
    out, cur = [], []
    for i in z:
        cur.append(i)
        if i.kind == 'vmem':
            out.append(cur)
            cur = []
    if cur:
        out.append(cur)
    return out


def mix(main, grp, lo=0.0, hi=1.0):
    main = [i for i in main if i is not GAP]
    out, k, n = [], 0, len(main)
    for idx, i in enumerate(main):
        while k < len(grp) and idx >= n * (lo + (hi - lo) * k / len(grp)):
            out.extend(grp[k])
            k += 1
        out.append(i)
    for g in grp[k:]:
        out.extend(g)
    return out


def barrier(z, vm=None, name=None):
    if name:
        stamp(z, name + 'a')
    z.wait(vm=vm, lgkm='all')
    if name:
        stamp(z, name + 'b')
    z('s_barrier')


BLK = [0, 4, 1, 5, 2, 6, 3]


def unit_ks(u):
    return 4 * BLK[u >> 2] + (u & 3)


R3 = R1 + 28672
S_QR3 = 100
V_W3, V_WA3 = 125, 126
V_B2S = 0
BA = [4, 5, 6, 7, 13, 15]
RING = [11]


def unit_loc(u):
    u %= RING[0]
    if u < 5:
        return S_QR2, 1, u * 2048
    if u < RING[0] - 6:
        return S_QR3, 2, (u - 5) * 2048
    return S_QR0, 0, (u - RING[0] + 6) * 2048


def p2_setup(s):
    S_T0 = S_T1
    s('s_lshl_b32 s%d, s%d, 7' % (S_T0, S_ROLE))
    s('s_mul_i32 s%d, s%d, %d' % (S_B2R, S_RW, 448 * XS))
    s('s_add_u32 s%d, s%d, s%d' % (S_B2R, S_B2R, S_T0))
    s('s_lshr_b32 s%d, s%d, 1' % (S_WOR, S_RW))
    s('s_mul_i32 s%d, s%d, 6' % (S_WOR, S_WOR))
    s('s_add_u32 s%d, s%d, s%d' % (S_WOR, S_WOR, S_RW))
    s('s_mul_i32 s%d, s%d, %d' % (S_WOR, S_WOR, 28 * XS))
    s('s_add_u32 s%d, s%d, s%d' % (S_WOR, S_WOR, S_T0))
    s('s_mul_i32 s%d, s%d, %d' % (S_OUTO, S_I2, 64 * XS))
    s('s_add_u32 s%d, s%d, s%d' % (S_OUTO, S_OUTO, S_T0))
    s('s_mul_i32 s%d, s%d, 12288' % (S_QR0, S_RW))
    s('s_mul_i32 s%d, s%d, 10240' % (S_QR2, S_RW))
    s('s_add_u32 s%d, s%d, %d' % (S_QR2, S_QR2, R2))
    if RING[0] == 14:
        s('s_mul_i32 s%d, s%d, 6144' % (S_QR3, S_RW))
        s('s_add_u32 s%d, s%d, %d' % (S_QR3, S_QR3, R3))
    s('s_mul_i32 s%d, s%d, %d' % (S_A, S_I2, 2 * ACT_G))


def b2b_setup(s):
    s('v_add_u32 v%d, %d, v%d' % (V_B2B, 8 * XS - 1024, V_B2))


def touch_w(s, ffn, junk=127):
    if not OPT['touch'] & 1:
        return
    T = V_T
    s('s_and_b32 s%d, s%d, 3' % (S_T2, S_ROLE))
    s('s_lshl2_add_u32 s%d, s%d, s%d' % (S_T2, S_RB, S_T2))
    s('s_lshl3_add_u32 s%d, s%d, s%d' % (S_T2, S_T2, S_WV))
    s('s_mul_i32 s%d, s%d, %d' % (S_T2, S_T2, W1S if ffn else WQS))
    s('s_mul_i32 s%d, s%d, %d' % (S_T3, S_HALF, 1792 if ffn else 384))
    s('s_add_u32 s%d, s%d, s%d' % (S_T2, S_T2, S_T3))
    if ffn:
        s('v_min_u32 v%d, 13, v%d' % (T + 2, T))
    else:
        s('v_min_u32 v%d, 11, v%d' % (T + 2, T))
        s('v_lshrrev_b32 v%d, 2, v%d' % (T + 15, T + 2))
        s('v_mad_u32_u24 v%d, v%d, 3, v%d' % (T + 2, T + 15, T + 2))
    s('v_lshlrev_b32 v%d, 7, v%d' % (T + 2, T + 2))
    s('buffer_load_dword v%d, v%d, %s, s%d offen' % (junk, T + 2, sr(SW, 4), S_T2))


def touch_qv(s, junk=127):
    T = V_T
    s('s_lshl3_add_u32 s%d, s%d, s%d' % (S_T2, S_RB, S_WV))
    s('s_mul_i32 s%d, s%d, %d' % (S_T2, S_T2, 4 * WQS))
    s('s_mul_i32 s%d, s%d, 384' % (S_T3, S_HALF))
    s('s_add_u32 s%d, s%d, s%d' % (S_T2, S_T2, S_T3))
    s('v_min_u32 v%d, 31, v%d' % (T + 2, T))
    s('v_lshrrev_b32 v%d, 3, v%d' % (T + 15, T + 2))
    s('v_mad_u32_u24 v%d, v%d, 13, v%d' % (T + 15, T + 15, T + 2))
    s('v_bfe_u32 v%d, v%d, 2, 1' % (T + 2, T + 2))
    s('v_mad_u32_u24 v%d, v%d, 10, v%d' % (T + 2, T + 2, T + 15))
    s('v_lshlrev_b32 v%d, 7, v%d' % (T + 2, T + 2))
    s('buffer_load_dword v%d, v%d, %s, s%d offen' % (junk, T + 2, sr(SW, 4), S_T2))


def touch_ffn(s, t, junk=127):
    s('s_lshl3_add_u32 s%d, s%d, s%d' % (S_T2, S_RB, S_P))
    s('s_lshl2_add_u32 s%d, s%d, s%d' % (S_T2, S_T2, S_RW))
    s('v_min_u32 v%d, %d, v%d' % (t, 24 * 16, V_L16))
    s('s_mul_i32 s%d, s%d, %d' % (S_T3, S_T2, 25 * 128))
    s('v_lshlrev_b32 v%d, 3, v%d' % (t, t))
    s('buffer_load_dword v%d, v%d, %s, s%d offen' % (junk, t, sr(SW2, 4), S_T3))
    s('v_min_u32 v%d, %d, v%d' % (t, 6 * 128, t))
    s('s_mul_i32 s%d, s%d, %d' % (S_T3, S_T2, 7 * 128))
    s('buffer_load_dword v%d, v%d, %s, s%d offen' % (junk, t, sr(SWO, 4), S_T3))


def touch_fl2(s, h, t, junk=127):
    k = h - OPT['tf0']
    if not OPT['touch'] & 256 or not 0 <= k < 4 or not OPT['rounds'] >> k & 1:
        return
    s('s_add_u32 s%d, s2, %d' % (S_T3, k))
    s('s_and_b32 s%d, s%d, 3' % (S_T3, S_T3))
    s('s_and_b32 s%d, s%d, 3' % (S_T2, S_I2))
    s('s_lshl2_add_u32 s%d, s%d, s%d' % (S_T3, S_T3, S_T2))
    s('s_lshl2_add_u32 s%d, s%d, s%d' % (S_T3, S_T3, S_ROLE))
    s('s_lshl2_add_u32 s%d, s%d, s%d' % (S_T3, S_T3, S_RW))
    s('v_min_u32 v%d, %d, v%d' % (t, 48 * 16, V_L16))
    s('s_mul_i32 s%d, s%d, %d' % (S_T3, S_T3, 7 * XS))
    s('v_lshlrev_b32 v%d, 3, v%d' % (t, t))
    s('buffer_load_dword v%d, v%d, %s, s%d offen' % (junk, t, sr(SW2, 4), S_T3))


def touch_w2(s):
    if not OPT['touch'] & 2:
        return
    T = V_T
    s('s_lshl3_add_u32 s%d, s2, s%d' % (S_T2, S_WV))
    s('s_mul_i32 s%d, s%d, %d' % (S_T2, S_T2, XS))
    s('v_min_u32 v%d, 6, v%d' % (T + 2, T))
    s('v_lshlrev_b32 v%d, 7, v%d' % (T + 2, T + 2))
    s('s_sub_u32 s%d, %d, s%d' % (S_T3, 2047 * XS, S_T2))
    s('buffer_load_dword v%d, v%d, %s, s%d offen' % (V_POLL, T + 2, sr(SW2, 4), S_T2))
    s('buffer_load_dword v%d, v%d, %s, s%d offen' % (V_POLL, T + 2, sr(SWO, 4), S_T3))


def touch_kv(s):
    if not OPT['touch'] & 4:
        return
    T = V_T + 8
    s('s_mul_i32 s%d, s%d, 6' % (S_T2, S_RB))
    s('s_add_u32 s%d, s%d, s%d' % (S_T2, S_T2, S_P))
    s('s_lshl2_add_u32 s%d, s%d, s%d' % (S_T2, S_T2, S_RW))
    s('v_min_u32 v%d, %d, v%d' % (T, 32 * 16, V_L16))
    s('s_mul_i32 s%d, s%d, %d' % (S_T3, S_T2, 33 * 128))
    s('v_lshlrev_b32 v%d, 3, v%d' % (T, T))
    s('buffer_load_dword v%d, v%d, %s, s%d offen' % (T + 1, T, sr(SW2, 4), S_T3))
    s('v_min_u32 v%d, %d, v%d' % (T, 8 * 128, T))
    s('s_mul_i32 s%d, s%d, %d' % (S_T3, S_T2, 9 * 128))
    s('buffer_load_dword v%d, v%d, %s, s%d offen' % (T + 1, T, sr(SWO, 4), S_T3))


def touch_l2(s, r, t):
    if not OPT['touch'] & 32 or not OPT['rounds'] >> r & 1:
        return
    s('s_add_u32 s%d, s2, %d' % (S_T3, r))
    s('s_and_b32 s%d, s%d, 3' % (S_T3, S_T3))
    s('s_mul_i32 s%d, s%d, 49' % (S_T3, S_T3))
    s('s_lshr_b32 s%d, s2, 6' % S_T2)
    s('s_mul_i32 s%d, s%d, 3' % (S_T2, S_T2))
    s('s_add_u32 s%d, s%d, s%d' % (S_T2, S_T2, S_ROLE))
    s('s_lshl2_add_u32 s%d, s%d, s%d' % (S_T2, S_T2, S_RW))
    s('s_add_u32 s%d, s%d, s%d' % (S_T3, S_T3, S_T2))
    s('s_sub_u32 s%d, s%d, 16' % (S_T3, S_T3))
    s('v_lshlrev_b32 v%d, 3, v%d' % (t, V_L16))
    s('s_lshl_b32 s%d, s%d, 13' % (S_T3, S_T3))
    s('buffer_load_dword v%d, v%d, %s, s%d offen' % (t, t, sr(SW2, 4), S_T3))


def touch_wo(s, t):
    if not OPT['touch'] & (32 | 256):
        return
    s('s_and_b32 s%d, s%d, 3' % (S_T2, S_I2))
    s('s_lshl3_add_u32 s%d, s%d, s%d' % (S_T2, S_T2, S_WV))
    s('v_min_u32 v%d, %d, v%d' % (t, 48 * 16, V_L16))
    s('s_mul_i32 s%d, s%d, %d' % (S_T2, S_T2, 14 * XS))
    s('v_lshlrev_b32 v%d, 3, v%d' % (t, t))
    s('s_add_u32 s%d, s%d, %d' % (S_T3, S_T2, 7 * XS))
    s('buffer_load_dword v%d, v%d, %s, s%d offen' % (t + 1, t, sr(SWO, 4), S_T2))
    s('buffer_load_dword v%d, v%d, %s, s%d offen' % (t + 1, t, sr(SWO, 4), S_T3))


def ks_dyn(s, dst, u):
    if u < 24:
        s('s_xor_b32 s%d, s%d, %d' % (dst, S_RO, unit_ks(u)))
    else:
        s('s_and_b32 s%d, s%d, 3' % (dst, S_RO))
        s('s_xor_b32 s%d, s%d, %d' % (dst, dst, unit_ks(u)))


def dma_b2(s, u):
    base, _, off = unit_loc(u)
    if u < 28:
        ks_dyn(s, S_T3, u)
        if OPT['x_hit'] & 2:
            s('s_and_b32 s%d, s%d, 7' % (S_T3, S_T3))
        s('s_add_u32 m0, s%d, %d' % (base, off))
        s('s_mul_i32 s%d, s%d, %d' % (S_T3, S_T3, 16 * XS))
        s('s_add_u32 s%d, s%d, s%d' % (S_T3, S_T3, S_B2R))
        s('buffer_load_dwordx4 v%d, %s, s%d offen lds' % (V_B2, sr(SW2, 4), S_T3), ('b', u))
        s('buffer_load_dwordx4 v%d, %s, s%d offen offset:1024 lds' % (V_B2B, sr(SW2, 4), S_T3), ('b', u))
        return
    s('s_add_u32 m0, s%d, %d' % (base, off))
    for h in range(2):
        p, r = divmod(2 * (u - 28) + h, 7)
        row = 112 * p + (8 * r if r <= 3 else 56 + 8 * (r - 4))
        s('s_add_u32 s%d, s%d, %d' % (S_T3, S_WOR, row * XS - h * 1024))
        s('buffer_load_dwordx4 v%d, %s, s%d offen offset:%d lds' % (V_B2S if r == 3 else V_B2, sr(SWO, 4), S_T3, h * 1024), ('b', u))


V_OUT, V_RD, V_U = 8, 9, 248


def res_load(R):
    s = Seg()
    s('v_lshrrev_b32 v%d, 3, v0' % (R + 8))
    s('v_and_b32 v%d, 0x70, v%d' % (R + 9, V_L16))
    s('v_mul_u32_u24 v%d, %d, v%d' % (R + 8, XS, R + 8))
    s('s_lshl_b32 s%d, s%d, 7' % (S_T2, S_ROLE))
    s('v_add_u32 v%d, v%d, v%d' % (R + 8, R + 8, R + 9))
    s('buffer_load_dwordx4 %s, v%d, %s, s%d offen' % (vr(R, 4), R + 8, sr(SX, 4), S_OUTO), 'res')
    s('buffer_load_dwordx4 %s, v%d, %s, s%d offen' % (vr(R + 4, 4), R + 9, sr(SB2, 4), S_T2), 'res')
    return s


def res_unpack(R):
    z, U = Seg(), V_U
    z('v_mov_b32 v%d, v%d' % (V_OUT, R + 8))
    z.wait(vm='res')
    for k in range(4):
        z('v_lshlrev_b32 v%d, 16, v%d' % (U + 2 * k, R + k))
        z('v_and_b32 v%d, 0xffff0000, v%d' % (U + 2 * k + 1, R + k))
        z('v_lshlrev_b32 v%d, 16, v%d' % (R + k, R + 4 + k))
        z('v_and_b32 v%d, 0xffff0000, v%d' % (R + 4 + k, R + 4 + k))
        z('v_add_f32 v%d, v%d, v%d' % (U + 2 * k, U + 2 * k, R + k))
        z('v_add_f32 v%d, v%d, v%d' % (U + 2 * k + 1, U + 2 * k + 1, R + 4 + k))
    return z


RES_F, RES_KA, RES_KB = 108, V_X + 84, V_ACC


def abuf(u, rg):
    return V_AB + 8 * (u % DEP) + 4 * rg if u < 28 else V_AB + 64 + 8 * (u - 28) + 4 * rg


def a_setup(s):
    s('v_add_u32 v%d, %d, v%d' % (V_L16B, ACT_G, V_L16))
    s('s_mul_i32 s%d, s%d, 7168' % (S_T0, S_RW))
    s('s_add_u32 s%d, s%d, s%d' % (S_P, S_A, S_T0))
    s('s_add_u32 s%d, s%d, %d' % (S_P, S_P, 112 * 1024))
    s('s_add_u32 s%d, s%d, 4096' % (S_RO3, S_P))
    s('s_mul_i32 s%d, s%d, %d' % (S_T0, S_RW, 28 * 1024))
    s('s_add_u32 s%d, s%d, s%d' % (S_A, S_A, S_T0))


def aload(z, u):
    ks_dyn(z, S_T0, u)
    z('s_lshl_b32 s%d, s%d, 10' % (S_T0, S_T0))
    z('s_add_u32 s%d, s%d, s%d' % (S_T0, S_T0, S_A))
    for rg in range(2):
        z('buffer_load_dwordx4 %s, v%d, %s, s%d offen sc1' % (vr(abuf(u, rg), 4), V_L16B if rg else V_L16, sr(SWS, 4), S_T0), ('a', u))


def sync_arrive(s, k):
    s('ds_write_b32 v%d, v%d offset:%d' % (V_PA, V_ONE, k * 32))


def sync_wait(s, k, nw, T):
    j = nspin[0]
    nspin[0] += 1
    s('v_mov_b32 v%d, %d' % (T + 8, M_SY))
    s('L_sy%d:' % j)
    for h in range(nw // 4):
        s('ds_read_b128 %s, v%d offset:%d' % (vr(T + 4 * h, 4), T + 8, k * 32 + h * 16))
    s('s_add_u32 s%d, s%d, 1' % (S_SPIN, S_SPIN))
    s('s_cmp_gt_u32 s%d, 0x%x' % (S_SPIN, SPIN_LIMIT))
    s('s_cbranch_scc1 L_sz%d' % j)
    s.wait(lgkm='all')
    for h in range(1, nw - 1, 2):
        s('v_and_b32 v%d, v%d, v%d' % (T + h, T + h, T + h + 1))
    for h in range(1, nw, 2):
        s('v_and_b32 v%d, v%d, v%d' % (T, T, T + h))
    s('v_readfirstlane_b32 s%d, v%d' % (S_T2, T))
    s('s_cmp_eq_u32 s%d, 0' % S_T2)
    s('s_cbranch_scc1 L_sy%d' % j)
    s('L_sz%d:' % j)
    s.wait(lgkm='all')


def flag(s, off):
    if OPT['fatom']:
        s('buffer_atomic_add v%d, v%d, %s, s%d offen offset:%d sc1' % (V_ONE, V_FLO, sr(SWS, 4), S_FL, off))
    else:
        s('buffer_store_dword v%d, v%d, %s, s%d offen offset:%d sc1' % (V_ONE, V_FLO, sr(SWS, 4), S_FL, off))


def f0_load(s):
    s('buffer_load_dword v%d, v%d, %s, 0 offen sc1' % (V_POLL, V_FLO, sr(SDBG, 4)), 'f0')


def f0_check(s):
    s('v_mov_b32 v%d, 32' % (V_T + 15))
    stamp(s, 'f0a')
    s.wait(vm='f0')
    stamp(s, 'f0b')
    spin_check(s, V_POLL, V_T + 15, V_FLO, SDBG, '0', 1)


def poll_early(s):
    poll_base(s)
    poll_async(s, 0)


def xreg(c, j):
    return V_X + 16 * c + 4 * j


def dots(s, c):
    for j in range(4):
        s.wait(lgkm=[('x', c, j)])
        for r in range(4):
            x = xreg(c, j) + r
            s('v_dot2c_f32_bf16 v%d, s%d, v%d' % (V_ST + (r & 1), S_ONES, x))
            s('v_dot2c_f32_bf16 v%d, v%d, v%d' % (V_ST + 2 + (r & 1), x, x))


def stats_pack(s):
    T = V_T
    s('v_add_f32 v%d, v%d, v%d' % (T, V_ST, V_ST + 1))
    s('v_add_f32 v%d, v%d, v%d' % (T + 2, V_ST, V_ST + 1))
    s('v_add_f32 v%d, v%d, v%d' % (T + 1, V_ST + 2, V_ST + 3))
    s('v_add_f32 v%d, v%d, v%d' % (T + 3, V_ST + 2, V_ST + 3))
    s('v_permlane32_swap_b32 v%d, v%d' % (T, T + 2))
    s('v_permlane32_swap_b32 v%d, v%d' % (T + 1, T + 3))
    s('v_add_f32 v%d, v%d, v%d' % (T, T, T + 2))
    s('v_add_f32 v%d, v%d, v%d' % (T + 1, T + 1, T + 3))
    s('v_mul_f32 v%d, %s, v%d' % (T, f32(1.0 / 448), T))
    s('v_mul_f32 v%d, %s, v%d' % (T + 1, f32(1.0 / 448), T + 1))
    s('v_fma_f32 v%d, -v%d, v%d, v%d' % (T + 1, T, T, T + 1))
    s('v_max_f32 v%d, 0, v%d' % (T + 1, T + 1))
    s('v_cvt_pk_bf16_f32 v%d, v%d, v%d' % (T + 1, T + 1, T + 1))
    s('v_lshlrev_b32 v%d, 16, v%d' % (T + 1, T + 1))
    s('v_add_f32 v%d, %s, v%d' % (T + 1, f32(1e-5), T + 1))
    s('v_cvt_pk_bf16_f32 v%d, v%d, v%d' % (T + 1, T + 1, T + 1))
    s('v_lshlrev_b32 v%d, 16, v%d' % (T + 1, T + 1))
    s('v_sqrt_f32 v%d, v%d' % (T + 1, T + 1))
    s('v_cvt_pk_bf16_f32 v%d, -v%d, v%d' % (T, T, T + 1))
    s('ds_write_b32 v%d, v%d' % (V_EXR, T))


def stats_final(kind, read=True):
    s, T = Seg(), V_T
    if read:
        s('ds_read_b32 v%d, v%d' % (T, V_EXR), 'st')
        s.wait(lgkm='st')
    s('v_and_b32 v%d, 0xffff0000, v%d' % (V_ST + 2, T))
    s('v_rcp_f32 v%d, v%d' % (V_ST + 3, V_ST + 2))
    s('v_cndmask_b32 v%d, v%d, 0, %s' % (T, T, sr(S_HI, 2)))
    s('v_and_b32 v%d, 0xffff, v%d' % (T + 1, T))
    s('v_lshl_or_b32 v%d, v%d, 16, v%d' % (V_EXR, T, T + 1))
    s('v_lshrrev_b32 v%d, 16, v%d' % (V_EXR + 1, T))
    if kind == 'gelu':
        s('v_mul_f32 v%d, %s, v%d' % (V_ST, f32(GC1), V_ST + 3))
        s('v_mul_f32 v%d, v%d, v%d' % (T, V_ST + 3, V_ST + 3))
        s('v_mul_f32 v%d, %s, v%d' % (V_ST + 1, f32(GC3), V_ST + 3))
        s('v_mul_f32 v%d, v%d, v%d' % (V_ST + 1, T, V_ST + 1))
    else:
        s('v_mul_f32 v%d, s%d, v%d' % (V_ST, S_L2E, V_ST + 3))
    return s


def ext_parts(acc, off, exw, swap, bias=None, T=V_T + 8):
    r, b, m = Seg(), Seg(), Seg()
    tag = ('cs', id(r))
    r('ds_read_b128 %s, v%d offset:%d' % (vr(T, 4), V_CSR, off), tag)
    b.wait(lgkm=[tag])
    b('v_add_f32 v%d, v%d, v%d' % (T, T, T + 1))
    b('v_add_f32 v%d, v%d, v%d' % (T + 2, T + 2, T + 3))
    b('v_add_f32 v%d, v%d, v%d' % (T, T, T + 2))
    b('v_cvt_pk_bf16_f32 v%d, v%d, v%d' % (T + 1, T, T))
    b('v_lshlrev_b32 v%d, 16, v%d' % (T + 1, T + 1))
    b('v_sub_f32 v%d, v%d, v%d' % (T + 1, T, T + 1))
    b('v_cvt_pk_bf16_f32 v%d, v%d, v%d' % (exw, T, T + 1))
    if bias is not None:
        r('v_mov_b32 v%d, v%d' % (exw + 1, bias))
    x, y = (V_EXR, exw) if swap else (exw, V_EXR)
    m('v_mfma_f32_32x32x8_bf16 %s, %s, %s, %s' % (vr(acc, 16), vr(x, 2), vr(y, 2), vr(acc, 16)))
    KEEP.append(r)
    return r, b, m


KEEP = []


def head(parts, stats=None):
    st = [i for i in stats if i is not GAP] if stats is not None else []
    out = st[:1]
    for p in parts:
        out += p[0]
    out += st[1:]
    for p in parts:
        out += p[1]
    for p in parts:
        out += p[2]
    return out


def epi_rowlane(kind, acc, tag, handoff=False, keep=None):
    s, T = Seg(), V_T
    for grp in range(4):
        a = [acc + 4 * grp + e for e in range(4)]
        t = [T + e for e in range(4)]
        if kind == 'gelu':
            for e in range(4):
                s('v_mul_f32 v%d, v%d, v%d' % (t[e], a[e], a[e]))
            for e in range(4):
                s('v_fma_f32 v%d, v%d, v%d, v%d' % (t[e], t[e], V_ST + 1, V_ST))
            for e in range(4):
                s('v_mul_f32 v%d, v%d, v%d' % (t[e], a[e], t[e]))
            for e in range(4):
                s('v_exp_f32 v%d, v%d' % (t[e], t[e]))
            for e in range(4):
                s('v_fma_f32 v%d, v%d, v%d, v%d' % (t[e], t[e], V_ST + 2, V_ST + 2))
            for e in range(4):
                s('v_rcp_f32 v%d, v%d' % (t[e], t[e]))
            for e in range(4):
                s('v_mul_f32 v%d, v%d, v%d' % (a[e], a[e], t[e]))
        else:
            for e in range(4):
                s('v_mul_f32 v%d, v%d, v%d' % (t[e], a[e], V_ST))
            for e in range(4):
                s('v_exp_f32_e64 v%d, v%d clamp' % (t[e], t[e]))
            for e in range(4):
                s('v_fma_f32 v%d, v%d, v%d, s%d' % (a[e], a[e], V_ST + 3, S_EPS))
            for e in range(4):
                s('v_max_f32 v%d, s%d, v%d' % (a[e], S_EPS, a[e]))
            for e in range(4):
                s('v_add_f32 v%d, v%d, v%d' % (a[e], a[e], t[e]))
        p = acc + 8 * (grp >> 1) + 2 * (grp & 1) if keep is None else keep + 2 * grp
        s('v_cvt_pk_bf16_f32 v%d, v%d, v%d' % (p, a[0], a[1]))
        s('v_cvt_pk_bf16_f32 v%d, v%d, v%d' % (p + 1, a[2], a[3]))
        if kind == 'phi' and grp == 3:
            s('v_cndmask_b32 v%d, v%d, 0, %s' % (p, p, sr(S_HI, 2)))
            s('v_cndmask_b32 v%d, v%d, 0, %s' % (p + 1, p + 1, sr(S_HI, 2)))
        if grp & 1 and keep is None:
            f = grp >> 1
            if handoff:
                s('ds_write_b128 v%d, %s offset:%d' % (V_RA, vr(acc + 8 * f, 4), f * 1024))
                continue
            s('buffer_store_dwordx4 %s, v%d, %s, s%d offen offset:%d sc1' % (vr(acc + 8 * f, 4), V_L16, sr(SWS, 4), S_H, f * 1024), tag)
    return s


def zpad(s):
    T = V_T
    s('v_cmp_eq_u32 vcc, 7, v%d' % (T + 14))
    s('v_mov_b32 v%d, 0x%x' % (T + 5, OPT['zpad'] << 13))
    s('v_cndmask_b32 v%d, v%d, v%d, vcc' % (T + 14, T + 14, T + 5))


def lc_role(ffn):
    kind = 'gelu' if ffn else 'phi'
    RING[0] = 14
    nm = 'f' if ffn else 'q'
    s, T = Seg(nm), V_T
    if not ffn:
        s('L_q:')
    if OPT['twat'] < -1:
        touch_w(s, ffn)
    if OPT['zpad'] and not ffn:
        zpad(s)
    s('s_mul_i32 s%d, s%d, %d' % (S_T1, S_G, 64 if ffn else 56))
    s('v_lshrrev_b32 v%d, 1, v%d' % (T + 6, T + 10))
    s('v_lshl_add_u32 v%d, v%d, 3, s%d' % (T + 5, T + 14, S_T1))
    s('v_lshlrev_b32 v%d, 6, v%d' % (T + 6, T + 6))
    s('v_xor_b32 v%d, v%d, v%d' % (T + 5, T + 5, T + 6))
    s('v_lshl_add_u32 v%d, v%d, 7, v%d' % (V_WA, T + 12, T + 5))
    for j in range(1, 4):
        s('v_xor_b32 v%d, %d, v%d' % (V_WA + j, j << 11, V_WA))
    srd(s, SWS, WS_BYTES)
    srd(s, SDBG, 256)
    s('s_waitcnt lgkmcnt(0)')
    if not ffn:
        s('s_lshl1_add_u32 s%d, s%d, s%d' % (S_T2, S_RB, S_HALF))
        s('s_mul_i32 s%d, s%d, 6' % (S_T1, S_T2))
        s('s_add_u32 s%d, s%d, s%d' % (S_T1, S_T1, S_WV))
        s('s_lshl_b32 s%d, s%d, 10' % (S_T1, S_T1))
        s('s_add_u32 s%d, s%d, 0x%x' % (S_T1, S_T1, KV_OFF))
        s('s_lshl_b32 s%d, s%d, 10' % (S_LAST, S_T2))
        s('s_add_u32 s%d, s%d, 0x%x' % (S_LAST, S_LAST, ST_OFF))
        s('s_cmp_lt_u32 s%d, 6' % S_WV)
        s('s_cselect_b32 s%d, s%d, 0x%x' % (S_T1, S_T1, OOB))
        s('s_cmp_eq_u32 s%d, 6' % S_WV)
        s('s_cselect_b32 s%d, s%d, s%d' % (S_T1, S_LAST, S_T1))
        s('buffer_store_dwordx4 %s, v%d, %s, s%d offen sc1' % (vr(V_ST, 4), V_L16, sr(SWS, 4), S_T1), 'zero')
    s('s_cmp_eq_u32 s%d, 1' % S_G)
    s('s_cbranch_scc1 L_%sb' % nm)
    UA, UB = [([(), (5,), (7,)], [(0, 1), (2,), (3, 4, 6)]), ([(), (5, 6), ()], [(0, 1), (2,), (3, 4, 7)]),
              ([(0,), (5, 6), (7,)], [(1,), (2,), (3, 4)])][OPT['ub']]
    LCS = [{3: ([], [0]), 4: ([], [1]), 5: ([], [2]), 6: ([3], []), 7: ([], [4, 5, 6])},
           {3: ([1], [0]), 4: ([3], [2]), 7: ([], [4, 5, 6])},
           {3: ([1], [0]), 4: ([], [2]), 7: ([3], [4, 5, 6])},
           {3: ([], [0]), 4: ([], [1]), 7: ([2, 3], [4, 5, 6])},
           {3: ([2], [0, 1]), 4: ([4], [3]), 7: ([], [5, 6])},
           {3: ([2], [0, 1]), 4: ([5], [3, 4]), 7: ([], [6])}][OPT['lcs']]
    step = 128 if ffn else 112
    region = [R0, R1, R0, R1]
    acc = V_ACC

    def stream(g):
        z = Seg(nm + 'ab'[g])
        if g:
            z('L_%sb:' % nm)
        xa = Rebase([V_XA + j for j in range(4)], 0, 0)
        wa = Rebase([V_WA + j for j in range(4)], 0, 512)

        def triple(t, c):
            dma_x(t, c, XSLOT[c], ('t', c))
            if g:
                dma_w(t, S_M0W, c, R0 + c * 8192, ('t', c))

        def lc(t, q, c):
            if ffn and q == 3:
                t('s_add_u32 m0, s%d, %d' % (S_M0W, R1 + c * 4096))
                t('buffer_load_dwordx4 v%d, %s, s%d offen lds' % (V_W3, sr(SW, 4), S_KW + c), ('l', q, c))
                return
            dma_w(t, S_M0W, c, region[q] + c * 8192, ('l', q, c))

        def wread(t, q, c, j):
            half = ffn and q == 3
            o = c * 4096 if half else wa.off(t, region[q] + c * 8192)
            for u in range(2):
                t('ds_read_b64_tr_b16 %s, v%d offset:%d' % (vr(V_WF + 4 * j + 2 * u, 2), V_WA + j, o + u * (256 if half else 512)), ('w', q, c, j))

        def xread(t, c, j):
            o = xa.off(t, XSLOT[c])
            t('ds_read_b128 %s, v%d offset:%d' % (vr(xreg(c, j), 4), V_XA + j, o), ('x', c, j))

        def kstep(q, c, j):
            t = Seg()
            t.wait(lgkm=[('w', q, c, j | OPT['wj'])])
            first = c == 0 and j == 0
            t('v_mfma_f32_32x32x16_bf16 %s, %s, %s, %s' % (vr(acc, 16), vr(V_WF + 4 * j, 4), vr(xreg(c, j), 4), '0' if first else vr(acc, 16)))
            if j == 0:
                t('v_mfma_f32_16x16x32_bf16 %s, %s, %s, %s' % (vr(V_CS, 4), vr(V_SEL, 4), vr(V_WF + 4 * j, 4), '0' if first else vr(V_CS, 4)))
            if c < 6:
                wread(t, q, c + 1, j)
            return t

        def preread(t, q):
            for j in range(4):
                wread(t, q, 0, j)

        carry, ecarry = [], []

        def gemm(t, q, fill=(), extra=None):
            t('s_setprio 1')
            t.extend(ecarry)
            ecarry[:] = []
            slots = [kstep(q, c, j) for c in range(7) for j in range(4)]
            for k, gi in enumerate(groups(extra) if extra is not None else []):
                slots[min(1 + OPT['gsp'] * k, 24)].extend(gi)
            n = 28 - OPT['carry']
            slots[min(26, n - 1)]('ds_write_b32 v%d, v%d' % (V_CSW, V_CS))
            for z in slots[:n]:
                t.extend(z)
            carry[:] = [i for z in slots[n:] for i in z]

        def next_col(t, last=False):
            if last and ffn:
                t('s_lshr_b32 s%d, s%d, 1' % (S_M0W, S_M0W))
                return
            for r in (V_W, V_WB):
                t('v_add_u32 v%d, %d, v%d' % (r, step, r))

        def epi(t, q, extra=None, pre=None, handoff=False, hi=0.85, keep=False, nxt=None, lo=0.03, early=2):
            grp = groups(extra) if extra is not None else []
            t('s_setprio 2')
            parts = ext_parts(acc, 0, V_EXW, False, V_B1 + q if ffn else None)
            parts[0].extend(carry)
            carry[:] = []
            t.extend(head([parts], pre))
            if not keep:
                t('s_setprio %d' % OPT['eprio'])
            stamp(t, 'x%d' % (2 * q + g + 1))
            for gi in grp[:early]:
                t.extend(gi)
            body = mix(epi_rowlane(kind, acc, ('h', q), handoff, None if ffn else V_PQ + 8 * q), grp[early:], lo, hi)
            if ffn:
                r = Seg()
                touch_fl2(r, 2 * q + g + 1, V_XA + 1)
                body = mix(body, [list(r)], OPT['tfp'] / 100, 1.0)
            if nxt is not None:
                r = Seg()
                if ffn and not g and nxt == 3:
                    for k in range(4):
                        r('v_xor_b32 v%d, %d, v%d' % (V_WA + k, k << 10, V_WA3))
                preread(r, nxt)
                body = mix(body, [[i] for i in r], 0.45, 0.8) if OPT['pmix'] else body + list(r)
            body = list(body)
            if ffn:
                body.append(Ins('s_add_u32 s%d, s%d, 4096' % (S_H, S_H)))
            n = len(body) - (OPT['ecarry'] if ffn and nxt is not None else 0)
            t.extend(body[:n])
            ecarry[:] = body[n:]

        def duty(q, chunks, units=(), step_col=True):
            d = Seg()
            if step_col:
                next_col(d, q == 3)
            for k in chunks:
                lc(d, q, k)
            if ffn:
                for u in units:
                    dma_b2(d, u)
            return d

        late = deferred(False)
        if ffn:
            p2_setup(late)
        late('s_lshl2_add_u32 s%d, s%d, s%d' % (S_H, S_RB, S_RW))
        late('s_mul_i32 s%d, s%d, %d' % (S_H, S_H, ACT_G))
        late('s_add_u32 s%d, s%d, %d' % (S_H, S_H, g * 2048 if ffn else g * 7168 + 112 * 1024))
        late('s_mul_i32 s%d, s%d, %d' % (S_T1, S_T0 if ffn else S_HALF, 32 if ffn else 14336))
        late('s_add_u32 s%d, s%d, s%d' % (S_H, S_H, S_T1))
        if ffn:
            late('s_add_u32 s%d, s%d, %d' % (S_T1, S_M0W, HND))
            late('v_add_u32 v%d, s%d, v%d' % (V_RA, S_T1, V_L16))
            late('s_mul_i32 s%d, s%d, -7' % (S_LAST, S_PEND))
            late('s_add_u32 s%d, s%d, s%d' % (S_LAST, S_LAST, S_T0))
            late('s_add_u32 s%d, s%d, 384' % (S_LAST, S_LAST))
            late('v_lshrrev_b32 v%d, 2, v%d' % (T + 5, T))
            late('v_lshl_add_u32 v%d, s%d, 4, v%d' % (T + 5, S_RW, T + 5))
            late('v_mul_u32_u24 v%d, %d, v%d' % (T + 5, W1S, T + 5))
            late('v_lshl_add_u32 v%d, v%d, 4, s%d' % (V_W3, T + 11, S_LAST))
            late('v_add_u32 v%d, v%d, v%d' % (V_W3, V_W3, T + 5))
            if not g:
                late('v_lshl_add_u32 v%d, v%d, 3, v%d' % (T + 5, T + 12, T + 14))
                late('v_lshlrev_b32 v%d, 3, v%d' % (T + 5, T + 5))
                late('v_add_u32 v%d, %d, v%d' % (V_WA3, R1, T + 5))
            srd(late, SB1, 1792 * 2)
            late('v_lshlrev_b32 v%d, 1, v%d' % (T + 5, T + 8))
            for q in range(3):
                late('buffer_load_ushort v%d, v%d, %s, s%d offen offset:%d' % (V_B1 + q, T + 5, sr(SB1, 4), S_T0, q * 128 + g * 64), 'b1')
            if not g:
                late('buffer_load_ushort v%d, v%d, %s, s%d offen' % (V_B1 + 3, T + 5, sr(SB1, 4), S_LAST), 'b1')
        if g:
            late('s_mov_b32 s%d, 0x%x' % (S_FL, OOB))
        else:
            late('s_lshr_b32 s%d, s%d, 1' % (S_T1, S_P) if ffn else 's_lshl_b32 s%d, s%d, 1' % (S_T1, S_HALF))
            late('s_lshl2_add_u32 s%d, s%d, s%d' % (S_T1, S_RB, S_T1))
            late('s_mul_i32 s%d, s%d, %d' % (S_FL, S_T1, FL_G))
            late('s_lshl1_add_u32 s%d, s%d, s%d' % (S_FL, S_PEND, S_FL))
            late('s_lshl_b32 s%d, s%d, 28' % (S_T1, S_RW))
            late('s_add_u32 s%d, s%d, s%d' % (S_FL, S_FL, S_T1))
            late('s_add_u32 s%d, s%d, 0x%x' % (S_FL, S_FL, FL_OFF))
        NL = OPT['nlate']

        def some(k):
            return late[len(late) * k // NL:len(late) * (k + 1) // NL] if k < NL else []

        triple(z, 1)
        estamp(z, 't1')
        z.extend(some(0))
        if OPT['tat'] < -1:
            touch_w2(z)
        z('s_barrier')
        if g:
            z('s_setprio 1')
        triple(z, 2)
        for c in range(-1, 7):
            if c < 6:
                barrier(z, ['t0', 'zero'] if c < 0 else [('t', c + 1)], 's%d' % c if c >= 0 else 'pre')
            if c < 0:
                stamp(z, 1)
                if not ffn and not g:
                    z('s_lshl_b32 s%d, s%d, 28' % (S_T2, S_WV))
                    z('buffer_atomic_add v%d, v%d, %s, s%d offen sc1' % (V_ONE, V_FLO, sr(SDBG, 4), S_T2))
            d = Seg()
            if c < 3:
                triple(d, c + 4)
            if c == OPT['tat']:
                touch_w2(d)
            if c == 3:
                next_col(d)
            for k in LCS.get(c, ([], []))[g]:
                lc(d, 1, k)
            if c == 4 and ffn:
                b2b_setup(d)
                if not g and OPT['touch'] & 128 and OPT['tfat'] == 0:
                    touch_ffn(d, V_T + 2)
            if c == OPT['twat']:
                if ffn or not OPT['touch'] & 64:
                    touch_w(d, ffn)
                else:
                    touch_qv(d)
            if g:
                if c == 6:
                    break
                for j in range(4):
                    xread(z, c + 1, j)
                if c < 5:
                    z.extend(mix(some(c + 2), groups(d)))
                if c == 3:
                    preread(z, 0)
                dots(z, c + 1)
                if c == 5:
                    if OPT['s6']:
                        z('s_barrier')
                    stats_pack(z)
                    if not ffn:
                        z('buffer_store_dword v%d, v%d, %s, s%d offen sc1' % (T, V_EXR + 1, sr(SWS, 4), S_LAST))
                    z.extend(d)
                    z.extend(stats_final(kind, False))
            else:
                if c == 6 and OPT['s6']:
                    z('s_barrier')
                for j in range(4):
                    if c == 6:
                        z.wait(lgkm=[('x', c, j)])
                    if c >= 0:
                        z.extend(kstep(0, c, j))
                    else:
                        wread(z, 0, 0, j)
                    if c < 6:
                        xread(z, c + 1, j)
                z.extend(mix(some(c + 2), groups(d)))
                if c == 6:
                    z.insert(len(z) - (1 if len(d) else 0), Ins('ds_write_b32 v%d, v%d' % (V_CSW, V_CS)))
        if g:
            barrier(z, ['b1'] if OPT['npre'] else [('l', 1, 0), 'b1'], 'e0')
        else:
            barrier(z, 'b1', 'e0')
        stamp(z, 2)
        if not g:
            d = Seg()
            d.extend(duty(1, LCS[7][0], (), False))
            f0_load(d)
            if ffn and OPT['touch'] & 128 and OPT['tfat'] == 1:
                touch_ffn(d, V_XA)
            NE = OPT['ne']
            epi(z, 0, d, pre=stats_final(kind), nxt=None if OPT['npre'] else 1, **(dict(early=1, lo=0.6) if OPT['tfat'] == 1 else dict(hi=0.4)))
            barrier(z, [('l', 1, k) for k in range(7)], 'e1')
            stamp(z, 'h1')
            if OPT['npre']:
                z('s_setprio 3')
                preread(z, 1)
            gemm(z, 1, extra=duty(2, range(NE, 5)))
            f0_check(z)
            barrier(z, [('h', 0)], 'e2')
            stamp(z, 'h2')
            d = duty(0, (), UA[0], False)
            if ffn:
                d.extend(res_load(RES_F))
            epi(z, 1, d, nxt=2, lo=0.5, early=2 * len(UA[0]))
            barrier(z, [('l', 2, 4)], 'e3')
            stamp(z, 3)
            if ffn:
                flag(z, 0)
            gemm(z, 2, extra=duty(3, range(NE, 5), UA[1]))
            barrier(z, [('h', 1)], 'e4')
            stamp(z, 'h4')
            epi(z, 2, duty(0, (), UA[2], False), nxt=3)
            barrier(z, [('l', 3, 4)], 'e5')
            stamp(z, 4)
            if ffn:
                flag(z, 256)
            gemm(z, 3, extra=duty(0, (), (11, 12, 13), False))
            barrier(z, [('b', u) for u in UA[1] + UA[2]], 'e6')
            stamp(z, 5)
            if ffn:
                z('ds_read_b128 %s, v%d' % (vr(V_PQ, 4), V_RA), 'hnd')
                z('ds_read_b128 %s, v%d offset:1024' % (vr(V_PQ + 4, 4), V_RA), 'hnd')
                z('s_sub_u32 s%d, s%d, 2048' % (S_T0, S_H))
                z('s_cmp_eq_u32 s%d, 0' % S_PEND)
                z('s_cselect_b32 s%d, 0, %d' % (S_T1, 3 * 4096 + 2048))
                z('s_sub_u32 s%d, s%d, s%d' % (S_H, S_H, S_T1))
                d = Seg()
                d.wait(lgkm='hnd')
                for f in range(2):
                    d('buffer_store_dwordx4 %s, v%d, %s, s%d offen offset:%d sc1' % (vr(V_PQ + 4 * f, 4), V_L16, sr(SWS, 4), S_T0, f * 1024), 'h5')
                epi(z, 3, d, keep=True)
                z('s_lshl1_add_u32 s%d, s%d, s%d' % (S_T0, S_RB, S_HALF))
                z('s_lshl_b32 s%d, s%d, 9' % (S_T0, S_T0))
                z('s_add_u32 s%d, s%d, s%d' % (S_T0, S_T0, S_ROLE))
                z('s_lshl_b32 s%d, s%d, 28' % (S_T1, S_RW))
                z('s_lshl2_add_u32 s%d, s%d, s%d' % (S_T0, S_T0, S_T1))
                z('s_add_u32 s%d, s%d, 0x%x' % (S_T0, S_T0, FO_OFF + 8))
                z('v_cmp_gt_u32 vcc, 0x100, v%d' % V_L16)
                z('v_lshlrev_b32 v%d, 3, v%d' % (V_PL, V_L16))
                z('v_cndmask_b32 v%d, v%d, v%d, vcc' % (V_PL, V_FLO, V_PL))
                z.wait(vm=[('h', 3)])
                sync_arrive(z, 0)
                sync_wait(z, 0, 4, T)
                z('buffer_store_dword v%d, v%d, %s, s%d offen sc1' % (V_ONE, V_PL, sr(SWS, 4), S_T0))
                z.extend(res_unpack(RES_F))
                stamp(z, 6)
                z('s_branch L_p2a')
            else:
                d = Seg()
                touch_wo(d, V_XA)
                epi(z, 3, d)
                q_fetch(z)
                z('s_branch L_qo')
            return z
        d = duty(1, LCS[7][1], (), False)
        if ffn:
            d.extend(res_load(RES_F))
        gemm(z, 0, extra=d)
        barrier(z, [('l', 1, 6)], 'e1')
        stamp(z, 'h1')
        for q in (1, 2):
            d = duty(q + 1, range(OPT['ne']), UB[1] if q == 2 else ())
            if ffn and OPT['touch'] & 128 and 2 * q == OPT['tfat']:
                d('s_nop 0')
                touch_ffn(d, V_XA)
            epi(z, q - 1, d, nxt=q, lo=0.2)
            barrier(z, [('l', q + 1, 0)], 'e%d' % (2 * q))
            stamp(z, 'h%d' % (2 * q))
            d = duty(q + 1, (5, 6), (), False)
            if ffn and q == 2:
                poll_early(d)
            d.extend(duty(0, (), UB[2 * q - 2], False))
            gemm(z, q, extra=d)
            barrier(z, [('l', q + 1, 6), ('h', q - 1)], 'e%d' % (2 * q + 1))
            stamp(z, q + 2)
        if ffn:
            d = Seg()
            a_setup(d)
            stage_check(d, 0)
            for u in range(OPT['na']):
                aload(d, u)
            for u in range(8, 8 + OPT['nb']):
                dma_b2(d, u)
            epi(z, 2, d, handoff=True, hi=1.0)
            barrier(z, None, 'e6')
            z('s_branch L_p2f')
        else:
            d = Seg()
            touch_wo(d, V_XA)
            epi(z, 2, d, nxt=3)
            barrier(z)
            stamp(z, 5)
            gemm(z, 3)
            barrier(z)
            epi(z, 3)
            stamp(z, 6)
        return z

    return s, stream(0), stream(1)


def q_fetch(s):
    T, RAW = V_T, V_X
    s('s_lshl2_add_u32 s%d, s%d, s%d' % (S_T0, S_HALF, S_RW))
    s('s_lshl_b32 s%d, s%d, 8' % (S_PL, S_T0))
    s('s_add_u32 s%d, s%d, 0x%x' % (S_PL, S_PL, FKV_OFF))
    s('s_lshl_b32 s%d, s%d, 13' % (S_T0, S_T0))
    s('s_add_u32 s%d, s%d, 0x%x' % (S_T0, S_T0, KV_OFF))
    s('s_add_u32 s%d, s%d, 4096' % (S_T3, S_T0))
    s('v_cmp_gt_u32 vcc, 32, v%d' % V_L16)
    s('v_lshlrev_b32 v%d, 3, v%d' % (V_PL, V_L16))
    s('v_cndmask_b32 v%d, v%d, v%d, vcc' % (V_PL, V_FLO, V_PL))
    s('v_lshrrev_b32 v%d, 2, v%d' % (T, V_L16))
    s('s_lshl1_add_u32 s%d, s%d, %d' % (S_T1, S_M0W, R2))
    s('v_add_u32 v%d, s%d, v%d' % (T + 1, S_T1, V_L16))
    s('s_barrier')
    stamp(s, 6)
    j = nspin[0]
    nspin[0] += 1
    s('L_qs%d:' % j)
    s('v_mov_b32 v%d, 0' % V_POLL)
    s('buffer_atomic_add v%d, v%d, %s, s%d offen sc0 sc1' % (V_POLL, V_PL, sr(SWS, 4), S_PL))
    s('s_add_u32 s%d, s%d, 1' % (S_SPIN, S_SPIN))
    s('s_cmp_gt_u32 s%d, 0x%x' % (S_SPIN, SPIN_LIMIT))
    s.wait(vm='all')
    s('s_cbranch_scc1 L_qz%d' % j)
    s('v_cmp_le_u32 vcc, 16, v%d' % V_POLL)
    s('s_andn2_b32 s%d, 3, vcc_lo' % S_T2)
    s('s_cbranch_scc1 L_qs%d' % j)
    s('L_qz%d:' % j)
    stamp(s, 7)
    if OPT['qsplit']:
        return
    for r in range(32):
        s('buffer_load_dword v%d, v%d, %s, s%d offen offset:%d sc1' % (RAW + r, T, sr(SWS, 4), S_T3 if r >= 16 else S_T0, (r & 15) * 256), ('kv', r >> 3))
    for f in range(4):
        s.wait(vm=[('kv', f)])
        for k in range(4):
            s('v_cvt_pk_bf16_f32 v%d, v%d, v%d' % (RAW + 8 * f + k, RAW + 8 * f + 2 * k, RAW + 8 * f + 2 * k + 1))
        s('ds_write_b128 v%d, %s offset:%d' % (T + 1, vr(RAW + 8 * f, 4), f * 1024))


def q_out():
    s, T = Seg('qo'), V_T
    NUM, KF, RAW = V_X, V_X + 64, V_X + 96
    s('L_qo:')
    s('s_lshl_b32 s%d, s%d, 11' % (S_T1, S_G))
    s('s_add_u32 s%d, s%d, %d' % (S_T1, S_T1, R2))
    s('v_add_u32 v%d, s%d, v%d' % (T + 2, S_T1, V_L16))
    if OPT['qsplit']:
        s('s_lshl3_add_u32 s%d, s%d, s%d' % (S_T0, S_HALF, S_WV))
        s('s_lshl_b32 s%d, s%d, 12' % (S_T0, S_T0))
        s('s_add_u32 s%d, s%d, 0x%x' % (S_T0, S_T0, KV_OFF))
        s('v_lshrrev_b32 v%d, 2, v%d' % (T, V_L16))
        s('s_add_u32 s%d, s%d, %d' % (S_T1, S_M0X, R2))
        s('v_add_u32 v%d, s%d, v%d' % (T + 1, S_T1, V_L16))
        s('s_barrier')
        for r in range(16):
            s('buffer_load_dword v%d, v%d, %s, s%d offen offset:%d sc1' % (RAW + r, T, sr(SWS, 4), S_T0, r * 256), ('kv', r >> 3))
        for f in range(2):
            s.wait(vm=[('kv', f)])
            for k in range(4):
                s('v_cvt_pk_bf16_f32 v%d, v%d, v%d' % (RAW + 8 * f + k, RAW + 8 * f + 2 * k, RAW + 8 * f + 2 * k + 1))
            s('ds_write_b128 v%d, %s offset:%d' % (T + 1, vr(RAW + 8 * f, 4), f * 1024))
    barrier(s)
    stamp(s, 8)
    for q in range(4):
        for f in range(2):
            s('ds_read_b128 %s, v%d offset:%d' % (vr(KF + 8 * q + 4 * f, 4), T + 2, q * 4096 + f * 1024), ('kf', q, f))
    def num(q):
        z = Seg()
        for f in range(2):
            z.wait(lgkm=[('kf', q, f)])
            z('v_mfma_f32_32x32x16_bf16 %s, %s, %s, %s' % (vr(NUM + 16 * q, 16), vr(KF + 8 * q + 4 * f, 4), vr(V_PQ + 8 * q + 4 * f, 4), vr(NUM + 16 * q, 16) if f else '0'))
        return z

    s.extend(num(0) + num(1))
    O, done = V_X + 96, 0
    s('s_add_u32 s%d, s%d, 4096' % (S_T0, S_H))
    for q in range(4):
        n, p = NUM + 16 * q, q >> 1
        dst = [O + 14 * p + k for k in range(8)] if q % 2 == 0 else [O + 14 * p + 8 + k for k in range(6)] + [T + 6, T + 7]
        s('v_add_f32 v%d, s%d, v%d' % (T + 4, S_EPS, n + 12))
        s('v_add_f32 v%d, s%d, v%d' % (T + 5, S_EPS, n + 12))
        s('v_permlane32_swap_b32 v%d, v%d' % (T + 4, T + 5))
        s('v_rcp_f32 v%d, v%d' % (T + 5, T + 5))
        for f in ((0, 1) if q % 2 == 0 else (1, 0)):
            for k in range(8 * f, 8 * f + 8, 2):
                s('v_pk_mul_f32 %s, %s, %s op_sel:[0,1] op_sel_hi:[1,1]' % (vr(n + k, 2), vr(n + k, 2), vr(T + 4, 2)))
            for k in (2, 3, 0, 1):
                s('v_cvt_pk_bf16_f32 v%d, v%d, v%d' % (dst[4 * f + k], n + 8 * f + 2 * k, n + 8 * f + 2 * k + 1))
            if q % 2 and f:
                for k in range(2):
                    s('v_permlane32_swap_b32 v%d, v%d' % (O + 14 * p + 6 + k, T + 6 + k))
            if q < 2 and f != q:
                s.extend(num(q + 2))
            ready = {(0, 0): 1, (1, 1): 2, (1, 0): 3, (2, 0): 4, (2, 1): 5, (3, 0): 7}.get((q, f), done)
            for v in range(done, ready):
                s('buffer_store_dwordx4 %s, v%d, %s, s%d offen offset:%d sc1' % (vr(O + 4 * v, 4), V_L16, sr(SWS, 4), S_T0 if v >= 4 else S_H, (v & 3) * 1024))
            done = ready
    stamp(s, 9)
    if OPT['opriv']:
        s('s_lshl1_add_u32 s%d, s%d, s%d' % (S_T0, S_RB, S_HALF))
        s('s_lshl_b32 s%d, s%d, 11' % (S_T0, S_T0))
        s('s_lshl_b32 s%d, s%d, 28' % (S_T1, S_WV))
        s('s_add_u32 s%d, s%d, s%d' % (S_T0, S_T0, S_T1))
        s('s_add_u32 s%d, s%d, 0x%x' % (S_T0, S_T0, FO_OFF))
        s('v_cmp_gt_u32 vcc, 0x100, v%d' % V_L16)
        s('v_lshlrev_b32 v%d, 3, v%d' % (T, V_L16))
        s('v_cndmask_b32 v%d, v%d, v%d, vcc' % (T, V_FLO, T))
        barrier(s, 'all')
        s('buffer_store_dword v%d, v%d, %s, s%d offen sc1' % (V_ONE, T, sr(SWS, 4), S_T0))
    else:
        barrier(s, 'all')
        flag(s, 768)
        flag(s, 768 + FL_G)
    s('s_branch L_fin')
    return s


def kv_role():
    s, T = Seg('kv'), V_T
    RING[0] = 11
    s('L_kv:')
    if OPT['twat'] < -1:
        touch_w(s, False, V_EXW)
    s('s_mul_i32 s%d, s%d, 3' % (S_P, S_HALF))
    s('s_add_u32 s%d, s%d, s%d' % (S_P, S_P, S_ROLE))
    s('s_sub_u32 s%d, s%d, 4' % (S_P, S_P))

    def item(t, n):
        if n >= 14:
            if n == 14:
                t('v_add_u32 v%d, %d, v%d' % (V_W, XS, V_W))
                t('v_add_u32 v%d, %d, v%d' % (V_WB, XS, V_WB))
            dma_w(t, S_M0X, n - 14, kv_slot(n), ('i', n))
        elif n & 1:
            dma_w(t, S_M0X, n >> 1, kv_slot(n), ('i', n))
        else:
            dma_x(t, n >> 1, kv_slot(n), ('i', n))

    s('s_lshl_b32 s%d, s%d, 2' % (S_T1, S_P))
    s('s_lshr_b32 s%d, 0xdb8630, s%d' % (S_LAST, S_T1))
    s('s_and_b32 s%d, s%d, 15' % (S_LAST, S_LAST))
    s('s_lshr_b32 s%d, 0x323233, s%d' % (S_PEND, S_T1))
    s('s_and_b32 s%d, s%d, 15' % (S_PEND, S_PEND))
    s('s_add_u32 s%d, s%d, s%d' % (S_T1, S_LAST, S_G))
    s('s_mul_i32 s%d, s%d, 56' % (S_T1, S_T1))
    s('s_lshl_b32 s%d, s%d, 7' % (S_T0, S_P))
    s('s_sub_u32 s%d, s%d, s%d' % (S_T1, S_T1, S_T0))
    s('s_add_u32 s%d, s%d, 1' % (S_T0, S_G))
    s('s_cmp_lt_u32 s%d, s%d' % (S_T0, S_PEND))
    s('s_cselect_b32 s%d, 56, 0' % S_T0)
    if OPT['zpad']:
        zpad(s)
    else:
        s('v_min_u32 v%d, 6, v%d' % (T + 14, T + 14))
    s('v_lshl_add_u32 v%d, v%d, 3, s%d' % (T + 5, T + 14, S_T1))
    s('v_lshlrev_b32 v%d, 6, v%d' % (T + 6, T + 10))
    for t in range(2):
        if t:
            s('v_add_u32 v%d, s%d, v%d' % (T + 5, S_T0, T + 5))
        s('v_xor_b32 v%d, v%d, v%d' % (T + 11, T + 5, T + 6))
        s('v_lshl_add_u32 v%d, v%d, 8, v%d' % (V_WA + 4 * t, T + 12, T + 11))
        for j in range(1, 4):
            s('v_xor_b32 v%d, %d, v%d' % (V_WA + 4 * t + j, j << 12, V_WA + 4 * t))
    srd(s, SWS, WS_BYTES)
    srd(s, SDBG, 256)
    item(s, 2)
    item(s, 3)
    estamp(s, 't1')
    s.extend(deferred(True))
    p2_setup(s)
    s('s_lshl1_add_u32 s%d, s%d, s%d' % (S_H, S_RB, S_HALF))
    s('s_lshl3_add_u32 s%d, s%d, s%d' % (S_H, S_H, S_RW))
    s('s_lshl_b32 s%d, s%d, 7' % (S_H, S_H))
    s('s_add_u32 s%d, s%d, 0x%x' % (S_H, S_H, ST_OFF))
    s('v_lshlrev_b32 v%d, 2, v%d' % (V_ST + 1, T + 8))
    s('s_lshl_b32 s%d, s%d, 7' % (S_T0, S_RW))
    s('s_add_u32 s%d, s%d, %d' % (S_T0, S_T0, M_R))
    s('v_lshl_add_u32 v%d, v%d, 4, s%d' % (V_RA, T + 9, S_T0))
    s('v_add_u32 v%d, s%d, v%d' % (V_ST + 2, S_T0, V_ST + 1))
    s('v_mov_b32 v%d, %d' % (T + 5, M_SY + 128))
    s('v_cndmask_b32 v%d, v%d, v%d, %s' % (V_ST + 3, V_RA, T + 5, sr(S_PAD, 2)))
    s('v_mov_b32 v%d, 0' % (V_EXR + 1))
    s('s_waitcnt lgkmcnt(0)')
    if OPT['tat'] < -1:
        touch_w2(s)
    if OPT['two']:
        s('s_lshl2_add_u32 s%d, s%d, s%d' % (S_T1, S_G, S_PEND))
        s('s_cmp_eq_u32 s%d, 6' % S_T1)
        s('s_cbranch_scc1 L_kc')
    s('s_cmp_eq_u32 s%d, 1' % S_G)
    s('s_cbranch_scc1 L_kb')

    def body(g, two=False):
        b = Seg('kc' if two else 'kb' if g else 'ka')
        if two:
            b('L_kc:')
        elif g:
            b('L_kb:')
        xa = Rebase([V_XA + j for j in range(4)], 0, 0)
        wa = [Rebase([V_WA + 4 * t + j for j in range(4)], 0, 1024) for t in range(2)]
        TS = [[0], []] if two else [[0, 1], [1]] if g else [[0], [0, 1]]
        PK1 = V_X + 48

        def witem(q, c):
            return 2 * c + 1 if q == 0 else 14 + c

        def wf(t, j):
            return (V_ACC + 48 if t != g else V_WF) + 4 * j

        def acc(q, t):
            return V_ACC + 16 * (q + t)

        def wread(z, q, c, j, t):
            o = wa[t].off(z, kv_slot(witem(q, c)))
            for u in range(2):
                z('ds_read_b64_tr_b16 %s, v%d offset:%d' % (vr(wf(t, j) + 2 * u, 2), V_WA + 4 * t + j, o + u * 1024), ('w', q, c, j, t))

        def xread(z, c, j):
            o = xa.off(z, kv_slot(2 * c))
            z('ds_read_b128 %s, v%d offset:%d' % (vr(xreg(c, j), 4), V_XA + j, o))

        def kstep(q, c, j):
            out = []
            first = c == 0 and j == 0
            for t in TS[q]:
                z = Seg()
                z.wait(lgkm=[('w', q, c, j, t), ('w', q, c, j, TS[q][-1]) if len(TS[q]) > 1 else ('w', q, c, j | 1, t)] if OPT['wj'] else [('w', q, c, j, t)])
                z('v_mfma_f32_32x32x16_bf16 %s, %s, %s, %s' % (vr(acc(q, t), 16), vr(xreg(c, j), 4), vr(wf(t, j), 4), '0' if first else vr(acc(q, t), 16)))
                if j == 0:
                    z('v_mfma_f32_16x16x32_bf16 %s, %s, %s, %s' % (vr(V_CS + 4 * t, 4), vr(V_SEL, 4), vr(wf(t, j), 4), '0' if first else vr(V_CS + 4 * t, 4)))
                if c < 6:
                    wread(z, q, c + 1, j, t)
                    if q == 0 and t == TS[q][-1]:
                        xread(z, c + 1, j)
                elif q == 0 and not g:
                    wread(z, 1, 0, j, 0)
                if c == 6 and j == 2 and t == TS[q][-1]:
                    for tt in TS[q]:
                        z('ds_write_b32 v%d, v%d offset:%d' % (V_CSW, V_CS + 4 * tt, q * 1536 + (g + tt) * 512))
                out.append(z)
            return out

        def ext(q, t, k):
            return ext_parts(acc(q, t), q * 1536 + (g + t) * 512, (V_EXW, V_EXW + 2, V_CS)[k], True, T=V_T + 4 + 4 * k)

        def rload(z, dst, key, addr=V_RA):
            for i in range(4):
                z('ds_read_b128 %s, v%d offset:%d' % (vr(dst + 4 * i, 4), addr, i * 32), key)

        def stat_load(z):
            z('buffer_load_dword v%d, v%d, %s, s%d offen sc1' % (V_ST, V_ST + 1, sr(SWS, 4), S_H), 'stat')

        def stat_use(z):
            z('v_and_b32 v%d, 0xffff, v%d' % (T, V_ST))
            z('v_lshl_or_b32 v%d, v%d, 16, v%d' % (T, V_ST, T))
            z('v_cndmask_b32 v%d, v%d, 0, %s' % (V_EXR, T, sr(S_HI, 2)))

        def phi_k(t, rb):
            e = Seg()
            for i in range(4):
                a = [acc(0, t) + 4 * i + k for k in range(4)]
                for k in range(4):
                    e('v_fma_f32 v%d, v%d, v%d, s%d' % (a[k], a[k], rb + 4 * i + k, S_EPS))
                for k in range(4):
                    e('v_mul_f32 v%d, s%d, v%d' % (T + k, S_L2E, a[k]))
                for k in range(4):
                    e('v_exp_f32_e64 v%d, v%d clamp' % (T + k, T + k))
                for k in range(4):
                    e('v_max_f32 v%d, s%d, v%d' % (a[k], S_EPS, a[k]))
                for k in range(4):
                    e('v_add_f32 v%d, v%d, v%d' % (a[k], a[k], T + k))
                e('v_cvt_pk_bf16_f32 v%d, v%d, v%d' % (acc(0, t) + 2 * i, a[0], a[1]))
                e('v_cvt_pk_bf16_f32 v%d, v%d, v%d' % (acc(0, t) + 2 * i + 1, a[2], a[3]))
            return e

        def hand_addr(z):
            z('s_mul_i32 s%d, s%d, 10240' % (S_T0, S_RW))
            z('s_add_u32 s%d, s%d, %d' % (S_T0, S_T0, R2 + 8192))
            z('v_add_u32 v%d, s%d, v%d' % (V_XA, S_T0, V_L16))

        def prod_setup(z, rb):
            rload(z, rb, 'r2', V_ST + 3)
            z('v_cndmask_b32 v%d, 0, 1.0, %s' % (V_XA + 1, sr(S_PAD, 2)))
            z('s_lshl_b32 s%d, s%d, 12' % (S_T0, S_RW))
            z('s_add_u32 s%d, s%d, %d' % (S_T0, S_T0, HND))
            z('v_add_u32 v%d, s%d, v%d' % (V_XA + 2, S_T0, V_L16))

        def kv_prod(z, t, pk, rb):
            z.wait(lgkm='r2')
            v, d = acc(1, t), V_X + 16 * t + 64 * g
            for f in range(2):
                for k in range(8 * f, 8 * f + 8):
                    z('v_fma_f32 v%d, v%d, v%d, v%d' % (v + k, v + k, rb + k, V_XA + 1))
                for k in range(4):
                    z('v_cvt_pk_bf16_f32 v%d, v%d, v%d' % (v + 8 * f + k, v + 8 * f + 2 * k, v + 8 * f + 2 * k + 1))
            z('s_setprio 2')
            for f in range(2):
                z('v_mfma_f32_32x32x16_bf16 %s, %s, %s, %s' % (vr(d, 16), vr(pk + 4 * f, 4), vr(v + 8 * f, 4), vr(d, 16) if f else '0'))

        def part_write(z, t):
            for i in range(4):
                z('ds_write_b128 v%d, %s offset:%d' % (V_XA + 2, vr(V_X + 16 * t + 64 * g + 4 * i, 4), (1, 0, 2)[g + t] * 16384 + i * 1024))

        if not g:
            b('s_setprio 1')
        for c in range(-1, 7):
            barrier(b, 't0' if c < 0 else [('i', 2 * c + 3 if c < 6 else 14)], 's%d' % c if c >= 0 else 'pre')
            if c < 0:
                stamp(b, 1)
            d = Seg()
            if c == min(OPT['tat'], 2):
                touch_w2(d)
            if g and c == 3:
                f0_load(d)
            if g and c == 5:
                f0_check(d)
            item(d, 2 * c + 6)
            if c == 4:
                b2b_setup(d)
            if c < 6:
                item(d, 2 * c + 7)
            if c == OPT['twat'] and not OPT['touch'] & 64:
                touch_w(d, False, V_EXW)
            if c == 6:
                if g:
                    stat_load(d)
                else:
                    for j in range(4):
                        wread(d, 1, 0, j, 1)
            if not g and c >= 0:
                b.extend(d)
            for j in range(4):
                if c >= 0:
                    for z in kstep(0, c, j):
                        b.extend(z)
                else:
                    for t in TS[0]:
                        wread(b, 0, 0, j, t)
                    xread(b, 0, j)
            if g or c < 0:
                b.extend(d)
        barrier(b, [('i', 16)], 's7')
        stamp(b, 2)

        if g:
            RB = V_ACC + 48
            parts = [ext(0, t, t) for t in TS[0]]
            for p in parts:
                b.extend(p[0])
            item(b, 19)
            for p in parts:
                b.extend(p[1])
            item(b, 20)
            touch_l2(b, 0, V_W)
            hand_addr(b)
            b.wait(vm='stat')
            spin_check(b, V_ST, V_ONE, V_ST + 1, SWS, 's%d' % S_H, 0xffffffff)
            stat_use(b)
            b('v_and_b32 v%d, 0xffff0000, v%d' % (T + 1, V_ST))
            b('v_rcp_f32 v%d, v%d' % (T + 1, T + 1))
            b('s_setprio 2')
            for p in parts:
                b.extend(p[2])
            b('s_setprio 0')
            b('ds_write_b32 v%d, v%d' % (V_ST + 2, T + 1))
            rload(b, RB, 'r')
            if OPT['tkat'] == 0:
                touch_kv(b)
            e = Seg()
            e.wait(lgkm='r')
            e.extend(phi_k(0, RB))
            for f in range(2):
                e('ds_write_b128 v%d, %s offset:%d' % (V_XA, vr(acc(0, 0) + 4 * f, 4), f * 1024))
            if two:
                barrier(b, [('i', 18)], 'v0')
                b.extend(e)
                barrier(b, [('i', 20)], 'v1')
                touch_kv(b)
                barrier(b, None, 'v2')
                barrier(b, None, 'v4')
                poll_early(b)
                b.extend(res_load(RES_KB))
                for u in range(4, 4 + OPT['kub']):
                    dma_b2(b, u)
                a_setup(b)
                barrier(b, None, 'v3')
                assert OPT['kna'] and OPT['kpa'] and not OPT['k2']
                stage_check(b, 0)
                for u in range(OPT['kna']):
                    aload(b, u)
                barrier(b, None, 'kk')
                b('s_branch L_p2k')
                return b
            d = Seg()
            if OPT['tkat'] == 1:
                touch_kv(d)
            touch_l2(d, 1, V_WB)
            if not OPT['kpa']:
                for u in range(OPT['kpf']):
                    dma_b2(d, u)
            r = Seg()
            for j in range(4):
                wread(r, 1, 0, j, 1)
            e.extend(mix(mix(phi_k(1, RB), [[i] for i in r]), groups(d), 0.3, 1.0))
            k0, k1 = OPT['kb0'], OPT['kb1']
            b.extend(e[:k0])
            barrier(b, [('i', 18)], 'v0')
            b.extend(e[k0:k1])
            barrier(b, [('i', 20)], 'v1')
            b.extend(e[k1:])
            prod_setup(b, RB)
            barrier(b, None, 'v2')
            stamp(b, 3)
            b('s_setprio 1')
            d = Seg()
            slots = [kstep(1, c, j)[0] for c in range(7) for j in range(4)]
            pre = Seg()
            barrier(pre, None, 'v4')
            slots[4 * OPT['kv4']][:0] = pre
            if OPT['kna']:
                poll_early(d)
            d.extend(res_load(RES_KB))
            for u in range(4, 4 + OPT['kub']):
                dma_b2(d, u)
            for k, gi in enumerate(groups(d)):
                slots[min(4 * OPT['kv4'] + 3 + 2 * k, 27)].extend(gi)
            for z in slots:
                b.extend(z)
            barrier(b, None, 'v3')
            b('s_setprio 2')
            b.extend(head([ext(1, 1, 0)]))
            d = Seg()
            if OPT['kna']:
                a_setup(b)
                stage_check(b, 0)
                for u in range(OPT['kna']):
                    aload(d, u)
            else:
                poll_early(b)
            d = groups(d)
            z = Seg()
            kv_prod(z, 1, acc(0, 1), RB)
            b.extend(mix(z, d[:OPT['kne']]))
            if not OPT['kna']:
                a_setup(b)
            part_write(b, 1)
            for gi in d[OPT['kne']:]:
                b.extend(gi)
            barrier(b, None, 'kk')
            stamp(b, 4)
            if OPT['k2']:
                b('s_barrier')
            b('s_branch L_p2k')
            return b
        pf = []
        for c in range(7):
            if c in (2, 4):
                barrier(b, [('i', 16 + c)], 'v%d' % (c // 2 - 1))
            for j in range(4):
                for z in kstep(1, c, j):
                    b.extend(z)
                if c < 2:
                    if j == 1:
                        d = Seg()
                        item(d, 19 + c)
                        d = groups(d)
                    if j in (1, 2):
                        b.extend(d[j - 1])
                if OPT['kpa'] and c == 2 and j == 0:
                    pf = Seg()
                    for u in range(OPT['kpf']):
                        dma_b2(pf, u)
                    pf = groups(pf)
                if OPT['kpa'] and pf and ((c >= 3 and j & 1) if OPT['kpa'] == 1 else c >= 5):
                    b.extend(pf.pop(0))
                if c == 2 and j == 1:
                    stat_load(b)
                if c == 5 and j == 1:
                    hand_addr(b)
                if c == 5 and j == 3:
                    b.wait(vm='stat')
                    stat_use(b)
        barrier(b, None, 'v2')
        stamp(b, 3)
        b('s_setprio %d' % OPT['khead'])
        b('v_mov_b32 v%d, 0' % (V_CS + 1))
        RB, RP = V_X + 64, V_WF
        e = head([ext(1, 1, 0), ext(0, 0, 1), ext(1, 0, 2)])
        z = Seg()
        prod_setup(z, RP)
        for f in range(2):
            z('ds_read_b128 %s, v%d offset:%d' % (vr(PK1 + 4 * f, 4), V_XA, f * 1024), 'r2')
        rload(z, RB, 'r')
        b.extend(e[:3] + list(z) + e[3:-3])
        b('s_setprio 2')
        b.extend(e[-3:])
        b('s_setprio 0')
        if OPT['kres']:
            b.extend(res_load(RES_KA))
        z = Seg()
        z('s_lshl_b32 s%d, s%d, 10' % (S_T1, S_RW))
        z('s_add_u32 s%d, s%d, %d' % (S_T1, S_T1, HND))
        z('v_add_u32 v%d, s%d, v%d' % (V_SEL + 2, S_T1, V_L16))
        z('s_cmp_eq_u32 s%d, 3' % S_RW)
        z('s_cselect_b64 vcc, %s, 0' % sr(S_HI, 2))
        z('v_lshrrev_b32 v%d, 2, v%d' % (V_SEL + 3, V_L16))
        z('v_cndmask_b32 v%d, v%d, v%d, vcc' % (V_SEL + 3, V_SEL + 3, V_FLO))
        z('s_lshl2_add_u32 s%d, s%d, s%d' % (S_H, S_LAST, S_RW))
        z('s_lshl_b32 s%d, s%d, 10' % (S_H, S_H))
        z('s_add_u32 s%d, s%d, 0x%x' % (S_H, S_H, KV_OFF))
        kv_prod(z, 1, PK1, RP)
        z('s_setprio 0')
        z.wait(lgkm='r')
        e = phi_k(0, RB)
        z.extend(e[:OPT['kearly']])
        barrier(z, None, 'v4')
        w, d = Seg(), Seg()
        part_write(w, 1)
        for u in range(4 + OPT['kub'], 4 + OPT['kub'] + OPT['kua']):
            dma_b2(d, u)
        z.extend(mix(e[OPT['kearly']:], [[i] for i in w] + groups(d)))
        k = len(z) + OPT['kcut']
        kv_prod(z, 0, acc(0, 0), RP)
        b.extend(z[:k])
        barrier(b, None, 'v3')
        b.extend(z[k:])
        b('s_add_u32 s%d, s%d, 4096' % (S_P, S_H))
        b('s_add_u32 s%d, s%d, 8192' % (S_HALF, S_H))
        b('s_cmp_eq_u32 s%d, 3' % S_PEND)
        b('s_cselect_b32 s%d, s%d, 0x%x' % (S_HALF, S_HALF, OOB))
        part_write(b, 0)
        barrier(b, 'all', 'kk')
        stamp(b, 4)
        R = V_X + 32
        for h in range(3):
            for p in range(4):
                b('ds_read_b128 %s, v%d offset:%d' % (vr(R + 16 * h + 4 * p, 4), V_SEL + 2, (1, 0, 2)[h] * 16384 + p * 4096), ('red', h))
        for h in range(3):
            r = R + 16 * h
            b.wait(lgkm=[('red', h)])
            for k in (0, 2):
                b('v_pk_add_f32 %s, %s, %s' % (vr(r + k, 2), vr(r + k, 2), vr(r + 4 + k, 2)))
                b('v_pk_add_f32 %s, %s, %s' % (vr(r + 8 + k, 2), vr(r + 8 + k, 2), vr(r + 12 + k, 2)))
                b('v_pk_add_f32 %s, %s, %s' % (vr(r + k, 2), vr(r + k, 2), vr(r + 8 + k, 2)))
            for k in range(4):
                b('buffer_atomic_add_f32 v%d, v%d, %s, s%d offen offset:%d sc1' % (r + k, V_SEL + 3, sr(SWS, 4), (S_H, S_P, S_HALF)[h], k * 256), 'atom')
        if OPT['k2']:
            b('s_barrier')
        stamp(b, 5)
        b('s_lshl_b32 s%d, s%d, 7' % (S_FL, S_LAST))
        b('s_lshl_b32 s%d, s%d, 28' % (S_T1, S_RW))
        b('s_add_u32 s%d, s%d, s%d' % (S_FL, S_FL, S_T1))
        b('s_add_u32 s%d, s%d, 0x%x' % (S_FL, S_FL, FKV_OFF))
        b('s_lshl_b32 s%d, s%d, 4' % (S_T1, S_PEND))
        b('v_cmp_gt_u32 vcc, s%d, v%d' % (S_T1, V_L16))
        b('v_lshlrev_b32 v%d, 3, v%d' % (V_PL, V_L16))
        b('v_cndmask_b32 v%d, v%d, v%d, vcc' % (V_PL, V_FLO, V_PL))
        if not OPT['kres']:
            b.extend(res_load(RES_KA))
        b.wait(vm='atom')
        sync_arrive(b, 0)
        sync_wait(b, 0, 4, T)
        stamp(b, 6)
        b('buffer_atomic_add v%d, v%d, %s, s%d offen sc1' % (V_ONE, V_PL, sr(SWS, 4), S_FL))
        b.extend(res_unpack(RES_KA))
        b('s_branch L_p2a')
        return b

    return s, body(0), body(1), body(1, True) if OPT['two'] else Seg('kc')


def frag_addr(s, T):
    s('v_lshrrev_b32 v%d, 4, v%d' % (T, V_L16))
    s('v_bfe_u32 v%d, v%d, 2, 2' % (T + 1, T))
    s('v_and_b32 v%d, 3, v%d' % (T + 2, T))
    s('v_bfe_u32 v%d, v%d, 4, 1' % (T + 3, T))
    s('v_lshl_add_u32 v%d, v%d, 2, v%d' % (T + 2, T + 3, T + 2))
    s('v_lshrrev_b32 v%d, 1, v%d' % (T + 3, T + 1))
    s('v_lshlrev_b32 v%d, 6, v%d' % (T + 3, T + 3))
    s('v_lshl_add_u32 v%d, v%d, 3, v%d' % (T + 2, T + 2, T + 3))
    s('v_lshl_add_u32 v%d, v%d, 7, v%d' % (T + 2, T + 1, T + 2))
    s('v_lshrrev_b32 v%d, 5, v%d' % (T + 3, T))
    s('v_lshl_add_u32 v%d, v%d, 9, v%d' % (T + 3, T + 3, T + 2))


def bf(par, ct):
    return V_BF + 8 * par + 4 * ct


def acc2(ct, rg):
    return V_ACC + 32 * ct + 16 * rg


def part_addr(g):
    z, T = Seg(), V_NUM
    z('v_bfe_u32 v%d, v%d, 4, 5' % (T, V_L16))
    z('v_and_b32 v%d, 7, v%d' % (T + 1, T))
    z('v_bfe_u32 v%d, v%d, 1, 1' % (T + 2, T))
    z('v_lshrrev_b32 v%d, 9, v%d' % (T + 3, V_L16))
    z('v_xor_b32 v%d, v%d, v%d' % (T + 2, T + 2, T + 3))
    z('v_lshl_add_u32 v%d, v%d, 3, v%d' % (T + 1, T + 2, T + 1))
    z('v_lshlrev_b32 v%d, 4, v%d' % (T + 1, T + 1))
    z('v_lshl_add_u32 v%d, v%d, 8, v%d' % (T + 1, T, T + 1))
    z('v_add_u32 v%d, s%d, v%d' % (T + 8, S_QR0, T + 1))
    if g:
        z('v_add_u32 v%d, s%d, v%d' % (T + 16, S_QR2, T + 1))
    else:
        z('v_add_u32 v%d, 8192, v%d' % (T + 16, T + 8))
    for rg in range(2):
        for k in range(1, 8):
            z('v_xor_b32 v%d, %d, v%d' % (T + 8 + 8 * rg + k, k << 4, T + 8 + 8 * rg))
    return z


def read_addr(g, R):
    z, T = Seg(), R
    z('v_bfe_u32 v%d, v0, 3, 5' % (T + 1))
    z('v_and_b32 v%d, 0x70, v%d' % (T + 2, V_L16))
    z('v_and_b32 v%d, 7, v%d' % (T + 3, T + 1))
    z('v_bfe_u32 v%d, v%d, 1, 1' % (T + 4, T + 1))
    z('v_lshl_add_u32 v%d, v%d, 3, v%d' % (T + 3, T + 4, T + 3))
    z('v_lshlrev_b32 v%d, 4, v%d' % (T + 3, T + 3))
    z('v_xor_b32 v%d, v%d, v%d' % (T + 3, T + 3, T + 2))
    z('v_lshl_add_u32 v%d, v%d, 8, v%d' % (V_RD, T + 1, T + 3))
    if g:
        z('v_add_u32 v%d, %d, v%d' % (V_RD, R2, V_RD))
    z('v_xor_b32 v%d, 128, v%d' % (V_RD + 1, V_RD))
    return z


def acc_major(s, units, wreg, areg, wtag, atag, fresh, fill=()):
    slots, order = [], [(0, 0), (1, 0), (0, 1), (1, 1)]
    for ct, rg in order:
        for k, u in enumerate(units):
            z = Seg()
            z.wait(vm=[atag(u, rg)], lgkm=[wtag(u, ct)])
            z('v_mfma_f32_32x32x16_bf16 %s, %s, %s, %s' % (vr(acc2(ct, rg), 16), vr(wreg(u, ct), 4), vr(areg(u, rg), 4), '0' if fresh and k == 0 else vr(acc2(ct, rg), 16)))
            slots.append(z)
    n = len(units)
    for k, gi in enumerate(fill):
        slots[k].extend(gi)
    wr = [Ins('ds_write_b128 v%d, %s' % (V_NUM + 8 + 8 * rg + 4 * ct + i, vr(acc2(ct, rg) + 4 * i, 4))) for ct, rg in order for i in range(4)]
    pos = [[13, 14, 16, 18, 20, 22, 24, 26], [10, 11, 13, 14, 18, 19, 21, 22, 26, 27], [10, 12, 14, 16, 18, 20, 22, 24, 26, 27]][OPT['wpos']]
    for k, p in enumerate(pos):
        slots[p].append(wr[k])
    for z in slots:
        s.extend(z)
    s.extend(wr[len(pos):])


def final(g):
    s = Seg('final%d' % g)
    D, U = V_AB, V_U
    stamp(s, 8)
    barrier(s)
    stamp(s, 9)
    for w in range(4):
        for h in range(2):
            s('ds_read_b128 %s, v%d offset:%d' % (vr(D + 8 * w + 4 * h, 4), V_RD + h, w * (10240 if g else 12288)), ('fin', w))
    for w in range(4):
        s.wait(lgkm=[('fin', w)])
        for k in range(4):
            s('v_pk_add_f32 %s, %s, %s' % (vr(U + 2 * k, 2), vr(U + 2 * k, 2), vr(D + 8 * w + 2 * k, 2)))
    for k in range(4):
        s('v_cvt_pk_bf16_f32 v%d, v%d, v%d' % (U + k, U + 2 * k, U + 2 * k + 1))
    s('buffer_store_dwordx4 %s, v%d, %s, s%d offen' % (vr(U, 4), V_OUT, sr(SOUT, 4), S_OUTO) + ['', ' sc1', ' nt', ' sc0 sc1'][OPT['osc']])
    return s


def phase2b(nm, na, bdone):
    s, T = Seg('p2' + nm), V_NUM
    RING[0] = 14 if nm == 'f' else 11
    UW = 10
    s('L_p2%s:' % nm)
    stamp(s, 5)
    s('s_setprio 1')
    V_PW, V_PX, RES = 11, 14, V_AB + 48
    pend = [v for v in range(35) if v not in bdone]
    first = [v for v in pend if v < OPT['b0' if nm == 'k' else 'b0f']]
    pend = pend[len(first):]
    BS = {}
    for u in range(28):
        n = 1 if u + DEP - 1 < 28 else 2
        BS[u] = [v for v in pend[:n] if v - RING[0] + 1 <= u]
        pend = pend[len(BS[u]):]
    assert not pend

    def oloads():
        z = Seg()
        for rg in range(2):
            for u in range(7):
                z('buffer_load_dwordx4 %s, v%d, %s, s%d offen offset:%d sc1' % (vr(abuf(28 + u, rg), 4), V_L16B if rg else V_L16, sr(SWS, 4), S_RO3 if u >= 4 else S_P, (u & 3) * 1024), ('o', 28 + u, rg))
        return list(z)

    def word_check(z, u, n, hit=None):
        z.wait(lgkm=[('pw', u)])
        z('v_readfirstlane_b32 s%d, v%d' % (S_T2, V_PW))
        z('s_cmp_lt_u32 s%d, %d' % (S_T2, n))
        if hit:
            z('s_cbranch_scc0 %s' % hit)
            return
        j = nspin[0]
        nspin[0] += 1
        z('s_cbranch_scc1 L_slow%d' % j)
        z('L_ret%d:' % j)
        slow('L_slow%d:' % j)
        slow('s_add_u32 s%d, s%d, 1' % (S_SPIN, S_SPIN))
        slow('s_cmp_gt_u32 s%d, 0x%x' % (S_SPIN, SPIN_LIMIT << 3))
        slow('s_cbranch_scc1 L_ret%d' % j)
        slow('ds_read_b32 v%d, v%d' % (V_PW, V_PX))
        slow('s_waitcnt lgkmcnt(0)')
        slow('v_readfirstlane_b32 s%d, v%d' % (S_T2, V_PW))
        slow('s_nop 0')
        slow('s_cmp_lt_u32 s%d, %d' % (S_T2, n))
        slow('s_cbranch_scc1 L_slow%d' % j)
        slow('s_branch L_ret%d' % j)

    z = Seg()
    if na == 0:
        for v in first[:2]:
            dma_b2(z, v)
        first = first[2:]
        stage_check(z, 0)
    for u in range(na, DEP - 1):
        if u == OPT['p1at']:
            poll_async(z, 1)
        aload(z, u)
        if first:
            dma_b2(z, first.pop(0))
    if na > OPT['p1at']:
        poll_async(z, 1)
    for v in first:
        dma_b2(z, v)
    y = Seg()
    frag_addr(y, T)
    for reg, base in enumerate((S_QR0, S_QR2, S_QR3)[:3 if nm == 'f' else 2]):
        y('v_add_u32 v%d, s%d, v%d' % (BA[2 * reg], base, T + 3))
        y('v_xor_b32 v%d, 64, v%d' % (BA[2 * reg + 1], BA[2 * reg]))
    y('v_subrev_u32 v%d, 16, v%d' % (V_PX, V_PA))
    y.extend(res_unpack(RES_F if nm == 'f' else RES_KB))
    s.extend(mix(y, groups(z)))

    def wreg(u, ct):
        return bf(u & 1, ct) if u < 28 else V_AB + 32 * (1 - ct) + 4 * (u - 28)

    def bread(u, ct):
        z = Seg()
        _, reg, off = unit_loc(u)
        if not (OPT['x_free'] and u < 11):
            z.wait(vm=[('b', u)])
        for h in range(2):
            z('ds_read_b64_tr_b16 %s, v%d offset:%d' % (vr(wreg(u, ct) + 2 * h, 2), BA[2 * reg + ct], off + h * 1024), ('bf', u, ct))
        return z

    s.extend(bread(0, 0) + bread(0, 1))
    late = Seg()
    late('v_add_u32 v%d, %d, v%d' % (V_B2S, 52 * XS, V_B2))
    late('v_cndmask_b32 v%d, v%d, v%d, %s' % (V_B2S, V_B2, V_B2S, sr(S_HI, 2)))
    late = list(read_addr(1, RES)) + list(late) + list(part_addr(1))
    SITES = [[23, 25, 27, 28], [23, 24, 26, 28], [21, 23, 25, 28], [22, 24, 26, 28]][OPT['sites']]
    U2 = 17 - DEP

    def unit(s, u, extra, word):
        nxt = u + DEP - 1
        z = Seg()
        if nxt < 28:
            aload(z, nxt)
        for v in BS[u]:
            dma_b2(z, v)
        now = groups(z) + [[i] for i in extra]
        if 10 <= u < 20:
            k0, k1 = len(late) * (u - 10) // 10, len(late) * (u - 9) // 10
            now += [[i] for i in late[k0:k1]]
        if u < 27:
            rd = [bread(u + 1, 0), bread(u + 1, 1), Seg(), Seg()]
        else:
            rd = [bread(28 + k, 0) for k in range(4)]
        if word:
            rd[2]('ds_read_b32 v%d, v%d' % (V_PW, V_PX), ('pw', u + 1))
        s.wait(vm=[('a', u)])
        stamp(s, 'u%d' % u)
        k = 0
        for ct in range(2):
            s.wait(lgkm=[('bf', u, ct)])
            for rg in ((1, 0) if ct and OPT['gray'] else (0, 1)):
                s('v_mfma_f32_32x32x16_bf16 %s, %s, %s, %s' % (vr(acc2(ct, rg), 16), vr(wreg(u, ct), 4), vr(abuf(u, rg), 4), vr(acc2(ct, rg), 16) if u else '0'))
                s.extend(rd[k])
                for gi in range(len(now) * k // 4, len(now) * (k + 1) // 4):
                    s.extend(now[gi])
                k += 1

    main, alts = [s], []
    for u in range(28):
        if u + DEP - 1 == 8:
            stage_check(s, 1)
            stamp(s, 'c1')
        if u == UW and nm == 'f':
            word_check(s, u, 1)
        if u == U2:
            word_check(s, u, 3)
            stamp(s, 'c2')
        if u in SITES:
            word_check(s, u, 7, hit='L_p2o%s%d' % (nm, u))
            a = Seg('p2o%d' % u)
            a('L_p2o%s%d:' % (nm, u))
            stamp(a, 'c3')
            o = oloads()[:14 - OPT['otail']]
            for v in range(u, 28):
                unit(a, v, o[:OPT['oper']], False)
                o = o[OPT['oper']:]
            a.extend(o)
            a('s_branch L_p2tail%s' % nm)
            alts.append((list(main), a))
            s = Seg('p2m%d' % u)
            main.append(s)
        unit(s, u, [], u + 1 in SITES + [UW, U2])
    word_check(s, 28, 7)
    stamp(s, 'c3')
    s.extend(oloads()[:14 - OPT['otail']])
    t = Seg('p2t')
    t('L_p2tail%s:' % nm)
    stamp(t, 'tl')
    fill = [bread(u, 0) for u in range(32, 35)] + [bread(u, 1) for u in range(28, 35)]
    for k, i in enumerate(oloads()[14 - OPT['otail']:]):
        fill[k] = [i] + list(fill[k])
    acc_major(t, range(28, 35), wreg, abuf, lambda u, ct: ('bf', u, ct), lambda u, rg: ('o', u, rg), False, fill)
    t.extend(final(1))
    t('s_branch L_fin')
    return [m + [a, t] for m, a in alts] + [main + [t]], [a for _, a in alts] + main + [t]


def phase2a():
    s = Seg('p2a')
    s('L_p2a:')
    s('s_and_b32 s%d, s%d, 30' % (S_T0, S_I2))
    s('s_lshr_b32 s%d, s%d, 1' % (S_T1, S_RW))
    s('s_add_u32 s%d, s%d, s%d' % (S_T0, S_T0, S_T1))
    s('s_and_b32 s%d, s%d, 1' % (S_T1, S_I2))
    s('s_lshl1_add_u32 s%d, s%d, s%d' % (S_T0, S_T0, S_T1))
    s('s_lshl3_add_u32 s%d, s%d, s%d' % (S_T0, S_T0, S_ROLE))
    s('s_lshl_b32 s%d, s%d, 7' % (S_T0, S_T0))
    s('s_add_u32 s%d, s%d, 0x%x' % (S_PL, S_T0, FO_OFF))
    s('s_and_b32 s%d, s%d, 1' % (S_T1, S_RW))
    s('s_lshl3_add_u32 s%d, s%d, s%d' % (S_T3, S_T1, S_PL))
    s('s_add_u32 s%d, s%d, 8' % (S_T3, S_T3))
    for val, nm in ((3, 'a2'), (7, 7)):
        j = nspin[0]
        nspin[0] += 1
        s('v_mov_b32 v%d, %d' % (V_BF + 8 + val, val))
        if not OPT['x_nopoll']:
            s('L_pa%d:' % j)
            if val == 3:
                s('s_buffer_load_dwordx2 %s, %s, s%d glc' % (sr(S_T0, 2), sr(SWS, 4), S_T3))
            else:
                s('s_buffer_load_dword s%d, %s, s%d glc' % (S_T0, sr(SWS, 4), S_PL))
            s('s_add_u32 s%d, s%d, 1' % (S_SPIN, S_SPIN))
            s('s_cmp_gt_u32 s%d, 0x%x' % (S_SPIN, SPIN_LIMIT))
            s('s_waitcnt lgkmcnt(0)')
            s('s_cbranch_scc1 L_pz%d' % j)
            s('s_and_b32 s%d, s%d, s%d' % (S_T0, S_T0, S_T1 if val == 3 else S_T0))
            s('s_cbranch_scc0 L_pa%d' % j)
            s('L_pz%d:' % j)
        s('ds_write_b32 v%d, v%d' % (V_PA, V_BF + 8 + val))
        stamp(s, nm)
        if val == 3:
            s.extend(read_addr(0, V_BF))
    s.extend(final(0))
    return s


def fin():
    s = Seg('fin')
    s('L_fin:')
    if OPT['diag']:
        stamp(s, 10)
        s('s_waitcnt lgkmcnt(0)')
        s('v_mov_b32 v4, 0')
        for k in range(7):
            s('v_writelane_b32 v4, s%d, %d' % (S_KA + 2 * k, k))
        s('v_writelane_b32 v4, s%d, 11' % S_SPIN)
        s('s_lshl3_add_u32 s%d, s2, s%d' % (S_T0, S_WV))
        s('s_lshl_b32 s%d, s%d, 8' % (S_T0, S_T0))
        s('s_add_u32 s%d, s%d, 0x%x' % (S_T0, S_T0, TS_OFF))
        s('v_lshrrev_b32 v5, 2, v%d' % V_L16)
        s('buffer_store_dword v4, v5, %s, s%d offen' % (sr(SWS, 4), S_T0))
        if OPT['diag'] == 3:
            s('s_not_b32 s%d, s%d' % (S_T0, S_KA))
            s('v_writelane_b32 v4, s%d, 11' % S_T0)
            s('s_cmp_eq_u32 s%d, 4' % S_WV)
            s('s_cselect_b32 s%d, 16, 0x%x' % (S_T0, OOB))
            s('s_cmp_lt_u32 s%d, 4' % S_ROLE)
            s('s_cselect_b32 s%d, s%d, 0x%x' % (S_T0, S_T0, OOB))
            s('s_mov_b64 exec, 0xfff')
            s('buffer_atomic_umax v4, v5, %s, s%d offen sc1' % (sr(SDBG, 4), S_T0))
    if OPT['diag'] == 6:
        s('s_cmp_lg_u32 s%d, 4' % S_WV)
        s('s_cbranch_scc1 L_end')
        s('s_mov_b64 exec, 1')
        s('s_getreg_b32 s%d, hwreg(HW_REG_XCC_ID, 0, 4)' % S_T0)
        s('s_sub_u32 s%d, s%d, s2' % (S_T0, S_T0))
        s('s_and_b32 s%d, s%d, 7' % (S_T0, S_T0))
        s('s_lshl_b32 s%d, 1, s%d' % (S_T0, S_T0))
        s('v_mov_b32 v4, s%d' % S_T0)
        s('v_mov_b32 v6, 1')
        s('v_mov_b32 v7, 0')
        s('buffer_atomic_or v4, v7, %s, 0 offen offset:16 sc1' % sr(SDBG, 4))
        s('s_waitcnt vmcnt(0)')
        s('buffer_atomic_add v6, v7, %s, 0 offen offset:136 sc0 sc1' % sr(SDBG, 4))
        s('s_waitcnt vmcnt(0)')
        s('v_readfirstlane_b32 s%d, v6' % S_T0)
        s('s_cmp_lg_u32 s%d, 255' % S_T0)
        s('s_cbranch_scc1 L_end')
        s('buffer_load_dword v4, v7, %s, 0 offen offset:16 sc1' % sr(SDBG, 4))
        s('s_waitcnt vmcnt(0)')
        s('v_readfirstlane_b32 s%d, v4' % S_T0)
        s('s_bcnt1_i32_b32 s%d, s%d' % (S_T0, S_T0))
        s('s_mul_i32 s%d, s%d, 2000' % (S_T0, S_T0))
        s('s_memrealtime s[66:67]')
        s('s_waitcnt lgkmcnt(0)')
        s('L_dly:')
        s('s_memrealtime s[68:69]')
        s('s_waitcnt lgkmcnt(0)')
        s('s_sub_u32 s68, s68, s66')
        s('s_cmp_lt_u32 s68, s%d' % S_T0)
        s('s_cbranch_scc1 L_dly')
    if OPT['diag'] == 5:
        s('s_cmp_lg_u32 s%d, 4' % S_WV)
        s('s_cbranch_scc1 L_end')
        s('s_mov_b64 exec, 1')
        s('s_not_b32 s%d, s%d' % (S_T0, S_KA + 2 * OPT['sa']))
        s('v_mov_b32 v4, s%d' % S_T0)
        s('v_mov_b32 v5, s%d' % (S_KA + 2 * OPT['sb']))
        s('v_mov_b32 v6, 1')
        s('v_mov_b32 v7, 0')
        s('buffer_atomic_umax v4, v7, %s, 0 offen offset:128 sc1' % sr(SDBG, 4))
        s('buffer_atomic_umax v5, v7, %s, 0 offen offset:132 sc1' % sr(SDBG, 4))
        s('s_waitcnt vmcnt(0)')
        s('buffer_atomic_add v6, v7, %s, 0 offen offset:136 sc0 sc1' % sr(SDBG, 4))
        s('s_waitcnt vmcnt(0)')
        s('v_readfirstlane_b32 s%d, v6' % S_T0)
        s('s_cmp_lg_u32 s%d, 255' % S_T0)
        s('s_cbranch_scc1 L_end')
        s('buffer_load_dwordx2 v[4:5], v7, %s, 0 offen offset:128 sc1' % sr(SDBG, 4))
        s('s_waitcnt vmcnt(0)')
        s('v_add_u32 v4, v4, v5')
        s('s_nop 1')
        s('v_readfirstlane_b32 s%d, v4' % S_T0)
        s('s_add_u32 s%d, s%d, 1' % (S_T0, S_T0))
        s('s_mul_i32 s%d, s%d, %d' % (S_T0, S_T0, OPT['mul']))
        s('s_min_u32 s%d, s%d, 200000' % (S_T0, S_T0))
        s('s_memrealtime s[66:67]')
        s('s_waitcnt lgkmcnt(0)')
        s('L_dly:')
        s('s_memrealtime s[68:69]')
        s('s_waitcnt lgkmcnt(0)')
        s('s_sub_u32 s68, s68, s66')
        s('s_cmp_lt_u32 s68, s%d' % S_T0)
        s('s_cbranch_scc1 L_dly')
    if OPT['diag'] == 4:
        s('s_cmp_lg_u32 s2, %d' % OPT['wg'])
        s('s_cbranch_scc1 L_end')
        s('s_cmp_lg_u32 s%d, %d' % (S_WV, OPT['wv']))
        s('s_cbranch_scc1 L_end')
        s('s_sub_u32 s%d, s%d, s%d' % (S_T0, S_KA + 2 * OPT['sb'], S_KA + 2 * OPT['sa']))
        if not OPT['clk']:
            s('s_mul_i32 s%d, s%d, 10' % (S_T0, S_T0))
        s('s_min_u32 s%d, s%d, 200000' % (S_T0, S_T0))
        s('s_memrealtime s[66:67]')
        s('s_waitcnt lgkmcnt(0)')
        s('L_dly:')
        s('s_memrealtime s[68:69]')
        s('s_waitcnt lgkmcnt(0)')
        s('s_sub_u32 s68, s68, s66')
        s('s_cmp_lt_u32 s68, s%d' % S_T0)
        s('s_cbranch_scc1 L_dly')
    s('L_end:')
    s('s_endpgm')
    return s


def main():
    pro, prw, pre = prologue()
    f, fa, fb = lc_role(True)
    q, qa, qb = lc_role(False)
    qo = q_out()
    k, ka, kb, kc = kv_role()
    fpaths, fsegs = phase2b('f', OPT['na'], list(range(8 + OPT['nb'])) + [11, 12, 13])
    kpaths, ksegs = phase2b('k', OPT['kna'], list(range(4 + OPT['kua'] + OPT['kub'])))
    p2segs, p2a, fi = fsegs + ksegs, phase2a(), fin()
    paths = [
        [pro, pre, f, fa, p2a, fi],
        [pro, pre, q, qa, qo, fi],
        [pro, prw, pre, q, qb, qo, fi],
        [pro, prw, pre, k, ka, p2a, fi],
    ]
    paths += [[pro, prw, pre, f, fb] + p + [fi] for p in fpaths] + [[pro, prw, pre, k, x] + p + [fi] for p in kpaths for x in ((kb, kc) if OPT['two'] else (kb,))]
    if OPT['jit']:
        import random
        rnd, seen = random.Random(OPT['jit']), set()
        for p in paths:
            for seg in p:
                if id(seg) in seen:
                    continue
                seen.add(id(seg))
                out = []
                for i in seg:
                    out.append(i)
                    if i.op == 's_barrier' or (i.kind == 'label' and i.text.startswith(('L_ret', 'L_p2'))):
                        j = nspin[0]
                        nspin[0] += 1
                        out += [Ins('s_add_u32 s56, s2, s%d' % S_WV), Ins('s_bitcmp1_b32 0x%x, s56' % rnd.getrandbits(32)),
                                Ins('s_cbranch_scc0 L_j%d' % j), Ins('s_sleep %d' % rnd.choice((2, 5, 12, 30))), Ins('L_j%d:' % j)]
                seg[:] = out
    resolve_waits(paths)
    if OPT['hoist']:
        hoist_m0(paths)
    bad = verify_async(paths)
    assert not bad, '\n'.join(bad)
    n = pad_hazards(paths)
    assert pad_hazards(paths) == 0
    body = render([pro, prw, pre, f, fa, fb, k, ka, kb, kc, q, qa, qb, qo] + p2segs + [p2a, fi, slow])
    head = open('cdna_kernels/%s.s.ref' % NAME).read().split('\n')
    head = [l for l in head if l.startswith(';') and '@launch' not in l]
    out = '\n'.join(head) + '''
; @launch grid=(256,1,1) block=(512,1,1) lds=%d
.amdgcn_target "amdgcn-amd-amdhsa--gfx950"
.text
.globl %s_kernel
.p2align 8
.type %s_kernel,@function
%s_kernel:
L_codebeg:
%s
L_codeend:
.section .rodata,"a"
.p2align 6
.amdhsa_kernel %s_kernel
  .amdhsa_next_free_vgpr 256
  .amdhsa_next_free_sgpr 102
  .amdhsa_accum_offset 256
  .amdhsa_group_segment_fixed_size 0
  .amdhsa_kernarg_size 88
  .amdhsa_user_sgpr_count 2
  .amdhsa_user_sgpr_kernarg_segment_ptr 1
  .amdhsa_system_sgpr_workgroup_id_x 1
.end_amdhsa_kernel
''' % (LDS_BYTES, NAME, NAME, NAME, body, NAME)
    if OPT['x_plain'] & 1:
        out = '\n'.join(l.replace(' sc1', '') if 'buffer_store_dwordx4' in l else l for l in out.split('\n'))
    if OPT['x_plain'] & 2:
        out = '\n'.join(l.replace(' sc1', '') if 'buffer_load_dwordx4' in l else l for l in out.split('\n'))
    if OPT['x_drop'] & 1:
        out = '\n'.join('    s_nop 0' if 'v_mfma_f32_16x16x32' in l else l for l in out.split('\n'))
    if OPT['x_drop'] & 16:
        i, j = out.index('L_kv:'), out.index('L_q:')
        out = out[:i] + '\n'.join('    s_nop 0' if 'v_mfma_f32_16x16x32' in l or 'v_max_f32' in l or 'v_mul_f32' in l else l for l in out[i:j].split('\n')) + out[j:]
    if OPT['x_drop'] & 32:
        j = out.index('L_kv:')
        out = '\n'.join('    s_nop 0' if 'v_mfma_f32_16x16x32' in l or 'v_fma_f32' in l else l for l in out[:j].split('\n')) + out[j:]
    if OPT['x_drop'] & 2:
        out = '\n'.join('    s_nop 0' if 'v_dot2c' in l else l for l in out.split('\n'))
    if OPT['x_drop'] & 4:
        i, j = out.index('L_p2of23:'), out.index('L_p2a:')
        out = out[:i] + '\n'.join('    s_nop 7' if 'v_mfma' in l else l for l in out[i:j].split('\n')) + out[j:]
    if OPT['x_drop'] & 8:
        i = out.index('L_p2of23:')
        out = '\n'.join('    s_nop 7' if 'v_mfma_f32_32x32x16' in l else l for l in out[:i].split('\n')) + out[i:]
    open(sys.argv[1], 'w').write(out)
    print('wrote %s: %d lines, %d pad states' % (sys.argv[1], out.count('\n'), n))


main()
```

```python
import re

REG_RE = re.compile(r'^(-?)(?:abs\()?([vs])(?:(\d+)|\[(\d+):(\d+)\])\)?$')
TRANS = ('v_exp_f32', 'v_rcp_f32', 'v_rsq_f32', 'v_sqrt_f32', 'v_log_f32')
NO_DST_S = ('s_cmp', 's_waitcnt', 's_barrier', 's_nop', 's_branch', 's_cbranch', 's_setprio', 's_sleep', 's_endpgm',
            's_bitcmp')


def regs(tok):
    tok = tok.strip()
    if tok in ('vcc', 'exec', 'm0'):
        return {tok}
    if tok in ('vcc_lo', 'vcc_hi'):
        return {'vcc'}
    m = REG_RE.match(tok)
    if not m:
        return set()
    k = m.group(2)
    if m.group(3) is not None:
        return {(k, int(m.group(3)))}
    return {(k, i) for i in range(int(m.group(4)), int(m.group(5)) + 1)}


def vr(a, n=1):
    return 'v%d' % a if n == 1 else 'v[%d:%d]' % (a, a + n - 1)


def sr(a, n=1):
    return 's%d' % a if n == 1 else 's[%d:%d]' % (a, a + n - 1)


class Ins:
    __slots__ = ('text', 'op', 'rd', 'wr', 'kind', 'tag', 'srcc', 'srcab', 'passes', 'data', 'wait', 'nops', 'n_vm',
                 'n_lgkm', 'lds')

    def __init__(self, text, tag=None):
        self.text = text
        self.tag = tag
        self.rd, self.wr = set(), set()
        self.srcc, self.srcab, self.data = set(), set(), set()
        self.passes = 0
        self.wait = None
        self.nops = 0
        self.n_vm = self.n_lgkm = None
        self.lds = False
        if text.endswith(':') or text.startswith('.') or text.startswith(';'):
            self.op, self.kind = text, 'label'
            return
        parts = text.split(None, 1)
        op = self.op = parts[0]
        rest = parts[1] if len(parts) > 1 else ''
        ops = [o.strip() for o in rest.split(',')] if rest else []
        mods = []
        if ops:
            if 'op_sel' in rest:
                ops = [o.strip() for o in rest[:rest.index('op_sel')].split(',')]
            last = ops[-1].split()
            ops[-1] = last[0] if last else ''
            mods = last[1:]
        R = [regs(o) for o in ops]
        allr = set().union(*R) if R else set()
        if op.startswith('v_mfma'):
            self.kind = 'mfma'
            self.wr = R[0]
            self.srcab = R[1] | R[2]
            self.srcc = R[3]
            self.rd = self.srcab | self.srcc
            self.passes = 4 if '16x16' in op else 8
        elif op.startswith('v_smfmac'):
            self.kind = 'mfma'
            self.wr = R[0]
            self.srcab = R[1] | R[2] | R[3]
            self.srcc = R[0]
            self.rd = self.srcab | self.srcc
            self.passes = 8
        elif op.startswith('v_'):
            base = op.replace('_e32', '').replace('_e64', '')
            self.kind = 'trans' if base in TRANS else ('dot' if base.startswith('v_dot') else 'valu')
            self.wr = set(R[0])
            self.rd = set().union(*R[1:]) if len(R) > 1 else set()
            if base.startswith(('v_fmac', 'v_dot2c')):
                self.rd |= R[0]
            if base.startswith('v_permlane'):
                self.wr |= R[1]
                self.rd |= R[0]
        elif op.startswith('ds_'):
            self.kind = 'ds'
            if op.startswith('ds_read'):
                self.wr = R[0]
                self.rd = set().union(*R[1:])
            else:
                self.rd = allr
        elif op.startswith(('buffer_', 'global_')):
            self.kind = 'vmem'
            if 'lds' in mods:
                self.lds = True
                self.rd = allr | {'m0'}
            elif '_load' in op:
                self.wr = R[0]
                self.rd = set().union(*R[1:])
            else:
                self.rd = allr
                if 'atomic' in op and 'sc0' in mods:
                    self.wr = R[0]
                if 'x4' in op or 'x3' in op:
                    self.data = R[0] if op.startswith('buffer_') else R[1]
        elif op.startswith(('s_load', 's_buffer_load', 's_memtime', 's_memrealtime')):
            self.kind = 'smem'
            self.wr = R[0]
            self.rd = set().union(*R[1:]) if len(R) > 1 else set()
        elif op.startswith('s_'):
            self.kind = 'salu'
            if op.startswith(NO_DST_S):
                self.rd = allr
            else:
                self.wr = R[0]
                self.rd = set().union(*R[1:]) if len(R) > 1 else set()
        else:
            raise ValueError(text)


def Wait(vm=None, lgkm=None):
    i = Ins('s_waitcnt 0')
    i.kind = 'wait'
    i.wait = (vm, lgkm)
    return i


class Seg(list):
    def __init__(self, name=''):
        super().__init__()
        self.name = name

    def __call__(self, text, tag=None):
        for line in text.split('\n'):
            line = line.strip()
            if line:
                self.append(Ins(line, tag))
        return self

    def wait(self, vm=None, lgkm=None):
        self.append(Wait(vm, lgkm))
        return self


GAP = 'GAP'


def interleave(slots, filler, start=0, end=None):
    end = len(slots) if end is None else end
    ngap = sum(1 for f in filler if f is GAP)
    real = len(filler) - ngap
    nslot = max(1, end - start - ngap)
    per = real / nslot
    out, fi, credit = [], 0, 0.0
    for k, s in enumerate(slots):
        out.extend(s)
        if start <= k < end:
            if fi < len(filler) and filler[fi] is GAP:
                fi += 1
                continue
            credit += per
            while fi < len(filler) and filler[fi] is not GAP and (credit >= 0.999 or k == end - 1):
                out.append(filler[fi])
                fi += 1
                credit -= 1
            if k == end - 1:
                out.extend(f for f in filler[fi:] if f is not GAP)
                fi = len(filler)
    assert fi == len(filler)
    return out


def _as_list(t):
    if t is None:
        return []
    assert not isinstance(t, tuple)
    return t if isinstance(t, list) else [t]


def resolve_waits(paths):
    known = set()
    for path in paths:
        for seg in path:
            for ins in seg:
                if ins.tag is not None:
                    known.add(ins.tag)
    for path in paths:
        vm, lg = [], []
        vm_done = lg_done = 0
        here = {ins.tag for seg in path for ins in seg}
        for seg in path:
            for ins in seg:
                if ins.kind == 'vmem':
                    vm.append(ins.tag)
                elif ins.kind == 'ds':
                    lg.append(ins.tag)
                elif ins.kind == 'wait':
                    for which, lst, cap in ((0, vm, 63), (1, lg, 15)):
                        need = -1
                        force = False
                        for t in _as_list(ins.wait[which]):
                            if t == 'all':
                                need, force = len(lst) - 1, True
                                continue
                            assert t in known, 'unknown tag %r' % (t,)
                            idx = [k for k, x in enumerate(lst) if x == t]
                            assert idx or t not in here, 'wait before issue: %r' % (t,)
                            if idx:
                                need = max(need, idx[-1])
                        done = vm_done if which == 0 else lg_done
                        if need >= done or force:
                            n = min(len(lst) - 1 - need, cap)
                            if which == 0:
                                ins.n_vm = n if ins.n_vm is None else min(ins.n_vm, n)
                                vm_done = max(vm_done, len(lst) - n)
                            else:
                                ins.n_lgkm = n if ins.n_lgkm is None else min(ins.n_lgkm, n)
                                lg_done = max(lg_done, len(lst) - n)
    seen = set()
    for path in paths:
        for seg in path:
            if id(seg) in seen:
                continue
            seen.add(id(seg))
            keep = []
            for ins in seg:
                if ins.kind == 'wait':
                    if ins.n_vm is None and ins.n_lgkm is None:
                        continue
                    if keep and keep[-1].kind == 'wait':
                        p = keep[-1]
                        for a in ('n_vm', 'n_lgkm'):
                            x, y = getattr(p, a), getattr(ins, a)
                            setattr(p, a, y if x is None else (x if y is None else min(x, y)))
                        continue
                keep.append(ins)
            for ins in keep:
                if ins.kind == 'wait':
                    f = []
                    if ins.n_vm is not None:
                        f.append('vmcnt(%d)' % ins.n_vm)
                    if ins.n_lgkm is not None:
                        f.append('lgkmcnt(%d)' % ins.n_lgkm)
                    ins.text = 's_waitcnt ' + ' '.join(f)
            seg[:] = keep


VALUISH = ('valu', 'trans', 'dot')


def _need(p, c):
    n = 0
    vw = {r for r in p.wr if isinstance(r, tuple) and r[0] == 'v'}
    sw = p.wr - vw
    if p.kind in VALUISH:
        if c.kind == 'mfma' and vw & c.rd:
            n = max(n, 3 if p.kind == 'dot' else 2)
        if c.op.startswith('v_permlane') and vw & c.rd:
            n = max(n, 2)
        if c.op.startswith(('v_readfirstlane', 'v_readlane')) and vw & c.rd:
            n = max(n, 1)
        if p.kind == 'trans' and c.kind in ('valu', 'dot', 'trans') and vw & c.rd:
            n = max(n, 1)
        if p.kind == 'dot' and (vw & (c.rd | c.wr)) and c.op != p.op:
            n = max(n, 3)
        if sw:
            if c.kind in VALUISH and sw & c.rd:
                n = max(n, 2)
            if c.kind == 'vmem' and sw & c.rd:
                n = max(n, 5)
            if c.kind == 'salu' and sw & c.rd:
                n = max(n, 1)
    if p.kind == 'mfma':
        big = 12 if p.passes == 8 else 8
        if c.kind == 'mfma':
            if vw & c.srcab:
                n = max(n, big)
            if vw & c.srcc and not (c.srcc == p.wr and c.op == p.op):
                n = max(n, big - 2)
            if vw & c.wr and not (vw & c.srcc):
                n = max(n, big)
        elif c.kind in VALUISH or c.kind in ('vmem', 'ds'):
            if vw & (c.rd | c.wr):
                n = max(n, big)
        if c.kind in VALUISH and p.srcc & c.wr:
            n = max(n, 7 if p.passes == 8 else 3)
    if p.kind == 'salu' and 'm0' in p.wr and c.kind == 'vmem' and c.lds:
        n = max(n, 1)
    if p.kind == 'vmem' and p.data and p.data & c.wr:
        n = max(n, 2)
    return n


def _states(i):
    if i.kind == 'label':
        return 0
    if i.op == 's_nop':
        return int(i.text.split()[1]) + 1
    return 1


def pad_hazards(paths):
    total = 0
    for path in paths:
        flat = [i for seg in path for i in seg]
        for k, c in enumerate(flat):
            if c.kind in ('label', 'wait'):
                continue
            dist, j = c.nops, k - 1
            while j >= 0 and dist < 12:
                p = flat[j]
                need = _need(p, c)
                if need > dist:
                    total += need - dist
                    c.nops += need - dist
                    dist = need
                dist += _states(p) + p.nops
                j -= 1
    return total


def render(segs):
    out = []
    for seg in segs:
        for i in seg:
            n = i.nops
            while n > 0:
                m = min(n, 16)
                out.append('    s_nop %d' % (m - 1))
                n -= m
            out.append(i.text if i.kind == 'label' else '    ' + i.text)
    return '\n'.join(out)


def verify_async(paths):
    bad = set()
    for path in paths:
        vm, lg, sm = [], [], set()
        for seg in path:
            for i in seg:
                if i.kind == 'label':
                    continue
                if i.op == 's_waitcnt':
                    m = re.search(r'vmcnt\((\d+)\)', i.text)
                    if m:
                        n = int(m.group(1))
                        vm = vm[max(0, len(vm) - n):] if n else []
                    m = re.search(r'lgkmcnt\((\d+)\)', i.text)
                    if m:
                        n = int(m.group(1))
                        lg = lg[max(0, len(lg) - n):] if n else []
                        if n == 0:
                            sm = set()
                    continue
                for q, kind in ((vm, 'vmem'), (lg, 'ds')):
                    for p in q:
                        hit = p.wr & i.rd
                        if not (i.kind == kind and i.wr):
                            hit |= p.wr & i.wr
                        if hit:
                            bad.add('%s: [%s] touches the result of outstanding [%s]' % (seg.name, i.text, p.text))
                if sm & (i.rd | i.wr):
                    bad.add('%s: [%s] touches an outstanding scalar load' % (seg.name, i.text))
                if i.kind == 'vmem':
                    vm.append(i)
                elif i.kind == 'ds':
                    lg.append(i)
                elif i.kind == 'smem' and not i.op.startswith('s_mem'):
                    sm |= i.wr
    return sorted(bad)


def hoist_m0(paths):
    seen = set()
    for path in paths:
        for seg in path:
            if id(seg) in seen:
                continue
            seen.add(id(seg))
            for k in range(1, len(seg) - 1):
                a, m, d = seg[k - 1], seg[k], seg[k + 1]
                if m.kind == 'salu' and 'm0' in m.wr and d.kind == 'vmem' and d.lds and a.kind in ('valu', 'trans', 'ds', 'mfma', 'dot') \
                        and not (a.wr & m.rd):
                    seg[k - 1], seg[k] = m, a
```

```python
import struct
import sys
from asmlib import Seg, Ins, Wait, GAP, interleave, resolve_waits, pad_hazards, verify_async, hoist_m0, render, vr, sr

NAME = 'parallel_sum__linear_attn_block__dense_activation_gelu__prompt'
OPT = dict(smk=0, smf=0, sel1=1, zpad=16, x_late=0, x_mask=0x08080808, ecarry=0, carry=2, kn4=2, kn5=6, kn6=9, kep=16, s6=1, npre=0, lcs=0, actg=288, two=1, wpos=0, kres=1, kna=3, kne=6, k2=0, qsplit=0, sites=0, kv4=3, kua=3, kub=0, x_free=0, x_freek=0, tf0=2, tfp=45, x_drop=0, gray=0, hoist=1, wj=1, tfat=1, kpa=1, otail=7, oper=3, rmap=4, jit=0, rounds=15, opriv=1, oscal=1, na=5, nb=0, b0=9, xfirst=1, osc=0, ne=1, ub=0, b0f=9, pmix=1, wv=4, back=0, x_wait=0, rot1=6, nlate=1, mul=10, fatom=0, tlb=0, kbar=4, kphi=26, ntail=4, p1at=2, ascal=1, kpf=4, kcut=4, kb0=24, kb1=104, khead=0, kearly=8, qatom=1, batom=1, pkind=1, x_hit=0, gsp=3, eprio=0, aprio=2, aprio2=2, aprio3=2, lb=10, touch=69, tat=4, twat=3, tkat=1, kprio=0, plead=3, x_noa=0, x_nopoll=0, x_noflag=0, x_nost=0, x_plain=0, rot2=1, dep=6, noatom=0, diag=0, p1only=0, sa=0, sb=10, clk=0, wg=0)
for a in sys.argv[2:]:
    k, v = a.split('=')
    OPT[k] = v if k == 'st' else int(v)
STAMPS = OPT.get('st', 'en,2,4,5,6,7,10').split(',')


assert len(STAMPS) <= 7


def f32(x):
    return '0x%08x' % struct.unpack('<I', struct.pack('<f', x))[0]


XS, WQS, W1S = 896, 2688, 3584
ACT_G = OPT['actg'] * 512
KV_OFF = 0x900000
FKV_OFF = 0x910000
FL_OFF = 0x911000
FL_G = 896
FO_OFF = 0x920000
ST_OFF = 0x938000
TS_OFF = 0xA00000
WS_BYTES = 0x10000000
OOB = 0x40000000
R0, R1, R2, MISC = 0, 57344, 114688, 155648
M_ST, M_SY, M_CS, M_R = MISC, MISC + 2048, MISC + 4096, MISC + 7168
LDS_BYTES = 163840
LOG2E = 1.4426950408889634
GC1 = -2.0 * 0.7978845608028654 * LOG2E
GC3 = GC1 * 0.044715
SPIN_LIMIT = 1 << 16

S_WV, S_RW, S_G, S_RB, S_ROLE = 3, 4, 5, 6, 7
SX, SW, SWS, SW2, SWO, SOUT, SB1, SB2, SDBG = 8, 12, 16, 20, 24, 28, 32, 36, 40
S_KA = 44
S_KX, S_KW = 66, 73
S_I2, S_HALF, S_T0, S_T1, S_ONES, S_EPS = 80, 81, 82, 83, 84, 85
S_M0W, S_M0X, S_T3, S_RO, S_H, S_FL = 86, 87, 88, 89, 90, 91
S_HI = 92
S_SPIN, S_T2, S_P, S_LAST, S_PEND, S_L2E = 94, 95, 96, 97, 98, 99
S_PAD = 100
S_B2R, S_QR0, S_QR2, S_A, S_WOR, S_OUTO, S_G0, S_G2 = 58, 59, 60, 61, 62, 63, 64, 65
S_RO3, S_PL = 68, 73
S_AO = 74

V_L16, V_B2, V_X0, V_X1, V_W, V_CSW, V_CSR = 1, 2, 3, 4, 5, 6, 7
V_SEL, V_CS, V_WA, V_XA, V_EXW, V_EXR, V_ST = 8, 12, 20, 28, 32, 36, 38
V_B1 = 16
V_WB, V_RA = 42, 43
V_POLL, V_PA, V_FLO, V_ONE = 44, 45, 46, 47
V_T = 48
V_ACC, V_X, V_WF = 64, 128, 240
V_B2B, V_BA, V_L16B, V_PL = 3, 4, 12, 31
DEP = 6
V_NUM, V_BF, V_AB, V_RES = 16, 48, 128, 192
V_PQ = 80
HND = 49152

slow = Seg('slow')
nspin = [0]


def stamp(s, k):
    if OPT['diag'] and str(k) in STAMPS:
        k = STAMPS.index(str(k))
        s('%s %s' % ('s_memtime' if OPT['diag'] == 2 or OPT['clk'] else 's_memrealtime', sr(S_KA + 2 * k, 2)))


EARLY = ['en', 'ka', 't0', 't1']


def estamp(s, k):
    if OPT['diag'] and k in STAMPS:
        s('%s s[100:101]' % ('s_memtime' if OPT['diag'] == 2 or OPT['clk'] else 's_memrealtime'))
        s('s_waitcnt lgkmcnt(0)')
        s('v_mov_b32 v%d, s100' % (120 + EARLY.index(k)))


class Rebase:
    def __init__(self, regs, base, span):
        self.regs, self.base, self.span = regs, base, span

    def off(self, s, addr):
        if not (self.base <= addr and addr - self.base + self.span <= 65535):
            for r in self.regs:
                s('v_add_u32 v%d, 0x%x, v%d' % (r, (addr - self.base) & 0xffffffff, r))
            self.base = addr
        return addr - self.base


def spin_check(s, vpoll, vexp, vaddr, srd, soff, mask):
    k = nspin[0]
    nspin[0] += 1
    s('v_cmp_le_u32 vcc, %d, v%d' % (vexp, vpoll))
    s('s_andn2_b32 s%d, 0x%x, vcc_lo' % (S_T2, mask))
    s('s_cbranch_scc1 L_slow%d' % k)
    s('L_ret%d:' % k)
    slow('L_slow%d:' % k)
    slow('s_add_u32 s%d, s%d, 1' % (S_SPIN, S_SPIN))
    slow('s_cmp_gt_u32 s%d, 0x%x' % (S_SPIN, SPIN_LIMIT))
    slow('s_cbranch_scc1 L_ret%d' % k)
    slow('buffer_load_dword v%d, v%d, %s, %s offen sc1' % (vpoll, vaddr, sr(srd, 4), soff))
    slow('s_waitcnt vmcnt(0)')
    slow('v_cmp_le_u32 vcc, %d, v%d' % (vexp, vpoll))
    slow('s_nop 1')
    slow('s_andn2_b32 s%d, 0x%x, vcc_lo' % (S_T2, mask))
    slow('s_cbranch_scc1 L_slow%d' % k)
    slow('s_branch L_ret%d' % k)


def poll_base(s):
    s('s_lshr_b32 s%d, s%d, 1' % (S_PL, S_I2))
    s('s_lshl2_add_u32 s%d, s%d, s%d' % (S_PL, S_PL, S_RW))
    s('s_mul_i32 s%d, s%d, %d' % (S_PL, S_PL, FL_G))
    s('s_add_u32 s%d, s%d, 0x%x' % (S_PL, S_PL, FL_OFF))
    s('v_cmp_gt_u32 vcc, 32, v%d' % V_L16)
    s('v_lshlrev_b32 v%d, 3, v%d' % (V_PL, V_L16))
    s('v_cndmask_b32 v%d, v%d, v%d, vcc' % (V_PL, V_FLO, V_PL))


def poll_async(s, k):
    s('buffer_load_dword v%d, v%d, %s, s%d offen offset:%d sc1' % (V_POLL, V_PL, sr(SWS, 4), S_PL, k * 256), ('poll', k))


def stage_check(s, k, miss=None, sync=False, scalar=False):
    if OPT['x_nopoll']:
        return
    j = nspin[0]
    nspin[0] += 1
    mask = 3 if k < 3 else 1
    if sync:
        s('s_branch L_slow%d' % j)
    else:
        s.wait(vm=[('poll', k)])
        s('v_cmp_ne_u32 vcc, 0, v%d' % V_POLL)
        s('s_andn2_b32 s%d, %d, vcc_lo' % (S_T2, mask))
        if miss:
            s('s_cbranch_scc1 %s' % miss)
            return
        s('s_cbranch_scc1 L_slow%d' % j)
    s('L_ret%d:' % j)
    slow('L_slow%d:' % j)
    slow('s_add_u32 s%d, s%d, 1' % (S_SPIN, S_SPIN))
    slow('s_cmp_gt_u32 s%d, 0x%x' % (S_SPIN, SPIN_LIMIT))
    slow('s_cbranch_scc1 L_ret%d' % j)
    if sync and k == 3 and OPT['back']:
        slow('s_sleep %d' % OPT['back'])
    if scalar:
        slow('s_add_u32 s%d, s%d, %d' % (S_T2, S_PL, k * 256))
        slow('s_add_u32 s%d, s%d, %d' % (S_T1, S_PL, k * 256 + (128 if k < 3 else 0)))
        slow('s_buffer_load_dword s%d, %s, s%d glc' % (S_T2, sr(SWS, 4), S_T2))
        if k < 3:
            slow('s_buffer_load_dword s%d, %s, s%d glc' % (S_T1, sr(SWS, 4), S_T1))
        slow('s_waitcnt lgkmcnt(0)')
        if k < 3:
            slow('s_and_b32 s%d, s%d, s%d' % (S_T2, S_T2, S_T1))
        slow('s_cmp_eq_u32 s%d, 0' % S_T2)
    else:
        slow('buffer_load_dword v%d, v%d, %s, s%d offen offset:%d sc1' % (V_POLL, V_PL, sr(SWS, 4), S_PL, k * 256))
        slow('s_waitcnt vmcnt(0)')
        slow('v_cmp_ne_u32 vcc, 0, v%d' % V_POLL)
        slow('s_nop 1')
        slow('s_andn2_b32 s%d, %d, vcc_lo' % (S_T2, mask))
    slow('s_cbranch_scc1 L_slow%d' % j)
    slow('s_branch L_ret%d' % j)


def poll_check(s, k, n, sync=False, atomic=False):
    j = nspin[0]
    nspin[0] += 1
    if OPT['x_nopoll']:
        return
    if sync:
        s('s_branch L_slow%d' % j)
    else:
        s.wait(vm=[('poll', k)])
        s('v_readfirstlane_b32 s%d, v%d' % (S_T2, V_POLL))
        s('s_cmp_lt_u32 s%d, %d' % (S_T2, n))
        s('s_cbranch_scc1 L_slow%d' % j)
    s('L_ret%d:' % j)
    slow('L_slow%d:' % j)
    slow('s_add_u32 s%d, s%d, 1' % (S_SPIN, S_SPIN))
    slow('s_cmp_gt_u32 s%d, 0x%x' % (S_SPIN, SPIN_LIMIT))
    slow('s_cbranch_scc1 L_ret%d' % j)
    if atomic:
        slow('v_mov_b32 v%d, 0' % V_POLL)
        slow('buffer_atomic_add v%d, v%d, %s, s%d offen offset:%d sc0 sc1' % (V_POLL, V_FLO, sr(SWS, 4), S_PL, k * 128))
        slow('s_waitcnt vmcnt(0)')
        slow('v_readfirstlane_b32 s%d, v%d' % (S_T2, V_POLL))
        slow('s_nop 0')
    else:
        slow('s_add_u32 s%d, s%d, %d' % (S_T2, S_PL, k * 128))
        slow('s_buffer_load_dword s%d, %s, s%d glc' % (S_T2, sr(SWS, 4), S_T2))
        slow('s_waitcnt lgkmcnt(0)')
    slow('s_cmp_lt_u32 s%d, %d' % (S_T2, n))
    slow('s_cbranch_scc1 L_slow%d' % j)
    slow('s_branch L_ret%d' % j)


def srd(s, d, nbytes):
    s('s_mov_b32 s%d, 0x%x' % (d + 2, nbytes))
    s('s_mov_b32 s%d, 0x20000' % (d + 3))


XSLOT = [R2, R2 + 16384, R1 + 8192, R1 + 24576, R1 + 40960, R2, R2 + 16384]


def kv_slot(n):
    return ((n + 4) % 9) * 16384


def prologue():
    s, T = Seg('pro'), V_T
    s('s_cmp_ge_u32 s2, 256')
    s('s_cbranch_scc1 L_end')
    estamp(s, 'en')
    if OPT['x_late']:
        s('s_bitcmp1_b32 0x%x, s2' % OPT['x_mask'])
        s('s_cbranch_scc0 L_nolate')
        s('s_sleep %d' % OPT['x_late'])
        s('L_nolate:')
    s('s_load_dwordx2 %s, s[0:1], 0' % sr(SX, 2))
    s('s_load_dwordx2 %s, s[0:1], 8' % sr(SW, 2))
    s('s_load_dwordx2 %s, s[0:1], 32' % sr(S_HI, 2))
    s('v_readfirstlane_b32 s%d, v0' % S_WV)
    s('s_getpc_b64 s[82:83]')
    s('s_lshr_b32 s%d, s2, 3' % S_T2)
    s('s_lshl_b32 s%d, s%d, 11' % (S_P, S_T2))
    s('v_lshl_add_u32 v%d, v0, 2, s%d' % (T, S_P))
    s('v_min_u32 v%d, L_codeend-L_codebeg-64, v%d' % (T, T))
    s('global_load_dword v%d, v%d, s[82:83]' % (V_POLL, T))
    s('s_lshr_b32 s%d, s%d, 6' % (S_WV, S_WV))
    s('v_and_b32 v%d, 63, v0' % T)
    if OPT['rmap'] < 0:
        s('s_and_b32 s%d, s%d, 7' % (S_ROLE, S_T2))
        s('v_lshrrev_b32 v%d, 3, v%d' % (T + 1, T))
        s('s_lshr_b32 s%d, s%d, 3' % (S_I2, S_T2))
    else:
        s('s_add_u32 s%d, s%d, %d' % (S_ROLE, S_T2, 4 * OPT['rmap']))
        s('v_lshrrev_b32 v%d, 3, v%d' % (T + 1, T))
        s('s_bfe_u32 s%d, s%d, 0x30002' % (S_ROLE, S_ROLE))
        s('s_and_b32 s%d, s%d, 3' % (S_I2, S_T2))
    s('v_lshrrev_b32 v%d, 4, v%d' % (T + 3, T))
    s('s_and_b32 s%d, s2, 1' % S_HALF)
    s('v_lshl_add_u32 v%d, s%d, 4, v%d' % (T + 5, S_WV, T + 1))
    s('s_bfe_u32 s%d, s2, 0x20001' % S_P)
    s('v_mul_u32_u24 v%d, %d, v%d' % (T + 5, XS, T + 5))
    s('s_lshl2_add_u32 s%d, s%d, s%d' % (S_RB, S_P, S_I2))
    s('v_xor_b32 v%d, v%d, v%d' % (T + 6, T, T + 3))
    s('s_add_u32 s%d, s%d, s%d' % (S_T2, S_I2, S_ROLE))
    s('v_and_b32 v%d, 7, v%d' % (T + 6, T + 6))
    s('s_and_b32 s%d, s%d, 1' % (S_T2, S_T2))
    s('v_lshl_add_u32 v%d, v%d, 4, v%d' % (V_X0, T + 6, T + 5))
    s('s_lshl2_add_u32 s%d, s%d, s%d' % (S_T2, S_HALF, S_T2))
    s('v_xor_b32 v%d, 64, v%d' % (V_X1, V_X0))
    s('s_lshl1_add_u32 s%d, s%d, s%d' % (S_T2, S_P, S_T2))
    s('v_add_u32 v%d, %d, v%d' % (V_X1, 8 * XS - 1024, V_X1))
    s('s_cmp_ge_u32 s%d, 7' % S_T2)
    s('s_cselect_b32 s%d, 7, 0' % S_T1)
    s('s_sub_u32 s%d, s%d, s%d' % (S_T2, S_T2, S_T1))
    s('s_mul_i32 s%d, s%d, %d' % (S_H, S_RB, 128 * XS))
    s('s_lshl_b32 s%d, s%d, 7' % (S_KX, S_T2))
    s('s_add_u32 s%d, s%d, s%d' % (S_KX, S_KX, S_H))
    s('s_lshl_b32 s%d, s%d, 11' % (S_M0X, S_WV))
    s('s_bitcmp1_b32 0x70, s%d' % S_ROLE)
    s('s_cselect_b32 s%d, 4, 7' % S_T3)
    s('s_lshl_b32 s%d, s%d, 14' % (S_T3, S_T3))
    s('s_add_u32 m0, s%d, s%d' % (S_T3, S_M0X))
    srd(s, SX, 2048 * XS)
    assert XSLOT[0] == 7 << 14 and kv_slot(0) == 4 << 14
    if OPT['touch'] & 8:
        s('s_lshl3_add_u32 s%d, s%d, s%d' % (S_T3, S_HALF, S_ROLE))
        s('v_min_u32 v%d, 6, v%d' % (T + 2, T))
        s('s_lshl3_add_u32 s%d, s%d, s%d' % (S_T3, S_T3, S_WV))
        s('v_lshlrev_b32 v%d, 7, v%d' % (T + 2, T + 2))
        s('s_mul_i32 s%d, s%d, %d' % (S_T3, S_T3, XS))
        s('s_add_u32 s%d, s%d, s%d' % (S_T3, S_T3, S_H))
    if OPT['xfirst']:
        s('s_waitcnt lgkmcnt(0)')
        estamp(s, 'ka')
        s('buffer_load_dwordx4 v%d, %s, s%d offen lds' % (V_X0, sr(SX, 4), S_KX), 't0')
        s('buffer_load_dwordx4 v%d, %s, s%d offen offset:1024 lds' % (V_X1, sr(SX, 4), S_KX), 't0')
        if OPT['touch'] & 8:
            s('buffer_load_dword v%d, v%d, %s, s%d offen' % (V_EXW, T + 2, sr(SX, 4), S_T3))
    s('s_and_b32 s%d, s%d, 3' % (S_RW, S_WV))
    s('s_lshr_b32 s%d, s%d, 2' % (S_G, S_WV))
    s('s_lshl_b32 s%d, s%d, 11' % (S_M0W, S_RW))
    s('s_mul_i32 s%d, s%d, 3' % (S_T0, S_HALF))
    s('v_lshlrev_b32 v%d, 2, v%d' % (T + 4, T + 3))
    s('s_add_u32 s%d, s%d, s%d' % (S_T0, S_T0, S_ROLE))
    s('v_xor_b32 v%d, v%d, v%d' % (T + 4, T, T + 4))
    s('s_lshl_b32 s%d, s%d, 7' % (S_T0, S_T0))
    s('s_add_u32 s%d, s%d, %d' % (S_T0, S_T0, XS - 512))
    s('s_lshl2_add_u32 s%d, s%d, s%d' % (S_P, S_HALF, S_ROLE))
    s('s_and_b32 s%d, s%d, 1' % (S_PEND, S_ROLE))
    s('s_lshl_b32 s%d, s%d, 6' % (S_PEND, S_PEND))
    s('s_movk_i32 s%d, %d' % (S_LAST, WQS))
    s('s_cmp_lt_u32 s%d, 4' % S_ROLE)
    s('s_cselect_b32 s%d, %d, s%d' % (S_LAST, W1S, S_LAST))
    s('s_cselect_b32 s%d, s%d, s%d' % (S_P, S_P, S_HALF))
    s('s_cselect_b32 s%d, s%d, 0' % (S_PEND, S_PEND))
    s('s_mul_i32 s%d, s%d, 448' % (S_T1, S_P))
    s('s_add_u32 s%d, s%d, s%d' % (S_T1, S_T1, S_PEND))
    s('s_lshl_b32 s%d, s%d, 6' % (S_RO, S_LAST))
    s('s_mul_i32 s%d, s%d, s%d' % (S_KW, S_T2, S_RO))
    s('s_mul_i32 s%d, s%d, 448' % (SW + 2, S_LAST))
    s('s_mov_b32 s%d, 0x20000' % (SW + 3))
    s('s_lshl_b32 s%d, s%d, 1' % (S_T2, S_RW))
    s('s_add_u32 s%d, s%d, %d' % (S_FL, S_M0X, kv_slot(1)))
    s('s_bitcmp1_b32 0x70, s%d' % S_ROLE)
    s('s_cselect_b32 s%d, s%d, s%d' % (S_T0, S_T0, S_T1))
    s('s_cselect_b32 s%d, s%d, s%d' % (S_T2, S_WV, S_T2))
    s('s_cselect_b32 s%d, s%d, s%d' % (S_FL, S_FL, S_M0W))
    s('s_cselect_b32 s%d, 4, 3' % S_T1)
    s('s_cselect_b32 s%d, 1, s%d' % (S_SPIN, S_G))
    s('v_lshrrev_b32 v%d, s%d, v%d' % (T + 5, S_T1, T))
    s('v_lshl_add_u32 v%d, s%d, 3, v%d' % (T + 5, S_T2, T + 5))
    s('v_bfe_u32 v%d, v%d, 0, s%d' % (T + 6, T + 4, S_T1))
    s('s_lshr_b32 s%d, s%d, s%d' % (S_T1, S_RO, S_T1))
    s('v_mul_u32_u24 v%d, s%d, v%d' % (T + 5, S_LAST, T + 5))
    s('s_sub_u32 s%d, s%d, 1024' % (S_T1, S_T1))
    s('v_lshl_add_u32 v%d, v%d, 4, s%d' % (T + 6, T + 6, S_T0))
    s('v_add_u32 v%d, v%d, v%d' % (V_W, T + 5, T + 6))
    s('s_cmp_lt_u32 s%d, 4' % S_ROLE)
    s('v_add_u32 v%d, s%d, v%d' % (V_WB, S_T1, V_W))
    if not OPT['xfirst']:
        s('s_waitcnt lgkmcnt(0)')
        estamp(s, 'ka')
        s('buffer_load_dwordx4 v%d, %s, s%d offen lds' % (V_X0, sr(SX, 4), S_KX), 't0')
        s('buffer_load_dwordx4 v%d, %s, s%d offen offset:1024 lds' % (V_X1, sr(SX, 4), S_KX), 't0')
        if OPT['touch'] & 8:
            s('buffer_load_dword v%d, v%d, %s, s%d offen' % (V_EXW, T + 2, sr(SX, 4), S_T3))
    s('s_cselect_b64 %s, %s, %s' % (sr(SW, 2), sr(S_HI, 2), sr(SW, 2)))
    s('s_mov_b32 m0, s%d' % S_FL)
    s('s_cmp_eq_u32 s%d, 0' % S_SPIN)
    s('s_cbranch_scc1 L_now')
    w = Seg('prow')
    w('buffer_load_dwordx4 v%d, %s, s%d offen lds' % (V_W, sr(SW, 4), S_KW), 't0')
    w('buffer_load_dwordx4 v%d, %s, s%d offen offset:1024 lds' % (V_WB, sr(SW, 4), S_KW), 't0')
    e = Seg('proe')
    e('L_now:')
    if OPT['touch'] & 16:
        e('v_min_u32 v%d, 55, v%d' % (T + 2, T))
        e('s_mul_i32 s%d, s%d, 28' % (S_T3, S_RB))
        e('v_lshrrev_b32 v%d, 1, v%d' % (T + 5, T + 2))
        e('s_mul_i32 s%d, s%d, s%d' % (S_T3, S_T3, S_LAST))
        e('v_mul_u32_u24 v%d, s%d, v%d' % (T + 5, S_LAST, T + 5))
        e('s_add_u32 s%d, s%d, s%d' % (S_T3, S_T3, S_T0))
        e('v_and_b32 v%d, 1, v%d' % (T + 2, T + 2))
        e('s_lshl_b32 s%d, s%d, 28' % (S_T2, S_WV))
        e('v_lshl_add_u32 v%d, v%d, 7, v%d' % (T + 2, T + 2, T + 5))
        e('s_add_u32 s%d, s%d, s%d' % (S_T3, S_T3, S_T2))
        e('buffer_load_dword v%d, v%d, %s, s%d offen' % (V_EXW, T + 2, sr(SW, 4), S_T3))
    estamp(e, 't0')
    for d, off in ((SWS, 80), (SB1, 40), (SDBG, 72), (SW2, 48), (SWO, 16), (SB2, 56), (SOUT, 64)):
        e('s_load_dwordx2 %s, s[0:1], %d' % (sr(d, 2), off))
    essential(e)
    e('s_cmp_ge_u32 s%d, 7' % S_ROLE)
    e('s_cbranch_scc1 L_q')
    e('s_cmp_ge_u32 s%d, 4' % S_ROLE)
    e('s_cbranch_scc1 L_kv')
    return s, w, e


def zipper(a, b):
    out = []
    for k in range(max(len(a), len(b))):
        out += a[k:k + 1] + b[k:k + 1]
    return out


def essential(z):
    T = V_T
    k, s = Seg(), Seg()
    k('s_add_u32 s%d, s%d, %d' % (S_T2, S_H, XS))
    for c in range(1, 7):
        k('s_add_u32 s%d, s%d, 128' % (S_KX + c, S_KX + c - 1))
        k('s_add_u32 s%d, s%d, s%d' % (S_KW + c, S_KW + c - 1, S_RO))
        k('s_cmp_eq_u32 s%d, s%d' % (S_KX + c, S_T2))
        k('s_cselect_b32 s%d, s%d, s%d' % (S_KX + c, S_H, S_KX + c))
        k('s_cselect_b32 s%d, 0, s%d' % (S_KW + c, S_KW + c))
    k('s_mov_b32 s%d, 0x3f803f80' % S_ONES)
    s('v_lshlrev_b32 v%d, 4, v%d' % (V_L16, T))
    s('v_and_b32 v%d, 1, v%d' % (T + 7, T + 3))
    s('v_and_b32 v%d, 31, v%d' % (T + 8, T))
    s('v_lshrrev_b32 v%d, 5, v%d' % (T + 9, T))
    s('v_bfe_u32 v%d, v%d, 2, 2' % (T + 10, T))
    s('v_and_b32 v%d, 3, v%d' % (T + 11, T))
    s('v_lshl_add_u32 v%d, s%d, 1, v%d' % (T + 12, S_RW, T + 9))
    s('v_bfe_u32 v%d, v%d, 1, 3' % (T + 5, T))
    s('v_xor_b32 v%d, v%d, v%d' % (T + 5, T + 12, T + 5))
    s('v_lshl_add_u32 v%d, s%d, 5, v%d' % (T + 13, S_RW, T + 8))
    s('v_lshlrev_b32 v%d, 7, v%d' % (V_XA, T + 13))
    s('v_lshl_add_u32 v%d, v%d, 4, v%d' % (V_XA, T + 5, V_XA))
    for j in range(1, 4):
        s('v_xor_b32 v%d, %d, v%d' % (V_XA + j, j << 5, V_XA))
    s('v_lshl_add_u32 v%d, v%d, 3, v%d' % (T + 12, T + 12, T + 10))
    s('v_lshl_add_u32 v%d, v%d, 2, v%d' % (T + 14, T + 7, T + 11))
    if OPT['sel1']:
        s('v_and_b32 v%d, 7, v%d' % (T + 5, T + 4))
        s('v_mov_b32 v%d, 0x3f803f80' % (T + 6))
        s('v_cmp_eq_u32 vcc, 0, v%d' % (T + 5))
    else:
        s('v_and_b32 v%d, 1, v%d' % (T + 5, T + 10))
        s('v_mov_b32 v%d, 0x3f803f80' % (T + 6))
        s('v_cmp_eq_u32 vcc, v%d, v%d' % (T + 5, T + 7))
    for j in range(4):
        s('v_mov_b32 v%d, 0' % (V_ST + j))
    for j in range(4):
        s('v_cndmask_b32 v%d, 0, v%d, vcc' % (V_SEL + j, T + 6))
    s('v_mov_b32 v%d, 0x%x' % (V_FLO, OOB))
    s('v_cmp_eq_u32 vcc, 0, v%d' % T)
    s('v_mov_b32 v%d, 1' % V_ONE)
    s('v_mov_b32 v%d, 0' % (V_EXW + 1))
    s('v_cndmask_b32 v%d, v%d, 0, vcc' % (V_FLO, V_FLO))
    z.extend(zipper(list(k), list(s)))


def deferred(kv):
    s, T = Seg(), V_T
    for k in EARLY:
        if OPT['diag'] and k in STAMPS:
            s('v_readfirstlane_b32 s%d, v%d' % (S_KA + 2 * STAMPS.index(k), 120 + EARLY.index(k)))
    srd(s, SW2, 1792 * XS)
    srd(s, SWO, 448 * XS)
    srd(s, SOUT, 2048 * XS)
    srd(s, SB2, 448 * 2)
    s('s_mov_b32 s%d, %s' % (S_EPS, f32(1e-6)))
    s('s_mov_b32 s%d, %s' % (S_L2E, f32(LOG2E)))
    s('s_mov_b32 s%d, 0' % S_HI)
    s('s_mov_b32 s%d, -1' % (S_HI + 1))
    if kv:
        s('s_mov_b32 s%d, 0xf0000000' % S_PAD)
        s('s_mov_b32 s%d, 0xf0000000' % (S_PAD + 1))
        s('v_mov_b32 v%d, 0' % (V_EXW + 3))
    s('s_mov_b32 s%d, 0' % S_SPIN)
    s('v_and_b32 v%d, 7, v%d' % (T + 4, T + 4))
    s('v_mul_u32_u24 v%d, %d, v%d' % (V_B2, XS, T + 1))
    s('v_lshl_add_u32 v%d, v%d, 4, v%d' % (V_B2, T + 4, V_B2))
    if kv:
        s('s_mov_b32 s%d, %d' % (S_T1, M_CS))
    else:
        s('s_lshl_b32 s%d, s%d, 9' % (S_T1, S_G))
        s('s_add_u32 s%d, s%d, %d' % (S_T1, S_T1, M_CS))
    s('v_lshl_add_u32 v%d, v%d, 4, s%d' % (V_CSR, T + 8, S_T1))
    s('v_lshl_add_u32 v%d, s%d, 2, v%d' % (V_CSW, S_RW, V_CSR))
    s('s_lshl2_add_u32 s%d, s%d, %d' % (S_T1, S_WV, M_SY))
    s('v_mov_b32 v%d, s%d' % (V_PA, S_T1))
    for k in ((0, 128, 160, 192, 224) if kv else (0,)):
        s('ds_write_b32 v%d, v%d offset:%d' % (V_PA, V_EXW + 1, k))
    if not kv:
        s('v_lshlrev_b32 v%d, 2, v%d' % (V_EXR + 1, T + 13))
        s('v_add_u32 v%d, %d, v%d' % (V_EXR, M_ST, V_EXR + 1))
    s('s_and_b32 s%d, s2, 7' % S_T1)
    s('s_lshl2_add_u32 s%d, s%d, s%d' % (S_I2, S_T1, S_I2))
    if OPT['rot2'] == 2:
        s('s_add_u32 s%d, s%d, s%d' % (S_T1, S_I2, S_ROLE))
    elif OPT['rot2'] == 3:
        s('s_add_u32 s%d, s%d, s%d' % (S_T1, S_I2, S_ROLE))
        s('s_and_b32 s%d, s%d, 3' % (S_T1, S_T1))
    elif OPT['rot2'] == 4:
        s('s_add_u32 s%d, s%d, s%d' % (S_T1, S_I2, S_ROLE))
        s('s_and_b32 s%d, s%d, 1' % (S_T1, S_T1))
    else:
        s('s_lshl1_add_u32 s%d, s%d, s%d' % (S_T1, S_I2, S_ROLE))
    s('s_and_b32 s%d, s%d, 3' % (S_RO, S_T1))
    s('s_and_b32 s%d, s%d, 4' % (S_T1, S_T1))
    s('s_lshl2_add_u32 s%d, s%d, s%d' % (S_RO, S_T1, S_RO))
    if not OPT['rot2']:
        s('s_mov_b32 s%d, 0' % S_RO)
    return s


def tlb_warm(s):
    if not OPT['tlb']:
        return
    T = V_T
    s('s_cmp_eq_u32 s%d, 0' % S_WV)
    s('s_cselect_b32 s%d, 128, 0x%x' % (S_T1, OOB))
    for r in (SDBG, SW2, SWO, SB2, SOUT):
        s('buffer_load_dword v%d, v%d, %s, s%d offen' % (T + 15, V_FLO, sr(r, 4), S_T1))
    s('v_lshlrev_b32 v%d, 17, v%d' % (T + 5, V_L16))
    s('v_min_u32 v%d, 0x%x, v%d' % (T + 5, 0x9f0000, T + 5))
    s('buffer_load_dword v%d, v%d, %s, s%d offen' % (T + 15, T + 5, sr(SWS, 4), S_T1))


def dma_x(s, c, addr, tag):
    s('s_add_u32 m0, s%d, %d' % (S_M0X, addr))
    s('buffer_load_dwordx4 v%d, %s, s%d offen lds' % (V_X0, sr(SX, 4), S_KX + c), tag)
    s('buffer_load_dwordx4 v%d, %s, s%d offen offset:1024 lds' % (V_X1, sr(SX, 4), S_KX + c), tag)


def dma_w(s, m0base, c, addr, tag):
    s('s_add_u32 m0, s%d, %d' % (m0base, addr))
    s('buffer_load_dwordx4 v%d, %s, s%d offen lds' % (V_W, sr(SW, 4), S_KW + c), tag)
    s('buffer_load_dwordx4 v%d, %s, s%d offen offset:1024 lds' % (V_WB, sr(SW, 4), S_KW + c), tag)


def groups(z):
    out, cur = [], []
    for i in z:
        cur.append(i)
        if i.kind == 'vmem':
            out.append(cur)
            cur = []
    if cur:
        out.append(cur)
    return out


def mix(main, grp, lo=0.0, hi=1.0):
    main = [i for i in main if i is not GAP]
    out, k, n = [], 0, len(main)
    for idx, i in enumerate(main):
        while k < len(grp) and idx >= n * (lo + (hi - lo) * k / len(grp)):
            out.extend(grp[k])
            k += 1
        out.append(i)
    for g in grp[k:]:
        out.extend(g)
    return out


def barrier(z, vm=None, name=None):
    if name:
        stamp(z, name + 'a')
    z.wait(vm=vm, lgkm='all')
    if name:
        stamp(z, name + 'b')
    z('s_barrier')


BLK = [0, 4, 1, 5, 2, 6, 3]


def unit_ks(u):
    return 4 * BLK[u >> 2] + (u & 3)


R3 = R1 + 28672
S_QR3 = 100
V_W3, V_WA3 = 125, 126
V_B2S = 0
BA = [4, 5, 6, 7, 13, 15]
RING = [11]


def unit_loc(u):
    u %= RING[0]
    if u < 5:
        return S_QR2, 1, u * 2048
    if u < RING[0] - 6:
        return S_QR3, 2, (u - 5) * 2048
    return S_QR0, 0, (u - RING[0] + 6) * 2048


def p2_setup(s):
    S_T0 = S_T1
    s('s_lshl_b32 s%d, s%d, 7' % (S_T0, S_ROLE))
    s('s_mul_i32 s%d, s%d, %d' % (S_B2R, S_RW, 448 * XS))
    s('s_add_u32 s%d, s%d, s%d' % (S_B2R, S_B2R, S_T0))
    s('s_lshr_b32 s%d, s%d, 1' % (S_WOR, S_RW))
    s('s_mul_i32 s%d, s%d, 6' % (S_WOR, S_WOR))
    s('s_add_u32 s%d, s%d, s%d' % (S_WOR, S_WOR, S_RW))
    s('s_mul_i32 s%d, s%d, %d' % (S_WOR, S_WOR, 28 * XS))
    s('s_add_u32 s%d, s%d, s%d' % (S_WOR, S_WOR, S_T0))
    s('s_mul_i32 s%d, s%d, %d' % (S_OUTO, S_I2, 64 * XS))
    s('s_add_u32 s%d, s%d, s%d' % (S_OUTO, S_OUTO, S_T0))
    s('s_mul_i32 s%d, s%d, 12288' % (S_QR0, S_RW))
    s('s_mul_i32 s%d, s%d, 10240' % (S_QR2, S_RW))
    s('s_add_u32 s%d, s%d, %d' % (S_QR2, S_QR2, R2))
    if RING[0] == 14:
        s('s_mul_i32 s%d, s%d, 6144' % (S_QR3, S_RW))
        s('s_add_u32 s%d, s%d, %d' % (S_QR3, S_QR3, R3))
    s('s_mul_i32 s%d, s%d, %d' % (S_A, S_I2, 2 * ACT_G))


def b2b_setup(s):
    s('v_add_u32 v%d, %d, v%d' % (V_B2B, 8 * XS - 1024, V_B2))


def touch_w(s, ffn, junk=127):
    if not OPT['touch'] & 1:
        return
    T = V_T
    s('s_and_b32 s%d, s%d, 3' % (S_T2, S_ROLE))
    s('s_lshl2_add_u32 s%d, s%d, s%d' % (S_T2, S_RB, S_T2))
    s('s_lshl3_add_u32 s%d, s%d, s%d' % (S_T2, S_T2, S_WV))
    s('s_mul_i32 s%d, s%d, %d' % (S_T2, S_T2, W1S if ffn else WQS))
    s('s_mul_i32 s%d, s%d, %d' % (S_T3, S_HALF, 1792 if ffn else 384))
    s('s_add_u32 s%d, s%d, s%d' % (S_T2, S_T2, S_T3))
    if ffn:
        s('v_min_u32 v%d, 13, v%d' % (T + 2, T))
    else:
        s('v_min_u32 v%d, 11, v%d' % (T + 2, T))
        s('v_lshrrev_b32 v%d, 2, v%d' % (T + 15, T + 2))
        s('v_mad_u32_u24 v%d, v%d, 3, v%d' % (T + 2, T + 15, T + 2))
    s('v_lshlrev_b32 v%d, 7, v%d' % (T + 2, T + 2))
    s('buffer_load_dword v%d, v%d, %s, s%d offen' % (junk, T + 2, sr(SW, 4), S_T2))


def touch_qv(s, junk=127):
    T = V_T
    s('s_lshl3_add_u32 s%d, s%d, s%d' % (S_T2, S_RB, S_WV))
    s('s_mul_i32 s%d, s%d, %d' % (S_T2, S_T2, 4 * WQS))
    s('s_mul_i32 s%d, s%d, 384' % (S_T3, S_HALF))
    s('s_add_u32 s%d, s%d, s%d' % (S_T2, S_T2, S_T3))
    s('v_min_u32 v%d, 31, v%d' % (T + 2, T))
    s('v_lshrrev_b32 v%d, 3, v%d' % (T + 15, T + 2))
    s('v_mad_u32_u24 v%d, v%d, 13, v%d' % (T + 15, T + 15, T + 2))
    s('v_bfe_u32 v%d, v%d, 2, 1' % (T + 2, T + 2))
    s('v_mad_u32_u24 v%d, v%d, 10, v%d' % (T + 2, T + 2, T + 15))
    s('v_lshlrev_b32 v%d, 7, v%d' % (T + 2, T + 2))
    s('buffer_load_dword v%d, v%d, %s, s%d offen' % (junk, T + 2, sr(SW, 4), S_T2))


def touch_ffn(s, t, junk=127):
    s('s_lshl3_add_u32 s%d, s%d, s%d' % (S_T2, S_RB, S_P))
    s('s_lshl2_add_u32 s%d, s%d, s%d' % (S_T2, S_T2, S_RW))
    s('v_min_u32 v%d, %d, v%d' % (t, 24 * 16, V_L16))
    s('s_mul_i32 s%d, s%d, %d' % (S_T3, S_T2, 25 * 128))
    s('v_lshlrev_b32 v%d, 3, v%d' % (t, t))
    s('buffer_load_dword v%d, v%d, %s, s%d offen' % (junk, t, sr(SW2, 4), S_T3))
    s('v_min_u32 v%d, %d, v%d' % (t, 6 * 128, t))
    s('s_mul_i32 s%d, s%d, %d' % (S_T3, S_T2, 7 * 128))
    s('buffer_load_dword v%d, v%d, %s, s%d offen' % (junk, t, sr(SWO, 4), S_T3))


def touch_fl2(s, h, t, junk=127):
    k = h - OPT['tf0']
    if not OPT['touch'] & 256 or not 0 <= k < 4 or not OPT['rounds'] >> k & 1:
        return
    s('s_add_u32 s%d, s2, %d' % (S_T3, k))
    s('s_and_b32 s%d, s%d, 3' % (S_T3, S_T3))
    s('s_and_b32 s%d, s%d, 3' % (S_T2, S_I2))
    s('s_lshl2_add_u32 s%d, s%d, s%d' % (S_T3, S_T3, S_T2))
    s('s_lshl2_add_u32 s%d, s%d, s%d' % (S_T3, S_T3, S_ROLE))
    s('s_lshl2_add_u32 s%d, s%d, s%d' % (S_T3, S_T3, S_RW))
    s('v_min_u32 v%d, %d, v%d' % (t, 48 * 16, V_L16))
    s('s_mul_i32 s%d, s%d, %d' % (S_T3, S_T3, 7 * XS))
    s('v_lshlrev_b32 v%d, 3, v%d' % (t, t))
    s('buffer_load_dword v%d, v%d, %s, s%d offen' % (junk, t, sr(SW2, 4), S_T3))


def touch_w2(s):
    if not OPT['touch'] & 2:
        return
    T = V_T
    s('s_lshl3_add_u32 s%d, s2, s%d' % (S_T2, S_WV))
    s('s_mul_i32 s%d, s%d, %d' % (S_T2, S_T2, XS))
    s('v_min_u32 v%d, 6, v%d' % (T + 2, T))
    s('v_lshlrev_b32 v%d, 7, v%d' % (T + 2, T + 2))
    s('s_sub_u32 s%d, %d, s%d' % (S_T3, 2047 * XS, S_T2))
    s('buffer_load_dword v%d, v%d, %s, s%d offen' % (V_POLL, T + 2, sr(SW2, 4), S_T2))
    s('buffer_load_dword v%d, v%d, %s, s%d offen' % (V_POLL, T + 2, sr(SWO, 4), S_T3))


def touch_kv(s):
    if not OPT['touch'] & 4:
        return
    T = V_T + 8
    s('s_mul_i32 s%d, s%d, 6' % (S_T2, S_RB))
    s('s_add_u32 s%d, s%d, s%d' % (S_T2, S_T2, S_P))
    s('s_lshl2_add_u32 s%d, s%d, s%d' % (S_T2, S_T2, S_RW))
    s('v_min_u32 v%d, %d, v%d' % (T, 32 * 16, V_L16))
    s('s_mul_i32 s%d, s%d, %d' % (S_T3, S_T2, 33 * 128))
    s('v_lshlrev_b32 v%d, 3, v%d' % (T, T))
    s('buffer_load_dword v%d, v%d, %s, s%d offen' % (T + 1, T, sr(SW2, 4), S_T3))
    s('v_min_u32 v%d, %d, v%d' % (T, 8 * 128, T))
    s('s_mul_i32 s%d, s%d, %d' % (S_T3, S_T2, 9 * 128))
    s('buffer_load_dword v%d, v%d, %s, s%d offen' % (T + 1, T, sr(SWO, 4), S_T3))


def touch_l2(s, r, t):
    if not OPT['touch'] & 32 or not OPT['rounds'] >> r & 1:
        return
    s('s_add_u32 s%d, s2, %d' % (S_T3, r))
    s('s_and_b32 s%d, s%d, 3' % (S_T3, S_T3))
    s('s_mul_i32 s%d, s%d, 49' % (S_T3, S_T3))
    s('s_lshr_b32 s%d, s2, 6' % S_T2)
    s('s_mul_i32 s%d, s%d, 3' % (S_T2, S_T2))
    s('s_add_u32 s%d, s%d, s%d' % (S_T2, S_T2, S_ROLE))
    s('s_lshl2_add_u32 s%d, s%d, s%d' % (S_T2, S_T2, S_RW))
    s('s_add_u32 s%d, s%d, s%d' % (S_T3, S_T3, S_T2))
    s('s_sub_u32 s%d, s%d, 16' % (S_T3, S_T3))
    s('v_lshlrev_b32 v%d, 3, v%d' % (t, V_L16))
    s('s_lshl_b32 s%d, s%d, 13' % (S_T3, S_T3))
    s('buffer_load_dword v%d, v%d, %s, s%d offen' % (t, t, sr(SW2, 4), S_T3))


def touch_wo(s, t):
    if not OPT['touch'] & (32 | 256):
        return
    s('s_and_b32 s%d, s%d, 3' % (S_T2, S_I2))
    s('s_lshl3_add_u32 s%d, s%d, s%d' % (S_T2, S_T2, S_WV))
    s('v_min_u32 v%d, %d, v%d' % (t, 48 * 16, V_L16))
    s('s_mul_i32 s%d, s%d, %d' % (S_T2, S_T2, 14 * XS))
    s('v_lshlrev_b32 v%d, 3, v%d' % (t, t))
    s('s_add_u32 s%d, s%d, %d' % (S_T3, S_T2, 7 * XS))
    s('buffer_load_dword v%d, v%d, %s, s%d offen' % (t + 1, t, sr(SWO, 4), S_T2))
    s('buffer_load_dword v%d, v%d, %s, s%d offen' % (t + 1, t, sr(SWO, 4), S_T3))


def ks_dyn(s, dst, u):
    if u < 24:
        s('s_xor_b32 s%d, s%d, %d' % (dst, S_RO, unit_ks(u)))
    else:
        s('s_and_b32 s%d, s%d, 3' % (dst, S_RO))
        s('s_xor_b32 s%d, s%d, %d' % (dst, dst, unit_ks(u)))


def dma_b2(s, u):
    base, _, off = unit_loc(u)
    if u < 28:
        ks_dyn(s, S_T3, u)
        if OPT['x_hit'] & 2:
            s('s_and_b32 s%d, s%d, 7' % (S_T3, S_T3))
        s('s_add_u32 m0, s%d, %d' % (base, off))
        s('s_mul_i32 s%d, s%d, %d' % (S_T3, S_T3, 16 * XS))
        s('s_add_u32 s%d, s%d, s%d' % (S_T3, S_T3, S_B2R))
        s('buffer_load_dwordx4 v%d, %s, s%d offen lds' % (V_B2, sr(SW2, 4), S_T3), ('b', u))
        s('buffer_load_dwordx4 v%d, %s, s%d offen offset:1024 lds' % (V_B2B, sr(SW2, 4), S_T3), ('b', u))
        return
    s('s_add_u32 m0, s%d, %d' % (base, off))
    for h in range(2):
        p, r = divmod(2 * (u - 28) + h, 7)
        row = 112 * p + (8 * r if r <= 3 else 56 + 8 * (r - 4))
        s('s_add_u32 s%d, s%d, %d' % (S_T3, S_WOR, row * XS - h * 1024))
        s('buffer_load_dwordx4 v%d, %s, s%d offen offset:%d lds' % (V_B2S if r == 3 else V_B2, sr(SWO, 4), S_T3, h * 1024), ('b', u))


V_OUT, V_RD, V_U = 8, 9, 248


def res_load(R):
    s = Seg()
    s('v_lshrrev_b32 v%d, 3, v0' % (R + 8))
    s('v_and_b32 v%d, 0x70, v%d' % (R + 9, V_L16))
    s('v_mul_u32_u24 v%d, %d, v%d' % (R + 8, XS, R + 8))
    s('s_lshl_b32 s%d, s%d, 7' % (S_T2, S_ROLE))
    s('v_add_u32 v%d, v%d, v%d' % (R + 8, R + 8, R + 9))
    s('buffer_load_dwordx4 %s, v%d, %s, s%d offen' % (vr(R, 4), R + 8, sr(SX, 4), S_OUTO), 'res')
    s('buffer_load_dwordx4 %s, v%d, %s, s%d offen' % (vr(R + 4, 4), R + 9, sr(SB2, 4), S_T2), 'res')
    return s


def res_unpack(R):
    z, U = Seg(), V_U
    z('v_mov_b32 v%d, v%d' % (V_OUT, R + 8))
    z.wait(vm='res')
    for k in range(4):
        z('v_lshlrev_b32 v%d, 16, v%d' % (U + 2 * k, R + k))
        z('v_and_b32 v%d, 0xffff0000, v%d' % (U + 2 * k + 1, R + k))
        z('v_lshlrev_b32 v%d, 16, v%d' % (R + k, R + 4 + k))
        z('v_and_b32 v%d, 0xffff0000, v%d' % (R + 4 + k, R + 4 + k))
        z('v_add_f32 v%d, v%d, v%d' % (U + 2 * k, U + 2 * k, R + k))
        z('v_add_f32 v%d, v%d, v%d' % (U + 2 * k + 1, U + 2 * k + 1, R + 4 + k))
    return z


RES_F, RES_KA, RES_KB = 108, V_X + 84, V_ACC


def abuf(u, rg):
    return V_AB + 8 * (u % DEP) + 4 * rg if u < 28 else V_AB + 64 + 8 * (u - 28) + 4 * rg


def a_setup(s):
    s('v_add_u32 v%d, %d, v%d' % (V_L16B, ACT_G, V_L16))
    s('s_mul_i32 s%d, s%d, 7168' % (S_T0, S_RW))
    s('s_add_u32 s%d, s%d, s%d' % (S_P, S_A, S_T0))
    s('s_add_u32 s%d, s%d, %d' % (S_P, S_P, 112 * 1024))
    s('s_add_u32 s%d, s%d, 4096' % (S_RO3, S_P))
    s('s_mul_i32 s%d, s%d, %d' % (S_T0, S_RW, 28 * 1024))
    s('s_add_u32 s%d, s%d, s%d' % (S_A, S_A, S_T0))


def aload(z, u):
    ks_dyn(z, S_T0, u)
    z('s_lshl_b32 s%d, s%d, 10' % (S_T0, S_T0))
    z('s_add_u32 s%d, s%d, s%d' % (S_T0, S_T0, S_A))
    for rg in range(2):
        z('buffer_load_dwordx4 %s, v%d, %s, s%d offen sc1' % (vr(abuf(u, rg), 4), V_L16B if rg else V_L16, sr(SWS, 4), S_T0), ('a', u))


def sync_arrive(s, k):
    s('ds_write_b32 v%d, v%d offset:%d' % (V_PA, V_ONE, k * 32))


def sync_wait(s, k, nw, T):
    j = nspin[0]
    nspin[0] += 1
    s('v_mov_b32 v%d, %d' % (T + 8, M_SY))
    s('L_sy%d:' % j)
    for h in range(nw // 4):
        s('ds_read_b128 %s, v%d offset:%d' % (vr(T + 4 * h, 4), T + 8, k * 32 + h * 16))
    s('s_add_u32 s%d, s%d, 1' % (S_SPIN, S_SPIN))
    s('s_cmp_gt_u32 s%d, 0x%x' % (S_SPIN, SPIN_LIMIT))
    s('s_cbranch_scc1 L_sz%d' % j)
    s.wait(lgkm='all')
    for h in range(1, nw - 1, 2):
        s('v_and_b32 v%d, v%d, v%d' % (T + h, T + h, T + h + 1))
    for h in range(1, nw, 2):
        s('v_and_b32 v%d, v%d, v%d' % (T, T, T + h))
    s('v_readfirstlane_b32 s%d, v%d' % (S_T2, T))
    s('s_cmp_eq_u32 s%d, 0' % S_T2)
    s('s_cbranch_scc1 L_sy%d' % j)
    s('L_sz%d:' % j)
    s.wait(lgkm='all')


def flag(s, off):
    if OPT['fatom']:
        s('buffer_atomic_add v%d, v%d, %s, s%d offen offset:%d sc1' % (V_ONE, V_FLO, sr(SWS, 4), S_FL, off))
    else:
        s('buffer_store_dword v%d, v%d, %s, s%d offen offset:%d sc1' % (V_ONE, V_FLO, sr(SWS, 4), S_FL, off))


def f0_load(s):
    s('buffer_load_dword v%d, v%d, %s, 0 offen sc1' % (V_POLL, V_FLO, sr(SDBG, 4)), 'f0')


def f0_check(s):
    stamp(s, 'f0a')
    s.wait(vm='f0')
    stamp(s, 'f0b')
    spin_check(s, V_POLL, 32, V_FLO, SDBG, '0', 1)


def poll_early(s):
    poll_base(s)
    poll_async(s, 0)


def xreg(c, j):
    return V_X + 16 * c + 4 * j


def dots(s, c):
    for j in range(4):
        s.wait(lgkm=[('x', c, j)])
        for r in range(4):
            x = xreg(c, j) + r
            s('v_dot2c_f32_bf16 v%d, s%d, v%d' % (V_ST + (r & 1), S_ONES, x))
            s('v_dot2c_f32_bf16 v%d, v%d, v%d' % (V_ST + 2 + (r & 1), x, x))


def stats_pack(s):
    T = V_T
    s('v_add_f32 v%d, v%d, v%d' % (T, V_ST, V_ST + 1))
    s('v_add_f32 v%d, v%d, v%d' % (T + 2, V_ST, V_ST + 1))
    s('v_add_f32 v%d, v%d, v%d' % (T + 1, V_ST + 2, V_ST + 3))
    s('v_add_f32 v%d, v%d, v%d' % (T + 3, V_ST + 2, V_ST + 3))
    s('v_permlane32_swap_b32 v%d, v%d' % (T, T + 2))
    s('v_permlane32_swap_b32 v%d, v%d' % (T + 1, T + 3))
    s('v_add_f32 v%d, v%d, v%d' % (T, T, T + 2))
    s('v_add_f32 v%d, v%d, v%d' % (T + 1, T + 1, T + 3))
    s('v_mul_f32 v%d, %s, v%d' % (T, f32(1.0 / 448), T))
    s('v_mul_f32 v%d, %s, v%d' % (T + 1, f32(1.0 / 448), T + 1))
    s('v_fma_f32 v%d, -v%d, v%d, v%d' % (T + 1, T, T, T + 1))
    s('v_max_f32 v%d, 0, v%d' % (T + 1, T + 1))
    s('v_cvt_pk_bf16_f32 v%d, v%d, v%d' % (T + 1, T + 1, T + 1))
    s('v_lshlrev_b32 v%d, 16, v%d' % (T + 1, T + 1))
    s('v_add_f32 v%d, %s, v%d' % (T + 1, f32(1e-5), T + 1))
    s('v_cvt_pk_bf16_f32 v%d, v%d, v%d' % (T + 1, T + 1, T + 1))
    s('v_lshlrev_b32 v%d, 16, v%d' % (T + 1, T + 1))
    s('v_sqrt_f32 v%d, v%d' % (T + 1, T + 1))
    s('v_cvt_pk_bf16_f32 v%d, -v%d, v%d' % (T, T, T + 1))
    s('ds_write_b32 v%d, v%d' % (V_EXR, T))


def stats_final(kind, read=True):
    s, T = Seg(), V_T
    if read:
        s('ds_read_b32 v%d, v%d' % (T, V_EXR), 'st')
        s.wait(lgkm='st')
    s('v_and_b32 v%d, 0xffff0000, v%d' % (V_ST + 2, T))
    s('v_rcp_f32 v%d, v%d' % (V_ST + 3, V_ST + 2))
    s('v_cndmask_b32 v%d, v%d, 0, %s' % (T, T, sr(S_HI, 2)))
    s('v_and_b32 v%d, 0xffff, v%d' % (T + 1, T))
    s('v_lshl_or_b32 v%d, v%d, 16, v%d' % (V_EXR, T, T + 1))
    s('v_lshrrev_b32 v%d, 16, v%d' % (V_EXR + 1, T))
    if kind == 'gelu':
        s('v_mul_f32 v%d, %s, v%d' % (V_ST, f32(GC1), V_ST + 3))
        s('v_mul_f32 v%d, v%d, v%d' % (T, V_ST + 3, V_ST + 3))
        s('v_mul_f32 v%d, %s, v%d' % (V_ST + 1, f32(GC3), V_ST + 3))
        s('v_mul_f32 v%d, v%d, v%d' % (V_ST + 1, T, V_ST + 1))
    else:
        s('v_mul_f32 v%d, s%d, v%d' % (V_ST, S_L2E, V_ST + 3))
    return s


def ext_parts(acc, off, exw, swap, bias=None, T=V_T + 8):
    r, b, m = Seg(), Seg(), Seg()
    tag = ('cs', id(r))
    r('ds_read_b128 %s, v%d offset:%d' % (vr(T, 4), V_CSR, off), tag)
    b.wait(lgkm=[tag])
    b('v_add_f32 v%d, v%d, v%d' % (T, T, T + 1))
    b('v_add_f32 v%d, v%d, v%d' % (T + 2, T + 2, T + 3))
    b('v_add_f32 v%d, v%d, v%d' % (T, T, T + 2))
    b('v_cvt_pk_bf16_f32 v%d, v%d, v%d' % (T + 1, T, T))
    b('v_lshlrev_b32 v%d, 16, v%d' % (T + 1, T + 1))
    b('v_sub_f32 v%d, v%d, v%d' % (T + 1, T, T + 1))
    b('v_cvt_pk_bf16_f32 v%d, v%d, v%d' % (exw, T, T + 1))
    if bias is not None:
        r('v_mov_b32 v%d, v%d' % (exw + 1, bias))
    x, y = (V_EXR, exw) if swap else (exw, V_EXR)
    m('v_mfma_f32_32x32x8_bf16 %s, %s, %s, %s' % (vr(acc, 16), vr(x, 2), vr(y, 2), vr(acc, 16)))
    KEEP.append(r)
    return r, b, m


KEEP = []


def head(parts, stats=None):
    st = [i for i in stats if i is not GAP] if stats is not None else []
    out = st[:1]
    for p in parts:
        out += p[0]
    out += st[1:]
    for p in parts:
        out += p[1]
    for p in parts:
        out += p[2]
    return out


def epi_rowlane(kind, acc, tag, handoff=False, keep=None):
    s, T = Seg(), V_T
    for grp in range(4):
        a = [acc + 4 * grp + e for e in range(4)]
        t = [T + e for e in range(4)]
        if kind == 'gelu':
            for e in range(4):
                s('v_mul_f32 v%d, v%d, v%d' % (t[e], a[e], a[e]))
            for e in range(4):
                s('v_fma_f32 v%d, v%d, v%d, v%d' % (t[e], t[e], V_ST + 1, V_ST))
            for e in range(4):
                s('v_mul_f32 v%d, v%d, v%d' % (t[e], a[e], t[e]))
            for e in range(4):
                s('v_exp_f32 v%d, v%d' % (t[e], t[e]))
            for e in range(4):
                s('v_fma_f32 v%d, v%d, v%d, v%d' % (t[e], t[e], V_ST + 2, V_ST + 2))
            for e in range(4):
                s('v_rcp_f32 v%d, v%d' % (t[e], t[e]))
            for e in range(4):
                s('v_mul_f32 v%d, v%d, v%d' % (a[e], a[e], t[e]))
        else:
            for e in range(4):
                s('v_mul_f32 v%d, v%d, v%d' % (t[e], a[e], V_ST))
            for e in range(4):
                s('v_exp_f32_e64 v%d, v%d clamp' % (t[e], t[e]))
            for e in range(4):
                s('v_fma_f32 v%d, v%d, v%d, s%d' % (a[e], a[e], V_ST + 3, S_EPS))
            for e in range(4):
                s('v_max_f32 v%d, s%d, v%d' % (a[e], S_EPS, a[e]))
            for e in range(4):
                s('v_add_f32 v%d, v%d, v%d' % (a[e], a[e], t[e]))
        p = acc + 8 * (grp >> 1) + 2 * (grp & 1) if keep is None else keep + 2 * grp
        s('v_cvt_pk_bf16_f32 v%d, v%d, v%d' % (p, a[0], a[1]))
        s('v_cvt_pk_bf16_f32 v%d, v%d, v%d' % (p + 1, a[2], a[3]))
        if kind == 'phi' and grp == 3:
            s('v_cndmask_b32 v%d, v%d, 0, %s' % (p, p, sr(S_HI, 2)))
            s('v_cndmask_b32 v%d, v%d, 0, %s' % (p + 1, p + 1, sr(S_HI, 2)))
        if grp & 1 and keep is None:
            f = grp >> 1
            if handoff:
                s('ds_write_b128 v%d, %s offset:%d' % (V_RA, vr(acc + 8 * f, 4), f * 1024))
                continue
            s('buffer_store_dwordx4 %s, v%d, %s, s%d offen offset:%d sc1' % (vr(acc + 8 * f, 4), V_L16, sr(SWS, 4), S_H, f * 1024), tag)
    return s


def zpad(s):
    T = V_T
    s('v_cmp_eq_u32 vcc, 7, v%d' % (T + 14))
    s('v_mov_b32 v%d, 0x%x' % (T + 5, OPT['zpad'] << 13))
    s('v_cndmask_b32 v%d, v%d, v%d, vcc' % (T + 14, T + 14, T + 5))


def sparse_sel(s, sp, idx):
    T = V_T
    s('v_and_b32 v%d, 6, v%d' % (T + 5, T))
    s('v_mov_b32 v%d, 0x3f803f80' % (T + 6))
    for h in range(2):
        s('v_cmp_eq_u32 vcc, %d, v%d' % (4 * h, T + 5))
        s('v_cndmask_b32 v%d, 0, v%d, vcc' % (sp + 2 * h, T + 6))
        s('v_cndmask_b32 v%d, 0, v%d, vcc' % (sp + 2 * h + 1, T + 6))
    s('v_and_b32 v%d, 1, v%d' % (T + 5, T))
    s('v_mul_u32_u24 v%d, 0xaaaa, v%d' % (T + 5, T + 5))
    s('v_add_u32 v%d, 0x4444, v%d' % (idx, T + 5))


def lc_role(ffn):
    kind = 'gelu' if ffn else 'phi'
    RING[0] = 14
    nm = 'f' if ffn else 'q'
    s, T = Seg(nm), V_T
    if not ffn:
        s('L_q:')
    if OPT['twat'] < -1:
        touch_w(s, ffn)
    if OPT['zpad'] and not ffn:
        zpad(s)
    s('s_mul_i32 s%d, s%d, %d' % (S_T1, S_G, 64 if ffn else 56))
    s('v_lshrrev_b32 v%d, 1, v%d' % (T + 6, T + 10))
    s('v_lshl_add_u32 v%d, v%d, 3, s%d' % (T + 5, T + 14, S_T1))
    s('v_lshlrev_b32 v%d, 6, v%d' % (T + 6, T + 6))
    s('v_xor_b32 v%d, v%d, v%d' % (T + 5, T + 5, T + 6))
    s('v_lshl_add_u32 v%d, v%d, 7, v%d' % (V_WA, T + 12, T + 5))
    for j in range(1, 4):
        s('v_xor_b32 v%d, %d, v%d' % (V_WA + j, j << 11, V_WA))
    srd(s, SWS, WS_BYTES)
    srd(s, SDBG, 256)
    s('s_waitcnt lgkmcnt(0)')
    if not ffn:
        s('s_lshl1_add_u32 s%d, s%d, s%d' % (S_T2, S_RB, S_HALF))
        s('s_mul_i32 s%d, s%d, 6' % (S_T1, S_T2))
        s('s_add_u32 s%d, s%d, s%d' % (S_T1, S_T1, S_WV))
        s('s_lshl_b32 s%d, s%d, 10' % (S_T1, S_T1))
        s('s_add_u32 s%d, s%d, 0x%x' % (S_T1, S_T1, KV_OFF))
        s('s_lshl_b32 s%d, s%d, 10' % (S_LAST, S_T2))
        s('s_add_u32 s%d, s%d, 0x%x' % (S_LAST, S_LAST, ST_OFF))
        s('s_cmp_lt_u32 s%d, 6' % S_WV)
        s('s_cselect_b32 s%d, s%d, 0x%x' % (S_T1, S_T1, OOB))
        s('s_cmp_eq_u32 s%d, 6' % S_WV)
        s('s_cselect_b32 s%d, s%d, s%d' % (S_T1, S_LAST, S_T1))
        s('buffer_store_dwordx4 %s, v%d, %s, s%d offen sc1' % (vr(V_ST, 4), V_L16, sr(SWS, 4), S_T1), 'zero')
    s('s_cmp_eq_u32 s%d, 1' % S_G)
    s('s_cbranch_scc1 L_%sb' % nm)
    UA, UB = [([(), (5,), (7,)], [(0, 1), (2,), (3, 4, 6)]), ([(), (5, 6), ()], [(0, 1), (2,), (3, 4, 7)]),
              ([(0,), (5, 6), (7,)], [(1,), (2,), (3, 4)])][OPT['ub']]
    LCS = [{3: ([], [0]), 4: ([], [1]), 5: ([], [2]), 6: ([3], []), 7: ([], [4, 5, 6])},
           {3: ([1], [0]), 4: ([3], [2]), 7: ([], [4, 5, 6])},
           {3: ([1], [0]), 4: ([], [2]), 7: ([3], [4, 5, 6])},
           {3: ([], [0]), 4: ([], [1]), 7: ([2, 3], [4, 5, 6])},
           {3: ([2], [0, 1]), 4: ([4], [3]), 7: ([], [5, 6])},
           {3: ([2], [0, 1]), 4: ([5], [3, 4]), 7: ([], [6])}][OPT['lcs']]
    step = 128 if ffn else 112
    region = [R0, R1, R0, R1]
    acc = V_ACC

    def stream(g):
        z = Seg(nm + 'ab'[g])
        if g:
            z('L_%sb:' % nm)
        xa = Rebase([V_XA + j for j in range(4)], 0, 0)
        wa = Rebase([V_WA + j for j in range(4)], 0, 512)

        def triple(t, c):
            dma_x(t, c, XSLOT[c], ('t', c))
            if g:
                dma_w(t, S_M0W, c, R0 + c * 8192, ('t', c))

        def lc(t, q, c):
            if ffn and q == 3:
                t('s_add_u32 m0, s%d, %d' % (S_M0W, R1 + c * 4096))
                t('buffer_load_dwordx4 v%d, %s, s%d offen lds' % (V_W3, sr(SW, 4), S_KW + c), ('l', q, c))
                return
            dma_w(t, S_M0W, c, region[q] + c * 8192, ('l', q, c))

        V_SP, V_IDX = 120, 124

        def wf(c, j):
            if not OPT['smf'] or j > 1:
                return V_WF + 4 * j
            return (96 if ffn else 112) if j else V_WF + 4 * (1 - (c & 1))

        def cs_write(t):
            if OPT['smf']:
                t('v_add_f32 v%d, v%d, v%d' % (V_CS, V_CS, V_CS + 1))
            t('ds_write_b32 v%d, v%d' % (V_CSW, V_CS))

        def wread(t, q, c, j):
            half = ffn and q == 3
            o = c * 4096 if half else wa.off(t, region[q] + c * 8192)
            for u in range(2):
                t('ds_read_b64_tr_b16 %s, v%d offset:%d' % (vr(wf(c, j) + 2 * u, 2), V_WA + j, o + u * (256 if half else 512)), ('w', q, c, j))

        def xread(t, c, j):
            o = xa.off(t, XSLOT[c])
            t('ds_read_b128 %s, v%d offset:%d' % (vr(xreg(c, j), 4), V_XA + j, o), ('x', c, j))

        def kstep(q, c, j):
            t = Seg()
            t.wait(lgkm=[('w', q, c, j | OPT['wj'])])
            first = c == 0 and j == 0
            t('v_mfma_f32_32x32x16_bf16 %s, %s, %s, %s' % (vr(acc, 16), vr(wf(c, j), 4), vr(xreg(c, j), 4), '0' if first else vr(acc, 16)))
            if j == 0 and (first or not OPT['smf']):
                t('v_mfma_f32_16x16x32_bf16 %s, %s, %s, %s' % (vr(V_CS, 4), vr(V_SEL, 4), vr(wf(c, j), 4), '0' if first else vr(V_CS, 4)))
            elif j == 0 and c % 2 == 0:
                t('v_smfmac_f32_16x16x64_bf16 %s, %s, %s, v%d' % (vr(V_CS, 4), vr(V_SP, 4), vr(V_WF, 8), V_IDX))
            if c < 6:
                wread(t, q, c + 1, j)
            return t

        def preread(t, q):
            for j in range(4):
                wread(t, q, 0, j)

        carry, ecarry = [], []

        def gemm(t, q, fill=(), extra=None):
            t('s_setprio 1')
            t.extend(ecarry)
            ecarry[:] = []
            slots = [kstep(q, c, j) for c in range(7) for j in range(4)]
            for k, gi in enumerate(groups(extra) if extra is not None else []):
                slots[min(1 + OPT['gsp'] * k, 24)].extend(gi)
            n = 28 - OPT['carry']
            cs_write(slots[min(26, n - 1)])
            for z in slots[:n]:
                t.extend(z)
            carry[:] = [i for z in slots[n:] for i in z]

        def next_col(t, last=False):
            if last and ffn:
                t('s_lshr_b32 s%d, s%d, 1' % (S_M0W, S_M0W))
                return
            for r in (V_W, V_WB):
                t('v_add_u32 v%d, %d, v%d' % (r, step, r))

        def epi(t, q, extra=None, pre=None, handoff=False, hi=0.85, keep=False, nxt=None, lo=0.03, early=2):
            grp = groups(extra) if extra is not None else []
            t('s_setprio 2')
            parts = ext_parts(acc, 0, V_EXW, False, V_B1 + q if ffn else None)
            parts[0].extend(carry)
            carry[:] = []
            t.extend(head([parts], pre))
            if not keep:
                t('s_setprio %d' % OPT['eprio'])
            stamp(t, 'x%d' % (2 * q + g + 1))
            for gi in grp[:early]:
                t.extend(gi)
            body = mix(epi_rowlane(kind, acc, ('h', q), handoff, None if ffn else V_PQ + 8 * q), grp[early:], lo, hi)
            if ffn:
                r = Seg()
                touch_fl2(r, 2 * q + g + 1, V_XA + 1)
                body = mix(body, [list(r)], OPT['tfp'] / 100, 1.0)
            if nxt is not None:
                r = Seg()
                if ffn and not g and nxt == 3:
                    for k in range(4):
                        r('v_xor_b32 v%d, %d, v%d' % (V_WA + k, k << 10, V_WA3))
                preread(r, nxt)
                body = mix(body, [[i] for i in r], 0.45, 0.8) if OPT['pmix'] else body + list(r)
            body = list(body)
            if ffn:
                body.append(Ins('s_add_u32 s%d, s%d, 4096' % (S_H, S_H)))
            n = len(body) - (OPT['ecarry'] if ffn and nxt is not None else 0)
            t.extend(body[:n])
            ecarry[:] = body[n:]

        def duty(q, chunks, units=(), step_col=True):
            d = Seg()
            if step_col:
                next_col(d, q == 3)
            for k in chunks:
                lc(d, q, k)
            if ffn:
                for u in units:
                    dma_b2(d, u)
            return d

        late = deferred(False)
        if OPT['smf']:
            assert OPT['sel1']
            sparse_sel(late, V_SP, V_IDX)
        if ffn:
            p2_setup(late)
        late('s_lshl2_add_u32 s%d, s%d, s%d' % (S_H, S_RB, S_RW))
        late('s_mul_i32 s%d, s%d, %d' % (S_H, S_H, ACT_G))
        late('s_add_u32 s%d, s%d, %d' % (S_H, S_H, g * 2048 if ffn else g * 7168 + 112 * 1024))
        late('s_mul_i32 s%d, s%d, %d' % (S_T1, S_T0 if ffn else S_HALF, 32 if ffn else 14336))
        late('s_add_u32 s%d, s%d, s%d' % (S_H, S_H, S_T1))
        if ffn:
            late('s_add_u32 s%d, s%d, %d' % (S_T1, S_M0W, HND))
            late('v_add_u32 v%d, s%d, v%d' % (V_RA, S_T1, V_L16))
            late('s_mul_i32 s%d, s%d, -7' % (S_LAST, S_PEND))
            late('s_add_u32 s%d, s%d, s%d' % (S_LAST, S_LAST, S_T0))
            late('s_add_u32 s%d, s%d, 384' % (S_LAST, S_LAST))
            late('v_lshrrev_b32 v%d, 2, v%d' % (T + 5, T))
            late('v_lshl_add_u32 v%d, s%d, 4, v%d' % (T + 5, S_RW, T + 5))
            late('v_mul_u32_u24 v%d, %d, v%d' % (T + 5, W1S, T + 5))
            late('v_lshl_add_u32 v%d, v%d, 4, s%d' % (V_W3, T + 11, S_LAST))
            late('v_add_u32 v%d, v%d, v%d' % (V_W3, V_W3, T + 5))
            if not g:
                late('v_lshl_add_u32 v%d, v%d, 3, v%d' % (T + 5, T + 12, T + 14))
                late('v_lshlrev_b32 v%d, 3, v%d' % (T + 5, T + 5))
                late('v_add_u32 v%d, %d, v%d' % (V_WA3, R1, T + 5))
            srd(late, SB1, 1792 * 2)
            late('v_lshlrev_b32 v%d, 1, v%d' % (T + 5, T + 8))
            for q in range(3):
                late('buffer_load_ushort v%d, v%d, %s, s%d offen offset:%d' % (V_B1 + q, T + 5, sr(SB1, 4), S_T0, q * 128 + g * 64), 'b1')
            if not g:
                late('buffer_load_ushort v%d, v%d, %s, s%d offen' % (V_B1 + 3, T + 5, sr(SB1, 4), S_LAST), 'b1')
        if g:
            late('s_mov_b32 s%d, 0x%x' % (S_FL, OOB))
        else:
            late('s_lshr_b32 s%d, s%d, 1' % (S_T1, S_P) if ffn else 's_lshl_b32 s%d, s%d, 1' % (S_T1, S_HALF))
            late('s_lshl2_add_u32 s%d, s%d, s%d' % (S_T1, S_RB, S_T1))
            late('s_mul_i32 s%d, s%d, %d' % (S_FL, S_T1, FL_G))
            late('s_lshl1_add_u32 s%d, s%d, s%d' % (S_FL, S_PEND, S_FL))
            late('s_lshl_b32 s%d, s%d, 28' % (S_T1, S_RW))
            late('s_add_u32 s%d, s%d, s%d' % (S_FL, S_FL, S_T1))
            late('s_add_u32 s%d, s%d, 0x%x' % (S_FL, S_FL, FL_OFF))
        NL = OPT['nlate']

        def some(k):
            return late[len(late) * k // NL:len(late) * (k + 1) // NL] if k < NL else []

        triple(z, 1)
        estamp(z, 't1')
        z.extend(some(0))
        if OPT['tat'] < -1:
            touch_w2(z)
        z('s_barrier')
        if g:
            z('s_setprio 1')
        triple(z, 2)
        for c in range(-1, 7):
            if c < 6:
                barrier(z, ['t0', 'zero'] if c < 0 else [('t', c + 1)], 's%d' % c if c >= 0 else 'pre')
            if c < 0:
                stamp(z, 1)
                if not ffn and not g:
                    z('s_lshl_b32 s%d, s%d, 28' % (S_T2, S_WV))
                    z('buffer_atomic_add v%d, v%d, %s, s%d offen sc1' % (V_ONE, V_FLO, sr(SDBG, 4), S_T2))
            d = Seg()
            if c < 3:
                triple(d, c + 4)
            if c == OPT['tat']:
                touch_w2(d)
            if c == 3:
                next_col(d)
            for k in LCS.get(c, ([], []))[g]:
                lc(d, 1, k)
            if c == 4 and ffn:
                b2b_setup(d)
                if not g and OPT['touch'] & 128 and OPT['tfat'] == 0:
                    touch_ffn(d, V_T + 2)
            if c == OPT['twat']:
                if ffn or not OPT['touch'] & 64:
                    touch_w(d, ffn)
                else:
                    touch_qv(d)
            if g:
                if c == 6:
                    break
                for j in range(4):
                    xread(z, c + 1, j)
                if c < 5:
                    z.extend(mix(some(c + 2), groups(d)))
                if c == 3:
                    preread(z, 0)
                dots(z, c + 1)
                if c == 5:
                    if OPT['s6']:
                        z('s_barrier')
                    stats_pack(z)
                    if not ffn:
                        z('buffer_store_dword v%d, v%d, %s, s%d offen sc1' % (T, V_EXR + 1, sr(SWS, 4), S_LAST))
                    z.extend(d)
                    z.extend(stats_final(kind, False))
            else:
                if c == 6 and OPT['s6']:
                    z('s_barrier')
                for j in range(4):
                    if c == 6:
                        z.wait(lgkm=[('x', c, j)])
                    if c >= 0:
                        z.extend(kstep(0, c, j))
                    else:
                        wread(z, 0, 0, j)
                    if c < 6:
                        xread(z, c + 1, j)
                z.extend(mix(some(c + 2), groups(d)))
                if c == 6:
                    w = Seg()
                    cs_write(w)
                    k = len(z) - (1 if len(d) else 0)
                    z[k:k] = w
        if g:
            barrier(z, ['b1'] if OPT['npre'] else [('l', 1, 0), 'b1'], 'e0')
        else:
            barrier(z, 'b1', 'e0')
        stamp(z, 2)
        if not g:
            d = Seg()
            d.extend(duty(1, LCS[7][0], (), False))
            f0_load(d)
            if ffn and OPT['touch'] & 128 and OPT['tfat'] == 1:
                touch_ffn(d, V_XA)
            NE = OPT['ne']
            epi(z, 0, d, pre=stats_final(kind), nxt=None if OPT['npre'] else 1, **(dict(early=1, lo=0.6) if OPT['tfat'] == 1 else dict(hi=0.4)))
            barrier(z, [('l', 1, k) for k in range(7)], 'e1')
            stamp(z, 'h1')
            if OPT['npre']:
                z('s_setprio 3')
                preread(z, 1)
            gemm(z, 1, extra=duty(2, range(NE, 5)))
            f0_check(z)
            barrier(z, [('h', 0)], 'e2')
            stamp(z, 'h2')
            d = duty(0, (), UA[0], False)
            if ffn:
                d.extend(res_load(RES_F))
            epi(z, 1, d, nxt=2, lo=0.5, early=2 * len(UA[0]))
            barrier(z, [('l', 2, 4)], 'e3')
            stamp(z, 3)
            if ffn:
                flag(z, 0)
            gemm(z, 2, extra=duty(3, range(NE, 5), UA[1]))
            barrier(z, [('h', 1)], 'e4')
            stamp(z, 'h4')
            epi(z, 2, duty(0, (), UA[2], False), nxt=3)
            barrier(z, [('l', 3, 4)], 'e5')
            stamp(z, 4)
            if ffn:
                flag(z, 256)
            gemm(z, 3, extra=duty(0, (), (11, 12, 13), False))
            barrier(z, [('b', u) for u in UA[1] + UA[2]], 'e6')
            stamp(z, 5)
            if ffn:
                z('ds_read_b128 %s, v%d' % (vr(V_PQ, 4), V_RA), 'hnd')
                z('ds_read_b128 %s, v%d offset:1024' % (vr(V_PQ + 4, 4), V_RA), 'hnd')
                z('s_sub_u32 s%d, s%d, 2048' % (S_T0, S_H))
                z('s_cmp_eq_u32 s%d, 0' % S_PEND)
                z('s_cselect_b32 s%d, 0, %d' % (S_T1, 3 * 4096 + 2048))
                z('s_sub_u32 s%d, s%d, s%d' % (S_H, S_H, S_T1))
                d = Seg()
                d.wait(lgkm='hnd')
                for f in range(2):
                    d('buffer_store_dwordx4 %s, v%d, %s, s%d offen offset:%d sc1' % (vr(V_PQ + 4 * f, 4), V_L16, sr(SWS, 4), S_T0, f * 1024), 'h5')
                epi(z, 3, d, keep=True)
                z('s_lshl1_add_u32 s%d, s%d, s%d' % (S_T0, S_RB, S_HALF))
                z('s_lshl_b32 s%d, s%d, 9' % (S_T0, S_T0))
                z('s_add_u32 s%d, s%d, s%d' % (S_T0, S_T0, S_ROLE))
                z('s_lshl_b32 s%d, s%d, 28' % (S_T1, S_RW))
                z('s_lshl2_add_u32 s%d, s%d, s%d' % (S_T0, S_T0, S_T1))
                z('s_add_u32 s%d, s%d, 0x%x' % (S_T0, S_T0, FO_OFF + 8))
                z('v_cmp_gt_u32 vcc, 0x100, v%d' % V_L16)
                z('v_lshlrev_b32 v%d, 3, v%d' % (V_PL, V_L16))
                z('v_cndmask_b32 v%d, v%d, v%d, vcc' % (V_PL, V_FLO, V_PL))
                z.wait(vm=[('h', 3)])
                sync_arrive(z, 0)
                sync_wait(z, 0, 4, T)
                z('buffer_store_dword v%d, v%d, %s, s%d offen sc1' % (V_ONE, V_PL, sr(SWS, 4), S_T0))
                z.extend(res_unpack(RES_F))
                stamp(z, 6)
                z('s_branch L_p2a')
            else:
                d = Seg()
                touch_wo(d, V_XA)
                epi(z, 3, d)
                q_fetch(z)
                z('s_branch L_qo')
            return z
        d = duty(1, LCS[7][1], (), False)
        if ffn:
            d.extend(res_load(RES_F))
        gemm(z, 0, extra=d)
        barrier(z, [('l', 1, 6)], 'e1')
        stamp(z, 'h1')
        for q in (1, 2):
            d = duty(q + 1, range(OPT['ne']), UB[1] if q == 2 else ())
            if ffn and OPT['touch'] & 128 and 2 * q == OPT['tfat']:
                d('s_nop 0')
                touch_ffn(d, V_XA)
            epi(z, q - 1, d, nxt=q, lo=0.2)
            barrier(z, [('l', q + 1, 0)], 'e%d' % (2 * q))
            stamp(z, 'h%d' % (2 * q))
            d = duty(q + 1, (5, 6), (), False)
            if ffn and q == 2:
                poll_early(d)
            d.extend(duty(0, (), UB[2 * q - 2], False))
            gemm(z, q, extra=d)
            barrier(z, [('l', q + 1, 6), ('h', q - 1)], 'e%d' % (2 * q + 1))
            stamp(z, q + 2)
        if ffn:
            d = Seg()
            a_setup(d)
            stage_check(d, 0)
            for u in range(OPT['na']):
                aload(d, u)
            for u in range(8, 8 + OPT['nb']):
                dma_b2(d, u)
            epi(z, 2, d, handoff=True, hi=1.0)
            barrier(z, None, 'e6')
            z('s_branch L_p2f')
        else:
            d = Seg()
            touch_wo(d, V_XA)
            epi(z, 2, d, nxt=3)
            barrier(z)
            stamp(z, 5)
            gemm(z, 3)
            barrier(z)
            epi(z, 3)
            stamp(z, 6)
        return z

    return s, stream(0), stream(1)


def q_fetch(s):
    T, RAW = V_T, V_X
    s('s_lshl2_add_u32 s%d, s%d, s%d' % (S_T0, S_HALF, S_RW))
    s('s_lshl_b32 s%d, s%d, 8' % (S_PL, S_T0))
    s('s_add_u32 s%d, s%d, 0x%x' % (S_PL, S_PL, FKV_OFF))
    s('s_lshl_b32 s%d, s%d, 13' % (S_T0, S_T0))
    s('s_add_u32 s%d, s%d, 0x%x' % (S_T0, S_T0, KV_OFF))
    s('s_add_u32 s%d, s%d, 4096' % (S_T3, S_T0))
    s('v_cmp_gt_u32 vcc, 32, v%d' % V_L16)
    s('v_lshlrev_b32 v%d, 3, v%d' % (V_PL, V_L16))
    s('v_cndmask_b32 v%d, v%d, v%d, vcc' % (V_PL, V_FLO, V_PL))
    s('v_lshrrev_b32 v%d, 2, v%d' % (T, V_L16))
    s('s_lshl1_add_u32 s%d, s%d, %d' % (S_T1, S_M0W, R2))
    s('v_add_u32 v%d, s%d, v%d' % (T + 1, S_T1, V_L16))
    s('s_barrier')
    stamp(s, 6)
    j = nspin[0]
    nspin[0] += 1
    s('L_qs%d:' % j)
    s('v_mov_b32 v%d, 0' % V_POLL)
    s('buffer_atomic_add v%d, v%d, %s, s%d offen sc0 sc1' % (V_POLL, V_PL, sr(SWS, 4), S_PL))
    s('s_add_u32 s%d, s%d, 1' % (S_SPIN, S_SPIN))
    s('s_cmp_gt_u32 s%d, 0x%x' % (S_SPIN, SPIN_LIMIT))
    s.wait(vm='all')
    s('s_cbranch_scc1 L_qz%d' % j)
    s('v_cmp_le_u32 vcc, 16, v%d' % V_POLL)
    s('s_andn2_b32 s%d, 3, vcc_lo' % S_T2)
    s('s_cbranch_scc1 L_qs%d' % j)
    s('L_qz%d:' % j)
    stamp(s, 7)
    if OPT['qsplit']:
        return
    for r in range(32):
        s('buffer_load_dword v%d, v%d, %s, s%d offen offset:%d sc1' % (RAW + r, T, sr(SWS, 4), S_T3 if r >= 16 else S_T0, (r & 15) * 256), ('kv', r >> 3))
    for f in range(4):
        s.wait(vm=[('kv', f)])
        for k in range(4):
            s('v_cvt_pk_bf16_f32 v%d, v%d, v%d' % (RAW + 8 * f + k, RAW + 8 * f + 2 * k, RAW + 8 * f + 2 * k + 1))
        s('ds_write_b128 v%d, %s offset:%d' % (T + 1, vr(RAW + 8 * f, 4), f * 1024))


def q_out():
    s, T = Seg('qo'), V_T
    NUM, KF, RAW = V_X, V_X + 64, V_X + 96
    s('L_qo:')
    s('s_lshl_b32 s%d, s%d, 11' % (S_T1, S_G))
    s('s_add_u32 s%d, s%d, %d' % (S_T1, S_T1, R2))
    s('v_add_u32 v%d, s%d, v%d' % (T + 2, S_T1, V_L16))
    if OPT['qsplit']:
        s('s_lshl3_add_u32 s%d, s%d, s%d' % (S_T0, S_HALF, S_WV))
        s('s_lshl_b32 s%d, s%d, 12' % (S_T0, S_T0))
        s('s_add_u32 s%d, s%d, 0x%x' % (S_T0, S_T0, KV_OFF))
        s('v_lshrrev_b32 v%d, 2, v%d' % (T, V_L16))
        s('s_add_u32 s%d, s%d, %d' % (S_T1, S_M0X, R2))
        s('v_add_u32 v%d, s%d, v%d' % (T + 1, S_T1, V_L16))
        s('s_barrier')
        for r in range(16):
            s('buffer_load_dword v%d, v%d, %s, s%d offen offset:%d sc1' % (RAW + r, T, sr(SWS, 4), S_T0, r * 256), ('kv', r >> 3))
        for f in range(2):
            s.wait(vm=[('kv', f)])
            for k in range(4):
                s('v_cvt_pk_bf16_f32 v%d, v%d, v%d' % (RAW + 8 * f + k, RAW + 8 * f + 2 * k, RAW + 8 * f + 2 * k + 1))
            s('ds_write_b128 v%d, %s offset:%d' % (T + 1, vr(RAW + 8 * f, 4), f * 1024))
    barrier(s)
    stamp(s, 8)
    for q in range(4):
        for f in range(2):
            s('ds_read_b128 %s, v%d offset:%d' % (vr(KF + 8 * q + 4 * f, 4), T + 2, q * 4096 + f * 1024), ('kf', q, f))
    def num(q):
        z = Seg()
        for f in range(2):
            z.wait(lgkm=[('kf', q, f)])
            z('v_mfma_f32_32x32x16_bf16 %s, %s, %s, %s' % (vr(NUM + 16 * q, 16), vr(KF + 8 * q + 4 * f, 4), vr(V_PQ + 8 * q + 4 * f, 4), vr(NUM + 16 * q, 16) if f else '0'))
        return z

    s.extend(num(0) + num(1))
    O, done = V_X + 96, 0
    s('s_add_u32 s%d, s%d, 4096' % (S_T0, S_H))
    for q in range(4):
        n, p = NUM + 16 * q, q >> 1
        dst = [O + 14 * p + k for k in range(8)] if q % 2 == 0 else [O + 14 * p + 8 + k for k in range(6)] + [T + 6, T + 7]
        s('v_add_f32 v%d, s%d, v%d' % (T + 4, S_EPS, n + 12))
        s('v_add_f32 v%d, s%d, v%d' % (T + 5, S_EPS, n + 12))
        s('v_permlane32_swap_b32 v%d, v%d' % (T + 4, T + 5))
        s('v_rcp_f32 v%d, v%d' % (T + 5, T + 5))
        for f in ((0, 1) if q % 2 == 0 else (1, 0)):
            for k in range(8 * f, 8 * f + 8, 2):
                s('v_pk_mul_f32 %s, %s, %s op_sel:[0,1] op_sel_hi:[1,1]' % (vr(n + k, 2), vr(n + k, 2), vr(T + 4, 2)))
            for k in (2, 3, 0, 1):
                s('v_cvt_pk_bf16_f32 v%d, v%d, v%d' % (dst[4 * f + k], n + 8 * f + 2 * k, n + 8 * f + 2 * k + 1))
            if q % 2 and f:
                for k in range(2):
                    s('v_permlane32_swap_b32 v%d, v%d' % (O + 14 * p + 6 + k, T + 6 + k))
            if q < 2 and f != q:
                s.extend(num(q + 2))
            ready = {(0, 0): 1, (1, 1): 2, (1, 0): 3, (2, 0): 4, (2, 1): 5, (3, 0): 7}.get((q, f), done)
            for v in range(done, ready):
                s('buffer_store_dwordx4 %s, v%d, %s, s%d offen offset:%d sc1' % (vr(O + 4 * v, 4), V_L16, sr(SWS, 4), S_T0 if v >= 4 else S_H, (v & 3) * 1024))
            done = ready
    stamp(s, 9)
    if OPT['opriv']:
        s('s_lshl1_add_u32 s%d, s%d, s%d' % (S_T0, S_RB, S_HALF))
        s('s_lshl_b32 s%d, s%d, 11' % (S_T0, S_T0))
        s('s_lshl_b32 s%d, s%d, 28' % (S_T1, S_WV))
        s('s_add_u32 s%d, s%d, s%d' % (S_T0, S_T0, S_T1))
        s('s_add_u32 s%d, s%d, 0x%x' % (S_T0, S_T0, FO_OFF))
        s('v_cmp_gt_u32 vcc, 0x100, v%d' % V_L16)
        s('v_lshlrev_b32 v%d, 3, v%d' % (T, V_L16))
        s('v_cndmask_b32 v%d, v%d, v%d, vcc' % (T, V_FLO, T))
        barrier(s, 'all')
        s('buffer_store_dword v%d, v%d, %s, s%d offen sc1' % (V_ONE, T, sr(SWS, 4), S_T0))
    else:
        barrier(s, 'all')
        flag(s, 768)
        flag(s, 768 + FL_G)
    s('s_branch L_fin')
    return s


def kv_role():
    s, T = Seg('kv'), V_T
    RING[0] = 11
    s('L_kv:')
    if OPT['twat'] < -1:
        touch_w(s, False, V_EXW)
    s('s_mul_i32 s%d, s%d, 3' % (S_P, S_HALF))
    s('s_add_u32 s%d, s%d, s%d' % (S_P, S_P, S_ROLE))
    s('s_sub_u32 s%d, s%d, 4' % (S_P, S_P))

    def item(t, n):
        if n >= 14:
            if n == 14:
                t('v_add_u32 v%d, %d, v%d' % (V_W, XS, V_W))
                t('v_add_u32 v%d, %d, v%d' % (V_WB, XS, V_WB))
            dma_w(t, S_M0X, n - 14, kv_slot(n), ('i', n))
        elif n & 1:
            dma_w(t, S_M0X, n >> 1, kv_slot(n), ('i', n))
        else:
            dma_x(t, n >> 1, kv_slot(n), ('i', n))

    s('s_lshl_b32 s%d, s%d, 2' % (S_T1, S_P))
    s('s_lshr_b32 s%d, 0xdb8630, s%d' % (S_LAST, S_T1))
    s('s_and_b32 s%d, s%d, 15' % (S_LAST, S_LAST))
    s('s_lshr_b32 s%d, 0x323233, s%d' % (S_PEND, S_T1))
    s('s_and_b32 s%d, s%d, 15' % (S_PEND, S_PEND))
    s('s_add_u32 s%d, s%d, s%d' % (S_T1, S_LAST, S_G))
    s('s_mul_i32 s%d, s%d, 56' % (S_T1, S_T1))
    s('s_lshl_b32 s%d, s%d, 7' % (S_T0, S_P))
    s('s_sub_u32 s%d, s%d, s%d' % (S_T1, S_T1, S_T0))
    s('s_add_u32 s%d, s%d, 1' % (S_T0, S_G))
    s('s_cmp_lt_u32 s%d, s%d' % (S_T0, S_PEND))
    s('s_cselect_b32 s%d, 56, 0' % S_T0)
    if OPT['zpad']:
        zpad(s)
    else:
        s('v_min_u32 v%d, 6, v%d' % (T + 14, T + 14))
    s('v_lshl_add_u32 v%d, v%d, 3, s%d' % (T + 5, T + 14, S_T1))
    s('v_lshlrev_b32 v%d, 6, v%d' % (T + 6, T + 10))
    for t in range(2):
        if t:
            s('v_add_u32 v%d, s%d, v%d' % (T + 5, S_T0, T + 5))
        s('v_xor_b32 v%d, v%d, v%d' % (T + 11, T + 5, T + 6))
        s('v_lshl_add_u32 v%d, v%d, 8, v%d' % (V_WA + 4 * t, T + 12, T + 11))
        for j in range(1, 4):
            s('v_xor_b32 v%d, %d, v%d' % (V_WA + 4 * t + j, j << 12, V_WA + 4 * t))
    srd(s, SWS, WS_BYTES)
    srd(s, SDBG, 256)
    item(s, 2)
    item(s, 3)
    estamp(s, 't1')
    s.extend(deferred(True))
    p2_setup(s)
    s('s_lshl1_add_u32 s%d, s%d, s%d' % (S_H, S_RB, S_HALF))
    s('s_lshl3_add_u32 s%d, s%d, s%d' % (S_H, S_H, S_RW))
    s('s_lshl_b32 s%d, s%d, 7' % (S_H, S_H))
    s('s_add_u32 s%d, s%d, 0x%x' % (S_H, S_H, ST_OFF))
    s('v_lshlrev_b32 v%d, 2, v%d' % (V_ST + 1, T + 8))
    s('s_lshl_b32 s%d, s%d, 7' % (S_T0, S_RW))
    s('s_add_u32 s%d, s%d, %d' % (S_T0, S_T0, M_R))
    s('v_lshl_add_u32 v%d, v%d, 4, s%d' % (V_RA, T + 9, S_T0))
    s('v_add_u32 v%d, s%d, v%d' % (V_ST + 2, S_T0, V_ST + 1))
    s('v_mov_b32 v%d, %d' % (T + 5, M_SY + 128))
    s('v_cndmask_b32 v%d, v%d, v%d, %s' % (V_ST + 3, V_RA, T + 5, sr(S_PAD, 2)))
    s('v_mov_b32 v%d, 0' % (V_EXR + 1))
    if OPT['smk']:
        assert OPT['touch'] & 64 and not OPT['touch'] & 2
        sparse_sel(s, T + 12, T + 2)
    s('s_waitcnt lgkmcnt(0)')
    if OPT['tat'] < -1:
        touch_w2(s)
    if OPT['two']:
        s('s_lshl2_add_u32 s%d, s%d, s%d' % (S_T1, S_G, S_PEND))
        s('s_cmp_eq_u32 s%d, 6' % S_T1)
        s('s_cbranch_scc1 L_kc')
    s('s_cmp_eq_u32 s%d, 1' % S_G)
    s('s_cbranch_scc1 L_kb')

    def body(g, two=False):
        b = Seg('kc' if two else 'kb' if g else 'ka')
        if two:
            b('L_kc:')
        elif g:
            b('L_kb:')
        xa = Rebase([V_XA + j for j in range(4)], 0, 0)
        wa = [Rebase([V_WA + 4 * t + j for j in range(4)], 0, 1024) for t in range(2)]
        TS = [[0], []] if two else [[0, 1], [1]] if g else [[0], [0, 1]]
        PK1 = V_X + 48

        def witem(q, c):
            return 2 * c + 1 if q == 0 else 14 + c

        def wf(t, j, c):
            base = V_ACC + 48 if t != g else V_WF
            if not OPT['smk'] or j > 1:
                return base + 4 * j
            return (T + 8 if t != g else T + 4) if j else base + 4 * (1 - (c & 1))

        def acc(q, t):
            return V_ACC + 16 * (q + t)

        def wread(z, q, c, j, t):
            o = wa[t].off(z, kv_slot(witem(q, c)))
            for u in range(2):
                z('ds_read_b64_tr_b16 %s, v%d offset:%d' % (vr(wf(t, j, c) + 2 * u, 2), V_WA + 4 * t + j, o + u * 1024), ('w', q, c, j, t))

        def xread(z, c, j):
            o = xa.off(z, kv_slot(2 * c))
            z('ds_read_b128 %s, v%d offset:%d' % (vr(xreg(c, j), 4), V_XA + j, o))

        def kstep(q, c, j):
            out = []
            first = c == 0 and j == 0
            for t in TS[q]:
                z = Seg()
                z.wait(lgkm=[('w', q, c, j, t), ('w', q, c, j, TS[q][-1]) if len(TS[q]) > 1 else ('w', q, c, j | 1, t)] if OPT['wj'] else [('w', q, c, j, t)])
                z('v_mfma_f32_32x32x16_bf16 %s, %s, %s, %s' % (vr(acc(q, t), 16), vr(xreg(c, j), 4), vr(wf(t, j, c), 4), '0' if first else vr(acc(q, t), 16)))
                if j == 0 and (first or not OPT['smk']):
                    z('v_mfma_f32_16x16x32_bf16 %s, %s, %s, %s' % (vr(V_CS + 4 * t, 4), vr(V_SEL, 4), vr(wf(t, j, c), 4), '0' if first else vr(V_CS + 4 * t, 4)))
                elif j == 0 and c % 2 == 0:
                    z('v_smfmac_f32_16x16x64_bf16 %s, %s, %s, v%d' % (vr(V_CS + 4 * t, 4), vr(T + 12, 4), vr(wf(t, 0, 1), 8), V_X1 if q else T + 2))
                if c < 6:
                    wread(z, q, c + 1, j, t)
                    if q == 0 and t == TS[q][-1]:
                        xread(z, c + 1, j)
                elif q == 0 and not g:
                    wread(z, 1, 0, j, 0)
                if c == 6 and j == 2 and t == TS[q][-1]:
                    for tt in TS[q]:
                        if OPT['smk']:
                            z('v_add_f32 v%d, v%d, v%d' % (V_CS + 4 * tt, V_CS + 4 * tt, V_CS + 4 * tt + 1))
                        z('ds_write_b32 v%d, v%d offset:%d' % (V_CSW, V_CS + 4 * tt, q * 1536 + (g + tt) * 512))
                out.append(z)
            return out

        def ext(q, t, k):
            return ext_parts(acc(q, t), q * 1536 + (g + t) * 512, (V_EXW, V_EXW + 2, V_CS)[k], True, T=V_T + 4 + 4 * k)

        def rload(z, dst, key, addr=V_RA):
            for i in range(4):
                z('ds_read_b128 %s, v%d offset:%d' % (vr(dst + 4 * i, 4), addr, i * 32), key)

        def stat_load(z):
            z('buffer_load_dword v%d, v%d, %s, s%d offen sc1' % (V_ST, V_ST + 1, sr(SWS, 4), S_H), 'stat')

        def stat_use(z):
            z('v_and_b32 v%d, 0xffff, v%d' % (T, V_ST))
            z('v_lshl_or_b32 v%d, v%d, 16, v%d' % (T, V_ST, T))
            z('v_cndmask_b32 v%d, v%d, 0, %s' % (V_EXR, T, sr(S_HI, 2)))

        def phi_k(t, rb):
            e = Seg()
            for i in range(4):
                a = [acc(0, t) + 4 * i + k for k in range(4)]
                for k in range(4):
                    e('v_fma_f32 v%d, v%d, v%d, s%d' % (a[k], a[k], rb + 4 * i + k, S_EPS))
                for k in range(4):
                    e('v_mul_f32 v%d, s%d, v%d' % (T + k, S_L2E, a[k]))
                for k in range(4):
                    e('v_exp_f32_e64 v%d, v%d clamp' % (T + k, T + k))
                for k in range(4):
                    e('v_max_f32 v%d, s%d, v%d' % (a[k], S_EPS, a[k]))
                for k in range(4):
                    e('v_add_f32 v%d, v%d, v%d' % (a[k], a[k], T + k))
                e('v_cvt_pk_bf16_f32 v%d, v%d, v%d' % (acc(0, t) + 2 * i, a[0], a[1]))
                e('v_cvt_pk_bf16_f32 v%d, v%d, v%d' % (acc(0, t) + 2 * i + 1, a[2], a[3]))
            return e

        def hand_addr(z):
            z('s_mul_i32 s%d, s%d, 10240' % (S_T0, S_RW))
            z('s_add_u32 s%d, s%d, %d' % (S_T0, S_T0, R2 + 8192))
            z('v_add_u32 v%d, s%d, v%d' % (V_XA, S_T0, V_L16))

        def prod_setup(z, rb):
            rload(z, rb, 'r2', V_ST + 3)
            z('v_cndmask_b32 v%d, 0, 1.0, %s' % (V_XA + 1, sr(S_PAD, 2)))
            z('s_lshl_b32 s%d, s%d, 12' % (S_T0, S_RW))
            z('s_add_u32 s%d, s%d, %d' % (S_T0, S_T0, HND))
            z('v_add_u32 v%d, s%d, v%d' % (V_XA + 2, S_T0, V_L16))

        def kv_prod(z, t, pk, rb):
            z.wait(lgkm='r2')
            v, d = acc(1, t), V_X + 16 * t + 64 * g
            for f in range(2):
                for k in range(8 * f, 8 * f + 8):
                    z('v_fma_f32 v%d, v%d, v%d, v%d' % (v + k, v + k, rb + k, V_XA + 1))
                for k in range(4):
                    z('v_cvt_pk_bf16_f32 v%d, v%d, v%d' % (v + 8 * f + k, v + 8 * f + 2 * k, v + 8 * f + 2 * k + 1))
            z('s_setprio 2')
            for f in range(2):
                z('v_mfma_f32_32x32x16_bf16 %s, %s, %s, %s' % (vr(d, 16), vr(pk + 4 * f, 4), vr(v + 8 * f, 4), vr(d, 16) if f else '0'))

        def part_write(z, t):
            for i in range(4):
                z('ds_write_b128 v%d, %s offset:%d' % (V_XA + 2, vr(V_X + 16 * t + 64 * g + 4 * i, 4), (1, 0, 2)[g + t] * 16384 + i * 1024))

        if not g:
            b('s_setprio 1')
        for c in range(-1, 7):
            barrier(b, 't0' if c < 0 else [('i', 2 * c + 3 if c < 6 else 14)], 's%d' % c if c >= 0 else 'pre')
            if c < 0:
                stamp(b, 1)
            d = Seg()
            if c == min(OPT['tat'], 2):
                touch_w2(d)
            if g and c == 3:
                f0_load(d)
            if g and c == 5:
                f0_check(d)
            item(d, 2 * c + 6)
            if c == 4:
                b2b_setup(d)
                if OPT['smk']:
                    d('v_mov_b32 v%d, v%d' % (V_X1, T + 2))
            if c < 6:
                item(d, 2 * c + 7)
            if c == OPT['twat'] and not OPT['touch'] & 64:
                touch_w(d, False, V_EXW)
            if c == 6:
                if g:
                    stat_load(d)
                else:
                    for j in range(4):
                        wread(d, 1, 0, j, 1)
            if not g and c >= 0:
                b.extend(d)
            for j in range(4):
                if c >= 0:
                    for z in kstep(0, c, j):
                        b.extend(z)
                else:
                    for t in TS[0]:
                        wread(b, 0, 0, j, t)
                    xread(b, 0, j)
            if g or c < 0:
                b.extend(d)
        barrier(b, [('i', 16)], 's7')
        stamp(b, 2)

        if g:
            RB = V_ACC + 48
            parts = [ext(0, t, t) for t in TS[0]]
            for p in parts:
                b.extend(p[0])
            item(b, 19)
            for p in parts:
                b.extend(p[1])
            item(b, 20)
            touch_l2(b, 0, V_W)
            hand_addr(b)
            b.wait(vm='stat')
            spin_check(b, V_ST, 1, V_ST + 1, SWS, 's%d' % S_H, 0xffffffff)
            stat_use(b)
            b('v_and_b32 v%d, 0xffff0000, v%d' % (T + 1, V_ST))
            b('v_rcp_f32 v%d, v%d' % (T + 1, T + 1))
            b('s_setprio 2')
            for p in parts:
                b.extend(p[2])
            b('s_setprio 0')
            b('ds_write_b32 v%d, v%d' % (V_ST + 2, T + 1))
            rload(b, RB, 'r')
            if OPT['tkat'] == 0:
                touch_kv(b)
            e = Seg()
            e.wait(lgkm='r')
            e.extend(phi_k(0, RB))
            for f in range(2):
                e('ds_write_b128 v%d, %s offset:%d' % (V_XA, vr(acc(0, 0) + 4 * f, 4), f * 1024))
            if two:
                barrier(b, [('i', 18)], 'v0')
                b.extend(e)
                barrier(b, [('i', 20)], 'v1')
                touch_kv(b)
                barrier(b, None, 'v2')
                barrier(b, None, 'v4')
                poll_early(b)
                b.extend(res_load(RES_KB))
                for u in range(4, 4 + OPT['kub']):
                    dma_b2(b, u)
                a_setup(b)
                barrier(b, None, 'v3')
                assert OPT['kna'] and OPT['kpa'] and not OPT['k2']
                stage_check(b, 0)
                for u in range(OPT['kna']):
                    aload(b, u)
                barrier(b, None, 'kk')
                b('s_branch L_p2k')
                return b
            d = Seg()
            if OPT['tkat'] == 1:
                touch_kv(d)
            touch_l2(d, 1, V_WB)
            if not OPT['kpa']:
                for u in range(OPT['kpf']):
                    dma_b2(d, u)
            r = Seg()
            for j in range(4):
                wread(r, 1, 0, j, 1)
            e.extend(mix(mix(phi_k(1, RB), [[i] for i in r]), groups(d), 0.3, 1.0))
            k0, k1 = OPT['kb0'], OPT['kb1']
            b.extend(e[:k0])
            barrier(b, [('i', 18)], 'v0')
            b.extend(e[k0:k1])
            barrier(b, [('i', 20)], 'v1')
            b.extend(e[k1:])
            prod_setup(b, RB)
            barrier(b, None, 'v2')
            stamp(b, 3)
            b('s_setprio 1')
            d = Seg()
            slots = [kstep(1, c, j)[0] for c in range(7) for j in range(4)]
            pre = Seg()
            barrier(pre, None, 'v4')
            slots[4 * OPT['kv4']][:0] = pre
            if OPT['kna']:
                poll_early(d)
            d.extend(res_load(RES_KB))
            for u in range(4, 4 + OPT['kub']):
                dma_b2(d, u)
            for k, gi in enumerate(groups(d)):
                slots[min(4 * OPT['kv4'] + 3 + 2 * k, 27)].extend(gi)
            for z in slots:
                b.extend(z)
            barrier(b, None, 'v3')
            b('s_setprio 2')
            b.extend(head([ext(1, 1, 0)]))
            d = Seg()
            if OPT['kna']:
                a_setup(b)
                stage_check(b, 0)
                for u in range(OPT['kna']):
                    aload(d, u)
            else:
                poll_early(b)
            d = groups(d)
            z = Seg()
            kv_prod(z, 1, acc(0, 1), RB)
            b.extend(mix(z, d[:OPT['kne']]))
            if not OPT['kna']:
                a_setup(b)
            part_write(b, 1)
            for gi in d[OPT['kne']:]:
                b.extend(gi)
            barrier(b, None, 'kk')
            stamp(b, 4)
            if OPT['k2']:
                b('s_barrier')
            b('s_branch L_p2k')
            return b
        pf = []
        for c in range(7):
            if c in (2, 4):
                barrier(b, [('i', 16 + c)], 'v%d' % (c // 2 - 1))
            for j in range(4):
                for z in kstep(1, c, j):
                    b.extend(z)
                if c < 2:
                    if j == 1:
                        d = Seg()
                        item(d, 19 + c)
                        d = groups(d)
                    if j in (1, 2):
                        b.extend(d[j - 1])
                if OPT['kpa'] and c == 2 and j == 0:
                    pf = Seg()
                    for u in range(OPT['kpf']):
                        dma_b2(pf, u)
                    pf = groups(pf)
                if OPT['kpa'] and pf and ((c >= 3 and j & 1) if OPT['kpa'] == 1 else c >= 5):
                    b.extend(pf.pop(0))
                if c == 2 and j == 1:
                    stat_load(b)
                if c == 5 and j == 1:
                    hand_addr(b)
                if c == 5 and j == 3:
                    b.wait(vm='stat')
                    stat_use(b)
        barrier(b, None, 'v2')
        stamp(b, 3)
        b('s_setprio %d' % OPT['khead'])
        b('v_mov_b32 v%d, 0' % (V_CS + 1))
        RB, RP = V_X + 64, V_WF
        e = head([ext(1, 1, 0), ext(0, 0, 1), ext(1, 0, 2)])
        z = Seg()
        prod_setup(z, RP)
        for f in range(2):
            z('ds_read_b128 %s, v%d offset:%d' % (vr(PK1 + 4 * f, 4), V_XA, f * 1024), 'r2')
        rload(z, RB, 'r')
        b.extend(e[:3] + list(z) + e[3:-3])
        b('s_setprio 2')
        b.extend(e[-3:])
        b('s_setprio 0')
        if OPT['kres']:
            b.extend(res_load(RES_KA))
        z = Seg()
        z('s_lshl_b32 s%d, s%d, 10' % (S_T1, S_RW))
        z('s_add_u32 s%d, s%d, %d' % (S_T1, S_T1, HND))
        z('v_add_u32 v%d, s%d, v%d' % (V_SEL + 2, S_T1, V_L16))
        z('s_cmp_eq_u32 s%d, 3' % S_RW)
        z('s_cselect_b64 vcc, %s, 0' % sr(S_HI, 2))
        z('v_lshrrev_b32 v%d, 2, v%d' % (V_SEL + 3, V_L16))
        z('v_cndmask_b32 v%d, v%d, v%d, vcc' % (V_SEL + 3, V_SEL + 3, V_FLO))
        z('s_lshl2_add_u32 s%d, s%d, s%d' % (S_H, S_LAST, S_RW))
        z('s_lshl_b32 s%d, s%d, 10' % (S_H, S_H))
        z('s_add_u32 s%d, s%d, 0x%x' % (S_H, S_H, KV_OFF))
        kv_prod(z, 1, PK1, RP)
        z('s_setprio 0')
        z.wait(lgkm='r')
        e = phi_k(0, RB)
        z.extend(e[:OPT['kearly']])
        barrier(z, None, 'v4')
        w, d = Seg(), Seg()
        part_write(w, 1)
        for u in range(4 + OPT['kub'], 4 + OPT['kub'] + OPT['kua']):
            dma_b2(d, u)
        z.extend(mix(e[OPT['kearly']:], [[i] for i in w] + groups(d)))
        k = len(z) + OPT['kcut']
        kv_prod(z, 0, acc(0, 0), RP)
        b.extend(z[:k])
        barrier(b, None, 'v3')
        b.extend(z[k:])
        b('s_add_u32 s%d, s%d, 4096' % (S_P, S_H))
        b('s_add_u32 s%d, s%d, 8192' % (S_HALF, S_H))
        b('s_cmp_eq_u32 s%d, 3' % S_PEND)
        b('s_cselect_b32 s%d, s%d, 0x%x' % (S_HALF, S_HALF, OOB))
        part_write(b, 0)
        barrier(b, 'all', 'kk')
        stamp(b, 4)
        R = V_X + 32
        for h in range(3):
            for p in range(4):
                b('ds_read_b128 %s, v%d offset:%d' % (vr(R + 16 * h + 4 * p, 4), V_SEL + 2, (1, 0, 2)[h] * 16384 + p * 4096), ('red', h))
        for h in range(3):
            r = R + 16 * h
            b.wait(lgkm=[('red', h)])
            for k in (0, 2):
                b('v_pk_add_f32 %s, %s, %s' % (vr(r + k, 2), vr(r + k, 2), vr(r + 4 + k, 2)))
                b('v_pk_add_f32 %s, %s, %s' % (vr(r + 8 + k, 2), vr(r + 8 + k, 2), vr(r + 12 + k, 2)))
                b('v_pk_add_f32 %s, %s, %s' % (vr(r + k, 2), vr(r + k, 2), vr(r + 8 + k, 2)))
            for k in range(4):
                b('buffer_atomic_add_f32 v%d, v%d, %s, s%d offen offset:%d sc1' % (r + k, V_SEL + 3, sr(SWS, 4), (S_H, S_P, S_HALF)[h], k * 256), 'atom')
        if OPT['k2']:
            b('s_barrier')
        stamp(b, 5)
        b('s_lshl_b32 s%d, s%d, 7' % (S_FL, S_LAST))
        b('s_lshl_b32 s%d, s%d, 28' % (S_T1, S_RW))
        b('s_add_u32 s%d, s%d, s%d' % (S_FL, S_FL, S_T1))
        b('s_add_u32 s%d, s%d, 0x%x' % (S_FL, S_FL, FKV_OFF))
        b('s_lshl_b32 s%d, s%d, 4' % (S_T1, S_PEND))
        b('v_cmp_gt_u32 vcc, s%d, v%d' % (S_T1, V_L16))
        b('v_lshlrev_b32 v%d, 3, v%d' % (V_PL, V_L16))
        b('v_cndmask_b32 v%d, v%d, v%d, vcc' % (V_PL, V_FLO, V_PL))
        if not OPT['kres']:
            b.extend(res_load(RES_KA))
        b.wait(vm='atom')
        sync_arrive(b, 0)
        sync_wait(b, 0, 4, T)
        stamp(b, 6)
        b('buffer_atomic_add v%d, v%d, %s, s%d offen sc1' % (V_ONE, V_PL, sr(SWS, 4), S_FL))
        b.extend(res_unpack(RES_KA))
        b('s_branch L_p2a')
        return b

    return s, body(0), body(1), body(1, True) if OPT['two'] else Seg('kc')


def frag_addr(s, T):
    s('v_lshrrev_b32 v%d, 4, v%d' % (T, V_L16))
    s('v_bfe_u32 v%d, v%d, 2, 2' % (T + 1, T))
    s('v_and_b32 v%d, 3, v%d' % (T + 2, T))
    s('v_bfe_u32 v%d, v%d, 4, 1' % (T + 3, T))
    s('v_lshl_add_u32 v%d, v%d, 2, v%d' % (T + 2, T + 3, T + 2))
    s('v_lshrrev_b32 v%d, 1, v%d' % (T + 3, T + 1))
    s('v_lshlrev_b32 v%d, 6, v%d' % (T + 3, T + 3))
    s('v_lshl_add_u32 v%d, v%d, 3, v%d' % (T + 2, T + 2, T + 3))
    s('v_lshl_add_u32 v%d, v%d, 7, v%d' % (T + 2, T + 1, T + 2))
    s('v_lshrrev_b32 v%d, 5, v%d' % (T + 3, T))
    s('v_lshl_add_u32 v%d, v%d, 9, v%d' % (T + 3, T + 3, T + 2))


def bf(par, ct):
    return V_BF + 8 * par + 4 * ct


def acc2(ct, rg):
    return V_ACC + 32 * ct + 16 * rg


def part_addr(g):
    z, T = Seg(), V_NUM
    z('v_bfe_u32 v%d, v%d, 4, 5' % (T, V_L16))
    z('v_and_b32 v%d, 7, v%d' % (T + 1, T))
    z('v_bfe_u32 v%d, v%d, 1, 1' % (T + 2, T))
    z('v_lshrrev_b32 v%d, 9, v%d' % (T + 3, V_L16))
    z('v_xor_b32 v%d, v%d, v%d' % (T + 2, T + 2, T + 3))
    z('v_lshl_add_u32 v%d, v%d, 3, v%d' % (T + 1, T + 2, T + 1))
    z('v_lshlrev_b32 v%d, 4, v%d' % (T + 1, T + 1))
    z('v_lshl_add_u32 v%d, v%d, 8, v%d' % (T + 1, T, T + 1))
    z('v_add_u32 v%d, s%d, v%d' % (T + 8, S_QR0, T + 1))
    if g:
        z('v_add_u32 v%d, s%d, v%d' % (T + 16, S_QR2, T + 1))
    else:
        z('v_add_u32 v%d, 8192, v%d' % (T + 16, T + 8))
    for rg in range(2):
        for k in range(1, 8):
            z('v_xor_b32 v%d, %d, v%d' % (T + 8 + 8 * rg + k, k << 4, T + 8 + 8 * rg))
    return z


def read_addr(g, R):
    z, T = Seg(), R
    z('v_bfe_u32 v%d, v0, 3, 5' % (T + 1))
    z('v_and_b32 v%d, 0x70, v%d' % (T + 2, V_L16))
    z('v_and_b32 v%d, 7, v%d' % (T + 3, T + 1))
    z('v_bfe_u32 v%d, v%d, 1, 1' % (T + 4, T + 1))
    z('v_lshl_add_u32 v%d, v%d, 3, v%d' % (T + 3, T + 4, T + 3))
    z('v_lshlrev_b32 v%d, 4, v%d' % (T + 3, T + 3))
    z('v_xor_b32 v%d, v%d, v%d' % (T + 3, T + 3, T + 2))
    z('v_lshl_add_u32 v%d, v%d, 8, v%d' % (V_RD, T + 1, T + 3))
    if g:
        z('v_add_u32 v%d, %d, v%d' % (V_RD, R2, V_RD))
    z('v_xor_b32 v%d, 128, v%d' % (V_RD + 1, V_RD))
    return z


def acc_major(s, units, wreg, areg, wtag, atag, fresh, fill=()):
    slots, order = [], [(0, 0), (1, 0), (0, 1), (1, 1)]
    for ct, rg in order:
        for k, u in enumerate(units):
            z = Seg()
            z.wait(vm=[atag(u, rg)], lgkm=[wtag(u, ct)])
            z('v_mfma_f32_32x32x16_bf16 %s, %s, %s, %s' % (vr(acc2(ct, rg), 16), vr(wreg(u, ct), 4), vr(areg(u, rg), 4), '0' if fresh and k == 0 else vr(acc2(ct, rg), 16)))
            slots.append(z)
    n = len(units)
    for k, gi in enumerate(fill):
        slots[k].extend(gi)
    wr = [Ins('ds_write_b128 v%d, %s' % (V_NUM + 8 + 8 * rg + 4 * ct + i, vr(acc2(ct, rg) + 4 * i, 4))) for ct, rg in order for i in range(4)]
    pos = [[13, 14, 16, 18, 20, 22, 24, 26], [10, 11, 13, 14, 18, 19, 21, 22, 26, 27], [10, 12, 14, 16, 18, 20, 22, 24, 26, 27]][OPT['wpos']]
    for k, p in enumerate(pos):
        slots[p].append(wr[k])
    for z in slots:
        s.extend(z)
    s.extend(wr[len(pos):])


def final(g):
    s = Seg('final%d' % g)
    D, U = V_AB, V_U
    stamp(s, 8)
    barrier(s)
    stamp(s, 9)
    for w in range(4):
        for h in range(2):
            s('ds_read_b128 %s, v%d offset:%d' % (vr(D + 8 * w + 4 * h, 4), V_RD + h, w * (10240 if g else 12288)), ('fin', w))
    for w in range(4):
        s.wait(lgkm=[('fin', w)])
        for k in range(4):
            s('v_pk_add_f32 %s, %s, %s' % (vr(U + 2 * k, 2), vr(U + 2 * k, 2), vr(D + 8 * w + 2 * k, 2)))
    for k in range(4):
        s('v_cvt_pk_bf16_f32 v%d, v%d, v%d' % (U + k, U + 2 * k, U + 2 * k + 1))
    s('buffer_store_dwordx4 %s, v%d, %s, s%d offen' % (vr(U, 4), V_OUT, sr(SOUT, 4), S_OUTO) + ['', ' sc1', ' nt', ' sc0 sc1'][OPT['osc']])
    return s


def phase2b(nm, na, bdone):
    s, T = Seg('p2' + nm), V_NUM
    RING[0] = 14 if nm == 'f' else 11
    UW = 10
    s('L_p2%s:' % nm)
    stamp(s, 5)
    s('s_setprio 1')
    V_PW, V_PX, RES = 11, 14, V_AB + 48
    pend = [v for v in range(35) if v not in bdone]
    first = [v for v in pend if v < OPT['b0' if nm == 'k' else 'b0f']]
    pend = pend[len(first):]
    BS = {}
    for u in range(28):
        n = 1 if u + DEP - 1 < 28 else 2
        BS[u] = [v for v in pend[:n] if v - RING[0] + 1 <= u]
        pend = pend[len(BS[u]):]
    assert not pend

    def oloads():
        z = Seg()
        for rg in range(2):
            for u in range(7):
                z('buffer_load_dwordx4 %s, v%d, %s, s%d offen offset:%d sc1' % (vr(abuf(28 + u, rg), 4), V_L16B if rg else V_L16, sr(SWS, 4), S_RO3 if u >= 4 else S_P, (u & 3) * 1024), ('o', 28 + u, rg))
        return list(z)

    def word_check(z, u, n, hit=None):
        z.wait(lgkm=[('pw', u)])
        z('v_readfirstlane_b32 s%d, v%d' % (S_T2, V_PW))
        z('s_cmp_lt_u32 s%d, %d' % (S_T2, n))
        if hit:
            z('s_cbranch_scc0 %s' % hit)
            return
        j = nspin[0]
        nspin[0] += 1
        z('s_cbranch_scc1 L_slow%d' % j)
        z('L_ret%d:' % j)
        slow('L_slow%d:' % j)
        slow('s_add_u32 s%d, s%d, 1' % (S_SPIN, S_SPIN))
        slow('s_cmp_gt_u32 s%d, 0x%x' % (S_SPIN, SPIN_LIMIT << 3))
        slow('s_cbranch_scc1 L_ret%d' % j)
        slow('ds_read_b32 v%d, v%d' % (V_PW, V_PX))
        slow('s_waitcnt lgkmcnt(0)')
        slow('v_readfirstlane_b32 s%d, v%d' % (S_T2, V_PW))
        slow('s_nop 0')
        slow('s_cmp_lt_u32 s%d, %d' % (S_T2, n))
        slow('s_cbranch_scc1 L_slow%d' % j)
        slow('s_branch L_ret%d' % j)

    z = Seg()
    if na == 0:
        for v in first[:2]:
            dma_b2(z, v)
        first = first[2:]
        stage_check(z, 0)
    for u in range(na, DEP - 1):
        if u == OPT['p1at']:
            poll_async(z, 1)
        aload(z, u)
        if first:
            dma_b2(z, first.pop(0))
    if na > OPT['p1at']:
        poll_async(z, 1)
    for v in first:
        dma_b2(z, v)
    y = Seg()
    frag_addr(y, T)
    for reg, base in enumerate((S_QR0, S_QR2, S_QR3)[:3 if nm == 'f' else 2]):
        y('v_add_u32 v%d, s%d, v%d' % (BA[2 * reg], base, T + 3))
        y('v_xor_b32 v%d, 64, v%d' % (BA[2 * reg + 1], BA[2 * reg]))
    y('v_subrev_u32 v%d, 16, v%d' % (V_PX, V_PA))
    y.extend(res_unpack(RES_F if nm == 'f' else RES_KB))
    s.extend(mix(y, groups(z)))

    def wreg(u, ct):
        return bf(u & 1, ct) if u < 28 else V_AB + 32 * (1 - ct) + 4 * (u - 28)

    def bread(u, ct):
        z = Seg()
        _, reg, off = unit_loc(u)
        if not (OPT['x_free'] and u < 11):
            z.wait(vm=[('b', u)])
        for h in range(2):
            z('ds_read_b64_tr_b16 %s, v%d offset:%d' % (vr(wreg(u, ct) + 2 * h, 2), BA[2 * reg + ct], off + h * 1024), ('bf', u, ct))
        return z

    s.extend(bread(0, 0) + bread(0, 1))
    late = Seg()
    late('v_add_u32 v%d, %d, v%d' % (V_B2S, 52 * XS, V_B2))
    late('v_cndmask_b32 v%d, v%d, v%d, %s' % (V_B2S, V_B2, V_B2S, sr(S_HI, 2)))
    late = list(read_addr(1, RES)) + list(late) + list(part_addr(1))
    SITES = [[23, 25, 27, 28], [23, 24, 26, 28], [21, 23, 25, 28], [22, 24, 26, 28]][OPT['sites']]
    U2 = 17 - DEP

    def unit(s, u, extra, word):
        nxt = u + DEP - 1
        z = Seg()
        if nxt < 28:
            aload(z, nxt)
        for v in BS[u]:
            dma_b2(z, v)
        now = groups(z) + [[i] for i in extra]
        if 10 <= u < 20:
            k0, k1 = len(late) * (u - 10) // 10, len(late) * (u - 9) // 10
            now += [[i] for i in late[k0:k1]]
        if u < 27:
            rd = [bread(u + 1, 0), bread(u + 1, 1), Seg(), Seg()]
        else:
            rd = [bread(28 + k, 0) for k in range(4)]
        if word:
            rd[2]('ds_read_b32 v%d, v%d' % (V_PW, V_PX), ('pw', u + 1))
        s.wait(vm=[('a', u)])
        stamp(s, 'u%d' % u)
        k = 0
        for ct in range(2):
            s.wait(lgkm=[('bf', u, ct)])
            for rg in ((1, 0) if ct and OPT['gray'] else (0, 1)):
                s('v_mfma_f32_32x32x16_bf16 %s, %s, %s, %s' % (vr(acc2(ct, rg), 16), vr(wreg(u, ct), 4), vr(abuf(u, rg), 4), vr(acc2(ct, rg), 16) if u else '0'))
                s.extend(rd[k])
                for gi in range(len(now) * k // 4, len(now) * (k + 1) // 4):
                    s.extend(now[gi])
                k += 1

    main, alts = [s], []
    for u in range(28):
        if u + DEP - 1 == 8:
            stage_check(s, 1)
            stamp(s, 'c1')
        if u == UW and nm == 'f':
            word_check(s, u, 1)
        if u == U2:
            word_check(s, u, 3)
            stamp(s, 'c2')
        if u in SITES:
            word_check(s, u, 7, hit='L_p2o%s%d' % (nm, u))
            a = Seg('p2o%d' % u)
            a('L_p2o%s%d:' % (nm, u))
            stamp(a, 'c3')
            o = oloads()[:14 - OPT['otail']]
            for v in range(u, 28):
                unit(a, v, o[:OPT['oper']], False)
                o = o[OPT['oper']:]
            a.extend(o)
            a('s_branch L_p2tail%s' % nm)
            alts.append((list(main), a))
            s = Seg('p2m%d' % u)
            main.append(s)
        unit(s, u, [], u + 1 in SITES + [UW, U2])
    word_check(s, 28, 7)
    stamp(s, 'c3')
    s.extend(oloads()[:14 - OPT['otail']])
    t = Seg('p2t')
    t('L_p2tail%s:' % nm)
    stamp(t, 'tl')
    fill = [bread(u, 0) for u in range(32, 35)] + [bread(u, 1) for u in range(28, 35)]
    for k, i in enumerate(oloads()[14 - OPT['otail']:]):
        fill[k] = [i] + list(fill[k])
    acc_major(t, range(28, 35), wreg, abuf, lambda u, ct: ('bf', u, ct), lambda u, rg: ('o', u, rg), False, fill)
    t.extend(final(1))
    t('s_branch L_fin')
    return [m + [a, t] for m, a in alts] + [main + [t]], [a for _, a in alts] + main + [t]


def phase2a():
    s = Seg('p2a')
    s('L_p2a:')
    s('s_and_b32 s%d, s%d, 30' % (S_T0, S_I2))
    s('s_lshr_b32 s%d, s%d, 1' % (S_T1, S_RW))
    s('s_add_u32 s%d, s%d, s%d' % (S_T0, S_T0, S_T1))
    s('s_and_b32 s%d, s%d, 1' % (S_T1, S_I2))
    s('s_lshl1_add_u32 s%d, s%d, s%d' % (S_T0, S_T0, S_T1))
    s('s_lshl3_add_u32 s%d, s%d, s%d' % (S_T0, S_T0, S_ROLE))
    s('s_lshl_b32 s%d, s%d, 7' % (S_T0, S_T0))
    s('s_add_u32 s%d, s%d, 0x%x' % (S_PL, S_T0, FO_OFF))
    s('s_and_b32 s%d, s%d, 1' % (S_T1, S_RW))
    s('s_lshl3_add_u32 s%d, s%d, s%d' % (S_T3, S_T1, S_PL))
    s('s_add_u32 s%d, s%d, 8' % (S_T3, S_T3))
    for val, nm in ((3, 'a2'), (7, 7)):
        j = nspin[0]
        nspin[0] += 1
        s('v_mov_b32 v%d, %d' % (V_BF + 8 + val, val))
        if not OPT['x_nopoll']:
            s('L_pa%d:' % j)
            if val == 3:
                s('s_buffer_load_dwordx2 %s, %s, s%d glc' % (sr(S_T0, 2), sr(SWS, 4), S_T3))
            else:
                s('s_buffer_load_dword s%d, %s, s%d glc' % (S_T0, sr(SWS, 4), S_PL))
            s('s_add_u32 s%d, s%d, 1' % (S_SPIN, S_SPIN))
            s('s_cmp_gt_u32 s%d, 0x%x' % (S_SPIN, SPIN_LIMIT))
            s('s_waitcnt lgkmcnt(0)')
            s('s_cbranch_scc1 L_pz%d' % j)
            s('s_and_b32 s%d, s%d, s%d' % (S_T0, S_T0, S_T1 if val == 3 else S_T0))
            s('s_cbranch_scc0 L_pa%d' % j)
            s('L_pz%d:' % j)
        s('ds_write_b32 v%d, v%d' % (V_PA, V_BF + 8 + val))
        stamp(s, nm)
        if val == 3:
            s.extend(read_addr(0, V_BF))
    s.extend(final(0))
    return s


def fin():
    s = Seg('fin')
    s('L_fin:')
    if OPT['diag']:
        stamp(s, 10)
        s('s_waitcnt lgkmcnt(0)')
        s('v_mov_b32 v4, 0')
        for k in range(7):
            s('v_writelane_b32 v4, s%d, %d' % (S_KA + 2 * k, k))
        s('v_writelane_b32 v4, s%d, 11' % S_SPIN)
        s('s_lshl3_add_u32 s%d, s2, s%d' % (S_T0, S_WV))
        s('s_lshl_b32 s%d, s%d, 8' % (S_T0, S_T0))
        s('s_add_u32 s%d, s%d, 0x%x' % (S_T0, S_T0, TS_OFF))
        s('v_lshrrev_b32 v5, 2, v%d' % V_L16)
        s('buffer_store_dword v4, v5, %s, s%d offen' % (sr(SWS, 4), S_T0))
        if OPT['diag'] == 3:
            s('s_not_b32 s%d, s%d' % (S_T0, S_KA))
            s('v_writelane_b32 v4, s%d, 11' % S_T0)
            s('s_cmp_eq_u32 s%d, 4' % S_WV)
            s('s_cselect_b32 s%d, 16, 0x%x' % (S_T0, OOB))
            s('s_cmp_lt_u32 s%d, 4' % S_ROLE)
            s('s_cselect_b32 s%d, s%d, 0x%x' % (S_T0, S_T0, OOB))
            s('s_mov_b64 exec, 0xfff')
            s('buffer_atomic_umax v4, v5, %s, s%d offen sc1' % (sr(SDBG, 4), S_T0))
    if OPT['diag'] == 6:
        s('s_cmp_lg_u32 s%d, 4' % S_WV)
        s('s_cbranch_scc1 L_end')
        s('s_mov_b64 exec, 1')
        s('s_getreg_b32 s%d, hwreg(HW_REG_XCC_ID, 0, 4)' % S_T0)
        s('s_sub_u32 s%d, s%d, s2' % (S_T0, S_T0))
        s('s_and_b32 s%d, s%d, 7' % (S_T0, S_T0))
        s('s_lshl_b32 s%d, 1, s%d' % (S_T0, S_T0))
        s('v_mov_b32 v4, s%d' % S_T0)
        s('v_mov_b32 v6, 1')
        s('v_mov_b32 v7, 0')
        s('buffer_atomic_or v4, v7, %s, 0 offen offset:16 sc1' % sr(SDBG, 4))
        s('s_waitcnt vmcnt(0)')
        s('buffer_atomic_add v6, v7, %s, 0 offen offset:136 sc0 sc1' % sr(SDBG, 4))
        s('s_waitcnt vmcnt(0)')
        s('v_readfirstlane_b32 s%d, v6' % S_T0)
        s('s_cmp_lg_u32 s%d, 255' % S_T0)
        s('s_cbranch_scc1 L_end')
        s('buffer_load_dword v4, v7, %s, 0 offen offset:16 sc1' % sr(SDBG, 4))
        s('s_waitcnt vmcnt(0)')
        s('v_readfirstlane_b32 s%d, v4' % S_T0)
        s('s_bcnt1_i32_b32 s%d, s%d' % (S_T0, S_T0))
        s('s_mul_i32 s%d, s%d, 2000' % (S_T0, S_T0))
        s('s_memrealtime s[66:67]')
        s('s_waitcnt lgkmcnt(0)')
        s('L_dly:')
        s('s_memrealtime s[68:69]')
        s('s_waitcnt lgkmcnt(0)')
        s('s_sub_u32 s68, s68, s66')
        s('s_cmp_lt_u32 s68, s%d' % S_T0)
        s('s_cbranch_scc1 L_dly')
    if OPT['diag'] == 5:
        s('s_cmp_lg_u32 s%d, 4' % S_WV)
        s('s_cbranch_scc1 L_end')
        s('s_mov_b64 exec, 1')
        s('s_not_b32 s%d, s%d' % (S_T0, S_KA + 2 * OPT['sa']))
        s('v_mov_b32 v4, s%d' % S_T0)
        s('v_mov_b32 v5, s%d' % (S_KA + 2 * OPT['sb']))
        s('v_mov_b32 v6, 1')
        s('v_mov_b32 v7, 0')
        s('buffer_atomic_umax v4, v7, %s, 0 offen offset:128 sc1' % sr(SDBG, 4))
        s('buffer_atomic_umax v5, v7, %s, 0 offen offset:132 sc1' % sr(SDBG, 4))
        s('s_waitcnt vmcnt(0)')
        s('buffer_atomic_add v6, v7, %s, 0 offen offset:136 sc0 sc1' % sr(SDBG, 4))
        s('s_waitcnt vmcnt(0)')
        s('v_readfirstlane_b32 s%d, v6' % S_T0)
        s('s_cmp_lg_u32 s%d, 255' % S_T0)
        s('s_cbranch_scc1 L_end')
        s('buffer_load_dwordx2 v[4:5], v7, %s, 0 offen offset:128 sc1' % sr(SDBG, 4))
        s('s_waitcnt vmcnt(0)')
        s('v_add_u32 v4, v4, v5')
        s('s_nop 1')
        s('v_readfirstlane_b32 s%d, v4' % S_T0)
        s('s_add_u32 s%d, s%d, 1' % (S_T0, S_T0))
        s('s_mul_i32 s%d, s%d, %d' % (S_T0, S_T0, OPT['mul']))
        s('s_min_u32 s%d, s%d, 200000' % (S_T0, S_T0))
        s('s_memrealtime s[66:67]')
        s('s_waitcnt lgkmcnt(0)')
        s('L_dly:')
        s('s_memrealtime s[68:69]')
        s('s_waitcnt lgkmcnt(0)')
        s('s_sub_u32 s68, s68, s66')
        s('s_cmp_lt_u32 s68, s%d' % S_T0)
        s('s_cbranch_scc1 L_dly')
    if OPT['diag'] == 4:
        s('s_cmp_lg_u32 s2, %d' % OPT['wg'])
        s('s_cbranch_scc1 L_end')
        s('s_cmp_lg_u32 s%d, %d' % (S_WV, OPT['wv']))
        s('s_cbranch_scc1 L_end')
        s('s_sub_u32 s%d, s%d, s%d' % (S_T0, S_KA + 2 * OPT['sb'], S_KA + 2 * OPT['sa']))
        if not OPT['clk']:
            s('s_mul_i32 s%d, s%d, 10' % (S_T0, S_T0))
        s('s_min_u32 s%d, s%d, 200000' % (S_T0, S_T0))
        s('s_memrealtime s[66:67]')
        s('s_waitcnt lgkmcnt(0)')
        s('L_dly:')
        s('s_memrealtime s[68:69]')
        s('s_waitcnt lgkmcnt(0)')
        s('s_sub_u32 s68, s68, s66')
        s('s_cmp_lt_u32 s68, s%d' % S_T0)
        s('s_cbranch_scc1 L_dly')
    s('L_end:')
    s('s_endpgm')
    return s


def main():
    pro, prw, pre = prologue()
    f, fa, fb = lc_role(True)
    q, qa, qb = lc_role(False)
    qo = q_out()
    k, ka, kb, kc = kv_role()
    fpaths, fsegs = phase2b('f', OPT['na'], list(range(8 + OPT['nb'])) + [11, 12, 13])
    kpaths, ksegs = phase2b('k', OPT['kna'], list(range(4 + OPT['kua'] + OPT['kub'])))
    p2segs, p2a, fi = fsegs + ksegs, phase2a(), fin()
    paths = [
        [pro, pre, f, fa, p2a, fi],
        [pro, pre, q, qa, qo, fi],
        [pro, prw, pre, q, qb, qo, fi],
        [pro, prw, pre, k, ka, p2a, fi],
    ]
    paths += [[pro, prw, pre, f, fb] + p + [fi] for p in fpaths] + [[pro, prw, pre, k, x] + p + [fi] for p in kpaths for x in ((kb, kc) if OPT['two'] else (kb,))]
    if OPT['jit']:
        import random
        rnd, seen = random.Random(OPT['jit']), set()
        for p in paths:
            for seg in p:
                if id(seg) in seen:
                    continue
                seen.add(id(seg))
                out = []
                for i in seg:
                    out.append(i)
                    if i.op == 's_barrier' or (i.kind == 'label' and i.text.startswith(('L_ret', 'L_p2'))):
                        j = nspin[0]
                        nspin[0] += 1
                        out += [Ins('s_add_u32 s56, s2, s%d' % S_WV), Ins('s_bitcmp1_b32 0x%x, s56' % rnd.getrandbits(32)),
                                Ins('s_cbranch_scc0 L_j%d' % j), Ins('s_sleep %d' % rnd.choice((2, 5, 12, 30))), Ins('L_j%d:' % j)]
                seg[:] = out
    resolve_waits(paths)
    if OPT['hoist']:
        hoist_m0(paths)
    bad = verify_async(paths)
    assert not bad, '\n'.join(bad)
    n = pad_hazards(paths)
    assert pad_hazards(paths) == 0
    body = render([pro, prw, pre, f, fa, fb, k, ka, kb, kc, q, qa, qb, qo] + p2segs + [p2a, fi, slow])
    head = open('cdna_kernels/%s.s.ref' % NAME).read().split('\n')
    head = [l for l in head if l.startswith(';') and '@launch' not in l]
    out = '\n'.join(head) + '''
; @launch grid=(256,1,1) block=(512,1,1) lds=%d
.amdgcn_target "amdgcn-amd-amdhsa--gfx950"
.text
.globl %s_kernel
.p2align 8
.type %s_kernel,@function
%s_kernel:
L_codebeg:
%s
L_codeend:
.section .rodata,"a"
.p2align 6
.amdhsa_kernel %s_kernel
  .amdhsa_next_free_vgpr 256
  .amdhsa_next_free_sgpr 102
  .amdhsa_accum_offset 256
  .amdhsa_group_segment_fixed_size 0
  .amdhsa_kernarg_size 88
  .amdhsa_user_sgpr_count 2
  .amdhsa_user_sgpr_kernarg_segment_ptr 1
  .amdhsa_system_sgpr_workgroup_id_x 1
.end_amdhsa_kernel
''' % (LDS_BYTES, NAME, NAME, NAME, body, NAME)
    if OPT['x_plain'] & 1:
        out = '\n'.join(l.replace(' sc1', '') if 'buffer_store_dwordx4' in l else l for l in out.split('\n'))
    if OPT['x_plain'] & 2:
        out = '\n'.join(l.replace(' sc1', '') if 'buffer_load_dwordx4' in l else l for l in out.split('\n'))
    if OPT['x_drop'] & 1:
        out = '\n'.join('    s_nop 0' if 'v_mfma_f32_16x16x32' in l else l for l in out.split('\n'))
    if OPT['x_drop'] & 16:
        i, j = out.index('L_kv:'), out.index('L_q:')
        out = out[:i] + '\n'.join('    s_nop 0' if 'v_mfma_f32_16x16x32' in l or 'v_max_f32' in l or 'v_mul_f32' in l else l for l in out[i:j].split('\n')) + out[j:]
    if OPT['x_drop'] & 32:
        j = out.index('L_kv:')
        out = '\n'.join('    s_nop 0' if 'v_mfma_f32_16x16x32' in l or 'v_fma_f32' in l else l for l in out[:j].split('\n')) + out[j:]
    if OPT['x_drop'] & 2:
        out = '\n'.join('    s_nop 0' if 'v_dot2c' in l else l for l in out.split('\n'))
    if OPT['x_drop'] & 4:
        i, j = out.index('L_p2of23:'), out.index('L_p2a:')
        out = out[:i] + '\n'.join('    s_nop 7' if 'v_mfma' in l else l for l in out[i:j].split('\n')) + out[j:]
    if OPT['x_drop'] & 8:
        i = out.index('L_p2of23:')
        out = '\n'.join('    s_nop 7' if 'v_mfma_f32_32x32x16' in l else l for l in out[:i].split('\n')) + out[i:]
    open(sys.argv[1], 'w').write(out)
    print('wrote %s: %d lines, %d pad states' % (sys.argv[1], out.count('\n'), n))


main()
```

```python
import struct
import sys
from asmlib import Seg, Ins, Wait, GAP, interleave, resolve_waits, pad_hazards, verify_async, hoist_m0, render, vr, sr

NAME = 'parallel_sum__linear_attn_block__dense_activation_gelu__prompt'
OPT = dict(early=0, smk=1, smf=1, sel1=1, zpad=16, x_late=0, x_mask=0x08080808, ecarry=0, carry=1, kn4=2, kn5=6, kn6=9, kep=16, s6=1, npre=0, lcs=0, actg=288, two=1, wpos=0, kres=1, kna=3, kne=6, k2=0, qsplit=0, sites=0, kv4=3, kua=3, kub=0, x_free=0, x_freek=0, tf0=2, tfp=45, x_drop=0, gray=0, hoist=1, wj=1, tfat=1, kpa=1, otail=7, oper=3, rmap=4, jit=0, rounds=15, opriv=1, oscal=1, na=5, nb=0, b0=9, xfirst=1, osc=1, ne=1, ub=0, b0f=9, pmix=1, wv=4, back=0, x_wait=0, rot1=6, nlate=1, mul=10, fatom=0, tlb=0, kbar=4, kphi=26, ntail=4, p1at=2, ascal=1, kpf=4, kcut=4, kb0=24, kb1=104, khead=0, kearly=8, qatom=1, batom=1, pkind=1, x_hit=0, gsp=3, eprio=0, aprio=2, aprio2=2, aprio3=2, lb=10, touch=69, tat=4, twat=3, tkat=1, kprio=0, plead=3, x_noa=0, x_nopoll=0, x_noflag=0, x_nost=0, x_plain=0, rot2=1, dep=6, noatom=0, diag=0, p1only=0, sa=0, sb=10, clk=0, wg=0)
for a in sys.argv[2:]:
    k, v = a.split('=')
    OPT[k] = v if k == 'st' else int(v)
STAMPS = OPT.get('st', 'en,2,4,5,6,7,10').split(',')


assert len(STAMPS) <= 7


def f32(x):
    return '0x%08x' % struct.unpack('<I', struct.pack('<f', x))[0]


XS, WQS, W1S = 896, 2688, 3584
ACT_G = OPT['actg'] * 512
KV_OFF = 0x900000
FKV_OFF = 0x910000
FL_OFF = 0x911000
FL_G = 896
FO_OFF = 0x920000
ST_OFF = 0x938000
TS_OFF = 0xA00000
WS_BYTES = 0x10000000
OOB = 0x40000000
R0, R1, R2, MISC = 0, 57344, 114688, 155648
M_ST, M_SY, M_CS, M_R = MISC, MISC + 2048, MISC + 4096, MISC + 7168
LDS_BYTES = 163840
LOG2E = 1.4426950408889634
GC1 = -2.0 * 0.7978845608028654 * LOG2E
GC3 = GC1 * 0.044715
SPIN_LIMIT = 1 << 16

S_WV, S_RW, S_G, S_RB, S_ROLE = 3, 4, 5, 6, 7
SX, SW, SWS, SW2, SWO, SOUT, SB1, SB2, SDBG = 8, 12, 16, 20, 24, 28, 32, 36, 40
S_KA = 44
S_KX, S_KW = 66, 73
S_I2, S_HALF, S_T0, S_T1, S_ONES, S_EPS = 80, 81, 82, 83, 84, 85
S_M0W, S_M0X, S_T3, S_RO, S_H, S_FL = 86, 87, 88, 89, 90, 91
S_HI = 92
S_SPIN, S_T2, S_P, S_LAST, S_PEND, S_L2E = 94, 95, 96, 97, 98, 99
S_PAD = 100
S_B2R, S_QR0, S_QR2, S_A, S_WOR, S_OUTO, S_G0, S_G2 = 58, 59, 60, 61, 62, 63, 64, 65
S_RO3, S_PL = 68, 73
S_AO = 74

V_L16, V_B2, V_X0, V_X1, V_W, V_CSW, V_CSR = 1, 2, 3, 4, 5, 6, 7
V_SEL, V_CS, V_WA, V_XA, V_EXW, V_EXR, V_ST = 8, 12, 20, 28, 32, 36, 38
V_B1 = 16
V_WB, V_RA = 42, 43
V_POLL, V_PA, V_FLO, V_ONE = 44, 45, 46, 47
V_T = 48
V_ACC, V_X, V_WF = 64, 128, 240
V_B2B, V_BA, V_L16B, V_PL = 3, 4, 12, 31
DEP = 6
V_NUM, V_BF, V_AB, V_RES = 16, 48, 128, 192
V_PQ = 80
HND = 49152

slow = Seg('slow')
nspin = [0]


def stamp(s, k):
    if OPT['diag'] and str(k) in STAMPS:
        k = STAMPS.index(str(k))
        s('%s %s' % ('s_memtime' if OPT['diag'] == 2 or OPT['clk'] else 's_memrealtime', sr(S_KA + 2 * k, 2)))


EARLY = ['en', 'ka', 't0', 't1']


def estamp(s, k):
    if OPT['diag'] and k in STAMPS:
        s('%s s[100:101]' % ('s_memtime' if OPT['diag'] == 2 or OPT['clk'] else 's_memrealtime'))
        s('s_waitcnt lgkmcnt(0)')
        s('v_mov_b32 v%d, s100' % (120 + EARLY.index(k)))


class Rebase:
    def __init__(self, regs, base, span):
        self.regs, self.base, self.span = regs, base, span

    def off(self, s, addr):
        if not (self.base <= addr and addr - self.base + self.span <= 65535):
            for r in self.regs:
                s('v_add_u32 v%d, 0x%x, v%d' % (r, (addr - self.base) & 0xffffffff, r))
            self.base = addr
        return addr - self.base


def spin_check(s, vpoll, vexp, vaddr, srd, soff, mask):
    k = nspin[0]
    nspin[0] += 1
    s('v_cmp_le_u32 vcc, %d, v%d' % (vexp, vpoll))
    s('s_andn2_b32 s%d, 0x%x, vcc_lo' % (S_T2, mask))
    s('s_cbranch_scc1 L_slow%d' % k)
    s('L_ret%d:' % k)
    slow('L_slow%d:' % k)
    slow('s_add_u32 s%d, s%d, 1' % (S_SPIN, S_SPIN))
    slow('s_cmp_gt_u32 s%d, 0x%x' % (S_SPIN, SPIN_LIMIT))
    slow('s_cbranch_scc1 L_ret%d' % k)
    slow('buffer_load_dword v%d, v%d, %s, %s offen sc1' % (vpoll, vaddr, sr(srd, 4), soff))
    slow('s_waitcnt vmcnt(0)')
    slow('v_cmp_le_u32 vcc, %d, v%d' % (vexp, vpoll))
    slow('s_nop 1')
    slow('s_andn2_b32 s%d, 0x%x, vcc_lo' % (S_T2, mask))
    slow('s_cbranch_scc1 L_slow%d' % k)
    slow('s_branch L_ret%d' % k)


def poll_base(s):
    s('s_lshr_b32 s%d, s%d, 1' % (S_PL, S_I2))
    s('s_lshl2_add_u32 s%d, s%d, s%d' % (S_PL, S_PL, S_RW))
    s('s_mul_i32 s%d, s%d, %d' % (S_PL, S_PL, FL_G))
    s('s_add_u32 s%d, s%d, 0x%x' % (S_PL, S_PL, FL_OFF))
    s('v_cmp_gt_u32 vcc, 32, v%d' % V_L16)
    s('v_lshlrev_b32 v%d, 3, v%d' % (V_PL, V_L16))
    s('v_cndmask_b32 v%d, v%d, v%d, vcc' % (V_PL, V_FLO, V_PL))


def poll_async(s, k):
    s('buffer_load_dword v%d, v%d, %s, s%d offen offset:%d sc1' % (V_POLL, V_PL, sr(SWS, 4), S_PL, k * 256), ('poll', k))


def stage_check(s, k, miss=None, sync=False, scalar=False):
    if OPT['x_nopoll']:
        return
    j = nspin[0]
    nspin[0] += 1
    mask = 3 if k < 3 else 1
    if sync:
        s('s_branch L_slow%d' % j)
    else:
        s.wait(vm=[('poll', k)])
        s('v_cmp_ne_u32 vcc, 0, v%d' % V_POLL)
        s('s_andn2_b32 s%d, %d, vcc_lo' % (S_T2, mask))
        if miss:
            s('s_cbranch_scc1 %s' % miss)
            return
        s('s_cbranch_scc1 L_slow%d' % j)
    s('L_ret%d:' % j)
    slow('L_slow%d:' % j)
    slow('s_add_u32 s%d, s%d, 1' % (S_SPIN, S_SPIN))
    slow('s_cmp_gt_u32 s%d, 0x%x' % (S_SPIN, SPIN_LIMIT))
    slow('s_cbranch_scc1 L_ret%d' % j)
    if sync and k == 3 and OPT['back']:
        slow('s_sleep %d' % OPT['back'])
    if scalar:
        slow('s_add_u32 s%d, s%d, %d' % (S_T2, S_PL, k * 256))
        slow('s_add_u32 s%d, s%d, %d' % (S_T1, S_PL, k * 256 + (128 if k < 3 else 0)))
        slow('s_buffer_load_dword s%d, %s, s%d glc' % (S_T2, sr(SWS, 4), S_T2))
        if k < 3:
            slow('s_buffer_load_dword s%d, %s, s%d glc' % (S_T1, sr(SWS, 4), S_T1))
        slow('s_waitcnt lgkmcnt(0)')
        if k < 3:
            slow('s_and_b32 s%d, s%d, s%d' % (S_T2, S_T2, S_T1))
        slow('s_cmp_eq_u32 s%d, 0' % S_T2)
    else:
        slow('buffer_load_dword v%d, v%d, %s, s%d offen offset:%d sc1' % (V_POLL, V_PL, sr(SWS, 4), S_PL, k * 256))
        slow('s_waitcnt vmcnt(0)')
        slow('v_cmp_ne_u32 vcc, 0, v%d' % V_POLL)
        slow('s_nop 1')
        slow('s_andn2_b32 s%d, %d, vcc_lo' % (S_T2, mask))
    slow('s_cbranch_scc1 L_slow%d' % j)
    slow('s_branch L_ret%d' % j)


def poll_check(s, k, n, sync=False, atomic=False):
    j = nspin[0]
    nspin[0] += 1
    if OPT['x_nopoll']:
        return
    if sync:
        s('s_branch L_slow%d' % j)
    else:
        s.wait(vm=[('poll', k)])
        s('v_readfirstlane_b32 s%d, v%d' % (S_T2, V_POLL))
        s('s_cmp_lt_u32 s%d, %d' % (S_T2, n))
        s('s_cbranch_scc1 L_slow%d' % j)
    s('L_ret%d:' % j)
    slow('L_slow%d:' % j)
    slow('s_add_u32 s%d, s%d, 1' % (S_SPIN, S_SPIN))
    slow('s_cmp_gt_u32 s%d, 0x%x' % (S_SPIN, SPIN_LIMIT))
    slow('s_cbranch_scc1 L_ret%d' % j)
    if atomic:
        slow('v_mov_b32 v%d, 0' % V_POLL)
        slow('buffer_atomic_add v%d, v%d, %s, s%d offen offset:%d sc0 sc1' % (V_POLL, V_FLO, sr(SWS, 4), S_PL, k * 128))
        slow('s_waitcnt vmcnt(0)')
        slow('v_readfirstlane_b32 s%d, v%d' % (S_T2, V_POLL))
        slow('s_nop 0')
    else:
        slow('s_add_u32 s%d, s%d, %d' % (S_T2, S_PL, k * 128))
        slow('s_buffer_load_dword s%d, %s, s%d glc' % (S_T2, sr(SWS, 4), S_T2))
        slow('s_waitcnt lgkmcnt(0)')
    slow('s_cmp_lt_u32 s%d, %d' % (S_T2, n))
    slow('s_cbranch_scc1 L_slow%d' % j)
    slow('s_branch L_ret%d' % j)


def srd(s, d, nbytes):
    s('s_mov_b32 s%d, 0x%x' % (d + 2, nbytes))
    s('s_mov_b32 s%d, 0x20000' % (d + 3))


XSLOT = [R2, R2 + 16384, R1 + 8192, R1 + 24576, R1 + 40960, R2, R2 + 16384]


def kv_slot(n):
    return ((n + 4) % 9) * 16384


def prologue():
    s, T = Seg('pro'), V_T
    s('s_cmp_ge_u32 s2, 256')
    s('s_cbranch_scc1 L_end')
    estamp(s, 'en')
    if OPT['x_late']:
        s('s_bitcmp1_b32 0x%x, s2' % OPT['x_mask'])
        s('s_cbranch_scc0 L_nolate')
        s('s_sleep %d' % OPT['x_late'])
        s('L_nolate:')
    s('s_load_dwordx2 %s, s[0:1], 0' % sr(SX, 2))
    s('s_load_dwordx2 %s, s[0:1], 8' % sr(SW, 2))
    s('s_load_dwordx2 %s, s[0:1], 32' % sr(S_HI, 2))
    s('v_readfirstlane_b32 s%d, v0' % S_WV)
    s('s_getpc_b64 s[82:83]')
    s('s_lshr_b32 s%d, s2, 3' % S_T2)
    s('s_lshl_b32 s%d, s%d, 11' % (S_P, S_T2))
    s('v_lshl_add_u32 v%d, v0, 2, s%d' % (T, S_P))
    s('v_min_u32 v%d, L_codeend-L_codebeg-64, v%d' % (T, T))
    s('global_load_dword v%d, v%d, s[82:83]' % (V_POLL, T))
    s('s_lshr_b32 s%d, s%d, 6' % (S_WV, S_WV))
    s('v_and_b32 v%d, 63, v0' % T)
    if OPT['rmap'] < 0:
        s('s_and_b32 s%d, s%d, 7' % (S_ROLE, S_T2))
        s('v_lshrrev_b32 v%d, 3, v%d' % (T + 1, T))
        s('s_lshr_b32 s%d, s%d, 3' % (S_I2, S_T2))
    else:
        s('s_add_u32 s%d, s%d, %d' % (S_ROLE, S_T2, 4 * OPT['rmap']))
        s('v_lshrrev_b32 v%d, 3, v%d' % (T + 1, T))
        s('s_bfe_u32 s%d, s%d, 0x30002' % (S_ROLE, S_ROLE))
        s('s_and_b32 s%d, s%d, 3' % (S_I2, S_T2))
    s('v_lshrrev_b32 v%d, 4, v%d' % (T + 3, T))
    s('s_and_b32 s%d, s2, 1' % S_HALF)
    s('v_lshl_add_u32 v%d, s%d, 4, v%d' % (T + 5, S_WV, T + 1))
    s('s_bfe_u32 s%d, s2, 0x20001' % S_P)
    s('v_mul_u32_u24 v%d, %d, v%d' % (T + 5, XS, T + 5))
    s('s_lshl2_add_u32 s%d, s%d, s%d' % (S_RB, S_P, S_I2))
    s('v_xor_b32 v%d, v%d, v%d' % (T + 6, T, T + 3))
    s('s_add_u32 s%d, s%d, s%d' % (S_T2, S_I2, S_ROLE))
    s('v_and_b32 v%d, 7, v%d' % (T + 6, T + 6))
    s('s_and_b32 s%d, s%d, 1' % (S_T2, S_T2))
    s('v_lshl_add_u32 v%d, v%d, 4, v%d' % (V_X0, T + 6, T + 5))
    s('s_lshl2_add_u32 s%d, s%d, s%d' % (S_T2, S_HALF, S_T2))
    s('v_xor_b32 v%d, 64, v%d' % (V_X1, V_X0))
    s('s_lshl1_add_u32 s%d, s%d, s%d' % (S_T2, S_P, S_T2))
    s('v_add_u32 v%d, %d, v%d' % (V_X1, 8 * XS - 1024, V_X1))
    s('s_cmp_ge_u32 s%d, 7' % S_T2)
    s('s_cselect_b32 s%d, 7, 0' % S_T1)
    s('s_sub_u32 s%d, s%d, s%d' % (S_T2, S_T2, S_T1))
    s('s_mul_i32 s%d, s%d, %d' % (S_H, S_RB, 128 * XS))
    s('s_lshl_b32 s%d, s%d, 7' % (S_KX, S_T2))
    s('s_add_u32 s%d, s%d, s%d' % (S_KX, S_KX, S_H))
    s('s_lshl_b32 s%d, s%d, 11' % (S_M0X, S_WV))
    s('s_bitcmp1_b32 0x70, s%d' % S_ROLE)
    s('s_cselect_b32 s%d, 4, 7' % S_T3)
    s('s_lshl_b32 s%d, s%d, 14' % (S_T3, S_T3))
    s('s_add_u32 m0, s%d, s%d' % (S_T3, S_M0X))
    srd(s, SX, 2048 * XS)
    assert XSLOT[0] == 7 << 14 and kv_slot(0) == 4 << 14
    if OPT['touch'] & 8:
        s('s_lshl3_add_u32 s%d, s%d, s%d' % (S_T3, S_HALF, S_ROLE))
        s('v_min_u32 v%d, 6, v%d' % (T + 2, T))
        s('s_lshl3_add_u32 s%d, s%d, s%d' % (S_T3, S_T3, S_WV))
        s('v_lshlrev_b32 v%d, 7, v%d' % (T + 2, T + 2))
        s('s_mul_i32 s%d, s%d, %d' % (S_T3, S_T3, XS))
        s('s_add_u32 s%d, s%d, s%d' % (S_T3, S_T3, S_H))
    if OPT['xfirst']:
        s('s_waitcnt lgkmcnt(0)')
        estamp(s, 'ka')
        s('buffer_load_dwordx4 v%d, %s, s%d offen lds' % (V_X0, sr(SX, 4), S_KX), 't0')
        s('buffer_load_dwordx4 v%d, %s, s%d offen offset:1024 lds' % (V_X1, sr(SX, 4), S_KX), 't0')
        if OPT['touch'] & 8:
            s('buffer_load_dword v%d, v%d, %s, s%d offen' % (V_EXW, T + 2, sr(SX, 4), S_T3))
    s('s_and_b32 s%d, s%d, 3' % (S_RW, S_WV))
    s('s_lshr_b32 s%d, s%d, 2' % (S_G, S_WV))
    s('s_lshl_b32 s%d, s%d, 11' % (S_M0W, S_RW))
    s('s_mul_i32 s%d, s%d, 3' % (S_T0, S_HALF))
    s('v_lshlrev_b32 v%d, 2, v%d' % (T + 4, T + 3))
    s('s_add_u32 s%d, s%d, s%d' % (S_T0, S_T0, S_ROLE))
    s('v_xor_b32 v%d, v%d, v%d' % (T + 4, T, T + 4))
    s('s_lshl_b32 s%d, s%d, 7' % (S_T0, S_T0))
    s('s_add_u32 s%d, s%d, %d' % (S_T0, S_T0, XS - 512))
    s('s_lshl2_add_u32 s%d, s%d, s%d' % (S_P, S_HALF, S_ROLE))
    s('s_and_b32 s%d, s%d, 1' % (S_PEND, S_ROLE))
    s('s_lshl_b32 s%d, s%d, 6' % (S_PEND, S_PEND))
    s('s_movk_i32 s%d, %d' % (S_LAST, WQS))
    s('s_cmp_lt_u32 s%d, 4' % S_ROLE)
    s('s_cselect_b32 s%d, %d, s%d' % (S_LAST, W1S, S_LAST))
    s('s_cselect_b32 s%d, s%d, s%d' % (S_P, S_P, S_HALF))
    s('s_cselect_b32 s%d, s%d, 0' % (S_PEND, S_PEND))
    s('s_mul_i32 s%d, s%d, 448' % (S_T1, S_P))
    s('s_add_u32 s%d, s%d, s%d' % (S_T1, S_T1, S_PEND))
    s('s_lshl_b32 s%d, s%d, 6' % (S_RO, S_LAST))
    s('s_mul_i32 s%d, s%d, s%d' % (S_KW, S_T2, S_RO))
    s('s_mul_i32 s%d, s%d, 448' % (SW + 2, S_LAST))
    s('s_mov_b32 s%d, 0x20000' % (SW + 3))
    s('s_lshl_b32 s%d, s%d, 1' % (S_T2, S_RW))
    s('s_add_u32 s%d, s%d, %d' % (S_FL, S_M0X, kv_slot(1)))
    s('s_bitcmp1_b32 0x70, s%d' % S_ROLE)
    s('s_cselect_b32 s%d, s%d, s%d' % (S_T0, S_T0, S_T1))
    s('s_cselect_b32 s%d, s%d, s%d' % (S_T2, S_WV, S_T2))
    s('s_cselect_b32 s%d, s%d, s%d' % (S_FL, S_FL, S_M0W))
    s('s_cselect_b32 s%d, 4, 3' % S_T1)
    s('s_cselect_b32 s%d, 1, s%d' % (S_SPIN, S_G))
    s('v_lshrrev_b32 v%d, s%d, v%d' % (T + 5, S_T1, T))
    s('v_lshl_add_u32 v%d, s%d, 3, v%d' % (T + 5, S_T2, T + 5))
    s('v_bfe_u32 v%d, v%d, 0, s%d' % (T + 6, T + 4, S_T1))
    s('s_lshr_b32 s%d, s%d, s%d' % (S_T1, S_RO, S_T1))
    s('v_mul_u32_u24 v%d, s%d, v%d' % (T + 5, S_LAST, T + 5))
    s('s_sub_u32 s%d, s%d, 1024' % (S_T1, S_T1))
    s('v_lshl_add_u32 v%d, v%d, 4, s%d' % (T + 6, T + 6, S_T0))
    s('v_add_u32 v%d, v%d, v%d' % (V_W, T + 5, T + 6))
    s('s_cmp_lt_u32 s%d, 4' % S_ROLE)
    s('v_add_u32 v%d, s%d, v%d' % (V_WB, S_T1, V_W))
    if not OPT['xfirst']:
        s('s_waitcnt lgkmcnt(0)')
        estamp(s, 'ka')
        s('buffer_load_dwordx4 v%d, %s, s%d offen lds' % (V_X0, sr(SX, 4), S_KX), 't0')
        s('buffer_load_dwordx4 v%d, %s, s%d offen offset:1024 lds' % (V_X1, sr(SX, 4), S_KX), 't0')
        if OPT['touch'] & 8:
            s('buffer_load_dword v%d, v%d, %s, s%d offen' % (V_EXW, T + 2, sr(SX, 4), S_T3))
    s('s_cselect_b64 %s, %s, %s' % (sr(SW, 2), sr(S_HI, 2), sr(SW, 2)))
    s('s_mov_b32 m0, s%d' % S_FL)
    s('s_cmp_eq_u32 s%d, 0' % S_SPIN)
    s('s_cbranch_scc1 L_now')
    w = Seg('prow')
    w('buffer_load_dwordx4 v%d, %s, s%d offen lds' % (V_W, sr(SW, 4), S_KW), 't0')
    w('buffer_load_dwordx4 v%d, %s, s%d offen offset:1024 lds' % (V_WB, sr(SW, 4), S_KW), 't0')
    e = Seg('proe')
    e('L_now:')
    if OPT['touch'] & 16:
        e('v_min_u32 v%d, 55, v%d' % (T + 2, T))
        e('s_mul_i32 s%d, s%d, 28' % (S_T3, S_RB))
        e('v_lshrrev_b32 v%d, 1, v%d' % (T + 5, T + 2))
        e('s_mul_i32 s%d, s%d, s%d' % (S_T3, S_T3, S_LAST))
        e('v_mul_u32_u24 v%d, s%d, v%d' % (T + 5, S_LAST, T + 5))
        e('s_add_u32 s%d, s%d, s%d' % (S_T3, S_T3, S_T0))
        e('v_and_b32 v%d, 1, v%d' % (T + 2, T + 2))
        e('s_lshl_b32 s%d, s%d, 28' % (S_T2, S_WV))
        e('v_lshl_add_u32 v%d, v%d, 7, v%d' % (T + 2, T + 2, T + 5))
        e('s_add_u32 s%d, s%d, s%d' % (S_T3, S_T3, S_T2))
        e('buffer_load_dword v%d, v%d, %s, s%d offen' % (V_EXW, T + 2, sr(SW, 4), S_T3))
    estamp(e, 't0')
    for d, off in ((SWS, 80), (SB1, 40), (SDBG, 72), (SW2, 48), (SWO, 16), (SB2, 56), (SOUT, 64)):
        e('s_load_dwordx2 %s, s[0:1], %d' % (sr(d, 2), off))
    essential(e)
    e('s_cmp_ge_u32 s%d, 7' % S_ROLE)
    e('s_cbranch_scc1 L_q')
    e('s_cmp_ge_u32 s%d, 4' % S_ROLE)
    e('s_cbranch_scc1 L_kv')
    return s, w, e


def zipper(a, b):
    out = []
    for k in range(max(len(a), len(b))):
        out += a[k:k + 1] + b[k:k + 1]
    return out


def essential(z):
    T = V_T
    k, s = Seg(), Seg()
    k('s_add_u32 s%d, s%d, %d' % (S_T2, S_H, XS))
    for c in range(1, 7):
        k('s_add_u32 s%d, s%d, 128' % (S_KX + c, S_KX + c - 1))
        k('s_add_u32 s%d, s%d, s%d' % (S_KW + c, S_KW + c - 1, S_RO))
        k('s_cmp_eq_u32 s%d, s%d' % (S_KX + c, S_T2))
        k('s_cselect_b32 s%d, s%d, s%d' % (S_KX + c, S_H, S_KX + c))
        k('s_cselect_b32 s%d, 0, s%d' % (S_KW + c, S_KW + c))
    k('s_mov_b32 s%d, 0x3f803f80' % S_ONES)
    s('v_lshlrev_b32 v%d, 4, v%d' % (V_L16, T))
    s('v_and_b32 v%d, 1, v%d' % (T + 7, T + 3))
    s('v_and_b32 v%d, 31, v%d' % (T + 8, T))
    s('v_lshrrev_b32 v%d, 5, v%d' % (T + 9, T))
    s('v_bfe_u32 v%d, v%d, 2, 2' % (T + 10, T))
    s('v_and_b32 v%d, 3, v%d' % (T + 11, T))
    s('v_lshl_add_u32 v%d, s%d, 1, v%d' % (T + 12, S_RW, T + 9))
    s('v_bfe_u32 v%d, v%d, 1, 3' % (T + 5, T))
    s('v_xor_b32 v%d, v%d, v%d' % (T + 5, T + 12, T + 5))
    s('v_lshl_add_u32 v%d, s%d, 5, v%d' % (T + 13, S_RW, T + 8))
    s('v_lshlrev_b32 v%d, 7, v%d' % (V_XA, T + 13))
    s('v_lshl_add_u32 v%d, v%d, 4, v%d' % (V_XA, T + 5, V_XA))
    for j in range(1, 4):
        s('v_xor_b32 v%d, %d, v%d' % (V_XA + j, j << 5, V_XA))
    s('v_lshl_add_u32 v%d, v%d, 3, v%d' % (T + 12, T + 12, T + 10))
    s('v_lshl_add_u32 v%d, v%d, 2, v%d' % (T + 14, T + 7, T + 11))
    if OPT['sel1']:
        s('v_and_b32 v%d, 7, v%d' % (T + 5, T + 4))
        s('v_mov_b32 v%d, 0x3f803f80' % (T + 6))
        s('v_cmp_eq_u32 vcc, 0, v%d' % (T + 5))
    else:
        s('v_and_b32 v%d, 1, v%d' % (T + 5, T + 10))
        s('v_mov_b32 v%d, 0x3f803f80' % (T + 6))
        s('v_cmp_eq_u32 vcc, v%d, v%d' % (T + 5, T + 7))
    for j in range(4):
        s('v_mov_b32 v%d, 0' % (V_ST + j))
    for j in range(4):
        s('v_cndmask_b32 v%d, 0, v%d, vcc' % (V_SEL + j, T + 6))
    s('v_mov_b32 v%d, 0x%x' % (V_FLO, OOB))
    s('v_cmp_eq_u32 vcc, 0, v%d' % T)
    s('v_mov_b32 v%d, 1' % V_ONE)
    s('v_mov_b32 v%d, 0' % (V_EXW + 1))
    s('v_cndmask_b32 v%d, v%d, 0, vcc' % (V_FLO, V_FLO))
    z.extend(zipper(list(k), list(s)))


def deferred(kv):
    s, T = Seg(), V_T
    for k in EARLY:
        if OPT['diag'] and k in STAMPS:
            s('v_readfirstlane_b32 s%d, v%d' % (S_KA + 2 * STAMPS.index(k), 120 + EARLY.index(k)))
    srd(s, SW2, 1792 * XS)
    srd(s, SWO, 448 * XS)
    srd(s, SOUT, 2048 * XS)
    srd(s, SB2, 448 * 2)
    s('s_mov_b32 s%d, %s' % (S_EPS, f32(1e-6)))
    s('s_mov_b32 s%d, %s' % (S_L2E, f32(LOG2E)))
    s('s_mov_b32 s%d, 0' % S_HI)
    s('s_mov_b32 s%d, -1' % (S_HI + 1))
    if kv:
        s('s_mov_b32 s%d, 0xf0000000' % S_PAD)
        s('s_mov_b32 s%d, 0xf0000000' % (S_PAD + 1))
        s('v_mov_b32 v%d, 0' % (V_EXW + 3))
    s('s_mov_b32 s%d, 0' % S_SPIN)
    s('v_and_b32 v%d, 7, v%d' % (T + 4, T + 4))
    s('v_mul_u32_u24 v%d, %d, v%d' % (V_B2, XS, T + 1))
    s('v_lshl_add_u32 v%d, v%d, 4, v%d' % (V_B2, T + 4, V_B2))
    if kv:
        s('s_mov_b32 s%d, %d' % (S_T1, M_CS))
    else:
        s('s_lshl_b32 s%d, s%d, 9' % (S_T1, S_G))
        s('s_add_u32 s%d, s%d, %d' % (S_T1, S_T1, M_CS))
    s('v_lshl_add_u32 v%d, v%d, 4, s%d' % (V_CSR, T + 8, S_T1))
    s('v_lshl_add_u32 v%d, s%d, 2, v%d' % (V_CSW, S_RW, V_CSR))
    s('s_lshl2_add_u32 s%d, s%d, %d' % (S_T1, S_WV, M_SY))
    s('v_mov_b32 v%d, s%d' % (V_PA, S_T1))
    for k in ((0, 128, 160, 192, 224) if kv else (0,)):
        s('ds_write_b32 v%d, v%d offset:%d' % (V_PA, V_EXW + 1, k))
    if not kv:
        s('v_lshlrev_b32 v%d, 2, v%d' % (V_EXR + 1, T + 13))
        s('v_add_u32 v%d, %d, v%d' % (V_EXR, M_ST, V_EXR + 1))
    s('s_and_b32 s%d, s2, 7' % S_T1)
    s('s_lshl2_add_u32 s%d, s%d, s%d' % (S_I2, S_T1, S_I2))
    if OPT['rot2'] == 2:
        s('s_add_u32 s%d, s%d, s%d' % (S_T1, S_I2, S_ROLE))
    elif OPT['rot2'] == 3:
        s('s_add_u32 s%d, s%d, s%d' % (S_T1, S_I2, S_ROLE))
        s('s_and_b32 s%d, s%d, 3' % (S_T1, S_T1))
    elif OPT['rot2'] == 4:
        s('s_add_u32 s%d, s%d, s%d' % (S_T1, S_I2, S_ROLE))
        s('s_and_b32 s%d, s%d, 1' % (S_T1, S_T1))
    else:
        s('s_lshl1_add_u32 s%d, s%d, s%d' % (S_T1, S_I2, S_ROLE))
    s('s_and_b32 s%d, s%d, 3' % (S_RO, S_T1))
    s('s_and_b32 s%d, s%d, 4' % (S_T1, S_T1))
    s('s_lshl2_add_u32 s%d, s%d, s%d' % (S_RO, S_T1, S_RO))
    if not OPT['rot2']:
        s('s_mov_b32 s%d, 0' % S_RO)
    return s


def tlb_warm(s):
    if not OPT['tlb']:
        return
    T = V_T
    s('s_cmp_eq_u32 s%d, 0' % S_WV)
    s('s_cselect_b32 s%d, 128, 0x%x' % (S_T1, OOB))
    for r in (SDBG, SW2, SWO, SB2, SOUT):
        s('buffer_load_dword v%d, v%d, %s, s%d offen' % (T + 15, V_FLO, sr(r, 4), S_T1))
    s('v_lshlrev_b32 v%d, 17, v%d' % (T + 5, V_L16))
    s('v_min_u32 v%d, 0x%x, v%d' % (T + 5, 0x9f0000, T + 5))
    s('buffer_load_dword v%d, v%d, %s, s%d offen' % (T + 15, T + 5, sr(SWS, 4), S_T1))


def dma_x(s, c, addr, tag):
    s('s_add_u32 m0, s%d, %d' % (S_M0X, addr))
    s('buffer_load_dwordx4 v%d, %s, s%d offen lds' % (V_X0, sr(SX, 4), S_KX + c), tag)
    s('buffer_load_dwordx4 v%d, %s, s%d offen offset:1024 lds' % (V_X1, sr(SX, 4), S_KX + c), tag)


def dma_w(s, m0base, c, addr, tag):
    s('s_add_u32 m0, s%d, %d' % (m0base, addr))
    s('buffer_load_dwordx4 v%d, %s, s%d offen lds' % (V_W, sr(SW, 4), S_KW + c), tag)
    s('buffer_load_dwordx4 v%d, %s, s%d offen offset:1024 lds' % (V_WB, sr(SW, 4), S_KW + c), tag)


def groups(z):
    out, cur = [], []
    for i in z:
        cur.append(i)
        if i.kind == 'vmem':
            out.append(cur)
            cur = []
    if cur:
        out.append(cur)
    return out


def mix(main, grp, lo=0.0, hi=1.0):
    main = [i for i in main if i is not GAP]
    out, k, n = [], 0, len(main)
    for idx, i in enumerate(main):
        while k < len(grp) and idx >= n * (lo + (hi - lo) * k / len(grp)):
            out.extend(grp[k])
            k += 1
        out.append(i)
    for g in grp[k:]:
        out.extend(g)
    return out


def barrier(z, vm=None, name=None):
    if name:
        stamp(z, name + 'a')
    z.wait(vm=vm, lgkm='all')
    if name:
        stamp(z, name + 'b')
    z('s_barrier')


BLK = [0, 4, 1, 5, 2, 6, 3]


def unit_ks(u):
    return 4 * BLK[u >> 2] + (u & 3)


R3 = R1 + 28672
S_QR3 = 100
V_W3, V_WA3 = 125, 126
V_B2S = 0
BA = [4, 5, 6, 7, 13, 15]
RING = [11]


def unit_loc(u):
    u %= RING[0]
    if u < 5:
        return S_QR2, 1, u * 2048
    if u < RING[0] - 6:
        return S_QR3, 2, (u - 5) * 2048
    return S_QR0, 0, (u - RING[0] + 6) * 2048


def p2_setup(s):
    S_T0 = S_T1
    s('s_lshl_b32 s%d, s%d, 7' % (S_T0, S_ROLE))
    s('s_mul_i32 s%d, s%d, %d' % (S_B2R, S_RW, 448 * XS))
    s('s_add_u32 s%d, s%d, s%d' % (S_B2R, S_B2R, S_T0))
    s('s_lshr_b32 s%d, s%d, 1' % (S_WOR, S_RW))
    s('s_mul_i32 s%d, s%d, 6' % (S_WOR, S_WOR))
    s('s_add_u32 s%d, s%d, s%d' % (S_WOR, S_WOR, S_RW))
    s('s_mul_i32 s%d, s%d, %d' % (S_WOR, S_WOR, 28 * XS))
    s('s_add_u32 s%d, s%d, s%d' % (S_WOR, S_WOR, S_T0))
    s('s_mul_i32 s%d, s%d, %d' % (S_OUTO, S_I2, 64 * XS))
    s('s_add_u32 s%d, s%d, s%d' % (S_OUTO, S_OUTO, S_T0))
    s('s_mul_i32 s%d, s%d, 12288' % (S_QR0, S_RW))
    s('s_mul_i32 s%d, s%d, 10240' % (S_QR2, S_RW))
    s('s_add_u32 s%d, s%d, %d' % (S_QR2, S_QR2, R2))
    if RING[0] == 14:
        s('s_mul_i32 s%d, s%d, 6144' % (S_QR3, S_RW))
        s('s_add_u32 s%d, s%d, %d' % (S_QR3, S_QR3, R3))
    s('s_mul_i32 s%d, s%d, %d' % (S_A, S_I2, 2 * ACT_G))


def b2b_setup(s):
    s('v_add_u32 v%d, %d, v%d' % (V_B2B, 8 * XS - 1024, V_B2))


def touch_w(s, ffn, junk=127):
    if not OPT['touch'] & 1:
        return
    T = V_T
    s('s_and_b32 s%d, s%d, 3' % (S_T2, S_ROLE))
    s('s_lshl2_add_u32 s%d, s%d, s%d' % (S_T2, S_RB, S_T2))
    s('s_lshl3_add_u32 s%d, s%d, s%d' % (S_T2, S_T2, S_WV))
    s('s_mul_i32 s%d, s%d, %d' % (S_T2, S_T2, W1S if ffn else WQS))
    s('s_mul_i32 s%d, s%d, %d' % (S_T3, S_HALF, 1792 if ffn else 384))
    s('s_add_u32 s%d, s%d, s%d' % (S_T2, S_T2, S_T3))
    if ffn:
        s('v_min_u32 v%d, 13, v%d' % (T + 2, T))
    else:
        s('v_min_u32 v%d, 11, v%d' % (T + 2, T))
        s('v_lshrrev_b32 v%d, 2, v%d' % (T + 15, T + 2))
        s('v_mad_u32_u24 v%d, v%d, 3, v%d' % (T + 2, T + 15, T + 2))
    s('v_lshlrev_b32 v%d, 7, v%d' % (T + 2, T + 2))
    s('buffer_load_dword v%d, v%d, %s, s%d offen' % (junk, T + 2, sr(SW, 4), S_T2))


def touch_qv(s, junk=127):
    T = V_T
    s('s_lshl3_add_u32 s%d, s%d, s%d' % (S_T2, S_RB, S_WV))
    s('s_mul_i32 s%d, s%d, %d' % (S_T2, S_T2, 4 * WQS))
    s('s_mul_i32 s%d, s%d, 384' % (S_T3, S_HALF))
    s('s_add_u32 s%d, s%d, s%d' % (S_T2, S_T2, S_T3))
    s('v_min_u32 v%d, 31, v%d' % (T + 2, T))
    s('v_lshrrev_b32 v%d, 3, v%d' % (T + 15, T + 2))
    s('v_mad_u32_u24 v%d, v%d, 13, v%d' % (T + 15, T + 15, T + 2))
    s('v_bfe_u32 v%d, v%d, 2, 1' % (T + 2, T + 2))
    s('v_mad_u32_u24 v%d, v%d, 10, v%d' % (T + 2, T + 2, T + 15))
    s('v_lshlrev_b32 v%d, 7, v%d' % (T + 2, T + 2))
    s('buffer_load_dword v%d, v%d, %s, s%d offen' % (junk, T + 2, sr(SW, 4), S_T2))


def touch_ffn(s, t, junk=127):
    s('s_lshl3_add_u32 s%d, s%d, s%d' % (S_T2, S_RB, S_P))
    s('s_lshl2_add_u32 s%d, s%d, s%d' % (S_T2, S_T2, S_RW))
    s('v_min_u32 v%d, %d, v%d' % (t, 24 * 16, V_L16))
    s('s_mul_i32 s%d, s%d, %d' % (S_T3, S_T2, 25 * 128))
    s('v_lshlrev_b32 v%d, 3, v%d' % (t, t))
    s('buffer_load_dword v%d, v%d, %s, s%d offen' % (junk, t, sr(SW2, 4), S_T3))
    s('v_min_u32 v%d, %d, v%d' % (t, 6 * 128, t))
    s('s_mul_i32 s%d, s%d, %d' % (S_T3, S_T2, 7 * 128))
    s('buffer_load_dword v%d, v%d, %s, s%d offen' % (junk, t, sr(SWO, 4), S_T3))


def touch_fl2(s, h, t, junk=127):
    k = h - OPT['tf0']
    if not OPT['touch'] & 256 or not 0 <= k < 4 or not OPT['rounds'] >> k & 1:
        return
    s('s_add_u32 s%d, s2, %d' % (S_T3, k))
    s('s_and_b32 s%d, s%d, 3' % (S_T3, S_T3))
    s('s_and_b32 s%d, s%d, 3' % (S_T2, S_I2))
    s('s_lshl2_add_u32 s%d, s%d, s%d' % (S_T3, S_T3, S_T2))
    s('s_lshl2_add_u32 s%d, s%d, s%d' % (S_T3, S_T3, S_ROLE))
    s('s_lshl2_add_u32 s%d, s%d, s%d' % (S_T3, S_T3, S_RW))
    s('v_min_u32 v%d, %d, v%d' % (t, 48 * 16, V_L16))
    s('s_mul_i32 s%d, s%d, %d' % (S_T3, S_T3, 7 * XS))
    s('v_lshlrev_b32 v%d, 3, v%d' % (t, t))
    s('buffer_load_dword v%d, v%d, %s, s%d offen' % (junk, t, sr(SW2, 4), S_T3))


def touch_w2(s):
    if not OPT['touch'] & 2:
        return
    T = V_T
    s('s_lshl3_add_u32 s%d, s2, s%d' % (S_T2, S_WV))
    s('s_mul_i32 s%d, s%d, %d' % (S_T2, S_T2, XS))
    s('v_min_u32 v%d, 6, v%d' % (T + 2, T))
    s('v_lshlrev_b32 v%d, 7, v%d' % (T + 2, T + 2))
    s('s_sub_u32 s%d, %d, s%d' % (S_T3, 2047 * XS, S_T2))
    s('buffer_load_dword v%d, v%d, %s, s%d offen' % (V_POLL, T + 2, sr(SW2, 4), S_T2))
    s('buffer_load_dword v%d, v%d, %s, s%d offen' % (V_POLL, T + 2, sr(SWO, 4), S_T3))


def touch_kv(s):
    if not OPT['touch'] & 4:
        return
    T = V_T + 8
    s('s_mul_i32 s%d, s%d, 6' % (S_T2, S_RB))
    s('s_add_u32 s%d, s%d, s%d' % (S_T2, S_T2, S_P))
    s('s_lshl2_add_u32 s%d, s%d, s%d' % (S_T2, S_T2, S_RW))
    s('v_min_u32 v%d, %d, v%d' % (T, 32 * 16, V_L16))
    s('s_mul_i32 s%d, s%d, %d' % (S_T3, S_T2, 33 * 128))
    s('v_lshlrev_b32 v%d, 3, v%d' % (T, T))
    s('buffer_load_dword v%d, v%d, %s, s%d offen' % (T + 1, T, sr(SW2, 4), S_T3))
    s('v_min_u32 v%d, %d, v%d' % (T, 8 * 128, T))
    s('s_mul_i32 s%d, s%d, %d' % (S_T3, S_T2, 9 * 128))
    s('buffer_load_dword v%d, v%d, %s, s%d offen' % (T + 1, T, sr(SWO, 4), S_T3))


def touch_l2(s, r, t):
    if not OPT['touch'] & 32 or not OPT['rounds'] >> r & 1:
        return
    s('s_add_u32 s%d, s2, %d' % (S_T3, r))
    s('s_and_b32 s%d, s%d, 3' % (S_T3, S_T3))
    s('s_mul_i32 s%d, s%d, 49' % (S_T3, S_T3))
    s('s_lshr_b32 s%d, s2, 6' % S_T2)
    s('s_mul_i32 s%d, s%d, 3' % (S_T2, S_T2))
    s('s_add_u32 s%d, s%d, s%d' % (S_T2, S_T2, S_ROLE))
    s('s_lshl2_add_u32 s%d, s%d, s%d' % (S_T2, S_T2, S_RW))
    s('s_add_u32 s%d, s%d, s%d' % (S_T3, S_T3, S_T2))
    s('s_sub_u32 s%d, s%d, 16' % (S_T3, S_T3))
    s('v_lshlrev_b32 v%d, 3, v%d' % (t, V_L16))
    s('s_lshl_b32 s%d, s%d, 13' % (S_T3, S_T3))
    s('buffer_load_dword v%d, v%d, %s, s%d offen' % (t, t, sr(SW2, 4), S_T3))


def touch_wo(s, t):
    if not OPT['touch'] & (32 | 256):
        return
    s('s_and_b32 s%d, s%d, 3' % (S_T2, S_I2))
    s('s_lshl3_add_u32 s%d, s%d, s%d' % (S_T2, S_T2, S_WV))
    s('v_min_u32 v%d, %d, v%d' % (t, 48 * 16, V_L16))
    s('s_mul_i32 s%d, s%d, %d' % (S_T2, S_T2, 14 * XS))
    s('v_lshlrev_b32 v%d, 3, v%d' % (t, t))
    s('s_add_u32 s%d, s%d, %d' % (S_T3, S_T2, 7 * XS))
    s('buffer_load_dword v%d, v%d, %s, s%d offen' % (t + 1, t, sr(SWO, 4), S_T2))
    s('buffer_load_dword v%d, v%d, %s, s%d offen' % (t + 1, t, sr(SWO, 4), S_T3))


def ks_dyn(s, dst, u):
    if u < 24:
        s('s_xor_b32 s%d, s%d, %d' % (dst, S_RO, unit_ks(u)))
    else:
        s('s_and_b32 s%d, s%d, 3' % (dst, S_RO))
        s('s_xor_b32 s%d, s%d, %d' % (dst, dst, unit_ks(u)))


def dma_b2(s, u):
    base, _, off = unit_loc(u)
    if u < 28:
        ks_dyn(s, S_T3, u)
        if OPT['x_hit'] & 2:
            s('s_and_b32 s%d, s%d, 7' % (S_T3, S_T3))
        s('s_add_u32 m0, s%d, %d' % (base, off))
        s('s_mul_i32 s%d, s%d, %d' % (S_T3, S_T3, 16 * XS))
        s('s_add_u32 s%d, s%d, s%d' % (S_T3, S_T3, S_B2R))
        s('buffer_load_dwordx4 v%d, %s, s%d offen lds' % (V_B2, sr(SW2, 4), S_T3), ('b', u))
        s('buffer_load_dwordx4 v%d, %s, s%d offen offset:1024 lds' % (V_B2B, sr(SW2, 4), S_T3), ('b', u))
        return
    s('s_add_u32 m0, s%d, %d' % (base, off))
    for h in range(2):
        p, r = divmod(2 * (u - 28) + h, 7)
        row = 112 * p + (8 * r if r <= 3 else 56 + 8 * (r - 4))
        s('s_add_u32 s%d, s%d, %d' % (S_T3, S_WOR, row * XS - h * 1024))
        s('buffer_load_dwordx4 v%d, %s, s%d offen offset:%d lds' % (V_B2S if r == 3 else V_B2, sr(SWO, 4), S_T3, h * 1024), ('b', u))


V_OUT, V_RD, V_U = 8, 9, 248


def res_load(R):
    s = Seg()
    s('v_lshrrev_b32 v%d, 3, v0' % (R + 8))
    s('v_and_b32 v%d, 0x70, v%d' % (R + 9, V_L16))
    s('v_mul_u32_u24 v%d, %d, v%d' % (R + 8, XS, R + 8))
    s('s_lshl_b32 s%d, s%d, 7' % (S_T2, S_ROLE))
    s('v_add_u32 v%d, v%d, v%d' % (R + 8, R + 8, R + 9))
    s('buffer_load_dwordx4 %s, v%d, %s, s%d offen' % (vr(R, 4), R + 8, sr(SX, 4), S_OUTO), 'res')
    s('buffer_load_dwordx4 %s, v%d, %s, s%d offen' % (vr(R + 4, 4), R + 9, sr(SB2, 4), S_T2), 'res')
    return s


def res_unpack(R):
    z, U = Seg(), V_U
    z('v_mov_b32 v%d, v%d' % (V_OUT, R + 8))
    z.wait(vm='res')
    for k in range(4):
        z('v_lshlrev_b32 v%d, 16, v%d' % (U + 2 * k, R + k))
        z('v_and_b32 v%d, 0xffff0000, v%d' % (U + 2 * k + 1, R + k))
        z('v_lshlrev_b32 v%d, 16, v%d' % (R + k, R + 4 + k))
        z('v_and_b32 v%d, 0xffff0000, v%d' % (R + 4 + k, R + 4 + k))
        z('v_add_f32 v%d, v%d, v%d' % (U + 2 * k, U + 2 * k, R + k))
        z('v_add_f32 v%d, v%d, v%d' % (U + 2 * k + 1, U + 2 * k + 1, R + 4 + k))
    return z


RES_F, RES_KA, RES_KB = 108, V_X + 84, V_ACC


def abuf(u, rg):
    return V_AB + 8 * (u % DEP) + 4 * rg if u < 28 else V_AB + 64 + 8 * (u - 28) + 4 * rg


def a_setup(s):
    s('v_add_u32 v%d, %d, v%d' % (V_L16B, ACT_G, V_L16))
    s('s_mul_i32 s%d, s%d, 7168' % (S_T0, S_RW))
    s('s_add_u32 s%d, s%d, s%d' % (S_P, S_A, S_T0))
    s('s_add_u32 s%d, s%d, %d' % (S_P, S_P, 112 * 1024))
    s('s_add_u32 s%d, s%d, 4096' % (S_RO3, S_P))
    s('s_mul_i32 s%d, s%d, %d' % (S_T0, S_RW, 28 * 1024))
    s('s_add_u32 s%d, s%d, s%d' % (S_A, S_A, S_T0))


def aload(z, u):
    ks_dyn(z, S_T0, u)
    z('s_lshl_b32 s%d, s%d, 10' % (S_T0, S_T0))
    z('s_add_u32 s%d, s%d, s%d' % (S_T0, S_T0, S_A))
    for rg in range(2):
        z('buffer_load_dwordx4 %s, v%d, %s, s%d offen sc1' % (vr(abuf(u, rg), 4), V_L16B if rg else V_L16, sr(SWS, 4), S_T0), ('a', u))


def sync_arrive(s, k):
    s('ds_write_b32 v%d, v%d offset:%d' % (V_PA, V_ONE, k * 32))


def sync_wait(s, k, nw, T, first=0):
    j = nspin[0]
    nspin[0] += 1
    s('v_mov_b32 v%d, %d' % (T + 8, M_SY))
    s('L_sy%d:' % j)
    for h in range(nw // 4):
        s('ds_read_b128 %s, v%d offset:%d' % (vr(T + 4 * h, 4), T + 8, k * 32 + first * 4 + h * 16))
    s('s_add_u32 s%d, s%d, 1' % (S_SPIN, S_SPIN))
    s('s_cmp_gt_u32 s%d, 0x%x' % (S_SPIN, SPIN_LIMIT))
    s('s_cbranch_scc1 L_sz%d' % j)
    s.wait(lgkm='all')
    for h in range(1, nw - 1, 2):
        s('v_and_b32 v%d, v%d, v%d' % (T + h, T + h, T + h + 1))
    for h in range(1, nw, 2):
        s('v_and_b32 v%d, v%d, v%d' % (T, T, T + h))
    s('v_readfirstlane_b32 s%d, v%d' % (S_T2, T))
    s('s_cmp_eq_u32 s%d, 0' % S_T2)
    s('s_cbranch_scc1 L_sy%d' % j)
    s('L_sz%d:' % j)
    s.wait(lgkm='all')


def flag(s, off):
    if OPT['fatom']:
        s('buffer_atomic_add v%d, v%d, %s, s%d offen offset:%d sc1' % (V_ONE, V_FLO, sr(SWS, 4), S_FL, off))
    else:
        s('buffer_store_dword v%d, v%d, %s, s%d offen offset:%d sc1' % (V_ONE, V_FLO, sr(SWS, 4), S_FL, off))


def f0_load(s):
    s('buffer_load_dword v%d, v%d, %s, 0 offen sc1' % (V_POLL, V_FLO, sr(SDBG, 4)), 'f0')


def f0_check(s):
    stamp(s, 'f0a')
    s.wait(vm='f0')
    stamp(s, 'f0b')
    spin_check(s, V_POLL, 32, V_FLO, SDBG, '0', 1)


def poll_early(s):
    poll_base(s)
    poll_async(s, 0)


def xreg(c, j):
    return V_X + 16 * c + 4 * j


def dots(s, c):
    for j in range(4):
        s.wait(lgkm=[('x', c, j)])
        for r in range(4):
            x = xreg(c, j) + r
            s('v_dot2c_f32_bf16 v%d, s%d, v%d' % (V_ST + (r & 1), S_ONES, x))
            s('v_dot2c_f32_bf16 v%d, v%d, v%d' % (V_ST + 2 + (r & 1), x, x))


def stats_pack(s):
    T = V_T
    s('v_add_f32 v%d, v%d, v%d' % (T, V_ST, V_ST + 1))
    s('v_add_f32 v%d, v%d, v%d' % (T + 2, V_ST, V_ST + 1))
    s('v_add_f32 v%d, v%d, v%d' % (T + 1, V_ST + 2, V_ST + 3))
    s('v_add_f32 v%d, v%d, v%d' % (T + 3, V_ST + 2, V_ST + 3))
    s('v_permlane32_swap_b32 v%d, v%d' % (T, T + 2))
    s('v_permlane32_swap_b32 v%d, v%d' % (T + 1, T + 3))
    s('v_add_f32 v%d, v%d, v%d' % (T, T, T + 2))
    s('v_add_f32 v%d, v%d, v%d' % (T + 1, T + 1, T + 3))
    s('v_mul_f32 v%d, %s, v%d' % (T, f32(1.0 / 448), T))
    s('v_mul_f32 v%d, %s, v%d' % (T + 1, f32(1.0 / 448), T + 1))
    s('v_fma_f32 v%d, -v%d, v%d, v%d' % (T + 1, T, T, T + 1))
    s('v_max_f32 v%d, 0, v%d' % (T + 1, T + 1))
    s('v_cvt_pk_bf16_f32 v%d, v%d, v%d' % (T + 1, T + 1, T + 1))
    s('v_lshlrev_b32 v%d, 16, v%d' % (T + 1, T + 1))
    s('v_add_f32 v%d, %s, v%d' % (T + 1, f32(1e-5), T + 1))
    s('v_cvt_pk_bf16_f32 v%d, v%d, v%d' % (T + 1, T + 1, T + 1))
    s('v_lshlrev_b32 v%d, 16, v%d' % (T + 1, T + 1))
    s('v_sqrt_f32 v%d, v%d' % (T + 1, T + 1))
    s('v_cvt_pk_bf16_f32 v%d, -v%d, v%d' % (T, T, T + 1))
    s('ds_write_b32 v%d, v%d' % (V_EXR, T))


def stats_final(kind, read=True):
    s, T = Seg(), V_T
    if read:
        s('ds_read_b32 v%d, v%d' % (T, V_EXR), 'st')
        s.wait(lgkm='st')
    s('v_and_b32 v%d, 0xffff0000, v%d' % (V_ST + 2, T))
    s('v_rcp_f32 v%d, v%d' % (V_ST + 3, V_ST + 2))
    s('v_cndmask_b32 v%d, v%d, 0, %s' % (T, T, sr(S_HI, 2)))
    s('v_and_b32 v%d, 0xffff, v%d' % (T + 1, T))
    s('v_lshl_or_b32 v%d, v%d, 16, v%d' % (V_EXR, T, T + 1))
    s('v_lshrrev_b32 v%d, 16, v%d' % (V_EXR + 1, T))
    if kind == 'gelu':
        s('v_mul_f32 v%d, %s, v%d' % (V_ST, f32(GC1), V_ST + 3))
        s('v_mul_f32 v%d, v%d, v%d' % (T, V_ST + 3, V_ST + 3))
        s('v_mul_f32 v%d, %s, v%d' % (V_ST + 1, f32(GC3), V_ST + 3))
        s('v_mul_f32 v%d, v%d, v%d' % (V_ST + 1, T, V_ST + 1))
    else:
        s('v_mul_f32 v%d, s%d, v%d' % (V_ST, S_L2E, V_ST + 3))
    return s


def ext_parts(acc, off, exw, swap, bias=None, T=V_T + 8):
    r, b, m = Seg(), Seg(), Seg()
    tag = ('cs', id(r))
    r('ds_read_b128 %s, v%d offset:%d' % (vr(T, 4), V_CSR, off), tag)
    b.wait(lgkm=[tag])
    b('v_add_f32 v%d, v%d, v%d' % (T, T, T + 1))
    b('v_add_f32 v%d, v%d, v%d' % (T + 2, T + 2, T + 3))
    b('v_add_f32 v%d, v%d, v%d' % (T, T, T + 2))
    b('v_cvt_pk_bf16_f32 v%d, v%d, v%d' % (T + 1, T, T))
    b('v_lshlrev_b32 v%d, 16, v%d' % (T + 1, T + 1))
    b('v_sub_f32 v%d, v%d, v%d' % (T + 1, T, T + 1))
    b('v_cvt_pk_bf16_f32 v%d, v%d, v%d' % (exw, T, T + 1))
    if bias is not None:
        r('v_mov_b32 v%d, v%d' % (exw + 1, bias))
    x, y = (V_EXR, exw) if swap else (exw, V_EXR)
    m('v_mfma_f32_32x32x8_bf16 %s, %s, %s, %s' % (vr(acc, 16), vr(x, 2), vr(y, 2), vr(acc, 16)))
    KEEP.append(r)
    return r, b, m


KEEP = []


def head(parts, stats=None):
    st = [i for i in stats if i is not GAP] if stats is not None else []
    out = st[:1]
    for p in parts:
        out += p[0]
    out += st[1:]
    for p in parts:
        out += p[1]
    for p in parts:
        out += p[2]
    return out


def epi_rowlane(kind, acc, tag, handoff=False, keep=None):
    s, T = Seg(), V_T
    for grp in range(4):
        a = [acc + 4 * grp + e for e in range(4)]
        t = [T + e for e in range(4)]
        if kind == 'gelu':
            for e in range(4):
                s('v_mul_f32 v%d, v%d, v%d' % (t[e], a[e], a[e]))
            for e in range(4):
                s('v_fma_f32 v%d, v%d, v%d, v%d' % (t[e], t[e], V_ST + 1, V_ST))
            for e in range(4):
                s('v_mul_f32 v%d, v%d, v%d' % (t[e], a[e], t[e]))
            for e in range(4):
                s('v_exp_f32 v%d, v%d' % (t[e], t[e]))
            for e in range(4):
                s('v_fma_f32 v%d, v%d, v%d, v%d' % (t[e], t[e], V_ST + 2, V_ST + 2))
            for e in range(4):
                s('v_rcp_f32 v%d, v%d' % (t[e], t[e]))
            for e in range(4):
                s('v_mul_f32 v%d, v%d, v%d' % (a[e], a[e], t[e]))
        else:
            for e in range(4):
                s('v_mul_f32 v%d, v%d, v%d' % (t[e], a[e], V_ST))
            for e in range(4):
                s('v_exp_f32_e64 v%d, v%d clamp' % (t[e], t[e]))
            for e in range(4):
                s('v_fma_f32 v%d, v%d, v%d, s%d' % (a[e], a[e], V_ST + 3, S_EPS))
            for e in range(4):
                s('v_max_f32 v%d, s%d, v%d' % (a[e], S_EPS, a[e]))
            for e in range(4):
                s('v_add_f32 v%d, v%d, v%d' % (a[e], a[e], t[e]))
        p = acc + 8 * (grp >> 1) + 2 * (grp & 1) if keep is None else keep + 2 * grp
        s('v_cvt_pk_bf16_f32 v%d, v%d, v%d' % (p, a[0], a[1]))
        s('v_cvt_pk_bf16_f32 v%d, v%d, v%d' % (p + 1, a[2], a[3]))
        if kind == 'phi' and grp == 3:
            s('v_cndmask_b32 v%d, v%d, 0, %s' % (p, p, sr(S_HI, 2)))
            s('v_cndmask_b32 v%d, v%d, 0, %s' % (p + 1, p + 1, sr(S_HI, 2)))
        if grp & 1 and keep is None:
            f = grp >> 1
            if handoff:
                s('ds_write_b128 v%d, %s offset:%d' % (V_RA, vr(acc + 8 * f, 4), f * 1024))
                continue
            s('buffer_store_dwordx4 %s, v%d, %s, s%d offen offset:%d sc1' % (vr(acc + 8 * f, 4), V_L16, sr(SWS, 4), S_H, f * 1024), tag)
    return s


def zpad(s):
    T = V_T
    s('v_cmp_eq_u32 vcc, 7, v%d' % (T + 14))
    s('v_mov_b32 v%d, 0x%x' % (T + 5, OPT['zpad'] << 13))
    s('v_cndmask_b32 v%d, v%d, v%d, vcc' % (T + 14, T + 14, T + 5))


def sparse_sel(s, sp, idx):
    T = V_T
    s('v_and_b32 v%d, 6, v%d' % (T + 5, T))
    s('v_mov_b32 v%d, 0x3f803f80' % (T + 6))
    for h in range(2):
        s('v_cmp_eq_u32 vcc, %d, v%d' % (4 * h, T + 5))
        s('v_cndmask_b32 v%d, 0, v%d, vcc' % (sp + 2 * h, T + 6))
        s('v_cndmask_b32 v%d, 0, v%d, vcc' % (sp + 2 * h + 1, T + 6))
    s('v_and_b32 v%d, 1, v%d' % (T + 5, T))
    s('v_mul_u32_u24 v%d, 0xaaaa, v%d' % (T + 5, T + 5))
    s('v_add_u32 v%d, 0x4444, v%d' % (idx, T + 5))


def lc_role(ffn):
    kind = 'gelu' if ffn else 'phi'
    RING[0] = 14
    nm = 'f' if ffn else 'q'
    s, T = Seg(nm), V_T
    if not ffn:
        s('L_q:')
    if OPT['twat'] < -1:
        touch_w(s, ffn)
    if OPT['zpad'] and not ffn:
        zpad(s)
    s('s_mul_i32 s%d, s%d, %d' % (S_T1, S_G, 64 if ffn else 56))
    s('v_lshrrev_b32 v%d, 1, v%d' % (T + 6, T + 10))
    s('v_lshl_add_u32 v%d, v%d, 3, s%d' % (T + 5, T + 14, S_T1))
    s('v_lshlrev_b32 v%d, 6, v%d' % (T + 6, T + 6))
    s('v_xor_b32 v%d, v%d, v%d' % (T + 5, T + 5, T + 6))
    s('v_lshl_add_u32 v%d, v%d, 7, v%d' % (V_WA, T + 12, T + 5))
    for j in range(1, 4):
        s('v_xor_b32 v%d, %d, v%d' % (V_WA + j, j << 11, V_WA))
    srd(s, SWS, WS_BYTES)
    srd(s, SDBG, 256)
    s('s_waitcnt lgkmcnt(0)')
    if not ffn:
        s('s_lshl1_add_u32 s%d, s%d, s%d' % (S_T2, S_RB, S_HALF))
        s('s_mul_i32 s%d, s%d, 6' % (S_T1, S_T2))
        s('s_add_u32 s%d, s%d, s%d' % (S_T1, S_T1, S_WV))
        s('s_lshl_b32 s%d, s%d, 10' % (S_T1, S_T1))
        s('s_add_u32 s%d, s%d, 0x%x' % (S_T1, S_T1, KV_OFF))
        s('s_lshl_b32 s%d, s%d, 10' % (S_LAST, S_T2))
        s('s_add_u32 s%d, s%d, 0x%x' % (S_LAST, S_LAST, ST_OFF))
        s('s_cmp_lt_u32 s%d, 6' % S_WV)
        s('s_cselect_b32 s%d, s%d, 0x%x' % (S_T1, S_T1, OOB))
        s('s_cmp_eq_u32 s%d, 6' % S_WV)
        s('s_cselect_b32 s%d, s%d, s%d' % (S_T1, S_LAST, S_T1))
        s('buffer_store_dwordx4 %s, v%d, %s, s%d offen sc1' % (vr(V_ST, 4), V_L16, sr(SWS, 4), S_T1), 'zero')
    s('s_cmp_eq_u32 s%d, 1' % S_G)
    s('s_cbranch_scc1 L_%sb' % nm)
    UA, UB = [([(), (5,), (7,)], [(0, 1), (2,), (3, 4, 6)]), ([(), (5, 6), ()], [(0, 1), (2,), (3, 4, 7)]),
              ([(0,), (5, 6), (7,)], [(1,), (2,), (3, 4)])][OPT['ub']]
    LCS = [{3: ([], [0]), 4: ([], [1]), 5: ([], [2]), 6: ([3], []), 7: ([], [4, 5, 6])},
           {3: ([1], [0]), 4: ([3], [2]), 7: ([], [4, 5, 6])},
           {3: ([1], [0]), 4: ([], [2]), 7: ([3], [4, 5, 6])},
           {3: ([], [0]), 4: ([], [1]), 7: ([2, 3], [4, 5, 6])},
           {3: ([2], [0, 1]), 4: ([4], [3]), 7: ([], [5, 6])},
           {3: ([2], [0, 1]), 4: ([5], [3, 4]), 7: ([], [6])}][OPT['lcs']]
    step = 128 if ffn else 112
    region = [R0, R1, R0, R1]
    acc = V_ACC

    def stream(g):
        z = Seg(nm + 'ab'[g])
        if g:
            z('L_%sb:' % nm)
        xa = Rebase([V_XA + j for j in range(4)], 0, 0)
        wa = Rebase([V_WA + j for j in range(4)], 0, 512)

        def triple(t, c):
            dma_x(t, c, XSLOT[c], ('t', c))
            if g:
                dma_w(t, S_M0W, c, R0 + c * 8192, ('t', c))

        def lc(t, q, c):
            if ffn and q == 3:
                t('s_add_u32 m0, s%d, %d' % (S_M0W, R1 + c * 4096))
                t('buffer_load_dwordx4 v%d, %s, s%d offen lds' % (V_W3, sr(SW, 4), S_KW + c), ('l', q, c))
                return
            dma_w(t, S_M0W, c, region[q] + c * 8192, ('l', q, c))

        V_SP, V_IDX = 120, 124

        def wf(c, j):
            if not OPT['smf'] or j > 1:
                return V_WF + 4 * j
            return (96 if ffn else 112) if j else V_WF + 4 * (1 - (c & 1))

        def cs_write(t):
            if OPT['smf']:
                t('v_add_f32 v%d, v%d, v%d' % (V_CS, V_CS, V_CS + 1))
            t('ds_write_b32 v%d, v%d' % (V_CSW, V_CS))

        def wread(t, q, c, j):
            half = ffn and q == 3
            o = c * 4096 if half else wa.off(t, region[q] + c * 8192)
            for u in range(2):
                t('ds_read_b64_tr_b16 %s, v%d offset:%d' % (vr(wf(c, j) + 2 * u, 2), V_WA + j, o + u * (256 if half else 512)), ('w', q, c, j))

        def xread(t, c, j):
            o = xa.off(t, XSLOT[c])
            t('ds_read_b128 %s, v%d offset:%d' % (vr(xreg(c, j), 4), V_XA + j, o), ('x', c, j))

        def kstep(q, c, j):
            t = Seg()
            t.wait(lgkm=[('w', q, c, j | OPT['wj'])])
            first = c == 0 and j == 0
            t('v_mfma_f32_32x32x16_bf16 %s, %s, %s, %s' % (vr(acc, 16), vr(wf(c, j), 4), vr(xreg(c, j), 4), '0' if first else vr(acc, 16)))
            if j == 0 and (first or not OPT['smf']):
                t('v_mfma_f32_16x16x32_bf16 %s, %s, %s, %s' % (vr(V_CS, 4), vr(V_SEL, 4), vr(wf(c, j), 4), '0' if first else vr(V_CS, 4)))
            elif j == 0 and c % 2 == 0:
                t('v_smfmac_f32_16x16x64_bf16 %s, %s, %s, v%d' % (vr(V_CS, 4), vr(V_SP, 4), vr(V_WF, 8), V_IDX))
            if c < 6:
                wread(t, q, c + 1, j)
            return t

        def preread(t, q):
            for j in range(4):
                wread(t, q, 0, j)

        carry, ecarry = [], []

        def gemm(t, q, fill=(), extra=None):
            t('s_setprio 1')
            t.extend(ecarry)
            ecarry[:] = []
            slots = [kstep(q, c, j) for c in range(7) for j in range(4)]
            for k, gi in enumerate(groups(extra) if extra is not None else []):
                slots[min(1 + OPT['gsp'] * k, 24)].extend(gi)
            n = 28 - OPT['carry']
            cs_write(slots[min(26, n - 1)])
            for z in slots[:n]:
                t.extend(z)
            carry[:] = [i for z in slots[n:] for i in z]

        def next_col(t, last=False):
            if last and ffn:
                t('s_lshr_b32 s%d, s%d, 1' % (S_M0W, S_M0W))
                return
            for r in (V_W, V_WB):
                t('v_add_u32 v%d, %d, v%d' % (r, step, r))

        def epi(t, q, extra=None, pre=None, handoff=False, hi=0.85, keep=False, nxt=None, lo=0.03, early=2):
            grp = groups(extra) if extra is not None else []
            t('s_setprio 2')
            parts = ext_parts(acc, 0, V_EXW, False, V_B1 + q if ffn else None)
            parts[0].extend(carry)
            carry[:] = []
            t.extend(head([parts], pre))
            if not keep:
                t('s_setprio %d' % OPT['eprio'])
            stamp(t, 'x%d' % (2 * q + g + 1))
            for gi in grp[:early]:
                t.extend(gi)
            body = mix(epi_rowlane(kind, acc, ('h', q), handoff, None if ffn else V_PQ + 8 * q), grp[early:], lo, hi)
            if ffn:
                r = Seg()
                touch_fl2(r, 2 * q + g + 1, V_XA + 1)
                body = mix(body, [list(r)], OPT['tfp'] / 100, 1.0)
            if nxt is not None:
                r = Seg()
                if ffn and not g and nxt == 3:
                    for k in range(4):
                        r('v_xor_b32 v%d, %d, v%d' % (V_WA + k, k << 10, V_WA3))
                preread(r, nxt)
                body = mix(body, [[i] for i in r], 0.45, 0.8) if OPT['pmix'] else body + list(r)
            body = list(body)
            if ffn:
                body.append(Ins('s_add_u32 s%d, s%d, 4096' % (S_H, S_H)))
            n = len(body) - (OPT['ecarry'] if ffn and nxt is not None else 0)
            t.extend(body[:n])
            ecarry[:] = body[n:]

        def duty(q, chunks, units=(), step_col=True):
            d = Seg()
            if step_col:
                next_col(d, q == 3)
            for k in chunks:
                lc(d, q, k)
            if ffn:
                for u in units:
                    dma_b2(d, u)
            return d

        late = deferred(False)
        if OPT['smf']:
            assert OPT['sel1']
            sparse_sel(late, V_SP, V_IDX)
        if ffn:
            p2_setup(late)
        late('s_lshl2_add_u32 s%d, s%d, s%d' % (S_H, S_RB, S_RW))
        late('s_mul_i32 s%d, s%d, %d' % (S_H, S_H, ACT_G))
        late('s_add_u32 s%d, s%d, %d' % (S_H, S_H, g * 2048 if ffn else g * 7168 + 112 * 1024))
        late('s_mul_i32 s%d, s%d, %d' % (S_T1, S_T0 if ffn else S_HALF, 32 if ffn else 14336))
        late('s_add_u32 s%d, s%d, s%d' % (S_H, S_H, S_T1))
        if ffn:
            late('s_add_u32 s%d, s%d, %d' % (S_T1, S_M0W, HND))
            late('v_add_u32 v%d, s%d, v%d' % (V_RA, S_T1, V_L16))
            late('s_mul_i32 s%d, s%d, -7' % (S_LAST, S_PEND))
            late('s_add_u32 s%d, s%d, s%d' % (S_LAST, S_LAST, S_T0))
            late('s_add_u32 s%d, s%d, 384' % (S_LAST, S_LAST))
            late('v_lshrrev_b32 v%d, 2, v%d' % (T + 5, T))
            late('v_lshl_add_u32 v%d, s%d, 4, v%d' % (T + 5, S_RW, T + 5))
            late('v_mul_u32_u24 v%d, %d, v%d' % (T + 5, W1S, T + 5))
            late('v_lshl_add_u32 v%d, v%d, 4, s%d' % (V_W3, T + 11, S_LAST))
            late('v_add_u32 v%d, v%d, v%d' % (V_W3, V_W3, T + 5))
            if not g:
                late('v_lshl_add_u32 v%d, v%d, 3, v%d' % (T + 5, T + 12, T + 14))
                late('v_lshlrev_b32 v%d, 3, v%d' % (T + 5, T + 5))
                late('v_add_u32 v%d, %d, v%d' % (V_WA3, R1, T + 5))
            srd(late, SB1, 1792 * 2)
            late('v_lshlrev_b32 v%d, 1, v%d' % (T + 5, T + 8))
            for q in range(3):
                late('buffer_load_ushort v%d, v%d, %s, s%d offen offset:%d' % (V_B1 + q, T + 5, sr(SB1, 4), S_T0, q * 128 + g * 64), 'b1')
            if not g:
                late('buffer_load_ushort v%d, v%d, %s, s%d offen' % (V_B1 + 3, T + 5, sr(SB1, 4), S_LAST), 'b1')
        if g:
            late('s_mov_b32 s%d, 0x%x' % (S_FL, OOB))
        else:
            late('s_lshr_b32 s%d, s%d, 1' % (S_T1, S_P) if ffn else 's_lshl_b32 s%d, s%d, 1' % (S_T1, S_HALF))
            late('s_lshl2_add_u32 s%d, s%d, s%d' % (S_T1, S_RB, S_T1))
            late('s_mul_i32 s%d, s%d, %d' % (S_FL, S_T1, FL_G))
            late('s_lshl1_add_u32 s%d, s%d, s%d' % (S_FL, S_PEND, S_FL))
            late('s_lshl_b32 s%d, s%d, 28' % (S_T1, S_RW))
            late('s_add_u32 s%d, s%d, s%d' % (S_FL, S_FL, S_T1))
            late('s_add_u32 s%d, s%d, 0x%x' % (S_FL, S_FL, FL_OFF))
        NL = OPT['nlate']

        def some(k):
            return late[len(late) * k // NL:len(late) * (k + 1) // NL] if k < NL else []

        triple(z, 1)
        estamp(z, 't1')
        z.extend(some(0))
        if OPT['tat'] < -1:
            touch_w2(z)
        z('s_barrier')
        if g:
            z('s_setprio 1')
        triple(z, 2)
        for c in range(-1, 7):
            if c < 6:
                barrier(z, ['t0', 'zero'] if c < 0 else [('t', c + 1)], 's%d' % c if c >= 0 else 'pre')
            if c < 0:
                stamp(z, 1)
                if not ffn and not g:
                    z('s_lshl_b32 s%d, s%d, 28' % (S_T2, S_WV))
                    z('buffer_atomic_add v%d, v%d, %s, s%d offen sc1' % (V_ONE, V_FLO, sr(SDBG, 4), S_T2))
            d = Seg()
            if c < 3:
                triple(d, c + 4)
            if c == OPT['tat']:
                touch_w2(d)
            if c == 3:
                next_col(d)
            for k in LCS.get(c, ([], []))[g]:
                lc(d, 1, k)
            if c == 4 and ffn:
                b2b_setup(d)
                if not g and OPT['touch'] & 128 and OPT['tfat'] == 0:
                    touch_ffn(d, V_T + 2)
            if c == OPT['twat']:
                if ffn or not OPT['touch'] & 64:
                    touch_w(d, ffn)
                else:
                    touch_qv(d)
            if g:
                if c == 6:
                    break
                for j in range(4):
                    xread(z, c + 1, j)
                if c < 5:
                    z.extend(mix(some(c + 2), groups(d)))
                if c == 3:
                    preread(z, 0)
                dots(z, c + 1)
                if c == 5:
                    if OPT['s6']:
                        z('s_barrier')
                    stats_pack(z)
                    if not ffn:
                        z('buffer_store_dword v%d, v%d, %s, s%d offen sc1' % (T, V_EXR + 1, sr(SWS, 4), S_LAST))
                    z.extend(d)
                    z.extend(stats_final(kind, False))
            else:
                if c == 6 and OPT['s6']:
                    z('s_barrier')
                for j in range(4):
                    if c == 6:
                        z.wait(lgkm=[('x', c, j)])
                    if c >= 0:
                        z.extend(kstep(0, c, j))
                    else:
                        wread(z, 0, 0, j)
                    if c < 6:
                        xread(z, c + 1, j)
                z.extend(mix(some(c + 2), groups(d)))
                if c == 6:
                    w = Seg()
                    cs_write(w)
                    k = len(z) - (1 if len(d) else 0)
                    z[k:k] = w
        if g:
            barrier(z, ['b1'] if OPT['npre'] else [('l', 1, 0), 'b1'], 'e0')
        else:
            barrier(z, 'b1', 'e0')
        stamp(z, 2)
        if not g:
            d = Seg()
            d.extend(duty(1, LCS[7][0], (), False))
            f0_load(d)
            if ffn and OPT['touch'] & 128 and OPT['tfat'] == 1:
                touch_ffn(d, V_XA)
            NE = OPT['ne']
            epi(z, 0, d, pre=stats_final(kind), nxt=None if OPT['npre'] else 1, **(dict(early=0, lo=0.6) if OPT['tfat'] == 1 else dict(hi=0.4)))
            barrier(z, [('l', 1, k) for k in range(7)], 'e1')
            stamp(z, 'h1')
            if OPT['npre']:
                z('s_setprio 3')
                preread(z, 1)
            gemm(z, 1, extra=duty(2, range(NE, 5)))
            f0_check(z)
            barrier(z, [('h', 0)], 'e2')
            stamp(z, 'h2')
            d = duty(0, (), UA[0], False)
            if ffn:
                d.extend(res_load(RES_F))
            epi(z, 1, d, nxt=2, lo=0.5, early=2 * len(UA[0]))
            barrier(z, [('l', 2, 4)], 'e3')
            stamp(z, 3)
            if ffn:
                flag(z, 0)
            gemm(z, 2, extra=duty(3, range(NE, 5), UA[1]))
            barrier(z, [('h', 1)], 'e4')
            stamp(z, 'h4')
            epi(z, 2, duty(0, (), UA[2], False), nxt=3)
            barrier(z, [('l', 3, 4)], 'e5')
            stamp(z, 4)
            if ffn:
                flag(z, 256)
            gemm(z, 3, extra=duty(0, (), (11, 12, 13), False))
            barrier(z, [('b', u) for u in UA[1] + UA[2]], 'e6')
            stamp(z, 5)
            if ffn:
                z('ds_read_b128 %s, v%d' % (vr(V_PQ, 4), V_RA), 'hnd')
                z('ds_read_b128 %s, v%d offset:1024' % (vr(V_PQ + 4, 4), V_RA), 'hnd')
                z('s_sub_u32 s%d, s%d, 2048' % (S_T0, S_H))
                z('s_cmp_eq_u32 s%d, 0' % S_PEND)
                z('s_cselect_b32 s%d, 0, %d' % (S_T1, 3 * 4096 + 2048))
                z('s_sub_u32 s%d, s%d, s%d' % (S_H, S_H, S_T1))
                d = Seg()
                d.wait(lgkm='hnd')
                for f in range(2):
                    d('buffer_store_dwordx4 %s, v%d, %s, s%d offen offset:%d sc1' % (vr(V_PQ + 4 * f, 4), V_L16, sr(SWS, 4), S_T0, f * 1024), 'h5')
                epi(z, 3, d, keep=True)
                z('s_lshl1_add_u32 s%d, s%d, s%d' % (S_T0, S_RB, S_HALF))
                z('s_lshl_b32 s%d, s%d, 9' % (S_T0, S_T0))
                z('s_add_u32 s%d, s%d, s%d' % (S_T0, S_T0, S_ROLE))
                z('s_lshl_b32 s%d, s%d, 28' % (S_T1, S_RW))
                z('s_lshl2_add_u32 s%d, s%d, s%d' % (S_T0, S_T0, S_T1))
                z('s_add_u32 s%d, s%d, 0x%x' % (S_T0, S_T0, FO_OFF + 8))
                z('v_cmp_gt_u32 vcc, 0x100, v%d' % V_L16)
                z('v_lshlrev_b32 v%d, 3, v%d' % (V_PL, V_L16))
                z('v_cndmask_b32 v%d, v%d, v%d, vcc' % (V_PL, V_FLO, V_PL))
                z.wait(vm=[('h', 3)])
                sync_arrive(z, 0)
                sync_wait(z, 0, 4, T)
                z('buffer_store_dword v%d, v%d, %s, s%d offen sc1' % (V_ONE, V_PL, sr(SWS, 4), S_T0))
                z.extend(res_unpack(RES_F))
                stamp(z, 6)
                z('s_branch L_p2a')
            else:
                d = Seg()
                touch_wo(d, V_XA)
                epi(z, 3, d)
                q_fetch(z)
                z('s_branch L_qo')
            return z
        d = duty(1, LCS[7][1], (), False)
        if ffn:
            d.extend(res_load(RES_F))
        gemm(z, 0, extra=d)
        barrier(z, [('l', 1, 6)], 'e1')
        stamp(z, 'h1')
        for q in (1, 2):
            d = duty(q + 1, range(OPT['ne']), UB[1] if q == 2 else ())
            if ffn and OPT['touch'] & 128 and 2 * q == OPT['tfat']:
                d('s_nop 0')
                touch_ffn(d, V_XA)
            epi(z, q - 1, d, nxt=q, lo=0.2)
            barrier(z, [('l', q + 1, 0)], 'e%d' % (2 * q))
            stamp(z, 'h%d' % (2 * q))
            d = duty(q + 1, (5, 6), (), False)
            if ffn and q == 2:
                poll_early(d)
            d.extend(duty(0, (), UB[2 * q - 2], False))
            gemm(z, q, extra=d)
            barrier(z, [('l', q + 1, 6), ('h', q - 1)], 'e%d' % (2 * q + 1))
            stamp(z, q + 2)
        if ffn:
            d = Seg()
            a_setup(d)
            stage_check(d, 0)
            for u in range(OPT['na']):
                aload(d, u)
            for u in range(8, 8 + OPT['nb']):
                dma_b2(d, u)
            epi(z, 2, d, handoff=True, hi=1.0)
            barrier(z, None, 'e6')
            z('s_branch L_p2f')
        else:
            d = Seg()
            touch_wo(d, V_XA)
            epi(z, 2, d, nxt=3)
            barrier(z)
            stamp(z, 5)
            gemm(z, 3)
            barrier(z)
            epi(z, 3)
            stamp(z, 6)
        return z

    return s, stream(0), stream(1)


def q_fetch(s):
    T, RAW = V_T, V_X
    s('s_lshl2_add_u32 s%d, s%d, s%d' % (S_T0, S_HALF, S_RW))
    s('s_lshl_b32 s%d, s%d, 8' % (S_PL, S_T0))
    s('s_add_u32 s%d, s%d, 0x%x' % (S_PL, S_PL, FKV_OFF))
    s('s_lshl_b32 s%d, s%d, 13' % (S_T0, S_T0))
    s('s_add_u32 s%d, s%d, 0x%x' % (S_T0, S_T0, KV_OFF))
    s('s_add_u32 s%d, s%d, 4096' % (S_T3, S_T0))
    s('v_cmp_gt_u32 vcc, 32, v%d' % V_L16)
    s('v_lshlrev_b32 v%d, 3, v%d' % (V_PL, V_L16))
    s('v_cndmask_b32 v%d, v%d, v%d, vcc' % (V_PL, V_FLO, V_PL))
    s('v_lshrrev_b32 v%d, 2, v%d' % (T, V_L16))
    s('s_lshl1_add_u32 s%d, s%d, %d' % (S_T1, S_M0W, R2))
    s('v_add_u32 v%d, s%d, v%d' % (T + 1, S_T1, V_L16))
    s('s_barrier')
    stamp(s, 6)
    j = nspin[0]
    nspin[0] += 1
    s('L_qs%d:' % j)
    s('v_mov_b32 v%d, 0' % V_POLL)
    s('buffer_atomic_add v%d, v%d, %s, s%d offen sc0 sc1' % (V_POLL, V_PL, sr(SWS, 4), S_PL))
    s('s_add_u32 s%d, s%d, 1' % (S_SPIN, S_SPIN))
    s('s_cmp_gt_u32 s%d, 0x%x' % (S_SPIN, SPIN_LIMIT))
    s.wait(vm='all')
    s('s_cbranch_scc1 L_qz%d' % j)
    s('v_cmp_le_u32 vcc, 16, v%d' % V_POLL)
    s('s_andn2_b32 s%d, 3, vcc_lo' % S_T2)
    s('s_cbranch_scc1 L_qs%d' % j)
    s('L_qz%d:' % j)
    stamp(s, 7)
    if OPT['qsplit']:
        return
    for r in range(32):
        s('buffer_load_dword v%d, v%d, %s, s%d offen offset:%d sc1' % (RAW + r, T, sr(SWS, 4), S_T3 if r >= 16 else S_T0, (r & 15) * 256), ('kv', r >> 3))
    for f in range(4):
        s.wait(vm=[('kv', f)])
        for k in range(4):
            s('v_cvt_pk_bf16_f32 v%d, v%d, v%d' % (RAW + 8 * f + k, RAW + 8 * f + 2 * k, RAW + 8 * f + 2 * k + 1))
        s('ds_write_b128 v%d, %s offset:%d' % (T + 1, vr(RAW + 8 * f, 4), f * 1024))


def q_out():
    s, T = Seg('qo'), V_T
    NUM, KF, RAW = V_X, V_X + 64, V_X + 96
    s('L_qo:')
    s('s_lshl_b32 s%d, s%d, 11' % (S_T1, S_G))
    s('s_add_u32 s%d, s%d, %d' % (S_T1, S_T1, R2))
    s('v_add_u32 v%d, s%d, v%d' % (T + 2, S_T1, V_L16))
    if OPT['qsplit']:
        s('s_lshl3_add_u32 s%d, s%d, s%d' % (S_T0, S_HALF, S_WV))
        s('s_lshl_b32 s%d, s%d, 12' % (S_T0, S_T0))
        s('s_add_u32 s%d, s%d, 0x%x' % (S_T0, S_T0, KV_OFF))
        s('v_lshrrev_b32 v%d, 2, v%d' % (T, V_L16))
        s('s_add_u32 s%d, s%d, %d' % (S_T1, S_M0X, R2))
        s('v_add_u32 v%d, s%d, v%d' % (T + 1, S_T1, V_L16))
        s('s_barrier')
        for r in range(16):
            s('buffer_load_dword v%d, v%d, %s, s%d offen offset:%d sc1' % (RAW + r, T, sr(SWS, 4), S_T0, r * 256), ('kv', r >> 3))
        for f in range(2):
            s.wait(vm=[('kv', f)])
            for k in range(4):
                s('v_cvt_pk_bf16_f32 v%d, v%d, v%d' % (RAW + 8 * f + k, RAW + 8 * f + 2 * k, RAW + 8 * f + 2 * k + 1))
            s('ds_write_b128 v%d, %s offset:%d' % (T + 1, vr(RAW + 8 * f, 4), f * 1024))
    barrier(s)
    stamp(s, 8)
    for q in range(4):
        for f in range(2):
            s('ds_read_b128 %s, v%d offset:%d' % (vr(KF + 8 * q + 4 * f, 4), T + 2, q * 4096 + f * 1024), ('kf', q, f))
    def num(q):
        z = Seg()
        for f in range(2):
            z.wait(lgkm=[('kf', q, f)])
            z('v_mfma_f32_32x32x16_bf16 %s, %s, %s, %s' % (vr(NUM + 16 * q, 16), vr(KF + 8 * q + 4 * f, 4), vr(V_PQ + 8 * q + 4 * f, 4), vr(NUM + 16 * q, 16) if f else '0'))
        return z

    s.extend(num(0) + num(1))
    O, done = V_X + 96, 0
    s('s_add_u32 s%d, s%d, 4096' % (S_T0, S_H))
    for q in range(4):
        n, p = NUM + 16 * q, q >> 1
        dst = [O + 14 * p + k for k in range(8)] if q % 2 == 0 else [O + 14 * p + 8 + k for k in range(6)] + [T + 6, T + 7]
        s('v_add_f32 v%d, s%d, v%d' % (T + 4, S_EPS, n + 12))
        s('v_add_f32 v%d, s%d, v%d' % (T + 5, S_EPS, n + 12))
        s('v_permlane32_swap_b32 v%d, v%d' % (T + 4, T + 5))
        s('v_rcp_f32 v%d, v%d' % (T + 5, T + 5))
        for f in ((0, 1) if q % 2 == 0 else (1, 0)):
            for k in range(8 * f, 8 * f + 8, 2):
                s('v_pk_mul_f32 %s, %s, %s op_sel:[0,1] op_sel_hi:[1,1]' % (vr(n + k, 2), vr(n + k, 2), vr(T + 4, 2)))
            for k in (2, 3, 0, 1):
                s('v_cvt_pk_bf16_f32 v%d, v%d, v%d' % (dst[4 * f + k], n + 8 * f + 2 * k, n + 8 * f + 2 * k + 1))
            if q % 2 and f:
                for k in range(2):
                    s('v_permlane32_swap_b32 v%d, v%d' % (O + 14 * p + 6 + k, T + 6 + k))
            if q < 2 and f != q:
                s.extend(num(q + 2))
            ready = {(0, 0): 1, (1, 1): 2, (1, 0): 3, (2, 0): 4, (2, 1): 5, (3, 0): 7}.get((q, f), done)
            for v in range(done, ready):
                s('buffer_store_dwordx4 %s, v%d, %s, s%d offen offset:%d sc1' % (vr(O + 4 * v, 4), V_L16, sr(SWS, 4), S_T0 if v >= 4 else S_H, (v & 3) * 1024))
            done = ready
    stamp(s, 9)
    if OPT['opriv']:
        s('s_lshl1_add_u32 s%d, s%d, s%d' % (S_T0, S_RB, S_HALF))
        s('s_lshl_b32 s%d, s%d, 11' % (S_T0, S_T0))
        s('s_lshl_b32 s%d, s%d, 28' % (S_T1, S_WV))
        s('s_add_u32 s%d, s%d, s%d' % (S_T0, S_T0, S_T1))
        s('s_add_u32 s%d, s%d, 0x%x' % (S_T0, S_T0, FO_OFF))
        s('v_cmp_gt_u32 vcc, 0x100, v%d' % V_L16)
        s('v_lshlrev_b32 v%d, 3, v%d' % (T, V_L16))
        s('v_cndmask_b32 v%d, v%d, v%d, vcc' % (T, V_FLO, T))
        barrier(s, 'all')
        s('buffer_store_dword v%d, v%d, %s, s%d offen sc1' % (V_ONE, T, sr(SWS, 4), S_T0))
    else:
        barrier(s, 'all')
        flag(s, 768)
        flag(s, 768 + FL_G)
    s('s_branch L_fin')
    return s


def kv_role():
    s, T = Seg('kv'), V_T
    RING[0] = 11
    s('L_kv:')
    if OPT['twat'] < -1:
        touch_w(s, False, V_EXW)
    s('s_mul_i32 s%d, s%d, 3' % (S_P, S_HALF))
    s('s_add_u32 s%d, s%d, s%d' % (S_P, S_P, S_ROLE))
    s('s_sub_u32 s%d, s%d, 4' % (S_P, S_P))

    def item(t, n):
        if n >= 14:
            if n == 14:
                t('v_add_u32 v%d, %d, v%d' % (V_W, XS, V_W))
                t('v_add_u32 v%d, %d, v%d' % (V_WB, XS, V_WB))
            dma_w(t, S_M0X, n - 14, kv_slot(n), ('i', n))
        elif n & 1:
            dma_w(t, S_M0X, n >> 1, kv_slot(n), ('i', n))
        else:
            dma_x(t, n >> 1, kv_slot(n), ('i', n))

    s('s_lshl_b32 s%d, s%d, 2' % (S_T1, S_P))
    s('s_lshr_b32 s%d, 0xdb8630, s%d' % (S_LAST, S_T1))
    s('s_and_b32 s%d, s%d, 15' % (S_LAST, S_LAST))
    s('s_lshr_b32 s%d, 0x323233, s%d' % (S_PEND, S_T1))
    s('s_and_b32 s%d, s%d, 15' % (S_PEND, S_PEND))
    s('s_add_u32 s%d, s%d, s%d' % (S_T1, S_LAST, S_G))
    s('s_mul_i32 s%d, s%d, 56' % (S_T1, S_T1))
    s('s_lshl_b32 s%d, s%d, 7' % (S_T0, S_P))
    s('s_sub_u32 s%d, s%d, s%d' % (S_T1, S_T1, S_T0))
    s('s_add_u32 s%d, s%d, 1' % (S_T0, S_G))
    s('s_cmp_lt_u32 s%d, s%d' % (S_T0, S_PEND))
    s('s_cselect_b32 s%d, 56, 0' % S_T0)
    if OPT['zpad']:
        zpad(s)
    else:
        s('v_min_u32 v%d, 6, v%d' % (T + 14, T + 14))
    s('v_lshl_add_u32 v%d, v%d, 3, s%d' % (T + 5, T + 14, S_T1))
    s('v_lshlrev_b32 v%d, 6, v%d' % (T + 6, T + 10))
    for t in range(2):
        if t:
            s('v_add_u32 v%d, s%d, v%d' % (T + 5, S_T0, T + 5))
        s('v_xor_b32 v%d, v%d, v%d' % (T + 11, T + 5, T + 6))
        s('v_lshl_add_u32 v%d, v%d, 8, v%d' % (V_WA + 4 * t, T + 12, T + 11))
        for j in range(1, 4):
            s('v_xor_b32 v%d, %d, v%d' % (V_WA + 4 * t + j, j << 12, V_WA + 4 * t))
    srd(s, SWS, WS_BYTES)
    srd(s, SDBG, 256)
    item(s, 2)
    item(s, 3)
    estamp(s, 't1')
    s.extend(deferred(True))
    p2_setup(s)
    s('s_lshl1_add_u32 s%d, s%d, s%d' % (S_H, S_RB, S_HALF))
    s('s_lshl3_add_u32 s%d, s%d, s%d' % (S_H, S_H, S_RW))
    s('s_lshl_b32 s%d, s%d, 7' % (S_H, S_H))
    s('s_add_u32 s%d, s%d, 0x%x' % (S_H, S_H, ST_OFF))
    s('v_lshlrev_b32 v%d, 2, v%d' % (V_ST + 1, T + 8))
    s('s_lshl_b32 s%d, s%d, 7' % (S_T0, S_RW))
    s('s_add_u32 s%d, s%d, %d' % (S_T0, S_T0, M_R))
    s('v_lshl_add_u32 v%d, v%d, 4, s%d' % (V_RA, T + 9, S_T0))
    s('v_add_u32 v%d, s%d, v%d' % (V_ST + 2, S_T0, V_ST + 1))
    s('v_mov_b32 v%d, %d' % (T + 5, M_SY + 128))
    s('v_cndmask_b32 v%d, v%d, v%d, %s' % (V_ST + 3, V_RA, T + 5, sr(S_PAD, 2)))
    s('v_mov_b32 v%d, 0' % (V_EXR + 1))
    if OPT['smk']:
        assert OPT['touch'] & 64 and not OPT['touch'] & 2
        sparse_sel(s, T + 12, T + 2)
    s('s_waitcnt lgkmcnt(0)')
    if OPT['tat'] < -1:
        touch_w2(s)
    if OPT['two']:
        s('s_lshl2_add_u32 s%d, s%d, s%d' % (S_T1, S_G, S_PEND))
        s('s_cmp_eq_u32 s%d, 6' % S_T1)
        s('s_cbranch_scc1 L_kc')
    s('s_cmp_eq_u32 s%d, 1' % S_G)
    s('s_cbranch_scc1 L_kb')

    def body(g, two=False):
        b = Seg('kc' if two else 'kb' if g else 'ka')
        if two:
            b('L_kc:')
        elif g:
            b('L_kb:')
        xa = Rebase([V_XA + j for j in range(4)], 0, 0)
        wa = [Rebase([V_WA + 4 * t + j for j in range(4)], 0, 1024) for t in range(2)]
        TS = [[0], []] if two else [[0, 1], [1]] if g else [[0], [0, 1]]
        PK1 = V_X + 48

        def witem(q, c):
            return 2 * c + 1 if q == 0 else 14 + c

        def wf(t, j, c):
            base = V_ACC + 48 if t != g else V_WF
            if not OPT['smk'] or j > 1:
                return base + 4 * j
            return (T + 8 if t != g else T + 4) if j else base + 4 * (1 - (c & 1))

        def acc(q, t):
            return V_ACC + 16 * (q + t)

        def wread(z, q, c, j, t):
            o = wa[t].off(z, kv_slot(witem(q, c)))
            for u in range(2):
                z('ds_read_b64_tr_b16 %s, v%d offset:%d' % (vr(wf(t, j, c) + 2 * u, 2), V_WA + 4 * t + j, o + u * 1024), ('w', q, c, j, t))

        def xread(z, c, j):
            o = xa.off(z, kv_slot(2 * c))
            z('ds_read_b128 %s, v%d offset:%d' % (vr(xreg(c, j), 4), V_XA + j, o))

        def kstep(q, c, j):
            out = []
            first = c == 0 and j == 0
            for t in TS[q]:
                z = Seg()
                z.wait(lgkm=[('w', q, c, j, t), ('w', q, c, j, TS[q][-1]) if len(TS[q]) > 1 else ('w', q, c, j | 1, t)] if OPT['wj'] else [('w', q, c, j, t)])
                z('v_mfma_f32_32x32x16_bf16 %s, %s, %s, %s' % (vr(acc(q, t), 16), vr(xreg(c, j), 4), vr(wf(t, j, c), 4), '0' if first else vr(acc(q, t), 16)))
                if j == 0 and (first or not OPT['smk']):
                    z('v_mfma_f32_16x16x32_bf16 %s, %s, %s, %s' % (vr(V_CS + 4 * t, 4), vr(V_SEL, 4), vr(wf(t, j, c), 4), '0' if first else vr(V_CS + 4 * t, 4)))
                elif j == 0 and c % 2 == 0:
                    z('v_smfmac_f32_16x16x64_bf16 %s, %s, %s, v%d' % (vr(V_CS + 4 * t, 4), vr(T + 12, 4), vr(wf(t, 0, 1), 8), V_X1 if q else T + 2))
                if c < 6:
                    wread(z, q, c + 1, j, t)
                    if q == 0 and t == TS[q][-1]:
                        xread(z, c + 1, j)
                elif q == 0 and not g:
                    wread(z, 1, 0, j, 0)
                if c == 6 and j == 2 and t == TS[q][-1]:
                    for tt in TS[q]:
                        if OPT['smk']:
                            z('v_add_f32 v%d, v%d, v%d' % (V_CS + 4 * tt, V_CS + 4 * tt, V_CS + 4 * tt + 1))
                        z('ds_write_b32 v%d, v%d offset:%d' % (V_CSW, V_CS + 4 * tt, q * 1536 + (g + tt) * 512))
                out.append(z)
            return out

        def ext(q, t, k):
            return ext_parts(acc(q, t), q * 1536 + (g + t) * 512, (V_EXW, V_EXW + 2, V_CS)[k], True, T=V_T + 4 + 4 * k)

        def rload(z, dst, key, addr=V_RA):
            for i in range(4):
                z('ds_read_b128 %s, v%d offset:%d' % (vr(dst + 4 * i, 4), addr, i * 32), key)

        def stat_load(z):
            z('buffer_load_dword v%d, v%d, %s, s%d offen sc1' % (V_ST, V_ST + 1, sr(SWS, 4), S_H), 'stat')

        def stat_use(z):
            z('v_and_b32 v%d, 0xffff, v%d' % (T, V_ST))
            z('v_lshl_or_b32 v%d, v%d, 16, v%d' % (T, V_ST, T))
            z('v_cndmask_b32 v%d, v%d, 0, %s' % (V_EXR, T, sr(S_HI, 2)))

        def phi_k(t, rb):
            e = Seg()
            for i in range(4):
                a = [acc(0, t) + 4 * i + k for k in range(4)]
                for k in range(4):
                    e('v_fma_f32 v%d, v%d, v%d, s%d' % (a[k], a[k], rb + 4 * i + k, S_EPS))
                for k in range(4):
                    e('v_mul_f32 v%d, s%d, v%d' % (T + k, S_L2E, a[k]))
                for k in range(4):
                    e('v_exp_f32_e64 v%d, v%d clamp' % (T + k, T + k))
                for k in range(4):
                    e('v_max_f32 v%d, s%d, v%d' % (a[k], S_EPS, a[k]))
                for k in range(4):
                    e('v_add_f32 v%d, v%d, v%d' % (a[k], a[k], T + k))
                e('v_cvt_pk_bf16_f32 v%d, v%d, v%d' % (acc(0, t) + 2 * i, a[0], a[1]))
                e('v_cvt_pk_bf16_f32 v%d, v%d, v%d' % (acc(0, t) + 2 * i + 1, a[2], a[3]))
            return e

        def hand_addr(z):
            z('s_mul_i32 s%d, s%d, 10240' % (S_T0, S_RW))
            z('s_add_u32 s%d, s%d, %d' % (S_T0, S_T0, R2 + 8192))
            z('v_add_u32 v%d, s%d, v%d' % (V_XA, S_T0, V_L16))

        def prod_setup(z, rb):
            rload(z, rb, 'r2', V_ST + 3)
            z('v_cndmask_b32 v%d, 0, 1.0, %s' % (V_XA + 1, sr(S_PAD, 2)))
            z('s_lshl_b32 s%d, s%d, 12' % (S_T0, S_RW))
            z('s_add_u32 s%d, s%d, %d' % (S_T0, S_T0, HND))
            z('v_add_u32 v%d, s%d, v%d' % (V_XA + 2, S_T0, V_L16))

        def kv_prod(z, t, pk, rb):
            z.wait(lgkm='r2')
            v, d = acc(1, t), V_X + 16 * t + 64 * g
            for f in range(2):
                for k in range(8 * f, 8 * f + 8):
                    z('v_fma_f32 v%d, v%d, v%d, v%d' % (v + k, v + k, rb + k, V_XA + 1))
                for k in range(4):
                    z('v_cvt_pk_bf16_f32 v%d, v%d, v%d' % (v + 8 * f + k, v + 8 * f + 2 * k, v + 8 * f + 2 * k + 1))
            z('s_setprio 2')
            for f in range(2):
                z('v_mfma_f32_32x32x16_bf16 %s, %s, %s, %s' % (vr(d, 16), vr(pk + 4 * f, 4), vr(v + 8 * f, 4), vr(d, 16) if f else '0'))

        def part_write(z, t):
            for i in range(4):
                z('ds_write_b128 v%d, %s offset:%d' % (V_XA + 2, vr(V_X + 16 * t + 64 * g + 4 * i, 4), (1, 0, 2)[g + t] * 16384 + i * 1024))

        if not g:
            b('s_setprio 1')
        for c in range(-1, 7):
            barrier(b, 't0' if c < 0 else [('i', 2 * c + 3 if c < 6 else 14)], 's%d' % c if c >= 0 else 'pre')
            if c < 0:
                stamp(b, 1)
            d = Seg()
            if c == min(OPT['tat'], 2):
                touch_w2(d)
            if g and c == 3:
                f0_load(d)
            if g and c == 5:
                f0_check(d)
            item(d, 2 * c + 6)
            if c == 4:
                b2b_setup(d)
                if OPT['smk']:
                    d('v_mov_b32 v%d, v%d' % (V_X1, T + 2))
            if c < 6:
                item(d, 2 * c + 7)
            if c == OPT['twat'] and not OPT['touch'] & 64:
                touch_w(d, False, V_EXW)
            if c == 6:
                if g:
                    stat_load(d)
                else:
                    for j in range(4):
                        wread(d, 1, 0, j, 1)
            if not g and c >= 0:
                b.extend(d)
            for j in range(4):
                if c >= 0:
                    for z in kstep(0, c, j):
                        b.extend(z)
                else:
                    for t in TS[0]:
                        wread(b, 0, 0, j, t)
                    xread(b, 0, j)
            if g or c < 0:
                b.extend(d)
        barrier(b, [('i', 16)], 's7')
        stamp(b, 2)

        if g:
            RB = V_ACC + 48
            parts = [ext(0, t, t) for t in TS[0]]
            for p in parts:
                b.extend(p[0])
            item(b, 19)
            for p in parts:
                b.extend(p[1])
            item(b, 20)
            touch_l2(b, 0, V_W)
            hand_addr(b)
            b.wait(vm='stat')
            spin_check(b, V_ST, 1, V_ST + 1, SWS, 's%d' % S_H, 0xffffffff)
            stat_use(b)
            b('v_and_b32 v%d, 0xffff0000, v%d' % (T + 1, V_ST))
            b('v_rcp_f32 v%d, v%d' % (T + 1, T + 1))
            b('s_setprio 2')
            for p in parts:
                b.extend(p[2])
            b('s_setprio 0')
            b('ds_write_b32 v%d, v%d' % (V_ST + 2, T + 1))
            rload(b, RB, 'r')
            if OPT['tkat'] == 0:
                touch_kv(b)
            e = Seg()
            e.wait(lgkm='r')
            e.extend(phi_k(0, RB))
            for f in range(2):
                e('ds_write_b128 v%d, %s offset:%d' % (V_XA, vr(acc(0, 0) + 4 * f, 4), f * 1024))
            if two:
                barrier(b, [('i', 18)], 'v0')
                b.extend(e)
                barrier(b, [('i', 20)], 'v1')
                touch_kv(b)
                barrier(b, None, 'v2')
                barrier(b, None, 'v4')
                poll_early(b)
                b.extend(res_load(RES_KB))
                for u in range(4, 4 + OPT['kub']):
                    dma_b2(b, u)
                a_setup(b)
                barrier(b, None, 'v3')
                assert OPT['kna'] and OPT['kpa'] and not OPT['k2']
                stage_check(b, 0)
                for u in range(OPT['kna']):
                    aload(b, u)
                barrier(b, None, 'kk')
                b('s_branch L_p2k')
                return b
            d = Seg()
            if OPT['tkat'] == 1:
                touch_kv(d)
            touch_l2(d, 1, V_WB)
            if not OPT['kpa']:
                for u in range(OPT['kpf']):
                    dma_b2(d, u)
            r = Seg()
            for j in range(4):
                wread(r, 1, 0, j, 1)
            e.extend(mix(mix(phi_k(1, RB), [[i] for i in r]), groups(d), 0.3, 1.0))
            k0, k1 = OPT['kb0'], OPT['kb1']
            b.extend(e[:k0])
            barrier(b, [('i', 18)], 'v0')
            b.extend(e[k0:k1])
            barrier(b, [('i', 20)], 'v1')
            b.extend(e[k1:])
            prod_setup(b, RB)
            barrier(b, None, 'v2')
            stamp(b, 3)
            b('s_setprio 1')
            d = Seg()
            slots = [kstep(1, c, j)[0] for c in range(7) for j in range(4)]
            pre = Seg()
            barrier(pre, None, 'v4')
            slots[4 * OPT['kv4']][:0] = pre
            if OPT['kna']:
                poll_early(d)
            d.extend(res_load(RES_KB))
            for u in range(4, 4 + OPT['kub']):
                dma_b2(d, u)
            for k, gi in enumerate(groups(d)):
                slots[min(4 * OPT['kv4'] + 3 + 2 * k, 27)].extend(gi)
            for z in slots:
                b.extend(z)
            barrier(b, None, 'v3')
            b('s_setprio 2')
            b.extend(head([ext(1, 1, 0)]))
            d = Seg()
            if OPT['kna']:
                a_setup(b)
                stage_check(b, 0)
                for u in range(OPT['kna']):
                    aload(d, u)
            else:
                poll_early(b)
            d = groups(d)
            z = Seg()
            kv_prod(z, 1, acc(0, 1), RB)
            b.extend(mix(z, d[:OPT['kne']]))
            if not OPT['kna']:
                a_setup(b)
            part_write(b, 1)
            for gi in d[OPT['kne']:]:
                b.extend(gi)
            barrier(b, None, 'kk')
            stamp(b, 4)
            if OPT['k2']:
                b('s_barrier')
            b('s_branch L_p2k')
            return b
        pf = []
        for c in range(7):
            if c in (2, 4):
                barrier(b, [('i', 16 + c)], 'v%d' % (c // 2 - 1))
            for j in range(4):
                for z in kstep(1, c, j):
                    b.extend(z)
                if c < 2:
                    if j == 1:
                        d = Seg()
                        item(d, 19 + c)
                        d = groups(d)
                    if j in (1, 2):
                        b.extend(d[j - 1])
                if OPT['kpa'] and c == 2 and j == 0:
                    pf = Seg()
                    for u in range(OPT['kpf']):
                        dma_b2(pf, u)
                    pf = groups(pf)
                if OPT['kpa'] and pf and ((c >= 3 and j & 1) if OPT['kpa'] == 1 else c >= 5):
                    b.extend(pf.pop(0))
                if c == 2 and j == 1:
                    stat_load(b)
                if c == 5 and j == 1:
                    hand_addr(b)
                if c == 5 and j == 3:
                    b.wait(vm='stat')
                    stat_use(b)
        barrier(b, None, 'v2')
        stamp(b, 3)
        b('s_setprio %d' % OPT['khead'])
        b('v_mov_b32 v%d, 0' % (V_CS + 1))
        RB, RP = V_X + 64, V_WF
        e = head([ext(1, 1, 0), ext(0, 0, 1), ext(1, 0, 2)])
        z = Seg()
        prod_setup(z, RP)
        for f in range(2):
            z('ds_read_b128 %s, v%d offset:%d' % (vr(PK1 + 4 * f, 4), V_XA, f * 1024), 'r2')
        rload(z, RB, 'r')
        b.extend(e[:3] + list(z) + e[3:-3])
        b('s_setprio 2')
        b.extend(e[-3:])
        b('s_setprio 0')
        if OPT['kres']:
            b.extend(res_load(RES_KA))
        z = Seg()
        z('s_lshl_b32 s%d, s%d, 10' % (S_T1, S_RW))
        z('s_add_u32 s%d, s%d, %d' % (S_T1, S_T1, HND))
        z('v_add_u32 v%d, s%d, v%d' % (V_SEL + 2, S_T1, V_L16))
        z('s_cmp_eq_u32 s%d, 3' % S_RW)
        z('s_cselect_b64 vcc, %s, 0' % sr(S_HI, 2))
        z('v_lshrrev_b32 v%d, 2, v%d' % (V_SEL + 3, V_L16))
        z('v_cndmask_b32 v%d, v%d, v%d, vcc' % (V_SEL + 3, V_SEL + 3, V_FLO))
        z('s_lshl2_add_u32 s%d, s%d, s%d' % (S_H, S_LAST, S_RW))
        z('s_lshl_b32 s%d, s%d, 10' % (S_H, S_H))
        z('s_add_u32 s%d, s%d, 0x%x' % (S_H, S_H, KV_OFF))
        kv_prod(z, 1, PK1, RP)
        z('s_setprio 0')
        z.wait(lgkm='r')
        e = phi_k(0, RB)
        z.extend(e[:OPT['kearly']])
        barrier(z, None, 'v4')
        w, d = Seg(), Seg()
        part_write(w, 1)
        for u in range(4 + OPT['kub'], 4 + OPT['kub'] + OPT['kua']):
            dma_b2(d, u)
        z.extend(mix(e[OPT['kearly']:], [[i] for i in w] + groups(d)))
        k = len(z) + OPT['kcut']
        kv_prod(z, 0, acc(0, 0), RP)
        b.extend(z[:k])
        barrier(b, None, 'v3')
        b.extend(z[k:])
        b('s_add_u32 s%d, s%d, 4096' % (S_P, S_H))
        b('s_add_u32 s%d, s%d, 8192' % (S_HALF, S_H))
        b('s_cmp_eq_u32 s%d, 3' % S_PEND)
        b('s_cselect_b32 s%d, s%d, 0x%x' % (S_HALF, S_HALF, OOB))
        part_write(b, 0)
        barrier(b, 'all', 'kk')
        stamp(b, 4)
        R = V_X + 32
        for h in range(3):
            for p in range(4):
                b('ds_read_b128 %s, v%d offset:%d' % (vr(R + 16 * h + 4 * p, 4), V_SEL + 2, (1, 0, 2)[h] * 16384 + p * 4096), ('red', h))
        for h in range(3):
            r = R + 16 * h
            b.wait(lgkm=[('red', h)])
            for k in (0, 2):
                b('v_pk_add_f32 %s, %s, %s' % (vr(r + k, 2), vr(r + k, 2), vr(r + 4 + k, 2)))
                b('v_pk_add_f32 %s, %s, %s' % (vr(r + 8 + k, 2), vr(r + 8 + k, 2), vr(r + 12 + k, 2)))
                b('v_pk_add_f32 %s, %s, %s' % (vr(r + k, 2), vr(r + k, 2), vr(r + 8 + k, 2)))
            for k in range(4):
                b('buffer_atomic_add_f32 v%d, v%d, %s, s%d offen offset:%d sc1' % (r + k, V_SEL + 3, sr(SWS, 4), (S_H, S_P, S_HALF)[h], k * 256), 'atom')
        if OPT['k2']:
            b('s_barrier')
        stamp(b, 5)
        b('s_lshl_b32 s%d, s%d, 7' % (S_FL, S_LAST))
        b('s_lshl_b32 s%d, s%d, 28' % (S_T1, S_RW))
        b('s_add_u32 s%d, s%d, s%d' % (S_FL, S_FL, S_T1))
        b('s_add_u32 s%d, s%d, 0x%x' % (S_FL, S_FL, FKV_OFF))
        b('s_lshl_b32 s%d, s%d, 4' % (S_T1, S_PEND))
        b('v_cmp_gt_u32 vcc, s%d, v%d' % (S_T1, V_L16))
        b('v_lshlrev_b32 v%d, 3, v%d' % (V_PL, V_L16))
        b('v_cndmask_b32 v%d, v%d, v%d, vcc' % (V_PL, V_FLO, V_PL))
        if not OPT['kres']:
            b.extend(res_load(RES_KA))
        b.wait(vm='atom')
        sync_arrive(b, 0)
        sync_wait(b, 0, 4, T)
        stamp(b, 6)
        b('buffer_atomic_add v%d, v%d, %s, s%d offen sc1' % (V_ONE, V_PL, sr(SWS, 4), S_FL))
        b.extend(res_unpack(RES_KA))
        b('s_branch L_p2a')
        return b

    return s, body(0), body(1), body(1, True) if OPT['two'] else Seg('kc')


def frag_addr(s, T):
    s('v_lshrrev_b32 v%d, 4, v%d' % (T, V_L16))
    s('v_bfe_u32 v%d, v%d, 2, 2' % (T + 1, T))
    s('v_and_b32 v%d, 3, v%d' % (T + 2, T))
    s('v_bfe_u32 v%d, v%d, 4, 1' % (T + 3, T))
    s('v_lshl_add_u32 v%d, v%d, 2, v%d' % (T + 2, T + 3, T + 2))
    s('v_lshrrev_b32 v%d, 1, v%d' % (T + 3, T + 1))
    s('v_lshlrev_b32 v%d, 6, v%d' % (T + 3, T + 3))
    s('v_lshl_add_u32 v%d, v%d, 3, v%d' % (T + 2, T + 2, T + 3))
    s('v_lshl_add_u32 v%d, v%d, 7, v%d' % (T + 2, T + 1, T + 2))
    s('v_lshrrev_b32 v%d, 5, v%d' % (T + 3, T))
    s('v_lshl_add_u32 v%d, v%d, 9, v%d' % (T + 3, T + 3, T + 2))


def bf(par, ct):
    return V_BF + 8 * par + 4 * ct


def acc2(ct, rg):
    return V_ACC + 32 * ct + 16 * rg


def part_addr(g):
    z, T = Seg(), V_NUM
    z('v_bfe_u32 v%d, v%d, 4, 5' % (T, V_L16))
    z('v_and_b32 v%d, 7, v%d' % (T + 1, T))
    z('v_bfe_u32 v%d, v%d, 1, 1' % (T + 2, T))
    z('v_lshrrev_b32 v%d, 9, v%d' % (T + 3, V_L16))
    z('v_xor_b32 v%d, v%d, v%d' % (T + 2, T + 2, T + 3))
    z('v_lshl_add_u32 v%d, v%d, 3, v%d' % (T + 1, T + 2, T + 1))
    z('v_lshlrev_b32 v%d, 4, v%d' % (T + 1, T + 1))
    z('v_lshl_add_u32 v%d, v%d, 8, v%d' % (T + 1, T, T + 1))
    z('v_add_u32 v%d, s%d, v%d' % (T + 8, S_QR0, T + 1))
    if g:
        z('v_add_u32 v%d, s%d, v%d' % (T + 16, S_QR2, T + 1))
    else:
        z('v_add_u32 v%d, 8192, v%d' % (T + 16, T + 8))
    for rg in range(2):
        for k in range(1, 8):
            z('v_xor_b32 v%d, %d, v%d' % (T + 8 + 8 * rg + k, k << 4, T + 8 + 8 * rg))
    return z


def read_addr(g, R):
    z, T = Seg(), R
    z('v_bfe_u32 v%d, v0, 3, 5' % (T + 1))
    z('v_and_b32 v%d, 0x70, v%d' % (T + 2, V_L16))
    z('v_and_b32 v%d, 7, v%d' % (T + 3, T + 1))
    z('v_bfe_u32 v%d, v%d, 1, 1' % (T + 4, T + 1))
    z('v_lshl_add_u32 v%d, v%d, 3, v%d' % (T + 3, T + 4, T + 3))
    z('v_lshlrev_b32 v%d, 4, v%d' % (T + 3, T + 3))
    z('v_xor_b32 v%d, v%d, v%d' % (T + 3, T + 3, T + 2))
    z('v_lshl_add_u32 v%d, v%d, 8, v%d' % (V_RD, T + 1, T + 3))
    if g:
        z('v_add_u32 v%d, %d, v%d' % (V_RD, R2, V_RD))
    z('v_xor_b32 v%d, 128, v%d' % (V_RD + 1, V_RD))
    return z


def acc_major(s, units, wreg, areg, wtag, atag, fresh, fill=()):
    slots, order = [], [(0, 0), (1, 0), (0, 1), (1, 1)]
    for ct, rg in order:
        for k, u in enumerate(units):
            z = Seg()
            z.wait(vm=[atag(u, rg)], lgkm=[wtag(u, ct)])
            z('v_mfma_f32_32x32x16_bf16 %s, %s, %s, %s' % (vr(acc2(ct, rg), 16), vr(wreg(u, ct), 4), vr(areg(u, rg), 4), '0' if fresh and k == 0 else vr(acc2(ct, rg), 16)))
            slots.append(z)
    n = len(units)
    for k, gi in enumerate(fill):
        slots[k].extend(gi)
    wr = [Ins('ds_write_b128 v%d, %s' % (V_NUM + 8 + 8 * rg + 4 * ct + i, vr(acc2(ct, rg) + 4 * i, 4))) for ct, rg in order for i in range(4)]
    pos = [[13, 14, 16, 18, 20, 22, 24, 26], [10, 11, 13, 14, 18, 19, 21, 22, 26, 27], [10, 12, 14, 16, 18, 20, 22, 24, 26, 27], [10, 11, 13, 14, 18, 19, 20, 21], [13, 14, 15, 17, 19, 20, 21, 22]][OPT['wpos']]
    for k, p in enumerate(pos):
        slots[p].append(wr[k])
        if k == 7 and OPT['early']:
            sync_arrive(slots[p], 0)
    for z in slots:
        s.extend(z)
    s.extend(wr[len(pos):])


def final(g):
    s = Seg('final%d' % g)
    D, U = V_AB, V_U
    stamp(s, 8)
    if OPT['early'] and not g:
        sync_wait(s, 0, 4, V_BF, 4)
    else:
        barrier(s)
    stamp(s, 9)
    for w in range(4):
        for h in range(2):
            s('ds_read_b128 %s, v%d offset:%d' % (vr(D + 8 * w + 4 * h, 4), V_RD + h, w * (10240 if g else 12288)), ('fin', w))
    for w in range(4):
        s.wait(lgkm=[('fin', w)])
        for k in range(4):
            s('v_pk_add_f32 %s, %s, %s' % (vr(U + 2 * k, 2), vr(U + 2 * k, 2), vr(D + 8 * w + 2 * k, 2)))
    for k in range(4):
        s('v_cvt_pk_bf16_f32 v%d, v%d, v%d' % (U + k, U + 2 * k, U + 2 * k + 1))
    s('buffer_store_dwordx4 %s, v%d, %s, s%d offen' % (vr(U, 4), V_OUT, sr(SOUT, 4), S_OUTO) + ['', ' sc1', ' nt', ' sc0 sc1', ' nt sc1', ' sc0 nt sc1'][OPT['osc']])
    if OPT['early'] and not g:
        s('s_barrier')
    return s


def phase2b(nm, na, bdone):
    s, T = Seg('p2' + nm), V_NUM
    RING[0] = 14 if nm == 'f' else 11
    UW = 10
    s('L_p2%s:' % nm)
    stamp(s, 5)
    s('s_setprio 1')
    V_PW, V_PX, RES = 11, 14, V_AB + 48
    pend = [v for v in range(35) if v not in bdone]
    first = [v for v in pend if v < OPT['b0' if nm == 'k' else 'b0f']]
    pend = pend[len(first):]
    BS = {}
    for u in range(28):
        n = 1 if u + DEP - 1 < 28 else 2
        BS[u] = [v for v in pend[:n] if v - RING[0] + 1 <= u]
        pend = pend[len(BS[u]):]
    assert not pend

    def oloads():
        z = Seg()
        for rg in range(2):
            for u in range(7):
                z('buffer_load_dwordx4 %s, v%d, %s, s%d offen offset:%d sc1' % (vr(abuf(28 + u, rg), 4), V_L16B if rg else V_L16, sr(SWS, 4), S_RO3 if u >= 4 else S_P, (u & 3) * 1024), ('o', 28 + u, rg))
        return list(z)

    def word_check(z, u, n, hit=None):
        z.wait(lgkm=[('pw', u)])
        z('v_readfirstlane_b32 s%d, v%d' % (S_T2, V_PW))
        z('s_cmp_lt_u32 s%d, %d' % (S_T2, n))
        if hit:
            z('s_cbranch_scc0 %s' % hit)
            return
        j = nspin[0]
        nspin[0] += 1
        z('s_cbranch_scc1 L_slow%d' % j)
        z('L_ret%d:' % j)
        slow('L_slow%d:' % j)
        slow('s_add_u32 s%d, s%d, 1' % (S_SPIN, S_SPIN))
        slow('s_cmp_gt_u32 s%d, 0x%x' % (S_SPIN, SPIN_LIMIT << 3))
        slow('s_cbranch_scc1 L_ret%d' % j)
        slow('ds_read_b32 v%d, v%d' % (V_PW, V_PX))
        slow('s_waitcnt lgkmcnt(0)')
        slow('v_readfirstlane_b32 s%d, v%d' % (S_T2, V_PW))
        slow('s_nop 0')
        slow('s_cmp_lt_u32 s%d, %d' % (S_T2, n))
        slow('s_cbranch_scc1 L_slow%d' % j)
        slow('s_branch L_ret%d' % j)

    z = Seg()
    if na == 0:
        for v in first[:2]:
            dma_b2(z, v)
        first = first[2:]
        stage_check(z, 0)
    for u in range(na, DEP - 1):
        if u == OPT['p1at']:
            poll_async(z, 1)
        aload(z, u)
        if first:
            dma_b2(z, first.pop(0))
    if na > OPT['p1at']:
        poll_async(z, 1)
    for v in first:
        dma_b2(z, v)
    y = Seg()
    frag_addr(y, T)
    for reg, base in enumerate((S_QR0, S_QR2, S_QR3)[:3 if nm == 'f' else 2]):
        y('v_add_u32 v%d, s%d, v%d' % (BA[2 * reg], base, T + 3))
        y('v_xor_b32 v%d, 64, v%d' % (BA[2 * reg + 1], BA[2 * reg]))
    y('v_subrev_u32 v%d, 16, v%d' % (V_PX, V_PA))
    y.extend(res_unpack(RES_F if nm == 'f' else RES_KB))
    s.extend(mix(y, groups(z)))

    def wreg(u, ct):
        return bf(u & 1, ct) if u < 28 else V_AB + 32 * (1 - ct) + 4 * (u - 28)

    def bread(u, ct):
        z = Seg()
        _, reg, off = unit_loc(u)
        if not (OPT['x_free'] and u < 11):
            z.wait(vm=[('b', u)])
        for h in range(2):
            z('ds_read_b64_tr_b16 %s, v%d offset:%d' % (vr(wreg(u, ct) + 2 * h, 2), BA[2 * reg + ct], off + h * 1024), ('bf', u, ct))
        return z

    s.extend(bread(0, 0) + bread(0, 1))
    late = Seg()
    late('v_add_u32 v%d, %d, v%d' % (V_B2S, 52 * XS, V_B2))
    late('v_cndmask_b32 v%d, v%d, v%d, %s' % (V_B2S, V_B2, V_B2S, sr(S_HI, 2)))
    late = list(read_addr(1, RES)) + list(late) + list(part_addr(1))
    SITES = [[23, 25, 27, 28], [23, 24, 26, 28], [21, 23, 25, 28], [22, 24, 26, 28]][OPT['sites']]
    U2 = 17 - DEP

    def unit(s, u, extra, word):
        nxt = u + DEP - 1
        z = Seg()
        if nxt < 28:
            aload(z, nxt)
        for v in BS[u]:
            dma_b2(z, v)
        now = groups(z) + [[i] for i in extra]
        if 10 <= u < 20:
            k0, k1 = len(late) * (u - 10) // 10, len(late) * (u - 9) // 10
            now += [[i] for i in late[k0:k1]]
        if u < 27:
            rd = [bread(u + 1, 0), bread(u + 1, 1), Seg(), Seg()]
        else:
            rd = [bread(28 + k, 0) for k in range(4)]
        if word:
            rd[2]('ds_read_b32 v%d, v%d' % (V_PW, V_PX), ('pw', u + 1))
        s.wait(vm=[('a', u)])
        stamp(s, 'u%d' % u)
        k = 0
        for ct in range(2):
            s.wait(lgkm=[('bf', u, ct)])
            for rg in ((1, 0) if ct and OPT['gray'] else (0, 1)):
                s('v_mfma_f32_32x32x16_bf16 %s, %s, %s, %s' % (vr(acc2(ct, rg), 16), vr(wreg(u, ct), 4), vr(abuf(u, rg), 4), vr(acc2(ct, rg), 16) if u else '0'))
                s.extend(rd[k])
                for gi in range(len(now) * k // 4, len(now) * (k + 1) // 4):
                    s.extend(now[gi])
                k += 1

    main, alts = [s], []
    for u in range(28):
        if u + DEP - 1 == 8:
            stage_check(s, 1)
            stamp(s, 'c1')
        if u == UW and nm == 'f':
            word_check(s, u, 1)
        if u == U2:
            word_check(s, u, 3)
            stamp(s, 'c2')
        if u in SITES:
            word_check(s, u, 7, hit='L_p2o%s%d' % (nm, u))
            a = Seg('p2o%d' % u)
            a('L_p2o%s%d:' % (nm, u))
            stamp(a, 'c3')
            o = oloads()[:14 - OPT['otail']]
            for v in range(u, 28):
                unit(a, v, o[:OPT['oper']], False)
                o = o[OPT['oper']:]
            a.extend(o)
            a('s_branch L_p2tail%s' % nm)
            alts.append((list(main), a))
            s = Seg('p2m%d' % u)
            main.append(s)
        unit(s, u, [], u + 1 in SITES + [UW, U2])
    word_check(s, 28, 7)
    stamp(s, 'c3')
    s.extend(oloads()[:14 - OPT['otail']])
    t = Seg('p2t')
    t('L_p2tail%s:' % nm)
    stamp(t, 'tl')
    fill = [bread(u, 0) for u in range(32, 35)] + [bread(u, 1) for u in range(28, 35)]
    for k, i in enumerate(oloads()[14 - OPT['otail']:]):
        fill[k] = [i] + list(fill[k])
    acc_major(t, range(28, 35), wreg, abuf, lambda u, ct: ('bf', u, ct), lambda u, rg: ('o', u, rg), False, fill)
    t.extend(final(1))
    t('s_branch L_fin')
    return [m + [a, t] for m, a in alts] + [main + [t]], [a for _, a in alts] + main + [t]


def phase2a():
    s = Seg('p2a')
    s('L_p2a:')
    if OPT['diag'] == 7:
        s('v_mov_b32 v60, s%d' % S_KA)
        s('s_lshl3_add_u32 s%d, s2, s%d' % (S_T0, S_WV))
        s('s_lshl_b32 s%d, s%d, 8' % (S_T0, S_T0))
        s('s_add_u32 s%d, s%d, 0x%x' % (S_T0, S_T0, TS_OFF))
        s('buffer_store_dword v60, v%d, %s, s%d offen sc1' % (V_FLO, sr(SWS, 4), S_T0))
    s('s_and_b32 s%d, s%d, 30' % (S_T0, S_I2))
    s('s_lshr_b32 s%d, s%d, 1' % (S_T1, S_RW))
    s('s_add_u32 s%d, s%d, s%d' % (S_T0, S_T0, S_T1))
    s('s_and_b32 s%d, s%d, 1' % (S_T1, S_I2))
    s('s_lshl1_add_u32 s%d, s%d, s%d' % (S_T0, S_T0, S_T1))
    s('s_lshl3_add_u32 s%d, s%d, s%d' % (S_T0, S_T0, S_ROLE))
    s('s_lshl_b32 s%d, s%d, 7' % (S_T0, S_T0))
    s('s_add_u32 s%d, s%d, 0x%x' % (S_PL, S_T0, FO_OFF))
    s('s_and_b32 s%d, s%d, 1' % (S_T1, S_RW))
    s('s_lshl3_add_u32 s%d, s%d, s%d' % (S_T3, S_T1, S_PL))
    s('s_add_u32 s%d, s%d, 8' % (S_T3, S_T3))
    for val, nm in ((3, 'a2'), (7, 7)):
        j = nspin[0]
        nspin[0] += 1
        s('v_mov_b32 v%d, %d' % (V_BF + 8 + val, val))
        if not OPT['x_nopoll']:
            s('L_pa%d:' % j)
            if val == 3:
                s('s_buffer_load_dwordx2 %s, %s, s%d glc' % (sr(S_T0, 2), sr(SWS, 4), S_T3))
            else:
                s('s_buffer_load_dword s%d, %s, s%d glc' % (S_T0, sr(SWS, 4), S_PL))
            s('s_add_u32 s%d, s%d, 1' % (S_SPIN, S_SPIN))
            s('s_cmp_gt_u32 s%d, 0x%x' % (S_SPIN, SPIN_LIMIT))
            s('s_waitcnt lgkmcnt(0)')
            s('s_cbranch_scc1 L_pz%d' % j)
            s('s_and_b32 s%d, s%d, s%d' % (S_T0, S_T0, S_T1 if val == 3 else S_T0))
            s('s_cbranch_scc0 L_pa%d' % j)
            s('L_pz%d:' % j)
        s('ds_write_b32 v%d, v%d' % (V_PA, V_BF + 8 + val))
        stamp(s, nm)
        if val == 3:
            s.extend(read_addr(0, V_BF))
    s.extend(final(0))
    return s


def fin():
    s = Seg('fin')
    s('L_fin:')
    if OPT['diag'] and OPT['diag'] != 7:
        stamp(s, 10)
        s('s_waitcnt lgkmcnt(0)')
        s('v_mov_b32 v4, 0')
        for k in range(7):
            s('v_writelane_b32 v4, s%d, %d' % (S_KA + 2 * k, k))
        s('v_writelane_b32 v4, s%d, 11' % S_SPIN)
        s('s_lshl3_add_u32 s%d, s2, s%d' % (S_T0, S_WV))
        s('s_lshl_b32 s%d, s%d, 8' % (S_T0, S_T0))
        s('s_add_u32 s%d, s%d, 0x%x' % (S_T0, S_T0, TS_OFF))
        s('v_lshrrev_b32 v5, 2, v%d' % V_L16)
        s('buffer_store_dword v4, v5, %s, s%d offen' % (sr(SWS, 4), S_T0))
        if OPT['diag'] == 3:
            s('s_not_b32 s%d, s%d' % (S_T0, S_KA))
            s('v_writelane_b32 v4, s%d, 11' % S_T0)
            s('s_cmp_eq_u32 s%d, 4' % S_WV)
            s('s_cselect_b32 s%d, 16, 0x%x' % (S_T0, OOB))
            s('s_cmp_lt_u32 s%d, 4' % S_ROLE)
            s('s_cselect_b32 s%d, s%d, 0x%x' % (S_T0, S_T0, OOB))
            s('s_mov_b64 exec, 0xfff')
            s('buffer_atomic_umax v4, v5, %s, s%d offen sc1' % (sr(SDBG, 4), S_T0))
    if OPT['diag'] == 6:
        s('s_cmp_lg_u32 s%d, 4' % S_WV)
        s('s_cbranch_scc1 L_end')
        s('s_mov_b64 exec, 1')
        s('s_getreg_b32 s%d, hwreg(HW_REG_XCC_ID, 0, 4)' % S_T0)
        s('s_sub_u32 s%d, s%d, s2' % (S_T0, S_T0))
        s('s_and_b32 s%d, s%d, 7' % (S_T0, S_T0))
        s('s_lshl_b32 s%d, 1, s%d' % (S_T0, S_T0))
        s('v_mov_b32 v4, s%d' % S_T0)
        s('v_mov_b32 v6, 1')
        s('v_mov_b32 v7, 0')
        s('buffer_atomic_or v4, v7, %s, 0 offen offset:16 sc1' % sr(SDBG, 4))
        s('s_waitcnt vmcnt(0)')
        s('buffer_atomic_add v6, v7, %s, 0 offen offset:136 sc0 sc1' % sr(SDBG, 4))
        s('s_waitcnt vmcnt(0)')
        s('v_readfirstlane_b32 s%d, v6' % S_T0)
        s('s_cmp_lg_u32 s%d, 255' % S_T0)
        s('s_cbranch_scc1 L_end')
        s('buffer_load_dword v4, v7, %s, 0 offen offset:16 sc1' % sr(SDBG, 4))
        s('s_waitcnt vmcnt(0)')
        s('v_readfirstlane_b32 s%d, v4' % S_T0)
        s('s_bcnt1_i32_b32 s%d, s%d' % (S_T0, S_T0))
        s('s_mul_i32 s%d, s%d, 2000' % (S_T0, S_T0))
        s('s_memrealtime s[66:67]')
        s('s_waitcnt lgkmcnt(0)')
        s('L_dly:')
        s('s_memrealtime s[68:69]')
        s('s_waitcnt lgkmcnt(0)')
        s('s_sub_u32 s68, s68, s66')
        s('s_cmp_lt_u32 s68, s%d' % S_T0)
        s('s_cbranch_scc1 L_dly')
    if OPT['diag'] == 5:
        s('s_cmp_lg_u32 s%d, 4' % S_WV)
        s('s_cbranch_scc1 L_end')
        s('s_mov_b64 exec, 1')
        s('s_not_b32 s%d, s%d' % (S_T0, S_KA + 2 * OPT['sa']))
        s('v_mov_b32 v4, s%d' % S_T0)
        s('v_mov_b32 v5, s%d' % (S_KA + 2 * OPT['sb']))
        s('v_mov_b32 v6, 1')
        s('v_mov_b32 v7, 0')
        s('buffer_atomic_umax v4, v7, %s, 0 offen offset:128 sc1' % sr(SDBG, 4))
        s('buffer_atomic_umax v5, v7, %s, 0 offen offset:132 sc1' % sr(SDBG, 4))
        s('s_waitcnt vmcnt(0)')
        s('buffer_atomic_add v6, v7, %s, 0 offen offset:136 sc0 sc1' % sr(SDBG, 4))
        s('s_waitcnt vmcnt(0)')
        s('v_readfirstlane_b32 s%d, v6' % S_T0)
        s('s_cmp_lg_u32 s%d, 255' % S_T0)
        s('s_cbranch_scc1 L_end')
        s('buffer_load_dwordx2 v[4:5], v7, %s, 0 offen offset:128 sc1' % sr(SDBG, 4))
        s('s_waitcnt vmcnt(0)')
        s('v_add_u32 v4, v4, v5')
        s('s_nop 1')
        s('v_readfirstlane_b32 s%d, v4' % S_T0)
        s('s_add_u32 s%d, s%d, 1' % (S_T0, S_T0))
        s('s_mul_i32 s%d, s%d, %d' % (S_T0, S_T0, OPT['mul']))
        s('s_min_u32 s%d, s%d, 200000' % (S_T0, S_T0))
        s('s_memrealtime s[66:67]')
        s('s_waitcnt lgkmcnt(0)')
        s('L_dly:')
        s('s_memrealtime s[68:69]')
        s('s_waitcnt lgkmcnt(0)')
        s('s_sub_u32 s68, s68, s66')
        s('s_cmp_lt_u32 s68, s%d' % S_T0)
        s('s_cbranch_scc1 L_dly')
    if OPT['diag'] == 4:
        s('s_cmp_lg_u32 s2, %d' % OPT['wg'])
        s('s_cbranch_scc1 L_end')
        s('s_cmp_lg_u32 s%d, %d' % (S_WV, OPT['wv']))
        s('s_cbranch_scc1 L_end')
        s('s_sub_u32 s%d, s%d, s%d' % (S_T0, S_KA + 2 * OPT['sb'], S_KA + 2 * OPT['sa']))
        if not OPT['clk']:
            s('s_mul_i32 s%d, s%d, 10' % (S_T0, S_T0))
        s('s_min_u32 s%d, s%d, 200000' % (S_T0, S_T0))
        s('s_memrealtime s[66:67]')
        s('s_waitcnt lgkmcnt(0)')
        s('L_dly:')
        s('s_memrealtime s[68:69]')
        s('s_waitcnt lgkmcnt(0)')
        s('s_sub_u32 s68, s68, s66')
        s('s_cmp_lt_u32 s68, s%d' % S_T0)
        s('s_cbranch_scc1 L_dly')
    s('L_end:')
    s('s_endpgm')
    return s


def main():
    pro, prw, pre = prologue()
    f, fa, fb = lc_role(True)
    q, qa, qb = lc_role(False)
    qo = q_out()
    k, ka, kb, kc = kv_role()
    fpaths, fsegs = phase2b('f', OPT['na'], list(range(8 + OPT['nb'])) + [11, 12, 13])
    kpaths, ksegs = phase2b('k', OPT['kna'], list(range(4 + OPT['kua'] + OPT['kub'])))
    p2segs, p2a, fi = fsegs + ksegs, phase2a(), fin()
    paths = [
        [pro, pre, f, fa, p2a, fi],
        [pro, pre, q, qa, qo, fi],
        [pro, prw, pre, q, qb, qo, fi],
        [pro, prw, pre, k, ka, p2a, fi],
    ]
    paths += [[pro, prw, pre, f, fb] + p + [fi] for p in fpaths] + [[pro, prw, pre, k, x] + p + [fi] for p in kpaths for x in ((kb, kc) if OPT['two'] else (kb,))]
    if OPT['jit']:
        import random
        rnd, seen = random.Random(OPT['jit']), set()
        for p in paths:
            for seg in p:
                if id(seg) in seen:
                    continue
                seen.add(id(seg))
                out = []
                for i in seg:
                    out.append(i)
                    if i.op == 's_barrier' or (i.kind == 'label' and i.text.startswith(('L_ret', 'L_p2'))):
                        j = nspin[0]
                        nspin[0] += 1
                        out += [Ins('s_add_u32 s56, s2, s%d' % S_WV), Ins('s_bitcmp1_b32 0x%x, s56' % rnd.getrandbits(32)),
                                Ins('s_cbranch_scc0 L_j%d' % j), Ins('s_sleep %d' % rnd.choice((2, 5, 12, 30))), Ins('L_j%d:' % j)]
                seg[:] = out
    resolve_waits(paths)
    if OPT['hoist']:
        hoist_m0(paths)
    bad = verify_async(paths)
    assert not bad, '\n'.join(bad)
    n = pad_hazards(paths)
    assert pad_hazards(paths) == 0
    notes = {
        'pro': 'prologue: role decode, first x / weight DMA group',
        'proe': 'shared set-up in the shadow of the first loads',
        'f': 'FFN1 role (128 rows x 224 hidden columns): h = gelu(LN(x) w1 + b1)',
        'fa': 'FFN1, waves 0-3: tiles 0, 2, 4, 6', 'fb': 'FFN1, waves 4-7: row statistics, tiles 1, 3, 5',
        'kv': 'KV role (128 rows x up to 3 heads): phi(k)^T [v | 1], summed over row blocks with float atomics',
        'ka': 'KV, waves 0-3', 'kb': 'KV, waves 4-7', 'kc': 'KV, waves 4-7 of a two-head window',
        'q': 'Q role (128 rows x 8 heads): hand-off initialisation, row statistics, phi(q)',
        'qa': 'Q, waves 0-3', 'qb': 'Q, waves 4-7', 'qo': 'Q: o = phi(q) kv / (phi(q) z + 1e-6)',
        'p2f': 'phase 2 after FFN1, waves 4-7: [h | o] [w2 ; wo] for a 64 x 64 output tile, k split over the waves',
        'p2k': 'phase 2 after KV, waves 4-7', 'p2t': 'phase 2 tail: o wo, cross-wave reduction, residual and bias',
        'p2a': 'phase 2, waves 0-3: hand-off watcher and final reduction', 'slow': 'bounded waiting loops',
    }
    for seg in [pro, pre, f, fa, fb, k, ka, kb, kc, q, qa, qb, qo] + p2segs + [p2a, slow]:
        if seg.name in notes and len(seg):
            seg.insert(0, Ins('; ---- ' + notes[seg.name]))
        elif seg.name.startswith('p2o'):
            seg.insert(0, Ins('; ---- o arrived before unit %s: fetch it under the remaining FFN units' % seg.name[3:]))
    body = render([pro, prw, pre, f, fa, fb, k, ka, kb, kc, q, qa, qb, qo] + p2segs + [p2a, fi, slow])
    head = open('cdna_kernels/%s.s.ref' % NAME).read().split('\n')
    head = [l for l in head if l.startswith(';') and '@launch' not in l]
    head += [
        '; One persistent launch, one workgroup per CU. Phase 1: FFN1 / KV / Q roles on 128-row blocks; LayerNorm is folded',
        '; into the GEMMs (rstd * (x W - mean * colsum(W))). h and o travel through d_ws as MFMA operand fragments with',
        '; write-through stores and flags that the launch zeroes itself (d_debug counts the zeroing workgroups).',
        '; Phase 2: out = x + b2 + [h | o] [w2 ; wo] on 64 x 64 tiles. Every waiting loop is bounded.',
    ]
    out = '\n'.join(head) + '''
; @launch grid=(256,1,1) block=(512,1,1) lds=%d
.amdgcn_target "amdgcn-amd-amdhsa--gfx950"
.text
.globl %s_kernel
.p2align 8
.type %s_kernel,@function
%s_kernel:
L_codebeg:
%s
L_codeend:
.section .rodata,"a"
.p2align 6
.amdhsa_kernel %s_kernel
  .amdhsa_next_free_vgpr 256
  .amdhsa_next_free_sgpr 102
  .amdhsa_accum_offset 256
  .amdhsa_group_segment_fixed_size 0
  .amdhsa_kernarg_size 88
  .amdhsa_user_sgpr_count 2
  .amdhsa_user_sgpr_kernarg_segment_ptr 1
  .amdhsa_system_sgpr_workgroup_id_x 1
.end_amdhsa_kernel
''' % (LDS_BYTES, NAME, NAME, NAME, body, NAME)
    if OPT['x_plain'] & 1:
        out = '\n'.join(l.replace(' sc1', '') if 'buffer_store_dwordx4' in l else l for l in out.split('\n'))
    if OPT['x_plain'] & 2:
        out = '\n'.join(l.replace(' sc1', '') if 'buffer_load_dwordx4' in l else l for l in out.split('\n'))
    if OPT['x_drop'] & 1:
        out = '\n'.join('    s_nop 0' if 'v_mfma_f32_16x16x32' in l else l for l in out.split('\n'))
    if OPT['x_drop'] & 16:
        i, j = out.index('L_kv:'), out.index('L_q:')
        out = out[:i] + '\n'.join('    s_nop 0' if 'v_mfma_f32_16x16x32' in l or 'v_max_f32' in l or 'v_mul_f32' in l else l for l in out[i:j].split('\n')) + out[j:]
    if OPT['x_drop'] & 32:
        j = out.index('L_kv:')
        out = '\n'.join('    s_nop 0' if 'v_mfma_f32_16x16x32' in l or 'v_fma_f32' in l else l for l in out[:j].split('\n')) + out[j:]
    if OPT['x_drop'] & 2:
        out = '\n'.join('    s_nop 0' if 'v_dot2c' in l else l for l in out.split('\n'))
    if OPT['x_drop'] & 4:
        i, j = out.index('L_p2of23:'), out.index('L_p2a:')
        out = out[:i] + '\n'.join('    s_nop 7' if 'v_mfma' in l else l for l in out[i:j].split('\n')) + out[j:]
    if OPT['x_drop'] & 8:
        i = out.index('L_p2of23:')
        out = '\n'.join('    s_nop 7' if 'v_mfma_f32_32x32x16' in l else l for l in out[:i].split('\n')) + out[i:]
    open(sys.argv[1], 'w').write(out)
    print('wrote %s: %d lines, %d pad states' % (sys.argv[1], out.count('\n'), n))


main()
```

```python
import struct
import sys
from asmlib import Seg, Ins, Wait, GAP, interleave, resolve_waits, pad_hazards, verify_async, hoist_m0, render, vr, sr

NAME = 'parallel_sum__linear_attn_block__dense_activation_gelu__prompt'
OPT = dict(lpos=0, t1c=0, obar=1, kah=0, h1=0, dual=0, kl2=0, kl2a=0, early=0, smk=0, smf=0, sel1=1, zpad=16, x_late=0, x_mask=0x08080808, ecarry=0, carry=2, kn4=2, kn5=6, kn6=9, kep=16, s6=1, npre=0, lcs=0, actg=288, two=1, wpos=0, kres=1, kna=3, kne=6, k2=0, qsplit=0, sites=0, kv4=3, kua=2, kub=0, x_free=0, x_freek=0, tf0=2, tfp=45, x_drop=0, gray=0, hoist=1, wj=1, tfat=1, kpa=1, otail=7, oper=3, rmap=4, jit=0, rounds=15, opriv=1, oscal=1, na=5, nb=0, b0=9, xfirst=1, osc=1, ne=1, ub=0, b0f=9, pmix=1, wv=4, back=0, x_wait=0, rot1=6, nlate=1, mul=10, fatom=0, tlb=0, kbar=4, kphi=26, ntail=4, p1at=2, ascal=1, kpf=4, kcut=4, kb0=24, kb1=104, khead=0, kearly=8, qatom=1, batom=1, pkind=1, x_hit=0, gsp=3, eprio=0, aprio=2, aprio2=2, aprio3=2, lb=10, touch=69, tat=4, twat=3, tkat=1, kprio=0, plead=3, x_noa=0, x_nopoll=0, x_noflag=0, x_nost=0, x_plain=0, rot2=1, dep=6, noatom=0, diag=0, p1only=0, sa=0, sb=10, clk=0, wg=0)
for a in sys.argv[2:]:
    k, v = a.split('=')
    OPT[k] = v if k == 'st' else int(v)
STAMPS = OPT.get('st', 'en,2,4,5,6,7,10').split(',')


assert len(STAMPS) <= 7


def f32(x):
    return '0x%08x' % struct.unpack('<I', struct.pack('<f', x))[0]


XS, WQS, W1S = 896, 2688, 3584
ACT_G = OPT['actg'] * 512
KV_OFF = 0x900000
FKV_OFF = 0x910000
FL_OFF = 0x911000
FL_G = 896
FO_OFF = 0x920000
ST_OFF = 0x938000
TS_OFF = 0xA00000
WS_BYTES = 0x10000000
OOB = 0x40000000
R0, R1, R2, MISC = 0, 57344, 114688, 155648
M_ST, M_SY, M_CS, M_R = MISC, MISC + 2048, MISC + 4096, MISC + 7168
LDS_BYTES = 163840
LOG2E = 1.4426950408889634
GC1 = -2.0 * 0.7978845608028654 * LOG2E
GC3 = GC1 * 0.044715
SPIN_LIMIT = 1 << 16

S_WV, S_RW, S_G, S_RB, S_ROLE = 3, 4, 5, 6, 7
SX, SW, SWS, SW2, SWO, SOUT, SB1, SB2, SDBG = 8, 12, 16, 20, 24, 28, 32, 36, 40
S_KA = 44
S_KX, S_KW = 66, 73
S_I2, S_HALF, S_T0, S_T1, S_ONES, S_EPS = 80, 81, 82, 83, 84, 85
S_M0W, S_M0X, S_T3, S_RO, S_H, S_FL = 86, 87, 88, 89, 90, 91
S_HI = 92
S_SPIN, S_T2, S_P, S_LAST, S_PEND, S_L2E = 94, 95, 96, 97, 98, 99
S_PAD = 100
S_B2R, S_QR0, S_QR2, S_A, S_WOR, S_OUTO, S_G0, S_G2 = 58, 59, 60, 61, 62, 63, 64, 65
S_RO3, S_PL = 68, 73
S_AO = 74

V_L16, V_B2, V_X0, V_X1, V_W, V_CSW, V_CSR = 1, 2, 3, 4, 5, 6, 7
V_SEL, V_CS, V_WA, V_XA, V_EXW, V_EXR, V_ST = 8, 12, 20, 28, 32, 36, 38
V_B1 = 16
V_WB, V_RA = 42, 43
V_POLL, V_PA, V_FLO, V_ONE = 44, 45, 46, 47
V_T = 48
V_ACC, V_X, V_WF = 64, 128, 240
V_B2B, V_BA, V_L16B, V_PL = 3, 4, 12, 31
DEP = 6
V_NUM, V_BF, V_AB, V_RES = 16, 48, 128, 192
V_PQ = 80
HND = 49152

slow = Seg('slow')
nspin = [0]


def stamp(s, k):
    if OPT['diag'] and 'C' + str(k) in STAMPS:
        s('s_memtime %s' % sr(S_KA + 2 * STAMPS.index('C' + str(k)), 2))
    if OPT['diag'] and str(k) in STAMPS:
        k = STAMPS.index(str(k))
        s('%s %s' % ('s_memtime' if OPT['diag'] == 2 or OPT['clk'] else 's_memrealtime', sr(S_KA + 2 * k, 2)))


EARLY = ['en', 'ka', 't0', 't1']


def estamp(s, k):
    if OPT['diag'] and k in STAMPS:
        s('%s s[100:101]' % ('s_memtime' if OPT['diag'] == 2 or OPT['clk'] else 's_memrealtime'))
        s('s_waitcnt lgkmcnt(0)')
        s('v_mov_b32 v%d, s100' % (120 + EARLY.index(k)))


class Rebase:
    def __init__(self, regs, base, span):
        self.regs, self.base, self.span = regs, base, span

    def off(self, s, addr):
        if not (self.base <= addr and addr - self.base + self.span <= 65535):
            for r in self.regs:
                s('v_add_u32 v%d, 0x%x, v%d' % (r, (addr - self.base) & 0xffffffff, r))
            self.base = addr
        return addr - self.base


def spin_check(s, vpoll, vexp, vaddr, srd, soff, mask):
    k = nspin[0]
    nspin[0] += 1
    s('v_cmp_le_u32 vcc, %d, v%d' % (vexp, vpoll))
    s('s_andn2_b32 s%d, 0x%x, vcc_lo' % (S_T2, mask))
    s('s_cbranch_scc1 L_slow%d' % k)
    s('L_ret%d:' % k)
    slow('L_slow%d:' % k)
    slow('s_add_u32 s%d, s%d, 1' % (S_SPIN, S_SPIN))
    slow('s_cmp_gt_u32 s%d, 0x%x' % (S_SPIN, SPIN_LIMIT))
    slow('s_cbranch_scc1 L_ret%d' % k)
    slow('buffer_load_dword v%d, v%d, %s, %s offen sc1' % (vpoll, vaddr, sr(srd, 4), soff))
    slow('s_waitcnt vmcnt(0)')
    slow('v_cmp_le_u32 vcc, %d, v%d' % (vexp, vpoll))
    slow('s_nop 1')
    slow('s_andn2_b32 s%d, 0x%x, vcc_lo' % (S_T2, mask))
    slow('s_cbranch_scc1 L_slow%d' % k)
    slow('s_branch L_ret%d' % k)


def poll_base(s):
    s('s_lshr_b32 s%d, s%d, 1' % (S_PL, S_I2))
    s('s_lshl2_add_u32 s%d, s%d, s%d' % (S_PL, S_PL, S_RW))
    s('s_mul_i32 s%d, s%d, %d' % (S_PL, S_PL, FL_G))
    s('s_add_u32 s%d, s%d, 0x%x' % (S_PL, S_PL, FL_OFF))
    s('v_cmp_gt_u32 vcc, 32, v%d' % V_L16)
    s('v_lshlrev_b32 v%d, 3, v%d' % (V_PL, V_L16))
    s('v_cndmask_b32 v%d, v%d, v%d, vcc' % (V_PL, V_FLO, V_PL))


def poll_async(s, k):
    s('buffer_load_dword v%d, v%d, %s, s%d offen offset:%d sc1' % (V_POLL, V_PL, sr(SWS, 4), S_PL, k * 256), ('poll', k))


def stage_check(s, k, miss=None, sync=False, scalar=False):
    if OPT['x_nopoll']:
        return
    j = nspin[0]
    nspin[0] += 1
    mask = 3 if k < 3 else 1
    if sync:
        s('s_branch L_slow%d' % j)
    else:
        s.wait(vm=[('poll', k)])
        s('v_cmp_ne_u32 vcc, 0, v%d' % V_POLL)
        s('s_andn2_b32 s%d, %d, vcc_lo' % (S_T2, mask))
        if miss:
            s('s_cbranch_scc1 %s' % miss)
            return
        s('s_cbranch_scc1 L_slow%d' % j)
    s('L_ret%d:' % j)
    slow('L_slow%d:' % j)
    slow('s_add_u32 s%d, s%d, 1' % (S_SPIN, S_SPIN))
    slow('s_cmp_gt_u32 s%d, 0x%x' % (S_SPIN, SPIN_LIMIT))
    slow('s_cbranch_scc1 L_ret%d' % j)
    if sync and k == 3 and OPT['back']:
        slow('s_sleep %d' % OPT['back'])
    if scalar:
        slow('s_add_u32 s%d, s%d, %d' % (S_T2, S_PL, k * 256))
        slow('s_add_u32 s%d, s%d, %d' % (S_T1, S_PL, k * 256 + (128 if k < 3 else 0)))
        slow('s_buffer_load_dword s%d, %s, s%d glc' % (S_T2, sr(SWS, 4), S_T2))
        if k < 3:
            slow('s_buffer_load_dword s%d, %s, s%d glc' % (S_T1, sr(SWS, 4), S_T1))
        slow('s_waitcnt lgkmcnt(0)')
        if k < 3:
            slow('s_and_b32 s%d, s%d, s%d' % (S_T2, S_T2, S_T1))
        slow('s_cmp_eq_u32 s%d, 0' % S_T2)
    else:
        slow('buffer_load_dword v%d, v%d, %s, s%d offen offset:%d sc1' % (V_POLL, V_PL, sr(SWS, 4), S_PL, k * 256))
        slow('s_waitcnt vmcnt(0)')
        slow('v_cmp_ne_u32 vcc, 0, v%d' % V_POLL)
        slow('s_nop 1')
        slow('s_andn2_b32 s%d, %d, vcc_lo' % (S_T2, mask))
    slow('s_cbranch_scc1 L_slow%d' % j)
    slow('s_branch L_ret%d' % j)


def poll_check(s, k, n, sync=False, atomic=False):
    j = nspin[0]
    nspin[0] += 1
    if OPT['x_nopoll']:
        return
    if sync:
        s('s_branch L_slow%d' % j)
    else:
        s.wait(vm=[('poll', k)])
        s('v_readfirstlane_b32 s%d, v%d' % (S_T2, V_POLL))
        s('s_cmp_lt_u32 s%d, %d' % (S_T2, n))
        s('s_cbranch_scc1 L_slow%d' % j)
    s('L_ret%d:' % j)
    slow('L_slow%d:' % j)
    slow('s_add_u32 s%d, s%d, 1' % (S_SPIN, S_SPIN))
    slow('s_cmp_gt_u32 s%d, 0x%x' % (S_SPIN, SPIN_LIMIT))
    slow('s_cbranch_scc1 L_ret%d' % j)
    if atomic:
        slow('v_mov_b32 v%d, 0' % V_POLL)
        slow('buffer_atomic_add v%d, v%d, %s, s%d offen offset:%d sc0 sc1' % (V_POLL, V_FLO, sr(SWS, 4), S_PL, k * 128))
        slow('s_waitcnt vmcnt(0)')
        slow('v_readfirstlane_b32 s%d, v%d' % (S_T2, V_POLL))
        slow('s_nop 0')
    else:
        slow('s_add_u32 s%d, s%d, %d' % (S_T2, S_PL, k * 128))
        slow('s_buffer_load_dword s%d, %s, s%d glc' % (S_T2, sr(SWS, 4), S_T2))
        slow('s_waitcnt lgkmcnt(0)')
    slow('s_cmp_lt_u32 s%d, %d' % (S_T2, n))
    slow('s_cbranch_scc1 L_slow%d' % j)
    slow('s_branch L_ret%d' % j)


def srd(s, d, nbytes):
    s('s_mov_b32 s%d, 0x%x' % (d + 2, nbytes))
    s('s_mov_b32 s%d, 0x20000' % (d + 3))


XSLOT = [R2, R2 + 16384, R1 + 8192, R1 + 24576, R1 + 40960, R2, R2 + 16384]


def kv_slot(n):
    return ((n + 4) % 9) * 16384


def prologue():
    s, T = Seg('pro'), V_T
    s('s_cmp_ge_u32 s2, 256')
    s('s_cbranch_scc1 L_end')
    estamp(s, 'en')
    if OPT['x_late']:
        s('s_bitcmp1_b32 0x%x, s2' % OPT['x_mask'])
        s('s_cbranch_scc0 L_nolate')
        s('s_sleep %d' % OPT['x_late'])
        s('L_nolate:')
    s('s_load_dwordx2 %s, s[0:1], 0' % sr(SX, 2))
    s('s_load_dwordx2 %s, s[0:1], 8' % sr(SW, 2))
    s('s_load_dwordx2 %s, s[0:1], 32' % sr(S_HI, 2))
    s('v_readfirstlane_b32 s%d, v0' % S_WV)
    s('s_getpc_b64 s[82:83]')
    s('s_lshr_b32 s%d, s2, 3' % S_T2)
    s('s_lshl_b32 s%d, s%d, 11' % (S_P, S_T2))
    s('v_lshl_add_u32 v%d, v0, 2, s%d' % (T, S_P))
    s('v_min_u32 v%d, L_codeend-L_codebeg-64, v%d' % (T, T))
    s('global_load_dword v%d, v%d, s[82:83]' % (V_POLL, T))
    s('s_lshr_b32 s%d, s%d, 6' % (S_WV, S_WV))
    s('v_and_b32 v%d, 63, v0' % T)
    if OPT['rmap'] < 0:
        s('s_and_b32 s%d, s%d, 7' % (S_ROLE, S_T2))
        s('v_lshrrev_b32 v%d, 3, v%d' % (T + 1, T))
        s('s_lshr_b32 s%d, s%d, 3' % (S_I2, S_T2))
    else:
        s('s_add_u32 s%d, s%d, %d' % (S_ROLE, S_T2, 4 * OPT['rmap']))
        s('v_lshrrev_b32 v%d, 3, v%d' % (T + 1, T))
        s('s_bfe_u32 s%d, s%d, 0x30002' % (S_ROLE, S_ROLE))
        s('s_and_b32 s%d, s%d, 3' % (S_I2, S_T2))
    s('v_lshrrev_b32 v%d, 4, v%d' % (T + 3, T))
    s('s_and_b32 s%d, s2, 1' % S_HALF)
    s('v_lshl_add_u32 v%d, s%d, 4, v%d' % (T + 5, S_WV, T + 1))
    s('s_bfe_u32 s%d, s2, 0x20001' % S_P)
    s('v_mul_u32_u24 v%d, %d, v%d' % (T + 5, XS, T + 5))
    s('s_lshl2_add_u32 s%d, s%d, s%d' % (S_RB, S_P, S_I2))
    s('v_xor_b32 v%d, v%d, v%d' % (T + 6, T, T + 3))
    s('s_add_u32 s%d, s%d, s%d' % (S_T2, S_I2, S_ROLE))
    s('v_and_b32 v%d, 7, v%d' % (T + 6, T + 6))
    s('s_and_b32 s%d, s%d, 1' % (S_T2, S_T2))
    s('v_lshl_add_u32 v%d, v%d, 4, v%d' % (V_X0, T + 6, T + 5))
    s('s_lshl2_add_u32 s%d, s%d, s%d' % (S_T2, S_HALF, S_T2))
    s('v_xor_b32 v%d, 64, v%d' % (V_X1, V_X0))
    s('s_lshl1_add_u32 s%d, s%d, s%d' % (S_T2, S_P, S_T2))
    s('v_add_u32 v%d, %d, v%d' % (V_X1, 8 * XS - 1024, V_X1))
    s('s_cmp_ge_u32 s%d, 7' % S_T2)
    s('s_cselect_b32 s%d, 7, 0' % S_T1)
    s('s_sub_u32 s%d, s%d, s%d' % (S_T2, S_T2, S_T1))
    s('s_mul_i32 s%d, s%d, %d' % (S_H, S_RB, 128 * XS))
    s('s_lshl_b32 s%d, s%d, 7' % (S_KX, S_T2))
    s('s_add_u32 s%d, s%d, s%d' % (S_KX, S_KX, S_H))
    s('s_lshl_b32 s%d, s%d, 11' % (S_M0X, S_WV))
    s('s_bitcmp1_b32 0x70, s%d' % S_ROLE)
    s('s_cselect_b32 s%d, 4, 7' % S_T3)
    s('s_lshl_b32 s%d, s%d, 14' % (S_T3, S_T3))
    s('s_add_u32 m0, s%d, s%d' % (S_T3, S_M0X))
    srd(s, SX, 2048 * XS)
    assert XSLOT[0] == 7 << 14 and kv_slot(0) == 4 << 14
    if OPT['touch'] & 8:
        s('s_lshl3_add_u32 s%d, s%d, s%d' % (S_T3, S_HALF, S_ROLE))
        s('v_min_u32 v%d, 6, v%d' % (T + 2, T))
        s('s_lshl3_add_u32 s%d, s%d, s%d' % (S_T3, S_T3, S_WV))
        s('v_lshlrev_b32 v%d, 7, v%d' % (T + 2, T + 2))
        s('s_mul_i32 s%d, s%d, %d' % (S_T3, S_T3, XS))
        s('s_add_u32 s%d, s%d, s%d' % (S_T3, S_T3, S_H))
    if OPT['xfirst']:
        s('s_waitcnt lgkmcnt(0)')
        estamp(s, 'ka')
        s('buffer_load_dwordx4 v%d, %s, s%d offen lds' % (V_X0, sr(SX, 4), S_KX), 't0')
        s('buffer_load_dwordx4 v%d, %s, s%d offen offset:1024 lds' % (V_X1, sr(SX, 4), S_KX), 't0')
        if OPT['touch'] & 8:
            s('buffer_load_dword v%d, v%d, %s, s%d offen' % (V_EXW, T + 2, sr(SX, 4), S_T3))
    s('s_and_b32 s%d, s%d, 3' % (S_RW, S_WV))
    s('s_lshr_b32 s%d, s%d, 2' % (S_G, S_WV))
    s('s_lshl_b32 s%d, s%d, 11' % (S_M0W, S_RW))
    s('s_mul_i32 s%d, s%d, 3' % (S_T0, S_HALF))
    s('v_lshlrev_b32 v%d, 2, v%d' % (T + 4, T + 3))
    s('s_add_u32 s%d, s%d, s%d' % (S_T0, S_T0, S_ROLE))
    s('v_xor_b32 v%d, v%d, v%d' % (T + 4, T, T + 4))
    s('s_lshl_b32 s%d, s%d, 7' % (S_T0, S_T0))
    s('s_add_u32 s%d, s%d, %d' % (S_T0, S_T0, XS - 512))
    s('s_lshl2_add_u32 s%d, s%d, s%d' % (S_P, S_HALF, S_ROLE))
    s('s_and_b32 s%d, s%d, 1' % (S_PEND, S_ROLE))
    s('s_lshl_b32 s%d, s%d, 6' % (S_PEND, S_PEND))
    s('s_movk_i32 s%d, %d' % (S_LAST, WQS))
    s('s_cmp_lt_u32 s%d, 4' % S_ROLE)
    s('s_cselect_b32 s%d, %d, s%d' % (S_LAST, W1S, S_LAST))
    s('s_cselect_b32 s%d, s%d, s%d' % (S_P, S_P, S_HALF))
    s('s_cselect_b32 s%d, s%d, 0' % (S_PEND, S_PEND))
    s('s_mul_i32 s%d, s%d, 448' % (S_T1, S_P))
    s('s_add_u32 s%d, s%d, s%d' % (S_T1, S_T1, S_PEND))
    s('s_lshl_b32 s%d, s%d, 6' % (S_RO, S_LAST))
    s('s_mul_i32 s%d, s%d, s%d' % (S_KW, S_T2, S_RO))
    s('s_mul_i32 s%d, s%d, 448' % (SW + 2, S_LAST))
    s('s_mov_b32 s%d, 0x20000' % (SW + 3))
    s('s_lshl_b32 s%d, s%d, 1' % (S_T2, S_RW))
    s('s_add_u32 s%d, s%d, %d' % (S_FL, S_M0X, kv_slot(1)))
    s('s_bitcmp1_b32 0x70, s%d' % S_ROLE)
    s('s_cselect_b32 s%d, s%d, s%d' % (S_T0, S_T0, S_T1))
    s('s_cselect_b32 s%d, s%d, s%d' % (S_T2, S_WV, S_T2))
    s('s_cselect_b32 s%d, s%d, s%d' % (S_FL, S_FL, S_M0W))
    s('s_cselect_b32 s%d, 4, 3' % S_T1)
    s('s_cselect_b32 s%d, 1, s%d' % (S_SPIN, S_G))
    s('v_lshrrev_b32 v%d, s%d, v%d' % (T + 5, S_T1, T))
    s('v_lshl_add_u32 v%d, s%d, 3, v%d' % (T + 5, S_T2, T + 5))
    s('v_bfe_u32 v%d, v%d, 0, s%d' % (T + 6, T + 4, S_T1))
    s('s_lshr_b32 s%d, s%d, s%d' % (S_T1, S_RO, S_T1))
    s('v_mul_u32_u24 v%d, s%d, v%d' % (T + 5, S_LAST, T + 5))
    s('s_sub_u32 s%d, s%d, 1024' % (S_T1, S_T1))
    s('v_lshl_add_u32 v%d, v%d, 4, s%d' % (T + 6, T + 6, S_T0))
    s('v_add_u32 v%d, v%d, v%d' % (V_W, T + 5, T + 6))
    s('s_cmp_lt_u32 s%d, 4' % S_ROLE)
    s('v_add_u32 v%d, s%d, v%d' % (V_WB, S_T1, V_W))
    if not OPT['xfirst']:
        s('s_waitcnt lgkmcnt(0)')
        estamp(s, 'ka')
        s('buffer_load_dwordx4 v%d, %s, s%d offen lds' % (V_X0, sr(SX, 4), S_KX), 't0')
        s('buffer_load_dwordx4 v%d, %s, s%d offen offset:1024 lds' % (V_X1, sr(SX, 4), S_KX), 't0')
        if OPT['touch'] & 8:
            s('buffer_load_dword v%d, v%d, %s, s%d offen' % (V_EXW, T + 2, sr(SX, 4), S_T3))
    s('s_cselect_b64 %s, %s, %s' % (sr(SW, 2), sr(S_HI, 2), sr(SW, 2)))
    s('s_mov_b32 m0, s%d' % S_FL)
    s('s_cmp_eq_u32 s%d, 0' % S_SPIN)
    s('s_cbranch_scc1 L_now')
    w = Seg('prow')
    w('buffer_load_dwordx4 v%d, %s, s%d offen lds' % (V_W, sr(SW, 4), S_KW), 't0')
    w('buffer_load_dwordx4 v%d, %s, s%d offen offset:1024 lds' % (V_WB, sr(SW, 4), S_KW), 't0')
    e = Seg('proe')
    e('L_now:')
    if OPT['touch'] & 16:
        e('v_min_u32 v%d, 55, v%d' % (T + 2, T))
        e('s_mul_i32 s%d, s%d, 28' % (S_T3, S_RB))
        e('v_lshrrev_b32 v%d, 1, v%d' % (T + 5, T + 2))
        e('s_mul_i32 s%d, s%d, s%d' % (S_T3, S_T3, S_LAST))
        e('v_mul_u32_u24 v%d, s%d, v%d' % (T + 5, S_LAST, T + 5))
        e('s_add_u32 s%d, s%d, s%d' % (S_T3, S_T3, S_T0))
        e('v_and_b32 v%d, 1, v%d' % (T + 2, T + 2))
        e('s_lshl_b32 s%d, s%d, 28' % (S_T2, S_WV))
        e('v_lshl_add_u32 v%d, v%d, 7, v%d' % (T + 2, T + 2, T + 5))
        e('s_add_u32 s%d, s%d, s%d' % (S_T3, S_T3, S_T2))
        e('buffer_load_dword v%d, v%d, %s, s%d offen' % (V_EXW, T + 2, sr(SW, 4), S_T3))
    estamp(e, 't0')
    for d, off in ((SWS, 80), (SB1, 40), (SDBG, 72), (SW2, 48), (SWO, 16), (SB2, 56), (SOUT, 64)):
        e('s_load_dwordx2 %s, s[0:1], %d' % (sr(d, 2), off))
    ess = Seg()
    essential(ess)
    w1, e1 = Seg('prow1'), Seg('proe1')
    if OPT['t1c']:
        k = OPT['t1c']
        e.extend(ess[:k])
        e('s_bitcmp1_b32 0x70, s%d' % S_ROLE)
        e('s_cselect_b32 s%d, 6, 8' % S_T3)
        e('s_cselect_b32 s%d, 4, 1' % S_T1)
        e('s_lshl_b32 s%d, s%d, 14' % (S_T3, S_T3))
        e('s_add_u32 m0, s%d, s%d' % (S_T3, S_M0X))
        e('s_lshl_b32 s%d, s%d, 13' % (S_T1, S_T1))
        assert XSLOT[1] == 8 << 14 and kv_slot(2) == 6 << 14 and kv_slot(3) - kv_slot(1) == 4 << 13
        e('buffer_load_dwordx4 v%d, %s, s%d offen lds' % (V_X0, sr(SX, 4), S_KX + 1), 't1')
        e('buffer_load_dwordx4 v%d, %s, s%d offen offset:1024 lds' % (V_X1, sr(SX, 4), S_KX + 1), 't1')
        e('s_add_u32 m0, s%d, s%d' % (S_FL, S_T1))
        e('s_cmp_eq_u32 s%d, 0' % S_SPIN)
        e('s_cbranch_scc1 L_now1')
        w1('buffer_load_dwordx4 v%d, %s, s%d offen lds' % (V_W, sr(SW, 4), S_KW + 1), 't1')
        w1('buffer_load_dwordx4 v%d, %s, s%d offen offset:1024 lds' % (V_WB, sr(SW, 4), S_KW + 1), 't1')
        e1('L_now1:')
        e1.extend(ess[k:])
    else:
        e1.extend(ess)
    e0, e = e, e1
    e('s_cmp_ge_u32 s%d, 7' % S_ROLE)
    e('s_cbranch_scc1 L_q')
    e('s_cmp_ge_u32 s%d, 4' % S_ROLE)
    e('s_cbranch_scc1 L_kv')
    return s, w, e0, w1, e


def zipper(a, b):
    out = []
    for k in range(max(len(a), len(b))):
        out += a[k:k + 1] + b[k:k + 1]
    return out


def essential(z):
    T = V_T
    k, s = Seg(), Seg()
    k('s_add_u32 s%d, s%d, %d' % (S_T2, S_H, XS))
    for c in range(1, 7):
        k('s_add_u32 s%d, s%d, 128' % (S_KX + c, S_KX + c - 1))
        k('s_add_u32 s%d, s%d, s%d' % (S_KW + c, S_KW + c - 1, S_RO))
        k('s_cmp_eq_u32 s%d, s%d' % (S_KX + c, S_T2))
        k('s_cselect_b32 s%d, s%d, s%d' % (S_KX + c, S_H, S_KX + c))
        k('s_cselect_b32 s%d, 0, s%d' % (S_KW + c, S_KW + c))
    k('s_mov_b32 s%d, 0x3f803f80' % S_ONES)
    s('v_lshlrev_b32 v%d, 4, v%d' % (V_L16, T))
    s('v_and_b32 v%d, 1, v%d' % (T + 7, T + 3))
    s('v_and_b32 v%d, 31, v%d' % (T + 8, T))
    s('v_lshrrev_b32 v%d, 5, v%d' % (T + 9, T))
    s('v_bfe_u32 v%d, v%d, 2, 2' % (T + 10, T))
    s('v_and_b32 v%d, 3, v%d' % (T + 11, T))
    s('v_lshl_add_u32 v%d, s%d, 1, v%d' % (T + 12, S_RW, T + 9))
    s('v_bfe_u32 v%d, v%d, 1, 3' % (T + 5, T))
    s('v_xor_b32 v%d, v%d, v%d' % (T + 5, T + 12, T + 5))
    s('v_lshl_add_u32 v%d, s%d, 5, v%d' % (T + 13, S_RW, T + 8))
    s('v_lshlrev_b32 v%d, 7, v%d' % (V_XA, T + 13))
    s('v_lshl_add_u32 v%d, v%d, 4, v%d' % (V_XA, T + 5, V_XA))
    for j in range(1, 4):
        s('v_xor_b32 v%d, %d, v%d' % (V_XA + j, j << 5, V_XA))
    s('v_lshl_add_u32 v%d, v%d, 3, v%d' % (T + 12, T + 12, T + 10))
    s('v_lshl_add_u32 v%d, v%d, 2, v%d' % (T + 14, T + 7, T + 11))
    if OPT['sel1']:
        s('v_and_b32 v%d, 7, v%d' % (T + 5, T + 4))
        s('v_mov_b32 v%d, 0x3f803f80' % (T + 6))
        s('v_cmp_eq_u32 vcc, 0, v%d' % (T + 5))
    else:
        s('v_and_b32 v%d, 1, v%d' % (T + 5, T + 10))
        s('v_mov_b32 v%d, 0x3f803f80' % (T + 6))
        s('v_cmp_eq_u32 vcc, v%d, v%d' % (T + 5, T + 7))
    for j in range(4):
        s('v_mov_b32 v%d, 0' % (V_ST + j))
    for j in range(4):
        s('v_cndmask_b32 v%d, 0, v%d, vcc' % (V_SEL + j, T + 6))
    s('v_mov_b32 v%d, 0x%x' % (V_FLO, OOB))
    s('v_cmp_eq_u32 vcc, 0, v%d' % T)
    s('v_mov_b32 v%d, 1' % V_ONE)
    s('v_mov_b32 v%d, 0' % (V_EXW + 1))
    s('v_cndmask_b32 v%d, v%d, 0, vcc' % (V_FLO, V_FLO))
    z.extend(zipper(list(k), list(s)))


def deferred(kv):
    s, T = Seg(), V_T
    for k in EARLY:
        if OPT['diag'] and k in STAMPS:
            s('v_readfirstlane_b32 s%d, v%d' % (S_KA + 2 * STAMPS.index(k), 120 + EARLY.index(k)))
    srd(s, SW2, 1792 * XS)
    srd(s, SWO, 448 * XS)
    srd(s, SOUT, 2048 * XS)
    srd(s, SB2, 448 * 2)
    s('s_mov_b32 s%d, %s' % (S_EPS, f32(1e-6)))
    s('s_mov_b32 s%d, %s' % (S_L2E, f32(LOG2E)))
    s('s_mov_b32 s%d, 0' % S_HI)
    s('s_mov_b32 s%d, -1' % (S_HI + 1))
    if kv:
        s('s_mov_b32 s%d, 0xf0000000' % S_PAD)
        s('s_mov_b32 s%d, 0xf0000000' % (S_PAD + 1))
        s('v_mov_b32 v%d, 0' % (V_EXW + 3))
    s('s_mov_b32 s%d, 0' % S_SPIN)
    s('v_and_b32 v%d, 7, v%d' % (T + 4, T + 4))
    s('v_mul_u32_u24 v%d, %d, v%d' % (V_B2, XS, T + 1))
    s('v_lshl_add_u32 v%d, v%d, 4, v%d' % (V_B2, T + 4, V_B2))
    if kv:
        s('s_mov_b32 s%d, %d' % (S_T1, M_CS))
    else:
        s('s_lshl_b32 s%d, s%d, 9' % (S_T1, S_G))
        s('s_add_u32 s%d, s%d, %d' % (S_T1, S_T1, M_CS))
    s('v_lshl_add_u32 v%d, v%d, 4, s%d' % (V_CSR, T + 8, S_T1))
    s('v_lshl_add_u32 v%d, s%d, 2, v%d' % (V_CSW, S_RW, V_CSR))
    s('s_lshl2_add_u32 s%d, s%d, %d' % (S_T1, S_WV, M_SY))
    s('v_mov_b32 v%d, s%d' % (V_PA, S_T1))
    for k in ((0, 128, 160, 192, 224) if kv else (0,)):
        s('ds_write_b32 v%d, v%d offset:%d' % (V_PA, V_EXW + 1, k))
    if not kv:
        s('v_lshlrev_b32 v%d, 2, v%d' % (V_EXR + 1, T + 13))
        s('v_add_u32 v%d, %d, v%d' % (V_EXR, M_ST, V_EXR + 1))
    s('s_and_b32 s%d, s2, 7' % S_T1)
    s('s_lshl2_add_u32 s%d, s%d, s%d' % (S_I2, S_T1, S_I2))
    if OPT['rot2'] == 2:
        s('s_add_u32 s%d, s%d, s%d' % (S_T1, S_I2, S_ROLE))
    elif OPT['rot2'] == 3:
        s('s_add_u32 s%d, s%d, s%d' % (S_T1, S_I2, S_ROLE))
        s('s_and_b32 s%d, s%d, 3' % (S_T1, S_T1))
    elif OPT['rot2'] == 4:
        s('s_add_u32 s%d, s%d, s%d' % (S_T1, S_I2, S_ROLE))
        s('s_and_b32 s%d, s%d, 1' % (S_T1, S_T1))
    else:
        s('s_lshl1_add_u32 s%d, s%d, s%d' % (S_T1, S_I2, S_ROLE))
    s('s_and_b32 s%d, s%d, 3' % (S_RO, S_T1))
    s('s_and_b32 s%d, s%d, 4' % (S_T1, S_T1))
    s('s_lshl2_add_u32 s%d, s%d, s%d' % (S_RO, S_T1, S_RO))
    if not OPT['rot2']:
        s('s_mov_b32 s%d, 0' % S_RO)
    return s


def tlb_warm(s):
    if not OPT['tlb']:
        return
    T = V_T
    s('s_cmp_eq_u32 s%d, 0' % S_WV)
    s('s_cselect_b32 s%d, 128, 0x%x' % (S_T1, OOB))
    for r in (SDBG, SW2, SWO, SB2, SOUT):
        s('buffer_load_dword v%d, v%d, %s, s%d offen' % (T + 15, V_FLO, sr(r, 4), S_T1))
    s('v_lshlrev_b32 v%d, 17, v%d' % (T + 5, V_L16))
    s('v_min_u32 v%d, 0x%x, v%d' % (T + 5, 0x9f0000, T + 5))
    s('buffer_load_dword v%d, v%d, %s, s%d offen' % (T + 15, T + 5, sr(SWS, 4), S_T1))


def dma_x(s, c, addr, tag):
    s('s_add_u32 m0, s%d, %d' % (S_M0X, addr))
    s('buffer_load_dwordx4 v%d, %s, s%d offen lds' % (V_X0, sr(SX, 4), S_KX + c), tag)
    s('buffer_load_dwordx4 v%d, %s, s%d offen offset:1024 lds' % (V_X1, sr(SX, 4), S_KX + c), tag)


def dma_w(s, m0base, c, addr, tag):
    s('s_add_u32 m0, s%d, %d' % (m0base, addr))
    s('buffer_load_dwordx4 v%d, %s, s%d offen lds' % (V_W, sr(SW, 4), S_KW + c), tag)
    s('buffer_load_dwordx4 v%d, %s, s%d offen offset:1024 lds' % (V_WB, sr(SW, 4), S_KW + c), tag)


def groups(z):
    out, cur = [], []
    for i in z:
        cur.append(i)
        if i.kind == 'vmem':
            out.append(cur)
            cur = []
    if cur:
        out.append(cur)
    return out


def mix(main, grp, lo=0.0, hi=1.0):
    main = [i for i in main if i is not GAP]
    out, k, n = [], 0, len(main)
    for idx, i in enumerate(main):
        while k < len(grp) and idx >= n * (lo + (hi - lo) * k / len(grp)):
            out.extend(grp[k])
            k += 1
        out.append(i)
    for g in grp[k:]:
        out.extend(g)
    return out


def barrier(z, vm=None, name=None):
    if name:
        stamp(z, name + 'a')
    z.wait(vm=vm, lgkm='all')
    if name:
        stamp(z, name + 'b')
    z('s_barrier')


BLK = [0, 4, 1, 5, 2, 6, 3]


def unit_ks(u):
    return 4 * BLK[u >> 2] + (u & 3)


R3 = R1 + 28672
S_QR3 = 100
V_W3, V_WA3 = 125, 126
V_B2S = 0
BA = [4, 5, 6, 7, 13, 15]
RING = [11]


def unit_loc(u):
    u %= RING[0]
    if u < 5:
        return S_QR2, 1, u * 2048
    if u < RING[0] - 6:
        return S_QR3, 2, (u - 5) * 2048
    return S_QR0, 0, (u - RING[0] + 6) * 2048


def p2_setup(s):
    S_T0 = S_T1
    s('s_lshl_b32 s%d, s%d, 7' % (S_T0, S_ROLE))
    s('s_mul_i32 s%d, s%d, %d' % (S_B2R, S_RW, 448 * XS))
    s('s_add_u32 s%d, s%d, s%d' % (S_B2R, S_B2R, S_T0))
    s('s_lshr_b32 s%d, s%d, 1' % (S_WOR, S_RW))
    s('s_mul_i32 s%d, s%d, 6' % (S_WOR, S_WOR))
    s('s_add_u32 s%d, s%d, s%d' % (S_WOR, S_WOR, S_RW))
    s('s_mul_i32 s%d, s%d, %d' % (S_WOR, S_WOR, 28 * XS))
    s('s_add_u32 s%d, s%d, s%d' % (S_WOR, S_WOR, S_T0))
    s('s_mul_i32 s%d, s%d, %d' % (S_OUTO, S_I2, 64 * XS))
    s('s_add_u32 s%d, s%d, s%d' % (S_OUTO, S_OUTO, S_T0))
    s('s_mul_i32 s%d, s%d, 12288' % (S_QR0, S_RW))
    s('s_mul_i32 s%d, s%d, 10240' % (S_QR2, S_RW))
    s('s_add_u32 s%d, s%d, %d' % (S_QR2, S_QR2, R2))
    if RING[0] == 14:
        s('s_mul_i32 s%d, s%d, 6144' % (S_QR3, S_RW))
        s('s_add_u32 s%d, s%d, %d' % (S_QR3, S_QR3, R3))
    s('s_mul_i32 s%d, s%d, %d' % (S_A, S_I2, 2 * ACT_G))


def b2b_setup(s):
    s('v_add_u32 v%d, %d, v%d' % (V_B2B, 8 * XS - 1024, V_B2))


def touch_w(s, ffn, junk=127):
    if not OPT['touch'] & 1:
        return
    T = V_T
    s('s_and_b32 s%d, s%d, 3' % (S_T2, S_ROLE))
    s('s_lshl2_add_u32 s%d, s%d, s%d' % (S_T2, S_RB, S_T2))
    s('s_lshl3_add_u32 s%d, s%d, s%d' % (S_T2, S_T2, S_WV))
    s('s_mul_i32 s%d, s%d, %d' % (S_T2, S_T2, W1S if ffn else WQS))
    s('s_mul_i32 s%d, s%d, %d' % (S_T3, S_HALF, 1792 if ffn else 384))
    s('s_add_u32 s%d, s%d, s%d' % (S_T2, S_T2, S_T3))
    if ffn:
        s('v_min_u32 v%d, 13, v%d' % (T + 2, T))
    else:
        s('v_min_u32 v%d, 11, v%d' % (T + 2, T))
        s('v_lshrrev_b32 v%d, 2, v%d' % (T + 15, T + 2))
        s('v_mad_u32_u24 v%d, v%d, 3, v%d' % (T + 2, T + 15, T + 2))
    s('v_lshlrev_b32 v%d, 7, v%d' % (T + 2, T + 2))
    s('buffer_load_dword v%d, v%d, %s, s%d offen' % (junk, T + 2, sr(SW, 4), S_T2))


def touch_qv(s, junk=127):
    T = V_T
    s('s_lshl3_add_u32 s%d, s%d, s%d' % (S_T2, S_RB, S_WV))
    s('s_mul_i32 s%d, s%d, %d' % (S_T2, S_T2, 4 * WQS))
    s('s_mul_i32 s%d, s%d, 384' % (S_T3, S_HALF))
    s('s_add_u32 s%d, s%d, s%d' % (S_T2, S_T2, S_T3))
    s('v_min_u32 v%d, 31, v%d' % (T + 2, T))
    s('v_lshrrev_b32 v%d, 3, v%d' % (T + 15, T + 2))
    s('v_mad_u32_u24 v%d, v%d, 13, v%d' % (T + 15, T + 15, T + 2))
    s('v_bfe_u32 v%d, v%d, 2, 1' % (T + 2, T + 2))
    s('v_mad_u32_u24 v%d, v%d, 10, v%d' % (T + 2, T + 2, T + 15))
    s('v_lshlrev_b32 v%d, 7, v%d' % (T + 2, T + 2))
    s('buffer_load_dword v%d, v%d, %s, s%d offen' % (junk, T + 2, sr(SW, 4), S_T2))


def touch_ffn(s, t, junk=127):
    s('s_lshl3_add_u32 s%d, s%d, s%d' % (S_T2, S_RB, S_P))
    s('s_lshl2_add_u32 s%d, s%d, s%d' % (S_T2, S_T2, S_RW))
    s('v_min_u32 v%d, %d, v%d' % (t, 24 * 16, V_L16))
    s('s_mul_i32 s%d, s%d, %d' % (S_T3, S_T2, 25 * 128))
    s('v_lshlrev_b32 v%d, 3, v%d' % (t, t))
    s('buffer_load_dword v%d, v%d, %s, s%d offen' % (junk, t, sr(SW2, 4), S_T3))
    s('v_min_u32 v%d, %d, v%d' % (t, 6 * 128, t))
    s('s_mul_i32 s%d, s%d, %d' % (S_T3, S_T2, 7 * 128))
    s('buffer_load_dword v%d, v%d, %s, s%d offen' % (junk, t, sr(SWO, 4), S_T3))


def touch_fl2(s, h, t, junk=127):
    k = h - OPT['tf0']
    if not OPT['touch'] & 256 or not 0 <= k < 4 or not OPT['rounds'] >> k & 1:
        return
    s('s_add_u32 s%d, s2, %d' % (S_T3, k))
    s('s_and_b32 s%d, s%d, 3' % (S_T3, S_T3))
    s('s_and_b32 s%d, s%d, 3' % (S_T2, S_I2))
    s('s_lshl2_add_u32 s%d, s%d, s%d' % (S_T3, S_T3, S_T2))
    s('s_lshl2_add_u32 s%d, s%d, s%d' % (S_T3, S_T3, S_ROLE))
    s('s_lshl2_add_u32 s%d, s%d, s%d' % (S_T3, S_T3, S_RW))
    s('v_min_u32 v%d, %d, v%d' % (t, 48 * 16, V_L16))
    s('s_mul_i32 s%d, s%d, %d' % (S_T3, S_T3, 7 * XS))
    s('v_lshlrev_b32 v%d, 3, v%d' % (t, t))
    s('buffer_load_dword v%d, v%d, %s, s%d offen' % (junk, t, sr(SW2, 4), S_T3))


def touch_w2(s):
    if not OPT['touch'] & 2:
        return
    T = V_T
    s('s_lshl3_add_u32 s%d, s2, s%d' % (S_T2, S_WV))
    s('s_mul_i32 s%d, s%d, %d' % (S_T2, S_T2, XS))
    s('v_min_u32 v%d, 6, v%d' % (T + 2, T))
    s('v_lshlrev_b32 v%d, 7, v%d' % (T + 2, T + 2))
    s('s_sub_u32 s%d, %d, s%d' % (S_T3, 2047 * XS, S_T2))
    s('buffer_load_dword v%d, v%d, %s, s%d offen' % (V_POLL, T + 2, sr(SW2, 4), S_T2))
    s('buffer_load_dword v%d, v%d, %s, s%d offen' % (V_POLL, T + 2, sr(SWO, 4), S_T3))


def touch_kv(s):
    if not OPT['touch'] & 4:
        return
    T = V_T + 8
    s('s_mul_i32 s%d, s%d, 6' % (S_T2, S_RB))
    s('s_add_u32 s%d, s%d, s%d' % (S_T2, S_T2, S_P))
    s('s_lshl2_add_u32 s%d, s%d, s%d' % (S_T2, S_T2, S_RW))
    s('v_min_u32 v%d, %d, v%d' % (T, 32 * 16, V_L16))
    s('s_mul_i32 s%d, s%d, %d' % (S_T3, S_T2, 33 * 128))
    s('v_lshlrev_b32 v%d, 3, v%d' % (T, T))
    s('buffer_load_dword v%d, v%d, %s, s%d offen' % (T + 1, T, sr(SW2, 4), S_T3))
    s('v_min_u32 v%d, %d, v%d' % (T, 8 * 128, T))
    s('s_mul_i32 s%d, s%d, %d' % (S_T3, S_T2, 9 * 128))
    s('buffer_load_dword v%d, v%d, %s, s%d offen' % (T + 1, T, sr(SWO, 4), S_T3))


def touch_l2(s, r, t):
    if not OPT['touch'] & 32 or not OPT['rounds'] >> r & 1:
        return
    s('s_add_u32 s%d, s2, %d' % (S_T3, r))
    s('s_and_b32 s%d, s%d, 3' % (S_T3, S_T3))
    s('s_mul_i32 s%d, s%d, 49' % (S_T3, S_T3))
    s('s_lshr_b32 s%d, s2, 6' % S_T2)
    s('s_mul_i32 s%d, s%d, 3' % (S_T2, S_T2))
    s('s_add_u32 s%d, s%d, s%d' % (S_T2, S_T2, S_ROLE))
    s('s_lshl2_add_u32 s%d, s%d, s%d' % (S_T2, S_T2, S_RW))
    s('s_add_u32 s%d, s%d, s%d' % (S_T3, S_T3, S_T2))
    s('s_sub_u32 s%d, s%d, 16' % (S_T3, S_T3))
    s('v_lshlrev_b32 v%d, 3, v%d' % (t, V_L16))
    s('s_lshl_b32 s%d, s%d, 13' % (S_T3, S_T3))
    s('buffer_load_dword v%d, v%d, %s, s%d offen' % (t, t, sr(SW2, 4), S_T3))


def touch_wo(s, t):
    if not OPT['touch'] & (32 | 256 | 512):
        return
    s('s_and_b32 s%d, s%d, 3' % (S_T2, S_I2))
    s('s_lshl3_add_u32 s%d, s%d, s%d' % (S_T2, S_T2, S_WV))
    s('v_min_u32 v%d, %d, v%d' % (t, 48 * 16, V_L16))
    s('s_mul_i32 s%d, s%d, %d' % (S_T2, S_T2, 14 * XS))
    s('v_lshlrev_b32 v%d, 3, v%d' % (t, t))
    s('s_add_u32 s%d, s%d, %d' % (S_T3, S_T2, 7 * XS))
    s('buffer_load_dword v%d, v%d, %s, s%d offen' % (t + 1, t, sr(SWO, 4), S_T2))
    s('buffer_load_dword v%d, v%d, %s, s%d offen' % (t + 1, t, sr(SWO, 4), S_T3))


def ks_dyn(s, dst, u):
    if u < 24:
        s('s_xor_b32 s%d, s%d, %d' % (dst, S_RO, unit_ks(u)))
    else:
        s('s_and_b32 s%d, s%d, 3' % (dst, S_RO))
        s('s_xor_b32 s%d, s%d, %d' % (dst, dst, unit_ks(u)))


def dma_b2(s, u):
    base, _, off = unit_loc(u)
    if u < 28:
        ks_dyn(s, S_T3, u)
        if OPT['x_hit'] & 2:
            s('s_and_b32 s%d, s%d, 7' % (S_T3, S_T3))
        s('s_add_u32 m0, s%d, %d' % (base, off))
        s('s_mul_i32 s%d, s%d, %d' % (S_T3, S_T3, 16 * XS))
        s('s_add_u32 s%d, s%d, s%d' % (S_T3, S_T3, S_B2R))
        s('buffer_load_dwordx4 v%d, %s, s%d offen lds' % (V_B2, sr(SW2, 4), S_T3), ('b', u))
        s('buffer_load_dwordx4 v%d, %s, s%d offen offset:1024 lds' % (V_B2B, sr(SW2, 4), S_T3), ('b', u))
        return
    s('s_add_u32 m0, s%d, %d' % (base, off))
    for h in range(2):
        p, r = divmod(2 * (u - 28) + h, 7)
        row = 112 * p + (8 * r if r <= 3 else 56 + 8 * (r - 4))
        s('s_add_u32 s%d, s%d, %d' % (S_T3, S_WOR, row * XS - h * 1024))
        s('buffer_load_dwordx4 v%d, %s, s%d offen offset:%d lds' % (V_B2S if r == 3 else V_B2, sr(SWO, 4), S_T3, h * 1024), ('b', u))


V_OUT, V_RD, V_U = 8, 9, 248


def res_load(R):
    s = Seg()
    s('v_lshrrev_b32 v%d, 3, v0' % (R + 8))
    s('v_and_b32 v%d, 0x70, v%d' % (R + 9, V_L16))
    s('v_mul_u32_u24 v%d, %d, v%d' % (R + 8, XS, R + 8))
    s('s_lshl_b32 s%d, s%d, 7' % (S_T2, S_ROLE))
    s('v_add_u32 v%d, v%d, v%d' % (R + 8, R + 8, R + 9))
    s('buffer_load_dwordx4 %s, v%d, %s, s%d offen' % (vr(R, 4), R + 8, sr(SX, 4), S_OUTO), 'res')
    s('buffer_load_dwordx4 %s, v%d, %s, s%d offen' % (vr(R + 4, 4), R + 9, sr(SB2, 4), S_T2), 'res')
    return s


def res_unpack(R):
    z, U = Seg(), V_U
    z('v_mov_b32 v%d, v%d' % (V_OUT, R + 8))
    z.wait(vm='res')
    for k in range(4):
        z('v_lshlrev_b32 v%d, 16, v%d' % (U + 2 * k, R + k))
        z('v_and_b32 v%d, 0xffff0000, v%d' % (U + 2 * k + 1, R + k))
        z('v_lshlrev_b32 v%d, 16, v%d' % (R + k, R + 4 + k))
        z('v_and_b32 v%d, 0xffff0000, v%d' % (R + 4 + k, R + 4 + k))
        z('v_add_f32 v%d, v%d, v%d' % (U + 2 * k, U + 2 * k, R + k))
        z('v_add_f32 v%d, v%d, v%d' % (U + 2 * k + 1, U + 2 * k + 1, R + 4 + k))
    return z


RES_F, RES_KA, RES_KB = 108, V_X + 84, V_ACC


def abuf(u, rg):
    return V_AB + 8 * (u % DEP) + 4 * rg if u < 28 else V_AB + 64 + 8 * (u - 28) + 4 * rg


def a_setup(s):
    s('v_add_u32 v%d, %d, v%d' % (V_L16B, ACT_G, V_L16))
    s('s_mul_i32 s%d, s%d, 7168' % (S_T0, S_RW))
    s('s_add_u32 s%d, s%d, s%d' % (S_P, S_A, S_T0))
    s('s_add_u32 s%d, s%d, %d' % (S_P, S_P, 112 * 1024))
    s('s_add_u32 s%d, s%d, 4096' % (S_RO3, S_P))
    s('s_mul_i32 s%d, s%d, %d' % (S_T0, S_RW, 28 * 1024))
    s('s_add_u32 s%d, s%d, s%d' % (S_A, S_A, S_T0))


def aload(z, u):
    ks_dyn(z, S_T0, u)
    z('s_lshl_b32 s%d, s%d, 10' % (S_T0, S_T0))
    z('s_add_u32 s%d, s%d, s%d' % (S_T0, S_T0, S_A))
    for rg in range(2):
        z('buffer_load_dwordx4 %s, v%d, %s, s%d offen sc1' % (vr(abuf(u, rg), 4), V_L16B if rg else V_L16, sr(SWS, 4), S_T0), ('a', u))


def sync_arrive(s, k):
    s('ds_write_b32 v%d, v%d offset:%d' % (V_PA, V_ONE, k * 32))


def sync_wait(s, k, nw, T, first=0):
    j = nspin[0]
    nspin[0] += 1
    s('v_mov_b32 v%d, %d' % (T + 8, M_SY))
    s('L_sy%d:' % j)
    for h in range(nw // 4):
        s('ds_read_b128 %s, v%d offset:%d' % (vr(T + 4 * h, 4), T + 8, k * 32 + first * 4 + h * 16))
    s('s_add_u32 s%d, s%d, 1' % (S_SPIN, S_SPIN))
    s('s_cmp_gt_u32 s%d, 0x%x' % (S_SPIN, SPIN_LIMIT))
    s('s_cbranch_scc1 L_sz%d' % j)
    s.wait(lgkm='all')
    for h in range(1, nw - 1, 2):
        s('v_and_b32 v%d, v%d, v%d' % (T + h, T + h, T + h + 1))
    for h in range(1, nw, 2):
        s('v_and_b32 v%d, v%d, v%d' % (T, T, T + h))
    s('v_readfirstlane_b32 s%d, v%d' % (S_T2, T))
    s('s_cmp_eq_u32 s%d, 0' % S_T2)
    s('s_cbranch_scc1 L_sy%d' % j)
    s('L_sz%d:' % j)
    s.wait(lgkm='all')


def flag(s, off):
    if OPT['fatom']:
        s('buffer_atomic_add v%d, v%d, %s, s%d offen offset:%d sc1' % (V_ONE, V_FLO, sr(SWS, 4), S_FL, off))
    else:
        s('buffer_store_dword v%d, v%d, %s, s%d offen offset:%d sc1' % (V_ONE, V_FLO, sr(SWS, 4), S_FL, off))


def f0_load(s):
    s('buffer_load_dword v%d, v%d, %s, 0 offen sc1' % (V_POLL, V_FLO, sr(SDBG, 4)), 'f0')


def f0_check(s):
    stamp(s, 'f0a')
    s.wait(vm='f0')
    stamp(s, 'f0b')
    spin_check(s, V_POLL, 32, V_FLO, SDBG, '0', 1)


def poll_early(s):
    poll_base(s)
    poll_async(s, 0)


def xreg(c, j):
    return V_X + 16 * c + 4 * j


def dots(s, c):
    for j in range(4):
        s.wait(lgkm=[('x', c, j)])
        for r in range(4):
            x = xreg(c, j) + r
            s('v_dot2c_f32_bf16 v%d, s%d, v%d' % (V_ST + (r & 1), S_ONES, x))
            s('v_dot2c_f32_bf16 v%d, v%d, v%d' % (V_ST + 2 + (r & 1), x, x))


def stats_pack(s):
    T = V_T
    s('v_add_f32 v%d, v%d, v%d' % (T, V_ST, V_ST + 1))
    s('v_add_f32 v%d, v%d, v%d' % (T + 2, V_ST, V_ST + 1))
    s('v_add_f32 v%d, v%d, v%d' % (T + 1, V_ST + 2, V_ST + 3))
    s('v_add_f32 v%d, v%d, v%d' % (T + 3, V_ST + 2, V_ST + 3))
    s('v_permlane32_swap_b32 v%d, v%d' % (T, T + 2))
    s('v_permlane32_swap_b32 v%d, v%d' % (T + 1, T + 3))
    s('v_add_f32 v%d, v%d, v%d' % (T, T, T + 2))
    s('v_add_f32 v%d, v%d, v%d' % (T + 1, T + 1, T + 3))
    s('v_mul_f32 v%d, %s, v%d' % (T, f32(1.0 / 448), T))
    s('v_mul_f32 v%d, %s, v%d' % (T + 1, f32(1.0 / 448), T + 1))
    s('v_fma_f32 v%d, -v%d, v%d, v%d' % (T + 1, T, T, T + 1))
    s('v_max_f32 v%d, 0, v%d' % (T + 1, T + 1))
    s('v_cvt_pk_bf16_f32 v%d, v%d, v%d' % (T + 1, T + 1, T + 1))
    s('v_lshlrev_b32 v%d, 16, v%d' % (T + 1, T + 1))
    s('v_add_f32 v%d, %s, v%d' % (T + 1, f32(1e-5), T + 1))
    s('v_cvt_pk_bf16_f32 v%d, v%d, v%d' % (T + 1, T + 1, T + 1))
    s('v_lshlrev_b32 v%d, 16, v%d' % (T + 1, T + 1))
    s('v_sqrt_f32 v%d, v%d' % (T + 1, T + 1))
    s('v_cvt_pk_bf16_f32 v%d, -v%d, v%d' % (T, T, T + 1))
    s('ds_write_b32 v%d, v%d' % (V_EXR, T))


def stats_final(kind, read=True):
    s, T = Seg(), V_T
    if read:
        s('ds_read_b32 v%d, v%d' % (T, V_EXR), 'st')
        s.wait(lgkm='st')
    s('v_and_b32 v%d, 0xffff0000, v%d' % (V_ST + 2, T))
    s('v_rcp_f32 v%d, v%d' % (V_ST + 3, V_ST + 2))
    s('v_cndmask_b32 v%d, v%d, 0, %s' % (T, T, sr(S_HI, 2)))
    s('v_and_b32 v%d, 0xffff, v%d' % (T + 1, T))
    s('v_lshl_or_b32 v%d, v%d, 16, v%d' % (V_EXR, T, T + 1))
    s('v_lshrrev_b32 v%d, 16, v%d' % (V_EXR + 1, T))
    if kind == 'gelu':
        s('v_mul_f32 v%d, %s, v%d' % (V_ST, f32(GC1), V_ST + 3))
        s('v_mul_f32 v%d, v%d, v%d' % (T, V_ST + 3, V_ST + 3))
        s('v_mul_f32 v%d, %s, v%d' % (V_ST + 1, f32(GC3), V_ST + 3))
        s('v_mul_f32 v%d, v%d, v%d' % (V_ST + 1, T, V_ST + 1))
    else:
        s('v_mul_f32 v%d, s%d, v%d' % (V_ST, S_L2E, V_ST + 3))
    return s


def ext_parts(acc, off, exw, swap, bias=None, T=V_T + 8):
    r, b, m = Seg(), Seg(), Seg()
    tag = ('cs', id(r))
    r('ds_read_b128 %s, v%d offset:%d' % (vr(T, 4), V_CSR, off), tag)
    b.wait(lgkm=[tag])
    b('v_add_f32 v%d, v%d, v%d' % (T, T, T + 1))
    b('v_add_f32 v%d, v%d, v%d' % (T + 2, T + 2, T + 3))
    b('v_add_f32 v%d, v%d, v%d' % (T, T, T + 2))
    b('v_cvt_pk_bf16_f32 v%d, v%d, v%d' % (T + 1, T, T))
    b('v_lshlrev_b32 v%d, 16, v%d' % (T + 1, T + 1))
    b('v_sub_f32 v%d, v%d, v%d' % (T + 1, T, T + 1))
    b('v_cvt_pk_bf16_f32 v%d, v%d, v%d' % (exw, T, T + 1))
    if bias is not None:
        r('v_mov_b32 v%d, v%d' % (exw + 1, bias))
    x, y = (V_EXR, exw) if swap else (exw, V_EXR)
    m('v_mfma_f32_32x32x8_bf16 %s, %s, %s, %s' % (vr(acc, 16), vr(x, 2), vr(y, 2), vr(acc, 16)))
    KEEP.append(r)
    return r, b, m


KEEP = []


def head(parts, stats=None):
    st = [i for i in stats if i is not GAP] if stats is not None else []
    out = st[:1]
    for p in parts:
        out += p[0]
    out += st[1:]
    for p in parts:
        out += p[1]
    for p in parts:
        out += p[2]
    return out


def epi_rowlane(kind, acc, tag, handoff=False, keep=None):
    s, T = Seg(), V_T
    for grp in range(4):
        a = [acc + 4 * grp + e for e in range(4)]
        t = [T + e for e in range(4)]
        if kind == 'gelu':
            for e in range(4):
                s('v_mul_f32 v%d, v%d, v%d' % (t[e], a[e], a[e]))
            for e in range(4):
                s('v_fma_f32 v%d, v%d, v%d, v%d' % (t[e], t[e], V_ST + 1, V_ST))
            for e in range(4):
                s('v_mul_f32 v%d, v%d, v%d' % (t[e], a[e], t[e]))
            for e in range(4):
                s('v_exp_f32 v%d, v%d' % (t[e], t[e]))
            for e in range(4):
                s('v_fma_f32 v%d, v%d, v%d, v%d' % (t[e], t[e], V_ST + 2, V_ST + 2))
            for e in range(4):
                s('v_rcp_f32 v%d, v%d' % (t[e], t[e]))
            for e in range(4):
                s('v_mul_f32 v%d, v%d, v%d' % (a[e], a[e], t[e]))
        else:
            for e in range(4):
                s('v_mul_f32 v%d, v%d, v%d' % (t[e], a[e], V_ST))
            for e in range(4):
                s('v_exp_f32_e64 v%d, v%d clamp' % (t[e], t[e]))
            for e in range(4):
                s('v_fma_f32 v%d, v%d, v%d, s%d' % (a[e], a[e], V_ST + 3, S_EPS))
            for e in range(4):
                s('v_max_f32 v%d, s%d, v%d' % (a[e], S_EPS, a[e]))
            for e in range(4):
                s('v_add_f32 v%d, v%d, v%d' % (a[e], a[e], t[e]))
        p = acc + 8 * (grp >> 1) + 2 * (grp & 1) if keep is None else keep + 2 * grp
        s('v_cvt_pk_bf16_f32 v%d, v%d, v%d' % (p, a[0], a[1]))
        s('v_cvt_pk_bf16_f32 v%d, v%d, v%d' % (p + 1, a[2], a[3]))
        if kind == 'phi' and grp == 3:
            s('v_cndmask_b32 v%d, v%d, 0, %s' % (p, p, sr(S_HI, 2)))
            s('v_cndmask_b32 v%d, v%d, 0, %s' % (p + 1, p + 1, sr(S_HI, 2)))
        if grp & 1 and keep is None:
            f = grp >> 1
            if handoff:
                s('ds_write_b128 v%d, %s offset:%d' % (V_RA, vr(acc + 8 * f, 4), f * 1024))
                continue
            s('buffer_store_dwordx4 %s, v%d, %s, s%d offen offset:%d sc1' % (vr(acc + 8 * f, 4), V_L16, sr(SWS, 4), S_H, f * 1024), tag)
    return s


def zpad(s):
    T = V_T
    s('v_cmp_eq_u32 vcc, 7, v%d' % (T + 14))
    s('v_mov_b32 v%d, 0x%x' % (T + 5, OPT['zpad'] << 13))
    s('v_cndmask_b32 v%d, v%d, v%d, vcc' % (T + 14, T + 14, T + 5))


def sparse_sel(s, sp, idx):
    T = V_T
    s('v_and_b32 v%d, 6, v%d' % (T + 5, T))
    s('v_mov_b32 v%d, 0x3f803f80' % (T + 6))
    for h in range(2):
        s('v_cmp_eq_u32 vcc, %d, v%d' % (4 * h, T + 5))
        s('v_cndmask_b32 v%d, 0, v%d, vcc' % (sp + 2 * h, T + 6))
        s('v_cndmask_b32 v%d, 0, v%d, vcc' % (sp + 2 * h + 1, T + 6))
    s('v_and_b32 v%d, 1, v%d' % (T + 5, T))
    s('v_mul_u32_u24 v%d, 0xaaaa, v%d' % (T + 5, T + 5))
    s('v_add_u32 v%d, 0x4444, v%d' % (idx, T + 5))


def lc_role(ffn):
    kind = 'gelu' if ffn else 'phi'
    RING[0] = 14
    nm = 'f' if ffn else 'q'
    s, T = Seg(nm), V_T
    if not ffn:
        s('L_q:')
    if OPT['twat'] < -1:
        touch_w(s, ffn)
    if OPT['zpad'] and not ffn:
        zpad(s)
    s('s_mul_i32 s%d, s%d, %d' % (S_T1, S_G, 64 if ffn else 56))
    s('v_lshrrev_b32 v%d, 1, v%d' % (T + 6, T + 10))
    s('v_lshl_add_u32 v%d, v%d, 3, s%d' % (T + 5, T + 14, S_T1))
    s('v_lshlrev_b32 v%d, 6, v%d' % (T + 6, T + 6))
    s('v_xor_b32 v%d, v%d, v%d' % (T + 5, T + 5, T + 6))
    s('v_lshl_add_u32 v%d, v%d, 7, v%d' % (V_WA, T + 12, T + 5))
    for j in range(1, 4):
        s('v_xor_b32 v%d, %d, v%d' % (V_WA + j, j << 11, V_WA))
    srd(s, SWS, WS_BYTES)
    srd(s, SDBG, 256)
    s('s_waitcnt lgkmcnt(0)')
    if not ffn:
        s('s_lshl1_add_u32 s%d, s%d, s%d' % (S_T2, S_RB, S_HALF))
        s('s_mul_i32 s%d, s%d, 6' % (S_T1, S_T2))
        s('s_add_u32 s%d, s%d, s%d' % (S_T1, S_T1, S_WV))
        s('s_lshl_b32 s%d, s%d, 10' % (S_T1, S_T1))
        s('s_add_u32 s%d, s%d, 0x%x' % (S_T1, S_T1, KV_OFF))
        s('s_lshl_b32 s%d, s%d, 10' % (S_LAST, S_T2))
        s('s_add_u32 s%d, s%d, 0x%x' % (S_LAST, S_LAST, ST_OFF))
        s('s_cmp_lt_u32 s%d, 6' % S_WV)
        s('s_cselect_b32 s%d, s%d, 0x%x' % (S_T1, S_T1, OOB))
        s('s_cmp_eq_u32 s%d, 6' % S_WV)
        s('s_cselect_b32 s%d, s%d, s%d' % (S_T1, S_LAST, S_T1))
        s('buffer_store_dwordx4 %s, v%d, %s, s%d offen sc1' % (vr(V_ST, 4), V_L16, sr(SWS, 4), S_T1), 'zero')
    s('s_cmp_eq_u32 s%d, 1' % S_G)
    s('s_cbranch_scc1 L_%sb' % nm)
    UA, UB = [([(), (5,), (7,)], [(0, 1), (2,), (3, 4, 6)]), ([(), (5, 6), ()], [(0, 1), (2,), (3, 4, 7)]),
              ([(0,), (5, 6), (7,)], [(1,), (2,), (3, 4)])][OPT['ub']]
    LCS = [{3: ([], [0]), 4: ([], [1]), 5: ([], [2]), 6: ([3], []), 7: ([], [4, 5, 6])},
           {3: ([1], [0]), 4: ([3], [2]), 7: ([], [4, 5, 6])},
           {3: ([1], [0]), 4: ([], [2]), 7: ([3], [4, 5, 6])},
           {3: ([], [0]), 4: ([], [1]), 7: ([2, 3], [4, 5, 6])},
           {3: ([2], [0, 1]), 4: ([4], [3]), 7: ([], [5, 6])},
           {3: ([2], [0, 1]), 4: ([5], [3, 4]), 7: ([], [6])}][OPT['lcs']]
    step = 128 if ffn else 112
    region = [R0, R1, R0, R1]
    acc = V_ACC

    def stream(g):
        z = Seg(nm + 'ab'[g])
        if g:
            z('L_%sb:' % nm)
        xa = Rebase([V_XA + j for j in range(4)], 0, 0)
        wa = Rebase([V_WA + j for j in range(4)], 0, 512)

        def triple(t, c):
            dma_x(t, c, XSLOT[c], ('t', c))
            if g:
                dma_w(t, S_M0W, c, R0 + c * 8192, ('t', c))

        def lc(t, q, c):
            if ffn and q == 3:
                t('s_add_u32 m0, s%d, %d' % (S_M0W, R1 + c * 4096))
                t('buffer_load_dwordx4 v%d, %s, s%d offen lds' % (V_W3, sr(SW, 4), S_KW + c), ('l', q, c))
                return
            dma_w(t, S_M0W, c, region[q] + c * 8192, ('l', q, c))

        V_SP, V_IDX = 120, 124

        def wf(c, j):
            if not OPT['smf'] or j > 1:
                return V_WF + 4 * j
            return (96 if ffn else 112) if j else V_WF + 4 * (1 - (c & 1))

        def cs_write(t):
            if OPT['smf']:
                t('v_add_f32 v%d, v%d, v%d' % (V_CS, V_CS, V_CS + 1))
            t('ds_write_b32 v%d, v%d' % (V_CSW, V_CS))

        def wread(t, q, c, j):
            half = ffn and q == 3
            o = c * 4096 if half else wa.off(t, region[q] + c * 8192)
            for u in range(2):
                t('ds_read_b64_tr_b16 %s, v%d offset:%d' % (vr(wf(c, j) + 2 * u, 2), V_WA + j, o + u * (256 if half else 512)), ('w', q, c, j))

        def xread(t, c, j):
            o = xa.off(t, XSLOT[c])
            t('ds_read_b128 %s, v%d offset:%d' % (vr(xreg(c, j), 4), V_XA + j, o), ('x', c, j))

        def kstep(q, c, j):
            t = Seg()
            t.wait(lgkm=[('w', q, c, j | OPT['wj'])])
            first = c == 0 and j == 0
            t('v_mfma_f32_32x32x16_bf16 %s, %s, %s, %s' % (vr(acc, 16), vr(wf(c, j), 4), vr(xreg(c, j), 4), '0' if first else vr(acc, 16)))
            if j == 0 and (first or not OPT['smf']):
                t('v_mfma_f32_16x16x32_bf16 %s, %s, %s, %s' % (vr(V_CS, 4), vr(V_SEL, 4), vr(wf(c, j), 4), '0' if first else vr(V_CS, 4)))
            elif j == 0 and c % 2 == 0:
                t('v_smfmac_f32_16x16x64_bf16 %s, %s, %s, v%d' % (vr(V_CS, 4), vr(V_SP, 4), vr(V_WF, 8), V_IDX))
            if c < 6:
                wread(t, q, c + 1, j)
            return t

        def preread(t, q):
            for j in range(4):
                wread(t, q, 0, j)

        carry, ecarry = [], []

        def gemm(t, q, fill=(), extra=None):
            t('s_setprio 1')
            t.extend(ecarry)
            ecarry[:] = []
            slots = [kstep(q, c, j) for c in range(7) for j in range(4)]
            for k, gi in enumerate(groups(extra) if extra is not None else []):
                slots[min(1 + OPT['gsp'] * k, 24)].extend(gi)
            n = 28 - OPT['carry']
            cs_write(slots[min(26, n - 1)])
            for z in slots[:n]:
                t.extend(z)
            carry[:] = [i for z in slots[n:] for i in z]

        def next_col(t, last=False):
            if last and ffn:
                t('s_lshr_b32 s%d, s%d, 1' % (S_M0W, S_M0W))
                return
            for r in (V_W, V_WB):
                t('v_add_u32 v%d, %d, v%d' % (r, step, r))

        def epi(t, q, extra=None, pre=None, handoff=False, hi=0.85, keep=False, nxt=None, lo=0.03, early=2):
            grp = groups(extra) if extra is not None else []
            t('s_setprio 2')
            parts = ext_parts(acc, 0, V_EXW, False, V_B1 + q if ffn else None)
            parts[0].extend(carry)
            carry[:] = []
            t.extend(head([parts], pre))
            if not keep:
                t('s_setprio %d' % OPT['eprio'])
            stamp(t, 'x%d' % (2 * q + g + 1))
            for gi in grp[:early]:
                t.extend(gi)
            body = mix(epi_rowlane(kind, acc, ('h', q), handoff, None if ffn else V_PQ + 8 * q), grp[early:], lo, hi)
            if ffn:
                r = Seg()
                touch_fl2(r, 2 * q + g + 1, V_XA + 1)
                body = mix(body, [list(r)], OPT['tfp'] / 100, 1.0)
            if nxt is not None:
                r = Seg()
                if ffn and not g and nxt == 3:
                    for k in range(4):
                        r('v_xor_b32 v%d, %d, v%d' % (V_WA + k, k << 10, V_WA3))
                preread(r, nxt)
                body = mix(body, [[i] for i in r], 0.45, 0.8) if OPT['pmix'] else body + list(r)
            body = list(body)
            if ffn:
                body.append(Ins('s_add_u32 s%d, s%d, 4096' % (S_H, S_H)))
            n = len(body) - (OPT['ecarry'] if ffn and nxt is not None else 0)
            t.extend(body[:n])
            ecarry[:] = body[n:]

        def duty(q, chunks, units=(), step_col=True):
            d = Seg()
            if step_col:
                next_col(d, q == 3)
            for k in chunks:
                lc(d, q, k)
            if ffn:
                for u in units:
                    dma_b2(d, u)
            return d

        late = deferred(False)
        if OPT['smf']:
            assert OPT['sel1']
            sparse_sel(late, V_SP, V_IDX)
        if ffn:
            p2_setup(late)
        late('s_lshl2_add_u32 s%d, s%d, s%d' % (S_H, S_RB, S_RW))
        late('s_mul_i32 s%d, s%d, %d' % (S_H, S_H, ACT_G))
        late('s_add_u32 s%d, s%d, %d' % (S_H, S_H, g * 2048 if ffn else g * 7168 + 112 * 1024))
        late('s_mul_i32 s%d, s%d, %d' % (S_T1, S_T0 if ffn else S_HALF, 32 if ffn else 14336))
        late('s_add_u32 s%d, s%d, s%d' % (S_H, S_H, S_T1))
        if ffn:
            late('s_add_u32 s%d, s%d, %d' % (S_T1, S_M0W, HND))
            late('v_add_u32 v%d, s%d, v%d' % (V_RA, S_T1, V_L16))
            late('s_mul_i32 s%d, s%d, -7' % (S_LAST, S_PEND))
            late('s_add_u32 s%d, s%d, s%d' % (S_LAST, S_LAST, S_T0))
            late('s_add_u32 s%d, s%d, 384' % (S_LAST, S_LAST))
            late('v_lshrrev_b32 v%d, 2, v%d' % (T + 5, T))
            late('v_lshl_add_u32 v%d, s%d, 4, v%d' % (T + 5, S_RW, T + 5))
            late('v_mul_u32_u24 v%d, %d, v%d' % (T + 5, W1S, T + 5))
            late('v_lshl_add_u32 v%d, v%d, 4, s%d' % (V_W3, T + 11, S_LAST))
            late('v_add_u32 v%d, v%d, v%d' % (V_W3, V_W3, T + 5))
            if not g:
                late('v_lshl_add_u32 v%d, v%d, 3, v%d' % (T + 5, T + 12, T + 14))
                late('v_lshlrev_b32 v%d, 3, v%d' % (T + 5, T + 5))
                late('v_add_u32 v%d, %d, v%d' % (V_WA3, R1, T + 5))
            srd(late, SB1, 1792 * 2)
            late('v_lshlrev_b32 v%d, 1, v%d' % (T + 5, T + 8))
            for q in range(3):
                late('buffer_load_ushort v%d, v%d, %s, s%d offen offset:%d' % (V_B1 + q, T + 5, sr(SB1, 4), S_T0, q * 128 + g * 64), 'b1')
            if not g:
                late('buffer_load_ushort v%d, v%d, %s, s%d offen' % (V_B1 + 3, T + 5, sr(SB1, 4), S_LAST), 'b1')
        if g:
            late('s_mov_b32 s%d, 0x%x' % (S_FL, OOB))
        else:
            late('s_lshr_b32 s%d, s%d, 1' % (S_T1, S_P) if ffn else 's_lshl_b32 s%d, s%d, 1' % (S_T1, S_HALF))
            late('s_lshl2_add_u32 s%d, s%d, s%d' % (S_T1, S_RB, S_T1))
            late('s_mul_i32 s%d, s%d, %d' % (S_FL, S_T1, FL_G))
            late('s_lshl1_add_u32 s%d, s%d, s%d' % (S_FL, S_PEND, S_FL))
            late('s_lshl_b32 s%d, s%d, 28' % (S_T1, S_RW))
            late('s_add_u32 s%d, s%d, s%d' % (S_FL, S_FL, S_T1))
            late('s_add_u32 s%d, s%d, 0x%x' % (S_FL, S_FL, FL_OFF))
        NL = OPT['nlate']

        def some(k):
            return late[len(late) * k // NL:len(late) * (k + 1) // NL] if k < NL else []

        LP, half = OPT['lpos'], len(late) // 2
        AH = 5 if LP == 3 else 4
        if not OPT['t1c']:
            triple(z, 1)
        estamp(z, 't1')
        z.extend(late if LP == 0 else late[:half] if LP == 2 else [])
        stamp(z, 'su')
        if OPT['obar']:
            z('s_barrier')
        if g and LP == 0:
            z('s_setprio 1')
        triple(z, 2)
        if LP == 3:
            z.extend(late[:half])
            triple(z, 3)
        z.extend(late if LP == 1 else late[half:] if LP >= 2 else [])
        if g and LP:
            z('s_setprio 1')
        for c in range(-1, 7):
            if c < 6:
                barrier(z, ['t0', 'zero'] if c < 0 else ['t1' if c == 0 and OPT['t1c'] else ('t', c + 1)], 's%d' % c if c >= 0 else 'pre')
            if c < 0:
                stamp(z, 1)
                if not ffn and not g:
                    z('s_lshl_b32 s%d, s%d, 28' % (S_T2, S_WV))
                    z('buffer_atomic_add v%d, v%d, %s, s%d offen sc1' % (V_ONE, V_FLO, sr(SDBG, 4), S_T2))
            d = Seg()
            if c + AH < 7:
                triple(d, c + AH)
            if c == OPT['tat']:
                touch_w2(d)
            if c == 3:
                next_col(d)
            for k in LCS.get(c, ([], []))[g]:
                lc(d, 1, k)
            if c == 4 and ffn:
                b2b_setup(d)
                if not g and OPT['touch'] & 128 and OPT['tfat'] == 0:
                    touch_ffn(d, V_T + 2)
            if c == OPT['twat']:
                if ffn or not OPT['touch'] & 64:
                    touch_w(d, ffn)
                else:
                    touch_qv(d)
            if g:
                if c == 6:
                    break
                for j in range(4):
                    xread(z, c + 1, j)
                if c < 5:
                    z.extend(mix(some(c + 2), groups(d)))
                if c == 3:
                    preread(z, 0)
                dots(z, c + 1)
                if c == 5:
                    if OPT['s6']:
                        z('s_barrier')
                    stats_pack(z)
                    if not ffn:
                        z('buffer_store_dword v%d, v%d, %s, s%d offen sc1' % (T, V_EXR + 1, sr(SWS, 4), S_LAST))
                    z.extend(d)
                    z.extend(stats_final(kind, False))
            else:
                if c == 6 and OPT['s6']:
                    z('s_barrier')
                for j in range(4):
                    if c == 6:
                        z.wait(lgkm=[('x', c, j)])
                    if c >= 0:
                        z.extend(kstep(0, c, j))
                    else:
                        wread(z, 0, 0, j)
                    if c < 6:
                        xread(z, c + 1, j)
                z.extend(mix(some(c + 2), groups(d)))
                if c == 6:
                    w = Seg()
                    cs_write(w)
                    k = len(z) - (1 if len(d) else 0)
                    z[k:k] = w
        if g:
            barrier(z, ['b1'] if OPT['npre'] else [('l', 1, 0), 'b1'], 'e0')
        else:
            barrier(z, 'b1', 'e0')
        stamp(z, 2)
        if not g:
            d = Seg()
            d.extend(duty(1, LCS[7][0], (), False))
            f0_load(d)
            if ffn and OPT['touch'] & 128 and OPT['tfat'] == 1:
                touch_ffn(d, V_XA)
            NE = OPT['ne']
            epi(z, 0, d, pre=stats_final(kind), nxt=None if OPT['npre'] else 1, **(dict(early=0, lo=0.6) if OPT['tfat'] == 1 else dict(hi=0.4)))
            barrier(z, [('l', 1, k) for k in range(7)], 'e1')
            stamp(z, 'h1')
            if OPT['npre']:
                z('s_setprio 3')
                preread(z, 1)
            gemm(z, 1, extra=duty(2, range(NE, 5)))
            f0_check(z)
            barrier(z, [('h', 0)], 'e2')
            stamp(z, 'h2')
            d = duty(0, (), UA[0], False)
            if ffn:
                d.extend(res_load(RES_F))
            epi(z, 1, d, nxt=2, lo=0.5, early=2 * len(UA[0]))
            barrier(z, [('l', 2, 4)], 'e3')
            stamp(z, 3)
            if ffn:
                flag(z, 0)
            gemm(z, 2, extra=duty(3, range(NE, 5), UA[1]))
            barrier(z, [('h', 1)], 'e4')
            stamp(z, 'h4')
            epi(z, 2, duty(0, (), UA[2], False), nxt=3)
            barrier(z, [('l', 3, 4)], 'e5')
            stamp(z, 4)
            if ffn:
                flag(z, 256)
            gemm(z, 3, extra=duty(0, (), (11, 12, 13), False))
            barrier(z, [('b', u) for u in UA[1] + UA[2]], 'e6')
            stamp(z, 5)
            if ffn:
                z('ds_read_b128 %s, v%d' % (vr(V_PQ, 4), V_RA), 'hnd')
                z('ds_read_b128 %s, v%d offset:1024' % (vr(V_PQ + 4, 4), V_RA), 'hnd')
                z('s_sub_u32 s%d, s%d, 2048' % (S_T0, S_H))
                z('s_cmp_eq_u32 s%d, 0' % S_PEND)
                z('s_cselect_b32 s%d, 0, %d' % (S_T1, 3 * 4096 + 2048))
                z('s_sub_u32 s%d, s%d, s%d' % (S_H, S_H, S_T1))
                d = Seg()
                d.wait(lgkm='hnd')
                for f in range(2):
                    d('buffer_store_dwordx4 %s, v%d, %s, s%d offen offset:%d sc1' % (vr(V_PQ + 4 * f, 4), V_L16, sr(SWS, 4), S_T0, f * 1024), 'h5')
                epi(z, 3, d, keep=True)
                z('s_lshl1_add_u32 s%d, s%d, s%d' % (S_T0, S_RB, S_HALF))
                z('s_lshl_b32 s%d, s%d, 9' % (S_T0, S_T0))
                z('s_add_u32 s%d, s%d, s%d' % (S_T0, S_T0, S_ROLE))
                z('s_lshl_b32 s%d, s%d, 28' % (S_T1, S_RW))
                z('s_lshl2_add_u32 s%d, s%d, s%d' % (S_T0, S_T0, S_T1))
                z('s_add_u32 s%d, s%d, 0x%x' % (S_T0, S_T0, FO_OFF + 8))
                z('v_cmp_gt_u32 vcc, 0x100, v%d' % V_L16)
                z('v_lshlrev_b32 v%d, 3, v%d' % (V_PL, V_L16))
                z('v_cndmask_b32 v%d, v%d, v%d, vcc' % (V_PL, V_FLO, V_PL))
                z.wait(vm=[('h', 3)])
                sync_arrive(z, 0)
                sync_wait(z, 0, 4, T)
                z('buffer_store_dword v%d, v%d, %s, s%d offen sc1' % (V_ONE, V_PL, sr(SWS, 4), S_T0))
                z.extend(res_unpack(RES_F))
                stamp(z, 6)
                z('s_branch L_p2a')
            else:
                d = Seg()
                touch_wo(d, V_XA)
                epi(z, 3, d)
                q_fetch(z)
                z('s_branch L_qo')
            return z
        d = duty(1, LCS[7][1], (), False)
        if ffn:
            d.extend(res_load(RES_F))
        gemm(z, 0, extra=d)
        barrier(z, [('l', 1, 6)], 'e1')
        stamp(z, 'h1')
        for q in (1, 2):
            d = duty(q + 1, range(OPT['ne']), UB[1] if q == 2 else ())
            if ffn and OPT['touch'] & 128 and 2 * q == OPT['tfat']:
                d('s_nop 0')
                touch_ffn(d, V_XA)
            epi(z, q - 1, d, nxt=q, lo=0.2)
            barrier(z, [('l', q + 1, 0)], 'e%d' % (2 * q))
            stamp(z, 'h%d' % (2 * q))
            d = duty(q + 1, (5, 6), (), False)
            if ffn and q == 2:
                poll_early(d)
            d.extend(duty(0, (), UB[2 * q - 2], False))
            gemm(z, q, extra=d)
            barrier(z, [('l', q + 1, 6), ('h', q - 1)], 'e%d' % (2 * q + 1))
            stamp(z, q + 2)
        if ffn:
            d = Seg()
            a_setup(d)
            stage_check(d, 0)
            for u in range(OPT['na']):
                aload(d, u)
            for u in range(8, 8 + OPT['nb']):
                dma_b2(d, u)
            epi(z, 2, d, handoff=True, hi=1.0)
            barrier(z, None, 'e6')
            z('s_branch L_p2f')
        else:
            d = Seg()
            touch_wo(d, V_XA)
            epi(z, 2, d, nxt=3)
            barrier(z)
            stamp(z, 5)
            gemm(z, 3)
            barrier(z)
            epi(z, 3)
            stamp(z, 6)
        return z

    return s, stream(0), stream(1)


def q_fetch(s):
    T, RAW = V_T, V_X
    s('s_lshl2_add_u32 s%d, s%d, s%d' % (S_T0, S_HALF, S_RW))
    s('s_lshl_b32 s%d, s%d, 8' % (S_PL, S_T0))
    s('s_add_u32 s%d, s%d, 0x%x' % (S_PL, S_PL, FKV_OFF))
    s('s_lshl_b32 s%d, s%d, 13' % (S_T0, S_T0))
    s('s_add_u32 s%d, s%d, 0x%x' % (S_T0, S_T0, KV_OFF))
    s('s_add_u32 s%d, s%d, 4096' % (S_T3, S_T0))
    s('v_cmp_gt_u32 vcc, 32, v%d' % V_L16)
    s('v_lshlrev_b32 v%d, 3, v%d' % (V_PL, V_L16))
    s('v_cndmask_b32 v%d, v%d, v%d, vcc' % (V_PL, V_FLO, V_PL))
    s('v_lshrrev_b32 v%d, 2, v%d' % (T, V_L16))
    s('s_lshl1_add_u32 s%d, s%d, %d' % (S_T1, S_M0W, R2))
    s('v_add_u32 v%d, s%d, v%d' % (T + 1, S_T1, V_L16))
    if OPT['dual']:
        s('v_mov_b32 v%d, 0' % (T + 3))
        s('buffer_atomic_add v%d, v%d, %s, s%d offen sc0 sc1' % (T + 3, V_PL, sr(SWS, 4), S_PL))
    s('s_barrier')
    stamp(s, 6)
    j = nspin[0]
    nspin[0] += 1
    P2 = V_T + 3

    def ask(r):
        s('v_mov_b32 v%d, 0' % r)
        s('buffer_atomic_add v%d, v%d, %s, s%d offen sc0 sc1' % (r, V_PL, sr(SWS, 4), S_PL))

    if OPT['dual']:
        s('L_qs%d:' % j)
        ask(V_POLL)
        s('s_waitcnt vmcnt(1)')
        s('v_cmp_le_u32 vcc, 16, v%d' % P2)
        s('s_andn2_b32 s%d, 3, vcc_lo' % S_T2)
        s('s_cbranch_scc0 L_qz%d' % j)
        ask(P2)
        s('s_add_u32 s%d, s%d, 1' % (S_SPIN, S_SPIN))
        s('s_cmp_gt_u32 s%d, 0x%x' % (S_SPIN, SPIN_LIMIT))
        s('s_waitcnt vmcnt(1)')
    else:
        s('L_qs%d:' % j)
        ask(V_POLL)
        s('s_add_u32 s%d, s%d, 1' % (S_SPIN, S_SPIN))
        s('s_cmp_gt_u32 s%d, 0x%x' % (S_SPIN, SPIN_LIMIT))
        s.wait(vm='all')
    s('s_cbranch_scc1 L_qz%d' % j)
    s('v_cmp_le_u32 vcc, 16, v%d' % V_POLL)
    s('s_andn2_b32 s%d, 3, vcc_lo' % S_T2)
    s('s_cbranch_scc1 L_qs%d' % j)
    s('L_qz%d:' % j)
    stamp(s, 7)
    if OPT['qsplit']:
        return
    for r in range(32):
        s('buffer_load_dword v%d, v%d, %s, s%d offen offset:%d sc1' % (RAW + r, T, sr(SWS, 4), S_T3 if r >= 16 else S_T0, (r & 15) * 256), ('kv', r >> 3))
    for f in range(4):
        s.wait(vm=[('kv', f)])
        for k in range(4):
            s('v_cvt_pk_bf16_f32 v%d, v%d, v%d' % (RAW + 8 * f + k, RAW + 8 * f + 2 * k, RAW + 8 * f + 2 * k + 1))
        s('ds_write_b128 v%d, %s offset:%d' % (T + 1, vr(RAW + 8 * f, 4), f * 1024))


def q_out():
    s, T = Seg('qo'), V_T
    NUM, KF, RAW = V_X, V_X + 64, V_X + 96
    s('L_qo:')
    s('s_lshl_b32 s%d, s%d, 11' % (S_T1, S_G))
    s('s_add_u32 s%d, s%d, %d' % (S_T1, S_T1, R2))
    s('v_add_u32 v%d, s%d, v%d' % (T + 2, S_T1, V_L16))
    if OPT['qsplit']:
        s('s_lshl3_add_u32 s%d, s%d, s%d' % (S_T0, S_HALF, S_WV))
        s('s_lshl_b32 s%d, s%d, 12' % (S_T0, S_T0))
        s('s_add_u32 s%d, s%d, 0x%x' % (S_T0, S_T0, KV_OFF))
        s('v_lshrrev_b32 v%d, 2, v%d' % (T, V_L16))
        s('s_add_u32 s%d, s%d, %d' % (S_T1, S_M0X, R2))
        s('v_add_u32 v%d, s%d, v%d' % (T + 1, S_T1, V_L16))
        s('s_barrier')
        for r in range(16):
            s('buffer_load_dword v%d, v%d, %s, s%d offen offset:%d sc1' % (RAW + r, T, sr(SWS, 4), S_T0, r * 256), ('kv', r >> 3))
        for f in range(2):
            s.wait(vm=[('kv', f)])
            for k in range(4):
                s('v_cvt_pk_bf16_f32 v%d, v%d, v%d' % (RAW + 8 * f + k, RAW + 8 * f + 2 * k, RAW + 8 * f + 2 * k + 1))
            s('ds_write_b128 v%d, %s offset:%d' % (T + 1, vr(RAW + 8 * f, 4), f * 1024))
    barrier(s)
    stamp(s, 8)
    for q in range(4):
        for f in range(2):
            s('ds_read_b128 %s, v%d offset:%d' % (vr(KF + 8 * q + 4 * f, 4), T + 2, q * 4096 + f * 1024), ('kf', q, f))
    def num(q):
        z = Seg()
        for f in range(2):
            z.wait(lgkm=[('kf', q, f)])
            z('v_mfma_f32_32x32x16_bf16 %s, %s, %s, %s' % (vr(NUM + 16 * q, 16), vr(KF + 8 * q + 4 * f, 4), vr(V_PQ + 8 * q + 4 * f, 4), vr(NUM + 16 * q, 16) if f else '0'))
        return z

    s.extend(num(0) + num(1))
    O, done = V_X + 96, 0
    s('s_add_u32 s%d, s%d, 4096' % (S_T0, S_H))
    for q in range(4):
        n, p = NUM + 16 * q, q >> 1
        dst = [O + 14 * p + k for k in range(8)] if q % 2 == 0 else [O + 14 * p + 8 + k for k in range(6)] + [T + 6, T + 7]
        s('v_add_f32 v%d, s%d, v%d' % (T + 4, S_EPS, n + 12))
        s('v_add_f32 v%d, s%d, v%d' % (T + 5, S_EPS, n + 12))
        s('v_permlane32_swap_b32 v%d, v%d' % (T + 4, T + 5))
        s('v_rcp_f32 v%d, v%d' % (T + 5, T + 5))
        for f in ((0, 1) if q % 2 == 0 else (1, 0)):
            for k in range(8 * f, 8 * f + 8, 2):
                s('v_pk_mul_f32 %s, %s, %s op_sel:[0,1] op_sel_hi:[1,1]' % (vr(n + k, 2), vr(n + k, 2), vr(T + 4, 2)))
            for k in (2, 3, 0, 1):
                s('v_cvt_pk_bf16_f32 v%d, v%d, v%d' % (dst[4 * f + k], n + 8 * f + 2 * k, n + 8 * f + 2 * k + 1))
            if q % 2 and f:
                for k in range(2):
                    s('v_permlane32_swap_b32 v%d, v%d' % (O + 14 * p + 6 + k, T + 6 + k))
            if q < 2 and f != q:
                s.extend(num(q + 2))
            ready = {(0, 0): 1, (1, 1): 2, (1, 0): 3, (2, 0): 4, (2, 1): 5, (3, 0): 7}.get((q, f), done)
            for v in range(done, ready):
                s('buffer_store_dwordx4 %s, v%d, %s, s%d offen offset:%d sc1' % (vr(O + 4 * v, 4), V_L16, sr(SWS, 4), S_T0 if v >= 4 else S_H, (v & 3) * 1024))
            done = ready
    stamp(s, 9)
    if OPT['opriv']:
        s('s_lshl1_add_u32 s%d, s%d, s%d' % (S_T0, S_RB, S_HALF))
        s('s_lshl_b32 s%d, s%d, 11' % (S_T0, S_T0))
        s('s_lshl_b32 s%d, s%d, 28' % (S_T1, S_WV))
        s('s_add_u32 s%d, s%d, s%d' % (S_T0, S_T0, S_T1))
        s('s_add_u32 s%d, s%d, 0x%x' % (S_T0, S_T0, FO_OFF))
        s('v_cmp_gt_u32 vcc, 0x100, v%d' % V_L16)
        s('v_lshlrev_b32 v%d, 3, v%d' % (T, V_L16))
        s('v_cndmask_b32 v%d, v%d, v%d, vcc' % (T, V_FLO, T))
        barrier(s, 'all')
        s('buffer_store_dword v%d, v%d, %s, s%d offen sc1' % (V_ONE, T, sr(SWS, 4), S_T0))
    else:
        barrier(s, 'all')
        flag(s, 768)
        flag(s, 768 + FL_G)
    s('s_branch L_fin')
    return s


def kv_role():
    s, T = Seg('kv'), V_T
    RING[0] = 11
    s('L_kv:')
    if OPT['twat'] < -1:
        touch_w(s, False, V_EXW)
    s('s_mul_i32 s%d, s%d, 3' % (S_P, S_HALF))
    s('s_add_u32 s%d, s%d, s%d' % (S_P, S_P, S_ROLE))
    s('s_sub_u32 s%d, s%d, 4' % (S_P, S_P))

    def item(t, n):
        if n >= 14:
            if n == 14:
                t('v_add_u32 v%d, %d, v%d' % (V_W, XS, V_W))
                t('v_add_u32 v%d, %d, v%d' % (V_WB, XS, V_WB))
            dma_w(t, S_M0X, n - 14, kv_slot(n), ('i', n))
        elif n & 1:
            dma_w(t, S_M0X, n >> 1, kv_slot(n), ('i', n))
        else:
            dma_x(t, n >> 1, kv_slot(n), ('i', n))

    s('s_lshl_b32 s%d, s%d, 2' % (S_T1, S_P))
    s('s_lshr_b32 s%d, 0xdb8630, s%d' % (S_LAST, S_T1))
    s('s_and_b32 s%d, s%d, 15' % (S_LAST, S_LAST))
    s('s_lshr_b32 s%d, 0x323233, s%d' % (S_PEND, S_T1))
    s('s_and_b32 s%d, s%d, 15' % (S_PEND, S_PEND))
    s('s_add_u32 s%d, s%d, s%d' % (S_T1, S_LAST, S_G))
    s('s_mul_i32 s%d, s%d, 56' % (S_T1, S_T1))
    s('s_lshl_b32 s%d, s%d, 7' % (S_T0, S_P))
    s('s_sub_u32 s%d, s%d, s%d' % (S_T1, S_T1, S_T0))
    s('s_add_u32 s%d, s%d, 1' % (S_T0, S_G))
    s('s_cmp_lt_u32 s%d, s%d' % (S_T0, S_PEND))
    s('s_cselect_b32 s%d, 56, 0' % S_T0)
    if OPT['zpad']:
        zpad(s)
    else:
        s('v_min_u32 v%d, 6, v%d' % (T + 14, T + 14))
    s('v_lshl_add_u32 v%d, v%d, 3, s%d' % (T + 5, T + 14, S_T1))
    s('v_lshlrev_b32 v%d, 6, v%d' % (T + 6, T + 10))
    for t in range(2):
        if t:
            s('v_add_u32 v%d, s%d, v%d' % (T + 5, S_T0, T + 5))
        s('v_xor_b32 v%d, v%d, v%d' % (T + 11, T + 5, T + 6))
        s('v_lshl_add_u32 v%d, v%d, 8, v%d' % (V_WA + 4 * t, T + 12, T + 11))
        for j in range(1, 4):
            s('v_xor_b32 v%d, %d, v%d' % (V_WA + 4 * t + j, j << 12, V_WA + 4 * t))
    srd(s, SWS, WS_BYTES)
    srd(s, SDBG, 256)
    if not OPT['t1c']:
        item(s, 2)
        item(s, 3)
    if OPT['kah']:
        item(s, 4)
        item(s, 5)
    estamp(s, 't1')
    s.extend(deferred(True))
    p2_setup(s)
    s('s_lshl1_add_u32 s%d, s%d, s%d' % (S_H, S_RB, S_HALF))
    s('s_lshl3_add_u32 s%d, s%d, s%d' % (S_H, S_H, S_RW))
    s('s_lshl_b32 s%d, s%d, 7' % (S_H, S_H))
    s('s_add_u32 s%d, s%d, 0x%x' % (S_H, S_H, ST_OFF))
    s('v_lshlrev_b32 v%d, 2, v%d' % (V_ST + 1, T + 8))
    s('s_lshl_b32 s%d, s%d, 7' % (S_T0, S_RW))
    s('s_add_u32 s%d, s%d, %d' % (S_T0, S_T0, M_R))
    s('v_lshl_add_u32 v%d, v%d, 4, s%d' % (V_RA, T + 9, S_T0))
    s('v_add_u32 v%d, s%d, v%d' % (V_ST + 2, S_T0, V_ST + 1))
    s('v_mov_b32 v%d, %d' % (T + 5, M_SY + 128))
    s('v_cndmask_b32 v%d, v%d, v%d, %s' % (V_ST + 3, V_RA, T + 5, sr(S_PAD, 2)))
    s('v_mov_b32 v%d, 0' % (V_EXR + 1))
    if OPT['smk']:
        assert OPT['touch'] & 64 and not OPT['touch'] & 2
        sparse_sel(s, T + 12, T + 2)
    s('s_waitcnt lgkmcnt(0)')
    if OPT['tat'] < -1:
        touch_w2(s)
    if OPT['two']:
        s('s_lshl2_add_u32 s%d, s%d, s%d' % (S_T1, S_G, S_PEND))
        s('s_cmp_eq_u32 s%d, 6' % S_T1)
        s('s_cbranch_scc1 L_kc')
    s('s_cmp_eq_u32 s%d, 1' % S_G)
    s('s_cbranch_scc1 L_kb')

    def body(g, two=False):
        b = Seg('kc' if two else 'kb' if g else 'ka')
        if two:
            b('L_kc:')
        elif g:
            b('L_kb:')
        xa = Rebase([V_XA + j for j in range(4)], 0, 0)
        wa = [Rebase([V_WA + 4 * t + j for j in range(4)], 0, 1024) for t in range(2)]
        TS = [[0], []] if two else [[0, 1], [1]] if g else [[0], [0, 1]]
        PK1 = V_X + 48

        def witem(q, c):
            return 2 * c + 1 if q == 0 else 14 + c

        def wf(t, j, c):
            base = V_ACC + 48 if t != g else V_WF
            if not OPT['smk'] or j > 1:
                return base + 4 * j
            return (T + 8 if t != g else T + 4) if j else base + 4 * (1 - (c & 1))

        def acc(q, t):
            return V_ACC + 16 * (q + t)

        def wread(z, q, c, j, t):
            o = wa[t].off(z, kv_slot(witem(q, c)))
            for u in range(2):
                z('ds_read_b64_tr_b16 %s, v%d offset:%d' % (vr(wf(t, j, c) + 2 * u, 2), V_WA + 4 * t + j, o + u * 1024), ('w', q, c, j, t))

        def xread(z, c, j):
            o = xa.off(z, kv_slot(2 * c))
            z('ds_read_b128 %s, v%d offset:%d' % (vr(xreg(c, j), 4), V_XA + j, o))

        def kstep(q, c, j):
            out = []
            first = c == 0 and j == 0
            for t in TS[q]:
                z = Seg()
                z.wait(lgkm=[('w', q, c, j, t), ('w', q, c, j, TS[q][-1]) if len(TS[q]) > 1 else ('w', q, c, j | 1, t)] if OPT['wj'] else [('w', q, c, j, t)])
                z('v_mfma_f32_32x32x16_bf16 %s, %s, %s, %s' % (vr(acc(q, t), 16), vr(xreg(c, j), 4), vr(wf(t, j, c), 4), '0' if first else vr(acc(q, t), 16)))
                if j == 0 and (first or not OPT['smk']):
                    z('v_mfma_f32_16x16x32_bf16 %s, %s, %s, %s' % (vr(V_CS + 4 * t, 4), vr(V_SEL, 4), vr(wf(t, j, c), 4), '0' if first else vr(V_CS + 4 * t, 4)))
                elif j == 0 and c % 2 == 0:
                    z('v_smfmac_f32_16x16x64_bf16 %s, %s, %s, v%d' % (vr(V_CS + 4 * t, 4), vr(T + 12, 4), vr(wf(t, 0, 1), 8), V_X1 if q else T + 2))
                if c < 6:
                    wread(z, q, c + 1, j, t)
                    if q == 0 and t == TS[q][-1]:
                        xread(z, c + 1, j)
                elif q == 0 and not g:
                    wread(z, 1, 0, j, 0)
                if c == 6 and j == 2 and t == TS[q][-1]:
                    for tt in TS[q]:
                        if OPT['smk']:
                            z('v_add_f32 v%d, v%d, v%d' % (V_CS + 4 * tt, V_CS + 4 * tt, V_CS + 4 * tt + 1))
                        z('ds_write_b32 v%d, v%d offset:%d' % (V_CSW, V_CS + 4 * tt, q * 1536 + (g + tt) * 512))
                out.append(z)
            return out

        def ext(q, t, k):
            return ext_parts(acc(q, t), q * 1536 + (g + t) * 512, (V_EXW, V_EXW + 2, V_CS)[k], True, T=V_T + 4 + 4 * k)

        def rload(z, dst, key, addr=V_RA):
            for i in range(4):
                z('ds_read_b128 %s, v%d offset:%d' % (vr(dst + 4 * i, 4), addr, i * 32), key)

        def stat_load(z):
            z('buffer_load_dword v%d, v%d, %s, s%d offen sc1' % (V_ST, V_ST + 1, sr(SWS, 4), S_H), 'stat')

        def stat_use(z):
            z('v_and_b32 v%d, 0xffff, v%d' % (T, V_ST))
            z('v_lshl_or_b32 v%d, v%d, 16, v%d' % (T, V_ST, T))
            z('v_cndmask_b32 v%d, v%d, 0, %s' % (V_EXR, T, sr(S_HI, 2)))

        def phi_k(t, rb):
            e = Seg()
            for i in range(4):
                a = [acc(0, t) + 4 * i + k for k in range(4)]
                for k in range(4):
                    e('v_fma_f32 v%d, v%d, v%d, s%d' % (a[k], a[k], rb + 4 * i + k, S_EPS))
                for k in range(4):
                    e('v_mul_f32 v%d, s%d, v%d' % (T + k, S_L2E, a[k]))
                for k in range(4):
                    e('v_exp_f32_e64 v%d, v%d clamp' % (T + k, T + k))
                for k in range(4):
                    e('v_max_f32 v%d, s%d, v%d' % (a[k], S_EPS, a[k]))
                for k in range(4):
                    e('v_add_f32 v%d, v%d, v%d' % (a[k], a[k], T + k))
                e('v_cvt_pk_bf16_f32 v%d, v%d, v%d' % (acc(0, t) + 2 * i, a[0], a[1]))
                e('v_cvt_pk_bf16_f32 v%d, v%d, v%d' % (acc(0, t) + 2 * i + 1, a[2], a[3]))
            return e

        def hand_addr(z):
            z('s_mul_i32 s%d, s%d, 10240' % (S_T0, S_RW))
            z('s_add_u32 s%d, s%d, %d' % (S_T0, S_T0, R2 + 8192))
            z('v_add_u32 v%d, s%d, v%d' % (V_XA, S_T0, V_L16))

        def prod_setup(z, rb):
            rload(z, rb, 'r2', V_ST + 3)
            z('v_cndmask_b32 v%d, 0, 1.0, %s' % (V_XA + 1, sr(S_PAD, 2)))
            z('s_lshl_b32 s%d, s%d, 12' % (S_T0, S_RW))
            z('s_add_u32 s%d, s%d, %d' % (S_T0, S_T0, HND))
            z('v_add_u32 v%d, s%d, v%d' % (V_XA + 2, S_T0, V_L16))

        def kv_prod(z, t, pk, rb):
            z.wait(lgkm='r2')
            v, d = acc(1, t), V_X + 16 * t + 64 * g
            for f in range(2):
                for k in range(8 * f, 8 * f + 8):
                    z('v_fma_f32 v%d, v%d, v%d, v%d' % (v + k, v + k, rb + k, V_XA + 1))
                for k in range(4):
                    z('v_cvt_pk_bf16_f32 v%d, v%d, v%d' % (v + 8 * f + k, v + 8 * f + 2 * k, v + 8 * f + 2 * k + 1))
            z('s_setprio 2')
            for f in range(2):
                z('v_mfma_f32_32x32x16_bf16 %s, %s, %s, %s' % (vr(d, 16), vr(pk + 4 * f, 4), vr(v + 8 * f, 4), vr(d, 16) if f else '0'))

        def part_write(z, t):
            for i in range(4):
                z('ds_write_b128 v%d, %s offset:%d' % (V_XA + 2, vr(V_X + 16 * t + 64 * g + 4 * i, 4), (1, 0, 2)[g + t] * 16384 + i * 1024))

        if not g:
            b('s_setprio 1')
        for c in range(-1, 7):
            barrier(b, 't0' if c < 0 else ['t1' if c == 0 and OPT['t1c'] else ('i', 2 * c + 3 if c < 6 else 14)], 's%d' % c if c >= 0 else 'pre')
            if c < 0:
                stamp(b, 1)
            d = Seg()
            if c == min(OPT['tat'], 2):
                touch_w2(d)
            if g and c == 3:
                f0_load(d)
            if g and c == 5:
                f0_check(d)
            skip = OPT['kah'] and c < 0
            if not skip:
                item(d, 2 * c + 6)
            if c == 4:
                b2b_setup(d)
                if OPT['smk']:
                    d('v_mov_b32 v%d, v%d' % (V_X1, T + 2))
            if c < 6 and not skip:
                item(d, 2 * c + 7)
            if c == OPT['twat'] and not OPT['touch'] & 64:
                touch_w(d, False, V_EXW)
            if c == 6:
                if g:
                    stat_load(d)
                else:
                    for j in range(4):
                        wread(d, 1, 0, j, 1)
            if not g and c >= 0:
                b.extend(d)
            for j in range(4):
                if c >= 0:
                    for z in kstep(0, c, j):
                        b.extend(z)
                else:
                    for t in TS[0]:
                        wread(b, 0, 0, j, t)
                    xread(b, 0, j)
            if g or c < 0:
                b.extend(d)
        barrier(b, [('i', 16)], 's7')
        stamp(b, 2)

        if g:
            RB = V_ACC + 48
            parts = [ext(0, t, t) for t in TS[0]]
            for p in parts:
                b.extend(p[0])
            item(b, 19)
            for p in parts:
                b.extend(p[1])
            item(b, 20)
            touch_l2(b, 0, V_W)
            hand_addr(b)
            b.wait(vm='stat')
            spin_check(b, V_ST, 1, V_ST + 1, SWS, 's%d' % S_H, 0xffffffff)
            stat_use(b)
            b('v_and_b32 v%d, 0xffff0000, v%d' % (T + 1, V_ST))
            b('v_rcp_f32 v%d, v%d' % (T + 1, T + 1))
            b('s_setprio 2')
            for p in parts:
                b.extend(p[2])
            b('s_setprio 0')
            b('ds_write_b32 v%d, v%d' % (V_ST + 2, T + 1))
            rload(b, RB, 'r')
            if OPT['tkat'] == 0:
                touch_kv(b)
            e = Seg()
            e.wait(lgkm='r')
            e.extend(phi_k(0, RB))
            for f in range(2):
                e('ds_write_b128 v%d, %s offset:%d' % (V_XA, vr(acc(0, 0) + 4 * f, 4), f * 1024))
            if two:
                barrier(b, [('i', 18)], 'v0')
                b.extend(e)
                barrier(b, [('i', 20)], 'v1')
                touch_kv(b)
                blocks = [k for k in (2, 6, 3, 5, 1) if OPT['kl2'] >> k & 1]
                l2 = Seg()
                if blocks:
                    l2('s_and_b32 s%d, s%d, 3' % (S_T2, S_I2))
                    l2('s_mul_i32 s%d, s%d, 28' % (S_T3, S_RW))
                    l2('s_add_u32 s%d, s%d, s%d' % (S_T2, S_T2, S_T3))
                    l2('s_mul_i32 s%d, s%d, %d' % (S_H, S_T2, 16 * XS))
                    l2('v_min_u32 v%d, %d, v%d' % (T + 10, 55 * 16, V_L16))
                    l2('v_lshlrev_b32 v%d, 3, v%d' % (T + 10, T + 10))
                for k in blocks:
                    for h in range(2):
                        l2('s_add_u32 s%d, s%d, %d' % (S_T3, S_H, (64 * k + 8 * h) * XS))
                        l2('buffer_load_dword v%d, v%d, %s, s%d offen' % (T + 9, T + 10, sr(SW2, 4), S_T3))
                l2 = groups(l2)
                for gi in l2[:OPT['kl2a']]:
                    b.extend(gi)
                barrier(b, None, 'v2')
                for gi in l2[OPT['kl2a']:OPT['kl2a'] + 1]:
                    b.extend(gi)
                barrier(b, None, 'v4')
                for gi in l2[OPT['kl2a'] + 1:]:
                    b.extend(gi)
                poll_early(b)
                b.extend(res_load(RES_KB))
                for u in range(4, 4 + OPT['kub']):
                    dma_b2(b, u)
                a_setup(b)
                barrier(b, None, 'v3')
                assert OPT['kna'] and OPT['kpa']
                stage_check(b, 0)
                for u in range(OPT['kna']):
                    aload(b, u)
                barrier(b, None, 'kk')
                if OPT['k2']:
                    b('s_barrier')
                b('s_branch L_p2k')
                return b
            d = Seg()
            if OPT['tkat'] == 1:
                touch_kv(d)
            touch_l2(d, 1, V_WB)
            if not OPT['kpa']:
                for u in range(OPT['kpf']):
                    dma_b2(d, u)
            r = Seg()
            for j in range(4):
                wread(r, 1, 0, j, 1)
            e.extend(mix(mix(phi_k(1, RB), [[i] for i in r]), groups(d), 0.3, 1.0))
            k0, k1 = OPT['kb0'], OPT['kb1']
            b.extend(e[:k0])
            barrier(b, [('i', 18)], 'v0')
            b.extend(e[k0:k1])
            barrier(b, [('i', 20)], 'v1')
            b.extend(e[k1:])
            prod_setup(b, RB)
            barrier(b, None, 'v2')
            stamp(b, 3)
            b('s_setprio 1')
            d = Seg()
            slots = [kstep(1, c, j)[0] for c in range(7) for j in range(4)]
            pre = Seg()
            barrier(pre, None, 'v4')
            slots[4 * OPT['kv4']][:0] = pre
            if OPT['kna']:
                poll_early(d)
            d.extend(res_load(RES_KB))
            for u in range(4, 4 + OPT['kub']):
                dma_b2(d, u)
            for k, gi in enumerate(groups(d)):
                slots[min(4 * OPT['kv4'] + 3 + 2 * k, 27)].extend(gi)
            for z in slots:
                b.extend(z)
            barrier(b, None, 'v3')
            b('s_setprio 2')
            b.extend(head([ext(1, 1, 0)]))
            d = Seg()
            if OPT['kna']:
                a_setup(b)
                stage_check(b, 0)
                for u in range(OPT['kna']):
                    aload(d, u)
            else:
                poll_early(b)
            d = groups(d)
            z = Seg()
            kv_prod(z, 1, acc(0, 1), RB)
            b.extend(mix(z, d[:OPT['kne']]))
            if not OPT['kna']:
                a_setup(b)
            part_write(b, 1)
            for gi in d[OPT['kne']:]:
                b.extend(gi)
            barrier(b, None, 'kk')
            stamp(b, 4)
            if OPT['k2']:
                b('s_barrier')
            b('s_branch L_p2k')
            return b
        pf = []
        for c in range(7):
            if c in (2, 4):
                barrier(b, [('i', 16 + c)], 'v%d' % (c // 2 - 1))
            for j in range(4):
                for z in kstep(1, c, j):
                    b.extend(z)
                if c < 2:
                    if j == 1:
                        d = Seg()
                        item(d, 19 + c)
                        d = groups(d)
                    if j in (1, 2):
                        b.extend(d[j - 1])
                if OPT['kpa'] and c == 2 and j == 0:
                    pf = Seg()
                    for u in range(OPT['kpf']):
                        dma_b2(pf, u)
                    pf = groups(pf)
                if OPT['kpa'] and pf and ((c >= 3 and j & 1) if OPT['kpa'] == 1 else c >= 5):
                    b.extend(pf.pop(0))
                if c == 2 and j == 1:
                    stat_load(b)
                if c == 5 and j == 1:
                    hand_addr(b)
                if c == 5 and j == 3:
                    b.wait(vm='stat')
                    stat_use(b)
        barrier(b, None, 'v2')
        stamp(b, 3)
        b('s_setprio %d' % OPT['khead'])
        b('v_mov_b32 v%d, 0' % (V_CS + 1))
        RB, RP = V_X + 64, V_WF
        e = head([ext(1, 1, 0), ext(0, 0, 1), ext(1, 0, 2)])
        z = Seg()
        prod_setup(z, RP)
        for f in range(2):
            z('ds_read_b128 %s, v%d offset:%d' % (vr(PK1 + 4 * f, 4), V_XA, f * 1024), 'r2')
        rload(z, RB, 'r')
        b.extend(e[:3] + list(z) + e[3:-3])
        b('s_setprio 2')
        b.extend(e[-3:])
        b('s_setprio 0')
        if OPT['kres']:
            b.extend(res_load(RES_KA))
        z = Seg()
        z('s_lshl_b32 s%d, s%d, 10' % (S_T1, S_RW))
        z('s_add_u32 s%d, s%d, %d' % (S_T1, S_T1, HND))
        z('v_add_u32 v%d, s%d, v%d' % (V_SEL + 2, S_T1, V_L16))
        z('s_cmp_eq_u32 s%d, 3' % S_RW)
        z('s_cselect_b64 vcc, %s, 0' % sr(S_HI, 2))
        z('v_lshrrev_b32 v%d, 2, v%d' % (V_SEL + 3, V_L16))
        z('v_cndmask_b32 v%d, v%d, v%d, vcc' % (V_SEL + 3, V_SEL + 3, V_FLO))
        z('s_lshl2_add_u32 s%d, s%d, s%d' % (S_H, S_LAST, S_RW))
        z('s_lshl_b32 s%d, s%d, 10' % (S_H, S_H))
        z('s_add_u32 s%d, s%d, 0x%x' % (S_H, S_H, KV_OFF))
        kv_prod(z, 1, PK1, RP)
        z('s_setprio 0')
        z.wait(lgkm='r')
        e = phi_k(0, RB)
        z.extend(e[:OPT['kearly']])
        barrier(z, None, 'v4')
        w, d = Seg(), Seg()
        part_write(w, 1)
        for u in range(4 + OPT['kub'], 4 + OPT['kub'] + OPT['kua']):
            dma_b2(d, u)
        z.extend(mix(e[OPT['kearly']:], [[i] for i in w] + groups(d)))
        k = len(z) + OPT['kcut']
        kv_prod(z, 0, acc(0, 0), RP)
        b.extend(z[:k])
        barrier(b, None, 'v3')
        b.extend(z[k:])
        b('s_add_u32 s%d, s%d, 4096' % (S_P, S_H))
        b('s_add_u32 s%d, s%d, 8192' % (S_HALF, S_H))
        b('s_cmp_eq_u32 s%d, 3' % S_PEND)
        b('s_cselect_b32 s%d, s%d, 0x%x' % (S_HALF, S_HALF, OOB))
        part_write(b, 0)
        R = V_X + 32

        def reduce(heads):
            for h in heads:
                for p in range(4):
                    b('ds_read_b128 %s, v%d offset:%d' % (vr(R + 16 * h + 4 * p, 4), V_SEL + 2, (1, 0, 2)[h] * 16384 + p * 4096), ('red', h))
            for h in heads:
                r = R + 16 * h
                b.wait(lgkm=[('red', h)])
                for k in (0, 2):
                    b('v_pk_add_f32 %s, %s, %s' % (vr(r + k, 2), vr(r + k, 2), vr(r + 4 + k, 2)))
                    b('v_pk_add_f32 %s, %s, %s' % (vr(r + 8 + k, 2), vr(r + 8 + k, 2), vr(r + 12 + k, 2)))
                    b('v_pk_add_f32 %s, %s, %s' % (vr(r + k, 2), vr(r + k, 2), vr(r + 8 + k, 2)))
                for k in range(4):
                    b('buffer_atomic_add_f32 v%d, v%d, %s, s%d offen offset:%d sc1' % (r + k, V_SEL + 3, sr(SWS, 4), (S_H, S_P, S_HALF)[h], k * 256), 'atom')

        if OPT['h1']:
            reduce([1])
        barrier(b, [('b', u) for u in range(11)], 'kk')
        stamp(b, 4)
        reduce([0, 2] if OPT['h1'] else [0, 1, 2])
        if OPT['k2']:
            b('s_barrier')
        stamp(b, 5)
        b('s_lshl_b32 s%d, s%d, 7' % (S_FL, S_LAST))
        b('s_lshl_b32 s%d, s%d, 28' % (S_T1, S_RW))
        b('s_add_u32 s%d, s%d, s%d' % (S_FL, S_FL, S_T1))
        b('s_add_u32 s%d, s%d, 0x%x' % (S_FL, S_FL, FKV_OFF))
        b('s_lshl_b32 s%d, s%d, 4' % (S_T1, S_PEND))
        b('v_cmp_gt_u32 vcc, s%d, v%d' % (S_T1, V_L16))
        b('v_lshlrev_b32 v%d, 3, v%d' % (V_PL, V_L16))
        b('v_cndmask_b32 v%d, v%d, v%d, vcc' % (V_PL, V_FLO, V_PL))
        if not OPT['kres']:
            b.extend(res_load(RES_KA))
        b.wait(vm='atom')
        sync_arrive(b, 0)
        sync_wait(b, 0, 4, T)
        stamp(b, 6)
        b('buffer_atomic_add v%d, v%d, %s, s%d offen sc1' % (V_ONE, V_PL, sr(SWS, 4), S_FL))
        b.extend(res_unpack(RES_KA))
        b('s_branch L_p2a')
        return b

    return s, body(0), body(1), body(1, True) if OPT['two'] else Seg('kc')


def frag_addr(s, T):
    s('v_lshrrev_b32 v%d, 4, v%d' % (T, V_L16))
    s('v_bfe_u32 v%d, v%d, 2, 2' % (T + 1, T))
    s('v_and_b32 v%d, 3, v%d' % (T + 2, T))
    s('v_bfe_u32 v%d, v%d, 4, 1' % (T + 3, T))
    s('v_lshl_add_u32 v%d, v%d, 2, v%d' % (T + 2, T + 3, T + 2))
    s('v_lshrrev_b32 v%d, 1, v%d' % (T + 3, T + 1))
    s('v_lshlrev_b32 v%d, 6, v%d' % (T + 3, T + 3))
    s('v_lshl_add_u32 v%d, v%d, 3, v%d' % (T + 2, T + 2, T + 3))
    s('v_lshl_add_u32 v%d, v%d, 7, v%d' % (T + 2, T + 1, T + 2))
    s('v_lshrrev_b32 v%d, 5, v%d' % (T + 3, T))
    s('v_lshl_add_u32 v%d, v%d, 9, v%d' % (T + 3, T + 3, T + 2))


def bf(par, ct):
    return V_BF + 8 * par + 4 * ct


def acc2(ct, rg):
    return V_ACC + 32 * ct + 16 * rg


def part_addr(g):
    z, T = Seg(), V_NUM
    z('v_bfe_u32 v%d, v%d, 4, 5' % (T, V_L16))
    z('v_and_b32 v%d, 7, v%d' % (T + 1, T))
    z('v_bfe_u32 v%d, v%d, 1, 1' % (T + 2, T))
    z('v_lshrrev_b32 v%d, 9, v%d' % (T + 3, V_L16))
    z('v_xor_b32 v%d, v%d, v%d' % (T + 2, T + 2, T + 3))
    z('v_lshl_add_u32 v%d, v%d, 3, v%d' % (T + 1, T + 2, T + 1))
    z('v_lshlrev_b32 v%d, 4, v%d' % (T + 1, T + 1))
    z('v_lshl_add_u32 v%d, v%d, 8, v%d' % (T + 1, T, T + 1))
    z('v_add_u32 v%d, s%d, v%d' % (T + 8, S_QR0, T + 1))
    if g:
        z('v_add_u32 v%d, s%d, v%d' % (T + 16, S_QR2, T + 1))
    else:
        z('v_add_u32 v%d, 8192, v%d' % (T + 16, T + 8))
    for rg in range(2):
        for k in range(1, 8):
            z('v_xor_b32 v%d, %d, v%d' % (T + 8 + 8 * rg + k, k << 4, T + 8 + 8 * rg))
    return z


def read_addr(g, R):
    z, T = Seg(), R
    z('v_bfe_u32 v%d, v0, 3, 5' % (T + 1))
    z('v_and_b32 v%d, 0x70, v%d' % (T + 2, V_L16))
    z('v_and_b32 v%d, 7, v%d' % (T + 3, T + 1))
    z('v_bfe_u32 v%d, v%d, 1, 1' % (T + 4, T + 1))
    z('v_lshl_add_u32 v%d, v%d, 3, v%d' % (T + 3, T + 4, T + 3))
    z('v_lshlrev_b32 v%d, 4, v%d' % (T + 3, T + 3))
    z('v_xor_b32 v%d, v%d, v%d' % (T + 3, T + 3, T + 2))
    z('v_lshl_add_u32 v%d, v%d, 8, v%d' % (V_RD, T + 1, T + 3))
    if g:
        z('v_add_u32 v%d, %d, v%d' % (V_RD, R2, V_RD))
    z('v_xor_b32 v%d, 128, v%d' % (V_RD + 1, V_RD))
    return z


def acc_major(s, units, wreg, areg, wtag, atag, fresh, fill=()):
    slots, order = [], [(0, 0), (1, 0), (0, 1), (1, 1)]
    for ct, rg in order:
        for k, u in enumerate(units):
            z = Seg()
            z.wait(vm=[atag(u, rg)], lgkm=[wtag(u, ct)])
            z('v_mfma_f32_32x32x16_bf16 %s, %s, %s, %s' % (vr(acc2(ct, rg), 16), vr(wreg(u, ct), 4), vr(areg(u, rg), 4), '0' if fresh and k == 0 else vr(acc2(ct, rg), 16)))
            slots.append(z)
    n = len(units)
    for k, gi in enumerate(fill):
        slots[k].extend(gi)
    wr = [Ins('ds_write_b128 v%d, %s' % (V_NUM + 8 + 8 * rg + 4 * ct + i, vr(acc2(ct, rg) + 4 * i, 4))) for ct, rg in order for i in range(4)]
    pos = [[13, 14, 16, 18, 20, 22, 24, 26], [10, 11, 13, 14, 18, 19, 21, 22, 26, 27], [10, 12, 14, 16, 18, 20, 22, 24, 26, 27], [10, 11, 13, 14, 18, 19, 20, 21], [13, 14, 15, 17, 19, 20, 21, 22]][OPT['wpos']]
    for k, p in enumerate(pos):
        slots[p].append(wr[k])
        if k == 7 and OPT['early']:
            sync_arrive(slots[p], 0)
    for z in slots:
        s.extend(z)
    s.extend(wr[len(pos):])


def final(g):
    s = Seg('final%d' % g)
    D, U = V_AB, V_U
    stamp(s, 8)
    if OPT['early'] and not g:
        sync_wait(s, 0, 4, V_BF, 4)
    else:
        barrier(s)
    stamp(s, 9)
    for w in range(4):
        for h in range(2):
            s('ds_read_b128 %s, v%d offset:%d' % (vr(D + 8 * w + 4 * h, 4), V_RD + h, w * (10240 if g else 12288)), ('fin', w))
    for w in range(4):
        s.wait(lgkm=[('fin', w)])
        for k in range(4):
            s('v_pk_add_f32 %s, %s, %s' % (vr(U + 2 * k, 2), vr(U + 2 * k, 2), vr(D + 8 * w + 2 * k, 2)))
    for k in range(4):
        s('v_cvt_pk_bf16_f32 v%d, v%d, v%d' % (U + k, U + 2 * k, U + 2 * k + 1))
    s('buffer_store_dwordx4 %s, v%d, %s, s%d offen' % (vr(U, 4), V_OUT, sr(SOUT, 4), S_OUTO) + ['', ' sc1', ' nt', ' sc0 sc1', ' nt sc1', ' sc0 nt sc1'][OPT['osc']])
    if OPT['early'] and not g:
        s('s_barrier')
    return s


def phase2b(nm, na, bdone):
    s, T = Seg('p2' + nm), V_NUM
    RING[0] = 14 if nm == 'f' else 11
    UW = 10
    s('L_p2%s:' % nm)
    stamp(s, 5)
    s('s_setprio 1')
    V_PW, V_PX, RES = 11, 14, V_AB + 48
    pend = [v for v in range(35) if v not in bdone]
    first = [v for v in pend if v < OPT['b0' if nm == 'k' else 'b0f']]
    pend = pend[len(first):]
    BS = {}
    for u in range(28):
        n = 1 if u + DEP - 1 < 28 else 2
        BS[u] = [v for v in pend[:n] if v - RING[0] + 1 <= u]
        pend = pend[len(BS[u]):]
    assert not pend

    def oloads():
        z = Seg()
        for rg in range(2):
            for u in range(7):
                z('buffer_load_dwordx4 %s, v%d, %s, s%d offen offset:%d sc1' % (vr(abuf(28 + u, rg), 4), V_L16B if rg else V_L16, sr(SWS, 4), S_RO3 if u >= 4 else S_P, (u & 3) * 1024), ('o', 28 + u, rg))
        return list(z)

    def word_check(z, u, n, hit=None):
        z.wait(lgkm=[('pw', u)])
        z('v_readfirstlane_b32 s%d, v%d' % (S_T2, V_PW))
        z('s_cmp_lt_u32 s%d, %d' % (S_T2, n))
        if hit:
            z('s_cbranch_scc0 %s' % hit)
            return
        j = nspin[0]
        nspin[0] += 1
        z('s_cbranch_scc1 L_slow%d' % j)
        z('L_ret%d:' % j)
        slow('L_slow%d:' % j)
        slow('s_add_u32 s%d, s%d, 1' % (S_SPIN, S_SPIN))
        slow('s_cmp_gt_u32 s%d, 0x%x' % (S_SPIN, SPIN_LIMIT << 3))
        slow('s_cbranch_scc1 L_ret%d' % j)
        slow('ds_read_b32 v%d, v%d' % (V_PW, V_PX))
        slow('s_waitcnt lgkmcnt(0)')
        slow('v_readfirstlane_b32 s%d, v%d' % (S_T2, V_PW))
        slow('s_nop 0')
        slow('s_cmp_lt_u32 s%d, %d' % (S_T2, n))
        slow('s_cbranch_scc1 L_slow%d' % j)
        slow('s_branch L_ret%d' % j)

    z = Seg()
    if na == 0:
        for v in first[:2]:
            dma_b2(z, v)
        first = first[2:]
        stage_check(z, 0)
    for u in range(na, DEP - 1):
        if u == OPT['p1at']:
            poll_async(z, 1)
        aload(z, u)
        if first:
            dma_b2(z, first.pop(0))
    if na > OPT['p1at']:
        poll_async(z, 1)
    for v in first:
        dma_b2(z, v)
    y = Seg()
    frag_addr(y, T)
    for reg, base in enumerate((S_QR0, S_QR2, S_QR3)[:3 if nm == 'f' else 2]):
        y('v_add_u32 v%d, s%d, v%d' % (BA[2 * reg], base, T + 3))
        y('v_xor_b32 v%d, 64, v%d' % (BA[2 * reg + 1], BA[2 * reg]))
    y('v_subrev_u32 v%d, 16, v%d' % (V_PX, V_PA))
    y.extend(res_unpack(RES_F if nm == 'f' else RES_KB))
    s.extend(mix(y, groups(z)))

    def wreg(u, ct):
        return bf(u & 1, ct) if u < 28 else V_AB + 32 * (1 - ct) + 4 * (u - 28)

    def bread(u, ct):
        z = Seg()
        _, reg, off = unit_loc(u)
        if not (OPT['x_free'] and u < 11):
            z.wait(vm=[('b', u)])
        for h in range(2):
            z('ds_read_b64_tr_b16 %s, v%d offset:%d' % (vr(wreg(u, ct) + 2 * h, 2), BA[2 * reg + ct], off + h * 1024), ('bf', u, ct))
        return z

    s.extend(bread(0, 0) + bread(0, 1))
    late = Seg()
    late('v_add_u32 v%d, %d, v%d' % (V_B2S, 52 * XS, V_B2))
    late('v_cndmask_b32 v%d, v%d, v%d, %s' % (V_B2S, V_B2, V_B2S, sr(S_HI, 2)))
    late = list(read_addr(1, RES)) + list(late) + list(part_addr(1))
    SITES = [[23, 25, 27, 28], [23, 24, 26, 28], [21, 23, 25, 28], [22, 24, 26, 28]][OPT['sites']]
    U2 = 17 - DEP

    def unit(s, u, extra, word):
        nxt = u + DEP - 1
        z = Seg()
        if nxt < 28:
            aload(z, nxt)
        for v in BS[u]:
            dma_b2(z, v)
        now = groups(z) + [[i] for i in extra]
        if 10 <= u < 20:
            k0, k1 = len(late) * (u - 10) // 10, len(late) * (u - 9) // 10
            now += [[i] for i in late[k0:k1]]
        if u < 27:
            rd = [bread(u + 1, 0), bread(u + 1, 1), Seg(), Seg()]
        else:
            rd = [bread(28 + k, 0) for k in range(4)]
        if word:
            rd[2]('ds_read_b32 v%d, v%d' % (V_PW, V_PX), ('pw', u + 1))
        s.wait(vm=[('a', u)])
        stamp(s, 'u%d' % u)
        k = 0
        for ct in range(2):
            s.wait(lgkm=[('bf', u, ct)])
            for rg in ((1, 0) if ct and OPT['gray'] else (0, 1)):
                s('v_mfma_f32_32x32x16_bf16 %s, %s, %s, %s' % (vr(acc2(ct, rg), 16), vr(wreg(u, ct), 4), vr(abuf(u, rg), 4), vr(acc2(ct, rg), 16) if u else '0'))
                s.extend(rd[k])
                for gi in range(len(now) * k // 4, len(now) * (k + 1) // 4):
                    s.extend(now[gi])
                k += 1

    main, alts = [s], []
    for u in range(28):
        if u + DEP - 1 == 8:
            stage_check(s, 1)
            stamp(s, 'c1')
        if u == UW and nm == 'f':
            word_check(s, u, 1)
        if u == U2:
            word_check(s, u, 3)
            stamp(s, 'c2')
        if u in SITES:
            word_check(s, u, 7, hit='L_p2o%s%d' % (nm, u))
            a = Seg('p2o%d' % u)
            a('L_p2o%s%d:' % (nm, u))
            stamp(a, 'c3')
            o = oloads()[:14 - OPT['otail']]
            for v in range(u, 28):
                unit(a, v, o[:OPT['oper']], False)
                o = o[OPT['oper']:]
            a.extend(o)
            a('s_branch L_p2tail%s' % nm)
            alts.append((list(main), a))
            s = Seg('p2m%d' % u)
            main.append(s)
        unit(s, u, [], u + 1 in SITES + [UW, U2])
    word_check(s, 28, 7)
    stamp(s, 'c3')
    s.extend(oloads()[:14 - OPT['otail']])
    t = Seg('p2t')
    t('L_p2tail%s:' % nm)
    stamp(t, 'tl')
    fill = [bread(u, 0) for u in range(32, 35)] + [bread(u, 1) for u in range(28, 35)]
    for k, i in enumerate(oloads()[14 - OPT['otail']:]):
        fill[k] = [i] + list(fill[k])
    acc_major(t, range(28, 35), wreg, abuf, lambda u, ct: ('bf', u, ct), lambda u, rg: ('o', u, rg), False, fill)
    t.extend(final(1))
    t('s_branch L_fin')
    return [m + [a, t] for m, a in alts] + [main + [t]], [a for _, a in alts] + main + [t]


def phase2a():
    s = Seg('p2a')
    s('L_p2a:')
    if OPT['diag'] == 7:
        s('v_mov_b32 v60, s%d' % S_KA)
        s('s_lshl3_add_u32 s%d, s2, s%d' % (S_T0, S_WV))
        s('s_lshl_b32 s%d, s%d, 8' % (S_T0, S_T0))
        s('s_add_u32 s%d, s%d, 0x%x' % (S_T0, S_T0, TS_OFF))
        s('buffer_store_dword v60, v%d, %s, s%d offen sc1' % (V_FLO, sr(SWS, 4), S_T0))
    s('s_and_b32 s%d, s%d, 30' % (S_T0, S_I2))
    s('s_lshr_b32 s%d, s%d, 1' % (S_T1, S_RW))
    s('s_add_u32 s%d, s%d, s%d' % (S_T0, S_T0, S_T1))
    s('s_and_b32 s%d, s%d, 1' % (S_T1, S_I2))
    s('s_lshl1_add_u32 s%d, s%d, s%d' % (S_T0, S_T0, S_T1))
    s('s_lshl3_add_u32 s%d, s%d, s%d' % (S_T0, S_T0, S_ROLE))
    s('s_lshl_b32 s%d, s%d, 7' % (S_T0, S_T0))
    s('s_add_u32 s%d, s%d, 0x%x' % (S_PL, S_T0, FO_OFF))
    s('s_and_b32 s%d, s%d, 1' % (S_T1, S_RW))
    s('s_lshl3_add_u32 s%d, s%d, s%d' % (S_T3, S_T1, S_PL))
    s('s_add_u32 s%d, s%d, 8' % (S_T3, S_T3))
    for val, nm in ((3, 'a2'), (7, 7)):
        j = nspin[0]
        nspin[0] += 1
        s('v_mov_b32 v%d, %d' % (V_BF + 8 + val, val))
        if not OPT['x_nopoll']:
            s('L_pa%d:' % j)
            if val == 3:
                s('s_buffer_load_dwordx2 %s, %s, s%d glc' % (sr(S_T0, 2), sr(SWS, 4), S_T3))
            else:
                s('s_buffer_load_dword s%d, %s, s%d glc' % (S_T0, sr(SWS, 4), S_PL))
            s('s_add_u32 s%d, s%d, 1' % (S_SPIN, S_SPIN))
            s('s_cmp_gt_u32 s%d, 0x%x' % (S_SPIN, SPIN_LIMIT))
            s('s_waitcnt lgkmcnt(0)')
            s('s_cbranch_scc1 L_pz%d' % j)
            s('s_and_b32 s%d, s%d, s%d' % (S_T0, S_T0, S_T1 if val == 3 else S_T0))
            s('s_cbranch_scc0 L_pa%d' % j)
            s('L_pz%d:' % j)
        s('ds_write_b32 v%d, v%d' % (V_PA, V_BF + 8 + val))
        stamp(s, nm)
        if val == 3:
            s.extend(read_addr(0, V_BF))
    s.extend(final(0))
    return s


def fin():
    s = Seg('fin')
    s('L_fin:')
    if OPT['diag'] and OPT['diag'] != 7:
        stamp(s, 10)
        s('s_waitcnt lgkmcnt(0)')
        s('v_mov_b32 v4, 0')
        for k in range(7):
            s('v_writelane_b32 v4, s%d, %d' % (S_KA + 2 * k, k))
        s('v_writelane_b32 v4, s%d, 11' % S_SPIN)
        s('s_lshl3_add_u32 s%d, s2, s%d' % (S_T0, S_WV))
        s('s_lshl_b32 s%d, s%d, 8' % (S_T0, S_T0))
        s('s_add_u32 s%d, s%d, 0x%x' % (S_T0, S_T0, TS_OFF))
        s('v_lshrrev_b32 v5, 2, v%d' % V_L16)
        s('buffer_store_dword v4, v5, %s, s%d offen' % (sr(SWS, 4), S_T0))
        if OPT['diag'] == 3:
            s('s_not_b32 s%d, s%d' % (S_T0, S_KA))
            s('v_writelane_b32 v4, s%d, 11' % S_T0)
            s('s_cmp_eq_u32 s%d, 4' % S_WV)
            s('s_cselect_b32 s%d, 16, 0x%x' % (S_T0, OOB))
            s('s_cmp_lt_u32 s%d, 4' % S_ROLE)
            s('s_cselect_b32 s%d, s%d, 0x%x' % (S_T0, S_T0, OOB))
            s('s_mov_b64 exec, 0xfff')
            s('buffer_atomic_umax v4, v5, %s, s%d offen sc1' % (sr(SDBG, 4), S_T0))
    if OPT['diag'] == 6:
        s('s_cmp_lg_u32 s%d, 4' % S_WV)
        s('s_cbranch_scc1 L_end')
        s('s_mov_b64 exec, 1')
        s('s_getreg_b32 s%d, hwreg(HW_REG_XCC_ID, 0, 4)' % S_T0)
        s('s_sub_u32 s%d, s%d, s2' % (S_T0, S_T0))
        s('s_and_b32 s%d, s%d, 7' % (S_T0, S_T0))
        s('s_lshl_b32 s%d, 1, s%d' % (S_T0, S_T0))
        s('v_mov_b32 v4, s%d' % S_T0)
        s('v_mov_b32 v6, 1')
        s('v_mov_b32 v7, 0')
        s('buffer_atomic_or v4, v7, %s, 0 offen offset:16 sc1' % sr(SDBG, 4))
        s('s_waitcnt vmcnt(0)')
        s('buffer_atomic_add v6, v7, %s, 0 offen offset:136 sc0 sc1' % sr(SDBG, 4))
        s('s_waitcnt vmcnt(0)')
        s('v_readfirstlane_b32 s%d, v6' % S_T0)
        s('s_cmp_lg_u32 s%d, 255' % S_T0)
        s('s_cbranch_scc1 L_end')
        s('buffer_load_dword v4, v7, %s, 0 offen offset:16 sc1' % sr(SDBG, 4))
        s('s_waitcnt vmcnt(0)')
        s('v_readfirstlane_b32 s%d, v4' % S_T0)
        s('s_bcnt1_i32_b32 s%d, s%d' % (S_T0, S_T0))
        s('s_mul_i32 s%d, s%d, 2000' % (S_T0, S_T0))
        s('s_memrealtime s[66:67]')
        s('s_waitcnt lgkmcnt(0)')
        s('L_dly:')
        s('s_memrealtime s[68:69]')
        s('s_waitcnt lgkmcnt(0)')
        s('s_sub_u32 s68, s68, s66')
        s('s_cmp_lt_u32 s68, s%d' % S_T0)
        s('s_cbranch_scc1 L_dly')
    if OPT['diag'] == 5:
        s('s_cmp_lg_u32 s%d, 4' % S_WV)
        s('s_cbranch_scc1 L_end')
        s('s_mov_b64 exec, 1')
        s('s_not_b32 s%d, s%d' % (S_T0, S_KA + 2 * OPT['sa']))
        s('v_mov_b32 v4, s%d' % S_T0)
        s('v_mov_b32 v5, s%d' % (S_KA + 2 * OPT['sb']))
        s('v_mov_b32 v6, 1')
        s('v_mov_b32 v7, 0')
        s('buffer_atomic_umax v4, v7, %s, 0 offen offset:128 sc1' % sr(SDBG, 4))
        s('buffer_atomic_umax v5, v7, %s, 0 offen offset:132 sc1' % sr(SDBG, 4))
        s('s_waitcnt vmcnt(0)')
        s('buffer_atomic_add v6, v7, %s, 0 offen offset:136 sc0 sc1' % sr(SDBG, 4))
        s('s_waitcnt vmcnt(0)')
        s('v_readfirstlane_b32 s%d, v6' % S_T0)
        s('s_cmp_lg_u32 s%d, 255' % S_T0)
        s('s_cbranch_scc1 L_end')
        s('buffer_load_dwordx2 v[4:5], v7, %s, 0 offen offset:128 sc1' % sr(SDBG, 4))
        s('s_waitcnt vmcnt(0)')
        s('v_add_u32 v4, v4, v5')
        s('s_nop 1')
        s('v_readfirstlane_b32 s%d, v4' % S_T0)
        s('s_add_u32 s%d, s%d, 1' % (S_T0, S_T0))
        s('s_mul_i32 s%d, s%d, %d' % (S_T0, S_T0, OPT['mul']))
        s('s_min_u32 s%d, s%d, 200000' % (S_T0, S_T0))
        s('s_memrealtime s[66:67]')
        s('s_waitcnt lgkmcnt(0)')
        s('L_dly:')
        s('s_memrealtime s[68:69]')
        s('s_waitcnt lgkmcnt(0)')
        s('s_sub_u32 s68, s68, s66')
        s('s_cmp_lt_u32 s68, s%d' % S_T0)
        s('s_cbranch_scc1 L_dly')
    if OPT['diag'] == 4:
        s('s_cmp_lg_u32 s2, %d' % OPT['wg'])
        s('s_cbranch_scc1 L_end')
        s('s_cmp_lg_u32 s%d, %d' % (S_WV, OPT['wv']))
        s('s_cbranch_scc1 L_end')
        s('s_sub_u32 s%d, s%d, s%d' % (S_T0, S_KA + 2 * OPT['sb'], S_KA + 2 * OPT['sa']))
        if not OPT['clk']:
            s('s_mul_i32 s%d, s%d, 10' % (S_T0, S_T0))
        s('s_min_u32 s%d, s%d, 200000' % (S_T0, S_T0))
        s('s_memrealtime s[66:67]')
        s('s_waitcnt lgkmcnt(0)')
        s('L_dly:')
        s('s_memrealtime s[68:69]')
        s('s_waitcnt lgkmcnt(0)')
        s('s_sub_u32 s68, s68, s66')
        s('s_cmp_lt_u32 s68, s%d' % S_T0)
        s('s_cbranch_scc1 L_dly')
    s('L_end:')
    s('s_endpgm')
    return s


def main():
    pro, prw, pre, prw1, pre1 = prologue()
    f, fa, fb = lc_role(True)
    q, qa, qb = lc_role(False)
    qo = q_out()
    k, ka, kb, kc = kv_role()
    fpaths, fsegs = phase2b('f', OPT['na'], list(range(8 + OPT['nb'])) + [11, 12, 13])
    kpaths, ksegs = phase2b('k', OPT['kna'], list(range(4 + OPT['kua'] + OPT['kub'])))
    p2segs, p2a, fi = fsegs + ksegs, phase2a(), fin()
    paths = [
        [pro, pre, pre1, f, fa, p2a, fi],
        [pro, pre, pre1, q, qa, qo, fi],
        [pro, prw, pre, prw1, pre1, q, qb, qo, fi],
        [pro, prw, pre, prw1, pre1, k, ka, p2a, fi],
    ]
    paths += [[pro, prw, pre, prw1, pre1, f, fb] + p + [fi] for p in fpaths] + [[pro, prw, pre, prw1, pre1, k, x] + p + [fi] for p in kpaths for x in ((kb, kc) if OPT['two'] else (kb,))]
    if OPT['jit']:
        import random
        rnd, seen = random.Random(OPT['jit']), set()
        for p in paths:
            for seg in p:
                if id(seg) in seen:
                    continue
                seen.add(id(seg))
                out = []
                for i in seg:
                    out.append(i)
                    if i.op == 's_barrier' or (i.kind == 'label' and i.text.startswith(('L_ret', 'L_p2'))):
                        j = nspin[0]
                        nspin[0] += 1
                        out += [Ins('s_add_u32 s56, s2, s%d' % S_WV), Ins('s_bitcmp1_b32 0x%x, s56' % rnd.getrandbits(32)),
                                Ins('s_cbranch_scc0 L_j%d' % j), Ins('s_sleep %d' % rnd.choice((2, 5, 12, 30))), Ins('L_j%d:' % j)]
                seg[:] = out
    resolve_waits(paths)
    if OPT['hoist']:
        hoist_m0(paths)
    bad = verify_async(paths)
    assert not bad, '\n'.join(bad)
    n = pad_hazards(paths)
    assert pad_hazards(paths) == 0
    notes = {
        'pro': 'prologue: role decode, first x / weight DMA group',
        'proe': 'shared set-up in the shadow of the first loads',
        'f': 'FFN1 role (128 rows x 224 hidden columns): h = gelu(LN(x) w1 + b1)',
        'fa': 'FFN1, waves 0-3: tiles 0, 2, 4, 6', 'fb': 'FFN1, waves 4-7: row statistics, tiles 1, 3, 5',
        'kv': 'KV role (128 rows x up to 3 heads): phi(k)^T [v | 1], summed over row blocks with float atomics',
        'ka': 'KV, waves 0-3', 'kb': 'KV, waves 4-7', 'kc': 'KV, waves 4-7 of a two-head window',
        'q': 'Q role (128 rows x 8 heads): hand-off initialisation, row statistics, phi(q)',
        'qa': 'Q, waves 0-3', 'qb': 'Q, waves 4-7', 'qo': 'Q: o = phi(q) kv / (phi(q) z + 1e-6)',
        'p2f': 'phase 2 after FFN1, waves 4-7: [h | o] [w2 ; wo] for a 64 x 64 output tile, k split over the waves',
        'p2k': 'phase 2 after KV, waves 4-7', 'p2t': 'phase 2 tail: o wo, cross-wave reduction, residual and bias',
        'p2a': 'phase 2, waves 0-3: hand-off watcher and final reduction', 'slow': 'bounded waiting loops',
    }
    for seg in [pro, pre, f, fa, fb, k, ka, kb, kc, q, qa, qb, qo] + p2segs + [p2a, slow]:
        if seg.name in notes and len(seg):
            seg.insert(0, Ins('; ---- ' + notes[seg.name]))
        elif seg.name.startswith('p2o'):
            seg.insert(0, Ins('; ---- o arrived before unit %s: fetch it under the remaining FFN units' % seg.name[3:]))
    body = render([pro, prw, pre, prw1, pre1, f, fa, fb, k, ka, kb, kc, q, qa, qb, qo] + p2segs + [p2a, fi, slow])
    head = open('cdna_kernels/%s.s.ref' % NAME).read().split('\n')
    head = [l for l in head if l.startswith(';') and '@launch' not in l]
    head += [
        '; One persistent launch, one workgroup per CU. Phase 1: FFN1 / KV / Q roles on 128-row blocks; LayerNorm is folded',
        '; into the GEMMs (rstd * (x W - mean * colsum(W))). h and o travel through d_ws as MFMA operand fragments with',
        '; write-through stores and flags that the launch zeroes itself (d_debug counts the zeroing workgroups).',
        '; Phase 2: out = x + b2 + [h | o] [w2 ; wo] on 64 x 64 tiles. Every waiting loop is bounded.',
    ]
    out = '\n'.join(head) + '''
; @launch grid=(256,1,1) block=(512,1,1) lds=%d
.amdgcn_target "amdgcn-amd-amdhsa--gfx950"
.text
.globl %s_kernel
.p2align 8
.type %s_kernel,@function
%s_kernel:
L_codebeg:
%s
L_codeend:
.section .rodata,"a"
.p2align 6
.amdhsa_kernel %s_kernel
  .amdhsa_next_free_vgpr 256
  .amdhsa_next_free_sgpr 102
  .amdhsa_accum_offset 256
  .amdhsa_group_segment_fixed_size 0
  .amdhsa_kernarg_size 88
  .amdhsa_user_sgpr_count 2
  .amdhsa_user_sgpr_kernarg_segment_ptr 1
  .amdhsa_system_sgpr_workgroup_id_x 1
.end_amdhsa_kernel
''' % (LDS_BYTES, NAME, NAME, NAME, body, NAME)
    if OPT['x_plain'] & 1:
        out = '\n'.join(l.replace(' sc1', '') if 'buffer_store_dwordx4' in l else l for l in out.split('\n'))
    if OPT['x_plain'] & 2:
        out = '\n'.join(l.replace(' sc1', '') if 'buffer_load_dwordx4' in l else l for l in out.split('\n'))
    if OPT['x_drop'] & 1:
        out = '\n'.join('    s_nop 0' if 'v_mfma_f32_16x16x32' in l else l for l in out.split('\n'))
    if OPT['x_drop'] & 16:
        i, j = out.index('L_kv:'), out.index('L_q:')
        out = out[:i] + '\n'.join('    s_nop 0' if 'v_mfma_f32_16x16x32' in l or 'v_max_f32' in l or 'v_mul_f32' in l else l for l in out[i:j].split('\n')) + out[j:]
    if OPT['x_drop'] & 32:
        j = out.index('L_kv:')
        out = '\n'.join('    s_nop 0' if 'v_mfma_f32_16x16x32' in l or 'v_fma_f32' in l else l for l in out[:j].split('\n')) + out[j:]
    if OPT['x_drop'] & 2:
        out = '\n'.join('    s_nop 0' if 'v_dot2c' in l else l for l in out.split('\n'))
    if OPT['x_drop'] & 4:
        i, j = out.index('L_p2of23:'), out.index('L_p2a:')
        out = out[:i] + '\n'.join('    s_nop 7' if 'v_mfma' in l else l for l in out[i:j].split('\n')) + out[j:]
    if OPT['x_drop'] & 8:
        i = out.index('L_p2of23:')
        out = '\n'.join('    s_nop 7' if 'v_mfma_f32_32x32x16' in l else l for l in out[:i].split('\n')) + out[i:]
    open(sys.argv[1], 'w').write(out)
    print('wrote %s: %d lines, %d pad states' % (sys.argv[1], out.count('\n'), n))


main()
```
